```python
import torch

def _softmax(x, axis=-1):
    return torch.softmax(x, dim=axis)
def _gelu(x):
    return torch.nn.functional.gelu(x, approximate="tanh")
def _silu(x):
    return torch.nn.functional.silu(x)
def _sigmoid(x):
    return torch.sigmoid(x)
def _layernorm(x, axis=-1, eps=1e-5):
    m = x.mean(dim=axis, keepdim=True)
    v = x.var(dim=axis, keepdim=True, unbiased=False)
    return (x - m) / torch.sqrt(v + eps)
def _scatter_add(tgt, idx, src, axis=0):
    return tgt.clone().index_add_(axis, idx, src)
def _segment_sum(src, seg, n):
    out = torch.zeros((n,) + src.shape[1:], dtype=src.dtype)
    return out.index_add_(0, seg, src)
def _pad(x, pw):
    flat = tuple(v for pair in reversed(pw) for v in pair)
    return torch.nn.functional.pad(x, flat)

kernel_name = 'sequential_preLN__grouped_kv_mqa__geglu_ffn__prompt'

def setup_inputs():

    _w = (lambda a: (lambda t: t.to(torch.bfloat16) if t.is_floating_point() else t)(torch.as_tensor(a)))
    def _A_setup():
        B, S, D, H = 1, 2048, 640, 32
        Dh = D // H
        return {
            "x": _w((lambda *s: torch.randn(*s, dtype=torch.bfloat16) * 0.05)(B, S, D)),
            "wq": _w((lambda *s: torch.randn(*s, dtype=torch.bfloat16) * 0.05)(D, H * Dh)),
            "wk": _w((lambda *s: torch.randn(*s, dtype=torch.bfloat16) * 0.05)(D, Dh)),
            "wv": _w((lambda *s: torch.randn(*s, dtype=torch.bfloat16) * 0.05)(D, Dh)),
            "wo": _w((lambda *s: torch.randn(*s, dtype=torch.bfloat16) * 0.05)(H * Dh, D)),
        }
    _A_in = _A_setup()

    def _B_setup():
        B, S, D, F = 1, 2048, 640, 1536
        return {
            "x": _w((lambda *s: torch.randn(*s, dtype=torch.bfloat16) * 0.05)(B, S, D)),
            "w_gate": _w((lambda *s: torch.randn(*s, dtype=torch.bfloat16) * 0.05)(D, F)),
            "w_up": _w((lambda *s: torch.randn(*s, dtype=torch.bfloat16) * 0.05)(D, F)),
            "w_down": _w((lambda *s: torch.randn(*s, dtype=torch.bfloat16) * 0.05)(F, D)),
        }
    _B_in = _B_setup()

    return {
        "A_x": _A_in["x"],
        "A_wq": _A_in["wq"],
        "A_wk": _A_in["wk"],
        "A_wv": _A_in["wv"],
        "A_wo": _A_in["wo"],
        "B_x": _B_in["x"],
        "B_w_gate": _B_in["w_gate"],
        "B_w_up": _B_in["w_up"],
        "B_w_down": _B_in["w_down"],
    }

def reference(A_x, A_wq, A_wk, A_wv, A_wo, B_x, B_w_gate, B_w_up, B_w_down):
    def _A_ref(x, wq, wk, wv, wo):
        B, S, D = x.shape
        H = 32
        Dh = D // H
        q = (lambda x, *d: x.permute(*d))((x @ wq).reshape(B, S, H, Dh), 0, 2, 1, 3)
        k = x @ wk
        v = x @ wv
        scores = torch.einsum("bhqd,bkd->bhqk", q, k) * (Dh ** -0.5)
        p = _softmax(scores, axis=-1)
        o = torch.einsum("bhqk,bkd->bhqd", p, v)
        return (lambda x, *d: x.permute(*d))(o, 0, 2, 1, 3).reshape(B, S, H * Dh) @ wo

    def _B_ref(x, w_gate, w_up, w_down):
        return (_gelu(x @ w_gate) * (x @ w_up)) @ w_down

    x = A_x
    h = x + _A_ref(_layernorm(x, axis=-1), A_wq, A_wk, A_wv, A_wo)
    h2 = h + _B_ref(_layernorm(h, axis=-1), B_w_gate, B_w_up, B_w_down)
    return h2
```

```python
import sys

NAME = "sequential_preLN__grouped_kv_mqa__geglu_ffn__prompt"

S, D, H, DH, F = 2048, 640, 32, 20, 1536

WS_Q   = 0
WS_KF  = 0x280000
WS_VF  = WS_KF + 0x20000
WS_KN  = WS_VF + 0x20000
WS_CS  = WS_KN + 0x1000
WS_O   = WS_CS + 0x4000
WS_H   = WS_O + 0x280000
WS_ST  = WS_H + 0x280000
WS_ACT = WS_ST + 0x20000

KA_X, KA_WQ, KA_WK, KA_WV, KA_WO, KA_BX, KA_WG, KA_WU, KA_WD, KA_OUT, KA_DBG, KA_WS = [8 * i for i in range(12)]

import struct
def f32(x):
    return "0x%08x" % struct.unpack("<I", struct.pack("<f", x))[0]


class Asm:
    def __init__(self):
        self.lines = []
        self.nlabel = 0

    def __call__(self, s):
        for l in s.split("\n"):
            l = l.strip()
            if l:
                self.lines.append("    " + l)

    def label(self, l):
        self.lines.append(l + ":")

    def newlabel(self, p="L"):
        self.nlabel += 1
        return f"{p}_{self.nlabel}"

    def raw(self, s):
        self.lines.append(s)

    def text(self):
        return "\n".join(self.lines) + "\n"


class VAlloc:
    def __init__(self, start=1):
        self.n = start

    def __call__(self, cnt=1, align=1):
        self.n = (self.n + align - 1) // align * align
        r = self.n
        self.n += cnt
        return r


def vr(b, n):
    return f"v[{b}:{b+n-1}]"


def sr(b, n):
    return f"s[{b}:{b+n-1}]"


def kernel_begin(a, name):
    a.raw(f".globl {name}")
    a.raw(".p2align 8")
    a.raw(f".type {name},@function")
    a.label(name)


KDS = []
def kernel_end(a, name, nvgpr, nsgpr=102):
    nv = (nvgpr + 7) // 8 * 8
    KDS.append(f""".p2align 6
.amdhsa_kernel {name}
  .amdhsa_next_free_vgpr {nv}
  .amdhsa_next_free_sgpr {nsgpr}
  .amdhsa_accum_offset {(nv + 3) // 4 * 4}
  .amdhsa_group_segment_fixed_size 0
  .amdhsa_kernarg_size 96
  .amdhsa_user_sgpr_count 2
  .amdhsa_user_sgpr_kernarg_segment_ptr 1
  .amdhsa_system_sgpr_workgroup_id_x 1
.end_amdhsa_kernel
""")


def make_srd(a, dst, base_s, off, nbytes):
    if off:
        a(f"s_add_u32 s{dst}, s{base_s}, {off}")
        a(f"s_addc_u32 s{dst+1}, s{base_s+1}, 0")
    else:
        a(f"s_mov_b32 s{dst}, s{base_s}")
        a(f"s_mov_b32 s{dst+1}, s{base_s+1}")
    a(f"s_mov_b32 s{dst+2}, {nbytes}")
    a(f"s_mov_b32 s{dst+3}, 0x00020000")


def interleave(mfmas, fillers):
    out = []
    nm, nf = len(mfmas), len(fillers)
    fi = 0
    for i, m in enumerate(mfmas):
        out.append(m)
        tgt = ((i + 1) * nf + nm - 1) // nm if nm else nf
        while fi < min(tgt, nf):
            out.extend(fillers[fi])
            fi += 1
    while fi < nf:
        out.extend(fillers[fi])
        fi += 1
    return out


class Seg:
    def __init__(self, srd, gstride, nf, kind, colreg=None):
        self.srd = srd
        self.gstride = gstride
        self.nf = nf
        self.kind = kind
        self.colreg = colreg


class Gemm:
    def __init__(self, a, va, TT, WT, WK, WF, segs, BK, NS, K, xsrd, xstride, s_tok0,
                 stats=False, colsum=False, sregs=None):
        self.a, self.va = a, va
        self.TT, self.WT, self.WK, self.WF = TT, WT, WK, WF
        assert WT * WK * WF == 4
        self.segs, self.BK, self.NS, self.K = segs, BK, NS, K
        self.xsrd, self.xstride, self.s_tok0 = xsrd, xstride, s_tok0
        self.stats, self.colsum = stats, colsum
        self.TW = TT // WT
        self.TB = self.TW // 16
        self.RB = BK * 2
        self.CPR = self.RB // 16
        self.nst = K // BK
        self.SPS = BK // 32
        self.SPW = self.SPS // WK
        self.xbytes = TT * self.RB
        off = self.xbytes
        for s in segs:
            s.lstride = 40 if s.kind == 'lin40' else s.nf * 2
            nb = BK * s.lstride
            s.ninstr = (nb + 4095) // 4096 * 4
            s.lbase = off
            off += s.ninstr * 1024
            s.FBW = (s.nf // WF) // 16
        self.stage_bytes = off
        self.nx = self.xbytes // 1024
        assert self.nx % 4 == 0
        self.ndma = self.nx // 4 + sum(s.ninstr // 4 for s in segs)
        self.lds_bytes = self.stage_bytes * NS
        self.s_woff, self.s_kx, self.s_kw, self.s_wave = sregs

    def setup(self):
        a, va = self.a, self.va
        t = [va() for _ in range(6)]
        self.tmp = t
        lane, i16, g, wv = va(), va(), va(), va()
        self.v_lane, self.v_i16, self.v_g, self.v_wave = lane, i16, g, wv
        a(f"v_and_b32 v{lane}, 63, v0")
        a(f"v_lshrrev_b32 v{wv}, 6, v0")
        a(f"v_and_b32 v{i16}, 15, v0")
        a(f"v_bfe_u32 v{g}, v0, 4, 2")
        a(f"v_readfirstlane_b32 s{self.s_wave}, v{wv}")
        a("s_nop 3")
        a(f"s_lshl_b32 s{self.s_woff}, s{self.s_wave}, 10")
        self.v_dx = []
        lg = {8: 3, 16: 4}[self.CPR]
        for j in range(self.nx // 4):
            r = va()
            self.v_dx.append(r)
            a(f"v_add_u32 v{t[0]}, {j*256}, v0")
            a(f"v_lshrrev_b32 v{t[1]}, {lg}, v{t[0]}")
            a(f"v_and_b32 v{t[2]}, {self.CPR-1}, v{t[0]}")
            if self.CPR == 8:
                a(f"v_bfe_u32 v{t[3]}, v{t[1]}, 1, 3")
            else:
                a(f"v_and_b32 v{t[3]}, 15, v{t[1]}")
            a(f"v_xor_b32 v{t[2]}, v{t[2]}, v{t[3]}")
            a(f"v_add_u32 v{t[1]}, s{self.s_tok0}, v{t[1]}")
            a(f"v_mul_u32_u24 v{t[1]}, {self.xstride}, v{t[1]}")
            a(f"v_lshl_add_u32 v{r}, v{t[2]}, 4, v{t[1]}")
        for s in self.segs:
            s.v_d = []
            cprw = s.lstride // 16 if s.kind != 'lin40' else None
            for j in range(s.ninstr // 4):
                r = va()
                s.v_d.append(r)
                a(f"v_add_u32 v{t[0]}, {j*256}, v0")
                if s.kind == 'lin40':
                    a(f"v_lshlrev_b32 v{r}, 4, v{t[0]}")
                    continue
                magic = {10: 52429, 12: 43691}[cprw]
                a(f"v_mul_u32_u24 v{t[1]}, {magic}, v{t[0]}")
                a(f"v_lshrrev_b32 v{t[1]}, 19, v{t[1]}")
                a(f"v_mul_u32_u24 v{t[2]}, {cprw}, v{t[1]}")
                a(f"v_sub_u32 v{t[2]}, v{t[0]}, v{t[2]}")
                a(f"v_and_b32 v{t[3]}, 0xfffffff3, v{t[1]}")
                a(f"v_bfe_u32 v{t[4]}, v{t[1]}, 2, 1")
                if s.kind == 'p192':
                    a(f"v_lshlrev_b32 v{t[5]}, 1, v{t[4]}")
                    a(f"v_xor_b32 v{t[2]}, v{t[2]}, v{t[5]}")
                a(f"v_lshl_or_b32 v{t[3]}, v{t[4]}, 3, v{t[3]}")
                a(f"v_bfe_u32 v{t[4]}, v{t[1]}, 3, 1")
                a(f"v_lshl_or_b32 v{t[3]}, v{t[4]}, 2, v{t[3]}")
                a(f"v_mul_u32_u24 v{t[3]}, {s.gstride}, v{t[3]}")
                a(f"v_lshl_add_u32 v{r}, v{t[2]}, 4, v{t[3]}")
                if s.colreg is not None:
                    a(f"v_add_u32 v{r}, s{s.colreg}, v{r}")
        wt, wo = va(), va()
        self.v_wt, self.v_wo = wt, wo
        a(f"v_and_b32 v{wt}, {self.WT-1}, v{wv}")
        sh = {1: 0, 2: 1, 4: 2}[self.WT]
        a(f"v_lshrrev_b32 v{wo}, {sh}, v{wv}")
        self.addr_regs = []
        done = {}
        for s in self.segs:
            key = (s.kind, s.nf)
            if key in done:
                s.v_a = done[key]
                continue
            if s.kind == 'lin40':
                a(f"v_lshlrev_b32 v{t[0]}, 3, v{g}")
            else:
                a(f"v_lshrrev_b32 v{t[0]}, 1, v{g}")
                a(f"v_lshlrev_b32 v{t[0]}, 4, v{t[0]}")
                a(f"v_and_b32 v{t[1]}, 1, v{g}")
                a(f"v_lshl_add_u32 v{t[0]}, v{t[1]}, 2, v{t[0]}")
            a(f"v_lshrrev_b32 v{t[1]}, 2, v{i16}")
            a(f"v_add_u32 v{t[0]}, v{t[0]}, v{t[1]}")
            if self.WK > 1:
                a(f"v_mov_b32 v{t[1]}, {self.SPW*32}")
                a(f"v_mad_u32_u24 v{t[0]}, v{wo}, v{t[1]}, v{t[0]}")
            a(f"v_mul_u32_u24 v{t[0]}, {s.lstride}, v{t[0]}")
            a(f"v_and_b32 v{t[1]}, 3, v{i16}")
            a(f"v_lshl_add_u32 v{t[0]}, v{t[1]}, 3, v{t[0]}")
            if s.kind == 'p192':
                regs = []
                for b in range(s.FBW):
                    r = va()
                    regs.append(r)
                    if self.WF > 1:
                        a(f"v_mul_u32_u24 v{t[1]}, {s.FBW}, v{wo}")
                        a(f"v_add_u32 v{t[1]}, {b}, v{t[1]}")
                    else:
                        a(f"v_mov_b32 v{t[1]}, {b}")
                    a(f"v_and_b32 v{t[2]}, 1, v{g}")
                    a(f"v_xor_b32 v{t[1]}, v{t[1]}, v{t[2]}")
                    a(f"v_lshl_add_u32 v{r}, v{t[1]}, 5, v{t[0]}")
                s.v_a = regs
                self.addr_regs += regs
            else:
                r = va()
                if self.WF > 1:
                    a(f"v_mul_u32_u24 v{t[1]}, {s.FBW*32}, v{wo}")
                    a(f"v_add_u32 v{r}, v{t[0]}, v{t[1]}")
                else:
                    a(f"v_mov_b32 v{r}, v{t[0]}")
                s.v_a = [r]
                self.addr_regs.append(r)
            done[key] = s.v_a
        self.v_b = []
        a(f"v_mul_u32_u24 v{t[0]}, {self.TW}, v{wt}")
        a(f"v_add_u32 v{t[0]}, v{t[0]}, v{i16}")
        if self.CPR == 8:
            a(f"v_bfe_u32 v{t[1]}, v{t[0]}, 1, 3")
        else:
            a(f"v_and_b32 v{t[1]}, 15, v{t[0]}")
        a(f"v_mul_u32_u24 v{t[0]}, {self.RB}, v{t[0]}")
        for ls in range(self.SPW):
            r = va()
            self.v_b.append(r)
            self.addr_regs.append(r)
            if self.WK > 1:
                a(f"v_mul_u32_u24 v{t[2]}, {4*self.SPW}, v{wo}")
                a(f"v_add3_u32 v{t[2]}, v{t[2]}, v{g}, {4*ls}")
            else:
                a(f"v_add_u32 v{t[2]}, {4*ls}, v{g}")
            a(f"v_xor_b32 v{t[2]}, v{t[2]}, v{t[1]}")
            a(f"v_lshl_add_u32 v{r}, v{t[2]}, 4, v{t[0]}")
        self.nA = sum(s.FBW for s in self.segs)
        self.fa = [va(4 * self.nA, 4) for _ in range(2)]
        self.fb = [va(4 * self.TB, 4) for _ in range(2)]
        self.acc = [[va(4, 4) for _ in range(self.nA)] for _ in range(self.TB)]
        accs = [r for row in self.acc for r in row]
        if self.stats or self.colsum:
            self.v_ones = va(4, 4)
            for i in range(4):
                a(f"v_mov_b32 v{self.v_ones+i}, 0x3f803f80")
        if self.stats:
            self.acc_sum = [va(4, 4) for _ in range(self.TB)]
            self.acc_sq = [va(4, 4) for _ in range(self.TB)]
            accs += self.acc_sum + self.acc_sq
        if self.colsum:
            self.acc_cs = [va(4, 4) for _ in range(self.nA)]
            accs += self.acc_cs
        for r in accs:
            for i in range(4):
                a(f"v_mov_b32 v{r+i}, 0")

    def dma_units(self, st):
        slot = (st % self.NS) * self.stage_bytes
        k0 = st * self.BK
        units = []
        first = True
        for j, r in enumerate(self.v_dx):
            u = []
            if first:
                u.append(f"s_mov_b32 s{self.s_kx}, {k0*2}")
                first = False
            u.append(f"s_add_u32 m0, s{self.s_woff}, {slot + j*4096}")
            u.append("s_nop 0")
            u.append(f"buffer_load_dwordx4 v{r}, {sr(self.xsrd,4)}, s{self.s_kx} offen lds")
            units.append(u)
        lastk = None
        for s in self.segs:
            kb = k0 * s.gstride
            for j, r in enumerate(s.v_d):
                u = []
                if lastk != kb:
                    u.append(f"s_mov_b32 s{self.s_kw}, {kb}")
                    lastk = kb
                u.append(f"s_add_u32 m0, s{self.s_woff}, {slot + s.lbase + j*4096}")
                u.append("s_nop 0")
                u.append(f"buffer_load_dwordx4 v{r}, {sr(s.srd,4)}, s{self.s_kw} offen lds")
                units.append(u)
        return units

    def read_units(self, ls, buf):
        units = []
        fi = 0
        for s in self.segs:
            for b in range(s.FBW):
                for e in range(2):
                    if s.kind == 'lin40':
                        off = s.lbase + (ls * 32 + 4 * e) * 40 + b * 32
                        ar = s.v_a[0]
                    elif s.kind == 'p192':
                        off = s.lbase + (ls * 32 + 8 * e) * s.lstride
                        ar = s.v_a[b]
                    else:
                        off = s.lbase + (ls * 32 + 8 * e) * s.lstride + b * 32
                        ar = s.v_a[0]
                    assert off < 65536
                    d = self.fa[buf] + 4 * fi + 2 * e
                    units.append([f"ds_read_b64_tr_b16 {vr(d,2)}, v{ar} offset:{off}"])
                fi += 1
        for tb in range(self.TB):
            off = tb * 16 * self.RB
            d = self.fb[buf] + 4 * tb
            units.append([f"ds_read_b128 {vr(d,4)}, v{self.v_b[ls]} offset:{off}"])
        return units[-self.TB:] + units[:-self.TB]

    def mfmas(self, buf):
        out = []
        for fi in range(self.nA):
            A = vr(self.fa[buf] + 4 * fi, 4)
            for tb in range(self.TB):
                B = vr(self.fb[buf] + 4 * tb, 4)
                c = vr(self.acc[tb][fi], 4)
                out.append(f"v_mfma_f32_16x16x32_bf16 {c}, {A}, {B}, {c}")
            if self.colsum:
                c = vr(self.acc_cs[fi], 4)
                out.append(f"v_mfma_f32_16x16x32_bf16 {c}, {A}, {vr(self.v_ones,4)}, {c}")
        if self.stats:
            for tb in range(self.TB):
                B = vr(self.fb[buf] + 4 * tb, 4)
                c = vr(self.acc_sum[tb], 4)
                out.append(f"v_mfma_f32_16x16x32_bf16 {c}, {vr(self.v_ones,4)}, {B}, {c}")
                c = vr(self.acc_sq[tb], 4)
                out.append(f"v_mfma_f32_16x16x32_bf16 {c}, {B}, {B}, {c}")
        return out

    def issue_first(self):
        a = self.a
        for st in range(min(self.NS - 1, self.nst)):
            for u in self.dma_units(st):
                for l in u:
                    a(l)

    def mainloop(self, extra_vm=0):
        a = self.a
        nsteps = self.nst * self.SPW
        n = self.ndma
        issued = min(self.NS - 1, self.nst)

        def stage_enter(st):
            nonlocal issued
            lines = []
            pend = (issued - 1 - st) * n
            lines.append(f"s_waitcnt vmcnt({pend})")
            lines.append("s_barrier")
            if st > 0:
                delta = ((st % self.NS) - ((st - 1) % self.NS)) * self.stage_bytes
                for r in self.addr_regs:
                    lines.append(f"v_add_u32 v{r}, {delta & 0xffffffff}, v{r}")
            units = []
            if issued < self.nst:
                units = self.dma_units(issued)
                issued += 1
            return lines, units

        lines, units = stage_enter(0)
        for l in lines:
            a(l)
        for u in self.read_units(0, 0):
            for l in u:
                a(l)
        pending_dma = units
        for i in range(nsteps):
            buf = i & 1
            a("s_waitcnt lgkmcnt(0)")
            fill = []
            if i + 1 < nsteps:
                st1, ls1 = (i + 1) // self.SPW, (i + 1) % self.SPW
                if ls1 == 0:
                    lines, units = stage_enter(st1)
                    for u in pending_dma:
                        for l in u:
                            a(l)
                    assert not pending_dma
                    for l in lines:
                        a(l)
                    pending_dma = units
                fill += self.read_units(ls1, buf ^ 1)
            fill += pending_dma
            pending_dma = []
            for l in interleave(self.mfmas(buf), fill):
                a(l)


P_X, P_WQ, P_WK, P_WV, P_WO, P_BX, P_WG, P_WU, P_WD, P_OUT, P_DBG, P_WS = [16 + 2 * i for i in range(12)]
SRD0, SRD1, SRD2, SRD3, SRD4, SRD5 = 40, 44, 48, 52, 56, 60
S_WOFF, S_KX, S_KW, S_WAVE = 64, 65, 66, 67
S_TOK0, S_COL, S_T0, S_T1, S_T2 = 68, 69, 70, 71, 72
GS = (S_WOFF, S_KX, S_KW, S_WAVE)


def load_kernargs(a):
    a("s_load_dwordx16 s[16:31], s[0:1], 0")
    a("s_load_dwordx8 s[32:39], s[0:1], 64")


def round_bf16(a, dst, src):
    a(f"v_cvt_pk_bf16_f32 v{dst}, v{src}, v{src}")
    a(f"v_lshlrev_b32 v{dst}, 16, v{dst}")


def ln_stats(a, v_sum, v_sq, v_mean, v_rstd, t):
    a(f"v_mul_f32 v{v_mean}, {f32(1.0/D)}, v{v_sum}")
    a(f"v_mul_f32 v{t[0]}, {f32(1.0/D)}, v{v_sq}")
    a(f"v_fma_f32 v{t[0]}, -v{v_mean}, v{v_mean}, v{t[0]}")
    a(f"v_max_f32 v{t[0]}, 0, v{t[0]}")
    round_bf16(a, v_mean, v_mean)
    round_bf16(a, t[0], t[0])
    a(f"v_add_f32 v{t[0]}, {f32(1e-5)}, v{t[0]}")
    round_bf16(a, t[0], t[0])
    a(f"v_sqrt_f32 v{t[0]}, v{t[0]}")
    a("s_nop 0")
    round_bf16(a, t[0], t[0])
    a(f"v_rcp_f32 v{v_rstd}, v{t[0]}")
    a("s_nop 0")


def gram_diag(a, g, acc_sq, dst):
    t = g.tmp
    a(f"v_and_b32 v{t[0]}, 3, v{g.v_i16}")
    a(f"v_mov_b32 v{t[1]}, v{acc_sq}")
    for r in range(1, 4):
        a(f"v_cmp_eq_u32 vcc, {r}, v{t[0]}")
        a("s_nop 1")
        a(f"v_cndmask_b32 v{t[1]}, v{t[1]}, v{acc_sq+r}, vcc")
    a(f"v_lshrrev_b32 v{t[0]}, 2, v{g.v_i16}")
    a(f"v_lshl_add_u32 v{t[0]}, v{t[0]}, 4, v{g.v_i16}")
    a(f"v_lshlrev_b32 v{t[0]}, 2, v{t[0]}")
    a(f"ds_bpermute_b32 v{dst}, v{t[0]}, v{t[1]}")
    a("s_waitcnt lgkmcnt(0)")


def xlane_add(a, v, v_lane, t0, t1, masks, op="v_add_f32"):
    for m in masks:
        a(f"v_xor_b32 v{t0}, {m}, v{v_lane}")
        a(f"v_lshlrev_b32 v{t0}, 2, v{t0}")
        a(f"ds_bpermute_b32 v{t1}, v{t0}, v{v}")
        a("s_waitcnt lgkmcnt(0)")
        a(f"{op} v{v}, v{v}, v{t1}")


QSCALE = (DH ** -0.5) * 1.4426950408889634

K1_NKV, K1_NCS, K1_NQ = 32, 48, 256
K1_NWG = K1_NKV + K1_NCS + K1_NQ


def gen_k1(a):
    name = "k1_qkv_kernel"
    kernel_begin(a, name)
    a(f"s_cmp_ge_u32 s2, {K1_NWG}")
    a("s_cbranch_scc1 k1_end")
    load_kernargs(a)
    a("s_waitcnt lgkmcnt(0)")
    a(f"s_cmp_lt_u32 s2, {K1_NKV}")
    a("s_cbranch_scc1 k1_kv")
    a(f"s_cmp_lt_u32 s2, {K1_NKV + K1_NCS}")
    a("s_cbranch_scc1 k1_cs")
    maxv = 0
    va = VAlloc(1)
    a(f"s_sub_u32 s{S_T0}, s2, {K1_NKV + K1_NCS}")
    a(f"s_and_b32 s{S_T1}, s{S_T0}, 7")
    a(f"s_lshr_b32 s{S_T0}, s{S_T0}, 3")
    a(f"s_lshr_b32 s{S_T2}, s{S_T0}, 3")
    a(f"s_lshl_b32 s{S_T1}, s{S_T1}, 2")
    a(f"s_add_u32 s{S_T1}, s{S_T1}, s{S_T2}")
    a(f"s_lshl_b32 s{S_TOK0}, s{S_T1}, 6")
    a(f"s_and_b32 s{S_T0}, s{S_T0}, 7")
    a(f"s_mul_i32 s{S_COL}, s{S_T0}, 160")
    make_srd(a, SRD0, P_X, 0, S * D * 2)
    make_srd(a, SRD1, P_WQ, 0, D * D * 2)
    make_srd(a, SRD2, P_WS, WS_Q, S * D * 2)
    seg = Seg(SRD1, D * 2, 80, 'p160', S_COL)
    g = Gemm(a, va, 64, 4, 1, 1, [seg], 128, K1_NS, D, SRD0, D * 2, S_TOK0, stats=True, colsum=True, sregs=GS)
    g.setup()
    g.issue_first()
    g.mainloop()
    lds = g.lds_bytes
    a("s_nop 7")
    a("s_nop 1")
    v_mean, v_rstd, v_sq, v_ad = va(), va(), va(), va()
    gram_diag(a, g, g.acc_sq[0], v_sq)
    ln_stats(a, g.acc_sum[0], v_sq, v_mean, v_rstd, g.tmp)
    a(f"v_mul_f32 v{v_rstd}, {f32(QSCALE)}, v{v_rstd}")
    t = g.tmp
    a(f"v_lshl_add_u32 v{t[0]}, v{g.v_wt}, 4, v{g.v_i16}")
    a(f"v_add_u32 v{t[0]}, s{S_TOK0}, v{t[0]}")
    a(f"v_mul_u32_u24 v{t[0]}, {D*2}, v{t[0]}")
    a(f"v_lshl_add_u32 v{v_ad}, v{g.v_g}, 3, v{t[0]}")
    a(f"v_add_u32 v{v_ad}, s{S_COL}, v{v_ad}")
    for fb in range(5):
        c, cs = g.acc[0][fb], g.acc_cs[fb]
        for r in range(4):
            a(f"v_fma_f32 v{c+r}, -v{v_mean}, v{cs+r}, v{c+r}")
            a(f"v_mul_f32 v{c+r}, v{c+r}, v{v_rstd}")
        a(f"v_cvt_pk_bf16_f32 v{c}, v{c}, v{c+1}")
        a(f"v_cvt_pk_bf16_f32 v{c+1}, v{c+2}, v{c+3}")
        a(f"buffer_store_dwordx2 {vr(c,2)}, v{v_ad}, {sr(SRD2,4)}, 0 offen offset:{fb*32}")
    a("s_endpgm")
    maxv = max(maxv, va.n)

    a.label("k1_kv")
    va = VAlloc(1)
    a(f"s_lshl_b32 s{S_TOK0}, s2, 6")
    make_srd(a, SRD0, P_X, 0, S * D * 2)
    make_srd(a, SRD1, P_WK, 0, D * DH * 2)
    make_srd(a, SRD2, P_WV, 0, D * DH * 2)
    make_srd(a, SRD3, P_WS, WS_KF, 0x20000)
    make_srd(a, SRD4, P_WS, WS_VF, 0x20000)
    make_srd(a, SRD5, P_WS, WS_KN, 512)
    sk = Seg(SRD1, 40, 32, 'lin40')
    sv = Seg(SRD2, 40, 32, 'lin40')
    g = Gemm(a, va, 64, 4, 1, 1, [sk, sv], 128, K1_NS, D, SRD0, D * 2, S_TOK0, stats=True, colsum=True, sregs=GS)
    g.setup()
    g.issue_first()
    g.mainloop()
    lds = max(lds, g.lds_bytes)
    a("s_nop 7")
    a("s_nop 1")
    v_mean, v_rstd, v_sq, v_key, v_ak, v_av, v_n = va(), va(), va(), va(), va(), va(), va()
    gram_diag(a, g, g.acc_sq[0], v_sq)
    ln_stats(a, g.acc_sum[0], v_sq, v_mean, v_rstd, g.tmp)
    t = g.tmp
    for fi in range(4):
        c, cs = g.acc[0][fi], g.acc_cs[fi]
        for r in range(4):
            a(f"v_fma_f32 v{c+r}, -v{v_mean}, v{cs+r}, v{c+r}")
            a(f"v_mul_f32 v{c+r}, v{c+r}, v{v_rstd}")
        a(f"v_cvt_pk_bf16_f32 v{c}, v{c}, v{c+1}")
        a(f"v_cvt_pk_bf16_f32 v{c+1}, v{c+2}, v{c+3}")
    k0, k1, v0_, v1_ = g.acc[0]
    a(f"v_cmp_eq_u32 vcc, 0, v{g.v_g}")
    a("s_nop 1")
    for c in (k1, v1_):
        a(f"v_cndmask_b32 v{c}, 0, v{c}, vcc")
        a(f"v_cndmask_b32 v{c+1}, 0, v{c+1}, vcc")
    a(f"v_mov_b32 v{v_n}, 0")
    for c in (k0, k0 + 1, k1, k1 + 1):
        a(f"v_lshlrev_b32 v{t[0]}, 16, v{c}")
        a(f"v_and_b32 v{t[1]}, 0xffff0000, v{c}")
        a(f"v_fma_f32 v{v_n}, v{t[0]}, v{t[0]}, v{v_n}")
        a(f"v_fma_f32 v{v_n}, v{t[1]}, v{t[1]}, v{v_n}")
    a(f"v_mov_b32 v{t[2]}, 0x3f80")
    a(f"v_cmp_eq_u32 vcc, 1, v{g.v_g}")
    a("s_nop 1")
    a(f"v_cndmask_b32 v{k1}, v{k1}, v{t[2]}, vcc")
    a(f"v_cmp_le_u32 vcc, 2, v{g.v_g}")
    a("s_nop 1")
    a(f"v_cndmask_b32 v{v1_}, v{v1_}, v{t[2]}, vcc")
    a(f"v_lshl_add_u32 v{v_key}, v{g.v_wt}, 4, v{g.v_i16}")
    a(f"v_add_u32 v{v_key}, s{S_TOK0}, v{v_key}")
    a(f"v_lshrrev_b32 v{t[0]}, 5, v{v_key}")
    a(f"v_lshlrev_b32 v{t[0]}, 11, v{t[0]}")
    a(f"v_and_b32 v{t[1]}, 31, v{v_key}")
    a(f"v_lshl_add_u32 v{v_ak}, v{t[1]}, 4, v{t[0]}")
    a(f"v_lshrrev_b32 v{t[2]}, 1, v{g.v_g}")
    a(f"v_lshl_add_u32 v{v_ak}, v{t[2]}, 9, v{v_ak}")
    a(f"v_and_b32 v{t[2]}, 1, v{g.v_g}")
    a(f"v_lshl_add_u32 v{v_ak}, v{t[2]}, 3, v{v_ak}")
    a(f"buffer_store_dwordx2 {vr(k0,2)}, v{v_ak}, {sr(SRD3,4)}, 0 offen")
    a(f"buffer_store_dwordx2 {vr(k1,2)}, v{v_ak}, {sr(SRD3,4)}, 0 offen offset:1024")
    a(f"v_bfe_u32 v{t[2]}, v{t[1]}, 4, 1")
    a(f"v_lshl_add_u32 v{v_av}, v{t[2]}, 10, v{t[0]}")
    a(f"v_bfe_u32 v{t[2]}, v{t[1]}, 2, 1")
    a(f"v_lshl_add_u32 v{v_av}, v{t[2]}, 9, v{v_av}")
    a(f"v_bfe_u32 v{t[2]}, v{t[1]}, 3, 1")
    a(f"v_lshl_add_u32 v{v_av}, v{t[2]}, 3, v{v_av}")
    a(f"v_and_b32 v{t[2]}, 3, v{t[1]}")
    a(f"v_lshl_add_u32 v{v_av}, v{t[2]}, 1, v{v_av}")
    a(f"v_lshl_add_u32 v{v_av}, v{g.v_g}, 6, v{v_av}")
    for fb, c in enumerate((v0_, v1_)):
        for p in range(2):
            o = fb * 256 + p * 32
            a(f"buffer_store_short v{c+p}, v{v_av}, {sr(SRD4,4)}, 0 offen offset:{o}")
            a(f"buffer_store_short_d16_hi v{c+p}, v{v_av}, {sr(SRD4,4)}, 0 offen offset:{o+16}")
    xlane_add(a, v_n, g.v_lane, t[0], t[1], (16, 32))
    xlane_add(a, v_n, g.v_lane, t[0], t[1], (1, 2, 4, 8), op="v_max_f32")
    a(f"s_lshl_b32 s{S_T0}, s2, 2")
    a(f"s_add_u32 s{S_T0}, s{S_T0}, s{S_WAVE}")
    a(f"s_lshl_b32 s{S_T0}, s{S_T0}, 2")
    a(f"v_mov_b32 v{t[0]}, 0")
    a(f"v_cmp_eq_u32 vcc, 0, v{g.v_lane}")
    a(f"s_and_saveexec_b64 s[74:75], vcc")
    a(f"buffer_store_dword v{v_n}, v{t[0]}, {sr(SRD5,4)}, s{S_T0} offen")
    a("s_endpgm")
    maxv = max(maxv, va.n)

    a.label("k1_cs")
    va = VAlloc(1)
    a(f"s_sub_u32 s{S_T0}, s2, {K1_NKV}")
    a(f"s_cmp_lt_u32 s{S_T0}, 24")
    a(f"s_cselect_b32 s{SRD0}, s{P_WG}, s{P_WU}")
    a(f"s_cselect_b32 s{SRD0+1}, s{P_WG+1}, s{P_WU+1}")
    a(f"s_mov_b32 s{SRD0+2}, {D*F*2}")
    a(f"s_mov_b32 s{SRD0+3}, 0x00020000")
    a(f"s_cselect_b32 s{S_T1}, 0, 24")
    a(f"s_sub_u32 s{S_T1}, s{S_T0}, s{S_T1}")
    a(f"s_lshl_b32 s{S_T1}, s{S_T1}, 7")
    make_srd(a, SRD1, P_WS, WS_CS, 3072 * 4)
    t0, t1, ad = va(), va(), va()
    accs = va(8, 4)
    ld = va(80, 4)
    a(f"v_and_b32 v{t0}, 7, v0")
    a(f"v_lshrrev_b32 v{t1}, 3, v0")
    a(f"v_mul_u32_u24 v{ad}, {20*F*2}, v{t1}")
    a(f"v_lshl_add_u32 v{ad}, v{t0}, 4, v{ad}")
    for i in range(20):
        a(f"s_add_u32 s{S_T2}, s{S_T1}, {i*F*2}")
        a(f"buffer_load_dwordx4 {vr(ld+4*i,4)}, v{ad}, {sr(SRD0,4)}, s{S_T2} offen")
    for i in range(8):
        a(f"v_mov_b32 v{accs+i}, 0")
    for i in range(20):
        a(f"s_waitcnt vmcnt({19-i})")
        for j in range(4):
            a(f"v_lshlrev_b32 v{t0}, 16, v{ld+4*i+j}")
            a(f"v_and_b32 v{t1}, 0xffff0000, v{ld+4*i+j}")
            a(f"v_add_f32 v{accs+2*j}, v{accs+2*j}, v{t0}")
            a(f"v_add_f32 v{accs+2*j+1}, v{accs+2*j+1}, v{t1}")
    a(f"v_lshlrev_b32 v{ad}, 5, v0")
    a(f"ds_write_b128 v{ad}, {vr(accs,4)}")
    a(f"ds_write_b128 v{ad}, {vr(accs+4,4)} offset:16")
    a("s_waitcnt lgkmcnt(0)")
    a("s_barrier")
    a("v_cmp_gt_u32 vcc, 64, v0")
    a("s_and_saveexec_b64 s[74:75], vcc")
    a("s_cbranch_execz k1_end")
    a(f"v_lshlrev_b32 v{ad}, 2, v0")
    for i in range(32):
        a(f"ds_read_b32 v{ld+i}, v{ad} offset:{i*256}")
        if i % 8 == 7:
            a("s_waitcnt lgkmcnt(0)")
    for i in range(1, 32):
        a(f"v_add_f32 v{ld}, v{ld}, v{ld+i}")
    a(f"s_lshl_b32 s{S_T0}, s{S_T0}, 8")
    a(f"buffer_store_dword v{ld}, v{ad}, {sr(SRD1,4)}, s{S_T0} offen")
    a.label("k1_end")
    a("s_endpgm")
    maxv = max(maxv, va.n)
    kernel_end(a, name, maxv)
    return (name, K1_NWG, 256, lds)

K1_NS = 2


def gen_k2(a):
    name = "k2_attn_kernel"
    kernel_begin(a, name)
    a("s_cmp_ge_u32 s2, 256")
    a("s_cbranch_scc1 k2_end")
    load_kernargs(a)
    va = VAlloc(1)
    t = [va() for _ in range(6)]
    v_lane, v_n, v_h, v_l16, v_cur, v_nxt, v_qa, v_oa = [va() for _ in range(8)]
    Q = [va(8, 4) for _ in range(2)]
    Sb = [[va(16, 4) for _ in range(2)] for _ in range(2)]
    P = [va(8, 4) for _ in range(2)]
    O = [va(16, 4) for _ in range(2)]
    KF = [va(8, 4) for _ in range(2)]
    VF = [va(8, 4) for _ in range(2)]
    v_kn = va(2, 2)
    v_m = [va(), va()]
    S_SLOT, S_CNT, S_GOFF, S_HEAD = 76, 77, 78, 79
    a(f"v_and_b32 v{v_lane}, 63, v0")
    a(f"v_lshrrev_b32 v{t[0]}, 6, v0")
    a(f"v_and_b32 v{v_n}, 31, v0")
    a(f"v_bfe_u32 v{v_h}, v0, 5, 1")
    a(f"v_readfirstlane_b32 s{S_WAVE}, v{t[0]}")
    a(f"v_lshlrev_b32 v{v_l16}, 4, v{v_lane}")
    a("s_waitcnt lgkmcnt(0)")
    make_srd(a, SRD0, P_WS, WS_Q, S * D * 2)
    make_srd(a, SRD1, P_WS, WS_KF, 0x20000)
    make_srd(a, SRD2, P_WS, WS_VF, 0x20000)
    make_srd(a, SRD3, P_WS, WS_KN, 512)
    make_srd(a, SRD4, P_WS, WS_O, S * D * 2)
    a(f"s_lshl_b32 s{S_WOFF}, s{S_WAVE}, 10")
    a(f"s_lshl_b32 s{S_T0}, s2, 2")
    a(f"s_add_u32 s{S_T0}, s{S_T0}, s{S_WAVE}")
    a(f"s_lshr_b32 s{S_HEAD}, s{S_T0}, 5")
    a(f"s_and_b32 s{S_T0}, s{S_T0}, 31")
    a(f"s_lshl_b32 s{S_TOK0}, s{S_T0}, 6")
    a(f"s_mul_i32 s{S_HEAD}, s{S_HEAD}, 40")

    def dma_chunk(slot_expr_s, goff_s):
        out = []
        for srd, lb in ((SRD1, 0), (SRD2, 16384)):
            for j in range(4):
                u = [f"s_add_u32 m0, s{slot_expr_s}, {lb + j*4096}",
                     f"s_add_u32 s{S_KX}, s{goff_s}, {j*4096}",
                     f"buffer_load_dwordx4 v{v_l16}, {sr(srd,4)}, s{S_KX} offen lds"]
                out.append(u)
        return out

    a(f"s_mov_b32 s{S_SLOT}, s{S_WOFF}")
    a(f"s_mov_b32 s{S_GOFF}, s{S_WOFF}")
    for u in dma_chunk(S_SLOT, S_GOFF):
        for l in u:
            a(l)
    a(f"v_add_u32 v{t[0]}, s{S_TOK0}, v{v_n}")
    a(f"v_mul_u32_u24 v{t[0]}, {D*2}, v{t[0]}")
    a(f"v_add_u32 v{t[0]}, s{S_HEAD}, v{t[0]}")
    a(f"v_lshl_add_u32 v{v_qa}, v{v_h}, 4, v{t[0]}")
    a(f"v_lshl_add_u32 v{v_oa}, v{v_h}, 3, v{t[0]}")
    for b in range(2):
        o = b * 32 * D * 2
        a(f"s_mov_b32 s{S_KW}, {o}")
        a(f"buffer_load_dwordx2 {vr(Q[b],2)}, v{v_qa}, {sr(SRD0,4)}, s{S_KW} offen")
        a(f"buffer_load_dwordx2 {vr(Q[b]+2,2)}, v{v_qa}, {sr(SRD0,4)}, s{S_KW} offen offset:8")
        a(f"buffer_load_dwordx2 {vr(Q[b]+4,2)}, v{t[0]}, {sr(SRD0,4)}, s{S_KW} offen offset:32")
    a(f"v_lshlrev_b32 v{t[1]}, 3, v{v_lane}")
    a(f"buffer_load_dwordx2 {vr(v_kn,2)}, v{t[1]}, {sr(SRD3,4)}, 0 offen")
    a(f"s_add_u32 s{S_SLOT}, s{S_WOFF}, 32768")
    a(f"s_add_u32 s{S_GOFF}, s{S_WOFF}, 16384")
    for u in dma_chunk(S_SLOT, S_GOFF):
        for l in u:
            a(l)
    for b in range(2):
        for i in range(16):
            a(f"v_mov_b32 v{O[b]+i}, 0")
    for i in range(8):
        a(f"v_mov_b32 v{VF[1]+i}, 0")
        a(f"v_mov_b32 v{P[1]+i}, 0")
    for i in range(12, 16):
        a(f"v_mov_b32 v{Sb[1][1]+i}, 0")
    a(f"v_mov_b32 v{v_cur}, v{v_l16}")
    a(f"v_add_u32 v{v_nxt}, 32768, v{v_l16}")
    a("s_waitcnt vmcnt(8)")
    a(f"v_max_f32 v{v_kn}, v{v_kn}, v{v_kn+1}")
    xlane_add(a, v_kn, v_lane, t[0], t[1], (1, 2, 4, 8, 16, 32), op="v_max_f32")
    a(f"v_cmp_eq_u32 vcc, 0, v{v_h}")
    a("s_nop 1")
    for b in range(2):
        a(f"v_cndmask_b32 v{Q[b]+4}, 0, v{Q[b]+4}, vcc")
        a(f"v_cndmask_b32 v{Q[b]+5}, 0, v{Q[b]+5}, vcc")
        a(f"v_mov_b32 v{Q[b]+7}, 0")
        a(f"v_mov_b32 v{t[2]}, 0")
        for i in range(6):
            a(f"v_lshlrev_b32 v{t[0]}, 16, v{Q[b]+i}")
            a(f"v_and_b32 v{t[1]}, 0xffff0000, v{Q[b]+i}")
            a(f"v_fma_f32 v{t[2]}, v{t[0]}, v{t[0]}, v{t[2]}")
            a(f"v_fma_f32 v{t[2]}, v{t[1]}, v{t[1]}, v{t[2]}")
        xlane_add(a, t[2], v_lane, t[0], t[1], (32,))
        a(f"v_mul_f32 v{t[2]}, v{t[2]}, v{v_kn}")
        a(f"v_sqrt_f32 v{t[2]}, v{t[2]}")
        a("s_nop 0")
        a(f"v_cvt_pk_bf16_f32 v{t[2]}, -v{t[2]}, 0")
        a(f"v_cndmask_b32 v{Q[b]+6}, 0, v{t[2]}, vcc")
    a("s_barrier")
    a(f"ds_read_b128 {vr(KF[0],4)}, v{v_cur} offset:0")
    a(f"ds_read_b128 {vr(KF[0]+4,4)}, v{v_cur} offset:1024")
    a(f"ds_read_b128 {vr(KF[1],4)}, v{v_cur} offset:2048")
    a(f"ds_read_b128 {vr(KF[1]+4,4)}, v{v_cur} offset:3072")
    a(f"ds_read_b128 {vr(VF[0],4)}, v{v_cur} offset:16384")
    a(f"ds_read_b128 {vr(VF[0]+4,4)}, v{v_cur} offset:17408")
    a("s_waitcnt lgkmcnt(0)")

    def qk(b, par, s, kf):
        d = vr(Sb[b][par], 16)
        c = "0" if s == 0 else d
        return f"v_mfma_f32_32x32x16_bf16 {d}, {vr(kf+4*s,4)}, {vr(Q[b]+4*s,4)}, {c}"

    def pv(b, s, vf):
        d = vr(O[b], 16)
        return f"v_mfma_f32_32x32x16_bf16 {d}, {vr(vf+4*s,4)}, {vr(P[b]+4*s,4)}, {d}"

    for b in range(2):
        a(qk(b, 0, 0, KF[0]))
        a(qk(b, 0, 1, KF[0]))
    a("s_nop 7")
    a("s_nop 7")
    a(f"s_mov_b32 s{S_CNT}, 8")
    a(f"s_mov_b32 s{S_SLOT}, 65536")
    a(f"s_add_u32 s{S_GOFF}, s{S_WOFF}, 32768")
    a.label("k2_loop")

    def exps(b, par, i0):
        return [f"v_exp_f32 v{Sb[b][par]+i}, v{Sb[b][par]+i}" for i in range(i0, i0 + 4)]

    def cvts(b, par, i0):
        return [f"v_cvt_pk_bf16_f32 v{P[b]+(i0+i)//2}, v{Sb[b][par]+i0+i}, v{Sb[b][par]+i0+i+1}" for i in (0, 2)]

    for ph in range(8):
        p = ph & 1
        q = p ^ 1
        kt, vt = ph + 2, ph + 1
        kreg = v_cur if kt < 8 else v_nxt
        vreg = v_cur if vt < 8 else v_nxt
        kr = [f"ds_read_b128 {vr(KF[p]+4*s,4)}, v{kreg} offset:{(kt%8)*2048 + s*1024}" for s in range(2)]
        vrd = [f"ds_read_b128 {vr(VF[q]+4*s,4)}, v{vreg} offset:{16384 + (vt%8)*2048 + s*1024}" for s in range(2)]
        M = [qk(0, q, 0, KF[q]), pv(1, 1, VF[q]), qk(0, q, 1, KF[q]), pv(0, 0, VF[p]),
             qk(1, q, 0, KF[q]), pv(0, 1, VF[p]), qk(1, q, 1, KF[q]), pv(1, 0, VF[p])]
        V = [cvts(1, q, 12) + exps(0, p, 0),
             exps(0, p, 4),
             cvts(0, p, 0) + cvts(0, p, 4) + exps(0, p, 8),
             cvts(0, p, 8) + exps(0, p, 12),
             cvts(0, p, 12) + exps(1, p, 0),
             exps(1, p, 4),
             cvts(1, p, 0) + cvts(1, p, 4) + exps(1, p, 8),
             cvts(1, p, 8) + exps(1, p, 12)]
        extra = [[] for _ in range(8)]
        dm = []
        if ph == 6:
            a("s_waitcnt vmcnt(0)")
            a("s_barrier")
            a(f"s_add_u32 s{S_T1}, s{S_SLOT}, s{S_WOFF}")
            dm = dma_chunk(S_T1, S_GOFF)
        a("s_waitcnt lgkmcnt(0)")
        extra[0] += kr
        extra[2] += vrd
        for i, u in enumerate(dm):
            extra[i] += u
        for i in range(8):
            a(M[i])
            for l in extra[i]:
                a(l)
            for l in V[i]:
                a(l)
    a(f"v_mov_b32 v{v_cur}, v{v_nxt}")
    a(f"v_add_u32 v{v_nxt}, s{S_SLOT}, v{v_l16}")
    a(f"s_add_u32 s{S_SLOT}, s{S_SLOT}, 32768")
    a(f"s_cmp_eq_u32 s{S_SLOT}, 98304")
    a(f"s_cselect_b32 s{S_SLOT}, 0, s{S_SLOT}")
    a(f"s_add_u32 s{S_GOFF}, s{S_GOFF}, 16384")
    a(f"s_sub_u32 s{S_CNT}, s{S_CNT}, 1")
    a(f"s_cmp_lg_u32 s{S_CNT}, 0")
    a("s_cbranch_scc1 k2_loop")
    for l in cvts(1, 1, 12):
        a(l)
    a("s_nop 1")
    a(pv(1, 1, VF[1]))
    a("s_waitcnt vmcnt(0) lgkmcnt(0)")
    a("s_nop 7")
    a("s_nop 7")
    a(f"v_mov_b32 v{t[0]}, {f32(2.0**-40)}")
    a(f"v_cmp_nge_f32 s[74:75], v{O[0]+12}, v{t[0]}")
    a(f"v_cmp_nge_f32 vcc, v{O[1]+12}, v{t[0]}")
    a("s_nop 3")
    a("s_or_b64 vcc, vcc, s[74:75]")
    a("s_cbranch_vccnz k2_slow")
    a.label("k2_epi")
    for b in range(2):
        a(f"v_rcp_f32 v{t[0]}, v{O[b]+12}")
        a("s_nop 0")
        for i in range(12):
            a(f"v_mul_f32 v{O[b]+i}, v{O[b]+i}, v{t[0]}")
        for i in range(6):
            a(f"v_cvt_pk_bf16_f32 v{O[b]+i}, v{O[b]+2*i}, v{O[b]+2*i+1}")
        a(f"s_mov_b32 s{S_KW}, {b*32*D*2}")
        a(f"buffer_store_dwordx2 {vr(O[b],2)}, v{v_oa}, {sr(SRD4,4)}, s{S_KW} offen")
        a(f"buffer_store_dwordx2 {vr(O[b]+2,2)}, v{v_oa}, {sr(SRD4,4)}, s{S_KW} offen offset:16")
    a(f"v_cmp_eq_u32 vcc, 0, v{v_h}")
    a("s_nop 3")
    a("s_and_saveexec_b64 s[74:75], vcc")
    for b in range(2):
        a(f"s_mov_b32 s{S_KW}, {b*32*D*2}")
        a(f"buffer_store_dwordx2 {vr(O[b]+4,2)}, v{v_oa}, {sr(SRD4,4)}, s{S_KW} offen offset:32")
    a.label("k2_end")
    a("s_endpgm")

    a.label("k2_slow")
    for b in range(2):
        a(f"v_mov_b32 v{Q[b]+6}, 0")
        a(f"v_mov_b32 v{v_m[b]}, 0xff800000")
    a(f"s_mov_b32 s{S_GOFF}, 0")
    a.label("k2_slow1")
    a(f"buffer_load_dwordx4 {vr(KF[0],4)}, v{v_l16}, {sr(SRD1,4)}, s{S_GOFF} offen")
    a(f"buffer_load_dwordx4 {vr(KF[0]+4,4)}, v{v_l16}, {sr(SRD1,4)}, s{S_GOFF} offen offset:1024")
    a("s_waitcnt vmcnt(0)")
    for b in range(2):
        a(qk(b, 0, 0, KF[0]))
        a(qk(b, 0, 1, KF[0]))
    a("s_nop 7")
    a("s_nop 7")
    for b in range(2):
        for i in range(0, 16, 2):
            a(f"v_max3_f32 v{v_m[b]}, v{Sb[b][0]+i}, v{Sb[b][0]+i+1}, v{v_m[b]}")
    a(f"s_add_u32 s{S_GOFF}, s{S_GOFF}, 2048")
    a(f"s_cmp_lt_u32 s{S_GOFF}, 0x20000")
    a("s_cbranch_scc1 k2_slow1")
    a(f"v_cmp_eq_u32 vcc, 0, v{v_h}")
    for b in range(2):
        xlane_add(a, v_m[b], v_lane, t[0], t[1], (32,), op="v_max_f32")
        a(f"v_cvt_pk_bf16_f32 v{t[2]}, -v{v_m[b]}, 0")
        a(f"v_cndmask_b32 v{Q[b]+6}, 0, v{t[2]}, vcc")
        for i in range(16):
            a(f"v_mov_b32 v{O[b]+i}, 0")
    a(f"s_mov_b32 s{S_GOFF}, 0")
    a.label("k2_slow2")
    a(f"buffer_load_dwordx4 {vr(KF[0],4)}, v{v_l16}, {sr(SRD1,4)}, s{S_GOFF} offen")
    a(f"buffer_load_dwordx4 {vr(KF[0]+4,4)}, v{v_l16}, {sr(SRD1,4)}, s{S_GOFF} offen offset:1024")
    a(f"buffer_load_dwordx4 {vr(VF[0],4)}, v{v_l16}, {sr(SRD2,4)}, s{S_GOFF} offen")
    a(f"buffer_load_dwordx4 {vr(VF[0]+4,4)}, v{v_l16}, {sr(SRD2,4)}, s{S_GOFF} offen offset:1024")
    a("s_waitcnt vmcnt(0)")
    for b in range(2):
        a(qk(b, 0, 0, KF[0]))
        a(qk(b, 0, 1, KF[0]))
    a("s_nop 7")
    a("s_nop 7")
    for b in range(2):
        for i0 in range(0, 16, 4):
            for l in exps(b, 0, i0):
                a(l)
        a("s_nop 0")
        for i0 in range(0, 16, 4):
            for l in cvts(b, 0, i0):
                a(l)
    a("s_nop 1")
    for b in range(2):
        a(pv(b, 0, VF[0]))
        a(pv(b, 1, VF[0]))
    a("s_nop 7")
    a("s_nop 7")
    a(f"s_add_u32 s{S_GOFF}, s{S_GOFF}, 2048")
    a(f"s_cmp_lt_u32 s{S_GOFF}, 0x20000")
    a("s_cbranch_scc1 k2_slow2")
    a("s_branch k2_epi")
    kernel_end(a, name, va.n)
    return (name, 256, 256, 98304)


def gen_proj(a, which):
    name = "k3_wo_kernel" if which == 3 else "k5_down_kernel"
    end = name + "_end"
    kernel_begin(a, name)
    a("s_cmp_ge_u32 s2, 256")
    a(f"s_cbranch_scc1 {end}")
    load_kernargs(a)
    va = VAlloc(1)
    a(f"s_and_b32 s{S_T1}, s2, 7")
    a(f"s_lshr_b32 s{S_T0}, s2, 3")
    a(f"s_lshr_b32 s{S_T2}, s{S_T0}, 3")
    a(f"s_lshl_b32 s{S_T1}, s{S_T1}, 2")
    a(f"s_add_u32 s{S_T1}, s{S_T1}, s{S_T2}")
    a(f"s_lshl_b32 s{S_TOK0}, s{S_T1}, 6")
    a(f"s_and_b32 s{S_T0}, s{S_T0}, 7")
    a(f"s_mul_i32 s{S_COL}, s{S_T0}, 160")
    a("s_waitcnt lgkmcnt(0)")
    if which == 3:
        K = D
        make_srd(a, SRD0, P_WS, WS_O, S * D * 2)
        make_srd(a, SRD1, P_WO, 0, D * D * 2)
        make_srd(a, SRD2, P_WS, WS_H, S * D * 2)
        make_srd(a, SRD3, P_X, 0, S * D * 2)
        make_srd(a, SRD4, P_WS, WS_ST, S * 64)
    else:
        K = F
        make_srd(a, SRD0, P_WS, WS_ACT, S * F * 2)
        make_srd(a, SRD1, P_WD, 0, F * D * 2)
        make_srd(a, SRD2, P_OUT, 0, S * D * 2)
        make_srd(a, SRD3, P_WS, WS_H, S * D * 2)
    seg = Seg(SRD1, D * 2, 80, 'p160', S_COL)
    g = Gemm(a, va, 64, 2, 2, 1, [seg], 128, 4, K, SRD0, K * 2, S_TOK0, sregs=GS)
    g.setup()
    t = g.tmp
    v_ad, v_tok, v_x = va(), va(), va()
    res = va(10, 2)
    a(f"v_lshl_add_u32 v{v_tok}, v{g.v_wt}, 1, v{g.v_wo}")
    a(f"v_lshl_add_u32 v{v_tok}, v{v_tok}, 4, v{g.v_i16}")
    a(f"v_add_u32 v{v_tok}, s{S_TOK0}, v{v_tok}")
    a(f"v_mul_u32_u24 v{t[0]}, {D*2}, v{v_tok}")
    a(f"v_lshl_add_u32 v{v_ad}, v{g.v_g}, 3, v{t[0]}")
    a(f"v_add_u32 v{v_ad}, s{S_COL}, v{v_ad}")
    for fb in range(5):
        a(f"buffer_load_dwordx2 {vr(res+2*fb,2)}, v{v_ad}, {sr(SRD3,4)}, 0 offen offset:{fb*32}")
    g.issue_first()
    g.mainloop()
    a("s_nop 7")
    a("s_barrier")
    skip = a.newlabel("xs")
    a(f"s_cmp_lt_u32 s{S_WAVE}, 2")
    a(f"s_cbranch_scc1 {skip}")
    for fb in range(5):
        for r in range(4):
            a(f"v_swap_b32 v{g.acc[0][fb]+r}, v{g.acc[1][fb]+r}")
    a.label(skip)
    a(f"v_mul_u32_u24 v{t[0]}, 5120, v{g.v_wave}")
    a(f"v_lshl_add_u32 v{t[0]}, v{g.v_lane}, 4, v{t[0]}")
    a(f"v_xor_b32 v{t[1]}, 2, v{g.v_wave}")
    a(f"v_mul_u32_u24 v{t[1]}, 5120, v{t[1]}")
    a(f"v_lshl_add_u32 v{t[1]}, v{g.v_lane}, 4, v{t[1]}")
    for fb in range(5):
        a(f"ds_write_b128 v{t[0]}, {vr(g.acc[1][fb],4)} offset:{fb*1024}")
    a("s_waitcnt lgkmcnt(0)")
    a("s_barrier")
    for fb in range(5):
        a(f"ds_read_b128 {vr(g.acc[1][fb],4)}, v{t[1]} offset:{fb*1024}")
    a("s_waitcnt lgkmcnt(0)")
    v_s, v_q = va(2, 2), None
    v_q = v_s + 1
    if which == 3:
        a(f"v_mov_b32 v{v_s}, 0")
        a(f"v_mov_b32 v{v_q}, 0")
    for fb in range(5):
        c, o = g.acc[0][fb], g.acc[1][fb]
        for p in range(2):
            a(f"v_lshlrev_b32 v{t[0]}, 16, v{res+2*fb+p}")
            a(f"v_and_b32 v{t[1]}, 0xffff0000, v{res+2*fb+p}")
            a(f"v_add_f32 v{c+2*p}, v{c+2*p}, v{o+2*p}")
            a(f"v_add_f32 v{c+2*p+1}, v{c+2*p+1}, v{o+2*p+1}")
            a(f"v_cvt_pk_bf16_f32 v{t[2]}, v{c+2*p}, v{c+2*p+1}")
            a(f"v_lshlrev_b32 v{t[3]}, 16, v{t[2]}")
            a(f"v_and_b32 v{t[2]}, 0xffff0000, v{t[2]}")
            a(f"v_add_f32 v{t[0]}, v{t[0]}, v{t[3]}")
            a(f"v_add_f32 v{t[1]}, v{t[1]}, v{t[2]}")
            a(f"v_cvt_pk_bf16_f32 v{o+p}, v{t[0]}, v{t[1]}")
            if which == 3:
                a(f"v_lshlrev_b32 v{t[0]}, 16, v{o+p}")
                a(f"v_and_b32 v{t[1]}, 0xffff0000, v{o+p}")
                a(f"v_add_f32 v{v_s}, v{v_s}, v{t[0]}")
                a(f"v_fma_f32 v{v_q}, v{t[0]}, v{t[0]}, v{v_q}")
                a(f"v_add_f32 v{v_s}, v{v_s}, v{t[1]}")
                a(f"v_fma_f32 v{v_q}, v{t[1]}, v{t[1]}, v{v_q}")
        a(f"buffer_store_dwordx2 {vr(o,2)}, v{v_ad}, {sr(SRD2,4)}, 0 offen offset:{fb*32}")
    if which == 3:
        xlane_add(a, v_s, g.v_lane, t[0], t[1], (16, 32))
        xlane_add(a, v_q, g.v_lane, t[0], t[1], (16, 32))
        a(f"v_lshlrev_b32 v{t[0]}, 6, v{v_tok}")
        a(f"s_lshl_b32 s{S_T0}, s{S_T0}, 3")
        a(f"v_cmp_eq_u32 vcc, 0, v{g.v_g}")
        a("s_nop 3")
        a("s_and_saveexec_b64 s[74:75], vcc")
        a(f"buffer_store_dwordx2 {vr(v_s,2)}, v{t[0]}, {sr(SRD4,4)}, s{S_T0} offen")
    a.label(end)
    a("s_endpgm")
    kernel_end(a, name, va.n)
    return (name, 256, 256, g.lds_bytes)


def gen_k4(a):
    name = "k4_ffn_kernel"
    kernel_begin(a, name)
    a("s_cmp_ge_u32 s2, 256")
    a("s_cbranch_scc1 k4_end")
    load_kernargs(a)
    va = VAlloc(1)
    a(f"s_and_b32 s{S_T1}, s2, 7")
    a(f"s_lshr_b32 s{S_T0}, s2, 3")
    a(f"s_and_b32 s{S_T2}, s{S_T1}, 1")
    a(f"s_lshl_b32 s{S_T2}, s{S_T2}, 3")
    a(f"s_and_b32 s{S_TOK0}, s{S_T0}, 7")
    a(f"s_add_u32 s{S_TOK0}, s{S_TOK0}, s{S_T2}")
    a(f"s_lshl_b32 s{S_TOK0}, s{S_TOK0}, 7")
    a(f"s_lshr_b32 s{S_T1}, s{S_T1}, 1")
    a(f"s_lshl_b32 s{S_T1}, s{S_T1}, 2")
    a(f"s_lshr_b32 s{S_T0}, s{S_T0}, 3")
    a(f"s_add_u32 s{S_T0}, s{S_T0}, s{S_T1}")
    a(f"s_mul_i32 s{S_COL}, s{S_T0}, 192")
    a("s_waitcnt lgkmcnt(0)")
    make_srd(a, SRD0, P_WS, WS_H, S * D * 2)
    make_srd(a, SRD1, P_WG, 0, D * F * 2)
    make_srd(a, SRD2, P_WU, 0, D * F * 2)
    make_srd(a, SRD3, P_WS, WS_ACT, S * F * 2)
    make_srd(a, SRD4, P_WS, WS_ST, S * 64)
    make_srd(a, SRD5, P_WS, WS_CS, 3072 * 4)
    sg = Seg(SRD1, F * 2, 96, 'p192', S_COL)
    su = Seg(SRD2, F * 2, 96, 'p192', S_COL)
    g = Gemm(a, va, 128, 2, 1, 2, [sg, su], 64, K4_NS, D, SRD0, D * 2, S_TOK0, sregs=GS)
    g.setup()
    t = g.tmp
    st = va(16, 4)
    cs = va(24, 4)
    v_tok, v_ad = va(), va()
    a(f"v_lshl_add_u32 v{v_tok}, v{g.v_wt}, 6, v{g.v_i16}")
    a(f"v_add_u32 v{v_tok}, s{S_TOK0}, v{v_tok}")
    a(f"v_lshlrev_b32 v{t[0]}, 6, v{v_tok}")
    a(f"v_lshl_add_u32 v{t[0]}, v{g.v_g}, 4, v{t[0]}")
    for tb in range(4):
        a(f"buffer_load_dwordx4 {vr(st+4*tb,4)}, v{t[0]}, {sr(SRD4,4)}, 0 offen offset:{tb*1024}")
    a(f"v_mul_u32_u24 v{t[1]}, 48, v{g.v_wo}")
    a(f"v_lshl_add_u32 v{t[1]}, v{g.v_g}, 2, v{t[1]}")
    a(f"v_lshlrev_b32 v{t[2]}, 2, v{t[1]}")
    a(f"s_lshl_b32 s{S_T1}, s{S_COL}, 1")
    for sgi in range(2):
        a(f"s_add_u32 s{S_T2}, s{S_T1}, {sgi*1536*4}")
        for fb in range(3):
            a(f"buffer_load_dwordx4 {vr(cs+12*sgi+4*fb,4)}, v{t[2]}, {sr(SRD5,4)}, s{S_T2} offen offset:{fb*64}")
    a(f"v_mul_u32_u24 v{v_ad}, {F*2}, v{v_tok}")
    a(f"v_lshl_add_u32 v{v_ad}, v{t[1]}, 1, v{v_ad}")
    a(f"v_add_u32 v{v_ad}, s{S_COL}, v{v_ad}")
    g.issue_first()
    g.mainloop()
    a("s_nop 7")
    GC = -2.0 * 0.7978845608028654 * 1.4426950408889634
    a(f"s_mov_b32 s{S_T1}, {f32(GC)}")
    a(f"s_mov_b32 s{S_T2}, {f32(GC*0.044715)}")
    for tb in range(4):
        s0 = st + 4 * tb
        a(f"v_add_f32 v{s0}, v{s0}, v{s0+2}")
        a(f"v_add_f32 v{s0+1}, v{s0+1}, v{s0+3}")
        xlane_add(a, s0, g.v_lane, t[0], t[1], (16, 32))
        xlane_add(a, s0 + 1, g.v_lane, t[0], t[1], (16, 32))
        ln_stats(a, s0, s0 + 1, s0 + 2, s0 + 3, t)
        vm, vs = s0 + 2, s0 + 3
        for fb in range(3):
            cg, cu = g.acc[tb][fb], g.acc[tb][3 + fb]
            for r in range(4):
                a(f"v_fma_f32 v{cg+r}, -v{vm}, v{cs+4*fb+r}, v{cg+r}")
                a(f"v_fma_f32 v{cu+r}, -v{vm}, v{cs+12+4*fb+r}, v{cu+r}")
                a(f"v_mul_f32 v{cg+r}, v{cg+r}, v{vs}")
                a(f"v_mul_f32 v{cu+r}, v{cu+r}, v{vs}")
                a(f"v_mul_f32 v{t[r]}, v{cg+r}, v{cg+r}")
                a(f"v_mov_b32 v{t[4]}, s{S_T1}")
                a(f"v_fma_f32 v{t[r]}, v{t[r]}, s{S_T2}, v{t[4]}")
                a(f"v_mul_f32 v{t[r]}, v{t[r]}, v{cg+r}")
                a(f"v_exp_f32 v{t[r]}, v{t[r]}")
            for r in range(4):
                a(f"v_add_f32 v{t[r]}, 1.0, v{t[r]}")
                a(f"v_rcp_f32 v{t[r]}, v{t[r]}")
            for r in range(4):
                a(f"v_mul_f32 v{cu+r}, v{cu+r}, v{cg+r}")
                a(f"v_mul_f32 v{cu+r}, v{cu+r}, v{t[r]}")
            a(f"v_cvt_pk_bf16_f32 v{cu}, v{cu}, v{cu+1}")
            a(f"v_cvt_pk_bf16_f32 v{cu+1}, v{cu+2}, v{cu+3}")
            a(f"s_mov_b32 s{S_KW}, {tb*16*F*2}")
            a(f"buffer_store_dwordx2 {vr(cu,2)}, v{v_ad}, {sr(SRD3,4)}, s{S_KW} offen offset:{fb*32}")
    a.label("k4_end")
    a("s_endpgm")
    kernel_end(a, name, va.n)
    return (name, 256, 256, g.lds_bytes)

K4_NS = 3


def main():
    a = Asm()
    a.raw('.amdgcn_target "amdgcn-amd-amdhsa--gfx950"')
    a.raw(".text")
    launches = [gen_k1(a), gen_k2(a), gen_proj(a, 3), gen_k4(a), gen_proj(a, 5)]
    head = open("cdna_kernels/" + NAME + ".s.ref").read().split("\n")
    hdr = [l for l in head if l.startswith(";") and "@launch" not in l and "Override launch" not in l and "grid=ceil" not in l]
    out = "\n".join(hdr) + "\n"
    for n, gx, bx, lds in launches:
        out += f"; @launch kernel={n} grid=({gx},1,1) block=({bx},1,1) lds={lds}\n"
    out += a.text()
    out += '.section .rodata,"a"\n' + "".join(KDS)
    path = sys.argv[1] if len(sys.argv) > 1 else "cdna_kernels/" + NAME + ".s"
    open(path, "w").write(out)
    print("wrote", path, len(out), "bytes;", launches)

if __name__ == "__main__":
    main()
```

```python
import sys

NAME = "sequential_preLN__grouped_kv_mqa__geglu_ffn__prompt"

S, D, H, DH, F = 2048, 640, 32, 20, 1536

WS_Q   = 0
WS_KF  = 0x280000
WS_VF  = WS_KF + 0x20000
WS_KN  = WS_VF + 0x20000
WS_CS  = WS_KN + 0x1000
WS_O   = WS_CS + 0x10000
WS_H   = WS_O + 0x280000
WS_ST  = WS_H + 0x280000
WS_ACT = WS_ST + 0x20000
WS_S1  = WS_ACT + 0x600000
WS_IMG = WS_S1 + 0x4000
WS_TL = 0x3000000
IMG_WO, IMG_WD, IMG_GU, IMG_SZ = 0, 819200, 819200 + 1966080, 6717440

KA_X, KA_WQ, KA_WK, KA_WV, KA_WO, KA_BX, KA_WG, KA_WU, KA_WD, KA_OUT, KA_DBG, KA_WS = [8 * i for i in range(12)]

import struct, os
INSTR = bool(os.environ.get("INSTR"))
HACK_LIN = bool(os.environ.get("HACK_LIN"))
NOCOMP = os.environ.get("NOCOMP", "").split(",")
NOX = os.environ.get("NOX", "").split(",")
NOW = os.environ.get("NOW", "").split(",")
PF = bool(os.environ.get("PF"))
IMGPOL = os.environ.get("IMGPOL", "sc0 sc1")
for _k in ("NORB2", "NORB3", "NORB4"):
    os.environ[_k] = "1"
NOLOAD = os.environ.get("NOLOAD", "").split(",")
def f32(x):
    return "0x%08x" % struct.unpack("<I", struct.pack("<f", x))[0]


class Asm:
    skip_dma = False
    def __init__(self):
        self.lines = []
        self.nlabel = 0

    def __call__(self, s):
        for l in s.split("\n"):
            l = l.strip()
            if self.skip_dma and l.startswith("buffer_load") and l.endswith("lds"):
                continue
            if l:
                self.lines.append("    " + l)

    def label(self, l):
        self.lines.append(l + ":")

    def newlabel(self, p="L"):
        self.nlabel += 1
        return f"{p}_{self.nlabel}"

    def raw(self, s):
        self.lines.append(s)

    def text(self):
        return "\n".join(self.lines) + "\n"


class VAlloc:
    def __init__(self, start=1):
        self.n = start

    def __call__(self, cnt=1, align=1):
        self.n = (self.n + align - 1) // align * align
        r = self.n
        self.n += cnt
        return r


def vr(b, n):
    return f"v[{b}:{b+n-1}]"


def sr(b, n):
    return f"s[{b}:{b+n-1}]"


KIDX = [-1]
def kernel_begin(a, name):
    KIDX[0] += 1
    a.raw(f".globl {name}")
    a.raw(".p2align 8")
    a.raw(f".type {name},@function")
    a.label(name)


KDS = []
def kernel_end(a, name, nvgpr, nsgpr=102):
    nv = (nvgpr + 7) // 8 * 8
    KDS.append(f""".p2align 6
.amdhsa_kernel {name}
  .amdhsa_next_free_vgpr {nv}
  .amdhsa_next_free_sgpr {nsgpr}
  .amdhsa_accum_offset {(nv + 3) // 4 * 4}
  .amdhsa_group_segment_fixed_size 0
  .amdhsa_kernarg_size 96
  .amdhsa_user_sgpr_count 2
  .amdhsa_user_sgpr_kernarg_segment_ptr 1
  .amdhsa_system_sgpr_workgroup_id_x 1
.end_amdhsa_kernel
""")


def make_srd(a, dst, base_s, off, nbytes):
    if off:
        a(f"s_add_u32 s{dst}, s{base_s}, {off}")
        a(f"s_addc_u32 s{dst+1}, s{base_s+1}, 0")
    else:
        a(f"s_mov_b32 s{dst}, s{base_s}")
        a(f"s_mov_b32 s{dst+1}, s{base_s+1}")
    a(f"s_mov_b32 s{dst+2}, {nbytes}")
    a(f"s_mov_b32 s{dst+3}, 0x00020000")


def interleave(mfmas, fillers):
    out = []
    nm, nf = len(mfmas), len(fillers)
    fi = 0
    for i, m in enumerate(mfmas):
        out.append(m)
        tgt = ((i + 1) * nf + nm - 1) // nm if nm else nf
        while fi < min(tgt, nf):
            out.extend(fillers[fi])
            fi += 1
    while fi < nf:
        out.extend(fillers[fi])
        fi += 1
    return out


class Seg:
    def __init__(self, srd, gstride, nf, kind, colreg=None, img=None):
        self.img = img
        self.srd = srd
        self.gstride = gstride
        self.nf = nf
        self.kind = kind
        self.colreg = colreg


class Gemm:
    def __init__(self, a, va, TT, WT, WK, WF, segs, BK, NS, K, xsrd, xstride, s_tok0,
                 stats=False, colsum=False, sregs=None, tag="g", lds_base=0):
        self.a, self.va = a, va
        self.lds_base = lds_base
        self.TT, self.WT, self.WK, self.WF = TT, WT, WK, WF
        assert WT * WK * WF == 4
        self.segs, self.BK, self.NS, self.K = segs, BK, NS, K
        self.xsrd, self.xstride, self.s_tok0 = xsrd, xstride, s_tok0
        self.stats, self.colsum = stats, colsum
        self.tag = tag
        self.TW = TT // WT
        self.TB = self.TW // 16
        self.RB = BK * 2
        self.CPR = self.RB // 16
        self.nst = K // BK
        self.SPS = BK // 32
        self.SPW = self.SPS // WK
        assert self.SPW % 2 == 0
        self.xbytes = TT * self.RB
        off = self.xbytes
        for s in segs:
            s.lstride = 40 if s.kind == 'lin40' else s.nf * 2
            nb = BK * s.lstride
            s.ninstr = (nb + 4095) // 4096 * 4
            s.lbase = off
            off += s.ninstr * 1024
            s.FBW = (s.nf // WF) // 16
        self.stage_bytes = off
        self.nx = self.xbytes // 1024
        assert self.nx % 4 == 0
        self.ndma = self.nx // 4 + sum(s.ninstr // 4 for s in segs)
        self.lds_bytes = self.stage_bytes * NS
        (self.s_woff, self.s_kx, self.s_kw, self.s_wave, self.s_cnt, self.s_slot, self.s_kidx, self.s_dl) = sregs

    def split(self):
        a, va = self.a, self.va
        self.tmp = [va() for _ in range(6)]
        t = self.tmp
        a(f"v_lshrrev_b32 v{t[0]}, 6, v0")
        a("s_nop 0")
        a(f"v_readfirstlane_b32 s{self.s_wave}, v{t[0]}")
        a("s_nop 3")
        a(f"s_cmp_ge_u32 s{self.s_wave}, 4")
        a(f"s_cbranch_scc1 {self.tag}_loader")

    def loader(self, s_rot=None, prefetch=None, cont=None, early=None):
        a = self.a
        va = VAlloc(1)
        t = [va() for _ in range(6)]
        a.label(f"{self.tag}_loader")
        a(f"v_and_b32 v0, 255, v0")
        a(f"s_and_b32 s{self.s_woff}, s{self.s_wave}, 3")
        a(f"s_lshl_b32 s{self.s_woff}, s{self.s_woff}, 10")
        if self.lds_base:
            a(f"s_add_u32 s{self.s_woff}, s{self.s_woff}, {self.lds_base}")
        if early is not None:
            early(va, t)
        lg = {8: 3, 16: 4}[self.CPR]
        v_dx = va()
        a(f"v_lshrrev_b32 v{t[1]}, {lg}, v0")
        a(f"v_and_b32 v{t[2]}, {self.CPR-1}, v0")
        if self.CPR == 8:
            a(f"v_bfe_u32 v{t[3]}, v{t[1]}, 1, 3")
        else:
            a(f"v_and_b32 v{t[3]}, 15, v{t[1]}")
        a(f"v_xor_b32 v{t[2]}, v{t[2]}, v{t[3]}")
        a(f"v_add_u32 v{t[1]}, s{self.s_tok0}, v{t[1]}")
        a(f"v_mul_u32_u24 v{t[1]}, {self.xstride}, v{t[1]}")
        a(f"v_lshl_add_u32 v{v_dx}, v{t[2]}, 4, v{t[1]}")
        xrows = 256 // self.CPR
        done = {}
        for s in self.segs:
            key = (s.kind, s.nf)
            if key in done:
                s.v_d = done[key]
                continue
            s.v_d = []
            cprw = s.lstride // 16 if s.kind != 'lin40' else None
            for j in range(s.ninstr // 4):
                if s.kind == 'lin40' or s.img:
                    if j == 0:
                        r = va()
                        a(f"v_lshlrev_b32 v{r}, 4, v0")
                    s.v_d.append(r)
                    continue
                r = va()
                s.v_d.append(r)
                a(f"v_add_u32 v{t[0]}, {j*256}, v0")
                magic = {10: 52429, 12: 43691}[cprw]
                a(f"v_mul_u32_u24 v{t[1]}, {magic}, v{t[0]}")
                a(f"v_lshrrev_b32 v{t[1]}, 19, v{t[1]}")
                a(f"v_mul_u32_u24 v{t[2]}, {cprw}, v{t[1]}")
                a(f"v_sub_u32 v{t[2]}, v{t[0]}, v{t[2]}")
                a(f"v_and_b32 v{t[3]}, 0xfffffff3, v{t[1]}")
                a(f"v_bfe_u32 v{t[4]}, v{t[1]}, 2, 1")
                if s.kind == 'p192':
                    a(f"v_lshlrev_b32 v{t[5]}, 1, v{t[4]}")
                    a(f"v_xor_b32 v{t[2]}, v{t[2]}, v{t[5]}")
                a(f"v_lshl_or_b32 v{t[3]}, v{t[4]}, 3, v{t[3]}")
                a(f"v_bfe_u32 v{t[4]}, v{t[1]}, 3, 1")
                a(f"v_lshl_or_b32 v{t[3]}, v{t[4]}, 2, v{t[3]}")
                a(f"v_mul_u32_u24 v{t[3]}, {s.gstride}, v{t[3]}")
                a(f"v_lshl_add_u32 v{r}, v{t[2]}, 4, v{t[3]}")
                if s.colreg is not None:
                    a(f"v_add_u32 v{r}, s{s.colreg}, v{r}")
            done[key] = s.v_d
        if HACK_LIN and self.tag in ("k3", "k5", "k4"):
            a(f"s_lshr_b32 s{self.s_dl}, s{self.s_tok0}, {({64:6,128:7})[self.TT]}")
            a(f"s_mul_i32 s{self.s_dl}, s{self.s_dl}, {self.nst*self.xbytes}")
            a(f"v_lshlrev_b32 v{v_dx}, 4, v0")
            a(f"v_add_u32 v{v_dx}, s{self.s_dl}, v{v_dx}")
            s0 = self.segs[0]
            nb = self.BK * s0.lstride
            a(f"s_mul_i32 s{self.s_dl}, s{S_T0}, {self.nst*nb}")
            for j, r in enumerate(s0.v_d):
                a(f"v_lshlrev_b32 v{r}, 4, v0")
                a(f"v_add_u32 v{r}, {j*4096}, v{r}")
                a(f"v_add_u32 v{r}, s{self.s_dl}, v{r}")
        if s_rot is None:
            a(f"s_mov_b32 s{self.s_kidx}, 0")
        else:
            a(f"s_mov_b32 s{self.s_kidx}, s{s_rot}")
        a(f"s_mov_b32 s{self.s_slot}, s{self.s_woff}")
        gs = self.segs[0].gstride

        def issue():
            hk = HACK_LIN and self.tag in ("k3", "k5", "k4")
            a(f"s_mul_i32 s{self.s_kx}, s{self.s_kidx}, {self.xbytes if hk else self.BK*2}")
            if self.segs[0].img:
                a(f"s_mul_i32 s{self.s_kw}, s{self.s_kidx}, {self.segs[0].img[1]}")
                a(f"s_add_u32 s{self.s_kw}, s{self.s_kw}, s{self.segs[0].img[0]}")
            else:
                a(f"s_mul_i32 s{self.s_kw}, s{self.s_kidx}, {self.BK*self.segs[0].lstride if hk else self.BK*gs}")
            for j in range(self.nx // 4):
                a(f"s_add_u32 m0, s{self.s_slot}, {j*4096}")
                if j:
                    a(f"s_add_u32 s{self.s_kx}, s{self.s_kx}, {4096 if hk else xrows*self.xstride}")
                else:
                    a("s_nop 0")
                if self.tag in NOX:
                    a(f"buffer_load_dwordx4 v{v_dx}, {sr(self.xsrd,4)}, 0 offen lds")
                else:
                    a(f"buffer_load_dwordx4 v{v_dx}, {sr(self.xsrd,4)}, s{self.s_kx} offen lds")
            for s in self.segs:
                assert s.gstride == gs
                for j, r in enumerate(s.v_d):
                    a(f"s_add_u32 m0, s{self.s_slot}, {s.lbase + j*4096}")
                    if s.kind == 'lin40' or s.img:
                        a(f"s_add_u32 s{self.s_dl}, s{self.s_kw}, {j*4096 + (s.img[2] if s.img else 0)}")
                        if self.tag in NOW:
                            a(f"buffer_load_dwordx4 v{r}, {sr(s.srd,4)}, 0 offen lds")
                        else:
                            a(f"buffer_load_dwordx4 v{r}, {sr(s.srd,4)}, s{self.s_dl} offen lds")
                    else:
                        a("s_nop 0")
                        a(f"buffer_load_dwordx4 v{r}, {sr(s.srd,4)}, s{self.s_kw} offen lds")
            a(f"s_add_u32 s{self.s_kidx}, s{self.s_kidx}, 1")
            a(f"s_cmp_eq_u32 s{self.s_kidx}, {self.nst}")
            a(f"s_cselect_b32 s{self.s_kidx}, 0, s{self.s_kidx}")
            a(f"s_add_u32 s{self.s_slot}, s{self.s_slot}, {self.stage_bytes}")
            a(f"s_cmp_ge_u32 s{self.s_slot}, {self.lds_bytes + self.lds_base}")
            a(f"s_cselect_b32 s{self.s_slot}, s{self.s_woff}, s{self.s_slot}")

        l1, l2, l3 = f"{self.tag}_ld1", f"{self.tag}_ld2", f"{self.tag}_ld3"
        v_st = va()
        def lstamp(idx_s=None, idx=None):
            if INSTR:
                a("s_memtime s[98:99]")
                a("s_waitcnt lgkmcnt(0)")
                a("s_sub_u32 s98, s98, s80")
                if idx_s is not None:
                    a(f"s_mov_b32 m0, s{idx_s}")
                    a("s_nop 0")
                    a(f"v_writelane_b32 v{v_st}, s98, m0")
                else:
                    a(f"v_writelane_b32 v{v_st}, s98, {idx}")
        lstamp(idx=0)
        a(f"s_mov_b32 s{self.s_cnt}, 0")
        a(f"s_branch {l2}")
        a.label(l1)
        a(f"s_waitcnt vmcnt({(self.NS-2)*self.ndma})")
        lstamp(idx_s=self.s_cnt)
        a("s_barrier")
        a.label(l2)
        a.skip_dma = self.tag in NOLOAD
        issue()
        a.skip_dma = False
        a(f"s_add_u32 s{self.s_cnt}, s{self.s_cnt}, 1")
        a(f"s_cmp_lg_u32 s{self.s_cnt}, 2")
        a(f"s_cbranch_scc1 {l3}")
        a(f"s_waitcnt vmcnt({self.ndma})")
        lstamp(idx=1)
        a("s_barrier")
        a.label(l3)
        a(f"s_cmp_lt_u32 s{self.s_cnt}, {self.NS}")
        a(f"s_cbranch_scc1 {l2}")
        a(f"s_cmp_lt_u32 s{self.s_cnt}, {self.nst}")
        a(f"s_cbranch_scc1 {l1}")
        for i in range(self.NS - 1):
            a(f"s_waitcnt vmcnt({(self.NS-2-i)*self.ndma})")
            lstamp(idx=self.nst + i)
            a("s_barrier")
        a("s_barrier")
        if INSTR:
            lab = a.newlabel("ls")
            a(f"s_cmp_lg_u32 s2, {INSTR_WG if self.tag != 'k1kv' else 4}")
            a(f"s_cbranch_scc1 {lab}")
            a(f"s_cmp_lg_u32 s{self.s_wave}, 4")
            a(f"s_cbranch_scc1 {lab}")
            make_srd(a, 92, P_DBG, 0, 256)
            a(f"v_lshlrev_b32 v{t[0]}, 2, v0")
            a(f"buffer_store_dword v{v_st}, v{t[0]}, s[92:95], 0 offen offset:64")
            a("s_waitcnt vmcnt(0)")
            a.label(lab)
        if cont is None:
            a("s_endpgm")
        else:
            cont(va, t)
        self.loader_vgprs = va.n

    def setup(self):
        a, va = self.a, self.va
        t = self.tmp
        lane, i16, g, wv = va(), va(), va(), va()
        self.v_lane, self.v_i16, self.v_g, self.v_wave = lane, i16, g, wv
        a(f"v_and_b32 v{lane}, 63, v0")
        a(f"v_lshrrev_b32 v{wv}, 6, v0")
        a(f"v_and_b32 v{i16}, 15, v0")
        a(f"v_bfe_u32 v{g}, v0, 4, 2")
        wt, wo = va(), va()
        self.v_wt, self.v_wo = wt, wo
        a(f"v_and_b32 v{wt}, {self.WT-1}, v{wv}")
        sh = {1: 0, 2: 1, 4: 2}[self.WT]
        a(f"v_lshrrev_b32 v{wo}, {sh}, v{wv}")
        self.addr_regs = []
        done = {}
        for s in self.segs:
            key = (s.kind, s.nf)
            if key in done:
                s.v_a = done[key]
                continue
            if s.kind == 'lin40':
                a(f"v_lshlrev_b32 v{t[0]}, 3, v{g}")
            else:
                a(f"v_lshrrev_b32 v{t[0]}, 1, v{g}")
                a(f"v_lshlrev_b32 v{t[0]}, 4, v{t[0]}")
                a(f"v_and_b32 v{t[1]}, 1, v{g}")
                a(f"v_lshl_add_u32 v{t[0]}, v{t[1]}, 2, v{t[0]}")
            a(f"v_lshrrev_b32 v{t[1]}, 2, v{i16}")
            a(f"v_add_u32 v{t[0]}, v{t[0]}, v{t[1]}")
            if self.WK > 1:
                a(f"v_mov_b32 v{t[1]}, {self.SPW*32}")
                a(f"v_mad_u32_u24 v{t[0]}, v{wo}, v{t[1]}, v{t[0]}")
            a(f"v_mul_u32_u24 v{t[0]}, {s.lstride}, v{t[0]}")
            a(f"v_and_b32 v{t[1]}, 3, v{i16}")
            a(f"v_lshl_add_u32 v{t[0]}, v{t[1]}, 3, v{t[0]}")
            if s.kind == 'p192':
                regs = []
                for b in range(s.FBW):
                    r = va()
                    regs.append(r)
                    if self.WF > 1:
                        a(f"v_mul_u32_u24 v{t[1]}, {s.FBW}, v{wo}")
                        a(f"v_add_u32 v{t[1]}, {b}, v{t[1]}")
                    else:
                        a(f"v_mov_b32 v{t[1]}, {b}")
                    a(f"v_and_b32 v{t[2]}, 1, v{g}")
                    a(f"v_xor_b32 v{t[1]}, v{t[1]}, v{t[2]}")
                    a(f"v_lshl_add_u32 v{r}, v{t[1]}, 5, v{t[0]}")
                s.v_a = regs
                self.addr_regs += regs
            else:
                r = va()
                if self.WF > 1:
                    a(f"v_mul_u32_u24 v{t[1]}, {s.FBW*32}, v{wo}")
                    a(f"v_add_u32 v{r}, v{t[0]}, v{t[1]}")
                else:
                    a(f"v_mov_b32 v{r}, v{t[0]}")
                s.v_a = [r]
                self.addr_regs.append(r)
            done[key] = s.v_a
        self.v_b = []
        a(f"v_mul_u32_u24 v{t[0]}, {self.TW}, v{wt}")
        a(f"v_add_u32 v{t[0]}, v{t[0]}, v{i16}")
        if self.CPR == 8:
            a(f"v_bfe_u32 v{t[1]}, v{t[0]}, 1, 3")
        else:
            a(f"v_and_b32 v{t[1]}, 15, v{t[0]}")
        a(f"v_mul_u32_u24 v{t[0]}, {self.RB}, v{t[0]}")
        for ls in range(self.SPW):
            r = va()
            self.v_b.append(r)
            self.addr_regs.append(r)
            if self.WK > 1:
                a(f"v_mul_u32_u24 v{t[2]}, {4*self.SPW}, v{wo}")
                a(f"v_add3_u32 v{t[2]}, v{t[2]}, v{g}, {4*ls}")
            else:
                a(f"v_add_u32 v{t[2]}, {4*ls}, v{g}")
            a(f"v_xor_b32 v{t[2]}, v{t[2]}, v{t[1]}")
            a(f"v_lshl_add_u32 v{r}, v{t[2]}, 4, v{t[0]}")
        if self.lds_base:
            for r in self.addr_regs:
                a(f"v_add_u32 v{r}, {self.lds_base}, v{r}")
        self.nA = sum(s.FBW for s in self.segs)
        self.fa = [va(4 * self.nA, 4) for _ in range(2)]
        self.fb = [va(4 * self.TB, 4) for _ in range(2)]
        self.acc = [[va(4, 4) for _ in range(self.nA)] for _ in range(self.TB)]
        accs = [r for row in self.acc for r in row]
        if self.stats or self.colsum:
            self.v_ones = va(4, 4)
            for i in range(4):
                a(f"v_mov_b32 v{self.v_ones+i}, 0x3f803f80")
        if self.stats:
            self.acc_sum = [va(4, 4) for _ in range(self.TB)]
            self.acc_sq = [va(4, 4) for _ in range(self.TB)]
            accs += self.acc_sum + self.acc_sq
        if self.colsum:
            self.acc_cs = [va(4, 4) for _ in range(self.nA)]
            accs += self.acc_cs
        for r in accs:
            for i in range(4):
                a(f"v_mov_b32 v{r+i}, 0")

    def read_units(self, ls, buf):
        units = []
        fi = 0
        for s in self.segs:
            for b in range(s.FBW):
                for e in range(2):
                    if s.kind == 'lin40':
                        off = s.lbase + (ls * 32 + 4 * e) * 40 + b * 32
                        ar = s.v_a[0]
                    elif s.kind == 'p192':
                        off = s.lbase + (ls * 32 + 8 * e) * s.lstride
                        ar = s.v_a[b]
                    else:
                        off = s.lbase + (ls * 32 + 8 * e) * s.lstride + b * 32
                        ar = s.v_a[0]
                    assert off < 65536
                    d = self.fa[buf] + 4 * fi + 2 * e
                    units.append([f"ds_read_b64_tr_b16 {vr(d,2)}, v{ar} offset:{off}"])
                fi += 1
        for tb in range(self.TB):
            off = tb * 16 * self.RB
            d = self.fb[buf] + 4 * tb
            units.append([f"ds_read_b128 {vr(d,4)}, v{self.v_b[ls]} offset:{off}"])
        return units[-self.TB:] + units[:-self.TB]

    def mfmas(self, buf):
        out = []
        for fi in range(self.nA):
            A = vr(self.fa[buf] + 4 * fi, 4)
            for tb in range(self.TB):
                B = vr(self.fb[buf] + 4 * tb, 4)
                c = vr(self.acc[tb][fi], 4)
                out.append(f"v_mfma_f32_16x16x32_bf16 {c}, {A}, {B}, {c}")
            if self.colsum:
                c = vr(self.acc_cs[fi], 4)
                out.append(f"v_mfma_f32_16x16x32_bf16 {c}, {A}, {vr(self.v_ones,4)}, {c}")
        if self.stats:
            for tb in range(self.TB):
                B = vr(self.fb[buf] + 4 * tb, 4)
                c = vr(self.acc_sum[tb], 4)
                out.append(f"v_mfma_f32_16x16x32_bf16 {c}, {vr(self.v_ones,4)}, {B}, {c}")
                c = vr(self.acc_sq[tb], 4)
                out.append(f"v_mfma_f32_16x16x32_bf16 {c}, {B}, {B}, {c}")
        return out

    def mainloop(self):
        a = self.a
        a(f"s_mov_b32 s{self.s_cnt}, {self.nst}")
        a(f"s_mov_b32 s{self.s_slot}, 0")
        a("s_barrier")
        for u in self.read_units(0, 0):
            for l in u:
                a(l)
        lp = f"{self.tag}_loop"
        a.label(lp)
        for ls in range(self.SPW):
            buf = ls & 1
            a("s_waitcnt lgkmcnt(0)")
            if ls == self.SPW - 1:
                a(f"s_mov_b32 s{self.s_dl}, s{self.s_slot}")
                a(f"s_add_u32 s{self.s_slot}, s{self.s_slot}, {self.stage_bytes}")
                a(f"s_cmp_ge_u32 s{self.s_slot}, {self.lds_bytes}")
                a(f"s_cselect_b32 s{self.s_slot}, 0, s{self.s_slot}")
                a(f"s_sub_u32 s{self.s_dl}, s{self.s_slot}, s{self.s_dl}")
                a("s_barrier")
                for r in self.addr_regs:
                    a(f"v_add_u32 v{r}, s{self.s_dl}, v{r}")
                fill = self.read_units(0, buf ^ 1)
            else:
                fill = self.read_units(ls + 1, buf ^ 1)
            if self.tag in NOCOMP:
                continue
            for l in interleave(self.mfmas(buf), fill):
                a(l)
        a(f"s_sub_u32 s{self.s_cnt}, s{self.s_cnt}, 1")
        a(f"s_cmp_lg_u32 s{self.s_cnt}, 0")
        a(f"s_cbranch_scc1 {lp}")
        a("s_waitcnt vmcnt(0) lgkmcnt(0)")


P_X, P_WQ, P_WK, P_WV, P_WO, P_BX, P_WG, P_WU, P_WD, P_OUT, P_DBG, P_WS = [16 + 2 * i for i in range(12)]
SRD0, SRD1, SRD2, SRD3, SRD4, SRD5 = 40, 44, 48, 52, 56, 60
S_WOFF, S_KX, S_KW, S_WAVE = 64, 65, 66, 67
S_TOK0, S_COL, S_T0, S_T1, S_T2 = 68, 69, 70, 71, 72
S_CNT_, S_SLOT_, S_KIDX, S_DL, S_ROT = 76, 77, 78, 79, 73
GS = (S_WOFF, S_KX, S_KW, S_WAVE, S_CNT_, S_SLOT_, S_KIDX, S_DL)


def load_kernargs(a):
    if INSTR:
        for i in range(84, 98):
            a(f"s_mov_b32 s{i}, 0")
        a("s_memtime s[80:81]")
        a("s_memrealtime s[82:83]")
    a("s_load_dwordx16 s[16:31], s[0:1], 0")
    a("s_load_dwordx8 s[32:39], s[0:1], 64")


def stamp(a, idx):
    if INSTR:
        a("s_memtime s[98:99]")
        a("s_waitcnt lgkmcnt(0)")
        a(f"s_sub_u32 s{84+idx}, s98, s80")


def stamp_end(a, n, wg=None):
    if INSTR:
        lab = a.newlabel("se")
        a("s_mov_b64 exec, -1")
        a("s_waitcnt vmcnt(0)")
        a("s_memtime s[98:99]")
        a("s_memrealtime s[100:101]")
        a("s_waitcnt lgkmcnt(0)")
        a(f"s_sub_u32 s{84+n}, s98, s80")
        a(f"s_sub_u32 s{85+n}, s100, s82")
        lab2 = a.newlabel("se")
        a(f"s_cmp_lg_u32 s{S_WAVE}, 0")
        a(f"s_cbranch_scc1 {lab2}")
        make_srd(a, 40, P_WS, WS_TL + KIDX[0] * 4096, 4096)
        a("s_getreg_b32 s98, hwreg(HW_REG_XCC_ID)")
        a("s_and_b32 s98, s98, 7")
        a("s_andn2_b32 s100, s100, 7")
        a("s_or_b32 s100, s100, s98")
        a("v_mov_b32 v2, s82")
        a("v_mov_b32 v3, s100")
        a("s_lshl_b32 s98, s2, 3")
        a("v_mov_b32 v1, s98")
        a("buffer_store_dwordx2 v[2:3], v1, s[40:43], 0 offen")
        a.label(lab2)
        a(f"s_cmp_lg_u32 s2, {INSTR_WG if wg is None else wg}")
        a(f"s_cbranch_scc1 {lab}")
        a(f"s_cmp_lg_u32 s{S_WAVE}, 0")
        a(f"s_cbranch_scc1 {lab}")
        make_srd(a, 40, P_DBG, 0, 256)
        a("v_mov_b32 v1, 0")
        for i in range(14):
            a(f"v_mov_b32 v2, s{84+i}")
            a(f"buffer_store_dword v2, v1, s[40:43], 0 offen offset:{4*i}")
        a.label(lab)
INSTR_WG = int(os.environ.get("INSTR_WG", "100"))


def round_bf16(a, dst, src):
    a(f"v_cvt_pk_bf16_f32 v{dst}, v{src}, v{src}")
    a(f"v_lshlrev_b32 v{dst}, 16, v{dst}")


def ln_stats(a, v_sum, v_sq, v_mean, v_rstd, t):
    a(f"v_mul_f32 v{v_mean}, {f32(1.0/D)}, v{v_sum}")
    a(f"v_mul_f32 v{t[0]}, {f32(1.0/D)}, v{v_sq}")
    a(f"v_fma_f32 v{t[0]}, -v{v_mean}, v{v_mean}, v{t[0]}")
    a(f"v_max_f32 v{t[0]}, 0, v{t[0]}")
    round_bf16(a, v_mean, v_mean)
    round_bf16(a, t[0], t[0])
    a(f"v_add_f32 v{t[0]}, {f32(1e-5)}, v{t[0]}")
    round_bf16(a, t[0], t[0])
    a(f"v_sqrt_f32 v{t[0]}, v{t[0]}")
    a("s_nop 0")
    round_bf16(a, t[0], t[0])
    a(f"v_rcp_f32 v{v_rstd}, v{t[0]}")
    a("s_nop 0")


def gram_diag(a, g, acc_sq, dst):
    t = g.tmp
    a(f"v_and_b32 v{t[0]}, 3, v{g.v_i16}")
    a(f"v_mov_b32 v{t[1]}, v{acc_sq}")
    for r in range(1, 4):
        a(f"v_cmp_eq_u32 vcc, {r}, v{t[0]}")
        a("s_nop 1")
        a(f"v_cndmask_b32 v{t[1]}, v{t[1]}, v{acc_sq+r}, vcc")
    a(f"v_lshrrev_b32 v{t[0]}, 2, v{g.v_i16}")
    a(f"v_lshl_add_u32 v{t[0]}, v{t[0]}, 4, v{g.v_i16}")
    a(f"v_lshlrev_b32 v{t[0]}, 2, v{t[0]}")
    a(f"ds_bpermute_b32 v{dst}, v{t[0]}, v{t[1]}")
    a("s_waitcnt lgkmcnt(0)")


def xlane_add(a, v, v_lane, t0, t1, masks, op="v_add_f32"):
    for m in masks:
        a(f"v_xor_b32 v{t0}, {m}, v{v_lane}")
        a(f"v_lshlrev_b32 v{t0}, 2, v{t0}")
        a(f"ds_bpermute_b32 v{t1}, v{t0}, v{v}")
        a("s_waitcnt lgkmcnt(0)")
        a(f"{op} v{v}, v{v}, v{t1}")


QSCALE = (DH ** -0.5) * 1.4426950408889634


def prefetch_lin(a, v_tid, v_t, v_dummy, srd, s_base, s_j, nlines, s_tmp, nthreads=256):
    a(f"s_mul_i32 s{s_tmp}, s{s_j}, {nlines*128}")
    if s_base is not None:
        a(f"s_add_u32 s{s_tmp}, s{s_tmp}, s{s_base}")
    a(f"v_lshlrev_b32 v{v_t}, 7, v{v_tid}")
    n = (nlines + nthreads - 1) // nthreads
    for i in range(n):
        if i:
            a(f"s_add_u32 s{s_tmp}, s{s_tmp}, {nthreads*128}")
        a(f"buffer_load_dword v{v_dummy}, v{v_t}, {sr(srd,4)}, s{s_tmp} offen")

S_J, S_XB, S_IMG = 90, 91, 96

K1_NKV, K1_NPF, K1_NCS = 32, 224, 0
K1_NWG = K1_NKV + K1_NPF + K1_NCS


def gen_k1(a):
    name = "k1_kv_kernel"
    kernel_begin(a, name)
    a(f"s_cmp_ge_u32 s2, {K1_NWG}")
    a("s_cbranch_scc1 k1_end")
    load_kernargs(a)
    a("s_waitcnt lgkmcnt(0)")
    a(f"s_cmp_lt_u32 s2, {K1_NKV}")
    a("s_cbranch_scc1 k1_kv")
    maxv = 8
    lds = 0
    va = VAlloc(1)
    lt = [va() for _ in range(6)]
    v_l = va()
    S_W, S_U, S_SRC, S_DST, S_RW = S_J, S_T0, S_T1, S_KW, S_ROT
    a(f"v_lshrrev_b32 v{lt[0]}, 6, v0")
    a(f"v_and_b32 v{v_l}, 63, v0")
    a(f"v_readfirstlane_b32 s{S_WAVE}, v{lt[0]}")
    a(f"s_sub_u32 s{S_W}, s2, {K1_NKV}")
    a(f"s_mov_b32 s{SRD0+3}, 0x00020000")
    make_srd(a, SRD3, P_WS, WS_IMG, IMG_SZ)
    a(f"s_cmp_ge_u32 s{S_WAVE}, 4")
    a("s_cbranch_scc1 k1_rp0")
    a(f"s_lshr_b32 s{S_U}, s{S_W}, 3")
    a(f"s_mul_i32 s{S_U}, s{S_U}, {232*128}")
    make_srd(a, SRD1, P_WQ, 0, D * D * 2)
    a(f"v_lshlrev_b32 v{lt[1]}, 7, v0")
    a(f"buffer_load_dword v{lt[2]}, v{lt[1]}, {sr(SRD1,4)}, s{S_U} offen")
    a(f"s_cmp_lt_u32 s{S_W}, 192")
    a("s_cbranch_scc1 k1_cs")
    a(f"s_lshl_b32 s{S_RW}, s{S_W}, 2")
    a(f"s_add_u32 s{S_RW}, s{S_RW}, s{S_WAVE}")
    a(f"s_add_u32 s{S_RW}, s{S_RW}, {896 - 768}")
    a("s_branch k1_rp1")
    a.label("k1_rp0")
    a(f"s_lshl_b32 s{S_RW}, s{S_W}, 2")
    a(f"s_add_u32 s{S_RW}, s{S_RW}, s{S_WAVE}")
    a(f"s_sub_u32 s{S_RW}, s{S_RW}, 4")
    a.label("k1_rp1")
    pa = [va() for _ in range(5)]
    pb = [va() for _ in range(3)]

    def gather(regs, cprw, magic, stride):
        for i, r in enumerate(regs):
            a(f"v_add_u32 v{lt[0]}, {i*64}, v{v_l}")
            a(f"v_mul_u32_u24 v{lt[1]}, {magic}, v{lt[0]}")
            a(f"v_lshrrev_b32 v{lt[1]}, 19, v{lt[1]}")
            a(f"v_mul_u32_u24 v{lt[2]}, {cprw}, v{lt[1]}")
            a(f"v_sub_u32 v{lt[2]}, v{lt[0]}, v{lt[2]}")
            a(f"v_and_b32 v{lt[3]}, 0xfffffff3, v{lt[1]}")
            a(f"v_bfe_u32 v{lt[4]}, v{lt[1]}, 2, 1")
            if cprw == 12:
                a(f"v_lshlrev_b32 v{lt[5]}, 1, v{lt[4]}")
                a(f"v_xor_b32 v{lt[2]}, v{lt[2]}, v{lt[5]}")
            a(f"v_lshl_or_b32 v{lt[3]}, v{lt[4]}, 3, v{lt[3]}")
            a(f"v_bfe_u32 v{lt[4]}, v{lt[1]}, 3, 1")
            a(f"v_lshl_or_b32 v{lt[3]}, v{lt[4]}, 2, v{lt[3]}")
            a(f"v_mul_u32_u24 v{lt[3]}, {stride}, v{lt[3]}")
            a(f"v_lshl_add_u32 v{r}, v{lt[2]}, 4, v{lt[3]}")

    bufB = [va(12, 4) for _ in range(2)]
    bufA = va(20, 4)
    v_l16 = va()

    def loadsB(buf):
        a(f"s_mul_i32 s{S_SRC}, s{S_U}, 52429")
        a(f"s_lshr_b32 s{S_SRC}, s{S_SRC}, 22")
        a(f"s_mul_i32 s{S_DST}, s{S_SRC}, 80")
        a(f"s_sub_u32 s{S_T2}, s{S_U}, s{S_DST}")
        a(f"s_mul_i32 s{S_SRC}, s{S_SRC}, 192")
        a(f"s_lshr_b32 s{S_DST}, s{S_T2}, 3")
        a(f"s_lshl_b32 s{S_DST}, s{S_DST}, 2")
        a(f"s_and_b32 s{S_KX}, s{S_T2}, 3")
        a(f"s_add_u32 s{S_DST}, s{S_DST}, s{S_KX}")
        a(f"s_mul_i32 s{S_DST}, s{S_DST}, {16*F*2}")
        a(f"s_add_u32 s{S_SRC}, s{S_SRC}, s{S_DST}")
        a(f"s_bitcmp1_b32 s{S_T2}, 2")
        a(f"s_cselect_b32 s{SRD0}, s{P_WU}, s{P_WG}")
        a(f"s_cselect_b32 s{SRD0+1}, s{P_WU+1}, s{P_WG+1}")
        a(f"s_mov_b32 s{SRD0+2}, {F*D*2}")
        for i in range(3):
            a(f"buffer_load_dwordx4 {vr(buf+4*i,4)}, v{pb[i]}, {sr(SRD0,4)}, s{S_SRC} offen")

    def storesB(buf):
        a(f"s_mul_i32 s{S_DST}, s{S_U}, 3072")
        a(f"s_add_u32 s{S_DST}, s{S_DST}, {IMG_GU}")
        for i in range(3):
            a(f"buffer_store_dwordx4 {vr(buf+4*i,4)}, v{v_l16}, {sr(SRD3,4)}, s{S_DST} offen offset:{i*1024}")

    gather(pb, 12, 43691, F * 2)
    a(f"v_lshlrev_b32 v{v_l16}, 4, v{v_l}")
    a(f"s_mov_b32 s{S_U}, s{S_RW}")
    loadsB(bufB[0])
    a(f"s_cmp_lt_u32 s{S_RW}, 544")
    a("s_cbranch_scc1 k1_rpa")
    a(f"s_add_u32 s{S_U}, s{S_RW}, {1024 - 544}")
    a(f"s_cmp_ge_u32 s{S_U}, 1280")
    a("s_cbranch_scc1 k1_rpe")
    loadsB(bufB[1])
    a("s_waitcnt vmcnt(0)")
    storesB(bufB[1])
    a("s_branch k1_rpe")
    a.label("k1_rpa")
    gather(pa, 10, 52429, D * 2)
    l1, l2 = a.newlabel("ra"), a.newlabel("ra")
    a(f"s_cmp_ge_u32 s{S_RW}, 160")
    a(f"s_cbranch_scc1 {l1}")
    a(f"s_mul_i32 s{S_SRC}, s{S_RW}, 3277")
    a(f"s_lshr_b32 s{S_SRC}, s{S_SRC}, 16")
    a(f"s_mul_i32 s{S_DST}, s{S_SRC}, 20")
    a(f"s_sub_u32 s{S_DST}, s{S_RW}, s{S_DST}")
    a(f"s_mov_b32 s{SRD0}, s{P_WO}")
    a(f"s_mov_b32 s{SRD0+1}, s{P_WO+1}")
    a(f"s_mov_b32 s{SRD0+2}, {D*D*2}")
    a(f"s_branch {l2}")
    a.label(l1)
    a(f"s_sub_u32 s{S_U}, s{S_RW}, 160")
    a(f"s_mul_i32 s{S_SRC}, s{S_U}, 1366")
    a(f"s_lshr_b32 s{S_SRC}, s{S_SRC}, 16")
    a(f"s_mul_i32 s{S_DST}, s{S_SRC}, 48")
    a(f"s_sub_u32 s{S_DST}, s{S_U}, s{S_DST}")
    a(f"s_mov_b32 s{SRD0}, s{P_WD}")
    a(f"s_mov_b32 s{SRD0+1}, s{P_WD+1}")
    a(f"s_mov_b32 s{SRD0+2}, {F*D*2}")
    a.label(l2)
    a(f"s_mul_i32 s{S_SRC}, s{S_SRC}, 160")
    a(f"s_mul_i32 s{S_DST}, s{S_DST}, {32*D*2}")
    a(f"s_add_u32 s{S_SRC}, s{S_SRC}, s{S_DST}")
    for i in range(5):
        a(f"buffer_load_dwordx4 {vr(bufA+4*i,4)}, v{pa[i]}, {sr(SRD0,4)}, s{S_SRC} offen")
    a(f"s_mul_i32 s{S_DST}, s{S_RW}, 5120")
    a("s_waitcnt vmcnt(0)")
    for i in range(5):
        if i == 4:
            a(f"s_add_u32 s{S_DST}, s{S_DST}, 4096")
        a(f"buffer_store_dwordx4 {vr(bufA+4*i,4)}, v{v_l16}, {sr(SRD3,4)}, s{S_DST} offen offset:{(i%4)*1024}")
    a.label("k1_rpe")
    a("s_waitcnt vmcnt(0)")
    a(f"s_mov_b32 s{S_U}, s{S_RW}")
    storesB(bufB[0])
    a.label("k1_end")
    a("s_endpgm")

    a.label("k1_cs")
    csb = va(20, 4)
    cacc = va(8, 4)
    v_ca, v_cw = va(), va()
    a(f"s_mul_i32 s{S_U}, s{S_W}, 1366")
    a(f"s_lshr_b32 s{S_U}, s{S_U}, 16")
    a(f"s_mul_i32 s{S_SRC}, s{S_U}, 48")
    a(f"s_sub_u32 s{S_SRC}, s{S_W}, s{S_SRC}")
    a(f"s_cmp_lt_u32 s{S_SRC}, 24")
    a(f"s_cselect_b32 s{SRD0}, s{P_WG}, s{P_WU}")
    a(f"s_cselect_b32 s{SRD0+1}, s{P_WG+1}, s{P_WU+1}")
    a(f"s_mov_b32 s{SRD0+2}, {F*D*2}")
    a(f"s_cselect_b32 s{S_DST}, 0, 24")
    a(f"s_sub_u32 s{S_SRC}, s{S_SRC}, s{S_DST}")
    a(f"s_lshl_b32 s{S_SRC}, s{S_SRC}, 7")
    a(f"s_lshl_b32 s{S_U}, s{S_U}, 2")
    a(f"s_add_u32 s{S_U}, s{S_U}, s{S_WAVE}")
    a(f"s_mul_i32 s{S_U}, s{S_U}, {40*F*2}")
    a(f"s_add_u32 s{S_SRC}, s{S_SRC}, s{S_U}")
    a(f"v_lshrrev_b32 v{lt[0]}, 3, v{v_l}")
    a(f"v_mul_u32_u24 v{lt[0]}, {F*2}, v{lt[0]}")
    a(f"v_and_b32 v{lt[1]}, 7, v{v_l}")
    a(f"v_lshl_add_u32 v{v_ca}, v{lt[1]}, 4, v{lt[0]}")
    for i in range(5):
        a(f"buffer_load_dwordx4 {vr(csb+4*i,4)}, v{v_ca}, {sr(SRD0,4)}, s{S_SRC} offen")
        a(f"s_add_u32 s{S_SRC}, s{S_SRC}, {8*F*2}")
    for i in range(5):
        a(f"s_waitcnt vmcnt({4-i})")
        for j in range(4):
            if i == 0:
                a(f"v_lshlrev_b32 v{cacc+2*j}, 16, v{csb+j}")
                a(f"v_and_b32 v{cacc+2*j+1}, 0xffff0000, v{csb+j}")
            else:
                a(f"v_lshlrev_b32 v{lt[0]}, 16, v{csb+4*i+j}")
                a(f"v_and_b32 v{lt[1]}, 0xffff0000, v{csb+4*i+j}")
                a(f"v_add_f32 v{cacc+2*j}, v{cacc+2*j}, v{lt[0]}")
                a(f"v_add_f32 v{cacc+2*j+1}, v{cacc+2*j+1}, v{lt[1]}")
    a(f"v_lshlrev_b32 v{v_cw}, 5, v0")
    a(f"ds_write_b128 v{v_cw}, {vr(cacc,4)}")
    a(f"ds_write_b128 v{v_cw}, {vr(cacc+4,4)} offset:16")
    a("s_waitcnt lgkmcnt(0)")
    a("s_barrier")
    a(f"s_cmp_lg_u32 s{S_WAVE}, 0")
    a("s_cbranch_scc1 k1_end")
    a(f"v_lshlrev_b32 v{v_cw}, 2, v{v_l}")
    for h in range(2):
        for i in range(16):
            a(f"ds_read_b32 v{csb+i}, v{v_cw} offset:{(h*16+i)*256}")
        a("s_waitcnt lgkmcnt(0)")
        for i in range(16):
            if h == 0 and i == 0:
                a(f"v_mov_b32 v{cacc}, v{csb}")
            else:
                a(f"v_add_f32 v{cacc}, v{cacc}, v{csb+i}")
    make_srd(a, SRD0, P_WS, WS_CS, 4 * 3072 * 4)
    a(f"s_lshl_b32 s{S_U}, s{S_W}, 8")
    a(f"buffer_store_dword v{cacc}, v{v_cw}, {sr(SRD0,4)}, s{S_U} offen")
    a("s_endpgm")
    maxv = max(maxv, va.n)

    a.label("k1_kv")
    va = VAlloc(1)
    a(f"s_and_b32 s{S_T0}, s2, 7")
    a(f"s_lshl_b32 s{S_T0}, s{S_T0}, 2")
    a(f"s_lshr_b32 s{S_T1}, s2, 3")
    a(f"s_add_u32 s{S_T0}, s{S_T0}, s{S_T1}")
    a(f"s_lshl_b32 s{S_TOK0}, s{S_T0}, 6")
    make_srd(a, SRD0, P_X, 0, S * D * 2)
    make_srd(a, SRD1, P_WK, 0, D * DH * 2)
    make_srd(a, SRD2, P_WV, 0, D * DH * 2)
    make_srd(a, SRD3, P_WS, WS_KF, 0x20000)
    make_srd(a, SRD4, P_WS, WS_VF, 0x20000)
    make_srd(a, SRD5, P_WS, WS_KN, 512)
    sk = Seg(SRD1, 40, 32, 'lin40')
    sv = Seg(SRD2, 40, 32, 'lin40')
    g = Gemm(a, va, 64, 4, 1, 1, [sk, sv], 128, K1_NS, D, SRD0, D * 2, S_TOK0, stats=True, colsum=True, sregs=GS, tag="k1kv")
    g.split()
    g.setup()
    stamp(a, 0)
    g.mainloop()
    stamp(a, 1)
    lds = max(lds, g.lds_bytes)
    a("s_nop 7")
    a("s_nop 1")
    v_mean, v_rstd, v_sq, v_key, v_ak, v_av, v_n = va(), va(), va(), va(), va(), va(), va()
    gram_diag(a, g, g.acc_sq[0], v_sq)
    ln_stats(a, g.acc_sum[0], v_sq, v_mean, v_rstd, g.tmp)
    t = g.tmp
    for fi in range(4):
        c, cs = g.acc[0][fi], g.acc_cs[fi]
        for r in range(4):
            a(f"v_fma_f32 v{c+r}, -v{v_mean}, v{cs+r}, v{c+r}")
            a(f"v_mul_f32 v{c+r}, v{c+r}, v{v_rstd}")
        a(f"v_cvt_pk_bf16_f32 v{c}, v{c}, v{c+1}")
        a(f"v_cvt_pk_bf16_f32 v{c+1}, v{c+2}, v{c+3}")
    k0, k1, v0_, v1_ = g.acc[0]
    a(f"v_cmp_eq_u32 vcc, 0, v{g.v_g}")
    a("s_nop 1")
    for c in (k1, v1_):
        a(f"v_cndmask_b32 v{c}, 0, v{c}, vcc")
        a(f"v_cndmask_b32 v{c+1}, 0, v{c+1}, vcc")
    a(f"v_mov_b32 v{v_n}, 0")
    for c in (k0, k0 + 1, k1, k1 + 1):
        a(f"v_lshlrev_b32 v{t[0]}, 16, v{c}")
        a(f"v_and_b32 v{t[1]}, 0xffff0000, v{c}")
        a(f"v_fma_f32 v{v_n}, v{t[0]}, v{t[0]}, v{v_n}")
        a(f"v_fma_f32 v{v_n}, v{t[1]}, v{t[1]}, v{v_n}")
    a(f"v_mov_b32 v{t[2]}, 0x3f80")
    a(f"v_cmp_eq_u32 vcc, 1, v{g.v_g}")
    a("s_nop 1")
    a(f"v_cndmask_b32 v{k1}, v{k1}, v{t[2]}, vcc")
    a(f"v_cmp_le_u32 vcc, 2, v{g.v_g}")
    a("s_nop 1")
    a(f"v_cndmask_b32 v{v1_}, v{v1_}, v{t[2]}, vcc")
    a(f"v_lshl_add_u32 v{v_key}, v{g.v_wt}, 4, v{g.v_i16}")
    a(f"v_add_u32 v{v_key}, s{S_TOK0}, v{v_key}")
    make_srd(a, SRD0, P_WS, WS_S1, S * 8)
    a(f"v_lshlrev_b32 v{t[0]}, 3, v{v_key}")
    a(f"v_mov_b32 v{t[3]}, v{v_mean}")
    a(f"v_mul_f32 v{t[4]}, {f32(QSCALE)}, v{v_rstd}")
    assert t[3] % 2 == 0
    a(f"buffer_store_dwordx2 {vr(t[3],2)}, v{t[0]}, {sr(SRD0,4)}, 0 offen")
    a(f"v_lshrrev_b32 v{t[0]}, 5, v{v_key}")
    a(f"v_lshlrev_b32 v{t[0]}, 11, v{t[0]}")
    a(f"v_and_b32 v{t[1]}, 31, v{v_key}")
    a(f"v_lshl_add_u32 v{v_ak}, v{t[1]}, 4, v{t[0]}")
    a(f"v_lshrrev_b32 v{t[2]}, 1, v{g.v_g}")
    a(f"v_lshl_add_u32 v{v_ak}, v{t[2]}, 9, v{v_ak}")
    a(f"v_and_b32 v{t[2]}, 1, v{g.v_g}")
    a(f"v_lshl_add_u32 v{v_ak}, v{t[2]}, 3, v{v_ak}")
    a(f"buffer_store_dwordx2 {vr(k0,2)}, v{v_ak}, {sr(SRD3,4)}, 0 offen")
    a(f"buffer_store_dwordx2 {vr(k1,2)}, v{v_ak}, {sr(SRD3,4)}, 0 offen offset:1024")
    a(f"v_bfe_u32 v{t[2]}, v{t[1]}, 4, 1")
    a(f"v_lshl_add_u32 v{v_av}, v{t[2]}, 10, v{t[0]}")
    a(f"v_bfe_u32 v{t[2]}, v{t[1]}, 2, 1")
    a(f"v_lshl_add_u32 v{v_av}, v{t[2]}, 9, v{v_av}")
    a(f"v_bfe_u32 v{t[2]}, v{t[1]}, 3, 1")
    a(f"v_lshl_add_u32 v{v_av}, v{t[2]}, 3, v{v_av}")
    a(f"v_and_b32 v{t[2]}, 3, v{t[1]}")
    a(f"v_lshl_add_u32 v{v_av}, v{t[2]}, 1, v{v_av}")
    a(f"v_lshl_add_u32 v{v_av}, v{g.v_g}, 6, v{v_av}")
    for fb, c in enumerate((v0_, v1_)):
        for p in range(2):
            o = fb * 256 + p * 32
            a(f"buffer_store_short v{c+p}, v{v_av}, {sr(SRD4,4)}, 0 offen offset:{o}")
            a(f"buffer_store_short_d16_hi v{c+p}, v{v_av}, {sr(SRD4,4)}, 0 offen offset:{o+16}")
    xlane_add(a, v_n, g.v_lane, t[0], t[1], (16, 32))
    xlane_add(a, v_n, g.v_lane, t[0], t[1], (1, 2, 4, 8), op="v_max_f32")
    a(f"s_lshl_b32 s{S_T0}, s2, 2")
    a(f"s_add_u32 s{S_T0}, s{S_T0}, s{S_WAVE}")
    a(f"s_lshl_b32 s{S_T0}, s{S_T0}, 2")
    a(f"v_mov_b32 v{t[0]}, 0")
    a(f"v_cmp_eq_u32 vcc, 0, v{g.v_lane}")
    a(f"s_and_saveexec_b64 s[74:75], vcc")
    a(f"buffer_store_dword v{v_n}, v{t[0]}, {sr(SRD5,4)}, s{S_T0} offen")
    stamp_end(a, 2, 4)
    a("s_endpgm")
    maxv = max(maxv, va.n)
    g.loader(None)

    kernel_end(a, name, maxv)
    return (name, K1_NWG, 512, lds)

K1_NS = 4


QST = 150 * 1024


def gen_k2(a):
    name = "k2_attn_kernel"
    kernel_begin(a, name)
    a("s_cmp_ge_u32 s2, 256")
    a("s_cbranch_scc1 k2_end")
    load_kernargs(a)
    a(f"s_and_b32 s{S_XB}, s2, 7")
    a(f"s_lshr_b32 s{S_J}, s2, 3")
    a(f"s_mul_i32 s{S_ROT}, s{S_J}, 52")
    a(f"s_lshr_b32 s{S_ROT}, s{S_ROT}, 8")
    a(f"s_mul_i32 s{S_ROT}, s{S_ROT}, 5")
    a(f"s_sub_u32 s{S_ROT}, s{S_J}, s{S_ROT}")
    a(f"s_lshr_b32 s{S_T2}, s{S_J}, 3")
    a(f"s_lshl_b32 s{S_T1}, s{S_XB}, 2")
    a(f"s_add_u32 s{S_T1}, s{S_T1}, s{S_T2}")
    a(f"s_lshl_b32 s{S_TOK0}, s{S_T1}, 6")
    a(f"s_and_b32 s{S_T0}, s{S_J}, 7")
    a(f"s_mul_i32 s{S_COL}, s{S_T0}, 160")
    a("s_waitcnt lgkmcnt(0)")
    make_srd(a, SRD0, P_X, 0, S * D * 2)
    make_srd(a, SRD5, P_WQ, 0, D * D * 2)
    make_srd(a, SRD1, P_WS, WS_KF, 0x20000)
    make_srd(a, SRD2, P_WS, WS_VF, 0x20000)
    make_srd(a, SRD3, P_WS, WS_KN, 512)
    make_srd(a, SRD4, P_WS, WS_O, S * D * 2)
    vp = VAlloc(1)
    v_kn = vp(2, 2)
    v_l16 = vp()
    gva = VAlloc(vp.n)
    seg = Seg(SRD5, D * 2, 80, 'p160', S_COL)
    g = Gemm(a, gva, 64, 4, 1, 1, [seg], 128, 3, D, SRD0, D * 2, S_TOK0, colsum=True,
             sregs=GS, tag="k2q", lds_base=32768)
    assert g.lds_base + g.lds_bytes <= QST
    g.split()

    def dma_chunk(c, s_woff, v_l):
        for srd, lb in ((SRD1, 0), (SRD2, 16384)):
            for j in range(4):
                a(f"s_add_u32 m0, s{s_woff}, {(c % 3) * 32768 + lb + j*4096}")
                a(f"s_add_u32 s{S_KX}, s{s_woff}, {c * 16384 + j*4096}")
                a(f"buffer_load_dwordx4 v{v_l}, {sr(srd,4)}, s{S_KX} offen lds")

    a(f"v_and_b32 v{v_l16}, 63, v0")
    a(f"v_lshlrev_b32 v{g.tmp[1]}, 3, v{v_l16}")
    a(f"v_lshlrev_b32 v{v_l16}, 4, v{v_l16}")
    a(f"s_lshl_b32 s{S_WOFF}, s{S_WAVE}, 10")
    dma_chunk(0, S_WOFF, v_l16)
    a(f"buffer_load_dwordx2 {vr(v_kn,2)}, v{g.tmp[1]}, {sr(SRD3,4)}, 0 offen")
    g.setup()
    t = g.tmp
    v_mean = gva(2, 2)
    v_rstd = v_mean + 1
    v_ad = gva()
    make_srd(a, SRD0, P_WS, WS_S1, S * 8)
    a(f"v_lshl_add_u32 v{t[0]}, v{g.v_wt}, 4, v{g.v_i16}")
    a(f"v_add_u32 v{t[1]}, s{S_TOK0}, v{t[0]}")
    a(f"v_lshlrev_b32 v{t[1]}, 3, v{t[1]}")
    a(f"buffer_load_dwordx2 {vr(v_mean,2)}, v{t[1]}, {sr(SRD0,4)}, 0 offen")
    a(f"v_mul_u32_u24 v{t[0]}, 160, v{t[0]}")
    a(f"v_lshl_add_u32 v{v_ad}, v{g.v_g}, 3, v{t[0]}")
    a(f"v_add_u32 v{v_ad}, {QST}, v{v_ad}")
    stamp(a, 0)
    g.mainloop()
    stamp(a, 1)
    a("s_nop 7")
    a("s_nop 1")
    for fb in range(5):
        c, cs = g.acc[0][fb], g.acc_cs[fb]
        for r in range(4):
            a(f"v_fma_f32 v{c+r}, -v{v_mean}, v{cs+r}, v{c+r}")
            a(f"v_mul_f32 v{c+r}, v{c+r}, v{v_rstd}")
        a(f"v_cvt_pk_bf16_f32 v{c}, v{c}, v{c+1}")
        a(f"v_cvt_pk_bf16_f32 v{c+1}, v{c+2}, v{c+3}")
        a(f"ds_write_b64 v{v_ad}, {vr(c,2)} offset:{fb*32}")
    a("s_waitcnt vmcnt(0) lgkmcnt(0)")
    a("s_barrier")

    va = VAlloc(vp.n)
    t = [va() for _ in range(6)]
    v_lane, v_n, v_h, v_cur, v_nxt, v_qa, v_oa = [va() for _ in range(7)]
    Q = [va(8, 4) for _ in range(2)]
    Sb = [[va(16, 4) for _ in range(2)] for _ in range(2)]
    P = [va(8, 4) for _ in range(2)]
    O = [va(16, 4) for _ in range(2)]
    KF = [va(8, 4) for _ in range(2)]
    VF = [va(8, 4) for _ in range(2)]
    v_m = [va(), va()]
    v_ob = va()
    v_cst = va()
    S_SLOT, S_CNT, S_GOFF, S_HEAD = 76, 77, 78, 79
    a(f"v_and_b32 v{v_lane}, 63, v0")
    a(f"v_and_b32 v{v_n}, 31, v0")
    a(f"v_bfe_u32 v{v_h}, v0, 5, 1")
    a(f"s_mul_i32 s{S_HEAD}, s{S_WAVE}, 40")
    a(f"v_mul_u32_u24 v{t[0]}, 160, v{v_n}")
    a(f"v_add_u32 v{t[0]}, s{S_HEAD}, v{t[0]}")
    a(f"v_add_u32 v{t[0]}, {QST}, v{t[0]}")
    a(f"v_lshl_add_u32 v{v_qa}, v{v_h}, 4, v{t[0]}")
    for b in range(2):
        a(f"ds_read_b64 {vr(Q[b],2)}, v{v_qa} offset:{b*5120}")
        a(f"ds_read_b64 {vr(Q[b]+2,2)}, v{v_qa} offset:{b*5120+8}")
        a(f"ds_read_b64 {vr(Q[b]+4,2)}, v{t[0]} offset:{b*5120+32}")
    a(f"s_add_u32 s{S_HEAD}, s{S_HEAD}, s{S_COL}")
    a(f"v_add_u32 v{t[1]}, s{S_TOK0}, v{v_n}")
    a(f"v_mul_u32_u24 v{t[1]}, {D*2}, v{t[1]}")
    a(f"v_add_u32 v{v_ob}, s{S_HEAD}, v{t[1]}")
    a(f"v_lshl_add_u32 v{v_oa}, v{v_h}, 3, v{v_ob}")
    for b in range(2):
        for i in range(16):
            a(f"v_mov_b32 v{O[b]+i}, 0")
    for i in range(8):
        a(f"v_mov_b32 v{VF[1]+i}, 0")
        a(f"v_mov_b32 v{P[1]+i}, 0")
    for i in range(12, 16):
        a(f"v_mov_b32 v{Sb[1][1]+i}, 0")
    a(f"v_mov_b32 v{v_cur}, v{v_l16}")
    a(f"v_add_u32 v{v_nxt}, 32768, v{v_l16}")
    a(f"v_max_f32 v{v_kn}, v{v_kn}, v{v_kn+1}")
    xlane_add(a, v_kn, v_lane, t[0], t[1], (1, 2, 4, 8, 16, 32), op="v_max_f32")
    a(f"v_cmp_eq_u32 vcc, 0, v{v_h}")
    a("s_nop 1")
    for b in range(2):
        a(f"v_cndmask_b32 v{Q[b]+4}, 0, v{Q[b]+4}, vcc")
        a(f"v_cndmask_b32 v{Q[b]+5}, 0, v{Q[b]+5}, vcc")
        a(f"v_mov_b32 v{Q[b]+7}, 0")
        a(f"v_mov_b32 v{t[2]}, 0")
        for i in range(6):
            a(f"v_lshlrev_b32 v{t[0]}, 16, v{Q[b]+i}")
            a(f"v_and_b32 v{t[1]}, 0xffff0000, v{Q[b]+i}")
            a(f"v_fma_f32 v{t[2]}, v{t[0]}, v{t[0]}, v{t[2]}")
            a(f"v_fma_f32 v{t[2]}, v{t[1]}, v{t[1]}, v{t[2]}")
        xlane_add(a, t[2], v_lane, t[0], t[1], (32,))
        a(f"v_mul_f32 v{t[2]}, v{t[2]}, v{v_kn}")
        a(f"v_sqrt_f32 v{t[2]}, v{t[2]}")
        a("s_nop 0")
        a(f"v_cvt_pk_bf16_f32 v{t[2]}, -v{t[2]}, 0")
        a(f"v_cndmask_b32 v{Q[b]+6}, 0, v{t[2]}, vcc")
    a(f"ds_read_b128 {vr(KF[0],4)}, v{v_cur} offset:0")
    a(f"ds_read_b128 {vr(KF[0]+4,4)}, v{v_cur} offset:1024")
    a(f"ds_read_b128 {vr(KF[1],4)}, v{v_cur} offset:2048")
    a(f"ds_read_b128 {vr(KF[1]+4,4)}, v{v_cur} offset:3072")
    a(f"ds_read_b128 {vr(VF[0],4)}, v{v_cur} offset:16384")
    a(f"ds_read_b128 {vr(VF[0]+4,4)}, v{v_cur} offset:17408")
    a("s_waitcnt lgkmcnt(0)")

    def qk(b, par, s, kf):
        d = vr(Sb[b][par], 16)
        c = "0" if s == 0 else d
        return f"v_mfma_f32_32x32x16_bf16 {d}, {vr(kf+4*s,4)}, {vr(Q[b]+4*s,4)}, {c}"

    def pv(b, s, vf):
        d = vr(O[b], 16)
        return f"v_mfma_f32_32x32x16_bf16 {d}, {vr(vf+4*s,4)}, {vr(P[b]+4*s,4)}, {d}"

    for b in range(2):
        a(qk(b, 0, 0, KF[0]))
        a(qk(b, 0, 1, KF[0]))
    a("s_nop 7")
    a("s_nop 7")
    a(f"s_mov_b32 s{S_CNT}, 8")
    a(f"s_mov_b32 s{S_SLOT}, 65536")
    stamp(a, 2)
    a.label("k2_loop")

    def exps(b, par, i0):
        return [f"v_exp_f32 v{Sb[b][par]+i}, v{Sb[b][par]+i}" for i in range(i0, i0 + 4)]

    def cvts(b, par, i0):
        return [f"v_cvt_pk_bf16_f32 v{P[b]+(i0+i)//2}, v{Sb[b][par]+i0+i}, v{Sb[b][par]+i0+i+1}" for i in (0, 2)]

    for ph in range(8):
        p = ph & 1
        q = p ^ 1
        kt, vt = ph + 2, ph + 1
        kreg = v_cur if kt < 8 else v_nxt
        vreg = v_cur if vt < 8 else v_nxt
        kr = [f"ds_read_b128 {vr(KF[p]+4*s,4)}, v{kreg} offset:{(kt%8)*2048 + s*1024}" for s in range(2)]
        vrd = [f"ds_read_b128 {vr(VF[q]+4*s,4)}, v{vreg} offset:{16384 + (vt%8)*2048 + s*1024}" for s in range(2)]
        M = [qk(0, q, 0, KF[q]), pv(1, 1, VF[q]), qk(0, q, 1, KF[q]), pv(0, 0, VF[p]),
             qk(1, q, 0, KF[q]), pv(0, 1, VF[p]), qk(1, q, 1, KF[q]), pv(1, 0, VF[p])]
        V = [cvts(1, q, 12) + exps(0, p, 0),
             exps(0, p, 4),
             cvts(0, p, 0) + cvts(0, p, 4) + exps(0, p, 8),
             cvts(0, p, 8) + exps(0, p, 12),
             cvts(0, p, 12) + exps(1, p, 0),
             exps(1, p, 4),
             cvts(1, p, 0) + cvts(1, p, 4) + exps(1, p, 8),
             cvts(1, p, 8) + exps(1, p, 12)]
        extra = [[] for _ in range(8)]
        dm = []
        if ph == 6:
            if INSTR:
                a("s_memtime s[98:99]")
                a("s_waitcnt lgkmcnt(0)")
                a("s_sub_u32 s98, s98, s80")
                a(f"s_lshl_b32 m0, s{S_CNT}, 1")
                a("s_nop 0")
                a(f"v_writelane_b32 v{v_cst}, s98, m0")
            a("s_barrier")
            if INSTR:
                a("s_memtime s[98:99]")
                a("s_waitcnt lgkmcnt(0)")
                a("s_sub_u32 s98, s98, s80")
                a(f"s_add_u32 m0, m0, 1")
                a("s_nop 0")
                a(f"v_writelane_b32 v{v_cst}, s98, m0")
        a("s_waitcnt lgkmcnt(0)")
        extra[0] += kr
        extra[2] += vrd
        for i, u in enumerate(dm):
            extra[i] += u
        for i in range(8):
            a(M[i])
            for l in extra[i]:
                a(l)
            for l in V[i]:
                a(l)
    a(f"v_mov_b32 v{v_cur}, v{v_nxt}")
    a(f"v_add_u32 v{v_nxt}, s{S_SLOT}, v{v_l16}")
    a(f"s_add_u32 s{S_SLOT}, s{S_SLOT}, 32768")
    a(f"s_cmp_eq_u32 s{S_SLOT}, 98304")
    a(f"s_cselect_b32 s{S_SLOT}, 0, s{S_SLOT}")
    a(f"s_sub_u32 s{S_CNT}, s{S_CNT}, 1")
    a(f"s_cmp_lg_u32 s{S_CNT}, 0")
    a("s_cbranch_scc1 k2_loop")
    for l in cvts(1, 1, 12):
        a(l)
    a("s_nop 1")
    a(pv(1, 1, VF[1]))
    a("s_waitcnt vmcnt(0) lgkmcnt(0)")
    a("s_nop 7")
    a("s_nop 7")
    stamp(a, 3)
    a(f"v_mov_b32 v{t[0]}, {f32(2.0**-40)}")
    a(f"v_cmp_nge_f32 s[74:75], v{O[0]+12}, v{t[0]}")
    a(f"v_cmp_nge_f32 vcc, v{O[1]+12}, v{t[0]}")
    a("s_nop 3")
    a("s_or_b64 vcc, vcc, s[74:75]")
    a("s_cbranch_vccnz k2_slow")
    a.label("k2_epi")
    for b in range(2):
        a(f"v_rcp_f32 v{t[0]}, v{O[b]+12}")
        a("s_nop 0")
        for i in range(12):
            a(f"v_mul_f32 v{O[b]+i}, v{O[b]+i}, v{t[0]}")
        for i in range(6):
            a(f"v_cvt_pk_bf16_f32 v{O[b]+i}, v{O[b]+2*i}, v{O[b]+2*i+1}")
        a(f"s_mov_b32 s{S_KW}, {b*32*D*2}")
        a(f"buffer_store_dwordx2 {vr(O[b],2)}, v{v_oa}, {sr(SRD4,4)}, s{S_KW} offen")
        a(f"buffer_store_dwordx2 {vr(O[b]+2,2)}, v{v_oa}, {sr(SRD4,4)}, s{S_KW} offen offset:16")
    a(f"v_cmp_eq_u32 vcc, 0, v{v_h}")
    a("s_nop 3")
    a("s_and_saveexec_b64 s[74:75], vcc")
    for b in range(2):
        a(f"s_mov_b32 s{S_KW}, {b*32*D*2}")
        a(f"buffer_store_dwordx2 {vr(O[b]+4,2)}, v{v_oa}, {sr(SRD4,4)}, s{S_KW} offen offset:32")
    if os.environ.get("RBW"):
        a("s_waitcnt vmcnt(0)")
    for b in range(2 if not os.environ.get("NORB2") else 0):
        a(f"s_mov_b32 s{S_KW}, {b*32*D*2}")
        a(f"buffer_load_dword v{t[0]}, v{v_ob}, {sr(SRD4,4)}, s{S_KW} offen sc1")
        a(f"buffer_load_dword v{t[1]}, v{v_ob}, {sr(SRD4,4)}, s{S_KW} offen offset:36 sc1")
    if INSTR:
        lab = a.newlabel("hs")
        a("s_mov_b64 exec, -1")
        a(f"s_cmp_lg_u32 s2, {INSTR_WG}")
        a(f"s_cbranch_scc1 {lab}")
        a(f"s_cmp_lg_u32 s{S_WAVE}, 0")
        a(f"s_cbranch_scc1 {lab}")
        make_srd(a, 92, P_DBG, 0, 256)
        a(f"v_lshlrev_b32 v{t[0]}, 2, v{v_lane}")
        a(f"buffer_store_dword v{v_cst}, v{t[0]}, s[92:95], 0 offen offset:184")
        a.label(lab)
    stamp_end(a, 4)
    a.label("k2_end")
    a("s_endpgm")

    a.label("k2_slow")
    for b in range(2):
        a(f"v_mov_b32 v{Q[b]+6}, 0")
        a(f"v_mov_b32 v{v_m[b]}, 0xff800000")
    a(f"s_mov_b32 s{S_GOFF}, 0")
    a.label("k2_slow1")
    a(f"buffer_load_dwordx4 {vr(KF[0],4)}, v{v_l16}, {sr(SRD1,4)}, s{S_GOFF} offen")
    a(f"buffer_load_dwordx4 {vr(KF[0]+4,4)}, v{v_l16}, {sr(SRD1,4)}, s{S_GOFF} offen offset:1024")
    a("s_waitcnt vmcnt(0)")
    for b in range(2):
        a(qk(b, 0, 0, KF[0]))
        a(qk(b, 0, 1, KF[0]))
    a("s_nop 7")
    a("s_nop 7")
    for b in range(2):
        for i in range(0, 16, 2):
            a(f"v_max3_f32 v{v_m[b]}, v{Sb[b][0]+i}, v{Sb[b][0]+i+1}, v{v_m[b]}")
    a(f"s_add_u32 s{S_GOFF}, s{S_GOFF}, 2048")
    a(f"s_cmp_lt_u32 s{S_GOFF}, 0x20000")
    a("s_cbranch_scc1 k2_slow1")
    a(f"v_cmp_eq_u32 vcc, 0, v{v_h}")
    for b in range(2):
        xlane_add(a, v_m[b], v_lane, t[0], t[1], (32,), op="v_max_f32")
        a(f"v_cvt_pk_bf16_f32 v{t[2]}, -v{v_m[b]}, 0")
        a(f"v_cndmask_b32 v{Q[b]+6}, 0, v{t[2]}, vcc")
        for i in range(16):
            a(f"v_mov_b32 v{O[b]+i}, 0")
    a(f"s_mov_b32 s{S_GOFF}, 0")
    a.label("k2_slow2")
    a(f"buffer_load_dwordx4 {vr(KF[0],4)}, v{v_l16}, {sr(SRD1,4)}, s{S_GOFF} offen")
    a(f"buffer_load_dwordx4 {vr(KF[0]+4,4)}, v{v_l16}, {sr(SRD1,4)}, s{S_GOFF} offen offset:1024")
    a(f"buffer_load_dwordx4 {vr(VF[0],4)}, v{v_l16}, {sr(SRD2,4)}, s{S_GOFF} offen")
    a(f"buffer_load_dwordx4 {vr(VF[0]+4,4)}, v{v_l16}, {sr(SRD2,4)}, s{S_GOFF} offen offset:1024")
    a("s_waitcnt vmcnt(0)")
    for b in range(2):
        a(qk(b, 0, 0, KF[0]))
        a(qk(b, 0, 1, KF[0]))
    a("s_nop 7")
    a("s_nop 7")
    for b in range(2):
        for i0 in range(0, 16, 4):
            for l in exps(b, 0, i0):
                a(l)
        a("s_nop 0")
        for i0 in range(0, 16, 4):
            for l in cvts(b, 0, i0):
                a(l)
    a("s_nop 1")
    for b in range(2):
        a(pv(b, 0, VF[0]))
        a(pv(b, 1, VF[0]))
    a("s_nop 7")
    a("s_nop 7")
    a(f"s_add_u32 s{S_GOFF}, s{S_GOFF}, 2048")
    a(f"s_cmp_lt_u32 s{S_GOFF}, 0x20000")
    a("s_cbranch_scc1 k2_slow2")
    a("s_branch k2_epi")

    def cont(lva, lt):
        v_l, v_rb, dummy, v_hs = lva(), lva(), lva(), lva()
        a(f"v_and_b32 v{v_l}, 63, v0")
        a(f"s_and_b32 s{S_WOFF}, s{S_WAVE}, 3")
        a(f"s_lshl_b32 s{S_T2}, s{S_J}, 2")
        a(f"s_add_u32 s{S_T2}, s{S_T2}, s{S_WOFF}")
        a(f"s_lshl_b32 s{S_WOFF}, s{S_WOFF}, 10")
        a(f"v_lshlrev_b32 v{v_rb}, 7, v{v_l}")
        a(f"v_lshlrev_b32 v{v_l}, 4, v{v_l}")
        dma_chunk(1, S_WOFF, v_l)
        make_srd(a, SRD3, P_WS, WS_IMG, IMG_SZ)
        a("s_barrier")

        def touch(c):
            if c == 0:
                a(f"s_mul_i32 s{S_T1}, s{S_T2}, {50*128}")
            elif c in (1, 2):
                a(f"s_mul_i32 s{S_T1}, s{S_T2}, {120*128}")
                a(f"s_and_b32 s{S_T0}, s{S_XB}, 1")
                a(f"s_mul_i32 s{S_T0}, s{S_T0}, {1966080}")
                a(f"s_add_u32 s{S_T1}, s{S_T1}, s{S_T0}")
                a(f"s_add_u32 s{S_T1}, s{S_T1}, {IMG_GU + (c-1)*56*128}")
            else:
                return 0
            a(f"buffer_load_dword v{dummy}, v{v_rb}, {sr(SRD3,4)}, s{S_T1} offen")
            return 1

        extra = 0
        for c in range(8):
            a(f"s_waitcnt vmcnt({extra})")
            a("s_barrier")
            if c + 2 < 8:
                dma_chunk(c + 2, S_WOFF, v_l)
            extra = touch(c)
        a("s_endpgm")

    g.loader(S_ROT, cont=cont)
    kernel_end(a, name, max(va.n, gva.n, g.loader_vgprs))
    return (name, 256, 512, 160 * 1024)


def gen_proj(a, which):
    name = "k3_wo_kernel" if which == 3 else "k5_down_kernel"
    end = name + "_end"
    kernel_begin(a, name)
    a("s_cmp_ge_u32 s2, 256")
    a(f"s_cbranch_scc1 {end}")
    load_kernargs(a)
    va = VAlloc(1)
    a(f"s_and_b32 s{S_T1}, s2, 7")
    a(f"s_lshr_b32 s{S_T0}, s2, 3")
    a(f"s_mov_b32 s{S_J}, s{S_T0}")
    a(f"s_mov_b32 s{S_XB}, s{S_T1}")
    if which == 3:
        a(f"s_mul_i32 s{S_ROT}, s{S_T0}, 52")
        a(f"s_lshr_b32 s{S_ROT}, s{S_ROT}, 8")
        a(f"s_mul_i32 s{S_ROT}, s{S_ROT}, 5")
        a(f"s_sub_u32 s{S_ROT}, s{S_T0}, s{S_ROT}")
    else:
        a(f"s_and_b32 s{S_ROT}, s{S_T1}, 1")
        a(f"s_mul_i32 s{S_ROT}, s{S_ROT}, 6")
        a(f"s_and_b32 s{S_T2}, s{S_T0}, 1")
        a(f"s_add_u32 s{S_ROT}, s{S_ROT}, s{S_T2}")
    if which == 3:
        a(f"s_lshr_b32 s{S_T2}, s{S_T0}, 3")
        a(f"s_lshl_b32 s{S_T1}, s{S_T1}, 2")
        a(f"s_add_u32 s{S_T1}, s{S_T1}, s{S_T2}")
        a(f"s_lshl_b32 s{S_TOK0}, s{S_T1}, 6")
        a(f"s_and_b32 s{S_T0}, s{S_T0}, 7")
    else:
        a(f"s_lshr_b32 s{S_T2}, s{S_T1}, 1")
        a(f"s_lshl_b32 s{S_T2}, s{S_T2}, 3")
        a(f"s_and_b32 s{S_TOK0}, s{S_T0}, 7")
        a(f"s_add_u32 s{S_TOK0}, s{S_TOK0}, s{S_T2}")
        a(f"s_lshl_b32 s{S_TOK0}, s{S_TOK0}, 6")
        a(f"s_and_b32 s{S_T1}, s{S_T1}, 1")
        a(f"s_lshl_b32 s{S_T1}, s{S_T1}, 2")
        a(f"s_lshr_b32 s{S_T0}, s{S_T0}, 3")
        a(f"s_add_u32 s{S_T0}, s{S_T0}, s{S_T1}")
    a(f"s_mul_i32 s{S_COL}, s{S_T0}, 160")
    a("s_waitcnt lgkmcnt(0)")
    if which == 3:
        K = D
        make_srd(a, SRD0, P_WS, WS_O, S * D * 2)
        make_srd(a, SRD1, P_WS, WS_IMG, IMG_SZ)
        a(f"s_mul_i32 s{S_IMG}, s{S_T0}, {5*20480}")
        make_srd(a, SRD2, P_WS, WS_H, S * D * 2)
        make_srd(a, SRD3, P_X, 0, S * D * 2)
        make_srd(a, SRD4, P_WS, WS_ST, S * 64)
    else:
        K = F
        make_srd(a, SRD0, P_WS, WS_ACT, S * F * 2)
        make_srd(a, SRD1, P_WS, WS_IMG, IMG_SZ)
        a(f"s_mul_i32 s{S_IMG}, s{S_T0}, {12*20480}")
        make_srd(a, SRD2, P_OUT, 0, S * D * 2)
        make_srd(a, SRD3, P_WS, WS_H, S * D * 2)
    seg = Seg(SRD1, D * 2, 80, 'p160', S_COL, img=(S_IMG, 20480, IMG_WO if which == 3 else IMG_WD))
    g = Gemm(a, va, 64, 2, 2, 1, [seg], 128, 4, K, SRD0, K * 2, S_TOK0, sregs=GS, tag=f"k{which}")
    g.split()
    v_dummy = va()
    if which == 5 and PF:
        a(f"s_lshr_b32 s{S_T1}, s{S_XB}, 1")
        a(f"s_mul_i32 s{S_T1}, s{S_T1}, {512*K*2}")
        prefetch_lin(a, 0, g.tmp[0], v_dummy, SRD0, S_T1, S_J, 512*K*2//128//32, S_T2)
    g.setup()
    t = g.tmp
    v_ad, v_tok, v_x = va(), va(), va()
    res = va(10, 2)
    a(f"v_lshl_add_u32 v{v_tok}, v{g.v_wt}, 1, v{g.v_wo}")
    a(f"v_lshl_add_u32 v{v_tok}, v{v_tok}, 4, v{g.v_i16}")
    a(f"v_add_u32 v{v_tok}, s{S_TOK0}, v{v_tok}")
    a(f"v_mul_u32_u24 v{t[0]}, {D*2}, v{v_tok}")
    a(f"v_lshl_add_u32 v{v_ad}, v{g.v_g}, 3, v{t[0]}")
    a(f"v_add_u32 v{v_ad}, s{S_COL}, v{v_ad}")
    for fb in range(5):
        a(f"buffer_load_dwordx2 {vr(res+2*fb,2)}, v{v_ad}, {sr(SRD3,4)}, 0 offen offset:{fb*32}")
    stamp(a, 0)
    g.mainloop()
    stamp(a, 1)
    a("s_nop 7")
    a("s_barrier")
    skip = a.newlabel("xs")
    a(f"s_cmp_lt_u32 s{S_WAVE}, 2")
    a(f"s_cbranch_scc1 {skip}")
    for fb in range(5):
        for r in range(4):
            a(f"v_swap_b32 v{g.acc[0][fb]+r}, v{g.acc[1][fb]+r}")
    a.label(skip)
    a(f"v_mul_u32_u24 v{t[0]}, 5120, v{g.v_wave}")
    a(f"v_lshl_add_u32 v{t[0]}, v{g.v_lane}, 4, v{t[0]}")
    a(f"v_xor_b32 v{t[1]}, 2, v{g.v_wave}")
    a(f"v_mul_u32_u24 v{t[1]}, 5120, v{t[1]}")
    a(f"v_lshl_add_u32 v{t[1]}, v{g.v_lane}, 4, v{t[1]}")
    for fb in range(5):
        a(f"ds_write_b128 v{t[0]}, {vr(g.acc[1][fb],4)} offset:{fb*1024}")
    a("s_waitcnt lgkmcnt(0)")
    a("s_barrier")
    for fb in range(5):
        a(f"ds_read_b128 {vr(g.acc[1][fb],4)}, v{t[1]} offset:{fb*1024}")
    a("s_waitcnt lgkmcnt(0)")
    v_s, v_q = va(2, 2), None
    v_q = v_s + 1
    if which == 3:
        a(f"v_mov_b32 v{v_s}, 0")
        a(f"v_mov_b32 v{v_q}, 0")
    for fb in range(5):
        c, o = g.acc[0][fb], g.acc[1][fb]
        for p in range(2):
            a(f"v_lshlrev_b32 v{t[0]}, 16, v{res+2*fb+p}")
            a(f"v_and_b32 v{t[1]}, 0xffff0000, v{res+2*fb+p}")
            a(f"v_add_f32 v{c+2*p}, v{c+2*p}, v{o+2*p}")
            a(f"v_add_f32 v{c+2*p+1}, v{c+2*p+1}, v{o+2*p+1}")
            a(f"v_cvt_pk_bf16_f32 v{t[2]}, v{c+2*p}, v{c+2*p+1}")
            a(f"v_lshlrev_b32 v{t[3]}, 16, v{t[2]}")
            a(f"v_and_b32 v{t[2]}, 0xffff0000, v{t[2]}")
            a(f"v_add_f32 v{t[0]}, v{t[0]}, v{t[3]}")
            a(f"v_add_f32 v{t[1]}, v{t[1]}, v{t[2]}")
            a(f"v_cvt_pk_bf16_f32 v{o+p}, v{t[0]}, v{t[1]}")
            if which == 3:
                a(f"v_lshlrev_b32 v{t[0]}, 16, v{o+p}")
                a(f"v_and_b32 v{t[1]}, 0xffff0000, v{o+p}")
                a(f"v_add_f32 v{v_s}, v{v_s}, v{t[0]}")
                a(f"v_fma_f32 v{v_q}, v{t[0]}, v{t[0]}, v{v_q}")
                a(f"v_add_f32 v{v_s}, v{v_s}, v{t[1]}")
                a(f"v_fma_f32 v{v_q}, v{t[1]}, v{t[1]}, v{v_q}")
        a(f"buffer_store_dwordx2 {vr(o,2)}, v{v_ad}, {sr(SRD2,4)}, 0 offen offset:{fb*32}")
    if which == 3:
        xlane_add(a, v_s, g.v_lane, t[0], t[1], (16, 32))
        xlane_add(a, v_q, g.v_lane, t[0], t[1], (16, 32))
        a(f"v_lshlrev_b32 v{t[0]}, 6, v{v_tok}")
        a(f"s_lshl_b32 s{S_T0}, s{S_T0}, 3")
        a(f"v_cmp_eq_u32 vcc, 0, v{g.v_g}")
        a("s_nop 3")
        a("s_and_saveexec_b64 s[74:75], vcc")
        a(f"buffer_store_dwordx2 {vr(v_s,2)}, v{t[0]}, {sr(SRD4,4)}, s{S_T0} offen")
        if os.environ.get("RBW"):
            a("s_waitcnt vmcnt(0)")
        for o in ((0, 80, 156) if not os.environ.get("NORB3") else ()):
            a(f"buffer_load_dword v{t[1]}, v{v_ad}, {sr(SRD2,4)}, 0 offen offset:{o} sc1")
    stamp_end(a, 2)
    a.label(end)
    a("s_endpgm")
    g.loader(S_ROT)
    kernel_end(a, name, va.n)
    return (name, 256, 512, g.lds_bytes)


def gen_k4(a):
    name = "k4_ffn_kernel"
    kernel_begin(a, name)
    a("s_cmp_ge_u32 s2, 256")
    a("s_cbranch_scc1 k4_end")
    load_kernargs(a)
    va = VAlloc(1)
    a(f"s_and_b32 s{S_XB}, s2, 7")
    a(f"s_lshr_b32 s{S_J}, s2, 3")
    a(f"s_mul_i32 s{S_ROT}, s{S_J}, 26")
    a(f"s_lshr_b32 s{S_ROT}, s{S_ROT}, 8")
    a(f"s_mul_i32 s{S_ROT}, s{S_ROT}, 10")
    a(f"s_sub_u32 s{S_ROT}, s{S_J}, s{S_ROT}")
    a(f"s_lshr_b32 s{S_T2}, s{S_XB}, 1")
    a(f"s_lshl_b32 s{S_T2}, s{S_T2}, 2")
    a(f"s_and_b32 s{S_TOK0}, s{S_J}, 3")
    a(f"s_add_u32 s{S_TOK0}, s{S_TOK0}, s{S_T2}")
    a(f"s_lshl_b32 s{S_TOK0}, s{S_TOK0}, 7")
    a(f"s_lshr_b32 s{S_T2}, s{S_J}, 2")
    a(f"s_and_b32 s{S_T1}, s{S_XB}, 1")
    a(f"s_lshl_b32 s{S_T1}, s{S_T1}, 3")
    a(f"s_add_u32 s{S_T0}, s{S_T2}, s{S_T1}")
    a(f"s_mul_i32 s{S_COL}, s{S_T0}, 192")
    a(f"s_mul_i32 s{S_IMG}, s{S_T0}, {10*24576}")
    a("s_waitcnt lgkmcnt(0)")
    make_srd(a, SRD0, P_WS, WS_H, S * D * 2)
    make_srd(a, SRD1, P_WS, WS_IMG, IMG_SZ)
    make_srd(a, SRD3, P_WS, WS_ACT, S * F * 2)
    sg = Seg(SRD1, F * 2, 96, 'p192', S_COL, img=(S_IMG, 24576, IMG_GU))
    su = Seg(SRD1, F * 2, 96, 'p192', S_COL, img=(S_IMG, 24576, IMG_GU + 12288))
    g = Gemm(a, va, 128, 2, 1, 2, [sg, su], 64, K4_NS, D, SRD0, D * 2, S_TOK0, sregs=GS, tag="k4")
    TAB = g.lds_bytes
    g.split()
    g.setup()
    t = g.tmp
    v_tok, v_ad, v_ta, v_tc = va(), va(), va(), va()
    a(f"v_lshl_add_u32 v{v_tok}, v{g.v_wt}, 6, v{g.v_i16}")
    a(f"v_lshlrev_b32 v{v_ta}, 4, v{v_tok}")
    a(f"v_add_u32 v{v_ta}, {TAB}, v{v_ta}")
    a(f"v_add_u32 v{v_tok}, s{S_TOK0}, v{v_tok}")
    a(f"v_mul_u32_u24 v{t[1]}, 48, v{g.v_wo}")
    a(f"v_lshl_add_u32 v{t[1]}, v{g.v_g}, 2, v{t[1]}")
    a(f"v_lshlrev_b32 v{v_tc}, 2, v{t[1]}")
    a(f"v_add_u32 v{v_tc}, {TAB + 2048}, v{v_tc}")
    a(f"v_mul_u32_u24 v{v_ad}, {F*2}, v{v_tok}")
    a(f"v_lshl_add_u32 v{v_ad}, v{t[1]}, 1, v{v_ad}")
    a(f"v_add_u32 v{v_ad}, s{S_COL}, v{v_ad}")
    a(f"v_mul_u32_u24 v{v_tok}, 20, v{g.v_g}")
    a(f"v_add_u32 v{v_tok}, v{v_tok}, v{v_ad}")
    stamp(a, 0)
    g.mainloop()
    stamp(a, 1)
    a("s_barrier")
    st = g.fa[0]
    cs = g.fa[1]
    tmp = g.fb[0]
    for tb in range(4):
        a(f"ds_read_b128 {vr(st+4*tb,4)}, v{v_ta} offset:{tb*256}")
    for sgi in range(2):
        for fb in range(3):
            a(f"ds_read_b128 {vr(cs+12*sgi+4*fb,4)}, v{v_tc} offset:{sgi*384 + fb*64}")
    a("s_waitcnt lgkmcnt(0)")
    for tb in range(4):
        vm, vA, vB, vC = [st + 4 * tb + i for i in range(4)]
        pm, pB = vr(vm, 2), vr(vB, 2)
        for fb in range(3):
            cg, cu = g.acc[tb][fb], g.acc[tb][3 + fb]
            z = tmp + 8 * (fb & 1)
            for h in (0, 2):
                a(f"v_pk_fma_f32 {vr(cg+h,2)}, {pm}, {vr(cs+4*fb+h,2)}, {vr(cg+h,2)} op_sel_hi:[0,1,1]")
                a(f"v_pk_fma_f32 {vr(cu+h,2)}, {pm}, {vr(cs+12+4*fb+h,2)}, {vr(cu+h,2)} op_sel_hi:[0,1,1]")
            for h in (0, 2):
                a(f"v_pk_mul_f32 {vr(z+h,2)}, {vr(cg+h,2)}, {vr(cg+h,2)}")
                a(f"v_pk_mul_f32 {vr(cu+h,2)}, {vr(cu+h,2)}, {vr(cg+h,2)}")
            for h in (0, 2):
                a(f"v_pk_fma_f32 {vr(z+h,2)}, {vr(z+h,2)}, {pB}, {pm} op_sel:[0,0,1] op_sel_hi:[1,0,1]")
            for h in (0, 2):
                a(f"v_pk_mul_f32 {vr(z+h,2)}, {vr(z+h,2)}, {vr(cg+h,2)}")
            for r in range(4):
                a(f"v_exp_f32 v{z+r}, v{z+r}")
            for h in (0, 2):
                a(f"v_pk_fma_f32 {vr(z+h,2)}, {vr(z+h,2)}, {pB}, {pB} op_sel:[0,1,1] op_sel_hi:[1,1,1]")
            for r in range(4):
                a(f"v_rcp_f32 v{z+r}, v{z+r}")
            a("s_nop 0")
            for h in (0, 2):
                a(f"v_pk_mul_f32 {vr(cu+h,2)}, {vr(cu+h,2)}, {vr(z+h,2)}")
            a(f"v_cvt_pk_bf16_f32 v{cu}, v{cu}, v{cu+1}")
            a(f"v_cvt_pk_bf16_f32 v{cu+1}, v{cu+2}, v{cu+3}")
            a(f"s_mov_b32 s{S_KW}, {tb*16*F*2}")
            a(f"buffer_store_dwordx2 {vr(cu,2)}, v{v_ad}, {sr(SRD3,4)}, s{S_KW} offen offset:{fb*32}")
        if not os.environ.get("NORB4"):
            a(f"buffer_load_dword v{t[1]}, v{v_tok}, {sr(SRD3,4)}, s{S_KW} offen sc1")
    stamp(a, 2)
    stamp_end(a, 3)
    a.label("k4_end")
    a("s_endpgm")

    GC = -2.0 * 0.7978845608028654 * 1.4426950408889634
    pre = {}

    def early(lva, lt):
        make_srd(a, SRD4, P_WS, WS_ST, S * 64)
        make_srd(a, SRD5, P_WS, WS_CS, 4 * 3072 * 4)
        buf = lva(16, 4)
        pre['buf'] = buf
        l2, l3 = a.newlabel("k4e"), a.newlabel("k4e")
        a(f"s_cmp_ge_u32 s{S_WAVE}, 6")
        a(f"s_cbranch_scc1 {l2}")
        a(f"v_add_u32 v{lt[0]}, s{S_TOK0}, v0")
        a(f"v_lshlrev_b32 v{lt[0]}, 6, v{lt[0]}")
        for i in range(4):
            a(f"buffer_load_dwordx4 {vr(buf+4*i,4)}, v{lt[0]}, {sr(SRD4,4)}, 0 offen offset:{i*16}")
        a(f"s_branch {l3}")
        a.label(l2)
        a(f"v_and_b32 v{lt[0]}, 63, v0")
        a(f"v_min_u32 v{lt[0]}, 23, v{lt[0]}")
        a(f"v_lshlrev_b32 v{lt[0]}, 4, v{lt[0]}")
        a(f"s_sub_u32 s{S_T1}, s{S_WAVE}, 6")
        a(f"s_mul_i32 s{S_T1}, s{S_T1}, {1536*4}")
        a(f"s_lshl_b32 s{S_T2}, s{S_COL}, 1")
        a(f"s_add_u32 s{S_T1}, s{S_T1}, s{S_T2}")
        for i in range(4):
            a(f"buffer_load_dwordx4 {vr(buf+4*i,4)}, v{lt[0]}, {sr(SRD5,4)}, s{S_T1} offen")
            a(f"s_add_u32 s{S_T1}, s{S_T1}, {3072*4}")
        a.label(l3)

    def cont(lva, lt):
        buf = pre['buf']
        a(f"s_and_b32 s{S_T1}, s{S_XB}, 1")
        a(f"s_mul_i32 s{S_T1}, s{S_T1}, 983040")
        a(f"s_mul_i32 s{S_T2}, s{S_J}, {240*128}")
        a(f"s_add_u32 s{S_T1}, s{S_T1}, s{S_T2}")
        a(f"s_add_u32 s{S_T1}, s{S_T1}, {IMG_WD}")
        a(f"v_min_u32 v{lt[0]}, 239, v0")
        a(f"v_lshlrev_b32 v{lt[0]}, 7, v{lt[0]}")
        if not os.environ.get("NOWDPF"):
            a(f"buffer_load_dword v{lt[5]}, v{lt[0]}, {sr(SRD1,4)}, s{S_T1} offen")
        l2, l3 = a.newlabel("k4e"), a.newlabel("k4e")
        a(f"s_cmp_ge_u32 s{S_WAVE}, 6")
        a(f"s_cbranch_scc1 {l2}")
        for i in range(1, 8):
            a(f"v_add_f32 v{buf}, v{buf}, v{buf+2*i}")
            a(f"v_add_f32 v{buf+1}, v{buf+1}, v{buf+2*i+1}")
        ln_stats(a, buf, buf + 1, buf + 4, buf + 8, lt)
        a(f"v_sub_f32 v{buf+4}, 0, v{buf+4}")
        a(f"v_mul_f32 v{buf+5}, {f32(GC)}, v{buf+8}")
        a(f"v_mul_f32 v{buf+9}, v{buf+8}, v{buf+8}")
        a(f"v_mul_f32 v{buf+6}, v{buf+9}, v{buf+8}")
        a(f"v_mul_f32 v{buf+6}, {f32(GC*0.044715)}, v{buf+6}")
        a(f"v_rcp_f32 v{buf+7}, v{buf+9}")
        a(f"v_lshlrev_b32 v{lt[0]}, 4, v0")
        a(f"v_add_u32 v{lt[0]}, {TAB}, v{lt[0]}")
        a(f"ds_write_b128 v{lt[0]}, {vr(buf+4,4)}")
        a(f"s_branch {l3}")
        a.label(l2)
        for i in range(4):
            a(f"v_add_f32 v{buf+i}, v{buf+i}, v{buf+4+i}")
            a(f"v_add_f32 v{buf+8+i}, v{buf+8+i}, v{buf+12+i}")
            a(f"v_add_f32 v{buf+i}, v{buf+i}, v{buf+8+i}")
        a(f"v_and_b32 v{lt[0]}, 63, v0")
        a(f"v_min_u32 v{lt[0]}, 23, v{lt[0]}")
        a(f"v_lshlrev_b32 v{lt[0]}, 4, v{lt[0]}")
        a(f"s_sub_u32 s{S_T1}, s{S_WAVE}, 6")
        a(f"s_mul_i32 s{S_T1}, s{S_T1}, 384")
        a(f"s_add_u32 s{S_T1}, s{S_T1}, {TAB + 2048}")
        a(f"v_add_u32 v{lt[0]}, s{S_T1}, v{lt[0]}")
        a(f"ds_write_b128 v{lt[0]}, {vr(buf,4)}")
        a.label(l3)
        a("s_waitcnt lgkmcnt(0)")
        a("s_barrier")
        a("s_endpgm")

    g.loader(S_ROT, cont=cont, early=early)
    kernel_end(a, name, max(va.n, g.loader_vgprs))
    return (name, 256, 512, g.lds_bytes + 4096)

K4_NS = 3


def main():
    a = Asm()
    a.raw('.amdgcn_target "amdgcn-amd-amdhsa--gfx950"')
    a.raw(".text")
    launches = [gen_k1(a), gen_k2(a), gen_proj(a, 3), gen_k4(a), gen_proj(a, 5)]
    head = open("cdna_kernels/" + NAME + ".s.ref").read().split("\n")
    hdr = [l for l in head if l.startswith(";") and "@launch" not in l and "Override launch" not in l and "grid=ceil" not in l]
    out = "\n".join(hdr) + "\n"
    for n, gx, bx, lds in launches:
        out += f"; @launch kernel={n} grid=({gx},1,1) block=({bx},1,1) lds={lds}\n"
    out += a.text()
    out += '.section .rodata,"a"\n' + "".join(KDS)
    path = sys.argv[1] if len(sys.argv) > 1 else "cdna_kernels/" + NAME + ".s"
    open(path, "w").write(out)
    print("wrote", path, len(out), "bytes;", launches)

if __name__ == "__main__":
    main()
```

```python
import sys

NAME = "sequential_preLN__grouped_kv_mqa__geglu_ffn__prompt"

S, D, H, DH, F = 2048, 640, 32, 20, 1536

WS_Q   = 0
WS_KF  = 0x280000
WS_VF  = WS_KF + 0x20000
WS_KN  = WS_VF + 0x20000
WS_CS  = WS_KN + 0x1000
WS_O   = WS_CS + 0x10000
WS_H   = WS_O + 0x280000
WS_ST  = WS_H + 0x280000
WS_ACT = WS_ST + 0x20000
WS_S1  = WS_ACT + 0x600000
WS_IMG = WS_S1 + 0x4000
WS_TL = 0x3000000
IMG_WO, IMG_WD, IMG_GU, IMG_SZ = 0, 819200, 819200 + 1966080, 6717440

KA_X, KA_WQ, KA_WK, KA_WV, KA_WO, KA_BX, KA_WG, KA_WU, KA_WD, KA_OUT, KA_DBG, KA_WS = [8 * i for i in range(12)]

import struct, os
INSTR = bool(os.environ.get("INSTR"))
HACK_LIN = bool(os.environ.get("HACK_LIN"))
NOCOMP = os.environ.get("NOCOMP", "").split(",")
NOX = os.environ.get("NOX", "").split(",")
NOW = os.environ.get("NOW", "").split(",")
PF = bool(os.environ.get("PF"))
IMGPOL = os.environ.get("IMGPOL", "sc0 sc1")
for _k in ("NORB2", "NORB3", "NORB4"):
    os.environ[_k] = "1"
NOLOAD = os.environ.get("NOLOAD", "").split(",")
def f32(x):
    return "0x%08x" % struct.unpack("<I", struct.pack("<f", x))[0]


class Asm:
    skip_dma = False
    def __init__(self):
        self.lines = []
        self.nlabel = 0

    def __call__(self, s):
        for l in s.split("\n"):
            l = l.strip()
            if self.skip_dma and l.startswith("buffer_load") and l.endswith("lds"):
                continue
            if l:
                self.lines.append("    " + l)

    def label(self, l):
        self.lines.append(l + ":")

    def newlabel(self, p="L"):
        self.nlabel += 1
        return f"{p}_{self.nlabel}"

    def raw(self, s):
        self.lines.append(s)

    def text(self):
        return "\n".join(self.lines) + "\n"


class VAlloc:
    def __init__(self, start=1):
        self.n = start

    def __call__(self, cnt=1, align=1):
        self.n = (self.n + align - 1) // align * align
        r = self.n
        self.n += cnt
        return r


def vr(b, n):
    return f"v[{b}:{b+n-1}]"


def sr(b, n):
    return f"s[{b}:{b+n-1}]"


KIDX = [-1]
def kernel_begin(a, name):
    KIDX[0] += 1
    a.raw(f".globl {name}")
    a.raw(".p2align 8")
    a.raw(f".type {name},@function")
    a.label(name)


KDS = []
def kernel_end(a, name, nvgpr, nsgpr=102):
    nv = (nvgpr + 7) // 8 * 8
    KDS.append(f""".p2align 6
.amdhsa_kernel {name}
  .amdhsa_next_free_vgpr {nv}
  .amdhsa_next_free_sgpr {nsgpr}
  .amdhsa_accum_offset {(nv + 3) // 4 * 4}
  .amdhsa_group_segment_fixed_size 0
  .amdhsa_kernarg_size 96
  .amdhsa_user_sgpr_count 2
  .amdhsa_user_sgpr_kernarg_segment_ptr 1
  .amdhsa_system_sgpr_workgroup_id_x 1
.end_amdhsa_kernel
""")


def make_srd(a, dst, base_s, off, nbytes):
    if off:
        a(f"s_add_u32 s{dst}, s{base_s}, {off}")
        a(f"s_addc_u32 s{dst+1}, s{base_s+1}, 0")
    else:
        a(f"s_mov_b32 s{dst}, s{base_s}")
        a(f"s_mov_b32 s{dst+1}, s{base_s+1}")
    a(f"s_mov_b32 s{dst+2}, {nbytes}")
    a(f"s_mov_b32 s{dst+3}, 0x00020000")


def interleave(mfmas, fillers):
    out = []
    nm, nf = len(mfmas), len(fillers)
    fi = 0
    for i, m in enumerate(mfmas):
        out.append(m)
        tgt = ((i + 1) * nf + nm - 1) // nm if nm else nf
        while fi < min(tgt, nf):
            out.extend(fillers[fi])
            fi += 1
    while fi < nf:
        out.extend(fillers[fi])
        fi += 1
    return out


class Seg:
    def __init__(self, srd, gstride, nf, kind, colreg=None, img=None):
        self.img = img
        self.srd = srd
        self.gstride = gstride
        self.nf = nf
        self.kind = kind
        self.colreg = colreg


class Gemm:
    def __init__(self, a, va, TT, WT, WK, WF, segs, BK, NS, K, xsrd, xstride, s_tok0,
                 stats=False, colsum=False, sregs=None, tag="g", lds_base=0):
        self.a, self.va = a, va
        self.lds_base = lds_base
        self.TT, self.WT, self.WK, self.WF = TT, WT, WK, WF
        assert WT * WK * WF == 4
        self.segs, self.BK, self.NS, self.K = segs, BK, NS, K
        self.xsrd, self.xstride, self.s_tok0 = xsrd, xstride, s_tok0
        self.stats, self.colsum = stats, colsum
        self.tag = tag
        self.TW = TT // WT
        self.TB = self.TW // 16
        self.RB = BK * 2
        self.CPR = self.RB // 16
        self.nst = K // BK
        self.SPS = BK // 32
        self.SPW = self.SPS // WK
        assert self.SPW % 2 == 0
        self.xbytes = TT * self.RB
        off = self.xbytes
        for s in segs:
            s.lstride = 40 if s.kind == 'lin40' else s.nf * 2
            nb = BK * s.lstride
            s.ninstr = (nb + 4095) // 4096 * 4
            s.lbase = off
            off += s.ninstr * 1024
            s.FBW = (s.nf // WF) // 16
        self.stage_bytes = off
        self.nx = self.xbytes // 1024
        assert self.nx % 4 == 0
        self.ndma = self.nx // 4 + sum(s.ninstr // 4 for s in segs)
        self.lds_bytes = self.stage_bytes * NS
        (self.s_woff, self.s_kx, self.s_kw, self.s_wave, self.s_cnt, self.s_slot, self.s_kidx, self.s_dl) = sregs

    def split(self):
        a, va = self.a, self.va
        self.tmp = [va() for _ in range(6)]
        t = self.tmp
        a(f"v_lshrrev_b32 v{t[0]}, 6, v0")
        a("s_nop 0")
        a(f"v_readfirstlane_b32 s{self.s_wave}, v{t[0]}")
        a("s_nop 3")
        a(f"s_cmp_ge_u32 s{self.s_wave}, 4")
        a(f"s_cbranch_scc1 {self.tag}_loader")

    def loader(self, s_rot=None, prefetch=None, cont=None, early=None):
        a = self.a
        va = VAlloc(1)
        t = [va() for _ in range(6)]
        a.label(f"{self.tag}_loader")
        a(f"v_and_b32 v0, 255, v0")
        a(f"s_and_b32 s{self.s_woff}, s{self.s_wave}, 3")
        a(f"s_lshl_b32 s{self.s_woff}, s{self.s_woff}, 10")
        if self.lds_base:
            a(f"s_add_u32 s{self.s_woff}, s{self.s_woff}, {self.lds_base}")
        if early is not None:
            early(va, t)
        lg = {8: 3, 16: 4}[self.CPR]
        v_dx = va()
        a(f"v_lshrrev_b32 v{t[1]}, {lg}, v0")
        a(f"v_and_b32 v{t[2]}, {self.CPR-1}, v0")
        if self.CPR == 8:
            a(f"v_bfe_u32 v{t[3]}, v{t[1]}, 1, 3")
        else:
            a(f"v_and_b32 v{t[3]}, 15, v{t[1]}")
        a(f"v_xor_b32 v{t[2]}, v{t[2]}, v{t[3]}")
        a(f"v_add_u32 v{t[1]}, s{self.s_tok0}, v{t[1]}")
        a(f"v_mul_u32_u24 v{t[1]}, {self.xstride}, v{t[1]}")
        a(f"v_lshl_add_u32 v{v_dx}, v{t[2]}, 4, v{t[1]}")
        xrows = 256 // self.CPR
        done = {}
        for s in self.segs:
            key = (s.kind, s.nf)
            if key in done:
                s.v_d = done[key]
                continue
            s.v_d = []
            cprw = s.lstride // 16 if s.kind != 'lin40' else None
            for j in range(s.ninstr // 4):
                if s.kind == 'lin40' or s.img:
                    if j == 0:
                        r = va()
                        a(f"v_lshlrev_b32 v{r}, 4, v0")
                    s.v_d.append(r)
                    continue
                r = va()
                s.v_d.append(r)
                a(f"v_add_u32 v{t[0]}, {j*256}, v0")
                magic = {10: 52429, 12: 43691}[cprw]
                a(f"v_mul_u32_u24 v{t[1]}, {magic}, v{t[0]}")
                a(f"v_lshrrev_b32 v{t[1]}, 19, v{t[1]}")
                a(f"v_mul_u32_u24 v{t[2]}, {cprw}, v{t[1]}")
                a(f"v_sub_u32 v{t[2]}, v{t[0]}, v{t[2]}")
                a(f"v_and_b32 v{t[3]}, 0xfffffff3, v{t[1]}")
                a(f"v_bfe_u32 v{t[4]}, v{t[1]}, 2, 1")
                if s.kind == 'p192':
                    a(f"v_lshlrev_b32 v{t[5]}, 1, v{t[4]}")
                    a(f"v_xor_b32 v{t[2]}, v{t[2]}, v{t[5]}")
                a(f"v_lshl_or_b32 v{t[3]}, v{t[4]}, 3, v{t[3]}")
                a(f"v_bfe_u32 v{t[4]}, v{t[1]}, 3, 1")
                a(f"v_lshl_or_b32 v{t[3]}, v{t[4]}, 2, v{t[3]}")
                a(f"v_mul_u32_u24 v{t[3]}, {s.gstride}, v{t[3]}")
                a(f"v_lshl_add_u32 v{r}, v{t[2]}, 4, v{t[3]}")
                if s.colreg is not None:
                    a(f"v_add_u32 v{r}, s{s.colreg}, v{r}")
            done[key] = s.v_d
        if HACK_LIN and self.tag in ("k3", "k5", "k4"):
            a(f"s_lshr_b32 s{self.s_dl}, s{self.s_tok0}, {({64:6,128:7})[self.TT]}")
            a(f"s_mul_i32 s{self.s_dl}, s{self.s_dl}, {self.nst*self.xbytes}")
            a(f"v_lshlrev_b32 v{v_dx}, 4, v0")
            a(f"v_add_u32 v{v_dx}, s{self.s_dl}, v{v_dx}")
            s0 = self.segs[0]
            nb = self.BK * s0.lstride
            a(f"s_mul_i32 s{self.s_dl}, s{S_T0}, {self.nst*nb}")
            for j, r in enumerate(s0.v_d):
                a(f"v_lshlrev_b32 v{r}, 4, v0")
                a(f"v_add_u32 v{r}, {j*4096}, v{r}")
                a(f"v_add_u32 v{r}, s{self.s_dl}, v{r}")
        if s_rot is None:
            a(f"s_mov_b32 s{self.s_kidx}, 0")
        else:
            a(f"s_mov_b32 s{self.s_kidx}, s{s_rot}")
        a(f"s_mov_b32 s{self.s_slot}, s{self.s_woff}")
        gs = self.segs[0].gstride

        def issue():
            hk = HACK_LIN and self.tag in ("k3", "k5", "k4")
            a(f"s_mul_i32 s{self.s_kx}, s{self.s_kidx}, {self.xbytes if hk else self.BK*2}")
            if self.segs[0].img:
                a(f"s_mul_i32 s{self.s_kw}, s{self.s_kidx}, {self.segs[0].img[1]}")
                a(f"s_add_u32 s{self.s_kw}, s{self.s_kw}, s{self.segs[0].img[0]}")
            else:
                a(f"s_mul_i32 s{self.s_kw}, s{self.s_kidx}, {self.BK*self.segs[0].lstride if hk else self.BK*gs}")
            for j in range(self.nx // 4):
                a(f"s_add_u32 m0, s{self.s_slot}, {j*4096}")
                if j:
                    a(f"s_add_u32 s{self.s_kx}, s{self.s_kx}, {4096 if hk else xrows*self.xstride}")
                else:
                    a("s_nop 0")
                if self.tag in NOX:
                    a(f"buffer_load_dwordx4 v{v_dx}, {sr(self.xsrd,4)}, 0 offen lds")
                else:
                    a(f"buffer_load_dwordx4 v{v_dx}, {sr(self.xsrd,4)}, s{self.s_kx} offen lds")
            for s in self.segs:
                assert s.gstride == gs
                for j, r in enumerate(s.v_d):
                    a(f"s_add_u32 m0, s{self.s_slot}, {s.lbase + j*4096}")
                    if s.kind == 'lin40' or s.img:
                        a(f"s_add_u32 s{self.s_dl}, s{self.s_kw}, {j*4096 + (s.img[2] if s.img else 0)}")
                        if self.tag in NOW:
                            a(f"buffer_load_dwordx4 v{r}, {sr(s.srd,4)}, 0 offen lds")
                        else:
                            a(f"buffer_load_dwordx4 v{r}, {sr(s.srd,4)}, s{self.s_dl} offen lds")
                    else:
                        a("s_nop 0")
                        a(f"buffer_load_dwordx4 v{r}, {sr(s.srd,4)}, s{self.s_kw} offen lds")
            a(f"s_add_u32 s{self.s_kidx}, s{self.s_kidx}, 1")
            a(f"s_cmp_eq_u32 s{self.s_kidx}, {self.nst}")
            a(f"s_cselect_b32 s{self.s_kidx}, 0, s{self.s_kidx}")
            a(f"s_add_u32 s{self.s_slot}, s{self.s_slot}, {self.stage_bytes}")
            a(f"s_cmp_ge_u32 s{self.s_slot}, {self.lds_bytes + self.lds_base}")
            a(f"s_cselect_b32 s{self.s_slot}, s{self.s_woff}, s{self.s_slot}")

        l1, l2, l3 = f"{self.tag}_ld1", f"{self.tag}_ld2", f"{self.tag}_ld3"
        v_st = va()
        def lstamp(idx_s=None, idx=None):
            if INSTR:
                a("s_memtime s[98:99]")
                a("s_waitcnt lgkmcnt(0)")
                a("s_sub_u32 s98, s98, s80")
                if idx_s is not None:
                    a(f"s_mov_b32 m0, s{idx_s}")
                    a("s_nop 0")
                    a(f"v_writelane_b32 v{v_st}, s98, m0")
                else:
                    a(f"v_writelane_b32 v{v_st}, s98, {idx}")
        lstamp(idx=0)
        a(f"s_mov_b32 s{self.s_cnt}, 0")
        a(f"s_branch {l2}")
        a.label(l1)
        a(f"s_waitcnt vmcnt({(self.NS-2)*self.ndma})")
        lstamp(idx_s=self.s_cnt)
        a("s_barrier")
        a.label(l2)
        a.skip_dma = self.tag in NOLOAD
        issue()
        a.skip_dma = False
        a(f"s_add_u32 s{self.s_cnt}, s{self.s_cnt}, 1")
        a(f"s_cmp_lg_u32 s{self.s_cnt}, 2")
        a(f"s_cbranch_scc1 {l3}")
        a(f"s_waitcnt vmcnt({self.ndma})")
        lstamp(idx=1)
        a("s_barrier")
        a.label(l3)
        a(f"s_cmp_lt_u32 s{self.s_cnt}, {self.NS}")
        a(f"s_cbranch_scc1 {l2}")
        a(f"s_cmp_lt_u32 s{self.s_cnt}, {self.nst}")
        a(f"s_cbranch_scc1 {l1}")
        for i in range(self.NS - 1):
            a(f"s_waitcnt vmcnt({(self.NS-2-i)*self.ndma})")
            lstamp(idx=self.nst + i)
            a("s_barrier")
        a("s_barrier")
        if INSTR:
            lab = a.newlabel("ls")
            a(f"s_cmp_lg_u32 s2, {INSTR_WG if self.tag != 'k1kv' else 4}")
            a(f"s_cbranch_scc1 {lab}")
            a(f"s_cmp_lg_u32 s{self.s_wave}, 4")
            a(f"s_cbranch_scc1 {lab}")
            make_srd(a, 92, P_DBG, 0, 256)
            a(f"v_lshlrev_b32 v{t[0]}, 2, v0")
            a(f"buffer_store_dword v{v_st}, v{t[0]}, s[92:95], 0 offen offset:64")
            a("s_waitcnt vmcnt(0)")
            a.label(lab)
        if cont is None:
            a("s_endpgm")
        else:
            cont(va, t)
        self.loader_vgprs = va.n

    def setup(self):
        a, va = self.a, self.va
        t = self.tmp
        lane, i16, g, wv = va(), va(), va(), va()
        self.v_lane, self.v_i16, self.v_g, self.v_wave = lane, i16, g, wv
        a(f"v_and_b32 v{lane}, 63, v0")
        a(f"v_lshrrev_b32 v{wv}, 6, v0")
        a(f"v_and_b32 v{i16}, 15, v0")
        a(f"v_bfe_u32 v{g}, v0, 4, 2")
        wt, wo = va(), va()
        self.v_wt, self.v_wo = wt, wo
        a(f"v_and_b32 v{wt}, {self.WT-1}, v{wv}")
        sh = {1: 0, 2: 1, 4: 2}[self.WT]
        a(f"v_lshrrev_b32 v{wo}, {sh}, v{wv}")
        self.addr_regs = []
        done = {}
        for s in self.segs:
            key = (s.kind, s.nf)
            if key in done:
                s.v_a = done[key]
                continue
            if s.kind == 'lin40':
                a(f"v_lshlrev_b32 v{t[0]}, 3, v{g}")
            else:
                a(f"v_lshrrev_b32 v{t[0]}, 1, v{g}")
                a(f"v_lshlrev_b32 v{t[0]}, 4, v{t[0]}")
                a(f"v_and_b32 v{t[1]}, 1, v{g}")
                a(f"v_lshl_add_u32 v{t[0]}, v{t[1]}, 2, v{t[0]}")
            a(f"v_lshrrev_b32 v{t[1]}, 2, v{i16}")
            a(f"v_add_u32 v{t[0]}, v{t[0]}, v{t[1]}")
            if self.WK > 1:
                a(f"v_mov_b32 v{t[1]}, {self.SPW*32}")
                a(f"v_mad_u32_u24 v{t[0]}, v{wo}, v{t[1]}, v{t[0]}")
            a(f"v_mul_u32_u24 v{t[0]}, {s.lstride}, v{t[0]}")
            a(f"v_and_b32 v{t[1]}, 3, v{i16}")
            a(f"v_lshl_add_u32 v{t[0]}, v{t[1]}, 3, v{t[0]}")
            if s.kind == 'p192':
                regs = []
                for b in range(s.FBW):
                    r = va()
                    regs.append(r)
                    if self.WF > 1:
                        a(f"v_mul_u32_u24 v{t[1]}, {s.FBW}, v{wo}")
                        a(f"v_add_u32 v{t[1]}, {b}, v{t[1]}")
                    else:
                        a(f"v_mov_b32 v{t[1]}, {b}")
                    a(f"v_and_b32 v{t[2]}, 1, v{g}")
                    a(f"v_xor_b32 v{t[1]}, v{t[1]}, v{t[2]}")
                    a(f"v_lshl_add_u32 v{r}, v{t[1]}, 5, v{t[0]}")
                s.v_a = regs
                self.addr_regs += regs
            else:
                r = va()
                if self.WF > 1:
                    a(f"v_mul_u32_u24 v{t[1]}, {s.FBW*32}, v{wo}")
                    a(f"v_add_u32 v{r}, v{t[0]}, v{t[1]}")
                else:
                    a(f"v_mov_b32 v{r}, v{t[0]}")
                s.v_a = [r]
                self.addr_regs.append(r)
            done[key] = s.v_a
        self.v_b = []
        a(f"v_mul_u32_u24 v{t[0]}, {self.TW}, v{wt}")
        a(f"v_add_u32 v{t[0]}, v{t[0]}, v{i16}")
        if self.CPR == 8:
            a(f"v_bfe_u32 v{t[1]}, v{t[0]}, 1, 3")
        else:
            a(f"v_and_b32 v{t[1]}, 15, v{t[0]}")
        a(f"v_mul_u32_u24 v{t[0]}, {self.RB}, v{t[0]}")
        for ls in range(self.SPW):
            r = va()
            self.v_b.append(r)
            self.addr_regs.append(r)
            if self.WK > 1:
                a(f"v_mul_u32_u24 v{t[2]}, {4*self.SPW}, v{wo}")
                a(f"v_add3_u32 v{t[2]}, v{t[2]}, v{g}, {4*ls}")
            else:
                a(f"v_add_u32 v{t[2]}, {4*ls}, v{g}")
            a(f"v_xor_b32 v{t[2]}, v{t[2]}, v{t[1]}")
            a(f"v_lshl_add_u32 v{r}, v{t[2]}, 4, v{t[0]}")
        if self.lds_base:
            for r in self.addr_regs:
                a(f"v_add_u32 v{r}, {self.lds_base}, v{r}")
        self.nA = sum(s.FBW for s in self.segs)
        self.fa = [va(4 * self.nA, 4) for _ in range(2)]
        self.fb = [va(4 * self.TB, 4) for _ in range(2)]
        self.acc = [[va(4, 4) for _ in range(self.nA)] for _ in range(self.TB)]
        accs = [r for row in self.acc for r in row]
        if self.stats or self.colsum:
            self.v_ones = va(4, 4)
            for i in range(4):
                a(f"v_mov_b32 v{self.v_ones+i}, 0x3f803f80")
        if self.stats:
            self.acc_sum = [va(4, 4) for _ in range(self.TB)]
            self.acc_sq = [va(4, 4) for _ in range(self.TB)]
            accs += self.acc_sum + self.acc_sq
        if self.colsum:
            self.acc_cs = [va(4, 4) for _ in range(self.nA)]
            accs += self.acc_cs
        for r in accs:
            for i in range(4):
                a(f"v_mov_b32 v{r+i}, 0")

    def read_units(self, ls, buf):
        units = []
        fi = 0
        for s in self.segs:
            for b in range(s.FBW):
                for e in range(2):
                    if s.kind == 'lin40':
                        off = s.lbase + (ls * 32 + 4 * e) * 40 + b * 32
                        ar = s.v_a[0]
                    elif s.kind == 'p192':
                        off = s.lbase + (ls * 32 + 8 * e) * s.lstride
                        ar = s.v_a[b]
                    else:
                        off = s.lbase + (ls * 32 + 8 * e) * s.lstride + b * 32
                        ar = s.v_a[0]
                    assert off < 65536
                    d = self.fa[buf] + 4 * fi + 2 * e
                    units.append([f"ds_read_b64_tr_b16 {vr(d,2)}, v{ar} offset:{off}"])
                fi += 1
        for tb in range(self.TB):
            off = tb * 16 * self.RB
            d = self.fb[buf] + 4 * tb
            units.append([f"ds_read_b128 {vr(d,4)}, v{self.v_b[ls]} offset:{off}"])
        return units[-self.TB:] + units[:-self.TB]

    def mfmas(self, buf):
        out = []
        for fi in range(self.nA):
            A = vr(self.fa[buf] + 4 * fi, 4)
            for tb in range(self.TB):
                B = vr(self.fb[buf] + 4 * tb, 4)
                c = vr(self.acc[tb][fi], 4)
                out.append(f"v_mfma_f32_16x16x32_bf16 {c}, {A}, {B}, {c}")
            if self.colsum:
                c = vr(self.acc_cs[fi], 4)
                out.append(f"v_mfma_f32_16x16x32_bf16 {c}, {A}, {vr(self.v_ones,4)}, {c}")
        if self.stats:
            for tb in range(self.TB):
                B = vr(self.fb[buf] + 4 * tb, 4)
                c = vr(self.acc_sum[tb], 4)
                out.append(f"v_mfma_f32_16x16x32_bf16 {c}, {vr(self.v_ones,4)}, {B}, {c}")
                c = vr(self.acc_sq[tb], 4)
                out.append(f"v_mfma_f32_16x16x32_bf16 {c}, {B}, {B}, {c}")
        return out

    def mainloop(self):
        a = self.a
        a(f"s_mov_b32 s{self.s_cnt}, {self.nst}")
        a(f"s_mov_b32 s{self.s_slot}, 0")
        a("s_barrier")
        for u in self.read_units(0, 0):
            for l in u:
                a(l)
        lp = f"{self.tag}_loop"
        a.label(lp)
        for ls in range(self.SPW):
            buf = ls & 1
            a("s_waitcnt lgkmcnt(0)")
            if ls == self.SPW - 1:
                a(f"s_mov_b32 s{self.s_dl}, s{self.s_slot}")
                a(f"s_add_u32 s{self.s_slot}, s{self.s_slot}, {self.stage_bytes}")
                a(f"s_cmp_ge_u32 s{self.s_slot}, {self.lds_bytes}")
                a(f"s_cselect_b32 s{self.s_slot}, 0, s{self.s_slot}")
                a(f"s_sub_u32 s{self.s_dl}, s{self.s_slot}, s{self.s_dl}")
                a("s_barrier")
                for r in self.addr_regs:
                    a(f"v_add_u32 v{r}, s{self.s_dl}, v{r}")
                fill = self.read_units(0, buf ^ 1)
            else:
                fill = self.read_units(ls + 1, buf ^ 1)
            if self.tag in NOCOMP:
                continue
            for l in interleave(self.mfmas(buf), fill):
                a(l)
        a(f"s_sub_u32 s{self.s_cnt}, s{self.s_cnt}, 1")
        a(f"s_cmp_lg_u32 s{self.s_cnt}, 0")
        a(f"s_cbranch_scc1 {lp}")
        a("s_waitcnt vmcnt(0) lgkmcnt(0)")


P_X, P_WQ, P_WK, P_WV, P_WO, P_BX, P_WG, P_WU, P_WD, P_OUT, P_DBG, P_WS = [16 + 2 * i for i in range(12)]
SRD0, SRD1, SRD2, SRD3, SRD4, SRD5 = 40, 44, 48, 52, 56, 60
S_WOFF, S_KX, S_KW, S_WAVE = 64, 65, 66, 67
S_TOK0, S_COL, S_T0, S_T1, S_T2 = 68, 69, 70, 71, 72
S_CNT_, S_SLOT_, S_KIDX, S_DL, S_ROT = 76, 77, 78, 79, 73
GS = (S_WOFF, S_KX, S_KW, S_WAVE, S_CNT_, S_SLOT_, S_KIDX, S_DL)


def load_kernargs(a):
    if INSTR:
        for i in range(84, 98):
            a(f"s_mov_b32 s{i}, 0")
        a("s_memtime s[80:81]")
        a("s_memrealtime s[82:83]")
    a("s_load_dwordx16 s[16:31], s[0:1], 0")
    a("s_load_dwordx8 s[32:39], s[0:1], 64")


def stamp(a, idx):
    if INSTR:
        a("s_memtime s[98:99]")
        a("s_waitcnt lgkmcnt(0)")
        a(f"s_sub_u32 s{84+idx}, s98, s80")


def stamp_end(a, n, wg=None):
    if INSTR:
        lab = a.newlabel("se")
        a("s_mov_b64 exec, -1")
        a("s_waitcnt vmcnt(0)")
        a("s_memtime s[98:99]")
        a("s_memrealtime s[100:101]")
        a("s_waitcnt lgkmcnt(0)")
        a(f"s_sub_u32 s{84+n}, s98, s80")
        a(f"s_sub_u32 s{85+n}, s100, s82")
        lab2 = a.newlabel("se")
        a(f"s_cmp_lg_u32 s{S_WAVE}, 0")
        a(f"s_cbranch_scc1 {lab2}")
        make_srd(a, 40, P_WS, WS_TL + KIDX[0] * 4096, 4096)
        a("s_getreg_b32 s98, hwreg(HW_REG_XCC_ID)")
        a("s_and_b32 s98, s98, 7")
        a("s_andn2_b32 s100, s100, 7")
        a("s_or_b32 s100, s100, s98")
        a("v_mov_b32 v2, s82")
        a("v_mov_b32 v3, s100")
        a("s_lshl_b32 s98, s2, 3")
        a("v_mov_b32 v1, s98")
        a("buffer_store_dwordx2 v[2:3], v1, s[40:43], 0 offen")
        a.label(lab2)
        a(f"s_cmp_lg_u32 s2, {INSTR_WG if wg is None else wg}")
        a(f"s_cbranch_scc1 {lab}")
        a(f"s_cmp_lg_u32 s{S_WAVE}, 0")
        a(f"s_cbranch_scc1 {lab}")
        make_srd(a, 40, P_DBG, 0, 256)
        a("v_mov_b32 v1, 0")
        for i in range(14):
            a(f"v_mov_b32 v2, s{84+i}")
            a(f"buffer_store_dword v2, v1, s[40:43], 0 offen offset:{4*i}")
        a.label(lab)
INSTR_WG = int(os.environ.get("INSTR_WG", "100"))


def round_bf16(a, dst, src):
    a(f"v_cvt_pk_bf16_f32 v{dst}, v{src}, v{src}")
    a(f"v_lshlrev_b32 v{dst}, 16, v{dst}")


def ln_stats(a, v_sum, v_sq, v_mean, v_rstd, t):
    a(f"v_mul_f32 v{v_mean}, {f32(1.0/D)}, v{v_sum}")
    a(f"v_mul_f32 v{t[0]}, {f32(1.0/D)}, v{v_sq}")
    a(f"v_fma_f32 v{t[0]}, -v{v_mean}, v{v_mean}, v{t[0]}")
    a(f"v_max_f32 v{t[0]}, 0, v{t[0]}")
    round_bf16(a, v_mean, v_mean)
    round_bf16(a, t[0], t[0])
    a(f"v_add_f32 v{t[0]}, {f32(1e-5)}, v{t[0]}")
    round_bf16(a, t[0], t[0])
    a(f"v_sqrt_f32 v{t[0]}, v{t[0]}")
    a("s_nop 0")
    round_bf16(a, t[0], t[0])
    a(f"v_rcp_f32 v{v_rstd}, v{t[0]}")
    a("s_nop 0")


def gram_diag(a, g, acc_sq, dst):
    t = g.tmp
    a(f"v_and_b32 v{t[0]}, 3, v{g.v_i16}")
    a(f"v_mov_b32 v{t[1]}, v{acc_sq}")
    for r in range(1, 4):
        a(f"v_cmp_eq_u32 vcc, {r}, v{t[0]}")
        a("s_nop 1")
        a(f"v_cndmask_b32 v{t[1]}, v{t[1]}, v{acc_sq+r}, vcc")
    a(f"v_lshrrev_b32 v{t[0]}, 2, v{g.v_i16}")
    a(f"v_lshl_add_u32 v{t[0]}, v{t[0]}, 4, v{g.v_i16}")
    a(f"v_lshlrev_b32 v{t[0]}, 2, v{t[0]}")
    a(f"ds_bpermute_b32 v{dst}, v{t[0]}, v{t[1]}")
    a("s_waitcnt lgkmcnt(0)")


def xlane_add(a, v, v_lane, t0, t1, masks, op="v_add_f32"):
    for m in masks:
        a(f"v_xor_b32 v{t0}, {m}, v{v_lane}")
        a(f"v_lshlrev_b32 v{t0}, 2, v{t0}")
        a(f"ds_bpermute_b32 v{t1}, v{t0}, v{v}")
        a("s_waitcnt lgkmcnt(0)")
        a(f"{op} v{v}, v{v}, v{t1}")


QSCALE = (DH ** -0.5) * 1.4426950408889634


def prefetch_lin(a, v_tid, v_t, v_dummy, srd, s_base, s_j, nlines, s_tmp, nthreads=256):
    a(f"s_mul_i32 s{s_tmp}, s{s_j}, {nlines*128}")
    if s_base is not None:
        a(f"s_add_u32 s{s_tmp}, s{s_tmp}, s{s_base}")
    a(f"v_lshlrev_b32 v{v_t}, 7, v{v_tid}")
    n = (nlines + nthreads - 1) // nthreads
    for i in range(n):
        if i:
            a(f"s_add_u32 s{s_tmp}, s{s_tmp}, {nthreads*128}")
        a(f"buffer_load_dword v{v_dummy}, v{v_t}, {sr(srd,4)}, s{s_tmp} offen")

S_J, S_XB, S_IMG = 90, 91, 96

K1_NKV, K1_NPF, K1_NCS = 32, 224, 0
K1_NWG = K1_NKV + K1_NPF + K1_NCS


def gen_k1(a):
    name = "k1_kv_kernel"
    kernel_begin(a, name)
    a(f"s_cmp_ge_u32 s2, {K1_NWG}")
    a("s_cbranch_scc1 k1_end")
    load_kernargs(a)
    a("s_waitcnt lgkmcnt(0)")
    a(f"s_cmp_lt_u32 s2, {K1_NKV}")
    a("s_cbranch_scc1 k1_kv")
    maxv = 8
    lds = 0
    va = VAlloc(1)
    lt = [va() for _ in range(6)]
    v_l = va()
    S_W, S_U, S_SRC, S_DST, S_RW = S_J, S_T0, S_T1, S_KW, S_ROT
    a(f"v_lshrrev_b32 v{lt[0]}, 6, v0")
    a(f"v_and_b32 v{v_l}, 63, v0")
    a(f"v_readfirstlane_b32 s{S_WAVE}, v{lt[0]}")
    a(f"s_sub_u32 s{S_W}, s2, {K1_NKV}")
    a(f"s_mov_b32 s{SRD0+3}, 0x00020000")
    make_srd(a, SRD3, P_WS, WS_IMG, IMG_SZ)
    for _ in range(int(os.environ.get("WSLEEP", "0"))):
        a("s_sleep 16")
    a(f"s_cmp_ge_u32 s{S_WAVE}, 4")
    a("s_cbranch_scc1 k1_rp0")
    a(f"s_lshr_b32 s{S_U}, s{S_W}, 3")
    a(f"s_mul_i32 s{S_U}, s{S_U}, {232*128}")
    make_srd(a, SRD1, P_WQ, 0, D * D * 2)
    a(f"v_lshlrev_b32 v{lt[1]}, 7, v0")
    v_dm = va()
    a(f"buffer_load_dword v{v_dm}, v{lt[1]}, {sr(SRD1,4)}, s{S_U} offen")
    a(f"s_cmp_lt_u32 s{S_W}, 192")
    a("s_cbranch_scc1 k1_cs")
    a(f"s_lshl_b32 s{S_RW}, s{S_W}, 2")
    a(f"s_add_u32 s{S_RW}, s{S_RW}, s{S_WAVE}")
    a(f"s_add_u32 s{S_RW}, s{S_RW}, {896 - 768}")
    a("s_branch k1_rp1")
    a.label("k1_rp0")
    a(f"s_lshl_b32 s{S_RW}, s{S_W}, 2")
    a(f"s_add_u32 s{S_RW}, s{S_RW}, s{S_WAVE}")
    a(f"s_sub_u32 s{S_RW}, s{S_RW}, 4")
    a.label("k1_rp1")
    pa = [va() for _ in range(5)]
    pb = [va() for _ in range(3)]

    def gather(regs, cprw, magic, stride):
        for i, r in enumerate(regs):
            a(f"v_add_u32 v{lt[0]}, {i*64}, v{v_l}")
            a(f"v_mul_u32_u24 v{lt[1]}, {magic}, v{lt[0]}")
            a(f"v_lshrrev_b32 v{lt[1]}, 19, v{lt[1]}")
            a(f"v_mul_u32_u24 v{lt[2]}, {cprw}, v{lt[1]}")
            a(f"v_sub_u32 v{lt[2]}, v{lt[0]}, v{lt[2]}")
            a(f"v_and_b32 v{lt[3]}, 0xfffffff3, v{lt[1]}")
            a(f"v_bfe_u32 v{lt[4]}, v{lt[1]}, 2, 1")
            if cprw == 12:
                a(f"v_lshlrev_b32 v{lt[5]}, 1, v{lt[4]}")
                a(f"v_xor_b32 v{lt[2]}, v{lt[2]}, v{lt[5]}")
            a(f"v_lshl_or_b32 v{lt[3]}, v{lt[4]}, 3, v{lt[3]}")
            a(f"v_bfe_u32 v{lt[4]}, v{lt[1]}, 3, 1")
            a(f"v_lshl_or_b32 v{lt[3]}, v{lt[4]}, 2, v{lt[3]}")
            a(f"v_mul_u32_u24 v{lt[3]}, {stride}, v{lt[3]}")
            a(f"v_lshl_add_u32 v{r}, v{lt[2]}, 4, v{lt[3]}")

    bufB = [va(12, 4) for _ in range(2)]
    bufA = va(20, 4)
    v_l16 = va()

    def loadsB(buf):
        a(f"s_mul_i32 s{S_SRC}, s{S_U}, 52429")
        a(f"s_lshr_b32 s{S_SRC}, s{S_SRC}, 22")
        a(f"s_mul_i32 s{S_DST}, s{S_SRC}, 80")
        a(f"s_sub_u32 s{S_T2}, s{S_U}, s{S_DST}")
        a(f"s_mul_i32 s{S_SRC}, s{S_SRC}, 192")
        a(f"s_lshr_b32 s{S_DST}, s{S_T2}, 3")
        a(f"s_lshl_b32 s{S_DST}, s{S_DST}, 2")
        a(f"s_and_b32 s{S_KX}, s{S_T2}, 3")
        a(f"s_add_u32 s{S_DST}, s{S_DST}, s{S_KX}")
        a(f"s_mul_i32 s{S_DST}, s{S_DST}, {16*F*2}")
        a(f"s_add_u32 s{S_SRC}, s{S_SRC}, s{S_DST}")
        a(f"s_bitcmp1_b32 s{S_T2}, 2")
        a(f"s_cselect_b32 s{SRD0}, s{P_WU}, s{P_WG}")
        a(f"s_cselect_b32 s{SRD0+1}, s{P_WU+1}, s{P_WG+1}")
        a(f"s_mov_b32 s{SRD0+2}, {F*D*2}")
        for i in range(3):
            a(f"buffer_load_dwordx4 {vr(buf+4*i,4)}, v{pb[i]}, {sr(SRD0,4)}, s{S_SRC} offen")

    def storesB(buf):
        a(f"s_mul_i32 s{S_DST}, s{S_U}, 3072")
        a(f"s_add_u32 s{S_DST}, s{S_DST}, {IMG_GU}")
        for i in range(3):
            a(f"buffer_store_dwordx4 {vr(buf+4*i,4)}, v{v_l16}, {sr(SRD3,4)}, s{S_DST} offen offset:{i*1024}")

    gather(pb, 12, 43691, F * 2)
    a(f"v_lshlrev_b32 v{v_l16}, 4, v{v_l}")
    a(f"s_mov_b32 s{S_U}, s{S_RW}")
    loadsB(bufB[0])
    a(f"s_cmp_lt_u32 s{S_RW}, 544")
    a("s_cbranch_scc1 k1_rpa")
    a(f"s_add_u32 s{S_U}, s{S_RW}, {1024 - 544}")
    a(f"s_cmp_ge_u32 s{S_U}, 1280")
    a("s_cbranch_scc1 k1_rpe")
    loadsB(bufB[1])
    a("s_waitcnt vmcnt(0)")
    storesB(bufB[1])
    a("s_branch k1_rpe")
    a.label("k1_rpa")
    gather(pa, 10, 52429, D * 2)
    l1, l2 = a.newlabel("ra"), a.newlabel("ra")
    a(f"s_cmp_ge_u32 s{S_RW}, 160")
    a(f"s_cbranch_scc1 {l1}")
    a(f"s_mul_i32 s{S_SRC}, s{S_RW}, 3277")
    a(f"s_lshr_b32 s{S_SRC}, s{S_SRC}, 16")
    a(f"s_mul_i32 s{S_DST}, s{S_SRC}, 20")
    a(f"s_sub_u32 s{S_DST}, s{S_RW}, s{S_DST}")
    a(f"s_mov_b32 s{SRD0}, s{P_WO}")
    a(f"s_mov_b32 s{SRD0+1}, s{P_WO+1}")
    a(f"s_mov_b32 s{SRD0+2}, {D*D*2}")
    a(f"s_branch {l2}")
    a.label(l1)
    a(f"s_sub_u32 s{S_U}, s{S_RW}, 160")
    a(f"s_mul_i32 s{S_SRC}, s{S_U}, 1366")
    a(f"s_lshr_b32 s{S_SRC}, s{S_SRC}, 16")
    a(f"s_mul_i32 s{S_DST}, s{S_SRC}, 48")
    a(f"s_sub_u32 s{S_DST}, s{S_U}, s{S_DST}")
    a(f"s_mov_b32 s{SRD0}, s{P_WD}")
    a(f"s_mov_b32 s{SRD0+1}, s{P_WD+1}")
    a(f"s_mov_b32 s{SRD0+2}, {F*D*2}")
    a.label(l2)
    a(f"s_mul_i32 s{S_SRC}, s{S_SRC}, 160")
    a(f"s_mul_i32 s{S_DST}, s{S_DST}, {32*D*2}")
    a(f"s_add_u32 s{S_SRC}, s{S_SRC}, s{S_DST}")
    for i in range(5):
        a(f"buffer_load_dwordx4 {vr(bufA+4*i,4)}, v{pa[i]}, {sr(SRD0,4)}, s{S_SRC} offen")
    a(f"s_mul_i32 s{S_DST}, s{S_RW}, 5120")
    a("s_waitcnt vmcnt(0)")
    for i in range(5):
        if i == 4:
            a(f"s_add_u32 s{S_DST}, s{S_DST}, 4096")
        a(f"buffer_store_dwordx4 {vr(bufA+4*i,4)}, v{v_l16}, {sr(SRD3,4)}, s{S_DST} offen offset:{(i%4)*1024}")
    a.label("k1_rpe")
    a("s_waitcnt vmcnt(0)")
    a(f"s_mov_b32 s{S_U}, s{S_RW}")
    storesB(bufB[0])
    if INSTR:
        a("s_waitcnt vmcnt(0)")
        a("s_memrealtime s[100:101]")
        a("s_waitcnt lgkmcnt(0)")
        a(f"s_cmp_lg_u32 s{S_WAVE}, 4")
        a("s_cbranch_scc1 k1_end")
        make_srd(a, 40, P_WS, WS_TL, 4096)
        a("v_mov_b32 v2, s82")
        a("v_mov_b32 v3, s100")
        a("s_lshl_b32 s98, s2, 3")
        a("v_mov_b32 v1, s98")
        a("buffer_store_dwordx2 v[2:3], v1, s[40:43], 0 offen")
    a.label("k1_end")
    a("s_endpgm")

    a.label("k1_cs")
    csb = va(20, 4)
    cacc = va(8, 4)
    v_ca, v_cw = va(), va()
    a(f"s_mul_i32 s{S_U}, s{S_W}, 1366")
    a(f"s_lshr_b32 s{S_U}, s{S_U}, 16")
    a(f"s_mul_i32 s{S_SRC}, s{S_U}, 48")
    a(f"s_sub_u32 s{S_SRC}, s{S_W}, s{S_SRC}")
    a(f"s_cmp_lt_u32 s{S_SRC}, 24")
    a(f"s_cselect_b32 s{SRD0}, s{P_WG}, s{P_WU}")
    a(f"s_cselect_b32 s{SRD0+1}, s{P_WG+1}, s{P_WU+1}")
    a(f"s_mov_b32 s{SRD0+2}, {F*D*2}")
    a(f"s_cselect_b32 s{S_DST}, 0, 24")
    a(f"s_sub_u32 s{S_SRC}, s{S_SRC}, s{S_DST}")
    a(f"s_lshl_b32 s{S_SRC}, s{S_SRC}, 7")
    a(f"s_lshl_b32 s{S_U}, s{S_U}, 2")
    a(f"s_add_u32 s{S_U}, s{S_U}, s{S_WAVE}")
    a(f"s_mul_i32 s{S_U}, s{S_U}, {40*F*2}")
    a(f"s_add_u32 s{S_SRC}, s{S_SRC}, s{S_U}")
    a(f"v_lshrrev_b32 v{lt[0]}, 3, v{v_l}")
    a(f"v_mul_u32_u24 v{lt[0]}, {F*2}, v{lt[0]}")
    a(f"v_and_b32 v{lt[1]}, 7, v{v_l}")
    a(f"v_lshl_add_u32 v{v_ca}, v{lt[1]}, 4, v{lt[0]}")
    for i in range(5):
        a(f"buffer_load_dwordx4 {vr(csb+4*i,4)}, v{v_ca}, {sr(SRD0,4)}, s{S_SRC} offen")
        a(f"s_add_u32 s{S_SRC}, s{S_SRC}, {8*F*2}")
    for i in range(5):
        a(f"s_waitcnt vmcnt({4-i})")
        for j in range(4):
            if i == 0:
                a(f"v_lshlrev_b32 v{cacc+2*j}, 16, v{csb+j}")
                a(f"v_and_b32 v{cacc+2*j+1}, 0xffff0000, v{csb+j}")
            else:
                a(f"v_lshlrev_b32 v{lt[0]}, 16, v{csb+4*i+j}")
                a(f"v_and_b32 v{lt[1]}, 0xffff0000, v{csb+4*i+j}")
                a(f"v_add_f32 v{cacc+2*j}, v{cacc+2*j}, v{lt[0]}")
                a(f"v_add_f32 v{cacc+2*j+1}, v{cacc+2*j+1}, v{lt[1]}")
    a(f"v_lshlrev_b32 v{v_cw}, 5, v0")
    a(f"ds_write_b128 v{v_cw}, {vr(cacc,4)}")
    a(f"ds_write_b128 v{v_cw}, {vr(cacc+4,4)} offset:16")
    a("s_waitcnt lgkmcnt(0)")
    a("s_barrier")
    a(f"s_cmp_lg_u32 s{S_WAVE}, 0")
    a("s_cbranch_scc1 k1_end")
    a(f"v_lshlrev_b32 v{v_cw}, 2, v{v_l}")
    for h in range(2):
        for i in range(16):
            a(f"ds_read_b32 v{csb+i}, v{v_cw} offset:{(h*16+i)*256}")
        a("s_waitcnt lgkmcnt(0)")
        for i in range(16):
            if h == 0 and i == 0:
                a(f"v_mov_b32 v{cacc}, v{csb}")
            else:
                a(f"v_add_f32 v{cacc}, v{cacc}, v{csb+i}")
    make_srd(a, SRD0, P_WS, WS_CS, 4 * 3072 * 4)
    a(f"s_lshl_b32 s{S_U}, s{S_W}, 8")
    a(f"buffer_store_dword v{cacc}, v{v_cw}, {sr(SRD0,4)}, s{S_U} offen")
    a("s_endpgm")
    maxv = max(maxv, va.n)

    a.label("k1_kv")
    va = VAlloc(1)
    a(f"s_and_b32 s{S_T0}, s2, 7")
    a(f"s_lshl_b32 s{S_T0}, s{S_T0}, 2")
    a(f"s_lshr_b32 s{S_T1}, s2, 3")
    a(f"s_add_u32 s{S_T0}, s{S_T0}, s{S_T1}")
    a(f"s_lshl_b32 s{S_TOK0}, s{S_T0}, 6")
    make_srd(a, SRD0, P_X, 0, S * D * 2)
    make_srd(a, SRD1, P_WK, 0, D * DH * 2)
    make_srd(a, SRD2, P_WV, 0, D * DH * 2)
    make_srd(a, SRD3, P_WS, WS_KF, 0x20000)
    make_srd(a, SRD4, P_WS, WS_VF, 0x20000)
    make_srd(a, SRD5, P_WS, WS_KN, 512)
    sk = Seg(SRD1, 40, 32, 'lin40')
    sv = Seg(SRD2, 40, 32, 'lin40')
    g = Gemm(a, va, 64, 4, 1, 1, [sk, sv], 128, K1_NS, D, SRD0, D * 2, S_TOK0, stats=True, colsum=True, sregs=GS, tag="k1kv")
    g.split()
    g.setup()
    stamp(a, 0)
    g.mainloop()
    stamp(a, 1)
    lds = max(lds, g.lds_bytes)
    a("s_nop 7")
    a("s_nop 1")
    v_mean, v_rstd, v_sq, v_key, v_ak, v_av, v_n = va(), va(), va(), va(), va(), va(), va()
    gram_diag(a, g, g.acc_sq[0], v_sq)
    ln_stats(a, g.acc_sum[0], v_sq, v_mean, v_rstd, g.tmp)
    t = g.tmp
    for fi in range(4):
        c, cs = g.acc[0][fi], g.acc_cs[fi]
        for r in range(4):
            a(f"v_fma_f32 v{c+r}, -v{v_mean}, v{cs+r}, v{c+r}")
            a(f"v_mul_f32 v{c+r}, v{c+r}, v{v_rstd}")
        a(f"v_cvt_pk_bf16_f32 v{c}, v{c}, v{c+1}")
        a(f"v_cvt_pk_bf16_f32 v{c+1}, v{c+2}, v{c+3}")
    k0, k1, v0_, v1_ = g.acc[0]
    a(f"v_cmp_eq_u32 vcc, 0, v{g.v_g}")
    a("s_nop 1")
    for c in (k1, v1_):
        a(f"v_cndmask_b32 v{c}, 0, v{c}, vcc")
        a(f"v_cndmask_b32 v{c+1}, 0, v{c+1}, vcc")
    a(f"v_mov_b32 v{v_n}, 0")
    for c in (k0, k0 + 1, k1, k1 + 1):
        a(f"v_lshlrev_b32 v{t[0]}, 16, v{c}")
        a(f"v_and_b32 v{t[1]}, 0xffff0000, v{c}")
        a(f"v_fma_f32 v{v_n}, v{t[0]}, v{t[0]}, v{v_n}")
        a(f"v_fma_f32 v{v_n}, v{t[1]}, v{t[1]}, v{v_n}")
    a(f"v_mov_b32 v{t[2]}, 0x3f80")
    a(f"v_cmp_eq_u32 vcc, 1, v{g.v_g}")
    a("s_nop 1")
    a(f"v_cndmask_b32 v{k1}, v{k1}, v{t[2]}, vcc")
    a(f"v_cmp_le_u32 vcc, 2, v{g.v_g}")
    a("s_nop 1")
    a(f"v_cndmask_b32 v{v1_}, v{v1_}, v{t[2]}, vcc")
    a(f"v_lshl_add_u32 v{v_key}, v{g.v_wt}, 4, v{g.v_i16}")
    a(f"v_add_u32 v{v_key}, s{S_TOK0}, v{v_key}")
    make_srd(a, SRD0, P_WS, WS_S1, S * 8)
    a(f"v_lshlrev_b32 v{t[0]}, 3, v{v_key}")
    a(f"v_mov_b32 v{t[3]}, v{v_mean}")
    a(f"v_mul_f32 v{t[4]}, {f32(QSCALE)}, v{v_rstd}")
    assert t[3] % 2 == 0
    a(f"buffer_store_dwordx2 {vr(t[3],2)}, v{t[0]}, {sr(SRD0,4)}, 0 offen")
    a(f"v_lshrrev_b32 v{t[0]}, 5, v{v_key}")
    a(f"v_lshlrev_b32 v{t[0]}, 11, v{t[0]}")
    a(f"v_and_b32 v{t[1]}, 31, v{v_key}")
    a(f"v_lshl_add_u32 v{v_ak}, v{t[1]}, 4, v{t[0]}")
    a(f"v_lshrrev_b32 v{t[2]}, 1, v{g.v_g}")
    a(f"v_lshl_add_u32 v{v_ak}, v{t[2]}, 9, v{v_ak}")
    a(f"v_and_b32 v{t[2]}, 1, v{g.v_g}")
    a(f"v_lshl_add_u32 v{v_ak}, v{t[2]}, 3, v{v_ak}")
    a(f"buffer_store_dwordx2 {vr(k0,2)}, v{v_ak}, {sr(SRD3,4)}, 0 offen")
    a(f"buffer_store_dwordx2 {vr(k1,2)}, v{v_ak}, {sr(SRD3,4)}, 0 offen offset:1024")
    a(f"v_bfe_u32 v{t[2]}, v{t[1]}, 4, 1")
    a(f"v_lshl_add_u32 v{v_av}, v{t[2]}, 10, v{t[0]}")
    a(f"v_bfe_u32 v{t[2]}, v{t[1]}, 2, 1")
    a(f"v_lshl_add_u32 v{v_av}, v{t[2]}, 9, v{v_av}")
    a(f"v_bfe_u32 v{t[2]}, v{t[1]}, 3, 1")
    a(f"v_lshl_add_u32 v{v_av}, v{t[2]}, 3, v{v_av}")
    a(f"v_and_b32 v{t[2]}, 3, v{t[1]}")
    a(f"v_lshl_add_u32 v{v_av}, v{t[2]}, 1, v{v_av}")
    a(f"v_lshl_add_u32 v{v_av}, v{g.v_g}, 6, v{v_av}")
    for fb, c in enumerate((v0_, v1_)):
        for p in range(2):
            o = fb * 256 + p * 32
            a(f"buffer_store_short v{c+p}, v{v_av}, {sr(SRD4,4)}, 0 offen offset:{o}")
            a(f"buffer_store_short_d16_hi v{c+p}, v{v_av}, {sr(SRD4,4)}, 0 offen offset:{o+16}")
    xlane_add(a, v_n, g.v_lane, t[0], t[1], (16, 32))
    xlane_add(a, v_n, g.v_lane, t[0], t[1], (1, 2, 4, 8), op="v_max_f32")
    a(f"s_lshl_b32 s{S_T0}, s2, 2")
    a(f"s_add_u32 s{S_T0}, s{S_T0}, s{S_WAVE}")
    a(f"s_lshl_b32 s{S_T0}, s{S_T0}, 2")
    a(f"v_mov_b32 v{t[0]}, 0")
    a(f"v_cmp_eq_u32 vcc, 0, v{g.v_lane}")
    a(f"s_and_saveexec_b64 s[74:75], vcc")
    a(f"buffer_store_dword v{v_n}, v{t[0]}, {sr(SRD5,4)}, s{S_T0} offen")
    stamp_end(a, 2, 4)
    a("s_endpgm")
    maxv = max(maxv, va.n)
    g.loader(None)

    kernel_end(a, name, maxv)
    return (name, K1_NWG, 512, lds)

K1_NS = 4


QST = 150 * 1024


def gen_k2(a):
    name = "k2_attn_kernel"
    kernel_begin(a, name)
    a("s_cmp_ge_u32 s2, 256")
    a("s_cbranch_scc1 k2_end")
    load_kernargs(a)
    a(f"s_and_b32 s{S_XB}, s2, 7")
    a(f"s_lshr_b32 s{S_J}, s2, 3")
    a(f"s_mul_i32 s{S_ROT}, s{S_J}, 52")
    a(f"s_lshr_b32 s{S_ROT}, s{S_ROT}, 8")
    a(f"s_mul_i32 s{S_ROT}, s{S_ROT}, 5")
    a(f"s_sub_u32 s{S_ROT}, s{S_J}, s{S_ROT}")
    a(f"s_lshr_b32 s{S_T2}, s{S_J}, 3")
    a(f"s_lshl_b32 s{S_T1}, s{S_XB}, 2")
    a(f"s_add_u32 s{S_T1}, s{S_T1}, s{S_T2}")
    a(f"s_lshl_b32 s{S_TOK0}, s{S_T1}, 6")
    a(f"s_and_b32 s{S_T0}, s{S_J}, 7")
    a(f"s_mul_i32 s{S_COL}, s{S_T0}, 160")
    a("s_waitcnt lgkmcnt(0)")
    make_srd(a, SRD0, P_X, 0, S * D * 2)
    make_srd(a, SRD5, P_WQ, 0, D * D * 2)
    make_srd(a, SRD1, P_WS, WS_KF, 0x20000)
    make_srd(a, SRD2, P_WS, WS_VF, 0x20000)
    make_srd(a, SRD3, P_WS, WS_KN, 512)
    make_srd(a, SRD4, P_WS, WS_O, S * D * 2)
    vp = VAlloc(1)
    v_kn = vp(2, 2)
    v_l16 = vp()
    gva = VAlloc(vp.n)
    seg = Seg(SRD5, D * 2, 80, 'p160', S_COL)
    g = Gemm(a, gva, 64, 4, 1, 1, [seg], 128, 3, D, SRD0, D * 2, S_TOK0, colsum=True,
             sregs=GS, tag="k2q", lds_base=32768)
    assert g.lds_base + g.lds_bytes <= QST
    g.split()

    def dma_chunk(c, s_woff, v_l):
        for srd, lb in ((SRD1, 0), (SRD2, 16384)):
            for j in range(4):
                a(f"s_add_u32 m0, s{s_woff}, {(c % 3) * 32768 + lb + j*4096}")
                a(f"s_add_u32 s{S_KX}, s{s_woff}, {c * 16384 + j*4096}")
                a(f"buffer_load_dwordx4 v{v_l}, {sr(srd,4)}, s{S_KX} offen lds")

    a(f"v_and_b32 v{v_l16}, 63, v0")
    a(f"v_lshlrev_b32 v{g.tmp[1]}, 3, v{v_l16}")
    a(f"v_lshlrev_b32 v{v_l16}, 4, v{v_l16}")
    a(f"s_lshl_b32 s{S_WOFF}, s{S_WAVE}, 10")
    dma_chunk(0, S_WOFF, v_l16)
    a(f"buffer_load_dwordx2 {vr(v_kn,2)}, v{g.tmp[1]}, {sr(SRD3,4)}, 0 offen")
    g.setup()
    t = g.tmp
    v_mean = gva(2, 2)
    v_rstd = v_mean + 1
    v_ad = gva()
    make_srd(a, SRD0, P_WS, WS_S1, S * 8)
    a(f"v_lshl_add_u32 v{t[0]}, v{g.v_wt}, 4, v{g.v_i16}")
    a(f"v_add_u32 v{t[1]}, s{S_TOK0}, v{t[0]}")
    a(f"v_lshlrev_b32 v{t[1]}, 3, v{t[1]}")
    a(f"buffer_load_dwordx2 {vr(v_mean,2)}, v{t[1]}, {sr(SRD0,4)}, 0 offen")
    a(f"v_mul_u32_u24 v{t[0]}, 160, v{t[0]}")
    a(f"v_lshl_add_u32 v{v_ad}, v{g.v_g}, 3, v{t[0]}")
    a(f"v_add_u32 v{v_ad}, {QST}, v{v_ad}")
    stamp(a, 0)
    g.mainloop()
    stamp(a, 1)
    a("s_nop 7")
    a("s_nop 1")
    for fb in range(5):
        c, cs = g.acc[0][fb], g.acc_cs[fb]
        for r in range(4):
            a(f"v_fma_f32 v{c+r}, -v{v_mean}, v{cs+r}, v{c+r}")
            a(f"v_mul_f32 v{c+r}, v{c+r}, v{v_rstd}")
        a(f"v_cvt_pk_bf16_f32 v{c}, v{c}, v{c+1}")
        a(f"v_cvt_pk_bf16_f32 v{c+1}, v{c+2}, v{c+3}")
        a(f"ds_write_b64 v{v_ad}, {vr(c,2)} offset:{fb*32}")
    a("s_waitcnt vmcnt(0) lgkmcnt(0)")
    a("s_barrier")

    va = VAlloc(vp.n)
    t = [va() for _ in range(6)]
    v_lane, v_n, v_h, v_cur, v_nxt, v_qa, v_oa = [va() for _ in range(7)]
    Q = [va(8, 4) for _ in range(2)]
    Sb = [[va(16, 4) for _ in range(2)] for _ in range(2)]
    P = [va(8, 4) for _ in range(2)]
    O = [va(16, 4) for _ in range(2)]
    KF = [va(8, 4) for _ in range(2)]
    VF = [va(8, 4) for _ in range(2)]
    v_m = [va(), va()]
    v_ob = va()
    v_cst = va()
    S_SLOT, S_CNT, S_GOFF, S_HEAD = 76, 77, 78, 79
    a(f"v_and_b32 v{v_lane}, 63, v0")
    a(f"v_and_b32 v{v_n}, 31, v0")
    a(f"v_bfe_u32 v{v_h}, v0, 5, 1")
    a(f"s_mul_i32 s{S_HEAD}, s{S_WAVE}, 40")
    a(f"v_mul_u32_u24 v{t[0]}, 160, v{v_n}")
    a(f"v_add_u32 v{t[0]}, s{S_HEAD}, v{t[0]}")
    a(f"v_add_u32 v{t[0]}, {QST}, v{t[0]}")
    a(f"v_lshl_add_u32 v{v_qa}, v{v_h}, 4, v{t[0]}")
    for b in range(2):
        a(f"ds_read_b64 {vr(Q[b],2)}, v{v_qa} offset:{b*5120}")
        a(f"ds_read_b64 {vr(Q[b]+2,2)}, v{v_qa} offset:{b*5120+8}")
        a(f"ds_read_b64 {vr(Q[b]+4,2)}, v{t[0]} offset:{b*5120+32}")
    a(f"s_add_u32 s{S_HEAD}, s{S_HEAD}, s{S_COL}")
    a(f"v_add_u32 v{t[1]}, s{S_TOK0}, v{v_n}")
    a(f"v_mul_u32_u24 v{t[1]}, {D*2}, v{t[1]}")
    a(f"v_add_u32 v{v_ob}, s{S_HEAD}, v{t[1]}")
    a(f"v_lshl_add_u32 v{v_oa}, v{v_h}, 3, v{v_ob}")
    for b in range(2):
        for i in range(16):
            a(f"v_mov_b32 v{O[b]+i}, 0")
    for i in range(8):
        a(f"v_mov_b32 v{VF[1]+i}, 0")
        a(f"v_mov_b32 v{P[1]+i}, 0")
    for i in range(12, 16):
        a(f"v_mov_b32 v{Sb[1][1]+i}, 0")
    a(f"v_mov_b32 v{v_cur}, v{v_l16}")
    a(f"v_add_u32 v{v_nxt}, 32768, v{v_l16}")
    a(f"v_max_f32 v{v_kn}, v{v_kn}, v{v_kn+1}")
    xlane_add(a, v_kn, v_lane, t[0], t[1], (1, 2, 4, 8, 16, 32), op="v_max_f32")
    a(f"v_cmp_eq_u32 vcc, 0, v{v_h}")
    a("s_nop 1")
    for b in range(2):
        a(f"v_cndmask_b32 v{Q[b]+4}, 0, v{Q[b]+4}, vcc")
        a(f"v_cndmask_b32 v{Q[b]+5}, 0, v{Q[b]+5}, vcc")
        a(f"v_mov_b32 v{Q[b]+7}, 0")
        a(f"v_mov_b32 v{t[2]}, 0")
        for i in range(6):
            a(f"v_lshlrev_b32 v{t[0]}, 16, v{Q[b]+i}")
            a(f"v_and_b32 v{t[1]}, 0xffff0000, v{Q[b]+i}")
            a(f"v_fma_f32 v{t[2]}, v{t[0]}, v{t[0]}, v{t[2]}")
            a(f"v_fma_f32 v{t[2]}, v{t[1]}, v{t[1]}, v{t[2]}")
        xlane_add(a, t[2], v_lane, t[0], t[1], (32,))
        a(f"v_mul_f32 v{t[2]}, v{t[2]}, v{v_kn}")
        a(f"v_sqrt_f32 v{t[2]}, v{t[2]}")
        a("s_nop 0")
        a(f"v_cvt_pk_bf16_f32 v{t[2]}, -v{t[2]}, 0")
        a(f"v_cndmask_b32 v{Q[b]+6}, 0, v{t[2]}, vcc")
    a(f"ds_read_b128 {vr(KF[0],4)}, v{v_cur} offset:0")
    a(f"ds_read_b128 {vr(KF[0]+4,4)}, v{v_cur} offset:1024")
    a(f"ds_read_b128 {vr(KF[1],4)}, v{v_cur} offset:2048")
    a(f"ds_read_b128 {vr(KF[1]+4,4)}, v{v_cur} offset:3072")
    a(f"ds_read_b128 {vr(VF[0],4)}, v{v_cur} offset:16384")
    a(f"ds_read_b128 {vr(VF[0]+4,4)}, v{v_cur} offset:17408")
    a("s_waitcnt lgkmcnt(0)")

    def qk(b, par, s, kf):
        d = vr(Sb[b][par], 16)
        c = "0" if s == 0 else d
        return f"v_mfma_f32_32x32x16_bf16 {d}, {vr(kf+4*s,4)}, {vr(Q[b]+4*s,4)}, {c}"

    def pv(b, s, vf):
        d = vr(O[b], 16)
        return f"v_mfma_f32_32x32x16_bf16 {d}, {vr(vf+4*s,4)}, {vr(P[b]+4*s,4)}, {d}"

    for b in range(2):
        a(qk(b, 0, 0, KF[0]))
        a(qk(b, 0, 1, KF[0]))
    a("s_nop 7")
    a("s_nop 7")
    a(f"s_mov_b32 s{S_CNT}, 8")
    a(f"s_mov_b32 s{S_SLOT}, 65536")
    stamp(a, 2)
    a.label("k2_loop")

    def exps(b, par, i0):
        return [f"v_exp_f32 v{Sb[b][par]+i}, v{Sb[b][par]+i}" for i in range(i0, i0 + 4)]

    def cvts(b, par, i0):
        return [f"v_cvt_pk_bf16_f32 v{P[b]+(i0+i)//2}, v{Sb[b][par]+i0+i}, v{Sb[b][par]+i0+i+1}" for i in (0, 2)]

    for ph in range(8):
        p = ph & 1
        q = p ^ 1
        kt, vt = ph + 2, ph + 1
        kreg = v_cur if kt < 8 else v_nxt
        vreg = v_cur if vt < 8 else v_nxt
        kr = [f"ds_read_b128 {vr(KF[p]+4*s,4)}, v{kreg} offset:{(kt%8)*2048 + s*1024}" for s in range(2)]
        vrd = [f"ds_read_b128 {vr(VF[q]+4*s,4)}, v{vreg} offset:{16384 + (vt%8)*2048 + s*1024}" for s in range(2)]
        M = [qk(0, q, 0, KF[q]), pv(1, 1, VF[q]), qk(0, q, 1, KF[q]), pv(0, 0, VF[p]),
             qk(1, q, 0, KF[q]), pv(0, 1, VF[p]), qk(1, q, 1, KF[q]), pv(1, 0, VF[p])]
        V = [cvts(1, q, 12) + exps(0, p, 0),
             exps(0, p, 4),
             cvts(0, p, 0) + cvts(0, p, 4) + exps(0, p, 8),
             cvts(0, p, 8) + exps(0, p, 12),
             cvts(0, p, 12) + exps(1, p, 0),
             exps(1, p, 4),
             cvts(1, p, 0) + cvts(1, p, 4) + exps(1, p, 8),
             cvts(1, p, 8) + exps(1, p, 12)]
        extra = [[] for _ in range(8)]
        dm = []
        if ph == 6:
            if INSTR:
                a("s_memtime s[98:99]")
                a("s_waitcnt lgkmcnt(0)")
                a("s_sub_u32 s98, s98, s80")
                a(f"s_lshl_b32 m0, s{S_CNT}, 1")
                a("s_nop 0")
                a(f"v_writelane_b32 v{v_cst}, s98, m0")
            a("s_barrier")
            if INSTR:
                a("s_memtime s[98:99]")
                a("s_waitcnt lgkmcnt(0)")
                a("s_sub_u32 s98, s98, s80")
                a(f"s_add_u32 m0, m0, 1")
                a("s_nop 0")
                a(f"v_writelane_b32 v{v_cst}, s98, m0")
        a("s_waitcnt lgkmcnt(0)")
        extra[0] += kr
        extra[2] += vrd
        for i, u in enumerate(dm):
            extra[i] += u
        for i in range(8):
            a(M[i])
            for l in extra[i]:
                a(l)
            for l in V[i]:
                a(l)
    a(f"v_mov_b32 v{v_cur}, v{v_nxt}")
    a(f"v_add_u32 v{v_nxt}, s{S_SLOT}, v{v_l16}")
    a(f"s_add_u32 s{S_SLOT}, s{S_SLOT}, 32768")
    a(f"s_cmp_eq_u32 s{S_SLOT}, 98304")
    a(f"s_cselect_b32 s{S_SLOT}, 0, s{S_SLOT}")
    a(f"s_sub_u32 s{S_CNT}, s{S_CNT}, 1")
    a(f"s_cmp_lg_u32 s{S_CNT}, 0")
    a("s_cbranch_scc1 k2_loop")
    for l in cvts(1, 1, 12):
        a(l)
    a("s_nop 1")
    a(pv(1, 1, VF[1]))
    a("s_waitcnt vmcnt(0) lgkmcnt(0)")
    a("s_nop 7")
    a("s_nop 7")
    stamp(a, 3)
    a(f"v_mov_b32 v{t[0]}, {f32(2.0**-40)}")
    a(f"v_cmp_nge_f32 s[74:75], v{O[0]+12}, v{t[0]}")
    a(f"v_cmp_nge_f32 vcc, v{O[1]+12}, v{t[0]}")
    a("s_nop 3")
    a("s_or_b64 vcc, vcc, s[74:75]")
    a("s_cbranch_vccnz k2_slow")
    a.label("k2_epi")
    for b in range(2):
        a(f"v_rcp_f32 v{t[0]}, v{O[b]+12}")
        a("s_nop 0")
        for i in range(12):
            a(f"v_mul_f32 v{O[b]+i}, v{O[b]+i}, v{t[0]}")
        for i in range(6):
            a(f"v_cvt_pk_bf16_f32 v{O[b]+i}, v{O[b]+2*i}, v{O[b]+2*i+1}")
        a(f"s_mov_b32 s{S_KW}, {b*32*D*2}")
        a(f"buffer_store_dwordx2 {vr(O[b],2)}, v{v_oa}, {sr(SRD4,4)}, s{S_KW} offen")
        a(f"buffer_store_dwordx2 {vr(O[b]+2,2)}, v{v_oa}, {sr(SRD4,4)}, s{S_KW} offen offset:16")
    a(f"v_cmp_eq_u32 vcc, 0, v{v_h}")
    a("s_nop 3")
    a("s_and_saveexec_b64 s[74:75], vcc")
    for b in range(2):
        a(f"s_mov_b32 s{S_KW}, {b*32*D*2}")
        a(f"buffer_store_dwordx2 {vr(O[b]+4,2)}, v{v_oa}, {sr(SRD4,4)}, s{S_KW} offen offset:32")
    if os.environ.get("RBW"):
        a("s_waitcnt vmcnt(0)")
    for b in range(2 if not os.environ.get("NORB2") else 0):
        a(f"s_mov_b32 s{S_KW}, {b*32*D*2}")
        a(f"buffer_load_dword v{t[0]}, v{v_ob}, {sr(SRD4,4)}, s{S_KW} offen sc1")
        a(f"buffer_load_dword v{t[1]}, v{v_ob}, {sr(SRD4,4)}, s{S_KW} offen offset:36 sc1")
    if INSTR:
        lab = a.newlabel("hs")
        a("s_mov_b64 exec, -1")
        a(f"s_cmp_lg_u32 s2, {INSTR_WG}")
        a(f"s_cbranch_scc1 {lab}")
        a(f"s_cmp_lg_u32 s{S_WAVE}, 0")
        a(f"s_cbranch_scc1 {lab}")
        make_srd(a, 92, P_DBG, 0, 256)
        a(f"v_lshlrev_b32 v{t[0]}, 2, v{v_lane}")
        a(f"buffer_store_dword v{v_cst}, v{t[0]}, s[92:95], 0 offen offset:184")
        a.label(lab)
    stamp_end(a, 4)
    a.label("k2_end")
    a("s_endpgm")

    a.label("k2_slow")
    for b in range(2):
        a(f"v_mov_b32 v{Q[b]+6}, 0")
        a(f"v_mov_b32 v{v_m[b]}, 0xff800000")
    a(f"s_mov_b32 s{S_GOFF}, 0")
    a.label("k2_slow1")
    a(f"buffer_load_dwordx4 {vr(KF[0],4)}, v{v_l16}, {sr(SRD1,4)}, s{S_GOFF} offen")
    a(f"buffer_load_dwordx4 {vr(KF[0]+4,4)}, v{v_l16}, {sr(SRD1,4)}, s{S_GOFF} offen offset:1024")
    a("s_waitcnt vmcnt(0)")
    for b in range(2):
        a(qk(b, 0, 0, KF[0]))
        a(qk(b, 0, 1, KF[0]))
    a("s_nop 7")
    a("s_nop 7")
    for b in range(2):
        for i in range(0, 16, 2):
            a(f"v_max3_f32 v{v_m[b]}, v{Sb[b][0]+i}, v{Sb[b][0]+i+1}, v{v_m[b]}")
    a(f"s_add_u32 s{S_GOFF}, s{S_GOFF}, 2048")
    a(f"s_cmp_lt_u32 s{S_GOFF}, 0x20000")
    a("s_cbranch_scc1 k2_slow1")
    a(f"v_cmp_eq_u32 vcc, 0, v{v_h}")
    for b in range(2):
        xlane_add(a, v_m[b], v_lane, t[0], t[1], (32,), op="v_max_f32")
        a(f"v_cvt_pk_bf16_f32 v{t[2]}, -v{v_m[b]}, 0")
        a(f"v_cndmask_b32 v{Q[b]+6}, 0, v{t[2]}, vcc")
        for i in range(16):
            a(f"v_mov_b32 v{O[b]+i}, 0")
    a(f"s_mov_b32 s{S_GOFF}, 0")
    a.label("k2_slow2")
    a(f"buffer_load_dwordx4 {vr(KF[0],4)}, v{v_l16}, {sr(SRD1,4)}, s{S_GOFF} offen")
    a(f"buffer_load_dwordx4 {vr(KF[0]+4,4)}, v{v_l16}, {sr(SRD1,4)}, s{S_GOFF} offen offset:1024")
    a(f"buffer_load_dwordx4 {vr(VF[0],4)}, v{v_l16}, {sr(SRD2,4)}, s{S_GOFF} offen")
    a(f"buffer_load_dwordx4 {vr(VF[0]+4,4)}, v{v_l16}, {sr(SRD2,4)}, s{S_GOFF} offen offset:1024")
    a("s_waitcnt vmcnt(0)")
    for b in range(2):
        a(qk(b, 0, 0, KF[0]))
        a(qk(b, 0, 1, KF[0]))
    a("s_nop 7")
    a("s_nop 7")
    for b in range(2):
        for i0 in range(0, 16, 4):
            for l in exps(b, 0, i0):
                a(l)
        a("s_nop 0")
        for i0 in range(0, 16, 4):
            for l in cvts(b, 0, i0):
                a(l)
    a("s_nop 1")
    for b in range(2):
        a(pv(b, 0, VF[0]))
        a(pv(b, 1, VF[0]))
    a("s_nop 7")
    a("s_nop 7")
    a(f"s_add_u32 s{S_GOFF}, s{S_GOFF}, 2048")
    a(f"s_cmp_lt_u32 s{S_GOFF}, 0x20000")
    a("s_cbranch_scc1 k2_slow2")
    a("s_branch k2_epi")

    def cont(lva, lt):
        v_l, v_rb, dummy, v_hs = lva(), lva(), lva(), lva()
        a(f"v_and_b32 v{v_l}, 63, v0")
        a(f"s_and_b32 s{S_WOFF}, s{S_WAVE}, 3")
        a(f"s_lshl_b32 s{S_T2}, s{S_J}, 2")
        a(f"s_add_u32 s{S_T2}, s{S_T2}, s{S_WOFF}")
        a(f"s_lshl_b32 s{S_WOFF}, s{S_WOFF}, 10")
        a(f"v_lshlrev_b32 v{v_rb}, 7, v{v_l}")
        a(f"v_lshlrev_b32 v{v_l}, 4, v{v_l}")
        dma_chunk(1, S_WOFF, v_l)
        make_srd(a, SRD3, P_WS, WS_IMG, IMG_SZ)
        a("s_barrier")

        def touch(c):
            if c == 0:
                a(f"s_mul_i32 s{S_T1}, s{S_T2}, {50*128}")
            elif c in (1, 2):
                a(f"s_mul_i32 s{S_T1}, s{S_T2}, {120*128}")
                a(f"s_and_b32 s{S_T0}, s{S_XB}, 1")
                a(f"s_mul_i32 s{S_T0}, s{S_T0}, {1966080}")
                a(f"s_add_u32 s{S_T1}, s{S_T1}, s{S_T0}")
                a(f"s_add_u32 s{S_T1}, s{S_T1}, {IMG_GU + (c-1)*56*128}")
            else:
                return 0
            a(f"buffer_load_dword v{dummy}, v{v_rb}, {sr(SRD3,4)}, s{S_T1} offen")
            return 1

        extra = 0
        for c in range(8):
            a(f"s_waitcnt vmcnt({extra})")
            a("s_barrier")
            if c + 2 < 8:
                dma_chunk(c + 2, S_WOFF, v_l)
            extra = touch(c)
        a("s_endpgm")

    g.loader(S_ROT, cont=cont)
    kernel_end(a, name, max(va.n, gva.n, g.loader_vgprs))
    return (name, 256, 512, 160 * 1024)


def gen_proj(a, which):
    name = "k3_wo_kernel" if which == 3 else "k5_down_kernel"
    end = name + "_end"
    kernel_begin(a, name)
    a("s_cmp_ge_u32 s2, 256")
    a(f"s_cbranch_scc1 {end}")
    load_kernargs(a)
    va = VAlloc(1)
    a(f"s_and_b32 s{S_T1}, s2, 7")
    a(f"s_lshr_b32 s{S_T0}, s2, 3")
    a(f"s_mov_b32 s{S_J}, s{S_T0}")
    a(f"s_mov_b32 s{S_XB}, s{S_T1}")
    if which == 3:
        a(f"s_mul_i32 s{S_ROT}, s{S_T0}, 52")
        a(f"s_lshr_b32 s{S_ROT}, s{S_ROT}, 8")
        a(f"s_mul_i32 s{S_ROT}, s{S_ROT}, 5")
        a(f"s_sub_u32 s{S_ROT}, s{S_T0}, s{S_ROT}")
    else:
        a(f"s_and_b32 s{S_ROT}, s{S_T1}, 1")
        a(f"s_mul_i32 s{S_ROT}, s{S_ROT}, 6")
        a(f"s_and_b32 s{S_T2}, s{S_T0}, 1")
        a(f"s_add_u32 s{S_ROT}, s{S_ROT}, s{S_T2}")
    if which == 3:
        a(f"s_lshr_b32 s{S_T2}, s{S_T0}, 3")
        a(f"s_lshl_b32 s{S_T1}, s{S_T1}, 2")
        a(f"s_add_u32 s{S_T1}, s{S_T1}, s{S_T2}")
        a(f"s_lshl_b32 s{S_TOK0}, s{S_T1}, 6")
        a(f"s_and_b32 s{S_T0}, s{S_T0}, 7")
    else:
        a(f"s_lshr_b32 s{S_T2}, s{S_T1}, 1")
        a(f"s_lshl_b32 s{S_T2}, s{S_T2}, 3")
        a(f"s_and_b32 s{S_TOK0}, s{S_T0}, 7")
        a(f"s_add_u32 s{S_TOK0}, s{S_TOK0}, s{S_T2}")
        a(f"s_lshl_b32 s{S_TOK0}, s{S_TOK0}, 6")
        a(f"s_and_b32 s{S_T1}, s{S_T1}, 1")
        a(f"s_lshl_b32 s{S_T1}, s{S_T1}, 2")
        a(f"s_lshr_b32 s{S_T0}, s{S_T0}, 3")
        a(f"s_add_u32 s{S_T0}, s{S_T0}, s{S_T1}")
    a(f"s_mul_i32 s{S_COL}, s{S_T0}, 160")
    a("s_waitcnt lgkmcnt(0)")
    if which == 3:
        K = D
        make_srd(a, SRD0, P_WS, WS_O, S * D * 2)
        make_srd(a, SRD1, P_WS, WS_IMG, IMG_SZ)
        a(f"s_mul_i32 s{S_IMG}, s{S_T0}, {5*20480}")
        make_srd(a, SRD2, P_WS, WS_H, S * D * 2)
        make_srd(a, SRD3, P_X, 0, S * D * 2)
        make_srd(a, SRD4, P_WS, WS_ST, S * 64)
    else:
        K = F
        make_srd(a, SRD0, P_WS, WS_ACT, S * F * 2)
        make_srd(a, SRD1, P_WS, WS_IMG, IMG_SZ)
        a(f"s_mul_i32 s{S_IMG}, s{S_T0}, {12*20480}")
        make_srd(a, SRD2, P_OUT, 0, S * D * 2)
        make_srd(a, SRD3, P_WS, WS_H, S * D * 2)
    seg = Seg(SRD1, D * 2, 80, 'p160', S_COL, img=(S_IMG, 20480, IMG_WO if which == 3 else IMG_WD))
    g = Gemm(a, va, 64, 2, 2, 1, [seg], 128, 4, K, SRD0, K * 2, S_TOK0, sregs=GS, tag=f"k{which}")
    g.split()
    v_dummy = va()
    if which == 5 and PF:
        a(f"s_lshr_b32 s{S_T1}, s{S_XB}, 1")
        a(f"s_mul_i32 s{S_T1}, s{S_T1}, {512*K*2}")
        prefetch_lin(a, 0, g.tmp[0], v_dummy, SRD0, S_T1, S_J, 512*K*2//128//32, S_T2)
    g.setup()
    t = g.tmp
    v_ad, v_tok, v_x = va(), va(), va()
    res = va(10, 2)
    a(f"v_lshl_add_u32 v{v_tok}, v{g.v_wt}, 1, v{g.v_wo}")
    a(f"v_lshl_add_u32 v{v_tok}, v{v_tok}, 4, v{g.v_i16}")
    a(f"v_add_u32 v{v_tok}, s{S_TOK0}, v{v_tok}")
    a(f"v_mul_u32_u24 v{t[0]}, {D*2}, v{v_tok}")
    a(f"v_lshl_add_u32 v{v_ad}, v{g.v_g}, 3, v{t[0]}")
    a(f"v_add_u32 v{v_ad}, s{S_COL}, v{v_ad}")
    for fb in range(5):
        a(f"buffer_load_dwordx2 {vr(res+2*fb,2)}, v{v_ad}, {sr(SRD3,4)}, 0 offen offset:{fb*32}")
    stamp(a, 0)
    g.mainloop()
    stamp(a, 1)
    a("s_nop 7")
    a("s_barrier")
    skip = a.newlabel("xs")
    a(f"s_cmp_lt_u32 s{S_WAVE}, 2")
    a(f"s_cbranch_scc1 {skip}")
    for fb in range(5):
        for r in range(4):
            a(f"v_swap_b32 v{g.acc[0][fb]+r}, v{g.acc[1][fb]+r}")
    a.label(skip)
    a(f"v_mul_u32_u24 v{t[0]}, 5120, v{g.v_wave}")
    a(f"v_lshl_add_u32 v{t[0]}, v{g.v_lane}, 4, v{t[0]}")
    a(f"v_xor_b32 v{t[1]}, 2, v{g.v_wave}")
    a(f"v_mul_u32_u24 v{t[1]}, 5120, v{t[1]}")
    a(f"v_lshl_add_u32 v{t[1]}, v{g.v_lane}, 4, v{t[1]}")
    for fb in range(5):
        a(f"ds_write_b128 v{t[0]}, {vr(g.acc[1][fb],4)} offset:{fb*1024}")
    a("s_waitcnt lgkmcnt(0)")
    a("s_barrier")
    for fb in range(5):
        a(f"ds_read_b128 {vr(g.acc[1][fb],4)}, v{t[1]} offset:{fb*1024}")
    a("s_waitcnt lgkmcnt(0)")
    v_s, v_q = va(2, 2), None
    v_q = v_s + 1
    if which == 3:
        a(f"v_mov_b32 v{v_s}, 0")
        a(f"v_mov_b32 v{v_q}, 0")
    for fb in range(5):
        c, o = g.acc[0][fb], g.acc[1][fb]
        for p in range(2):
            a(f"v_lshlrev_b32 v{t[0]}, 16, v{res+2*fb+p}")
            a(f"v_and_b32 v{t[1]}, 0xffff0000, v{res+2*fb+p}")
            a(f"v_add_f32 v{c+2*p}, v{c+2*p}, v{o+2*p}")
            a(f"v_add_f32 v{c+2*p+1}, v{c+2*p+1}, v{o+2*p+1}")
            a(f"v_cvt_pk_bf16_f32 v{t[2]}, v{c+2*p}, v{c+2*p+1}")
            a(f"v_lshlrev_b32 v{t[3]}, 16, v{t[2]}")
            a(f"v_and_b32 v{t[2]}, 0xffff0000, v{t[2]}")
            a(f"v_add_f32 v{t[0]}, v{t[0]}, v{t[3]}")
            a(f"v_add_f32 v{t[1]}, v{t[1]}, v{t[2]}")
            a(f"v_cvt_pk_bf16_f32 v{o+p}, v{t[0]}, v{t[1]}")
            if which == 3:
                a(f"v_lshlrev_b32 v{t[0]}, 16, v{o+p}")
                a(f"v_and_b32 v{t[1]}, 0xffff0000, v{o+p}")
                a(f"v_add_f32 v{v_s}, v{v_s}, v{t[0]}")
                a(f"v_fma_f32 v{v_q}, v{t[0]}, v{t[0]}, v{v_q}")
                a(f"v_add_f32 v{v_s}, v{v_s}, v{t[1]}")
                a(f"v_fma_f32 v{v_q}, v{t[1]}, v{t[1]}, v{v_q}")
        a(f"buffer_store_dwordx2 {vr(o,2)}, v{v_ad}, {sr(SRD2,4)}, 0 offen offset:{fb*32}")
    if which == 3:
        xlane_add(a, v_s, g.v_lane, t[0], t[1], (16, 32))
        xlane_add(a, v_q, g.v_lane, t[0], t[1], (16, 32))
        a(f"v_lshlrev_b32 v{t[0]}, 6, v{v_tok}")
        a(f"s_lshl_b32 s{S_T0}, s{S_T0}, 3")
        a(f"v_cmp_eq_u32 vcc, 0, v{g.v_g}")
        a("s_nop 3")
        a("s_and_saveexec_b64 s[74:75], vcc")
        a(f"buffer_store_dwordx2 {vr(v_s,2)}, v{t[0]}, {sr(SRD4,4)}, s{S_T0} offen")
        if os.environ.get("RBW"):
            a("s_waitcnt vmcnt(0)")
        for o in ((0, 80, 156) if not os.environ.get("NORB3") else ()):
            a(f"buffer_load_dword v{t[1]}, v{v_ad}, {sr(SRD2,4)}, 0 offen offset:{o} sc1")
    stamp_end(a, 2)
    a.label(end)
    a("s_endpgm")
    g.loader(S_ROT)
    kernel_end(a, name, va.n)
    return (name, 256, 512, g.lds_bytes)


def gen_k4(a):
    name = "k4_ffn_kernel"
    kernel_begin(a, name)
    a("s_cmp_ge_u32 s2, 256")
    a("s_cbranch_scc1 k4_end")
    load_kernargs(a)
    va = VAlloc(1)
    a(f"s_and_b32 s{S_XB}, s2, 7")
    a(f"s_lshr_b32 s{S_J}, s2, 3")
    a(f"s_mul_i32 s{S_ROT}, s{S_J}, 26")
    a(f"s_lshr_b32 s{S_ROT}, s{S_ROT}, 8")
    a(f"s_mul_i32 s{S_ROT}, s{S_ROT}, 10")
    a(f"s_sub_u32 s{S_ROT}, s{S_J}, s{S_ROT}")
    a(f"s_lshr_b32 s{S_T2}, s{S_XB}, 1")
    a(f"s_lshl_b32 s{S_T2}, s{S_T2}, 2")
    a(f"s_and_b32 s{S_TOK0}, s{S_J}, 3")
    a(f"s_add_u32 s{S_TOK0}, s{S_TOK0}, s{S_T2}")
    a(f"s_lshl_b32 s{S_TOK0}, s{S_TOK0}, 7")
    a(f"s_lshr_b32 s{S_T2}, s{S_J}, 2")
    a(f"s_and_b32 s{S_T1}, s{S_XB}, 1")
    a(f"s_lshl_b32 s{S_T1}, s{S_T1}, 3")
    a(f"s_add_u32 s{S_T0}, s{S_T2}, s{S_T1}")
    a(f"s_mul_i32 s{S_COL}, s{S_T0}, 192")
    a(f"s_mul_i32 s{S_IMG}, s{S_T0}, {10*24576}")
    a("s_waitcnt lgkmcnt(0)")
    make_srd(a, SRD0, P_WS, WS_H, S * D * 2)
    make_srd(a, SRD1, P_WS, WS_IMG, IMG_SZ)
    make_srd(a, SRD3, P_WS, WS_ACT, S * F * 2)
    sg = Seg(SRD1, F * 2, 96, 'p192', S_COL, img=(S_IMG, 24576, IMG_GU))
    su = Seg(SRD1, F * 2, 96, 'p192', S_COL, img=(S_IMG, 24576, IMG_GU + 12288))
    g = Gemm(a, va, 128, 2, 1, 2, [sg, su], 64, K4_NS, D, SRD0, D * 2, S_TOK0, sregs=GS, tag="k4")
    TAB = g.lds_bytes
    g.split()
    g.setup()
    t = g.tmp
    v_tok, v_ad, v_ta, v_tc = va(), va(), va(), va()
    a(f"v_lshl_add_u32 v{v_tok}, v{g.v_wt}, 6, v{g.v_i16}")
    a(f"v_lshlrev_b32 v{v_ta}, 4, v{v_tok}")
    a(f"v_add_u32 v{v_ta}, {TAB}, v{v_ta}")
    a(f"v_add_u32 v{v_tok}, s{S_TOK0}, v{v_tok}")
    a(f"v_mul_u32_u24 v{t[1]}, 48, v{g.v_wo}")
    a(f"v_lshl_add_u32 v{t[1]}, v{g.v_g}, 2, v{t[1]}")
    a(f"v_lshlrev_b32 v{v_tc}, 2, v{t[1]}")
    a(f"v_add_u32 v{v_tc}, {TAB + 2048}, v{v_tc}")
    a(f"v_mul_u32_u24 v{v_ad}, {F*2}, v{v_tok}")
    a(f"v_lshl_add_u32 v{v_ad}, v{t[1]}, 1, v{v_ad}")
    a(f"v_add_u32 v{v_ad}, s{S_COL}, v{v_ad}")
    a(f"v_mul_u32_u24 v{v_tok}, 20, v{g.v_g}")
    a(f"v_add_u32 v{v_tok}, v{v_tok}, v{v_ad}")
    stamp(a, 0)
    g.mainloop()
    stamp(a, 1)
    a("s_barrier")
    st = g.fa[0]
    cs = g.fa[1]
    tmp = g.fb[0]
    for tb in range(4):
        a(f"ds_read_b128 {vr(st+4*tb,4)}, v{v_ta} offset:{tb*256}")
    for sgi in range(2):
        for fb in range(3):
            a(f"ds_read_b128 {vr(cs+12*sgi+4*fb,4)}, v{v_tc} offset:{sgi*384 + fb*64}")
    a("s_waitcnt lgkmcnt(0)")
    for tb in range(4):
        vm, vA, vB, vC = [st + 4 * tb + i for i in range(4)]
        pm, pB = vr(vm, 2), vr(vB, 2)
        for fb in range(3):
            cg, cu = g.acc[tb][fb], g.acc[tb][3 + fb]
            z = tmp + 8 * (fb & 1)
            for h in (0, 2):
                a(f"v_pk_fma_f32 {vr(cg+h,2)}, {pm}, {vr(cs+4*fb+h,2)}, {vr(cg+h,2)} op_sel_hi:[0,1,1]")
                a(f"v_pk_fma_f32 {vr(cu+h,2)}, {pm}, {vr(cs+12+4*fb+h,2)}, {vr(cu+h,2)} op_sel_hi:[0,1,1]")
            for h in (0, 2):
                a(f"v_pk_mul_f32 {vr(z+h,2)}, {vr(cg+h,2)}, {vr(cg+h,2)}")
                a(f"v_pk_mul_f32 {vr(cu+h,2)}, {vr(cu+h,2)}, {vr(cg+h,2)}")
            for h in (0, 2):
                a(f"v_pk_fma_f32 {vr(z+h,2)}, {vr(z+h,2)}, {pB}, {pm} op_sel:[0,0,1] op_sel_hi:[1,0,1]")
            for h in (0, 2):
                a(f"v_pk_mul_f32 {vr(z+h,2)}, {vr(z+h,2)}, {vr(cg+h,2)}")
            for r in range(4):
                a(f"v_exp_f32 v{z+r}, v{z+r}")
            for h in (0, 2):
                a(f"v_pk_fma_f32 {vr(z+h,2)}, {vr(z+h,2)}, {pB}, {pB} op_sel:[0,1,1] op_sel_hi:[1,1,1]")
            for r in range(4):
                a(f"v_rcp_f32 v{z+r}, v{z+r}")
            a("s_nop 0")
            for h in (0, 2):
                a(f"v_pk_mul_f32 {vr(cu+h,2)}, {vr(cu+h,2)}, {vr(z+h,2)}")
            a(f"v_cvt_pk_bf16_f32 v{cu}, v{cu}, v{cu+1}")
            a(f"v_cvt_pk_bf16_f32 v{cu+1}, v{cu+2}, v{cu+3}")
            a(f"s_mov_b32 s{S_KW}, {tb*16*F*2}")
            a(f"buffer_store_dwordx2 {vr(cu,2)}, v{v_ad}, {sr(SRD3,4)}, s{S_KW} offen offset:{fb*32}")
        if not os.environ.get("NORB4"):
            a(f"buffer_load_dword v{t[1]}, v{v_tok}, {sr(SRD3,4)}, s{S_KW} offen sc1")
    stamp(a, 2)
    stamp_end(a, 3)
    a.label("k4_end")
    a("s_endpgm")

    GC = -2.0 * 0.7978845608028654 * 1.4426950408889634
    pre = {}

    def early(lva, lt):
        make_srd(a, SRD4, P_WS, WS_ST, S * 64)
        make_srd(a, SRD5, P_WS, WS_CS, 4 * 3072 * 4)
        buf = lva(16, 4)
        pre['buf'] = buf
        l2, l3 = a.newlabel("k4e"), a.newlabel("k4e")
        a(f"s_cmp_ge_u32 s{S_WAVE}, 6")
        a(f"s_cbranch_scc1 {l2}")
        a(f"v_add_u32 v{lt[0]}, s{S_TOK0}, v0")
        a(f"v_lshlrev_b32 v{lt[0]}, 6, v{lt[0]}")
        for i in range(4):
            a(f"buffer_load_dwordx4 {vr(buf+4*i,4)}, v{lt[0]}, {sr(SRD4,4)}, 0 offen offset:{i*16}")
        a(f"s_branch {l3}")
        a.label(l2)
        a(f"v_and_b32 v{lt[0]}, 63, v0")
        a(f"v_min_u32 v{lt[0]}, 23, v{lt[0]}")
        a(f"v_lshlrev_b32 v{lt[0]}, 4, v{lt[0]}")
        a(f"s_sub_u32 s{S_T1}, s{S_WAVE}, 6")
        a(f"s_mul_i32 s{S_T1}, s{S_T1}, {1536*4}")
        a(f"s_lshl_b32 s{S_T2}, s{S_COL}, 1")
        a(f"s_add_u32 s{S_T1}, s{S_T1}, s{S_T2}")
        for i in range(4):
            a(f"buffer_load_dwordx4 {vr(buf+4*i,4)}, v{lt[0]}, {sr(SRD5,4)}, s{S_T1} offen")
            a(f"s_add_u32 s{S_T1}, s{S_T1}, {3072*4}")
        a.label(l3)

    def cont(lva, lt):
        buf = pre['buf']
        a(f"s_and_b32 s{S_T1}, s{S_XB}, 1")
        a(f"s_mul_i32 s{S_T1}, s{S_T1}, 983040")
        a(f"s_mul_i32 s{S_T2}, s{S_J}, {240*128}")
        a(f"s_add_u32 s{S_T1}, s{S_T1}, s{S_T2}")
        a(f"s_add_u32 s{S_T1}, s{S_T1}, {IMG_WD}")
        a(f"v_min_u32 v{lt[0]}, 239, v0")
        a(f"v_lshlrev_b32 v{lt[0]}, 7, v{lt[0]}")
        if not os.environ.get("NOWDPF"):
            a(f"buffer_load_dword v{lt[5]}, v{lt[0]}, {sr(SRD1,4)}, s{S_T1} offen")
        l2, l3 = a.newlabel("k4e"), a.newlabel("k4e")
        a(f"s_cmp_ge_u32 s{S_WAVE}, 6")
        a(f"s_cbranch_scc1 {l2}")
        for i in range(1, 8):
            a(f"v_add_f32 v{buf}, v{buf}, v{buf+2*i}")
            a(f"v_add_f32 v{buf+1}, v{buf+1}, v{buf+2*i+1}")
        ln_stats(a, buf, buf + 1, buf + 4, buf + 8, lt)
        a(f"v_sub_f32 v{buf+4}, 0, v{buf+4}")
        a(f"v_mul_f32 v{buf+5}, {f32(GC)}, v{buf+8}")
        a(f"v_mul_f32 v{buf+9}, v{buf+8}, v{buf+8}")
        a(f"v_mul_f32 v{buf+6}, v{buf+9}, v{buf+8}")
        a(f"v_mul_f32 v{buf+6}, {f32(GC*0.044715)}, v{buf+6}")
        a(f"v_rcp_f32 v{buf+7}, v{buf+9}")
        a(f"v_lshlrev_b32 v{lt[0]}, 4, v0")
        a(f"v_add_u32 v{lt[0]}, {TAB}, v{lt[0]}")
        a(f"ds_write_b128 v{lt[0]}, {vr(buf+4,4)}")
        a(f"s_branch {l3}")
        a.label(l2)
        for i in range(4):
            a(f"v_add_f32 v{buf+i}, v{buf+i}, v{buf+4+i}")
            a(f"v_add_f32 v{buf+8+i}, v{buf+8+i}, v{buf+12+i}")
            a(f"v_add_f32 v{buf+i}, v{buf+i}, v{buf+8+i}")
        a(f"v_and_b32 v{lt[0]}, 63, v0")
        a(f"v_min_u32 v{lt[0]}, 23, v{lt[0]}")
        a(f"v_lshlrev_b32 v{lt[0]}, 4, v{lt[0]}")
        a(f"s_sub_u32 s{S_T1}, s{S_WAVE}, 6")
        a(f"s_mul_i32 s{S_T1}, s{S_T1}, 384")
        a(f"s_add_u32 s{S_T1}, s{S_T1}, {TAB + 2048}")
        a(f"v_add_u32 v{lt[0]}, s{S_T1}, v{lt[0]}")
        a(f"ds_write_b128 v{lt[0]}, {vr(buf,4)}")
        a.label(l3)
        a("s_waitcnt lgkmcnt(0)")
        a("s_barrier")
        a("s_endpgm")

    g.loader(S_ROT, cont=cont, early=early)
    kernel_end(a, name, max(va.n, g.loader_vgprs))
    return (name, 256, 512, g.lds_bytes + 4096)

K4_NS = 3


def main():
    a = Asm()
    a.raw('.amdgcn_target "amdgcn-amd-amdhsa--gfx950"')
    a.raw(".text")
    launches = [gen_k1(a), gen_k2(a), gen_proj(a, 3), gen_k4(a), gen_proj(a, 5)]
    head = open("cdna_kernels/" + NAME + ".s.ref").read().split("\n")
    hdr = [l for l in head if l.startswith(";") and "@launch" not in l and "Override launch" not in l and "grid=ceil" not in l]
    out = "\n".join(hdr) + "\n"
    for n, gx, bx, lds in launches:
        out += f"; @launch kernel={n} grid=({gx},1,1) block=({bx},1,1) lds={lds}\n"
    out += a.text()
    out += '.section .rodata,"a"\n' + "".join(KDS)
    path = sys.argv[1] if len(sys.argv) > 1 else "cdna_kernels/" + NAME + ".s"
    open(path, "w").write(out)
    print("wrote", path, len(out), "bytes;", launches)

if __name__ == "__main__":
    main()
```

```python
import sys

NAME = "sequential_preLN__grouped_kv_mqa__geglu_ffn__prompt"

S, D, H, DH, F = 2048, 640, 32, 20, 1536

WS_Q   = 0
WS_KF  = 0x280000
WS_VF  = WS_KF + 0x20000
WS_KN  = WS_VF + 0x20000
WS_CS  = WS_KN + 0x1000
WS_O   = WS_CS + 0x10000
WS_H   = WS_O + 0x280000
WS_ST  = WS_H + 0x280000
WS_ACT = WS_ST + 0x20000
WS_S1  = WS_ACT + 0x600000
WS_IMG = WS_S1 + 0x4000
WS_TL = 0x3000000
IMG_WO, IMG_WD, IMG_GU, IMG_SZ = 0, 819200, 819200 + 1966080, 6717440

KA_X, KA_WQ, KA_WK, KA_WV, KA_WO, KA_BX, KA_WG, KA_WU, KA_WD, KA_OUT, KA_DBG, KA_WS = [8 * i for i in range(12)]

import struct, os
INSTR = bool(os.environ.get("INSTR"))
HACK_LIN = bool(os.environ.get("HACK_LIN"))
NOCOMP = os.environ.get("NOCOMP", "").split(",")
NOX = os.environ.get("NOX", "").split(",")
NOW = os.environ.get("NOW", "").split(",")
PF = bool(os.environ.get("PF"))
IMGPOL = os.environ.get("IMGPOL", "sc0 sc1")
for _k in ("NORB2", "NORB3", "NORB4"):
    os.environ[_k] = "1"
NOLOAD = os.environ.get("NOLOAD", "").split(",")
def f32(x):
    return "0x%08x" % struct.unpack("<I", struct.pack("<f", x))[0]


class Asm:
    skip_dma = False
    def __init__(self):
        self.lines = []
        self.nlabel = 0

    def __call__(self, s):
        for l in s.split("\n"):
            l = l.strip()
            if self.skip_dma and l.startswith("buffer_load") and l.endswith("lds"):
                continue
            if l:
                self.lines.append("    " + l)

    def label(self, l):
        self.lines.append(l + ":")

    def newlabel(self, p="L"):
        self.nlabel += 1
        return f"{p}_{self.nlabel}"

    def raw(self, s):
        self.lines.append(s)

    def text(self):
        return "\n".join(self.lines) + "\n"


class VAlloc:
    def __init__(self, start=1):
        self.n = start

    def __call__(self, cnt=1, align=1):
        self.n = (self.n + align - 1) // align * align
        r = self.n
        self.n += cnt
        return r


def vr(b, n):
    return f"v[{b}:{b+n-1}]"


def sr(b, n):
    return f"s[{b}:{b+n-1}]"


KIDX = [-1]
def kernel_begin(a, name):
    KIDX[0] += 1
    a.raw(f".globl {name}")
    a.raw(".p2align 8")
    a.raw(f".type {name},@function")
    a.label(name)


KDS = []
def kernel_end(a, name, nvgpr, nsgpr=102):
    nv = (nvgpr + 7) // 8 * 8
    KDS.append(f""".p2align 6
.amdhsa_kernel {name}
  .amdhsa_next_free_vgpr {nv}
  .amdhsa_next_free_sgpr {nsgpr}
  .amdhsa_accum_offset {(nv + 3) // 4 * 4}
  .amdhsa_group_segment_fixed_size 0
  .amdhsa_kernarg_size 96
  .amdhsa_user_sgpr_count 2
  .amdhsa_user_sgpr_kernarg_segment_ptr 1
  .amdhsa_system_sgpr_workgroup_id_x 1
.end_amdhsa_kernel
""")


def make_srd(a, dst, base_s, off, nbytes):
    if off:
        a(f"s_add_u32 s{dst}, s{base_s}, {off}")
        a(f"s_addc_u32 s{dst+1}, s{base_s+1}, 0")
    else:
        a(f"s_mov_b32 s{dst}, s{base_s}")
        a(f"s_mov_b32 s{dst+1}, s{base_s+1}")
    a(f"s_mov_b32 s{dst+2}, {nbytes}")
    a(f"s_mov_b32 s{dst+3}, 0x00020000")


def interleave(mfmas, fillers):
    out = []
    nm, nf = len(mfmas), len(fillers)
    fi = 0
    for i, m in enumerate(mfmas):
        out.append(m)
        tgt = ((i + 1) * nf + nm - 1) // nm if nm else nf
        while fi < min(tgt, nf):
            out.extend(fillers[fi])
            fi += 1
    while fi < nf:
        out.extend(fillers[fi])
        fi += 1
    return out


class Seg:
    def __init__(self, srd, gstride, nf, kind, colreg=None, img=None):
        self.img = img
        self.srd = srd
        self.gstride = gstride
        self.nf = nf
        self.kind = kind
        self.colreg = colreg


class Gemm:
    def __init__(self, a, va, TT, WT, WK, WF, segs, BK, NS, K, xsrd, xstride, s_tok0,
                 stats=False, colsum=False, sregs=None, tag="g", lds_base=0):
        self.a, self.va = a, va
        self.lds_base = lds_base
        self.TT, self.WT, self.WK, self.WF = TT, WT, WK, WF
        assert WT * WK * WF == 4
        self.segs, self.BK, self.NS, self.K = segs, BK, NS, K
        self.xsrd, self.xstride, self.s_tok0 = xsrd, xstride, s_tok0
        self.stats, self.colsum = stats, colsum
        self.tag = tag
        self.TW = TT // WT
        self.TB = self.TW // 16
        self.RB = BK * 2
        self.CPR = self.RB // 16
        self.nst = K // BK
        self.SPS = BK // 32
        self.SPW = self.SPS // WK
        assert self.SPW % 2 == 0
        self.xbytes = TT * self.RB
        off = self.xbytes
        for s in segs:
            s.lstride = 40 if s.kind == 'lin40' else s.nf * 2
            nb = BK * s.lstride
            s.ninstr = (nb + 4095) // 4096 * 4
            s.lbase = off
            off += s.ninstr * 1024
            s.FBW = (s.nf // WF) // 16
        self.stage_bytes = off
        self.nx = self.xbytes // 1024
        assert self.nx % 4 == 0
        self.ndma = self.nx // 4 + sum(s.ninstr // 4 for s in segs)
        self.lds_bytes = self.stage_bytes * NS
        (self.s_woff, self.s_kx, self.s_kw, self.s_wave, self.s_cnt, self.s_slot, self.s_kidx, self.s_dl) = sregs

    def split(self):
        a, va = self.a, self.va
        self.tmp = [va() for _ in range(6)]
        t = self.tmp
        a(f"v_lshrrev_b32 v{t[0]}, 6, v0")
        a("s_nop 0")
        a(f"v_readfirstlane_b32 s{self.s_wave}, v{t[0]}")
        a("s_nop 3")
        a(f"s_cmp_ge_u32 s{self.s_wave}, 4")
        a(f"s_cbranch_scc1 {self.tag}_loader")

    def loader(self, s_rot=None, prefetch=None, cont=None, early=None):
        a = self.a
        va = VAlloc(1)
        t = [va() for _ in range(6)]
        a.label(f"{self.tag}_loader")
        a(f"v_and_b32 v0, 255, v0")
        a(f"s_and_b32 s{self.s_woff}, s{self.s_wave}, 3")
        a(f"s_lshl_b32 s{self.s_woff}, s{self.s_woff}, 10")
        if self.lds_base:
            a(f"s_add_u32 s{self.s_woff}, s{self.s_woff}, {self.lds_base}")
        if early is not None:
            early(va, t)
        lg = {8: 3, 16: 4}[self.CPR]
        v_dx = va()
        a(f"v_lshrrev_b32 v{t[1]}, {lg}, v0")
        a(f"v_and_b32 v{t[2]}, {self.CPR-1}, v0")
        if self.CPR == 8:
            a(f"v_bfe_u32 v{t[3]}, v{t[1]}, 1, 3")
        else:
            a(f"v_and_b32 v{t[3]}, 15, v{t[1]}")
        a(f"v_xor_b32 v{t[2]}, v{t[2]}, v{t[3]}")
        a(f"v_add_u32 v{t[1]}, s{self.s_tok0}, v{t[1]}")
        a(f"v_mul_u32_u24 v{t[1]}, {self.xstride}, v{t[1]}")
        a(f"v_lshl_add_u32 v{v_dx}, v{t[2]}, 4, v{t[1]}")
        xrows = 256 // self.CPR
        done = {}
        for s in self.segs:
            key = (s.kind, s.nf)
            if key in done:
                s.v_d = done[key]
                continue
            s.v_d = []
            cprw = s.lstride // 16 if s.kind != 'lin40' else None
            for j in range(s.ninstr // 4):
                if s.kind == 'lin40' or s.img:
                    if j == 0:
                        r = va()
                        a(f"v_lshlrev_b32 v{r}, 4, v0")
                    s.v_d.append(r)
                    continue
                r = va()
                s.v_d.append(r)
                a(f"v_add_u32 v{t[0]}, {j*256}, v0")
                magic = {10: 52429, 12: 43691}[cprw]
                a(f"v_mul_u32_u24 v{t[1]}, {magic}, v{t[0]}")
                a(f"v_lshrrev_b32 v{t[1]}, 19, v{t[1]}")
                a(f"v_mul_u32_u24 v{t[2]}, {cprw}, v{t[1]}")
                a(f"v_sub_u32 v{t[2]}, v{t[0]}, v{t[2]}")
                a(f"v_and_b32 v{t[3]}, 0xfffffff3, v{t[1]}")
                a(f"v_bfe_u32 v{t[4]}, v{t[1]}, 2, 1")
                if s.kind == 'p192':
                    a(f"v_lshlrev_b32 v{t[5]}, 1, v{t[4]}")
                    a(f"v_xor_b32 v{t[2]}, v{t[2]}, v{t[5]}")
                a(f"v_lshl_or_b32 v{t[3]}, v{t[4]}, 3, v{t[3]}")
                a(f"v_bfe_u32 v{t[4]}, v{t[1]}, 3, 1")
                a(f"v_lshl_or_b32 v{t[3]}, v{t[4]}, 2, v{t[3]}")
                a(f"v_mul_u32_u24 v{t[3]}, {s.gstride}, v{t[3]}")
                a(f"v_lshl_add_u32 v{r}, v{t[2]}, 4, v{t[3]}")
                if s.colreg is not None:
                    a(f"v_add_u32 v{r}, s{s.colreg}, v{r}")
            done[key] = s.v_d
        if HACK_LIN and self.tag in ("k3", "k5", "k4"):
            a(f"s_lshr_b32 s{self.s_dl}, s{self.s_tok0}, {({64:6,128:7})[self.TT]}")
            a(f"s_mul_i32 s{self.s_dl}, s{self.s_dl}, {self.nst*self.xbytes}")
            a(f"v_lshlrev_b32 v{v_dx}, 4, v0")
            a(f"v_add_u32 v{v_dx}, s{self.s_dl}, v{v_dx}")
            s0 = self.segs[0]
            nb = self.BK * s0.lstride
            a(f"s_mul_i32 s{self.s_dl}, s{S_T0}, {self.nst*nb}")
            for j, r in enumerate(s0.v_d):
                a(f"v_lshlrev_b32 v{r}, 4, v0")
                a(f"v_add_u32 v{r}, {j*4096}, v{r}")
                a(f"v_add_u32 v{r}, s{self.s_dl}, v{r}")
        if s_rot is None:
            a(f"s_mov_b32 s{self.s_kidx}, 0")
        else:
            a(f"s_mov_b32 s{self.s_kidx}, s{s_rot}")
        a(f"s_mov_b32 s{self.s_slot}, s{self.s_woff}")
        gs = self.segs[0].gstride

        def issue():
            hk = HACK_LIN and self.tag in ("k3", "k5", "k4")
            a(f"s_mul_i32 s{self.s_kx}, s{self.s_kidx}, {self.xbytes if hk else self.BK*2}")
            if self.segs[0].img:
                a(f"s_mul_i32 s{self.s_kw}, s{self.s_kidx}, {self.segs[0].img[1]}")
                a(f"s_add_u32 s{self.s_kw}, s{self.s_kw}, s{self.segs[0].img[0]}")
            else:
                a(f"s_mul_i32 s{self.s_kw}, s{self.s_kidx}, {self.BK*self.segs[0].lstride if hk else self.BK*gs}")
            for j in range(self.nx // 4):
                a(f"s_add_u32 m0, s{self.s_slot}, {j*4096}")
                if j:
                    a(f"s_add_u32 s{self.s_kx}, s{self.s_kx}, {4096 if hk else xrows*self.xstride}")
                else:
                    a("s_nop 0")
                if self.tag in NOX:
                    a(f"buffer_load_dwordx4 v{v_dx}, {sr(self.xsrd,4)}, 0 offen lds")
                else:
                    a(f"buffer_load_dwordx4 v{v_dx}, {sr(self.xsrd,4)}, s{self.s_kx} offen lds")
            for s in self.segs:
                assert s.gstride == gs
                for j, r in enumerate(s.v_d):
                    a(f"s_add_u32 m0, s{self.s_slot}, {s.lbase + j*4096}")
                    if s.kind == 'lin40' or s.img:
                        a(f"s_add_u32 s{self.s_dl}, s{self.s_kw}, {j*4096 + (s.img[2] if s.img else 0)}")
                        if self.tag in NOW:
                            a(f"buffer_load_dwordx4 v{r}, {sr(s.srd,4)}, 0 offen lds")
                        else:
                            a(f"buffer_load_dwordx4 v{r}, {sr(s.srd,4)}, s{self.s_dl} offen lds")
                    else:
                        a("s_nop 0")
                        a(f"buffer_load_dwordx4 v{r}, {sr(s.srd,4)}, s{self.s_kw} offen lds")
            a(f"s_add_u32 s{self.s_kidx}, s{self.s_kidx}, 1")
            a(f"s_cmp_eq_u32 s{self.s_kidx}, {self.nst}")
            a(f"s_cselect_b32 s{self.s_kidx}, 0, s{self.s_kidx}")
            a(f"s_add_u32 s{self.s_slot}, s{self.s_slot}, {self.stage_bytes}")
            a(f"s_cmp_ge_u32 s{self.s_slot}, {self.lds_bytes + self.lds_base}")
            a(f"s_cselect_b32 s{self.s_slot}, s{self.s_woff}, s{self.s_slot}")

        l1, l2, l3 = f"{self.tag}_ld1", f"{self.tag}_ld2", f"{self.tag}_ld3"
        v_st = va()
        def lstamp(idx_s=None, idx=None):
            if INSTR:
                a("s_memtime s[98:99]")
                a("s_waitcnt lgkmcnt(0)")
                a("s_sub_u32 s98, s98, s80")
                if idx_s is not None:
                    a(f"s_mov_b32 m0, s{idx_s}")
                    a("s_nop 0")
                    a(f"v_writelane_b32 v{v_st}, s98, m0")
                else:
                    a(f"v_writelane_b32 v{v_st}, s98, {idx}")
        lstamp(idx=0)
        a(f"s_mov_b32 s{self.s_cnt}, 0")
        a(f"s_branch {l2}")
        a.label(l1)
        a(f"s_waitcnt vmcnt({(self.NS-2)*self.ndma})")
        lstamp(idx_s=self.s_cnt)
        a("s_barrier")
        a.label(l2)
        a.skip_dma = self.tag in NOLOAD
        issue()
        a.skip_dma = False
        a(f"s_add_u32 s{self.s_cnt}, s{self.s_cnt}, 1")
        a(f"s_cmp_lg_u32 s{self.s_cnt}, 2")
        a(f"s_cbranch_scc1 {l3}")
        a(f"s_waitcnt vmcnt({self.ndma})")
        lstamp(idx=1)
        a("s_barrier")
        a.label(l3)
        a(f"s_cmp_lt_u32 s{self.s_cnt}, {self.NS}")
        a(f"s_cbranch_scc1 {l2}")
        a(f"s_cmp_lt_u32 s{self.s_cnt}, {self.nst}")
        a(f"s_cbranch_scc1 {l1}")
        for i in range(self.NS - 1):
            a(f"s_waitcnt vmcnt({(self.NS-2-i)*self.ndma})")
            lstamp(idx=self.nst + i)
            a("s_barrier")
        a("s_barrier")
        if INSTR:
            lab = a.newlabel("ls")
            a(f"s_cmp_lg_u32 s2, {INSTR_WG if self.tag != 'k1kv' else 4}")
            a(f"s_cbranch_scc1 {lab}")
            a(f"s_cmp_lg_u32 s{self.s_wave}, 4")
            a(f"s_cbranch_scc1 {lab}")
            make_srd(a, 92, P_DBG, 0, 256)
            a(f"v_lshlrev_b32 v{t[0]}, 2, v0")
            a(f"buffer_store_dword v{v_st}, v{t[0]}, s[92:95], 0 offen offset:64")
            a("s_waitcnt vmcnt(0)")
            a.label(lab)
        if cont is None:
            a("s_endpgm")
        else:
            cont(va, t)
        self.loader_vgprs = va.n

    def setup(self):
        a, va = self.a, self.va
        t = self.tmp
        lane, i16, g, wv = va(), va(), va(), va()
        self.v_lane, self.v_i16, self.v_g, self.v_wave = lane, i16, g, wv
        a(f"v_and_b32 v{lane}, 63, v0")
        a(f"v_lshrrev_b32 v{wv}, 6, v0")
        a(f"v_and_b32 v{i16}, 15, v0")
        a(f"v_bfe_u32 v{g}, v0, 4, 2")
        wt, wo = va(), va()
        self.v_wt, self.v_wo = wt, wo
        a(f"v_and_b32 v{wt}, {self.WT-1}, v{wv}")
        sh = {1: 0, 2: 1, 4: 2}[self.WT]
        a(f"v_lshrrev_b32 v{wo}, {sh}, v{wv}")
        self.addr_regs = []
        done = {}
        for s in self.segs:
            key = (s.kind, s.nf)
            if key in done:
                s.v_a = done[key]
                continue
            if s.kind == 'lin40':
                a(f"v_lshlrev_b32 v{t[0]}, 3, v{g}")
            else:
                a(f"v_lshrrev_b32 v{t[0]}, 1, v{g}")
                a(f"v_lshlrev_b32 v{t[0]}, 4, v{t[0]}")
                a(f"v_and_b32 v{t[1]}, 1, v{g}")
                a(f"v_lshl_add_u32 v{t[0]}, v{t[1]}, 2, v{t[0]}")
            a(f"v_lshrrev_b32 v{t[1]}, 2, v{i16}")
            a(f"v_add_u32 v{t[0]}, v{t[0]}, v{t[1]}")
            if self.WK > 1:
                a(f"v_mov_b32 v{t[1]}, {self.SPW*32}")
                a(f"v_mad_u32_u24 v{t[0]}, v{wo}, v{t[1]}, v{t[0]}")
            a(f"v_mul_u32_u24 v{t[0]}, {s.lstride}, v{t[0]}")
            a(f"v_and_b32 v{t[1]}, 3, v{i16}")
            a(f"v_lshl_add_u32 v{t[0]}, v{t[1]}, 3, v{t[0]}")
            if s.kind == 'p192':
                regs = []
                for b in range(s.FBW):
                    r = va()
                    regs.append(r)
                    if self.WF > 1:
                        a(f"v_mul_u32_u24 v{t[1]}, {s.FBW}, v{wo}")
                        a(f"v_add_u32 v{t[1]}, {b}, v{t[1]}")
                    else:
                        a(f"v_mov_b32 v{t[1]}, {b}")
                    a(f"v_and_b32 v{t[2]}, 1, v{g}")
                    a(f"v_xor_b32 v{t[1]}, v{t[1]}, v{t[2]}")
                    a(f"v_lshl_add_u32 v{r}, v{t[1]}, 5, v{t[0]}")
                s.v_a = regs
                self.addr_regs += regs
            else:
                r = va()
                if self.WF > 1:
                    a(f"v_mul_u32_u24 v{t[1]}, {s.FBW*32}, v{wo}")
                    a(f"v_add_u32 v{r}, v{t[0]}, v{t[1]}")
                else:
                    a(f"v_mov_b32 v{r}, v{t[0]}")
                s.v_a = [r]
                self.addr_regs.append(r)
            done[key] = s.v_a
        self.v_b = []
        a(f"v_mul_u32_u24 v{t[0]}, {self.TW}, v{wt}")
        a(f"v_add_u32 v{t[0]}, v{t[0]}, v{i16}")
        if self.CPR == 8:
            a(f"v_bfe_u32 v{t[1]}, v{t[0]}, 1, 3")
        else:
            a(f"v_and_b32 v{t[1]}, 15, v{t[0]}")
        a(f"v_mul_u32_u24 v{t[0]}, {self.RB}, v{t[0]}")
        for ls in range(self.SPW):
            r = va()
            self.v_b.append(r)
            self.addr_regs.append(r)
            if self.WK > 1:
                a(f"v_mul_u32_u24 v{t[2]}, {4*self.SPW}, v{wo}")
                a(f"v_add3_u32 v{t[2]}, v{t[2]}, v{g}, {4*ls}")
            else:
                a(f"v_add_u32 v{t[2]}, {4*ls}, v{g}")
            a(f"v_xor_b32 v{t[2]}, v{t[2]}, v{t[1]}")
            a(f"v_lshl_add_u32 v{r}, v{t[2]}, 4, v{t[0]}")
        if self.lds_base:
            for r in self.addr_regs:
                a(f"v_add_u32 v{r}, {self.lds_base}, v{r}")
        self.nA = sum(s.FBW for s in self.segs)
        self.fa = [va(4 * self.nA, 4) for _ in range(2)]
        self.fb = [va(4 * self.TB, 4) for _ in range(2)]
        self.acc = [[va(4, 4) for _ in range(self.nA)] for _ in range(self.TB)]
        accs = [r for row in self.acc for r in row]
        if self.stats or self.colsum:
            self.v_ones = va(4, 4)
            for i in range(4):
                a(f"v_mov_b32 v{self.v_ones+i}, 0x3f803f80")
        if self.stats:
            self.acc_sum = [va(4, 4) for _ in range(self.TB)]
            self.acc_sq = [va(4, 4) for _ in range(self.TB)]
            accs += self.acc_sum + self.acc_sq
        if self.colsum:
            self.acc_cs = [va(4, 4) for _ in range(self.nA)]
            accs += self.acc_cs
        for r in accs:
            for i in range(4):
                a(f"v_mov_b32 v{r+i}, 0")

    def read_units(self, ls, buf):
        units = []
        fi = 0
        for s in self.segs:
            for b in range(s.FBW):
                for e in range(2):
                    if s.kind == 'lin40':
                        off = s.lbase + (ls * 32 + 4 * e) * 40 + b * 32
                        ar = s.v_a[0]
                    elif s.kind == 'p192':
                        off = s.lbase + (ls * 32 + 8 * e) * s.lstride
                        ar = s.v_a[b]
                    else:
                        off = s.lbase + (ls * 32 + 8 * e) * s.lstride + b * 32
                        ar = s.v_a[0]
                    assert off < 65536
                    d = self.fa[buf] + 4 * fi + 2 * e
                    units.append([f"ds_read_b64_tr_b16 {vr(d,2)}, v{ar} offset:{off}"])
                fi += 1
        for tb in range(self.TB):
            off = tb * 16 * self.RB
            d = self.fb[buf] + 4 * tb
            units.append([f"ds_read_b128 {vr(d,4)}, v{self.v_b[ls]} offset:{off}"])
        return units[-self.TB:] + units[:-self.TB]

    def mfmas(self, buf):
        out = []
        for fi in range(self.nA):
            A = vr(self.fa[buf] + 4 * fi, 4)
            for tb in range(self.TB):
                B = vr(self.fb[buf] + 4 * tb, 4)
                c = vr(self.acc[tb][fi], 4)
                out.append(f"v_mfma_f32_16x16x32_bf16 {c}, {A}, {B}, {c}")
            if self.colsum:
                c = vr(self.acc_cs[fi], 4)
                out.append(f"v_mfma_f32_16x16x32_bf16 {c}, {A}, {vr(self.v_ones,4)}, {c}")
        if self.stats:
            for tb in range(self.TB):
                B = vr(self.fb[buf] + 4 * tb, 4)
                c = vr(self.acc_sum[tb], 4)
                out.append(f"v_mfma_f32_16x16x32_bf16 {c}, {vr(self.v_ones,4)}, {B}, {c}")
                c = vr(self.acc_sq[tb], 4)
                out.append(f"v_mfma_f32_16x16x32_bf16 {c}, {B}, {B}, {c}")
        return out

    def mainloop(self):
        a = self.a
        a(f"s_mov_b32 s{self.s_cnt}, {self.nst}")
        a(f"s_mov_b32 s{self.s_slot}, 0")
        a("s_barrier")
        for u in self.read_units(0, 0):
            for l in u:
                a(l)
        lp = f"{self.tag}_loop"
        a.label(lp)
        for ls in range(self.SPW):
            buf = ls & 1
            a("s_waitcnt lgkmcnt(0)")
            if ls == self.SPW - 1:
                a(f"s_mov_b32 s{self.s_dl}, s{self.s_slot}")
                a(f"s_add_u32 s{self.s_slot}, s{self.s_slot}, {self.stage_bytes}")
                a(f"s_cmp_ge_u32 s{self.s_slot}, {self.lds_bytes}")
                a(f"s_cselect_b32 s{self.s_slot}, 0, s{self.s_slot}")
                a(f"s_sub_u32 s{self.s_dl}, s{self.s_slot}, s{self.s_dl}")
                a("s_barrier")
                for r in self.addr_regs:
                    a(f"v_add_u32 v{r}, s{self.s_dl}, v{r}")
                fill = self.read_units(0, buf ^ 1)
            else:
                fill = self.read_units(ls + 1, buf ^ 1)
            if self.tag in NOCOMP:
                continue
            for l in interleave(self.mfmas(buf), fill):
                a(l)
        a(f"s_sub_u32 s{self.s_cnt}, s{self.s_cnt}, 1")
        a(f"s_cmp_lg_u32 s{self.s_cnt}, 0")
        a(f"s_cbranch_scc1 {lp}")
        a("s_waitcnt vmcnt(0) lgkmcnt(0)")


P_X, P_WQ, P_WK, P_WV, P_WO, P_BX, P_WG, P_WU, P_WD, P_OUT, P_DBG, P_WS = [16 + 2 * i for i in range(12)]
SRD0, SRD1, SRD2, SRD3, SRD4, SRD5 = 40, 44, 48, 52, 56, 60
S_WOFF, S_KX, S_KW, S_WAVE = 64, 65, 66, 67
S_TOK0, S_COL, S_T0, S_T1, S_T2 = 68, 69, 70, 71, 72
S_CNT_, S_SLOT_, S_KIDX, S_DL, S_ROT = 76, 77, 78, 79, 73
GS = (S_WOFF, S_KX, S_KW, S_WAVE, S_CNT_, S_SLOT_, S_KIDX, S_DL)


def load_kernargs(a):
    if INSTR:
        for i in range(84, 98):
            a(f"s_mov_b32 s{i}, 0")
        a("s_memtime s[80:81]")
        a("s_memrealtime s[82:83]")
    a("s_load_dwordx16 s[16:31], s[0:1], 0")
    a("s_load_dwordx8 s[32:39], s[0:1], 64")


def stamp(a, idx):
    if INSTR:
        a("s_memtime s[98:99]")
        a("s_waitcnt lgkmcnt(0)")
        a(f"s_sub_u32 s{84+idx}, s98, s80")


def stamp_end(a, n, wg=None):
    if INSTR:
        lab = a.newlabel("se")
        a("s_mov_b64 exec, -1")
        a("s_waitcnt vmcnt(0)")
        a("s_memtime s[98:99]")
        a("s_memrealtime s[100:101]")
        a("s_waitcnt lgkmcnt(0)")
        a(f"s_sub_u32 s{84+n}, s98, s80")
        a(f"s_sub_u32 s{85+n}, s100, s82")
        lab2 = a.newlabel("se")
        a(f"s_cmp_lg_u32 s{S_WAVE}, 0")
        a(f"s_cbranch_scc1 {lab2}")
        make_srd(a, 40, P_WS, WS_TL + KIDX[0] * 4096, 4096)
        a("s_getreg_b32 s98, hwreg(HW_REG_XCC_ID)")
        a("s_and_b32 s98, s98, 7")
        a("s_andn2_b32 s100, s100, 7")
        a("s_or_b32 s100, s100, s98")
        a("v_mov_b32 v2, s82")
        a("v_mov_b32 v3, s100")
        a("s_lshl_b32 s98, s2, 3")
        a("v_mov_b32 v1, s98")
        a("buffer_store_dwordx2 v[2:3], v1, s[40:43], 0 offen")
        a.label(lab2)
        a(f"s_cmp_lg_u32 s2, {INSTR_WG if wg is None else wg}")
        a(f"s_cbranch_scc1 {lab}")
        a(f"s_cmp_lg_u32 s{S_WAVE}, 0")
        a(f"s_cbranch_scc1 {lab}")
        make_srd(a, 40, P_DBG, 0, 256)
        a("v_mov_b32 v1, 0")
        for i in range(14):
            a(f"v_mov_b32 v2, s{84+i}")
            a(f"buffer_store_dword v2, v1, s[40:43], 0 offen offset:{4*i}")
        a.label(lab)
INSTR_WG = int(os.environ.get("INSTR_WG", "100"))


def round_bf16(a, dst, src):
    a(f"v_cvt_pk_bf16_f32 v{dst}, v{src}, v{src}")
    a(f"v_lshlrev_b32 v{dst}, 16, v{dst}")


def ln_stats(a, v_sum, v_sq, v_mean, v_rstd, t):
    a(f"v_mul_f32 v{v_mean}, {f32(1.0/D)}, v{v_sum}")
    a(f"v_mul_f32 v{t[0]}, {f32(1.0/D)}, v{v_sq}")
    a(f"v_fma_f32 v{t[0]}, -v{v_mean}, v{v_mean}, v{t[0]}")
    a(f"v_max_f32 v{t[0]}, 0, v{t[0]}")
    round_bf16(a, v_mean, v_mean)
    round_bf16(a, t[0], t[0])
    a(f"v_add_f32 v{t[0]}, {f32(1e-5)}, v{t[0]}")
    round_bf16(a, t[0], t[0])
    a(f"v_sqrt_f32 v{t[0]}, v{t[0]}")
    a("s_nop 0")
    round_bf16(a, t[0], t[0])
    a(f"v_rcp_f32 v{v_rstd}, v{t[0]}")
    a("s_nop 0")


def gram_diag(a, g, acc_sq, dst):
    t = g.tmp
    a(f"v_and_b32 v{t[0]}, 3, v{g.v_i16}")
    a(f"v_mov_b32 v{t[1]}, v{acc_sq}")
    for r in range(1, 4):
        a(f"v_cmp_eq_u32 vcc, {r}, v{t[0]}")
        a("s_nop 1")
        a(f"v_cndmask_b32 v{t[1]}, v{t[1]}, v{acc_sq+r}, vcc")
    a(f"v_lshrrev_b32 v{t[0]}, 2, v{g.v_i16}")
    a(f"v_lshl_add_u32 v{t[0]}, v{t[0]}, 4, v{g.v_i16}")
    a(f"v_lshlrev_b32 v{t[0]}, 2, v{t[0]}")
    a(f"ds_bpermute_b32 v{dst}, v{t[0]}, v{t[1]}")
    a("s_waitcnt lgkmcnt(0)")


def xlane_add(a, v, v_lane, t0, t1, masks, op="v_add_f32"):
    for m in masks:
        a(f"v_xor_b32 v{t0}, {m}, v{v_lane}")
        a(f"v_lshlrev_b32 v{t0}, 2, v{t0}")
        a(f"ds_bpermute_b32 v{t1}, v{t0}, v{v}")
        a("s_waitcnt lgkmcnt(0)")
        a(f"{op} v{v}, v{v}, v{t1}")


QSCALE = (DH ** -0.5) * 1.4426950408889634


def prefetch_lin(a, v_tid, v_t, v_dummy, srd, s_base, s_j, nlines, s_tmp, nthreads=256):
    a(f"s_mul_i32 s{s_tmp}, s{s_j}, {nlines*128}")
    if s_base is not None:
        a(f"s_add_u32 s{s_tmp}, s{s_tmp}, s{s_base}")
    a(f"v_lshlrev_b32 v{v_t}, 7, v{v_tid}")
    n = (nlines + nthreads - 1) // nthreads
    for i in range(n):
        if i:
            a(f"s_add_u32 s{s_tmp}, s{s_tmp}, {nthreads*128}")
        a(f"buffer_load_dword v{v_dummy}, v{v_t}, {sr(srd,4)}, s{s_tmp} offen")

S_J, S_XB, S_IMG = 90, 91, 96

K1_NKV, K1_NQ, K1_NPF = 32, 256, 224
K1_NWG = K1_NKV + K1_NQ + K1_NPF


def gen_k1(a):
    name = "k1_kv_kernel"
    kernel_begin(a, name)
    a(f"s_cmp_ge_u32 s2, {K1_NWG}")
    a("s_cbranch_scc1 k1_end")
    load_kernargs(a)
    a("s_waitcnt lgkmcnt(0)")
    a(f"s_cmp_lt_u32 s2, {K1_NKV}")
    a("s_cbranch_scc1 k1_kv")
    a(f"s_cmp_lt_u32 s2, {K1_NKV + K1_NQ}")
    a("s_cbranch_scc1 k1_q")
    maxv = 8
    lds = 0
    va = VAlloc(1)
    lt = [va() for _ in range(6)]
    v_l = va()
    S_W, S_U, S_SRC, S_DST, S_RW = S_J, S_T0, S_T1, S_KW, S_ROT
    a(f"v_lshrrev_b32 v{lt[0]}, 6, v0")
    a(f"v_and_b32 v{v_l}, 63, v0")
    a(f"v_readfirstlane_b32 s{S_WAVE}, v{lt[0]}")
    a(f"s_sub_u32 s{S_W}, s2, {K1_NKV + K1_NQ}")
    a(f"s_mov_b32 s{SRD0+3}, 0x00020000")
    make_srd(a, SRD3, P_WS, WS_IMG, IMG_SZ)
    for _ in range(int(os.environ.get("WSLEEP", "0"))):
        a("s_sleep 16")
    a(f"s_cmp_ge_u32 s{S_WAVE}, 4")
    a("s_cbranch_scc1 k1_rp0")
    a(f"s_cmp_lt_u32 s{S_W}, 192")
    a("s_cbranch_scc1 k1_cs")
    a(f"s_lshl_b32 s{S_RW}, s{S_W}, 2")
    a(f"s_add_u32 s{S_RW}, s{S_RW}, s{S_WAVE}")
    a(f"s_add_u32 s{S_RW}, s{S_RW}, {896 - 768}")
    a("s_branch k1_rp1")
    a.label("k1_rp0")
    a(f"s_lshl_b32 s{S_RW}, s{S_W}, 2")
    a(f"s_add_u32 s{S_RW}, s{S_RW}, s{S_WAVE}")
    a(f"s_sub_u32 s{S_RW}, s{S_RW}, 4")
    a.label("k1_rp1")
    pa = [va() for _ in range(5)]
    pb = [va() for _ in range(3)]

    def gather(regs, cprw, magic, stride):
        for i, r in enumerate(regs):
            a(f"v_add_u32 v{lt[0]}, {i*64}, v{v_l}")
            a(f"v_mul_u32_u24 v{lt[1]}, {magic}, v{lt[0]}")
            a(f"v_lshrrev_b32 v{lt[1]}, 19, v{lt[1]}")
            a(f"v_mul_u32_u24 v{lt[2]}, {cprw}, v{lt[1]}")
            a(f"v_sub_u32 v{lt[2]}, v{lt[0]}, v{lt[2]}")
            a(f"v_and_b32 v{lt[3]}, 0xfffffff3, v{lt[1]}")
            a(f"v_bfe_u32 v{lt[4]}, v{lt[1]}, 2, 1")
            if cprw == 12:
                a(f"v_lshlrev_b32 v{lt[5]}, 1, v{lt[4]}")
                a(f"v_xor_b32 v{lt[2]}, v{lt[2]}, v{lt[5]}")
            a(f"v_lshl_or_b32 v{lt[3]}, v{lt[4]}, 3, v{lt[3]}")
            a(f"v_bfe_u32 v{lt[4]}, v{lt[1]}, 3, 1")
            a(f"v_lshl_or_b32 v{lt[3]}, v{lt[4]}, 2, v{lt[3]}")
            a(f"v_mul_u32_u24 v{lt[3]}, {stride}, v{lt[3]}")
            a(f"v_lshl_add_u32 v{r}, v{lt[2]}, 4, v{lt[3]}")

    bufB = [va(12, 4) for _ in range(2)]
    bufA = va(20, 4)
    v_l16 = va()

    def loadsB(buf):
        a(f"s_mul_i32 s{S_SRC}, s{S_U}, 52429")
        a(f"s_lshr_b32 s{S_SRC}, s{S_SRC}, 22")
        a(f"s_mul_i32 s{S_DST}, s{S_SRC}, 80")
        a(f"s_sub_u32 s{S_T2}, s{S_U}, s{S_DST}")
        a(f"s_mul_i32 s{S_SRC}, s{S_SRC}, 192")
        a(f"s_lshr_b32 s{S_DST}, s{S_T2}, 3")
        a(f"s_lshl_b32 s{S_DST}, s{S_DST}, 2")
        a(f"s_and_b32 s{S_KX}, s{S_T2}, 3")
        a(f"s_add_u32 s{S_DST}, s{S_DST}, s{S_KX}")
        a(f"s_mul_i32 s{S_DST}, s{S_DST}, {16*F*2}")
        a(f"s_add_u32 s{S_SRC}, s{S_SRC}, s{S_DST}")
        a(f"s_bitcmp1_b32 s{S_T2}, 2")
        a(f"s_cselect_b32 s{SRD0}, s{P_WU}, s{P_WG}")
        a(f"s_cselect_b32 s{SRD0+1}, s{P_WU+1}, s{P_WG+1}")
        a(f"s_mov_b32 s{SRD0+2}, {F*D*2}")
        for i in range(3):
            a(f"buffer_load_dwordx4 {vr(buf+4*i,4)}, v{pb[i]}, {sr(SRD0,4)}, s{S_SRC} offen")

    def storesB(buf):
        a(f"s_mul_i32 s{S_DST}, s{S_U}, 3072")
        a(f"s_add_u32 s{S_DST}, s{S_DST}, {IMG_GU}")
        for i in range(3):
            a(f"buffer_store_dwordx4 {vr(buf+4*i,4)}, v{v_l16}, {sr(SRD3,4)}, s{S_DST} offen offset:{i*1024}")

    gather(pb, 12, 43691, F * 2)
    a(f"v_lshlrev_b32 v{v_l16}, 4, v{v_l}")
    a(f"s_mov_b32 s{S_U}, s{S_RW}")
    loadsB(bufB[0])
    a(f"s_cmp_lt_u32 s{S_RW}, 544")
    a("s_cbranch_scc1 k1_rpa")
    a(f"s_add_u32 s{S_U}, s{S_RW}, {1024 - 544}")
    a(f"s_cmp_ge_u32 s{S_U}, 1280")
    a("s_cbranch_scc1 k1_rpe")
    loadsB(bufB[1])
    a("s_waitcnt vmcnt(0)")
    storesB(bufB[1])
    a("s_branch k1_rpe")
    a.label("k1_rpa")
    gather(pa, 10, 52429, D * 2)
    l1, l2 = a.newlabel("ra"), a.newlabel("ra")
    a(f"s_cmp_ge_u32 s{S_RW}, 160")
    a(f"s_cbranch_scc1 {l1}")
    a(f"s_mul_i32 s{S_SRC}, s{S_RW}, 3277")
    a(f"s_lshr_b32 s{S_SRC}, s{S_SRC}, 16")
    a(f"s_mul_i32 s{S_DST}, s{S_SRC}, 20")
    a(f"s_sub_u32 s{S_DST}, s{S_RW}, s{S_DST}")
    a(f"s_mov_b32 s{SRD0}, s{P_WO}")
    a(f"s_mov_b32 s{SRD0+1}, s{P_WO+1}")
    a(f"s_mov_b32 s{SRD0+2}, {D*D*2}")
    a(f"s_branch {l2}")
    a.label(l1)
    a(f"s_sub_u32 s{S_U}, s{S_RW}, 160")
    a(f"s_mul_i32 s{S_SRC}, s{S_U}, 1366")
    a(f"s_lshr_b32 s{S_SRC}, s{S_SRC}, 16")
    a(f"s_mul_i32 s{S_DST}, s{S_SRC}, 48")
    a(f"s_sub_u32 s{S_DST}, s{S_U}, s{S_DST}")
    a(f"s_mov_b32 s{SRD0}, s{P_WD}")
    a(f"s_mov_b32 s{SRD0+1}, s{P_WD+1}")
    a(f"s_mov_b32 s{SRD0+2}, {F*D*2}")
    a.label(l2)
    a(f"s_mul_i32 s{S_SRC}, s{S_SRC}, 160")
    a(f"s_mul_i32 s{S_DST}, s{S_DST}, {32*D*2}")
    a(f"s_add_u32 s{S_SRC}, s{S_SRC}, s{S_DST}")
    for i in range(5):
        a(f"buffer_load_dwordx4 {vr(bufA+4*i,4)}, v{pa[i]}, {sr(SRD0,4)}, s{S_SRC} offen")
    a(f"s_mul_i32 s{S_DST}, s{S_RW}, 5120")
    a("s_waitcnt vmcnt(0)")
    for i in range(5):
        if i == 4:
            a(f"s_add_u32 s{S_DST}, s{S_DST}, 4096")
        a(f"buffer_store_dwordx4 {vr(bufA+4*i,4)}, v{v_l16}, {sr(SRD3,4)}, s{S_DST} offen offset:{(i%4)*1024}")
    a.label("k1_rpe")
    a("s_waitcnt vmcnt(0)")
    a(f"s_mov_b32 s{S_U}, s{S_RW}")
    storesB(bufB[0])
    if INSTR:
        a("s_waitcnt vmcnt(0)")
        a("s_memrealtime s[100:101]")
        a("s_waitcnt lgkmcnt(0)")
        a(f"s_cmp_lg_u32 s{S_WAVE}, 4")
        a("s_cbranch_scc1 k1_end")
        make_srd(a, 40, P_WS, WS_TL, 4096)
        a("v_mov_b32 v2, s82")
        a("v_mov_b32 v3, s100")
        a("s_lshl_b32 s98, s2, 3")
        a("v_mov_b32 v1, s98")
        a("buffer_store_dwordx2 v[2:3], v1, s[40:43], 0 offen")
    a.label("k1_end")
    a("s_endpgm")

    a.label("k1_cs")
    csb = va(20, 4)
    cacc = va(8, 4)
    v_ca, v_cw = va(), va()
    a(f"s_mul_i32 s{S_U}, s{S_W}, 1366")
    a(f"s_lshr_b32 s{S_U}, s{S_U}, 16")
    a(f"s_mul_i32 s{S_SRC}, s{S_U}, 48")
    a(f"s_sub_u32 s{S_SRC}, s{S_W}, s{S_SRC}")
    a(f"s_cmp_lt_u32 s{S_SRC}, 24")
    a(f"s_cselect_b32 s{SRD0}, s{P_WG}, s{P_WU}")
    a(f"s_cselect_b32 s{SRD0+1}, s{P_WG+1}, s{P_WU+1}")
    a(f"s_mov_b32 s{SRD0+2}, {F*D*2}")
    a(f"s_cselect_b32 s{S_DST}, 0, 24")
    a(f"s_sub_u32 s{S_SRC}, s{S_SRC}, s{S_DST}")
    a(f"s_lshl_b32 s{S_SRC}, s{S_SRC}, 7")
    a(f"s_lshl_b32 s{S_U}, s{S_U}, 2")
    a(f"s_add_u32 s{S_U}, s{S_U}, s{S_WAVE}")
    a(f"s_mul_i32 s{S_U}, s{S_U}, {40*F*2}")
    a(f"s_add_u32 s{S_SRC}, s{S_SRC}, s{S_U}")
    a(f"v_lshrrev_b32 v{lt[0]}, 3, v{v_l}")
    a(f"v_mul_u32_u24 v{lt[0]}, {F*2}, v{lt[0]}")
    a(f"v_and_b32 v{lt[1]}, 7, v{v_l}")
    a(f"v_lshl_add_u32 v{v_ca}, v{lt[1]}, 4, v{lt[0]}")
    for i in range(5):
        a(f"buffer_load_dwordx4 {vr(csb+4*i,4)}, v{v_ca}, {sr(SRD0,4)}, s{S_SRC} offen")
        a(f"s_add_u32 s{S_SRC}, s{S_SRC}, {8*F*2}")
    for i in range(5):
        a(f"s_waitcnt vmcnt({4-i})")
        for j in range(4):
            if i == 0:
                a(f"v_lshlrev_b32 v{cacc+2*j}, 16, v{csb+j}")
                a(f"v_and_b32 v{cacc+2*j+1}, 0xffff0000, v{csb+j}")
            else:
                a(f"v_lshlrev_b32 v{lt[0]}, 16, v{csb+4*i+j}")
                a(f"v_and_b32 v{lt[1]}, 0xffff0000, v{csb+4*i+j}")
                a(f"v_add_f32 v{cacc+2*j}, v{cacc+2*j}, v{lt[0]}")
                a(f"v_add_f32 v{cacc+2*j+1}, v{cacc+2*j+1}, v{lt[1]}")
    a(f"v_lshlrev_b32 v{v_cw}, 5, v0")
    a(f"ds_write_b128 v{v_cw}, {vr(cacc,4)}")
    a(f"ds_write_b128 v{v_cw}, {vr(cacc+4,4)} offset:16")
    a("s_waitcnt lgkmcnt(0)")
    a("s_barrier")
    a(f"s_cmp_lg_u32 s{S_WAVE}, 0")
    a("s_cbranch_scc1 k1_end")
    a(f"v_lshlrev_b32 v{v_cw}, 2, v{v_l}")
    for h in range(2):
        for i in range(16):
            a(f"ds_read_b32 v{csb+i}, v{v_cw} offset:{(h*16+i)*256}")
        a("s_waitcnt lgkmcnt(0)")
        for i in range(16):
            if h == 0 and i == 0:
                a(f"v_mov_b32 v{cacc}, v{csb}")
            else:
                a(f"v_add_f32 v{cacc}, v{cacc}, v{csb+i}")
    make_srd(a, SRD0, P_WS, WS_CS, 4 * 3072 * 4)
    a(f"s_lshl_b32 s{S_U}, s{S_W}, 8")
    a(f"buffer_store_dword v{cacc}, v{v_cw}, {sr(SRD0,4)}, s{S_U} offen")
    a("s_endpgm")
    maxv = max(maxv, va.n)

    va = VAlloc(1)
    a.label("k1_q")
    a(f"s_sub_u32 s{S_T0}, s2, {K1_NKV}")
    a(f"s_and_b32 s{S_T1}, s{S_T0}, 7")
    a(f"s_lshr_b32 s{S_T0}, s{S_T0}, 3")
    a(f"s_mov_b32 s{S_J}, s{S_T0}")
    a(f"s_mul_i32 s{S_XB}, s{S_T1}, {256*D*2}")
    a(f"s_mul_i32 s{S_ROT}, s{S_T0}, 52")
    a(f"s_lshr_b32 s{S_ROT}, s{S_ROT}, 8")
    a(f"s_mul_i32 s{S_ROT}, s{S_ROT}, 5")
    a(f"s_sub_u32 s{S_ROT}, s{S_T0}, s{S_ROT}")
    a(f"s_lshr_b32 s{S_T2}, s{S_T0}, 3")
    a(f"s_lshl_b32 s{S_T1}, s{S_T1}, 2")
    a(f"s_add_u32 s{S_T1}, s{S_T1}, s{S_T2}")
    a(f"s_lshl_b32 s{S_TOK0}, s{S_T1}, 6")
    a(f"s_and_b32 s{S_T0}, s{S_T0}, 7")
    a(f"s_mul_i32 s{S_COL}, s{S_T0}, 160")
    make_srd(a, SRD0, P_X, 0, S * D * 2)
    make_srd(a, SRD1, P_WQ, 0, D * D * 2)
    make_srd(a, SRD2, P_WS, WS_Q, S * D * 2)
    seg = Seg(SRD1, D * 2, 80, 'p160', S_COL)
    g = Gemm(a, va, 64, 4, 1, 1, [seg], 128, K1_NS, D, SRD0, D * 2, S_TOK0, stats=True, colsum=True, sregs=GS, tag="k1q")
    g.split()
    g.setup()
    stamp(a, 0)
    g.mainloop()
    stamp(a, 1)
    lds = max(lds, g.lds_bytes)
    a("s_nop 7")
    a("s_nop 1")
    v_mean, v_rstd, v_sq, v_ad = va(), va(), va(), va()
    gram_diag(a, g, g.acc_sq[0], v_sq)
    ln_stats(a, g.acc_sum[0], v_sq, v_mean, v_rstd, g.tmp)
    a(f"v_mul_f32 v{v_rstd}, {f32(QSCALE)}, v{v_rstd}")
    t = g.tmp
    a(f"v_lshl_add_u32 v{t[0]}, v{g.v_wt}, 4, v{g.v_i16}")
    a(f"v_add_u32 v{t[0]}, s{S_TOK0}, v{t[0]}")
    a(f"v_mul_u32_u24 v{t[0]}, {D*2}, v{t[0]}")
    a(f"v_lshl_add_u32 v{v_ad}, v{g.v_g}, 3, v{t[0]}")
    a(f"v_add_u32 v{v_ad}, s{S_COL}, v{v_ad}")
    for fb in range(5):
        c, cs = g.acc[0][fb], g.acc_cs[fb]
        for r in range(4):
            a(f"v_fma_f32 v{c+r}, -v{v_mean}, v{cs+r}, v{c+r}")
            a(f"v_mul_f32 v{c+r}, v{c+r}, v{v_rstd}")
        a(f"v_cvt_pk_bf16_f32 v{c}, v{c}, v{c+1}")
        a(f"v_cvt_pk_bf16_f32 v{c+1}, v{c+2}, v{c+3}")
        a(f"buffer_store_dwordx2 {vr(c,2)}, v{v_ad}, {sr(SRD2,4)}, 0 offen offset:{fb*32}")
    stamp_end(a, 2)
    a("s_endpgm")
    maxv = max(maxv, va.n)
    g.loader(S_ROT)

    a.label("k1_kv")
    va = VAlloc(1)
    a(f"s_and_b32 s{S_T0}, s2, 7")
    a(f"s_lshl_b32 s{S_T0}, s{S_T0}, 2")
    a(f"s_lshr_b32 s{S_T1}, s2, 3")
    a(f"s_add_u32 s{S_T0}, s{S_T0}, s{S_T1}")
    a(f"s_lshl_b32 s{S_TOK0}, s{S_T0}, 6")
    make_srd(a, SRD0, P_X, 0, S * D * 2)
    make_srd(a, SRD1, P_WK, 0, D * DH * 2)
    make_srd(a, SRD2, P_WV, 0, D * DH * 2)
    make_srd(a, SRD3, P_WS, WS_KF, 0x20000)
    make_srd(a, SRD4, P_WS, WS_VF, 0x20000)
    make_srd(a, SRD5, P_WS, WS_KN, 512)
    sk = Seg(SRD1, 40, 32, 'lin40')
    sv = Seg(SRD2, 40, 32, 'lin40')
    g = Gemm(a, va, 64, 4, 1, 1, [sk, sv], 128, K1_NS, D, SRD0, D * 2, S_TOK0, stats=True, colsum=True, sregs=GS, tag="k1kv")
    g.split()
    g.setup()
    stamp(a, 0)
    g.mainloop()
    stamp(a, 1)
    lds = max(lds, g.lds_bytes)
    a("s_nop 7")
    a("s_nop 1")
    v_mean, v_rstd, v_sq, v_key, v_ak, v_av, v_n = va(), va(), va(), va(), va(), va(), va()
    gram_diag(a, g, g.acc_sq[0], v_sq)
    ln_stats(a, g.acc_sum[0], v_sq, v_mean, v_rstd, g.tmp)
    t = g.tmp
    for fi in range(4):
        c, cs = g.acc[0][fi], g.acc_cs[fi]
        for r in range(4):
            a(f"v_fma_f32 v{c+r}, -v{v_mean}, v{cs+r}, v{c+r}")
            a(f"v_mul_f32 v{c+r}, v{c+r}, v{v_rstd}")
        a(f"v_cvt_pk_bf16_f32 v{c}, v{c}, v{c+1}")
        a(f"v_cvt_pk_bf16_f32 v{c+1}, v{c+2}, v{c+3}")
    k0, k1, v0_, v1_ = g.acc[0]
    a(f"v_cmp_eq_u32 vcc, 0, v{g.v_g}")
    a("s_nop 1")
    for c in (k1, v1_):
        a(f"v_cndmask_b32 v{c}, 0, v{c}, vcc")
        a(f"v_cndmask_b32 v{c+1}, 0, v{c+1}, vcc")
    a(f"v_mov_b32 v{v_n}, 0")
    for c in (k0, k0 + 1, k1, k1 + 1):
        a(f"v_lshlrev_b32 v{t[0]}, 16, v{c}")
        a(f"v_and_b32 v{t[1]}, 0xffff0000, v{c}")
        a(f"v_fma_f32 v{v_n}, v{t[0]}, v{t[0]}, v{v_n}")
        a(f"v_fma_f32 v{v_n}, v{t[1]}, v{t[1]}, v{v_n}")
    a(f"v_mov_b32 v{t[2]}, 0x3f80")
    a(f"v_cmp_eq_u32 vcc, 1, v{g.v_g}")
    a("s_nop 1")
    a(f"v_cndmask_b32 v{k1}, v{k1}, v{t[2]}, vcc")
    a(f"v_cmp_le_u32 vcc, 2, v{g.v_g}")
    a("s_nop 1")
    a(f"v_cndmask_b32 v{v1_}, v{v1_}, v{t[2]}, vcc")
    a(f"v_lshl_add_u32 v{v_key}, v{g.v_wt}, 4, v{g.v_i16}")
    a(f"v_add_u32 v{v_key}, s{S_TOK0}, v{v_key}")
    a(f"v_lshrrev_b32 v{t[0]}, 5, v{v_key}")
    a(f"v_lshlrev_b32 v{t[0]}, 11, v{t[0]}")
    a(f"v_and_b32 v{t[1]}, 31, v{v_key}")
    a(f"v_lshl_add_u32 v{v_ak}, v{t[1]}, 4, v{t[0]}")
    a(f"v_lshrrev_b32 v{t[2]}, 1, v{g.v_g}")
    a(f"v_lshl_add_u32 v{v_ak}, v{t[2]}, 9, v{v_ak}")
    a(f"v_and_b32 v{t[2]}, 1, v{g.v_g}")
    a(f"v_lshl_add_u32 v{v_ak}, v{t[2]}, 3, v{v_ak}")
    a(f"buffer_store_dwordx2 {vr(k0,2)}, v{v_ak}, {sr(SRD3,4)}, 0 offen")
    a(f"buffer_store_dwordx2 {vr(k1,2)}, v{v_ak}, {sr(SRD3,4)}, 0 offen offset:1024")
    a(f"v_bfe_u32 v{t[2]}, v{t[1]}, 4, 1")
    a(f"v_lshl_add_u32 v{v_av}, v{t[2]}, 10, v{t[0]}")
    a(f"v_bfe_u32 v{t[2]}, v{t[1]}, 2, 1")
    a(f"v_lshl_add_u32 v{v_av}, v{t[2]}, 9, v{v_av}")
    a(f"v_bfe_u32 v{t[2]}, v{t[1]}, 3, 1")
    a(f"v_lshl_add_u32 v{v_av}, v{t[2]}, 3, v{v_av}")
    a(f"v_and_b32 v{t[2]}, 3, v{t[1]}")
    a(f"v_lshl_add_u32 v{v_av}, v{t[2]}, 1, v{v_av}")
    a(f"v_lshl_add_u32 v{v_av}, v{g.v_g}, 6, v{v_av}")
    for fb, c in enumerate((v0_, v1_)):
        for p in range(2):
            o = fb * 256 + p * 32
            a(f"buffer_store_short v{c+p}, v{v_av}, {sr(SRD4,4)}, 0 offen offset:{o}")
            a(f"buffer_store_short_d16_hi v{c+p}, v{v_av}, {sr(SRD4,4)}, 0 offen offset:{o+16}")
    xlane_add(a, v_n, g.v_lane, t[0], t[1], (16, 32))
    xlane_add(a, v_n, g.v_lane, t[0], t[1], (1, 2, 4, 8), op="v_max_f32")
    a(f"s_lshl_b32 s{S_T0}, s2, 2")
    a(f"s_add_u32 s{S_T0}, s{S_T0}, s{S_WAVE}")
    a(f"s_lshl_b32 s{S_T0}, s{S_T0}, 2")
    a(f"v_mov_b32 v{t[0]}, 0")
    a(f"v_cmp_eq_u32 vcc, 0, v{g.v_lane}")
    a(f"s_and_saveexec_b64 s[74:75], vcc")
    a(f"buffer_store_dword v{v_n}, v{t[0]}, {sr(SRD5,4)}, s{S_T0} offen")
    stamp_end(a, 2, 4)
    a("s_endpgm")
    maxv = max(maxv, va.n)
    g.loader(None)

    kernel_end(a, name, maxv)
    return (name, K1_NWG, 512, lds)

K1_NS = 2


QST = 150 * 1024


def gen_k2(a):
    name = "k2_attn_kernel"
    kernel_begin(a, name)
    a("s_cmp_ge_u32 s2, 256")
    a("s_cbranch_scc1 k2_end")
    load_kernargs(a)
    a(f"s_and_b32 s{S_XB}, s2, 7")
    a(f"s_lshr_b32 s{S_J}, s2, 3")
    a(f"s_lshr_b32 s{S_T2}, s{S_J}, 3")
    a(f"s_lshl_b32 s{S_T1}, s{S_XB}, 2")
    a(f"s_add_u32 s{S_T1}, s{S_T1}, s{S_T2}")
    a(f"s_lshl_b32 s{S_TOK0}, s{S_T1}, 6")
    a(f"s_and_b32 s{S_T0}, s{S_J}, 7")
    a(f"s_mul_i32 s{S_COL}, s{S_T0}, 160")
    va = VAlloc(1)
    t = [va() for _ in range(6)]
    v_kn = va(2, 2)
    v_l16, v_lane, v_n, v_h, v_cur, v_nxt, v_qa, v_oa = [va() for _ in range(8)]
    Q = [va(8, 4) for _ in range(2)]
    Sb = [[va(16, 4) for _ in range(2)] for _ in range(2)]
    P = [va(8, 4) for _ in range(2)]
    O = [va(16, 4) for _ in range(2)]
    KF = [va(8, 4) for _ in range(2)]
    VF = [va(8, 4) for _ in range(2)]
    v_m = [va(), va()]
    v_ob = va()
    v_cst = va()
    S_SLOT, S_CNT, S_GOFF, S_HEAD = 76, 77, 78, 79
    a(f"v_lshrrev_b32 v{t[0]}, 6, v0")
    a(f"v_and_b32 v{v_lane}, 63, v0")
    a(f"v_readfirstlane_b32 s{S_WAVE}, v{t[0]}")
    a(f"v_lshlrev_b32 v{v_l16}, 4, v{v_lane}")
    a(f"v_and_b32 v{v_n}, 31, v0")
    a(f"v_bfe_u32 v{v_h}, v0, 5, 1")
    a("s_waitcnt lgkmcnt(0)")
    make_srd(a, SRD1, P_WS, WS_KF, 0x20000)
    make_srd(a, SRD2, P_WS, WS_VF, 0x20000)
    a(f"s_cmp_ge_u32 s{S_WAVE}, 4")
    a("s_cbranch_scc1 k2_helper")
    make_srd(a, SRD0, P_WS, WS_Q, S * D * 2)
    make_srd(a, SRD3, P_WS, WS_KN, 512)
    make_srd(a, SRD4, P_WS, WS_O, S * D * 2)

    def dma_chunk(c, s_woff, v_l):
        for srd, lb in ((SRD1, 0), (SRD2, 16384)):
            for j in range(4):
                a(f"s_add_u32 m0, s{s_woff}, {(c % 3) * 32768 + lb + j*4096}")
                a(f"s_add_u32 s{S_KX}, s{s_woff}, {c * 16384 + j*4096}")
                a(f"buffer_load_dwordx4 v{v_l}, {sr(srd,4)}, s{S_KX} offen lds")

    a(f"s_mul_i32 s{S_HEAD}, s{S_WAVE}, 40")
    a(f"s_add_u32 s{S_HEAD}, s{S_HEAD}, s{S_COL}")
    a(f"v_add_u32 v{t[1]}, s{S_TOK0}, v{v_n}")
    a(f"v_mul_u32_u24 v{t[1]}, {D*2}, v{t[1]}")
    a(f"v_add_u32 v{v_ob}, s{S_HEAD}, v{t[1]}")
    a(f"v_lshl_add_u32 v{v_qa}, v{v_h}, 4, v{v_ob}")
    a(f"v_lshl_add_u32 v{v_oa}, v{v_h}, 3, v{v_ob}")
    a(f"v_lshlrev_b32 v{t[1]}, 3, v{v_lane}")
    a(f"buffer_load_dwordx2 {vr(v_kn,2)}, v{t[1]}, {sr(SRD3,4)}, 0 offen")
    for b in range(2):
        a(f"s_mov_b32 s{S_KW}, {b * 32 * D * 2}")
        a(f"buffer_load_dwordx2 {vr(Q[b],2)}, v{v_qa}, {sr(SRD0,4)}, s{S_KW} offen")
        a(f"buffer_load_dwordx2 {vr(Q[b]+2,2)}, v{v_qa}, {sr(SRD0,4)}, s{S_KW} offen offset:8")
        a(f"buffer_load_dwordx2 {vr(Q[b]+4,2)}, v{v_ob}, {sr(SRD0,4)}, s{S_KW} offen offset:32")
    stamp(a, 0)
    for b in range(2):
        for i in range(16):
            a(f"v_mov_b32 v{O[b]+i}, 0")
    for i in range(8):
        a(f"v_mov_b32 v{VF[1]+i}, 0")
        a(f"v_mov_b32 v{P[1]+i}, 0")
    for i in range(12, 16):
        a(f"v_mov_b32 v{Sb[1][1]+i}, 0")
    a(f"v_mov_b32 v{v_cur}, v{v_l16}")
    a(f"v_add_u32 v{v_nxt}, 32768, v{v_l16}")
    a("s_waitcnt vmcnt(6)")
    a(f"v_max_f32 v{v_kn}, v{v_kn}, v{v_kn+1}")
    xlane_add(a, v_kn, v_lane, t[0], t[1], (1, 2, 4, 8, 16, 32), op="v_max_f32")
    a(f"v_cmp_eq_u32 vcc, 0, v{v_h}")
    a("s_waitcnt vmcnt(0)")
    stamp(a, 1)
    for b in range(2):
        a(f"v_cndmask_b32 v{Q[b]+4}, 0, v{Q[b]+4}, vcc")
        a(f"v_cndmask_b32 v{Q[b]+5}, 0, v{Q[b]+5}, vcc")
        a(f"v_mov_b32 v{Q[b]+7}, 0")
        a(f"v_mov_b32 v{t[2]}, 0")
        for i in range(6):
            a(f"v_lshlrev_b32 v{t[0]}, 16, v{Q[b]+i}")
            a(f"v_and_b32 v{t[1]}, 0xffff0000, v{Q[b]+i}")
            a(f"v_fma_f32 v{t[2]}, v{t[0]}, v{t[0]}, v{t[2]}")
            a(f"v_fma_f32 v{t[2]}, v{t[1]}, v{t[1]}, v{t[2]}")
        xlane_add(a, t[2], v_lane, t[0], t[1], (32,))
        a(f"v_mul_f32 v{t[2]}, v{t[2]}, v{v_kn}")
        a(f"v_sqrt_f32 v{t[2]}, v{t[2]}")
        a("s_nop 0")
        a(f"v_cvt_pk_bf16_f32 v{t[2]}, -v{t[2]}, 0")
        a(f"v_cndmask_b32 v{Q[b]+6}, 0, v{t[2]}, vcc")
    a("s_barrier")
    a(f"ds_read_b128 {vr(KF[0],4)}, v{v_cur} offset:0")
    a(f"ds_read_b128 {vr(KF[0]+4,4)}, v{v_cur} offset:1024")
    a(f"ds_read_b128 {vr(KF[1],4)}, v{v_cur} offset:2048")
    a(f"ds_read_b128 {vr(KF[1]+4,4)}, v{v_cur} offset:3072")
    a(f"ds_read_b128 {vr(VF[0],4)}, v{v_cur} offset:16384")
    a(f"ds_read_b128 {vr(VF[0]+4,4)}, v{v_cur} offset:17408")
    a("s_waitcnt lgkmcnt(0)")

    def qk(b, par, s, kf):
        d = vr(Sb[b][par], 16)
        c = "0" if s == 0 else d
        return f"v_mfma_f32_32x32x16_bf16 {d}, {vr(kf+4*s,4)}, {vr(Q[b]+4*s,4)}, {c}"

    def pv(b, s, vf):
        d = vr(O[b], 16)
        return f"v_mfma_f32_32x32x16_bf16 {d}, {vr(vf+4*s,4)}, {vr(P[b]+4*s,4)}, {d}"

    for b in range(2):
        a(qk(b, 0, 0, KF[0]))
        a(qk(b, 0, 1, KF[0]))
    a("s_nop 7")
    a("s_nop 7")
    a(f"s_mov_b32 s{S_CNT}, 8")
    a(f"s_mov_b32 s{S_SLOT}, 65536")
    stamp(a, 2)
    a.label("k2_loop")

    def exps(b, par, i0):
        return [f"v_exp_f32 v{Sb[b][par]+i}, v{Sb[b][par]+i}" for i in range(i0, i0 + 4)]

    def cvts(b, par, i0):
        return [f"v_cvt_pk_bf16_f32 v{P[b]+(i0+i)//2}, v{Sb[b][par]+i0+i}, v{Sb[b][par]+i0+i+1}" for i in (0, 2)]

    for ph in range(8):
        p = ph & 1
        q = p ^ 1
        kt, vt = ph + 2, ph + 1
        kreg = v_cur if kt < 8 else v_nxt
        vreg = v_cur if vt < 8 else v_nxt
        kr = [f"ds_read_b128 {vr(KF[p]+4*s,4)}, v{kreg} offset:{(kt%8)*2048 + s*1024}" for s in range(2)]
        vrd = [f"ds_read_b128 {vr(VF[q]+4*s,4)}, v{vreg} offset:{16384 + (vt%8)*2048 + s*1024}" for s in range(2)]
        M = [qk(0, q, 0, KF[q]), pv(1, 1, VF[q]), qk(0, q, 1, KF[q]), pv(0, 0, VF[p]),
             qk(1, q, 0, KF[q]), pv(0, 1, VF[p]), qk(1, q, 1, KF[q]), pv(1, 0, VF[p])]
        V = [cvts(1, q, 12) + exps(0, p, 0),
             exps(0, p, 4),
             cvts(0, p, 0) + cvts(0, p, 4) + exps(0, p, 8),
             cvts(0, p, 8) + exps(0, p, 12),
             cvts(0, p, 12) + exps(1, p, 0),
             exps(1, p, 4),
             cvts(1, p, 0) + cvts(1, p, 4) + exps(1, p, 8),
             cvts(1, p, 8) + exps(1, p, 12)]
        extra = [[] for _ in range(8)]
        dm = []
        if ph == 6:
            if INSTR:
                a("s_memtime s[98:99]")
                a("s_waitcnt lgkmcnt(0)")
                a("s_sub_u32 s98, s98, s80")
                a(f"s_lshl_b32 m0, s{S_CNT}, 1")
                a("s_nop 0")
                a(f"v_writelane_b32 v{v_cst}, s98, m0")
            a("s_barrier")
            if INSTR:
                a("s_memtime s[98:99]")
                a("s_waitcnt lgkmcnt(0)")
                a("s_sub_u32 s98, s98, s80")
                a(f"s_add_u32 m0, m0, 1")
                a("s_nop 0")
                a(f"v_writelane_b32 v{v_cst}, s98, m0")
        a("s_waitcnt lgkmcnt(0)")
        extra[0] += kr
        extra[2] += vrd
        for i, u in enumerate(dm):
            extra[i] += u
        for i in range(8):
            a(M[i])
            for l in extra[i]:
                a(l)
            for l in V[i]:
                a(l)
    a(f"v_mov_b32 v{v_cur}, v{v_nxt}")
    a(f"v_add_u32 v{v_nxt}, s{S_SLOT}, v{v_l16}")
    a(f"s_add_u32 s{S_SLOT}, s{S_SLOT}, 32768")
    a(f"s_cmp_eq_u32 s{S_SLOT}, 98304")
    a(f"s_cselect_b32 s{S_SLOT}, 0, s{S_SLOT}")
    a(f"s_sub_u32 s{S_CNT}, s{S_CNT}, 1")
    a(f"s_cmp_lg_u32 s{S_CNT}, 0")
    a("s_cbranch_scc1 k2_loop")
    for l in cvts(1, 1, 12):
        a(l)
    a("s_nop 1")
    a(pv(1, 1, VF[1]))
    a("s_waitcnt vmcnt(0) lgkmcnt(0)")
    a("s_nop 7")
    a("s_nop 7")
    stamp(a, 3)
    a(f"v_mov_b32 v{t[0]}, {f32(2.0**-40)}")
    a(f"v_cmp_nge_f32 s[74:75], v{O[0]+12}, v{t[0]}")
    a(f"v_cmp_nge_f32 vcc, v{O[1]+12}, v{t[0]}")
    a("s_nop 3")
    a("s_or_b64 vcc, vcc, s[74:75]")
    a("s_cbranch_vccnz k2_slow")
    a.label("k2_epi")
    for b in range(2):
        a(f"v_rcp_f32 v{t[0]}, v{O[b]+12}")
        a("s_nop 0")
        for i in range(12):
            a(f"v_mul_f32 v{O[b]+i}, v{O[b]+i}, v{t[0]}")
        for i in range(6):
            a(f"v_cvt_pk_bf16_f32 v{O[b]+i}, v{O[b]+2*i}, v{O[b]+2*i+1}")
        a(f"s_mov_b32 s{S_KW}, {b*32*D*2}")
        a(f"buffer_store_dwordx2 {vr(O[b],2)}, v{v_oa}, {sr(SRD4,4)}, s{S_KW} offen")
        a(f"buffer_store_dwordx2 {vr(O[b]+2,2)}, v{v_oa}, {sr(SRD4,4)}, s{S_KW} offen offset:16")
    a(f"v_cmp_eq_u32 vcc, 0, v{v_h}")
    a("s_nop 3")
    a("s_and_saveexec_b64 s[74:75], vcc")
    for b in range(2):
        a(f"s_mov_b32 s{S_KW}, {b*32*D*2}")
        a(f"buffer_store_dwordx2 {vr(O[b]+4,2)}, v{v_oa}, {sr(SRD4,4)}, s{S_KW} offen offset:32")
    if os.environ.get("RBW"):
        a("s_waitcnt vmcnt(0)")
    for b in range(2 if not os.environ.get("NORB2") else 0):
        a(f"s_mov_b32 s{S_KW}, {b*32*D*2}")
        a(f"buffer_load_dword v{t[0]}, v{v_ob}, {sr(SRD4,4)}, s{S_KW} offen sc1")
        a(f"buffer_load_dword v{t[1]}, v{v_ob}, {sr(SRD4,4)}, s{S_KW} offen offset:36 sc1")
    if INSTR:
        lab = a.newlabel("hs")
        a("s_mov_b64 exec, -1")
        a(f"s_cmp_lg_u32 s2, {INSTR_WG}")
        a(f"s_cbranch_scc1 {lab}")
        a(f"s_cmp_lg_u32 s{S_WAVE}, 0")
        a(f"s_cbranch_scc1 {lab}")
        make_srd(a, 92, P_DBG, 0, 256)
        a(f"v_lshlrev_b32 v{t[0]}, 2, v{v_lane}")
        a(f"buffer_store_dword v{v_cst}, v{t[0]}, s[92:95], 0 offen offset:184")
        a.label(lab)
    stamp_end(a, 4)
    a.label("k2_end")
    a("s_endpgm")

    a.label("k2_slow")
    for b in range(2):
        a(f"v_mov_b32 v{Q[b]+6}, 0")
        a(f"v_mov_b32 v{v_m[b]}, 0xff800000")
    a(f"s_mov_b32 s{S_GOFF}, 0")
    a.label("k2_slow1")
    a(f"buffer_load_dwordx4 {vr(KF[0],4)}, v{v_l16}, {sr(SRD1,4)}, s{S_GOFF} offen")
    a(f"buffer_load_dwordx4 {vr(KF[0]+4,4)}, v{v_l16}, {sr(SRD1,4)}, s{S_GOFF} offen offset:1024")
    a("s_waitcnt vmcnt(0)")
    for b in range(2):
        a(qk(b, 0, 0, KF[0]))
        a(qk(b, 0, 1, KF[0]))
    a("s_nop 7")
    a("s_nop 7")
    for b in range(2):
        for i in range(0, 16, 2):
            a(f"v_max3_f32 v{v_m[b]}, v{Sb[b][0]+i}, v{Sb[b][0]+i+1}, v{v_m[b]}")
    a(f"s_add_u32 s{S_GOFF}, s{S_GOFF}, 2048")
    a(f"s_cmp_lt_u32 s{S_GOFF}, 0x20000")
    a("s_cbranch_scc1 k2_slow1")
    a(f"v_cmp_eq_u32 vcc, 0, v{v_h}")
    for b in range(2):
        xlane_add(a, v_m[b], v_lane, t[0], t[1], (32,), op="v_max_f32")
        a(f"v_cvt_pk_bf16_f32 v{t[2]}, -v{v_m[b]}, 0")
        a(f"v_cndmask_b32 v{Q[b]+6}, 0, v{t[2]}, vcc")
        for i in range(16):
            a(f"v_mov_b32 v{O[b]+i}, 0")
    a(f"s_mov_b32 s{S_GOFF}, 0")
    a.label("k2_slow2")
    a(f"buffer_load_dwordx4 {vr(KF[0],4)}, v{v_l16}, {sr(SRD1,4)}, s{S_GOFF} offen")
    a(f"buffer_load_dwordx4 {vr(KF[0]+4,4)}, v{v_l16}, {sr(SRD1,4)}, s{S_GOFF} offen offset:1024")
    a(f"buffer_load_dwordx4 {vr(VF[0],4)}, v{v_l16}, {sr(SRD2,4)}, s{S_GOFF} offen")
    a(f"buffer_load_dwordx4 {vr(VF[0]+4,4)}, v{v_l16}, {sr(SRD2,4)}, s{S_GOFF} offen offset:1024")
    a("s_waitcnt vmcnt(0)")
    for b in range(2):
        a(qk(b, 0, 0, KF[0]))
        a(qk(b, 0, 1, KF[0]))
    a("s_nop 7")
    a("s_nop 7")
    for b in range(2):
        for i0 in range(0, 16, 4):
            for l in exps(b, 0, i0):
                a(l)
        a("s_nop 0")
        for i0 in range(0, 16, 4):
            for l in cvts(b, 0, i0):
                a(l)
    a("s_nop 1")
    for b in range(2):
        a(pv(b, 0, VF[0]))
        a(pv(b, 1, VF[0]))
    a("s_nop 7")
    a("s_nop 7")
    a(f"s_add_u32 s{S_GOFF}, s{S_GOFF}, 2048")
    a(f"s_cmp_lt_u32 s{S_GOFF}, 0x20000")
    a("s_cbranch_scc1 k2_slow2")
    a("s_branch k2_epi")

    if True:
        a.label("k2_helper")
        v_l, v_rb, dummy = v_lane, t[1], t[2]
        a(f"s_and_b32 s{S_WOFF}, s{S_WAVE}, 3")
        a(f"s_lshl_b32 s{S_T2}, s{S_J}, 2")
        a(f"s_add_u32 s{S_T2}, s{S_T2}, s{S_WOFF}")
        a(f"s_lshl_b32 s{S_WOFF}, s{S_WOFF}, 10")
        a(f"v_lshlrev_b32 v{v_rb}, 7, v{v_l}")
        a(f"v_lshlrev_b32 v{v_l}, 4, v{v_l}")
        dma_chunk(0, S_WOFF, v_l)
        dma_chunk(1, S_WOFF, v_l)
        make_srd(a, SRD3, P_WS, WS_IMG, IMG_SZ)
        a("s_waitcnt vmcnt(8)")
        a("s_barrier")

        def touch(c):
            if c == 0:
                a(f"s_mul_i32 s{S_T1}, s{S_T2}, {50*128}")
            elif c in (1, 2):
                a(f"s_mul_i32 s{S_T1}, s{S_T2}, {120*128}")
                a(f"s_and_b32 s{S_T0}, s{S_XB}, 1")
                a(f"s_mul_i32 s{S_T0}, s{S_T0}, {1966080}")
                a(f"s_add_u32 s{S_T1}, s{S_T1}, s{S_T0}")
                a(f"s_add_u32 s{S_T1}, s{S_T1}, {IMG_GU + (c-1)*56*128}")
            else:
                return 0
            a(f"buffer_load_dword v{dummy}, v{v_rb}, {sr(SRD3,4)}, s{S_T1} offen")
            return 1

        extra = 0
        for c in range(8):
            a(f"s_waitcnt vmcnt({extra})")
            a("s_barrier")
            if c + 2 < 8:
                dma_chunk(c + 2, S_WOFF, v_l)
            extra = touch(c)
        a("s_endpgm")

    kernel_end(a, name, va.n)
    return (name, 256, 512, 98304)


def gen_proj(a, which):
    name = "k3_wo_kernel" if which == 3 else "k5_down_kernel"
    end = name + "_end"
    kernel_begin(a, name)
    a("s_cmp_ge_u32 s2, 256")
    a(f"s_cbranch_scc1 {end}")
    load_kernargs(a)
    va = VAlloc(1)
    a(f"s_and_b32 s{S_T1}, s2, 7")
    a(f"s_lshr_b32 s{S_T0}, s2, 3")
    a(f"s_mov_b32 s{S_J}, s{S_T0}")
    a(f"s_mov_b32 s{S_XB}, s{S_T1}")
    if which == 3:
        a(f"s_mul_i32 s{S_ROT}, s{S_T0}, 52")
        a(f"s_lshr_b32 s{S_ROT}, s{S_ROT}, 8")
        a(f"s_mul_i32 s{S_ROT}, s{S_ROT}, 5")
        a(f"s_sub_u32 s{S_ROT}, s{S_T0}, s{S_ROT}")
    else:
        a(f"s_and_b32 s{S_ROT}, s{S_T1}, 1")
        a(f"s_mul_i32 s{S_ROT}, s{S_ROT}, 6")
        a(f"s_and_b32 s{S_T2}, s{S_T0}, 1")
        a(f"s_add_u32 s{S_ROT}, s{S_ROT}, s{S_T2}")
    if which == 3:
        a(f"s_lshr_b32 s{S_T2}, s{S_T0}, 3")
        a(f"s_lshl_b32 s{S_T1}, s{S_T1}, 2")
        a(f"s_add_u32 s{S_T1}, s{S_T1}, s{S_T2}")
        a(f"s_lshl_b32 s{S_TOK0}, s{S_T1}, 6")
        a(f"s_and_b32 s{S_T0}, s{S_T0}, 7")
    else:
        a(f"s_lshr_b32 s{S_T2}, s{S_T1}, 1")
        a(f"s_lshl_b32 s{S_T2}, s{S_T2}, 3")
        a(f"s_and_b32 s{S_TOK0}, s{S_T0}, 7")
        a(f"s_add_u32 s{S_TOK0}, s{S_TOK0}, s{S_T2}")
        a(f"s_lshl_b32 s{S_TOK0}, s{S_TOK0}, 6")
        a(f"s_and_b32 s{S_T1}, s{S_T1}, 1")
        a(f"s_lshl_b32 s{S_T1}, s{S_T1}, 2")
        a(f"s_lshr_b32 s{S_T0}, s{S_T0}, 3")
        a(f"s_add_u32 s{S_T0}, s{S_T0}, s{S_T1}")
    a(f"s_mul_i32 s{S_COL}, s{S_T0}, 160")
    a("s_waitcnt lgkmcnt(0)")
    if which == 3:
        K = D
        make_srd(a, SRD0, P_WS, WS_O, S * D * 2)
        make_srd(a, SRD1, P_WS, WS_IMG, IMG_SZ)
        a(f"s_mul_i32 s{S_IMG}, s{S_T0}, {5*20480}")
        make_srd(a, SRD2, P_WS, WS_H, S * D * 2)
        make_srd(a, SRD3, P_X, 0, S * D * 2)
        make_srd(a, SRD4, P_WS, WS_ST, S * 64)
    else:
        K = F
        make_srd(a, SRD0, P_WS, WS_ACT, S * F * 2)
        make_srd(a, SRD1, P_WS, WS_IMG, IMG_SZ)
        a(f"s_mul_i32 s{S_IMG}, s{S_T0}, {12*20480}")
        make_srd(a, SRD2, P_OUT, 0, S * D * 2)
        make_srd(a, SRD3, P_WS, WS_H, S * D * 2)
    seg = Seg(SRD1, D * 2, 80, 'p160', S_COL, img=(S_IMG, 20480, IMG_WO if which == 3 else IMG_WD))
    g = Gemm(a, va, 64, 2, 2, 1, [seg], 128, 4, K, SRD0, K * 2, S_TOK0, sregs=GS, tag=f"k{which}")
    g.split()
    v_dummy = va()
    if which == 5 and PF:
        a(f"s_lshr_b32 s{S_T1}, s{S_XB}, 1")
        a(f"s_mul_i32 s{S_T1}, s{S_T1}, {512*K*2}")
        prefetch_lin(a, 0, g.tmp[0], v_dummy, SRD0, S_T1, S_J, 512*K*2//128//32, S_T2)
    g.setup()
    t = g.tmp
    v_ad, v_tok, v_x = va(), va(), va()
    res = va(10, 2)
    a(f"v_lshl_add_u32 v{v_tok}, v{g.v_wt}, 1, v{g.v_wo}")
    a(f"v_lshl_add_u32 v{v_tok}, v{v_tok}, 4, v{g.v_i16}")
    a(f"v_add_u32 v{v_tok}, s{S_TOK0}, v{v_tok}")
    a(f"v_mul_u32_u24 v{t[0]}, {D*2}, v{v_tok}")
    a(f"v_lshl_add_u32 v{v_ad}, v{g.v_g}, 3, v{t[0]}")
    a(f"v_add_u32 v{v_ad}, s{S_COL}, v{v_ad}")
    for fb in range(5):
        a(f"buffer_load_dwordx2 {vr(res+2*fb,2)}, v{v_ad}, {sr(SRD3,4)}, 0 offen offset:{fb*32}")
    stamp(a, 0)
    g.mainloop()
    stamp(a, 1)
    a("s_nop 7")
    a("s_barrier")
    skip = a.newlabel("xs")
    a(f"s_cmp_lt_u32 s{S_WAVE}, 2")
    a(f"s_cbranch_scc1 {skip}")
    for fb in range(5):
        for r in range(4):
            a(f"v_swap_b32 v{g.acc[0][fb]+r}, v{g.acc[1][fb]+r}")
    a.label(skip)
    a(f"v_mul_u32_u24 v{t[0]}, 5120, v{g.v_wave}")
    a(f"v_lshl_add_u32 v{t[0]}, v{g.v_lane}, 4, v{t[0]}")
    a(f"v_xor_b32 v{t[1]}, 2, v{g.v_wave}")
    a(f"v_mul_u32_u24 v{t[1]}, 5120, v{t[1]}")
    a(f"v_lshl_add_u32 v{t[1]}, v{g.v_lane}, 4, v{t[1]}")
    for fb in range(5):
        a(f"ds_write_b128 v{t[0]}, {vr(g.acc[1][fb],4)} offset:{fb*1024}")
    a("s_waitcnt lgkmcnt(0)")
    a("s_barrier")
    for fb in range(5):
        a(f"ds_read_b128 {vr(g.acc[1][fb],4)}, v{t[1]} offset:{fb*1024}")
    a("s_waitcnt lgkmcnt(0)")
    v_s, v_q = va(2, 2), None
    v_q = v_s + 1
    if which == 3:
        a(f"v_mov_b32 v{v_s}, 0")
        a(f"v_mov_b32 v{v_q}, 0")
    for fb in range(5):
        c, o = g.acc[0][fb], g.acc[1][fb]
        for p in range(2):
            a(f"v_lshlrev_b32 v{t[0]}, 16, v{res+2*fb+p}")
            a(f"v_and_b32 v{t[1]}, 0xffff0000, v{res+2*fb+p}")
            a(f"v_add_f32 v{c+2*p}, v{c+2*p}, v{o+2*p}")
            a(f"v_add_f32 v{c+2*p+1}, v{c+2*p+1}, v{o+2*p+1}")
            a(f"v_cvt_pk_bf16_f32 v{t[2]}, v{c+2*p}, v{c+2*p+1}")
            a(f"v_lshlrev_b32 v{t[3]}, 16, v{t[2]}")
            a(f"v_and_b32 v{t[2]}, 0xffff0000, v{t[2]}")
            a(f"v_add_f32 v{t[0]}, v{t[0]}, v{t[3]}")
            a(f"v_add_f32 v{t[1]}, v{t[1]}, v{t[2]}")
            a(f"v_cvt_pk_bf16_f32 v{o+p}, v{t[0]}, v{t[1]}")
            if which == 3:
                a(f"v_lshlrev_b32 v{t[0]}, 16, v{o+p}")
                a(f"v_and_b32 v{t[1]}, 0xffff0000, v{o+p}")
                a(f"v_add_f32 v{v_s}, v{v_s}, v{t[0]}")
                a(f"v_fma_f32 v{v_q}, v{t[0]}, v{t[0]}, v{v_q}")
                a(f"v_add_f32 v{v_s}, v{v_s}, v{t[1]}")
                a(f"v_fma_f32 v{v_q}, v{t[1]}, v{t[1]}, v{v_q}")
        a(f"buffer_store_dwordx2 {vr(o,2)}, v{v_ad}, {sr(SRD2,4)}, 0 offen offset:{fb*32}")
    if which == 3:
        xlane_add(a, v_s, g.v_lane, t[0], t[1], (16, 32))
        xlane_add(a, v_q, g.v_lane, t[0], t[1], (16, 32))
        a(f"v_lshlrev_b32 v{t[0]}, 6, v{v_tok}")
        a(f"s_lshl_b32 s{S_T0}, s{S_T0}, 3")
        a(f"v_cmp_eq_u32 vcc, 0, v{g.v_g}")
        a("s_nop 3")
        a("s_and_saveexec_b64 s[74:75], vcc")
        a(f"buffer_store_dwordx2 {vr(v_s,2)}, v{t[0]}, {sr(SRD4,4)}, s{S_T0} offen")
        if os.environ.get("RBW"):
            a("s_waitcnt vmcnt(0)")
        for o in ((0, 80, 156) if not os.environ.get("NORB3") else ()):
            a(f"buffer_load_dword v{t[1]}, v{v_ad}, {sr(SRD2,4)}, 0 offen offset:{o} sc1")
    stamp_end(a, 2)
    a.label(end)
    a("s_endpgm")
    g.loader(S_ROT)
    kernel_end(a, name, va.n)
    return (name, 256, 512, g.lds_bytes)


def gen_k4(a):
    name = "k4_ffn_kernel"
    kernel_begin(a, name)
    a("s_cmp_ge_u32 s2, 256")
    a("s_cbranch_scc1 k4_end")
    load_kernargs(a)
    va = VAlloc(1)
    a(f"s_and_b32 s{S_XB}, s2, 7")
    a(f"s_lshr_b32 s{S_J}, s2, 3")
    a(f"s_mul_i32 s{S_ROT}, s{S_J}, 26")
    a(f"s_lshr_b32 s{S_ROT}, s{S_ROT}, 8")
    a(f"s_mul_i32 s{S_ROT}, s{S_ROT}, 10")
    a(f"s_sub_u32 s{S_ROT}, s{S_J}, s{S_ROT}")
    a(f"s_lshr_b32 s{S_T2}, s{S_XB}, 1")
    a(f"s_lshl_b32 s{S_T2}, s{S_T2}, 2")
    a(f"s_and_b32 s{S_TOK0}, s{S_J}, 3")
    a(f"s_add_u32 s{S_TOK0}, s{S_TOK0}, s{S_T2}")
    a(f"s_lshl_b32 s{S_TOK0}, s{S_TOK0}, 7")
    a(f"s_lshr_b32 s{S_T2}, s{S_J}, 2")
    a(f"s_and_b32 s{S_T1}, s{S_XB}, 1")
    a(f"s_lshl_b32 s{S_T1}, s{S_T1}, 3")
    a(f"s_add_u32 s{S_T0}, s{S_T2}, s{S_T1}")
    a(f"s_mul_i32 s{S_COL}, s{S_T0}, 192")
    a(f"s_mul_i32 s{S_IMG}, s{S_T0}, {10*24576}")
    a("s_waitcnt lgkmcnt(0)")
    make_srd(a, SRD0, P_WS, WS_H, S * D * 2)
    make_srd(a, SRD1, P_WS, WS_IMG, IMG_SZ)
    make_srd(a, SRD3, P_WS, WS_ACT, S * F * 2)
    sg = Seg(SRD1, F * 2, 96, 'p192', S_COL, img=(S_IMG, 24576, IMG_GU))
    su = Seg(SRD1, F * 2, 96, 'p192', S_COL, img=(S_IMG, 24576, IMG_GU + 12288))
    g = Gemm(a, va, 128, 2, 1, 2, [sg, su], 64, K4_NS, D, SRD0, D * 2, S_TOK0, sregs=GS, tag="k4")
    TAB = g.lds_bytes
    g.split()
    g.setup()
    t = g.tmp
    v_tok, v_ad, v_ta, v_tc = va(), va(), va(), va()
    a(f"v_lshl_add_u32 v{v_tok}, v{g.v_wt}, 6, v{g.v_i16}")
    a(f"v_lshlrev_b32 v{v_ta}, 4, v{v_tok}")
    a(f"v_add_u32 v{v_ta}, {TAB}, v{v_ta}")
    a(f"v_add_u32 v{v_tok}, s{S_TOK0}, v{v_tok}")
    a(f"v_mul_u32_u24 v{t[1]}, 48, v{g.v_wo}")
    a(f"v_lshl_add_u32 v{t[1]}, v{g.v_g}, 2, v{t[1]}")
    a(f"v_lshlrev_b32 v{v_tc}, 2, v{t[1]}")
    a(f"v_add_u32 v{v_tc}, {TAB + 2048}, v{v_tc}")
    a(f"v_mul_u32_u24 v{v_ad}, {F*2}, v{v_tok}")
    a(f"v_lshl_add_u32 v{v_ad}, v{t[1]}, 1, v{v_ad}")
    a(f"v_add_u32 v{v_ad}, s{S_COL}, v{v_ad}")
    a(f"v_mul_u32_u24 v{v_tok}, 20, v{g.v_g}")
    a(f"v_add_u32 v{v_tok}, v{v_tok}, v{v_ad}")
    stamp(a, 0)
    g.mainloop()
    stamp(a, 1)
    a("s_barrier")
    st = g.fa[0]
    cs = g.fa[1]
    tmp = g.fb[0]
    for tb in range(4):
        a(f"ds_read_b128 {vr(st+4*tb,4)}, v{v_ta} offset:{tb*256}")
    for sgi in range(2):
        for fb in range(3):
            a(f"ds_read_b128 {vr(cs+12*sgi+4*fb,4)}, v{v_tc} offset:{sgi*384 + fb*64}")
    a("s_waitcnt lgkmcnt(0)")
    for tb in range(4):
        vm, vA, vB, vC = [st + 4 * tb + i for i in range(4)]
        pm, pB = vr(vm, 2), vr(vB, 2)
        for fb in range(3):
            cg, cu = g.acc[tb][fb], g.acc[tb][3 + fb]
            z = tmp + 8 * (fb & 1)
            for h in (0, 2):
                a(f"v_pk_fma_f32 {vr(cg+h,2)}, {pm}, {vr(cs+4*fb+h,2)}, {vr(cg+h,2)} op_sel_hi:[0,1,1]")
                a(f"v_pk_fma_f32 {vr(cu+h,2)}, {pm}, {vr(cs+12+4*fb+h,2)}, {vr(cu+h,2)} op_sel_hi:[0,1,1]")
            for h in (0, 2):
                a(f"v_pk_mul_f32 {vr(z+h,2)}, {vr(cg+h,2)}, {vr(cg+h,2)}")
                a(f"v_pk_mul_f32 {vr(cu+h,2)}, {vr(cu+h,2)}, {vr(cg+h,2)}")
            for h in (0, 2):
                a(f"v_pk_fma_f32 {vr(z+h,2)}, {vr(z+h,2)}, {pB}, {pm} op_sel:[0,0,1] op_sel_hi:[1,0,1]")
            for h in (0, 2):
                a(f"v_pk_mul_f32 {vr(z+h,2)}, {vr(z+h,2)}, {vr(cg+h,2)}")
            for r in range(4):
                a(f"v_exp_f32 v{z+r}, v{z+r}")
            for h in (0, 2):
                a(f"v_pk_fma_f32 {vr(z+h,2)}, {vr(z+h,2)}, {pB}, {pB} op_sel:[0,1,1] op_sel_hi:[1,1,1]")
            for r in range(4):
                a(f"v_rcp_f32 v{z+r}, v{z+r}")
            a("s_nop 0")
            for h in (0, 2):
                a(f"v_pk_mul_f32 {vr(cu+h,2)}, {vr(cu+h,2)}, {vr(z+h,2)}")
            a(f"v_cvt_pk_bf16_f32 v{cu}, v{cu}, v{cu+1}")
            a(f"v_cvt_pk_bf16_f32 v{cu+1}, v{cu+2}, v{cu+3}")
            a(f"s_mov_b32 s{S_KW}, {tb*16*F*2}")
            a(f"buffer_store_dwordx2 {vr(cu,2)}, v{v_ad}, {sr(SRD3,4)}, s{S_KW} offen offset:{fb*32}")
        if not os.environ.get("NORB4"):
            a(f"buffer_load_dword v{t[1]}, v{v_tok}, {sr(SRD3,4)}, s{S_KW} offen sc1")
    stamp(a, 2)
    stamp_end(a, 3)
    a.label("k4_end")
    a("s_endpgm")

    GC = -2.0 * 0.7978845608028654 * 1.4426950408889634
    pre = {}

    def early(lva, lt):
        make_srd(a, SRD4, P_WS, WS_ST, S * 64)
        make_srd(a, SRD5, P_WS, WS_CS, 4 * 3072 * 4)
        buf = lva(16, 4)
        pre['buf'] = buf
        l2, l3 = a.newlabel("k4e"), a.newlabel("k4e")
        a(f"s_cmp_ge_u32 s{S_WAVE}, 6")
        a(f"s_cbranch_scc1 {l2}")
        a(f"v_add_u32 v{lt[0]}, s{S_TOK0}, v0")
        a(f"v_lshlrev_b32 v{lt[0]}, 6, v{lt[0]}")
        for i in range(4):
            a(f"buffer_load_dwordx4 {vr(buf+4*i,4)}, v{lt[0]}, {sr(SRD4,4)}, 0 offen offset:{i*16}")
        a(f"s_branch {l3}")
        a.label(l2)
        a(f"v_and_b32 v{lt[0]}, 63, v0")
        a(f"v_min_u32 v{lt[0]}, 23, v{lt[0]}")
        a(f"v_lshlrev_b32 v{lt[0]}, 4, v{lt[0]}")
        a(f"s_sub_u32 s{S_T1}, s{S_WAVE}, 6")
        a(f"s_mul_i32 s{S_T1}, s{S_T1}, {1536*4}")
        a(f"s_lshl_b32 s{S_T2}, s{S_COL}, 1")
        a(f"s_add_u32 s{S_T1}, s{S_T1}, s{S_T2}")
        for i in range(4):
            a(f"buffer_load_dwordx4 {vr(buf+4*i,4)}, v{lt[0]}, {sr(SRD5,4)}, s{S_T1} offen")
            a(f"s_add_u32 s{S_T1}, s{S_T1}, {3072*4}")
        a.label(l3)

    def cont(lva, lt):
        buf = pre['buf']
        a(f"s_and_b32 s{S_T1}, s{S_XB}, 1")
        a(f"s_mul_i32 s{S_T1}, s{S_T1}, 983040")
        a(f"s_mul_i32 s{S_T2}, s{S_J}, {240*128}")
        a(f"s_add_u32 s{S_T1}, s{S_T1}, s{S_T2}")
        a(f"s_add_u32 s{S_T1}, s{S_T1}, {IMG_WD}")
        a(f"v_min_u32 v{lt[0]}, 239, v0")
        a(f"v_lshlrev_b32 v{lt[0]}, 7, v{lt[0]}")
        if not os.environ.get("NOWDPF"):
            a(f"buffer_load_dword v{lt[5]}, v{lt[0]}, {sr(SRD1,4)}, s{S_T1} offen")
        l2, l3 = a.newlabel("k4e"), a.newlabel("k4e")
        a(f"s_cmp_ge_u32 s{S_WAVE}, 6")
        a(f"s_cbranch_scc1 {l2}")
        for i in range(1, 8):
            a(f"v_add_f32 v{buf}, v{buf}, v{buf+2*i}")
            a(f"v_add_f32 v{buf+1}, v{buf+1}, v{buf+2*i+1}")
        ln_stats(a, buf, buf + 1, buf + 4, buf + 8, lt)
        a(f"v_sub_f32 v{buf+4}, 0, v{buf+4}")
        a(f"v_mul_f32 v{buf+5}, {f32(GC)}, v{buf+8}")
        a(f"v_mul_f32 v{buf+9}, v{buf+8}, v{buf+8}")
        a(f"v_mul_f32 v{buf+6}, v{buf+9}, v{buf+8}")
        a(f"v_mul_f32 v{buf+6}, {f32(GC*0.044715)}, v{buf+6}")
        a(f"v_rcp_f32 v{buf+7}, v{buf+9}")
        a(f"v_lshlrev_b32 v{lt[0]}, 4, v0")
        a(f"v_add_u32 v{lt[0]}, {TAB}, v{lt[0]}")
        a(f"ds_write_b128 v{lt[0]}, {vr(buf+4,4)}")
        a(f"s_branch {l3}")
        a.label(l2)
        for i in range(4):
            a(f"v_add_f32 v{buf+i}, v{buf+i}, v{buf+4+i}")
            a(f"v_add_f32 v{buf+8+i}, v{buf+8+i}, v{buf+12+i}")
            a(f"v_add_f32 v{buf+i}, v{buf+i}, v{buf+8+i}")
        a(f"v_and_b32 v{lt[0]}, 63, v0")
        a(f"v_min_u32 v{lt[0]}, 23, v{lt[0]}")
        a(f"v_lshlrev_b32 v{lt[0]}, 4, v{lt[0]}")
        a(f"s_sub_u32 s{S_T1}, s{S_WAVE}, 6")
        a(f"s_mul_i32 s{S_T1}, s{S_T1}, 384")
        a(f"s_add_u32 s{S_T1}, s{S_T1}, {TAB + 2048}")
        a(f"v_add_u32 v{lt[0]}, s{S_T1}, v{lt[0]}")
        a(f"ds_write_b128 v{lt[0]}, {vr(buf,4)}")
        a.label(l3)
        a("s_waitcnt lgkmcnt(0)")
        a("s_barrier")
        a("s_endpgm")

    g.loader(S_ROT, cont=cont, early=early)
    kernel_end(a, name, max(va.n, g.loader_vgprs))
    return (name, 256, 512, g.lds_bytes + 4096)

K4_NS = 3


def main():
    a = Asm()
    a.raw('.amdgcn_target "amdgcn-amd-amdhsa--gfx950"')
    a.raw(".text")
    launches = [gen_k1(a), gen_k2(a), gen_proj(a, 3), gen_k4(a), gen_proj(a, 5)]
    head = open("cdna_kernels/" + NAME + ".s.ref").read().split("\n")
    hdr = [l for l in head if l.startswith(";") and "@launch" not in l and "Override launch" not in l and "grid=ceil" not in l]
    out = "\n".join(hdr) + "\n"
    for n, gx, bx, lds in launches:
        out += f"; @launch kernel={n} grid=({gx},1,1) block=({bx},1,1) lds={lds}\n"
    out += a.text()
    out += '.section .rodata,"a"\n' + "".join(KDS)
    path = sys.argv[1] if len(sys.argv) > 1 else "cdna_kernels/" + NAME + ".s"
    open(path, "w").write(out)
    print("wrote", path, len(out), "bytes;", launches)

if __name__ == "__main__":
    main()
```

```python
import sys

NAME = "sequential_preLN__grouped_kv_mqa__geglu_ffn__prompt"

S, D, H, DH, F = 2048, 640, 32, 20, 1536

WS_Q   = 0
WS_KF  = 0x280000
WS_KV  = WS_KF
KV_SZ  = 163840
NCS    = 8
WS_VF  = WS_KF + 0x20000
WS_KN  = WS_VF + 0x20000
WS_CS  = WS_KN + 0x1000
WS_O   = WS_CS + 0x20000
WS_H   = WS_O + 0x280000
WS_ST  = WS_H + 0x280000
WS_ACT = WS_ST + 0x20000
WS_S1  = WS_ACT + 0x600000
WS_IMG = WS_S1 + 0x4000
WS_TL = 0x3000000
IMG_WO, IMG_WD, IMG_GU, IMG_SZ = 0, 819200, 819200 + 1966080, 6717440

KA_X, KA_WQ, KA_WK, KA_WV, KA_WO, KA_BX, KA_WG, KA_WU, KA_WD, KA_OUT, KA_DBG, KA_WS = [8 * i for i in range(12)]

import struct, os
INSTR = bool(os.environ.get("INSTR"))
HACK_LIN = bool(os.environ.get("HACK_LIN"))
NOCOMP = os.environ.get("NOCOMP", "").split(",")
NOX = os.environ.get("NOX", "").split(",")
NOW = os.environ.get("NOW", "").split(",")
PF = bool(os.environ.get("PF"))
IMGPOL = os.environ.get("IMGPOL", "sc1")
for _k in ("NORB2", "NORB3", "NORB4"):
    os.environ[_k] = "1"
NOLOAD = os.environ.get("NOLOAD", "").split(",")
def f32(x):
    return "0x%08x" % struct.unpack("<I", struct.pack("<f", x))[0]


class Asm:
    skip_dma = False
    def __init__(self):
        self.lines = []
        self.nlabel = 0

    def __call__(self, s):
        for l in s.split("\n"):
            l = l.strip()
            if self.skip_dma and l.startswith("buffer_load") and l.endswith("lds"):
                continue
            if l:
                self.lines.append("    " + l)

    def label(self, l):
        self.lines.append(l + ":")

    def newlabel(self, p="L"):
        self.nlabel += 1
        return f"{p}_{self.nlabel}"

    def raw(self, s):
        self.lines.append(s)

    def text(self):
        return "\n".join(self.lines) + "\n"


class VAlloc:
    def __init__(self, start=1):
        self.n = start

    def __call__(self, cnt=1, align=1):
        self.n = (self.n + align - 1) // align * align
        r = self.n
        self.n += cnt
        return r


def vr(b, n):
    return f"v[{b}:{b+n-1}]"


def sr(b, n):
    return f"s[{b}:{b+n-1}]"


KIDX = [-1]
def kernel_begin(a, name):
    KIDX[0] += 1
    a.raw(f".globl {name}")
    a.raw(".p2align 8")
    a.raw(f".type {name},@function")
    a.label(name)


KDS = []
def kernel_end(a, name, nvgpr, nsgpr=102):
    nv = (nvgpr + 7) // 8 * 8
    KDS.append(f""".p2align 6
.amdhsa_kernel {name}
  .amdhsa_next_free_vgpr {nv}
  .amdhsa_next_free_sgpr {nsgpr}
  .amdhsa_accum_offset {(nv + 3) // 4 * 4}
  .amdhsa_group_segment_fixed_size 0
  .amdhsa_kernarg_size 96
  .amdhsa_user_sgpr_count 2
  .amdhsa_user_sgpr_kernarg_segment_ptr 1
  .amdhsa_system_sgpr_workgroup_id_x 1
.end_amdhsa_kernel
""")


def make_srd(a, dst, base_s, off, nbytes):
    if off:
        a(f"s_add_u32 s{dst}, s{base_s}, {off}")
        a(f"s_addc_u32 s{dst+1}, s{base_s+1}, 0")
    else:
        a(f"s_mov_b32 s{dst}, s{base_s}")
        a(f"s_mov_b32 s{dst+1}, s{base_s+1}")
    a(f"s_mov_b32 s{dst+2}, {nbytes}")
    a(f"s_mov_b32 s{dst+3}, 0x00020000")


def interleave(mfmas, fillers):
    out = []
    nm, nf = len(mfmas), len(fillers)
    fi = 0
    for i, m in enumerate(mfmas):
        out.append(m)
        tgt = ((i + 1) * nf + nm - 1) // nm if nm else nf
        while fi < min(tgt, nf):
            out.extend(fillers[fi])
            fi += 1
    while fi < nf:
        out.extend(fillers[fi])
        fi += 1
    return out


class Seg:
    def __init__(self, srd, gstride, nf, kind, colreg=None, img=None):
        self.img = img
        self.srd = srd
        self.gstride = gstride
        self.nf = nf
        self.kind = kind
        self.colreg = colreg


class Gemm:
    def __init__(self, a, va, TT, WT, WK, WF, segs, BK, NS, K, xsrd, xstride, s_tok0,
                 stats=False, colsum=False, sregs=None, tag="g", lds_base=0):
        self.a, self.va = a, va
        self.lds_base = lds_base
        self.TT, self.WT, self.WK, self.WF = TT, WT, WK, WF
        assert WT * WK * WF == 4
        self.segs, self.BK, self.NS, self.K = segs, BK, NS, K
        self.xsrd, self.xstride, self.s_tok0 = xsrd, xstride, s_tok0
        self.stats, self.colsum = stats, colsum
        self.tag = tag
        self.TW = TT // WT
        self.TB = self.TW // 16
        self.RB = BK * 2
        self.CPR = self.RB // 16
        self.nst = K // BK
        self.SPS = BK // 32
        self.SPW = self.SPS // WK
        assert self.SPW % 2 == 0
        self.xbytes = TT * self.RB
        off = self.xbytes
        for s in segs:
            s.lstride = 40 if s.kind == 'lin40' else s.nf * 2
            nb = BK * s.lstride
            s.ninstr = (nb + 4095) // 4096 * 4
            s.lbase = off
            off += s.ninstr * 1024
            s.FBW = (s.nf // WF) // 16
        self.stage_bytes = off
        self.nx = self.xbytes // 1024
        assert self.nx % 4 == 0
        self.ndma = self.nx // 4 + sum(s.ninstr // 4 for s in segs)
        self.lds_bytes = self.stage_bytes * NS
        (self.s_woff, self.s_kx, self.s_kw, self.s_wave, self.s_cnt, self.s_slot, self.s_kidx, self.s_dl) = sregs

    def split(self):
        a, va = self.a, self.va
        self.tmp = [va() for _ in range(6)]
        t = self.tmp
        a(f"v_lshrrev_b32 v{t[0]}, 6, v0")
        a("s_nop 0")
        a(f"v_readfirstlane_b32 s{self.s_wave}, v{t[0]}")
        a("s_nop 3")
        a(f"s_cmp_ge_u32 s{self.s_wave}, 4")
        a(f"s_cbranch_scc1 {self.tag}_loader")

    def loader(self, s_rot=None, prefetch=None, cont=None, early=None):
        a = self.a
        va = VAlloc(1)
        t = [va() for _ in range(6)]
        a.label(f"{self.tag}_loader")
        a(f"v_and_b32 v0, 255, v0")
        a(f"s_and_b32 s{self.s_woff}, s{self.s_wave}, 3")
        a(f"s_lshl_b32 s{self.s_woff}, s{self.s_woff}, 10")
        if self.lds_base:
            a(f"s_add_u32 s{self.s_woff}, s{self.s_woff}, {self.lds_base}")
        if early is not None:
            early(va, t)
        lg = {8: 3, 16: 4}[self.CPR]
        v_dx = va()
        a(f"v_lshrrev_b32 v{t[1]}, {lg}, v0")
        a(f"v_and_b32 v{t[2]}, {self.CPR-1}, v0")
        if self.CPR == 8:
            a(f"v_bfe_u32 v{t[3]}, v{t[1]}, 1, 3")
        else:
            a(f"v_and_b32 v{t[3]}, 15, v{t[1]}")
        a(f"v_xor_b32 v{t[2]}, v{t[2]}, v{t[3]}")
        a(f"v_add_u32 v{t[1]}, s{self.s_tok0}, v{t[1]}")
        a(f"v_mul_u32_u24 v{t[1]}, {self.xstride}, v{t[1]}")
        a(f"v_lshl_add_u32 v{v_dx}, v{t[2]}, 4, v{t[1]}")
        xrows = 256 // self.CPR
        done = {}
        for s in self.segs:
            key = (s.kind, s.nf)
            if key in done:
                s.v_d = done[key]
                continue
            s.v_d = []
            cprw = s.lstride // 16 if s.kind != 'lin40' else None
            for j in range(s.ninstr // 4):
                if s.kind == 'lin40' or s.img:
                    if j == 0:
                        r = va()
                        a(f"v_lshlrev_b32 v{r}, 4, v0")
                    s.v_d.append(r)
                    continue
                r = va()
                s.v_d.append(r)
                a(f"v_add_u32 v{t[0]}, {j*256}, v0")
                magic = {10: 52429, 12: 43691}[cprw]
                a(f"v_mul_u32_u24 v{t[1]}, {magic}, v{t[0]}")
                a(f"v_lshrrev_b32 v{t[1]}, 19, v{t[1]}")
                a(f"v_mul_u32_u24 v{t[2]}, {cprw}, v{t[1]}")
                a(f"v_sub_u32 v{t[2]}, v{t[0]}, v{t[2]}")
                a(f"v_and_b32 v{t[3]}, 0xfffffff3, v{t[1]}")
                a(f"v_bfe_u32 v{t[4]}, v{t[1]}, 2, 1")
                if s.kind == 'p192':
                    a(f"v_lshlrev_b32 v{t[5]}, 1, v{t[4]}")
                    a(f"v_xor_b32 v{t[2]}, v{t[2]}, v{t[5]}")
                a(f"v_lshl_or_b32 v{t[3]}, v{t[4]}, 3, v{t[3]}")
                a(f"v_bfe_u32 v{t[4]}, v{t[1]}, 3, 1")
                a(f"v_lshl_or_b32 v{t[3]}, v{t[4]}, 2, v{t[3]}")
                a(f"v_mul_u32_u24 v{t[3]}, {s.gstride}, v{t[3]}")
                a(f"v_lshl_add_u32 v{r}, v{t[2]}, 4, v{t[3]}")
                if s.colreg is not None:
                    a(f"v_add_u32 v{r}, s{s.colreg}, v{r}")
            done[key] = s.v_d
        if HACK_LIN and self.tag in ("k3", "k5", "k4"):
            a(f"s_lshr_b32 s{self.s_dl}, s{self.s_tok0}, {({64:6,128:7})[self.TT]}")
            a(f"s_mul_i32 s{self.s_dl}, s{self.s_dl}, {self.nst*self.xbytes}")
            a(f"v_lshlrev_b32 v{v_dx}, 4, v0")
            a(f"v_add_u32 v{v_dx}, s{self.s_dl}, v{v_dx}")
            s0 = self.segs[0]
            nb = self.BK * s0.lstride
            a(f"s_mul_i32 s{self.s_dl}, s{S_T0}, {self.nst*nb}")
            for j, r in enumerate(s0.v_d):
                a(f"v_lshlrev_b32 v{r}, 4, v0")
                a(f"v_add_u32 v{r}, {j*4096}, v{r}")
                a(f"v_add_u32 v{r}, s{self.s_dl}, v{r}")
        if s_rot is None:
            a(f"s_mov_b32 s{self.s_kidx}, 0")
        else:
            a(f"s_mov_b32 s{self.s_kidx}, s{s_rot}")
        a(f"s_mov_b32 s{self.s_slot}, s{self.s_woff}")
        gs = self.segs[0].gstride

        def issue():
            hk = HACK_LIN and self.tag in ("k3", "k5", "k4")
            a(f"s_mul_i32 s{self.s_kx}, s{self.s_kidx}, {self.xbytes if hk else self.BK*2}")
            if self.segs[0].img:
                a(f"s_mul_i32 s{self.s_kw}, s{self.s_kidx}, {self.segs[0].img[1]}")
                a(f"s_add_u32 s{self.s_kw}, s{self.s_kw}, s{self.segs[0].img[0]}")
            else:
                a(f"s_mul_i32 s{self.s_kw}, s{self.s_kidx}, {self.BK*self.segs[0].lstride if hk else self.BK*gs}")
            for j in range(self.nx // 4):
                a(f"s_add_u32 m0, s{self.s_slot}, {j*4096}")
                if j:
                    a(f"s_add_u32 s{self.s_kx}, s{self.s_kx}, {4096 if hk else xrows*self.xstride}")
                else:
                    a("s_nop 0")
                if self.tag in NOX:
                    a(f"buffer_load_dwordx4 v{v_dx}, {sr(self.xsrd,4)}, 0 offen lds")
                else:
                    a(f"buffer_load_dwordx4 v{v_dx}, {sr(self.xsrd,4)}, s{self.s_kx} offen lds")
            for s in self.segs:
                if s.gstride != gs:
                    a(f"s_mul_i32 s{self.s_kw}, s{self.s_kidx}, {self.BK*s.gstride}")
                for j, r in enumerate(s.v_d):
                    a(f"s_add_u32 m0, s{self.s_slot}, {s.lbase + j*4096}")
                    if s.kind == 'lin40' or s.img:
                        a(f"s_add_u32 s{self.s_dl}, s{self.s_kw}, {j*4096 + (s.img[2] if s.img else 0)}")
                        if self.tag in NOW:
                            a(f"buffer_load_dwordx4 v{r}, {sr(s.srd,4)}, 0 offen lds")
                        else:
                            a(f"buffer_load_dwordx4 v{r}, {sr(s.srd,4)}, s{self.s_dl} offen lds")
                    else:
                        a("s_nop 0")
                        a(f"buffer_load_dwordx4 v{r}, {sr(s.srd,4)}, s{self.s_kw} offen lds")
            a(f"s_add_u32 s{self.s_kidx}, s{self.s_kidx}, 1")
            a(f"s_cmp_eq_u32 s{self.s_kidx}, {self.nst}")
            a(f"s_cselect_b32 s{self.s_kidx}, 0, s{self.s_kidx}")
            a(f"s_add_u32 s{self.s_slot}, s{self.s_slot}, {self.stage_bytes}")
            a(f"s_cmp_ge_u32 s{self.s_slot}, {self.lds_bytes + self.lds_base}")
            a(f"s_cselect_b32 s{self.s_slot}, s{self.s_woff}, s{self.s_slot}")

        l1, l2, l3 = f"{self.tag}_ld1", f"{self.tag}_ld2", f"{self.tag}_ld3"
        v_st = va()
        def lstamp(idx_s=None, idx=None):
            if INSTR:
                a("s_memtime s[98:99]")
                a("s_waitcnt lgkmcnt(0)")
                a("s_sub_u32 s98, s98, s80")
                if idx_s is not None:
                    a(f"s_mov_b32 m0, s{idx_s}")
                    a("s_nop 0")
                    a(f"v_writelane_b32 v{v_st}, s98, m0")
                else:
                    a(f"v_writelane_b32 v{v_st}, s98, {idx}")
        lstamp(idx=0)
        a(f"s_mov_b32 s{self.s_cnt}, 0")
        a(f"s_branch {l2}")
        a.label(l1)
        a(f"s_waitcnt vmcnt({(self.NS-2)*self.ndma})")
        lstamp(idx_s=self.s_cnt)
        a("s_barrier")
        a.label(l2)
        a.skip_dma = self.tag in NOLOAD
        issue()
        a.skip_dma = False
        a(f"s_add_u32 s{self.s_cnt}, s{self.s_cnt}, 1")
        a(f"s_cmp_lg_u32 s{self.s_cnt}, 2")
        a(f"s_cbranch_scc1 {l3}")
        a(f"s_waitcnt vmcnt({self.ndma})")
        lstamp(idx=1)
        a("s_barrier")
        a.label(l3)
        a(f"s_cmp_lt_u32 s{self.s_cnt}, {self.NS}")
        a(f"s_cbranch_scc1 {l2}")
        a(f"s_cmp_lt_u32 s{self.s_cnt}, {self.nst}")
        a(f"s_cbranch_scc1 {l1}")
        for i in range(self.NS - 1):
            a(f"s_waitcnt vmcnt({(self.NS-2-i)*self.ndma})")
            lstamp(idx=self.nst + i)
            a("s_barrier")
        a("s_barrier")
        if INSTR:
            lab = a.newlabel("ls")
            a(f"s_cmp_lg_u32 s2, {INSTR_WG}")
            a(f"s_cbranch_scc1 {lab}")
            a(f"s_cmp_lg_u32 s{self.s_wave}, 4")
            a(f"s_cbranch_scc1 {lab}")
            make_srd(a, 92, P_DBG, 0, 256)
            a(f"v_lshlrev_b32 v{t[0]}, 2, v0")
            a(f"buffer_store_dword v{v_st}, v{t[0]}, s[92:95], 0 offen offset:64")
            a("s_waitcnt vmcnt(0)")
            a.label(lab)
        if cont is None:
            a("s_endpgm")
        else:
            cont(va, t)
        self.loader_vgprs = va.n

    def setup(self):
        a, va = self.a, self.va
        t = self.tmp
        lane, i16, g, wv = va(), va(), va(), va()
        self.v_lane, self.v_i16, self.v_g, self.v_wave = lane, i16, g, wv
        a(f"v_and_b32 v{lane}, 63, v0")
        a(f"v_lshrrev_b32 v{wv}, 6, v0")
        a(f"v_and_b32 v{i16}, 15, v0")
        a(f"v_bfe_u32 v{g}, v0, 4, 2")
        wt, wo = va(), va()
        self.v_wt, self.v_wo = wt, wo
        a(f"v_and_b32 v{wt}, {self.WT-1}, v{wv}")
        sh = {1: 0, 2: 1, 4: 2}[self.WT]
        a(f"v_lshrrev_b32 v{wo}, {sh}, v{wv}")
        self.addr_regs = []
        done = {}
        for s in self.segs:
            key = (s.kind, s.nf)
            if key in done:
                s.v_a = done[key]
                continue
            if s.kind == 'lin40':
                a(f"v_lshlrev_b32 v{t[0]}, 3, v{g}")
            else:
                a(f"v_lshrrev_b32 v{t[0]}, 1, v{g}")
                a(f"v_lshlrev_b32 v{t[0]}, 4, v{t[0]}")
                a(f"v_and_b32 v{t[1]}, 1, v{g}")
                a(f"v_lshl_add_u32 v{t[0]}, v{t[1]}, 2, v{t[0]}")
            a(f"v_lshrrev_b32 v{t[1]}, 2, v{i16}")
            a(f"v_add_u32 v{t[0]}, v{t[0]}, v{t[1]}")
            if self.WK > 1:
                a(f"v_mov_b32 v{t[1]}, {self.SPW*32}")
                a(f"v_mad_u32_u24 v{t[0]}, v{wo}, v{t[1]}, v{t[0]}")
            a(f"v_mul_u32_u24 v{t[0]}, {s.lstride}, v{t[0]}")
            a(f"v_and_b32 v{t[1]}, 3, v{i16}")
            a(f"v_lshl_add_u32 v{t[0]}, v{t[1]}, 3, v{t[0]}")
            if s.kind == 'p192':
                regs = []
                for b in range(s.FBW):
                    r = va()
                    regs.append(r)
                    if self.WF > 1:
                        a(f"v_mul_u32_u24 v{t[1]}, {s.FBW}, v{wo}")
                        a(f"v_add_u32 v{t[1]}, {b}, v{t[1]}")
                    else:
                        a(f"v_mov_b32 v{t[1]}, {b}")
                    a(f"v_and_b32 v{t[2]}, 1, v{g}")
                    a(f"v_xor_b32 v{t[1]}, v{t[1]}, v{t[2]}")
                    a(f"v_lshl_add_u32 v{r}, v{t[1]}, 5, v{t[0]}")
                s.v_a = regs
                self.addr_regs += regs
            else:
                r = va()
                if self.WF > 1:
                    a(f"v_mul_u32_u24 v{t[1]}, {s.FBW*32}, v{wo}")
                    a(f"v_add_u32 v{r}, v{t[0]}, v{t[1]}")
                else:
                    a(f"v_mov_b32 v{r}, v{t[0]}")
                s.v_a = [r]
                self.addr_regs.append(r)
            done[key] = s.v_a
        self.v_b = []
        a(f"v_mul_u32_u24 v{t[0]}, {self.TW}, v{wt}")
        a(f"v_add_u32 v{t[0]}, v{t[0]}, v{i16}")
        if self.CPR == 8:
            a(f"v_bfe_u32 v{t[1]}, v{t[0]}, 1, 3")
        else:
            a(f"v_and_b32 v{t[1]}, 15, v{t[0]}")
        a(f"v_mul_u32_u24 v{t[0]}, {self.RB}, v{t[0]}")
        for ls in range(self.SPW):
            r = va()
            self.v_b.append(r)
            self.addr_regs.append(r)
            if self.WK > 1:
                a(f"v_mul_u32_u24 v{t[2]}, {4*self.SPW}, v{wo}")
                a(f"v_add3_u32 v{t[2]}, v{t[2]}, v{g}, {4*ls}")
            else:
                a(f"v_add_u32 v{t[2]}, {4*ls}, v{g}")
            a(f"v_xor_b32 v{t[2]}, v{t[2]}, v{t[1]}")
            a(f"v_lshl_add_u32 v{r}, v{t[2]}, 4, v{t[0]}")
        if self.lds_base:
            for r in self.addr_regs:
                a(f"v_add_u32 v{r}, {self.lds_base}, v{r}")
        self.nA = sum(s.FBW for s in self.segs)
        self.fa = [va(4 * self.nA, 4) for _ in range(2)]
        self.fb = [va(4 * self.TB, 4) for _ in range(2)]
        self.acc = [[va(4, 4) for _ in range(self.nA)] for _ in range(self.TB)]
        accs = [r for row in self.acc for r in row]
        if self.stats or self.colsum:
            self.v_ones = va(4, 4)
            for i in range(4):
                a(f"v_mov_b32 v{self.v_ones+i}, 0x3f803f80")
        if self.stats:
            self.acc_sum = [va(4, 4) for _ in range(self.TB)]
            self.acc_sq = [va(4, 4) for _ in range(self.TB)]
            accs += self.acc_sum + self.acc_sq
        if self.colsum:
            self.acc_cs = [va(4, 4) for _ in range(self.nA)]
            accs += self.acc_cs
        for r in accs:
            for i in range(4):
                a(f"v_mov_b32 v{r+i}, 0")

    def read_units(self, ls, buf):
        units = []
        fi = 0
        for s in self.segs:
            for b in range(s.FBW):
                for e in range(2):
                    if s.kind == 'lin40':
                        off = s.lbase + (ls * 32 + 4 * e) * 40 + b * 32
                        ar = s.v_a[0]
                    elif s.kind == 'p192':
                        off = s.lbase + (ls * 32 + 8 * e) * s.lstride
                        ar = s.v_a[b]
                    else:
                        off = s.lbase + (ls * 32 + 8 * e) * s.lstride + b * 32
                        ar = s.v_a[0]
                    assert off < 65536
                    d = self.fa[buf] + 4 * fi + 2 * e
                    units.append([f"ds_read_b64_tr_b16 {vr(d,2)}, v{ar} offset:{off}"])
                fi += 1
        for tb in range(self.TB):
            off = tb * 16 * self.RB
            d = self.fb[buf] + 4 * tb
            units.append([f"ds_read_b128 {vr(d,4)}, v{self.v_b[ls]} offset:{off}"])
        return units[-self.TB:] + units[:-self.TB]

    def mfmas(self, buf):
        out = []
        for fi in range(self.nA):
            A = vr(self.fa[buf] + 4 * fi, 4)
            for tb in range(self.TB):
                B = vr(self.fb[buf] + 4 * tb, 4)
                c = vr(self.acc[tb][fi], 4)
                out.append(f"v_mfma_f32_16x16x32_bf16 {c}, {A}, {B}, {c}")
            if self.colsum:
                c = vr(self.acc_cs[fi], 4)
                out.append(f"v_mfma_f32_16x16x32_bf16 {c}, {A}, {vr(self.v_ones,4)}, {c}")
        if self.stats:
            for tb in range(self.TB):
                B = vr(self.fb[buf] + 4 * tb, 4)
                c = vr(self.acc_sum[tb], 4)
                out.append(f"v_mfma_f32_16x16x32_bf16 {c}, {vr(self.v_ones,4)}, {B}, {c}")
                c = vr(self.acc_sq[tb], 4)
                out.append(f"v_mfma_f32_16x16x32_bf16 {c}, {B}, {B}, {c}")
        return out

    def mainloop(self):
        a = self.a
        a(f"s_mov_b32 s{self.s_cnt}, {self.nst}")
        a(f"s_mov_b32 s{self.s_slot}, 0")
        a("s_barrier")
        for u in self.read_units(0, 0):
            for l in u:
                a(l)
        lp = f"{self.tag}_loop"
        a.label(lp)
        for ls in range(self.SPW):
            buf = ls & 1
            a("s_waitcnt lgkmcnt(0)")
            if ls == self.SPW - 1:
                a(f"s_mov_b32 s{self.s_dl}, s{self.s_slot}")
                a(f"s_add_u32 s{self.s_slot}, s{self.s_slot}, {self.stage_bytes}")
                a(f"s_cmp_ge_u32 s{self.s_slot}, {self.lds_bytes}")
                a(f"s_cselect_b32 s{self.s_slot}, 0, s{self.s_slot}")
                a(f"s_sub_u32 s{self.s_dl}, s{self.s_slot}, s{self.s_dl}")
                a("s_barrier")
                for r in self.addr_regs:
                    a(f"v_add_u32 v{r}, s{self.s_dl}, v{r}")
                fill = self.read_units(0, buf ^ 1)
            else:
                fill = self.read_units(ls + 1, buf ^ 1)
            if self.tag in NOCOMP:
                continue
            for l in interleave(self.mfmas(buf), fill):
                a(l)
        a(f"s_sub_u32 s{self.s_cnt}, s{self.s_cnt}, 1")
        a(f"s_cmp_lg_u32 s{self.s_cnt}, 0")
        a(f"s_cbranch_scc1 {lp}")
        a("s_waitcnt vmcnt(0) lgkmcnt(0)")


P_X, P_WQ, P_WK, P_WV, P_WO, P_BX, P_WG, P_WU, P_WD, P_OUT, P_DBG, P_WS = [16 + 2 * i for i in range(12)]
SRD0, SRD1, SRD2, SRD3, SRD4, SRD5 = 40, 44, 48, 52, 56, 60
S_WOFF, S_KX, S_KW, S_WAVE = 64, 65, 66, 67
S_TOK0, S_COL, S_T0, S_T1, S_T2 = 68, 69, 70, 71, 72
S_CNT_, S_SLOT_, S_KIDX, S_DL, S_ROT = 76, 77, 78, 79, 73
GS = (S_WOFF, S_KX, S_KW, S_WAVE, S_CNT_, S_SLOT_, S_KIDX, S_DL)


def load_kernargs(a):
    if INSTR:
        for i in range(84, 98):
            a(f"s_mov_b32 s{i}, 0")
        a("s_memtime s[80:81]")
        a("s_memrealtime s[82:83]")
    a("s_load_dwordx16 s[16:31], s[0:1], 0")
    a("s_load_dwordx8 s[32:39], s[0:1], 64")


def stamp(a, idx):
    if INSTR:
        a("s_memtime s[98:99]")
        a("s_waitcnt lgkmcnt(0)")
        a(f"s_sub_u32 s{84+idx}, s98, s80")


def stamp_end(a, n, wg=None):
    if INSTR:
        lab = a.newlabel("se")
        a("s_mov_b64 exec, -1")
        a("s_waitcnt vmcnt(0)")
        a("s_memtime s[98:99]")
        a("s_memrealtime s[100:101]")
        a("s_waitcnt lgkmcnt(0)")
        a(f"s_sub_u32 s{84+n}, s98, s80")
        a(f"s_sub_u32 s{85+n}, s100, s82")
        lab2 = a.newlabel("se")
        a(f"s_cmp_lg_u32 s{S_WAVE}, 0")
        a(f"s_cbranch_scc1 {lab2}")
        make_srd(a, 40, P_WS, WS_TL + KIDX[0] * 4096, 4096)
        a("s_getreg_b32 s98, hwreg(HW_REG_XCC_ID)")
        a("s_and_b32 s98, s98, 7")
        a("s_andn2_b32 s100, s100, 7")
        a("s_or_b32 s100, s100, s98")
        a("v_mov_b32 v2, s82")
        a("v_mov_b32 v3, s100")
        a("s_lshl_b32 s98, s2, 3")
        a("v_mov_b32 v1, s98")
        a("buffer_store_dwordx2 v[2:3], v1, s[40:43], 0 offen")
        a.label(lab2)
        a(f"s_cmp_lg_u32 s2, {INSTR_WG if wg is None else wg}")
        a(f"s_cbranch_scc1 {lab}")
        a(f"s_cmp_lg_u32 s{S_WAVE}, 0")
        a(f"s_cbranch_scc1 {lab}")
        make_srd(a, 40, P_DBG, 0, 256)
        a("v_mov_b32 v1, 0")
        for i in range(14):
            a(f"v_mov_b32 v2, s{84+i}")
            a(f"buffer_store_dword v2, v1, s[40:43], 0 offen offset:{4*i}")
        a.label(lab)
INSTR_WG = int(os.environ.get("INSTR_WG", "100"))


def round_bf16(a, dst, src):
    a(f"v_cvt_pk_bf16_f32 v{dst}, v{src}, v{src}")
    a(f"v_lshlrev_b32 v{dst}, 16, v{dst}")


def ln_stats(a, v_sum, v_sq, v_mean, v_rstd, t):
    a(f"v_mul_f32 v{v_mean}, {f32(1.0/D)}, v{v_sum}")
    a(f"v_mul_f32 v{t[0]}, {f32(1.0/D)}, v{v_sq}")
    a(f"v_fma_f32 v{t[0]}, -v{v_mean}, v{v_mean}, v{t[0]}")
    a(f"v_max_f32 v{t[0]}, 0, v{t[0]}")
    round_bf16(a, v_mean, v_mean)
    round_bf16(a, t[0], t[0])
    a(f"v_add_f32 v{t[0]}, {f32(1e-5)}, v{t[0]}")
    round_bf16(a, t[0], t[0])
    a(f"v_sqrt_f32 v{t[0]}, v{t[0]}")
    a("s_nop 0")
    round_bf16(a, t[0], t[0])
    a(f"v_rcp_f32 v{v_rstd}, v{t[0]}")
    a("s_nop 0")


def gram_diag(a, g, acc_sq, dst):
    t = g.tmp
    a(f"v_and_b32 v{t[0]}, 3, v{g.v_i16}")
    a(f"v_mov_b32 v{t[1]}, v{acc_sq}")
    for r in range(1, 4):
        a(f"v_cmp_eq_u32 vcc, {r}, v{t[0]}")
        a("s_nop 1")
        a(f"v_cndmask_b32 v{t[1]}, v{t[1]}, v{acc_sq+r}, vcc")
    a(f"v_lshrrev_b32 v{t[0]}, 2, v{g.v_i16}")
    a(f"v_lshl_add_u32 v{t[0]}, v{t[0]}, 4, v{g.v_i16}")
    a(f"v_lshlrev_b32 v{t[0]}, 2, v{t[0]}")
    a(f"ds_bpermute_b32 v{dst}, v{t[0]}, v{t[1]}")
    a("s_waitcnt lgkmcnt(0)")


def xlane_add(a, v, v_lane, t0, t1, masks, op="v_add_f32"):
    for m in masks:
        a(f"v_xor_b32 v{t0}, {m}, v{v_lane}")
        a(f"v_lshlrev_b32 v{t0}, 2, v{t0}")
        a(f"ds_bpermute_b32 v{t1}, v{t0}, v{v}")
        a("s_waitcnt lgkmcnt(0)")
        a(f"{op} v{v}, v{v}, v{t1}")


QSCALE = (DH ** -0.5) * 1.4426950408889634


def prefetch_lin(a, v_tid, v_t, v_dummy, srd, s_base, s_j, nlines, s_tmp, nthreads=256):
    a(f"s_mul_i32 s{s_tmp}, s{s_j}, {nlines*128}")
    if s_base is not None:
        a(f"s_add_u32 s{s_tmp}, s{s_tmp}, s{s_base}")
    a(f"v_lshlrev_b32 v{v_t}, 7, v{v_tid}")
    n = (nlines + nthreads - 1) // nthreads
    for i in range(n):
        if i:
            a(f"s_add_u32 s{s_tmp}, s{s_tmp}, {nthreads*128}")
        a(f"buffer_load_dword v{v_dummy}, v{v_t}, {sr(srd,4)}, s{s_tmp} offen")

S_J, S_XB, S_IMG = 90, 91, 96

def dpp_rowmax(a, v):
    for n in (1, 2, 4, 8):
        a("s_nop 1")
        a(f"v_max_f32_dpp v{v}, v{v}, v{v} row_shr:{n} row_mask:0xf bank_mask:0xf bound_ctrl:0")


def swap_add(a, v, t, which):
    a(f"v_mov_b32 v{t}, v{v}")
    a("s_nop 1")
    a(f"v_permlane{which}_swap_b32 v{v}, v{t}")
    a("s_nop 1")
    a(f"v_add_f32 v{v}, v{v}, v{t}")


def gen_k1(a):
    name = "k1_qkv_kernel"
    kernel_begin(a, name)
    a("s_cmp_ge_u32 s2, 256")
    a("s_cbranch_scc1 k1_end")
    load_kernargs(a)
    a(f"s_and_b32 s{S_T1}, s2, 7")
    a(f"s_lshr_b32 s{S_T0}, s2, 3")
    a(f"s_mul_i32 s{S_ROT}, s{S_T0}, 52")
    a(f"s_lshr_b32 s{S_ROT}, s{S_ROT}, 8")
    a(f"s_mul_i32 s{S_ROT}, s{S_ROT}, 5")
    a(f"s_sub_u32 s{S_ROT}, s{S_T0}, s{S_ROT}")
    a(f"s_lshr_b32 s{S_T2}, s{S_T0}, 3")
    a(f"s_lshl_b32 s{S_T1}, s{S_T1}, 2")
    a(f"s_add_u32 s{S_XB}, s{S_T1}, s{S_T2}")
    a(f"s_lshl_b32 s{S_TOK0}, s{S_XB}, 6")
    a(f"s_and_b32 s{S_J}, s{S_T0}, 7")
    a(f"s_mul_i32 s{S_COL}, s{S_J}, 160")
    a("s_waitcnt lgkmcnt(0)")
    make_srd(a, SRD0, P_X, 0, S * D * 2)
    make_srd(a, SRD1, P_WQ, 0, D * D * 2)
    make_srd(a, SRD2, P_WS, WS_Q, S * D * 2)
    a(f"s_cmp_lt_u32 s{S_J}, 2")
    a("s_cbranch_scc1 k1_b")
    maxv = 8
    lds = 0

    def q_epilogue(g, va):
        a("s_nop 7")
        a("s_nop 1")
        v_mean, v_rstd, v_sq, v_ad, v_rq = va(), va(), va(), va(), va()
        gram_diag(a, g, g.acc_sq[0], v_sq)
        ln_stats(a, g.acc_sum[0], v_sq, v_mean, v_rstd, g.tmp)
        a(f"v_mul_f32 v{v_rq}, {f32(QSCALE)}, v{v_rstd}")
        t = g.tmp
        a(f"v_lshl_add_u32 v{t[0]}, v{g.v_wt}, 4, v{g.v_i16}")
        a(f"v_add_u32 v{t[0]}, s{S_TOK0}, v{t[0]}")
        a(f"v_mul_u32_u24 v{t[0]}, {D*2}, v{t[0]}")
        a(f"v_lshl_add_u32 v{v_ad}, v{g.v_g}, 3, v{t[0]}")
        a(f"v_add_u32 v{v_ad}, s{S_COL}, v{v_ad}")
        for fb in range(5):
            c, cs = g.acc[0][fb], g.acc_cs[fb]
            for r in range(4):
                a(f"v_fma_f32 v{c+r}, -v{v_mean}, v{cs+r}, v{c+r}")
                a(f"v_mul_f32 v{c+r}, v{c+r}, v{v_rq}")
            a(f"v_cvt_pk_bf16_f32 v{c}, v{c}, v{c+1}")
            a(f"v_cvt_pk_bf16_f32 v{c+1}, v{c+2}, v{c+3}")
            a(f"buffer_store_dwordx2 {vr(c,2)}, v{v_ad}, {sr(SRD2,4)}, 0 offen offset:{fb*32}")
        return v_mean, v_rstd

    def colsum(lva, lt):
        a.label("k1_cs")
        cva = VAlloc(8)
        lt = [cva() for _ in range(4)]
        csb = cva(40, 4)
        cacc = cva(8, 4)
        v_ca, v_l = cva(), cva()
        S_U, S_SRC, S_DST = S_T0, S_T1, S_KW
        a(f"s_sub_u32 s{S_U}, s{S_WAVE}, 4")
        a(f"s_lshl_b32 s{S_U}, s{S_U}, 8")
        a(f"s_add_u32 s{S_T2}, s{S_U}, s2")
        a(f"s_cmp_ge_u32 s{S_T2}, {48*NCS}")
        a("s_cbranch_scc1 k1_end")
        a(f"s_mul_i32 s{S_U}, s{S_T2}, 1366")
        a(f"s_lshr_b32 s{S_U}, s{S_U}, 16")
        a(f"s_mul_i32 s{S_SRC}, s{S_U}, 48")
        a(f"s_sub_u32 s{S_SRC}, s{S_T2}, s{S_SRC}")
        a(f"s_cmp_lt_u32 s{S_SRC}, 24")
        a(f"s_cselect_b32 s{SRD0}, s{P_WG}, s{P_WU}")
        a(f"s_cselect_b32 s{SRD0+1}, s{P_WG+1}, s{P_WU+1}")
        a(f"s_mov_b32 s{SRD0+2}, {F*D*2}")
        a(f"s_cselect_b32 s{S_DST}, 0, 24")
        a(f"s_sub_u32 s{S_SRC}, s{S_SRC}, s{S_DST}")
        a(f"s_lshl_b32 s{S_SRC}, s{S_SRC}, 7")
        a(f"s_mul_i32 s{S_U}, s{S_U}, {80*F*2}")
        a(f"s_add_u32 s{S_SRC}, s{S_SRC}, s{S_U}")
        a(f"v_and_b32 v{v_l}, 63, v0")
        a(f"v_lshrrev_b32 v{lt[0]}, 3, v{v_l}")
        a(f"v_mul_u32_u24 v{lt[0]}, {F*2}, v{lt[0]}")
        a(f"v_and_b32 v{lt[1]}, 7, v{v_l}")
        a(f"v_lshl_add_u32 v{v_ca}, v{lt[1]}, 4, v{lt[0]}")
        for i in range(10):
            a(f"buffer_load_dwordx4 {vr(csb+4*i,4)}, v{v_ca}, {sr(SRD0,4)}, s{S_SRC} offen")
            a(f"s_add_u32 s{S_SRC}, s{S_SRC}, {8*F*2}")
        a(f"v_lshrrev_b32 v{lt[0]}, 4, v{v_l}")
        a(f"v_lshlrev_b32 v{lt[0]}, 3, v{lt[0]}")
        a(f"v_lshl_add_u32 v{v_ca}, v{lt[1]}, 5, v{lt[0]}")
        make_srd(a, SRD3, P_WS, WS_CS, NCS * 3072 * 4)
        a(f"s_lshl_b32 s{S_T2}, s{S_T2}, 8")
        for i in range(10):
            a(f"s_waitcnt vmcnt({9-i})")
            for j in range(4):
                if i == 0:
                    a(f"v_lshlrev_b32 v{cacc+2*j}, 16, v{csb+j}")
                    a(f"v_and_b32 v{cacc+2*j+1}, 0xffff0000, v{csb+j}")
                else:
                    a(f"v_lshlrev_b32 v{lt[0]}, 16, v{csb+4*i+j}")
                    a(f"v_and_b32 v{lt[1]}, 0xffff0000, v{csb+4*i+j}")
                    a(f"v_add_f32 v{cacc+2*j}, v{cacc+2*j}, v{lt[0]}")
                    a(f"v_add_f32 v{cacc+2*j+1}, v{cacc+2*j+1}, v{lt[1]}")
        a("s_nop 1")
        for j in range(4):
            a(f"v_permlane32_swap_b32 v{cacc+j}, v{cacc+4+j}")
        a("s_nop 1")
        for j in range(4):
            a(f"v_add_f32 v{cacc+j}, v{cacc+j}, v{cacc+4+j}")
        a("s_nop 1")
        for j in range(2):
            a(f"v_permlane16_swap_b32 v{cacc+j}, v{cacc+2+j}")
        a("s_nop 1")
        for j in range(2):
            a(f"v_add_f32 v{cacc+j}, v{cacc+j}, v{cacc+2+j}")
        a("s_nop 1")
        for j in range(2):
            a(f"v_add_f32_dpp v{cacc+j}, v{cacc+j}, v{cacc+j} row_ror:8 row_mask:0xf bank_mask:0xf")
        a(f"buffer_store_dwordx2 {vr(cacc,2)}, v{v_ca}, {sr(SRD3,4)}, s{S_T2} offen")
        a.label("k1_end")
        a("s_endpgm")
        pre['n'] = cva.n
    pre = {}

    va = VAlloc(1)
    seg = Seg(SRD1, D * 2, 80, 'p160', S_COL)
    g = Gemm(a, va, 64, 4, 1, 1, [seg], 128, 4, D, SRD0, D * 2, S_TOK0, stats=True, colsum=True, sregs=GS, tag="k1q")
    g.split()
    g.setup()
    stamp(a, 0)
    g.mainloop()
    stamp(a, 1)
    lds = max(lds, g.lds_bytes)
    q_epilogue(g, va)
    stamp_end(a, 2)
    a("s_endpgm")
    maxv = max(maxv, va.n)
    g.loader(S_ROT, cont=colsum)
    maxv = max(maxv, pre['n'])

    a.label("k1_b")
    va = VAlloc(1)
    a(f"s_cmp_eq_u32 s{S_J}, 0")
    a(f"s_cselect_b32 s{SRD3}, s{P_WK}, s{P_WV}")
    a(f"s_cselect_b32 s{SRD3+1}, s{P_WK+1}, s{P_WV+1}")
    a(f"s_mov_b32 s{SRD3+2}, {D*DH*2}")
    a(f"s_mov_b32 s{SRD3+3}, 0x00020000")
    make_srd(a, SRD4, P_WS, WS_KV, KV_SZ)
    make_srd(a, SRD5, P_WS, WS_KN, 512)
    seg = Seg(SRD1, D * 2, 80, 'p160', S_COL)
    sk = Seg(SRD3, 40, 32, 'lin40')
    g = Gemm(a, va, 64, 4, 1, 1, [seg, sk], 128, 3, D, SRD0, D * 2, S_TOK0, stats=True, colsum=True, sregs=GS, tag="k1kv")
    g.split()
    g.setup()
    stamp(a, 0)
    g.mainloop()
    stamp(a, 1)
    lds = max(lds, g.lds_bytes)
    v_mean, v_rstd = q_epilogue(g, va)
    v_key, v_ak, v_n = va(), va(), va()
    t = g.tmp
    for fi in (5, 6):
        c, cs = g.acc[0][fi], g.acc_cs[fi]
        for r in range(4):
            a(f"v_fma_f32 v{c+r}, -v{v_mean}, v{cs+r}, v{c+r}")
            a(f"v_mul_f32 v{c+r}, v{c+r}, v{v_rstd}")
        a(f"v_cvt_pk_bf16_f32 v{c}, v{c}, v{c+1}")
        a(f"v_cvt_pk_bf16_f32 v{c+1}, v{c+2}, v{c+3}")
    k0, k1 = g.acc[0][5], g.acc[0][6]
    a(f"v_cmp_eq_u32 vcc, 0, v{g.v_g}")
    a(f"v_lshl_add_u32 v{v_key}, v{g.v_wt}, 4, v{g.v_i16}")
    a(f"v_add_u32 v{v_key}, s{S_TOK0}, v{v_key}")
    a(f"v_lshrrev_b32 v{t[0]}, 5, v{v_key}")
    a(f"v_mul_u32_u24 v{t[0]}, 2560, v{t[0]}")
    a(f"v_and_b32 v{t[1]}, 31, v{v_key}")
    a(f"s_cmp_lg_u32 s{S_J}, 0")
    a("s_cbranch_scc1 k1_v")
    a(f"v_lshl_add_u32 v{v_ak}, v{t[1]}, 4, v{t[0]}")
    a(f"v_lshrrev_b32 v{t[2]}, 1, v{g.v_g}")
    a(f"v_lshl_add_u32 v{v_ak}, v{t[2]}, 9, v{v_ak}")
    a(f"v_and_b32 v{t[2]}, 1, v{g.v_g}")
    a(f"v_lshl_add_u32 v{v_ak}, v{t[2]}, 3, v{v_ak}")
    a(f"buffer_store_dwordx2 {vr(k0,2)}, v{v_ak}, {sr(SRD4,4)}, 0 offen")
    a(f"v_lshl_add_u32 v{v_key}, v{t[1]}, 3, v{t[0]}")
    a(f"v_cndmask_b32 v{k1}, 0, v{k1}, vcc")
    a(f"v_cndmask_b32 v{k1+1}, 0, v{k1+1}, vcc")
    a("s_and_saveexec_b64 s[74:75], vcc")
    a(f"buffer_store_dwordx2 {vr(k1,2)}, v{v_key}, {sr(SRD4,4)}, 0 offen offset:1024")
    a("s_mov_b64 exec, -1")
    a(f"v_mov_b32 v{v_n}, 0")
    for c in (k0, k0 + 1, k1, k1 + 1):
        a(f"v_lshlrev_b32 v{t[0]}, 16, v{c}")
        a(f"v_and_b32 v{t[1]}, 0xffff0000, v{c}")
        a(f"v_fma_f32 v{v_n}, v{t[0]}, v{t[0]}, v{v_n}")
        a(f"v_fma_f32 v{v_n}, v{t[1]}, v{t[1]}, v{v_n}")
    swap_add(a, v_n, t[0], 32)
    swap_add(a, v_n, t[0], 16)
    dpp_rowmax(a, v_n)
    a(f"s_lshl_b32 s{S_T0}, s{S_XB}, 2")
    a(f"s_add_u32 s{S_T0}, s{S_T0}, s{S_WAVE}")
    a(f"s_lshl_b32 s{S_T0}, s{S_T0}, 2")
    a(f"v_mov_b32 v{t[0]}, 0")
    a("s_mov_b64 exec, 0x8000")
    a(f"buffer_store_dword v{v_n}, v{t[0]}, {sr(SRD5,4)}, s{S_T0} offen")
    stamp_end(a, 2)
    a("s_endpgm")
    a.label("k1_v")
    a(f"v_bfe_u32 v{t[2]}, v{t[1]}, 4, 1")
    a(f"v_mad_u32_u24 v{v_ak}, v{t[2]}, 640, v{t[0]}" if False else f"v_mul_u32_u24 v{t[2]}, 640, v{t[2]}")
    a(f"v_add_u32 v{v_ak}, v{t[2]}, v{t[0]}")
    a(f"v_bfe_u32 v{t[2]}, v{t[1]}, 2, 1")
    a(f"v_mul_u32_u24 v{t[2]}, 320, v{t[2]}")
    a(f"v_add_u32 v{v_ak}, v{t[2]}, v{v_ak}")
    a(f"v_bfe_u32 v{t[2]}, v{t[1]}, 3, 1")
    a(f"v_lshl_add_u32 v{v_ak}, v{t[2]}, 3, v{v_ak}")
    a(f"v_and_b32 v{t[2]}, 3, v{t[1]}")
    a(f"v_lshl_add_u32 v{v_ak}, v{t[2]}, 1, v{v_ak}")
    a(f"v_lshl_add_u32 v{v_ak}, v{g.v_g}, 6, v{v_ak}")
    for fb, c in enumerate((k0, k1)):
        if fb:
            a("s_and_saveexec_b64 s[74:75], vcc")
        for p in range(2):
            o = 1280 + fb * 256 + p * 32
            a(f"buffer_store_short v{c+p}, v{v_ak}, {sr(SRD4,4)}, 0 offen offset:{o}")
            a(f"buffer_store_short_d16_hi v{c+p}, v{v_ak}, {sr(SRD4,4)}, 0 offen offset:{o+16}")
    stamp_end(a, 2)
    a("s_endpgm")
    maxv = max(maxv, va.n)
    g.loader(S_ROT, cont=lambda lva, lt: a("s_branch k1_cs"))

    kernel_end(a, name, maxv)
    return (name, 256, 512, lds)


def gen_k2(a):
    name = "k2_attn_kernel"
    kernel_begin(a, name)
    a("s_cmp_ge_u32 s2, 256")
    a("s_cbranch_scc1 k2_end")
    load_kernargs(a)
    a(f"s_and_b32 s{S_XB}, s2, 7")
    a(f"s_lshr_b32 s{S_J}, s2, 3")
    a(f"s_lshr_b32 s{S_T2}, s{S_J}, 3")
    a(f"s_lshl_b32 s{S_T1}, s{S_XB}, 2")
    a(f"s_add_u32 s{S_T1}, s{S_T1}, s{S_T2}")
    a(f"s_lshl_b32 s{S_TOK0}, s{S_T1}, 6")
    a(f"s_and_b32 s{S_T0}, s{S_J}, 7")
    a(f"s_mul_i32 s{S_COL}, s{S_T0}, 160")
    va = VAlloc(1)
    t = [va() for _ in range(6)]
    v_kn = va(2, 2)
    v_l16, v_lane, v_n, v_h, v_qa, v_oa = [va() for _ in range(6)]
    v_cur = [va() for _ in range(3)]
    v_nxt = [va() for _ in range(3)]
    Q = [va(8, 4) for _ in range(2)]
    Sb = [[va(16, 4) for _ in range(2)] for _ in range(2)]
    P = [va(8, 4) for _ in range(2)]
    O = [va(16, 4) for _ in range(2)]
    KF = [va(8, 4) for _ in range(2)]
    VF = [va(8, 4) for _ in range(2)]
    v_m = [va(), va()]
    v_ob = va()
    v_cst = va()
    S_STEP, S_CNT, S_GOFF, S_HEAD = 76, 77, 78, 79
    S_VM, S_KM = 4, 6
    TB = 2560
    a(f"v_lshrrev_b32 v{t[0]}, 6, v0")
    a(f"v_and_b32 v{v_lane}, 63, v0")
    a(f"v_readfirstlane_b32 s{S_WAVE}, v{t[0]}")
    a(f"v_lshlrev_b32 v{v_l16}, 4, v{v_lane}")
    a(f"v_and_b32 v{v_n}, 31, v0")
    a(f"v_bfe_u32 v{v_h}, v0, 5, 1")
    a("s_waitcnt lgkmcnt(0)")
    a(f"s_cmp_ge_u32 s{S_WAVE}, 4")
    a("s_cbranch_scc1 k2_helper")
    make_srd(a, SRD0, P_WS, WS_Q, S * D * 2)
    make_srd(a, SRD3, P_WS, WS_KN, 512)
    make_srd(a, SRD4, P_WS, WS_O, S * D * 2)
    a(f"s_mul_i32 s{S_HEAD}, s{S_WAVE}, 40")
    a(f"s_add_u32 s{S_HEAD}, s{S_HEAD}, s{S_COL}")
    a(f"v_add_u32 v{t[1]}, s{S_TOK0}, v{v_n}")
    a(f"v_mul_u32_u24 v{t[1]}, {D*2}, v{t[1]}")
    a(f"v_add_u32 v{v_ob}, s{S_HEAD}, v{t[1]}")
    a(f"v_lshl_add_u32 v{v_qa}, v{v_h}, 4, v{v_ob}")
    a(f"v_lshl_add_u32 v{v_oa}, v{v_h}, 3, v{v_ob}")
    a(f"v_lshlrev_b32 v{t[1]}, 3, v{v_lane}")
    a(f"buffer_load_dwordx2 {vr(v_kn,2)}, v{t[1]}, {sr(SRD3,4)}, 0 offen")
    for b in range(2):
        a(f"s_mov_b32 s{S_KW}, {b * 32 * D * 2}")
        a(f"buffer_load_dwordx2 {vr(Q[b],2)}, v{v_qa}, {sr(SRD0,4)}, s{S_KW} offen")
        a(f"buffer_load_dwordx2 {vr(Q[b]+2,2)}, v{v_qa}, {sr(SRD0,4)}, s{S_KW} offen offset:8")
        a(f"buffer_load_dwordx2 {vr(Q[b]+4,2)}, v{v_ob}, {sr(SRD0,4)}, s{S_KW} offen offset:32")
    stamp(a, 0)
    for b in range(2):
        for i in range(16):
            a(f"v_mov_b32 v{O[b]+i}, 0")
        for i in range(8):
            a(f"v_mov_b32 v{VF[b]+i}, 0x3f803f80")
        a(f"v_mov_b32 v{KF[b]+6}, 0x3f80")
        a(f"v_mov_b32 v{KF[b]+7}, 0")
        a(f"v_mov_b32 v{Q[b]+7}, 0")
    for i in range(8):
        a(f"v_mov_b32 v{P[1]+i}, 0")
    for i in range(12, 16):
        a(f"v_mov_b32 v{Sb[1][1]+i}, 0")
    a(f"s_mov_b32 s{S_VM}, 0x000fffff")
    a(f"s_mov_b32 s{S_VM+1}, 0x000fffff")
    a(f"v_mov_b32 v{v_cur[0]}, v{v_l16}")
    a(f"v_lshl_add_u32 v{v_cur[1]}, v{v_n}, 3, 0" if False else f"v_lshlrev_b32 v{v_cur[1]}, 3, v{v_n}")
    a(f"v_add_u32 v{v_cur[1]}, 1024, v{v_cur[1]}")
    a(f"v_mul_u32_u24 v{t[0]}, 320, v{v_h}")
    a(f"v_lshl_add_u32 v{v_cur[2]}, v{v_n}, 4, v{t[0]}")
    a(f"v_add_u32 v{v_cur[2]}, 1280, v{v_cur[2]}")
    for i in range(3):
        a(f"v_add_u32 v{v_nxt[i]}, {8*TB}, v{v_cur[i]}")
    a(f"v_cmp_eq_u32 vcc, 0, v{v_h}")
    a("s_waitcnt vmcnt(6)")
    a(f"v_max_f32 v{v_kn}, v{v_kn}, v{v_kn+1}")
    dpp_rowmax(a, v_kn)
    a("s_nop 1")
    a(f"v_max_f32_dpp v{v_kn}, v{v_kn}, v{v_kn} row_bcast:15 row_mask:0xa bank_mask:0xf")
    a("s_nop 1")
    a(f"v_max_f32_dpp v{v_kn}, v{v_kn}, v{v_kn} row_bcast:31 row_mask:0xc bank_mask:0xf")
    a("s_nop 1")
    a(f"v_readlane_b32 s{S_KM}, v{v_kn}, 63")
    a("s_waitcnt vmcnt(0)")
    stamp(a, 1)
    for b in range(2):
        a(f"v_cndmask_b32 v{Q[b]+4}, 0, v{Q[b]+4}, vcc")
        a(f"v_cndmask_b32 v{Q[b]+5}, 0, v{Q[b]+5}, vcc")
    for i in range(6):
        for b in range(2):
            a(f"v_dot2_f32_bf16 v{t[2+b]}, v{Q[b]+i}, v{Q[b]+i}, " + ("0" if i == 0 else f"v{t[2+b]}"))
    a("s_nop 2")
    for b in range(2):
        a(f"v_mov_b32 v{t[b]}, v{t[2+b]}")
    a("s_nop 1")
    for b in range(2):
        a(f"v_permlane32_swap_b32 v{t[b]}, v{t[2+b]}")
    a("s_nop 1")
    for b in range(2):
        a(f"v_add_f32 v{t[b]}, v{t[b]}, v{t[2+b]}")
    for b in range(2):
        a(f"v_mul_f32 v{t[b]}, s{S_KM}, v{t[b]}")
    for b in range(2):
        a(f"v_sqrt_f32 v{t[b]}, v{t[b]}")
    a("s_nop 0")
    for b in range(2):
        a(f"v_cvt_pk_bf16_f32 v{t[b]}, -v{t[b]}, 0")
    for b in range(2):
        a(f"v_cndmask_b32 v{Q[b]+6}, 0, v{t[b]}, vcc")
    a("s_barrier")

    def kread(dst, regs, tile):
        return [f"ds_read_b128 {vr(dst,4)}, v{regs[0]} offset:{tile*TB}",
                f"ds_read_b64 {vr(dst+4,2)}, v{regs[1]} offset:{tile*TB}"]

    def vread(dst, regs, tile):
        return [f"s_mov_b64 exec, {sr(S_VM,2)}",
                f"ds_read_b128 {vr(dst,4)}, v{regs[2]} offset:{tile*TB}",
                f"ds_read_b128 {vr(dst+4,4)}, v{regs[2]} offset:{tile*TB+640}",
                "s_mov_b64 exec, -1"]

    for l in kread(KF[0], v_cur, 0) + kread(KF[1], v_cur, 1) + vread(VF[0], v_cur, 0):
        a(l)
    a("s_waitcnt lgkmcnt(0)")

    def qk(b, par, s, kf):
        d = vr(Sb[b][par], 16)
        c = "0" if s == 0 else d
        return f"v_mfma_f32_32x32x16_bf16 {d}, {vr(kf+4*s,4)}, {vr(Q[b]+4*s,4)}, {c}"

    def pv(b, s, vf):
        d = vr(O[b], 16)
        return f"v_mfma_f32_32x32x16_bf16 {d}, {vr(vf+4*s,4)}, {vr(P[b]+4*s,4)}, {d}"

    for b in range(2):
        a(qk(b, 0, 0, KF[0]))
        a(qk(b, 0, 1, KF[0]))
    a("s_nop 7")
    a("s_nop 7")
    a(f"s_mov_b32 s{S_CNT}, 8")
    stamp(a, 2)
    a.label("k2_loop")

    def exps(b, par, i0):
        return [f"v_exp_f32 v{Sb[b][par]+i}, v{Sb[b][par]+i}" for i in range(i0, i0 + 4)]

    def cvts(b, par, i0):
        return [f"v_cvt_pk_bf16_f32 v{P[b]+(i0+i)//2}, v{Sb[b][par]+i0+i}, v{Sb[b][par]+i0+i+1}" for i in (0, 2)]

    for ph in range(8):
        p = ph & 1
        q = p ^ 1
        kt, vt = ph + 2, ph + 1
        kr = kread(KF[p], v_cur if kt < 8 else v_nxt, kt % 8)
        vrd = vread(VF[q], v_cur if vt < 8 else v_nxt, vt % 8)
        M = [qk(0, q, 0, KF[q]), pv(1, 1, VF[q]), qk(0, q, 1, KF[q]), pv(0, 0, VF[p]),
             qk(1, q, 0, KF[q]), pv(0, 1, VF[p]), qk(1, q, 1, KF[q]), pv(1, 0, VF[p])]
        V = [cvts(1, q, 12) + exps(0, p, 0),
             exps(0, p, 4),
             cvts(0, p, 0) + cvts(0, p, 4) + exps(0, p, 8),
             cvts(0, p, 8) + exps(0, p, 12),
             cvts(0, p, 12) + exps(1, p, 0),
             exps(1, p, 4),
             cvts(1, p, 0) + cvts(1, p, 4) + exps(1, p, 8),
             cvts(1, p, 8) + exps(1, p, 12)]
        extra = [[] for _ in range(8)]
        a("s_waitcnt lgkmcnt(0)")
        extra[0] += kr
        extra[2] += vrd
        for i in range(8):
            a(M[i])
            for l in extra[i]:
                a(l)
            for l in V[i]:
                a(l)
    if INSTR:
        a("s_memtime s[98:99]")
        a("s_waitcnt lgkmcnt(0)")
        a("s_sub_u32 s98, s98, s80")
        a(f"s_mov_b32 m0, s{S_CNT}")
        a("s_nop 0")
        a(f"v_writelane_b32 v{v_cst}, s98, m0")
    a(f"s_cmp_eq_u32 s{S_CNT}, 2")
    a(f"s_cselect_b32 s{S_STEP}, 0, {8*TB}")
    for i in range(3):
        a(f"v_mov_b32 v{v_cur[i]}, v{v_nxt[i]}")
        a(f"v_add_u32 v{v_nxt[i]}, s{S_STEP}, v{v_nxt[i]}")
    a(f"s_cmp_lg_u32 s{S_CNT}, 8")
    a("s_cbranch_scc1 k2_nb")
    a("s_barrier")
    a.label("k2_nb")
    a(f"s_sub_u32 s{S_CNT}, s{S_CNT}, 1")
    a(f"s_cmp_lg_u32 s{S_CNT}, 0")
    a("s_cbranch_scc1 k2_loop")
    for l in cvts(1, 1, 12):
        a(l)
    a("s_nop 1")
    a(pv(1, 1, VF[1]))
    a("s_waitcnt vmcnt(0) lgkmcnt(0)")
    a("s_nop 7")
    a("s_nop 7")
    stamp(a, 3)
    a(f"v_mov_b32 v{t[0]}, {f32(2.0**-40)}")
    a(f"v_cmp_nge_f32 s[74:75], v{O[0]+12}, v{t[0]}")
    a(f"v_cmp_nge_f32 vcc, v{O[1]+12}, v{t[0]}")
    a("s_nop 3")
    a("s_or_b64 vcc, vcc, s[74:75]")
    a("s_cbranch_vccnz k2_slow")
    a.label("k2_epi")
    for b in range(2):
        a(f"v_rcp_f32 v{t[0]}, v{O[b]+12}")
        a("s_nop 0")
        for i in range(12):
            a(f"v_mul_f32 v{O[b]+i}, v{O[b]+i}, v{t[0]}")
        for i in range(6):
            a(f"v_cvt_pk_bf16_f32 v{O[b]+i}, v{O[b]+2*i}, v{O[b]+2*i+1}")
        a(f"s_mov_b32 s{S_KW}, {b*32*D*2}")
        a(f"buffer_store_dwordx2 {vr(O[b],2)}, v{v_oa}, {sr(SRD4,4)}, s{S_KW} offen")
        a(f"buffer_store_dwordx2 {vr(O[b]+2,2)}, v{v_oa}, {sr(SRD4,4)}, s{S_KW} offen offset:16")
    a(f"v_cmp_eq_u32 vcc, 0, v{v_h}")
    a("s_nop 3")
    a("s_and_saveexec_b64 s[74:75], vcc")
    for b in range(2):
        a(f"s_mov_b32 s{S_KW}, {b*32*D*2}")
        a(f"buffer_store_dwordx2 {vr(O[b]+4,2)}, v{v_oa}, {sr(SRD4,4)}, s{S_KW} offen offset:32")
    if INSTR:
        lab = a.newlabel("hs")
        a("s_mov_b64 exec, -1")
        a(f"s_cmp_lg_u32 s2, {INSTR_WG}")
        a(f"s_cbranch_scc1 {lab}")
        a(f"s_cmp_lg_u32 s{S_WAVE}, 0")
        a(f"s_cbranch_scc1 {lab}")
        make_srd(a, 92, P_DBG, 0, 256)
        a(f"v_lshlrev_b32 v{t[0]}, 2, v{v_lane}")
        a(f"buffer_store_dword v{v_cst}, v{t[0]}, s[92:95], 0 offen offset:192")
        a.label(lab)
    stamp_end(a, 4)
    a.label("k2_end")
    a("s_endpgm")

    def rewind():
        for i in range(3):
            a(f"v_subrev_u32 v{v_nxt[i]}, {56*TB}, v{v_cur[i]}")
        a(f"s_mov_b32 s{S_GOFF}, 0")

    def advance(lab):
        for i in range(3):
            a(f"v_add_u32 v{v_nxt[i]}, {TB}, v{v_nxt[i]}")
        a(f"s_add_u32 s{S_GOFF}, s{S_GOFF}, 1")
        a(f"s_cmp_lt_u32 s{S_GOFF}, 64")
        a(f"s_cbranch_scc1 {lab}")

    a.label("k2_slow")
    for b in range(2):
        a(f"v_mov_b32 v{Q[b]+6}, 0")
        a(f"v_mov_b32 v{v_m[b]}, 0xff800000")
    rewind()
    a.label("k2_slow1")
    for l in kread(KF[0], v_nxt, 0):
        a(l)
    a("s_waitcnt lgkmcnt(0)")
    for b in range(2):
        a(qk(b, 0, 0, KF[0]))
        a(qk(b, 0, 1, KF[0]))
    a("s_nop 7")
    a("s_nop 7")
    for b in range(2):
        for i in range(0, 16, 2):
            a(f"v_max3_f32 v{v_m[b]}, v{Sb[b][0]+i}, v{Sb[b][0]+i+1}, v{v_m[b]}")
    advance("k2_slow1")
    a(f"v_cmp_eq_u32 vcc, 0, v{v_h}")
    for b in range(2):
        xlane_add(a, v_m[b], v_lane, t[0], t[1], (32,), op="v_max_f32")
        a(f"v_cvt_pk_bf16_f32 v{t[2]}, -v{v_m[b]}, 0")
        a(f"v_cndmask_b32 v{Q[b]+6}, 0, v{t[2]}, vcc")
        for i in range(16):
            a(f"v_mov_b32 v{O[b]+i}, 0")
    rewind()
    a.label("k2_slow2")
    for l in kread(KF[0], v_nxt, 0) + vread(VF[0], v_nxt, 0):
        a(l)
    a("s_waitcnt lgkmcnt(0)")
    for b in range(2):
        a(qk(b, 0, 0, KF[0]))
        a(qk(b, 0, 1, KF[0]))
    a("s_nop 7")
    a("s_nop 7")
    for b in range(2):
        for i0 in range(0, 16, 4):
            for l in exps(b, 0, i0):
                a(l)
        a("s_nop 0")
        for i0 in range(0, 16, 4):
            for l in cvts(b, 0, i0):
                a(l)
    a("s_nop 1")
    for b in range(2):
        a(pv(b, 0, VF[0]))
        a(pv(b, 1, VF[0]))
    a("s_nop 7")
    a("s_nop 7")
    advance("k2_slow2")
    a("s_branch k2_epi")

    a.label("k2_helper")
    hva = VAlloc(v_h + 1)
    lt = t
    v_l = v_lane
    S_U, S_SRC, S_DST, S_RW = S_T0, S_T1, S_KW, S_ROT
    make_srd(a, SRD1, P_WS, WS_KV, KV_SZ)
    a(f"s_and_b32 s{S_WOFF}, s{S_WAVE}, 3")
    a(f"s_lshl_b32 s{S_RW}, s2, 2")
    a(f"s_add_u32 s{S_RW}, s{S_RW}, s{S_WOFF}")
    a(f"s_lshl_b32 s{S_T2}, s{S_J}, 2")
    a(f"s_add_u32 s{S_J}, s{S_T2}, s{S_WOFF}")
    a(f"s_lshl_b32 s{S_KX}, s{S_WOFF}, 10")
    for i in range(40):
        a(f"s_mov_b32 m0, s{S_KX}")
        a("s_nop 0")
        a(f"buffer_load_dwordx4 v{v_l16}, {sr(SRD1,4)}, s{S_KX} offen lds")
        if i < 39:
            a(f"s_add_u32 s{S_KX}, s{S_KX}, 4096")
    make_srd(a, SRD3, P_WS, WS_IMG, IMG_SZ)
    a(f"s_mov_b32 s{SRD0+3}, 0x00020000")
    a("s_waitcnt vmcnt(30)")
    a("s_barrier")
    pa = [hva() for _ in range(5)]
    pb = [hva() for _ in range(3)]
    v_rb, dummy = hva(), hva()

    def touch():
        a(f"v_lshlrev_b32 v{v_rb}, 7, v{v_l}")
        for c in range(3):
            if c == 0:
                a(f"s_mul_i32 s{S_T1}, s{S_J}, {50*128}")
            else:
                a(f"s_mul_i32 s{S_T1}, s{S_J}, {120*128}")
                a(f"s_and_b32 s{S_T0}, s{S_XB}, 1")
                a(f"s_mul_i32 s{S_T0}, s{S_T0}, {1966080}")
                a(f"s_add_u32 s{S_T1}, s{S_T1}, s{S_T0}")
                a(f"s_add_u32 s{S_T1}, s{S_T1}, {IMG_GU + (c-1)*56*128}")
            a(f"buffer_load_dword v{dummy}, v{v_rb}, {sr(SRD3,4)}, s{S_T1} offen")
            if c < 2:
                a(f"s_sleep {TSLEEP2}")

    def gather(regs, cprw, magic, stride):
        for i, r in enumerate(regs):
            a(f"v_add_u32 v{lt[0]}, {i*64}, v{v_l}")
            a(f"v_mul_u32_u24 v{lt[1]}, {magic}, v{lt[0]}")
            a(f"v_lshrrev_b32 v{lt[1]}, 19, v{lt[1]}")
            a(f"v_mul_u32_u24 v{lt[2]}, {cprw}, v{lt[1]}")
            a(f"v_sub_u32 v{lt[2]}, v{lt[0]}, v{lt[2]}")
            a(f"v_and_b32 v{lt[3]}, 0xfffffff3, v{lt[1]}")
            a(f"v_bfe_u32 v{lt[4]}, v{lt[1]}, 2, 1")
            if cprw == 12:
                a(f"v_lshlrev_b32 v{lt[5]}, 1, v{lt[4]}")
                a(f"v_xor_b32 v{lt[2]}, v{lt[2]}, v{lt[5]}")
            a(f"v_lshl_or_b32 v{lt[3]}, v{lt[4]}, 3, v{lt[3]}")
            a(f"v_bfe_u32 v{lt[4]}, v{lt[1]}, 3, 1")
            a(f"v_lshl_or_b32 v{lt[3]}, v{lt[4]}, 2, v{lt[3]}")
            a(f"v_mul_u32_u24 v{lt[3]}, {stride}, v{lt[3]}")
            a(f"v_lshl_add_u32 v{r}, v{lt[2]}, 4, v{lt[3]}")

    bufB = [hva(12, 4) for _ in range(2)]
    bufA = hva(20, 4)

    def loadsB(buf):
        a(f"s_mul_i32 s{S_SRC}, s{S_U}, 52429")
        a(f"s_lshr_b32 s{S_SRC}, s{S_SRC}, 22")
        a(f"s_mul_i32 s{S_DST}, s{S_SRC}, 80")
        a(f"s_sub_u32 s{S_T2}, s{S_U}, s{S_DST}")
        a(f"s_mul_i32 s{S_SRC}, s{S_SRC}, 192")
        a(f"s_lshr_b32 s{S_DST}, s{S_T2}, 3")
        a(f"s_lshl_b32 s{S_DST}, s{S_DST}, 2")
        a(f"s_and_b32 s{S_KX}, s{S_T2}, 3")
        a(f"s_add_u32 s{S_DST}, s{S_DST}, s{S_KX}")
        a(f"s_mul_i32 s{S_DST}, s{S_DST}, {16*F*2}")
        a(f"s_add_u32 s{S_SRC}, s{S_SRC}, s{S_DST}")
        a(f"s_bitcmp1_b32 s{S_T2}, 2")
        a(f"s_cselect_b32 s{SRD0}, s{P_WU}, s{P_WG}")
        a(f"s_cselect_b32 s{SRD0+1}, s{P_WU+1}, s{P_WG+1}")
        a(f"s_mov_b32 s{SRD0+2}, {F*D*2}")
        for i in range(3):
            a(f"buffer_load_dwordx4 {vr(buf+4*i,4)}, v{pb[i]}, {sr(SRD0,4)}, s{S_SRC} offen")

    def storesB(buf):
        a(f"s_mul_i32 s{S_DST}, s{S_U}, 3072")
        a(f"s_add_u32 s{S_DST}, s{S_DST}, {IMG_GU}")
        for i in range(3):
            a(f"buffer_store_dwordx4 {vr(buf+4*i,4)}, v{v_l16}, {sr(SRD3,4)}, s{S_DST} offen offset:{i*1024} {IMGPOL}")

    if TEARLY:
        touch()
    gather(pb, 12, 43691, F * 2)
    gather(pa, 10, 52429, D * 2)
    a("s_waitcnt vmcnt(0)")
    a(f"s_mov_b32 s{S_U}, s{S_RW}")
    loadsB(bufB[0])
    a(f"s_cmp_lt_u32 s{S_RW}, 544")
    a("s_cbranch_scc1 k2_rpa")
    a(f"s_add_u32 s{S_U}, s{S_RW}, {1024 - 544}")
    a(f"s_cmp_ge_u32 s{S_U}, 1280")
    a("s_cbranch_scc0 k2_rpb")
    a("s_barrier")
    a("s_branch k2_rpe")
    a.label("k2_rpb")
    loadsB(bufB[1])
    a("s_barrier")
    a("s_waitcnt vmcnt(0)")
    storesB(bufB[1])
    a("s_branch k2_rpe")
    a.label("k2_rpa")
    l1, l2 = a.newlabel("ra"), a.newlabel("ra")
    a(f"s_cmp_ge_u32 s{S_RW}, 160")
    a(f"s_cbranch_scc1 {l1}")
    a(f"s_mul_i32 s{S_SRC}, s{S_RW}, 3277")
    a(f"s_lshr_b32 s{S_SRC}, s{S_SRC}, 16")
    a(f"s_mul_i32 s{S_DST}, s{S_SRC}, 20")
    a(f"s_sub_u32 s{S_DST}, s{S_RW}, s{S_DST}")
    a(f"s_mov_b32 s{SRD0}, s{P_WO}")
    a(f"s_mov_b32 s{SRD0+1}, s{P_WO+1}")
    a(f"s_mov_b32 s{SRD0+2}, {D*D*2}")
    a(f"s_branch {l2}")
    a.label(l1)
    a(f"s_sub_u32 s{S_U}, s{S_RW}, 160")
    a(f"s_mul_i32 s{S_SRC}, s{S_U}, 1366")
    a(f"s_lshr_b32 s{S_SRC}, s{S_SRC}, 16")
    a(f"s_mul_i32 s{S_DST}, s{S_SRC}, 48")
    a(f"s_sub_u32 s{S_DST}, s{S_U}, s{S_DST}")
    a(f"s_mov_b32 s{SRD0}, s{P_WD}")
    a(f"s_mov_b32 s{SRD0+1}, s{P_WD+1}")
    a(f"s_mov_b32 s{SRD0+2}, {F*D*2}")
    a.label(l2)
    a(f"s_mul_i32 s{S_SRC}, s{S_SRC}, 160")
    a(f"s_mul_i32 s{S_DST}, s{S_DST}, {32*D*2}")
    a(f"s_add_u32 s{S_SRC}, s{S_SRC}, s{S_DST}")
    for i in range(5):
        a(f"buffer_load_dwordx4 {vr(bufA+4*i,4)}, v{pa[i]}, {sr(SRD0,4)}, s{S_SRC} offen")
    a(f"s_mul_i32 s{S_DST}, s{S_RW}, 5120")
    a("s_barrier")
    a("s_waitcnt vmcnt(0)")
    for i in range(5):
        if i == 4:
            a(f"s_add_u32 s{S_DST}, s{S_DST}, 4096")
        a(f"buffer_store_dwordx4 {vr(bufA+4*i,4)}, v{v_l16}, {sr(SRD3,4)}, s{S_DST} offen offset:{(i%4)*1024} {IMGPOL}")
    a.label("k2_rpe")
    a("s_waitcnt vmcnt(0)")
    a(f"s_mov_b32 s{S_U}, s{S_RW}")
    storesB(bufB[0])
    if INSTR:
        a("s_waitcnt vmcnt(0)")
        a("s_memrealtime s[100:101]")
        a("s_waitcnt lgkmcnt(0)")
        lab = a.newlabel("hw")
        a(f"s_cmp_lg_u32 s{S_WAVE}, 4")
        a(f"s_cbranch_scc1 {lab}")
        make_srd(a, 40, P_WS, WS_TL + 4096 + 2048, 2048)
        a("v_mov_b32 v2, s82")
        a("v_mov_b32 v3, s100")
        a("s_lshl_b32 s98, s2, 3")
        a("v_mov_b32 v1, s98")
        a("buffer_store_dwordx2 v[2:3], v1, s[40:43], 0 offen")
        a.label(lab)
    for n in TSLEEP:
        a(f"s_sleep {n}")
    if not TEARLY:
        touch()
    a("s_endpgm")

    kernel_end(a, name, max(va.n, hva.n))
    return (name, 256, 512, KV_SZ)

TSLEEP = [int(x) for x in os.environ.get("TSLEEP", "127").split(",") if x]
TSLEEP2 = int(os.environ.get("TSLEEP2", "16"))
TEARLY = bool(os.environ.get("TEARLY"))


def gen_proj(a, which):
    name = "k3_wo_kernel" if which == 3 else "k5_down_kernel"
    end = name + "_end"
    kernel_begin(a, name)
    a("s_cmp_ge_u32 s2, 256")
    a(f"s_cbranch_scc1 {end}")
    load_kernargs(a)
    va = VAlloc(1)
    a(f"s_and_b32 s{S_T1}, s2, 7")
    a(f"s_lshr_b32 s{S_T0}, s2, 3")
    a(f"s_mov_b32 s{S_J}, s{S_T0}")
    a(f"s_mov_b32 s{S_XB}, s{S_T1}")
    if which == 3:
        a(f"s_mul_i32 s{S_ROT}, s{S_T0}, 52")
        a(f"s_lshr_b32 s{S_ROT}, s{S_ROT}, 8")
        a(f"s_mul_i32 s{S_ROT}, s{S_ROT}, 5")
        a(f"s_sub_u32 s{S_ROT}, s{S_T0}, s{S_ROT}")
    else:
        a(f"s_and_b32 s{S_ROT}, s{S_T1}, 1")
        a(f"s_mul_i32 s{S_ROT}, s{S_ROT}, 6")
        a(f"s_and_b32 s{S_T2}, s{S_T0}, 1")
        a(f"s_add_u32 s{S_ROT}, s{S_ROT}, s{S_T2}")
    if which == 3:
        a(f"s_lshr_b32 s{S_T2}, s{S_T0}, 3")
        a(f"s_lshl_b32 s{S_T1}, s{S_T1}, 2")
        a(f"s_add_u32 s{S_T1}, s{S_T1}, s{S_T2}")
        a(f"s_lshl_b32 s{S_TOK0}, s{S_T1}, 6")
        a(f"s_and_b32 s{S_T0}, s{S_T0}, 7")
    else:
        a(f"s_lshr_b32 s{S_T2}, s{S_T1}, 1")
        a(f"s_lshl_b32 s{S_T2}, s{S_T2}, 3")
        a(f"s_and_b32 s{S_TOK0}, s{S_T0}, 7")
        a(f"s_add_u32 s{S_TOK0}, s{S_TOK0}, s{S_T2}")
        a(f"s_lshl_b32 s{S_TOK0}, s{S_TOK0}, 6")
        a(f"s_and_b32 s{S_T1}, s{S_T1}, 1")
        a(f"s_lshl_b32 s{S_T1}, s{S_T1}, 2")
        a(f"s_lshr_b32 s{S_T0}, s{S_T0}, 3")
        a(f"s_add_u32 s{S_T0}, s{S_T0}, s{S_T1}")
    a(f"s_mul_i32 s{S_COL}, s{S_T0}, 160")
    a("s_waitcnt lgkmcnt(0)")
    if which == 3:
        K = D
        make_srd(a, SRD0, P_WS, WS_O, S * D * 2)
        make_srd(a, SRD1, P_WS, WS_IMG, IMG_SZ)
        a(f"s_mul_i32 s{S_IMG}, s{S_T0}, {5*20480}")
        make_srd(a, SRD2, P_WS, WS_H, S * D * 2)
        make_srd(a, SRD3, P_X, 0, S * D * 2)
        make_srd(a, SRD4, P_WS, WS_ST, S * 64)
    else:
        K = F
        make_srd(a, SRD0, P_WS, WS_ACT, S * F * 2)
        make_srd(a, SRD1, P_WS, WS_IMG, IMG_SZ)
        a(f"s_mul_i32 s{S_IMG}, s{S_T0}, {12*20480}")
        make_srd(a, SRD2, P_OUT, 0, S * D * 2)
        make_srd(a, SRD3, P_WS, WS_H, S * D * 2)
    seg = Seg(SRD1, D * 2, 80, 'p160', S_COL, img=(S_IMG, 20480, IMG_WO if which == 3 else IMG_WD))
    g = Gemm(a, va, 64, 2, 2, 1, [seg], 128, 4, K, SRD0, K * 2, S_TOK0, sregs=GS, tag=f"k{which}")
    g.split()
    v_dummy = va()
    if which == 5 and PF:
        a(f"s_lshr_b32 s{S_T1}, s{S_XB}, 1")
        a(f"s_mul_i32 s{S_T1}, s{S_T1}, {512*K*2}")
        prefetch_lin(a, 0, g.tmp[0], v_dummy, SRD0, S_T1, S_J, 512*K*2//128//32, S_T2)
    g.setup()
    t = g.tmp
    v_ad, v_tok, v_x = va(), va(), va()
    res = va(10, 2)
    a(f"v_lshl_add_u32 v{v_tok}, v{g.v_wt}, 1, v{g.v_wo}")
    a(f"v_lshl_add_u32 v{v_tok}, v{v_tok}, 4, v{g.v_i16}")
    a(f"v_add_u32 v{v_tok}, s{S_TOK0}, v{v_tok}")
    a(f"v_mul_u32_u24 v{t[0]}, {D*2}, v{v_tok}")
    a(f"v_lshl_add_u32 v{v_ad}, v{g.v_g}, 3, v{t[0]}")
    a(f"v_add_u32 v{v_ad}, s{S_COL}, v{v_ad}")
    for fb in range(5):
        a(f"buffer_load_dwordx2 {vr(res+2*fb,2)}, v{v_ad}, {sr(SRD3,4)}, 0 offen offset:{fb*32}")
    stamp(a, 0)
    g.mainloop()
    stamp(a, 1)
    a("s_nop 7")
    a("s_barrier")
    skip = a.newlabel("xs")
    a(f"s_cmp_lt_u32 s{S_WAVE}, 2")
    a(f"s_cbranch_scc1 {skip}")
    for fb in range(5):
        for r in range(4):
            a(f"v_swap_b32 v{g.acc[0][fb]+r}, v{g.acc[1][fb]+r}")
    a.label(skip)
    a(f"v_mul_u32_u24 v{t[0]}, 5120, v{g.v_wave}")
    a(f"v_lshl_add_u32 v{t[0]}, v{g.v_lane}, 4, v{t[0]}")
    a(f"v_xor_b32 v{t[1]}, 2, v{g.v_wave}")
    a(f"v_mul_u32_u24 v{t[1]}, 5120, v{t[1]}")
    a(f"v_lshl_add_u32 v{t[1]}, v{g.v_lane}, 4, v{t[1]}")
    for fb in range(5):
        a(f"ds_write_b128 v{t[0]}, {vr(g.acc[1][fb],4)} offset:{fb*1024}")
    a("s_waitcnt lgkmcnt(0)")
    a("s_barrier")
    for fb in range(5):
        a(f"ds_read_b128 {vr(g.acc[1][fb],4)}, v{t[1]} offset:{fb*1024}")
    a("s_waitcnt lgkmcnt(0)")
    v_s, v_q = va(2, 2), None
    v_q = v_s + 1
    if which == 3:
        a(f"v_mov_b32 v{v_s}, 0")
        a(f"v_mov_b32 v{v_q}, 0")
    for fb in range(5):
        c, o = g.acc[0][fb], g.acc[1][fb]
        for p in range(2):
            a(f"v_lshlrev_b32 v{t[0]}, 16, v{res+2*fb+p}")
            a(f"v_and_b32 v{t[1]}, 0xffff0000, v{res+2*fb+p}")
            a(f"v_add_f32 v{c+2*p}, v{c+2*p}, v{o+2*p}")
            a(f"v_add_f32 v{c+2*p+1}, v{c+2*p+1}, v{o+2*p+1}")
            a(f"v_cvt_pk_bf16_f32 v{t[2]}, v{c+2*p}, v{c+2*p+1}")
            a(f"v_lshlrev_b32 v{t[3]}, 16, v{t[2]}")
            a(f"v_and_b32 v{t[2]}, 0xffff0000, v{t[2]}")
            a(f"v_add_f32 v{t[0]}, v{t[0]}, v{t[3]}")
            a(f"v_add_f32 v{t[1]}, v{t[1]}, v{t[2]}")
            a(f"v_cvt_pk_bf16_f32 v{o+p}, v{t[0]}, v{t[1]}")
            if which == 3:
                a(f"v_lshlrev_b32 v{t[0]}, 16, v{o+p}")
                a(f"v_and_b32 v{t[1]}, 0xffff0000, v{o+p}")
                a(f"v_add_f32 v{v_s}, v{v_s}, v{t[0]}")
                a(f"v_fma_f32 v{v_q}, v{t[0]}, v{t[0]}, v{v_q}")
                a(f"v_add_f32 v{v_s}, v{v_s}, v{t[1]}")
                a(f"v_fma_f32 v{v_q}, v{t[1]}, v{t[1]}, v{v_q}")
        a(f"buffer_store_dwordx2 {vr(o,2)}, v{v_ad}, {sr(SRD2,4)}, 0 offen offset:{fb*32}")
    if which == 3:
        xlane_add(a, v_s, g.v_lane, t[0], t[1], (16, 32))
        xlane_add(a, v_q, g.v_lane, t[0], t[1], (16, 32))
        a(f"v_lshlrev_b32 v{t[0]}, 6, v{v_tok}")
        a(f"s_lshl_b32 s{S_T0}, s{S_T0}, 3")
        a(f"v_cmp_eq_u32 vcc, 0, v{g.v_g}")
        a("s_nop 3")
        a("s_and_saveexec_b64 s[74:75], vcc")
        a(f"buffer_store_dwordx2 {vr(v_s,2)}, v{t[0]}, {sr(SRD4,4)}, s{S_T0} offen")
        if os.environ.get("RBW"):
            a("s_waitcnt vmcnt(0)")
        for o in ((0, 80, 156) if not os.environ.get("NORB3") else ()):
            a(f"buffer_load_dword v{t[1]}, v{v_ad}, {sr(SRD2,4)}, 0 offen offset:{o} sc1")
    stamp_end(a, 2)
    a.label(end)
    a("s_endpgm")
    g.loader(S_ROT)
    kernel_end(a, name, va.n)
    return (name, 256, 512, g.lds_bytes)


def gen_k4(a):
    name = "k4_ffn_kernel"
    kernel_begin(a, name)
    a("s_cmp_ge_u32 s2, 256")
    a("s_cbranch_scc1 k4_end")
    load_kernargs(a)
    va = VAlloc(1)
    a(f"s_and_b32 s{S_XB}, s2, 7")
    a(f"s_lshr_b32 s{S_J}, s2, 3")
    a(f"s_mul_i32 s{S_ROT}, s{S_J}, 26")
    a(f"s_lshr_b32 s{S_ROT}, s{S_ROT}, 8")
    a(f"s_mul_i32 s{S_ROT}, s{S_ROT}, 10")
    a(f"s_sub_u32 s{S_ROT}, s{S_J}, s{S_ROT}")
    a(f"s_lshr_b32 s{S_T2}, s{S_XB}, 1")
    a(f"s_lshl_b32 s{S_T2}, s{S_T2}, 2")
    a(f"s_and_b32 s{S_TOK0}, s{S_J}, 3")
    a(f"s_add_u32 s{S_TOK0}, s{S_TOK0}, s{S_T2}")
    a(f"s_lshl_b32 s{S_TOK0}, s{S_TOK0}, 7")
    a(f"s_lshr_b32 s{S_T2}, s{S_J}, 2")
    a(f"s_and_b32 s{S_T1}, s{S_XB}, 1")
    a(f"s_lshl_b32 s{S_T1}, s{S_T1}, 3")
    a(f"s_add_u32 s{S_T0}, s{S_T2}, s{S_T1}")
    a(f"s_mul_i32 s{S_COL}, s{S_T0}, 192")
    a(f"s_mul_i32 s{S_IMG}, s{S_T0}, {10*24576}")
    a("s_waitcnt lgkmcnt(0)")
    make_srd(a, SRD0, P_WS, WS_H, S * D * 2)
    make_srd(a, SRD1, P_WS, WS_IMG, IMG_SZ)
    make_srd(a, SRD3, P_WS, WS_ACT, S * F * 2)
    sg = Seg(SRD1, F * 2, 96, 'p192', S_COL, img=(S_IMG, 24576, IMG_GU))
    su = Seg(SRD1, F * 2, 96, 'p192', S_COL, img=(S_IMG, 24576, IMG_GU + 12288))
    g = Gemm(a, va, 128, 2, 1, 2, [sg, su], 64, K4_NS, D, SRD0, D * 2, S_TOK0, sregs=GS, tag="k4")
    TAB = g.lds_bytes
    g.split()
    g.setup()
    t = g.tmp
    v_tok, v_ad, v_ta, v_tc = va(), va(), va(), va()
    a(f"v_lshl_add_u32 v{v_tok}, v{g.v_wt}, 6, v{g.v_i16}")
    a(f"v_lshlrev_b32 v{v_ta}, 4, v{v_tok}")
    a(f"v_add_u32 v{v_ta}, {TAB}, v{v_ta}")
    a(f"v_add_u32 v{v_tok}, s{S_TOK0}, v{v_tok}")
    a(f"v_mul_u32_u24 v{t[1]}, 48, v{g.v_wo}")
    a(f"v_lshl_add_u32 v{t[1]}, v{g.v_g}, 2, v{t[1]}")
    a(f"v_lshlrev_b32 v{v_tc}, 2, v{t[1]}")
    a(f"v_add_u32 v{v_tc}, {TAB + 2048}, v{v_tc}")
    a(f"v_mul_u32_u24 v{v_ad}, {F*2}, v{v_tok}")
    a(f"v_lshl_add_u32 v{v_ad}, v{t[1]}, 1, v{v_ad}")
    a(f"v_add_u32 v{v_ad}, s{S_COL}, v{v_ad}")
    a(f"v_mul_u32_u24 v{v_tok}, 20, v{g.v_g}")
    a(f"v_add_u32 v{v_tok}, v{v_tok}, v{v_ad}")
    stamp(a, 0)
    g.mainloop()
    stamp(a, 1)
    a("s_barrier")
    st = g.fa[0]
    cs = g.fa[1]
    tmp = g.fb[0]
    for tb in range(4):
        a(f"ds_read_b128 {vr(st+4*tb,4)}, v{v_ta} offset:{tb*256}")
    for sgi in range(2):
        for fb in range(3):
            a(f"ds_read_b128 {vr(cs+12*sgi+4*fb,4)}, v{v_tc} offset:{sgi*384 + fb*64}")
    a("s_waitcnt lgkmcnt(0)")
    for tb in range(4):
        vm, vA, vB, vC = [st + 4 * tb + i for i in range(4)]
        pm, pB = vr(vm, 2), vr(vB, 2)
        for fb in range(3):
            cg, cu = g.acc[tb][fb], g.acc[tb][3 + fb]
            z = tmp + 8 * (fb & 1)
            for h in (0, 2):
                a(f"v_pk_fma_f32 {vr(cg+h,2)}, {pm}, {vr(cs+4*fb+h,2)}, {vr(cg+h,2)} op_sel_hi:[0,1,1]")
                a(f"v_pk_fma_f32 {vr(cu+h,2)}, {pm}, {vr(cs+12+4*fb+h,2)}, {vr(cu+h,2)} op_sel_hi:[0,1,1]")
            for h in (0, 2):
                a(f"v_pk_mul_f32 {vr(z+h,2)}, {vr(cg+h,2)}, {vr(cg+h,2)}")
                a(f"v_pk_mul_f32 {vr(cu+h,2)}, {vr(cu+h,2)}, {vr(cg+h,2)}")
            for h in (0, 2):
                a(f"v_pk_fma_f32 {vr(z+h,2)}, {vr(z+h,2)}, {pB}, {pm} op_sel:[0,0,1] op_sel_hi:[1,0,1]")
            for h in (0, 2):
                a(f"v_pk_mul_f32 {vr(z+h,2)}, {vr(z+h,2)}, {vr(cg+h,2)}")
            for r in range(4):
                a(f"v_exp_f32 v{z+r}, v{z+r}")
            for h in (0, 2):
                a(f"v_pk_fma_f32 {vr(z+h,2)}, {vr(z+h,2)}, {pB}, {pB} op_sel:[0,1,1] op_sel_hi:[1,1,1]")
            for r in range(4):
                a(f"v_rcp_f32 v{z+r}, v{z+r}")
            a("s_nop 0")
            for h in (0, 2):
                a(f"v_pk_mul_f32 {vr(cu+h,2)}, {vr(cu+h,2)}, {vr(z+h,2)}")
            a(f"v_cvt_pk_bf16_f32 v{cu}, v{cu}, v{cu+1}")
            a(f"v_cvt_pk_bf16_f32 v{cu+1}, v{cu+2}, v{cu+3}")
            a(f"s_mov_b32 s{S_KW}, {tb*16*F*2}")
            a(f"buffer_store_dwordx2 {vr(cu,2)}, v{v_ad}, {sr(SRD3,4)}, s{S_KW} offen offset:{fb*32}")
        if not os.environ.get("NORB4"):
            a(f"buffer_load_dword v{t[1]}, v{v_tok}, {sr(SRD3,4)}, s{S_KW} offen sc1")
    stamp(a, 2)
    stamp_end(a, 3)
    a.label("k4_end")
    a("s_endpgm")

    GC = -2.0 * 0.7978845608028654 * 1.4426950408889634
    pre = {}

    def early(lva, lt):
        make_srd(a, SRD4, P_WS, WS_ST, S * 64)
        make_srd(a, SRD5, P_WS, WS_CS, NCS * 3072 * 4)
        buf = lva(4 * NCS, 4)
        pre['buf'] = buf
        l2, l3 = a.newlabel("k4e"), a.newlabel("k4e")
        a(f"s_cmp_ge_u32 s{S_WAVE}, 6")
        a(f"s_cbranch_scc1 {l2}")
        a(f"v_add_u32 v{lt[0]}, s{S_TOK0}, v0")
        a(f"v_lshlrev_b32 v{lt[0]}, 6, v{lt[0]}")
        for i in range(4):
            a(f"buffer_load_dwordx4 {vr(buf+4*i,4)}, v{lt[0]}, {sr(SRD4,4)}, 0 offen offset:{i*16}")
        a(f"s_branch {l3}")
        a.label(l2)
        a(f"v_and_b32 v{lt[0]}, 63, v0")
        a(f"v_min_u32 v{lt[0]}, 23, v{lt[0]}")
        a(f"v_lshlrev_b32 v{lt[0]}, 4, v{lt[0]}")
        a(f"s_sub_u32 s{S_T1}, s{S_WAVE}, 6")
        a(f"s_mul_i32 s{S_T1}, s{S_T1}, {1536*4}")
        a(f"s_lshl_b32 s{S_T2}, s{S_COL}, 1")
        a(f"s_add_u32 s{S_T1}, s{S_T1}, s{S_T2}")
        for i in range(NCS):
            a(f"buffer_load_dwordx4 {vr(buf+4*i,4)}, v{lt[0]}, {sr(SRD5,4)}, s{S_T1} offen")
            a(f"s_add_u32 s{S_T1}, s{S_T1}, {3072*4}")
        a.label(l3)

    def cont(lva, lt):
        buf = pre['buf']
        a(f"s_and_b32 s{S_T1}, s{S_XB}, 1")
        a(f"s_mul_i32 s{S_T1}, s{S_T1}, 983040")
        a(f"s_mul_i32 s{S_T2}, s{S_J}, {240*128}")
        a(f"s_add_u32 s{S_T1}, s{S_T1}, s{S_T2}")
        a(f"s_add_u32 s{S_T1}, s{S_T1}, {IMG_WD}")
        a(f"v_min_u32 v{lt[0]}, 239, v0")
        a(f"v_lshlrev_b32 v{lt[0]}, 7, v{lt[0]}")
        if not os.environ.get("NOWDPF"):
            a(f"buffer_load_dword v{lt[5]}, v{lt[0]}, {sr(SRD1,4)}, s{S_T1} offen")
        l2, l3 = a.newlabel("k4e"), a.newlabel("k4e")
        a(f"s_cmp_ge_u32 s{S_WAVE}, 6")
        a(f"s_cbranch_scc1 {l2}")
        for i in range(1, 8):
            a(f"v_add_f32 v{buf}, v{buf}, v{buf+2*i}")
            a(f"v_add_f32 v{buf+1}, v{buf+1}, v{buf+2*i+1}")
        ln_stats(a, buf, buf + 1, buf + 4, buf + 8, lt)
        a(f"v_sub_f32 v{buf+4}, 0, v{buf+4}")
        a(f"v_mul_f32 v{buf+5}, {f32(GC)}, v{buf+8}")
        a(f"v_mul_f32 v{buf+9}, v{buf+8}, v{buf+8}")
        a(f"v_mul_f32 v{buf+6}, v{buf+9}, v{buf+8}")
        a(f"v_mul_f32 v{buf+6}, {f32(GC*0.044715)}, v{buf+6}")
        a(f"v_rcp_f32 v{buf+7}, v{buf+9}")
        a(f"v_lshlrev_b32 v{lt[0]}, 4, v0")
        a(f"v_add_u32 v{lt[0]}, {TAB}, v{lt[0]}")
        a(f"ds_write_b128 v{lt[0]}, {vr(buf+4,4)}")
        a(f"s_branch {l3}")
        a.label(l2)
        for k in range(1, NCS):
            for i in range(4):
                a(f"v_add_f32 v{buf+i}, v{buf+i}, v{buf+4*k+i}")
        a(f"v_and_b32 v{lt[0]}, 63, v0")
        a(f"v_min_u32 v{lt[0]}, 23, v{lt[0]}")
        a(f"v_lshlrev_b32 v{lt[0]}, 4, v{lt[0]}")
        a(f"s_sub_u32 s{S_T1}, s{S_WAVE}, 6")
        a(f"s_mul_i32 s{S_T1}, s{S_T1}, 384")
        a(f"s_add_u32 s{S_T1}, s{S_T1}, {TAB + 2048}")
        a(f"v_add_u32 v{lt[0]}, s{S_T1}, v{lt[0]}")
        a(f"ds_write_b128 v{lt[0]}, {vr(buf,4)}")
        a.label(l3)
        a("s_waitcnt lgkmcnt(0)")
        a("s_barrier")
        a("s_endpgm")

    g.loader(S_ROT, cont=cont, early=early)
    kernel_end(a, name, max(va.n, g.loader_vgprs))
    return (name, 256, 512, g.lds_bytes + 4096)

K4_NS = 3


def main():
    a = Asm()
    a.raw('.amdgcn_target "amdgcn-amd-amdhsa--gfx950"')
    a.raw(".text")
    launches = [gen_k1(a), gen_k2(a), gen_proj(a, 3), gen_k4(a), gen_proj(a, 5)]
    head = open("cdna_kernels/" + NAME + ".s.ref").read().split("\n")
    hdr = [l for l in head if l.startswith(";") and "@launch" not in l and "Override launch" not in l and "grid=ceil" not in l]
    out = "\n".join(hdr) + "\n"
    for n, gx, bx, lds in launches:
        out += f"; @launch kernel={n} grid=({gx},1,1) block=({bx},1,1) lds={lds}\n"
    out += a.text()
    out += '.section .rodata,"a"\n' + "".join(KDS)
    path = sys.argv[1] if len(sys.argv) > 1 else "cdna_kernels/" + NAME + ".s"
    open(path, "w").write(out)
    print("wrote", path, len(out), "bytes;", launches)

if __name__ == "__main__":
    main()
```

```python
import sys

NAME = "sequential_preLN__grouped_kv_mqa__geglu_ffn__prompt"

S, D, H, DH, F = 2048, 640, 32, 20, 1536

WS_Q   = 0
WS_KF  = 0x280000
WS_KV  = WS_KF
KV_SZ  = 163840
NCS    = 8
WS_VF  = WS_KF + 0x20000
WS_KN  = WS_VF + 0x20000
WS_CS  = WS_KN + 0x1000
WS_O   = WS_CS + 0x20000
WS_H   = WS_O + 0x280000
WS_ST  = WS_H + 0x280000
WS_ACT = WS_ST + 0x20000
WS_S1  = WS_ACT + 0x600000
WS_CNT = WS_S1
WS_IMG = WS_S1 + 0x4000
WS_TL = 0x3000000
IMG_WO, IMG_WD, IMG_GU, IMG_SZ = 0, 819200, 819200 + 1966080, 6717440

KA_X, KA_WQ, KA_WK, KA_WV, KA_WO, KA_BX, KA_WG, KA_WU, KA_WD, KA_OUT, KA_DBG, KA_WS = [8 * i for i in range(12)]

import struct, os
INSTR = bool(os.environ.get("INSTR"))
HACK_LIN = bool(os.environ.get("HACK_LIN"))
NOCOMP = os.environ.get("NOCOMP", "").split(",")
NOX = os.environ.get("NOX", "").split(",")
NOW = os.environ.get("NOW", "").split(",")
PF = bool(os.environ.get("PF"))
IMGPOL = os.environ.get("IMGPOL", "sc1")
for _k in ("NORB2", "NORB3", "NORB4"):
    os.environ[_k] = "1"
NOLOAD = os.environ.get("NOLOAD", "").split(",")
def f32(x):
    return "0x%08x" % struct.unpack("<I", struct.pack("<f", x))[0]


class Asm:
    skip_dma = False
    def __init__(self):
        self.lines = []
        self.nlabel = 0

    def __call__(self, s):
        for l in s.split("\n"):
            l = l.strip()
            if self.skip_dma and l.startswith("buffer_load") and l.endswith("lds"):
                continue
            if l:
                self.lines.append("    " + l)

    def label(self, l):
        self.lines.append(l + ":")

    def newlabel(self, p="L"):
        self.nlabel += 1
        return f"{p}_{self.nlabel}"

    def raw(self, s):
        self.lines.append(s)

    def text(self):
        return "\n".join(self.lines) + "\n"


class VAlloc:
    def __init__(self, start=1):
        self.n = start

    def __call__(self, cnt=1, align=1):
        self.n = (self.n + align - 1) // align * align
        r = self.n
        self.n += cnt
        return r


def vr(b, n):
    return f"v[{b}:{b+n-1}]"


def sr(b, n):
    return f"s[{b}:{b+n-1}]"


KIDX = [-1]
LIDX = [0]
def kernel_begin(a, name):
    KIDX[0] += 1
    a.raw(f".globl {name}")
    a.raw(".p2align 8")
    a.raw(f".type {name},@function")
    a.label(name)


KDS = []
def kernel_end(a, name, nvgpr, nsgpr=102):
    nv = (nvgpr + 7) // 8 * 8
    KDS.append(f""".p2align 6
.amdhsa_kernel {name}
  .amdhsa_next_free_vgpr {nv}
  .amdhsa_next_free_sgpr {nsgpr}
  .amdhsa_accum_offset {(nv + 3) // 4 * 4}
  .amdhsa_group_segment_fixed_size 0
  .amdhsa_kernarg_size 96
  .amdhsa_user_sgpr_count 2
  .amdhsa_user_sgpr_kernarg_segment_ptr 1
  .amdhsa_system_sgpr_workgroup_id_x 1
.end_amdhsa_kernel
""")


def make_srd(a, dst, base_s, off, nbytes):
    if off:
        a(f"s_add_u32 s{dst}, s{base_s}, {off}")
        a(f"s_addc_u32 s{dst+1}, s{base_s+1}, 0")
    else:
        a(f"s_mov_b32 s{dst}, s{base_s}")
        a(f"s_mov_b32 s{dst+1}, s{base_s+1}")
    a(f"s_mov_b32 s{dst+2}, {nbytes}")
    a(f"s_mov_b32 s{dst+3}, 0x00020000")


def interleave(mfmas, fillers):
    out = []
    nm, nf = len(mfmas), len(fillers)
    fi = 0
    for i, m in enumerate(mfmas):
        out.append(m)
        tgt = ((i + 1) * nf + nm - 1) // nm if nm else nf
        while fi < min(tgt, nf):
            out.extend(fillers[fi])
            fi += 1
    while fi < nf:
        out.extend(fillers[fi])
        fi += 1
    return out


class Seg:
    def __init__(self, srd, gstride, nf, kind, colreg=None, img=None):
        self.img = img
        self.srd = srd
        self.gstride = gstride
        self.nf = nf
        self.kind = kind
        self.colreg = colreg


class Gemm:
    def __init__(self, a, va, TT, WT, WK, WF, segs, BK, NS, K, xsrd, xstride, s_tok0,
                 stats=False, colsum=False, sregs=None, tag="g", lds_base=0, xcm=False):
        self.a, self.va = a, va
        self.xcm = xcm
        self.lds_base = lds_base
        self.TT, self.WT, self.WK, self.WF = TT, WT, WK, WF
        assert WT * WK * WF == 4
        self.segs, self.BK, self.NS, self.K = segs, BK, NS, K
        self.xsrd, self.xstride, self.s_tok0 = xsrd, xstride, s_tok0
        self.stats, self.colsum = stats, colsum
        self.tag = tag
        self.TW = TT // WT
        self.TB = self.TW // 16
        self.RB = BK * 2
        self.CPR = self.RB // 16
        self.nst = K // BK
        self.SPS = BK // 32
        self.SPW = self.SPS // WK
        assert self.SPW % 2 == 0
        self.xbytes = TT * self.RB
        off = self.xbytes
        for s in segs:
            s.lstride = 40 if s.kind == 'lin40' else s.nf * 2
            nb = BK * s.lstride
            s.ninstr = (nb + 4095) // 4096 * 4
            s.lbase = off
            off += s.ninstr * 1024
            s.FBW = (s.nf // WF) // 16
        self.stage_bytes = off
        self.nx = self.xbytes // 1024
        assert self.nx % 4 == 0
        self.ndma = self.nx // 4 + sum(s.ninstr // 4 for s in segs)
        self.lds_bytes = self.stage_bytes * NS
        (self.s_woff, self.s_kx, self.s_kw, self.s_wave, self.s_cnt, self.s_slot, self.s_kidx, self.s_dl) = sregs

    def split(self):
        a, va = self.a, self.va
        self.tmp = [va() for _ in range(6)]
        t = self.tmp
        a(f"v_lshrrev_b32 v{t[0]}, 6, v0")
        a("s_nop 0")
        a(f"v_readfirstlane_b32 s{self.s_wave}, v{t[0]}")
        a("s_nop 3")
        a(f"s_cmp_ge_u32 s{self.s_wave}, 4")
        a(f"s_cbranch_scc1 {self.tag}_loader")

    def loader(self, s_rot=None, cont=None, early=None, gate=None, head=True, xpol=""):
        a = self.a
        va = VAlloc(1)
        t = [va() for _ in range(6)]
        if head:
            a.label(f"{self.tag}_loader")
            a(f"v_and_b32 v0, 255, v0")
        a(f"s_and_b32 s{self.s_woff}, s{self.s_wave}, 3")
        a(f"s_lshl_b32 s{self.s_woff}, s{self.s_woff}, 10")
        if self.lds_base:
            a(f"s_add_u32 s{self.s_woff}, s{self.s_woff}, {self.lds_base}")
        if early is not None and gate is None:
            early(va, t)
        lg = {8: 3, 16: 4}[self.CPR]
        v_dx = va()

        def xaddr():
            if self.xcm:
                a(f"v_lshrrev_b32 v{t[1]}, {lg+4}, v0")
                a(f"v_and_b32 v{t[2]}, {self.CPR*16-1}, v0")
                a(f"v_lshlrev_b32 v{t[1]}, 4, v{t[1]}")
                a(f"v_add_u32 v{t[1]}, s{self.s_tok0}, v{t[1]}")
                a(f"v_mul_u32_u24 v{t[1]}, {self.xstride}, v{t[1]}")
                a(f"v_lshl_add_u32 v{v_dx}, v{t[2]}, 4, v{t[1]}")
                return
            a(f"v_lshrrev_b32 v{t[1]}, {lg}, v0")
            a(f"v_and_b32 v{t[2]}, {self.CPR-1}, v0")
            if self.CPR == 8:
                a(f"v_bfe_u32 v{t[3]}, v{t[1]}, 1, 3")
            else:
                a(f"v_and_b32 v{t[3]}, 15, v{t[1]}")
            a(f"v_xor_b32 v{t[2]}, v{t[2]}, v{t[3]}")
            a(f"v_add_u32 v{t[1]}, s{self.s_tok0}, v{t[1]}")
            a(f"v_mul_u32_u24 v{t[1]}, {self.xstride}, v{t[1]}")
            a(f"v_lshl_add_u32 v{v_dx}, v{t[2]}, 4, v{t[1]}")
        if gate is None:
            xaddr()
        xrows = 256 // self.CPR
        done = {}
        for s in self.segs:
            key = (s.kind, s.nf)
            if key in done:
                s.v_d = done[key]
                continue
            s.v_d = []
            cprw = s.lstride // 16 if s.kind != 'lin40' else None
            for j in range(s.ninstr // 4):
                if s.kind == 'lin40' or s.img:
                    if j == 0:
                        r = va()
                        a(f"v_lshlrev_b32 v{r}, 4, v0")
                    s.v_d.append(r)
                    continue
                r = va()
                s.v_d.append(r)
                a(f"v_add_u32 v{t[0]}, {j*256}, v0")
                magic = {10: 52429, 12: 43691}[cprw]
                a(f"v_mul_u32_u24 v{t[1]}, {magic}, v{t[0]}")
                a(f"v_lshrrev_b32 v{t[1]}, 19, v{t[1]}")
                a(f"v_mul_u32_u24 v{t[2]}, {cprw}, v{t[1]}")
                a(f"v_sub_u32 v{t[2]}, v{t[0]}, v{t[2]}")
                a(f"v_and_b32 v{t[3]}, 0xfffffff3, v{t[1]}")
                a(f"v_bfe_u32 v{t[4]}, v{t[1]}, 2, 1")
                if s.kind == 'p192':
                    a(f"v_lshlrev_b32 v{t[5]}, 1, v{t[4]}")
                    a(f"v_xor_b32 v{t[2]}, v{t[2]}, v{t[5]}")
                a(f"v_lshl_or_b32 v{t[3]}, v{t[4]}, 3, v{t[3]}")
                a(f"v_bfe_u32 v{t[4]}, v{t[1]}, 3, 1")
                a(f"v_lshl_or_b32 v{t[3]}, v{t[4]}, 2, v{t[3]}")
                a(f"v_mul_u32_u24 v{t[3]}, {s.gstride}, v{t[3]}")
                a(f"v_lshl_add_u32 v{r}, v{t[2]}, 4, v{t[3]}")
                if s.colreg is not None:
                    a(f"v_add_u32 v{r}, s{s.colreg}, v{r}")
            done[key] = s.v_d

        def kreset():
            if s_rot is None:
                a(f"s_mov_b32 s{self.s_kidx}, 0")
            else:
                a(f"s_mov_b32 s{self.s_kidx}, s{s_rot}")
        gs = self.segs[0].gstride
        ops = []

        def issue(st, x=True, w=True):
            slot = (st % self.NS) * self.stage_bytes
            if x:
                a(f"s_mul_i32 s{self.s_kx}, s{self.s_kidx}, {self.CPR*256 if self.xcm else self.BK*2}")
                for j in range(self.nx // 4):
                    a(f"s_add_u32 m0, s{self.s_woff}, {slot + j*4096}")
                    if j:
                        a(f"s_add_u32 s{self.s_kx}, s{self.s_kx}, {xrows*self.xstride}")
                    else:
                        a("s_nop 0")
                    a(f"buffer_load_dwordx4 v{v_dx}, {sr(self.xsrd,4)}, s{self.s_kx} offen {xpol} lds")
                    ops.append(st)
            if w:
                if self.segs[0].img:
                    a(f"s_mul_i32 s{self.s_kw}, s{self.s_kidx}, {self.segs[0].img[1]}")
                    a(f"s_add_u32 s{self.s_kw}, s{self.s_kw}, s{self.segs[0].img[0]}")
                else:
                    a(f"s_mul_i32 s{self.s_kw}, s{self.s_kidx}, {self.BK*gs}")
                for s in self.segs:
                    if s.gstride != gs:
                        a(f"s_mul_i32 s{self.s_kw}, s{self.s_kidx}, {self.BK*s.gstride}")
                    for j, r in enumerate(s.v_d):
                        a(f"s_add_u32 m0, s{self.s_woff}, {slot + s.lbase + j*4096}")
                        if s.kind == 'lin40' or s.img:
                            a(f"s_add_u32 s{self.s_dl}, s{self.s_kw}, {j*4096 + (s.img[2] if s.img else 0)}")
                            a(f"buffer_load_dwordx4 v{r}, {sr(s.srd,4)}, s{self.s_dl} offen lds")
                        else:
                            a("s_nop 0")
                            a(f"buffer_load_dwordx4 v{r}, {sr(s.srd,4)}, s{self.s_kw} offen lds")
                        ops.append(st)
            a(f"s_add_u32 s{self.s_kidx}, s{self.s_kidx}, 1")
            a(f"s_cmp_eq_u32 s{self.s_kidx}, {self.nst}")
            a(f"s_cselect_b32 s{self.s_kidx}, 0, s{self.s_kidx}")

        v_st = va()

        def lstamp(idx):
            if INSTR:
                a("s_memtime s[98:99]")
                a("s_waitcnt lgkmcnt(0)")
                a("s_sub_u32 s98, s98, s80")
                a(f"v_writelane_b32 v{v_st}, s98, {idx}")

        def ready(st):
            last = max(i for i, o in enumerate(ops) if o == st)
            n = len(ops) - 1 - last
            assert n < 64
            a(f"s_waitcnt vmcnt({n})")
            lstamp(st + 2)
            a("s_barrier")

        lstamp(0)
        kreset()
        NS, nst = self.NS, self.nst
        if gate is not None:
            for st in range(NS):
                issue(st, x=False)
            xaddr()
            kreset()
            gate()
            if early is not None:
                early(va, t)
        lstamp(1)
        wf = gate is None
        issue(0, w=wf)
        issue(1, w=wf)
        ready(0)
        for st in range(2, NS):
            issue(st, w=wf)
        for st in range(NS, nst):
            ready(st - NS + 1)
            issue(st)
        for st in range(nst - NS + 1, nst):
            ready(st)
        a("s_barrier")
        if INSTR:
            lab = a.newlabel("ls")
            a(f"s_cmp_lg_u32 s2, {INSTR_WG}")
            a(f"s_cbranch_scc1 {lab}")
            a(f"s_cmp_lg_u32 s{self.s_wave}, 4")
            a(f"s_cbranch_scc1 {lab}")
            make_srd(a, 92, P_WS, WS_TL + 0x10000 + LIDX[0] * 256, 64)
            a(f"v_lshlrev_b32 v{t[0]}, 2, v0")
            a(f"buffer_store_dword v{v_st}, v{t[0]}, s[92:95], 0 offen")
            a("s_waitcnt vmcnt(0)")
            a.label(lab)
        LIDX[0] += 1
        if cont is None:
            a("s_endpgm")
        else:
            cont(va, t)
        self.loader_vgprs = va.n

    def setup(self):
        a, va = self.a, self.va
        t = self.tmp
        lane, i16, g, wv = va(), va(), va(), va()
        self.v_lane, self.v_i16, self.v_g, self.v_wave = lane, i16, g, wv
        a(f"v_and_b32 v{lane}, 63, v0")
        a(f"v_lshrrev_b32 v{wv}, 6, v0")
        a(f"v_and_b32 v{i16}, 15, v0")
        a(f"v_bfe_u32 v{g}, v0, 4, 2")
        wt, wo = va(), va()
        self.v_wt, self.v_wo = wt, wo
        a(f"v_and_b32 v{wt}, {self.WT-1}, v{wv}")
        sh = {1: 0, 2: 1, 4: 2}[self.WT]
        a(f"v_lshrrev_b32 v{wo}, {sh}, v{wv}")
        self.addr_regs = []
        done = {}
        for s in self.segs:
            key = (s.kind, s.nf)
            if key in done:
                s.v_a = done[key]
                continue
            if s.kind == 'lin40':
                a(f"v_lshlrev_b32 v{t[0]}, 3, v{g}")
            else:
                a(f"v_lshrrev_b32 v{t[0]}, 1, v{g}")
                a(f"v_lshlrev_b32 v{t[0]}, 4, v{t[0]}")
                a(f"v_and_b32 v{t[1]}, 1, v{g}")
                a(f"v_lshl_add_u32 v{t[0]}, v{t[1]}, 2, v{t[0]}")
            a(f"v_lshrrev_b32 v{t[1]}, 2, v{i16}")
            a(f"v_add_u32 v{t[0]}, v{t[0]}, v{t[1]}")
            if self.WK > 1:
                a(f"v_mov_b32 v{t[1]}, {self.SPW*32}")
                a(f"v_mad_u32_u24 v{t[0]}, v{wo}, v{t[1]}, v{t[0]}")
            a(f"v_mul_u32_u24 v{t[0]}, {s.lstride}, v{t[0]}")
            a(f"v_and_b32 v{t[1]}, 3, v{i16}")
            a(f"v_lshl_add_u32 v{t[0]}, v{t[1]}, 3, v{t[0]}")
            if s.kind == 'p192':
                regs = []
                for b in range(s.FBW):
                    r = va()
                    regs.append(r)
                    if self.WF > 1:
                        a(f"v_mul_u32_u24 v{t[1]}, {s.FBW}, v{wo}")
                        a(f"v_add_u32 v{t[1]}, {b}, v{t[1]}")
                    else:
                        a(f"v_mov_b32 v{t[1]}, {b}")
                    a(f"v_and_b32 v{t[2]}, 1, v{g}")
                    a(f"v_xor_b32 v{t[1]}, v{t[1]}, v{t[2]}")
                    a(f"v_lshl_add_u32 v{r}, v{t[1]}, 5, v{t[0]}")
                s.v_a = regs
                self.addr_regs += regs
            else:
                r = va()
                if self.WF > 1:
                    a(f"v_mul_u32_u24 v{t[1]}, {s.FBW*32}, v{wo}")
                    a(f"v_add_u32 v{r}, v{t[0]}, v{t[1]}")
                else:
                    a(f"v_mov_b32 v{r}, v{t[0]}")
                s.v_a = [r]
                self.addr_regs.append(r)
            done[key] = s.v_a
        self.v_b = []
        if self.xcm:
            r = va()
            self.v_b = [r] * self.SPW
            self.addr_regs.append(r)
            a(f"v_mul_u32_u24 v{t[0]}, {self.TW*self.RB}, v{wt}")
            a(f"v_lshl_add_u32 v{t[0]}, v{lane}, 4, v{t[0]}")
            if self.WK > 1:
                a(f"v_mul_u32_u24 v{t[2]}, {1024*self.SPW}, v{wo}")
                a(f"v_add_u32 v{r}, v{t[0]}, v{t[2]}")
            else:
                a(f"v_mov_b32 v{r}, v{t[0]}")
        a(f"v_mul_u32_u24 v{t[0]}, {self.TW}, v{wt}")
        a(f"v_add_u32 v{t[0]}, v{t[0]}, v{i16}")
        if self.CPR == 8:
            a(f"v_bfe_u32 v{t[1]}, v{t[0]}, 1, 3")
        else:
            a(f"v_and_b32 v{t[1]}, 15, v{t[0]}")
        a(f"v_mul_u32_u24 v{t[0]}, {self.RB}, v{t[0]}")
        for ls in range(self.SPW if not self.xcm else 0):
            r = va()
            self.v_b.append(r)
            self.addr_regs.append(r)
            if self.WK > 1:
                a(f"v_mul_u32_u24 v{t[2]}, {4*self.SPW}, v{wo}")
                a(f"v_add3_u32 v{t[2]}, v{t[2]}, v{g}, {4*ls}")
            else:
                a(f"v_add_u32 v{t[2]}, {4*ls}, v{g}")
            a(f"v_xor_b32 v{t[2]}, v{t[2]}, v{t[1]}")
            a(f"v_lshl_add_u32 v{r}, v{t[2]}, 4, v{t[0]}")
        if self.lds_base:
            for r in self.addr_regs:
                a(f"v_add_u32 v{r}, {self.lds_base}, v{r}")
        self.nA = sum(s.FBW for s in self.segs)
        self.fa = [va(4 * self.nA, 4) for _ in range(2)]
        self.fb = [va(4 * self.TB, 4) for _ in range(2)]
        self.acc = [[va(4, 4) for _ in range(self.nA)] for _ in range(self.TB)]
        accs = [r for row in self.acc for r in row]
        if self.stats or self.colsum:
            self.v_ones = va(4, 4)
            for i in range(4):
                a(f"v_mov_b32 v{self.v_ones+i}, 0x3f803f80")
        if self.stats:
            self.acc_sum = [va(4, 4) for _ in range(self.TB)]
            self.acc_sq = [va(4, 4) for _ in range(self.TB)]
            accs += self.acc_sum + self.acc_sq
        if self.colsum:
            self.acc_cs = [va(4, 4) for _ in range(self.nA)]
            accs += self.acc_cs
        for r in accs:
            for i in range(4):
                a(f"v_mov_b32 v{r+i}, 0")

    def read_units(self, ls, buf):
        units = []
        fi = 0
        for s in self.segs:
            for b in range(s.FBW):
                for e in range(2):
                    if s.kind == 'lin40':
                        off = s.lbase + (ls * 32 + 4 * e) * 40 + b * 32
                        ar = s.v_a[0]
                    elif s.kind == 'p192':
                        off = s.lbase + (ls * 32 + 8 * e) * s.lstride
                        ar = s.v_a[b]
                    else:
                        off = s.lbase + (ls * 32 + 8 * e) * s.lstride + b * 32
                        ar = s.v_a[0]
                    assert off < 65536
                    d = self.fa[buf] + 4 * fi + 2 * e
                    units.append([f"ds_read_b64_tr_b16 {vr(d,2)}, v{ar} offset:{off}"])
                fi += 1
        for tb in range(self.TB):
            off = tb * 16 * self.RB + (ls * 1024 if self.xcm else 0)
            d = self.fb[buf] + 4 * tb
            units.append([f"ds_read_b128 {vr(d,4)}, v{self.v_b[ls]} offset:{off}"])
        return units[-self.TB:] + units[:-self.TB]

    def mfmas(self, buf):
        out = []
        for fi in range(self.nA):
            A = vr(self.fa[buf] + 4 * fi, 4)
            for tb in range(self.TB):
                B = vr(self.fb[buf] + 4 * tb, 4)
                c = vr(self.acc[tb][fi], 4)
                out.append(f"v_mfma_f32_16x16x32_bf16 {c}, {A}, {B}, {c}")
            if self.colsum:
                c = vr(self.acc_cs[fi], 4)
                out.append(f"v_mfma_f32_16x16x32_bf16 {c}, {A}, {vr(self.v_ones,4)}, {c}")
        if self.stats:
            for tb in range(self.TB):
                B = vr(self.fb[buf] + 4 * tb, 4)
                c = vr(self.acc_sum[tb], 4)
                out.append(f"v_mfma_f32_16x16x32_bf16 {c}, {vr(self.v_ones,4)}, {B}, {c}")
                c = vr(self.acc_sq[tb], 4)
                out.append(f"v_mfma_f32_16x16x32_bf16 {c}, {B}, {B}, {c}")
        return out

    def mainloop(self):
        a = self.a
        a(f"s_mov_b32 s{self.s_cnt}, {self.nst}")
        a(f"s_mov_b32 s{self.s_slot}, 0")
        a("s_barrier")
        for u in self.read_units(0, 0):
            for l in u:
                a(l)
        lp = f"{self.tag}_loop"
        a.label(lp)
        for ls in range(self.SPW):
            buf = ls & 1
            a("s_waitcnt lgkmcnt(0)")
            if ls == self.SPW - 1:
                a(f"s_mov_b32 s{self.s_dl}, s{self.s_slot}")
                a(f"s_add_u32 s{self.s_slot}, s{self.s_slot}, {self.stage_bytes}")
                a(f"s_cmp_ge_u32 s{self.s_slot}, {self.lds_bytes}")
                a(f"s_cselect_b32 s{self.s_slot}, 0, s{self.s_slot}")
                a(f"s_sub_u32 s{self.s_dl}, s{self.s_slot}, s{self.s_dl}")
                a("s_barrier")
                for r in self.addr_regs:
                    a(f"v_add_u32 v{r}, s{self.s_dl}, v{r}")
                fill = self.read_units(0, buf ^ 1)
            else:
                fill = self.read_units(ls + 1, buf ^ 1)
            if self.tag in NOCOMP:
                continue
            for l in interleave(self.mfmas(buf), fill):
                a(l)
        a(f"s_sub_u32 s{self.s_cnt}, s{self.s_cnt}, 1")
        a(f"s_cmp_lg_u32 s{self.s_cnt}, 0")
        a(f"s_cbranch_scc1 {lp}")
        a("s_waitcnt vmcnt(0) lgkmcnt(0)")


P_X, P_WQ, P_WK, P_WV, P_WO, P_BX, P_WG, P_WU, P_WD, P_OUT, P_DBG, P_WS = [16 + 2 * i for i in range(12)]
SRD0, SRD1, SRD2, SRD3, SRD4, SRD5 = 40, 44, 48, 52, 56, 60
S_WOFF, S_KX, S_KW, S_WAVE = 64, 65, 66, 67
S_TOK0, S_COL, S_T0, S_T1, S_T2 = 68, 69, 70, 71, 72
S_CNT_, S_SLOT_, S_KIDX, S_DL, S_ROT = 76, 77, 78, 79, 73
GS = (S_WOFF, S_KX, S_KW, S_WAVE, S_CNT_, S_SLOT_, S_KIDX, S_DL)


def load_kernargs(a):
    if INSTR:
        for i in range(84, 98):
            a(f"s_mov_b32 s{i}, 0")
        a("s_memtime s[80:81]")
        a("s_memrealtime s[82:83]")
    a("s_load_dwordx16 s[16:31], s[0:1], 0")
    a("s_load_dwordx8 s[32:39], s[0:1], 64")


def stamp(a, idx):
    if INSTR:
        a("s_memtime s[98:99]")
        a("s_waitcnt lgkmcnt(0)")
        a(f"s_sub_u32 s{84+idx}, s98, s80")


def stamp_end(a, n, wg=None):
    if INSTR:
        lab = a.newlabel("se")
        a("s_mov_b64 exec, -1")
        a("s_waitcnt vmcnt(0)")
        a("s_memtime s[98:99]")
        a("s_memrealtime s[100:101]")
        a("s_waitcnt lgkmcnt(0)")
        a(f"s_sub_u32 s{84+n}, s98, s80")
        a(f"s_sub_u32 s{85+n}, s100, s82")
        lab2 = a.newlabel("se")
        a(f"s_cmp_lg_u32 s{S_WAVE}, 0")
        a(f"s_cbranch_scc1 {lab2}")
        make_srd(a, 40, P_WS, WS_TL + KIDX[0] * 4096, 4096)
        a("s_getreg_b32 s98, hwreg(HW_REG_XCC_ID)")
        a("s_and_b32 s98, s98, 7")
        a("s_andn2_b32 s100, s100, 7")
        a("s_or_b32 s100, s100, s98")
        a("v_mov_b32 v2, s82")
        a("v_mov_b32 v3, s100")
        a("s_lshl_b32 s98, s2, 3")
        a("v_mov_b32 v1, s98")
        a("buffer_store_dwordx2 v[2:3], v1, s[40:43], 0 offen")
        a.label(lab2)
        a(f"s_cmp_lg_u32 s2, {INSTR_WG if wg is None else wg}")
        a(f"s_cbranch_scc1 {lab}")
        a(f"s_cmp_lg_u32 s{S_WAVE}, 0")
        a(f"s_cbranch_scc1 {lab}")
        make_srd(a, 40, P_DBG, 0, 256)
        a("v_mov_b32 v1, 0")
        for i in range(14):
            a(f"v_mov_b32 v2, s{84+i}")
            a(f"buffer_store_dword v2, v1, s[40:43], 0 offen offset:{4*i}")
        a.label(lab)
INSTR_WG = int(os.environ.get("INSTR_WG", "100"))


def round_bf16(a, dst, src):
    a(f"v_cvt_pk_bf16_f32 v{dst}, v{src}, v{src}")
    a(f"v_lshlrev_b32 v{dst}, 16, v{dst}")


def ln_stats(a, v_sum, v_sq, v_mean, v_rstd, t):
    a(f"v_mul_f32 v{v_mean}, {f32(1.0/D)}, v{v_sum}")
    a(f"v_mul_f32 v{t[0]}, {f32(1.0/D)}, v{v_sq}")
    a(f"v_fma_f32 v{t[0]}, -v{v_mean}, v{v_mean}, v{t[0]}")
    a(f"v_max_f32 v{t[0]}, 0, v{t[0]}")
    round_bf16(a, v_mean, v_mean)
    round_bf16(a, t[0], t[0])
    a(f"v_add_f32 v{t[0]}, {f32(1e-5)}, v{t[0]}")
    round_bf16(a, t[0], t[0])
    a(f"v_sqrt_f32 v{t[0]}, v{t[0]}")
    a("s_nop 0")
    round_bf16(a, t[0], t[0])
    a(f"v_rcp_f32 v{v_rstd}, v{t[0]}")
    a("s_nop 0")


def gram_diag(a, g, acc_sq, dst):
    t = g.tmp
    a(f"v_and_b32 v{t[0]}, 3, v{g.v_i16}")
    a(f"v_mov_b32 v{t[1]}, v{acc_sq}")
    for r in range(1, 4):
        a(f"v_cmp_eq_u32 vcc, {r}, v{t[0]}")
        a("s_nop 1")
        a(f"v_cndmask_b32 v{t[1]}, v{t[1]}, v{acc_sq+r}, vcc")
    a(f"v_lshrrev_b32 v{t[0]}, 2, v{g.v_i16}")
    a(f"v_lshl_add_u32 v{t[0]}, v{t[0]}, 4, v{g.v_i16}")
    a(f"v_lshlrev_b32 v{t[0]}, 2, v{t[0]}")
    a(f"ds_bpermute_b32 v{dst}, v{t[0]}, v{t[1]}")
    a("s_waitcnt lgkmcnt(0)")


def xlane_add(a, v, v_lane, t0, t1, masks, op="v_add_f32"):
    for m in masks:
        a(f"v_xor_b32 v{t0}, {m}, v{v_lane}")
        a(f"v_lshlrev_b32 v{t0}, 2, v{t0}")
        a(f"ds_bpermute_b32 v{t1}, v{t0}, v{v}")
        a("s_waitcnt lgkmcnt(0)")
        a(f"{op} v{v}, v{v}, v{t1}")


QSCALE = (DH ** -0.5) * 1.4426950408889634


def prefetch_lin(a, v_tid, v_t, v_dummy, srd, s_base, s_j, nlines, s_tmp, nthreads=256):
    a(f"s_mul_i32 s{s_tmp}, s{s_j}, {nlines*128}")
    if s_base is not None:
        a(f"s_add_u32 s{s_tmp}, s{s_tmp}, s{s_base}")
    a(f"v_lshlrev_b32 v{v_t}, 7, v{v_tid}")
    n = (nlines + nthreads - 1) // nthreads
    for i in range(n):
        if i:
            a(f"s_add_u32 s{s_tmp}, s{s_tmp}, {nthreads*128}")
        a(f"buffer_load_dword v{v_dummy}, v{v_t}, {sr(srd,4)}, s{s_tmp} offen")

S_J, S_XB, S_IMG = 12, 13, 14

def dpp_rowmax(a, v):
    for n in (1, 2, 4, 8):
        a("s_nop 1")
        a(f"v_max_f32_dpp v{v}, v{v}, v{v} row_shr:{n} row_mask:0xf bank_mask:0xf bound_ctrl:0")


def swap_add(a, v, t, which):
    a(f"v_mov_b32 v{t}, v{v}")
    a("s_nop 1")
    a(f"v_permlane{which}_swap_b32 v{v}, v{t}")
    a("s_nop 1")
    a(f"v_add_f32 v{v}, v{v}, v{t}")


def gen_k1(a):
    name = "k1_qkv_kernel"
    kernel_begin(a, name)
    a("s_cmp_ge_u32 s2, 256")
    a("s_cbranch_scc1 k1_end")
    load_kernargs(a)
    a(f"s_and_b32 s{S_T1}, s2, 7")
    a(f"s_lshr_b32 s{S_T0}, s2, 3")
    a(f"s_mul_i32 s{S_ROT}, s{S_T0}, 52")
    a(f"s_lshr_b32 s{S_ROT}, s{S_ROT}, 8")
    a(f"s_mul_i32 s{S_ROT}, s{S_ROT}, 5")
    a(f"s_sub_u32 s{S_ROT}, s{S_T0}, s{S_ROT}")
    if os.environ.get("K0ROT", "0") == "0":
        a(f"s_mov_b32 s{S_ROT}, 0")
    a(f"s_lshr_b32 s{S_T2}, s{S_T0}, 3")
    a(f"s_lshl_b32 s{S_T1}, s{S_T1}, 2")
    a(f"s_add_u32 s{S_XB}, s{S_T1}, s{S_T2}")
    a(f"s_lshl_b32 s{S_TOK0}, s{S_XB}, 6")
    a(f"s_and_b32 s{S_J}, s{S_T0}, 7")
    a(f"s_mul_i32 s{S_COL}, s{S_J}, 160")
    a("s_waitcnt lgkmcnt(0)")
    make_srd(a, SRD0, P_X, 0, S * D * 2)
    make_srd(a, SRD1, P_WQ, 0, D * D * 2)
    make_srd(a, SRD2, P_WS, WS_Q, S * D * 2)
    a(f"s_cmp_lt_u32 s{S_J}, 2")
    a("s_cbranch_scc1 k1_b")
    maxv = 8
    lds = 0

    def q_epilogue(g, va):
        t = g.tmp
        v_mean, v_rstd, v_sq, v_ad, v_rq, v_tok = va(), va(), va(), va(), va(), va()
        nA = g.nA
        nx = 2 * nA + 2
        a(f"v_mul_u32_u24 v{t[0]}, {nx*1024}, v{g.v_wave}")
        a(f"v_lshl_add_u32 v{t[0]}, v{g.v_lane}, 4, v{t[0]}")
        a(f"v_xor_b32 v{t[1]}, 2, v{g.v_wave}")
        a(f"v_mul_u32_u24 v{t[1]}, {nx*1024}, v{t[1]}")
        a(f"v_lshl_add_u32 v{t[1]}, v{g.v_lane}, 4, v{t[1]}")
        a(f"v_lshl_add_u32 v{v_tok}, v{g.v_wt}, 1, v{g.v_wo}")
        a(f"v_lshl_add_u32 v{v_tok}, v{v_tok}, 4, v{g.v_i16}")
        a(f"v_add_u32 v{v_tok}, s{S_TOK0}, v{v_tok}")
        a("s_nop 3")
        keep = g.acc[0] + [g.acc_sum[0], g.acc_sq[0]]
        send = g.acc[1] + [g.acc_sum[1], g.acc_sq[1]]
        skip = a.newlabel("xs")
        a(f"s_cmp_lt_u32 s{S_WAVE}, 2")
        a(f"s_cbranch_scc1 {skip}")
        for k_, s_ in zip(keep, send):
            for r in range(4):
                a(f"v_swap_b32 v{k_+r}, v{s_+r}")
        a.label(skip)
        for i, r in enumerate(send + g.acc_cs):
            a(f"ds_write_b128 v{t[0]}, {vr(r,4)} offset:{i*1024}")
        a("s_waitcnt lgkmcnt(0)")
        a("s_barrier")
        csx = [g.fa[0] + 4 * i for i in range(nA)]
        order = [nA, nA + 1] + list(range(nA))
        for i in order:
            a(f"ds_read_b128 {vr(send[i],4)}, v{t[1]} offset:{i*1024}")
            if i < nA:
                a(f"ds_read_b128 {vr(csx[i],4)}, v{t[1]} offset:{(nA+2+i)*1024}")
        a(f"v_mul_u32_u24 v{t[2]}, {D*2}, v{v_tok}")
        a(f"v_lshl_add_u32 v{v_ad}, v{g.v_g}, 3, v{t[2]}")
        a(f"v_add_u32 v{v_ad}, s{S_COL}, v{v_ad}")
        a(f"s_waitcnt lgkmcnt({2*nA})")
        a(f"v_add_f32 v{keep[nA]}, v{keep[nA]}, v{send[nA]}")
        for r in range(4):
            a(f"v_add_f32 v{keep[nA+1]+r}, v{keep[nA+1]+r}, v{send[nA+1]+r}")
        gram_diag(a, g, g.acc_sq[0], v_sq)
        ln_stats(a, g.acc_sum[0], v_sq, v_mean, v_rstd, g.tmp)
        a(f"v_mul_f32 v{v_rq}, {f32(QSCALE)}, v{v_rstd}")
        for fb in range(nA):
            c, cs = g.acc[0][fb], g.acc_cs[fb]
            for r in range(4):
                a(f"v_add_f32 v{c+r}, v{c+r}, v{send[fb]+r}")
                a(f"v_add_f32 v{cs+r}, v{cs+r}, v{csx[fb]+r}")
                a(f"v_fma_f32 v{c+r}, -v{v_mean}, v{cs+r}, v{c+r}")
                a(f"v_mul_f32 v{c+r}, v{c+r}, v{v_rq if fb < 5 else v_rstd}")
            a(f"v_cvt_pk_bf16_f32 v{c}, v{c}, v{c+1}")
            a(f"v_cvt_pk_bf16_f32 v{c+1}, v{c+2}, v{c+3}")
            if fb < 5:
                a(f"buffer_store_dwordx2 {vr(c,2)}, v{v_ad}, {sr(SRD2,4)}, 0 offen offset:{fb*32}")
        return v_tok

    def colsum(lva, lt):
        a.label("k1_cs")
        cva = VAlloc(8)
        lt = [cva() for _ in range(4)]
        csb = cva(40, 4)
        cacc = cva(8, 4)
        v_ca, v_l = cva(), cva()
        S_U, S_SRC, S_DST = S_T0, S_T1, S_KW
        a(f"s_sub_u32 s{S_U}, s{S_WAVE}, 4")
        a(f"s_lshl_b32 s{S_U}, s{S_U}, 8")
        a(f"s_add_u32 s{S_T2}, s{S_U}, s2")
        a(f"s_cmp_eq_u32 s{S_T2}, 768")
        a("s_cbranch_scc1 k1_zero")
        a(f"s_cmp_ge_u32 s{S_T2}, {48*NCS}")
        a("s_cbranch_scc1 k1_end")
        a(f"s_mul_i32 s{S_U}, s{S_T2}, 1366")
        a(f"s_lshr_b32 s{S_U}, s{S_U}, 16")
        a(f"s_mul_i32 s{S_SRC}, s{S_U}, 48")
        a(f"s_sub_u32 s{S_SRC}, s{S_T2}, s{S_SRC}")
        a(f"s_cmp_lt_u32 s{S_SRC}, 24")
        a(f"s_cselect_b32 s{SRD0}, s{P_WG}, s{P_WU}")
        a(f"s_cselect_b32 s{SRD0+1}, s{P_WG+1}, s{P_WU+1}")
        a(f"s_mov_b32 s{SRD0+2}, {F*D*2}")
        a(f"s_cselect_b32 s{S_DST}, 0, 24")
        a(f"s_sub_u32 s{S_SRC}, s{S_SRC}, s{S_DST}")
        a(f"s_lshl_b32 s{S_SRC}, s{S_SRC}, 7")
        a(f"s_mul_i32 s{S_U}, s{S_U}, {80*F*2}")
        a(f"s_add_u32 s{S_SRC}, s{S_SRC}, s{S_U}")
        a(f"v_and_b32 v{v_l}, 63, v0")
        a(f"v_lshrrev_b32 v{lt[0]}, 3, v{v_l}")
        a(f"v_mul_u32_u24 v{lt[0]}, {F*2}, v{lt[0]}")
        a(f"v_and_b32 v{lt[1]}, 7, v{v_l}")
        a(f"v_lshl_add_u32 v{v_ca}, v{lt[1]}, 4, v{lt[0]}")
        for i in range(10):
            a(f"buffer_load_dwordx4 {vr(csb+4*i,4)}, v{v_ca}, {sr(SRD0,4)}, s{S_SRC} offen")
            a(f"s_add_u32 s{S_SRC}, s{S_SRC}, {8*F*2}")
        a(f"v_lshrrev_b32 v{lt[0]}, 4, v{v_l}")
        a(f"v_lshlrev_b32 v{lt[0]}, 3, v{lt[0]}")
        a(f"v_lshl_add_u32 v{v_ca}, v{lt[1]}, 5, v{lt[0]}")
        make_srd(a, SRD3, P_WS, WS_CS, NCS * 3072 * 4)
        a(f"s_lshl_b32 s{S_T2}, s{S_T2}, 8")
        a("s_barrier")
        for i in range(10):
            a(f"s_waitcnt vmcnt({9-i})")
            for j in range(4):
                if i == 0:
                    a(f"v_lshlrev_b32 v{cacc+2*j}, 16, v{csb+j}")
                    a(f"v_and_b32 v{cacc+2*j+1}, 0xffff0000, v{csb+j}")
                else:
                    a(f"v_lshlrev_b32 v{lt[0]}, 16, v{csb+4*i+j}")
                    a(f"v_and_b32 v{lt[1]}, 0xffff0000, v{csb+4*i+j}")
                    a(f"v_add_f32 v{cacc+2*j}, v{cacc+2*j}, v{lt[0]}")
                    a(f"v_add_f32 v{cacc+2*j+1}, v{cacc+2*j+1}, v{lt[1]}")
        a("s_nop 1")
        for j in range(4):
            a(f"v_permlane32_swap_b32 v{cacc+j}, v{cacc+4+j}")
        a("s_nop 1")
        for j in range(4):
            a(f"v_add_f32 v{cacc+j}, v{cacc+j}, v{cacc+4+j}")
        a("s_nop 1")
        for j in range(2):
            a(f"v_permlane16_swap_b32 v{cacc+j}, v{cacc+2+j}")
        a("s_nop 1")
        for j in range(2):
            a(f"v_add_f32 v{cacc+j}, v{cacc+j}, v{cacc+2+j}")
        a("s_nop 1")
        for j in range(2):
            a(f"v_add_f32_dpp v{cacc+j}, v{cacc+j}, v{cacc+j} row_ror:8 row_mask:0xf bank_mask:0xf")
        a(f"buffer_store_dwordx2 {vr(cacc,2)}, v{v_ca}, {sr(SRD3,4)}, s{S_T2} offen")
        a.label("k1_end")
        a("s_endpgm")
        a.label("k1_zero")
        make_srd(a, SRD3, P_WS, WS_CNT, 16384)
        a(f"v_and_b32 v{v_l}, 63, v0")
        a(f"v_lshlrev_b32 v{v_l}, 8, v{v_l}")
        a(f"v_mov_b32 v{lt[0]}, 0")
        a(f"buffer_store_dword v{lt[0]}, v{v_l}, {sr(SRD3,4)}, 0 offen")
        a("s_endpgm")
        pre['n'] = cva.n
    pre = {}

    va = VAlloc(1)
    seg = Seg(SRD1, D * 2, 80, 'p160', S_COL)
    g = Gemm(a, va, 64, 2, 2, 1, [seg], 128, 4, D, SRD0, D * 2, S_TOK0, stats=True, colsum=True, sregs=GS, tag="k1q")
    g.split()
    g.setup()
    stamp(a, 0)
    g.mainloop()
    stamp(a, 1)
    lds = max(lds, g.lds_bytes)
    q_epilogue(g, va)
    stamp_end(a, 2)
    a("s_endpgm")
    maxv = max(maxv, va.n)
    g.loader(S_ROT, cont=colsum)
    maxv = max(maxv, pre['n'])

    a.label("k1_b")
    va = VAlloc(1)
    a(f"s_cmp_eq_u32 s{S_J}, 0")
    a(f"s_cselect_b32 s{SRD3}, s{P_WK}, s{P_WV}")
    a(f"s_cselect_b32 s{SRD3+1}, s{P_WK+1}, s{P_WV+1}")
    a(f"s_mov_b32 s{SRD3+2}, {D*DH*2}")
    a(f"s_mov_b32 s{SRD3+3}, 0x00020000")
    make_srd(a, SRD4, P_WS, WS_KV, KV_SZ)
    make_srd(a, SRD5, P_WS, WS_KN, 512)
    seg = Seg(SRD1, D * 2, 80, 'p160', S_COL)
    sk = Seg(SRD3, 40, 32, 'lin40')
    g = Gemm(a, va, 64, 2, 2, 1, [seg, sk], 128, 3, D, SRD0, D * 2, S_TOK0, stats=True, colsum=True, sregs=GS, tag="k1kv")
    g.split()
    g.setup()
    stamp(a, 0)
    g.mainloop()
    stamp(a, 1)
    lds = max(lds, g.lds_bytes)
    v_key = q_epilogue(g, va)
    v_ak, v_n = va(), va()
    t = g.tmp
    k0, k1 = g.acc[0][5], g.acc[0][6]
    a(f"v_cmp_eq_u32 vcc, 0, v{g.v_g}")
    a(f"v_lshrrev_b32 v{t[0]}, 5, v{v_key}")
    a(f"v_mul_u32_u24 v{t[0]}, 2560, v{t[0]}")
    a(f"v_and_b32 v{t[1]}, 31, v{v_key}")
    a(f"s_cmp_lg_u32 s{S_J}, 0")
    a("s_cbranch_scc1 k1_v")
    a(f"v_lshl_add_u32 v{v_ak}, v{t[1]}, 4, v{t[0]}")
    a(f"v_lshrrev_b32 v{t[2]}, 1, v{g.v_g}")
    a(f"v_lshl_add_u32 v{v_ak}, v{t[2]}, 9, v{v_ak}")
    a(f"v_and_b32 v{t[2]}, 1, v{g.v_g}")
    a(f"v_lshl_add_u32 v{v_ak}, v{t[2]}, 3, v{v_ak}")
    a(f"buffer_store_dwordx2 {vr(k0,2)}, v{v_ak}, {sr(SRD4,4)}, 0 offen")
    a(f"v_lshl_add_u32 v{v_key}, v{t[1]}, 3, v{t[0]}")
    a(f"v_cndmask_b32 v{k1}, 0, v{k1}, vcc")
    a(f"v_cndmask_b32 v{k1+1}, 0, v{k1+1}, vcc")
    a("s_and_saveexec_b64 s[74:75], vcc")
    a(f"buffer_store_dwordx2 {vr(k1,2)}, v{v_key}, {sr(SRD4,4)}, 0 offen offset:1024")
    a("s_mov_b64 exec, -1")
    a(f"v_mov_b32 v{v_n}, 0")
    for c in (k0, k0 + 1, k1, k1 + 1):
        a(f"v_lshlrev_b32 v{t[0]}, 16, v{c}")
        a(f"v_and_b32 v{t[1]}, 0xffff0000, v{c}")
        a(f"v_fma_f32 v{v_n}, v{t[0]}, v{t[0]}, v{v_n}")
        a(f"v_fma_f32 v{v_n}, v{t[1]}, v{t[1]}, v{v_n}")
    swap_add(a, v_n, t[0], 32)
    swap_add(a, v_n, t[0], 16)
    dpp_rowmax(a, v_n)
    a(f"s_lshl_b32 s{S_T0}, s{S_XB}, 2")
    a(f"s_add_u32 s{S_T0}, s{S_T0}, s{S_WAVE}")
    a(f"s_lshl_b32 s{S_T0}, s{S_T0}, 2")
    a(f"v_mov_b32 v{t[0]}, 0")
    a("s_mov_b64 exec, 0x8000")
    a(f"buffer_store_dword v{v_n}, v{t[0]}, {sr(SRD5,4)}, s{S_T0} offen")
    stamp_end(a, 2)
    a("s_endpgm")
    a.label("k1_v")
    a(f"v_bfe_u32 v{t[2]}, v{t[1]}, 4, 1")
    a(f"v_mad_u32_u24 v{v_ak}, v{t[2]}, 640, v{t[0]}" if False else f"v_mul_u32_u24 v{t[2]}, 640, v{t[2]}")
    a(f"v_add_u32 v{v_ak}, v{t[2]}, v{t[0]}")
    a(f"v_bfe_u32 v{t[2]}, v{t[1]}, 2, 1")
    a(f"v_mul_u32_u24 v{t[2]}, 320, v{t[2]}")
    a(f"v_add_u32 v{v_ak}, v{t[2]}, v{v_ak}")
    a(f"v_bfe_u32 v{t[2]}, v{t[1]}, 3, 1")
    a(f"v_lshl_add_u32 v{v_ak}, v{t[2]}, 3, v{v_ak}")
    a(f"v_and_b32 v{t[2]}, 3, v{t[1]}")
    a(f"v_lshl_add_u32 v{v_ak}, v{t[2]}, 1, v{v_ak}")
    a(f"v_lshl_add_u32 v{v_ak}, v{g.v_g}, 6, v{v_ak}")
    for fb, c in enumerate((k0, k1)):
        if fb:
            a("s_and_saveexec_b64 s[74:75], vcc")
        for p in range(2):
            o = 1280 + fb * 256 + p * 32
            a(f"buffer_store_short v{c+p}, v{v_ak}, {sr(SRD4,4)}, 0 offen offset:{o}")
            a(f"buffer_store_short_d16_hi v{c+p}, v{v_ak}, {sr(SRD4,4)}, 0 offen offset:{o+16}")
    stamp_end(a, 2)
    a("s_endpgm")
    maxv = max(maxv, va.n)
    g.loader(S_ROT, cont=lambda lva, lt: a("s_branch k1_cs"))

    kernel_end(a, name, maxv)
    return (name, 256, 512, lds)


def gen_k2(a):
    name = "k2_attn_kernel"
    kernel_begin(a, name)
    a("s_cmp_ge_u32 s2, 256")
    a("s_cbranch_scc1 k2_end")
    load_kernargs(a)
    a(f"s_and_b32 s{S_XB}, s2, 7")
    a(f"s_lshr_b32 s{S_J}, s2, 3")
    a(f"s_lshr_b32 s{S_T2}, s{S_J}, 3")
    a(f"s_lshl_b32 s{S_T1}, s{S_XB}, 2")
    a(f"s_add_u32 s{S_T1}, s{S_T1}, s{S_T2}")
    a(f"s_lshl_b32 s{S_TOK0}, s{S_T1}, 6")
    a(f"s_and_b32 s{S_T0}, s{S_J}, 7")
    a(f"s_mul_i32 s{S_COL}, s{S_T0}, 160")
    va = VAlloc(1)
    t = [va() for _ in range(6)]
    v_kn = va(2, 2)
    v_l16, v_lane, v_n, v_h, v_qa, v_oa = [va() for _ in range(6)]
    v_cur = [va() for _ in range(3)]
    v_nxt = [va() for _ in range(3)]
    Q = [va(8, 4) for _ in range(2)]
    Sb = [[va(16, 4) for _ in range(2)] for _ in range(2)]
    P = [va(8, 4) for _ in range(2)]
    O = [va(16, 4) for _ in range(2)]
    KF = [va(8, 4) for _ in range(2)]
    VF = [va(8, 4) for _ in range(2)]
    v_m = [va(), va()]
    v_ob = va()
    v_cst = va()
    S_STEP, S_CNT, S_GOFF, S_HEAD = 76, 77, 78, 79
    S_VM, S_KM = 4, 6
    TB = 2560
    a(f"v_lshrrev_b32 v{t[0]}, 6, v0")
    a(f"v_and_b32 v{v_lane}, 63, v0")
    a(f"v_readfirstlane_b32 s{S_WAVE}, v{t[0]}")
    a(f"v_lshlrev_b32 v{v_l16}, 4, v{v_lane}")
    a(f"v_and_b32 v{v_n}, 31, v0")
    a(f"v_bfe_u32 v{v_h}, v0, 5, 1")
    a("s_waitcnt lgkmcnt(0)")
    a(f"s_cmp_ge_u32 s{S_WAVE}, 4")
    a("s_cbranch_scc1 k2_helper")
    make_srd(a, SRD0, P_WS, WS_Q, S * D * 2)
    make_srd(a, SRD3, P_WS, WS_KN, 512)
    make_srd(a, SRD4, P_WS, WS_O, S * D * 2)
    a(f"s_mul_i32 s{S_HEAD}, s{S_WAVE}, 40")
    a(f"s_add_u32 s{S_HEAD}, s{S_HEAD}, s{S_COL}")
    a(f"v_add_u32 v{t[1]}, s{S_TOK0}, v{v_n}")
    a(f"v_mul_u32_u24 v{t[1]}, {D*2}, v{t[1]}")
    a(f"v_add_u32 v{v_ob}, s{S_HEAD}, v{t[1]}")
    a(f"v_lshl_add_u32 v{v_qa}, v{v_h}, 4, v{v_ob}")
    a(f"v_lshl_add_u32 v{t[2]}, v{v_h}, 3, s{S_HEAD}")
    a(f"v_lshrrev_b32 v{t[3]}, 4, v{t[2]}")
    a(f"v_and_b32 v{t[2]}, 8, v{t[2]}")
    a(f"v_lshl_add_u32 v{t[2]}, v{t[3]}, 8, v{t[2]}")
    a(f"v_and_b32 v{t[3]}, 15, v{v_n}")
    a(f"v_lshl_add_u32 v{t[2]}, v{t[3]}, 4, v{t[2]}")
    a(f"v_and_b32 v{t[3]}, 16, v{v_n}")
    a(f"v_add_u32 v{t[3]}, s{S_TOK0}, v{t[3]}")
    a(f"v_mul_u32_u24 v{t[3]}, {D*2}, v{t[3]}")
    a(f"v_add_u32 v{v_oa}, v{t[2]}, v{t[3]}")
    a(f"v_lshlrev_b32 v{t[1]}, 3, v{v_lane}")
    a(f"buffer_load_dwordx2 {vr(v_kn,2)}, v{t[1]}, {sr(SRD3,4)}, 0 offen")
    for b in range(2):
        a(f"s_mov_b32 s{S_KW}, {b * 32 * D * 2}")
        a(f"buffer_load_dwordx2 {vr(Q[b],2)}, v{v_qa}, {sr(SRD0,4)}, s{S_KW} offen")
        a(f"buffer_load_dwordx2 {vr(Q[b]+2,2)}, v{v_qa}, {sr(SRD0,4)}, s{S_KW} offen offset:8")
        a(f"buffer_load_dwordx2 {vr(Q[b]+4,2)}, v{v_ob}, {sr(SRD0,4)}, s{S_KW} offen offset:32")
    stamp(a, 0)
    for b in range(2):
        for i in range(16):
            a(f"v_mov_b32 v{O[b]+i}, 0")
        for i in range(8):
            a(f"v_mov_b32 v{VF[b]+i}, 0x3f803f80")
        a(f"v_mov_b32 v{KF[b]+6}, 0x3f80")
        a(f"v_mov_b32 v{KF[b]+7}, 0")
        a(f"v_mov_b32 v{Q[b]+7}, 0")
    for i in range(8):
        a(f"v_mov_b32 v{P[1]+i}, 0")
    for i in range(12, 16):
        a(f"v_mov_b32 v{Sb[1][1]+i}, 0")
    a(f"s_mov_b32 s{S_VM}, 0x000fffff")
    a(f"s_mov_b32 s{S_VM+1}, 0x000fffff")
    a(f"v_mov_b32 v{v_cur[0]}, v{v_l16}")
    a(f"v_lshl_add_u32 v{v_cur[1]}, v{v_n}, 3, 0" if False else f"v_lshlrev_b32 v{v_cur[1]}, 3, v{v_n}")
    a(f"v_add_u32 v{v_cur[1]}, 1024, v{v_cur[1]}")
    a(f"v_mul_u32_u24 v{t[0]}, 320, v{v_h}")
    a(f"v_lshl_add_u32 v{v_cur[2]}, v{v_n}, 4, v{t[0]}")
    a(f"v_add_u32 v{v_cur[2]}, 1280, v{v_cur[2]}")
    for i in range(3):
        a(f"v_add_u32 v{v_nxt[i]}, {8*TB}, v{v_cur[i]}")
    a(f"v_cmp_eq_u32 vcc, 0, v{v_h}")
    a("s_waitcnt vmcnt(6)")
    a(f"v_max_f32 v{v_kn}, v{v_kn}, v{v_kn+1}")
    dpp_rowmax(a, v_kn)
    a("s_nop 1")
    a(f"v_max_f32_dpp v{v_kn}, v{v_kn}, v{v_kn} row_bcast:15 row_mask:0xa bank_mask:0xf")
    a("s_nop 1")
    a(f"v_max_f32_dpp v{v_kn}, v{v_kn}, v{v_kn} row_bcast:31 row_mask:0xc bank_mask:0xf")
    a("s_nop 1")
    a(f"v_readlane_b32 s{S_KM}, v{v_kn}, 63")
    a("s_waitcnt vmcnt(0)")
    stamp(a, 1)
    for b in range(2):
        a(f"v_cndmask_b32 v{Q[b]+4}, 0, v{Q[b]+4}, vcc")
        a(f"v_cndmask_b32 v{Q[b]+5}, 0, v{Q[b]+5}, vcc")
    for i in range(6):
        for b in range(2):
            a(f"v_dot2_f32_bf16 v{t[2+b]}, v{Q[b]+i}, v{Q[b]+i}, " + ("0" if i == 0 else f"v{t[2+b]}"))
    a("s_nop 2")
    for b in range(2):
        a(f"v_mov_b32 v{t[b]}, v{t[2+b]}")
    a("s_nop 1")
    for b in range(2):
        a(f"v_permlane32_swap_b32 v{t[b]}, v{t[2+b]}")
    a("s_nop 1")
    for b in range(2):
        a(f"v_add_f32 v{t[b]}, v{t[b]}, v{t[2+b]}")
    for b in range(2):
        a(f"v_mul_f32 v{t[b]}, s{S_KM}, v{t[b]}")
    for b in range(2):
        a(f"v_sqrt_f32 v{t[b]}, v{t[b]}")
    a("s_nop 0")
    for b in range(2):
        a(f"v_cvt_pk_bf16_f32 v{t[b]}, -v{t[b]}, 0")
    for b in range(2):
        a(f"v_cndmask_b32 v{Q[b]+6}, 0, v{t[b]}, vcc")
    a("s_barrier")

    def kread(dst, regs, tile):
        return [f"ds_read_b128 {vr(dst,4)}, v{regs[0]} offset:{tile*TB}",
                f"ds_read_b64 {vr(dst+4,2)}, v{regs[1]} offset:{tile*TB}"]

    def vread(dst, regs, tile):
        return [f"s_mov_b64 exec, {sr(S_VM,2)}",
                f"ds_read_b128 {vr(dst,4)}, v{regs[2]} offset:{tile*TB}",
                f"ds_read_b128 {vr(dst+4,4)}, v{regs[2]} offset:{tile*TB+640}",
                "s_mov_b64 exec, -1"]

    for l in kread(KF[0], v_cur, 0) + kread(KF[1], v_cur, 1) + vread(VF[0], v_cur, 0):
        a(l)
    a("s_waitcnt lgkmcnt(0)")

    def qk(b, par, s, kf):
        d = vr(Sb[b][par], 16)
        c = "0" if s == 0 else d
        return f"v_mfma_f32_32x32x16_bf16 {d}, {vr(kf+4*s,4)}, {vr(Q[b]+4*s,4)}, {c}"

    def pv(b, s, vf):
        d = vr(O[b], 16)
        return f"v_mfma_f32_32x32x16_bf16 {d}, {vr(vf+4*s,4)}, {vr(P[b]+4*s,4)}, {d}"

    for b in range(2):
        a(qk(b, 0, 0, KF[0]))
        a(qk(b, 0, 1, KF[0]))
    a("s_nop 7")
    a("s_nop 7")
    a(f"s_mov_b32 s{S_CNT}, 8")
    stamp(a, 2)
    a.label("k2_loop")

    def exps(b, par, i0):
        return [f"v_exp_f32 v{Sb[b][par]+i}, v{Sb[b][par]+i}" for i in range(i0, i0 + 4)]

    def cvts(b, par, i0):
        return [f"v_cvt_pk_bf16_f32 v{P[b]+(i0+i)//2}, v{Sb[b][par]+i0+i}, v{Sb[b][par]+i0+i+1}" for i in (0, 2)]

    for ph in range(8):
        p = ph & 1
        q = p ^ 1
        kt, vt = ph + 2, ph + 1
        kr = kread(KF[p], v_cur if kt < 8 else v_nxt, kt % 8)
        vrd = vread(VF[q], v_cur if vt < 8 else v_nxt, vt % 8)
        M = [qk(0, q, 0, KF[q]), pv(1, 1, VF[q]), qk(0, q, 1, KF[q]), pv(0, 0, VF[p]),
             qk(1, q, 0, KF[q]), pv(0, 1, VF[p]), qk(1, q, 1, KF[q]), pv(1, 0, VF[p])]
        V = [cvts(1, q, 12) + exps(0, p, 0),
             exps(0, p, 4),
             cvts(0, p, 0) + cvts(0, p, 4) + exps(0, p, 8),
             cvts(0, p, 8) + exps(0, p, 12),
             cvts(0, p, 12) + exps(1, p, 0),
             exps(1, p, 4),
             cvts(1, p, 0) + cvts(1, p, 4) + exps(1, p, 8),
             cvts(1, p, 8) + exps(1, p, 12)]
        extra = [[] for _ in range(8)]
        if ph == 2:
            a(f"s_cmp_lg_u32 s{S_CNT}, 8")
            a("s_cbranch_scc1 k2_nb1")
            a("s_barrier")
            a.label("k2_nb1")
        a("s_waitcnt lgkmcnt(0)")
        extra[0] += kr
        extra[2] += vrd
        for i in range(8):
            a(M[i])
            for l in extra[i]:
                a(l)
            for l in V[i]:
                a(l)
    if INSTR:
        a("s_memtime s[98:99]")
        a("s_waitcnt lgkmcnt(0)")
        a("s_sub_u32 s98, s98, s80")
        a(f"s_mov_b32 m0, s{S_CNT}")
        a("s_nop 0")
        a(f"v_writelane_b32 v{v_cst}, s98, m0")
    a(f"s_cmp_eq_u32 s{S_CNT}, 2")
    a(f"s_cselect_b32 s{S_STEP}, 0, {8*TB}")
    for i in range(3):
        a(f"v_mov_b32 v{v_cur[i]}, v{v_nxt[i]}")
        a(f"v_add_u32 v{v_nxt[i]}, s{S_STEP}, v{v_nxt[i]}")
    a(f"s_bitcmp0_b32 0x140, s{S_CNT}")
    a("s_cbranch_scc1 k2_nb")
    a("s_barrier")
    a.label("k2_nb")
    a(f"s_sub_u32 s{S_CNT}, s{S_CNT}, 1")
    a(f"s_cmp_lg_u32 s{S_CNT}, 0")
    a("s_cbranch_scc1 k2_loop")
    for l in cvts(1, 1, 12):
        a(l)
    a("s_nop 1")
    a(pv(1, 1, VF[1]))
    a("s_waitcnt vmcnt(0) lgkmcnt(0)")
    a("s_nop 7")
    a("s_nop 7")
    stamp(a, 3)
    a(f"v_mov_b32 v{t[0]}, {f32(2.0**-40)}")
    a(f"v_cmp_nge_f32 s[74:75], v{O[0]+12}, v{t[0]}")
    a(f"v_cmp_nge_f32 vcc, v{O[1]+12}, v{t[0]}")
    a("s_nop 3")
    a("s_or_b64 vcc, vcc, s[74:75]")
    a("s_cbranch_vccnz k2_slow")
    a.label("k2_epi")
    for b in range(2):
        a(f"v_rcp_f32 v{t[0]}, v{O[b]+12}")
        a("s_nop 0")
        for i in range(12):
            a(f"v_mul_f32 v{O[b]+i}, v{O[b]+i}, v{t[0]}")
        for i in range(6):
            a(f"v_cvt_pk_bf16_f32 v{O[b]+i}, v{O[b]+2*i}, v{O[b]+2*i+1}")
        a(f"s_mov_b32 s{S_KW}, {b*32*D*2}")
        a(f"buffer_store_dwordx2 {vr(O[b],2)}, v{v_oa}, {sr(SRD4,4)}, s{S_KW} offen")
        a(f"buffer_store_dwordx2 {vr(O[b]+2,2)}, v{v_oa}, {sr(SRD4,4)}, s{S_KW} offen offset:256")
    a(f"v_cmp_eq_u32 vcc, 0, v{v_h}")
    a("s_nop 3")
    a("s_and_saveexec_b64 s[74:75], vcc")
    for b in range(2):
        a(f"s_mov_b32 s{S_KW}, {b*32*D*2}")
        a(f"buffer_store_dwordx2 {vr(O[b]+4,2)}, v{v_oa}, {sr(SRD4,4)}, s{S_KW} offen offset:512")
    if INSTR:
        lab = a.newlabel("hs")
        a("s_mov_b64 exec, -1")
        a(f"s_cmp_lg_u32 s2, {INSTR_WG}")
        a(f"s_cbranch_scc1 {lab}")
        a(f"s_cmp_lg_u32 s{S_WAVE}, 0")
        a(f"s_cbranch_scc1 {lab}")
        make_srd(a, 92, P_DBG, 0, 256)
        a(f"v_lshlrev_b32 v{t[0]}, 2, v{v_lane}")
        a(f"buffer_store_dword v{v_cst}, v{t[0]}, s[92:95], 0 offen offset:192")
        a.label(lab)
    stamp_end(a, 4)
    a.label("k2_end")
    a("s_endpgm")

    def rewind():
        for i in range(3):
            a(f"v_subrev_u32 v{v_nxt[i]}, {56*TB}, v{v_cur[i]}")
        a(f"s_mov_b32 s{S_GOFF}, 0")

    def advance(lab):
        for i in range(3):
            a(f"v_add_u32 v{v_nxt[i]}, {TB}, v{v_nxt[i]}")
        a(f"s_add_u32 s{S_GOFF}, s{S_GOFF}, 1")
        a(f"s_cmp_lt_u32 s{S_GOFF}, 64")
        a(f"s_cbranch_scc1 {lab}")

    a.label("k2_slow")
    for b in range(2):
        a(f"v_mov_b32 v{Q[b]+6}, 0")
        a(f"v_mov_b32 v{v_m[b]}, 0xff800000")
    rewind()
    a.label("k2_slow1")
    for l in kread(KF[0], v_nxt, 0):
        a(l)
    a("s_waitcnt lgkmcnt(0)")
    for b in range(2):
        a(qk(b, 0, 0, KF[0]))
        a(qk(b, 0, 1, KF[0]))
    a("s_nop 7")
    a("s_nop 7")
    for b in range(2):
        for i in range(0, 16, 2):
            a(f"v_max3_f32 v{v_m[b]}, v{Sb[b][0]+i}, v{Sb[b][0]+i+1}, v{v_m[b]}")
    advance("k2_slow1")
    a(f"v_cmp_eq_u32 vcc, 0, v{v_h}")
    for b in range(2):
        xlane_add(a, v_m[b], v_lane, t[0], t[1], (32,), op="v_max_f32")
        a(f"v_cvt_pk_bf16_f32 v{t[2]}, -v{v_m[b]}, 0")
        a(f"v_cndmask_b32 v{Q[b]+6}, 0, v{t[2]}, vcc")
        for i in range(16):
            a(f"v_mov_b32 v{O[b]+i}, 0")
    rewind()
    a.label("k2_slow2")
    for l in kread(KF[0], v_nxt, 0) + vread(VF[0], v_nxt, 0):
        a(l)
    a("s_waitcnt lgkmcnt(0)")
    for b in range(2):
        a(qk(b, 0, 0, KF[0]))
        a(qk(b, 0, 1, KF[0]))
    a("s_nop 7")
    a("s_nop 7")
    for b in range(2):
        for i0 in range(0, 16, 4):
            for l in exps(b, 0, i0):
                a(l)
        a("s_nop 0")
        for i0 in range(0, 16, 4):
            for l in cvts(b, 0, i0):
                a(l)
    a("s_nop 1")
    for b in range(2):
        a(pv(b, 0, VF[0]))
        a(pv(b, 1, VF[0]))
    a("s_nop 7")
    a("s_nop 7")
    advance("k2_slow2")
    a("s_branch k2_epi")

    a.label("k2_helper")
    hva = VAlloc(v_h + 1)
    lt = t
    v_l = v_lane
    S_U, S_SRC, S_DST, S_RW = S_T0, S_T1, S_KW, S_ROT
    make_srd(a, SRD1, P_WS, WS_KV, KV_SZ)
    a(f"s_and_b32 s{S_WOFF}, s{S_WAVE}, 3")
    a(f"s_lshl_b32 s{S_RW}, s2, 2")
    a(f"s_add_u32 s{S_RW}, s{S_RW}, s{S_WOFF}")
    a(f"s_lshl_b32 s{S_T2}, s{S_J}, 2")
    a(f"s_add_u32 s{S_J}, s{S_T2}, s{S_WOFF}")
    a(f"s_lshl_b32 s{S_KX}, s{S_WOFF}, 10")
    def dma(n):
        for i in range(n):
            a(f"s_mov_b32 m0, s{S_KX}")
            a("s_nop 0")
            a(f"buffer_load_dwordx4 v{v_l16}, {sr(SRD1,4)}, s{S_KX} offen lds")
            a(f"s_add_u32 s{S_KX}, s{S_KX}, 4096")
    dma(10)
    make_srd(a, SRD3, P_WS, WS_IMG, IMG_SZ)
    a(f"s_mov_b32 s{SRD0+3}, 0x00020000")
    a("s_waitcnt vmcnt(7)")
    a("s_barrier")
    a("s_waitcnt vmcnt(3)")
    a("s_barrier")
    dma(14)
    a("s_waitcnt vmcnt(4)")
    a("s_barrier")
    dma(16)
    pa = [hva() for _ in range(5)]
    pb = [hva() for _ in range(3)]
    v_rb, dummy = hva(), hva()

    def touch():
        a(f"v_lshlrev_b32 v{v_rb}, 7, v{v_l}")
        for c in range(3):
            if c == 0:
                a(f"s_mul_i32 s{S_T1}, s{S_J}, {50*128}")
            else:
                a(f"s_mul_i32 s{S_T1}, s{S_J}, {120*128}")
                a(f"s_and_b32 s{S_T0}, s{S_XB}, 1")
                a(f"s_mul_i32 s{S_T0}, s{S_T0}, {1966080}")
                a(f"s_add_u32 s{S_T1}, s{S_T1}, s{S_T0}")
                a(f"s_add_u32 s{S_T1}, s{S_T1}, {IMG_GU + (c-1)*56*128}")
            a(f"buffer_load_dword v{dummy}, v{v_rb}, {sr(SRD3,4)}, s{S_T1} offen")
            if c < 2:
                a(f"s_sleep {TSLEEP2}")

    def gather(regs, cprw, magic, stride):
        for i, r in enumerate(regs):
            a(f"v_add_u32 v{lt[0]}, {i*64}, v{v_l}")
            a(f"v_mul_u32_u24 v{lt[1]}, {magic}, v{lt[0]}")
            a(f"v_lshrrev_b32 v{lt[1]}, 19, v{lt[1]}")
            a(f"v_mul_u32_u24 v{lt[2]}, {cprw}, v{lt[1]}")
            a(f"v_sub_u32 v{lt[2]}, v{lt[0]}, v{lt[2]}")
            a(f"v_and_b32 v{lt[3]}, 0xfffffff3, v{lt[1]}")
            a(f"v_bfe_u32 v{lt[4]}, v{lt[1]}, 2, 1")
            if cprw == 12:
                a(f"v_lshlrev_b32 v{lt[5]}, 1, v{lt[4]}")
                a(f"v_xor_b32 v{lt[2]}, v{lt[2]}, v{lt[5]}")
            a(f"v_lshl_or_b32 v{lt[3]}, v{lt[4]}, 3, v{lt[3]}")
            a(f"v_bfe_u32 v{lt[4]}, v{lt[1]}, 3, 1")
            a(f"v_lshl_or_b32 v{lt[3]}, v{lt[4]}, 2, v{lt[3]}")
            a(f"v_mul_u32_u24 v{lt[3]}, {stride}, v{lt[3]}")
            a(f"v_lshl_add_u32 v{r}, v{lt[2]}, 4, v{lt[3]}")

    bufB = [hva(12, 4) for _ in range(2)]
    bufA = hva(20, 4)

    def loadsB(buf):
        a(f"s_mul_i32 s{S_SRC}, s{S_U}, 52429")
        a(f"s_lshr_b32 s{S_SRC}, s{S_SRC}, 22")
        a(f"s_mul_i32 s{S_DST}, s{S_SRC}, 80")
        a(f"s_sub_u32 s{S_T2}, s{S_U}, s{S_DST}")
        a(f"s_mul_i32 s{S_SRC}, s{S_SRC}, 192")
        a(f"s_lshr_b32 s{S_DST}, s{S_T2}, 3")
        a(f"s_lshl_b32 s{S_DST}, s{S_DST}, 2")
        a(f"s_and_b32 s{S_KX}, s{S_T2}, 3")
        a(f"s_add_u32 s{S_DST}, s{S_DST}, s{S_KX}")
        a(f"s_mul_i32 s{S_DST}, s{S_DST}, {16*F*2}")
        a(f"s_add_u32 s{S_SRC}, s{S_SRC}, s{S_DST}")
        a(f"s_bitcmp1_b32 s{S_T2}, 2")
        a(f"s_cselect_b32 s{SRD0}, s{P_WU}, s{P_WG}")
        a(f"s_cselect_b32 s{SRD0+1}, s{P_WU+1}, s{P_WG+1}")
        a(f"s_mov_b32 s{SRD0+2}, {F*D*2}")
        for i in range(3):
            a(f"buffer_load_dwordx4 {vr(buf+4*i,4)}, v{pb[i]}, {sr(SRD0,4)}, s{S_SRC} offen")

    def storesB(buf):
        a(f"s_mul_i32 s{S_DST}, s{S_U}, 3072")
        a(f"s_add_u32 s{S_DST}, s{S_DST}, {IMG_GU}")
        for i in range(3):
            a(f"buffer_store_dwordx4 {vr(buf+4*i,4)}, v{v_l16}, {sr(SRD3,4)}, s{S_DST} offen offset:{i*1024} {IMGPOL}")

    if TEARLY:
        touch()
    gather(pb, 12, 43691, F * 2)
    gather(pa, 10, 52429, D * 2)
    a("s_waitcnt vmcnt(0)")
    a(f"s_mov_b32 s{S_U}, s{S_RW}")
    loadsB(bufB[0])
    a(f"s_cmp_lt_u32 s{S_RW}, 544")
    a("s_cbranch_scc1 k2_rpa")
    a(f"s_add_u32 s{S_U}, s{S_RW}, {1024 - 544}")
    a(f"s_cmp_ge_u32 s{S_U}, 1280")
    a("s_cbranch_scc0 k2_rpb")
    a("s_barrier")
    a("s_branch k2_rpe")
    a.label("k2_rpb")
    loadsB(bufB[1])
    a("s_barrier")
    a("s_waitcnt vmcnt(0)")
    storesB(bufB[1])
    a("s_branch k2_rpe")
    a.label("k2_rpa")
    l1, l2 = a.newlabel("ra"), a.newlabel("ra")
    a(f"s_cmp_ge_u32 s{S_RW}, 160")
    a(f"s_cbranch_scc1 {l1}")
    a(f"s_mul_i32 s{S_SRC}, s{S_RW}, 3277")
    a(f"s_lshr_b32 s{S_SRC}, s{S_SRC}, 16")
    a(f"s_mul_i32 s{S_DST}, s{S_SRC}, 20")
    a(f"s_sub_u32 s{S_DST}, s{S_RW}, s{S_DST}")
    a(f"s_mov_b32 s{SRD0}, s{P_WO}")
    a(f"s_mov_b32 s{SRD0+1}, s{P_WO+1}")
    a(f"s_mov_b32 s{SRD0+2}, {D*D*2}")
    a(f"s_branch {l2}")
    a.label(l1)
    a(f"s_sub_u32 s{S_U}, s{S_RW}, 160")
    a(f"s_mul_i32 s{S_SRC}, s{S_U}, 1366")
    a(f"s_lshr_b32 s{S_SRC}, s{S_SRC}, 16")
    a(f"s_mul_i32 s{S_DST}, s{S_SRC}, 48")
    a(f"s_sub_u32 s{S_DST}, s{S_U}, s{S_DST}")
    a(f"s_mov_b32 s{SRD0}, s{P_WD}")
    a(f"s_mov_b32 s{SRD0+1}, s{P_WD+1}")
    a(f"s_mov_b32 s{SRD0+2}, {F*D*2}")
    a.label(l2)
    a(f"s_mul_i32 s{S_SRC}, s{S_SRC}, 160")
    a(f"s_mul_i32 s{S_DST}, s{S_DST}, {32*D*2}")
    a(f"s_add_u32 s{S_SRC}, s{S_SRC}, s{S_DST}")
    for i in range(5):
        a(f"buffer_load_dwordx4 {vr(bufA+4*i,4)}, v{pa[i]}, {sr(SRD0,4)}, s{S_SRC} offen")
    a(f"s_mul_i32 s{S_DST}, s{S_RW}, 5120")
    a("s_barrier")
    a("s_waitcnt vmcnt(0)")
    for i in range(5):
        if i == 4:
            a(f"s_add_u32 s{S_DST}, s{S_DST}, 4096")
        a(f"buffer_store_dwordx4 {vr(bufA+4*i,4)}, v{v_l16}, {sr(SRD3,4)}, s{S_DST} offen offset:{(i%4)*1024} {IMGPOL}")
    a.label("k2_rpe")
    a("s_waitcnt vmcnt(0)")
    a(f"s_mov_b32 s{S_U}, s{S_RW}")
    storesB(bufB[0])
    if INSTR:
        a("s_waitcnt vmcnt(0)")
        a("s_memrealtime s[100:101]")
        a("s_waitcnt lgkmcnt(0)")
        lab = a.newlabel("hw")
        a(f"s_cmp_lg_u32 s{S_WAVE}, 4")
        a(f"s_cbranch_scc1 {lab}")
        make_srd(a, 40, P_WS, WS_TL + 4096 + 2048, 2048)
        a("v_mov_b32 v2, s82")
        a("v_mov_b32 v3, s100")
        a("s_lshl_b32 s98, s2, 3")
        a("v_mov_b32 v1, s98")
        a("buffer_store_dwordx2 v[2:3], v1, s[40:43], 0 offen")
        a.label(lab)
    for n in TSLEEP:
        a(f"s_sleep {n}")
    if not TEARLY:
        touch()
    a("s_endpgm")

    kernel_end(a, name, max(va.n, hva.n))
    return (name, 256, 512, KV_SZ)

TSLEEP = [int(x) for x in os.environ.get("TSLEEP", "127").split(",") if x]
TSLEEP2 = int(os.environ.get("TSLEEP2", "16"))
TEARLY = bool(os.environ.get("TEARLY"))


SRDC = 8
XCH = 136 * 1024
TAB = 156 * 1024
HPOL = os.environ.get("HPOL", "sc1")


def map_proj(a, which):
    a(f"s_and_b32 s{S_T1}, s2, 7")
    a(f"s_lshr_b32 s{S_T0}, s2, 3")
    a(f"s_mov_b32 s{S_J}, s{S_T0}")
    a(f"s_mov_b32 s{S_XB}, s{S_T1}")
    if which == 3:
        a(f"s_mul_i32 s{S_ROT}, s{S_T0}, 52")
        a(f"s_lshr_b32 s{S_ROT}, s{S_ROT}, 8")
        a(f"s_mul_i32 s{S_ROT}, s{S_ROT}, 5")
        a(f"s_sub_u32 s{S_ROT}, s{S_T0}, s{S_ROT}")
        a(f"s_lshr_b32 s{S_T2}, s{S_T0}, 3")
        a(f"s_lshl_b32 s{S_T1}, s{S_T1}, 2")
        a(f"s_add_u32 s{S_T1}, s{S_T1}, s{S_T2}")
        a(f"s_lshl_b32 s{S_TOK0}, s{S_T1}, 6")
        a(f"s_and_b32 s{S_T0}, s{S_T0}, 7")
    else:
        a(f"s_and_b32 s{S_ROT}, s{S_T1}, 1")
        a(f"s_mul_i32 s{S_ROT}, s{S_ROT}, 6")
        a(f"s_and_b32 s{S_T2}, s{S_T0}, 1")
        a(f"s_add_u32 s{S_ROT}, s{S_ROT}, s{S_T2}")
        a(f"s_lshr_b32 s{S_T2}, s{S_T1}, 1")
        a(f"s_lshl_b32 s{S_T2}, s{S_T2}, 3")
        a(f"s_and_b32 s{S_TOK0}, s{S_T0}, 7")
        a(f"s_add_u32 s{S_TOK0}, s{S_TOK0}, s{S_T2}")
        a(f"s_lshl_b32 s{S_TOK0}, s{S_TOK0}, 6")
        a(f"s_and_b32 s{S_T1}, s{S_T1}, 1")
        a(f"s_lshl_b32 s{S_T1}, s{S_T1}, 2")
        a(f"s_lshr_b32 s{S_T0}, s{S_T0}, 3")
        a(f"s_add_u32 s{S_T0}, s{S_T0}, s{S_T1}")
    a(f"s_mul_i32 s{S_COL}, s{S_T0}, 160")


def srd_proj(a, which):
    if which == 3:
        make_srd(a, SRD0, P_WS, WS_O, S * D * 2)
        make_srd(a, SRD1, P_WS, WS_IMG, IMG_SZ)
        a(f"s_mul_i32 s{S_IMG}, s{S_T0}, {5*20480}")
        make_srd(a, SRD2, P_WS, WS_H, S * D * 2)
        make_srd(a, SRD3, P_X, 0, S * D * 2)
        make_srd(a, SRD4, P_WS, WS_ST, S * 64)
    else:
        make_srd(a, SRD0, P_WS, WS_ACT, S * F * 2)
        make_srd(a, SRD1, P_WS, WS_IMG, IMG_SZ)
        a(f"s_mul_i32 s{S_IMG}, s{S_T0}, {12*20480}")
        make_srd(a, SRD2, P_OUT, 0, S * D * 2)
        make_srd(a, SRD3, P_WS, WS_H, S * D * 2)


def map_k4(a):
    a(f"s_and_b32 s{S_XB}, s2, 7")
    a(f"s_lshr_b32 s{S_J}, s2, 3")
    a(f"s_mul_i32 s{S_ROT}, s{S_J}, 26")
    a(f"s_lshr_b32 s{S_ROT}, s{S_ROT}, 8")
    a(f"s_mul_i32 s{S_ROT}, s{S_ROT}, 10")
    a(f"s_sub_u32 s{S_ROT}, s{S_J}, s{S_ROT}")
    a(f"s_lshr_b32 s{S_T2}, s{S_XB}, 1")
    a(f"s_lshl_b32 s{S_T2}, s{S_T2}, 2")
    a(f"s_and_b32 s{S_TOK0}, s{S_J}, 3")
    a(f"s_add_u32 s{S_TOK0}, s{S_TOK0}, s{S_T2}")
    a(f"s_lshl_b32 s{S_TOK0}, s{S_TOK0}, 7")
    a(f"s_lshr_b32 s{S_T2}, s{S_J}, 2")
    a(f"s_and_b32 s{S_T1}, s{S_XB}, 1")
    a(f"s_lshl_b32 s{S_T1}, s{S_T1}, 3")
    a(f"s_add_u32 s{S_T0}, s{S_T2}, s{S_T1}")
    a(f"s_mul_i32 s{S_COL}, s{S_T0}, 192")
    a(f"s_mul_i32 s{S_IMG}, s{S_T0}, {10*24576}")
    make_srd(a, SRD0, P_WS, WS_H, S * D * 2)
    make_srd(a, SRD1, P_WS, WS_IMG, IMG_SZ)
    make_srd(a, SRD3, P_WS, WS_ACT, S * F * 2)


def publish(a, t, ph):
    lab = a.newlabel("pub")
    a("s_mov_b64 exec, 1")
    a(f"v_mov_b32 v{t[0]}, {TAB + 3072 + 4*ph}")
    a(f"v_mov_b32 v{t[1]}, 1")
    a(f"s_lshr_b32 s{S_T1}, s{S_TOK0}, 7")
    a(f"s_lshl_b32 s{S_T1}, s{S_T1}, 8")
    a(f"s_add_u32 s{S_T1}, s{S_T1}, {ph*4096}")
    a("s_waitcnt vmcnt(0)")
    a(f"ds_add_rtn_u32 v{t[2]}, v{t[0]}, v{t[1]}")
    a(f"v_mov_b32 v{t[0]}, 0")
    a("s_waitcnt lgkmcnt(0)")
    a(f"v_readfirstlane_b32 s{S_T2}, v{t[2]}")
    a("s_nop 3")
    a(f"s_cmp_lg_u32 s{S_T2}, 3")
    a(f"s_cbranch_scc1 {lab}")
    a(f"buffer_atomic_add v{t[1]}, v{t[0]}, {sr(SRDC,4)}, s{S_T1} offen sc1")
    a.label(lab)
    a("s_mov_b64 exec, -1")


def await_block(a, t, ph):
    l0, l1 = a.newlabel("aw"), a.newlabel("aw")
    a(f"s_cmp_lg_u32 s{S_WAVE}, 0")
    a(f"s_cbranch_scc1 {l1}")
    a("s_mov_b64 exec, 1")
    a(f"v_mov_b32 v{t[0]}, 0")
    a(f"s_lshr_b32 s{S_T1}, s{S_TOK0}, 7")
    a(f"s_lshl_b32 s{S_T1}, s{S_T1}, 8")
    a(f"s_add_u32 s{S_T1}, s{S_T1}, {ph*4096}")
    a(f"s_mov_b32 s{S_KX}, 0x20000")
    a.label(l0)
    a(f"buffer_load_dword v{t[1]}, v{t[0]}, {sr(SRDC,4)}, s{S_T1} offen sc1")
    a(f"s_sub_u32 s{S_KX}, s{S_KX}, 1")
    a("s_waitcnt vmcnt(0)")
    a(f"v_readfirstlane_b32 s{S_T2}, v{t[1]}")
    a(f"s_cmp_eq_u32 s{S_KX}, 0")
    a(f"s_cselect_b32 s{S_KW}, 16, 0")
    a(f"s_max_u32 s{S_T2}, s{S_T2}, s{S_KW}")
    a(f"s_cmp_lt_u32 s{S_T2}, 16")
    a(f"s_cbranch_scc1 {l0}")
    a("s_mov_b64 exec, -1")
    a.label(l1)
    a("s_barrier")


def proj_gemm(a, va, which):
    seg = Seg(SRD1, D * 2, 80, 'p160', S_COL, img=(S_IMG, 20480, IMG_WO if which == 3 else IMG_WD))
    K = D if which == 3 else F
    return Gemm(a, va, 64, 2, 2, 1, [seg], 128, 4, K, SRD0, K * 2, S_TOK0, sregs=GS, tag=f"k{which}", xcm=True)


def proj_compute(a, va, g, which, sb):
    g.setup()
    t = g.tmp
    v_ad, v_tok, v_a4, v_c8, v_c4 = va(), va(), va(), va(), va()
    res = va(10, 2)
    a(f"v_lshl_add_u32 v{v_tok}, v{g.v_wt}, 1, v{g.v_wo}")
    a(f"v_lshl_add_u32 v{v_tok}, v{v_tok}, 4, v{g.v_i16}")
    a(f"v_add_u32 v{v_tok}, s{S_TOK0}, v{v_tok}")
    a(f"v_mul_u32_u24 v{t[0]}, {D*2}, v{v_tok}")
    a(f"v_add_u32 v{t[0]}, s{S_COL}, v{t[0]}")
    a(f"v_lshl_add_u32 v{v_ad}, v{g.v_g}, 3, v{t[0]}")
    a(f"v_and_b32 v{t[1]}, 1, v{g.v_g}")
    a(f"v_lshl_add_u32 v{v_a4}, v{t[1]}, 5, v{t[0]}")
    a(f"v_lshrrev_b32 v{t[1]}, 1, v{g.v_g}")
    a(f"v_lshl_add_u32 v{v_a4}, v{t[1]}, 4, v{v_a4}")
    a(f"v_and_b32 v{t[0]}, 0xfff0, v{v_tok}")
    a(f"v_mul_u32_u24 v{t[0]}, {D*2}, v{t[0]}")
    a(f"v_lshl_add_u32 v{t[0]}, v{g.v_i16}, 4, v{t[0]}")
    a(f"s_lshl_b32 s{S_T1}, s{S_COL}, 4")
    a(f"v_add_u32 v{t[0]}, s{S_T1}, v{t[0]}")
    a(f"v_lshl_add_u32 v{t[0]}, v{t[1]}, 8, v{t[0]}")
    a(f"v_and_b32 v{t[1]}, 1, v{g.v_g}")
    a(f"v_lshl_add_u32 v{v_c8}, v{t[1]}, 3, v{t[0]}")
    a(f"v_lshl_add_u32 v{v_c4}, v{t[1]}, 9, v{t[0]}")
    if which == 5:
        await_block(a, t, 1)
    for fb in range(5):
        if which == 3:
            a(f"buffer_load_dwordx2 {vr(res+2*fb,2)}, v{v_ad}, {sr(SRD3,4)}, 0 offen offset:{fb*32}")
        else:
            a(f"buffer_load_dwordx2 {vr(res+2*fb,2)}, v{v_c8}, {sr(SRD3,4)}, 0 offen offset:{fb*512} {HPOL}")
    stamp(a, sb)
    g.mainloop()
    stamp(a, sb + 1)
    a("s_nop 7")
    skip = a.newlabel("xs")
    a(f"s_cmp_lt_u32 s{S_WAVE}, 2")
    a(f"s_cbranch_scc1 {skip}")
    for fb in range(5):
        for r in range(4):
            a(f"v_swap_b32 v{g.acc[0][fb]+r}, v{g.acc[1][fb]+r}")
    a.label(skip)
    a(f"v_mul_u32_u24 v{t[0]}, 5120, v{g.v_wave}")
    a(f"v_lshl_add_u32 v{t[0]}, v{g.v_lane}, 4, v{t[0]}")
    a(f"v_add_u32 v{t[0]}, {XCH}, v{t[0]}")
    a(f"v_xor_b32 v{t[1]}, 2, v{g.v_wave}")
    a(f"v_mul_u32_u24 v{t[1]}, 5120, v{t[1]}")
    a(f"v_lshl_add_u32 v{t[1]}, v{g.v_lane}, 4, v{t[1]}")
    a(f"v_add_u32 v{t[1]}, {XCH}, v{t[1]}")
    for fb in range(5):
        a(f"ds_write_b128 v{t[0]}, {vr(g.acc[1][fb],4)} offset:{fb*1024}")
    a("s_waitcnt lgkmcnt(0)")
    a("s_barrier")
    for fb in range(5):
        a(f"ds_read_b128 {vr(g.acc[1][fb],4)}, v{t[1]} offset:{fb*1024}")
    v_s = va(2, 2)
    v_q = v_s + 1
    if which == 3:
        a(f"v_mov_b32 v{v_s}, 0")
        a(f"v_mov_b32 v{v_q}, 0")
    pol = HPOL if which == 3 else ""
    for fb in range(5):
        a(f"s_waitcnt lgkmcnt({4-fb})")
        c, o = g.acc[0][fb], g.acc[1][fb]
        dst = o if fb % 2 == 0 else g.acc[1][fb - 1] + 2
        for p in range(2):
            a(f"v_lshlrev_b32 v{t[0]}, 16, v{res+2*fb+p}")
            a(f"v_and_b32 v{t[1]}, 0xffff0000, v{res+2*fb+p}")
            a(f"v_add_f32 v{c+2*p}, v{c+2*p}, v{o+2*p}")
            a(f"v_add_f32 v{c+2*p+1}, v{c+2*p+1}, v{o+2*p+1}")
            a(f"v_cvt_pk_bf16_f32 v{t[2]}, v{c+2*p}, v{c+2*p+1}")
            a(f"v_lshlrev_b32 v{t[3]}, 16, v{t[2]}")
            a(f"v_and_b32 v{t[2]}, 0xffff0000, v{t[2]}")
            a(f"v_add_f32 v{t[0]}, v{t[0]}, v{t[3]}")
            a(f"v_add_f32 v{t[1]}, v{t[1]}, v{t[2]}")
            a(f"v_cvt_pk_bf16_f32 v{dst+p}, v{t[0]}, v{t[1]}")
            if which == 3:
                a(f"v_lshlrev_b32 v{t[0]}, 16, v{dst+p}")
                a(f"v_and_b32 v{t[1]}, 0xffff0000, v{dst+p}")
                a(f"v_add_f32 v{v_s}, v{v_s}, v{t[0]}")
                a(f"v_fma_f32 v{v_q}, v{t[0]}, v{t[0]}, v{v_q}")
                a(f"v_add_f32 v{v_s}, v{v_s}, v{t[1]}")
                a(f"v_fma_f32 v{v_q}, v{t[1]}, v{t[1]}, v{v_q}")
        if fb % 2 == 1:
            q = g.acc[1][fb - 1]
            a("s_nop 1")
            a(f"v_permlane16_swap_b32 v{q}, v{q+2}")
            a(f"v_permlane16_swap_b32 v{q+1}, v{q+3}")
            if which == 3:
                a(f"buffer_store_dwordx4 {vr(q,4)}, v{v_c4}, {sr(SRD2,4)}, 0 offen offset:{(fb-1)*512} {pol}")
            else:
                a(f"buffer_store_dwordx4 {vr(q,4)}, v{v_a4}, {sr(SRD2,4)}, 0 offen offset:{(fb-1)*32}")
        elif fb == 4:
            if which == 3:
                a(f"buffer_store_dwordx2 {vr(o,2)}, v{v_c8}, {sr(SRD2,4)}, 0 offen offset:{fb*512} {pol}")
            else:
                a(f"buffer_store_dwordx2 {vr(o,2)}, v{v_ad}, {sr(SRD2,4)}, 0 offen offset:{fb*32}")
    if which == 3:
        for w in (32, 16):
            a(f"v_mov_b32 v{t[0]}, v{v_s}")
            a(f"v_mov_b32 v{t[1]}, v{v_q}")
            a("s_nop 1")
            a(f"v_permlane{w}_swap_b32 v{v_s}, v{t[0]}")
            a(f"v_permlane{w}_swap_b32 v{v_q}, v{t[1]}")
            a("s_nop 1")
            a(f"v_add_f32 v{v_s}, v{v_s}, v{t[0]}")
            a(f"v_add_f32 v{v_q}, v{v_q}, v{t[1]}")
        a(f"v_lshlrev_b32 v{t[0]}, 6, v{v_tok}")
        a(f"s_lshl_b32 s{S_T0}, s{S_T0}, 3")
        a("s_mov_b64 exec, 0xffff")
        a(f"buffer_store_dwordx2 {vr(v_s,2)}, v{t[0]}, {sr(SRD4,4)}, s{S_T0} offen {pol}")
        stamp(a, sb + 2)
        publish(a, t, 0)


def k4_gemm(a, va):
    sg = Seg(SRD1, F * 2, 96, 'p192', S_COL, img=(S_IMG, 24576, IMG_GU))
    su = Seg(SRD1, F * 2, 96, 'p192', S_COL, img=(S_IMG, 24576, IMG_GU + 12288))
    return Gemm(a, va, 128, 2, 1, 2, [sg, su], 64, K4_NS, D, SRD0, D * 2, S_TOK0, sregs=GS, tag="k4", xcm=True)


def k4_compute(a, va, g, sb):
    g.setup()
    t = g.tmp
    v_tok, v_a4, v_b4, v_ta, v_tc = va(), va(), va(), va(), va()
    a(f"v_lshl_add_u32 v{v_tok}, v{g.v_wt}, 6, v{g.v_i16}")
    a(f"v_lshlrev_b32 v{v_ta}, 4, v{v_tok}")
    a(f"v_add_u32 v{v_ta}, {TAB}, v{v_ta}")
    a(f"v_add_u32 v{v_tok}, s{S_TOK0}, v{v_tok}")
    a(f"v_mul_u32_u24 v{t[1]}, 48, v{g.v_wo}")
    a(f"v_lshl_add_u32 v{t[2]}, v{g.v_g}, 2, v{t[1]}")
    a(f"v_lshlrev_b32 v{v_tc}, 2, v{t[2]}")
    a(f"v_add_u32 v{v_tc}, {TAB + 2048}, v{v_tc}")
    a(f"v_and_b32 v{t[0]}, 0xfff0, v{v_tok}")
    a(f"v_mul_u32_u24 v{t[0]}, {F*2}, v{t[0]}")
    a(f"v_lshl_add_u32 v{t[0]}, v{g.v_i16}, 4, v{t[0]}")
    a(f"v_lshl_add_u32 v{t[0]}, v{t[1]}, 5, v{t[0]}")
    a(f"s_lshl_b32 s{S_T1}, s{S_COL}, 4")
    a(f"v_add_u32 v{t[0]}, s{S_T1}, v{t[0]}")
    a(f"v_lshrrev_b32 v{t[1]}, 1, v{g.v_g}")
    a(f"v_lshl_add_u32 v{t[0]}, v{t[1]}, 8, v{t[0]}")
    a(f"v_and_b32 v{t[1]}, 1, v{g.v_g}")
    a(f"v_lshl_add_u32 v{v_a4}, v{t[1]}, 9, v{t[0]}")
    a(f"v_mul_u32_u24 v{t[1]}, {16*F*2}, v{t[1]}")
    a(f"v_add_u32 v{v_b4}, v{t[1]}, v{t[0]}")
    await_block(a, t, 0)
    stamp(a, sb)
    g.mainloop()
    stamp(a, sb + 1)
    a("s_barrier")
    st = g.fa[0]
    cs = g.fa[1]
    tmp = g.fb[0]
    for tb in range(4):
        a(f"ds_read_b128 {vr(st+4*tb,4)}, v{v_ta} offset:{tb*256}")
    for sgi in range(2):
        for fb in range(3):
            a(f"ds_read_b128 {vr(cs+12*sgi+4*fb,4)}, v{v_tc} offset:{sgi*384 + fb*64}")
    a("s_waitcnt lgkmcnt(0)")
    for tb in range(4):
        vm, vA, vB, vC = [st + 4 * tb + i for i in range(4)]
        pm, pB = vr(vm, 2), vr(vB, 2)
        for fb in range(3):
            cg, cu = g.acc[tb][fb], g.acc[tb][3 + fb]
            z = tmp + 8 * (fb & 1)
            for h in (0, 2):
                a(f"v_pk_fma_f32 {vr(cg+h,2)}, {pm}, {vr(cs+4*fb+h,2)}, {vr(cg+h,2)} op_sel_hi:[0,1,1]")
                a(f"v_pk_fma_f32 {vr(cu+h,2)}, {pm}, {vr(cs+12+4*fb+h,2)}, {vr(cu+h,2)} op_sel_hi:[0,1,1]")
            for h in (0, 2):
                a(f"v_pk_mul_f32 {vr(z+h,2)}, {vr(cg+h,2)}, {vr(cg+h,2)}")
                a(f"v_pk_mul_f32 {vr(cu+h,2)}, {vr(cu+h,2)}, {vr(cg+h,2)}")
            for h in (0, 2):
                a(f"v_pk_fma_f32 {vr(z+h,2)}, {vr(z+h,2)}, {pB}, {pm} op_sel:[0,0,1] op_sel_hi:[1,0,1]")
            for h in (0, 2):
                a(f"v_pk_mul_f32 {vr(z+h,2)}, {vr(z+h,2)}, {vr(cg+h,2)}")
            for r in range(4):
                a(f"v_exp_f32 v{z+r}, v{z+r}")
            for h in (0, 2):
                a(f"v_pk_fma_f32 {vr(z+h,2)}, {vr(z+h,2)}, {pB}, {pB} op_sel:[0,1,1] op_sel_hi:[1,1,1]")
            for r in range(4):
                a(f"v_rcp_f32 v{z+r}, v{z+r}")
            a("s_nop 0")
            for h in (0, 2):
                a(f"v_pk_mul_f32 {vr(cu+h,2)}, {vr(cu+h,2)}, {vr(z+h,2)}")
            if fb == 1:
                q, dst = g.acc[tb][3], g.acc[tb][3] + 2
            elif fb == 2 and tb % 2 == 1:
                q, dst = g.acc[tb - 1][5], g.acc[tb - 1][5] + 2
            else:
                q, dst = None, cu
            a(f"v_cvt_pk_bf16_f32 v{dst}, v{cu}, v{cu+1}")
            a(f"v_cvt_pk_bf16_f32 v{dst+1}, v{cu+2}, v{cu+3}")
            if q is not None:
                a(f"s_mov_b32 s{S_KW}, {(tb if fb == 1 else tb - 1)*16*F*2}")
                a("s_nop 0")
                a(f"v_permlane16_swap_b32 v{q}, v{q+2}")
                a(f"v_permlane16_swap_b32 v{q+1}, v{q+3}")
                if fb == 1:
                    a(f"buffer_store_dwordx4 {vr(q,4)}, v{v_a4}, {sr(SRD3,4)}, s{S_KW} offen {HPOL}")
                else:
                    a(f"buffer_store_dwordx4 {vr(q,4)}, v{v_b4}, {sr(SRD3,4)}, s{S_KW} offen offset:1024 {HPOL}")
    stamp(a, sb + 2)
    publish(a, t, 1)


def gen_k345(a):
    name = "k3_ffn_kernel"
    kernel_begin(a, name)
    a("s_cmp_ge_u32 s2, 256")
    a("s_cbranch_scc1 k3_end")
    load_kernargs(a)
    map_proj(a, 3)
    a("s_waitcnt lgkmcnt(0)")
    srd_proj(a, 3)
    make_srd(a, SRDC, P_WS, WS_CNT, 8192)
    maxv = 0
    va = VAlloc(1)
    g3 = proj_gemm(a, va, 3)
    g3.split()
    t = g3.tmp
    a(f"v_mov_b32 v{t[0]}, {TAB + 3072}")
    a(f"v_mov_b32 v{t[2]}, 0")
    a(f"v_mov_b32 v{t[3]}, 0")
    assert t[2] % 2 == 1
    a(f"ds_write2_b32 v{t[0]}, v{t[2]}, v{t[3]} offset0:0 offset1:1")
    proj_compute(a, va, g3, 3, 0)
    maxv = max(maxv, va.n)
    va = VAlloc(1)
    g4 = k4_gemm(a, va)
    g4.tmp = [va() for _ in range(6)]
    map_k4(a)
    k4_compute(a, va, g4, 3)
    maxv = max(maxv, va.n)
    va = VAlloc(1)
    g5 = proj_gemm(a, va, 5)
    g5.tmp = [va() for _ in range(6)]
    map_proj(a, 5)
    srd_proj(a, 5)
    proj_compute(a, va, g5, 5, 6)
    maxv = max(maxv, va.n)
    stamp_end(a, 8)
    a.label("k3_end")
    a("s_endpgm")
    assert g3.lds_bytes <= XCH + 8192 and g4.lds_bytes <= XCH and g5.lds_bytes <= TAB

    GC = -2.0 * 0.7978845608028654 * 1.4426950408889634
    pre = {}

    def early4(lva, lt):
        make_srd(a, SRD4, P_WS, WS_ST, S * 64)
        make_srd(a, SRD5, P_WS, WS_CS, NCS * 3072 * 4)
        buf = lva(4 * NCS, 4)
        pre['buf'] = buf
        l2, l3 = a.newlabel("k4e"), a.newlabel("k4e")
        a(f"s_cmp_ge_u32 s{S_WAVE}, 6")
        a(f"s_cbranch_scc1 {l2}")
        a(f"v_add_u32 v{lt[0]}, s{S_TOK0}, v0")
        a(f"v_lshlrev_b32 v{lt[0]}, 6, v{lt[0]}")
        for i in range(4):
            a(f"buffer_load_dwordx4 {vr(buf+4*i,4)}, v{lt[0]}, {sr(SRD4,4)}, 0 offen offset:{i*16} {HPOL}")
        a(f"s_branch {l3}")
        a.label(l2)
        a(f"v_and_b32 v{lt[0]}, 63, v0")
        a(f"v_min_u32 v{lt[0]}, 23, v{lt[0]}")
        a(f"v_lshlrev_b32 v{lt[0]}, 4, v{lt[0]}")
        a(f"s_sub_u32 s{S_T1}, s{S_WAVE}, 6")
        a(f"s_mul_i32 s{S_T1}, s{S_T1}, {1536*4}")
        a(f"s_lshl_b32 s{S_T2}, s{S_COL}, 1")
        a(f"s_add_u32 s{S_T1}, s{S_T1}, s{S_T2}")
        for i in range(NCS):
            a(f"buffer_load_dwordx4 {vr(buf+4*i,4)}, v{lt[0]}, {sr(SRD5,4)}, s{S_T1} offen")
            a(f"s_add_u32 s{S_T1}, s{S_T1}, {3072*4}")
        a.label(l3)

    def cont4(lva, lt):
        buf = pre['buf']
        v_dm = lva()
        a(f"s_and_b32 s{S_T1}, s{S_XB}, 1")
        a(f"s_mul_i32 s{S_T1}, s{S_T1}, 983040")
        a(f"s_mul_i32 s{S_T2}, s{S_J}, {240*128}")
        a(f"s_add_u32 s{S_T1}, s{S_T1}, s{S_T2}")
        a(f"s_add_u32 s{S_T1}, s{S_T1}, {IMG_WD}")
        a(f"v_min_u32 v{lt[0]}, 239, v0")
        a(f"v_lshlrev_b32 v{lt[0]}, 7, v{lt[0]}")
        a(f"v_mov_b32 v{DUMMY}, 0")
        a(f"buffer_load_dword v{DUMMY}, v{lt[0]}, {sr(SRD1,4)}, s{S_T1} offen")
        l2, l3 = a.newlabel("k4e"), a.newlabel("k4e")
        a(f"s_cmp_ge_u32 s{S_WAVE}, 6")
        a(f"s_cbranch_scc1 {l2}")
        for i in range(1, 8):
            a(f"v_add_f32 v{buf}, v{buf}, v{buf+2*i}")
            a(f"v_add_f32 v{buf+1}, v{buf+1}, v{buf+2*i+1}")
        ln_stats(a, buf, buf + 1, buf + 4, buf + 8, lt)
        a(f"v_sub_f32 v{buf+4}, 0, v{buf+4}")
        a(f"v_mul_f32 v{buf+5}, {f32(GC)}, v{buf+8}")
        a(f"v_mul_f32 v{buf+9}, v{buf+8}, v{buf+8}")
        a(f"v_mul_f32 v{buf+6}, v{buf+9}, v{buf+8}")
        a(f"v_mul_f32 v{buf+6}, {f32(GC*0.044715)}, v{buf+6}")
        a(f"v_rcp_f32 v{buf+7}, v{buf+9}")
        a(f"v_lshlrev_b32 v{lt[0]}, 4, v0")
        a(f"v_add_u32 v{lt[0]}, {TAB}, v{lt[0]}")
        a(f"ds_write_b128 v{lt[0]}, {vr(buf+4,4)}")
        a(f"s_branch {l3}")
        a.label(l2)
        for k in range(1, NCS):
            for i in range(4):
                a(f"v_add_f32 v{buf+i}, v{buf+i}, v{buf+4*k+i}")
        a(f"v_and_b32 v{lt[0]}, 63, v0")
        a(f"v_min_u32 v{lt[0]}, 23, v{lt[0]}")
        a(f"v_lshlrev_b32 v{lt[0]}, 4, v{lt[0]}")
        a(f"s_sub_u32 s{S_T1}, s{S_WAVE}, 6")
        a(f"s_mul_i32 s{S_T1}, s{S_T1}, 384")
        a(f"s_add_u32 s{S_T1}, s{S_T1}, {TAB + 2048}")
        a(f"v_add_u32 v{lt[0]}, s{S_T1}, v{lt[0]}")
        a(f"ds_write_b128 v{lt[0]}, {vr(buf,4)}")
        a.label(l3)
        a("s_waitcnt lgkmcnt(0)")
        a("s_barrier")
        map_proj(a, 5)
        srd_proj(a, 5)
        g5.loader(S_ROT, gate=lambda: a("s_barrier"), head=False, xpol=HPOL)

    def cont3(lva, lt):
        a("s_barrier")
        map_k4(a)
        g4.loader(S_ROT, cont=cont4, early=early4, gate=lambda: a("s_barrier"), head=False, xpol=HPOL)

    DUMMY = 100
    g3.loader(S_ROT, cont=cont3)
    assert max(g3.loader_vgprs, g4.loader_vgprs, g5.loader_vgprs) < DUMMY < maxv
    kernel_end(a, name, maxv)
    return (name, 256, 512, 160 * 1024)

K4_NS = 3


def main():
    a = Asm()
    a.raw('.amdgcn_target "amdgcn-amd-amdhsa--gfx950"')
    a.raw(".text")
    launches = [gen_k1(a), gen_k2(a), gen_k345(a)]
    head = open("cdna_kernels/" + NAME + ".s.ref").read().split("\n")
    hdr = [l for l in head if l.startswith(";") and "@launch" not in l and "Override launch" not in l and "grid=ceil" not in l]
    out = "\n".join(hdr) + "\n"
    for n, gx, bx, lds in launches:
        out += f"; @launch kernel={n} grid=({gx},1,1) block=({bx},1,1) lds={lds}\n"
    out += a.text()
    out += '.section .rodata,"a"\n' + "".join(KDS)
    path = sys.argv[1] if len(sys.argv) > 1 else "cdna_kernels/" + NAME + ".s"
    open(path, "w").write(out)
    print("wrote", path, len(out), "bytes;", launches)

if __name__ == "__main__":
    main()
```

```python
import sys

NAME = "sequential_preLN__grouped_kv_mqa__geglu_ffn__prompt"

S, D, H, DH, F = 2048, 640, 32, 20, 1536

WS_Q   = 0
WS_KF  = 0x280000
WS_KV  = WS_KF
KV_SZ  = 163840
NCS    = 8
WS_VF  = WS_KF + 0x20000
WS_KN  = WS_VF + 0x20000
WS_CS  = WS_KN + 0x1000
WS_O   = WS_CS + 0x20000
WS_H   = WS_O + 0x280000
WS_ST  = WS_H + 0x280000
WS_ACT = WS_ST + 0x20000
WS_S1  = WS_ACT + 0x600000
WS_CNT = WS_S1
WS_IMG = WS_S1 + 0x4000
WS_TL = 0x3000000
IMG_WO, IMG_WD, IMG_GU, IMG_SZ = 0, 819200, 819200 + 1966080, 6717440

KA_X, KA_WQ, KA_WK, KA_WV, KA_WO, KA_BX, KA_WG, KA_WU, KA_WD, KA_OUT, KA_DBG, KA_WS = [8 * i for i in range(12)]

import struct, os
INSTR = bool(os.environ.get("INSTR"))
HACK_LIN = bool(os.environ.get("HACK_LIN"))
NOCOMP = os.environ.get("NOCOMP", "").split(",")
NOX = os.environ.get("NOX", "").split(",")
NOW = os.environ.get("NOW", "").split(",")
PF = bool(os.environ.get("PF"))
IMGPOL = os.environ.get("IMGPOL", "sc1")
for _k in ("NORB2", "NORB3", "NORB4"):
    os.environ[_k] = "1"
NOLOAD = os.environ.get("NOLOAD", "").split(",")
def f32(x):
    return "0x%08x" % struct.unpack("<I", struct.pack("<f", x))[0]


class Asm:
    skip_dma = False
    def __init__(self):
        self.lines = []
        self.nlabel = 0

    def __call__(self, s):
        for l in s.split("\n"):
            l = l.strip()
            if self.skip_dma and l.startswith("buffer_load") and l.endswith("lds"):
                continue
            if l:
                self.lines.append("    " + l)

    def label(self, l):
        self.lines.append(l + ":")

    def newlabel(self, p="L"):
        self.nlabel += 1
        return f"{p}_{self.nlabel}"

    def raw(self, s):
        self.lines.append(s)

    def text(self):
        return "\n".join(self.lines) + "\n"


class VAlloc:
    def __init__(self, start=1):
        self.n = start

    def __call__(self, cnt=1, align=1):
        self.n = (self.n + align - 1) // align * align
        r = self.n
        self.n += cnt
        return r


def vr(b, n):
    return f"v[{b}:{b+n-1}]"


def sr(b, n):
    return f"s[{b}:{b+n-1}]"


KIDX = [-1]
LIDX = [0]
def kernel_begin(a, name):
    KIDX[0] += 1
    a.raw(f".globl {name}")
    a.raw(".p2align 8")
    a.raw(f".type {name},@function")
    a.label(name)


KDS = []
def kernel_end(a, name, nvgpr, nsgpr=102):
    nv = (nvgpr + 7) // 8 * 8
    KDS.append(f""".p2align 6
.amdhsa_kernel {name}
  .amdhsa_next_free_vgpr {nv}
  .amdhsa_next_free_sgpr {nsgpr}
  .amdhsa_accum_offset {(nv + 3) // 4 * 4}
  .amdhsa_group_segment_fixed_size 0
  .amdhsa_kernarg_size 96
  .amdhsa_user_sgpr_count 2
  .amdhsa_user_sgpr_kernarg_segment_ptr 1
  .amdhsa_system_sgpr_workgroup_id_x 1
.end_amdhsa_kernel
""")


def make_srd(a, dst, base_s, off, nbytes):
    if off:
        a(f"s_add_u32 s{dst}, s{base_s}, {off}")
        a(f"s_addc_u32 s{dst+1}, s{base_s+1}, 0")
    else:
        a(f"s_mov_b32 s{dst}, s{base_s}")
        a(f"s_mov_b32 s{dst+1}, s{base_s+1}")
    a(f"s_mov_b32 s{dst+2}, {nbytes}")
    a(f"s_mov_b32 s{dst+3}, 0x00020000")


def interleave(mfmas, fillers, nreads=None):
    out = []
    nm, nf = len(mfmas), len(fillers)
    per = 1 if (nreads or nf) * 3 <= nm * 2 + 2 and nf <= nm else 2
    if os.environ.get("OLDIL"):
        per = 0
    fi = 0
    for i, m in enumerate(mfmas):
        out.append(m)
        tgt = (i + 1) * per if per else ((i + 1) * nf + nm - 1) // nm
        while fi < min(tgt, nf):
            out.extend(fillers[fi])
            fi += 1
    while fi < nf:
        out.extend(fillers[fi])
        fi += 1
    return out


class Seg:
    def __init__(self, srd, gstride, nf, kind, colreg=None, img=None):
        self.img = img
        self.srd = srd
        self.gstride = gstride
        self.nf = nf
        self.kind = kind
        self.colreg = colreg


class Gemm:
    def __init__(self, a, va, TT, WT, WK, WF, segs, BK, NS, K, xsrd, xstride, s_tok0,
                 stats=False, colsum=False, sregs=None, tag="g", lds_base=0, xcm=False):
        self.a, self.va = a, va
        self.xcm = xcm
        self.lds_base = lds_base
        self.TT, self.WT, self.WK, self.WF = TT, WT, WK, WF
        assert WT * WK * WF == 4
        self.segs, self.BK, self.NS, self.K = segs, BK, NS, K
        self.xsrd, self.xstride, self.s_tok0 = xsrd, xstride, s_tok0
        self.stats, self.colsum = stats, colsum
        self.tag = tag
        self.TW = TT // WT
        self.TB = self.TW // 16
        self.RB = BK * 2
        self.CPR = self.RB // 16
        self.nst = K // BK
        self.SPS = BK // 32
        self.SPW = self.SPS // WK
        assert self.SPW % 2 == 0
        self.xbytes = TT * self.RB
        off = self.xbytes
        for s in segs:
            s.lstride = 40 if s.kind == 'lin40' else s.nf * 2
            nb = BK * s.lstride
            s.ninstr = (nb + 4095) // 4096 * 4
            s.lbase = off
            off += s.ninstr * 1024
            s.FBW = (s.nf // WF) // 16
        self.stage_bytes = off
        self.nx = self.xbytes // 1024
        assert self.nx % 4 == 0
        self.ndma = self.nx // 4 + sum(s.ninstr // 4 for s in segs)
        self.lds_bytes = self.stage_bytes * NS
        (self.s_woff, self.s_kx, self.s_kw, self.s_wave, self.s_cnt, self.s_slot, self.s_kidx, self.s_dl) = sregs

    def split(self):
        a, va = self.a, self.va
        self.tmp = [va() for _ in range(6)]
        t = self.tmp
        a(f"v_lshrrev_b32 v{t[0]}, 6, v0")
        a("s_nop 0")
        a(f"v_readfirstlane_b32 s{self.s_wave}, v{t[0]}")
        a("s_nop 3")
        a(f"s_cmp_ge_u32 s{self.s_wave}, 4")
        a(f"s_cbranch_scc1 {self.tag}_loader")

    def ld_prepare(self, s_rot=None, head=True, xpol="", ops=None, v0=1):
        a = self.a
        va = self.lva = VAlloc(v0)
        t = self.lt = [va() for _ in range(6)]
        self.s_rot, self.xpol = s_rot, xpol
        self.ops = [] if ops is None else ops
        if head:
            a.label(f"{self.tag}_loader")
            a(f"v_and_b32 v0, 255, v0")
        a(f"s_and_b32 s{self.s_woff}, s{self.s_wave}, 3")
        a(f"s_lshl_b32 s{self.s_woff}, s{self.s_woff}, 10")
        lg = {8: 3, 16: 4}[self.CPR]
        v_dx = self.v_dx = va()
        if self.xcm:
            a(f"v_lshrrev_b32 v{t[1]}, {lg+4}, v0")
            a(f"v_and_b32 v{t[2]}, {self.CPR*16-1}, v0")
            a(f"v_lshlrev_b32 v{t[1]}, 4, v{t[1]}")
            a(f"v_add_u32 v{t[1]}, s{self.s_tok0}, v{t[1]}")
            a(f"v_mul_u32_u24 v{t[1]}, {self.xstride}, v{t[1]}")
            a(f"v_lshl_add_u32 v{v_dx}, v{t[2]}, 4, v{t[1]}")
        else:
            a(f"v_lshrrev_b32 v{t[1]}, {lg}, v0")
            a(f"v_and_b32 v{t[2]}, {self.CPR-1}, v0")
            if self.CPR == 8:
                a(f"v_bfe_u32 v{t[3]}, v{t[1]}, 1, 3")
            else:
                a(f"v_and_b32 v{t[3]}, 15, v{t[1]}")
            a(f"v_xor_b32 v{t[2]}, v{t[2]}, v{t[3]}")
            a(f"v_add_u32 v{t[1]}, s{self.s_tok0}, v{t[1]}")
            a(f"v_mul_u32_u24 v{t[1]}, {self.xstride}, v{t[1]}")
            a(f"v_lshl_add_u32 v{v_dx}, v{t[2]}, 4, v{t[1]}")
        done = {}
        for s in self.segs:
            key = (s.kind, s.nf)
            if key in done:
                s.v_d = done[key]
                continue
            s.v_d = []
            cprw = s.lstride // 16 if s.kind != 'lin40' else None
            for j in range(s.ninstr // 4):
                if s.kind == 'lin40' or s.img:
                    if j == 0:
                        r = va()
                        a(f"v_lshlrev_b32 v{r}, 4, v0")
                    s.v_d.append(r)
                    continue
                r = va()
                s.v_d.append(r)
                a(f"v_add_u32 v{t[0]}, {j*256}, v0")
                magic = {10: 52429, 12: 43691}[cprw]
                a(f"v_mul_u32_u24 v{t[1]}, {magic}, v{t[0]}")
                a(f"v_lshrrev_b32 v{t[1]}, 19, v{t[1]}")
                a(f"v_mul_u32_u24 v{t[2]}, {cprw}, v{t[1]}")
                a(f"v_sub_u32 v{t[2]}, v{t[0]}, v{t[2]}")
                a(f"v_and_b32 v{t[3]}, 0xfffffff3, v{t[1]}")
                a(f"v_bfe_u32 v{t[4]}, v{t[1]}, 2, 1")
                if s.kind == 'p192':
                    a(f"v_lshlrev_b32 v{t[5]}, 1, v{t[4]}")
                    a(f"v_xor_b32 v{t[2]}, v{t[2]}, v{t[5]}")
                a(f"v_lshl_or_b32 v{t[3]}, v{t[4]}, 3, v{t[3]}")
                a(f"v_bfe_u32 v{t[4]}, v{t[1]}, 3, 1")
                a(f"v_lshl_or_b32 v{t[3]}, v{t[4]}, 2, v{t[3]}")
                a(f"v_mul_u32_u24 v{t[3]}, {s.gstride}, v{t[3]}")
                a(f"v_lshl_add_u32 v{r}, v{t[2]}, 4, v{t[3]}")
                if s.colreg is not None:
                    a(f"v_add_u32 v{r}, s{s.colreg}, v{r}")
            done[key] = s.v_d
        self.lidx = LIDX[0]
        LIDX[0] += 1
        self.v_st = 90 + self.lidx

    def ld_kset(self, st):
        a = self.a
        if self.s_rot is None:
            a(f"s_mov_b32 s{self.s_kidx}, {st}")
        elif st == 0:
            a(f"s_mov_b32 s{self.s_kidx}, s{self.s_rot}")
        else:
            a(f"s_add_u32 s{self.s_kidx}, s{self.s_rot}, {st}")
            a(f"s_sub_u32 s{self.s_dl}, s{self.s_kidx}, {self.nst}")
            a(f"s_cmp_ge_u32 s{self.s_kidx}, {self.nst}")
            a(f"s_cselect_b32 s{self.s_kidx}, s{self.s_dl}, s{self.s_kidx}")

    def ld_issue(self, st, x=True, w=True):
        a = self.a
        gs = self.segs[0].gstride
        xrows = 256 // self.CPR
        slot = self.lds_base + (st % self.NS) * self.stage_bytes
        a.skip_dma = self.tag in NOLOAD
        self.ld_kset(st)
        if x:
            a(f"s_mul_i32 s{self.s_kx}, s{self.s_kidx}, {self.CPR*256 if self.xcm else self.BK*2}")
            for j in range(self.nx // 4):
                a(f"s_add_u32 m0, s{self.s_woff}, {slot + j*4096}")
                if j:
                    a(f"s_add_u32 s{self.s_kx}, s{self.s_kx}, {xrows*self.xstride}")
                else:
                    a("s_nop 0")
                a(f"buffer_load_dwordx4 v{self.v_dx}, {sr(self.xsrd,4)}, s{self.s_kx} offen {self.xpol} lds")
                self.ops.append((self.tag, st))
        if w:
            if self.segs[0].img:
                a(f"s_mul_i32 s{self.s_kw}, s{self.s_kidx}, {self.segs[0].img[1]}")
                a(f"s_add_u32 s{self.s_kw}, s{self.s_kw}, s{self.segs[0].img[0]}")
            else:
                a(f"s_mul_i32 s{self.s_kw}, s{self.s_kidx}, {self.BK*gs}")
            for s in self.segs:
                if s.gstride != gs:
                    a(f"s_mul_i32 s{self.s_kw}, s{self.s_kidx}, {self.BK*s.gstride}")
                for j, r in enumerate(s.v_d):
                    a(f"s_add_u32 m0, s{self.s_woff}, {slot + s.lbase + j*4096}")
                    if s.kind == 'lin40' or s.img:
                        a(f"s_add_u32 s{self.s_dl}, s{self.s_kw}, {j*4096 + (s.img[2] if s.img else 0)}")
                        a(f"buffer_load_dwordx4 v{r}, {sr(s.srd,4)}, s{self.s_dl} offen lds")
                    else:
                        a("s_nop 0")
                        a(f"buffer_load_dwordx4 v{r}, {sr(s.srd,4)}, s{self.s_kw} offen lds")
                    self.ops.append((self.tag, st))

    def lstamp(self, idx):
        a = self.a
        a.skip_dma = False
        if INSTR:
            a("s_memtime s[98:99]")
            a("s_waitcnt lgkmcnt(0)")
            a("s_sub_u32 s98, s98, s80")
            a(f"v_writelane_b32 v{self.v_st}, s98, {idx}")

    def ld_run(self, wdone=False, tail=None, mid=None):
        a = self.a
        ops = self.ops

        def ready(st):
            last = max(i for i, o in enumerate(ops) if o == (self.tag, st))
            n = len(ops) - 1 - last
            assert n < 64
            a(f"s_waitcnt vmcnt({n})")
            self.lstamp(st + 2)
            a("s_barrier")

        NS, nst = self.NS, self.nst
        self.lstamp(1)
        wf = not wdone
        self.ld_issue(0, w=wf)
        self.ld_issue(1, w=wf)
        ready(0)
        for st in range(2, NS):
            self.ld_issue(st, w=wf)
        for st in range(NS, nst):
            ready(st - NS + 1)
            self.ld_issue(st)
            if mid:
                mid(st)
        for st in range(nst - NS + 1, nst):
            ready(st)
            if tail:
                tail(st)
        a("s_barrier")
        if tail:
            tail(nst)

    def ld_dump(self):
        a = self.a
        if INSTR:
            lab = a.newlabel("ls")
            a(f"s_cmp_lg_u32 s2, {INSTR_WG}")
            a(f"s_cbranch_scc1 {lab}")
            a(f"s_cmp_lg_u32 s{self.s_wave}, 4")
            a(f"s_cbranch_scc1 {lab}")
            make_srd(a, 92, P_WS, WS_TL + 0x10000 + self.lidx * 256, 64)
            a(f"v_lshlrev_b32 v89, 2, v0")
            a(f"buffer_store_dword v{self.v_st}, v89, s[92:95], 0 offen")
            a("s_waitcnt vmcnt(0)")
            a.label(lab)

    def loader(self, s_rot=None, cont=None):
        a = self.a
        self.ld_prepare(s_rot)
        self.lstamp(0)
        self.ld_run()
        self.ld_dump()
        if cont is None:
            a("s_endpgm")
        else:
            cont(self.lva, self.lt)

    def setup(self):
        a, va = self.a, self.va
        t = self.tmp
        lane, i16, g, wv = va(), va(), va(), va()
        self.v_lane, self.v_i16, self.v_g, self.v_wave = lane, i16, g, wv
        a(f"v_and_b32 v{lane}, 63, v0")
        a(f"v_lshrrev_b32 v{wv}, 6, v0")
        a(f"v_and_b32 v{i16}, 15, v0")
        a(f"v_bfe_u32 v{g}, v0, 4, 2")
        wt, wo = va(), va()
        self.v_wt, self.v_wo = wt, wo
        a(f"v_and_b32 v{wt}, {self.WT-1}, v{wv}")
        sh = {1: 0, 2: 1, 4: 2}[self.WT]
        a(f"v_lshrrev_b32 v{wo}, {sh}, v{wv}")
        self.addr_regs = []
        done = {}
        for s in self.segs:
            key = (s.kind, s.nf)
            if key in done:
                s.v_a = done[key]
                continue
            if s.kind == 'lin40':
                a(f"v_lshlrev_b32 v{t[0]}, 3, v{g}")
            else:
                a(f"v_lshrrev_b32 v{t[0]}, 1, v{g}")
                a(f"v_lshlrev_b32 v{t[0]}, 4, v{t[0]}")
                a(f"v_and_b32 v{t[1]}, 1, v{g}")
                a(f"v_lshl_add_u32 v{t[0]}, v{t[1]}, 2, v{t[0]}")
            a(f"v_lshrrev_b32 v{t[1]}, 2, v{i16}")
            a(f"v_add_u32 v{t[0]}, v{t[0]}, v{t[1]}")
            if self.WK > 1:
                a(f"v_mov_b32 v{t[1]}, {self.SPW*32}")
                a(f"v_mad_u32_u24 v{t[0]}, v{wo}, v{t[1]}, v{t[0]}")
            a(f"v_mul_u32_u24 v{t[0]}, {s.lstride}, v{t[0]}")
            a(f"v_and_b32 v{t[1]}, 3, v{i16}")
            a(f"v_lshl_add_u32 v{t[0]}, v{t[1]}, 3, v{t[0]}")
            if s.kind == 'p192':
                regs = []
                for b in range(s.FBW):
                    r = va()
                    regs.append(r)
                    if self.WF > 1:
                        a(f"v_mul_u32_u24 v{t[1]}, {s.FBW}, v{wo}")
                        a(f"v_add_u32 v{t[1]}, {b}, v{t[1]}")
                    else:
                        a(f"v_mov_b32 v{t[1]}, {b}")
                    a(f"v_and_b32 v{t[2]}, 1, v{g}")
                    a(f"v_xor_b32 v{t[1]}, v{t[1]}, v{t[2]}")
                    a(f"v_lshl_add_u32 v{r}, v{t[1]}, 5, v{t[0]}")
                s.v_a = regs
                self.addr_regs += regs
            else:
                r = va()
                if self.WF > 1:
                    a(f"v_mul_u32_u24 v{t[1]}, {s.FBW*32}, v{wo}")
                    a(f"v_add_u32 v{r}, v{t[0]}, v{t[1]}")
                else:
                    a(f"v_mov_b32 v{r}, v{t[0]}")
                s.v_a = [r]
                self.addr_regs.append(r)
            done[key] = s.v_a
        self.v_b = []
        if self.xcm:
            r = va()
            self.v_b = [r] * self.SPW
            self.addr_regs.append(r)
            a(f"v_mul_u32_u24 v{t[0]}, {self.TW*self.RB}, v{wt}")
            a(f"v_lshl_add_u32 v{t[0]}, v{lane}, 4, v{t[0]}")
            if self.WK > 1:
                a(f"v_mul_u32_u24 v{t[2]}, {1024*self.SPW}, v{wo}")
                a(f"v_add_u32 v{r}, v{t[0]}, v{t[2]}")
            else:
                a(f"v_mov_b32 v{r}, v{t[0]}")
        a(f"v_mul_u32_u24 v{t[0]}, {self.TW}, v{wt}")
        a(f"v_add_u32 v{t[0]}, v{t[0]}, v{i16}")
        if self.CPR == 8:
            a(f"v_bfe_u32 v{t[1]}, v{t[0]}, 1, 3")
        else:
            a(f"v_and_b32 v{t[1]}, 15, v{t[0]}")
        a(f"v_mul_u32_u24 v{t[0]}, {self.RB}, v{t[0]}")
        for ls in range(self.SPW if not self.xcm else 0):
            r = va()
            self.v_b.append(r)
            self.addr_regs.append(r)
            if self.WK > 1:
                a(f"v_mul_u32_u24 v{t[2]}, {4*self.SPW}, v{wo}")
                a(f"v_add3_u32 v{t[2]}, v{t[2]}, v{g}, {4*ls}")
            else:
                a(f"v_add_u32 v{t[2]}, {4*ls}, v{g}")
            a(f"v_xor_b32 v{t[2]}, v{t[2]}, v{t[1]}")
            a(f"v_lshl_add_u32 v{r}, v{t[2]}, 4, v{t[0]}")
        if self.lds_base:
            for r in self.addr_regs:
                a(f"v_add_u32 v{r}, {self.lds_base}, v{r}")
        self.nA = sum(s.FBW for s in self.segs)
        self.fa = [va(4 * self.nA, 4) for _ in range(2)]
        self.fb = [va(4 * self.TB, 4) for _ in range(2)]
        self.acc = [[va(4, 4) for _ in range(self.nA)] for _ in range(self.TB)]
        accs = [r for row in self.acc for r in row]
        if self.stats or self.colsum:
            self.v_ones = va(4, 4)
            for i in range(4):
                a(f"v_mov_b32 v{self.v_ones+i}, 0x3f803f80")
        if self.stats:
            self.acc_sum = [va(4, 4) for _ in range(self.TB)]
            self.acc_sq = [va(4, 4) for _ in range(self.TB)]
            accs += self.acc_sum + self.acc_sq
        if self.colsum:
            self.acc_cs = [va(4, 4) for _ in range(self.nA)]
            accs += self.acc_cs
        for r in accs:
            for i in range(4):
                a(f"v_mov_b32 v{r+i}, 0")

    def read_units(self, ls, buf):
        units = []
        fi = 0
        for s in self.segs:
            for b in range(s.FBW):
                for e in range(2):
                    if s.kind == 'lin40':
                        off = s.lbase + (ls * 32 + 4 * e) * 40 + b * 32
                        ar = s.v_a[0]
                    elif s.kind == 'p192':
                        off = s.lbase + (ls * 32 + 8 * e) * s.lstride
                        ar = s.v_a[b]
                    else:
                        off = s.lbase + (ls * 32 + 8 * e) * s.lstride + b * 32
                        ar = s.v_a[0]
                    assert off < 65536
                    d = self.fa[buf] + 4 * fi + 2 * e
                    units.append([f"ds_read_b64_tr_b16 {vr(d,2)}, v{ar} offset:{off}"])
                fi += 1
        for tb in range(self.TB):
            off = tb * 16 * self.RB + (ls * 1024 if self.xcm else 0)
            d = self.fb[buf] + 4 * tb
            units.append([f"ds_read_b128 {vr(d,4)}, v{self.v_b[ls]} offset:{off}"])
        return units[-self.TB:] + units[:-self.TB]

    def mfmas(self, buf):
        out = []
        for fi in range(self.nA):
            A = vr(self.fa[buf] + 4 * fi, 4)
            for tb in range(self.TB):
                B = vr(self.fb[buf] + 4 * tb, 4)
                c = vr(self.acc[tb][fi], 4)
                out.append(f"v_mfma_f32_16x16x32_bf16 {c}, {A}, {B}, {c}")
            if self.colsum:
                c = vr(self.acc_cs[fi], 4)
                out.append(f"v_mfma_f32_16x16x32_bf16 {c}, {A}, {vr(self.v_ones,4)}, {c}")
        if self.stats:
            for tb in range(self.TB):
                B = vr(self.fb[buf] + 4 * tb, 4)
                c = vr(self.acc_sum[tb], 4)
                out.append(f"v_mfma_f32_16x16x32_bf16 {c}, {vr(self.v_ones,4)}, {B}, {c}")
                c = vr(self.acc_sq[tb], 4)
                out.append(f"v_mfma_f32_16x16x32_bf16 {c}, {B}, {B}, {c}")
        return out

    def mainloop(self):
        a = self.a
        a(f"s_mov_b32 s{self.s_cnt}, {self.nst}")
        a(f"s_mov_b32 s{self.s_slot}, 0")
        a("s_barrier")
        for u in self.read_units(0, 0):
            for l in u:
                a(l)
        lp = f"{self.tag}_loop"
        a.label(lp)
        for ls in range(self.SPW):
            buf = ls & 1
            a("s_waitcnt lgkmcnt(0)")
            mf = self.mfmas(buf)
            if ls == self.SPW - 1:
                a(mf[0])
                mf = mf[1:]
                a("s_barrier")
                fill = self.read_units(0, buf ^ 1)
                fill.append([f"s_sub_u32 s{self.s_cnt}, s{self.s_cnt}, 1", f"s_cmp_lg_u32 s{self.s_cnt}, 0"])
            else:
                fill = self.read_units(ls + 1, buf ^ 1)
                if ls == self.SPW - 2:
                    fill.append([f"s_mov_b32 s{self.s_dl}, s{self.s_slot}",
                                 f"s_add_u32 s{self.s_slot}, s{self.s_slot}, {self.stage_bytes}"])
                    fill.append([f"s_cmp_ge_u32 s{self.s_slot}, {self.lds_bytes}",
                                 f"s_cselect_b32 s{self.s_slot}, 0, s{self.s_slot}",
                                 f"s_sub_u32 s{self.s_dl}, s{self.s_slot}, s{self.s_dl}"])
                    for r in self.addr_regs:
                        fill.append([f"v_add_u32 v{r}, s{self.s_dl}, v{r}"])
            for l in interleave(mf, fill, len(self.read_units(0, 0))):
                a(l)
        a(f"s_cbranch_scc1 {lp}")
        a("s_waitcnt vmcnt(0) lgkmcnt(0)")


P_X, P_WQ, P_WK, P_WV, P_WO, P_BX, P_WG, P_WU, P_WD, P_OUT, P_DBG, P_WS = [16 + 2 * i for i in range(12)]
SRD0, SRD1, SRD2, SRD3, SRD4, SRD5 = 40, 44, 48, 52, 56, 60
S_WOFF, S_KX, S_KW, S_WAVE = 64, 65, 66, 67
S_TOK0, S_COL, S_T0, S_T1, S_T2 = 68, 69, 70, 71, 72
S_CNT_, S_SLOT_, S_KIDX, S_DL, S_ROT = 76, 77, 78, 79, 73
GS = (S_WOFF, S_KX, S_KW, S_WAVE, S_CNT_, S_SLOT_, S_KIDX, S_DL)


def load_kernargs(a):
    if INSTR:
        for i in range(84, 98):
            a(f"s_mov_b32 s{i}, 0")
        a("s_memtime s[80:81]")
        a("s_memrealtime s[82:83]")
    a("s_load_dwordx16 s[16:31], s[0:1], 0")
    a("s_load_dwordx8 s[32:39], s[0:1], 64")


def stamp(a, idx):
    if INSTR:
        a("s_memtime s[98:99]")
        a("s_waitcnt lgkmcnt(0)")
        a(f"s_sub_u32 s{84+idx}, s98, s80")


def stamp_end(a, n, wg=None):
    if INSTR:
        lab = a.newlabel("se")
        a("s_mov_b64 exec, -1")
        a("s_waitcnt vmcnt(0)")
        a("s_memtime s[98:99]")
        a("s_memrealtime s[100:101]")
        a("s_waitcnt lgkmcnt(0)")
        a(f"s_sub_u32 s{84+n}, s98, s80")
        a(f"s_sub_u32 s{85+n}, s100, s82")
        lab2 = a.newlabel("se")
        a(f"s_cmp_lg_u32 s{S_WAVE}, 0")
        a(f"s_cbranch_scc1 {lab2}")
        make_srd(a, 40, P_WS, WS_TL + KIDX[0] * 4096, 4096)
        a("s_getreg_b32 s98, hwreg(HW_REG_XCC_ID)")
        a("s_and_b32 s98, s98, 7")
        a("s_andn2_b32 s100, s100, 7")
        a("s_or_b32 s100, s100, s98")
        a("v_mov_b32 v2, s82")
        a("v_mov_b32 v3, s100")
        a("s_lshl_b32 s98, s2, 3")
        a("v_mov_b32 v1, s98")
        a("buffer_store_dwordx2 v[2:3], v1, s[40:43], 0 offen")
        a.label(lab2)
        a(f"s_cmp_lg_u32 s2, {INSTR_WG if wg is None else wg}")
        a(f"s_cbranch_scc1 {lab}")
        a(f"s_cmp_lg_u32 s{S_WAVE}, 0")
        a(f"s_cbranch_scc1 {lab}")
        make_srd(a, 40, P_DBG, 0, 256)
        a("v_mov_b32 v1, 0")
        for i in range(14):
            a(f"v_mov_b32 v2, s{84+i}")
            a(f"buffer_store_dword v2, v1, s[40:43], 0 offen offset:{4*i}")
        a.label(lab)
INSTR_WG = int(os.environ.get("INSTR_WG", "100"))


def round_bf16(a, dst, src):
    a(f"v_cvt_pk_bf16_f32 v{dst}, v{src}, v{src}")
    a(f"v_lshlrev_b32 v{dst}, 16, v{dst}")


def ln_stats(a, v_sum, v_sq, v_mean, v_rstd, t):
    a(f"v_mul_f32 v{v_mean}, {f32(1.0/D)}, v{v_sum}")
    a(f"v_mul_f32 v{t[0]}, {f32(1.0/D)}, v{v_sq}")
    a(f"v_fma_f32 v{t[0]}, -v{v_mean}, v{v_mean}, v{t[0]}")
    a(f"v_max_f32 v{t[0]}, 0, v{t[0]}")
    round_bf16(a, v_mean, v_mean)
    round_bf16(a, t[0], t[0])
    a(f"v_add_f32 v{t[0]}, {f32(1e-5)}, v{t[0]}")
    round_bf16(a, t[0], t[0])
    a(f"v_sqrt_f32 v{t[0]}, v{t[0]}")
    a("s_nop 0")
    round_bf16(a, t[0], t[0])
    a(f"v_rcp_f32 v{v_rstd}, v{t[0]}")
    a("s_nop 0")


def gram_diag(a, g, acc_sq, dst):
    t = g.tmp
    a(f"v_and_b32 v{t[0]}, 3, v{g.v_i16}")
    a(f"v_mov_b32 v{t[1]}, v{acc_sq}")
    for r in range(1, 4):
        a(f"v_cmp_eq_u32 vcc, {r}, v{t[0]}")
        a("s_nop 1")
        a(f"v_cndmask_b32 v{t[1]}, v{t[1]}, v{acc_sq+r}, vcc")
    a(f"v_lshrrev_b32 v{t[0]}, 2, v{g.v_i16}")
    a(f"v_lshl_add_u32 v{t[0]}, v{t[0]}, 4, v{g.v_i16}")
    a(f"v_lshlrev_b32 v{t[0]}, 2, v{t[0]}")
    a(f"ds_bpermute_b32 v{dst}, v{t[0]}, v{t[1]}")
    a("s_waitcnt lgkmcnt(0)")


def xlane_add(a, v, v_lane, t0, t1, masks, op="v_add_f32"):
    for m in masks:
        a(f"v_xor_b32 v{t0}, {m}, v{v_lane}")
        a(f"v_lshlrev_b32 v{t0}, 2, v{t0}")
        a(f"ds_bpermute_b32 v{t1}, v{t0}, v{v}")
        a("s_waitcnt lgkmcnt(0)")
        a(f"{op} v{v}, v{v}, v{t1}")


QSCALE = (DH ** -0.5) * 1.4426950408889634


def prefetch_lin(a, v_tid, v_t, v_dummy, srd, s_base, s_j, nlines, s_tmp, nthreads=256):
    a(f"s_mul_i32 s{s_tmp}, s{s_j}, {nlines*128}")
    if s_base is not None:
        a(f"s_add_u32 s{s_tmp}, s{s_tmp}, s{s_base}")
    a(f"v_lshlrev_b32 v{v_t}, 7, v{v_tid}")
    n = (nlines + nthreads - 1) // nthreads
    for i in range(n):
        if i:
            a(f"s_add_u32 s{s_tmp}, s{s_tmp}, {nthreads*128}")
        a(f"buffer_load_dword v{v_dummy}, v{v_t}, {sr(srd,4)}, s{s_tmp} offen")

S_J, S_XB, S_IMG = 12, 13, 14

def dpp_rowmax(a, v):
    for n in (1, 2, 4, 8):
        a("s_nop 1")
        a(f"v_max_f32_dpp v{v}, v{v}, v{v} row_shr:{n} row_mask:0xf bank_mask:0xf bound_ctrl:0")


def swap_add(a, v, t, which):
    a(f"v_mov_b32 v{t}, v{v}")
    a("s_nop 1")
    a(f"v_permlane{which}_swap_b32 v{v}, v{t}")
    a("s_nop 1")
    a(f"v_add_f32 v{v}, v{v}, v{t}")


def gen_k1(a):
    name = "k1_qkv_kernel"
    kernel_begin(a, name)
    a("s_cmp_ge_u32 s2, 256")
    a("s_cbranch_scc1 k1_end")
    load_kernargs(a)
    a(f"s_and_b32 s{S_T1}, s2, 7")
    a(f"s_lshr_b32 s{S_T0}, s2, 3")
    a(f"s_mul_i32 s{S_ROT}, s{S_T0}, 52")
    a(f"s_lshr_b32 s{S_ROT}, s{S_ROT}, 8")
    a(f"s_mul_i32 s{S_ROT}, s{S_ROT}, 5")
    a(f"s_sub_u32 s{S_ROT}, s{S_T0}, s{S_ROT}")
    if os.environ.get("K0ROT", "0") == "0":
        a(f"s_mov_b32 s{S_ROT}, 0")
    a(f"s_lshr_b32 s{S_T2}, s{S_T0}, 3")
    a(f"s_lshl_b32 s{S_T1}, s{S_T1}, 2")
    a(f"s_add_u32 s{S_XB}, s{S_T1}, s{S_T2}")
    a(f"s_lshl_b32 s{S_TOK0}, s{S_XB}, 6")
    a(f"s_and_b32 s{S_J}, s{S_T0}, 7")
    a(f"s_mul_i32 s{S_COL}, s{S_J}, 160")
    a("s_waitcnt lgkmcnt(0)")
    make_srd(a, SRD0, P_X, 0, S * D * 2)
    make_srd(a, SRD1, P_WQ, 0, D * D * 2)
    make_srd(a, SRD2, P_WS, WS_Q, S * D * 2)
    a(f"s_cmp_lt_u32 s{S_J}, 2")
    a("s_cbranch_scc1 k1_b")
    maxv = 8
    lds = 0

    def q_epilogue(g, va):
        t = g.tmp
        v_mean, v_rstd, v_sq, v_ad, v_rq, v_tok = va(), va(), va(), va(), va(), va()
        nA = g.nA
        nx = 2 * nA + 2
        a(f"v_mul_u32_u24 v{t[0]}, {nx*1024}, v{g.v_wave}")
        a(f"v_lshl_add_u32 v{t[0]}, v{g.v_lane}, 4, v{t[0]}")
        a(f"v_xor_b32 v{t[1]}, 2, v{g.v_wave}")
        a(f"v_mul_u32_u24 v{t[1]}, {nx*1024}, v{t[1]}")
        a(f"v_lshl_add_u32 v{t[1]}, v{g.v_lane}, 4, v{t[1]}")
        a(f"v_lshl_add_u32 v{v_tok}, v{g.v_wt}, 1, v{g.v_wo}")
        a(f"v_lshl_add_u32 v{v_tok}, v{v_tok}, 4, v{g.v_i16}")
        a(f"v_add_u32 v{v_tok}, s{S_TOK0}, v{v_tok}")
        a("s_nop 3")
        keep = g.acc[0] + [g.acc_sum[0], g.acc_sq[0]]
        send = g.acc[1] + [g.acc_sum[1], g.acc_sq[1]]
        skip = a.newlabel("xs")
        a(f"s_cmp_lt_u32 s{S_WAVE}, 2")
        a(f"s_cbranch_scc1 {skip}")
        for k_, s_ in zip(keep, send):
            for r in range(4):
                a(f"v_swap_b32 v{k_+r}, v{s_+r}")
        a.label(skip)
        for i, r in enumerate(send + g.acc_cs):
            a(f"ds_write_b128 v{t[0]}, {vr(r,4)} offset:{i*1024}")
        a("s_waitcnt lgkmcnt(0)")
        a("s_barrier")
        csx = [g.fa[0] + 4 * i for i in range(nA)]
        order = [nA, nA + 1] + list(range(nA))
        for i in order:
            a(f"ds_read_b128 {vr(send[i],4)}, v{t[1]} offset:{i*1024}")
            if i < nA:
                a(f"ds_read_b128 {vr(csx[i],4)}, v{t[1]} offset:{(nA+2+i)*1024}")
        a(f"v_mul_u32_u24 v{t[2]}, {D*2}, v{v_tok}")
        a(f"v_lshl_add_u32 v{v_ad}, v{g.v_g}, 3, v{t[2]}")
        a(f"v_add_u32 v{v_ad}, s{S_COL}, v{v_ad}")
        a(f"s_waitcnt lgkmcnt({2*nA})")
        a(f"v_add_f32 v{keep[nA]}, v{keep[nA]}, v{send[nA]}")
        for r in range(4):
            a(f"v_add_f32 v{keep[nA+1]+r}, v{keep[nA+1]+r}, v{send[nA+1]+r}")
        gram_diag(a, g, g.acc_sq[0], v_sq)
        ln_stats(a, g.acc_sum[0], v_sq, v_mean, v_rstd, g.tmp)
        a(f"v_mul_f32 v{v_rq}, {f32(QSCALE)}, v{v_rstd}")
        for fb in range(nA):
            c, cs = g.acc[0][fb], g.acc_cs[fb]
            for r in range(4):
                a(f"v_add_f32 v{c+r}, v{c+r}, v{send[fb]+r}")
                a(f"v_add_f32 v{cs+r}, v{cs+r}, v{csx[fb]+r}")
                a(f"v_fma_f32 v{c+r}, -v{v_mean}, v{cs+r}, v{c+r}")
                a(f"v_mul_f32 v{c+r}, v{c+r}, v{v_rq if fb < 5 else v_rstd}")
            a(f"v_cvt_pk_bf16_f32 v{c}, v{c}, v{c+1}")
            a(f"v_cvt_pk_bf16_f32 v{c+1}, v{c+2}, v{c+3}")
            if fb < 5:
                a(f"buffer_store_dwordx2 {vr(c,2)}, v{v_ad}, {sr(SRD2,4)}, 0 offen offset:{fb*32}")
        return v_tok

    def colsum(lva, lt):
        a.label("k1_cs")
        cva = VAlloc(8)
        lt = [cva() for _ in range(4)]
        csb = cva(40, 4)
        cacc = cva(8, 4)
        v_ca, v_l = cva(), cva()
        S_U, S_SRC, S_DST = S_T0, S_T1, S_KW
        a(f"s_sub_u32 s{S_U}, s{S_WAVE}, 4")
        a(f"s_lshl_b32 s{S_U}, s{S_U}, 8")
        a(f"s_add_u32 s{S_T2}, s{S_U}, s2")
        a(f"s_cmp_eq_u32 s{S_T2}, 768")
        a("s_cbranch_scc1 k1_zero")
        a(f"s_cmp_ge_u32 s{S_T2}, {48*NCS}")
        a("s_cbranch_scc1 k1_end")
        a(f"s_mul_i32 s{S_U}, s{S_T2}, 1366")
        a(f"s_lshr_b32 s{S_U}, s{S_U}, 16")
        a(f"s_mul_i32 s{S_SRC}, s{S_U}, 48")
        a(f"s_sub_u32 s{S_SRC}, s{S_T2}, s{S_SRC}")
        a(f"s_cmp_lt_u32 s{S_SRC}, 24")
        a(f"s_cselect_b32 s{SRD0}, s{P_WG}, s{P_WU}")
        a(f"s_cselect_b32 s{SRD0+1}, s{P_WG+1}, s{P_WU+1}")
        a(f"s_mov_b32 s{SRD0+2}, {F*D*2}")
        a(f"s_cselect_b32 s{S_DST}, 0, 24")
        a(f"s_sub_u32 s{S_SRC}, s{S_SRC}, s{S_DST}")
        a(f"s_lshl_b32 s{S_SRC}, s{S_SRC}, 7")
        a(f"s_mul_i32 s{S_U}, s{S_U}, {80*F*2}")
        a(f"s_add_u32 s{S_SRC}, s{S_SRC}, s{S_U}")
        a(f"v_and_b32 v{v_l}, 63, v0")
        a(f"v_lshrrev_b32 v{lt[0]}, 3, v{v_l}")
        a(f"v_mul_u32_u24 v{lt[0]}, {F*2}, v{lt[0]}")
        a(f"v_and_b32 v{lt[1]}, 7, v{v_l}")
        a(f"v_lshl_add_u32 v{v_ca}, v{lt[1]}, 4, v{lt[0]}")
        for i in range(10):
            a(f"buffer_load_dwordx4 {vr(csb+4*i,4)}, v{v_ca}, {sr(SRD0,4)}, s{S_SRC} offen")
            a(f"s_add_u32 s{S_SRC}, s{S_SRC}, {8*F*2}")
        a(f"v_lshrrev_b32 v{lt[0]}, 4, v{v_l}")
        a(f"v_lshlrev_b32 v{lt[0]}, 3, v{lt[0]}")
        a(f"v_lshl_add_u32 v{v_ca}, v{lt[1]}, 5, v{lt[0]}")
        make_srd(a, SRD3, P_WS, WS_CS, NCS * 3072 * 4)
        a(f"s_lshl_b32 s{S_T2}, s{S_T2}, 8")
        a("s_barrier")
        for i in range(10):
            a(f"s_waitcnt vmcnt({9-i})")
            for j in range(4):
                if i == 0:
                    a(f"v_lshlrev_b32 v{cacc+2*j}, 16, v{csb+j}")
                    a(f"v_and_b32 v{cacc+2*j+1}, 0xffff0000, v{csb+j}")
                else:
                    a(f"v_lshlrev_b32 v{lt[0]}, 16, v{csb+4*i+j}")
                    a(f"v_and_b32 v{lt[1]}, 0xffff0000, v{csb+4*i+j}")
                    a(f"v_add_f32 v{cacc+2*j}, v{cacc+2*j}, v{lt[0]}")
                    a(f"v_add_f32 v{cacc+2*j+1}, v{cacc+2*j+1}, v{lt[1]}")
        a("s_nop 1")
        for j in range(4):
            a(f"v_permlane32_swap_b32 v{cacc+j}, v{cacc+4+j}")
        a("s_nop 1")
        for j in range(4):
            a(f"v_add_f32 v{cacc+j}, v{cacc+j}, v{cacc+4+j}")
        a("s_nop 1")
        for j in range(2):
            a(f"v_permlane16_swap_b32 v{cacc+j}, v{cacc+2+j}")
        a("s_nop 1")
        for j in range(2):
            a(f"v_add_f32 v{cacc+j}, v{cacc+j}, v{cacc+2+j}")
        a("s_nop 1")
        for j in range(2):
            a(f"v_add_f32_dpp v{cacc+j}, v{cacc+j}, v{cacc+j} row_ror:8 row_mask:0xf bank_mask:0xf")
        a(f"buffer_store_dwordx2 {vr(cacc,2)}, v{v_ca}, {sr(SRD3,4)}, s{S_T2} offen")
        a.label("k1_end")
        a("s_endpgm")
        a.label("k1_zero")
        make_srd(a, SRD3, P_WS, WS_CNT, 16384)
        a(f"v_and_b32 v{v_l}, 63, v0")
        a(f"v_lshlrev_b32 v{v_l}, 8, v{v_l}")
        a(f"v_mov_b32 v{lt[0]}, 0")
        a(f"buffer_store_dword v{lt[0]}, v{v_l}, {sr(SRD3,4)}, 0 offen")
        a("s_endpgm")
        pre['n'] = cva.n
    pre = {}

    va = VAlloc(1)
    seg = Seg(SRD1, D * 2, 80, 'p160', S_COL)
    g = Gemm(a, va, 64, 2, 2, 1, [seg], 128, 4, D, SRD0, D * 2, S_TOK0, stats=True, colsum=True, sregs=GS, tag="k1q")
    g.split()
    g.setup()
    stamp(a, 0)
    g.mainloop()
    stamp(a, 1)
    lds = max(lds, g.lds_bytes)
    q_epilogue(g, va)
    stamp_end(a, 2)
    a("s_endpgm")
    maxv = max(maxv, va.n)
    g.loader(S_ROT, cont=colsum)
    maxv = max(maxv, pre['n'])

    a.label("k1_b")
    va = VAlloc(1)
    a(f"s_cmp_eq_u32 s{S_J}, 0")
    a(f"s_cselect_b32 s{SRD3}, s{P_WK}, s{P_WV}")
    a(f"s_cselect_b32 s{SRD3+1}, s{P_WK+1}, s{P_WV+1}")
    a(f"s_mov_b32 s{SRD3+2}, {D*DH*2}")
    a(f"s_mov_b32 s{SRD3+3}, 0x00020000")
    make_srd(a, SRD4, P_WS, WS_KV, KV_SZ)
    make_srd(a, SRD5, P_WS, WS_KN, 512)
    seg = Seg(SRD1, D * 2, 80, 'p160', S_COL)
    sk = Seg(SRD3, 40, 32, 'lin40')
    g = Gemm(a, va, 64, 2, 2, 1, [seg, sk], 128, 3, D, SRD0, D * 2, S_TOK0, stats=True, colsum=True, sregs=GS, tag="k1kv")
    g.split()
    g.setup()
    stamp(a, 0)
    g.mainloop()
    stamp(a, 1)
    lds = max(lds, g.lds_bytes)
    v_key = q_epilogue(g, va)
    v_ak, v_n = va(), va()
    t = g.tmp
    k0, k1 = g.acc[0][5], g.acc[0][6]
    a(f"v_cmp_eq_u32 vcc, 0, v{g.v_g}")
    a(f"v_lshrrev_b32 v{t[0]}, 5, v{v_key}")
    a(f"v_mul_u32_u24 v{t[0]}, 2560, v{t[0]}")
    a(f"v_and_b32 v{t[1]}, 31, v{v_key}")
    a(f"s_cmp_lg_u32 s{S_J}, 0")
    a("s_cbranch_scc1 k1_v")
    a(f"v_lshl_add_u32 v{v_ak}, v{t[1]}, 4, v{t[0]}")
    a(f"v_lshrrev_b32 v{t[2]}, 1, v{g.v_g}")
    a(f"v_lshl_add_u32 v{v_ak}, v{t[2]}, 9, v{v_ak}")
    a(f"v_and_b32 v{t[2]}, 1, v{g.v_g}")
    a(f"v_lshl_add_u32 v{v_ak}, v{t[2]}, 3, v{v_ak}")
    a(f"buffer_store_dwordx2 {vr(k0,2)}, v{v_ak}, {sr(SRD4,4)}, 0 offen")
    a(f"v_lshl_add_u32 v{v_key}, v{t[1]}, 3, v{t[0]}")
    a(f"v_cndmask_b32 v{k1}, 0, v{k1}, vcc")
    a(f"v_cndmask_b32 v{k1+1}, 0, v{k1+1}, vcc")
    a("s_and_saveexec_b64 s[74:75], vcc")
    a(f"buffer_store_dwordx2 {vr(k1,2)}, v{v_key}, {sr(SRD4,4)}, 0 offen offset:1024")
    a("s_mov_b64 exec, -1")
    a(f"v_mov_b32 v{v_n}, 0")
    for c in (k0, k0 + 1, k1, k1 + 1):
        a(f"v_lshlrev_b32 v{t[0]}, 16, v{c}")
        a(f"v_and_b32 v{t[1]}, 0xffff0000, v{c}")
        a(f"v_fma_f32 v{v_n}, v{t[0]}, v{t[0]}, v{v_n}")
        a(f"v_fma_f32 v{v_n}, v{t[1]}, v{t[1]}, v{v_n}")
    swap_add(a, v_n, t[0], 32)
    swap_add(a, v_n, t[0], 16)
    dpp_rowmax(a, v_n)
    a(f"s_lshl_b32 s{S_T0}, s{S_XB}, 2")
    a(f"s_add_u32 s{S_T0}, s{S_T0}, s{S_WAVE}")
    a(f"s_lshl_b32 s{S_T0}, s{S_T0}, 2")
    a(f"v_mov_b32 v{t[0]}, 0")
    a("s_mov_b64 exec, 0x8000")
    a(f"buffer_store_dword v{v_n}, v{t[0]}, {sr(SRD5,4)}, s{S_T0} offen")
    stamp_end(a, 2)
    a("s_endpgm")
    a.label("k1_v")
    a(f"v_bfe_u32 v{t[2]}, v{t[1]}, 4, 1")
    a(f"v_mad_u32_u24 v{v_ak}, v{t[2]}, 640, v{t[0]}" if False else f"v_mul_u32_u24 v{t[2]}, 640, v{t[2]}")
    a(f"v_add_u32 v{v_ak}, v{t[2]}, v{t[0]}")
    a(f"v_bfe_u32 v{t[2]}, v{t[1]}, 2, 1")
    a(f"v_mul_u32_u24 v{t[2]}, 320, v{t[2]}")
    a(f"v_add_u32 v{v_ak}, v{t[2]}, v{v_ak}")
    a(f"v_bfe_u32 v{t[2]}, v{t[1]}, 3, 1")
    a(f"v_lshl_add_u32 v{v_ak}, v{t[2]}, 3, v{v_ak}")
    a(f"v_and_b32 v{t[2]}, 3, v{t[1]}")
    a(f"v_lshl_add_u32 v{v_ak}, v{t[2]}, 1, v{v_ak}")
    a(f"v_lshl_add_u32 v{v_ak}, v{g.v_g}, 6, v{v_ak}")
    for fb, c in enumerate((k0, k1)):
        if fb:
            a("s_and_saveexec_b64 s[74:75], vcc")
        for p in range(2):
            o = 1280 + fb * 256 + p * 32
            a(f"buffer_store_short v{c+p}, v{v_ak}, {sr(SRD4,4)}, 0 offen offset:{o}")
            a(f"buffer_store_short_d16_hi v{c+p}, v{v_ak}, {sr(SRD4,4)}, 0 offen offset:{o+16}")
    stamp_end(a, 2)
    a("s_endpgm")
    maxv = max(maxv, va.n)
    g.loader(S_ROT, cont=lambda lva, lt: a("s_branch k1_cs"))

    kernel_end(a, name, maxv)
    return (name, 256, 512, lds)


def gen_k2(a):
    name = "k2_attn_kernel"
    kernel_begin(a, name)
    a("s_cmp_ge_u32 s2, 256")
    a("s_cbranch_scc1 k2_end")
    load_kernargs(a)
    a(f"s_and_b32 s{S_XB}, s2, 7")
    a(f"s_lshr_b32 s{S_J}, s2, 3")
    a(f"s_lshr_b32 s{S_T2}, s{S_J}, 3")
    a(f"s_lshl_b32 s{S_T1}, s{S_XB}, 2")
    a(f"s_add_u32 s{S_T1}, s{S_T1}, s{S_T2}")
    a(f"s_lshl_b32 s{S_TOK0}, s{S_T1}, 6")
    a(f"s_and_b32 s{S_T0}, s{S_J}, 7")
    a(f"s_mul_i32 s{S_COL}, s{S_T0}, 160")
    va = VAlloc(1)
    t = [va() for _ in range(6)]
    v_kn = va(2, 2)
    v_l16, v_lane, v_n, v_h, v_qa, v_oa = [va() for _ in range(6)]
    v_cur = [va() for _ in range(3)]
    v_nxt = [va() for _ in range(3)]
    Q = [va(8, 4) for _ in range(2)]
    Sb = [[va(16, 4) for _ in range(2)] for _ in range(2)]
    P = [va(8, 4) for _ in range(2)]
    O = [va(16, 4) for _ in range(2)]
    KF = [va(8, 4) for _ in range(2)]
    VF = [va(8, 4) for _ in range(2)]
    v_m = [va(), va()]
    v_ob = va()
    v_cst = va()
    S_STEP, S_CNT, S_GOFF, S_HEAD = 76, 77, 78, 79
    S_VM, S_KM = 4, 6
    TB = 2560
    a(f"v_lshrrev_b32 v{t[0]}, 6, v0")
    a(f"v_and_b32 v{v_lane}, 63, v0")
    a(f"v_readfirstlane_b32 s{S_WAVE}, v{t[0]}")
    a(f"v_lshlrev_b32 v{v_l16}, 4, v{v_lane}")
    a(f"v_and_b32 v{v_n}, 31, v0")
    a(f"v_bfe_u32 v{v_h}, v0, 5, 1")
    a("s_waitcnt lgkmcnt(0)")
    a(f"s_cmp_ge_u32 s{S_WAVE}, 4")
    a("s_cbranch_scc1 k2_helper")
    make_srd(a, SRD0, P_WS, WS_Q, S * D * 2)
    make_srd(a, SRD3, P_WS, WS_KN, 512)
    make_srd(a, SRD4, P_WS, WS_O, S * D * 2)
    a(f"s_mul_i32 s{S_HEAD}, s{S_WAVE}, 40")
    a(f"s_add_u32 s{S_HEAD}, s{S_HEAD}, s{S_COL}")
    a(f"v_add_u32 v{t[1]}, s{S_TOK0}, v{v_n}")
    a(f"v_mul_u32_u24 v{t[1]}, {D*2}, v{t[1]}")
    a(f"v_add_u32 v{v_ob}, s{S_HEAD}, v{t[1]}")
    a(f"v_lshl_add_u32 v{v_qa}, v{v_h}, 4, v{v_ob}")
    a(f"v_lshl_add_u32 v{t[2]}, v{v_h}, 3, s{S_HEAD}")
    a(f"v_lshrrev_b32 v{t[3]}, 4, v{t[2]}")
    a(f"v_and_b32 v{t[2]}, 8, v{t[2]}")
    a(f"v_lshl_add_u32 v{t[2]}, v{t[3]}, 8, v{t[2]}")
    a(f"v_and_b32 v{t[3]}, 15, v{v_n}")
    a(f"v_lshl_add_u32 v{t[2]}, v{t[3]}, 4, v{t[2]}")
    a(f"v_and_b32 v{t[3]}, 16, v{v_n}")
    a(f"v_add_u32 v{t[3]}, s{S_TOK0}, v{t[3]}")
    a(f"v_mul_u32_u24 v{t[3]}, {D*2}, v{t[3]}")
    a(f"v_add_u32 v{v_oa}, v{t[2]}, v{t[3]}")
    a(f"v_lshlrev_b32 v{t[1]}, 3, v{v_lane}")
    a(f"buffer_load_dwordx2 {vr(v_kn,2)}, v{t[1]}, {sr(SRD3,4)}, 0 offen")
    for b in range(2):
        a(f"s_mov_b32 s{S_KW}, {b * 32 * D * 2}")
        a(f"buffer_load_dwordx2 {vr(Q[b],2)}, v{v_qa}, {sr(SRD0,4)}, s{S_KW} offen")
        a(f"buffer_load_dwordx2 {vr(Q[b]+2,2)}, v{v_qa}, {sr(SRD0,4)}, s{S_KW} offen offset:8")
        a(f"buffer_load_dwordx2 {vr(Q[b]+4,2)}, v{v_ob}, {sr(SRD0,4)}, s{S_KW} offen offset:32")
    stamp(a, 0)
    for b in range(2):
        for i in range(16):
            a(f"v_mov_b32 v{O[b]+i}, 0")
        for i in range(8):
            a(f"v_mov_b32 v{VF[b]+i}, 0x3f803f80")
        a(f"v_mov_b32 v{KF[b]+6}, 0x3f80")
        a(f"v_mov_b32 v{KF[b]+7}, 0")
        a(f"v_mov_b32 v{Q[b]+7}, 0")
    for i in range(8):
        a(f"v_mov_b32 v{P[1]+i}, 0")
    for i in range(12, 16):
        a(f"v_mov_b32 v{Sb[1][1]+i}, 0")
    a(f"s_mov_b32 s{S_VM}, 0x000fffff")
    a(f"s_mov_b32 s{S_VM+1}, 0x000fffff")
    a(f"v_mov_b32 v{v_cur[0]}, v{v_l16}")
    a(f"v_lshl_add_u32 v{v_cur[1]}, v{v_n}, 3, 0" if False else f"v_lshlrev_b32 v{v_cur[1]}, 3, v{v_n}")
    a(f"v_add_u32 v{v_cur[1]}, 1024, v{v_cur[1]}")
    a(f"v_mul_u32_u24 v{t[0]}, 320, v{v_h}")
    a(f"v_lshl_add_u32 v{v_cur[2]}, v{v_n}, 4, v{t[0]}")
    a(f"v_add_u32 v{v_cur[2]}, 1280, v{v_cur[2]}")
    for i in range(3):
        a(f"v_add_u32 v{v_nxt[i]}, {8*TB}, v{v_cur[i]}")
    a(f"v_cmp_eq_u32 vcc, 0, v{v_h}")
    a("s_waitcnt vmcnt(6)")
    a(f"v_max_f32 v{v_kn}, v{v_kn}, v{v_kn+1}")
    dpp_rowmax(a, v_kn)
    a("s_nop 1")
    a(f"v_max_f32_dpp v{v_kn}, v{v_kn}, v{v_kn} row_bcast:15 row_mask:0xa bank_mask:0xf")
    a("s_nop 1")
    a(f"v_max_f32_dpp v{v_kn}, v{v_kn}, v{v_kn} row_bcast:31 row_mask:0xc bank_mask:0xf")
    a("s_nop 1")
    a(f"v_readlane_b32 s{S_KM}, v{v_kn}, 63")
    a("s_waitcnt vmcnt(0)")
    stamp(a, 1)
    for b in range(2):
        a(f"v_cndmask_b32 v{Q[b]+4}, 0, v{Q[b]+4}, vcc")
        a(f"v_cndmask_b32 v{Q[b]+5}, 0, v{Q[b]+5}, vcc")
    for i in range(6):
        for b in range(2):
            a(f"v_dot2_f32_bf16 v{t[2+b]}, v{Q[b]+i}, v{Q[b]+i}, " + ("0" if i == 0 else f"v{t[2+b]}"))
    a("s_nop 2")
    for b in range(2):
        a(f"v_mov_b32 v{t[b]}, v{t[2+b]}")
    a("s_nop 1")
    for b in range(2):
        a(f"v_permlane32_swap_b32 v{t[b]}, v{t[2+b]}")
    a("s_nop 1")
    for b in range(2):
        a(f"v_add_f32 v{t[b]}, v{t[b]}, v{t[2+b]}")
    for b in range(2):
        a(f"v_mul_f32 v{t[b]}, s{S_KM}, v{t[b]}")
    for b in range(2):
        a(f"v_sqrt_f32 v{t[b]}, v{t[b]}")
    a("s_nop 0")
    for b in range(2):
        a(f"v_cvt_pk_bf16_f32 v{t[b]}, -v{t[b]}, 0")
    for b in range(2):
        a(f"v_cndmask_b32 v{Q[b]+6}, 0, v{t[b]}, vcc")
    a("s_barrier")

    def kread(dst, regs, tile):
        return [f"ds_read_b128 {vr(dst,4)}, v{regs[0]} offset:{tile*TB}",
                f"ds_read_b64 {vr(dst+4,2)}, v{regs[1]} offset:{tile*TB}"]

    def vread(dst, regs, tile):
        return [f"s_mov_b64 exec, {sr(S_VM,2)}",
                f"ds_read_b128 {vr(dst,4)}, v{regs[2]} offset:{tile*TB}",
                f"ds_read_b128 {vr(dst+4,4)}, v{regs[2]} offset:{tile*TB+640}",
                "s_mov_b64 exec, -1"]

    for l in kread(KF[0], v_cur, 0) + kread(KF[1], v_cur, 1) + vread(VF[0], v_cur, 0):
        a(l)
    a("s_waitcnt lgkmcnt(0)")

    def qk(b, par, s, kf):
        d = vr(Sb[b][par], 16)
        c = "0" if s == 0 else d
        return f"v_mfma_f32_32x32x16_bf16 {d}, {vr(kf+4*s,4)}, {vr(Q[b]+4*s,4)}, {c}"

    def pv(b, s, vf):
        d = vr(O[b], 16)
        return f"v_mfma_f32_32x32x16_bf16 {d}, {vr(vf+4*s,4)}, {vr(P[b]+4*s,4)}, {d}"

    for b in range(2):
        a(qk(b, 0, 0, KF[0]))
        a(qk(b, 0, 1, KF[0]))
    a("s_nop 7")
    a("s_nop 7")
    a(f"s_mov_b32 s{S_CNT}, 8")
    stamp(a, 2)
    a.label("k2_loop")

    def exps(b, par, i0):
        return [f"v_exp_f32 v{Sb[b][par]+i}, v{Sb[b][par]+i}" for i in range(i0, i0 + 4)]

    def cvts(b, par, i0):
        return [f"v_cvt_pk_bf16_f32 v{P[b]+(i0+i)//2}, v{Sb[b][par]+i0+i}, v{Sb[b][par]+i0+i+1}" for i in (0, 2)]

    for ph in range(8):
        p = ph & 1
        q = p ^ 1
        kt, vt = ph + 2, ph + 1
        kr = kread(KF[p], v_cur if kt < 8 else v_nxt, kt % 8)
        vrd = vread(VF[q], v_cur if vt < 8 else v_nxt, vt % 8)
        M = [qk(0, q, 0, KF[q]), pv(1, 1, VF[q]), qk(0, q, 1, KF[q]), pv(0, 0, VF[p]),
             qk(1, q, 0, KF[q]), pv(0, 1, VF[p]), qk(1, q, 1, KF[q]), pv(1, 0, VF[p])]
        V = [cvts(1, q, 12) + exps(0, p, 0),
             exps(0, p, 4),
             cvts(0, p, 0) + cvts(0, p, 4) + exps(0, p, 8),
             cvts(0, p, 8) + exps(0, p, 12),
             cvts(0, p, 12) + exps(1, p, 0),
             exps(1, p, 4),
             cvts(1, p, 0) + cvts(1, p, 4) + exps(1, p, 8),
             cvts(1, p, 8) + exps(1, p, 12)]
        extra = [[] for _ in range(8)]
        if ph == 2:
            a(f"s_cmp_lg_u32 s{S_CNT}, 8")
            a("s_cbranch_scc1 k2_nb1")
            a("s_barrier")
            a.label("k2_nb1")
        a("s_waitcnt lgkmcnt(0)")
        extra[0] += kr
        extra[2] += vrd
        for i in range(8):
            a(M[i])
            for l in extra[i]:
                a(l)
            for l in V[i]:
                a(l)
    if INSTR:
        a("s_memtime s[98:99]")
        a("s_waitcnt lgkmcnt(0)")
        a("s_sub_u32 s98, s98, s80")
        a(f"s_mov_b32 m0, s{S_CNT}")
        a("s_nop 0")
        a(f"v_writelane_b32 v{v_cst}, s98, m0")
    a(f"s_cmp_eq_u32 s{S_CNT}, 2")
    a(f"s_cselect_b32 s{S_STEP}, 0, {8*TB}")
    for i in range(3):
        a(f"v_mov_b32 v{v_cur[i]}, v{v_nxt[i]}")
        a(f"v_add_u32 v{v_nxt[i]}, s{S_STEP}, v{v_nxt[i]}")
    a(f"s_bitcmp0_b32 0x140, s{S_CNT}")
    a("s_cbranch_scc1 k2_nb")
    a("s_barrier")
    a.label("k2_nb")
    a(f"s_sub_u32 s{S_CNT}, s{S_CNT}, 1")
    a(f"s_cmp_lg_u32 s{S_CNT}, 0")
    a("s_cbranch_scc1 k2_loop")
    for l in cvts(1, 1, 12):
        a(l)
    a("s_nop 1")
    a(pv(1, 1, VF[1]))
    a("s_waitcnt vmcnt(0) lgkmcnt(0)")
    a("s_nop 7")
    a("s_nop 7")
    stamp(a, 3)
    a(f"v_mov_b32 v{t[0]}, {f32(2.0**-40)}")
    a(f"v_cmp_nge_f32 s[74:75], v{O[0]+12}, v{t[0]}")
    a(f"v_cmp_nge_f32 vcc, v{O[1]+12}, v{t[0]}")
    a("s_nop 3")
    a("s_or_b64 vcc, vcc, s[74:75]")
    a("s_cbranch_vccnz k2_slow")
    a.label("k2_epi")
    for b in range(2):
        a(f"v_rcp_f32 v{t[0]}, v{O[b]+12}")
        a("s_nop 0")
        for i in range(12):
            a(f"v_mul_f32 v{O[b]+i}, v{O[b]+i}, v{t[0]}")
        for i in range(6):
            a(f"v_cvt_pk_bf16_f32 v{O[b]+i}, v{O[b]+2*i}, v{O[b]+2*i+1}")
        a(f"s_mov_b32 s{S_KW}, {b*32*D*2}")
        a(f"buffer_store_dwordx2 {vr(O[b],2)}, v{v_oa}, {sr(SRD4,4)}, s{S_KW} offen")
        a(f"buffer_store_dwordx2 {vr(O[b]+2,2)}, v{v_oa}, {sr(SRD4,4)}, s{S_KW} offen offset:256")
    a(f"v_cmp_eq_u32 vcc, 0, v{v_h}")
    a("s_nop 3")
    a("s_and_saveexec_b64 s[74:75], vcc")
    for b in range(2):
        a(f"s_mov_b32 s{S_KW}, {b*32*D*2}")
        a(f"buffer_store_dwordx2 {vr(O[b]+4,2)}, v{v_oa}, {sr(SRD4,4)}, s{S_KW} offen offset:512")
    if INSTR:
        lab = a.newlabel("hs")
        a("s_mov_b64 exec, -1")
        a(f"s_cmp_lg_u32 s2, {INSTR_WG}")
        a(f"s_cbranch_scc1 {lab}")
        a(f"s_cmp_lg_u32 s{S_WAVE}, 0")
        a(f"s_cbranch_scc1 {lab}")
        make_srd(a, 92, P_DBG, 0, 256)
        a(f"v_lshlrev_b32 v{t[0]}, 2, v{v_lane}")
        a(f"buffer_store_dword v{v_cst}, v{t[0]}, s[92:95], 0 offen offset:192")
        a.label(lab)
    stamp_end(a, 4)
    a.label("k2_end")
    a("s_endpgm")

    def rewind():
        for i in range(3):
            a(f"v_subrev_u32 v{v_nxt[i]}, {56*TB}, v{v_cur[i]}")
        a(f"s_mov_b32 s{S_GOFF}, 0")

    def advance(lab):
        for i in range(3):
            a(f"v_add_u32 v{v_nxt[i]}, {TB}, v{v_nxt[i]}")
        a(f"s_add_u32 s{S_GOFF}, s{S_GOFF}, 1")
        a(f"s_cmp_lt_u32 s{S_GOFF}, 64")
        a(f"s_cbranch_scc1 {lab}")

    a.label("k2_slow")
    for b in range(2):
        a(f"v_mov_b32 v{Q[b]+6}, 0")
        a(f"v_mov_b32 v{v_m[b]}, 0xff800000")
    rewind()
    a.label("k2_slow1")
    for l in kread(KF[0], v_nxt, 0):
        a(l)
    a("s_waitcnt lgkmcnt(0)")
    for b in range(2):
        a(qk(b, 0, 0, KF[0]))
        a(qk(b, 0, 1, KF[0]))
    a("s_nop 7")
    a("s_nop 7")
    for b in range(2):
        for i in range(0, 16, 2):
            a(f"v_max3_f32 v{v_m[b]}, v{Sb[b][0]+i}, v{Sb[b][0]+i+1}, v{v_m[b]}")
    advance("k2_slow1")
    a(f"v_cmp_eq_u32 vcc, 0, v{v_h}")
    for b in range(2):
        xlane_add(a, v_m[b], v_lane, t[0], t[1], (32,), op="v_max_f32")
        a(f"v_cvt_pk_bf16_f32 v{t[2]}, -v{v_m[b]}, 0")
        a(f"v_cndmask_b32 v{Q[b]+6}, 0, v{t[2]}, vcc")
        for i in range(16):
            a(f"v_mov_b32 v{O[b]+i}, 0")
    rewind()
    a.label("k2_slow2")
    for l in kread(KF[0], v_nxt, 0) + vread(VF[0], v_nxt, 0):
        a(l)
    a("s_waitcnt lgkmcnt(0)")
    for b in range(2):
        a(qk(b, 0, 0, KF[0]))
        a(qk(b, 0, 1, KF[0]))
    a("s_nop 7")
    a("s_nop 7")
    for b in range(2):
        for i0 in range(0, 16, 4):
            for l in exps(b, 0, i0):
                a(l)
        a("s_nop 0")
        for i0 in range(0, 16, 4):
            for l in cvts(b, 0, i0):
                a(l)
    a("s_nop 1")
    for b in range(2):
        a(pv(b, 0, VF[0]))
        a(pv(b, 1, VF[0]))
    a("s_nop 7")
    a("s_nop 7")
    advance("k2_slow2")
    a("s_branch k2_epi")

    a.label("k2_helper")
    hva = VAlloc(v_h + 1)
    lt = t
    v_l = v_lane
    S_U, S_SRC, S_DST, S_RW = S_T0, S_T1, S_KW, S_ROT
    make_srd(a, SRD1, P_WS, WS_KV, KV_SZ)
    a(f"s_and_b32 s{S_WOFF}, s{S_WAVE}, 3")
    a(f"s_lshl_b32 s{S_RW}, s2, 2")
    a(f"s_add_u32 s{S_RW}, s{S_RW}, s{S_WOFF}")
    a(f"s_lshl_b32 s{S_T2}, s{S_J}, 2")
    a(f"s_add_u32 s{S_J}, s{S_T2}, s{S_WOFF}")
    a(f"s_lshl_b32 s{S_KX}, s{S_WOFF}, 10")
    def dma(n):
        for i in range(n):
            a(f"s_mov_b32 m0, s{S_KX}")
            a("s_nop 0")
            a(f"buffer_load_dwordx4 v{v_l16}, {sr(SRD1,4)}, s{S_KX} offen lds")
            a(f"s_add_u32 s{S_KX}, s{S_KX}, 4096")
    dma(10)
    make_srd(a, SRD3, P_WS, WS_IMG, IMG_SZ)
    a(f"s_mov_b32 s{SRD0+3}, 0x00020000")
    a("s_waitcnt vmcnt(7)")
    a("s_barrier")
    a("s_waitcnt vmcnt(3)")
    a("s_barrier")
    dma(14)
    a("s_waitcnt vmcnt(4)")
    a("s_barrier")
    dma(16)
    pa = [hva() for _ in range(5)]
    pb = [hva() for _ in range(3)]
    v_rb, dummy = hva(), hva()

    def touch():
        a(f"v_lshlrev_b32 v{v_rb}, 7, v{v_l}")
        for c in range(3):
            if c == 0:
                a(f"s_mul_i32 s{S_T1}, s{S_J}, {50*128}")
            else:
                a(f"s_mul_i32 s{S_T1}, s{S_J}, {120*128}")
                a(f"s_and_b32 s{S_T0}, s{S_XB}, 1")
                a(f"s_mul_i32 s{S_T0}, s{S_T0}, {1966080}")
                a(f"s_add_u32 s{S_T1}, s{S_T1}, s{S_T0}")
                a(f"s_add_u32 s{S_T1}, s{S_T1}, {IMG_GU + (c-1)*56*128}")
            a(f"buffer_load_dword v{dummy}, v{v_rb}, {sr(SRD3,4)}, s{S_T1} offen")
            if c < 2:
                a(f"s_sleep {TSLEEP2}")

    def gather(regs, cprw, magic, stride):
        for i, r in enumerate(regs):
            a(f"v_add_u32 v{lt[0]}, {i*64}, v{v_l}")
            a(f"v_mul_u32_u24 v{lt[1]}, {magic}, v{lt[0]}")
            a(f"v_lshrrev_b32 v{lt[1]}, 19, v{lt[1]}")
            a(f"v_mul_u32_u24 v{lt[2]}, {cprw}, v{lt[1]}")
            a(f"v_sub_u32 v{lt[2]}, v{lt[0]}, v{lt[2]}")
            a(f"v_and_b32 v{lt[3]}, 0xfffffff3, v{lt[1]}")
            a(f"v_bfe_u32 v{lt[4]}, v{lt[1]}, 2, 1")
            if cprw == 12:
                a(f"v_lshlrev_b32 v{lt[5]}, 1, v{lt[4]}")
                a(f"v_xor_b32 v{lt[2]}, v{lt[2]}, v{lt[5]}")
            a(f"v_lshl_or_b32 v{lt[3]}, v{lt[4]}, 3, v{lt[3]}")
            a(f"v_bfe_u32 v{lt[4]}, v{lt[1]}, 3, 1")
            a(f"v_lshl_or_b32 v{lt[3]}, v{lt[4]}, 2, v{lt[3]}")
            a(f"v_mul_u32_u24 v{lt[3]}, {stride}, v{lt[3]}")
            a(f"v_lshl_add_u32 v{r}, v{lt[2]}, 4, v{lt[3]}")

    bufB = [hva(12, 4) for _ in range(2)]
    bufA = hva(20, 4)

    def loadsB(buf):
        a(f"s_mul_i32 s{S_SRC}, s{S_U}, 52429")
        a(f"s_lshr_b32 s{S_SRC}, s{S_SRC}, 22")
        a(f"s_mul_i32 s{S_DST}, s{S_SRC}, 80")
        a(f"s_sub_u32 s{S_T2}, s{S_U}, s{S_DST}")
        a(f"s_mul_i32 s{S_SRC}, s{S_SRC}, 192")
        a(f"s_lshr_b32 s{S_DST}, s{S_T2}, 3")
        a(f"s_lshl_b32 s{S_DST}, s{S_DST}, 2")
        a(f"s_and_b32 s{S_KX}, s{S_T2}, 3")
        a(f"s_add_u32 s{S_DST}, s{S_DST}, s{S_KX}")
        a(f"s_mul_i32 s{S_DST}, s{S_DST}, {16*F*2}")
        a(f"s_add_u32 s{S_SRC}, s{S_SRC}, s{S_DST}")
        a(f"s_bitcmp1_b32 s{S_T2}, 2")
        a(f"s_cselect_b32 s{SRD0}, s{P_WU}, s{P_WG}")
        a(f"s_cselect_b32 s{SRD0+1}, s{P_WU+1}, s{P_WG+1}")
        a(f"s_mov_b32 s{SRD0+2}, {F*D*2}")
        for i in range(3):
            a(f"buffer_load_dwordx4 {vr(buf+4*i,4)}, v{pb[i]}, {sr(SRD0,4)}, s{S_SRC} offen")

    def storesB(buf):
        a(f"s_mul_i32 s{S_DST}, s{S_U}, 3072")
        a(f"s_add_u32 s{S_DST}, s{S_DST}, {IMG_GU}")
        for i in range(3):
            a(f"buffer_store_dwordx4 {vr(buf+4*i,4)}, v{v_l16}, {sr(SRD3,4)}, s{S_DST} offen offset:{i*1024} {IMGPOL}")

    if TEARLY:
        touch()
    gather(pb, 12, 43691, F * 2)
    gather(pa, 10, 52429, D * 2)
    a("s_waitcnt vmcnt(0)")
    a(f"s_mov_b32 s{S_U}, s{S_RW}")
    loadsB(bufB[0])
    a(f"s_cmp_lt_u32 s{S_RW}, 544")
    a("s_cbranch_scc1 k2_rpa")
    a(f"s_add_u32 s{S_U}, s{S_RW}, {1024 - 544}")
    a(f"s_cmp_ge_u32 s{S_U}, 1280")
    a("s_cbranch_scc0 k2_rpb")
    a("s_barrier")
    a("s_branch k2_rpe")
    a.label("k2_rpb")
    loadsB(bufB[1])
    a("s_barrier")
    a("s_waitcnt vmcnt(0)")
    storesB(bufB[1])
    a("s_branch k2_rpe")
    a.label("k2_rpa")
    l1, l2 = a.newlabel("ra"), a.newlabel("ra")
    a(f"s_cmp_ge_u32 s{S_RW}, 160")
    a(f"s_cbranch_scc1 {l1}")
    a(f"s_mul_i32 s{S_SRC}, s{S_RW}, 3277")
    a(f"s_lshr_b32 s{S_SRC}, s{S_SRC}, 16")
    a(f"s_mul_i32 s{S_DST}, s{S_SRC}, 20")
    a(f"s_sub_u32 s{S_DST}, s{S_RW}, s{S_DST}")
    a(f"s_mov_b32 s{SRD0}, s{P_WO}")
    a(f"s_mov_b32 s{SRD0+1}, s{P_WO+1}")
    a(f"s_mov_b32 s{SRD0+2}, {D*D*2}")
    a(f"s_branch {l2}")
    a.label(l1)
    a(f"s_sub_u32 s{S_U}, s{S_RW}, 160")
    a(f"s_mul_i32 s{S_SRC}, s{S_U}, 1366")
    a(f"s_lshr_b32 s{S_SRC}, s{S_SRC}, 16")
    a(f"s_mul_i32 s{S_DST}, s{S_SRC}, 48")
    a(f"s_sub_u32 s{S_DST}, s{S_U}, s{S_DST}")
    a(f"s_mov_b32 s{SRD0}, s{P_WD}")
    a(f"s_mov_b32 s{SRD0+1}, s{P_WD+1}")
    a(f"s_mov_b32 s{SRD0+2}, {F*D*2}")
    a.label(l2)
    a(f"s_mul_i32 s{S_SRC}, s{S_SRC}, 160")
    a(f"s_mul_i32 s{S_DST}, s{S_DST}, {32*D*2}")
    a(f"s_add_u32 s{S_SRC}, s{S_SRC}, s{S_DST}")
    for i in range(5):
        a(f"buffer_load_dwordx4 {vr(bufA+4*i,4)}, v{pa[i]}, {sr(SRD0,4)}, s{S_SRC} offen")
    a(f"s_mul_i32 s{S_DST}, s{S_RW}, 5120")
    a("s_barrier")
    a("s_waitcnt vmcnt(0)")
    for i in range(5):
        if i == 4:
            a(f"s_add_u32 s{S_DST}, s{S_DST}, 4096")
        a(f"buffer_store_dwordx4 {vr(bufA+4*i,4)}, v{v_l16}, {sr(SRD3,4)}, s{S_DST} offen offset:{(i%4)*1024} {IMGPOL}")
    a.label("k2_rpe")
    a("s_waitcnt vmcnt(0)")
    a(f"s_mov_b32 s{S_U}, s{S_RW}")
    storesB(bufB[0])
    if INSTR:
        a("s_waitcnt vmcnt(0)")
        a("s_memrealtime s[100:101]")
        a("s_waitcnt lgkmcnt(0)")
        lab = a.newlabel("hw")
        a(f"s_cmp_lg_u32 s{S_WAVE}, 4")
        a(f"s_cbranch_scc1 {lab}")
        make_srd(a, 40, P_WS, WS_TL + 4096 + 2048, 2048)
        a("v_mov_b32 v2, s82")
        a("v_mov_b32 v3, s100")
        a("s_lshl_b32 s98, s2, 3")
        a("v_mov_b32 v1, s98")
        a("buffer_store_dwordx2 v[2:3], v1, s[40:43], 0 offen")
        a.label(lab)
    for n in TSLEEP:
        a(f"s_sleep {n}")
    if not TEARLY:
        touch()
    a("s_endpgm")

    kernel_end(a, name, max(va.n, hva.n))
    return (name, 256, 512, KV_SZ)

TSLEEP = [int(x) for x in os.environ.get("TSLEEP", "127").split(",") if x]
TSLEEP2 = int(os.environ.get("TSLEEP2", "16"))
TEARLY = bool(os.environ.get("TEARLY"))


SRDC = 8
XCH = 0
TAB = 156 * 1024
HPOL = os.environ.get("HPOL", "sc1")


def map_proj(a, which):
    a(f"s_and_b32 s{S_T1}, s2, 7")
    a(f"s_lshr_b32 s{S_T0}, s2, 3")
    a(f"s_mov_b32 s{S_J}, s{S_T0}")
    a(f"s_mov_b32 s{S_XB}, s{S_T1}")
    if which == 3:
        a(f"s_mul_i32 s{S_ROT}, s{S_T0}, 52")
        a(f"s_lshr_b32 s{S_ROT}, s{S_ROT}, 8")
        a(f"s_mul_i32 s{S_ROT}, s{S_ROT}, 5")
        a(f"s_sub_u32 s{S_ROT}, s{S_T0}, s{S_ROT}")
        a(f"s_lshr_b32 s{S_T2}, s{S_T0}, 3")
        a(f"s_lshl_b32 s{S_T1}, s{S_T1}, 2")
        a(f"s_add_u32 s{S_T1}, s{S_T1}, s{S_T2}")
        a(f"s_lshl_b32 s{S_TOK0}, s{S_T1}, 6")
        a(f"s_and_b32 s{S_T0}, s{S_T0}, 7")
    else:
        a(f"s_and_b32 s{S_ROT}, s{S_T1}, 1")
        a(f"s_mul_i32 s{S_ROT}, s{S_ROT}, 6")
        a(f"s_and_b32 s{S_T2}, s{S_T0}, 1")
        a(f"s_add_u32 s{S_ROT}, s{S_ROT}, s{S_T2}")
        a(f"s_lshr_b32 s{S_T2}, s{S_T1}, 1")
        a(f"s_lshl_b32 s{S_T2}, s{S_T2}, 3")
        a(f"s_and_b32 s{S_TOK0}, s{S_T0}, 7")
        a(f"s_add_u32 s{S_TOK0}, s{S_TOK0}, s{S_T2}")
        a(f"s_lshl_b32 s{S_TOK0}, s{S_TOK0}, 6")
        a(f"s_and_b32 s{S_T1}, s{S_T1}, 1")
        a(f"s_lshl_b32 s{S_T1}, s{S_T1}, 2")
        a(f"s_lshr_b32 s{S_T0}, s{S_T0}, 3")
        a(f"s_add_u32 s{S_T0}, s{S_T0}, s{S_T1}")
    a(f"s_mul_i32 s{S_COL}, s{S_T0}, 160")


def srd_proj(a, which):
    if which == 3:
        make_srd(a, SRD0, P_WS, WS_O, S * D * 2)
        make_srd(a, SRD1, P_WS, WS_IMG, IMG_SZ)
        a(f"s_mul_i32 s{S_IMG}, s{S_T0}, {5*20480}")
        make_srd(a, SRD2, P_WS, WS_H, S * D * 2)
        make_srd(a, SRD3, P_X, 0, S * D * 2)
        make_srd(a, SRD4, P_WS, WS_ST, S * 64)
    else:
        make_srd(a, SRD0, P_WS, WS_ACT, S * F * 2)
        make_srd(a, SRD1, P_WS, WS_IMG, IMG_SZ)
        a(f"s_mul_i32 s{S_IMG}, s{S_T0}, {12*20480}")
        make_srd(a, SRD2, P_OUT, 0, S * D * 2)
        make_srd(a, SRD3, P_WS, WS_H, S * D * 2)


def map_k4(a):
    a(f"s_and_b32 s{S_XB}, s2, 7")
    a(f"s_lshr_b32 s{S_J}, s2, 3")
    a(f"s_mul_i32 s{S_ROT}, s{S_J}, 26")
    a(f"s_lshr_b32 s{S_ROT}, s{S_ROT}, 8")
    a(f"s_mul_i32 s{S_ROT}, s{S_ROT}, 10")
    a(f"s_sub_u32 s{S_ROT}, s{S_J}, s{S_ROT}")
    a(f"s_lshr_b32 s{S_T2}, s{S_XB}, 1")
    a(f"s_lshl_b32 s{S_T2}, s{S_T2}, 2")
    a(f"s_and_b32 s{S_TOK0}, s{S_J}, 3")
    a(f"s_add_u32 s{S_TOK0}, s{S_TOK0}, s{S_T2}")
    a(f"s_lshl_b32 s{S_TOK0}, s{S_TOK0}, 7")
    a(f"s_lshr_b32 s{S_T2}, s{S_J}, 2")
    a(f"s_and_b32 s{S_T1}, s{S_XB}, 1")
    a(f"s_lshl_b32 s{S_T1}, s{S_T1}, 3")
    a(f"s_add_u32 s{S_T0}, s{S_T2}, s{S_T1}")
    a(f"s_mul_i32 s{S_COL}, s{S_T0}, 192")
    a(f"s_mul_i32 s{S_IMG}, s{S_T0}, {10*24576}")
    make_srd(a, SRD0, P_WS, WS_H, S * D * 2)
    make_srd(a, SRD1, P_WS, WS_IMG, IMG_SZ)
    make_srd(a, SRD3, P_WS, WS_ACT, S * F * 2)


def publish(a, t, ph):
    lab = a.newlabel("pub")
    a("s_mov_b64 exec, 1")
    a(f"v_mov_b32 v{t[0]}, {TAB + 3072 + 4*ph}")
    a(f"v_mov_b32 v{t[1]}, 1")
    a(f"s_lshr_b32 s{S_T1}, s{S_TOK0}, 7")
    a(f"s_lshl_b32 s{S_T1}, s{S_T1}, 8")
    a(f"s_add_u32 s{S_T1}, s{S_T1}, {ph*4096}")
    a("s_waitcnt vmcnt(0)")
    a(f"ds_add_rtn_u32 v{t[2]}, v{t[0]}, v{t[1]}")
    a(f"v_mov_b32 v{t[0]}, 0")
    a("s_waitcnt lgkmcnt(0)")
    a(f"v_readfirstlane_b32 s{S_T2}, v{t[2]}")
    a("s_nop 3")
    a(f"s_cmp_lg_u32 s{S_T2}, 3")
    a(f"s_cbranch_scc1 {lab}")
    a(f"buffer_atomic_add v{t[1]}, v{t[0]}, {sr(SRDC,4)}, s{S_T1} offen sc1")
    a.label(lab)
    a("s_mov_b64 exec, -1")


def await_block(a, t, ph):
    l0, l1 = a.newlabel("aw"), a.newlabel("aw")
    a(f"s_cmp_lg_u32 s{S_WAVE}, 0")
    a(f"s_cbranch_scc1 {l1}")
    a("s_mov_b64 exec, 1")
    a(f"v_mov_b32 v{t[0]}, 0")
    a(f"s_lshr_b32 s{S_T1}, s{S_TOK0}, 7")
    a(f"s_lshl_b32 s{S_T1}, s{S_T1}, 8")
    a(f"s_add_u32 s{S_T1}, s{S_T1}, {ph*4096}")
    a(f"s_mov_b32 s{S_KX}, 0x20000")
    a.label(l0)
    a(f"buffer_load_dword v{t[1]}, v{t[0]}, {sr(SRDC,4)}, s{S_T1} offen sc1")
    a(f"s_sub_u32 s{S_KX}, s{S_KX}, 1")
    a("s_waitcnt vmcnt(0)")
    a(f"v_readfirstlane_b32 s{S_T2}, v{t[1]}")
    a(f"s_cmp_eq_u32 s{S_KX}, 0")
    a(f"s_cselect_b32 s{S_KW}, 16, 0")
    a(f"s_max_u32 s{S_T2}, s{S_T2}, s{S_KW}")
    a(f"s_cmp_lt_u32 s{S_T2}, 16")
    a(f"s_cbranch_scc1 {l0}")
    a("s_mov_b64 exec, -1")
    a.label(l1)
    a("s_barrier")


def proj_gemm(a, va, which):
    seg = Seg(SRD1, D * 2, 80, 'p160', S_COL, img=(S_IMG, 20480, IMG_WO if which == 3 else IMG_WD))
    K = D if which == 3 else F
    return Gemm(a, va, 64, 2, 2, 1, [seg], 128, 4, K, SRD0, K * 2, S_TOK0, sregs=GS, tag=f"k{which}", xcm=True,
                lds_base=0 if which == 3 else 8192)


def proj_compute(a, va, g, which, sb):
    g.setup()
    t = g.tmp
    v_ad, v_tok, v_a4, v_c8, v_c4 = va(), va(), va(), va(), va()
    res = va(10, 2)
    a(f"v_lshl_add_u32 v{v_tok}, v{g.v_wt}, 1, v{g.v_wo}")
    a(f"v_lshl_add_u32 v{v_tok}, v{v_tok}, 4, v{g.v_i16}")
    a(f"v_add_u32 v{v_tok}, s{S_TOK0}, v{v_tok}")
    a(f"v_mul_u32_u24 v{t[0]}, {D*2}, v{v_tok}")
    a(f"v_add_u32 v{t[0]}, s{S_COL}, v{t[0]}")
    a(f"v_lshl_add_u32 v{v_ad}, v{g.v_g}, 3, v{t[0]}")
    a(f"v_and_b32 v{t[1]}, 1, v{g.v_g}")
    a(f"v_lshl_add_u32 v{v_a4}, v{t[1]}, 5, v{t[0]}")
    a(f"v_lshrrev_b32 v{t[1]}, 1, v{g.v_g}")
    a(f"v_lshl_add_u32 v{v_a4}, v{t[1]}, 4, v{v_a4}")
    a(f"v_and_b32 v{t[0]}, 0xfff0, v{v_tok}")
    a(f"v_mul_u32_u24 v{t[0]}, {D*2}, v{t[0]}")
    a(f"v_lshl_add_u32 v{t[0]}, v{g.v_i16}, 4, v{t[0]}")
    a(f"s_lshl_b32 s{S_T1}, s{S_COL}, 4")
    a(f"v_add_u32 v{t[0]}, s{S_T1}, v{t[0]}")
    a(f"v_lshl_add_u32 v{t[0]}, v{t[1]}, 8, v{t[0]}")
    a(f"v_and_b32 v{t[1]}, 1, v{g.v_g}")
    a(f"v_lshl_add_u32 v{v_c8}, v{t[1]}, 3, v{t[0]}")
    a(f"v_lshl_add_u32 v{v_c4}, v{t[1]}, 9, v{t[0]}")
    if which == 5:
        await_block(a, t, 1)
    for fb in range(5):
        if which == 3:
            a(f"buffer_load_dwordx2 {vr(res+2*fb,2)}, v{v_ad}, {sr(SRD3,4)}, 0 offen offset:{fb*32}")
        else:
            a(f"buffer_load_dwordx2 {vr(res+2*fb,2)}, v{v_c8}, {sr(SRD3,4)}, 0 offen offset:{fb*512} {HPOL}")
    stamp(a, sb)
    g.mainloop()
    stamp(a, sb + 1)
    a("s_nop 7")
    skip = a.newlabel("xs")
    a(f"s_cmp_lt_u32 s{S_WAVE}, 2")
    a(f"s_cbranch_scc1 {skip}")
    for fb in range(5):
        for r in range(4):
            a(f"v_swap_b32 v{g.acc[0][fb]+r}, v{g.acc[1][fb]+r}")
    a.label(skip)
    a(f"v_mul_u32_u24 v{t[0]}, 5120, v{g.v_wave}")
    a(f"v_lshl_add_u32 v{t[0]}, v{g.v_lane}, 4, v{t[0]}")
    a(f"v_add_u32 v{t[0]}, {XCH}, v{t[0]}")
    a(f"v_xor_b32 v{t[1]}, 2, v{g.v_wave}")
    a(f"v_mul_u32_u24 v{t[1]}, 5120, v{t[1]}")
    a(f"v_lshl_add_u32 v{t[1]}, v{g.v_lane}, 4, v{t[1]}")
    a(f"v_add_u32 v{t[1]}, {XCH}, v{t[1]}")
    for fb in range(5):
        a(f"ds_write_b128 v{t[0]}, {vr(g.acc[1][fb],4)} offset:{fb*1024}")
    a("s_waitcnt lgkmcnt(0)")
    a("s_barrier")
    for fb in range(5):
        a(f"ds_read_b128 {vr(g.acc[1][fb],4)}, v{t[1]} offset:{fb*1024}")
    v_s = va(2, 2)
    v_q = v_s + 1
    if which == 3:
        a(f"v_mov_b32 v{v_s}, 0")
        a(f"v_mov_b32 v{v_q}, 0")
    pol = HPOL if which == 3 else ""
    for fb in range(5):
        a(f"s_waitcnt lgkmcnt({4-fb})")
        c, o = g.acc[0][fb], g.acc[1][fb]
        dst = o if fb % 2 == 0 else g.acc[1][fb - 1] + 2
        for p in range(2):
            a(f"v_lshlrev_b32 v{t[0]}, 16, v{res+2*fb+p}")
            a(f"v_and_b32 v{t[1]}, 0xffff0000, v{res+2*fb+p}")
            a(f"v_add_f32 v{c+2*p}, v{c+2*p}, v{o+2*p}")
            a(f"v_add_f32 v{c+2*p+1}, v{c+2*p+1}, v{o+2*p+1}")
            a(f"v_cvt_pk_bf16_f32 v{t[2]}, v{c+2*p}, v{c+2*p+1}")
            a(f"v_lshlrev_b32 v{t[3]}, 16, v{t[2]}")
            a(f"v_and_b32 v{t[2]}, 0xffff0000, v{t[2]}")
            a(f"v_add_f32 v{t[0]}, v{t[0]}, v{t[3]}")
            a(f"v_add_f32 v{t[1]}, v{t[1]}, v{t[2]}")
            a(f"v_cvt_pk_bf16_f32 v{dst+p}, v{t[0]}, v{t[1]}")
            if which == 3:
                a(f"v_lshlrev_b32 v{t[0]}, 16, v{dst+p}")
                a(f"v_and_b32 v{t[1]}, 0xffff0000, v{dst+p}")
                a(f"v_add_f32 v{v_s}, v{v_s}, v{t[0]}")
                a(f"v_fma_f32 v{v_q}, v{t[0]}, v{t[0]}, v{v_q}")
                a(f"v_add_f32 v{v_s}, v{v_s}, v{t[1]}")
                a(f"v_fma_f32 v{v_q}, v{t[1]}, v{t[1]}, v{v_q}")
        if fb % 2 == 1:
            q = g.acc[1][fb - 1]
            a("s_nop 1")
            a(f"v_permlane16_swap_b32 v{q}, v{q+2}")
            a(f"v_permlane16_swap_b32 v{q+1}, v{q+3}")
            if which == 3:
                a(f"buffer_store_dwordx4 {vr(q,4)}, v{v_c4}, {sr(SRD2,4)}, 0 offen offset:{(fb-1)*512} {pol}")
            else:
                a(f"buffer_store_dwordx4 {vr(q,4)}, v{v_a4}, {sr(SRD2,4)}, 0 offen offset:{(fb-1)*32}")
        elif fb == 4:
            if which == 3:
                a(f"buffer_store_dwordx2 {vr(o,2)}, v{v_c8}, {sr(SRD2,4)}, 0 offen offset:{fb*512} {pol}")
            else:
                a(f"buffer_store_dwordx2 {vr(o,2)}, v{v_ad}, {sr(SRD2,4)}, 0 offen offset:{fb*32}")
    if which == 3:
        for w in (32, 16):
            a(f"v_mov_b32 v{t[0]}, v{v_s}")
            a(f"v_mov_b32 v{t[1]}, v{v_q}")
            a("s_nop 1")
            a(f"v_permlane{w}_swap_b32 v{v_s}, v{t[0]}")
            a(f"v_permlane{w}_swap_b32 v{v_q}, v{t[1]}")
            a("s_nop 1")
            a(f"v_add_f32 v{v_s}, v{v_s}, v{t[0]}")
            a(f"v_add_f32 v{v_q}, v{v_q}, v{t[1]}")
        a(f"v_lshlrev_b32 v{t[0]}, 3, v{v_tok}")
        a(f"s_lshl_b32 s{S_T0}, s{S_T0}, 14")
        a("s_mov_b64 exec, 0xffff")
        a(f"buffer_store_dwordx2 {vr(v_s,2)}, v{t[0]}, {sr(SRD4,4)}, s{S_T0} offen {pol}")
        stamp(a, sb + 2)
        publish(a, t, 0)


def k4_gemm(a, va):
    sg = Seg(SRD1, F * 2, 96, 'p192', S_COL, img=(S_IMG, 24576, IMG_GU))
    su = Seg(SRD1, F * 2, 96, 'p192', S_COL, img=(S_IMG, 24576, IMG_GU + 12288))
    return Gemm(a, va, 128, 2, 1, 2, [sg, su], 64, K4_NS, D, SRD0, D * 2, S_TOK0, sregs=GS, tag="k4", xcm=True, lds_base=20480)


def k4_compute(a, va, g, sb):
    g.setup()
    t = g.tmp
    v_tok, v_a4, v_b4, v_ta, v_tc = va(), va(), va(), va(), va()
    a(f"v_lshl_add_u32 v{v_tok}, v{g.v_wt}, 6, v{g.v_i16}")
    a(f"v_lshlrev_b32 v{v_ta}, 4, v{v_tok}")
    a(f"v_add_u32 v{v_ta}, {TAB}, v{v_ta}")
    a(f"v_add_u32 v{v_tok}, s{S_TOK0}, v{v_tok}")
    a(f"v_mul_u32_u24 v{t[1]}, 48, v{g.v_wo}")
    a(f"v_lshl_add_u32 v{t[2]}, v{g.v_g}, 2, v{t[1]}")
    a(f"v_lshlrev_b32 v{v_tc}, 2, v{t[2]}")
    a(f"v_add_u32 v{v_tc}, {TAB + 2048}, v{v_tc}")
    a(f"v_and_b32 v{t[0]}, 0xfff0, v{v_tok}")
    a(f"v_mul_u32_u24 v{t[0]}, {F*2}, v{t[0]}")
    a(f"v_lshl_add_u32 v{t[0]}, v{g.v_i16}, 4, v{t[0]}")
    a(f"v_lshl_add_u32 v{t[0]}, v{t[1]}, 5, v{t[0]}")
    a(f"s_lshl_b32 s{S_T1}, s{S_COL}, 4")
    a(f"v_add_u32 v{t[0]}, s{S_T1}, v{t[0]}")
    a(f"v_lshrrev_b32 v{t[1]}, 1, v{g.v_g}")
    a(f"v_lshl_add_u32 v{t[0]}, v{t[1]}, 8, v{t[0]}")
    a(f"v_and_b32 v{t[1]}, 1, v{g.v_g}")
    a(f"v_lshl_add_u32 v{v_a4}, v{t[1]}, 9, v{t[0]}")
    a(f"v_mul_u32_u24 v{t[1]}, {16*F*2}, v{t[1]}")
    a(f"v_add_u32 v{v_b4}, v{t[1]}, v{t[0]}")
    await_block(a, t, 0)
    stamp(a, sb)
    g.mainloop()
    stamp(a, sb + 1)
    st = g.fa[0]
    cs = g.fa[1]
    tmp = g.fb[0]
    for tb in range(4):
        a(f"ds_read_b128 {vr(st+4*tb,4)}, v{v_ta} offset:{tb*256}")
    for sgi in range(2):
        for fb in range(3):
            a(f"ds_read_b128 {vr(cs+12*sgi+4*fb,4)}, v{v_tc} offset:{sgi*384 + fb*64}")
    a("s_waitcnt lgkmcnt(0)")
    for tb in range(4):
        vm, vA, vB, vC = [st + 4 * tb + i for i in range(4)]
        pm, pB = vr(vm, 2), vr(vB, 2)
        for fb in range(3):
            cg, cu = g.acc[tb][fb], g.acc[tb][3 + fb]
            z = tmp + 8 * (fb & 1)
            for h in (0, 2):
                a(f"v_pk_fma_f32 {vr(cg+h,2)}, {pm}, {vr(cs+4*fb+h,2)}, {vr(cg+h,2)} op_sel_hi:[0,1,1]")
                a(f"v_pk_fma_f32 {vr(cu+h,2)}, {pm}, {vr(cs+12+4*fb+h,2)}, {vr(cu+h,2)} op_sel_hi:[0,1,1]")
            for h in (0, 2):
                a(f"v_pk_mul_f32 {vr(z+h,2)}, {vr(cg+h,2)}, {vr(cg+h,2)}")
                a(f"v_pk_mul_f32 {vr(cu+h,2)}, {vr(cu+h,2)}, {vr(cg+h,2)}")
            for h in (0, 2):
                a(f"v_pk_fma_f32 {vr(z+h,2)}, {vr(z+h,2)}, {pB}, {pm} op_sel:[0,0,1] op_sel_hi:[1,0,1]")
            for h in (0, 2):
                a(f"v_pk_mul_f32 {vr(z+h,2)}, {vr(z+h,2)}, {vr(cg+h,2)}")
            for r in range(4):
                a(f"v_exp_f32 v{z+r}, v{z+r}")
            for h in (0, 2):
                a(f"v_pk_fma_f32 {vr(z+h,2)}, {vr(z+h,2)}, {pB}, {pB} op_sel:[0,1,1] op_sel_hi:[1,1,1]")
            for r in range(4):
                a(f"v_rcp_f32 v{z+r}, v{z+r}")
            a("s_nop 0")
            for h in (0, 2):
                a(f"v_pk_mul_f32 {vr(cu+h,2)}, {vr(cu+h,2)}, {vr(z+h,2)}")
            if fb == 1:
                q, dst = g.acc[tb][3], g.acc[tb][3] + 2
            elif fb == 2 and tb % 2 == 1:
                q, dst = g.acc[tb - 1][5], g.acc[tb - 1][5] + 2
            else:
                q, dst = None, cu
            a(f"v_cvt_pk_bf16_f32 v{dst}, v{cu}, v{cu+1}")
            a(f"v_cvt_pk_bf16_f32 v{dst+1}, v{cu+2}, v{cu+3}")
            if q is not None:
                a(f"s_mov_b32 s{S_KW}, {(tb if fb == 1 else tb - 1)*16*F*2}")
                a("s_nop 0")
                a(f"v_permlane16_swap_b32 v{q}, v{q+2}")
                a(f"v_permlane16_swap_b32 v{q+1}, v{q+3}")
                if fb == 1:
                    a(f"buffer_store_dwordx4 {vr(q,4)}, v{v_a4}, {sr(SRD3,4)}, s{S_KW} offen {HPOL}")
                else:
                    a(f"buffer_store_dwordx4 {vr(q,4)}, v{v_b4}, {sr(SRD3,4)}, s{S_KW} offen offset:1024 {HPOL}")
    stamp(a, sb + 2)
    publish(a, t, 1)


def gen_k345(a):
    name = "k3_ffn_kernel"
    kernel_begin(a, name)
    a("s_cmp_ge_u32 s2, 256")
    a("s_cbranch_scc1 k3_end")
    load_kernargs(a)
    map_proj(a, 3)
    a("s_waitcnt lgkmcnt(0)")
    srd_proj(a, 3)
    make_srd(a, SRDC, P_WS, WS_CNT, 8192)
    maxv = 0
    va = VAlloc(1)
    g3 = proj_gemm(a, va, 3)
    g3.split()
    t = g3.tmp
    a(f"v_mov_b32 v{t[0]}, {TAB + 3072}")
    a(f"v_mov_b32 v{t[2]}, 0")
    a(f"v_mov_b32 v{t[3]}, 0")
    assert t[2] % 2 == 1
    a(f"ds_write2_b32 v{t[0]}, v{t[2]}, v{t[3]} offset0:0 offset1:1")
    proj_compute(a, va, g3, 3, 0)
    maxv = max(maxv, va.n)
    va = VAlloc(1)
    g4 = k4_gemm(a, va)
    g4.tmp = [va() for _ in range(6)]
    map_k4(a)
    k4_compute(a, va, g4, 3)
    maxv = max(maxv, va.n)
    va = VAlloc(1)
    g5 = proj_gemm(a, va, 5)
    g5.tmp = [va() for _ in range(6)]
    map_proj(a, 5)
    srd_proj(a, 5)
    proj_compute(a, va, g5, 5, 6)
    maxv = max(maxv, va.n)
    stamp_end(a, 8)
    a.label("k3_end")
    a("s_endpgm")
    assert g4.lds_bytes + g4.lds_base <= TAB and g5.lds_bytes + g5.lds_base <= TAB

    GC = -2.0 * 0.7978845608028654 * 1.4426950408889634
    pre = {}

    def early4(lva, lt):
        make_srd(a, SRD4, P_WS, WS_ST, S * 64)
        make_srd(a, SRD5, P_WS, WS_CS, NCS * 3072 * 4)
        buf = lva(4 * NCS, 4)
        pre['buf'] = buf
        l2, l3 = a.newlabel("k4e"), a.newlabel("k4e")
        a(f"s_cmp_ge_u32 s{S_WAVE}, 6")
        a(f"s_cbranch_scc1 {l2}")
        a(f"v_add_u32 v{lt[0]}, s{S_TOK0}, v0")
        a(f"v_lshlrev_b32 v{lt[0]}, 3, v{lt[0]}")
        for i in range(8):
            a(f"s_mov_b32 s{S_T1}, {i*16384}")
            a(f"buffer_load_dwordx2 {vr(buf+2*i,2)}, v{lt[0]}, {sr(SRD4,4)}, s{S_T1} offen {HPOL}")
        a(f"s_branch {l3}")
        a.label(l2)
        a(f"v_and_b32 v{lt[0]}, 63, v0")
        a(f"v_min_u32 v{lt[0]}, 23, v{lt[0]}")
        a(f"v_lshlrev_b32 v{lt[0]}, 4, v{lt[0]}")
        a(f"s_sub_u32 s{S_T1}, s{S_WAVE}, 6")
        a(f"s_mul_i32 s{S_T1}, s{S_T1}, {1536*4}")
        a(f"s_lshl_b32 s{S_T2}, s{S_COL}, 1")
        a(f"s_add_u32 s{S_T1}, s{S_T1}, s{S_T2}")
        for i in range(NCS):
            a(f"buffer_load_dwordx4 {vr(buf+4*i,4)}, v{lt[0]}, {sr(SRD5,4)}, s{S_T1} offen")
            a(f"s_add_u32 s{S_T1}, s{S_T1}, {3072*4}")
        a.label(l3)

    def table4(lva, lt):
        buf = pre['buf']
        l2, l3 = a.newlabel("k4e"), a.newlabel("k4e")
        a(f"s_cmp_ge_u32 s{S_WAVE}, 6")
        a(f"s_cbranch_scc1 {l2}")
        for i in range(1, 8):
            a(f"v_add_f32 v{buf}, v{buf}, v{buf+2*i}")
            a(f"v_add_f32 v{buf+1}, v{buf+1}, v{buf+2*i+1}")
        ln_stats(a, buf, buf + 1, buf + 4, buf + 8, lt)
        a(f"v_sub_f32 v{buf+4}, 0, v{buf+4}")
        a(f"v_mul_f32 v{buf+5}, {f32(GC)}, v{buf+8}")
        a(f"v_mul_f32 v{buf+9}, v{buf+8}, v{buf+8}")
        a(f"v_mul_f32 v{buf+6}, v{buf+9}, v{buf+8}")
        a(f"v_mul_f32 v{buf+6}, {f32(GC*0.044715)}, v{buf+6}")
        a(f"v_rcp_f32 v{buf+7}, v{buf+9}")
        a(f"v_lshlrev_b32 v{lt[0]}, 4, v0")
        a(f"v_add_u32 v{lt[0]}, {TAB}, v{lt[0]}")
        a(f"ds_write_b128 v{lt[0]}, {vr(buf+4,4)}")
        a(f"s_branch {l3}")
        a.label(l2)
        for k in range(1, NCS):
            for i in range(4):
                a(f"v_add_f32 v{buf+i}, v{buf+i}, v{buf+4*k+i}")
        a(f"v_and_b32 v{lt[0]}, 63, v0")
        a(f"v_min_u32 v{lt[0]}, 23, v{lt[0]}")
        a(f"v_lshlrev_b32 v{lt[0]}, 4, v{lt[0]}")
        a(f"s_sub_u32 s{S_T1}, s{S_WAVE}, 6")
        a(f"s_mul_i32 s{S_T1}, s{S_T1}, 384")
        a(f"s_add_u32 s{S_T1}, s{S_T1}, {TAB + 2048}")
        a(f"v_add_u32 v{lt[0]}, s{S_T1}, v{lt[0]}")
        a(f"ds_write_b128 v{lt[0]}, {vr(buf,4)}")
        a.label(l3)
        a("s_waitcnt lgkmcnt(0)")

    def touch_wd(lt):
        a(f"s_and_b32 s{S_T1}, s{S_XB}, 1")
        a(f"s_mul_i32 s{S_T1}, s{S_T1}, 983040")
        a(f"s_mul_i32 s{S_T2}, s{S_J}, {240*128}")
        a(f"s_add_u32 s{S_T1}, s{S_T1}, s{S_T2}")
        a(f"s_add_u32 s{S_T1}, s{S_T1}, {IMG_WD}")
        a(f"v_min_u32 v{lt[0]}, 239, v0")
        a(f"v_lshlrev_b32 v{lt[0]}, 7, v{lt[0]}")
        a(f"buffer_load_dword v{DUMMY}, v{lt[0]}, {sr(SRD1,4)}, s{S_T1} offen")
        ops.append(("t", 0))

    DUMMY = 100
    ops = []
    g3.ld_prepare(S_ROT, ops=ops)
    g3.lstamp(0)

    def tail3(st):
        if st == 2:
            map_k4(a)
            g4.ld_prepare(S_ROT, head=False, xpol=HPOL, ops=ops)
            g4.lstamp(0)
        if st <= 4:
            g4.ld_issue(st - 2, x=False)
    g3.ld_run(tail=tail3)
    a("s_barrier")
    a("s_barrier")
    early4(g4.lva, g4.lt)

    def tail4(st):
        if st == 8:
            a("s_setprio 2")
            table4(g4.lva, g4.lt)
            a("s_setprio 0")
        elif st == 9:
            map_proj(a, 5)
            srd_proj(a, 5)
            g5.ld_prepare(S_ROT, head=False, xpol=HPOL, ops=ops)
            g5.lstamp(0)
            g5.ld_issue(1, x=False)
        elif st == 10:
            g5.ld_issue(0, x=False)
            g5.ld_issue(2, x=False)
            g5.ld_issue(3, x=False)

    def mid4(st):
        if st == TWD:
            touch_wd(g4.lt)
    g4.ld_run(wdone=True, tail=tail4, mid=mid4)
    a("s_barrier")
    g5.ld_run(wdone=True)
    for g in (g3, g4, g5):
        g.ld_dump()
    a("s_endpgm")
    assert max(g3.lva.n, g4.lva.n, g5.lva.n) < 89 and DUMMY < maxv
    kernel_end(a, name, maxv)
    return (name, 256, 512, 160 * 1024)

K4_NS = 3
TWD = int(os.environ.get('TWD', '9'))


def main():
    a = Asm()
    a.raw('.amdgcn_target "amdgcn-amd-amdhsa--gfx950"')
    a.raw(".text")
    launches = [gen_k1(a), gen_k2(a), gen_k345(a)]
    head = open("cdna_kernels/" + NAME + ".s.ref").read().split("\n")
    hdr = [l for l in head if l.startswith(";") and "@launch" not in l and "Override launch" not in l and "grid=ceil" not in l]
    out = "\n".join(hdr) + "\n"
    for n, gx, bx, lds in launches:
        out += f"; @launch kernel={n} grid=({gx},1,1) block=({bx},1,1) lds={lds}\n"
    out += a.text()
    out += '.section .rodata,"a"\n' + "".join(KDS)
    path = sys.argv[1] if len(sys.argv) > 1 else "cdna_kernels/" + NAME + ".s"
    open(path, "w").write(out)
    print("wrote", path, len(out), "bytes;", launches)

if __name__ == "__main__":
    main()
```

```python
import sys

NAME = "sequential_preLN__grouped_kv_mqa__geglu_ffn__prompt"

S, D, H, DH, F = 2048, 640, 32, 20, 1536

WS_Q   = 0
FUSED1 = True
WS_KF  = 0x280000
WS_KV  = WS_KF
KV_SZ  = 163840
NCS    = 8
WS_VF  = WS_KF + 0x20000
WS_KN  = WS_VF + 0x20000
WS_CS  = WS_KN + 0x1000
WS_O   = WS_CS + 0x20000
WS_H   = WS_O + 0x280000
WS_ST  = WS_H + 0x280000
WS_ACT = WS_ST + 0x20000
WS_S1  = WS_ACT + 0x600000
WS_CNT = WS_S1
WS_IMG = WS_S1 + 0x8000
WS_TL = 0x3000000
IMG_WO, IMG_WD, IMG_GU, IMG_SZ = 0, 819200, 819200 + 1966080, 6717440

KA_X, KA_WQ, KA_WK, KA_WV, KA_WO, KA_BX, KA_WG, KA_WU, KA_WD, KA_OUT, KA_DBG, KA_WS = [8 * i for i in range(12)]

import struct, os
INSTR = bool(os.environ.get("INSTR"))
HACK_LIN = bool(os.environ.get("HACK_LIN"))
NOCOMP = os.environ.get("NOCOMP", "").split(",")
NOX = os.environ.get("NOX", "").split(",")
NOW = os.environ.get("NOW", "").split(",")
PF = bool(os.environ.get("PF"))
IMGPOL = os.environ.get("IMGPOL", "sc1")
for _k in ("NORB2", "NORB3", "NORB4"):
    os.environ[_k] = "1"
NOLOAD = os.environ.get("NOLOAD", "").split(",")
def f32(x):
    return "0x%08x" % struct.unpack("<I", struct.pack("<f", x))[0]


class Asm:
    skip_dma = False
    def __init__(self):
        self.lines = []
        self.nlabel = 0

    def __call__(self, s):
        for l in s.split("\n"):
            l = l.strip()
            if self.skip_dma and l.startswith("buffer_load") and l.endswith("lds"):
                continue
            if l:
                self.lines.append("    " + l)

    def label(self, l):
        self.lines.append(l + ":")

    def newlabel(self, p="L"):
        self.nlabel += 1
        return f"{p}_{self.nlabel}"

    def raw(self, s):
        self.lines.append(s)

    def text(self):
        return "\n".join(self.lines) + "\n"


class VAlloc:
    def __init__(self, start=1):
        self.n = start

    def __call__(self, cnt=1, align=1):
        self.n = (self.n + align - 1) // align * align
        r = self.n
        self.n += cnt
        return r


def vr(b, n):
    return f"v[{b}:{b+n-1}]"


def sr(b, n):
    return f"s[{b}:{b+n-1}]"


KIDX = [-1]
LIDX = [0]
def kernel_begin(a, name):
    KIDX[0] += 1
    a.raw(f".globl {name}")
    a.raw(".p2align 8")
    a.raw(f".type {name},@function")
    a.label(name)


KDS = []
def kernel_end(a, name, nvgpr, nsgpr=102):
    nv = (nvgpr + 7) // 8 * 8
    KDS.append(f""".p2align 6
.amdhsa_kernel {name}
  .amdhsa_next_free_vgpr {nv}
  .amdhsa_next_free_sgpr {nsgpr}
  .amdhsa_accum_offset {(nv + 3) // 4 * 4}
  .amdhsa_group_segment_fixed_size 0
  .amdhsa_kernarg_size 96
  .amdhsa_user_sgpr_count 2
  .amdhsa_user_sgpr_kernarg_segment_ptr 1
  .amdhsa_system_sgpr_workgroup_id_x 1
.end_amdhsa_kernel
""")


def make_srd(a, dst, base_s, off, nbytes):
    if off:
        a(f"s_add_u32 s{dst}, s{base_s}, {off}")
        a(f"s_addc_u32 s{dst+1}, s{base_s+1}, 0")
    else:
        a(f"s_mov_b32 s{dst}, s{base_s}")
        a(f"s_mov_b32 s{dst+1}, s{base_s+1}")
    a(f"s_mov_b32 s{dst+2}, {nbytes}")
    a(f"s_mov_b32 s{dst+3}, 0x00020000")


def interleave(mfmas, fillers, nreads=None):
    out = []
    nm, nf = len(mfmas), len(fillers)
    per = 1 if (nreads or nf) * 3 <= nm * 2 + 2 and nf <= nm else 2
    if os.environ.get("OLDIL"):
        per = 0
    fi = 0
    for i, m in enumerate(mfmas):
        out.append(m)
        tgt = (i + 1) * per if per else ((i + 1) * nf + nm - 1) // nm
        while fi < min(tgt, nf):
            out.extend(fillers[fi])
            fi += 1
    while fi < nf:
        out.extend(fillers[fi])
        fi += 1
    return out


class Seg:
    def __init__(self, srd, gstride, nf, kind, colreg=None, img=None):
        self.img = img
        self.srd = srd
        self.gstride = gstride
        self.nf = nf
        self.kind = kind
        self.colreg = colreg


class Gemm:
    def __init__(self, a, va, TT, WT, WK, WF, segs, BK, NS, K, xsrd, xstride, s_tok0,
                 stats=False, colsum=False, sregs=None, tag="g", lds_base=0, xcm=False):
        self.a, self.va = a, va
        self.xcm = xcm
        self.lds_base = lds_base
        self.TT, self.WT, self.WK, self.WF = TT, WT, WK, WF
        assert WT * WK * WF == 4
        self.segs, self.BK, self.NS, self.K = segs, BK, NS, K
        self.xsrd, self.xstride, self.s_tok0 = xsrd, xstride, s_tok0
        self.stats, self.colsum = stats, colsum
        self.tag = tag
        self.TW = TT // WT
        self.TB = self.TW // 16
        self.RB = BK * 2
        self.CPR = self.RB // 16
        self.nst = K // BK
        self.SPS = BK // 32
        self.SPW = self.SPS // WK
        assert self.SPW % 2 == 0
        self.xbytes = TT * self.RB
        off = self.xbytes
        for s in segs:
            s.lstride = 40 if s.kind == 'lin40' else s.nf * 2
            nb = BK * s.lstride
            s.ninstr = (nb + 4095) // 4096 * 4
            s.lbase = off
            off += s.ninstr * 1024
            s.FBW = (s.nf // WF) // 16
        self.stage_bytes = off
        self.nx = self.xbytes // 1024
        assert self.nx % 4 == 0
        self.ndma = self.nx // 4 + sum(s.ninstr // 4 for s in segs)
        self.lds_bytes = self.stage_bytes * NS
        (self.s_woff, self.s_kx, self.s_kw, self.s_wave, self.s_cnt, self.s_slot, self.s_kidx, self.s_dl) = sregs

    def split(self):
        a, va = self.a, self.va
        self.tmp = [va() for _ in range(6)]
        t = self.tmp
        a(f"v_lshrrev_b32 v{t[0]}, 6, v0")
        a("s_nop 0")
        a(f"v_readfirstlane_b32 s{self.s_wave}, v{t[0]}")
        a("s_nop 3")
        a(f"s_cmp_ge_u32 s{self.s_wave}, 4")
        a(f"s_cbranch_scc1 {self.tag}_loader")

    def ld_prepare(self, s_rot=None, head=True, xpol="", ops=None, v0=1):
        a = self.a
        va = self.lva = VAlloc(v0)
        t = self.lt = [va() for _ in range(6)]
        self.s_rot, self.xpol = s_rot, xpol
        self.ops = [] if ops is None else ops
        if head:
            a.label(f"{self.tag}_loader")
            a(f"v_and_b32 v0, 255, v0")
        a(f"s_and_b32 s{self.s_woff}, s{self.s_wave}, 3")
        a(f"s_lshl_b32 s{self.s_woff}, s{self.s_woff}, 10")
        lg = {8: 3, 16: 4}[self.CPR]
        v_dx = self.v_dx = va()
        if self.xcm:
            a(f"v_lshrrev_b32 v{t[1]}, {lg+4}, v0")
            a(f"v_and_b32 v{t[2]}, {self.CPR*16-1}, v0")
            a(f"v_lshlrev_b32 v{t[1]}, 4, v{t[1]}")
            a(f"v_add_u32 v{t[1]}, s{self.s_tok0}, v{t[1]}")
            a(f"v_mul_u32_u24 v{t[1]}, {self.xstride}, v{t[1]}")
            a(f"v_lshl_add_u32 v{v_dx}, v{t[2]}, 4, v{t[1]}")
        else:
            a(f"v_lshrrev_b32 v{t[1]}, {lg}, v0")
            a(f"v_and_b32 v{t[2]}, {self.CPR-1}, v0")
            if self.CPR == 8:
                a(f"v_bfe_u32 v{t[3]}, v{t[1]}, 1, 3")
            else:
                a(f"v_and_b32 v{t[3]}, 15, v{t[1]}")
            a(f"v_xor_b32 v{t[2]}, v{t[2]}, v{t[3]}")
            a(f"v_add_u32 v{t[1]}, s{self.s_tok0}, v{t[1]}")
            a(f"v_mul_u32_u24 v{t[1]}, {self.xstride}, v{t[1]}")
            a(f"v_lshl_add_u32 v{v_dx}, v{t[2]}, 4, v{t[1]}")
        done = {}
        for s in self.segs:
            key = (s.kind, s.nf)
            if key in done:
                s.v_d = done[key]
                continue
            s.v_d = []
            cprw = s.lstride // 16 if s.kind != 'lin40' else None
            for j in range(s.ninstr // 4):
                if s.kind == 'lin40' or s.img:
                    if j == 0:
                        r = va()
                        a(f"v_lshlrev_b32 v{r}, 4, v0")
                    s.v_d.append(r)
                    continue
                r = va()
                s.v_d.append(r)
                a(f"v_add_u32 v{t[0]}, {j*256}, v0")
                magic = {10: 52429, 12: 43691}[cprw]
                a(f"v_mul_u32_u24 v{t[1]}, {magic}, v{t[0]}")
                a(f"v_lshrrev_b32 v{t[1]}, 19, v{t[1]}")
                a(f"v_mul_u32_u24 v{t[2]}, {cprw}, v{t[1]}")
                a(f"v_sub_u32 v{t[2]}, v{t[0]}, v{t[2]}")
                a(f"v_and_b32 v{t[3]}, 0xfffffff3, v{t[1]}")
                a(f"v_bfe_u32 v{t[4]}, v{t[1]}, 2, 1")
                if s.kind == 'p192':
                    a(f"v_lshlrev_b32 v{t[5]}, 1, v{t[4]}")
                    a(f"v_xor_b32 v{t[2]}, v{t[2]}, v{t[5]}")
                a(f"v_lshl_or_b32 v{t[3]}, v{t[4]}, 3, v{t[3]}")
                a(f"v_bfe_u32 v{t[4]}, v{t[1]}, 3, 1")
                a(f"v_lshl_or_b32 v{t[3]}, v{t[4]}, 2, v{t[3]}")
                a(f"v_mul_u32_u24 v{t[3]}, {s.gstride}, v{t[3]}")
                a(f"v_lshl_add_u32 v{r}, v{t[2]}, 4, v{t[3]}")
                if s.colreg is not None:
                    a(f"v_add_u32 v{r}, s{s.colreg}, v{r}")
            done[key] = s.v_d
        self.lidx = LIDX[0]
        LIDX[0] += 1
        self.v_st = 196 + self.lidx

    def ld_kset(self, st):
        a = self.a
        if self.s_rot is None:
            a(f"s_mov_b32 s{self.s_kidx}, {st}")
        elif st == 0:
            a(f"s_mov_b32 s{self.s_kidx}, s{self.s_rot}")
        else:
            a(f"s_add_u32 s{self.s_kidx}, s{self.s_rot}, {st}")
            a(f"s_sub_u32 s{self.s_dl}, s{self.s_kidx}, {self.nst}")
            a(f"s_cmp_ge_u32 s{self.s_kidx}, {self.nst}")
            a(f"s_cselect_b32 s{self.s_kidx}, s{self.s_dl}, s{self.s_kidx}")

    def ld_issue(self, st, x=True, w=True):
        a = self.a
        gs = self.segs[0].gstride
        xrows = 256 // self.CPR
        slot = self.lds_base + (st % self.NS) * self.stage_bytes
        a.skip_dma = self.tag in NOLOAD
        self.ld_kset(st)
        if x:
            a(f"s_mul_i32 s{self.s_kx}, s{self.s_kidx}, {self.CPR*256 if self.xcm else self.BK*2}")
            for j in range(self.nx // 4):
                a(f"s_add_u32 m0, s{self.s_woff}, {slot + j*4096}")
                if j:
                    a(f"s_add_u32 s{self.s_kx}, s{self.s_kx}, {xrows*self.xstride}")
                else:
                    a("s_nop 0")
                a(f"buffer_load_dwordx4 v{self.v_dx}, {sr(self.xsrd,4)}, s{self.s_kx} offen {self.xpol} lds")
                self.ops.append((self.tag, st))
        if w:
            if self.segs[0].img:
                a(f"s_mul_i32 s{self.s_kw}, s{self.s_kidx}, {self.segs[0].img[1]}")
                a(f"s_add_u32 s{self.s_kw}, s{self.s_kw}, s{self.segs[0].img[0]}")
            else:
                a(f"s_mul_i32 s{self.s_kw}, s{self.s_kidx}, {self.BK*gs}")
            for s in self.segs:
                if s.gstride != gs:
                    a(f"s_mul_i32 s{self.s_kw}, s{self.s_kidx}, {self.BK*s.gstride}")
                for j, r in enumerate(s.v_d):
                    a(f"s_add_u32 m0, s{self.s_woff}, {slot + s.lbase + j*4096}")
                    if s.kind == 'lin40' or s.img:
                        a(f"s_add_u32 s{self.s_dl}, s{self.s_kw}, {j*4096 + (s.img[2] if s.img else 0)}")
                        a(f"buffer_load_dwordx4 v{r}, {sr(s.srd,4)}, s{self.s_dl} offen lds")
                    else:
                        a("s_nop 0")
                        a(f"buffer_load_dwordx4 v{r}, {sr(s.srd,4)}, s{self.s_kw} offen lds")
                    self.ops.append((self.tag, st))

    def lstamp(self, idx):
        a = self.a
        a.skip_dma = False
        if INSTR:
            a("s_memtime s[98:99]")
            a("s_waitcnt lgkmcnt(0)")
            a("s_sub_u32 s98, s98, s80")
            a(f"v_writelane_b32 v{self.v_st}, s98, {idx}")

    def ld_run(self, wdone=False, tail=None, mid=None):
        a = self.a
        ops = self.ops

        def ready(st):
            last = max(i for i, o in enumerate(ops) if o == (self.tag, st))
            n = len(ops) - 1 - last
            assert n < 64
            a(f"s_waitcnt vmcnt({n})")
            self.lstamp(st + 2)
            a("s_barrier")

        NS, nst = self.NS, self.nst
        self.lstamp(1)
        wf = not wdone
        self.ld_issue(0, w=wf)
        self.ld_issue(1, w=wf)
        ready(0)
        for st in range(2, NS):
            self.ld_issue(st, w=wf)
        for st in range(NS, nst):
            ready(st - NS + 1)
            self.ld_issue(st)
            if mid:
                mid(st)
        for st in range(nst - NS + 1, nst):
            ready(st)
            if tail:
                tail(st)
        a("s_barrier")
        if tail:
            tail(nst)

    def ld_dump(self):
        a = self.a
        if INSTR:
            lab = a.newlabel("ls")
            a(f"s_cmp_lg_u32 s2, {INSTR_WG}")
            a(f"s_cbranch_scc1 {lab}")
            a(f"s_cmp_lg_u32 s{self.s_wave}, 4")
            a(f"s_cbranch_scc1 {lab}")
            make_srd(a, 92, P_WS, WS_TL + 0x10000 + self.lidx * 256, 128)
            a(f"v_lshlrev_b32 v89, 2, v0")
            a(f"buffer_store_dword v{self.v_st}, v89, s[92:95], 0 offen")
            a("s_waitcnt vmcnt(0)")
            a.label(lab)

    def loader(self, s_rot=None, cont=None):
        a = self.a
        self.ld_prepare(s_rot)
        self.lstamp(0)
        self.ld_run()
        self.ld_dump()
        if cont is None:
            a("s_endpgm")
        else:
            cont(self.lva, self.lt)

    def setup(self):
        a, va = self.a, self.va
        t = self.tmp
        lane, i16, g, wv = va(), va(), va(), va()
        self.v_lane, self.v_i16, self.v_g, self.v_wave = lane, i16, g, wv
        a(f"v_and_b32 v{lane}, 63, v0")
        a(f"v_lshrrev_b32 v{wv}, 6, v0")
        a(f"v_and_b32 v{i16}, 15, v0")
        a(f"v_bfe_u32 v{g}, v0, 4, 2")
        wt, wo = va(), va()
        self.v_wt, self.v_wo = wt, wo
        a(f"v_and_b32 v{wt}, {self.WT-1}, v{wv}")
        sh = {1: 0, 2: 1, 4: 2}[self.WT]
        a(f"v_lshrrev_b32 v{wo}, {sh}, v{wv}")
        self.addr_regs = []
        done = {}
        for s in self.segs:
            key = (s.kind, s.nf)
            if key in done:
                s.v_a = done[key]
                continue
            if s.kind == 'lin40':
                a(f"v_lshlrev_b32 v{t[0]}, 3, v{g}")
            else:
                a(f"v_lshrrev_b32 v{t[0]}, 1, v{g}")
                a(f"v_lshlrev_b32 v{t[0]}, 4, v{t[0]}")
                a(f"v_and_b32 v{t[1]}, 1, v{g}")
                a(f"v_lshl_add_u32 v{t[0]}, v{t[1]}, 2, v{t[0]}")
            a(f"v_lshrrev_b32 v{t[1]}, 2, v{i16}")
            a(f"v_add_u32 v{t[0]}, v{t[0]}, v{t[1]}")
            if self.WK > 1:
                a(f"v_mov_b32 v{t[1]}, {self.SPW*32}")
                a(f"v_mad_u32_u24 v{t[0]}, v{wo}, v{t[1]}, v{t[0]}")
            a(f"v_mul_u32_u24 v{t[0]}, {s.lstride}, v{t[0]}")
            a(f"v_and_b32 v{t[1]}, 3, v{i16}")
            a(f"v_lshl_add_u32 v{t[0]}, v{t[1]}, 3, v{t[0]}")
            if s.kind == 'p192':
                regs = []
                for b in range(s.FBW):
                    r = va()
                    regs.append(r)
                    if self.WF > 1:
                        a(f"v_mul_u32_u24 v{t[1]}, {s.FBW}, v{wo}")
                        a(f"v_add_u32 v{t[1]}, {b}, v{t[1]}")
                    else:
                        a(f"v_mov_b32 v{t[1]}, {b}")
                    a(f"v_and_b32 v{t[2]}, 1, v{g}")
                    a(f"v_xor_b32 v{t[1]}, v{t[1]}, v{t[2]}")
                    a(f"v_lshl_add_u32 v{r}, v{t[1]}, 5, v{t[0]}")
                s.v_a = regs
                self.addr_regs += regs
            else:
                r = va()
                if self.WF > 1:
                    a(f"v_mul_u32_u24 v{t[1]}, {s.FBW*32}, v{wo}")
                    a(f"v_add_u32 v{r}, v{t[0]}, v{t[1]}")
                else:
                    a(f"v_mov_b32 v{r}, v{t[0]}")
                s.v_a = [r]
                self.addr_regs.append(r)
            done[key] = s.v_a
        self.v_b = []
        if self.xcm:
            r = va()
            self.v_b = [r] * self.SPW
            self.addr_regs.append(r)
            a(f"v_mul_u32_u24 v{t[0]}, {self.TW*self.RB}, v{wt}")
            a(f"v_lshl_add_u32 v{t[0]}, v{lane}, 4, v{t[0]}")
            if self.WK > 1:
                a(f"v_mul_u32_u24 v{t[2]}, {1024*self.SPW}, v{wo}")
                a(f"v_add_u32 v{r}, v{t[0]}, v{t[2]}")
            else:
                a(f"v_mov_b32 v{r}, v{t[0]}")
        self.swapb = self.WK == 2
        a(f"v_mul_u32_u24 v{t[0]}, {self.TW}, v{wt}")
        a(f"v_add_u32 v{t[0]}, v{t[0]}, v{i16}")
        if self.CPR == 8:
            a(f"v_bfe_u32 v{t[1]}, v{t[0]}, 1, 3")
        else:
            a(f"v_and_b32 v{t[1]}, 15, v{t[0]}")
        a(f"v_mul_u32_u24 v{t[0]}, {self.RB}, v{t[0]}")
        for ls in range(self.SPW if not self.xcm else 0):
            r = va()
            self.v_b.append(r)
            self.addr_regs.append(r)
            if self.WK > 1:
                a(f"v_mul_u32_u24 v{t[2]}, {4*self.SPW}, v{wo}")
                a(f"v_add3_u32 v{t[2]}, v{t[2]}, v{g}, {4*ls}")
            else:
                a(f"v_add_u32 v{t[2]}, {4*ls}, v{g}")
            a(f"v_xor_b32 v{t[2]}, v{t[2]}, v{t[1]}")
            a(f"v_lshl_add_u32 v{r}, v{t[2]}, 4, v{t[0]}")
        if self.swapb:
            assert self.TB == 2
            m = {}
            a(f"v_mul_u32_u24 v{t[2]}, {16*self.RB}, v{wo}")
            a(f"v_sub_u32 v{t[3]}, {16*self.RB}, v{t[2]}")
            for r in self.v_b:
                if r not in m:
                    m[r] = va()
                    self.addr_regs.append(m[r])
                    a(f"v_add_u32 v{m[r]}, v{t[3]}, v{r}")
                    a(f"v_add_u32 v{r}, v{t[2]}, v{r}")
            self.v_b2 = [m[r] for r in self.v_b]
        if self.lds_base:
            for r in self.addr_regs:
                a(f"v_add_u32 v{r}, {self.lds_base}, v{r}")
        self.nA = sum(s.FBW for s in self.segs)
        self.fa = [va(4 * self.nA, 4) for _ in range(2)]
        self.fb = [va(4 * self.TB, 4) for _ in range(2)]
        self.acc = [[va(4, 4) for _ in range(self.nA)] for _ in range(self.TB)]
        accs = [r for row in self.acc for r in row]
        if self.stats or self.colsum:
            self.v_ones = va(4, 4)
            for i in range(4):
                a(f"v_mov_b32 v{self.v_ones+i}, 0x3f803f80")
        if self.stats:
            self.acc_sum = [va(4, 4) for _ in range(self.TB)]
            self.acc_sq = [va(4, 4) for _ in range(self.TB)]
            accs += self.acc_sum + self.acc_sq
        if self.colsum:
            self.acc_cs = [va(4, 4) for _ in range(self.nA)]
            accs += self.acc_cs
        for r in accs:
            for i in range(4):
                a(f"v_mov_b32 v{r+i}, 0")

    def read_units(self, ls, buf):
        units = []
        fi = 0
        for s in self.segs:
            for b in range(s.FBW):
                for e in range(2):
                    if s.kind == 'lin40':
                        off = s.lbase + (ls * 32 + 4 * e) * 40 + b * 32
                        ar = s.v_a[0]
                    elif s.kind == 'p192':
                        off = s.lbase + (ls * 32 + 8 * e) * s.lstride
                        ar = s.v_a[b]
                    else:
                        off = s.lbase + (ls * 32 + 8 * e) * s.lstride + b * 32
                        ar = s.v_a[0]
                    assert off < 65536
                    d = self.fa[buf] + 4 * fi + 2 * e
                    units.append([f"ds_read_b64_tr_b16 {vr(d,2)}, v{ar} offset:{off}"])
                fi += 1
        for tb in range(self.TB):
            off = tb * 16 * self.RB + (ls * 1024 if self.xcm else 0)
            d = self.fb[buf] + 4 * tb
            ar = self.v_b[ls]
            if self.swapb and tb:
                off -= 16 * self.RB
                ar = self.v_b2[ls]
            units.append([f"ds_read_b128 {vr(d,4)}, v{ar} offset:{off}"])
        return units[-self.TB:] + units[:-self.TB]

    def mfmas(self, buf):
        out = []
        for fi in range(self.nA):
            A = vr(self.fa[buf] + 4 * fi, 4)
            for tb in range(self.TB):
                B = vr(self.fb[buf] + 4 * tb, 4)
                c = vr(self.acc[tb][fi], 4)
                out.append(f"v_mfma_f32_16x16x32_bf16 {c}, {A}, {B}, {c}")
            if self.colsum:
                c = vr(self.acc_cs[fi], 4)
                out.append(f"v_mfma_f32_16x16x32_bf16 {c}, {A}, {vr(self.v_ones,4)}, {c}")
        if self.stats:
            for tb in range(self.TB):
                B = vr(self.fb[buf] + 4 * tb, 4)
                c = vr(self.acc_sum[tb], 4)
                out.append(f"v_mfma_f32_16x16x32_bf16 {c}, {vr(self.v_ones,4)}, {B}, {c}")
                c = vr(self.acc_sq[tb], 4)
                out.append(f"v_mfma_f32_16x16x32_bf16 {c}, {B}, {B}, {c}")
        return out

    def ld_ready(self, st):
        ops = self.ops
        last = max(i for i, o in enumerate(ops) if o == (self.tag, st))
        n = len(ops) - 1 - last
        assert n < 64
        self.a(f"s_waitcnt vmcnt({n})")
        self.lstamp(st + 2)
        self.a("s_barrier")

    def mainloop(self, post_first=None, pre_bar=None):
        a = self.a
        a(f"s_mov_b32 s{self.s_cnt}, {self.nst}")
        a(f"s_mov_b32 s{self.s_slot}, 0")
        a("s_barrier")
        if post_first:
            post_first()
        for u in self.read_units(0, 0):
            for l in u:
                a(l)
        lp = f"{self.tag}_loop"
        a.label(lp)
        for ls in range(self.SPW):
            buf = ls & 1
            a("s_waitcnt lgkmcnt(0)")
            mf = self.mfmas(buf)
            if ls == self.SPW - 1:
                a(mf[0])
                mf = mf[1:]
                if pre_bar:
                    pre_bar()
                a("s_barrier")
                fill = self.read_units(0, buf ^ 1)
                fill.append([f"s_sub_u32 s{self.s_cnt}, s{self.s_cnt}, 1", f"s_cmp_lg_u32 s{self.s_cnt}, 0"])
            else:
                fill = self.read_units(ls + 1, buf ^ 1)
                if ls == self.SPW - 2:
                    fill.append([f"s_mov_b32 s{self.s_dl}, s{self.s_slot}",
                                 f"s_add_u32 s{self.s_slot}, s{self.s_slot}, {self.stage_bytes}"])
                    fill.append([f"s_cmp_ge_u32 s{self.s_slot}, {self.lds_bytes}",
                                 f"s_cselect_b32 s{self.s_slot}, 0, s{self.s_slot}",
                                 f"s_sub_u32 s{self.s_dl}, s{self.s_slot}, s{self.s_dl}"])
                    for r in self.addr_regs:
                        fill.append([f"v_add_u32 v{r}, s{self.s_dl}, v{r}"])
            for l in interleave(mf, fill, len(self.read_units(0, 0))):
                a(l)
        a(f"s_cbranch_scc1 {lp}")
        a("s_waitcnt vmcnt(0) lgkmcnt(0)")


P_X, P_WQ, P_WK, P_WV, P_WO, P_BX, P_WG, P_WU, P_WD, P_OUT, P_DBG, P_WS = [16 + 2 * i for i in range(12)]
SRD0, SRD1, SRD2, SRD3, SRD4, SRD5 = 40, 44, 48, 52, 56, 60
S_WOFF, S_KX, S_KW, S_WAVE = 64, 65, 66, 67
S_TOK0, S_COL, S_T0, S_T1, S_T2 = 68, 69, 70, 71, 72
S_CNT_, S_SLOT_, S_KIDX, S_DL, S_ROT = 76, 77, 78, 79, 73
GS = (S_WOFF, S_KX, S_KW, S_WAVE, S_CNT_, S_SLOT_, S_KIDX, S_DL)


def load_kernargs(a):
    if INSTR:
        for i in range(84, 98):
            a(f"s_mov_b32 s{i}, 0")
        a("s_memtime s[80:81]")
        a("s_memrealtime s[82:83]")
    a("s_load_dwordx16 s[16:31], s[0:1], 0")
    a("s_load_dwordx8 s[32:39], s[0:1], 64")


RT = [int(x) for x in os.environ.get("RT", "0,1,2").split(",")]
def rstamp(a, idx):
    if INSTR and idx in RT:
        a("s_memrealtime s[98:99]")
        a("s_waitcnt lgkmcnt(0)")
        a(f"s_mov_b32 s{(3, 7, 15)[RT.index(idx)]}, s98")


P1ST = bool(os.environ.get("P1ST"))
def stamp(a, idx, p1=False):
    if INSTR and (p1 == P1ST or idx < 4):
        a("s_memtime s[98:99]")
        a("s_waitcnt lgkmcnt(0)")
        a(f"s_sub_u32 s{84+idx}, s98, s80")


def stamp_end(a, n, wg=None):
    if INSTR:
        lab = a.newlabel("se")
        a("s_mov_b64 exec, -1")
        a("s_waitcnt vmcnt(0)")
        a("s_memtime s[98:99]")
        a("s_memrealtime s[100:101]")
        a("s_waitcnt lgkmcnt(0)")
        a(f"s_sub_u32 s{84+n}, s98, s80")
        a(f"s_sub_u32 s{85+n}, s100, s82")
        lab2 = a.newlabel("se")
        a(f"s_cmp_lg_u32 s{S_WAVE}, 0")
        a(f"s_cbranch_scc1 {lab2}")
        make_srd(a, 40, P_WS, WS_TL + KIDX[0] * 4096, 4096)
        a("s_getreg_b32 s98, hwreg(HW_REG_XCC_ID)")
        a("s_and_b32 s98, s98, 7")
        a("s_andn2_b32 s100, s100, 7")
        a("s_or_b32 s100, s100, s98")
        a("v_mov_b32 v2, s82")
        a("v_mov_b32 v3, s100")
        a("s_lshl_b32 s98, s2, 3")
        a("v_mov_b32 v1, s98")
        a("buffer_store_dwordx2 v[2:3], v1, s[40:43], 0 offen")
        make_srd(a, 40, P_WS, WS_TL + 2 * 4096, 4096)
        a("v_mov_b32 v3, s3")
        a("v_mov_b32 v4, s7")
        a("v_mov_b32 v5, s15")
        a("v_lshlrev_b32 v1, 1, v1")
        a("buffer_store_dwordx4 v[2:5], v1, s[40:43], 0 offen")
        a.label(lab2)
        a(f"s_cmp_lg_u32 s2, {INSTR_WG if wg is None else wg}")
        a(f"s_cbranch_scc1 {lab}")
        a(f"s_cmp_lg_u32 s{S_WAVE}, 0")
        a(f"s_cbranch_scc1 {lab}")
        make_srd(a, 40, P_DBG, 0, 256)
        a("v_mov_b32 v1, 0")
        for i in range(14):
            a(f"v_mov_b32 v2, s{84+i}")
            a(f"buffer_store_dword v2, v1, s[40:43], 0 offen offset:{4*i}")
        a.label(lab)
INSTR_WG = int(os.environ.get("INSTR_WG", "100"))


def round_bf16(a, dst, src):
    a(f"v_cvt_pk_bf16_f32 v{dst}, v{src}, v{src}")
    a(f"v_lshlrev_b32 v{dst}, 16, v{dst}")


def ln_stats(a, v_sum, v_sq, v_mean, v_rstd, t):
    a(f"v_mul_f32 v{v_mean}, {f32(1.0/D)}, v{v_sum}")
    a(f"v_mul_f32 v{t[0]}, {f32(1.0/D)}, v{v_sq}")
    a(f"v_fma_f32 v{t[0]}, -v{v_mean}, v{v_mean}, v{t[0]}")
    a(f"v_max_f32 v{t[0]}, 0, v{t[0]}")
    round_bf16(a, v_mean, v_mean)
    round_bf16(a, t[0], t[0])
    a(f"v_add_f32 v{t[0]}, {f32(1e-5)}, v{t[0]}")
    round_bf16(a, t[0], t[0])
    a(f"v_sqrt_f32 v{t[0]}, v{t[0]}")
    a("s_nop 0")
    round_bf16(a, t[0], t[0])
    a(f"v_rcp_f32 v{v_rstd}, v{t[0]}")
    a("s_nop 0")


def gram_diag(a, g, acc_sq, dst):
    t = g.tmp
    a(f"v_and_b32 v{t[0]}, 3, v{g.v_i16}")
    a(f"v_mov_b32 v{t[1]}, v{acc_sq}")
    for r in range(1, 4):
        a(f"v_cmp_eq_u32 vcc, {r}, v{t[0]}")
        a("s_nop 1")
        a(f"v_cndmask_b32 v{t[1]}, v{t[1]}, v{acc_sq+r}, vcc")
    a(f"v_lshrrev_b32 v{t[0]}, 2, v{g.v_i16}")
    a(f"v_lshl_add_u32 v{t[0]}, v{t[0]}, 4, v{g.v_i16}")
    a(f"v_lshlrev_b32 v{t[0]}, 2, v{t[0]}")
    a(f"ds_bpermute_b32 v{dst}, v{t[0]}, v{t[1]}")
    a("s_waitcnt lgkmcnt(0)")


def xlane_add(a, v, v_lane, t0, t1, masks, op="v_add_f32"):
    for m in masks:
        a(f"v_xor_b32 v{t0}, {m}, v{v_lane}")
        a(f"v_lshlrev_b32 v{t0}, 2, v{t0}")
        a(f"ds_bpermute_b32 v{t1}, v{t0}, v{v}")
        a("s_waitcnt lgkmcnt(0)")
        a(f"{op} v{v}, v{v}, v{t1}")


QSCALE = (DH ** -0.5) * 1.4426950408889634


def prefetch_lin(a, v_tid, v_t, v_dummy, srd, s_base, s_j, nlines, s_tmp, nthreads=256):
    a(f"s_mul_i32 s{s_tmp}, s{s_j}, {nlines*128}")
    if s_base is not None:
        a(f"s_add_u32 s{s_tmp}, s{s_tmp}, s{s_base}")
    a(f"v_lshlrev_b32 v{v_t}, 7, v{v_tid}")
    n = (nlines + nthreads - 1) // nthreads
    for i in range(n):
        if i:
            a(f"s_add_u32 s{s_tmp}, s{s_tmp}, {nthreads*128}")
        a(f"buffer_load_dword v{v_dummy}, v{v_t}, {sr(srd,4)}, s{s_tmp} offen")

S_J, S_XB, S_IMG = 12, 13, 14

def dpp_rowmax(a, v):
    for n in (1, 2, 4, 8):
        a("s_nop 1")
        a(f"v_max_f32_dpp v{v}, v{v}, v{v} row_shr:{n} row_mask:0xf bank_mask:0xf bound_ctrl:0")


def swap_add(a, v, t, which):
    a(f"v_mov_b32 v{t}, v{v}")
    a("s_nop 1")
    a(f"v_permlane{which}_swap_b32 v{v}, v{t}")
    a("s_nop 1")
    a(f"v_add_f32 v{v}, v{v}, v{t}")


def gen_k1(a):
    name = "k1_qkv_kernel"
    kernel_begin(a, name)
    a("s_cmp_ge_u32 s2, 256")
    a("s_cbranch_scc1 k1_end")
    load_kernargs(a)
    a(f"s_and_b32 s{S_T1}, s2, 7")
    a(f"s_lshr_b32 s{S_T0}, s2, 3")
    a(f"s_mul_i32 s{S_ROT}, s{S_T0}, 52")
    a(f"s_lshr_b32 s{S_ROT}, s{S_ROT}, 8")
    a(f"s_mul_i32 s{S_ROT}, s{S_ROT}, 5")
    a(f"s_sub_u32 s{S_ROT}, s{S_T0}, s{S_ROT}")
    if os.environ.get("K0ROT", "0") == "0":
        a(f"s_mov_b32 s{S_ROT}, 0")
    a(f"s_lshr_b32 s{S_T2}, s{S_T0}, 3")
    a(f"s_lshl_b32 s{S_T1}, s{S_T1}, 2")
    a(f"s_add_u32 s{S_XB}, s{S_T1}, s{S_T2}")
    a(f"s_lshl_b32 s{S_TOK0}, s{S_XB}, 6")
    a(f"s_and_b32 s{S_J}, s{S_T0}, 7")
    a(f"s_mul_i32 s{S_COL}, s{S_J}, 160")
    a("s_waitcnt lgkmcnt(0)")
    make_srd(a, SRD0, P_X, 0, S * D * 2)
    make_srd(a, SRD1, P_WQ, 0, D * D * 2)
    make_srd(a, SRD2, P_WS, WS_Q, S * D * 2)
    a(f"s_cmp_lt_u32 s{S_J}, 2")
    a("s_cbranch_scc1 k1_b")
    maxv = 8
    lds = 0

    def q_epilogue(g, va):
        t = g.tmp
        v_mean, v_rstd, v_sq, v_ad, v_rq, v_tok = va(), va(), va(), va(), va(), va()
        nA = g.nA
        nx = 2 * nA + 2
        a(f"v_mul_u32_u24 v{t[0]}, {nx*1024}, v{g.v_wave}")
        a(f"v_lshl_add_u32 v{t[0]}, v{g.v_lane}, 4, v{t[0]}")
        a(f"v_xor_b32 v{t[1]}, 2, v{g.v_wave}")
        a(f"v_mul_u32_u24 v{t[1]}, {nx*1024}, v{t[1]}")
        a(f"v_lshl_add_u32 v{t[1]}, v{g.v_lane}, 4, v{t[1]}")
        a(f"v_lshl_add_u32 v{v_tok}, v{g.v_wt}, 1, v{g.v_wo}")
        a(f"v_lshl_add_u32 v{v_tok}, v{v_tok}, 4, v{g.v_i16}")
        a(f"v_add_u32 v{v_tok}, s{S_TOK0}, v{v_tok}")
        a("s_nop 3")
        keep = g.acc[0] + [g.acc_sum[0], g.acc_sq[0]]
        send = g.acc[1] + [g.acc_sum[1], g.acc_sq[1]]
        skip = a.newlabel("xs")
        a(f"s_cmp_lt_u32 s{S_WAVE}, 2")
        a(f"s_cbranch_scc1 {skip}")
        for k_, s_ in zip(keep, send):
            for r in range(4):
                a(f"v_swap_b32 v{k_+r}, v{s_+r}")
        a.label(skip)
        for i, r in enumerate(send + g.acc_cs):
            a(f"ds_write_b128 v{t[0]}, {vr(r,4)} offset:{i*1024}")
        a("s_waitcnt lgkmcnt(0)")
        a("s_barrier")
        csx = [g.fa[0] + 4 * i for i in range(nA)]
        order = [nA, nA + 1] + list(range(nA))
        for i in order:
            a(f"ds_read_b128 {vr(send[i],4)}, v{t[1]} offset:{i*1024}")
            if i < nA:
                a(f"ds_read_b128 {vr(csx[i],4)}, v{t[1]} offset:{(nA+2+i)*1024}")
        a(f"v_mul_u32_u24 v{t[2]}, {D*2}, v{v_tok}")
        a(f"v_lshl_add_u32 v{v_ad}, v{g.v_g}, 3, v{t[2]}")
        a(f"v_add_u32 v{v_ad}, s{S_COL}, v{v_ad}")
        a(f"s_waitcnt lgkmcnt({2*nA})")
        a(f"v_add_f32 v{keep[nA]}, v{keep[nA]}, v{send[nA]}")
        for r in range(4):
            a(f"v_add_f32 v{keep[nA+1]+r}, v{keep[nA+1]+r}, v{send[nA+1]+r}")
        gram_diag(a, g, g.acc_sq[0], v_sq)
        ln_stats(a, g.acc_sum[0], v_sq, v_mean, v_rstd, g.tmp)
        a(f"v_mul_f32 v{v_rq}, {f32(QSCALE)}, v{v_rstd}")
        for fb in range(nA):
            c, cs = g.acc[0][fb], g.acc_cs[fb]
            for r in range(4):
                a(f"v_add_f32 v{c+r}, v{c+r}, v{send[fb]+r}")
                a(f"v_add_f32 v{cs+r}, v{cs+r}, v{csx[fb]+r}")
                a(f"v_fma_f32 v{c+r}, -v{v_mean}, v{cs+r}, v{c+r}")
                a(f"v_mul_f32 v{c+r}, v{c+r}, v{v_rq if fb < 5 else v_rstd}")
            a(f"v_cvt_pk_bf16_f32 v{c}, v{c}, v{c+1}")
            a(f"v_cvt_pk_bf16_f32 v{c+1}, v{c+2}, v{c+3}")
            if fb < 5:
                a(f"buffer_store_dwordx2 {vr(c,2)}, v{v_ad}, {sr(SRD2,4)}, 0 offen offset:{fb*32}")
        return v_tok

    def colsum(lva, lt):
        a.label("k1_cs")
        cva = VAlloc(8)
        lt = [cva() for _ in range(4)]
        csb = cva(40, 4)
        cacc = cva(8, 4)
        v_ca, v_l = cva(), cva()
        S_U, S_SRC, S_DST = S_T0, S_T1, S_KW
        a(f"s_sub_u32 s{S_U}, s{S_WAVE}, 4")
        a(f"s_lshl_b32 s{S_U}, s{S_U}, 8")
        a(f"s_add_u32 s{S_T2}, s{S_U}, s2")
        a(f"s_cmp_eq_u32 s{S_T2}, 768")
        a("s_cbranch_scc1 k1_zero")
        a(f"s_cmp_ge_u32 s{S_T2}, {48*NCS}")
        a("s_cbranch_scc1 k1_end")
        a(f"s_mul_i32 s{S_U}, s{S_T2}, 1366")
        a(f"s_lshr_b32 s{S_U}, s{S_U}, 16")
        a(f"s_mul_i32 s{S_SRC}, s{S_U}, 48")
        a(f"s_sub_u32 s{S_SRC}, s{S_T2}, s{S_SRC}")
        a(f"s_cmp_lt_u32 s{S_SRC}, 24")
        a(f"s_cselect_b32 s{SRD0}, s{P_WG}, s{P_WU}")
        a(f"s_cselect_b32 s{SRD0+1}, s{P_WG+1}, s{P_WU+1}")
        a(f"s_mov_b32 s{SRD0+2}, {F*D*2}")
        a(f"s_cselect_b32 s{S_DST}, 0, 24")
        a(f"s_sub_u32 s{S_SRC}, s{S_SRC}, s{S_DST}")
        a(f"s_lshl_b32 s{S_SRC}, s{S_SRC}, 7")
        a(f"s_mul_i32 s{S_U}, s{S_U}, {80*F*2}")
        a(f"s_add_u32 s{S_SRC}, s{S_SRC}, s{S_U}")
        a(f"v_and_b32 v{v_l}, 63, v0")
        a(f"v_lshrrev_b32 v{lt[0]}, 3, v{v_l}")
        a(f"v_mul_u32_u24 v{lt[0]}, {F*2}, v{lt[0]}")
        a(f"v_and_b32 v{lt[1]}, 7, v{v_l}")
        a(f"v_lshl_add_u32 v{v_ca}, v{lt[1]}, 4, v{lt[0]}")
        for i in range(10):
            a(f"buffer_load_dwordx4 {vr(csb+4*i,4)}, v{v_ca}, {sr(SRD0,4)}, s{S_SRC} offen")
            a(f"s_add_u32 s{S_SRC}, s{S_SRC}, {8*F*2}")
        a(f"v_lshrrev_b32 v{lt[0]}, 4, v{v_l}")
        a(f"v_lshlrev_b32 v{lt[0]}, 3, v{lt[0]}")
        a(f"v_lshl_add_u32 v{v_ca}, v{lt[1]}, 5, v{lt[0]}")
        make_srd(a, SRD3, P_WS, WS_CS, NCS * 3072 * 4)
        a(f"s_lshl_b32 s{S_T2}, s{S_T2}, 8")
        a("s_barrier")
        for i in range(10):
            a(f"s_waitcnt vmcnt({9-i})")
            for j in range(4):
                if i == 0:
                    a(f"v_lshlrev_b32 v{cacc+2*j}, 16, v{csb+j}")
                    a(f"v_and_b32 v{cacc+2*j+1}, 0xffff0000, v{csb+j}")
                else:
                    a(f"v_lshlrev_b32 v{lt[0]}, 16, v{csb+4*i+j}")
                    a(f"v_and_b32 v{lt[1]}, 0xffff0000, v{csb+4*i+j}")
                    a(f"v_add_f32 v{cacc+2*j}, v{cacc+2*j}, v{lt[0]}")
                    a(f"v_add_f32 v{cacc+2*j+1}, v{cacc+2*j+1}, v{lt[1]}")
        a("s_nop 1")
        for j in range(4):
            a(f"v_permlane32_swap_b32 v{cacc+j}, v{cacc+4+j}")
        a("s_nop 1")
        for j in range(4):
            a(f"v_add_f32 v{cacc+j}, v{cacc+j}, v{cacc+4+j}")
        a("s_nop 1")
        for j in range(2):
            a(f"v_permlane16_swap_b32 v{cacc+j}, v{cacc+2+j}")
        a("s_nop 1")
        for j in range(2):
            a(f"v_add_f32 v{cacc+j}, v{cacc+j}, v{cacc+2+j}")
        a("s_nop 1")
        for j in range(2):
            a(f"v_add_f32_dpp v{cacc+j}, v{cacc+j}, v{cacc+j} row_ror:8 row_mask:0xf bank_mask:0xf")
        a(f"buffer_store_dwordx2 {vr(cacc,2)}, v{v_ca}, {sr(SRD3,4)}, s{S_T2} offen")
        a.label("k1_end")
        a("s_endpgm")
        a.label("k1_zero")
        make_srd(a, SRD3, P_WS, WS_CNT, 32768)
        a(f"v_and_b32 v{v_l}, 63, v0")
        a(f"v_lshlrev_b32 v{v_l}, 8, v{v_l}")
        a(f"v_mov_b32 v{lt[0]}, 0")
        a(f"buffer_store_dword v{lt[0]}, v{v_l}, {sr(SRD3,4)}, 0 offen")
        a(f"s_mov_b32 s{S_T2}, 16384")
        a(f"buffer_store_dword v{lt[0]}, v{v_l}, {sr(SRD3,4)}, s{S_T2} offen")
        a("s_endpgm")
        pre['n'] = cva.n
    pre = {}

    va = VAlloc(1)
    seg = Seg(SRD1, D * 2, 80, 'p160', S_COL)
    g = Gemm(a, va, 64, 2, 2, 1, [seg], 128, 4, D, SRD0, D * 2, S_TOK0, stats=True, colsum=True, sregs=GS, tag="k1q")
    g.split()
    g.setup()
    stamp(a, 0)
    g.mainloop()
    stamp(a, 1)
    lds = max(lds, g.lds_bytes)
    q_epilogue(g, va)
    stamp_end(a, 2)
    a("s_endpgm")
    maxv = max(maxv, va.n)
    g.loader(S_ROT, cont=colsum)
    maxv = max(maxv, pre['n'])

    a.label("k1_b")
    va = VAlloc(1)
    a(f"s_cmp_eq_u32 s{S_J}, 0")
    a(f"s_cselect_b32 s{SRD3}, s{P_WK}, s{P_WV}")
    a(f"s_cselect_b32 s{SRD3+1}, s{P_WK+1}, s{P_WV+1}")
    a(f"s_mov_b32 s{SRD3+2}, {D*DH*2}")
    a(f"s_mov_b32 s{SRD3+3}, 0x00020000")
    make_srd(a, SRD4, P_WS, WS_KV, KV_SZ)
    make_srd(a, SRD5, P_WS, WS_KN, 512)
    seg = Seg(SRD1, D * 2, 80, 'p160', S_COL)
    sk = Seg(SRD3, 40, 32, 'lin40')
    g = Gemm(a, va, 64, 2, 2, 1, [seg, sk], 128, 3, D, SRD0, D * 2, S_TOK0, stats=True, colsum=True, sregs=GS, tag="k1kv")
    g.split()
    g.setup()
    stamp(a, 0)
    g.mainloop()
    stamp(a, 1)
    lds = max(lds, g.lds_bytes)
    v_key = q_epilogue(g, va)
    v_ak, v_n = va(), va()
    t = g.tmp
    k0, k1 = g.acc[0][5], g.acc[0][6]
    a(f"v_cmp_eq_u32 vcc, 0, v{g.v_g}")
    a(f"v_lshrrev_b32 v{t[0]}, 5, v{v_key}")
    a(f"v_mul_u32_u24 v{t[0]}, 2560, v{t[0]}")
    a(f"v_and_b32 v{t[1]}, 31, v{v_key}")
    a(f"s_cmp_lg_u32 s{S_J}, 0")
    a("s_cbranch_scc1 k1_v")
    a(f"v_lshl_add_u32 v{v_ak}, v{t[1]}, 4, v{t[0]}")
    a(f"v_lshrrev_b32 v{t[2]}, 1, v{g.v_g}")
    a(f"v_lshl_add_u32 v{v_ak}, v{t[2]}, 9, v{v_ak}")
    a(f"v_and_b32 v{t[2]}, 1, v{g.v_g}")
    a(f"v_lshl_add_u32 v{v_ak}, v{t[2]}, 3, v{v_ak}")
    a(f"buffer_store_dwordx2 {vr(k0,2)}, v{v_ak}, {sr(SRD4,4)}, 0 offen")
    a(f"v_lshl_add_u32 v{v_key}, v{t[1]}, 3, v{t[0]}")
    a(f"v_cndmask_b32 v{k1}, 0, v{k1}, vcc")
    a(f"v_cndmask_b32 v{k1+1}, 0, v{k1+1}, vcc")
    a("s_and_saveexec_b64 s[74:75], vcc")
    a(f"buffer_store_dwordx2 {vr(k1,2)}, v{v_key}, {sr(SRD4,4)}, 0 offen offset:1024")
    a("s_mov_b64 exec, -1")
    a(f"v_mov_b32 v{v_n}, 0")
    for c in (k0, k0 + 1, k1, k1 + 1):
        a(f"v_lshlrev_b32 v{t[0]}, 16, v{c}")
        a(f"v_and_b32 v{t[1]}, 0xffff0000, v{c}")
        a(f"v_fma_f32 v{v_n}, v{t[0]}, v{t[0]}, v{v_n}")
        a(f"v_fma_f32 v{v_n}, v{t[1]}, v{t[1]}, v{v_n}")
    swap_add(a, v_n, t[0], 32)
    swap_add(a, v_n, t[0], 16)
    dpp_rowmax(a, v_n)
    a(f"s_lshl_b32 s{S_T0}, s{S_XB}, 2")
    a(f"s_add_u32 s{S_T0}, s{S_T0}, s{S_WAVE}")
    a(f"s_lshl_b32 s{S_T0}, s{S_T0}, 2")
    a(f"v_mov_b32 v{t[0]}, 0")
    a("s_mov_b64 exec, 0x8000")
    a(f"buffer_store_dword v{v_n}, v{t[0]}, {sr(SRD5,4)}, s{S_T0} offen")
    stamp_end(a, 2)
    a("s_endpgm")
    a.label("k1_v")
    a(f"v_bfe_u32 v{t[2]}, v{t[1]}, 4, 1")
    a(f"v_mad_u32_u24 v{v_ak}, v{t[2]}, 640, v{t[0]}" if False else f"v_mul_u32_u24 v{t[2]}, 640, v{t[2]}")
    a(f"v_add_u32 v{v_ak}, v{t[2]}, v{t[0]}")
    a(f"v_bfe_u32 v{t[2]}, v{t[1]}, 2, 1")
    a(f"v_mul_u32_u24 v{t[2]}, 320, v{t[2]}")
    a(f"v_add_u32 v{v_ak}, v{t[2]}, v{v_ak}")
    a(f"v_bfe_u32 v{t[2]}, v{t[1]}, 3, 1")
    a(f"v_lshl_add_u32 v{v_ak}, v{t[2]}, 3, v{v_ak}")
    a(f"v_and_b32 v{t[2]}, 3, v{t[1]}")
    a(f"v_lshl_add_u32 v{v_ak}, v{t[2]}, 1, v{v_ak}")
    a(f"v_lshl_add_u32 v{v_ak}, v{g.v_g}, 6, v{v_ak}")
    for fb, c in enumerate((k0, k1)):
        if fb:
            a("s_and_saveexec_b64 s[74:75], vcc")
        for p in range(2):
            o = 1280 + fb * 256 + p * 32
            a(f"buffer_store_short v{c+p}, v{v_ak}, {sr(SRD4,4)}, 0 offen offset:{o}")
            a(f"buffer_store_short_d16_hi v{c+p}, v{v_ak}, {sr(SRD4,4)}, 0 offen offset:{o+16}")
    stamp_end(a, 2)
    a("s_endpgm")
    maxv = max(maxv, va.n)
    g.loader(S_ROT, cont=lambda lva, lt: a("s_branch k1_cs"))

    kernel_end(a, name, maxv)
    return (name, 256, 512, lds)


QB = 53248
MX, MW, MS = 0, 20480, 49152
QST, KMX = 102400, 112640
S_HOOK, S_KVC = 15, 7
CNT_KV = 80
FLAG = 128


def p1_compute(a, tmp, v_first, v_alias, init):
    va = VAlloc(v_first)
    seg = Seg(SRD1, D * 2, 80, 'p160', S_COL)
    g = Gemm(a, va, 64, 2, 2, 1, [seg], 128, 3, D, SRD0, D * 2, S_TOK0, stats=True, colsum=True, sregs=GS, tag="k1q",
             lds_base=QB)
    assert QB + g.lds_bytes <= KV_SZ
    g.tmp = tmp
    t = g.tmp
    make_srd(a, SRD5, P_DBG, 0, 256)
    make_srd(a, SRD3, P_WS, WS_KN, 512)
    fr = v_alias
    mac = [v_alias + 16 + 4 * i for i in range(6)]
    v_mx, v_mw, v_mp, v_fl, v_z, v_one, v_fa, v_ad = [v_alias + 40 + i for i in range(8)]
    v_mean = va(2, 2)
    v_rstd = v_mean + 1
    v_sq, v_xw, v_xr, v_xc, v_qw = [va() for _ in range(5)]
    a(f"v_mov_b32 v{v_z}, 0")
    a(f"v_mov_b32 v{v_one}, 1")
    lab = a.newlabel("bz")
    a(f"s_lshl_b32 s{S_T1}, s2, 2")
    a(f"s_add_u32 s{S_T1}, s{S_T1}, s{S_WAVE}")
    a(f"s_cmp_lg_u32 s{S_T1}, 3")
    a(f"s_cbranch_scc1 {lab}")
    a(f"v_and_b32 v{t[0]}, 63, v0")
    a(f"v_lshlrev_b32 v{t[0]}, 8, v{t[0]}")
    for i in range(4):
        a(f"v_mov_b32 v{fr+i}, 0")
    a(f"s_mov_b32 s{S_T2}, 16384")
    a(f"buffer_store_dwordx4 {vr(fr,4)}, v{t[0]}, {sr(SRDC,4)}, 0 offen sc1")
    a(f"buffer_store_dwordx4 {vr(fr,4)}, v{t[0]}, {sr(SRDC,4)}, s{S_T2} offen sc1")
    a("s_mov_b64 exec, 1")
    a("s_waitcnt vmcnt(0)")
    a(f"buffer_store_dword v{v_one}, v{v_z}, {sr(SRD5,4)}, 0 offen offset:{FLAG} sc1")
    a("s_mov_b64 exec, -1")
    a.label(lab)
    g.setup()
    assert g.fb[1] + 8 == g.fa[0] + 56
    fq = [fr + 4 * i for i in range(4)] + [g.fa[0] + 4 * i for i in range(14)]
    a(f"s_cmp_eq_u32 s{S_WAVE}, 0")
    a(f"s_cselect_b32 s{S_HOOK}, 2, 0")
    a(f"s_and_b32 s{S_KVC}, s2, 15")
    a(f"s_lshl_b32 s{S_KVC}, s{S_KVC}, 8")
    a(f"s_add_u32 s{S_KVC}, s{S_KVC}, {96*256}")
    a(f"v_lshlrev_b32 v{v_fa}, 8, v{g.v_lane}")
    a(f"v_mul_u32_u24 v{t[0]}, 5120, v{g.v_wave}")
    a(f"v_lshl_add_u32 v{v_mx}, v{g.v_lane}, 4, v{t[0]}")
    a(f"v_mul_u32_u24 v{t[0]}, 6400, v{g.v_wave}")
    a(f"v_add_u32 v{t[0]}, {MW}, v{t[0]}")
    a(f"v_lshl_add_u32 v{v_mp}, v{g.v_lane}, 4, v{t[0]}")
    a(f"v_lshrrev_b32 v{t[1]}, 2, v{g.v_i16}")
    a(f"v_lshl_add_u32 v{t[1]}, v{g.v_g}, 3, v{t[1]}")
    a(f"v_mad_u32_u24 v{t[0]}, v{t[1]}, 40, v{t[0]}")
    a(f"v_and_b32 v{t[1]}, 3, v{g.v_i16}")
    a(f"v_lshl_add_u32 v{v_mw}, v{t[1]}, 3, v{t[0]}")
    XW = 8 * 1024
    assert QB + 4 * XW <= QST
    a(f"v_mul_u32_u24 v{t[0]}, {XW}, v{g.v_wave}")
    a(f"v_lshl_add_u32 v{t[0]}, v{g.v_lane}, 4, v{t[0]}")
    a(f"v_add_u32 v{v_xw}, {QB}, v{t[0]}")
    a(f"v_xor_b32 v{v_xr}, {2*XW}, v{t[0]}")
    a(f"v_add_u32 v{v_xr}, {QB}, v{v_xr}")
    a(f"v_lshlrev_b32 v{t[0]}, 4, v{g.v_i16}")
    a(f"v_sub_u32 v{v_xc}, v{v_xr}, v{t[0]}")
    a(f"v_lshl_add_u32 v{t[1]}, v{g.v_wt}, 1, v{g.v_wo}")
    a(f"v_lshl_add_u32 v{t[1]}, v{t[1]}, 4, v{g.v_i16}")
    a(f"v_mul_u32_u24 v{t[2]}, 160, v{t[1]}")
    a(f"v_lshl_add_u32 v{t[2]}, v{g.v_g}, 3, v{t[2]}")
    a(f"v_add_u32 v{v_qw}, {QST}, v{t[2]}")
    a(f"v_add_u32 v{t[2]}, s{S_TOK0}, v{t[1]}")
    a(f"v_mul_u32_u24 v{t[2]}, {D*2}, v{t[2]}")
    a(f"v_lshl_add_u32 v{t[2]}, v{g.v_g}, 3, v{t[2]}")
    a(f"v_add_u32 v{V_RAD}, s{S_COL}, v{t[2]}")
    a(f"ds_write_b32 v{v_z}, v{v_z} offset:{MS+1024}")
    a("s_waitcnt lgkmcnt(0)")
    a("s_barrier")
    stamp(a, 0)
    a(f"buffer_load_dword v{v_fl}, v{v_z}, {sr(SRD5,4)}, 0 offen offset:{FLAG} sc1")
    for s_ in range(5):
        a(f"ds_read_b128 {vr(fq[3*s_],4)}, v{v_mx} offset:{MX + s_*1024}")
        for b in range(2):
            for e in range(2):
                a(f"ds_read_b64_tr_b16 {vr(fq[3*s_+1+b]+2*e,2)}, v{v_mw} offset:{(s_*32+4*e)*40 + b*32}")
    ones = vr(g.v_ones, 4)
    for s_ in range(5):
        a(f"s_waitcnt lgkmcnt({min(15, 5*(4-s_))})")
        B, A0, A1 = [vr(fq[3*s_+i], 4) for i in range(3)]
        for i, (x, y) in enumerate([(A0, B), (A1, B), (A0, ones), (A1, ones), (ones, B), (B, B)]):
            a(f"v_mfma_f32_16x16x32_bf16 {vr(mac[i],4)}, {x}, {y}, " + ("0" if s_ == 0 else vr(mac[i], 4)))
    a("s_nop 7")
    a("s_nop 7")
    lab = a.newlabel("pw")
    a(f"s_cmp_eq_u32 s{S_WAVE}, 0")
    a(f"s_cbranch_scc1 {lab}")
    for i in range(6):
        a(f"ds_write_b128 v{v_mp}, {vr(mac[i],4)} offset:{i*1024}")
    a("s_mov_b64 exec, 1")
    a(f"ds_add_u32 v{v_z}, v{v_one} offset:{MS+1024}")
    a("s_mov_b64 exec, -1")
    a.label(lab)

    def finalize():
        skip, lv, lj, lp, lq = [a.newlabel("fz") for _ in range(5)]
        a(f"s_cmp_lg_u32 s{S_WAVE}, 0")
        a(f"s_cbranch_scc1 {skip}")
        a.label(lp)
        a(f"ds_read_b32 v{t[0]}, v{v_z} offset:{MS+1024}")
        a("s_waitcnt lgkmcnt(0)")
        a(f"v_readfirstlane_b32 s{S_T2}, v{t[0]}")
        a("s_nop 3")
        a(f"s_cmp_lt_u32 s{S_T2}, 3")
        a(f"s_cbranch_scc1 {lp}")
        order = [4, 5, 0, 2, 1, 3]
        for i in order:
            for w in range(1, 4):
                a(f"ds_read_b128 {vr(fq[6*(w-1)+i],4)}, v{v_mp} offset:{w*6400 + i*1024}")
        a(f"s_and_b32 s{S_T1}, s{S_J}, 3")
        a(f"s_lshl_b32 s{S_T1}, s{S_T1}, 4")
        a(f"s_add_u32 s{S_T1}, s{S_T1}, s{S_TOK0}")
        a(f"s_lshr_b32 s{S_KX}, s{S_T1}, 2")
        a(f"s_lshr_b32 s{S_T1}, s{S_T1}, 5")
        a(f"s_mul_i32 s{S_KW}, s{S_T1}, 2560")
        a(f"s_and_b32 s{S_T0}, s{S_J}, 1")
        for n, i in enumerate(order):
            a(f"s_waitcnt lgkmcnt({min(15, 3*(5-n))})")
            for w in range(3):
                for r in ((0,) if i == 4 else (0, 2)):
                    a(f"v_pk_add_f32 {vr(mac[i]+r,2)}, {vr(mac[i]+r,2)}, {vr(fq[6*w+i]+r,2)}")
        gram_diag(a, g, mac[5], v_sq)
        ln_stats(a, mac[4], v_sq, v_mean, v_rstd, t)
        for b in range(2):
            c, cs = mac[b], mac[2 + b]
            for r in range(4):
                a(f"v_fma_f32 v{c+r}, -v{v_mean}, v{cs+r}, v{c+r}")
                a(f"v_mul_f32 v{c+r}, v{c+r}, v{v_rstd}")
            a(f"v_cvt_pk_bf16_f32 v{c}, v{c}, v{c+1}")
            a(f"v_cvt_pk_bf16_f32 v{c+1}, v{c+2}, v{c+3}")
        k0, k1 = mac[0], mac[1]
        v_n = v_sq
        a(f"v_mov_b32 v{v_n}, 0")
        a(f"s_bitcmp1_b32 s{S_J}, 2")
        a(f"s_cbranch_scc1 {lv}")
        a(f"v_lshrrev_b32 v{t[0]}, 1, v{g.v_g}")
        a(f"v_lshlrev_b32 v{t[0]}, 8, v{t[0]}")
        a(f"v_lshl_add_u32 v{t[0]}, v{g.v_i16}, 4, v{t[0]}")
        a(f"v_and_b32 v{t[1]}, 1, v{g.v_g}")
        a(f"v_lshl_add_u32 v{t[0]}, v{t[1]}, 3, v{t[0]}")
        a(f"ds_write_b64 v{t[0]}, {vr(k0,2)} offset:{MS}")
        a(f"v_lshlrev_b32 v{t[1]}, 3, v{g.v_i16}")
        a("s_mov_b64 exec, 0xffff")
        a(f"ds_write_b64 v{t[1]}, {vr(k1,2)} offset:{MS+512}")
        for c in (k1, k1 + 1, k0, k0 + 1):
            if c == k0:
                a("s_mov_b64 exec, -1")
            a(f"v_lshlrev_b32 v{t[0]}, 16, v{c}")
            a(f"v_and_b32 v{t[1]}, 0xffff0000, v{c}")
            a(f"v_fma_f32 v{v_n}, v{t[0]}, v{t[0]}, v{v_n}")
            a(f"v_fma_f32 v{v_n}, v{t[1]}, v{t[1]}, v{v_n}")
        swap_add(a, v_n, t[0], 32)
        swap_add(a, v_n, t[0], 16)
        dpp_rowmax(a, v_n)
        a("s_mov_b64 exec, 0x8000")
        a(f"buffer_store_dword v{v_n}, v{v_z}, {sr(SRD3,4)}, s{S_KX} offen sc1")
        a("s_mov_b64 exec, -1")
        a(f"v_lshlrev_b32 v{t[0]}, 9, v{g.v_g}")
        a(f"v_lshl_add_u32 v{v_ad}, v{g.v_i16}, 4, v{t[0]}")
        a(f"s_lshl_b32 s{S_T0}, s{S_T0}, 7")
        a(f"v_cmp_gt_u32 vcc, 2, v{g.v_g}")
        a(f"v_mov_b32 v{t[0]}, s{S_T0}")
        a(f"v_cndmask_b32 v{t[1]}, 0, v{t[0]}, vcc")
        a(f"v_add3_u32 v{v_ad}, v{v_ad}, v{t[0]}, v{t[1]}")
        a(f"s_branch {lj}")
        a.label(lv)
        a(f"v_bfe_u32 v{t[0]}, v{g.v_i16}, 2, 1")
        a(f"v_mul_u32_u24 v{t[0]}, 320, v{t[0]}")
        a(f"v_bfe_u32 v{t[1]}, v{g.v_i16}, 3, 1")
        a(f"v_lshl_add_u32 v{t[0]}, v{t[1]}, 3, v{t[0]}")
        a(f"v_and_b32 v{t[1]}, 3, v{g.v_i16}")
        a(f"v_lshl_add_u32 v{t[0]}, v{t[1]}, 1, v{t[0]}")
        a(f"v_lshl_add_u32 v{t[0]}, v{g.v_g}, 6, v{t[0]}")
        for b, c in enumerate((k0, k1)):
            if b:
                a("s_mov_b64 exec, 0xffff")
            for p in range(2):
                o = MS + b * 256 + p * 32
                a(f"ds_write_b16 v{t[0]}, v{c+p} offset:{o}")
                a(f"ds_write_b16_d16_hi v{t[0]}, v{c+p} offset:{o+16}")
        a("s_mov_b64 exec, -1")
        a(f"s_mul_i32 s{S_T0}, s{S_T0}, 640")
        a(f"s_add_u32 s{S_T0}, s{S_T0}, 1280")
        a(f"v_lshl_add_u32 v{v_ad}, v{g.v_lane}, 4, s{S_T0}")
        a.label(lj)
        a(f"v_lshlrev_b32 v{t[0]}, 4, v{g.v_lane}")
        a(f"ds_read_b128 {vr(mac[2],4)}, v{t[0]} offset:{MS}")
        a("s_mov_b32 exec_hi, 0xff")
        a("s_waitcnt lgkmcnt(0)")
        a(f"buffer_store_dwordx4 {vr(mac[2],4)}, v{v_ad}, {sr(SRD1,4)}, s{S_KW} offen sc1")
        a("s_mov_b64 exec, -1")
        a.label(skip)

    def hook():
        skip, sec, done, lp, lq = [a.newlabel("hk") for _ in range(5)]
        a(f"s_cmp_eq_u32 s{S_HOOK}, 0")
        a(f"s_cbranch_scc1 {skip}")
        a(f"s_sub_u32 s{S_HOOK}, s{S_HOOK}, 1")
        a("s_mov_b64 exec, 1")
        a(f"s_cmp_eq_u32 s{S_HOOK}, 0")
        a(f"s_cbranch_scc1 {sec}")
        a(f"s_mov_b32 s{S_T1}, 0x20000")
        a.label(lp)
        a("s_waitcnt vmcnt(0)")
        a(f"v_readfirstlane_b32 s{S_T2}, v{v_fl}")
        a(f"s_sub_u32 s{S_T1}, s{S_T1}, 1")
        a(f"s_cmp_eq_u32 s{S_T1}, 0")
        a(f"s_cbranch_scc1 {lq}")
        a(f"s_cmp_lg_u32 s{S_T2}, 0")
        a(f"s_cbranch_scc1 {lq}")
        a(f"buffer_load_dword v{v_fl}, v{v_z}, {sr(SRD5,4)}, 0 offen offset:{FLAG} sc1")
        a(f"s_branch {lp}")
        a.label(lq)
        a(f"v_mov_b32 v{v_fl}, 1")
        a(f"buffer_atomic_add v{v_fl}, v{v_z}, {sr(SRDC,4)}, s{S_KVC} offen sc0 sc1")
        a(f"s_branch {done}")
        a.label(sec)
        a("s_waitcnt vmcnt(0)")
        a(f"v_readfirstlane_b32 s{S_T2}, v{v_fl}")
        a(f"v_mov_b32 v{v_fl}, 1")
        a(f"s_mov_b32 s{S_KVC}, {CNT_KV*256}")
        a("s_nop 2")
        a(f"s_cmp_lg_u32 s{S_T2}, 15")
        a(f"s_cbranch_scc1 {done}")
        a(f"buffer_atomic_add v{v_fl}, v{v_z}, {sr(SRDC,4)}, s{S_KVC} offen sc0 sc1")
        a("s_waitcnt vmcnt(0)")
        a(f"v_readfirstlane_b32 s{S_T2}, v{v_fl}")
        a("s_nop 3")
        a(f"s_cmp_lg_u32 s{S_T2}, 15")
        a(f"s_cbranch_scc1 {done}")
        a("s_mov_b64 exec, 0xff")
        a(f"buffer_store_dword v{v_one}, v{v_fa}, {sr(SRDC,4)}, s{S_KVC} offen offset:2048 sc1")
        a.label(done)
        a("s_mov_b64 exec, -1")
        a.label(skip)
        a(f"s_cmp_lg_u32 s{g.s_cnt}, 2")
        a(f"s_cbranch_scc1 {lq}x")
        init()
        a.label(f"{lq}x")

    finalize()
    g.mainloop(pre_bar=hook)
    stamp(a, 1)
    nA = g.nA
    keep = g.acc[0] + [g.acc_sq[0]]
    send = g.acc[1] + [g.acc_sq[1]]
    a("s_nop 3")
    a(f"ds_write_b128 v{v_xw}, {vr(send[nA],4)} offset:{nA*1024}")
    a(f"ds_write_b32 v{v_xw}, v{g.acc_sum[1]} offset:{(nA+1)*1024}")
    for i in range(nA):
        a(f"ds_write_b128 v{v_xw}, {vr(send[i],4)} offset:{i*1024}")
    a("s_mov_b32 exec_lo, 0x00010001")
    a("s_mov_b32 exec_hi, 0x00010001")
    for i in range(nA):
        a(f"ds_write_b128 v{v_xw}, {vr(g.acc_cs[i],4)} offset:{(nA+2)*1024 + 16*i}")
    a("s_mov_b64 exec, -1")
    a("s_waitcnt lgkmcnt(0)")
    stamp(a, 4, True)
    a("s_barrier")
    stamp(a, 5, True)
    csx = [g.fa[0] + 4 * i for i in range(nA)]
    a(f"ds_read_b128 {vr(send[nA],4)}, v{v_xr} offset:{nA*1024}")
    a(f"ds_read_b32 v{g.acc_sum[1]}, v{v_xr} offset:{(nA+1)*1024}")
    for i in range(nA):
        a(f"ds_read_b128 {vr(send[i],4)}, v{v_xr} offset:{i*1024}")
        a(f"ds_read_b128 {vr(csx[i],4)}, v{v_xc} offset:{(nA+2)*1024 + 16*i}")
    a(f"s_waitcnt lgkmcnt({2*nA})")
    a(f"v_add_f32 v{g.acc_sum[0]}, v{g.acc_sum[0]}, v{g.acc_sum[1]}")
    for r in (0, 2):
        a(f"v_pk_add_f32 {vr(keep[nA]+r,2)}, {vr(keep[nA]+r,2)}, {vr(send[nA]+r,2)}")
    gram_diag(a, g, g.acc_sq[0], v_sq)
    for fb in range(nA):
        c, cs = g.acc[0][fb], g.acc_cs[fb]
        for r in (0, 2):
            a(f"v_pk_add_f32 {vr(c+r,2)}, {vr(c+r,2)}, {vr(send[fb]+r,2)}")
            a(f"v_pk_add_f32 {vr(cs+r,2)}, {vr(cs+r,2)}, {vr(csx[fb]+r,2)}")
    ln_stats(a, g.acc_sum[0], v_sq, v_mean, v_rstd, g.tmp)
    a(f"v_mul_f32 v{v_rstd}, {f32(QSCALE)}, v{v_rstd}")
    a(f"v_sub_f32 v{v_mean}, 0, v{v_mean}")
    stamp(a, 6, True)
    pm = vr(v_mean, 2)
    for fb in range(nA):
        c, cs = g.acc[0][fb], g.acc_cs[fb]
        for r in (0, 2):
            a(f"v_pk_fma_f32 {vr(c+r,2)}, {pm}, {vr(cs+r,2)}, {vr(c+r,2)} op_sel_hi:[0,1,1]")
        for r in (0, 2):
            a(f"v_pk_mul_f32 {vr(c+r,2)}, {vr(c+r,2)}, {pm} op_sel:[0,1] op_sel_hi:[1,1]")
        a(f"v_cvt_pk_bf16_f32 v{c}, v{c}, v{c+1}")
        a(f"v_cvt_pk_bf16_f32 v{c+1}, v{c+2}, v{c+3}")
        a(f"ds_write_b64 v{v_qw}, {vr(c,2)} offset:{fb*32}")
    stamp(a, 7, True)
    g.maxv = va.n
    return g


KVROT = int(os.environ.get("KVROT", "7"))
LATE1 = int(os.environ.get("LATE1", "1"))
CPF = int(os.environ.get("CPF", "0"))


def code_touch(a, v_t, v_d, first):
    lab = a.newlabel("pc")
    a("s_getpc_b64 s[74:75]")
    a.label(lab)
    a(f"s_sub_u32 s74, s74, {lab}-k2_attn_kernel")
    a("s_subb_u32 s75, s75, 0")
    for i in range(first, 2):
        a(f"v_lshlrev_b32 v{v_t}, 7, v0")
        if i:
            a(f"v_add_u32 v{v_t}, {i*32768}, v{v_t}")
        a(f"v_min_u32 v{v_t}, k2_code_end-k2_attn_kernel-4, v{v_t}")
        a(f"global_load_dword v{v_d}, v{v_t}, s[74:75]")


def p1_mini(a):
    t = [30, 31]
    a("v_and_b32 v0, 255, v0")
    make_srd(a, SRD0, P_X, 0, S * D * 2)
    a(f"s_bitcmp0_b32 s{S_J}, 2")
    a(f"s_cselect_b32 s{SRD3}, s{P_WK}, s{P_WV}")
    a(f"s_cselect_b32 s{SRD3+1}, s{P_WK+1}, s{P_WV+1}")
    a(f"s_mov_b32 s{SRD3+2}, {D*DH*2}")
    a(f"s_mov_b32 s{SRD3+3}, 0x00020000")
    a(f"s_and_b32 s{S_T1}, s{S_J}, 3")
    a(f"s_lshl_b32 s{S_T1}, s{S_T1}, 4")
    a(f"s_add_u32 s{S_T1}, s{S_T1}, s{S_TOK0}")
    a(f"v_and_b32 v{t[0]}, 15, v0")
    a(f"v_add_u32 v{t[0]}, s{S_T1}, v{t[0]}")
    a(f"v_mul_u32_u24 v{t[0]}, {D*2}, v{t[0]}")
    a(f"v_and_b32 v{t[1]}, 0xf0, v0")
    a(f"v_add_u32 v{t[0]}, v{t[0]}, v{t[1]}")
    a(f"v_lshlrev_b32 v{t[1]}, 4, v0")
    a(f"s_and_b32 s{S_WOFF}, s{S_WAVE}, 3")
    a(f"s_lshl_b32 s{S_WOFF}, s{S_WOFF}, 10")
    for j in range(7):
        if j < 5:
            a(f"s_add_u32 m0, s{S_WOFF}, {MX + j*4096}")
            a(f"s_mov_b32 s{S_T1}, {j*256}")
            a(f"buffer_load_dwordx4 v{t[0]}, {sr(SRD0,4)}, s{S_T1} offen lds")
        a(f"s_add_u32 m0, s{S_WOFF}, {MW + j*4096}")
        a(f"s_mov_b32 s{S_T1}, {j*4096}")
        a(f"buffer_load_dwordx4 v{t[1]}, {sr(SRD3,4)}, s{S_T1} offen lds")


def p1_loader(a, g, v_l, dma, early):
    lva = VAlloc(30)
    t = [lva() for _ in range(2)]
    v_p = lva(2, 2)
    v_pa = lva()
    make_srd(a, SRD1, P_WQ, 0, D * D * 2)
    make_srd(a, SRD2, P_WS, WS_KV, KV_SZ)
    g.ld_prepare(None, head=False, v0=40)
    g.lstamp(0)
    if LATE1 < 2:
        g.ld_issue(0)
    if LATE1 < 1:
        g.ld_issue(1)
    a(f"s_lshl_b32 s{S_KVC}, s{S_XB}, 8")
    a(f"s_add_u32 s{S_KVC}, s{S_KVC}, {(CNT_KV+8)*256}")
    a(f"v_lshlrev_b32 v{v_pa}, 3, v{v_l}")
    make_srd(a, SRD4, P_WS, WS_KN, 512)
    early()
    a(f"s_waitcnt vmcnt({len(g.ops)})")
    g.lstamp(1)
    a("s_barrier")
    if LATE1 >= 2:
        g.ld_issue(0)
    if LATE1 >= 1:
        g.ld_issue(1)
    g.ld_issue(2)
    g.ld_ready(0)
    g.ld_ready(1)

    def poll():
        a("s_mov_b64 exec, 1")
        a(f"buffer_load_dword v{t[0]}, v{v_pa}, {sr(SRDC,4)}, s{S_KVC} offen sc1")
        a("s_mov_b64 exec, -1")
        g.ops.append(("p", 0))

    def check(lab):
        last = max(i for i, o in enumerate(g.ops) if o == ("p", 0))
        a(f"s_waitcnt vmcnt({len(g.ops) - 1 - last})")
        a(f"v_readfirstlane_b32 s{S_T2}, v{t[0]}")
        a("s_nop 3")
        a(f"s_cmp_eq_u32 s{S_T2}, 0")
        a(f"s_cbranch_scc1 {lab}")

    def kv():
        a(f"buffer_load_dwordx2 {vr(v_p,2)}, v{v_pa}, {sr(SRD4,4)}, 0 offen")
        dma(13, SRD2, True)
        g.ops.extend([("d", 0)] * 14)

    lb, lb2, lb3, lj, lsp, lsd, lsc = [a.newlabel("p1") for _ in range(7)]
    g.lstamp(7)
    poll()
    g.lstamp(8)
    g.ld_issue(3)
    g.lstamp(9)
    g.ld_ready(2)
    g.lstamp(10)
    check(lb)
    base = list(g.ops)
    g.lstamp(11)
    g.ld_issue(4)
    kv()
    g.lstamp(12)
    g.ld_ready(3)
    g.ld_ready(4)
    a("s_barrier")
    a(f"s_branch {lj}")
    a.label(lb)
    g.ops[:] = base
    poll()
    g.ld_issue(4)
    g.ld_ready(3)
    check(lb2)
    base = list(g.ops)
    kv()
    g.ld_ready(4)
    a("s_barrier")
    a(f"s_branch {lj}")
    a.label(lb2)
    g.ops[:] = base
    poll()
    g.ld_ready(4)
    check(lb3)
    kv()
    a("s_barrier")
    a(f"s_branch {lj}")
    a.label(lb3)
    poll()
    a("s_barrier")
    a(f"s_mov_b32 s{S_T1}, 0x20000")
    a(f"s_branch {lsc}")
    a.label(lsp)
    a(f"s_sub_u32 s{S_T1}, s{S_T1}, 1")
    a(f"s_cmp_eq_u32 s{S_T1}, 0")
    a(f"s_cbranch_scc1 {lsd}")
    poll()
    a.label(lsc)
    check(lsp)
    a.label(lsd)
    kv()
    a.label(lj)
    g.lstamp(13)
    a("s_barrier")
    a("s_waitcnt vmcnt(13)")
    a(f"v_max_f32 v{v_p}, v{v_p}, v{v_p+1}")
    dpp_rowmax(a, v_p)
    a("s_nop 1")
    a(f"v_max_f32_dpp v{v_p}, v{v_p}, v{v_p} row_bcast:15 row_mask:0xa bank_mask:0xf")
    a("s_nop 1")
    a(f"v_max_f32_dpp v{v_p}, v{v_p}, v{v_p} row_bcast:31 row_mask:0xc bank_mask:0xf")
    a(f"v_mov_b32 v{t[0]}, {KMX}")
    a("s_mov_b32 exec_lo, 0")
    a("s_brev_b32 exec_hi, 1")
    a(f"ds_write_b32 v{t[0]}, v{v_p}")
    a("s_mov_b64 exec, -1")


def gen_k2(a):
    name = "k2_attn_kernel"
    kernel_begin(a, name)
    a("s_cmp_ge_u32 s2, 256")
    a("s_cbranch_scc1 k2_end")
    load_kernargs(a)
    a(f"s_and_b32 s{S_XB}, s2, 7")
    a(f"s_lshr_b32 s{S_J}, s2, 3")
    a(f"s_lshr_b32 s{S_T2}, s{S_J}, 3")
    a(f"s_lshl_b32 s{S_T1}, s{S_XB}, 2")
    a(f"s_add_u32 s{S_T1}, s{S_T1}, s{S_T2}")
    a(f"s_lshl_b32 s{S_TOK0}, s{S_T1}, 6")
    a(f"s_and_b32 s{S_T0}, s{S_J}, 7")
    a(f"s_mul_i32 s{S_COL}, s{S_T0}, 160")
    va = VAlloc(1)
    t = [va() for _ in range(6)]
    v_kn = va(2, 2)
    v_l16, v_lane, v_n, v_h, v_qa, v_oa = [va() for _ in range(6)]
    v_cur = [va() for _ in range(3)]
    v_nxt = [va() for _ in range(3)]
    v_m = [va(), va()]
    v_ob = va()
    v_cst = va()
    O = [va(16, 4) for _ in range(2)]
    VF = [va(8, 4) for _ in range(2)]
    v_late = va.n
    Q = [va(8, 4) for _ in range(2)]
    Sb = [[va(16, 4) for _ in range(2)] for _ in range(2)]
    P = [va(8, 4) for _ in range(2)]
    KF = [va(8, 4) for _ in range(2)]
    S_STEP, S_CNT, S_GOFF, S_HEAD = 76, 77, 78, 79
    S_VM, S_KM = 4, 6
    TB = 2560

    def kread(dst, regs, tile):
        return [f"ds_read_b128 {vr(dst,4)}, v{regs[0]} offset:{tile*TB}",
                f"ds_read_b64 {vr(dst+4,2)}, v{regs[1]} offset:{tile*TB}"]

    def vread(dst, regs, tile):
        return [f"s_mov_b64 exec, {sr(S_VM,2)}",
                f"ds_read_b128 {vr(dst,4)}, v{regs[2]} offset:{tile*TB}",
                f"ds_read_b128 {vr(dst+4,4)}, v{regs[2]} offset:{tile*TB+640}",
                "s_mov_b64 exec, -1"]

    a(f"v_lshrrev_b32 v{t[0]}, 6, v0")
    a(f"v_and_b32 v{v_lane}, 63, v0")
    a(f"v_readfirstlane_b32 s{S_WAVE}, v{t[0]}")
    a(f"v_lshlrev_b32 v{v_l16}, 4, v{v_lane}")
    a(f"v_and_b32 v{v_n}, 31, v0")
    a(f"v_bfe_u32 v{v_h}, v0, 5, 1")
    a("s_waitcnt lgkmcnt(0)")
    a(f"s_cmp_lt_u32 s{S_WAVE}, 4")
    a("s_cbranch_scc1 k2_comp")
    p1_mini(a)
    make_srd(a, SRDC, P_WS, WS_CNT, 32768)
    a("s_branch k2_helper")
    a.label("k2_comp")
    if CPF:
        code_touch(a, t[0], TDUM, 0)
    make_srd(a, SRDC, P_WS, WS_CNT, 32768)
    make_srd(a, SRD1, P_WS, WS_KV, KV_SZ)
    def init():
        a(f"s_mul_i32 s{S_T1}, s{S_WAVE}, 40")
        a(f"s_add_u32 s{S_T2}, s{S_T1}, {QST}")
        a(f"v_mul_u32_u24 v{t[1]}, 160, v{v_n}")
        a(f"v_add_u32 v{v_ob}, s{S_T2}, v{t[1]}")
        a(f"v_lshl_add_u32 v{v_qa}, v{v_h}, 4, v{v_ob}")
        a(f"v_lshl_add_u32 v{t[2]}, v{v_h}, 3, s{S_T1}")
        a(f"v_lshrrev_b32 v{t[3]}, 4, v{t[2]}")
        a(f"v_and_b32 v{t[2]}, 8, v{t[2]}")
        a(f"v_lshl_add_u32 v{t[2]}, v{t[3]}, 8, v{t[2]}")
        a(f"v_and_b32 v{t[3]}, 15, v{v_n}")
        a(f"v_lshl_add_u32 v{t[2]}, v{t[3]}, 4, v{t[2]}")
        a(f"v_lshrrev_b32 v{t[3]}, 4, v{v_n}")
        a(f"v_mul_u32_u24 v{t[3]}, 2560, v{t[3]}")
        a(f"v_add_u32 v{v_oa}, v{t[2]}, v{t[3]}")
        for b in range(2):
            for i in range(16):
                a(f"v_mov_b32 v{O[b]+i}, 0")
            for i in range(8):
                a(f"v_mov_b32 v{VF[b]+i}, 0x3f803f80")
        a(f"s_mov_b32 s{S_VM}, 0x000fffff")
        a(f"s_mov_b32 s{S_VM+1}, 0x000fffff")
        a(f"v_mov_b32 v{v_cur[0]}, v{v_l16}")
        a(f"v_lshlrev_b32 v{v_cur[1]}, 3, v{v_n}")
        a(f"v_add_u32 v{v_cur[1]}, 1024, v{v_cur[1]}")
        a(f"v_mul_u32_u24 v{t[0]}, 320, v{v_h}")
        a(f"v_lshl_add_u32 v{v_cur[2]}, v{v_n}, 4, v{t[0]}")
        a(f"v_add_u32 v{v_cur[2]}, 1280, v{v_cur[2]}")
        for i in range(3):
            a(f"v_add_u32 v{v_nxt[i]}, {8*TB}, v{v_cur[i]}")
    assert VF[1] + 8 - O[0] == 48
    make_srd(a, SRD4, P_WS, WS_O, S * D * 2)
    make_srd(a, SRD2, P_X, 0, S * D * 2)
    for r in v_nxt + v_cur:
        a(f"v_mov_b32 v{r}, 0")
    gq = p1_compute(a, t, v_late, O[0], init)
    for b in range(2):
        a(f"v_mov_b32 v{KF[b]+6}, 0x3f80")
        a(f"v_mov_b32 v{KF[b]+7}, 0")
        a(f"v_mov_b32 v{Q[b]+7}, 0")
    for i in range(8):
        a(f"v_mov_b32 v{P[1]+i}, 0")
    for i in range(12, 16):
        a(f"v_mov_b32 v{Sb[1][1]+i}, 0")
    a(f"v_cmp_eq_u32 vcc, 0, v{v_h}")
    a(f"v_mov_b32 v{t[0]}, {KMX}")
    a("s_waitcnt lgkmcnt(0)")
    stamp(a, 8, True)
    a("s_barrier")
    stamp(a, 9, True)
    a(f"ds_read_b32 v{v_kn}, v{t[0]}")
    for b in range(2):
        a(f"ds_read_b64 {vr(Q[b],2)}, v{v_qa} offset:{b*5120}")
        a(f"ds_read_b64 {vr(Q[b]+2,2)}, v{v_qa} offset:{b*5120+8}")
        a(f"ds_read_b64 {vr(Q[b]+4,2)}, v{v_ob} offset:{b*5120+32}")
    for l in kread(KF[0], v_cur, 0) + kread(KF[1], v_cur, 1) + vread(VF[0], v_cur, 0):
        a(l)
    a("s_waitcnt lgkmcnt(6)")
    a(f"v_readfirstlane_b32 s{S_KM}, v{v_kn}")
    for b in range(2):
        a(f"v_cndmask_b32 v{Q[b]+4}, 0, v{Q[b]+4}, vcc")
        a(f"v_cndmask_b32 v{Q[b]+5}, 0, v{Q[b]+5}, vcc")
    for i in range(6):
        for b in range(2):
            a(f"v_dot2_f32_bf16 v{t[2+b]}, v{Q[b]+i}, v{Q[b]+i}, " + ("0" if i == 0 else f"v{t[2+b]}"))
    a("s_nop 2")
    for b in range(2):
        a(f"v_mov_b32 v{t[b]}, v{t[2+b]}")
    a("s_nop 1")
    for b in range(2):
        a(f"v_permlane32_swap_b32 v{t[b]}, v{t[2+b]}")
    a("s_nop 1")
    for b in range(2):
        a(f"v_add_f32 v{t[b]}, v{t[b]}, v{t[2+b]}")
    for b in range(2):
        a(f"v_mul_f32 v{t[b]}, s{S_KM}, v{t[b]}")
    for b in range(2):
        a(f"v_sqrt_f32 v{t[b]}, v{t[b]}")
    a("s_nop 0")
    for b in range(2):
        a(f"v_cvt_pk_bf16_f32 v{t[b]}, -v{t[b]}, 0")
    for b in range(2):
        a(f"v_cndmask_b32 v{Q[b]+6}, 0, v{t[b]}, vcc")
    a("s_waitcnt lgkmcnt(0)")

    def qk(b, par, s, kf):
        d = vr(Sb[b][par], 16)
        c = "0" if s == 0 else d
        return f"v_mfma_f32_32x32x16_bf16 {d}, {vr(kf+4*s,4)}, {vr(Q[b]+4*s,4)}, {c}"

    def pv(b, s, vf):
        d = vr(O[b], 16)
        return f"v_mfma_f32_32x32x16_bf16 {d}, {vr(vf+4*s,4)}, {vr(P[b]+4*s,4)}, {d}"

    for b in range(2):
        a(qk(b, 0, 0, KF[0]))
        a(qk(b, 0, 1, KF[0]))
    a("s_nop 7")
    a("s_nop 7")
    a(f"s_mov_b32 s{S_CNT}, 8")
    stamp(a, 2)
    rstamp(a, 10)
    a.label("k2_loop")

    def exps(b, par, i0):
        return [f"v_exp_f32 v{Sb[b][par]+i}, v{Sb[b][par]+i}" for i in range(i0, i0 + 4)]

    def cvts(b, par, i0):
        return [f"v_cvt_pk_bf16_f32 v{P[b]+(i0+i)//2}, v{Sb[b][par]+i0+i}, v{Sb[b][par]+i0+i+1}" for i in (0, 2)]

    for ph in range(8):
        p = ph & 1
        q = p ^ 1
        kt, vt = ph + 2, ph + 1
        kr = kread(KF[p], v_cur if kt < 8 else v_nxt, kt % 8)
        vrd = vread(VF[q], v_cur if vt < 8 else v_nxt, vt % 8)
        M = [qk(0, q, 0, KF[q]), pv(1, 1, VF[q]), qk(0, q, 1, KF[q]), pv(0, 0, VF[p]),
             qk(1, q, 0, KF[q]), pv(0, 1, VF[p]), qk(1, q, 1, KF[q]), pv(1, 0, VF[p])]
        V = [cvts(1, q, 12) + exps(0, p, 0),
             exps(0, p, 4),
             cvts(0, p, 0) + cvts(0, p, 4) + exps(0, p, 8),
             cvts(0, p, 8) + exps(0, p, 12),
             cvts(0, p, 12) + exps(1, p, 0),
             exps(1, p, 4),
             cvts(1, p, 0) + cvts(1, p, 4) + exps(1, p, 8),
             cvts(1, p, 8) + exps(1, p, 12)]
        extra = [[] for _ in range(8)]
        if ph == 2:
            a(f"s_bitcmp1_b32 0x140, s{S_CNT}")
            a("s_cbranch_scc1 k2_sy")
            a.label("k2_nb1")
        a("s_waitcnt lgkmcnt(0)")
        extra[0] += kr
        extra[2] += vrd
        for i in range(8):
            a(M[i])
            for l in extra[i]:
                a(l)
            for l in V[i]:
                a(l)
    if INSTR:
        a("s_memtime s[98:99]")
        a("s_waitcnt lgkmcnt(0)")
        a("s_sub_u32 s98, s98, s80")
        a(f"s_mov_b32 m0, s{S_CNT}")
        a("s_nop 0")
        a(f"v_writelane_b32 v{v_cst}, s98, m0")
    a(f"s_cmp_eq_u32 s{S_CNT}, 2")
    a(f"s_cselect_b32 s{S_STEP}, 0, {8*TB}")
    for i in range(3):
        a(f"v_mov_b32 v{v_cur[i]}, v{v_nxt[i]}")
        a(f"v_add_u32 v{v_nxt[i]}, s{S_STEP}, v{v_nxt[i]}")
    a("s_cbranch_scc0 k2_nb")
    a("s_mov_b64 exec, 1")
    a(f"ds_add_u32 v{v_l16}, v{KF[0]+6}")
    a("s_mov_b64 exec, -1")
    a.label("k2_nb")
    a(f"s_sub_u32 s{S_CNT}, s{S_CNT}, 1")
    a(f"s_cmp_lg_u32 s{S_CNT}, 0")
    a("s_cbranch_scc1 k2_loop")
    for l in cvts(1, 1, 12):
        a(l)
    a("s_nop 1")
    a(pv(1, 1, VF[1]))
    a("s_waitcnt vmcnt(0) lgkmcnt(0)")
    a("s_nop 7")
    a("s_nop 7")
    stamp(a, 3)
    rstamp(a, 0)
    a(f"v_mov_b32 v{t[0]}, {f32(2.0**-40)}")
    a(f"v_cmp_nge_f32 s[74:75], v{O[0]+12}, v{t[0]}")
    a(f"v_cmp_nge_f32 vcc, v{O[1]+12}, v{t[0]}")
    a("s_nop 3")
    a("s_or_b64 vcc, vcc, s[74:75]")
    a("s_cbranch_vccnz k2_slow")
    a.label("k2_epi")
    for b in range(2):
        a(f"v_rcp_f32 v{t[0]}, v{O[b]+12}")
        a("s_nop 0")
        for i in range(12):
            a(f"v_mul_f32 v{O[b]+i}, v{O[b]+i}, v{t[0]}")
        for i in range(6):
            a(f"v_cvt_pk_bf16_f32 v{O[b]+i}, v{O[b]+2*i}, v{O[b]+2*i+1}")
    a(f"v_mov_b32 v{t[0]}, {TAB + 3072}")
    for i in range(4):
        a(f"v_mov_b32 v{P[0]+i}, 0")
    a(f"s_mul_i32 s{S_T1}, s{S_WAVE}, 2560")
    a(f"v_add_u32 v{t[1]}, s{S_T1}, v{v_l16}")
    a(f"s_lshr_b32 s{S_KW}, s{S_TOK0}, 4")
    a(f"s_add_u32 s{S_KW}, s{S_KW}, s{S_WAVE}")
    a(f"s_mul_i32 s{S_KW}, s{S_KW}, {16*D*2}")
    a(f"s_lshl_b32 s{S_T1}, s{S_COL}, 4")
    a(f"s_add_u32 s{S_KW}, s{S_KW}, s{S_T1}")
    a("s_barrier")
    a(f"ds_write_b128 v{t[0]}, {vr(P[0],4)}")
    for b in range(2):
        a(f"ds_write_b64 v{v_oa}, {vr(O[b],2)} offset:{b*5120}")
        a(f"ds_write_b64 v{v_oa}, {vr(O[b]+2,2)} offset:{b*5120+256}")
    a("s_mov_b64 exec, 0xffffffff")
    for b in range(2):
        a(f"ds_write_b64 v{v_oa}, {vr(O[b]+4,2)} offset:{b*5120+512}")
    a("s_mov_b64 exec, -1")
    a("s_waitcnt lgkmcnt(0)")
    a("s_barrier")
    for i in range(3):
        a(f"ds_read_b128 {vr(O[0]+4*i,4)}, v{t[1]} offset:{i*1024}")
    for i in range(3):
        a(f"s_waitcnt lgkmcnt({2-i})")
        if i == 2:
            a("s_mov_b64 exec, 0xffffffff")
        a(f"buffer_store_dwordx4 {vr(O[0]+4*i,4)}, v{v_l16}, {sr(SRD4,4)}, s{S_KW} offen offset:{i*1024} {HPOL}")
    def otouch():
        a(f"v_lshlrev_b32 v{t[3]}, 3, v{v_l16}")
        a("s_mov_b64 exec, 0xfffff")
        a(f"buffer_load_dword v{TDUM}, v{t[3]}, {sr(SRD4,4)}, s{S_KW} offen")
    publish(a, t, 2, otouch)
    if INSTR and not P1ST:
        lab = a.newlabel("hs")
        a(f"s_cmp_lg_u32 s2, {INSTR_WG}")
        a(f"s_cbranch_scc1 {lab}")
        a(f"s_cmp_lg_u32 s{S_WAVE}, 0")
        a(f"s_cbranch_scc1 {lab}")
        make_srd(a, 92, P_DBG, 0, 256)
        a(f"v_lshlrev_b32 v{t[0]}, 2, v{v_lane}")
        a(f"buffer_store_dword v{v_cst}, v{t[0]}, s[92:95], 0 offen offset:192")
        a.label(lab)
    ffn = ffn_compute(a)
    a.label("k2_end")
    a("s_endpgm")

    a.label("k2_sy")
    a(f"s_cmp_eq_u32 s{S_CNT}, 6")
    a("s_cbranch_scc1 k2_sy2")
    a("s_barrier")
    a("s_branch k2_nb1")
    a.label("k2_sy2")
    assert t[1] % 2 == 0
    kv_wait(a, v_l16, t[1], 0)
    for fb in range(5):
        a(f"buffer_load_dwordx2 {vr(RES3+2*fb,2)}, v{V_RAD}, {sr(SRD2,4)}, 0 offen offset:{fb*32}")
    a("s_branch k2_nb1")

    def rewind():
        for i in range(3):
            a(f"v_subrev_u32 v{v_nxt[i]}, {56*TB}, v{v_cur[i]}")
        a(f"s_mov_b32 s{S_GOFF}, 0")

    def advance(lab):
        a(f"s_add_u32 s{S_GOFF}, s{S_GOFF}, {TB}")
        a(f"s_cmp_lt_u32 s{S_GOFF}, {64*TB}")
        a(f"s_cbranch_scc1 {lab}")

    def gkread(dst):
        return [f"buffer_load_dwordx4 {vr(dst,4)}, v{v_nxt[0]}, {sr(SRD1,4)}, s{S_GOFF} offen",
                f"buffer_load_dwordx2 {vr(dst+4,2)}, v{v_nxt[1]}, {sr(SRD1,4)}, s{S_GOFF} offen"]

    def gvread(dst):
        return [f"s_mov_b64 exec, {sr(S_VM,2)}",
                f"buffer_load_dwordx4 {vr(dst,4)}, v{v_nxt[2]}, {sr(SRD1,4)}, s{S_GOFF} offen",
                f"buffer_load_dwordx4 {vr(dst+4,4)}, v{v_nxt[2]}, {sr(SRD1,4)}, s{S_GOFF} offen offset:640",
                "s_mov_b64 exec, -1"]

    a.label("k2_slow")
    for b in range(2):
        a(f"v_mov_b32 v{Q[b]+6}, 0")
        a(f"v_mov_b32 v{v_m[b]}, 0xff800000")
    rewind()
    a.label("k2_slow1")
    for l in gkread(KF[0]):
        a(l)
    a("s_waitcnt vmcnt(0)")
    for b in range(2):
        a(qk(b, 0, 0, KF[0]))
        a(qk(b, 0, 1, KF[0]))
    a("s_nop 7")
    a("s_nop 7")
    for b in range(2):
        for i in range(0, 16, 2):
            a(f"v_max3_f32 v{v_m[b]}, v{Sb[b][0]+i}, v{Sb[b][0]+i+1}, v{v_m[b]}")
    advance("k2_slow1")
    a(f"v_cmp_eq_u32 vcc, 0, v{v_h}")
    for b in range(2):
        xlane_add(a, v_m[b], v_lane, t[0], t[1], (32,), op="v_max_f32")
        a(f"v_cvt_pk_bf16_f32 v{t[2]}, -v{v_m[b]}, 0")
        a(f"v_cndmask_b32 v{Q[b]+6}, 0, v{t[2]}, vcc")
        for i in range(16):
            a(f"v_mov_b32 v{O[b]+i}, 0")
    rewind()
    a.label("k2_slow2")
    for l in gkread(KF[0]) + gvread(VF[0]):
        a(l)
    a("s_waitcnt vmcnt(0)")
    for b in range(2):
        a(qk(b, 0, 0, KF[0]))
        a(qk(b, 0, 1, KF[0]))
    a("s_nop 7")
    a("s_nop 7")
    for b in range(2):
        for i0 in range(0, 16, 4):
            for l in exps(b, 0, i0):
                a(l)
        a("s_nop 0")
        for i0 in range(0, 16, 4):
            for l in cvts(b, 0, i0):
                a(l)
    a("s_nop 1")
    for b in range(2):
        a(pv(b, 0, VF[0]))
        a(pv(b, 1, VF[0]))
    a("s_nop 7")
    a("s_nop 7")
    advance("k2_slow2")
    a("s_branch k2_epi")

    a.label("k2_helper")
    hva = VAlloc(v_h + 1)
    lt = t
    v_l = v_lane
    S_U, S_SRC, S_DST, S_RW = S_T0, S_T1, S_KW, S_ROT
    S_G = S_IMG
    cnt = [0]

    def dma(n, srd, first=False):
        if first:
            cnt[0] = 0
            a(f"s_mov_b32 s{S_KX}, s{S_WOFF}")
            a(f"s_and_b32 s{S_G}, s{S_J}, {KVROT}")
            a(f"s_mul_i32 s{S_G}, s{S_G}, 20480")
            a(f"s_add_u32 s{S_G}, s{S_G}, s{S_WOFF}")
        for i in range(n):
            a(f"s_mov_b32 m0, s{S_KX}")
            a(f"s_add_u32 s{S_KX}, s{S_KX}, 4096")
            a(f"buffer_load_dwordx4 v{v_l16}, {sr(srd,4)}, s{S_G} offen lds")
            a(f"s_add_u32 s{S_G}, s{S_G}, 4096")
            cnt[0] += 1
            if cnt[0] % 5 == 0:
                a(f"s_cmp_ge_u32 s{S_G}, {KV_SZ}")
                a(f"s_cselect_b32 s{S_T2}, {KV_SZ}, 0")
                a(f"s_sub_u32 s{S_G}, s{S_G}, s{S_T2}")
    pva = VAlloc(132)
    sel = pva(4, 4)
    pa = [pva() for _ in range(5)]
    pb = [pva() for _ in range(3)]
    v_rb, v_kf, v_km, v_ca, v_co = [pva() for _ in range(5)]

    def gather(regs, cprw, magic, stride):
        for i, r in enumerate(regs):
            a(f"v_add_u32 v{lt[0]}, {i*64}, v{v_l}")
            a(f"v_mul_u32_u24 v{lt[1]}, {magic}, v{lt[0]}")
            a(f"v_lshrrev_b32 v{lt[1]}, 19, v{lt[1]}")
            a(f"v_mul_u32_u24 v{lt[2]}, {cprw}, v{lt[1]}")
            a(f"v_sub_u32 v{lt[2]}, v{lt[0]}, v{lt[2]}")
            a(f"v_and_b32 v{lt[3]}, 0xfffffff3, v{lt[1]}")
            a(f"v_bfe_u32 v{lt[4]}, v{lt[1]}, 2, 1")
            if cprw == 12:
                a(f"v_lshlrev_b32 v{lt[5]}, 1, v{lt[4]}")
                a(f"v_xor_b32 v{lt[2]}, v{lt[2]}, v{lt[5]}")
            a(f"v_lshl_or_b32 v{lt[3]}, v{lt[4]}, 3, v{lt[3]}")
            a(f"v_bfe_u32 v{lt[4]}, v{lt[1]}, 3, 1")
            a(f"v_lshl_or_b32 v{lt[3]}, v{lt[4]}, 2, v{lt[3]}")
            a(f"v_mul_u32_u24 v{lt[3]}, {stride}, v{lt[3]}")
            a(f"v_lshl_add_u32 v{r}, v{lt[2]}, 4, v{lt[3]}")

    def early():
        gather(pb, 12, 43691, F * 2)
        gather(pa, 10, 52429, D * 2)
        a(f"v_lshlrev_b32 v{v_rb}, 7, v{v_l}")
        a(f"s_lshl_b32 s{S_T2}, s{S_WAVE}, 2")
        a(f"v_mov_b32 v{v_kf}, s{S_T2}")
        a(f"v_mov_b32 v{v_km}, -1")
        a(f"v_lshrrev_b32 v{lt[0]}, 3, v{v_l}")
        a(f"v_mul_u32_u24 v{lt[0]}, {F*2}, v{lt[0]}")
        a(f"v_and_b32 v{lt[1]}, 7, v{v_l}")
        a(f"v_lshl_add_u32 v{v_ca}, v{lt[1]}, 4, v{lt[0]}")
        a(f"v_and_b32 v{lt[0]}, 16, v{v_l}")
        a(f"v_lshl_add_u32 v{v_co}, v{lt[1]}, 5, v{lt[0]}")
        a(f"v_and_b32 v{lt[0]}, 1, v{v_l}")
        a(f"v_lshlrev_b32 v{lt[0]}, 4, v{lt[0]}")
        a(f"v_mov_b32 v{lt[1]}, 0x3f80")
        a(f"v_lshlrev_b32 v{lt[0]}, v{lt[0]}, v{lt[1]}")
        a(f"v_bfe_u32 v{lt[1]}, v{v_l}, 1, 3")
        for i in range(4):
            a(f"v_cmp_eq_u32 vcc, {i}, v{lt[1]}")
            a(f"v_cndmask_b32 v{sel+i}, 0, v{lt[0]}, vcc")
    p1_loader(a, gq, v_l, dma, early)
    a(f"s_and_b32 s{S_WOFF}, s{S_WAVE}, 3")
    a(f"s_lshl_b32 s{S_RW}, s2, 2")
    a(f"s_add_u32 s{S_RW}, s{S_RW}, s{S_WOFF}")
    a(f"s_lshl_b32 s{S_T2}, s{S_J}, 2")
    a(f"s_add_u32 s{S_J}, s{S_T2}, s{S_WOFF}")
    make_srd(a, SRD3, P_WS, WS_IMG, IMG_SZ)
    a("s_waitcnt vmcnt(10) lgkmcnt(0)")
    a("s_barrier")
    a("s_waitcnt vmcnt(0)")
    a("s_barrier")
    gq.lstamp(14)
    dma(27, SRD2)
    gq.lstamp(15)
    lab = a.newlabel("fc")
    a(f"s_cmp_lg_u32 s{S_RW}, 0")
    a(f"s_cbranch_scc1 {lab}")
    make_srd(a, SRD5, P_DBG, 0, 256)
    a("s_mov_b64 exec, 1")
    a(f"v_mov_b32 v{lt[0]}, 0")
    a(f"buffer_store_dword v{lt[0]}, v{lt[0]}, {sr(SRD5,4)}, 0 offen offset:{FLAG} sc1")
    a("s_mov_b64 exec, -1")
    a.label(lab)
    lab = a.newlabel("zw")
    a(f"s_cmp_lg_u32 s{S_WAVE}, 4")
    a(f"s_cbranch_scc1 {lab}")
    a(f"v_mov_b32 v{lt[0]}, 0")
    a(f"ds_write2_b32 v{lt[0]}, v{lt[0]}, v{lt[0]} offset0:0 offset1:1")
    a.label(lab)

    def kvdone(n):
        a(f"s_waitcnt vmcnt({n})")
        a(f"ds_write_b32 v{v_kf}, v{v_km}")
        gq.lstamp(16)
        if INSTR:
            a("s_waitcnt vmcnt(0)")
            gq.lstamp(17)
    dummy = hva()

    def touch():
        for c in range(3):
            if c == 0:
                a(f"s_mul_i32 s{S_T1}, s{S_J}, {50*128}")
            else:
                a(f"s_mul_i32 s{S_T1}, s{S_J}, {120*128}")
                a(f"s_and_b32 s{S_T0}, s{S_XB}, 1")
                a(f"s_mul_i32 s{S_T0}, s{S_T0}, {1966080}")
                a(f"s_add_u32 s{S_T1}, s{S_T1}, s{S_T0}")
                a(f"s_add_u32 s{S_T1}, s{S_T1}, {IMG_GU + (c-1)*56*128}")
            a(f"buffer_load_dword v{dummy}, v{v_rb}, {sr(SRD3,4)}, s{S_T1} offen")
            if c < 2:
                a(f"s_sleep {TSLEEP2}")

    bufB = [hva(12, 4) for _ in range(2)]
    bufA = hva(20, 4)

    def loadsB(buf):
        a(f"s_mul_i32 s{S_SRC}, s{S_U}, 52429")
        a(f"s_lshr_b32 s{S_SRC}, s{S_SRC}, 22")
        a(f"s_mul_i32 s{S_DST}, s{S_SRC}, 80")
        a(f"s_sub_u32 s{S_T2}, s{S_U}, s{S_DST}")
        a(f"s_mul_i32 s{S_SRC}, s{S_SRC}, 192")
        a(f"s_lshr_b32 s{S_DST}, s{S_T2}, 3")
        a(f"s_lshl_b32 s{S_DST}, s{S_DST}, 2")
        a(f"s_and_b32 s{S_KX}, s{S_T2}, 3")
        a(f"s_add_u32 s{S_DST}, s{S_DST}, s{S_KX}")
        a(f"s_mul_i32 s{S_DST}, s{S_DST}, {16*F*2}")
        a(f"s_add_u32 s{S_SRC}, s{S_SRC}, s{S_DST}")
        a(f"s_bitcmp1_b32 s{S_T2}, 2")
        a(f"s_cselect_b32 s{SRD0}, s{P_WU}, s{P_WG}")
        a(f"s_cselect_b32 s{SRD0+1}, s{P_WU+1}, s{P_WG+1}")
        a(f"s_mov_b32 s{SRD0+2}, {F*D*2}")
        for i in range(3):
            a(f"buffer_load_dwordx4 {vr(buf+4*i,4)}, v{pb[i]}, {sr(SRD0,4)}, s{S_SRC} offen")

    def storesB(buf):
        a(f"s_mul_i32 s{S_DST}, s{S_U}, 3072")
        a(f"s_add_u32 s{S_DST}, s{S_DST}, {IMG_GU}")
        for i in range(3):
            a(f"buffer_store_dwordx4 {vr(buf+4*i,4)}, v{v_l16}, {sr(SRD3,4)}, s{S_DST} offen offset:{i*1024} {IMGPOL}")

    a(f"s_mov_b32 s{S_U}, s{S_RW}")
    loadsB(bufB[0])
    a(f"s_cmp_lt_u32 s{S_RW}, 544")
    a("s_cbranch_scc1 k2_rpa")
    a(f"s_add_u32 s{S_U}, s{S_RW}, {1024 - 544}")
    a(f"s_cmp_ge_u32 s{S_U}, 1280")
    a("s_cbranch_scc1 k2_rpe")
    loadsB(bufB[1])
    kvdone(6)
    a("s_waitcnt vmcnt(0)")
    storesB(bufB[1])
    a("s_branch k2_rpf")
    a.label("k2_rpa")
    l1, l2 = a.newlabel("ra"), a.newlabel("ra")
    a(f"s_cmp_ge_u32 s{S_RW}, 160")
    a(f"s_cbranch_scc1 {l1}")
    a(f"s_mul_i32 s{S_SRC}, s{S_RW}, 3277")
    a(f"s_lshr_b32 s{S_SRC}, s{S_SRC}, 16")
    a(f"s_mul_i32 s{S_DST}, s{S_SRC}, 20")
    a(f"s_sub_u32 s{S_DST}, s{S_RW}, s{S_DST}")
    a(f"s_mov_b32 s{SRD0}, s{P_WO}")
    a(f"s_mov_b32 s{SRD0+1}, s{P_WO+1}")
    a(f"s_mov_b32 s{SRD0+2}, {D*D*2}")
    a(f"s_branch {l2}")
    a.label(l1)
    a(f"s_sub_u32 s{S_U}, s{S_RW}, 160")
    a(f"s_mul_i32 s{S_SRC}, s{S_U}, 1366")
    a(f"s_lshr_b32 s{S_SRC}, s{S_SRC}, 16")
    a(f"s_mul_i32 s{S_DST}, s{S_SRC}, 48")
    a(f"s_sub_u32 s{S_DST}, s{S_U}, s{S_DST}")
    a(f"s_mov_b32 s{SRD0}, s{P_WD}")
    a(f"s_mov_b32 s{SRD0+1}, s{P_WD+1}")
    a(f"s_mov_b32 s{SRD0+2}, {F*D*2}")
    a.label(l2)
    a(f"s_mul_i32 s{S_SRC}, s{S_SRC}, 160")
    a(f"s_mul_i32 s{S_DST}, s{S_DST}, {32*D*2}")
    a(f"s_add_u32 s{S_SRC}, s{S_SRC}, s{S_DST}")
    for i in range(5):
        a(f"buffer_load_dwordx4 {vr(bufA+4*i,4)}, v{pa[i]}, {sr(SRD0,4)}, s{S_SRC} offen")
    a(f"s_mul_i32 s{S_DST}, s{S_RW}, 5120")
    kvdone(8)
    a("s_waitcnt vmcnt(0)")
    for i in range(5):
        if i == 4:
            a(f"s_add_u32 s{S_DST}, s{S_DST}, 4096")
        a(f"buffer_store_dwordx4 {vr(bufA+4*i,4)}, v{v_l16}, {sr(SRD3,4)}, s{S_DST} offen offset:{(i%4)*1024} {IMGPOL}")
    a("s_branch k2_rpf")
    a.label("k2_rpe")
    kvdone(3)
    a("s_waitcnt vmcnt(0)")
    a.label("k2_rpf")
    a(f"s_mov_b32 s{S_U}, s{S_RW}")
    storesB(bufB[0])
    if INSTR:
        a("s_waitcnt vmcnt(0)")
        a("s_memrealtime s[100:101]")
        a("s_waitcnt lgkmcnt(0)")
        lab = a.newlabel("hw")
        a(f"s_cmp_lg_u32 s{S_WAVE}, 4")
        a(f"s_cbranch_scc1 {lab}")
        make_srd(a, 40, P_WS, WS_TL + 4096 + 2048, 2048)
        a("v_mov_b32 v2, s82")
        a("v_mov_b32 v3, s100")
        a("s_lshl_b32 s98, s2, 3")
        a("v_mov_b32 v1, s98")
        a("buffer_store_dwordx2 v[2:3], v1, s[40:43], 0 offen")
        a.label(lab)
    def arrive2(s_sh, n, root, out):
        a(f"v_mov_b32 v{lt[2]}, 1")
        a("s_waitcnt vmcnt(0)")
        a(f"buffer_atomic_add v{lt[2]}, v{lt[0]}, {sr(SRDC,4)}, s{s_sh} offen sc0 sc1")
        a("s_waitcnt vmcnt(0)")
        a(f"v_readfirstlane_b32 s{S_T2}, v{lt[2]}")
        a(f"v_mov_b32 v{lt[2]}, 1")
        a(f"s_mov_b32 s{s_sh}, {root}")
        a("s_nop 2")
        a(f"s_cmp_lg_u32 s{S_T2}, {n-1}")
        a(f"s_cbranch_scc1 {out}")
        a(f"buffer_atomic_add v{lt[2]}, v{lt[0]}, {sr(SRDC,4)}, s{s_sh} offen sc0 sc1")
        a("s_waitcnt vmcnt(0)")
        a(f"v_readfirstlane_b32 s{S_T2}, v{lt[2]}")
        a("s_nop 3")
        a(f"s_cmp_lg_u32 s{S_T2}, 15")
        a(f"s_cbranch_scc1 {out}")
        a("s_mov_b64 exec, 0xff")
        a(f"v_lshlrev_b32 v{lt[3]}, 8, v{v_l}")
        a(f"v_mov_b32 v{lt[2]}, 1")
        a(f"buffer_store_dword v{lt[2]}, v{lt[3]}, {sr(SRDC,4)}, s{s_sh} offen offset:2048 sc1")

    def gpoll(off, add):
        l0, l1, l2 = [a.newlabel("gp") for _ in range(3)]
        a("s_mov_b64 exec, 1")
        a(f"v_mov_b32 v{lt[0]}, 0")
        a(f"s_cmp_lg_u32 s{S_HOOK}, 3")
        a(f"s_cbranch_scc1 {l2}")
        a(f"s_lshl_b32 s{S_T0}, s{S_XB}, 8")
        a(f"s_add_u32 s{S_T0}, s{S_T0}, {off}")
        a(f"s_mov_b32 s{S_KX}, 0x8000")
        a.label(l0)
        a(f"buffer_load_dword v{lt[2]}, v{lt[0]}, {sr(SRDC,4)}, s{S_T0} offen sc1")
        a(f"s_sub_u32 s{S_KX}, s{S_KX}, 1")
        a("s_waitcnt vmcnt(0)")
        a(f"v_readfirstlane_b32 s{S_T2}, v{lt[2]}")
        a(f"s_cmp_eq_u32 s{S_KX}, 0")
        a(f"s_cbranch_scc1 {l1}")
        a("s_nop 1")
        a(f"s_cmp_lg_u32 s{S_T2}, 0")
        a(f"s_cbranch_scc1 {l1}")
        a(f"s_sleep {TSLEEP[0]}")
        a(f"s_branch {l0}")
        a.label(l1)
        a(f"v_mov_b32 v{lt[1]}, {add}")
        a(f"ds_add_u32 v{lt[0]}, v{lt[1]}")
        a.label(l2)

    kq = hva(4, 4)
    a("s_mov_b64 exec, 1")
    a(f"v_mov_b32 v{lt[0]}, 0")
    a(f"v_mov_b32 v{lt[1]}, 1")
    a(f"s_and_b32 s{S_T1}, s2, 15")
    a(f"s_lshl_b32 s{S_T1}, s{S_T1}, 8")
    a(f"s_add_u32 s{S_T1}, s{S_T1}, {112*256}")
    gq.lstamp(18)
    kv_wait(a, lt[0], kq, 1)
    a("s_waitcnt vmcnt(0)")
    gq.lstamp(19)
    a(f"ds_add_rtn_u32 v{lt[2]}, v{lt[0]}, v{lt[1]} offset:4")
    a("s_waitcnt lgkmcnt(0)")
    a(f"v_readfirstlane_b32 s{S_HOOK}, v{lt[2]}")
    a("s_nop 3")
    a(f"s_cmp_lg_u32 s{S_HOOK}, 3")
    a("s_cbranch_scc1 k2_lw")
    arrive2(S_T1, 16, CNT_IMG*256, "k2_lw")
    a.label("k2_lw")
    a("s_mov_b64 exec, -1")
    csb = hva(40, 4)
    cacc = hva(4, 4)
    assert hva.n <= 132
    a(f"s_cmp_lt_u32 s{S_RW}, {1024 - 48*NCS}")
    a("s_cbranch_scc1 k2_ncs")
    a(f"s_sub_u32 s{S_T2}, s{S_RW}, {1024 - 48*NCS}")
    a(f"s_mul_i32 s{S_U}, s{S_T2}, 1366")
    a(f"s_lshr_b32 s{S_U}, s{S_U}, 16")
    a(f"s_mul_i32 s{S_SRC}, s{S_U}, 48")
    a(f"s_sub_u32 s{S_SRC}, s{S_T2}, s{S_SRC}")
    a(f"s_cmp_lt_u32 s{S_SRC}, 24")
    a(f"s_cselect_b32 s{SRD0}, s{P_WG}, s{P_WU}")
    a(f"s_cselect_b32 s{SRD0+1}, s{P_WG+1}, s{P_WU+1}")
    a(f"s_mov_b32 s{SRD0+2}, {F*D*2}")
    a(f"s_cselect_b32 s{S_DST}, 0, 24")
    a(f"s_sub_u32 s{S_SRC}, s{S_SRC}, s{S_DST}")
    a(f"s_lshl_b32 s{S_SRC}, s{S_SRC}, 7")
    a(f"s_mul_i32 s{S_U}, s{S_U}, {80*F*2}")
    a(f"s_add_u32 s{S_SRC}, s{S_SRC}, s{S_U}")
    for i in range(10):
        a(f"buffer_load_dwordx4 {vr(csb+4*i,4)}, v{v_ca}, {sr(SRD0,4)}, s{S_SRC} offen")
        a(f"s_add_u32 s{S_SRC}, s{S_SRC}, {8*F*2}")
    make_srd(a, SRD4, P_WS, WS_CS, NCS * 3072 * 4)
    a(f"s_lshl_b32 s{S_T2}, s{S_T2}, 8")
    for i in range(10):
        a(f"s_waitcnt vmcnt({9-i})")
        a(f"v_mfma_f32_16x16x32_bf16 {vr(cacc,4)}, {vr(sel,4)}, {vr(csb+4*i,4)}, " + ("0" if i == 0 else vr(cacc, 4)))
    a("s_nop 7")
    a("s_nop 7")
    for j in range(4):
        a(f"v_add_f32_dpp v{cacc+j}, v{cacc+j}, v{cacc+j} row_ror:8 row_mask:0xf bank_mask:0xf")
    a(f"s_mov_b64 exec, 0x00ff00ff")
    a(f"buffer_store_dwordx4 {vr(cacc,4)}, v{v_co}, {sr(SRD4,4)}, s{S_T2} offen sc1")
    a("s_mov_b64 exec, 1")
    a(f"v_mov_b32 v{lt[0]}, 0")
    a(f"s_and_b32 s{S_T1}, s{S_RW}, 15")
    a(f"s_lshl_b32 s{S_T1}, s{S_T1}, 8")
    a(f"s_add_u32 s{S_T1}, s{S_T1}, {96*256 + 4}")
    arrive2(S_T1, 3*NCS, CNT_KV*256 + 4, "k2_ncs")
    a.label("k2_ncs")
    gpoll((CNT_IMG+8)*256, 1)
    lds_wait(a, lt, 1, "s_bitcmp0_b32 s{}, 0")
    a("s_mov_b64 exec, -1")
    gq.lstamp(20)
    touch()
    gq.lstamp(21)
    if CPF > 1:
        code_touch(a, lt[0], dummy, 0)
    gpoll((CNT_KV+8)*256 + 4, 2)
    a("s_mov_b64 exec, -1")
    ffn.gq = gq
    ffn_loader(a, ffn)

    a.label("k2_code_end")
    kernel_end(a, name, max(va.n, hva.n, ffn.maxv, gq.maxv, V_RAD + 1))
    print('vgprs', va.n, hva.n, ffn.maxv, gq.maxv)
    return (name, 256, 512, KV_SZ)

TSLEEP = [int(x) for x in os.environ.get("TSLEEP", "16").split(",") if x]
TSLEEP2 = int(os.environ.get("TSLEEP2", "16"))
TEARLY = bool(os.environ.get("TEARLY"))


SRDC = 8
TDUM = 243
RES3, V_RAD = 244, 254
XCH = 0
TAB = 156 * 1024
HPOL = os.environ.get("HPOL", "sc1")


def map_proj(a, which):
    a(f"s_and_b32 s{S_T1}, s2, 7")
    a(f"s_lshr_b32 s{S_T0}, s2, 3")
    a(f"s_mov_b32 s{S_J}, s{S_T0}")
    a(f"s_mov_b32 s{S_XB}, s{S_T1}")
    if which == 3:
        a(f"s_mul_i32 s{S_ROT}, s{S_T0}, 52")
        a(f"s_lshr_b32 s{S_ROT}, s{S_ROT}, 8")
        a(f"s_mul_i32 s{S_ROT}, s{S_ROT}, 5")
        a(f"s_sub_u32 s{S_ROT}, s{S_T0}, s{S_ROT}")
        a(f"s_lshr_b32 s{S_T2}, s{S_T0}, 3")
        a(f"s_lshl_b32 s{S_T1}, s{S_T1}, 2")
        a(f"s_add_u32 s{S_T1}, s{S_T1}, s{S_T2}")
        a(f"s_lshl_b32 s{S_TOK0}, s{S_T1}, 6")
        a(f"s_and_b32 s{S_T0}, s{S_T0}, 7")
    else:
        a(f"s_and_b32 s{S_ROT}, s{S_T1}, 1")
        a(f"s_mul_i32 s{S_ROT}, s{S_ROT}, 6")
        a(f"s_and_b32 s{S_T2}, s{S_T0}, 1")
        a(f"s_add_u32 s{S_ROT}, s{S_ROT}, s{S_T2}")
        a(f"s_lshr_b32 s{S_T2}, s{S_T1}, 1")
        a(f"s_lshl_b32 s{S_T2}, s{S_T2}, 3")
        a(f"s_and_b32 s{S_TOK0}, s{S_T0}, 7")
        a(f"s_add_u32 s{S_TOK0}, s{S_TOK0}, s{S_T2}")
        a(f"s_lshl_b32 s{S_TOK0}, s{S_TOK0}, 6")
        a(f"s_and_b32 s{S_T1}, s{S_T1}, 1")
        a(f"s_lshl_b32 s{S_T1}, s{S_T1}, 2")
        a(f"s_lshr_b32 s{S_T0}, s{S_T0}, 3")
        a(f"s_add_u32 s{S_T0}, s{S_T0}, s{S_T1}")
    a(f"s_mul_i32 s{S_COL}, s{S_T0}, 160")


def srd_proj(a, which):
    if which == 3:
        make_srd(a, SRD0, P_WS, WS_O, S * D * 2)
        make_srd(a, SRD1, P_WS, WS_IMG, IMG_SZ)
        a(f"s_mul_i32 s{S_IMG}, s{S_T0}, {5*20480}")
        make_srd(a, SRD2, P_WS, WS_H, S * D * 2)
        make_srd(a, SRD3, P_X, 0, S * D * 2)
        make_srd(a, SRD4, P_WS, WS_ST, S * 64)
    else:
        make_srd(a, SRD0, P_WS, WS_ACT, S * F * 2)
        make_srd(a, SRD1, P_WS, WS_IMG, IMG_SZ)
        a(f"s_mul_i32 s{S_IMG}, s{S_T0}, {12*20480}")
        make_srd(a, SRD2, P_OUT, 0, S * D * 2)
        make_srd(a, SRD3, P_WS, WS_H, S * D * 2)


def map_k4(a):
    a(f"s_and_b32 s{S_XB}, s2, 7")
    a(f"s_lshr_b32 s{S_J}, s2, 3")
    a(f"s_mul_i32 s{S_ROT}, s{S_J}, 26")
    a(f"s_lshr_b32 s{S_ROT}, s{S_ROT}, 8")
    a(f"s_mul_i32 s{S_ROT}, s{S_ROT}, 10")
    a(f"s_sub_u32 s{S_ROT}, s{S_J}, s{S_ROT}")
    a(f"s_lshr_b32 s{S_T2}, s{S_XB}, 1")
    a(f"s_lshl_b32 s{S_T2}, s{S_T2}, 2")
    a(f"s_and_b32 s{S_TOK0}, s{S_J}, 3")
    a(f"s_add_u32 s{S_TOK0}, s{S_TOK0}, s{S_T2}")
    a(f"s_lshl_b32 s{S_TOK0}, s{S_TOK0}, 7")
    a(f"s_lshr_b32 s{S_T2}, s{S_J}, 2")
    a(f"s_and_b32 s{S_T1}, s{S_XB}, 1")
    a(f"s_lshl_b32 s{S_T1}, s{S_T1}, 3")
    a(f"s_add_u32 s{S_T0}, s{S_T2}, s{S_T1}")
    a(f"s_mul_i32 s{S_COL}, s{S_T0}, 192")
    a(f"s_mul_i32 s{S_IMG}, s{S_T0}, {10*24576}")
    make_srd(a, SRD0, P_WS, WS_H, S * D * 2)
    make_srd(a, SRD1, P_WS, WS_IMG, IMG_SZ)
    make_srd(a, SRD3, P_WS, WS_ACT, S * F * 2)


CNT = {0: (0, 7, 16), 1: (16, 7, 16), 2: (32, 6, 8)}
CNT_IMG = 64


def kv_wait(a, v_zero, q, nap):
    lab = a.newlabel("kw")
    a.label(lab)
    if nap:
        a(f"s_sleep {nap}")
    a(f"ds_read_b128 {vr(q,4)}, v{v_zero} offset:16")
    a("s_waitcnt lgkmcnt(0)")
    a(f"v_and_b32 v{q}, v{q}, v{q+1}")
    a(f"v_and_b32 v{q+2}, v{q+2}, v{q+3}")
    a(f"v_and_b32 v{q}, v{q}, v{q+2}")
    a("s_nop 0")
    a(f"v_readfirstlane_b32 s{S_T2}, v{q}")
    a("s_nop 3")
    a(f"s_cmp_lg_u32 s{S_T2}, -1")
    a(f"s_cbranch_scc1 {lab}")


def lds_wait(a, t, nap, cond):
    lab = a.newlabel("lw")
    a.label(lab)
    a(f"s_sleep {nap}")
    a(f"ds_read_b32 v{t[2]}, v{t[0]}")
    a("s_waitcnt lgkmcnt(0)")
    a(f"v_readfirstlane_b32 s{S_T2}, v{t[2]}")
    a("s_nop 3")
    a(cond.format(S_T2))
    a(f"s_cbranch_scc1 {lab}")


PT = os.environ.get("PT", "9").split(",")


def publish(a, t, ph, touch=None):
    lab = a.newlabel("pub")
    a("s_mov_b64 exec, 1")
    a(f"v_mov_b32 v{t[0]}, {TAB + 3072 + 4*ph}")
    a(f"v_mov_b32 v{t[1]}, 1")
    a(f"s_lshr_b32 s{S_T1}, s{S_TOK0}, {CNT[ph][1]}")
    a(f"s_lshl_b32 s{S_T1}, s{S_T1}, 8")
    a(f"s_add_u32 s{S_T1}, s{S_T1}, {CNT[ph][0]*256}")
    a("s_waitcnt vmcnt(0)")
    rstamp(a, {2: 1, 0: 4, 1: 7}[ph])
    a(f"ds_add_rtn_u32 v{t[2]}, v{t[0]}, v{t[1]}")
    a(f"v_mov_b32 v{t[0]}, 0")
    a("s_waitcnt lgkmcnt(0)")
    a(f"v_readfirstlane_b32 s{S_T2}, v{t[2]}")
    a("s_nop 3")
    a(f"s_cmp_lg_u32 s{S_T2}, 3")
    a(f"s_cbranch_scc1 {lab}")
    a(f"buffer_atomic_add v{t[1]}, v{t[0]}, {sr(SRDC,4)}, s{S_T1} offen sc1")
    a.label(lab)
    a("s_mov_b64 exec, -1")
    if touch and str(ph) in PT:
        touch()
        a("s_mov_b64 exec, -1")


def await_block(a, t, ph):
    l0, l1 = a.newlabel("aw"), a.newlabel("aw")
    a(f"s_cmp_lg_u32 s{S_WAVE}, 0")
    a(f"s_cbranch_scc1 {l1}")
    a("s_mov_b64 exec, 1")
    a(f"v_mov_b32 v{t[0]}, 0")
    a(f"s_lshr_b32 s{S_T1}, s{S_TOK0}, {CNT[ph][1]}")
    a(f"s_lshl_b32 s{S_T1}, s{S_T1}, 8")
    a(f"s_add_u32 s{S_T1}, s{S_T1}, {CNT[ph][0]*256}")
    a(f"s_mov_b32 s{S_KX}, 0x20000")
    a.label(l0)
    a(f"buffer_load_dword v{t[1]}, v{t[0]}, {sr(SRDC,4)}, s{S_T1} offen sc1")
    a(f"s_sub_u32 s{S_KX}, s{S_KX}, 1")
    a("s_waitcnt vmcnt(0)")
    a(f"v_readfirstlane_b32 s{S_T2}, v{t[1]}")
    a(f"s_cmp_eq_u32 s{S_KX}, 0")
    a(f"s_cselect_b32 s{S_KW}, {CNT[ph][2]}, 0")
    a(f"s_max_u32 s{S_T2}, s{S_T2}, s{S_KW}")
    a(f"s_cmp_lt_u32 s{S_T2}, {CNT[ph][2]}")
    a(f"s_cbranch_scc1 {l0}")
    a("s_mov_b64 exec, -1")
    a.label(l1)
    a("s_barrier")
    rstamp(a, {2: 2, 0: 5, 1: 8}[ph])


def proj_gemm(a, va, which):
    seg = Seg(SRD1, D * 2, 80, 'p160', S_COL, img=(S_IMG, 20480, IMG_WO if which == 3 else IMG_WD))
    K = D if which == 3 else F
    return Gemm(a, va, 64, 2, 2, 1, [seg], 128, 4, K, SRD0, K * 2, S_TOK0, sregs=GS, tag=f"k{which}", xcm=True,
                lds_base=0 if which == 3 else 8192)


def proj_compute(a, va, g, which, sb):
    g.setup()
    t = g.tmp
    v_ad, v_tok, v_a4, v_c8, v_c4 = va(), va(), va(), va(), va()
    res = va(10, 2)
    a(f"v_lshl_add_u32 v{v_tok}, v{g.v_wt}, 1, v{g.v_wo}")
    a(f"v_lshl_add_u32 v{v_tok}, v{v_tok}, 4, v{g.v_i16}")
    a(f"v_add_u32 v{v_tok}, s{S_TOK0}, v{v_tok}")
    a(f"v_mul_u32_u24 v{t[0]}, {D*2}, v{v_tok}")
    a(f"v_add_u32 v{t[0]}, s{S_COL}, v{t[0]}")
    a(f"v_lshl_add_u32 v{v_ad}, v{g.v_g}, 3, v{t[0]}")
    a(f"v_and_b32 v{t[1]}, 1, v{g.v_g}")
    a(f"v_lshl_add_u32 v{v_a4}, v{t[1]}, 5, v{t[0]}")
    a(f"v_lshrrev_b32 v{t[1]}, 1, v{g.v_g}")
    a(f"v_lshl_add_u32 v{v_a4}, v{t[1]}, 4, v{v_a4}")
    a(f"v_and_b32 v{t[0]}, 0xfff0, v{v_tok}")
    a(f"v_mul_u32_u24 v{t[0]}, {D*2}, v{t[0]}")
    a(f"v_lshl_add_u32 v{t[0]}, v{g.v_i16}, 4, v{t[0]}")
    a(f"s_lshl_b32 s{S_T1}, s{S_COL}, 4")
    a(f"v_add_u32 v{t[0]}, s{S_T1}, v{t[0]}")
    a(f"v_lshl_add_u32 v{t[0]}, v{t[1]}, 8, v{t[0]}")
    a(f"v_and_b32 v{t[1]}, 1, v{g.v_g}")
    a(f"v_lshl_add_u32 v{v_c8}, v{t[1]}, 3, v{t[0]}")
    a(f"v_lshl_add_u32 v{v_c4}, v{t[1]}, 9, v{t[0]}")
    if which == 3:
        res = RES3
    await_block(a, t, 1 if which == 5 else 2)
    for fb in range(5):
        if which == 5:
            a(f"buffer_load_dwordx2 {vr(res+2*fb,2)}, v{v_c8}, {sr(SRD3,4)}, 0 offen offset:{fb*512} {HPOL}")
    stamp(a, sb)
    g.mainloop()
    stamp(a, sb + 1)
    rstamp(a, 3 if which == 3 else 9)
    a("s_nop 7")
    a(f"v_mul_u32_u24 v{t[0]}, 5120, v{g.v_wave}")
    a(f"v_lshl_add_u32 v{t[0]}, v{g.v_lane}, 4, v{t[0]}")
    a(f"v_add_u32 v{t[0]}, {XCH}, v{t[0]}")
    a(f"v_xor_b32 v{t[1]}, 2, v{g.v_wave}")
    a(f"v_mul_u32_u24 v{t[1]}, 5120, v{t[1]}")
    a(f"v_lshl_add_u32 v{t[1]}, v{g.v_lane}, 4, v{t[1]}")
    a(f"v_add_u32 v{t[1]}, {XCH}, v{t[1]}")
    for fb in range(5):
        a(f"ds_write_b128 v{t[0]}, {vr(g.acc[1][fb],4)} offset:{fb*1024}")
    a("s_waitcnt lgkmcnt(0)")
    a("s_barrier")
    for fb in range(5):
        a(f"ds_read_b128 {vr(g.acc[1][fb],4)}, v{t[1]} offset:{fb*1024}")
    v_s = va(2, 2)
    v_q = v_s + 1
    if which == 3:
        a(f"v_mov_b32 v{v_s}, 0")
        a(f"v_mov_b32 v{v_q}, 0")
    pol = HPOL if which == 3 else ""
    for fb in range(5):
        a(f"s_waitcnt lgkmcnt({4-fb})")
        c, o = g.acc[0][fb], g.acc[1][fb]
        dst = o if fb % 2 == 0 else g.acc[1][fb - 1] + 2
        for p in range(2):
            a(f"v_lshlrev_b32 v{t[0]}, 16, v{res+2*fb+p}")
            a(f"v_and_b32 v{t[1]}, 0xffff0000, v{res+2*fb+p}")
            a(f"v_add_f32 v{c+2*p}, v{c+2*p}, v{o+2*p}")
            a(f"v_add_f32 v{c+2*p+1}, v{c+2*p+1}, v{o+2*p+1}")
            a(f"v_cvt_pk_bf16_f32 v{t[2]}, v{c+2*p}, v{c+2*p+1}")
            a(f"v_lshlrev_b32 v{t[3]}, 16, v{t[2]}")
            a(f"v_and_b32 v{t[2]}, 0xffff0000, v{t[2]}")
            a(f"v_add_f32 v{t[0]}, v{t[0]}, v{t[3]}")
            a(f"v_add_f32 v{t[1]}, v{t[1]}, v{t[2]}")
            a(f"v_cvt_pk_bf16_f32 v{dst+p}, v{t[0]}, v{t[1]}")
            if which == 3:
                a(f"v_lshlrev_b32 v{t[0]}, 16, v{dst+p}")
                a(f"v_and_b32 v{t[1]}, 0xffff0000, v{dst+p}")
                a(f"v_add_f32 v{v_s}, v{v_s}, v{t[0]}")
                a(f"v_fma_f32 v{v_q}, v{t[0]}, v{t[0]}, v{v_q}")
                a(f"v_add_f32 v{v_s}, v{v_s}, v{t[1]}")
                a(f"v_fma_f32 v{v_q}, v{t[1]}, v{t[1]}, v{v_q}")
        if fb % 2 == 1:
            q = g.acc[1][fb - 1]
            a("s_nop 1")
            a(f"v_permlane16_swap_b32 v{q}, v{q+2}")
            a(f"v_permlane16_swap_b32 v{q+1}, v{q+3}")
            if which == 3:
                a(f"buffer_store_dwordx4 {vr(q,4)}, v{v_c4}, {sr(SRD2,4)}, 0 offen offset:{(fb-1)*512} {pol}")
            else:
                a(f"buffer_store_dwordx4 {vr(q,4)}, v{v_a4}, {sr(SRD2,4)}, 0 offen offset:{(fb-1)*32}")
        elif fb == 4:
            if which == 3:
                a(f"buffer_store_dwordx2 {vr(o,2)}, v{v_c8}, {sr(SRD2,4)}, 0 offen offset:{fb*512} {pol}")
            else:
                a(f"buffer_store_dwordx2 {vr(o,2)}, v{v_ad}, {sr(SRD2,4)}, 0 offen offset:{fb*32}")
    if which == 3:
        for w in (32, 16):
            a(f"v_mov_b32 v{t[0]}, v{v_s}")
            a(f"v_mov_b32 v{t[1]}, v{v_q}")
            a("s_nop 1")
            a(f"v_permlane{w}_swap_b32 v{v_s}, v{t[0]}")
            a(f"v_permlane{w}_swap_b32 v{v_q}, v{t[1]}")
            a("s_nop 1")
            a(f"v_add_f32 v{v_s}, v{v_s}, v{t[0]}")
            a(f"v_add_f32 v{v_q}, v{v_q}, v{t[1]}")
        a(f"v_lshlrev_b32 v{t[0]}, 3, v{v_tok}")
        a(f"s_lshl_b32 s{S_T0}, s{S_T0}, 14")
        a("s_mov_b64 exec, 0xffff")
        a(f"buffer_store_dwordx2 {vr(v_s,2)}, v{t[0]}, {sr(SRD4,4)}, s{S_T0} offen {pol}")
        stamp(a, sb + 2)
        publish(a, t, 0)


def k4_gemm(a, va):
    sg = Seg(SRD1, F * 2, 96, 'p192', S_COL, img=(S_IMG, 24576, IMG_GU))
    su = Seg(SRD1, F * 2, 96, 'p192', S_COL, img=(S_IMG, 24576, IMG_GU + 12288))
    return Gemm(a, va, 128, 2, 1, 2, [sg, su], 64, K4_NS, D, SRD0, D * 2, S_TOK0, sregs=GS, tag="k4", xcm=True, lds_base=20480)


def k4_compute(a, va, g, sb):
    g.setup()
    t = g.tmp
    v_tok, v_a4, v_b4, v_ta, v_tc = va(), va(), va(), va(), va()
    a(f"v_lshl_add_u32 v{v_tok}, v{g.v_wt}, 6, v{g.v_i16}")
    a(f"v_lshlrev_b32 v{v_ta}, 4, v{v_tok}")
    a(f"v_add_u32 v{v_ta}, {TAB}, v{v_ta}")
    a(f"v_add_u32 v{v_tok}, s{S_TOK0}, v{v_tok}")
    a(f"v_mul_u32_u24 v{t[1]}, 48, v{g.v_wo}")
    a(f"v_lshl_add_u32 v{t[2]}, v{g.v_g}, 2, v{t[1]}")
    a(f"v_lshlrev_b32 v{v_tc}, 2, v{t[2]}")
    a(f"v_add_u32 v{v_tc}, {TAB + 2048}, v{v_tc}")
    a(f"v_and_b32 v{t[0]}, 0xfff0, v{v_tok}")
    a(f"v_mul_u32_u24 v{t[0]}, {F*2}, v{t[0]}")
    a(f"v_lshl_add_u32 v{t[0]}, v{g.v_i16}, 4, v{t[0]}")
    a(f"v_lshl_add_u32 v{t[0]}, v{t[1]}, 5, v{t[0]}")
    a(f"s_lshl_b32 s{S_T1}, s{S_COL}, 4")
    a(f"v_add_u32 v{t[0]}, s{S_T1}, v{t[0]}")
    a(f"v_lshrrev_b32 v{t[1]}, 1, v{g.v_g}")
    a(f"v_lshl_add_u32 v{t[0]}, v{t[1]}, 8, v{t[0]}")
    a(f"v_and_b32 v{t[1]}, 1, v{g.v_g}")
    a(f"v_lshl_add_u32 v{v_a4}, v{t[1]}, 9, v{t[0]}")
    a(f"v_mul_u32_u24 v{t[1]}, {16*F*2}, v{t[1]}")
    a(f"v_add_u32 v{v_b4}, v{t[1]}, v{t[0]}")
    await_block(a, t, 0)
    stamp(a, sb)
    g.mainloop()
    stamp(a, sb + 1)
    rstamp(a, 6)
    st = g.fa[0]
    cs = g.fa[1]
    tmp = g.fb[0]
    for tb in range(4):
        a(f"ds_read_b128 {vr(st+4*tb,4)}, v{v_ta} offset:{tb*256}")
    for sgi in range(2):
        for fb in range(3):
            a(f"ds_read_b128 {vr(cs+12*sgi+4*fb,4)}, v{v_tc} offset:{sgi*384 + fb*64}")
    a("s_waitcnt lgkmcnt(0)")
    for tb in range(4):
        vm, vA, vB, vC = [st + 4 * tb + i for i in range(4)]
        pm, pB = vr(vm, 2), vr(vB, 2)
        for fb in range(3):
            cg, cu = g.acc[tb][fb], g.acc[tb][3 + fb]
            z = tmp + 8 * (fb & 1)
            for h in (0, 2):
                a(f"v_pk_fma_f32 {vr(cg+h,2)}, {pm}, {vr(cs+4*fb+h,2)}, {vr(cg+h,2)} op_sel_hi:[0,1,1]")
                a(f"v_pk_fma_f32 {vr(cu+h,2)}, {pm}, {vr(cs+12+4*fb+h,2)}, {vr(cu+h,2)} op_sel_hi:[0,1,1]")
            for h in (0, 2):
                a(f"v_pk_mul_f32 {vr(z+h,2)}, {vr(cg+h,2)}, {vr(cg+h,2)}")
                a(f"v_pk_mul_f32 {vr(cu+h,2)}, {vr(cu+h,2)}, {vr(cg+h,2)}")
            for h in (0, 2):
                a(f"v_pk_fma_f32 {vr(z+h,2)}, {vr(z+h,2)}, {pB}, {pm} op_sel:[0,0,1] op_sel_hi:[1,0,1]")
            for h in (0, 2):
                a(f"v_pk_mul_f32 {vr(z+h,2)}, {vr(z+h,2)}, {vr(cg+h,2)}")
            for r in range(4):
                a(f"v_exp_f32 v{z+r}, v{z+r}")
            for h in (0, 2):
                a(f"v_pk_fma_f32 {vr(z+h,2)}, {vr(z+h,2)}, {pB}, {pB} op_sel:[0,1,1] op_sel_hi:[1,1,1]")
            for r in range(4):
                a(f"v_rcp_f32 v{z+r}, v{z+r}")
            a("s_nop 0")
            for h in (0, 2):
                a(f"v_pk_mul_f32 {vr(cu+h,2)}, {vr(cu+h,2)}, {vr(z+h,2)}")
            if fb == 1:
                q, dst = g.acc[tb][3], g.acc[tb][3] + 2
            elif fb == 2 and tb % 2 == 1:
                q, dst = g.acc[tb - 1][5], g.acc[tb - 1][5] + 2
            else:
                q, dst = None, cu
            a(f"v_cvt_pk_bf16_f32 v{dst}, v{cu}, v{cu+1}")
            a(f"v_cvt_pk_bf16_f32 v{dst+1}, v{cu+2}, v{cu+3}")
            if q is not None:
                a(f"s_mov_b32 s{S_KW}, {(tb if fb == 1 else tb - 1)*16*F*2}")
                a("s_nop 0")
                a(f"v_permlane16_swap_b32 v{q}, v{q+2}")
                a(f"v_permlane16_swap_b32 v{q+1}, v{q+3}")
                if fb == 1:
                    a(f"buffer_store_dwordx4 {vr(q,4)}, v{v_a4}, {sr(SRD3,4)}, s{S_KW} offen {HPOL}")
                else:
                    a(f"buffer_store_dwordx4 {vr(q,4)}, v{v_b4}, {sr(SRD3,4)}, s{S_KW} offen offset:1024 {HPOL}")
    stamp(a, sb + 2)
    publish(a, t, 1)


class Ffn:
    pass


def ffn_compute(a):
    f = Ffn()
    maxv = 0
    va = VAlloc(1)
    g3 = proj_gemm(a, va, 3)
    g3.tmp = [va() for _ in range(6)]
    map_proj(a, 3)
    srd_proj(a, 3)
    proj_compute(a, va, g3, 3, 4)
    maxv = max(maxv, va.n)
    va = VAlloc(1)
    g4 = k4_gemm(a, va)
    g4.tmp = [va() for _ in range(6)]
    map_k4(a)
    k4_compute(a, va, g4, 7)
    maxv = max(maxv, va.n)
    va = VAlloc(1)
    g5 = proj_gemm(a, va, 5)
    g5.tmp = [va() for _ in range(6)]
    map_proj(a, 5)
    srd_proj(a, 5)
    proj_compute(a, va, g5, 5, 10)
    maxv = max(maxv, va.n)
    stamp_end(a, 12)
    assert g4.lds_bytes + g4.lds_base <= TAB and g5.lds_bytes + g5.lds_base <= TAB
    f.g3, f.g4, f.g5, f.maxv = g3, g4, g5, maxv
    return f


def ffn_loader(a, f):
    g3, g4, g5, maxv = f.g3, f.g4, f.g5, f.maxv
    GC = -2.0 * 0.7978845608028654 * 1.4426950408889634
    pre = {}

    def early4(lva, lt):
        make_srd(a, SRD4, P_WS, WS_ST, S * 64)
        buf = lva(16, 4)
        pre['buf'] = buf
        a(f"v_and_b32 v{lt[0]}, 127, v0")
        a(f"v_add_u32 v{lt[0]}, s{S_TOK0}, v{lt[0]}")
        a(f"v_lshlrev_b32 v{lt[0]}, 3, v{lt[0]}")
        for i in range(8):
            a(f"s_mov_b32 s{S_T1}, {i*16384}")
            a(f"buffer_load_dwordx2 {vr(buf+2*i,2)}, v{lt[0]}, {sr(SRD4,4)}, s{S_T1} offen {HPOL}")

    CSR = 104

    def cs4(lt):
        buf = CSR
        l3 = a.newlabel("k4e")
        a(f"s_cmp_lt_u32 s{S_WAVE}, 6")
        a(f"s_cbranch_scc1 {l3}")
        make_srd(a, SRD5, P_WS, WS_CS, NCS * 3072 * 4)
        a(f"s_lshr_b32 s{S_T2}, s{S_J}, 2")
        a(f"s_and_b32 s{S_T1}, s{S_XB}, 1")
        a(f"s_lshl_b32 s{S_T1}, s{S_T1}, 3")
        a(f"s_add_u32 s{S_T2}, s{S_T2}, s{S_T1}")
        a(f"s_mul_i32 s{S_T2}, s{S_T2}, 384")
        a(f"v_and_b32 v{lt[0]}, 63, v0")
        a(f"v_min_u32 v{lt[0]}, 23, v{lt[0]}")
        a(f"v_lshlrev_b32 v{lt[0]}, 4, v{lt[0]}")
        a(f"s_sub_u32 s{S_T1}, s{S_WAVE}, 6")
        a(f"s_mul_i32 s{S_T1}, s{S_T1}, {1536*4}")
        a(f"s_add_u32 s{S_T1}, s{S_T1}, s{S_T2}")
        for i in range(NCS):
            a(f"buffer_load_dwordx4 {vr(buf+4*i,4)}, v{lt[0]}, {sr(SRD5,4)}, s{S_T1} offen")
            a(f"s_add_u32 s{S_T1}, s{S_T1}, {3072*4}")
        a("s_waitcnt vmcnt(0)")
        a.label(l3)

    def table4(lva, lt):
        buf = pre['buf']
        l2, l3 = a.newlabel("k4e"), a.newlabel("k4e")
        a(f"s_cmp_ge_u32 s{S_WAVE}, 6")
        a(f"s_cbranch_scc1 {l2}")
        for i in range(1, 8):
            a(f"v_add_f32 v{buf}, v{buf}, v{buf+2*i}")
            a(f"v_add_f32 v{buf+1}, v{buf+1}, v{buf+2*i+1}")
        ln_stats(a, buf, buf + 1, buf + 4, buf + 8, lt)
        a(f"v_sub_f32 v{buf+4}, 0, v{buf+4}")
        a(f"v_mul_f32 v{buf+5}, {f32(GC)}, v{buf+8}")
        a(f"v_mul_f32 v{buf+9}, v{buf+8}, v{buf+8}")
        a(f"v_mul_f32 v{buf+6}, v{buf+9}, v{buf+8}")
        a(f"v_mul_f32 v{buf+6}, {f32(GC*0.044715)}, v{buf+6}")
        a(f"v_rcp_f32 v{buf+7}, v{buf+9}")
        a(f"v_lshlrev_b32 v{lt[0]}, 4, v0")
        a(f"v_add_u32 v{lt[0]}, {TAB}, v{lt[0]}")
        a(f"ds_write_b128 v{lt[0]}, {vr(buf+4,4)}")
        a(f"s_branch {l3}")
        a.label(l2)
        buf = CSR
        for k in range(1, NCS):
            for i in (0, 2):
                a(f"v_pk_add_f32 {vr(buf+i,2)}, {vr(buf+i,2)}, {vr(buf+4*k+i,2)}")
        a(f"v_and_b32 v{lt[0]}, 63, v0")
        a(f"v_min_u32 v{lt[0]}, 23, v{lt[0]}")
        a(f"v_lshlrev_b32 v{lt[0]}, 4, v{lt[0]}")
        a(f"s_sub_u32 s{S_T1}, s{S_WAVE}, 6")
        a(f"s_mul_i32 s{S_T1}, s{S_T1}, 384")
        a(f"s_add_u32 s{S_T1}, s{S_T1}, {TAB + 2048}")
        a(f"v_add_u32 v{lt[0]}, s{S_T1}, v{lt[0]}")
        a(f"ds_write_b128 v{lt[0]}, {vr(buf,4)}")
        a.label(l3)
        a("s_waitcnt lgkmcnt(0)")

    def touch_wd(lt):
        a(f"s_and_b32 s{S_T1}, s{S_XB}, 1")
        a(f"s_mul_i32 s{S_T1}, s{S_T1}, 983040")
        a(f"s_mul_i32 s{S_T2}, s{S_J}, {240*128}")
        a(f"s_add_u32 s{S_T1}, s{S_T1}, s{S_T2}")
        a(f"s_add_u32 s{S_T1}, s{S_T1}, {IMG_WD}")
        a(f"v_min_u32 v{lt[0]}, 239, v0")
        a(f"v_lshlrev_b32 v{lt[0]}, 7, v{lt[0]}")
        a(f"buffer_load_dword v{DUMMY}, v{lt[0]}, {sr(SRD1,4)}, s{S_T1} offen")
        ops.append(("t", 0))

    DUMMY = 100
    ops = []
    a("v_and_b32 v0, 255, v0")
    map_proj(a, 3)
    srd_proj(a, 3)
    g3.ld_prepare(S_ROT, head=False, xpol=HPOL, ops=ops)
    a(f"v_mov_b32 v{g3.lt[0]}, 0")
    lds_wait(a, g3.lt, 2, "s_cmp_lt_u32 s{}, 0xfe03")
    g3.lstamp(0)
    for st in range(3):
        g3.ld_issue(st, x=False)
    cs4(g3.lt)
    a("s_barrier")
    a("s_barrier")
    g3.ld_issue(3, x=False)
    a("s_barrier")

    def tail3(st):
        if st == 2:
            map_k4(a)
            g4.ld_prepare(S_ROT, head=False, xpol=HPOL, ops=ops)
            g4.lstamp(0)
        if st <= 4:
            g4.ld_issue(st - 2, x=False)
    g3.ld_run(wdone=True, tail=tail3)
    a("s_barrier")
    a("s_barrier")

    def tail4(st):
        if st == 8:
            a("s_setprio 2")
            table4(g4.lva, g4.lt)
            a("s_setprio 0")
        elif st == 9:
            map_proj(a, 5)
            srd_proj(a, 5)
            g5.ld_prepare(S_ROT, head=False, xpol=HPOL, ops=ops)
            g5.lstamp(0)
            g5.ld_issue(1, x=False)
        elif st == 10:
            g5.ld_issue(0, x=False)
            g5.ld_issue(2, x=False)
            g5.ld_issue(3, x=False)

    def mid4(st):
        if st == 3:
            early4(g4.lva, g4.lt)
            ops.extend([("e", 0)] * 8)
        if st == TWD:
            touch_wd(g4.lt)
    g4.ld_run(wdone=True, tail=tail4, mid=mid4)
    a("s_barrier")
    g5.ld_run(wdone=True)
    for g in (f.gq, g3, g4, g5):
        g.ld_dump()
    a("s_endpgm")
    assert max(g3.lva.n, g4.lva.n, g5.lva.n) < 89 and DUMMY < maxv

K4_NS = 3
TWD = int(os.environ.get('TWD', '9'))


def main():
    a = Asm()
    a.raw('.amdgcn_target "amdgcn-amd-amdhsa--gfx950"')
    a.raw(".text")
    launches = [gen_k2(a)]
    head = open("cdna_kernels/" + NAME + ".s.ref").read().split("\n")
    hdr = [l for l in head if l.startswith(";") and "@launch" not in l and "Override launch" not in l and "grid=ceil" not in l]
    out = "\n".join(hdr) + "\n"
    for n, gx, bx, lds in launches:
        out += f"; @launch kernel={n} grid=({gx},1,1) block=({bx},1,1) lds={lds}\n"
    out += a.text()
    out += '.section .rodata,"a"\n' + "".join(KDS)
    path = sys.argv[1] if len(sys.argv) > 1 else "cdna_kernels/" + NAME + ".s"
    open(path, "w").write(out)
    print("wrote", path, len(out), "bytes;", launches)

if __name__ == "__main__":
    main()
```

```python
import sys

NAME = "sequential_preLN__grouped_kv_mqa__geglu_ffn__prompt"

S, D, H, DH, F = 2048, 640, 32, 20, 1536

WS_Q   = 0
FUSED1 = True
WS_KF  = 0x280000
WS_KV  = WS_KF
KV_SZ  = 163840
NCS    = 8
WS_VF  = WS_KF + 0x20000
WS_KN  = WS_VF + 0x20000
WS_CS  = WS_KN + 0x1000
WS_O   = WS_CS + 0x20000
WS_H   = WS_O + 0x280000
WS_ST  = WS_H + 0x280000
WS_ACT = WS_ST + 0x20000
WS_S1  = WS_ACT + 0x600000
WS_CNT = WS_S1
WS_IMG = WS_S1 + 0x8000
WS_TL = 0x3000000
IMG_WO, IMG_WD, IMG_GU, IMG_SZ = 0, 819200, 819200 + 1966080, 6717440

KA_X, KA_WQ, KA_WK, KA_WV, KA_WO, KA_BX, KA_WG, KA_WU, KA_WD, KA_OUT, KA_DBG, KA_WS = [8 * i for i in range(12)]

import struct, os
INSTR = bool(os.environ.get("INSTR"))
HACK_LIN = bool(os.environ.get("HACK_LIN"))
NOCOMP = os.environ.get("NOCOMP", "").split(",")
NOX = os.environ.get("NOX", "").split(",")
NOW = os.environ.get("NOW", "").split(",")
PF = bool(os.environ.get("PF"))
IMGPOL = os.environ.get("IMGPOL", "sc1")
for _k in ("NORB2", "NORB3", "NORB4"):
    os.environ[_k] = "1"
NOLOAD = os.environ.get("NOLOAD", "").split(",")
def f32(x):
    return "0x%08x" % struct.unpack("<I", struct.pack("<f", x))[0]


class Asm:
    skip_dma = False
    def __init__(self):
        self.lines = []
        self.nlabel = 0

    def __call__(self, s):
        for l in s.split("\n"):
            l = l.strip()
            if self.skip_dma and l.startswith("buffer_load") and l.endswith("lds"):
                continue
            if l:
                self.lines.append("    " + l)

    def label(self, l):
        self.lines.append(l + ":")

    def newlabel(self, p="L"):
        self.nlabel += 1
        return f"{p}_{self.nlabel}"

    def raw(self, s):
        self.lines.append(s)

    def text(self):
        return "\n".join(self.lines) + "\n"


class VAlloc:
    def __init__(self, start=1):
        self.n = start

    def __call__(self, cnt=1, align=1):
        self.n = (self.n + align - 1) // align * align
        r = self.n
        self.n += cnt
        return r


def vr(b, n):
    return f"v[{b}:{b+n-1}]"


def sr(b, n):
    return f"s[{b}:{b+n-1}]"


KIDX = [-1]
LIDX = [0]
def kernel_begin(a, name):
    KIDX[0] += 1
    a.raw(f".globl {name}")
    a.raw(".p2align 8")
    a.raw(f".type {name},@function")
    a.label(name)


KDS = []
def kernel_end(a, name, nvgpr, nsgpr=102):
    nv = (nvgpr + 7) // 8 * 8
    KDS.append(f""".p2align 6
.amdhsa_kernel {name}
  .amdhsa_next_free_vgpr {nv}
  .amdhsa_next_free_sgpr {nsgpr}
  .amdhsa_accum_offset {(nv + 3) // 4 * 4}
  .amdhsa_group_segment_fixed_size 0
  .amdhsa_kernarg_size 96
  .amdhsa_user_sgpr_count 2
  .amdhsa_user_sgpr_kernarg_segment_ptr 1
  .amdhsa_system_sgpr_workgroup_id_x 1
.end_amdhsa_kernel
""")


def make_srd(a, dst, base_s, off, nbytes):
    if off:
        a(f"s_add_u32 s{dst}, s{base_s}, {off}")
        a(f"s_addc_u32 s{dst+1}, s{base_s+1}, 0")
    else:
        a(f"s_mov_b32 s{dst}, s{base_s}")
        a(f"s_mov_b32 s{dst+1}, s{base_s+1}")
    a(f"s_mov_b32 s{dst+2}, {nbytes}")
    a(f"s_mov_b32 s{dst+3}, 0x00020000")


def interleave(mfmas, fillers, nreads=None):
    out = []
    nm, nf = len(mfmas), len(fillers)
    per = 1 if (nreads or nf) * 3 <= nm * 2 + 2 and nf <= nm else 2
    if os.environ.get("OLDIL"):
        per = 0
    fi = 0
    for i, m in enumerate(mfmas):
        out.append(m)
        tgt = (i + 1) * per if per else ((i + 1) * nf + nm - 1) // nm
        while fi < min(tgt, nf):
            out.extend(fillers[fi])
            fi += 1
    while fi < nf:
        out.extend(fillers[fi])
        fi += 1
    return out


class Seg:
    def __init__(self, srd, gstride, nf, kind, colreg=None, img=None):
        self.img = img
        self.srd = srd
        self.gstride = gstride
        self.nf = nf
        self.kind = kind
        self.colreg = colreg


class Gemm:
    def __init__(self, a, va, TT, WT, WK, WF, segs, BK, NS, K, xsrd, xstride, s_tok0,
                 stats=False, colsum=False, sregs=None, tag="g", lds_base=0, xcm=False, slot0=0):
        self.a, self.va = a, va
        self.slot0 = slot0
        self.xcm = xcm
        self.lds_base = lds_base
        self.TT, self.WT, self.WK, self.WF = TT, WT, WK, WF
        assert WT * WK * WF == 4
        self.segs, self.BK, self.NS, self.K = segs, BK, NS, K
        self.xsrd, self.xstride, self.s_tok0 = xsrd, xstride, s_tok0
        self.stats, self.colsum = stats, colsum
        self.tag = tag
        self.TW = TT // WT
        self.TB = self.TW // 16
        self.RB = BK * 2
        self.CPR = self.RB // 16
        self.nst = K // BK
        self.SPS = BK // 32
        self.SPW = self.SPS // WK
        assert self.SPW % 2 == 0
        self.xbytes = TT * self.RB
        off = self.xbytes
        for s in segs:
            s.lstride = 40 if s.kind == 'lin40' else s.nf * 2
            nb = BK * s.lstride
            s.ninstr = (nb + 4095) // 4096 * 4
            s.lbase = off
            off += s.ninstr * 1024
            s.FBW = (s.nf // WF) // 16
        self.stage_bytes = off
        self.nx = self.xbytes // 1024
        assert self.nx % 4 == 0
        self.ndma = self.nx // 4 + sum(s.ninstr // 4 for s in segs)
        self.lds_bytes = self.stage_bytes * NS
        (self.s_woff, self.s_kx, self.s_kw, self.s_wave, self.s_cnt, self.s_slot, self.s_kidx, self.s_dl) = sregs

    def split(self):
        a, va = self.a, self.va
        self.tmp = [va() for _ in range(6)]
        t = self.tmp
        a(f"v_lshrrev_b32 v{t[0]}, 6, v0")
        a("s_nop 0")
        a(f"v_readfirstlane_b32 s{self.s_wave}, v{t[0]}")
        a("s_nop 3")
        a(f"s_cmp_ge_u32 s{self.s_wave}, 4")
        a(f"s_cbranch_scc1 {self.tag}_loader")

    def ld_prepare(self, s_rot=None, head=True, xpol="", ops=None, v0=1):
        a = self.a
        va = self.lva = VAlloc(v0)
        t = self.lt = [va() for _ in range(6)]
        self.s_rot, self.xpol = s_rot, xpol
        self.ops = [] if ops is None else ops
        if head:
            a.label(f"{self.tag}_loader")
            a(f"v_and_b32 v0, 255, v0")
        a(f"s_and_b32 s{self.s_woff}, s{self.s_wave}, 3")
        a(f"s_lshl_b32 s{self.s_woff}, s{self.s_woff}, 10")
        lg = {8: 3, 16: 4}[self.CPR]
        v_dx = self.v_dx = va()
        if self.xcm:
            a(f"v_lshrrev_b32 v{t[1]}, {lg+4}, v0")
            a(f"v_and_b32 v{t[2]}, {self.CPR*16-1}, v0")
            a(f"v_lshlrev_b32 v{t[1]}, 4, v{t[1]}")
            a(f"v_add_u32 v{t[1]}, s{self.s_tok0}, v{t[1]}")
            a(f"v_mul_u32_u24 v{t[1]}, {self.xstride}, v{t[1]}")
            a(f"v_lshl_add_u32 v{v_dx}, v{t[2]}, 4, v{t[1]}")
        else:
            a(f"v_lshrrev_b32 v{t[1]}, {lg}, v0")
            a(f"v_and_b32 v{t[2]}, {self.CPR-1}, v0")
            if self.CPR == 8:
                a(f"v_bfe_u32 v{t[3]}, v{t[1]}, 1, 3")
            else:
                a(f"v_and_b32 v{t[3]}, 15, v{t[1]}")
            a(f"v_xor_b32 v{t[2]}, v{t[2]}, v{t[3]}")
            a(f"v_add_u32 v{t[1]}, s{self.s_tok0}, v{t[1]}")
            a(f"v_mul_u32_u24 v{t[1]}, {self.xstride}, v{t[1]}")
            a(f"v_lshl_add_u32 v{v_dx}, v{t[2]}, 4, v{t[1]}")
        done = {}
        for s in self.segs:
            key = (s.kind, s.nf)
            if key in done:
                s.v_d = done[key]
                continue
            s.v_d = []
            cprw = s.lstride // 16 if s.kind != 'lin40' else None
            for j in range(s.ninstr // 4):
                if s.kind == 'lin40' or s.img:
                    if j == 0:
                        r = va()
                        a(f"v_lshlrev_b32 v{r}, 4, v0")
                    s.v_d.append(r)
                    continue
                r = va()
                s.v_d.append(r)
                a(f"v_add_u32 v{t[0]}, {j*256}, v0")
                magic = {10: 52429, 12: 43691}[cprw]
                a(f"v_mul_u32_u24 v{t[1]}, {magic}, v{t[0]}")
                a(f"v_lshrrev_b32 v{t[1]}, 19, v{t[1]}")
                a(f"v_mul_u32_u24 v{t[2]}, {cprw}, v{t[1]}")
                a(f"v_sub_u32 v{t[2]}, v{t[0]}, v{t[2]}")
                a(f"v_and_b32 v{t[3]}, 0xfffffff3, v{t[1]}")
                a(f"v_bfe_u32 v{t[4]}, v{t[1]}, 2, 1")
                if s.kind == 'p192':
                    a(f"v_lshlrev_b32 v{t[5]}, 1, v{t[4]}")
                    a(f"v_xor_b32 v{t[2]}, v{t[2]}, v{t[5]}")
                a(f"v_lshl_or_b32 v{t[3]}, v{t[4]}, 3, v{t[3]}")
                a(f"v_bfe_u32 v{t[4]}, v{t[1]}, 3, 1")
                a(f"v_lshl_or_b32 v{t[3]}, v{t[4]}, 2, v{t[3]}")
                a(f"v_mul_u32_u24 v{t[3]}, {s.gstride}, v{t[3]}")
                a(f"v_lshl_add_u32 v{r}, v{t[2]}, 4, v{t[3]}")
                if s.colreg is not None:
                    a(f"v_add_u32 v{r}, s{s.colreg}, v{r}")
            done[key] = s.v_d
        self.lidx = LIDX[0]
        LIDX[0] += 1
        self.v_st = 196 + self.lidx

    def ld_kset(self, st):
        a = self.a
        if self.s_rot is None:
            a(f"s_mov_b32 s{self.s_kidx}, {st}")
        elif st == 0:
            a(f"s_mov_b32 s{self.s_kidx}, s{self.s_rot}")
        else:
            a(f"s_add_u32 s{self.s_kidx}, s{self.s_rot}, {st}")
            a(f"s_sub_u32 s{self.s_dl}, s{self.s_kidx}, {self.nst}")
            a(f"s_cmp_ge_u32 s{self.s_kidx}, {self.nst}")
            a(f"s_cselect_b32 s{self.s_kidx}, s{self.s_dl}, s{self.s_kidx}")

    def ld_issue(self, st, x=True, w=True):
        a = self.a
        gs = self.segs[0].gstride
        xrows = 256 // self.CPR
        slot = self.lds_base + ((st + self.slot0) % self.NS) * self.stage_bytes
        a.skip_dma = self.tag in NOLOAD
        self.ld_kset(st)
        if x:
            a(f"s_mul_i32 s{self.s_kx}, s{self.s_kidx}, {self.CPR*256 if self.xcm else self.BK*2}")
            for j in range(self.nx // 4):
                a(f"s_add_u32 m0, s{self.s_woff}, {slot + j*4096}")
                if j:
                    a(f"s_add_u32 s{self.s_kx}, s{self.s_kx}, {xrows*self.xstride}")
                else:
                    a("s_nop 0")
                a(f"buffer_load_dwordx4 v{self.v_dx}, {sr(self.xsrd,4)}, s{self.s_kx} offen {self.xpol} lds")
                self.ops.append((self.tag, st))
        if w:
            if self.segs[0].img:
                a(f"s_mul_i32 s{self.s_kw}, s{self.s_kidx}, {self.segs[0].img[1]}")
                a(f"s_add_u32 s{self.s_kw}, s{self.s_kw}, s{self.segs[0].img[0]}")
            else:
                a(f"s_mul_i32 s{self.s_kw}, s{self.s_kidx}, {self.BK*gs}")
            for s in self.segs:
                if s.gstride != gs:
                    a(f"s_mul_i32 s{self.s_kw}, s{self.s_kidx}, {self.BK*s.gstride}")
                for j, r in enumerate(s.v_d):
                    a(f"s_add_u32 m0, s{self.s_woff}, {slot + s.lbase + j*4096}")
                    if s.kind == 'lin40' or s.img:
                        a(f"s_add_u32 s{self.s_dl}, s{self.s_kw}, {j*4096 + (s.img[2] if s.img else 0)}")
                        a(f"buffer_load_dwordx4 v{r}, {sr(s.srd,4)}, s{self.s_dl} offen lds")
                    else:
                        a("s_nop 0")
                        a(f"buffer_load_dwordx4 v{r}, {sr(s.srd,4)}, s{self.s_kw} offen lds")
                    self.ops.append((self.tag, st))

    def lstamp(self, idx):
        a = self.a
        a.skip_dma = False
        if INSTR:
            a("s_memtime s[98:99]")
            a("s_waitcnt lgkmcnt(0)")
            a("s_sub_u32 s98, s98, s80")
            a(f"v_writelane_b32 v{self.v_st}, s98, {idx}")

    def ld_run(self, wdone=False, tail=None, mid=None):
        a = self.a
        ops = self.ops

        def ready(st):
            last = max(i for i, o in enumerate(ops) if o == (self.tag, st))
            n = len(ops) - 1 - last
            assert n < 64
            a(f"s_waitcnt vmcnt({n})")
            self.lstamp(st + 2)
            a("s_barrier")

        NS, nst = self.NS, self.nst
        self.lstamp(1)
        wf = not wdone
        self.ld_issue(0, w=wf)
        self.ld_issue(1, w=wf)
        ready(0)
        for st in range(2, NS):
            self.ld_issue(st, w=wf)
        for st in range(NS, nst):
            ready(st - NS + 1)
            self.ld_issue(st)
            if mid:
                mid(st)
        for st in range(nst - NS + 1, nst):
            ready(st)
            if tail:
                tail(st)
        a("s_barrier")
        if tail:
            tail(nst)

    def ld_dump(self):
        a = self.a
        if INSTR:
            lab = a.newlabel("ls")
            a(f"s_cmp_lg_u32 s2, {INSTR_WG}")
            a(f"s_cbranch_scc1 {lab}")
            a(f"s_cmp_lg_u32 s{self.s_wave}, 4")
            a(f"s_cbranch_scc1 {lab}")
            make_srd(a, 92, P_WS, WS_TL + 0x10000 + self.lidx * 256, 128)
            a(f"v_lshlrev_b32 v89, 2, v0")
            a(f"buffer_store_dword v{self.v_st}, v89, s[92:95], 0 offen")
            a("s_waitcnt vmcnt(0)")
            a.label(lab)

    def loader(self, s_rot=None, cont=None):
        a = self.a
        self.ld_prepare(s_rot)
        self.lstamp(0)
        self.ld_run()
        self.ld_dump()
        if cont is None:
            a("s_endpgm")
        else:
            cont(self.lva, self.lt)

    def setup(self):
        a, va = self.a, self.va
        t = self.tmp
        lane, i16, g, wv = va(), va(), va(), va()
        self.v_lane, self.v_i16, self.v_g, self.v_wave = lane, i16, g, wv
        a(f"v_and_b32 v{lane}, 63, v0")
        a(f"v_lshrrev_b32 v{wv}, 6, v0")
        a(f"v_and_b32 v{i16}, 15, v0")
        a(f"v_bfe_u32 v{g}, v0, 4, 2")
        wt, wo = va(), va()
        self.v_wt, self.v_wo = wt, wo
        a(f"v_and_b32 v{wt}, {self.WT-1}, v{wv}")
        sh = {1: 0, 2: 1, 4: 2}[self.WT]
        a(f"v_lshrrev_b32 v{wo}, {sh}, v{wv}")
        self.addr_regs = []
        done = {}
        for s in self.segs:
            key = (s.kind, s.nf)
            if key in done:
                s.v_a = done[key]
                continue
            if s.kind == 'lin40':
                a(f"v_lshlrev_b32 v{t[0]}, 3, v{g}")
            else:
                a(f"v_lshrrev_b32 v{t[0]}, 1, v{g}")
                a(f"v_lshlrev_b32 v{t[0]}, 4, v{t[0]}")
                a(f"v_and_b32 v{t[1]}, 1, v{g}")
                a(f"v_lshl_add_u32 v{t[0]}, v{t[1]}, 2, v{t[0]}")
            a(f"v_lshrrev_b32 v{t[1]}, 2, v{i16}")
            a(f"v_add_u32 v{t[0]}, v{t[0]}, v{t[1]}")
            if self.WK > 1:
                a(f"v_mov_b32 v{t[1]}, {self.SPW*32}")
                a(f"v_mad_u32_u24 v{t[0]}, v{wo}, v{t[1]}, v{t[0]}")
            a(f"v_mul_u32_u24 v{t[0]}, {s.lstride}, v{t[0]}")
            a(f"v_and_b32 v{t[1]}, 3, v{i16}")
            a(f"v_lshl_add_u32 v{t[0]}, v{t[1]}, 3, v{t[0]}")
            if s.kind == 'p192':
                regs = []
                for b in range(s.FBW):
                    r = va()
                    regs.append(r)
                    if self.WF > 1:
                        a(f"v_mul_u32_u24 v{t[1]}, {s.FBW}, v{wo}")
                        a(f"v_add_u32 v{t[1]}, {b}, v{t[1]}")
                    else:
                        a(f"v_mov_b32 v{t[1]}, {b}")
                    a(f"v_and_b32 v{t[2]}, 1, v{g}")
                    a(f"v_xor_b32 v{t[1]}, v{t[1]}, v{t[2]}")
                    a(f"v_lshl_add_u32 v{r}, v{t[1]}, 5, v{t[0]}")
                s.v_a = regs
                self.addr_regs += regs
            else:
                r = va()
                if self.WF > 1:
                    a(f"v_mul_u32_u24 v{t[1]}, {s.FBW*32}, v{wo}")
                    a(f"v_add_u32 v{r}, v{t[0]}, v{t[1]}")
                else:
                    a(f"v_mov_b32 v{r}, v{t[0]}")
                s.v_a = [r]
                self.addr_regs.append(r)
            done[key] = s.v_a
        self.v_b = []
        if self.xcm:
            r = va()
            self.v_b = [r] * self.SPW
            self.addr_regs.append(r)
            a(f"v_mul_u32_u24 v{t[0]}, {self.TW*self.RB}, v{wt}")
            a(f"v_lshl_add_u32 v{t[0]}, v{lane}, 4, v{t[0]}")
            if self.WK > 1:
                a(f"v_mul_u32_u24 v{t[2]}, {1024*self.SPW}, v{wo}")
                a(f"v_add_u32 v{r}, v{t[0]}, v{t[2]}")
            else:
                a(f"v_mov_b32 v{r}, v{t[0]}")
        self.swapb = self.WK == 2
        a(f"v_mul_u32_u24 v{t[0]}, {self.TW}, v{wt}")
        a(f"v_add_u32 v{t[0]}, v{t[0]}, v{i16}")
        if self.CPR == 8:
            a(f"v_bfe_u32 v{t[1]}, v{t[0]}, 1, 3")
        else:
            a(f"v_and_b32 v{t[1]}, 15, v{t[0]}")
        a(f"v_mul_u32_u24 v{t[0]}, {self.RB}, v{t[0]}")
        for ls in range(self.SPW if not self.xcm else 0):
            r = va()
            self.v_b.append(r)
            self.addr_regs.append(r)
            if self.WK > 1:
                a(f"v_mul_u32_u24 v{t[2]}, {4*self.SPW}, v{wo}")
                a(f"v_add3_u32 v{t[2]}, v{t[2]}, v{g}, {4*ls}")
            else:
                a(f"v_add_u32 v{t[2]}, {4*ls}, v{g}")
            a(f"v_xor_b32 v{t[2]}, v{t[2]}, v{t[1]}")
            a(f"v_lshl_add_u32 v{r}, v{t[2]}, 4, v{t[0]}")
        if self.swapb:
            assert self.TB == 2
            m = {}
            a(f"v_mul_u32_u24 v{t[2]}, {16*self.RB}, v{wo}")
            a(f"v_sub_u32 v{t[3]}, {16*self.RB}, v{t[2]}")
            for r in self.v_b:
                if r not in m:
                    m[r] = va()
                    self.addr_regs.append(m[r])
                    a(f"v_add_u32 v{m[r]}, v{t[3]}, v{r}")
                    a(f"v_add_u32 v{r}, v{t[2]}, v{r}")
            self.v_b2 = [m[r] for r in self.v_b]
        if self.lds_base:
            for r in self.addr_regs:
                a(f"v_add_u32 v{r}, {self.lds_base + self.slot0*self.stage_bytes}, v{r}")
        self.nA = sum(s.FBW for s in self.segs)
        self.fa = [va(4 * self.nA, 4) for _ in range(2)]
        self.fb = [va(4 * self.TB, 4) for _ in range(2)]
        self.acc = [[va(4, 4) for _ in range(self.nA)] for _ in range(self.TB)]
        accs = [r for row in self.acc for r in row]
        if self.stats or self.colsum:
            self.v_ones = va(4, 4)
            for i in range(4):
                a(f"v_mov_b32 v{self.v_ones+i}, 0x3f803f80")
        if self.stats:
            self.acc_sum = [va(4, 4) for _ in range(self.TB)]
            self.acc_sq = [va(4, 4) for _ in range(self.TB)]
            accs += self.acc_sum + self.acc_sq
        if self.colsum:
            self.acc_cs = [va(4, 4) for _ in range(self.nA)]
            accs += self.acc_cs
        for r in accs:
            for i in range(4):
                a(f"v_mov_b32 v{r+i}, 0")

    def read_units(self, ls, buf):
        units = []
        fi = 0
        for s in self.segs:
            for b in range(s.FBW):
                for e in range(2):
                    if s.kind == 'lin40':
                        off = s.lbase + (ls * 32 + 4 * e) * 40 + b * 32
                        ar = s.v_a[0]
                    elif s.kind == 'p192':
                        off = s.lbase + (ls * 32 + 8 * e) * s.lstride
                        ar = s.v_a[b]
                    else:
                        off = s.lbase + (ls * 32 + 8 * e) * s.lstride + b * 32
                        ar = s.v_a[0]
                    assert off < 65536
                    d = self.fa[buf] + 4 * fi + 2 * e
                    units.append([f"ds_read_b64_tr_b16 {vr(d,2)}, v{ar} offset:{off}"])
                fi += 1
        for tb in range(self.TB):
            off = tb * 16 * self.RB + (ls * 1024 if self.xcm else 0)
            d = self.fb[buf] + 4 * tb
            ar = self.v_b[ls]
            if self.swapb and tb:
                off -= 16 * self.RB
                ar = self.v_b2[ls]
            units.append([f"ds_read_b128 {vr(d,4)}, v{ar} offset:{off}"])
        return units[-self.TB:] + units[:-self.TB]

    def mfmas(self, buf):
        out = []
        for fi in range(self.nA):
            A = vr(self.fa[buf] + 4 * fi, 4)
            for tb in range(self.TB):
                B = vr(self.fb[buf] + 4 * tb, 4)
                c = vr(self.acc[tb][fi], 4)
                out.append(f"v_mfma_f32_16x16x32_bf16 {c}, {A}, {B}, {c}")
            if self.colsum:
                c = vr(self.acc_cs[fi], 4)
                out.append(f"v_mfma_f32_16x16x32_bf16 {c}, {A}, {vr(self.v_ones,4)}, {c}")
        if self.stats:
            for tb in range(self.TB):
                B = vr(self.fb[buf] + 4 * tb, 4)
                c = vr(self.acc_sum[tb], 4)
                out.append(f"v_mfma_f32_16x16x32_bf16 {c}, {vr(self.v_ones,4)}, {B}, {c}")
                c = vr(self.acc_sq[tb], 4)
                out.append(f"v_mfma_f32_16x16x32_bf16 {c}, {B}, {B}, {c}")
        return out

    def ld_ready(self, st):
        ops = self.ops
        last = max(i for i, o in enumerate(ops) if o == (self.tag, st))
        n = len(ops) - 1 - last
        assert n < 64
        self.a(f"s_waitcnt vmcnt({n})")
        self.lstamp(st + 2)
        self.a("s_barrier")

    def mainloop(self, post_first=None, pre_bar=None):
        a = self.a
        a(f"s_mov_b32 s{self.s_cnt}, {self.nst}")
        a(f"s_mov_b32 s{self.s_slot}, {self.slot0*self.stage_bytes}")
        a("s_barrier")
        if post_first:
            post_first()
        for u in self.read_units(0, 0):
            for l in u:
                a(l)
        lp = f"{self.tag}_loop"
        a.label(lp)
        for ls in range(self.SPW):
            buf = ls & 1
            a("s_waitcnt lgkmcnt(0)")
            mf = self.mfmas(buf)
            if ls == self.SPW - 1:
                a(mf[0])
                mf = mf[1:]
                if pre_bar:
                    pre_bar()
                a("s_barrier")
                fill = self.read_units(0, buf ^ 1)
                fill.append([f"s_sub_u32 s{self.s_cnt}, s{self.s_cnt}, 1", f"s_cmp_lg_u32 s{self.s_cnt}, 0"])
            else:
                fill = self.read_units(ls + 1, buf ^ 1)
                if ls == self.SPW - 2:
                    fill.append([f"s_mov_b32 s{self.s_dl}, s{self.s_slot}",
                                 f"s_add_u32 s{self.s_slot}, s{self.s_slot}, {self.stage_bytes}"])
                    fill.append([f"s_cmp_ge_u32 s{self.s_slot}, {self.lds_bytes}",
                                 f"s_cselect_b32 s{self.s_slot}, 0, s{self.s_slot}",
                                 f"s_sub_u32 s{self.s_dl}, s{self.s_slot}, s{self.s_dl}"])
                    for r in self.addr_regs:
                        fill.append([f"v_add_u32 v{r}, s{self.s_dl}, v{r}"])
            for l in interleave(mf, fill, len(self.read_units(0, 0))):
                a(l)
        a(f"s_cbranch_scc1 {lp}")
        a("s_waitcnt vmcnt(0) lgkmcnt(0)")


P_X, P_WQ, P_WK, P_WV, P_WO, P_BX, P_WG, P_WU, P_WD, P_OUT, P_DBG, P_WS = [16 + 2 * i for i in range(12)]
SRD0, SRD1, SRD2, SRD3, SRD4, SRD5 = 40, 44, 48, 52, 56, 60
S_WOFF, S_KX, S_KW, S_WAVE = 64, 65, 66, 67
S_TOK0, S_COL, S_T0, S_T1, S_T2 = 68, 69, 70, 71, 72
S_CNT_, S_SLOT_, S_KIDX, S_DL, S_ROT = 76, 77, 78, 79, 73
GS = (S_WOFF, S_KX, S_KW, S_WAVE, S_CNT_, S_SLOT_, S_KIDX, S_DL)


def load_kernargs(a):
    if INSTR:
        for i in range(84, 98):
            a(f"s_mov_b32 s{i}, 0")
        a("s_memtime s[80:81]")
        a("s_memrealtime s[82:83]")
    a("s_load_dwordx16 s[16:31], s[0:1], 0")
    a("s_load_dwordx8 s[32:39], s[0:1], 64")


RT = [int(x) for x in os.environ.get("RT", "0,1,2").split(",")]
def rstamp(a, idx):
    if INSTR and idx in RT:
        a("s_memrealtime s[98:99]")
        a("s_waitcnt lgkmcnt(0)")
        a(f"s_mov_b32 s{(3, 7, 15)[RT.index(idx)]}, s98")


P1ST = bool(os.environ.get("P1ST"))
def stamp(a, idx, p1=False):
    if INSTR and (p1 == P1ST or idx < 4):
        a("s_memtime s[98:99]")
        a("s_waitcnt lgkmcnt(0)")
        a(f"s_sub_u32 s{84+idx}, s98, s80")


def stamp_end(a, n, wg=None):
    if INSTR:
        lab = a.newlabel("se")
        a("s_mov_b64 exec, -1")
        a("s_waitcnt vmcnt(0)")
        a("s_memtime s[98:99]")
        a("s_memrealtime s[100:101]")
        a("s_waitcnt lgkmcnt(0)")
        a(f"s_sub_u32 s{84+n}, s98, s80")
        a(f"s_sub_u32 s{85+n}, s100, s82")
        lab2 = a.newlabel("se")
        a(f"s_cmp_lg_u32 s{S_WAVE}, 0")
        a(f"s_cbranch_scc1 {lab2}")
        make_srd(a, 40, P_WS, WS_TL + KIDX[0] * 4096, 4096)
        a("s_getreg_b32 s98, hwreg(HW_REG_XCC_ID)")
        a("s_and_b32 s98, s98, 7")
        a("s_andn2_b32 s100, s100, 7")
        a("s_or_b32 s100, s100, s98")
        a("v_mov_b32 v2, s82")
        a("v_mov_b32 v3, s100")
        a("s_lshl_b32 s98, s2, 3")
        a("v_mov_b32 v1, s98")
        a("buffer_store_dwordx2 v[2:3], v1, s[40:43], 0 offen")
        make_srd(a, 40, P_WS, WS_TL + 2 * 4096, 4096)
        a("v_mov_b32 v3, s3")
        a("v_mov_b32 v4, s7")
        a("v_mov_b32 v5, s15")
        a("v_lshlrev_b32 v1, 1, v1")
        a("buffer_store_dwordx4 v[2:5], v1, s[40:43], 0 offen")
        a.label(lab2)
        a(f"s_cmp_lg_u32 s2, {INSTR_WG if wg is None else wg}")
        a(f"s_cbranch_scc1 {lab}")
        a(f"s_cmp_lg_u32 s{S_WAVE}, 0")
        a(f"s_cbranch_scc1 {lab}")
        make_srd(a, 40, P_DBG, 0, 256)
        a("v_mov_b32 v1, 0")
        for i in range(14):
            a(f"v_mov_b32 v2, s{84+i}")
            a(f"buffer_store_dword v2, v1, s[40:43], 0 offen offset:{4*i}")
        a.label(lab)
INSTR_WG = int(os.environ.get("INSTR_WG", "100"))


def round_bf16(a, dst, src):
    a(f"v_cvt_pk_bf16_f32 v{dst}, v{src}, v{src}")
    a(f"v_lshlrev_b32 v{dst}, 16, v{dst}")


def ln_stats(a, v_sum, v_sq, v_mean, v_rstd, t):
    a(f"v_mul_f32 v{v_mean}, {f32(1.0/D)}, v{v_sum}")
    a(f"v_mul_f32 v{t[0]}, {f32(1.0/D)}, v{v_sq}")
    a(f"v_fma_f32 v{t[0]}, -v{v_mean}, v{v_mean}, v{t[0]}")
    a(f"v_max_f32 v{t[0]}, 0, v{t[0]}")
    round_bf16(a, v_mean, v_mean)
    round_bf16(a, t[0], t[0])
    a(f"v_add_f32 v{t[0]}, {f32(1e-5)}, v{t[0]}")
    round_bf16(a, t[0], t[0])
    a(f"v_sqrt_f32 v{t[0]}, v{t[0]}")
    a("s_nop 0")
    round_bf16(a, t[0], t[0])
    a(f"v_rcp_f32 v{v_rstd}, v{t[0]}")
    a("s_nop 0")


def gram_diag(a, g, acc_sq, dst):
    t = g.tmp
    a(f"v_and_b32 v{t[0]}, 3, v{g.v_i16}")
    a(f"v_mov_b32 v{t[1]}, v{acc_sq}")
    for r in range(1, 4):
        a(f"v_cmp_eq_u32 vcc, {r}, v{t[0]}")
        a("s_nop 1")
        a(f"v_cndmask_b32 v{t[1]}, v{t[1]}, v{acc_sq+r}, vcc")
    a(f"v_lshrrev_b32 v{t[0]}, 2, v{g.v_i16}")
    a(f"v_lshl_add_u32 v{t[0]}, v{t[0]}, 4, v{g.v_i16}")
    a(f"v_lshlrev_b32 v{t[0]}, 2, v{t[0]}")
    a(f"ds_bpermute_b32 v{dst}, v{t[0]}, v{t[1]}")
    a("s_waitcnt lgkmcnt(0)")


def xlane_add(a, v, v_lane, t0, t1, masks, op="v_add_f32"):
    for m in masks:
        a(f"v_xor_b32 v{t0}, {m}, v{v_lane}")
        a(f"v_lshlrev_b32 v{t0}, 2, v{t0}")
        a(f"ds_bpermute_b32 v{t1}, v{t0}, v{v}")
        a("s_waitcnt lgkmcnt(0)")
        a(f"{op} v{v}, v{v}, v{t1}")


QSCALE = (DH ** -0.5) * 1.4426950408889634


def prefetch_lin(a, v_tid, v_t, v_dummy, srd, s_base, s_j, nlines, s_tmp, nthreads=256):
    a(f"s_mul_i32 s{s_tmp}, s{s_j}, {nlines*128}")
    if s_base is not None:
        a(f"s_add_u32 s{s_tmp}, s{s_tmp}, s{s_base}")
    a(f"v_lshlrev_b32 v{v_t}, 7, v{v_tid}")
    n = (nlines + nthreads - 1) // nthreads
    for i in range(n):
        if i:
            a(f"s_add_u32 s{s_tmp}, s{s_tmp}, {nthreads*128}")
        a(f"buffer_load_dword v{v_dummy}, v{v_t}, {sr(srd,4)}, s{s_tmp} offen")

S_J, S_XB, S_IMG = 12, 13, 14

def dpp_rowmax(a, v):
    for n in (1, 2, 4, 8):
        a("s_nop 1")
        a(f"v_max_f32_dpp v{v}, v{v}, v{v} row_shr:{n} row_mask:0xf bank_mask:0xf bound_ctrl:0")


def swap_add(a, v, t, which):
    a(f"v_mov_b32 v{t}, v{v}")
    a("s_nop 1")
    a(f"v_permlane{which}_swap_b32 v{v}, v{t}")
    a("s_nop 1")
    a(f"v_add_f32 v{v}, v{v}, v{t}")


def gen_k1(a):
    name = "k1_qkv_kernel"
    kernel_begin(a, name)
    a("s_cmp_ge_u32 s2, 256")
    a("s_cbranch_scc1 k1_end")
    load_kernargs(a)
    a(f"s_and_b32 s{S_T1}, s2, 7")
    a(f"s_lshr_b32 s{S_T0}, s2, 3")
    a(f"s_mul_i32 s{S_ROT}, s{S_T0}, 52")
    a(f"s_lshr_b32 s{S_ROT}, s{S_ROT}, 8")
    a(f"s_mul_i32 s{S_ROT}, s{S_ROT}, 5")
    a(f"s_sub_u32 s{S_ROT}, s{S_T0}, s{S_ROT}")
    if os.environ.get("K0ROT", "0") == "0":
        a(f"s_mov_b32 s{S_ROT}, 0")
    a(f"s_lshr_b32 s{S_T2}, s{S_T0}, 3")
    a(f"s_lshl_b32 s{S_T1}, s{S_T1}, 2")
    a(f"s_add_u32 s{S_XB}, s{S_T1}, s{S_T2}")
    a(f"s_lshl_b32 s{S_TOK0}, s{S_XB}, 6")
    a(f"s_and_b32 s{S_J}, s{S_T0}, 7")
    a(f"s_mul_i32 s{S_COL}, s{S_J}, 160")
    a("s_waitcnt lgkmcnt(0)")
    make_srd(a, SRD0, P_X, 0, S * D * 2)
    make_srd(a, SRD1, P_WQ, 0, D * D * 2)
    make_srd(a, SRD2, P_WS, WS_Q, S * D * 2)
    a(f"s_cmp_lt_u32 s{S_J}, 2")
    a("s_cbranch_scc1 k1_b")
    maxv = 8
    lds = 0

    def q_epilogue(g, va):
        t = g.tmp
        v_mean, v_rstd, v_sq, v_ad, v_rq, v_tok = va(), va(), va(), va(), va(), va()
        nA = g.nA
        nx = 2 * nA + 2
        a(f"v_mul_u32_u24 v{t[0]}, {nx*1024}, v{g.v_wave}")
        a(f"v_lshl_add_u32 v{t[0]}, v{g.v_lane}, 4, v{t[0]}")
        a(f"v_xor_b32 v{t[1]}, 2, v{g.v_wave}")
        a(f"v_mul_u32_u24 v{t[1]}, {nx*1024}, v{t[1]}")
        a(f"v_lshl_add_u32 v{t[1]}, v{g.v_lane}, 4, v{t[1]}")
        a(f"v_lshl_add_u32 v{v_tok}, v{g.v_wt}, 1, v{g.v_wo}")
        a(f"v_lshl_add_u32 v{v_tok}, v{v_tok}, 4, v{g.v_i16}")
        a(f"v_add_u32 v{v_tok}, s{S_TOK0}, v{v_tok}")
        a("s_nop 3")
        keep = g.acc[0] + [g.acc_sum[0], g.acc_sq[0]]
        send = g.acc[1] + [g.acc_sum[1], g.acc_sq[1]]
        skip = a.newlabel("xs")
        a(f"s_cmp_lt_u32 s{S_WAVE}, 2")
        a(f"s_cbranch_scc1 {skip}")
        for k_, s_ in zip(keep, send):
            for r in range(4):
                a(f"v_swap_b32 v{k_+r}, v{s_+r}")
        a.label(skip)
        for i, r in enumerate(send + g.acc_cs):
            a(f"ds_write_b128 v{t[0]}, {vr(r,4)} offset:{i*1024}")
        a("s_waitcnt lgkmcnt(0)")
        a("s_barrier")
        csx = [g.fa[0] + 4 * i for i in range(nA)]
        order = [nA, nA + 1] + list(range(nA))
        for i in order:
            a(f"ds_read_b128 {vr(send[i],4)}, v{t[1]} offset:{i*1024}")
            if i < nA:
                a(f"ds_read_b128 {vr(csx[i],4)}, v{t[1]} offset:{(nA+2+i)*1024}")
        a(f"v_mul_u32_u24 v{t[2]}, {D*2}, v{v_tok}")
        a(f"v_lshl_add_u32 v{v_ad}, v{g.v_g}, 3, v{t[2]}")
        a(f"v_add_u32 v{v_ad}, s{S_COL}, v{v_ad}")
        a(f"s_waitcnt lgkmcnt({2*nA})")
        a(f"v_add_f32 v{keep[nA]}, v{keep[nA]}, v{send[nA]}")
        for r in range(4):
            a(f"v_add_f32 v{keep[nA+1]+r}, v{keep[nA+1]+r}, v{send[nA+1]+r}")
        gram_diag(a, g, g.acc_sq[0], v_sq)
        ln_stats(a, g.acc_sum[0], v_sq, v_mean, v_rstd, g.tmp)
        a(f"v_mul_f32 v{v_rq}, {f32(QSCALE)}, v{v_rstd}")
        for fb in range(nA):
            c, cs = g.acc[0][fb], g.acc_cs[fb]
            for r in range(4):
                a(f"v_add_f32 v{c+r}, v{c+r}, v{send[fb]+r}")
                a(f"v_add_f32 v{cs+r}, v{cs+r}, v{csx[fb]+r}")
                a(f"v_fma_f32 v{c+r}, -v{v_mean}, v{cs+r}, v{c+r}")
                a(f"v_mul_f32 v{c+r}, v{c+r}, v{v_rq if fb < 5 else v_rstd}")
            a(f"v_cvt_pk_bf16_f32 v{c}, v{c}, v{c+1}")
            a(f"v_cvt_pk_bf16_f32 v{c+1}, v{c+2}, v{c+3}")
            if fb < 5:
                a(f"buffer_store_dwordx2 {vr(c,2)}, v{v_ad}, {sr(SRD2,4)}, 0 offen offset:{fb*32}")
        return v_tok

    def colsum(lva, lt):
        a.label("k1_cs")
        cva = VAlloc(8)
        lt = [cva() for _ in range(4)]
        csb = cva(40, 4)
        cacc = cva(8, 4)
        v_ca, v_l = cva(), cva()
        S_U, S_SRC, S_DST = S_T0, S_T1, S_KW
        a(f"s_sub_u32 s{S_U}, s{S_WAVE}, 4")
        a(f"s_lshl_b32 s{S_U}, s{S_U}, 8")
        a(f"s_add_u32 s{S_T2}, s{S_U}, s2")
        a(f"s_cmp_eq_u32 s{S_T2}, 768")
        a("s_cbranch_scc1 k1_zero")
        a(f"s_cmp_ge_u32 s{S_T2}, {48*NCS}")
        a("s_cbranch_scc1 k1_end")
        a(f"s_mul_i32 s{S_U}, s{S_T2}, 1366")
        a(f"s_lshr_b32 s{S_U}, s{S_U}, 16")
        a(f"s_mul_i32 s{S_SRC}, s{S_U}, 48")
        a(f"s_sub_u32 s{S_SRC}, s{S_T2}, s{S_SRC}")
        a(f"s_cmp_lt_u32 s{S_SRC}, 24")
        a(f"s_cselect_b32 s{SRD0}, s{P_WG}, s{P_WU}")
        a(f"s_cselect_b32 s{SRD0+1}, s{P_WG+1}, s{P_WU+1}")
        a(f"s_mov_b32 s{SRD0+2}, {F*D*2}")
        a(f"s_cselect_b32 s{S_DST}, 0, 24")
        a(f"s_sub_u32 s{S_SRC}, s{S_SRC}, s{S_DST}")
        a(f"s_lshl_b32 s{S_SRC}, s{S_SRC}, 7")
        a(f"s_mul_i32 s{S_U}, s{S_U}, {80*F*2}")
        a(f"s_add_u32 s{S_SRC}, s{S_SRC}, s{S_U}")
        a(f"v_and_b32 v{v_l}, 63, v0")
        a(f"v_lshrrev_b32 v{lt[0]}, 3, v{v_l}")
        a(f"v_mul_u32_u24 v{lt[0]}, {F*2}, v{lt[0]}")
        a(f"v_and_b32 v{lt[1]}, 7, v{v_l}")
        a(f"v_lshl_add_u32 v{v_ca}, v{lt[1]}, 4, v{lt[0]}")
        for i in range(10):
            a(f"buffer_load_dwordx4 {vr(csb+4*i,4)}, v{v_ca}, {sr(SRD0,4)}, s{S_SRC} offen")
            a(f"s_add_u32 s{S_SRC}, s{S_SRC}, {8*F*2}")
        a(f"v_lshrrev_b32 v{lt[0]}, 4, v{v_l}")
        a(f"v_lshlrev_b32 v{lt[0]}, 3, v{lt[0]}")
        a(f"v_lshl_add_u32 v{v_ca}, v{lt[1]}, 5, v{lt[0]}")
        make_srd(a, SRD3, P_WS, WS_CS, NCS * 3072 * 4)
        a(f"s_lshl_b32 s{S_T2}, s{S_T2}, 8")
        a("s_barrier")
        for i in range(10):
            a(f"s_waitcnt vmcnt({9-i})")
            for j in range(4):
                if i == 0:
                    a(f"v_lshlrev_b32 v{cacc+2*j}, 16, v{csb+j}")
                    a(f"v_and_b32 v{cacc+2*j+1}, 0xffff0000, v{csb+j}")
                else:
                    a(f"v_lshlrev_b32 v{lt[0]}, 16, v{csb+4*i+j}")
                    a(f"v_and_b32 v{lt[1]}, 0xffff0000, v{csb+4*i+j}")
                    a(f"v_add_f32 v{cacc+2*j}, v{cacc+2*j}, v{lt[0]}")
                    a(f"v_add_f32 v{cacc+2*j+1}, v{cacc+2*j+1}, v{lt[1]}")
        a("s_nop 1")
        for j in range(4):
            a(f"v_permlane32_swap_b32 v{cacc+j}, v{cacc+4+j}")
        a("s_nop 1")
        for j in range(4):
            a(f"v_add_f32 v{cacc+j}, v{cacc+j}, v{cacc+4+j}")
        a("s_nop 1")
        for j in range(2):
            a(f"v_permlane16_swap_b32 v{cacc+j}, v{cacc+2+j}")
        a("s_nop 1")
        for j in range(2):
            a(f"v_add_f32 v{cacc+j}, v{cacc+j}, v{cacc+2+j}")
        a("s_nop 1")
        for j in range(2):
            a(f"v_add_f32_dpp v{cacc+j}, v{cacc+j}, v{cacc+j} row_ror:8 row_mask:0xf bank_mask:0xf")
        a(f"buffer_store_dwordx2 {vr(cacc,2)}, v{v_ca}, {sr(SRD3,4)}, s{S_T2} offen")
        a.label("k1_end")
        a("s_endpgm")
        a.label("k1_zero")
        make_srd(a, SRD3, P_WS, WS_CNT, 32768)
        a(f"v_and_b32 v{v_l}, 63, v0")
        a(f"v_lshlrev_b32 v{v_l}, 8, v{v_l}")
        a(f"v_mov_b32 v{lt[0]}, 0")
        a(f"buffer_store_dword v{lt[0]}, v{v_l}, {sr(SRD3,4)}, 0 offen")
        a(f"s_mov_b32 s{S_T2}, 16384")
        a(f"buffer_store_dword v{lt[0]}, v{v_l}, {sr(SRD3,4)}, s{S_T2} offen")
        a("s_endpgm")
        pre['n'] = cva.n
    pre = {}

    va = VAlloc(1)
    seg = Seg(SRD1, D * 2, 80, 'p160', S_COL)
    g = Gemm(a, va, 64, 2, 2, 1, [seg], 128, 4, D, SRD0, D * 2, S_TOK0, stats=True, colsum=True, sregs=GS, tag="k1q")
    g.split()
    g.setup()
    stamp(a, 0)
    g.mainloop()
    stamp(a, 1)
    lds = max(lds, g.lds_bytes)
    q_epilogue(g, va)
    stamp_end(a, 2)
    a("s_endpgm")
    maxv = max(maxv, va.n)
    g.loader(S_ROT, cont=colsum)
    maxv = max(maxv, pre['n'])

    a.label("k1_b")
    va = VAlloc(1)
    a(f"s_cmp_eq_u32 s{S_J}, 0")
    a(f"s_cselect_b32 s{SRD3}, s{P_WK}, s{P_WV}")
    a(f"s_cselect_b32 s{SRD3+1}, s{P_WK+1}, s{P_WV+1}")
    a(f"s_mov_b32 s{SRD3+2}, {D*DH*2}")
    a(f"s_mov_b32 s{SRD3+3}, 0x00020000")
    make_srd(a, SRD4, P_WS, WS_KV, KV_SZ)
    make_srd(a, SRD5, P_WS, WS_KN, 512)
    seg = Seg(SRD1, D * 2, 80, 'p160', S_COL)
    sk = Seg(SRD3, 40, 32, 'lin40')
    g = Gemm(a, va, 64, 2, 2, 1, [seg, sk], 128, 3, D, SRD0, D * 2, S_TOK0, stats=True, colsum=True, sregs=GS, tag="k1kv")
    g.split()
    g.setup()
    stamp(a, 0)
    g.mainloop()
    stamp(a, 1)
    lds = max(lds, g.lds_bytes)
    v_key = q_epilogue(g, va)
    v_ak, v_n = va(), va()
    t = g.tmp
    k0, k1 = g.acc[0][5], g.acc[0][6]
    a(f"v_cmp_eq_u32 vcc, 0, v{g.v_g}")
    a(f"v_lshrrev_b32 v{t[0]}, 5, v{v_key}")
    a(f"v_mul_u32_u24 v{t[0]}, 2560, v{t[0]}")
    a(f"v_and_b32 v{t[1]}, 31, v{v_key}")
    a(f"s_cmp_lg_u32 s{S_J}, 0")
    a("s_cbranch_scc1 k1_v")
    a(f"v_lshl_add_u32 v{v_ak}, v{t[1]}, 4, v{t[0]}")
    a(f"v_lshrrev_b32 v{t[2]}, 1, v{g.v_g}")
    a(f"v_lshl_add_u32 v{v_ak}, v{t[2]}, 9, v{v_ak}")
    a(f"v_and_b32 v{t[2]}, 1, v{g.v_g}")
    a(f"v_lshl_add_u32 v{v_ak}, v{t[2]}, 3, v{v_ak}")
    a(f"buffer_store_dwordx2 {vr(k0,2)}, v{v_ak}, {sr(SRD4,4)}, 0 offen")
    a(f"v_lshl_add_u32 v{v_key}, v{t[1]}, 3, v{t[0]}")
    a(f"v_cndmask_b32 v{k1}, 0, v{k1}, vcc")
    a(f"v_cndmask_b32 v{k1+1}, 0, v{k1+1}, vcc")
    a("s_and_saveexec_b64 s[74:75], vcc")
    a(f"buffer_store_dwordx2 {vr(k1,2)}, v{v_key}, {sr(SRD4,4)}, 0 offen offset:1024")
    a("s_mov_b64 exec, -1")
    a(f"v_mov_b32 v{v_n}, 0")
    for c in (k0, k0 + 1, k1, k1 + 1):
        a(f"v_lshlrev_b32 v{t[0]}, 16, v{c}")
        a(f"v_and_b32 v{t[1]}, 0xffff0000, v{c}")
        a(f"v_fma_f32 v{v_n}, v{t[0]}, v{t[0]}, v{v_n}")
        a(f"v_fma_f32 v{v_n}, v{t[1]}, v{t[1]}, v{v_n}")
    swap_add(a, v_n, t[0], 32)
    swap_add(a, v_n, t[0], 16)
    dpp_rowmax(a, v_n)
    a(f"s_lshl_b32 s{S_T0}, s{S_XB}, 2")
    a(f"s_add_u32 s{S_T0}, s{S_T0}, s{S_WAVE}")
    a(f"s_lshl_b32 s{S_T0}, s{S_T0}, 2")
    a(f"v_mov_b32 v{t[0]}, 0")
    a("s_mov_b64 exec, 0x8000")
    a(f"buffer_store_dword v{v_n}, v{t[0]}, {sr(SRD5,4)}, s{S_T0} offen")
    stamp_end(a, 2)
    a("s_endpgm")
    a.label("k1_v")
    a(f"v_bfe_u32 v{t[2]}, v{t[1]}, 4, 1")
    a(f"v_mad_u32_u24 v{v_ak}, v{t[2]}, 640, v{t[0]}" if False else f"v_mul_u32_u24 v{t[2]}, 640, v{t[2]}")
    a(f"v_add_u32 v{v_ak}, v{t[2]}, v{t[0]}")
    a(f"v_bfe_u32 v{t[2]}, v{t[1]}, 2, 1")
    a(f"v_mul_u32_u24 v{t[2]}, 320, v{t[2]}")
    a(f"v_add_u32 v{v_ak}, v{t[2]}, v{v_ak}")
    a(f"v_bfe_u32 v{t[2]}, v{t[1]}, 3, 1")
    a(f"v_lshl_add_u32 v{v_ak}, v{t[2]}, 3, v{v_ak}")
    a(f"v_and_b32 v{t[2]}, 3, v{t[1]}")
    a(f"v_lshl_add_u32 v{v_ak}, v{t[2]}, 1, v{v_ak}")
    a(f"v_lshl_add_u32 v{v_ak}, v{g.v_g}, 6, v{v_ak}")
    for fb, c in enumerate((k0, k1)):
        if fb:
            a("s_and_saveexec_b64 s[74:75], vcc")
        for p in range(2):
            o = 1280 + fb * 256 + p * 32
            a(f"buffer_store_short v{c+p}, v{v_ak}, {sr(SRD4,4)}, 0 offen offset:{o}")
            a(f"buffer_store_short_d16_hi v{c+p}, v{v_ak}, {sr(SRD4,4)}, 0 offen offset:{o+16}")
    stamp_end(a, 2)
    a("s_endpgm")
    maxv = max(maxv, va.n)
    g.loader(S_ROT, cont=lambda lva, lt: a("s_branch k1_cs"))

    kernel_end(a, name, maxv)
    return (name, 256, 512, lds)


QB = 53248
MX, MW, MS = 0, 20480, 49152
QST, KMX = 102400, 112640
S_HOOK, S_KVC = 15, 7
CNT_KV = 80
FLAG = 128


def p1_compute(a, tmp, v_first, v_alias, init):
    va = VAlloc(v_first)
    seg = Seg(SRD1, D * 2, 80, 'p160', S_COL)
    g = Gemm(a, va, 64, 2, 2, 1, [seg], 128, 4, D, SRD0, D * 2, S_TOK0, stats=True, colsum=True, sregs=GS, tag="k1q",
             lds_base=QB - 36864, slot0=1)
    assert g.lds_base + g.lds_bytes <= KV_SZ and g.stage_bytes == 36864
    g.tmp = tmp
    t = g.tmp
    make_srd(a, SRD5, P_DBG, 0, 256)
    make_srd(a, SRD3, P_WS, WS_KN, 512)
    fr = v_alias
    mac = [v_alias + 16 + 4 * i for i in range(6)]
    v_mx, v_mw, v_mp, v_fl, v_z, v_one, v_fa, v_ad = [v_alias + 40 + i for i in range(8)]
    v_mean = va(2, 2)
    v_rstd = v_mean + 1
    v_sq, v_xw, v_xr, v_xc, v_qw = [va() for _ in range(5)]
    a(f"v_mov_b32 v{v_z}, 0")
    a(f"v_mov_b32 v{v_one}, 1")
    lab = a.newlabel("bz")
    a(f"s_lshl_b32 s{S_T1}, s2, 2")
    a(f"s_add_u32 s{S_T1}, s{S_T1}, s{S_WAVE}")
    a(f"s_cmp_lg_u32 s{S_T1}, 3")
    a(f"s_cbranch_scc1 {lab}")
    a(f"v_and_b32 v{t[0]}, 63, v0")
    a(f"v_lshlrev_b32 v{t[0]}, 8, v{t[0]}")
    for i in range(4):
        a(f"v_mov_b32 v{fr+i}, 0")
    a(f"s_mov_b32 s{S_T2}, 16384")
    a(f"buffer_store_dwordx4 {vr(fr,4)}, v{t[0]}, {sr(SRDC,4)}, 0 offen sc1")
    a(f"buffer_store_dwordx4 {vr(fr,4)}, v{t[0]}, {sr(SRDC,4)}, s{S_T2} offen sc1")
    a("s_mov_b64 exec, 1")
    a("s_waitcnt vmcnt(0)")
    a(f"buffer_store_dword v{v_one}, v{v_z}, {sr(SRD5,4)}, 0 offen offset:{FLAG} sc1")
    a("s_mov_b64 exec, -1")
    a.label(lab)
    g.setup()
    assert g.fb[1] + 8 == g.fa[0] + 56
    fq = [fr + 4 * i for i in range(4)] + [g.fa[0] + 4 * i for i in range(14)]
    a(f"s_cmp_eq_u32 s{S_WAVE}, 0")
    a(f"s_cselect_b32 s{S_HOOK}, 2, 0")
    a(f"s_and_b32 s{S_KVC}, s2, 15")
    a(f"s_lshl_b32 s{S_KVC}, s{S_KVC}, 8")
    a(f"s_add_u32 s{S_KVC}, s{S_KVC}, {96*256}")
    a(f"v_lshlrev_b32 v{v_fa}, 8, v{g.v_lane}")
    a(f"v_mul_u32_u24 v{t[0]}, 5120, v{g.v_wave}")
    a(f"v_lshl_add_u32 v{v_mx}, v{g.v_lane}, 4, v{t[0]}")
    a(f"v_mul_u32_u24 v{t[0]}, 6400, v{g.v_wave}")
    a(f"v_add_u32 v{t[0]}, {MW}, v{t[0]}")
    a(f"v_lshl_add_u32 v{v_mp}, v{g.v_lane}, 4, v{t[0]}")
    a(f"v_lshrrev_b32 v{t[1]}, 2, v{g.v_i16}")
    a(f"v_lshl_add_u32 v{t[1]}, v{g.v_g}, 3, v{t[1]}")
    a(f"v_mad_u32_u24 v{t[0]}, v{t[1]}, 40, v{t[0]}")
    a(f"v_and_b32 v{t[1]}, 3, v{g.v_i16}")
    a(f"v_lshl_add_u32 v{v_mw}, v{t[1]}, 3, v{t[0]}")
    XW = 8 * 1024
    assert QB + 4 * XW <= QST
    a(f"v_mul_u32_u24 v{t[0]}, {XW}, v{g.v_wave}")
    a(f"v_lshl_add_u32 v{t[0]}, v{g.v_lane}, 4, v{t[0]}")
    a(f"v_add_u32 v{v_xw}, {QB}, v{t[0]}")
    a(f"v_xor_b32 v{v_xr}, {2*XW}, v{t[0]}")
    a(f"v_add_u32 v{v_xr}, {QB}, v{v_xr}")
    a(f"v_lshlrev_b32 v{t[0]}, 4, v{g.v_i16}")
    a(f"v_sub_u32 v{v_xc}, v{v_xr}, v{t[0]}")
    a(f"v_lshl_add_u32 v{t[1]}, v{g.v_wt}, 1, v{g.v_wo}")
    a(f"v_lshl_add_u32 v{t[1]}, v{t[1]}, 4, v{g.v_i16}")
    a(f"v_mul_u32_u24 v{t[2]}, 160, v{t[1]}")
    a(f"v_lshl_add_u32 v{t[2]}, v{g.v_g}, 3, v{t[2]}")
    a(f"v_add_u32 v{v_qw}, {QST}, v{t[2]}")
    a(f"v_add_u32 v{t[2]}, s{S_TOK0}, v{t[1]}")
    a(f"v_mul_u32_u24 v{t[2]}, {D*2}, v{t[2]}")
    a(f"v_lshl_add_u32 v{t[2]}, v{g.v_g}, 3, v{t[2]}")
    a(f"v_add_u32 v{V_RAD}, s{S_COL}, v{t[2]}")
    a(f"ds_write_b32 v{v_z}, v{v_z} offset:{MS+1024}")
    a("s_waitcnt lgkmcnt(0)")
    a("s_barrier")
    stamp(a, 0)
    a(f"buffer_load_dword v{v_fl}, v{v_z}, {sr(SRD5,4)}, 0 offen offset:{FLAG} sc1")
    for s_ in range(5):
        a(f"ds_read_b128 {vr(fq[3*s_],4)}, v{v_mx} offset:{MX + s_*1024}")
        for b in range(2):
            for e in range(2):
                a(f"ds_read_b64_tr_b16 {vr(fq[3*s_+1+b]+2*e,2)}, v{v_mw} offset:{(s_*32+4*e)*40 + b*32}")
    ones = vr(g.v_ones, 4)
    for s_ in range(5):
        a(f"s_waitcnt lgkmcnt({min(15, 5*(4-s_))})")
        B, A0, A1 = [vr(fq[3*s_+i], 4) for i in range(3)]
        for i, (x, y) in enumerate([(A0, B), (A1, B), (A0, ones), (A1, ones), (ones, B), (B, B)]):
            a(f"v_mfma_f32_16x16x32_bf16 {vr(mac[i],4)}, {x}, {y}, " + ("0" if s_ == 0 else vr(mac[i], 4)))
    a("s_nop 7")
    a("s_nop 7")
    lab = a.newlabel("pw")
    a(f"s_cmp_eq_u32 s{S_WAVE}, 0")
    a(f"s_cbranch_scc1 {lab}")
    for i in range(6):
        a(f"ds_write_b128 v{v_mp}, {vr(mac[i],4)} offset:{i*1024}")
    a("s_mov_b64 exec, 1")
    a(f"ds_add_u32 v{v_z}, v{v_one} offset:{MS+1024}")
    a("s_mov_b64 exec, -1")
    a.label(lab)

    def finalize():
        skip, lv, lj, lp, lq = [a.newlabel("fz") for _ in range(5)]
        a(f"s_cmp_lg_u32 s{S_WAVE}, 0")
        a(f"s_cbranch_scc1 {skip}")
        a.label(lp)
        a(f"ds_read_b32 v{t[0]}, v{v_z} offset:{MS+1024}")
        a("s_waitcnt lgkmcnt(0)")
        a(f"v_readfirstlane_b32 s{S_T2}, v{t[0]}")
        a("s_nop 3")
        a(f"s_cmp_lt_u32 s{S_T2}, 3")
        a(f"s_cbranch_scc1 {lp}")
        order = [4, 5, 0, 2, 1, 3]
        for i in order:
            for w in range(1, 4):
                a(f"ds_read_b128 {vr(fq[6*(w-1)+i],4)}, v{v_mp} offset:{w*6400 + i*1024}")
        a(f"s_and_b32 s{S_T1}, s{S_J}, 3")
        a(f"s_lshl_b32 s{S_T1}, s{S_T1}, 4")
        a(f"s_add_u32 s{S_T1}, s{S_T1}, s{S_TOK0}")
        a(f"s_lshr_b32 s{S_KX}, s{S_T1}, 2")
        a(f"s_lshr_b32 s{S_T1}, s{S_T1}, 5")
        a(f"s_mul_i32 s{S_KW}, s{S_T1}, 2560")
        a(f"s_and_b32 s{S_T0}, s{S_J}, 1")
        for n, i in enumerate(order):
            a(f"s_waitcnt lgkmcnt({min(15, 3*(5-n))})")
            for w in range(3):
                for r in ((0,) if i == 4 else (0, 2)):
                    a(f"v_pk_add_f32 {vr(mac[i]+r,2)}, {vr(mac[i]+r,2)}, {vr(fq[6*w+i]+r,2)}")
        gram_diag(a, g, mac[5], v_sq)
        ln_stats(a, mac[4], v_sq, v_mean, v_rstd, t)
        for b in range(2):
            c, cs = mac[b], mac[2 + b]
            for r in range(4):
                a(f"v_fma_f32 v{c+r}, -v{v_mean}, v{cs+r}, v{c+r}")
                a(f"v_mul_f32 v{c+r}, v{c+r}, v{v_rstd}")
            a(f"v_cvt_pk_bf16_f32 v{c}, v{c}, v{c+1}")
            a(f"v_cvt_pk_bf16_f32 v{c+1}, v{c+2}, v{c+3}")
        k0, k1 = mac[0], mac[1]
        v_n = v_sq
        a(f"v_mov_b32 v{v_n}, 0")
        a(f"s_bitcmp1_b32 s{S_J}, 2")
        a(f"s_cbranch_scc1 {lv}")
        a(f"v_lshrrev_b32 v{t[0]}, 1, v{g.v_g}")
        a(f"v_lshlrev_b32 v{t[0]}, 8, v{t[0]}")
        a(f"v_lshl_add_u32 v{t[0]}, v{g.v_i16}, 4, v{t[0]}")
        a(f"v_and_b32 v{t[1]}, 1, v{g.v_g}")
        a(f"v_lshl_add_u32 v{t[0]}, v{t[1]}, 3, v{t[0]}")
        a(f"ds_write_b64 v{t[0]}, {vr(k0,2)} offset:{MS}")
        a(f"v_lshlrev_b32 v{t[1]}, 3, v{g.v_i16}")
        a("s_mov_b64 exec, 0xffff")
        a(f"ds_write_b64 v{t[1]}, {vr(k1,2)} offset:{MS+512}")
        for c in (k1, k1 + 1, k0, k0 + 1):
            if c == k0:
                a("s_mov_b64 exec, -1")
            a(f"v_lshlrev_b32 v{t[0]}, 16, v{c}")
            a(f"v_and_b32 v{t[1]}, 0xffff0000, v{c}")
            a(f"v_fma_f32 v{v_n}, v{t[0]}, v{t[0]}, v{v_n}")
            a(f"v_fma_f32 v{v_n}, v{t[1]}, v{t[1]}, v{v_n}")
        swap_add(a, v_n, t[0], 32)
        swap_add(a, v_n, t[0], 16)
        dpp_rowmax(a, v_n)
        a("s_mov_b64 exec, 0x8000")
        a(f"buffer_store_dword v{v_n}, v{v_z}, {sr(SRD3,4)}, s{S_KX} offen sc1")
        a("s_mov_b64 exec, -1")
        a(f"v_lshlrev_b32 v{t[0]}, 9, v{g.v_g}")
        a(f"v_lshl_add_u32 v{v_ad}, v{g.v_i16}, 4, v{t[0]}")
        a(f"s_lshl_b32 s{S_T0}, s{S_T0}, 7")
        a(f"v_cmp_gt_u32 vcc, 2, v{g.v_g}")
        a(f"v_mov_b32 v{t[0]}, s{S_T0}")
        a(f"v_cndmask_b32 v{t[1]}, 0, v{t[0]}, vcc")
        a(f"v_add3_u32 v{v_ad}, v{v_ad}, v{t[0]}, v{t[1]}")
        a(f"s_branch {lj}")
        a.label(lv)
        a(f"v_bfe_u32 v{t[0]}, v{g.v_i16}, 2, 1")
        a(f"v_mul_u32_u24 v{t[0]}, 320, v{t[0]}")
        a(f"v_bfe_u32 v{t[1]}, v{g.v_i16}, 3, 1")
        a(f"v_lshl_add_u32 v{t[0]}, v{t[1]}, 3, v{t[0]}")
        a(f"v_and_b32 v{t[1]}, 3, v{g.v_i16}")
        a(f"v_lshl_add_u32 v{t[0]}, v{t[1]}, 1, v{t[0]}")
        a(f"v_lshl_add_u32 v{t[0]}, v{g.v_g}, 6, v{t[0]}")
        for b, c in enumerate((k0, k1)):
            if b:
                a("s_mov_b64 exec, 0xffff")
            for p in range(2):
                o = MS + b * 256 + p * 32
                a(f"ds_write_b16 v{t[0]}, v{c+p} offset:{o}")
                a(f"ds_write_b16_d16_hi v{t[0]}, v{c+p} offset:{o+16}")
        a("s_mov_b64 exec, -1")
        a(f"s_mul_i32 s{S_T0}, s{S_T0}, 640")
        a(f"s_add_u32 s{S_T0}, s{S_T0}, 1280")
        a(f"v_lshl_add_u32 v{v_ad}, v{g.v_lane}, 4, s{S_T0}")
        a.label(lj)
        a(f"v_lshlrev_b32 v{t[0]}, 4, v{g.v_lane}")
        a(f"ds_read_b128 {vr(mac[2],4)}, v{t[0]} offset:{MS}")
        a("s_mov_b32 exec_hi, 0xff")
        a("s_waitcnt lgkmcnt(0)")
        a(f"buffer_store_dwordx4 {vr(mac[2],4)}, v{v_ad}, {sr(SRD1,4)}, s{S_KW} offen sc1")
        a("s_mov_b64 exec, -1")
        a.label(skip)

    def hook():
        skip, sec, done, lp, lq = [a.newlabel("hk") for _ in range(5)]
        a(f"s_cmp_eq_u32 s{S_HOOK}, 0")
        a(f"s_cbranch_scc1 {skip}")
        a(f"s_sub_u32 s{S_HOOK}, s{S_HOOK}, 1")
        a("s_mov_b64 exec, 1")
        a(f"s_cmp_eq_u32 s{S_HOOK}, 0")
        a(f"s_cbranch_scc1 {sec}")
        a(f"s_mov_b32 s{S_T1}, 0x20000")
        a.label(lp)
        a("s_waitcnt vmcnt(0)")
        a(f"v_readfirstlane_b32 s{S_T2}, v{v_fl}")
        a(f"s_sub_u32 s{S_T1}, s{S_T1}, 1")
        a(f"s_cmp_eq_u32 s{S_T1}, 0")
        a(f"s_cbranch_scc1 {lq}")
        a(f"s_cmp_lg_u32 s{S_T2}, 0")
        a(f"s_cbranch_scc1 {lq}")
        a(f"buffer_load_dword v{v_fl}, v{v_z}, {sr(SRD5,4)}, 0 offen offset:{FLAG} sc1")
        a(f"s_branch {lp}")
        a.label(lq)
        a(f"v_mov_b32 v{v_fl}, 1")
        a(f"buffer_atomic_add v{v_fl}, v{v_z}, {sr(SRDC,4)}, s{S_KVC} offen sc0 sc1")
        a(f"s_branch {done}")
        a.label(sec)
        a("s_waitcnt vmcnt(0)")
        a(f"v_readfirstlane_b32 s{S_T2}, v{v_fl}")
        a(f"v_mov_b32 v{v_fl}, 1")
        a(f"s_mov_b32 s{S_KVC}, {CNT_KV*256}")
        a("s_nop 2")
        a(f"s_cmp_lg_u32 s{S_T2}, 15")
        a(f"s_cbranch_scc1 {done}")
        a(f"buffer_atomic_add v{v_fl}, v{v_z}, {sr(SRDC,4)}, s{S_KVC} offen sc0 sc1")
        a("s_waitcnt vmcnt(0)")
        a(f"v_readfirstlane_b32 s{S_T2}, v{v_fl}")
        a("s_nop 3")
        a(f"s_cmp_lg_u32 s{S_T2}, 15")
        a(f"s_cbranch_scc1 {done}")
        a("s_mov_b64 exec, 0xff")
        a(f"buffer_store_dword v{v_one}, v{v_fa}, {sr(SRDC,4)}, s{S_KVC} offen offset:2048 sc1")
        a.label(done)
        a("s_mov_b64 exec, -1")
        a.label(skip)
        a(f"s_cmp_lg_u32 s{g.s_cnt}, 2")
        a(f"s_cbranch_scc1 {lq}x")
        init()
        a.label(f"{lq}x")

    finalize()
    g.mainloop(pre_bar=hook)
    stamp(a, 1)
    nA = g.nA
    keep = g.acc[0] + [g.acc_sq[0]]
    send = g.acc[1] + [g.acc_sq[1]]
    a("s_nop 3")
    a(f"ds_write_b128 v{v_xw}, {vr(send[nA],4)} offset:{nA*1024}")
    a(f"ds_write_b32 v{v_xw}, v{g.acc_sum[1]} offset:{(nA+1)*1024}")
    for i in range(nA):
        a(f"ds_write_b128 v{v_xw}, {vr(send[i],4)} offset:{i*1024}")
    a("s_mov_b32 exec_lo, 0x00010001")
    a("s_mov_b32 exec_hi, 0x00010001")
    for i in range(nA):
        a(f"ds_write_b128 v{v_xw}, {vr(g.acc_cs[i],4)} offset:{(nA+2)*1024 + 16*i}")
    a("s_mov_b64 exec, -1")
    a("s_waitcnt lgkmcnt(0)")
    stamp(a, 4, True)
    a("s_barrier")
    stamp(a, 5, True)
    csx = [g.fa[0] + 4 * i for i in range(nA)]
    a(f"ds_read_b128 {vr(send[nA],4)}, v{v_xr} offset:{nA*1024}")
    a(f"ds_read_b32 v{g.acc_sum[1]}, v{v_xr} offset:{(nA+1)*1024}")
    for i in range(nA):
        a(f"ds_read_b128 {vr(send[i],4)}, v{v_xr} offset:{i*1024}")
        a(f"ds_read_b128 {vr(csx[i],4)}, v{v_xc} offset:{(nA+2)*1024 + 16*i}")
    a(f"s_waitcnt lgkmcnt({2*nA})")
    a(f"v_add_f32 v{g.acc_sum[0]}, v{g.acc_sum[0]}, v{g.acc_sum[1]}")
    for r in (0, 2):
        a(f"v_pk_add_f32 {vr(keep[nA]+r,2)}, {vr(keep[nA]+r,2)}, {vr(send[nA]+r,2)}")
    gram_diag(a, g, g.acc_sq[0], v_sq)
    for fb in range(nA):
        c, cs = g.acc[0][fb], g.acc_cs[fb]
        for r in (0, 2):
            a(f"v_pk_add_f32 {vr(c+r,2)}, {vr(c+r,2)}, {vr(send[fb]+r,2)}")
            a(f"v_pk_add_f32 {vr(cs+r,2)}, {vr(cs+r,2)}, {vr(csx[fb]+r,2)}")
    ln_stats(a, g.acc_sum[0], v_sq, v_mean, v_rstd, g.tmp)
    a(f"v_mul_f32 v{v_rstd}, {f32(QSCALE)}, v{v_rstd}")
    a(f"v_sub_f32 v{v_mean}, 0, v{v_mean}")
    stamp(a, 6, True)
    pm = vr(v_mean, 2)
    for fb in range(nA):
        c, cs = g.acc[0][fb], g.acc_cs[fb]
        for r in (0, 2):
            a(f"v_pk_fma_f32 {vr(c+r,2)}, {pm}, {vr(cs+r,2)}, {vr(c+r,2)} op_sel_hi:[0,1,1]")
        for r in (0, 2):
            a(f"v_pk_mul_f32 {vr(c+r,2)}, {vr(c+r,2)}, {pm} op_sel:[0,1] op_sel_hi:[1,1]")
        a(f"v_cvt_pk_bf16_f32 v{c}, v{c}, v{c+1}")
        a(f"v_cvt_pk_bf16_f32 v{c+1}, v{c+2}, v{c+3}")
        a(f"ds_write_b64 v{v_qw}, {vr(c,2)} offset:{fb*32}")
    stamp(a, 7, True)
    g.maxv = va.n
    return g


KVROT = int(os.environ.get("KVROT", "7"))
LATE1 = int(os.environ.get("LATE1", "1"))
CPF = int(os.environ.get("CPF", "0"))


def code_touch(a, v_t, v_d, first):
    lab = a.newlabel("pc")
    a("s_getpc_b64 s[74:75]")
    a.label(lab)
    a(f"s_sub_u32 s74, s74, {lab}-k2_attn_kernel")
    a("s_subb_u32 s75, s75, 0")
    for i in range(first, 2):
        a(f"v_lshlrev_b32 v{v_t}, 7, v0")
        if i:
            a(f"v_add_u32 v{v_t}, {i*32768}, v{v_t}")
        a(f"v_min_u32 v{v_t}, k2_code_end-k2_attn_kernel-4, v{v_t}")
        a(f"global_load_dword v{v_d}, v{v_t}, s[74:75]")


def p1_mini(a):
    t = [30, 31]
    a("v_and_b32 v0, 255, v0")
    make_srd(a, SRD0, P_X, 0, S * D * 2)
    a(f"s_bitcmp0_b32 s{S_J}, 2")
    a(f"s_cselect_b32 s{SRD3}, s{P_WK}, s{P_WV}")
    a(f"s_cselect_b32 s{SRD3+1}, s{P_WK+1}, s{P_WV+1}")
    a(f"s_mov_b32 s{SRD3+2}, {D*DH*2}")
    a(f"s_mov_b32 s{SRD3+3}, 0x00020000")
    a(f"s_and_b32 s{S_T1}, s{S_J}, 3")
    a(f"s_lshl_b32 s{S_T1}, s{S_T1}, 4")
    a(f"s_add_u32 s{S_T1}, s{S_T1}, s{S_TOK0}")
    a(f"v_and_b32 v{t[0]}, 15, v0")
    a(f"v_add_u32 v{t[0]}, s{S_T1}, v{t[0]}")
    a(f"v_mul_u32_u24 v{t[0]}, {D*2}, v{t[0]}")
    a(f"v_and_b32 v{t[1]}, 0xf0, v0")
    a(f"v_add_u32 v{t[0]}, v{t[0]}, v{t[1]}")
    a(f"v_lshlrev_b32 v{t[1]}, 4, v0")
    a(f"s_and_b32 s{S_WOFF}, s{S_WAVE}, 3")
    a(f"s_lshl_b32 s{S_WOFF}, s{S_WOFF}, 10")
    for j in range(7):
        if j < 5:
            a(f"s_add_u32 m0, s{S_WOFF}, {MX + j*4096}")
            a(f"s_mov_b32 s{S_T1}, {j*256}")
            a(f"buffer_load_dwordx4 v{t[0]}, {sr(SRD0,4)}, s{S_T1} offen lds")
        a(f"s_add_u32 m0, s{S_WOFF}, {MW + j*4096}")
        a(f"s_mov_b32 s{S_T1}, {j*4096}")
        a(f"buffer_load_dwordx4 v{t[1]}, {sr(SRD3,4)}, s{S_T1} offen lds")


def p1_loader(a, g, v_l, dma, early):
    lva = VAlloc(30)
    t = [lva() for _ in range(2)]
    v_p = lva(2, 2)
    v_pa = lva()
    make_srd(a, SRD1, P_WQ, 0, D * D * 2)
    make_srd(a, SRD2, P_WS, WS_KV, KV_SZ)
    g.ld_prepare(None, head=False, v0=40)
    g.lstamp(0)
    if LATE1 < 2:
        g.ld_issue(0)
    if LATE1 < 1:
        g.ld_issue(1)
    a(f"s_lshl_b32 s{S_KVC}, s{S_XB}, 8")
    a(f"s_add_u32 s{S_KVC}, s{S_KVC}, {(CNT_KV+8)*256}")
    a(f"v_lshlrev_b32 v{v_pa}, 3, v{v_l}")
    make_srd(a, SRD4, P_WS, WS_KN, 512)
    early()
    a(f"s_waitcnt vmcnt({len(g.ops)})")
    g.lstamp(1)
    a("s_barrier")
    if LATE1 >= 2:
        g.ld_issue(0)
    if LATE1 >= 1:
        g.ld_issue(1)
    g.ld_issue(2)
    g.ld_ready(0)
    g.ld_issue(3)
    g.ld_ready(1)
    g.ld_issue(4)
    g.ld_ready(2)
    g.ld_ready(3)

    def poll():
        a("s_mov_b64 exec, 1")
        a(f"buffer_load_dword v{t[0]}, v{v_pa}, {sr(SRDC,4)}, s{S_KVC} offen sc1")
        a("s_mov_b64 exec, -1")
        g.ops.append(("p", 0))

    def check(lab):
        last = max(i for i, o in enumerate(g.ops) if o == ("p", 0))
        a(f"s_waitcnt vmcnt({len(g.ops) - 1 - last})")
        a(f"v_readfirstlane_b32 s{S_T2}, v{t[0]}")
        a("s_nop 3")
        a(f"s_cmp_eq_u32 s{S_T2}, 0")
        a(f"s_cbranch_scc1 {lab}")

    def kv():
        a(f"buffer_load_dwordx2 {vr(v_p,2)}, v{v_pa}, {sr(SRD4,4)}, 0 offen")
        dma(13, SRD2, True)
        g.ops.extend([("d", 0)] * 14)

    lb, lb2, lb3, lj, lsp, lsd, lsc = [a.newlabel("p1") for _ in range(7)]
    poll()
    g.ld_ready(4)
    check(lb3)
    kv()
    a("s_barrier")
    a(f"s_branch {lj}")
    a.label(lb3)
    poll()
    a("s_barrier")
    a(f"s_mov_b32 s{S_T1}, 0x20000")
    a(f"s_branch {lsc}")
    a.label(lsp)
    a(f"s_sub_u32 s{S_T1}, s{S_T1}, 1")
    a(f"s_cmp_eq_u32 s{S_T1}, 0")
    a(f"s_cbranch_scc1 {lsd}")
    poll()
    a.label(lsc)
    check(lsp)
    a.label(lsd)
    kv()
    a.label(lj)
    g.lstamp(13)
    a("s_barrier")
    a("s_waitcnt vmcnt(13)")
    a(f"v_max_f32 v{v_p}, v{v_p}, v{v_p+1}")
    dpp_rowmax(a, v_p)
    a("s_nop 1")
    a(f"v_max_f32_dpp v{v_p}, v{v_p}, v{v_p} row_bcast:15 row_mask:0xa bank_mask:0xf")
    a("s_nop 1")
    a(f"v_max_f32_dpp v{v_p}, v{v_p}, v{v_p} row_bcast:31 row_mask:0xc bank_mask:0xf")
    a(f"v_mov_b32 v{t[0]}, {KMX}")
    a("s_mov_b32 exec_lo, 0")
    a("s_brev_b32 exec_hi, 1")
    a(f"ds_write_b32 v{t[0]}, v{v_p}")
    a("s_mov_b64 exec, -1")


def gen_k2(a):
    name = "k2_attn_kernel"
    kernel_begin(a, name)
    a("s_cmp_ge_u32 s2, 256")
    a("s_cbranch_scc1 k2_end")
    load_kernargs(a)
    a(f"s_and_b32 s{S_XB}, s2, 7")
    a(f"s_lshr_b32 s{S_J}, s2, 3")
    a(f"s_lshr_b32 s{S_T2}, s{S_J}, 3")
    a(f"s_lshl_b32 s{S_T1}, s{S_XB}, 2")
    a(f"s_add_u32 s{S_T1}, s{S_T1}, s{S_T2}")
    a(f"s_lshl_b32 s{S_TOK0}, s{S_T1}, 6")
    a(f"s_and_b32 s{S_T0}, s{S_J}, 7")
    a(f"s_mul_i32 s{S_COL}, s{S_T0}, 160")
    va = VAlloc(1)
    t = [va() for _ in range(6)]
    v_kn = va(2, 2)
    v_l16, v_lane, v_n, v_h, v_qa, v_oa = [va() for _ in range(6)]
    v_cur = [va() for _ in range(3)]
    v_nxt = [va() for _ in range(3)]
    v_m = [va(), va()]
    v_ob = va()
    v_cst = va()
    O = [va(16, 4) for _ in range(2)]
    VF = [va(8, 4) for _ in range(2)]
    v_late = va.n
    Q = [va(8, 4) for _ in range(2)]
    Sb = [[va(16, 4) for _ in range(2)] for _ in range(2)]
    P = [va(8, 4) for _ in range(2)]
    KF = [va(8, 4) for _ in range(2)]
    S_STEP, S_CNT, S_GOFF, S_HEAD = 76, 77, 78, 79
    S_VM, S_KM = 4, 6
    TB = 2560

    def kread(dst, regs, tile):
        return [f"ds_read_b128 {vr(dst,4)}, v{regs[0]} offset:{tile*TB}",
                f"ds_read_b64 {vr(dst+4,2)}, v{regs[1]} offset:{tile*TB}"]

    def vread(dst, regs, tile):
        return [f"s_mov_b64 exec, {sr(S_VM,2)}",
                f"ds_read_b128 {vr(dst,4)}, v{regs[2]} offset:{tile*TB}",
                f"ds_read_b128 {vr(dst+4,4)}, v{regs[2]} offset:{tile*TB+640}",
                "s_mov_b64 exec, -1"]

    a(f"v_lshrrev_b32 v{t[0]}, 6, v0")
    a(f"v_and_b32 v{v_lane}, 63, v0")
    a(f"v_readfirstlane_b32 s{S_WAVE}, v{t[0]}")
    a(f"v_lshlrev_b32 v{v_l16}, 4, v{v_lane}")
    a(f"v_and_b32 v{v_n}, 31, v0")
    a(f"v_bfe_u32 v{v_h}, v0, 5, 1")
    a("s_waitcnt lgkmcnt(0)")
    a(f"s_cmp_lt_u32 s{S_WAVE}, 4")
    a("s_cbranch_scc1 k2_comp")
    p1_mini(a)
    make_srd(a, SRDC, P_WS, WS_CNT, 32768)
    a("s_branch k2_helper")
    a.label("k2_comp")
    if CPF:
        code_touch(a, t[0], TDUM, 0)
    make_srd(a, SRDC, P_WS, WS_CNT, 32768)
    make_srd(a, SRD1, P_WS, WS_KV, KV_SZ)
    def init():
        a(f"s_mul_i32 s{S_T1}, s{S_WAVE}, 40")
        a(f"s_add_u32 s{S_T2}, s{S_T1}, {QST}")
        a(f"v_mul_u32_u24 v{t[1]}, 160, v{v_n}")
        a(f"v_add_u32 v{v_ob}, s{S_T2}, v{t[1]}")
        a(f"v_lshl_add_u32 v{v_qa}, v{v_h}, 4, v{v_ob}")
        a(f"v_lshl_add_u32 v{t[2]}, v{v_h}, 3, s{S_T1}")
        a(f"v_lshrrev_b32 v{t[3]}, 4, v{t[2]}")
        a(f"v_and_b32 v{t[2]}, 8, v{t[2]}")
        a(f"v_lshl_add_u32 v{t[2]}, v{t[3]}, 8, v{t[2]}")
        a(f"v_and_b32 v{t[3]}, 15, v{v_n}")
        a(f"v_lshl_add_u32 v{t[2]}, v{t[3]}, 4, v{t[2]}")
        a(f"v_lshrrev_b32 v{t[3]}, 4, v{v_n}")
        a(f"v_mul_u32_u24 v{t[3]}, 2560, v{t[3]}")
        a(f"v_add_u32 v{v_oa}, v{t[2]}, v{t[3]}")
        for b in range(2):
            for i in range(16):
                a(f"v_mov_b32 v{O[b]+i}, 0")
            for i in range(8):
                a(f"v_mov_b32 v{VF[b]+i}, 0x3f803f80")
        a(f"s_mov_b32 s{S_VM}, 0x000fffff")
        a(f"s_mov_b32 s{S_VM+1}, 0x000fffff")
        a(f"v_mov_b32 v{v_cur[0]}, v{v_l16}")
        a(f"v_lshlrev_b32 v{v_cur[1]}, 3, v{v_n}")
        a(f"v_add_u32 v{v_cur[1]}, 1024, v{v_cur[1]}")
        a(f"v_mul_u32_u24 v{t[0]}, 320, v{v_h}")
        a(f"v_lshl_add_u32 v{v_cur[2]}, v{v_n}, 4, v{t[0]}")
        a(f"v_add_u32 v{v_cur[2]}, 1280, v{v_cur[2]}")
        for i in range(3):
            a(f"v_add_u32 v{v_nxt[i]}, {8*TB}, v{v_cur[i]}")
    assert VF[1] + 8 - O[0] == 48
    make_srd(a, SRD4, P_WS, WS_O, S * D * 2)
    make_srd(a, SRD2, P_X, 0, S * D * 2)
    for r in v_nxt + v_cur:
        a(f"v_mov_b32 v{r}, 0")
    gq = p1_compute(a, t, v_late, O[0], init)
    for b in range(2):
        a(f"v_mov_b32 v{KF[b]+6}, 0x3f80")
        a(f"v_mov_b32 v{KF[b]+7}, 0")
        a(f"v_mov_b32 v{Q[b]+7}, 0")
    for i in range(8):
        a(f"v_mov_b32 v{P[1]+i}, 0")
    for i in range(12, 16):
        a(f"v_mov_b32 v{Sb[1][1]+i}, 0")
    a(f"v_cmp_eq_u32 vcc, 0, v{v_h}")
    a(f"v_mov_b32 v{t[0]}, {KMX}")
    a("s_waitcnt lgkmcnt(0)")
    stamp(a, 8, True)
    a("s_barrier")
    stamp(a, 9, True)
    a(f"ds_read_b32 v{v_kn}, v{t[0]}")
    for b in range(2):
        a(f"ds_read_b64 {vr(Q[b],2)}, v{v_qa} offset:{b*5120}")
        a(f"ds_read_b64 {vr(Q[b]+2,2)}, v{v_qa} offset:{b*5120+8}")
        a(f"ds_read_b64 {vr(Q[b]+4,2)}, v{v_ob} offset:{b*5120+32}")
    for l in kread(KF[0], v_cur, 0) + kread(KF[1], v_cur, 1) + vread(VF[0], v_cur, 0):
        a(l)
    a("s_waitcnt lgkmcnt(6)")
    a(f"v_readfirstlane_b32 s{S_KM}, v{v_kn}")
    for b in range(2):
        a(f"v_cndmask_b32 v{Q[b]+4}, 0, v{Q[b]+4}, vcc")
        a(f"v_cndmask_b32 v{Q[b]+5}, 0, v{Q[b]+5}, vcc")
    for i in range(6):
        for b in range(2):
            a(f"v_dot2_f32_bf16 v{t[2+b]}, v{Q[b]+i}, v{Q[b]+i}, " + ("0" if i == 0 else f"v{t[2+b]}"))
    a("s_nop 2")
    for b in range(2):
        a(f"v_mov_b32 v{t[b]}, v{t[2+b]}")
    a("s_nop 1")
    for b in range(2):
        a(f"v_permlane32_swap_b32 v{t[b]}, v{t[2+b]}")
    a("s_nop 1")
    for b in range(2):
        a(f"v_add_f32 v{t[b]}, v{t[b]}, v{t[2+b]}")
    for b in range(2):
        a(f"v_mul_f32 v{t[b]}, s{S_KM}, v{t[b]}")
    for b in range(2):
        a(f"v_sqrt_f32 v{t[b]}, v{t[b]}")
    a("s_nop 0")
    for b in range(2):
        a(f"v_cvt_pk_bf16_f32 v{t[b]}, -v{t[b]}, 0")
    for b in range(2):
        a(f"v_cndmask_b32 v{Q[b]+6}, 0, v{t[b]}, vcc")
    a("s_waitcnt lgkmcnt(0)")

    def qk(b, par, s, kf):
        d = vr(Sb[b][par], 16)
        c = "0" if s == 0 else d
        return f"v_mfma_f32_32x32x16_bf16 {d}, {vr(kf+4*s,4)}, {vr(Q[b]+4*s,4)}, {c}"

    def pv(b, s, vf):
        d = vr(O[b], 16)
        return f"v_mfma_f32_32x32x16_bf16 {d}, {vr(vf+4*s,4)}, {vr(P[b]+4*s,4)}, {d}"

    for b in range(2):
        a(qk(b, 0, 0, KF[0]))
        a(qk(b, 0, 1, KF[0]))
    a("s_nop 7")
    a("s_nop 7")
    a(f"s_mov_b32 s{S_CNT}, 8")
    stamp(a, 2)
    rstamp(a, 10)
    a.label("k2_loop")

    def exps(b, par, i0):
        return [f"v_exp_f32 v{Sb[b][par]+i}, v{Sb[b][par]+i}" for i in range(i0, i0 + 4)]

    def cvts(b, par, i0):
        return [f"v_cvt_pk_bf16_f32 v{P[b]+(i0+i)//2}, v{Sb[b][par]+i0+i}, v{Sb[b][par]+i0+i+1}" for i in (0, 2)]

    for ph in range(8):
        p = ph & 1
        q = p ^ 1
        kt, vt = ph + 2, ph + 1
        kr = kread(KF[p], v_cur if kt < 8 else v_nxt, kt % 8)
        vrd = vread(VF[q], v_cur if vt < 8 else v_nxt, vt % 8)
        M = [qk(0, q, 0, KF[q]), pv(1, 1, VF[q]), qk(0, q, 1, KF[q]), pv(0, 0, VF[p]),
             qk(1, q, 0, KF[q]), pv(0, 1, VF[p]), qk(1, q, 1, KF[q]), pv(1, 0, VF[p])]
        V = [cvts(1, q, 12) + exps(0, p, 0),
             exps(0, p, 4),
             cvts(0, p, 0) + cvts(0, p, 4) + exps(0, p, 8),
             cvts(0, p, 8) + exps(0, p, 12),
             cvts(0, p, 12) + exps(1, p, 0),
             exps(1, p, 4),
             cvts(1, p, 0) + cvts(1, p, 4) + exps(1, p, 8),
             cvts(1, p, 8) + exps(1, p, 12)]
        extra = [[] for _ in range(8)]
        if ph == 2:
            a(f"s_bitcmp1_b32 0x140, s{S_CNT}")
            a("s_cbranch_scc1 k2_sy")
            a.label("k2_nb1")
        a("s_waitcnt lgkmcnt(0)")
        extra[0] += kr
        extra[2] += vrd
        for i in range(8):
            a(M[i])
            for l in extra[i]:
                a(l)
            for l in V[i]:
                a(l)
    if INSTR:
        a("s_memtime s[98:99]")
        a("s_waitcnt lgkmcnt(0)")
        a("s_sub_u32 s98, s98, s80")
        a(f"s_mov_b32 m0, s{S_CNT}")
        a("s_nop 0")
        a(f"v_writelane_b32 v{v_cst}, s98, m0")
    a(f"s_cmp_eq_u32 s{S_CNT}, 2")
    a(f"s_cselect_b32 s{S_STEP}, 0, {8*TB}")
    for i in range(3):
        a(f"v_mov_b32 v{v_cur[i]}, v{v_nxt[i]}")
        a(f"v_add_u32 v{v_nxt[i]}, s{S_STEP}, v{v_nxt[i]}")
    a("s_cbranch_scc0 k2_nb")
    a("s_mov_b64 exec, 1")
    a(f"ds_add_u32 v{v_l16}, v{KF[0]+6}")
    a("s_mov_b64 exec, -1")
    a.label("k2_nb")
    a(f"s_sub_u32 s{S_CNT}, s{S_CNT}, 1")
    a(f"s_cmp_lg_u32 s{S_CNT}, 0")
    a("s_cbranch_scc1 k2_loop")
    for l in cvts(1, 1, 12):
        a(l)
    a("s_nop 1")
    a(pv(1, 1, VF[1]))
    a("s_waitcnt vmcnt(0) lgkmcnt(0)")
    a("s_nop 7")
    a("s_nop 7")
    stamp(a, 3)
    rstamp(a, 0)
    a(f"v_mov_b32 v{t[0]}, {f32(2.0**-40)}")
    a(f"v_cmp_nge_f32 s[74:75], v{O[0]+12}, v{t[0]}")
    a(f"v_cmp_nge_f32 vcc, v{O[1]+12}, v{t[0]}")
    a("s_nop 3")
    a("s_or_b64 vcc, vcc, s[74:75]")
    a("s_cbranch_vccnz k2_slow")
    a.label("k2_epi")
    for b in range(2):
        a(f"v_rcp_f32 v{t[0]}, v{O[b]+12}")
        a("s_nop 0")
        for i in range(12):
            a(f"v_mul_f32 v{O[b]+i}, v{O[b]+i}, v{t[0]}")
        for i in range(6):
            a(f"v_cvt_pk_bf16_f32 v{O[b]+i}, v{O[b]+2*i}, v{O[b]+2*i+1}")
    a(f"v_mov_b32 v{t[0]}, {TAB + 3072}")
    for i in range(4):
        a(f"v_mov_b32 v{P[0]+i}, 0")
    a(f"s_mul_i32 s{S_T1}, s{S_WAVE}, 2560")
    a(f"v_add_u32 v{t[1]}, s{S_T1}, v{v_l16}")
    a(f"s_lshr_b32 s{S_KW}, s{S_TOK0}, 4")
    a(f"s_add_u32 s{S_KW}, s{S_KW}, s{S_WAVE}")
    a(f"s_mul_i32 s{S_KW}, s{S_KW}, {16*D*2}")
    a(f"s_lshl_b32 s{S_T1}, s{S_COL}, 4")
    a(f"s_add_u32 s{S_KW}, s{S_KW}, s{S_T1}")
    a("s_barrier")
    a(f"ds_write_b128 v{t[0]}, {vr(P[0],4)}")
    for b in range(2):
        a(f"ds_write_b64 v{v_oa}, {vr(O[b],2)} offset:{b*5120}")
        a(f"ds_write_b64 v{v_oa}, {vr(O[b]+2,2)} offset:{b*5120+256}")
    a("s_mov_b64 exec, 0xffffffff")
    for b in range(2):
        a(f"ds_write_b64 v{v_oa}, {vr(O[b]+4,2)} offset:{b*5120+512}")
    a("s_mov_b64 exec, -1")
    a("s_waitcnt lgkmcnt(0)")
    a("s_barrier")
    for i in range(3):
        a(f"ds_read_b128 {vr(O[0]+4*i,4)}, v{t[1]} offset:{i*1024}")
    for i in range(3):
        a(f"s_waitcnt lgkmcnt({2-i})")
        if i == 2:
            a("s_mov_b64 exec, 0xffffffff")
        a(f"buffer_store_dwordx4 {vr(O[0]+4*i,4)}, v{v_l16}, {sr(SRD4,4)}, s{S_KW} offen offset:{i*1024} {HPOL}")
    def otouch():
        a(f"v_lshlrev_b32 v{t[3]}, 3, v{v_l16}")
        a("s_mov_b64 exec, 0xfffff")
        a(f"buffer_load_dword v{TDUM}, v{t[3]}, {sr(SRD4,4)}, s{S_KW} offen")
    publish(a, t, 2, otouch)
    if INSTR and not P1ST:
        lab = a.newlabel("hs")
        a(f"s_cmp_lg_u32 s2, {INSTR_WG}")
        a(f"s_cbranch_scc1 {lab}")
        a(f"s_cmp_lg_u32 s{S_WAVE}, 0")
        a(f"s_cbranch_scc1 {lab}")
        make_srd(a, 92, P_DBG, 0, 256)
        a(f"v_lshlrev_b32 v{t[0]}, 2, v{v_lane}")
        a(f"buffer_store_dword v{v_cst}, v{t[0]}, s[92:95], 0 offen offset:192")
        a.label(lab)
    ffn = ffn_compute(a)
    a.label("k2_end")
    a("s_endpgm")

    a.label("k2_sy")
    a(f"s_cmp_eq_u32 s{S_CNT}, 6")
    a("s_cbranch_scc1 k2_sy2")
    a("s_barrier")
    a("s_branch k2_nb1")
    a.label("k2_sy2")
    assert t[1] % 2 == 0
    kv_wait(a, v_l16, t[1], 0)
    for fb in range(5):
        a(f"buffer_load_dwordx2 {vr(RES3+2*fb,2)}, v{V_RAD}, {sr(SRD2,4)}, 0 offen offset:{fb*32}")
    a("s_branch k2_nb1")

    def rewind():
        for i in range(3):
            a(f"v_subrev_u32 v{v_nxt[i]}, {56*TB}, v{v_cur[i]}")
        a(f"s_mov_b32 s{S_GOFF}, 0")

    def advance(lab):
        a(f"s_add_u32 s{S_GOFF}, s{S_GOFF}, {TB}")
        a(f"s_cmp_lt_u32 s{S_GOFF}, {64*TB}")
        a(f"s_cbranch_scc1 {lab}")

    def gkread(dst):
        return [f"buffer_load_dwordx4 {vr(dst,4)}, v{v_nxt[0]}, {sr(SRD1,4)}, s{S_GOFF} offen",
                f"buffer_load_dwordx2 {vr(dst+4,2)}, v{v_nxt[1]}, {sr(SRD1,4)}, s{S_GOFF} offen"]

    def gvread(dst):
        return [f"s_mov_b64 exec, {sr(S_VM,2)}",
                f"buffer_load_dwordx4 {vr(dst,4)}, v{v_nxt[2]}, {sr(SRD1,4)}, s{S_GOFF} offen",
                f"buffer_load_dwordx4 {vr(dst+4,4)}, v{v_nxt[2]}, {sr(SRD1,4)}, s{S_GOFF} offen offset:640",
                "s_mov_b64 exec, -1"]

    a.label("k2_slow")
    for b in range(2):
        a(f"v_mov_b32 v{Q[b]+6}, 0")
        a(f"v_mov_b32 v{v_m[b]}, 0xff800000")
    rewind()
    a.label("k2_slow1")
    for l in gkread(KF[0]):
        a(l)
    a("s_waitcnt vmcnt(0)")
    for b in range(2):
        a(qk(b, 0, 0, KF[0]))
        a(qk(b, 0, 1, KF[0]))
    a("s_nop 7")
    a("s_nop 7")
    for b in range(2):
        for i in range(0, 16, 2):
            a(f"v_max3_f32 v{v_m[b]}, v{Sb[b][0]+i}, v{Sb[b][0]+i+1}, v{v_m[b]}")
    advance("k2_slow1")
    a(f"v_cmp_eq_u32 vcc, 0, v{v_h}")
    for b in range(2):
        xlane_add(a, v_m[b], v_lane, t[0], t[1], (32,), op="v_max_f32")
        a(f"v_cvt_pk_bf16_f32 v{t[2]}, -v{v_m[b]}, 0")
        a(f"v_cndmask_b32 v{Q[b]+6}, 0, v{t[2]}, vcc")
        for i in range(16):
            a(f"v_mov_b32 v{O[b]+i}, 0")
    rewind()
    a.label("k2_slow2")
    for l in gkread(KF[0]) + gvread(VF[0]):
        a(l)
    a("s_waitcnt vmcnt(0)")
    for b in range(2):
        a(qk(b, 0, 0, KF[0]))
        a(qk(b, 0, 1, KF[0]))
    a("s_nop 7")
    a("s_nop 7")
    for b in range(2):
        for i0 in range(0, 16, 4):
            for l in exps(b, 0, i0):
                a(l)
        a("s_nop 0")
        for i0 in range(0, 16, 4):
            for l in cvts(b, 0, i0):
                a(l)
    a("s_nop 1")
    for b in range(2):
        a(pv(b, 0, VF[0]))
        a(pv(b, 1, VF[0]))
    a("s_nop 7")
    a("s_nop 7")
    advance("k2_slow2")
    a("s_branch k2_epi")

    a.label("k2_helper")
    hva = VAlloc(v_h + 1)
    lt = t
    v_l = v_lane
    S_U, S_SRC, S_DST, S_RW = S_T0, S_T1, S_KW, S_ROT
    S_G = S_IMG
    cnt = [0]

    def dma(n, srd, first=False):
        if first:
            cnt[0] = 0
            a(f"s_mov_b32 s{S_KX}, s{S_WOFF}")
            a(f"s_and_b32 s{S_G}, s{S_J}, {KVROT}")
            a(f"s_mul_i32 s{S_G}, s{S_G}, 20480")
            a(f"s_add_u32 s{S_G}, s{S_G}, s{S_WOFF}")
        for i in range(n):
            a(f"s_mov_b32 m0, s{S_KX}")
            a(f"s_add_u32 s{S_KX}, s{S_KX}, 4096")
            a(f"buffer_load_dwordx4 v{v_l16}, {sr(srd,4)}, s{S_G} offen lds")
            a(f"s_add_u32 s{S_G}, s{S_G}, 4096")
            cnt[0] += 1
            if cnt[0] % 5 == 0:
                a(f"s_cmp_ge_u32 s{S_G}, {KV_SZ}")
                a(f"s_cselect_b32 s{S_T2}, {KV_SZ}, 0")
                a(f"s_sub_u32 s{S_G}, s{S_G}, s{S_T2}")
    pva = VAlloc(132)
    sel = pva(4, 4)
    pa = [pva() for _ in range(5)]
    pb = [pva() for _ in range(3)]
    v_rb, v_kf, v_km, v_ca, v_co = [pva() for _ in range(5)]

    def gather(regs, cprw, magic, stride):
        for i, r in enumerate(regs):
            a(f"v_add_u32 v{lt[0]}, {i*64}, v{v_l}")
            a(f"v_mul_u32_u24 v{lt[1]}, {magic}, v{lt[0]}")
            a(f"v_lshrrev_b32 v{lt[1]}, 19, v{lt[1]}")
            a(f"v_mul_u32_u24 v{lt[2]}, {cprw}, v{lt[1]}")
            a(f"v_sub_u32 v{lt[2]}, v{lt[0]}, v{lt[2]}")
            a(f"v_and_b32 v{lt[3]}, 0xfffffff3, v{lt[1]}")
            a(f"v_bfe_u32 v{lt[4]}, v{lt[1]}, 2, 1")
            if cprw == 12:
                a(f"v_lshlrev_b32 v{lt[5]}, 1, v{lt[4]}")
                a(f"v_xor_b32 v{lt[2]}, v{lt[2]}, v{lt[5]}")
            a(f"v_lshl_or_b32 v{lt[3]}, v{lt[4]}, 3, v{lt[3]}")
            a(f"v_bfe_u32 v{lt[4]}, v{lt[1]}, 3, 1")
            a(f"v_lshl_or_b32 v{lt[3]}, v{lt[4]}, 2, v{lt[3]}")
            a(f"v_mul_u32_u24 v{lt[3]}, {stride}, v{lt[3]}")
            a(f"v_lshl_add_u32 v{r}, v{lt[2]}, 4, v{lt[3]}")

    def early():
        gather(pb, 12, 43691, F * 2)
        gather(pa, 10, 52429, D * 2)
        a(f"v_lshlrev_b32 v{v_rb}, 7, v{v_l}")
        a(f"s_lshl_b32 s{S_T2}, s{S_WAVE}, 2")
        a(f"v_mov_b32 v{v_kf}, s{S_T2}")
        a(f"v_mov_b32 v{v_km}, -1")
        a(f"v_lshrrev_b32 v{lt[0]}, 3, v{v_l}")
        a(f"v_mul_u32_u24 v{lt[0]}, {F*2}, v{lt[0]}")
        a(f"v_and_b32 v{lt[1]}, 7, v{v_l}")
        a(f"v_lshl_add_u32 v{v_ca}, v{lt[1]}, 4, v{lt[0]}")
        a(f"v_and_b32 v{lt[0]}, 16, v{v_l}")
        a(f"v_lshl_add_u32 v{v_co}, v{lt[1]}, 5, v{lt[0]}")
        a(f"v_and_b32 v{lt[0]}, 1, v{v_l}")
        a(f"v_lshlrev_b32 v{lt[0]}, 4, v{lt[0]}")
        a(f"v_mov_b32 v{lt[1]}, 0x3f80")
        a(f"v_lshlrev_b32 v{lt[0]}, v{lt[0]}, v{lt[1]}")
        a(f"v_bfe_u32 v{lt[1]}, v{v_l}, 1, 3")
        for i in range(4):
            a(f"v_cmp_eq_u32 vcc, {i}, v{lt[1]}")
            a(f"v_cndmask_b32 v{sel+i}, 0, v{lt[0]}, vcc")
    p1_loader(a, gq, v_l, dma, early)
    a(f"s_and_b32 s{S_WOFF}, s{S_WAVE}, 3")
    a(f"s_lshl_b32 s{S_RW}, s2, 2")
    a(f"s_add_u32 s{S_RW}, s{S_RW}, s{S_WOFF}")
    a(f"s_lshl_b32 s{S_T2}, s{S_J}, 2")
    a(f"s_add_u32 s{S_J}, s{S_T2}, s{S_WOFF}")
    make_srd(a, SRD3, P_WS, WS_IMG, IMG_SZ)
    a("s_waitcnt vmcnt(10) lgkmcnt(0)")
    a("s_barrier")
    a("s_waitcnt vmcnt(0)")
    a("s_barrier")
    gq.lstamp(14)
    dma(27, SRD2)
    gq.lstamp(15)
    lab = a.newlabel("fc")
    a(f"s_cmp_lg_u32 s{S_RW}, 0")
    a(f"s_cbranch_scc1 {lab}")
    make_srd(a, SRD5, P_DBG, 0, 256)
    a("s_mov_b64 exec, 1")
    a(f"v_mov_b32 v{lt[0]}, 0")
    a(f"buffer_store_dword v{lt[0]}, v{lt[0]}, {sr(SRD5,4)}, 0 offen offset:{FLAG} sc1")
    a("s_mov_b64 exec, -1")
    a.label(lab)
    lab = a.newlabel("zw")
    a(f"s_cmp_lg_u32 s{S_WAVE}, 4")
    a(f"s_cbranch_scc1 {lab}")
    a(f"v_mov_b32 v{lt[0]}, 0")
    a(f"ds_write2_b32 v{lt[0]}, v{lt[0]}, v{lt[0]} offset0:0 offset1:1")
    a.label(lab)

    def kvdone(n):
        a(f"s_waitcnt vmcnt({n})")
        a(f"ds_write_b32 v{v_kf}, v{v_km}")
        gq.lstamp(16)
        if INSTR:
            a("s_waitcnt vmcnt(0)")
            gq.lstamp(17)
    dummy = hva()

    def touch():
        for c in range(3):
            if c == 0:
                a(f"s_mul_i32 s{S_T1}, s{S_J}, {50*128}")
            else:
                a(f"s_mul_i32 s{S_T1}, s{S_J}, {120*128}")
                a(f"s_and_b32 s{S_T0}, s{S_XB}, 1")
                a(f"s_mul_i32 s{S_T0}, s{S_T0}, {1966080}")
                a(f"s_add_u32 s{S_T1}, s{S_T1}, s{S_T0}")
                a(f"s_add_u32 s{S_T1}, s{S_T1}, {IMG_GU + (c-1)*56*128}")
            a(f"buffer_load_dword v{dummy}, v{v_rb}, {sr(SRD3,4)}, s{S_T1} offen")
            if c < 2:
                a(f"s_sleep {TSLEEP2}")

    bufB = [hva(12, 4) for _ in range(2)]
    bufA = hva(20, 4)

    def loadsB(buf):
        a(f"s_mul_i32 s{S_SRC}, s{S_U}, 52429")
        a(f"s_lshr_b32 s{S_SRC}, s{S_SRC}, 22")
        a(f"s_mul_i32 s{S_DST}, s{S_SRC}, 80")
        a(f"s_sub_u32 s{S_T2}, s{S_U}, s{S_DST}")
        a(f"s_mul_i32 s{S_SRC}, s{S_SRC}, 192")
        a(f"s_lshr_b32 s{S_DST}, s{S_T2}, 3")
        a(f"s_lshl_b32 s{S_DST}, s{S_DST}, 2")
        a(f"s_and_b32 s{S_KX}, s{S_T2}, 3")
        a(f"s_add_u32 s{S_DST}, s{S_DST}, s{S_KX}")
        a(f"s_mul_i32 s{S_DST}, s{S_DST}, {16*F*2}")
        a(f"s_add_u32 s{S_SRC}, s{S_SRC}, s{S_DST}")
        a(f"s_bitcmp1_b32 s{S_T2}, 2")
        a(f"s_cselect_b32 s{SRD0}, s{P_WU}, s{P_WG}")
        a(f"s_cselect_b32 s{SRD0+1}, s{P_WU+1}, s{P_WG+1}")
        a(f"s_mov_b32 s{SRD0+2}, {F*D*2}")
        for i in range(3):
            a(f"buffer_load_dwordx4 {vr(buf+4*i,4)}, v{pb[i]}, {sr(SRD0,4)}, s{S_SRC} offen")

    def storesB(buf):
        a(f"s_mul_i32 s{S_DST}, s{S_U}, 3072")
        a(f"s_add_u32 s{S_DST}, s{S_DST}, {IMG_GU}")
        for i in range(3):
            a(f"buffer_store_dwordx4 {vr(buf+4*i,4)}, v{v_l16}, {sr(SRD3,4)}, s{S_DST} offen offset:{i*1024} {IMGPOL}")

    a(f"s_mov_b32 s{S_U}, s{S_RW}")
    loadsB(bufB[0])
    a(f"s_cmp_lt_u32 s{S_RW}, 544")
    a("s_cbranch_scc1 k2_rpa")
    a(f"s_add_u32 s{S_U}, s{S_RW}, {1024 - 544}")
    a(f"s_cmp_ge_u32 s{S_U}, 1280")
    a("s_cbranch_scc1 k2_rpe")
    loadsB(bufB[1])
    kvdone(6)
    a("s_waitcnt vmcnt(0)")
    storesB(bufB[1])
    a("s_branch k2_rpf")
    a.label("k2_rpa")
    l1, l2 = a.newlabel("ra"), a.newlabel("ra")
    a(f"s_cmp_ge_u32 s{S_RW}, 160")
    a(f"s_cbranch_scc1 {l1}")
    a(f"s_mul_i32 s{S_SRC}, s{S_RW}, 3277")
    a(f"s_lshr_b32 s{S_SRC}, s{S_SRC}, 16")
    a(f"s_mul_i32 s{S_DST}, s{S_SRC}, 20")
    a(f"s_sub_u32 s{S_DST}, s{S_RW}, s{S_DST}")
    a(f"s_mov_b32 s{SRD0}, s{P_WO}")
    a(f"s_mov_b32 s{SRD0+1}, s{P_WO+1}")
    a(f"s_mov_b32 s{SRD0+2}, {D*D*2}")
    a(f"s_branch {l2}")
    a.label(l1)
    a(f"s_sub_u32 s{S_U}, s{S_RW}, 160")
    a(f"s_mul_i32 s{S_SRC}, s{S_U}, 1366")
    a(f"s_lshr_b32 s{S_SRC}, s{S_SRC}, 16")
    a(f"s_mul_i32 s{S_DST}, s{S_SRC}, 48")
    a(f"s_sub_u32 s{S_DST}, s{S_U}, s{S_DST}")
    a(f"s_mov_b32 s{SRD0}, s{P_WD}")
    a(f"s_mov_b32 s{SRD0+1}, s{P_WD+1}")
    a(f"s_mov_b32 s{SRD0+2}, {F*D*2}")
    a.label(l2)
    a(f"s_mul_i32 s{S_SRC}, s{S_SRC}, 160")
    a(f"s_mul_i32 s{S_DST}, s{S_DST}, {32*D*2}")
    a(f"s_add_u32 s{S_SRC}, s{S_SRC}, s{S_DST}")
    for i in range(5):
        a(f"buffer_load_dwordx4 {vr(bufA+4*i,4)}, v{pa[i]}, {sr(SRD0,4)}, s{S_SRC} offen")
    a(f"s_mul_i32 s{S_DST}, s{S_RW}, 5120")
    kvdone(8)
    a("s_waitcnt vmcnt(0)")
    for i in range(5):
        if i == 4:
            a(f"s_add_u32 s{S_DST}, s{S_DST}, 4096")
        a(f"buffer_store_dwordx4 {vr(bufA+4*i,4)}, v{v_l16}, {sr(SRD3,4)}, s{S_DST} offen offset:{(i%4)*1024} {IMGPOL}")
    a("s_branch k2_rpf")
    a.label("k2_rpe")
    kvdone(3)
    a("s_waitcnt vmcnt(0)")
    a.label("k2_rpf")
    a(f"s_mov_b32 s{S_U}, s{S_RW}")
    storesB(bufB[0])
    if INSTR:
        a("s_waitcnt vmcnt(0)")
        a("s_memrealtime s[100:101]")
        a("s_waitcnt lgkmcnt(0)")
        lab = a.newlabel("hw")
        a(f"s_cmp_lg_u32 s{S_WAVE}, 4")
        a(f"s_cbranch_scc1 {lab}")
        make_srd(a, 40, P_WS, WS_TL + 4096 + 2048, 2048)
        a("v_mov_b32 v2, s82")
        a("v_mov_b32 v3, s100")
        a("s_lshl_b32 s98, s2, 3")
        a("v_mov_b32 v1, s98")
        a("buffer_store_dwordx2 v[2:3], v1, s[40:43], 0 offen")
        a.label(lab)
    def arrive2(s_sh, n, root, out):
        a(f"v_mov_b32 v{lt[2]}, 1")
        a("s_waitcnt vmcnt(0)")
        a(f"buffer_atomic_add v{lt[2]}, v{lt[0]}, {sr(SRDC,4)}, s{s_sh} offen sc0 sc1")
        a("s_waitcnt vmcnt(0)")
        a(f"v_readfirstlane_b32 s{S_T2}, v{lt[2]}")
        a(f"v_mov_b32 v{lt[2]}, 1")
        a(f"s_mov_b32 s{s_sh}, {root}")
        a("s_nop 2")
        a(f"s_cmp_lg_u32 s{S_T2}, {n-1}")
        a(f"s_cbranch_scc1 {out}")
        a(f"buffer_atomic_add v{lt[2]}, v{lt[0]}, {sr(SRDC,4)}, s{s_sh} offen sc0 sc1")
        a("s_waitcnt vmcnt(0)")
        a(f"v_readfirstlane_b32 s{S_T2}, v{lt[2]}")
        a("s_nop 3")
        a(f"s_cmp_lg_u32 s{S_T2}, 15")
        a(f"s_cbranch_scc1 {out}")
        a("s_mov_b64 exec, 0xff")
        a(f"v_lshlrev_b32 v{lt[3]}, 8, v{v_l}")
        a(f"v_mov_b32 v{lt[2]}, 1")
        a(f"buffer_store_dword v{lt[2]}, v{lt[3]}, {sr(SRDC,4)}, s{s_sh} offen offset:2048 sc1")

    def gpoll(off, add):
        l0, l1, l2 = [a.newlabel("gp") for _ in range(3)]
        a("s_mov_b64 exec, 1")
        a(f"v_mov_b32 v{lt[0]}, 0")
        a(f"s_cmp_lg_u32 s{S_HOOK}, 3")
        a(f"s_cbranch_scc1 {l2}")
        a(f"s_lshl_b32 s{S_T0}, s{S_XB}, 8")
        a(f"s_add_u32 s{S_T0}, s{S_T0}, {off}")
        a(f"s_mov_b32 s{S_KX}, 0x8000")
        a.label(l0)
        a(f"buffer_load_dword v{lt[2]}, v{lt[0]}, {sr(SRDC,4)}, s{S_T0} offen sc1")
        a(f"s_sub_u32 s{S_KX}, s{S_KX}, 1")
        a("s_waitcnt vmcnt(0)")
        a(f"v_readfirstlane_b32 s{S_T2}, v{lt[2]}")
        a(f"s_cmp_eq_u32 s{S_KX}, 0")
        a(f"s_cbranch_scc1 {l1}")
        a("s_nop 1")
        a(f"s_cmp_lg_u32 s{S_T2}, 0")
        a(f"s_cbranch_scc1 {l1}")
        a(f"s_sleep {TSLEEP[0]}")
        a(f"s_branch {l0}")
        a.label(l1)
        a(f"v_mov_b32 v{lt[1]}, {add}")
        a(f"ds_add_u32 v{lt[0]}, v{lt[1]}")
        a.label(l2)

    kq = hva(4, 4)
    a("s_mov_b64 exec, 1")
    a(f"v_mov_b32 v{lt[0]}, 0")
    a(f"v_mov_b32 v{lt[1]}, 1")
    a(f"s_and_b32 s{S_T1}, s2, 15")
    a(f"s_lshl_b32 s{S_T1}, s{S_T1}, 8")
    a(f"s_add_u32 s{S_T1}, s{S_T1}, {112*256}")
    gq.lstamp(18)
    kv_wait(a, lt[0], kq, 1)
    a("s_waitcnt vmcnt(0)")
    gq.lstamp(19)
    a(f"ds_add_rtn_u32 v{lt[2]}, v{lt[0]}, v{lt[1]} offset:4")
    a("s_waitcnt lgkmcnt(0)")
    a(f"v_readfirstlane_b32 s{S_HOOK}, v{lt[2]}")
    a("s_nop 3")
    a(f"s_cmp_lg_u32 s{S_HOOK}, 3")
    a("s_cbranch_scc1 k2_lw")
    arrive2(S_T1, 16, CNT_IMG*256, "k2_lw")
    a.label("k2_lw")
    a("s_mov_b64 exec, -1")
    csb = hva(40, 4)
    cacc = hva(4, 4)
    assert hva.n <= 132
    a(f"s_cmp_lt_u32 s{S_RW}, {1024 - 48*NCS}")
    a("s_cbranch_scc1 k2_ncs")
    a(f"s_sub_u32 s{S_T2}, s{S_RW}, {1024 - 48*NCS}")
    a(f"s_mul_i32 s{S_U}, s{S_T2}, 1366")
    a(f"s_lshr_b32 s{S_U}, s{S_U}, 16")
    a(f"s_mul_i32 s{S_SRC}, s{S_U}, 48")
    a(f"s_sub_u32 s{S_SRC}, s{S_T2}, s{S_SRC}")
    a(f"s_cmp_lt_u32 s{S_SRC}, 24")
    a(f"s_cselect_b32 s{SRD0}, s{P_WG}, s{P_WU}")
    a(f"s_cselect_b32 s{SRD0+1}, s{P_WG+1}, s{P_WU+1}")
    a(f"s_mov_b32 s{SRD0+2}, {F*D*2}")
    a(f"s_cselect_b32 s{S_DST}, 0, 24")
    a(f"s_sub_u32 s{S_SRC}, s{S_SRC}, s{S_DST}")
    a(f"s_lshl_b32 s{S_SRC}, s{S_SRC}, 7")
    a(f"s_mul_i32 s{S_U}, s{S_U}, {80*F*2}")
    a(f"s_add_u32 s{S_SRC}, s{S_SRC}, s{S_U}")
    for i in range(10):
        a(f"buffer_load_dwordx4 {vr(csb+4*i,4)}, v{v_ca}, {sr(SRD0,4)}, s{S_SRC} offen")
        a(f"s_add_u32 s{S_SRC}, s{S_SRC}, {8*F*2}")
    make_srd(a, SRD4, P_WS, WS_CS, NCS * 3072 * 4)
    a(f"s_lshl_b32 s{S_T2}, s{S_T2}, 8")
    for i in range(10):
        a(f"s_waitcnt vmcnt({9-i})")
        a(f"v_mfma_f32_16x16x32_bf16 {vr(cacc,4)}, {vr(sel,4)}, {vr(csb+4*i,4)}, " + ("0" if i == 0 else vr(cacc, 4)))
    a("s_nop 7")
    a("s_nop 7")
    for j in range(4):
        a(f"v_add_f32_dpp v{cacc+j}, v{cacc+j}, v{cacc+j} row_ror:8 row_mask:0xf bank_mask:0xf")
    a(f"s_mov_b64 exec, 0x00ff00ff")
    a(f"buffer_store_dwordx4 {vr(cacc,4)}, v{v_co}, {sr(SRD4,4)}, s{S_T2} offen sc1")
    a("s_mov_b64 exec, 1")
    a(f"v_mov_b32 v{lt[0]}, 0")
    a(f"s_and_b32 s{S_T1}, s{S_RW}, 15")
    a(f"s_lshl_b32 s{S_T1}, s{S_T1}, 8")
    a(f"s_add_u32 s{S_T1}, s{S_T1}, {96*256 + 4}")
    arrive2(S_T1, 3*NCS, CNT_KV*256 + 4, "k2_ncs")
    a.label("k2_ncs")
    gpoll((CNT_IMG+8)*256, 1)
    lds_wait(a, lt, 8, "s_bitcmp0_b32 s{}, 0")
    a("s_mov_b64 exec, -1")
    gq.lstamp(20)
    touch()
    gq.lstamp(21)
    if CPF > 1:
        code_touch(a, lt[0], dummy, 0)
    gpoll((CNT_KV+8)*256 + 4, 2)
    a("s_mov_b64 exec, -1")
    ffn.gq = gq
    ffn_loader(a, ffn)

    a.label("k2_code_end")
    kernel_end(a, name, max(va.n, hva.n, ffn.maxv, gq.maxv, V_RAD + 1))
    print('vgprs', va.n, hva.n, ffn.maxv, gq.maxv)
    return (name, 256, 512, KV_SZ)

TSLEEP = [int(x) for x in os.environ.get("TSLEEP", "16").split(",") if x]
TSLEEP2 = int(os.environ.get("TSLEEP2", "16"))
TEARLY = bool(os.environ.get("TEARLY"))


SRDC = 8
TDUM = 243
RES3, V_RAD = 244, 254
XCH = 0
TAB = 156 * 1024
HPOL = os.environ.get("HPOL", "sc1")
OPOL = os.environ.get("OPOL", "")


def map_proj(a, which):
    a(f"s_and_b32 s{S_T1}, s2, 7")
    a(f"s_lshr_b32 s{S_T0}, s2, 3")
    a(f"s_mov_b32 s{S_J}, s{S_T0}")
    a(f"s_mov_b32 s{S_XB}, s{S_T1}")
    if which == 3:
        a(f"s_mul_i32 s{S_ROT}, s{S_T0}, 52")
        a(f"s_lshr_b32 s{S_ROT}, s{S_ROT}, 8")
        a(f"s_mul_i32 s{S_ROT}, s{S_ROT}, 5")
        a(f"s_sub_u32 s{S_ROT}, s{S_T0}, s{S_ROT}")
        a(f"s_lshr_b32 s{S_T2}, s{S_T0}, 3")
        a(f"s_lshl_b32 s{S_T1}, s{S_T1}, 2")
        a(f"s_add_u32 s{S_T1}, s{S_T1}, s{S_T2}")
        a(f"s_lshl_b32 s{S_TOK0}, s{S_T1}, 6")
        a(f"s_and_b32 s{S_T0}, s{S_T0}, 7")
    else:
        a(f"s_and_b32 s{S_ROT}, s{S_T1}, 1")
        a(f"s_mul_i32 s{S_ROT}, s{S_ROT}, 6")
        a(f"s_and_b32 s{S_T2}, s{S_T0}, 1")
        a(f"s_add_u32 s{S_ROT}, s{S_ROT}, s{S_T2}")
        a(f"s_lshr_b32 s{S_T2}, s{S_T1}, 1")
        a(f"s_lshl_b32 s{S_T2}, s{S_T2}, 3")
        a(f"s_and_b32 s{S_TOK0}, s{S_T0}, 7")
        a(f"s_add_u32 s{S_TOK0}, s{S_TOK0}, s{S_T2}")
        a(f"s_lshl_b32 s{S_TOK0}, s{S_TOK0}, 6")
        a(f"s_and_b32 s{S_T1}, s{S_T1}, 1")
        a(f"s_lshl_b32 s{S_T1}, s{S_T1}, 2")
        a(f"s_lshr_b32 s{S_T0}, s{S_T0}, 3")
        a(f"s_add_u32 s{S_T0}, s{S_T0}, s{S_T1}")
    a(f"s_mul_i32 s{S_COL}, s{S_T0}, 160")


def srd_proj(a, which):
    if which == 3:
        make_srd(a, SRD0, P_WS, WS_O, S * D * 2)
        make_srd(a, SRD1, P_WS, WS_IMG, IMG_SZ)
        a(f"s_mul_i32 s{S_IMG}, s{S_T0}, {5*20480}")
        make_srd(a, SRD2, P_WS, WS_H, S * D * 2)
        make_srd(a, SRD3, P_X, 0, S * D * 2)
        make_srd(a, SRD4, P_WS, WS_ST, S * 64)
    else:
        make_srd(a, SRD0, P_WS, WS_ACT, S * F * 2)
        make_srd(a, SRD1, P_WS, WS_IMG, IMG_SZ)
        a(f"s_mul_i32 s{S_IMG}, s{S_T0}, {12*20480}")
        make_srd(a, SRD2, P_OUT, 0, S * D * 2)
        make_srd(a, SRD3, P_WS, WS_H, S * D * 2)


def map_k4(a):
    a(f"s_and_b32 s{S_XB}, s2, 7")
    a(f"s_lshr_b32 s{S_J}, s2, 3")
    a(f"s_mul_i32 s{S_ROT}, s{S_J}, 26")
    a(f"s_lshr_b32 s{S_ROT}, s{S_ROT}, 8")
    a(f"s_mul_i32 s{S_ROT}, s{S_ROT}, 10")
    a(f"s_sub_u32 s{S_ROT}, s{S_J}, s{S_ROT}")
    a(f"s_lshr_b32 s{S_T2}, s{S_XB}, 1")
    a(f"s_lshl_b32 s{S_T2}, s{S_T2}, 2")
    a(f"s_and_b32 s{S_TOK0}, s{S_J}, 3")
    a(f"s_add_u32 s{S_TOK0}, s{S_TOK0}, s{S_T2}")
    a(f"s_lshl_b32 s{S_TOK0}, s{S_TOK0}, 7")
    a(f"s_lshr_b32 s{S_T2}, s{S_J}, 2")
    a(f"s_and_b32 s{S_T1}, s{S_XB}, 1")
    a(f"s_lshl_b32 s{S_T1}, s{S_T1}, 3")
    a(f"s_add_u32 s{S_T0}, s{S_T2}, s{S_T1}")
    a(f"s_mul_i32 s{S_COL}, s{S_T0}, 192")
    a(f"s_mul_i32 s{S_IMG}, s{S_T0}, {10*24576}")
    make_srd(a, SRD0, P_WS, WS_H, S * D * 2)
    make_srd(a, SRD1, P_WS, WS_IMG, IMG_SZ)
    make_srd(a, SRD3, P_WS, WS_ACT, S * F * 2)


CNT = {0: (0, 7, 16), 1: (16, 7, 16), 2: (32, 6, 8)}
CNT_IMG = 64


def kv_wait(a, v_zero, q, nap):
    lab = a.newlabel("kw")
    a.label(lab)
    if nap:
        a(f"s_sleep {nap}")
    a(f"ds_read_b128 {vr(q,4)}, v{v_zero} offset:16")
    a("s_waitcnt lgkmcnt(0)")
    a(f"v_and_b32 v{q}, v{q}, v{q+1}")
    a(f"v_and_b32 v{q+2}, v{q+2}, v{q+3}")
    a(f"v_and_b32 v{q}, v{q}, v{q+2}")
    a("s_nop 0")
    a(f"v_readfirstlane_b32 s{S_T2}, v{q}")
    a("s_nop 3")
    a(f"s_cmp_lg_u32 s{S_T2}, -1")
    a(f"s_cbranch_scc1 {lab}")


def lds_wait(a, t, nap, cond):
    lab = a.newlabel("lw")
    a.label(lab)
    a(f"s_sleep {nap}")
    a(f"ds_read_b32 v{t[2]}, v{t[0]}")
    a("s_waitcnt lgkmcnt(0)")
    a(f"v_readfirstlane_b32 s{S_T2}, v{t[2]}")
    a("s_nop 3")
    a(cond.format(S_T2))
    a(f"s_cbranch_scc1 {lab}")


PT = os.environ.get("PT", "9").split(",")


def publish(a, t, ph, touch=None):
    lab = a.newlabel("pub")
    a("s_mov_b64 exec, 1")
    a(f"v_mov_b32 v{t[0]}, {TAB + 3072 + 4*ph}")
    a(f"v_mov_b32 v{t[1]}, 1")
    a(f"s_lshr_b32 s{S_T1}, s{S_TOK0}, {CNT[ph][1]}")
    a(f"s_lshl_b32 s{S_T1}, s{S_T1}, 8")
    a(f"s_add_u32 s{S_T1}, s{S_T1}, {CNT[ph][0]*256}")
    a("s_waitcnt vmcnt(0)")
    rstamp(a, {2: 1, 0: 4, 1: 7}[ph])
    a(f"ds_add_rtn_u32 v{t[2]}, v{t[0]}, v{t[1]}")
    a(f"v_mov_b32 v{t[0]}, 0")
    a("s_waitcnt lgkmcnt(0)")
    a(f"v_readfirstlane_b32 s{S_T2}, v{t[2]}")
    a("s_nop 3")
    a(f"s_cmp_lg_u32 s{S_T2}, 3")
    a(f"s_cbranch_scc1 {lab}")
    a(f"buffer_atomic_add v{t[1]}, v{t[0]}, {sr(SRDC,4)}, s{S_T1} offen sc1")
    a.label(lab)
    a("s_mov_b64 exec, -1")
    if touch and str(ph) in PT:
        touch()
        a("s_mov_b64 exec, -1")


def await_block(a, t, ph):
    l0, l1 = a.newlabel("aw"), a.newlabel("aw")
    a(f"s_cmp_lg_u32 s{S_WAVE}, 0")
    a(f"s_cbranch_scc1 {l1}")
    a("s_mov_b64 exec, 1")
    a(f"v_mov_b32 v{t[0]}, 0")
    a(f"s_lshr_b32 s{S_T1}, s{S_TOK0}, {CNT[ph][1]}")
    a(f"s_lshl_b32 s{S_T1}, s{S_T1}, 8")
    a(f"s_add_u32 s{S_T1}, s{S_T1}, {CNT[ph][0]*256}")
    a(f"s_mov_b32 s{S_KX}, 0x20000")
    a.label(l0)
    a(f"buffer_load_dword v{t[1]}, v{t[0]}, {sr(SRDC,4)}, s{S_T1} offen sc1")
    a(f"s_sub_u32 s{S_KX}, s{S_KX}, 1")
    a("s_waitcnt vmcnt(0)")
    a(f"v_readfirstlane_b32 s{S_T2}, v{t[1]}")
    a(f"s_cmp_eq_u32 s{S_KX}, 0")
    a(f"s_cselect_b32 s{S_KW}, {CNT[ph][2]}, 0")
    a(f"s_max_u32 s{S_T2}, s{S_T2}, s{S_KW}")
    a(f"s_cmp_lt_u32 s{S_T2}, {CNT[ph][2]}")
    a(f"s_cbranch_scc1 {l0}")
    a("s_mov_b64 exec, -1")
    a.label(l1)
    a("s_barrier")
    rstamp(a, {2: 2, 0: 5, 1: 8}[ph])


def proj_gemm(a, va, which):
    seg = Seg(SRD1, D * 2, 80, 'p160', S_COL, img=(S_IMG, 20480, IMG_WO if which == 3 else IMG_WD))
    K = D if which == 3 else F
    return Gemm(a, va, 64, 2, 2, 1, [seg], 128, 4, K, SRD0, K * 2, S_TOK0, sregs=GS, tag=f"k{which}", xcm=True,
                lds_base=0 if which == 3 else 8192)


def proj_compute(a, va, g, which, sb):
    g.setup()
    t = g.tmp
    v_ad, v_tok, v_a4, v_c8, v_c4 = va(), va(), va(), va(), va()
    res = va(10, 2)
    a(f"v_lshl_add_u32 v{v_tok}, v{g.v_wt}, 1, v{g.v_wo}")
    a(f"v_lshl_add_u32 v{v_tok}, v{v_tok}, 4, v{g.v_i16}")
    a(f"v_add_u32 v{v_tok}, s{S_TOK0}, v{v_tok}")
    a(f"v_mul_u32_u24 v{t[0]}, {D*2}, v{v_tok}")
    a(f"v_add_u32 v{t[0]}, s{S_COL}, v{t[0]}")
    a(f"v_lshl_add_u32 v{v_ad}, v{g.v_g}, 3, v{t[0]}")
    a(f"v_and_b32 v{t[1]}, 1, v{g.v_g}")
    a(f"v_lshl_add_u32 v{v_a4}, v{t[1]}, 5, v{t[0]}")
    a(f"v_lshrrev_b32 v{t[1]}, 1, v{g.v_g}")
    a(f"v_lshl_add_u32 v{v_a4}, v{t[1]}, 4, v{v_a4}")
    a(f"v_and_b32 v{t[0]}, 0xfff0, v{v_tok}")
    a(f"v_mul_u32_u24 v{t[0]}, {D*2}, v{t[0]}")
    a(f"v_lshl_add_u32 v{t[0]}, v{g.v_i16}, 4, v{t[0]}")
    a(f"s_lshl_b32 s{S_T1}, s{S_COL}, 4")
    a(f"v_add_u32 v{t[0]}, s{S_T1}, v{t[0]}")
    a(f"v_lshl_add_u32 v{t[0]}, v{t[1]}, 8, v{t[0]}")
    a(f"v_and_b32 v{t[1]}, 1, v{g.v_g}")
    a(f"v_lshl_add_u32 v{v_c8}, v{t[1]}, 3, v{t[0]}")
    a(f"v_lshl_add_u32 v{v_c4}, v{t[1]}, 9, v{t[0]}")
    if which == 3:
        res = RES3
    await_block(a, t, 1 if which == 5 else 2)
    for fb in range(5):
        if which == 5:
            a(f"buffer_load_dwordx2 {vr(res+2*fb,2)}, v{v_c8}, {sr(SRD3,4)}, 0 offen offset:{fb*512} {HPOL}")
    stamp(a, sb)
    g.mainloop()
    stamp(a, sb + 1)
    rstamp(a, 3 if which == 3 else 9)
    a("s_nop 7")
    a(f"v_mul_u32_u24 v{t[0]}, 5120, v{g.v_wave}")
    a(f"v_lshl_add_u32 v{t[0]}, v{g.v_lane}, 4, v{t[0]}")
    a(f"v_add_u32 v{t[0]}, {XCH}, v{t[0]}")
    a(f"v_xor_b32 v{t[1]}, 2, v{g.v_wave}")
    a(f"v_mul_u32_u24 v{t[1]}, 5120, v{t[1]}")
    a(f"v_lshl_add_u32 v{t[1]}, v{g.v_lane}, 4, v{t[1]}")
    a(f"v_add_u32 v{t[1]}, {XCH}, v{t[1]}")
    for fb in range(5):
        a(f"ds_write_b128 v{t[0]}, {vr(g.acc[1][fb],4)} offset:{fb*1024}")
    a("s_waitcnt lgkmcnt(0)")
    a("s_barrier")
    for fb in range(5):
        a(f"ds_read_b128 {vr(g.acc[1][fb],4)}, v{t[1]} offset:{fb*1024}")
    v_s = va(2, 2)
    v_q = v_s + 1
    v_s2, v_q2 = va(2, 2), va(2, 2)
    assert t[1] % 2 == 0
    if which == 3:
        for r in (v_s2, v_s2 + 1, v_q2, v_q2 + 1):
            a(f"v_mov_b32 v{r}, 0")
    pol = HPOL if which == 3 else ""
    for fb in range(5):
        a(f"s_waitcnt lgkmcnt({4-fb})")
        c, o = g.acc[0][fb], g.acc[1][fb]
        dst = o if fb % 2 == 0 else g.acc[1][fb - 1] + 2
        for p in range(2):
            u = t[1] + 2 * p
            a(f"v_lshlrev_b32 v{u}, 16, v{res+2*fb+p}")
            a(f"v_and_b32 v{u+1}, 0xffff0000, v{res+2*fb+p}")
            a(f"v_pk_add_f32 {vr(c+2*p,2)}, {vr(c+2*p,2)}, {vr(o+2*p,2)}")
            a(f"v_cvt_pk_bf16_f32 v{c+2*p+1}, v{c+2*p}, v{c+2*p+1}")
            a(f"v_lshlrev_b32 v{c+2*p}, 16, v{c+2*p+1}")
            a(f"v_and_b32 v{c+2*p+1}, 0xffff0000, v{c+2*p+1}")
            a(f"v_pk_add_f32 {vr(u,2)}, {vr(u,2)}, {vr(c+2*p,2)}")
            a(f"v_cvt_pk_bf16_f32 v{dst+p}, v{u}, v{u+1}")
            if which == 3:
                a(f"v_lshlrev_b32 v{u}, 16, v{dst+p}")
                a(f"v_and_b32 v{u+1}, 0xffff0000, v{dst+p}")
                a(f"v_pk_add_f32 {vr(v_s2,2)}, {vr(v_s2,2)}, {vr(u,2)}")
                a(f"v_pk_fma_f32 {vr(v_q2,2)}, {vr(u,2)}, {vr(u,2)}, {vr(v_q2,2)}")
        if fb % 2 == 1:
            q = g.acc[1][fb - 1]
            a("s_nop 1")
            a(f"v_permlane16_swap_b32 v{q}, v{q+2}")
            a(f"v_permlane16_swap_b32 v{q+1}, v{q+3}")
            if which == 3:
                a(f"buffer_store_dwordx4 {vr(q,4)}, v{v_c4}, {sr(SRD2,4)}, 0 offen offset:{(fb-1)*512} {pol}")
            else:
                a(f"buffer_store_dwordx4 {vr(q,4)}, v{v_a4}, {sr(SRD2,4)}, 0 offen offset:{(fb-1)*32} {OPOL}".rstrip())
        elif fb == 4:
            if which == 3:
                a(f"buffer_store_dwordx2 {vr(o,2)}, v{v_c8}, {sr(SRD2,4)}, 0 offen offset:{fb*512} {pol}")
            else:
                a(f"buffer_store_dwordx2 {vr(o,2)}, v{v_ad}, {sr(SRD2,4)}, 0 offen offset:{fb*32} {OPOL}".rstrip())
    if which == 3:
        a(f"v_add_f32 v{v_s}, v{v_s2}, v{v_s2+1}")
        a(f"v_add_f32 v{v_q}, v{v_q2}, v{v_q2+1}")
        for w in (32, 16):
            a(f"v_mov_b32 v{t[0]}, v{v_s}")
            a(f"v_mov_b32 v{t[1]}, v{v_q}")
            a("s_nop 1")
            a(f"v_permlane{w}_swap_b32 v{v_s}, v{t[0]}")
            a(f"v_permlane{w}_swap_b32 v{v_q}, v{t[1]}")
            a("s_nop 1")
            a(f"v_add_f32 v{v_s}, v{v_s}, v{t[0]}")
            a(f"v_add_f32 v{v_q}, v{v_q}, v{t[1]}")
        a(f"v_lshlrev_b32 v{t[0]}, 3, v{v_tok}")
        a(f"s_lshl_b32 s{S_T0}, s{S_T0}, 14")
        a("s_mov_b64 exec, 0xffff")
        a(f"buffer_store_dwordx2 {vr(v_s,2)}, v{t[0]}, {sr(SRD4,4)}, s{S_T0} offen {pol}")
        stamp(a, sb + 2)
        publish(a, t, 0)


def k4_gemm(a, va):
    sg = Seg(SRD1, F * 2, 96, 'p192', S_COL, img=(S_IMG, 24576, IMG_GU))
    su = Seg(SRD1, F * 2, 96, 'p192', S_COL, img=(S_IMG, 24576, IMG_GU + 12288))
    return Gemm(a, va, 128, 2, 1, 2, [sg, su], 64, K4_NS, D, SRD0, D * 2, S_TOK0, sregs=GS, tag="k4", xcm=True, lds_base=20480)


def k4_compute(a, va, g, sb):
    g.setup()
    t = g.tmp
    v_tok, v_a4, v_b4, v_ta, v_tc = va(), va(), va(), va(), va()
    a(f"v_lshl_add_u32 v{v_tok}, v{g.v_wt}, 6, v{g.v_i16}")
    a(f"v_lshlrev_b32 v{v_ta}, 4, v{v_tok}")
    a(f"v_add_u32 v{v_ta}, {TAB}, v{v_ta}")
    a(f"v_add_u32 v{v_tok}, s{S_TOK0}, v{v_tok}")
    a(f"v_mul_u32_u24 v{t[1]}, 48, v{g.v_wo}")
    a(f"v_lshl_add_u32 v{t[2]}, v{g.v_g}, 2, v{t[1]}")
    a(f"v_lshlrev_b32 v{v_tc}, 2, v{t[2]}")
    a(f"v_add_u32 v{v_tc}, {TAB + 2048}, v{v_tc}")
    a(f"v_and_b32 v{t[0]}, 0xfff0, v{v_tok}")
    a(f"v_mul_u32_u24 v{t[0]}, {F*2}, v{t[0]}")
    a(f"v_lshl_add_u32 v{t[0]}, v{g.v_i16}, 4, v{t[0]}")
    a(f"v_lshl_add_u32 v{t[0]}, v{t[1]}, 5, v{t[0]}")
    a(f"s_lshl_b32 s{S_T1}, s{S_COL}, 4")
    a(f"v_add_u32 v{t[0]}, s{S_T1}, v{t[0]}")
    a(f"v_lshrrev_b32 v{t[1]}, 1, v{g.v_g}")
    a(f"v_lshl_add_u32 v{t[0]}, v{t[1]}, 8, v{t[0]}")
    a(f"v_and_b32 v{t[1]}, 1, v{g.v_g}")
    a(f"v_lshl_add_u32 v{v_a4}, v{t[1]}, 9, v{t[0]}")
    a(f"v_mul_u32_u24 v{t[1]}, {16*F*2}, v{t[1]}")
    a(f"v_add_u32 v{v_b4}, v{t[1]}, v{t[0]}")
    await_block(a, t, 0)
    stamp(a, sb)
    g.mainloop()
    stamp(a, sb + 1)
    rstamp(a, 6)
    st = g.fa[0]
    cs = g.fa[1]
    tmp = g.fb[0]
    for tb in range(4):
        a(f"ds_read_b128 {vr(st+4*tb,4)}, v{v_ta} offset:{tb*256}")
    for sgi in range(2):
        for fb in range(3):
            a(f"ds_read_b128 {vr(cs+12*sgi+4*fb,4)}, v{v_tc} offset:{sgi*384 + fb*64}")
    a("s_waitcnt lgkmcnt(0)")
    for tb in range(4):
        vm, vA, vB, vC = [st + 4 * tb + i for i in range(4)]
        pm, pB = vr(vm, 2), vr(vB, 2)
        for fb in range(3):
            cg, cu = g.acc[tb][fb], g.acc[tb][3 + fb]
            z = tmp + 8 * (fb & 1)
            for h in (0, 2):
                a(f"v_pk_fma_f32 {vr(cg+h,2)}, {pm}, {vr(cs+4*fb+h,2)}, {vr(cg+h,2)} op_sel_hi:[0,1,1]")
                a(f"v_pk_fma_f32 {vr(cu+h,2)}, {pm}, {vr(cs+12+4*fb+h,2)}, {vr(cu+h,2)} op_sel_hi:[0,1,1]")
            for h in (0, 2):
                a(f"v_pk_mul_f32 {vr(z+h,2)}, {vr(cg+h,2)}, {vr(cg+h,2)}")
                a(f"v_pk_mul_f32 {vr(cu+h,2)}, {vr(cu+h,2)}, {vr(cg+h,2)}")
            for h in (0, 2):
                a(f"v_pk_fma_f32 {vr(z+h,2)}, {vr(z+h,2)}, {pB}, {pm} op_sel:[0,0,1] op_sel_hi:[1,0,1]")
            for h in (0, 2):
                a(f"v_pk_mul_f32 {vr(z+h,2)}, {vr(z+h,2)}, {vr(cg+h,2)}")
            for r in range(4):
                a(f"v_exp_f32 v{z+r}, v{z+r}")
            for h in (0, 2):
                a(f"v_pk_fma_f32 {vr(z+h,2)}, {vr(z+h,2)}, {pB}, {pB} op_sel:[0,1,1] op_sel_hi:[1,1,1]")
            for r in range(4):
                a(f"v_rcp_f32 v{z+r}, v{z+r}")
            a("s_nop 0")
            for h in (0, 2):
                a(f"v_pk_mul_f32 {vr(cu+h,2)}, {vr(cu+h,2)}, {vr(z+h,2)}")
            if fb == 1:
                q, dst = g.acc[tb][3], g.acc[tb][3] + 2
            elif fb == 2 and tb % 2 == 1:
                q, dst = g.acc[tb - 1][5], g.acc[tb - 1][5] + 2
            else:
                q, dst = None, cu
            a(f"v_cvt_pk_bf16_f32 v{dst}, v{cu}, v{cu+1}")
            a(f"v_cvt_pk_bf16_f32 v{dst+1}, v{cu+2}, v{cu+3}")
            if q is not None:
                a(f"s_mov_b32 s{S_KW}, {(tb if fb == 1 else tb - 1)*16*F*2}")
                a("s_nop 0")
                a(f"v_permlane16_swap_b32 v{q}, v{q+2}")
                a(f"v_permlane16_swap_b32 v{q+1}, v{q+3}")
                if fb == 1:
                    a(f"buffer_store_dwordx4 {vr(q,4)}, v{v_a4}, {sr(SRD3,4)}, s{S_KW} offen {HPOL}")
                else:
                    a(f"buffer_store_dwordx4 {vr(q,4)}, v{v_b4}, {sr(SRD3,4)}, s{S_KW} offen offset:1024 {HPOL}")
    stamp(a, sb + 2)
    publish(a, t, 1)


class Ffn:
    pass


def ffn_compute(a):
    f = Ffn()
    maxv = 0
    va = VAlloc(1)
    g3 = proj_gemm(a, va, 3)
    g3.tmp = [va() for _ in range(6)]
    map_proj(a, 3)
    srd_proj(a, 3)
    proj_compute(a, va, g3, 3, 4)
    maxv = max(maxv, va.n)
    va = VAlloc(1)
    g4 = k4_gemm(a, va)
    g4.tmp = [va() for _ in range(6)]
    map_k4(a)
    k4_compute(a, va, g4, 7)
    maxv = max(maxv, va.n)
    va = VAlloc(1)
    g5 = proj_gemm(a, va, 5)
    g5.tmp = [va() for _ in range(6)]
    map_proj(a, 5)
    srd_proj(a, 5)
    proj_compute(a, va, g5, 5, 10)
    maxv = max(maxv, va.n)
    stamp_end(a, 12)
    assert g4.lds_bytes + g4.lds_base <= TAB and g5.lds_bytes + g5.lds_base <= TAB
    f.g3, f.g4, f.g5, f.maxv = g3, g4, g5, maxv
    return f


def ffn_loader(a, f):
    g3, g4, g5, maxv = f.g3, f.g4, f.g5, f.maxv
    GC = -2.0 * 0.7978845608028654 * 1.4426950408889634
    pre = {}

    def early4(lva, lt):
        make_srd(a, SRD4, P_WS, WS_ST, S * 64)
        buf = lva(16, 4)
        pre['buf'] = buf
        a(f"v_and_b32 v{lt[0]}, 127, v0")
        a(f"v_add_u32 v{lt[0]}, s{S_TOK0}, v{lt[0]}")
        a(f"v_lshlrev_b32 v{lt[0]}, 3, v{lt[0]}")
        for i in range(8):
            a(f"s_mov_b32 s{S_T1}, {i*16384}")
            a(f"buffer_load_dwordx2 {vr(buf+2*i,2)}, v{lt[0]}, {sr(SRD4,4)}, s{S_T1} offen {HPOL}")

    CSR = 104

    def cs4(lt):
        buf = CSR
        l3 = a.newlabel("k4e")
        a(f"s_cmp_lt_u32 s{S_WAVE}, 6")
        a(f"s_cbranch_scc1 {l3}")
        make_srd(a, SRD5, P_WS, WS_CS, NCS * 3072 * 4)
        a(f"s_lshr_b32 s{S_T2}, s{S_J}, 2")
        a(f"s_and_b32 s{S_T1}, s{S_XB}, 1")
        a(f"s_lshl_b32 s{S_T1}, s{S_T1}, 3")
        a(f"s_add_u32 s{S_T2}, s{S_T2}, s{S_T1}")
        a(f"s_mul_i32 s{S_T2}, s{S_T2}, 384")
        a(f"v_and_b32 v{lt[0]}, 63, v0")
        a(f"v_min_u32 v{lt[0]}, 23, v{lt[0]}")
        a(f"v_lshlrev_b32 v{lt[0]}, 4, v{lt[0]}")
        a(f"s_sub_u32 s{S_T1}, s{S_WAVE}, 6")
        a(f"s_mul_i32 s{S_T1}, s{S_T1}, {1536*4}")
        a(f"s_add_u32 s{S_T1}, s{S_T1}, s{S_T2}")
        for i in range(NCS):
            a(f"buffer_load_dwordx4 {vr(buf+4*i,4)}, v{lt[0]}, {sr(SRD5,4)}, s{S_T1} offen")
            a(f"s_add_u32 s{S_T1}, s{S_T1}, {3072*4}")
        a("s_waitcnt vmcnt(0)")
        a.label(l3)

    def table4(lva, lt):
        buf = pre['buf']
        l2, l3 = a.newlabel("k4e"), a.newlabel("k4e")
        a(f"s_cmp_ge_u32 s{S_WAVE}, 6")
        a(f"s_cbranch_scc1 {l2}")
        for i in range(1, 8):
            a(f"v_add_f32 v{buf}, v{buf}, v{buf+2*i}")
            a(f"v_add_f32 v{buf+1}, v{buf+1}, v{buf+2*i+1}")
        ln_stats(a, buf, buf + 1, buf + 4, buf + 8, lt)
        a(f"v_sub_f32 v{buf+4}, 0, v{buf+4}")
        a(f"v_mul_f32 v{buf+5}, {f32(GC)}, v{buf+8}")
        a(f"v_mul_f32 v{buf+9}, v{buf+8}, v{buf+8}")
        a(f"v_mul_f32 v{buf+6}, v{buf+9}, v{buf+8}")
        a(f"v_mul_f32 v{buf+6}, {f32(GC*0.044715)}, v{buf+6}")
        a(f"v_rcp_f32 v{buf+7}, v{buf+9}")
        a(f"v_lshlrev_b32 v{lt[0]}, 4, v0")
        a(f"v_add_u32 v{lt[0]}, {TAB}, v{lt[0]}")
        a(f"ds_write_b128 v{lt[0]}, {vr(buf+4,4)}")
        a(f"s_branch {l3}")
        a.label(l2)
        buf = CSR
        for k in range(1, NCS):
            for i in (0, 2):
                a(f"v_pk_add_f32 {vr(buf+i,2)}, {vr(buf+i,2)}, {vr(buf+4*k+i,2)}")
        a(f"v_and_b32 v{lt[0]}, 63, v0")
        a(f"v_min_u32 v{lt[0]}, 23, v{lt[0]}")
        a(f"v_lshlrev_b32 v{lt[0]}, 4, v{lt[0]}")
        a(f"s_sub_u32 s{S_T1}, s{S_WAVE}, 6")
        a(f"s_mul_i32 s{S_T1}, s{S_T1}, 384")
        a(f"s_add_u32 s{S_T1}, s{S_T1}, {TAB + 2048}")
        a(f"v_add_u32 v{lt[0]}, s{S_T1}, v{lt[0]}")
        a(f"ds_write_b128 v{lt[0]}, {vr(buf,4)}")
        a.label(l3)
        a("s_waitcnt lgkmcnt(0)")

    def touch_wd(lt):
        a(f"s_and_b32 s{S_T1}, s{S_XB}, 1")
        a(f"s_mul_i32 s{S_T1}, s{S_T1}, 983040")
        a(f"s_mul_i32 s{S_T2}, s{S_J}, {240*128}")
        a(f"s_add_u32 s{S_T1}, s{S_T1}, s{S_T2}")
        a(f"s_add_u32 s{S_T1}, s{S_T1}, {IMG_WD}")
        a(f"v_min_u32 v{lt[0]}, 239, v0")
        a(f"v_lshlrev_b32 v{lt[0]}, 7, v{lt[0]}")
        a(f"buffer_load_dword v{DUMMY}, v{lt[0]}, {sr(SRD1,4)}, s{S_T1} offen")
        ops.append(("t", 0))

    DUMMY = 100
    ops = []
    a("v_and_b32 v0, 255, v0")
    map_proj(a, 3)
    srd_proj(a, 3)
    g3.ld_prepare(S_ROT, head=False, xpol=HPOL, ops=ops)
    a(f"v_mov_b32 v{g3.lt[0]}, 0")
    lds_wait(a, g3.lt, 6, "s_cmp_lt_u32 s{}, 0xfe03")
    g3.lstamp(0)
    for st in range(3):
        g3.ld_issue(st, x=False)
    cs4(g3.lt)
    a("s_barrier")
    a("s_barrier")
    g3.ld_issue(3, x=False)
    a("s_barrier")

    def tail3(st):
        if st == 2:
            map_k4(a)
            g4.ld_prepare(S_ROT, head=False, xpol=HPOL, ops=ops)
            g4.lstamp(0)
        if st <= 4:
            g4.ld_issue(st - 2, x=False)
    g3.ld_run(wdone=True, tail=tail3)
    a("s_barrier")
    a("s_barrier")

    def tail4(st):
        if st == 8:
            a("s_setprio 2")
            table4(g4.lva, g4.lt)
            a("s_setprio 0")
        elif st == 9:
            map_proj(a, 5)
            srd_proj(a, 5)
            g5.ld_prepare(S_ROT, head=False, xpol=HPOL, ops=ops)
            g5.lstamp(0)
            g5.ld_issue(1, x=False)
        elif st == 10:
            g5.ld_issue(0, x=False)
            g5.ld_issue(2, x=False)
            g5.ld_issue(3, x=False)

    def mid4(st):
        if st == 3:
            early4(g4.lva, g4.lt)
            ops.extend([("e", 0)] * 8)
        if st == TWD:
            touch_wd(g4.lt)
    g4.ld_run(wdone=True, tail=tail4, mid=mid4)
    a("s_barrier")
    g5.ld_run(wdone=True)
    for g in (f.gq, g3, g4, g5):
        g.ld_dump()
    a("s_endpgm")
    assert max(g3.lva.n, g4.lva.n, g5.lva.n) < 89 and DUMMY < maxv

K4_NS = 3
TWD = int(os.environ.get('TWD', '9'))


def main():
    a = Asm()
    a.raw('.amdgcn_target "amdgcn-amd-amdhsa--gfx950"')
    a.raw(".text")
    launches = [gen_k2(a)]
    head = open("cdna_kernels/" + NAME + ".s.ref").read().split("\n")
    hdr = [l for l in head if l.startswith(";") and "@launch" not in l and "Override launch" not in l and "grid=ceil" not in l]
    out = "\n".join(hdr) + "\n"
    for n, gx, bx, lds in launches:
        out += f"; @launch kernel={n} grid=({gx},1,1) block=({bx},1,1) lds={lds}\n"
    out += a.text()
    out += '.section .rodata,"a"\n' + "".join(KDS)
    path = sys.argv[1] if len(sys.argv) > 1 else "cdna_kernels/" + NAME + ".s"
    open(path, "w").write(out)
    print("wrote", path, len(out), "bytes;", launches)

if __name__ == "__main__":
    main()
```

```python
import sys

NAME = "sequential_preLN__grouped_kv_mqa__geglu_ffn__prompt"

S, D, H, DH, F = 2048, 640, 32, 20, 1536

WS_Q   = 0
FUSED1 = True
WS_KF  = 0x280000
WS_KV  = WS_KF
KV_SZ  = 163840
NCS    = 8
WS_VF  = WS_KF + 0x20000
WS_KN  = WS_VF + 0x20000
WS_CS  = WS_KN + 0x1000
WS_O   = WS_CS + 0x20000
WS_H   = WS_O + 0x280000
WS_ST  = WS_H + 0x280000
WS_ACT = WS_ST + 0x20000
WS_S1  = WS_ACT + 0x600000
WS_CNT = WS_S1
WS_IMG = WS_S1 + 0x8000
WS_TL = 0x3000000
IMG_WO, IMG_WD, IMG_GU, IMG_SZ = 0, 819200, 819200 + 1966080, 6717440

KA_X, KA_WQ, KA_WK, KA_WV, KA_WO, KA_BX, KA_WG, KA_WU, KA_WD, KA_OUT, KA_DBG, KA_WS = [8 * i for i in range(12)]

import struct, os
INSTR = bool(os.environ.get("INSTR"))
HACK_LIN = bool(os.environ.get("HACK_LIN"))
NOCOMP = os.environ.get("NOCOMP", "").split(",")
NOX = os.environ.get("NOX", "").split(",")
NOW = os.environ.get("NOW", "").split(",")
PF = bool(os.environ.get("PF"))
IMGPOL = os.environ.get("IMGPOL", "sc1")
for _k in ("NORB2", "NORB3", "NORB4"):
    os.environ[_k] = "1"
NOLOAD = os.environ.get("NOLOAD", "").split(",")
def f32(x):
    return "0x%08x" % struct.unpack("<I", struct.pack("<f", x))[0]


class Asm:
    skip_dma = False
    def __init__(self):
        self.lines = []
        self.nlabel = 0

    def __call__(self, s):
        for l in s.split("\n"):
            l = l.strip()
            if self.skip_dma and l.startswith("buffer_load") and l.endswith("lds"):
                continue
            if l:
                self.lines.append("    " + l)

    def label(self, l):
        self.lines.append(l + ":")

    def newlabel(self, p="L"):
        self.nlabel += 1
        return f"{p}_{self.nlabel}"

    def raw(self, s):
        self.lines.append(s)

    def text(self):
        return "\n".join(self.lines) + "\n"


class VAlloc:
    def __init__(self, start=1):
        self.n = start

    def __call__(self, cnt=1, align=1):
        self.n = (self.n + align - 1) // align * align
        r = self.n
        self.n += cnt
        return r


def vr(b, n):
    return f"v[{b}:{b+n-1}]"


def sr(b, n):
    return f"s[{b}:{b+n-1}]"


KIDX = [-1]
LIDX = [0]
def kernel_begin(a, name):
    KIDX[0] += 1
    a.raw(f".globl {name}")
    a.raw(".p2align 8")
    a.raw(f".type {name},@function")
    a.label(name)


KDS = []
def kernel_end(a, name, nvgpr, nsgpr=102):
    nv = (nvgpr + 7) // 8 * 8
    KDS.append(f""".p2align 6
.amdhsa_kernel {name}
  .amdhsa_next_free_vgpr {nv}
  .amdhsa_next_free_sgpr {nsgpr}
  .amdhsa_accum_offset {(nv + 3) // 4 * 4}
  .amdhsa_group_segment_fixed_size 0
  .amdhsa_kernarg_size 96
  .amdhsa_user_sgpr_count 2
  .amdhsa_user_sgpr_kernarg_segment_ptr 1
  .amdhsa_system_sgpr_workgroup_id_x 1
.end_amdhsa_kernel
""")


def make_srd(a, dst, base_s, off, nbytes):
    if off:
        a(f"s_add_u32 s{dst}, s{base_s}, {off}")
        a(f"s_addc_u32 s{dst+1}, s{base_s+1}, 0")
    else:
        a(f"s_mov_b32 s{dst}, s{base_s}")
        a(f"s_mov_b32 s{dst+1}, s{base_s+1}")
    a(f"s_mov_b32 s{dst+2}, {nbytes}")
    a(f"s_mov_b32 s{dst+3}, 0x00020000")


def interleave(mfmas, fillers, nreads=None):
    out = []
    nm, nf = len(mfmas), len(fillers)
    per = 1 if (nreads or nf) * 3 <= nm * 2 + 2 and nf <= nm else 2
    if os.environ.get("OLDIL"):
        per = 0
    fi = 0
    for i, m in enumerate(mfmas):
        out.append(m)
        tgt = (i + 1) * per if per else ((i + 1) * nf + nm - 1) // nm
        while fi < min(tgt, nf):
            out.extend(fillers[fi])
            fi += 1
    while fi < nf:
        out.extend(fillers[fi])
        fi += 1
    return out


class Seg:
    def __init__(self, srd, gstride, nf, kind, colreg=None, img=None):
        self.img = img
        self.srd = srd
        self.gstride = gstride
        self.nf = nf
        self.kind = kind
        self.colreg = colreg


class Gemm:
    def __init__(self, a, va, TT, WT, WK, WF, segs, BK, NS, K, xsrd, xstride, s_tok0,
                 stats=False, colsum=False, sregs=None, tag="g", lds_base=0, xcm=False, slot0=0):
        self.a, self.va = a, va
        self.slot0 = slot0
        self.xcm = xcm
        self.lds_base = lds_base
        self.TT, self.WT, self.WK, self.WF = TT, WT, WK, WF
        assert WT * WK * WF == 4
        self.segs, self.BK, self.NS, self.K = segs, BK, NS, K
        self.xsrd, self.xstride, self.s_tok0 = xsrd, xstride, s_tok0
        self.stats, self.colsum = stats, colsum
        self.tag = tag
        self.TW = TT // WT
        self.TB = self.TW // 16
        self.RB = BK * 2
        self.CPR = self.RB // 16
        self.nst = K // BK
        self.SPS = BK // 32
        self.SPW = self.SPS // WK
        assert self.SPW % 2 == 0
        self.xbytes = TT * self.RB
        off = self.xbytes
        for s in segs:
            s.lstride = 40 if s.kind == 'lin40' else s.nf * 2
            nb = BK * s.lstride
            s.ninstr = (nb + 4095) // 4096 * 4
            s.lbase = off
            off += s.ninstr * 1024
            s.FBW = (s.nf // WF) // 16
        self.stage_bytes = off
        self.nx = self.xbytes // 1024
        assert self.nx % 4 == 0
        self.ndma = self.nx // 4 + sum(s.ninstr // 4 for s in segs)
        self.lds_bytes = self.stage_bytes * NS
        (self.s_woff, self.s_kx, self.s_kw, self.s_wave, self.s_cnt, self.s_slot, self.s_kidx, self.s_dl) = sregs

    def split(self):
        a, va = self.a, self.va
        self.tmp = [va() for _ in range(6)]
        t = self.tmp
        a(f"v_lshrrev_b32 v{t[0]}, 6, v0")
        a("s_nop 0")
        a(f"v_readfirstlane_b32 s{self.s_wave}, v{t[0]}")
        a("s_nop 3")
        a(f"s_cmp_ge_u32 s{self.s_wave}, 4")
        a(f"s_cbranch_scc1 {self.tag}_loader")

    def ld_prepare(self, s_rot=None, head=True, xpol="", ops=None, v0=1):
        a = self.a
        va = self.lva = VAlloc(v0)
        t = self.lt = [va() for _ in range(6)]
        self.s_rot, self.xpol = s_rot, xpol
        self.ops = [] if ops is None else ops
        if head:
            a.label(f"{self.tag}_loader")
            a(f"v_and_b32 v0, 255, v0")
        a(f"s_and_b32 s{self.s_woff}, s{self.s_wave}, 3")
        a(f"s_lshl_b32 s{self.s_woff}, s{self.s_woff}, 10")
        lg = {8: 3, 16: 4}[self.CPR]
        v_dx = self.v_dx = va()
        if self.xcm:
            a(f"v_lshrrev_b32 v{t[1]}, {lg+4}, v0")
            a(f"v_and_b32 v{t[2]}, {self.CPR*16-1}, v0")
            a(f"v_lshlrev_b32 v{t[1]}, 4, v{t[1]}")
            a(f"v_add_u32 v{t[1]}, s{self.s_tok0}, v{t[1]}")
            a(f"v_mul_u32_u24 v{t[1]}, {self.xstride}, v{t[1]}")
            a(f"v_lshl_add_u32 v{v_dx}, v{t[2]}, 4, v{t[1]}")
        else:
            a(f"v_lshrrev_b32 v{t[1]}, {lg}, v0")
            a(f"v_and_b32 v{t[2]}, {self.CPR-1}, v0")
            if self.CPR == 8:
                a(f"v_bfe_u32 v{t[3]}, v{t[1]}, 1, 3")
            else:
                a(f"v_and_b32 v{t[3]}, 15, v{t[1]}")
            a(f"v_xor_b32 v{t[2]}, v{t[2]}, v{t[3]}")
            a(f"v_add_u32 v{t[1]}, s{self.s_tok0}, v{t[1]}")
            a(f"v_mul_u32_u24 v{t[1]}, {self.xstride}, v{t[1]}")
            a(f"v_lshl_add_u32 v{v_dx}, v{t[2]}, 4, v{t[1]}")
        done = {}
        for s in self.segs:
            key = (s.kind, s.nf)
            if key in done:
                s.v_d = done[key]
                continue
            s.v_d = []
            cprw = s.lstride // 16 if s.kind != 'lin40' else None
            for j in range(s.ninstr // 4):
                if s.kind == 'lin40' or s.img:
                    if j == 0:
                        r = va()
                        a(f"v_lshlrev_b32 v{r}, 4, v0")
                    s.v_d.append(r)
                    continue
                r = va()
                s.v_d.append(r)
                a(f"v_add_u32 v{t[0]}, {j*256}, v0")
                magic = {10: 52429, 12: 43691}[cprw]
                a(f"v_mul_u32_u24 v{t[1]}, {magic}, v{t[0]}")
                a(f"v_lshrrev_b32 v{t[1]}, 19, v{t[1]}")
                a(f"v_mul_u32_u24 v{t[2]}, {cprw}, v{t[1]}")
                a(f"v_sub_u32 v{t[2]}, v{t[0]}, v{t[2]}")
                a(f"v_and_b32 v{t[3]}, 0xfffffff3, v{t[1]}")
                a(f"v_bfe_u32 v{t[4]}, v{t[1]}, 2, 1")
                if s.kind == 'p192':
                    a(f"v_lshlrev_b32 v{t[5]}, 1, v{t[4]}")
                    a(f"v_xor_b32 v{t[2]}, v{t[2]}, v{t[5]}")
                a(f"v_lshl_or_b32 v{t[3]}, v{t[4]}, 3, v{t[3]}")
                a(f"v_bfe_u32 v{t[4]}, v{t[1]}, 3, 1")
                a(f"v_lshl_or_b32 v{t[3]}, v{t[4]}, 2, v{t[3]}")
                a(f"v_mul_u32_u24 v{t[3]}, {s.gstride}, v{t[3]}")
                a(f"v_lshl_add_u32 v{r}, v{t[2]}, 4, v{t[3]}")
                if s.colreg is not None:
                    a(f"v_add_u32 v{r}, s{s.colreg}, v{r}")
            done[key] = s.v_d
        self.lidx = LIDX[0]
        LIDX[0] += 1
        self.v_st = 196 + self.lidx

    def ld_kset(self, st):
        a = self.a
        if self.s_rot is None:
            a(f"s_mov_b32 s{self.s_kidx}, {st}")
        elif st == 0:
            a(f"s_mov_b32 s{self.s_kidx}, s{self.s_rot}")
        else:
            a(f"s_add_u32 s{self.s_kidx}, s{self.s_rot}, {st}")
            a(f"s_sub_u32 s{self.s_dl}, s{self.s_kidx}, {self.nst}")
            a(f"s_cmp_ge_u32 s{self.s_kidx}, {self.nst}")
            a(f"s_cselect_b32 s{self.s_kidx}, s{self.s_dl}, s{self.s_kidx}")

    def ld_issue(self, st, x=True, w=True):
        a = self.a
        gs = self.segs[0].gstride
        xrows = 256 // self.CPR
        slot = self.lds_base + ((st + self.slot0) % self.NS) * self.stage_bytes
        a.skip_dma = self.tag in NOLOAD
        self.ld_kset(st)
        if x:
            a(f"s_mul_i32 s{self.s_kx}, s{self.s_kidx}, {self.CPR*256 if self.xcm else self.BK*2}")
            for j in range(self.nx // 4):
                a(f"s_add_u32 m0, s{self.s_woff}, {slot + j*4096}")
                if j:
                    a(f"s_add_u32 s{self.s_kx}, s{self.s_kx}, {xrows*self.xstride}")
                else:
                    a("s_nop 0")
                a(f"buffer_load_dwordx4 v{self.v_dx}, {sr(self.xsrd,4)}, s{self.s_kx} offen {self.xpol} lds")
                self.ops.append((self.tag, st))
        if w:
            if self.segs[0].img:
                a(f"s_mul_i32 s{self.s_kw}, s{self.s_kidx}, {self.segs[0].img[1]}")
                a(f"s_add_u32 s{self.s_kw}, s{self.s_kw}, s{self.segs[0].img[0]}")
            else:
                a(f"s_mul_i32 s{self.s_kw}, s{self.s_kidx}, {self.BK*gs}")
            for s in self.segs:
                if s.gstride != gs:
                    a(f"s_mul_i32 s{self.s_kw}, s{self.s_kidx}, {self.BK*s.gstride}")
                for j, r in enumerate(s.v_d):
                    a(f"s_add_u32 m0, s{self.s_woff}, {slot + s.lbase + j*4096}")
                    if s.kind == 'lin40' or s.img:
                        a(f"s_add_u32 s{self.s_dl}, s{self.s_kw}, {j*4096 + (s.img[2] if s.img else 0)}")
                        a(f"buffer_load_dwordx4 v{r}, {sr(s.srd,4)}, s{self.s_dl} offen lds")
                    else:
                        a("s_nop 0")
                        a(f"buffer_load_dwordx4 v{r}, {sr(s.srd,4)}, s{self.s_kw} offen lds")
                    self.ops.append((self.tag, st))

    def lstamp(self, idx):
        a = self.a
        a.skip_dma = False
        if INSTR:
            a("s_memtime s[98:99]")
            a("s_waitcnt lgkmcnt(0)")
            a("s_sub_u32 s98, s98, s80")
            a(f"v_writelane_b32 v{self.v_st}, s98, {idx}")

    def ld_run(self, wdone=False, tail=None, mid=None):
        a = self.a
        ops = self.ops

        def ready(st):
            last = max(i for i, o in enumerate(ops) if o == (self.tag, st))
            n = len(ops) - 1 - last
            assert n < 64
            a(f"s_waitcnt vmcnt({n})")
            self.lstamp(st + 2)
            a("s_barrier")

        NS, nst = self.NS, self.nst
        self.lstamp(1)
        wf = not wdone
        self.ld_issue(0, w=wf)
        self.ld_issue(1, w=wf)
        ready(0)
        for st in range(2, NS):
            self.ld_issue(st, w=wf)
        for st in range(NS, nst):
            ready(st - NS + 1)
            self.ld_issue(st)
            if mid:
                mid(st)
        for st in range(nst - NS + 1, nst):
            ready(st)
            if tail:
                tail(st)
        a("s_barrier")
        if tail:
            tail(nst)

    def ld_dump(self):
        a = self.a
        if INSTR:
            lab = a.newlabel("ls")
            a(f"s_cmp_lg_u32 s2, {INSTR_WG}")
            a(f"s_cbranch_scc1 {lab}")
            a(f"s_cmp_lg_u32 s{self.s_wave}, 4")
            a(f"s_cbranch_scc1 {lab}")
            make_srd(a, 92, P_WS, WS_TL + 0x10000 + self.lidx * 256, 128)
            a(f"v_lshlrev_b32 v89, 2, v0")
            a(f"buffer_store_dword v{self.v_st}, v89, s[92:95], 0 offen")
            a("s_waitcnt vmcnt(0)")
            a.label(lab)

    def loader(self, s_rot=None, cont=None):
        a = self.a
        self.ld_prepare(s_rot)
        self.lstamp(0)
        self.ld_run()
        self.ld_dump()
        if cont is None:
            a("s_endpgm")
        else:
            cont(self.lva, self.lt)

    def setup(self):
        a, va = self.a, self.va
        t = self.tmp
        lane, i16, g, wv = va(), va(), va(), va()
        self.v_lane, self.v_i16, self.v_g, self.v_wave = lane, i16, g, wv
        a(f"v_and_b32 v{lane}, 63, v0")
        a(f"v_lshrrev_b32 v{wv}, 6, v0")
        a(f"v_and_b32 v{i16}, 15, v0")
        a(f"v_bfe_u32 v{g}, v0, 4, 2")
        wt, wo = va(), va()
        self.v_wt, self.v_wo = wt, wo
        a(f"v_and_b32 v{wt}, {self.WT-1}, v{wv}")
        sh = {1: 0, 2: 1, 4: 2}[self.WT]
        a(f"v_lshrrev_b32 v{wo}, {sh}, v{wv}")
        self.addr_regs = []
        done = {}
        for s in self.segs:
            key = (s.kind, s.nf)
            if key in done:
                s.v_a = done[key]
                continue
            if s.kind == 'lin40':
                a(f"v_lshlrev_b32 v{t[0]}, 3, v{g}")
            else:
                a(f"v_lshrrev_b32 v{t[0]}, 1, v{g}")
                a(f"v_lshlrev_b32 v{t[0]}, 4, v{t[0]}")
                a(f"v_and_b32 v{t[1]}, 1, v{g}")
                a(f"v_lshl_add_u32 v{t[0]}, v{t[1]}, 2, v{t[0]}")
            a(f"v_lshrrev_b32 v{t[1]}, 2, v{i16}")
            a(f"v_add_u32 v{t[0]}, v{t[0]}, v{t[1]}")
            if self.WK > 1:
                a(f"v_mov_b32 v{t[1]}, {self.SPW*32}")
                a(f"v_mad_u32_u24 v{t[0]}, v{wo}, v{t[1]}, v{t[0]}")
            a(f"v_mul_u32_u24 v{t[0]}, {s.lstride}, v{t[0]}")
            a(f"v_and_b32 v{t[1]}, 3, v{i16}")
            a(f"v_lshl_add_u32 v{t[0]}, v{t[1]}, 3, v{t[0]}")
            if s.kind == 'p192':
                regs = []
                for b in range(s.FBW):
                    r = va()
                    regs.append(r)
                    if self.WF > 1:
                        a(f"v_mul_u32_u24 v{t[1]}, {s.FBW}, v{wo}")
                        a(f"v_add_u32 v{t[1]}, {b}, v{t[1]}")
                    else:
                        a(f"v_mov_b32 v{t[1]}, {b}")
                    a(f"v_and_b32 v{t[2]}, 1, v{g}")
                    a(f"v_xor_b32 v{t[1]}, v{t[1]}, v{t[2]}")
                    a(f"v_lshl_add_u32 v{r}, v{t[1]}, 5, v{t[0]}")
                s.v_a = regs
                self.addr_regs += regs
            else:
                r = va()
                if self.WF > 1:
                    a(f"v_mul_u32_u24 v{t[1]}, {s.FBW*32}, v{wo}")
                    a(f"v_add_u32 v{r}, v{t[0]}, v{t[1]}")
                else:
                    a(f"v_mov_b32 v{r}, v{t[0]}")
                s.v_a = [r]
                self.addr_regs.append(r)
            done[key] = s.v_a
        self.v_b = []
        if self.xcm:
            r = va()
            self.v_b = [r] * self.SPW
            self.addr_regs.append(r)
            a(f"v_mul_u32_u24 v{t[0]}, {self.TW*self.RB}, v{wt}")
            a(f"v_lshl_add_u32 v{t[0]}, v{lane}, 4, v{t[0]}")
            if self.WK > 1:
                a(f"v_mul_u32_u24 v{t[2]}, {1024*self.SPW}, v{wo}")
                a(f"v_add_u32 v{r}, v{t[0]}, v{t[2]}")
            else:
                a(f"v_mov_b32 v{r}, v{t[0]}")
        self.swapb = self.WK == 2
        a(f"v_mul_u32_u24 v{t[0]}, {self.TW}, v{wt}")
        a(f"v_add_u32 v{t[0]}, v{t[0]}, v{i16}")
        if self.CPR == 8:
            a(f"v_bfe_u32 v{t[1]}, v{t[0]}, 1, 3")
        else:
            a(f"v_and_b32 v{t[1]}, 15, v{t[0]}")
        a(f"v_mul_u32_u24 v{t[0]}, {self.RB}, v{t[0]}")
        for ls in range(self.SPW if not self.xcm else 0):
            r = va()
            self.v_b.append(r)
            self.addr_regs.append(r)
            if self.WK > 1:
                a(f"v_mul_u32_u24 v{t[2]}, {4*self.SPW}, v{wo}")
                a(f"v_add3_u32 v{t[2]}, v{t[2]}, v{g}, {4*ls}")
            else:
                a(f"v_add_u32 v{t[2]}, {4*ls}, v{g}")
            a(f"v_xor_b32 v{t[2]}, v{t[2]}, v{t[1]}")
            a(f"v_lshl_add_u32 v{r}, v{t[2]}, 4, v{t[0]}")
        if self.swapb:
            assert self.TB == 2
            m = {}
            a(f"v_mul_u32_u24 v{t[2]}, {16*self.RB}, v{wo}")
            a(f"v_sub_u32 v{t[3]}, {16*self.RB}, v{t[2]}")
            for r in self.v_b:
                if r not in m:
                    m[r] = va()
                    self.addr_regs.append(m[r])
                    a(f"v_add_u32 v{m[r]}, v{t[3]}, v{r}")
                    a(f"v_add_u32 v{r}, v{t[2]}, v{r}")
            self.v_b2 = [m[r] for r in self.v_b]
        if self.lds_base:
            for r in self.addr_regs:
                a(f"v_add_u32 v{r}, {self.lds_base + self.slot0*self.stage_bytes}, v{r}")
        self.nA = sum(s.FBW for s in self.segs)
        self.fa = [va(4 * self.nA, 4) for _ in range(2)]
        self.fb = [va(4 * self.TB, 4) for _ in range(2)]
        self.acc = [[va(4, 4) for _ in range(self.nA)] for _ in range(self.TB)]
        accs = [r for row in self.acc for r in row]
        if self.stats or self.colsum:
            self.v_ones = va(4, 4)
            for i in range(4):
                a(f"v_mov_b32 v{self.v_ones+i}, 0x3f803f80")
        if self.stats:
            self.acc_sum = [va(4, 4) for _ in range(self.TB)]
            self.acc_sq = [va(4, 4) for _ in range(self.TB)]
            accs += self.acc_sum + self.acc_sq
        if self.colsum:
            self.acc_cs = [va(4, 4) for _ in range(self.nA)]
            accs += self.acc_cs
        for r in accs:
            for i in range(4):
                a(f"v_mov_b32 v{r+i}, 0")

    def read_units(self, ls, buf):
        units = []
        fi = 0
        for s in self.segs:
            for b in range(s.FBW):
                for e in range(2):
                    if s.kind == 'lin40':
                        off = s.lbase + (ls * 32 + 4 * e) * 40 + b * 32
                        ar = s.v_a[0]
                    elif s.kind == 'p192':
                        off = s.lbase + (ls * 32 + 8 * e) * s.lstride
                        ar = s.v_a[b]
                    else:
                        off = s.lbase + (ls * 32 + 8 * e) * s.lstride + b * 32
                        ar = s.v_a[0]
                    assert off < 65536
                    d = self.fa[buf] + 4 * fi + 2 * e
                    units.append([f"ds_read_b64_tr_b16 {vr(d,2)}, v{ar} offset:{off}"])
                fi += 1
        for tb in range(self.TB):
            off = tb * 16 * self.RB + (ls * 1024 if self.xcm else 0)
            d = self.fb[buf] + 4 * tb
            ar = self.v_b[ls]
            if self.swapb and tb:
                off -= 16 * self.RB
                ar = self.v_b2[ls]
            units.append([f"ds_read_b128 {vr(d,4)}, v{ar} offset:{off}"])
        return units[-self.TB:] + units[:-self.TB]

    def mfmas(self, buf):
        out = []
        for fi in range(self.nA):
            A = vr(self.fa[buf] + 4 * fi, 4)
            for tb in range(self.TB):
                B = vr(self.fb[buf] + 4 * tb, 4)
                c = vr(self.acc[tb][fi], 4)
                out.append(f"v_mfma_f32_16x16x32_bf16 {c}, {A}, {B}, {c}")
            if self.colsum:
                c = vr(self.acc_cs[fi], 4)
                out.append(f"v_mfma_f32_16x16x32_bf16 {c}, {A}, {vr(self.v_ones,4)}, {c}")
        if self.stats:
            for tb in range(self.TB):
                B = vr(self.fb[buf] + 4 * tb, 4)
                c = vr(self.acc_sum[tb], 4)
                out.append(f"v_mfma_f32_16x16x32_bf16 {c}, {vr(self.v_ones,4)}, {B}, {c}")
                c = vr(self.acc_sq[tb], 4)
                out.append(f"v_mfma_f32_16x16x32_bf16 {c}, {B}, {B}, {c}")
        return out

    def ld_ready(self, st):
        ops = self.ops
        last = max(i for i, o in enumerate(ops) if o == (self.tag, st))
        n = len(ops) - 1 - last
        assert n < 64
        self.a(f"s_waitcnt vmcnt({n})")
        self.lstamp(st + 2)
        self.a("s_barrier")

    def mainloop(self, post_first=None, pre_bar=None):
        a = self.a
        a(f"s_mov_b32 s{self.s_cnt}, {self.nst}")
        a(f"s_mov_b32 s{self.s_slot}, {self.slot0*self.stage_bytes}")
        a("s_barrier")
        if post_first:
            post_first()
        for u in self.read_units(0, 0):
            for l in u:
                a(l)
        lp = f"{self.tag}_loop"
        a.label(lp)
        for ls in range(self.SPW):
            buf = ls & 1
            a("s_waitcnt lgkmcnt(0)")
            mf = self.mfmas(buf)
            if ls == self.SPW - 1:
                a(mf[0])
                mf = mf[1:]
                if pre_bar:
                    pre_bar()
                a("s_barrier")
                fill = self.read_units(0, buf ^ 1)
                fill.append([f"s_sub_u32 s{self.s_cnt}, s{self.s_cnt}, 1", f"s_cmp_lg_u32 s{self.s_cnt}, 0"])
            else:
                fill = self.read_units(ls + 1, buf ^ 1)
                if ls == self.SPW - 2:
                    fill.append([f"s_mov_b32 s{self.s_dl}, s{self.s_slot}",
                                 f"s_add_u32 s{self.s_slot}, s{self.s_slot}, {self.stage_bytes}"])
                    fill.append([f"s_cmp_ge_u32 s{self.s_slot}, {self.lds_bytes}",
                                 f"s_cselect_b32 s{self.s_slot}, 0, s{self.s_slot}",
                                 f"s_sub_u32 s{self.s_dl}, s{self.s_slot}, s{self.s_dl}"])
                    for r in self.addr_regs:
                        fill.append([f"v_add_u32 v{r}, s{self.s_dl}, v{r}"])
            for l in interleave(mf, fill, len(self.read_units(0, 0))):
                a(l)
        a(f"s_cbranch_scc1 {lp}")
        a("s_waitcnt vmcnt(0) lgkmcnt(0)")


P_X, P_WQ, P_WK, P_WV, P_WO, P_BX, P_WG, P_WU, P_WD, P_OUT, P_DBG, P_WS = [16 + 2 * i for i in range(12)]
SRD0, SRD1, SRD2, SRD3, SRD4, SRD5 = 40, 44, 48, 52, 56, 60
S_WOFF, S_KX, S_KW, S_WAVE = 64, 65, 66, 67
S_TOK0, S_COL, S_T0, S_T1, S_T2 = 68, 69, 70, 71, 72
S_CNT_, S_SLOT_, S_KIDX, S_DL, S_ROT = 76, 77, 78, 79, 73
GS = (S_WOFF, S_KX, S_KW, S_WAVE, S_CNT_, S_SLOT_, S_KIDX, S_DL)


def load_kernargs(a):
    if INSTR:
        for i in range(84, 98):
            a(f"s_mov_b32 s{i}, 0")
        a("s_memtime s[80:81]")
        a("s_memrealtime s[82:83]")
    a("s_load_dwordx16 s[16:31], s[0:1], 0")
    a("s_load_dwordx8 s[32:39], s[0:1], 64")


RT = [int(x) for x in os.environ.get("RT", "0,1,2").split(",")]
def rstamp(a, idx):
    if INSTR and idx in RT:
        a("s_memrealtime s[98:99]")
        a("s_waitcnt lgkmcnt(0)")
        a(f"s_mov_b32 s{(3, 7, 15)[RT.index(idx)]}, s98")


P1ST = bool(os.environ.get("P1ST"))
def stamp(a, idx, p1=False):
    if INSTR and (p1 == P1ST or idx < 4):
        a("s_memtime s[98:99]")
        a("s_waitcnt lgkmcnt(0)")
        a(f"s_sub_u32 s{84+idx}, s98, s80")


def stamp_end(a, n, wg=None):
    if INSTR:
        lab = a.newlabel("se")
        a("s_mov_b64 exec, -1")
        a("s_waitcnt vmcnt(0)")
        a("s_memtime s[98:99]")
        a("s_memrealtime s[100:101]")
        a("s_waitcnt lgkmcnt(0)")
        a(f"s_sub_u32 s{84+n}, s98, s80")
        a(f"s_sub_u32 s{85+n}, s100, s82")
        lab2 = a.newlabel("se")
        a(f"s_cmp_lg_u32 s{S_WAVE}, 0")
        a(f"s_cbranch_scc1 {lab2}")
        make_srd(a, 40, P_WS, WS_TL + KIDX[0] * 4096, 4096)
        a("s_getreg_b32 s98, hwreg(HW_REG_XCC_ID)")
        a("s_and_b32 s98, s98, 7")
        a("s_andn2_b32 s100, s100, 7")
        a("s_or_b32 s100, s100, s98")
        a("v_mov_b32 v2, s82")
        a("v_mov_b32 v3, s100")
        a("s_lshl_b32 s98, s2, 3")
        a("v_mov_b32 v1, s98")
        a("buffer_store_dwordx2 v[2:3], v1, s[40:43], 0 offen")
        make_srd(a, 40, P_WS, WS_TL + 2 * 4096, 4096)
        a("v_mov_b32 v3, s3")
        a("v_mov_b32 v4, s7")
        a("v_mov_b32 v5, s15")
        a("v_lshlrev_b32 v1, 1, v1")
        a("buffer_store_dwordx4 v[2:5], v1, s[40:43], 0 offen")
        a.label(lab2)
        a(f"s_cmp_lg_u32 s2, {INSTR_WG if wg is None else wg}")
        a(f"s_cbranch_scc1 {lab}")
        a(f"s_cmp_lg_u32 s{S_WAVE}, 0")
        a(f"s_cbranch_scc1 {lab}")
        make_srd(a, 40, P_DBG, 0, 256)
        a("v_mov_b32 v1, 0")
        for i in range(14):
            a(f"v_mov_b32 v2, s{84+i}")
            a(f"buffer_store_dword v2, v1, s[40:43], 0 offen offset:{4*i}")
        a.label(lab)
INSTR_WG = int(os.environ.get("INSTR_WG", "100"))


def round_bf16(a, dst, src):
    a(f"v_cvt_pk_bf16_f32 v{dst}, v{src}, v{src}")
    a(f"v_lshlrev_b32 v{dst}, 16, v{dst}")


def ln_stats(a, v_sum, v_sq, v_mean, v_rstd, t):
    a(f"v_mul_f32 v{v_mean}, {f32(1.0/D)}, v{v_sum}")
    a(f"v_mul_f32 v{t[0]}, {f32(1.0/D)}, v{v_sq}")
    a(f"v_fma_f32 v{t[0]}, -v{v_mean}, v{v_mean}, v{t[0]}")
    a(f"v_max_f32 v{t[0]}, 0, v{t[0]}")
    round_bf16(a, v_mean, v_mean)
    round_bf16(a, t[0], t[0])
    a(f"v_add_f32 v{t[0]}, {f32(1e-5)}, v{t[0]}")
    round_bf16(a, t[0], t[0])
    a(f"v_sqrt_f32 v{t[0]}, v{t[0]}")
    a("s_nop 0")
    round_bf16(a, t[0], t[0])
    a(f"v_rcp_f32 v{v_rstd}, v{t[0]}")
    a("s_nop 0")


def gram_diag(a, g, acc_sq, dst):
    t = g.tmp
    a(f"v_and_b32 v{t[0]}, 3, v{g.v_i16}")
    a(f"v_mov_b32 v{t[1]}, v{acc_sq}")
    for r in range(1, 4):
        a(f"v_cmp_eq_u32 vcc, {r}, v{t[0]}")
        a("s_nop 1")
        a(f"v_cndmask_b32 v{t[1]}, v{t[1]}, v{acc_sq+r}, vcc")
    a(f"v_lshrrev_b32 v{t[0]}, 2, v{g.v_i16}")
    a(f"v_lshl_add_u32 v{t[0]}, v{t[0]}, 4, v{g.v_i16}")
    a(f"v_lshlrev_b32 v{t[0]}, 2, v{t[0]}")
    a(f"ds_bpermute_b32 v{dst}, v{t[0]}, v{t[1]}")
    a("s_waitcnt lgkmcnt(0)")


def xlane_add(a, v, v_lane, t0, t1, masks, op="v_add_f32"):
    for m in masks:
        a(f"v_xor_b32 v{t0}, {m}, v{v_lane}")
        a(f"v_lshlrev_b32 v{t0}, 2, v{t0}")
        a(f"ds_bpermute_b32 v{t1}, v{t0}, v{v}")
        a("s_waitcnt lgkmcnt(0)")
        a(f"{op} v{v}, v{v}, v{t1}")


QSCALE = (DH ** -0.5) * 1.4426950408889634


def prefetch_lin(a, v_tid, v_t, v_dummy, srd, s_base, s_j, nlines, s_tmp, nthreads=256):
    a(f"s_mul_i32 s{s_tmp}, s{s_j}, {nlines*128}")
    if s_base is not None:
        a(f"s_add_u32 s{s_tmp}, s{s_tmp}, s{s_base}")
    a(f"v_lshlrev_b32 v{v_t}, 7, v{v_tid}")
    n = (nlines + nthreads - 1) // nthreads
    for i in range(n):
        if i:
            a(f"s_add_u32 s{s_tmp}, s{s_tmp}, {nthreads*128}")
        a(f"buffer_load_dword v{v_dummy}, v{v_t}, {sr(srd,4)}, s{s_tmp} offen")

S_J, S_XB, S_IMG = 12, 13, 14

def dpp_rowmax(a, v):
    for n in (1, 2, 4, 8):
        a("s_nop 1")
        a(f"v_max_f32_dpp v{v}, v{v}, v{v} row_shr:{n} row_mask:0xf bank_mask:0xf bound_ctrl:0")


def swap_add(a, v, t, which):
    a(f"v_mov_b32 v{t}, v{v}")
    a("s_nop 1")
    a(f"v_permlane{which}_swap_b32 v{v}, v{t}")
    a("s_nop 1")
    a(f"v_add_f32 v{v}, v{v}, v{t}")


def gen_k1(a):
    name = "k1_qkv_kernel"
    kernel_begin(a, name)
    a("s_cmp_ge_u32 s2, 256")
    a("s_cbranch_scc1 k1_end")
    load_kernargs(a)
    a(f"s_and_b32 s{S_T1}, s2, 7")
    a(f"s_lshr_b32 s{S_T0}, s2, 3")
    a(f"s_mul_i32 s{S_ROT}, s{S_T0}, 52")
    a(f"s_lshr_b32 s{S_ROT}, s{S_ROT}, 8")
    a(f"s_mul_i32 s{S_ROT}, s{S_ROT}, 5")
    a(f"s_sub_u32 s{S_ROT}, s{S_T0}, s{S_ROT}")
    if os.environ.get("K0ROT", "0") == "0":
        a(f"s_mov_b32 s{S_ROT}, 0")
    a(f"s_lshr_b32 s{S_T2}, s{S_T0}, 3")
    a(f"s_lshl_b32 s{S_T1}, s{S_T1}, 2")
    a(f"s_add_u32 s{S_XB}, s{S_T1}, s{S_T2}")
    a(f"s_lshl_b32 s{S_TOK0}, s{S_XB}, 6")
    a(f"s_and_b32 s{S_J}, s{S_T0}, 7")
    a(f"s_mul_i32 s{S_COL}, s{S_J}, 160")
    a("s_waitcnt lgkmcnt(0)")
    make_srd(a, SRD0, P_X, 0, S * D * 2)
    make_srd(a, SRD1, P_WQ, 0, D * D * 2)
    make_srd(a, SRD2, P_WS, WS_Q, S * D * 2)
    a(f"s_cmp_lt_u32 s{S_J}, 2")
    a("s_cbranch_scc1 k1_b")
    maxv = 8
    lds = 0

    def q_epilogue(g, va):
        t = g.tmp
        v_mean, v_rstd, v_sq, v_ad, v_rq, v_tok = va(), va(), va(), va(), va(), va()
        nA = g.nA
        nx = 2 * nA + 2
        a(f"v_mul_u32_u24 v{t[0]}, {nx*1024}, v{g.v_wave}")
        a(f"v_lshl_add_u32 v{t[0]}, v{g.v_lane}, 4, v{t[0]}")
        a(f"v_xor_b32 v{t[1]}, 2, v{g.v_wave}")
        a(f"v_mul_u32_u24 v{t[1]}, {nx*1024}, v{t[1]}")
        a(f"v_lshl_add_u32 v{t[1]}, v{g.v_lane}, 4, v{t[1]}")
        a(f"v_lshl_add_u32 v{v_tok}, v{g.v_wt}, 1, v{g.v_wo}")
        a(f"v_lshl_add_u32 v{v_tok}, v{v_tok}, 4, v{g.v_i16}")
        a(f"v_add_u32 v{v_tok}, s{S_TOK0}, v{v_tok}")
        a("s_nop 3")
        keep = g.acc[0] + [g.acc_sum[0], g.acc_sq[0]]
        send = g.acc[1] + [g.acc_sum[1], g.acc_sq[1]]
        skip = a.newlabel("xs")
        a(f"s_cmp_lt_u32 s{S_WAVE}, 2")
        a(f"s_cbranch_scc1 {skip}")
        for k_, s_ in zip(keep, send):
            for r in range(4):
                a(f"v_swap_b32 v{k_+r}, v{s_+r}")
        a.label(skip)
        for i, r in enumerate(send + g.acc_cs):
            a(f"ds_write_b128 v{t[0]}, {vr(r,4)} offset:{i*1024}")
        a("s_waitcnt lgkmcnt(0)")
        a("s_barrier")
        csx = [g.fa[0] + 4 * i for i in range(nA)]
        order = [nA, nA + 1] + list(range(nA))
        for i in order:
            a(f"ds_read_b128 {vr(send[i],4)}, v{t[1]} offset:{i*1024}")
            if i < nA:
                a(f"ds_read_b128 {vr(csx[i],4)}, v{t[1]} offset:{(nA+2+i)*1024}")
        a(f"v_mul_u32_u24 v{t[2]}, {D*2}, v{v_tok}")
        a(f"v_lshl_add_u32 v{v_ad}, v{g.v_g}, 3, v{t[2]}")
        a(f"v_add_u32 v{v_ad}, s{S_COL}, v{v_ad}")
        a(f"s_waitcnt lgkmcnt({2*nA})")
        a(f"v_add_f32 v{keep[nA]}, v{keep[nA]}, v{send[nA]}")
        for r in range(4):
            a(f"v_add_f32 v{keep[nA+1]+r}, v{keep[nA+1]+r}, v{send[nA+1]+r}")
        gram_diag(a, g, g.acc_sq[0], v_sq)
        ln_stats(a, g.acc_sum[0], v_sq, v_mean, v_rstd, g.tmp)
        a(f"v_mul_f32 v{v_rq}, {f32(QSCALE)}, v{v_rstd}")
        for fb in range(nA):
            c, cs = g.acc[0][fb], g.acc_cs[fb]
            for r in range(4):
                a(f"v_add_f32 v{c+r}, v{c+r}, v{send[fb]+r}")
                a(f"v_add_f32 v{cs+r}, v{cs+r}, v{csx[fb]+r}")
                a(f"v_fma_f32 v{c+r}, -v{v_mean}, v{cs+r}, v{c+r}")
                a(f"v_mul_f32 v{c+r}, v{c+r}, v{v_rq if fb < 5 else v_rstd}")
            a(f"v_cvt_pk_bf16_f32 v{c}, v{c}, v{c+1}")
            a(f"v_cvt_pk_bf16_f32 v{c+1}, v{c+2}, v{c+3}")
            if fb < 5:
                a(f"buffer_store_dwordx2 {vr(c,2)}, v{v_ad}, {sr(SRD2,4)}, 0 offen offset:{fb*32}")
        return v_tok

    def colsum(lva, lt):
        a.label("k1_cs")
        cva = VAlloc(8)
        lt = [cva() for _ in range(4)]
        csb = cva(40, 4)
        cacc = cva(8, 4)
        v_ca, v_l = cva(), cva()
        S_U, S_SRC, S_DST = S_T0, S_T1, S_KW
        a(f"s_sub_u32 s{S_U}, s{S_WAVE}, 4")
        a(f"s_lshl_b32 s{S_U}, s{S_U}, 8")
        a(f"s_add_u32 s{S_T2}, s{S_U}, s2")
        a(f"s_cmp_eq_u32 s{S_T2}, 768")
        a("s_cbranch_scc1 k1_zero")
        a(f"s_cmp_ge_u32 s{S_T2}, {48*NCS}")
        a("s_cbranch_scc1 k1_end")
        a(f"s_mul_i32 s{S_U}, s{S_T2}, 1366")
        a(f"s_lshr_b32 s{S_U}, s{S_U}, 16")
        a(f"s_mul_i32 s{S_SRC}, s{S_U}, 48")
        a(f"s_sub_u32 s{S_SRC}, s{S_T2}, s{S_SRC}")
        a(f"s_cmp_lt_u32 s{S_SRC}, 24")
        a(f"s_cselect_b32 s{SRD0}, s{P_WG}, s{P_WU}")
        a(f"s_cselect_b32 s{SRD0+1}, s{P_WG+1}, s{P_WU+1}")
        a(f"s_mov_b32 s{SRD0+2}, {F*D*2}")
        a(f"s_cselect_b32 s{S_DST}, 0, 24")
        a(f"s_sub_u32 s{S_SRC}, s{S_SRC}, s{S_DST}")
        a(f"s_lshl_b32 s{S_SRC}, s{S_SRC}, 7")
        a(f"s_mul_i32 s{S_U}, s{S_U}, {80*F*2}")
        a(f"s_add_u32 s{S_SRC}, s{S_SRC}, s{S_U}")
        a(f"v_and_b32 v{v_l}, 63, v0")
        a(f"v_lshrrev_b32 v{lt[0]}, 3, v{v_l}")
        a(f"v_mul_u32_u24 v{lt[0]}, {F*2}, v{lt[0]}")
        a(f"v_and_b32 v{lt[1]}, 7, v{v_l}")
        a(f"v_lshl_add_u32 v{v_ca}, v{lt[1]}, 4, v{lt[0]}")
        for i in range(10):
            a(f"buffer_load_dwordx4 {vr(csb+4*i,4)}, v{v_ca}, {sr(SRD0,4)}, s{S_SRC} offen")
            a(f"s_add_u32 s{S_SRC}, s{S_SRC}, {8*F*2}")
        a(f"v_lshrrev_b32 v{lt[0]}, 4, v{v_l}")
        a(f"v_lshlrev_b32 v{lt[0]}, 3, v{lt[0]}")
        a(f"v_lshl_add_u32 v{v_ca}, v{lt[1]}, 5, v{lt[0]}")
        make_srd(a, SRD3, P_WS, WS_CS, NCS * 3072 * 4)
        a(f"s_lshl_b32 s{S_T2}, s{S_T2}, 8")
        a("s_barrier")
        for i in range(10):
            a(f"s_waitcnt vmcnt({9-i})")
            for j in range(4):
                if i == 0:
                    a(f"v_lshlrev_b32 v{cacc+2*j}, 16, v{csb+j}")
                    a(f"v_and_b32 v{cacc+2*j+1}, 0xffff0000, v{csb+j}")
                else:
                    a(f"v_lshlrev_b32 v{lt[0]}, 16, v{csb+4*i+j}")
                    a(f"v_and_b32 v{lt[1]}, 0xffff0000, v{csb+4*i+j}")
                    a(f"v_add_f32 v{cacc+2*j}, v{cacc+2*j}, v{lt[0]}")
                    a(f"v_add_f32 v{cacc+2*j+1}, v{cacc+2*j+1}, v{lt[1]}")
        a("s_nop 1")
        for j in range(4):
            a(f"v_permlane32_swap_b32 v{cacc+j}, v{cacc+4+j}")
        a("s_nop 1")
        for j in range(4):
            a(f"v_add_f32 v{cacc+j}, v{cacc+j}, v{cacc+4+j}")
        a("s_nop 1")
        for j in range(2):
            a(f"v_permlane16_swap_b32 v{cacc+j}, v{cacc+2+j}")
        a("s_nop 1")
        for j in range(2):
            a(f"v_add_f32 v{cacc+j}, v{cacc+j}, v{cacc+2+j}")
        a("s_nop 1")
        for j in range(2):
            a(f"v_add_f32_dpp v{cacc+j}, v{cacc+j}, v{cacc+j} row_ror:8 row_mask:0xf bank_mask:0xf")
        a(f"buffer_store_dwordx2 {vr(cacc,2)}, v{v_ca}, {sr(SRD3,4)}, s{S_T2} offen")
        a.label("k1_end")
        a("s_endpgm")
        a.label("k1_zero")
        make_srd(a, SRD3, P_WS, WS_CNT, 32768)
        a(f"v_and_b32 v{v_l}, 63, v0")
        a(f"v_lshlrev_b32 v{v_l}, 8, v{v_l}")
        a(f"v_mov_b32 v{lt[0]}, 0")
        a(f"buffer_store_dword v{lt[0]}, v{v_l}, {sr(SRD3,4)}, 0 offen")
        a(f"s_mov_b32 s{S_T2}, 16384")
        a(f"buffer_store_dword v{lt[0]}, v{v_l}, {sr(SRD3,4)}, s{S_T2} offen")
        a("s_endpgm")
        pre['n'] = cva.n
    pre = {}

    va = VAlloc(1)
    seg = Seg(SRD1, D * 2, 80, 'p160', S_COL)
    g = Gemm(a, va, 64, 2, 2, 1, [seg], 128, 4, D, SRD0, D * 2, S_TOK0, stats=True, colsum=True, sregs=GS, tag="k1q")
    g.split()
    g.setup()
    stamp(a, 0)
    g.mainloop()
    stamp(a, 1)
    lds = max(lds, g.lds_bytes)
    q_epilogue(g, va)
    stamp_end(a, 2)
    a("s_endpgm")
    maxv = max(maxv, va.n)
    g.loader(S_ROT, cont=colsum)
    maxv = max(maxv, pre['n'])

    a.label("k1_b")
    va = VAlloc(1)
    a(f"s_cmp_eq_u32 s{S_J}, 0")
    a(f"s_cselect_b32 s{SRD3}, s{P_WK}, s{P_WV}")
    a(f"s_cselect_b32 s{SRD3+1}, s{P_WK+1}, s{P_WV+1}")
    a(f"s_mov_b32 s{SRD3+2}, {D*DH*2}")
    a(f"s_mov_b32 s{SRD3+3}, 0x00020000")
    make_srd(a, SRD4, P_WS, WS_KV, KV_SZ)
    make_srd(a, SRD5, P_WS, WS_KN, 512)
    seg = Seg(SRD1, D * 2, 80, 'p160', S_COL)
    sk = Seg(SRD3, 40, 32, 'lin40')
    g = Gemm(a, va, 64, 2, 2, 1, [seg, sk], 128, 3, D, SRD0, D * 2, S_TOK0, stats=True, colsum=True, sregs=GS, tag="k1kv")
    g.split()
    g.setup()
    stamp(a, 0)
    g.mainloop()
    stamp(a, 1)
    lds = max(lds, g.lds_bytes)
    v_key = q_epilogue(g, va)
    v_ak, v_n = va(), va()
    t = g.tmp
    k0, k1 = g.acc[0][5], g.acc[0][6]
    a(f"v_cmp_eq_u32 vcc, 0, v{g.v_g}")
    a(f"v_lshrrev_b32 v{t[0]}, 5, v{v_key}")
    a(f"v_mul_u32_u24 v{t[0]}, 2560, v{t[0]}")
    a(f"v_and_b32 v{t[1]}, 31, v{v_key}")
    a(f"s_cmp_lg_u32 s{S_J}, 0")
    a("s_cbranch_scc1 k1_v")
    a(f"v_lshl_add_u32 v{v_ak}, v{t[1]}, 4, v{t[0]}")
    a(f"v_lshrrev_b32 v{t[2]}, 1, v{g.v_g}")
    a(f"v_lshl_add_u32 v{v_ak}, v{t[2]}, 9, v{v_ak}")
    a(f"v_and_b32 v{t[2]}, 1, v{g.v_g}")
    a(f"v_lshl_add_u32 v{v_ak}, v{t[2]}, 3, v{v_ak}")
    a(f"buffer_store_dwordx2 {vr(k0,2)}, v{v_ak}, {sr(SRD4,4)}, 0 offen")
    a(f"v_lshl_add_u32 v{v_key}, v{t[1]}, 3, v{t[0]}")
    a(f"v_cndmask_b32 v{k1}, 0, v{k1}, vcc")
    a(f"v_cndmask_b32 v{k1+1}, 0, v{k1+1}, vcc")
    a("s_and_saveexec_b64 s[74:75], vcc")
    a(f"buffer_store_dwordx2 {vr(k1,2)}, v{v_key}, {sr(SRD4,4)}, 0 offen offset:1024")
    a("s_mov_b64 exec, -1")
    a(f"v_mov_b32 v{v_n}, 0")
    for c in (k0, k0 + 1, k1, k1 + 1):
        a(f"v_lshlrev_b32 v{t[0]}, 16, v{c}")
        a(f"v_and_b32 v{t[1]}, 0xffff0000, v{c}")
        a(f"v_fma_f32 v{v_n}, v{t[0]}, v{t[0]}, v{v_n}")
        a(f"v_fma_f32 v{v_n}, v{t[1]}, v{t[1]}, v{v_n}")
    swap_add(a, v_n, t[0], 32)
    swap_add(a, v_n, t[0], 16)
    dpp_rowmax(a, v_n)
    a(f"s_lshl_b32 s{S_T0}, s{S_XB}, 2")
    a(f"s_add_u32 s{S_T0}, s{S_T0}, s{S_WAVE}")
    a(f"s_lshl_b32 s{S_T0}, s{S_T0}, 2")
    a(f"v_mov_b32 v{t[0]}, 0")
    a("s_mov_b64 exec, 0x8000")
    a(f"buffer_store_dword v{v_n}, v{t[0]}, {sr(SRD5,4)}, s{S_T0} offen")
    stamp_end(a, 2)
    a("s_endpgm")
    a.label("k1_v")
    a(f"v_bfe_u32 v{t[2]}, v{t[1]}, 4, 1")
    a(f"v_mad_u32_u24 v{v_ak}, v{t[2]}, 640, v{t[0]}" if False else f"v_mul_u32_u24 v{t[2]}, 640, v{t[2]}")
    a(f"v_add_u32 v{v_ak}, v{t[2]}, v{t[0]}")
    a(f"v_bfe_u32 v{t[2]}, v{t[1]}, 2, 1")
    a(f"v_mul_u32_u24 v{t[2]}, 320, v{t[2]}")
    a(f"v_add_u32 v{v_ak}, v{t[2]}, v{v_ak}")
    a(f"v_bfe_u32 v{t[2]}, v{t[1]}, 3, 1")
    a(f"v_lshl_add_u32 v{v_ak}, v{t[2]}, 3, v{v_ak}")
    a(f"v_and_b32 v{t[2]}, 3, v{t[1]}")
    a(f"v_lshl_add_u32 v{v_ak}, v{t[2]}, 1, v{v_ak}")
    a(f"v_lshl_add_u32 v{v_ak}, v{g.v_g}, 6, v{v_ak}")
    for fb, c in enumerate((k0, k1)):
        if fb:
            a("s_and_saveexec_b64 s[74:75], vcc")
        for p in range(2):
            o = 1280 + fb * 256 + p * 32
            a(f"buffer_store_short v{c+p}, v{v_ak}, {sr(SRD4,4)}, 0 offen offset:{o}")
            a(f"buffer_store_short_d16_hi v{c+p}, v{v_ak}, {sr(SRD4,4)}, 0 offen offset:{o+16}")
    stamp_end(a, 2)
    a("s_endpgm")
    maxv = max(maxv, va.n)
    g.loader(S_ROT, cont=lambda lva, lt: a("s_branch k1_cs"))

    kernel_end(a, name, maxv)
    return (name, 256, 512, lds)


QB = 53248
MX, MW, MS = 0, 20480, 49152
QST, KMX = 102400, 112640
S_HOOK, S_KVC = 15, 7
CNT_KV = 80
LOC = int(os.environ.get("LOC", "7"))
FLAG = 128


def p1_compute(a, tmp, v_first, v_alias, init):
    va = VAlloc(v_first)
    seg = Seg(SRD1, D * 2, 80, 'p160', S_COL)
    g = Gemm(a, va, 64, 2, 2, 1, [seg], 128, 4, D, SRD0, D * 2, S_TOK0, stats=True, colsum=True, sregs=GS, tag="k1q",
             lds_base=QB - 36864, slot0=1)
    assert g.lds_base + g.lds_bytes <= KV_SZ and g.stage_bytes == 36864
    g.tmp = tmp
    t = g.tmp
    make_srd(a, SRD5, P_DBG, 0, 256)
    make_srd(a, SRD3, P_WS, WS_KN, 512)
    fr = v_alias
    mac = [v_alias + 16 + 4 * i for i in range(6)]
    v_mx, v_mw, v_mp, v_fl, v_z, v_one, v_fa, v_ad = [v_alias + 40 + i for i in range(8)]
    v_mean = va(2, 2)
    v_rstd = v_mean + 1
    v_sq, v_xw, v_xr, v_xc, v_qw = [va() for _ in range(5)]
    a(f"v_mov_b32 v{v_z}, 0")
    a(f"v_mov_b32 v{v_one}, 1")
    lab = a.newlabel("bz")
    a(f"s_lshl_b32 s{S_T1}, s2, 2")
    a(f"s_add_u32 s{S_T1}, s{S_T1}, s{S_WAVE}")
    a(f"s_cmp_lg_u32 s{S_T1}, 3")
    a(f"s_cbranch_scc1 {lab}")
    a(f"v_and_b32 v{t[0]}, 63, v0")
    a(f"v_lshlrev_b32 v{t[0]}, 8, v{t[0]}")
    for i in range(4):
        a(f"v_mov_b32 v{fr+i}, 0")
    a(f"s_mov_b32 s{S_T2}, 16384")
    a(f"buffer_store_dwordx4 {vr(fr,4)}, v{t[0]}, {sr(SRDC,4)}, 0 offen sc1")
    if LOC:
        a(f"buffer_store_dwordx4 {vr(fr,4)}, v{t[0]}, {sr(SRDC,4)}, 0 offen offset:128 sc1")
    a(f"buffer_store_dwordx4 {vr(fr,4)}, v{t[0]}, {sr(SRDC,4)}, s{S_T2} offen sc1")
    a("s_mov_b64 exec, 1")
    a("s_waitcnt vmcnt(0)")
    a(f"buffer_store_dword v{v_one}, v{v_z}, {sr(SRD5,4)}, 0 offen offset:{FLAG} sc1")
    a("s_mov_b64 exec, -1")
    a.label(lab)
    g.setup()
    assert g.fb[1] + 8 == g.fa[0] + 56
    fq = [fr + 4 * i for i in range(4)] + [g.fa[0] + 4 * i for i in range(14)]
    a(f"s_cmp_eq_u32 s{S_WAVE}, 0")
    a(f"s_cselect_b32 s{S_HOOK}, 2, 0")
    a(f"s_and_b32 s{S_KVC}, s2, 15")
    a(f"s_lshl_b32 s{S_KVC}, s{S_KVC}, 8")
    a(f"s_add_u32 s{S_KVC}, s{S_KVC}, {96*256}")
    a(f"v_lshlrev_b32 v{v_fa}, 8, v{g.v_lane}")
    a(f"v_mul_u32_u24 v{t[0]}, 5120, v{g.v_wave}")
    a(f"v_lshl_add_u32 v{v_mx}, v{g.v_lane}, 4, v{t[0]}")
    a(f"v_mul_u32_u24 v{t[0]}, 6400, v{g.v_wave}")
    a(f"v_add_u32 v{t[0]}, {MW}, v{t[0]}")
    a(f"v_lshl_add_u32 v{v_mp}, v{g.v_lane}, 4, v{t[0]}")
    a(f"v_lshrrev_b32 v{t[1]}, 2, v{g.v_i16}")
    a(f"v_lshl_add_u32 v{t[1]}, v{g.v_g}, 3, v{t[1]}")
    a(f"v_mad_u32_u24 v{t[0]}, v{t[1]}, 40, v{t[0]}")
    a(f"v_and_b32 v{t[1]}, 3, v{g.v_i16}")
    a(f"v_lshl_add_u32 v{v_mw}, v{t[1]}, 3, v{t[0]}")
    XW = 8 * 1024
    assert QB + 4 * XW <= QST
    a(f"v_mul_u32_u24 v{t[0]}, {XW}, v{g.v_wave}")
    a(f"v_lshl_add_u32 v{t[0]}, v{g.v_lane}, 4, v{t[0]}")
    a(f"v_add_u32 v{v_xw}, {QB}, v{t[0]}")
    a(f"v_xor_b32 v{v_xr}, {2*XW}, v{t[0]}")
    a(f"v_add_u32 v{v_xr}, {QB}, v{v_xr}")
    a(f"v_lshlrev_b32 v{t[0]}, 4, v{g.v_i16}")
    a(f"v_sub_u32 v{v_xc}, v{v_xr}, v{t[0]}")
    a(f"v_lshl_add_u32 v{t[1]}, v{g.v_wt}, 1, v{g.v_wo}")
    a(f"v_lshl_add_u32 v{t[1]}, v{t[1]}, 4, v{g.v_i16}")
    a(f"v_mul_u32_u24 v{t[2]}, 160, v{t[1]}")
    a(f"v_lshl_add_u32 v{t[2]}, v{g.v_g}, 3, v{t[2]}")
    a(f"v_add_u32 v{v_qw}, {QST}, v{t[2]}")
    a(f"v_add_u32 v{t[2]}, s{S_TOK0}, v{t[1]}")
    a(f"v_mul_u32_u24 v{t[2]}, {D*2}, v{t[2]}")
    a(f"v_lshl_add_u32 v{t[2]}, v{g.v_g}, 3, v{t[2]}")
    a(f"v_add_u32 v{V_RAD}, s{S_COL}, v{t[2]}")
    a(f"ds_write_b32 v{v_z}, v{v_z} offset:{MS+1024}")
    a("s_waitcnt lgkmcnt(0)")
    a("s_barrier")
    stamp(a, 0)
    a(f"buffer_load_dword v{v_fl}, v{v_z}, {sr(SRD5,4)}, 0 offen offset:{FLAG} sc1")
    for s_ in range(5):
        a(f"ds_read_b128 {vr(fq[3*s_],4)}, v{v_mx} offset:{MX + s_*1024}")
        for b in range(2):
            for e in range(2):
                a(f"ds_read_b64_tr_b16 {vr(fq[3*s_+1+b]+2*e,2)}, v{v_mw} offset:{(s_*32+4*e)*40 + b*32}")
    ones = vr(g.v_ones, 4)
    for s_ in range(5):
        a(f"s_waitcnt lgkmcnt({min(15, 5*(4-s_))})")
        B, A0, A1 = [vr(fq[3*s_+i], 4) for i in range(3)]
        for i, (x, y) in enumerate([(A0, B), (A1, B), (A0, ones), (A1, ones), (ones, B), (B, B)]):
            a(f"v_mfma_f32_16x16x32_bf16 {vr(mac[i],4)}, {x}, {y}, " + ("0" if s_ == 0 else vr(mac[i], 4)))
    a("s_nop 7")
    a("s_nop 7")
    lab = a.newlabel("pw")
    a(f"s_cmp_eq_u32 s{S_WAVE}, 0")
    a(f"s_cbranch_scc1 {lab}")
    for i in range(6):
        a(f"ds_write_b128 v{v_mp}, {vr(mac[i],4)} offset:{i*1024}")
    a("s_mov_b64 exec, 1")
    a(f"ds_add_u32 v{v_z}, v{v_one} offset:{MS+1024}")
    a("s_mov_b64 exec, -1")
    a.label(lab)

    def finalize():
        skip, lv, lj, lp, lq = [a.newlabel("fz") for _ in range(5)]
        a(f"s_cmp_lg_u32 s{S_WAVE}, 0")
        a(f"s_cbranch_scc1 {skip}")
        a.label(lp)
        a(f"ds_read_b32 v{t[0]}, v{v_z} offset:{MS+1024}")
        a("s_waitcnt lgkmcnt(0)")
        a(f"v_readfirstlane_b32 s{S_T2}, v{t[0]}")
        a("s_nop 3")
        a(f"s_cmp_lt_u32 s{S_T2}, 3")
        a(f"s_cbranch_scc1 {lp}")
        order = [4, 5, 0, 2, 1, 3]
        for i in order:
            for w in range(1, 4):
                a(f"ds_read_b128 {vr(fq[6*(w-1)+i],4)}, v{v_mp} offset:{w*6400 + i*1024}")
        a(f"s_and_b32 s{S_T1}, s{S_J}, 3")
        a(f"s_lshl_b32 s{S_T1}, s{S_T1}, 4")
        a(f"s_add_u32 s{S_T1}, s{S_T1}, s{S_TOK0}")
        a(f"s_lshr_b32 s{S_KX}, s{S_T1}, 2")
        a(f"s_lshr_b32 s{S_T1}, s{S_T1}, 5")
        a(f"s_mul_i32 s{S_KW}, s{S_T1}, 2560")
        a(f"s_and_b32 s{S_T0}, s{S_J}, 1")
        for n, i in enumerate(order):
            a(f"s_waitcnt lgkmcnt({min(15, 3*(5-n))})")
            for w in range(3):
                for r in ((0,) if i == 4 else (0, 2)):
                    a(f"v_pk_add_f32 {vr(mac[i]+r,2)}, {vr(mac[i]+r,2)}, {vr(fq[6*w+i]+r,2)}")
        gram_diag(a, g, mac[5], v_sq)
        ln_stats(a, mac[4], v_sq, v_mean, v_rstd, t)
        for b in range(2):
            c, cs = mac[b], mac[2 + b]
            for r in range(4):
                a(f"v_fma_f32 v{c+r}, -v{v_mean}, v{cs+r}, v{c+r}")
                a(f"v_mul_f32 v{c+r}, v{c+r}, v{v_rstd}")
            a(f"v_cvt_pk_bf16_f32 v{c}, v{c}, v{c+1}")
            a(f"v_cvt_pk_bf16_f32 v{c+1}, v{c+2}, v{c+3}")
        k0, k1 = mac[0], mac[1]
        v_n = v_sq
        a(f"v_mov_b32 v{v_n}, 0")
        a(f"s_bitcmp1_b32 s{S_J}, 2")
        a(f"s_cbranch_scc1 {lv}")
        a(f"v_lshrrev_b32 v{t[0]}, 1, v{g.v_g}")
        a(f"v_lshlrev_b32 v{t[0]}, 8, v{t[0]}")
        a(f"v_lshl_add_u32 v{t[0]}, v{g.v_i16}, 4, v{t[0]}")
        a(f"v_and_b32 v{t[1]}, 1, v{g.v_g}")
        a(f"v_lshl_add_u32 v{t[0]}, v{t[1]}, 3, v{t[0]}")
        a(f"ds_write_b64 v{t[0]}, {vr(k0,2)} offset:{MS}")
        a(f"v_lshlrev_b32 v{t[1]}, 3, v{g.v_i16}")
        a("s_mov_b64 exec, 0xffff")
        a(f"ds_write_b64 v{t[1]}, {vr(k1,2)} offset:{MS+512}")
        for c in (k1, k1 + 1, k0, k0 + 1):
            if c == k0:
                a("s_mov_b64 exec, -1")
            a(f"v_lshlrev_b32 v{t[0]}, 16, v{c}")
            a(f"v_and_b32 v{t[1]}, 0xffff0000, v{c}")
            a(f"v_fma_f32 v{v_n}, v{t[0]}, v{t[0]}, v{v_n}")
            a(f"v_fma_f32 v{v_n}, v{t[1]}, v{t[1]}, v{v_n}")
        swap_add(a, v_n, t[0], 32)
        swap_add(a, v_n, t[0], 16)
        dpp_rowmax(a, v_n)
        a("s_mov_b64 exec, 0x8000")
        a(f"buffer_store_dword v{v_n}, v{v_z}, {sr(SRD3,4)}, s{S_KX} offen sc1")
        a("s_mov_b64 exec, -1")
        a(f"v_lshlrev_b32 v{t[0]}, 9, v{g.v_g}")
        a(f"v_lshl_add_u32 v{v_ad}, v{g.v_i16}, 4, v{t[0]}")
        a(f"s_lshl_b32 s{S_T0}, s{S_T0}, 7")
        a(f"v_cmp_gt_u32 vcc, 2, v{g.v_g}")
        a(f"v_mov_b32 v{t[0]}, s{S_T0}")
        a(f"v_cndmask_b32 v{t[1]}, 0, v{t[0]}, vcc")
        a(f"v_add3_u32 v{v_ad}, v{v_ad}, v{t[0]}, v{t[1]}")
        a(f"s_branch {lj}")
        a.label(lv)
        a(f"v_bfe_u32 v{t[0]}, v{g.v_i16}, 2, 1")
        a(f"v_mul_u32_u24 v{t[0]}, 320, v{t[0]}")
        a(f"v_bfe_u32 v{t[1]}, v{g.v_i16}, 3, 1")
        a(f"v_lshl_add_u32 v{t[0]}, v{t[1]}, 3, v{t[0]}")
        a(f"v_and_b32 v{t[1]}, 3, v{g.v_i16}")
        a(f"v_lshl_add_u32 v{t[0]}, v{t[1]}, 1, v{t[0]}")
        a(f"v_lshl_add_u32 v{t[0]}, v{g.v_g}, 6, v{t[0]}")
        for b, c in enumerate((k0, k1)):
            if b:
                a("s_mov_b64 exec, 0xffff")
            for p in range(2):
                o = MS + b * 256 + p * 32
                a(f"ds_write_b16 v{t[0]}, v{c+p} offset:{o}")
                a(f"ds_write_b16_d16_hi v{t[0]}, v{c+p} offset:{o+16}")
        a("s_mov_b64 exec, -1")
        a(f"s_mul_i32 s{S_T0}, s{S_T0}, 640")
        a(f"s_add_u32 s{S_T0}, s{S_T0}, 1280")
        a(f"v_lshl_add_u32 v{v_ad}, v{g.v_lane}, 4, s{S_T0}")
        a.label(lj)
        a(f"v_lshlrev_b32 v{t[0]}, 4, v{g.v_lane}")
        a(f"ds_read_b128 {vr(mac[2],4)}, v{t[0]} offset:{MS}")
        a("s_mov_b32 exec_hi, 0xff")
        a("s_waitcnt lgkmcnt(0)")
        a(f"buffer_store_dwordx4 {vr(mac[2],4)}, v{v_ad}, {sr(SRD1,4)}, s{S_KW} offen sc1")
        a("s_mov_b64 exec, -1")
        a.label(skip)

    def hook():
        skip, sec, done, lp, lq = [a.newlabel("hk") for _ in range(5)]
        a(f"s_cmp_eq_u32 s{S_HOOK}, 0")
        a(f"s_cbranch_scc1 {skip}")
        a(f"s_sub_u32 s{S_HOOK}, s{S_HOOK}, 1")
        a("s_mov_b64 exec, 1")
        a(f"s_cmp_eq_u32 s{S_HOOK}, 0")
        a(f"s_cbranch_scc1 {sec}")
        a(f"s_mov_b32 s{S_T1}, 0x20000")
        a.label(lp)
        a("s_waitcnt vmcnt(0)")
        a(f"v_readfirstlane_b32 s{S_T2}, v{v_fl}")
        a(f"s_sub_u32 s{S_T1}, s{S_T1}, 1")
        a(f"s_cmp_eq_u32 s{S_T1}, 0")
        a(f"s_cbranch_scc1 {lq}")
        a(f"s_cmp_lg_u32 s{S_T2}, 0")
        a(f"s_cbranch_scc1 {lq}")
        a(f"buffer_load_dword v{v_fl}, v{v_z}, {sr(SRD5,4)}, 0 offen offset:{FLAG} sc1")
        a(f"s_branch {lp}")
        a.label(lq)
        a(f"v_mov_b32 v{v_fl}, 1")
        a(f"buffer_atomic_add v{v_fl}, v{v_z}, {sr(SRDC,4)}, s{S_KVC} offen sc0 sc1")
        a(f"s_branch {done}")
        a.label(sec)
        a("s_waitcnt vmcnt(0)")
        a(f"v_readfirstlane_b32 s{S_T2}, v{v_fl}")
        a(f"v_mov_b32 v{v_fl}, 1")
        a(f"s_mov_b32 s{S_KVC}, {CNT_KV*256}")
        a("s_nop 2")
        a(f"s_cmp_lg_u32 s{S_T2}, 15")
        a(f"s_cbranch_scc1 {done}")
        a(f"buffer_atomic_add v{v_fl}, v{v_z}, {sr(SRDC,4)}, s{S_KVC} offen sc0 sc1")
        a("s_waitcnt vmcnt(0)")
        a(f"v_readfirstlane_b32 s{S_T2}, v{v_fl}")
        a("s_nop 3")
        a(f"s_cmp_lg_u32 s{S_T2}, 15")
        a(f"s_cbranch_scc1 {done}")
        a("s_mov_b64 exec, 0xff")
        a(f"buffer_store_dword v{v_one}, v{v_fa}, {sr(SRDC,4)}, s{S_KVC} offen offset:2048 sc1")
        a.label(done)
        a("s_mov_b64 exec, -1")
        a.label(skip)
        a(f"s_cmp_lg_u32 s{g.s_cnt}, 2")
        a(f"s_cbranch_scc1 {lq}x")
        init()
        a.label(f"{lq}x")

    finalize()
    g.mainloop(pre_bar=hook)
    stamp(a, 1)
    nA = g.nA
    keep = g.acc[0] + [g.acc_sq[0]]
    send = g.acc[1] + [g.acc_sq[1]]
    a("s_nop 3")
    a(f"ds_write_b128 v{v_xw}, {vr(send[nA],4)} offset:{nA*1024}")
    a(f"ds_write_b32 v{v_xw}, v{g.acc_sum[1]} offset:{(nA+1)*1024}")
    for i in range(nA):
        a(f"ds_write_b128 v{v_xw}, {vr(send[i],4)} offset:{i*1024}")
    a("s_mov_b32 exec_lo, 0x00010001")
    a("s_mov_b32 exec_hi, 0x00010001")
    for i in range(nA):
        a(f"ds_write_b128 v{v_xw}, {vr(g.acc_cs[i],4)} offset:{(nA+2)*1024 + 16*i}")
    a("s_mov_b64 exec, -1")
    a("s_waitcnt lgkmcnt(0)")
    stamp(a, 4, True)
    a("s_barrier")
    stamp(a, 5, True)
    csx = [g.fa[0] + 4 * i for i in range(nA)]
    a(f"ds_read_b128 {vr(send[nA],4)}, v{v_xr} offset:{nA*1024}")
    a(f"ds_read_b32 v{g.acc_sum[1]}, v{v_xr} offset:{(nA+1)*1024}")
    for i in range(nA):
        a(f"ds_read_b128 {vr(send[i],4)}, v{v_xr} offset:{i*1024}")
        a(f"ds_read_b128 {vr(csx[i],4)}, v{v_xc} offset:{(nA+2)*1024 + 16*i}")
    a(f"s_waitcnt lgkmcnt({2*nA})")
    a(f"v_add_f32 v{g.acc_sum[0]}, v{g.acc_sum[0]}, v{g.acc_sum[1]}")
    for r in (0, 2):
        a(f"v_pk_add_f32 {vr(keep[nA]+r,2)}, {vr(keep[nA]+r,2)}, {vr(send[nA]+r,2)}")
    gram_diag(a, g, g.acc_sq[0], v_sq)
    for fb in range(nA):
        c, cs = g.acc[0][fb], g.acc_cs[fb]
        for r in (0, 2):
            a(f"v_pk_add_f32 {vr(c+r,2)}, {vr(c+r,2)}, {vr(send[fb]+r,2)}")
            a(f"v_pk_add_f32 {vr(cs+r,2)}, {vr(cs+r,2)}, {vr(csx[fb]+r,2)}")
    ln_stats(a, g.acc_sum[0], v_sq, v_mean, v_rstd, g.tmp)
    a(f"v_mul_f32 v{v_rstd}, {f32(QSCALE)}, v{v_rstd}")
    a(f"v_sub_f32 v{v_mean}, 0, v{v_mean}")
    stamp(a, 6, True)
    pm = vr(v_mean, 2)
    for fb in range(nA):
        c, cs = g.acc[0][fb], g.acc_cs[fb]
        for r in (0, 2):
            a(f"v_pk_fma_f32 {vr(c+r,2)}, {pm}, {vr(cs+r,2)}, {vr(c+r,2)} op_sel_hi:[0,1,1]")
        for r in (0, 2):
            a(f"v_pk_mul_f32 {vr(c+r,2)}, {vr(c+r,2)}, {pm} op_sel:[0,1] op_sel_hi:[1,1]")
        a(f"v_cvt_pk_bf16_f32 v{c}, v{c}, v{c+1}")
        a(f"v_cvt_pk_bf16_f32 v{c+1}, v{c+2}, v{c+3}")
        a(f"ds_write_b64 v{v_qw}, {vr(c,2)} offset:{fb*32}")
    stamp(a, 7, True)
    g.maxv = va.n
    return g


KVROT = int(os.environ.get("KVROT", "7"))
LATE1 = int(os.environ.get("LATE1", "1"))
CPF = int(os.environ.get("CPF", "0"))


def code_touch(a, v_t, v_d, first):
    lab = a.newlabel("pc")
    a("s_getpc_b64 s[74:75]")
    a.label(lab)
    a(f"s_sub_u32 s74, s74, {lab}-k2_attn_kernel")
    a("s_subb_u32 s75, s75, 0")
    for i in range(first, 2):
        a(f"v_lshlrev_b32 v{v_t}, 7, v0")
        if i:
            a(f"v_add_u32 v{v_t}, {i*32768}, v{v_t}")
        a(f"v_min_u32 v{v_t}, k2_code_end-k2_attn_kernel-4, v{v_t}")
        a(f"global_load_dword v{v_d}, v{v_t}, s[74:75]")


def p1_mini(a):
    t = [30, 31]
    a("v_and_b32 v0, 255, v0")
    make_srd(a, SRD0, P_X, 0, S * D * 2)
    a(f"s_bitcmp0_b32 s{S_J}, 2")
    a(f"s_cselect_b32 s{SRD3}, s{P_WK}, s{P_WV}")
    a(f"s_cselect_b32 s{SRD3+1}, s{P_WK+1}, s{P_WV+1}")
    a(f"s_mov_b32 s{SRD3+2}, {D*DH*2}")
    a(f"s_mov_b32 s{SRD3+3}, 0x00020000")
    a(f"s_and_b32 s{S_T1}, s{S_J}, 3")
    a(f"s_lshl_b32 s{S_T1}, s{S_T1}, 4")
    a(f"s_add_u32 s{S_T1}, s{S_T1}, s{S_TOK0}")
    a(f"v_and_b32 v{t[0]}, 15, v0")
    a(f"v_add_u32 v{t[0]}, s{S_T1}, v{t[0]}")
    a(f"v_mul_u32_u24 v{t[0]}, {D*2}, v{t[0]}")
    a(f"v_and_b32 v{t[1]}, 0xf0, v0")
    a(f"v_add_u32 v{t[0]}, v{t[0]}, v{t[1]}")
    a(f"v_lshlrev_b32 v{t[1]}, 4, v0")
    a(f"s_and_b32 s{S_WOFF}, s{S_WAVE}, 3")
    a(f"s_lshl_b32 s{S_WOFF}, s{S_WOFF}, 10")
    for j in range(7):
        if j < 5:
            a(f"s_add_u32 m0, s{S_WOFF}, {MX + j*4096}")
            a(f"s_mov_b32 s{S_T1}, {j*256}")
            a(f"buffer_load_dwordx4 v{t[0]}, {sr(SRD0,4)}, s{S_T1} offen lds")
        a(f"s_add_u32 m0, s{S_WOFF}, {MW + j*4096}")
        a(f"s_mov_b32 s{S_T1}, {j*4096}")
        a(f"buffer_load_dwordx4 v{t[1]}, {sr(SRD3,4)}, s{S_T1} offen lds")


def p1_loader(a, g, v_l, dma, early):
    lva = VAlloc(30)
    t = [lva() for _ in range(2)]
    v_p = lva(2, 2)
    v_pa = lva()
    make_srd(a, SRD1, P_WQ, 0, D * D * 2)
    make_srd(a, SRD2, P_WS, WS_KV, KV_SZ)
    g.ld_prepare(None, head=False, v0=40)
    g.lstamp(0)
    if LATE1 < 2:
        g.ld_issue(0)
    if LATE1 < 1:
        g.ld_issue(1)
    a(f"s_lshl_b32 s{S_KVC}, s{S_XB}, 8")
    a(f"s_add_u32 s{S_KVC}, s{S_KVC}, {(CNT_KV+8)*256}")
    a(f"v_lshlrev_b32 v{v_pa}, 3, v{v_l}")
    make_srd(a, SRD4, P_WS, WS_KN, 512)
    early()
    a(f"s_waitcnt vmcnt({len(g.ops)})")
    g.lstamp(1)
    a("s_barrier")
    if LATE1 >= 2:
        g.ld_issue(0)
    if LATE1 >= 1:
        g.ld_issue(1)
    g.ld_issue(2)
    g.ld_ready(0)
    g.ld_issue(3)
    g.ld_ready(1)
    g.ld_issue(4)
    g.ld_ready(2)
    g.ld_ready(3)

    def poll():
        a("s_mov_b64 exec, 1")
        a(f"buffer_load_dword v{t[0]}, v{v_pa}, {sr(SRDC,4)}, s{S_KVC} offen sc1")
        a("s_mov_b64 exec, -1")
        g.ops.append(("p", 0))

    def check(lab):
        last = max(i for i, o in enumerate(g.ops) if o == ("p", 0))
        a(f"s_waitcnt vmcnt({len(g.ops) - 1 - last})")
        a(f"v_readfirstlane_b32 s{S_T2}, v{t[0]}")
        a("s_nop 3")
        a(f"s_cmp_eq_u32 s{S_T2}, 0")
        a(f"s_cbranch_scc1 {lab}")

    def kv():
        a(f"buffer_load_dwordx2 {vr(v_p,2)}, v{v_pa}, {sr(SRD4,4)}, 0 offen")
        dma(13, SRD2, True)
        g.ops.extend([("d", 0)] * 14)

    lb, lb2, lb3, lj, lsp, lsd, lsc = [a.newlabel("p1") for _ in range(7)]
    poll()
    g.ld_ready(4)
    check(lb3)
    kv()
    a("s_barrier")
    a(f"s_branch {lj}")
    a.label(lb3)
    poll()
    a("s_barrier")
    a(f"s_mov_b32 s{S_T1}, 0x20000")
    a(f"s_branch {lsc}")
    a.label(lsp)
    a(f"s_sub_u32 s{S_T1}, s{S_T1}, 1")
    a(f"s_cmp_eq_u32 s{S_T1}, 0")
    a(f"s_cbranch_scc1 {lsd}")
    poll()
    a.label(lsc)
    check(lsp)
    a.label(lsd)
    kv()
    a.label(lj)
    g.lstamp(13)
    a("s_barrier")
    a("s_waitcnt vmcnt(13)")
    a(f"v_max_f32 v{v_p}, v{v_p}, v{v_p+1}")
    dpp_rowmax(a, v_p)
    a("s_nop 1")
    a(f"v_max_f32_dpp v{v_p}, v{v_p}, v{v_p} row_bcast:15 row_mask:0xa bank_mask:0xf")
    a("s_nop 1")
    a(f"v_max_f32_dpp v{v_p}, v{v_p}, v{v_p} row_bcast:31 row_mask:0xc bank_mask:0xf")
    a(f"v_mov_b32 v{t[0]}, {KMX}")
    a("s_mov_b32 exec_lo, 0")
    a("s_brev_b32 exec_hi, 1")
    a(f"ds_write_b32 v{t[0]}, v{v_p}")
    a("s_mov_b64 exec, -1")


def gen_k2(a):
    name = "k2_attn_kernel"
    kernel_begin(a, name)
    a("s_cmp_ge_u32 s2, 256")
    a("s_cbranch_scc1 k2_end")
    load_kernargs(a)
    a(f"s_and_b32 s{S_XB}, s2, 7")
    a(f"s_lshr_b32 s{S_J}, s2, 3")
    a(f"s_lshr_b32 s{S_T2}, s{S_J}, 3")
    a(f"s_lshl_b32 s{S_T1}, s{S_XB}, 2")
    a(f"s_add_u32 s{S_T1}, s{S_T1}, s{S_T2}")
    a(f"s_lshl_b32 s{S_TOK0}, s{S_T1}, 6")
    a(f"s_and_b32 s{S_T0}, s{S_J}, 7")
    a(f"s_mul_i32 s{S_COL}, s{S_T0}, 160")
    va = VAlloc(1)
    t = [va() for _ in range(6)]
    v_kn = va(2, 2)
    v_l16, v_lane, v_n, v_h, v_qa, v_oa = [va() for _ in range(6)]
    v_cur = [va() for _ in range(3)]
    v_nxt = [va() for _ in range(3)]
    v_m = [va(), va()]
    v_ob = va()
    v_cst = va()
    O = [va(16, 4) for _ in range(2)]
    VF = [va(8, 4) for _ in range(2)]
    v_late = va.n
    Q = [va(8, 4) for _ in range(2)]
    Sb = [[va(16, 4) for _ in range(2)] for _ in range(2)]
    P = [va(8, 4) for _ in range(2)]
    KF = [va(8, 4) for _ in range(2)]
    S_STEP, S_CNT, S_GOFF, S_HEAD = 76, 77, 78, 79
    S_VM, S_KM = 4, 6
    TB = 2560

    def kread(dst, regs, tile):
        return [f"ds_read_b128 {vr(dst,4)}, v{regs[0]} offset:{tile*TB}",
                f"ds_read_b64 {vr(dst+4,2)}, v{regs[1]} offset:{tile*TB}"]

    def vread(dst, regs, tile):
        return [f"s_mov_b64 exec, {sr(S_VM,2)}",
                f"ds_read_b128 {vr(dst,4)}, v{regs[2]} offset:{tile*TB}",
                f"ds_read_b128 {vr(dst+4,4)}, v{regs[2]} offset:{tile*TB+640}",
                "s_mov_b64 exec, -1"]

    a(f"v_lshrrev_b32 v{t[0]}, 6, v0")
    a(f"v_and_b32 v{v_lane}, 63, v0")
    a(f"v_readfirstlane_b32 s{S_WAVE}, v{t[0]}")
    a(f"v_lshlrev_b32 v{v_l16}, 4, v{v_lane}")
    a(f"v_and_b32 v{v_n}, 31, v0")
    a(f"v_bfe_u32 v{v_h}, v0, 5, 1")
    a("s_waitcnt lgkmcnt(0)")
    a(f"s_cmp_lt_u32 s{S_WAVE}, 4")
    a("s_cbranch_scc1 k2_comp")
    p1_mini(a)
    make_srd(a, SRDC, P_WS, WS_CNT, 32768)
    a("s_branch k2_helper")
    a.label("k2_comp")
    if CPF:
        code_touch(a, t[0], TDUM, 0)
    make_srd(a, SRDC, P_WS, WS_CNT, 32768)
    make_srd(a, SRD1, P_WS, WS_KV, KV_SZ)
    def init():
        a(f"s_mul_i32 s{S_T1}, s{S_WAVE}, 40")
        a(f"s_add_u32 s{S_T2}, s{S_T1}, {QST}")
        a(f"v_mul_u32_u24 v{t[1]}, 160, v{v_n}")
        a(f"v_add_u32 v{v_ob}, s{S_T2}, v{t[1]}")
        a(f"v_lshl_add_u32 v{v_qa}, v{v_h}, 4, v{v_ob}")
        a(f"v_lshl_add_u32 v{t[2]}, v{v_h}, 3, s{S_T1}")
        a(f"v_lshrrev_b32 v{t[3]}, 4, v{t[2]}")
        a(f"v_and_b32 v{t[2]}, 8, v{t[2]}")
        a(f"v_lshl_add_u32 v{t[2]}, v{t[3]}, 8, v{t[2]}")
        a(f"v_and_b32 v{t[3]}, 15, v{v_n}")
        a(f"v_lshl_add_u32 v{t[2]}, v{t[3]}, 4, v{t[2]}")
        a(f"v_lshrrev_b32 v{t[3]}, 4, v{v_n}")
        a(f"v_mul_u32_u24 v{t[3]}, 2560, v{t[3]}")
        a(f"v_add_u32 v{v_oa}, v{t[2]}, v{t[3]}")
        for b in range(2):
            for i in range(16):
                a(f"v_mov_b32 v{O[b]+i}, 0")
            for i in range(8):
                a(f"v_mov_b32 v{VF[b]+i}, 0x3f803f80")
        a(f"s_mov_b32 s{S_VM}, 0x000fffff")
        a(f"s_mov_b32 s{S_VM+1}, 0x000fffff")
        a(f"v_mov_b32 v{v_cur[0]}, v{v_l16}")
        a(f"v_lshlrev_b32 v{v_cur[1]}, 3, v{v_n}")
        a(f"v_add_u32 v{v_cur[1]}, 1024, v{v_cur[1]}")
        a(f"v_mul_u32_u24 v{t[0]}, 320, v{v_h}")
        a(f"v_lshl_add_u32 v{v_cur[2]}, v{v_n}, 4, v{t[0]}")
        a(f"v_add_u32 v{v_cur[2]}, 1280, v{v_cur[2]}")
        for i in range(3):
            a(f"v_add_u32 v{v_nxt[i]}, {8*TB}, v{v_cur[i]}")
    assert VF[1] + 8 - O[0] == 48
    make_srd(a, SRD4, P_WS, WS_O, S * D * 2)
    make_srd(a, SRD2, P_X, 0, S * D * 2)
    for r in v_nxt + v_cur:
        a(f"v_mov_b32 v{r}, 0")
    gq = p1_compute(a, t, v_late, O[0], init)
    for b in range(2):
        a(f"v_mov_b32 v{KF[b]+6}, 0x3f80")
        a(f"v_mov_b32 v{KF[b]+7}, 0")
        a(f"v_mov_b32 v{Q[b]+7}, 0")
    for i in range(8):
        a(f"v_mov_b32 v{P[1]+i}, 0")
    for i in range(12, 16):
        a(f"v_mov_b32 v{Sb[1][1]+i}, 0")
    a(f"v_cmp_eq_u32 vcc, 0, v{v_h}")
    a(f"v_mov_b32 v{t[0]}, {KMX}")
    a("s_waitcnt lgkmcnt(0)")
    stamp(a, 8, True)
    a("s_barrier")
    stamp(a, 9, True)
    a(f"ds_read_b32 v{v_kn}, v{t[0]}")
    for b in range(2):
        a(f"ds_read_b64 {vr(Q[b],2)}, v{v_qa} offset:{b*5120}")
        a(f"ds_read_b64 {vr(Q[b]+2,2)}, v{v_qa} offset:{b*5120+8}")
        a(f"ds_read_b64 {vr(Q[b]+4,2)}, v{v_ob} offset:{b*5120+32}")
    for l in kread(KF[0], v_cur, 0) + kread(KF[1], v_cur, 1) + vread(VF[0], v_cur, 0):
        a(l)
    a("s_waitcnt lgkmcnt(6)")
    a(f"v_readfirstlane_b32 s{S_KM}, v{v_kn}")
    for b in range(2):
        a(f"v_cndmask_b32 v{Q[b]+4}, 0, v{Q[b]+4}, vcc")
        a(f"v_cndmask_b32 v{Q[b]+5}, 0, v{Q[b]+5}, vcc")
    for i in range(6):
        for b in range(2):
            a(f"v_dot2_f32_bf16 v{t[2+b]}, v{Q[b]+i}, v{Q[b]+i}, " + ("0" if i == 0 else f"v{t[2+b]}"))
    a("s_nop 2")
    for b in range(2):
        a(f"v_mov_b32 v{t[b]}, v{t[2+b]}")
    a("s_nop 1")
    for b in range(2):
        a(f"v_permlane32_swap_b32 v{t[b]}, v{t[2+b]}")
    a("s_nop 1")
    for b in range(2):
        a(f"v_add_f32 v{t[b]}, v{t[b]}, v{t[2+b]}")
    for b in range(2):
        a(f"v_mul_f32 v{t[b]}, s{S_KM}, v{t[b]}")
    for b in range(2):
        a(f"v_sqrt_f32 v{t[b]}, v{t[b]}")
    a("s_nop 0")
    for b in range(2):
        a(f"v_cvt_pk_bf16_f32 v{t[b]}, -v{t[b]}, 0")
    for b in range(2):
        a(f"v_cndmask_b32 v{Q[b]+6}, 0, v{t[b]}, vcc")
    a("s_waitcnt lgkmcnt(0)")

    def qk(b, par, s, kf):
        d = vr(Sb[b][par], 16)
        c = "0" if s == 0 else d
        return f"v_mfma_f32_32x32x16_bf16 {d}, {vr(kf+4*s,4)}, {vr(Q[b]+4*s,4)}, {c}"

    def pv(b, s, vf):
        d = vr(O[b], 16)
        return f"v_mfma_f32_32x32x16_bf16 {d}, {vr(vf+4*s,4)}, {vr(P[b]+4*s,4)}, {d}"

    for b in range(2):
        a(qk(b, 0, 0, KF[0]))
        a(qk(b, 0, 1, KF[0]))
    a("s_nop 7")
    a("s_nop 7")
    a(f"s_mov_b32 s{S_CNT}, 8")
    stamp(a, 2)
    rstamp(a, 10)
    a.label("k2_loop")

    def exps(b, par, i0):
        return [f"v_exp_f32 v{Sb[b][par]+i}, v{Sb[b][par]+i}" for i in range(i0, i0 + 4)]

    def cvts(b, par, i0):
        return [f"v_cvt_pk_bf16_f32 v{P[b]+(i0+i)//2}, v{Sb[b][par]+i0+i}, v{Sb[b][par]+i0+i+1}" for i in (0, 2)]

    for ph in range(8):
        p = ph & 1
        q = p ^ 1
        kt, vt = ph + 2, ph + 1
        kr = kread(KF[p], v_cur if kt < 8 else v_nxt, kt % 8)
        vrd = vread(VF[q], v_cur if vt < 8 else v_nxt, vt % 8)
        M = [qk(0, q, 0, KF[q]), pv(1, 1, VF[q]), qk(0, q, 1, KF[q]), pv(0, 0, VF[p]),
             qk(1, q, 0, KF[q]), pv(0, 1, VF[p]), qk(1, q, 1, KF[q]), pv(1, 0, VF[p])]
        V = [cvts(1, q, 12) + exps(0, p, 0),
             exps(0, p, 4),
             cvts(0, p, 0) + cvts(0, p, 4) + exps(0, p, 8),
             cvts(0, p, 8) + exps(0, p, 12),
             cvts(0, p, 12) + exps(1, p, 0),
             exps(1, p, 4),
             cvts(1, p, 0) + cvts(1, p, 4) + exps(1, p, 8),
             cvts(1, p, 8) + exps(1, p, 12)]
        extra = [[] for _ in range(8)]
        if ph == 2:
            a(f"s_bitcmp1_b32 0x140, s{S_CNT}")
            a("s_cbranch_scc1 k2_sy")
            a.label("k2_nb1")
        a("s_waitcnt lgkmcnt(0)")
        extra[0] += kr
        extra[2] += vrd
        for i in range(8):
            a(M[i])
            for l in extra[i]:
                a(l)
            for l in V[i]:
                a(l)
    if INSTR:
        a("s_memtime s[98:99]")
        a("s_waitcnt lgkmcnt(0)")
        a("s_sub_u32 s98, s98, s80")
        a(f"s_mov_b32 m0, s{S_CNT}")
        a("s_nop 0")
        a(f"v_writelane_b32 v{v_cst}, s98, m0")
    a(f"s_cmp_eq_u32 s{S_CNT}, 2")
    a(f"s_cselect_b32 s{S_STEP}, 0, {8*TB}")
    for i in range(3):
        a(f"v_mov_b32 v{v_cur[i]}, v{v_nxt[i]}")
        a(f"v_add_u32 v{v_nxt[i]}, s{S_STEP}, v{v_nxt[i]}")
    a("s_cbranch_scc0 k2_nb")
    a("s_mov_b64 exec, 1")
    a(f"ds_add_u32 v{v_l16}, v{KF[0]+6}")
    a("s_mov_b64 exec, -1")
    a.label("k2_nb")
    a(f"s_sub_u32 s{S_CNT}, s{S_CNT}, 1")
    a(f"s_cmp_lg_u32 s{S_CNT}, 0")
    a("s_cbranch_scc1 k2_loop")
    for l in cvts(1, 1, 12):
        a(l)
    a("s_nop 1")
    a(pv(1, 1, VF[1]))
    a("s_waitcnt vmcnt(0) lgkmcnt(0)")
    a("s_nop 7")
    a("s_nop 7")
    stamp(a, 3)
    rstamp(a, 0)
    a(f"v_mov_b32 v{t[0]}, {f32(2.0**-40)}")
    a(f"v_cmp_nge_f32 s[74:75], v{O[0]+12}, v{t[0]}")
    a(f"v_cmp_nge_f32 vcc, v{O[1]+12}, v{t[0]}")
    a("s_nop 3")
    a("s_or_b64 vcc, vcc, s[74:75]")
    a("s_cbranch_vccnz k2_slow")
    a.label("k2_epi")
    for b in range(2):
        a(f"v_rcp_f32 v{t[0]}, v{O[b]+12}")
        a("s_nop 0")
        for i in range(12):
            a(f"v_mul_f32 v{O[b]+i}, v{O[b]+i}, v{t[0]}")
        for i in range(6):
            a(f"v_cvt_pk_bf16_f32 v{O[b]+i}, v{O[b]+2*i}, v{O[b]+2*i+1}")
    a(f"v_mov_b32 v{t[0]}, {TAB + 3072}")
    for i in range(4):
        a(f"v_mov_b32 v{P[0]+i}, 0")
    a(f"s_mul_i32 s{S_T1}, s{S_WAVE}, 2560")
    a(f"v_add_u32 v{t[1]}, s{S_T1}, v{v_l16}")
    a(f"s_lshr_b32 s{S_KW}, s{S_TOK0}, 4")
    a(f"s_add_u32 s{S_KW}, s{S_KW}, s{S_WAVE}")
    a(f"s_mul_i32 s{S_KW}, s{S_KW}, {16*D*2}")
    a(f"s_lshl_b32 s{S_T1}, s{S_COL}, 4")
    a(f"s_add_u32 s{S_KW}, s{S_KW}, s{S_T1}")
    a("s_barrier")
    a(f"ds_write_b128 v{t[0]}, {vr(P[0],4)}")
    for b in range(2):
        a(f"ds_write_b64 v{v_oa}, {vr(O[b],2)} offset:{b*5120}")
        a(f"ds_write_b64 v{v_oa}, {vr(O[b]+2,2)} offset:{b*5120+256}")
    a("s_mov_b64 exec, 0xffffffff")
    for b in range(2):
        a(f"ds_write_b64 v{v_oa}, {vr(O[b]+4,2)} offset:{b*5120+512}")
    a("s_mov_b64 exec, -1")
    a("s_waitcnt lgkmcnt(0)")
    a("s_barrier")
    for i in range(3):
        a(f"ds_read_b128 {vr(O[0]+4*i,4)}, v{t[1]} offset:{i*1024}")
    for i in range(3):
        a(f"s_waitcnt lgkmcnt({2-i})")
        if i == 2:
            a("s_mov_b64 exec, 0xffffffff")
        a(f"buffer_store_dwordx4 {vr(O[0]+4*i,4)}, v{v_l16}, {sr(SRD4,4)}, s{S_KW} offen offset:{i*1024} {HPOL}")
    def otouch():
        a(f"v_lshlrev_b32 v{t[3]}, 3, v{v_l16}")
        a("s_mov_b64 exec, 0xfffff")
        a(f"buffer_load_dword v{TDUM}, v{t[3]}, {sr(SRD4,4)}, s{S_KW} offen")
    publish(a, t, 2, otouch)
    if INSTR and not P1ST:
        lab = a.newlabel("hs")
        a(f"s_cmp_lg_u32 s2, {INSTR_WG}")
        a(f"s_cbranch_scc1 {lab}")
        a(f"s_cmp_lg_u32 s{S_WAVE}, 0")
        a(f"s_cbranch_scc1 {lab}")
        make_srd(a, 92, P_DBG, 0, 256)
        a(f"v_lshlrev_b32 v{t[0]}, 2, v{v_lane}")
        a(f"buffer_store_dword v{v_cst}, v{t[0]}, s[92:95], 0 offen offset:192")
        a.label(lab)
    ffn = ffn_compute(a)
    a.label("k2_end")
    a("s_endpgm")

    a.label("k2_sy")
    a(f"s_cmp_eq_u32 s{S_CNT}, 6")
    a("s_cbranch_scc1 k2_sy2")
    a("s_barrier")
    a("s_branch k2_nb1")
    a.label("k2_sy2")
    assert t[1] % 2 == 0
    kv_wait(a, v_l16, t[1], 0)
    for fb in range(5):
        a(f"buffer_load_dwordx2 {vr(RES3+2*fb,2)}, v{V_RAD}, {sr(SRD2,4)}, 0 offen offset:{fb*32}")
    a("s_branch k2_nb1")

    def rewind():
        for i in range(3):
            a(f"v_subrev_u32 v{v_nxt[i]}, {56*TB}, v{v_cur[i]}")
        a(f"s_mov_b32 s{S_GOFF}, 0")

    def advance(lab):
        a(f"s_add_u32 s{S_GOFF}, s{S_GOFF}, {TB}")
        a(f"s_cmp_lt_u32 s{S_GOFF}, {64*TB}")
        a(f"s_cbranch_scc1 {lab}")

    def gkread(dst):
        return [f"buffer_load_dwordx4 {vr(dst,4)}, v{v_nxt[0]}, {sr(SRD1,4)}, s{S_GOFF} offen",
                f"buffer_load_dwordx2 {vr(dst+4,2)}, v{v_nxt[1]}, {sr(SRD1,4)}, s{S_GOFF} offen"]

    def gvread(dst):
        return [f"s_mov_b64 exec, {sr(S_VM,2)}",
                f"buffer_load_dwordx4 {vr(dst,4)}, v{v_nxt[2]}, {sr(SRD1,4)}, s{S_GOFF} offen",
                f"buffer_load_dwordx4 {vr(dst+4,4)}, v{v_nxt[2]}, {sr(SRD1,4)}, s{S_GOFF} offen offset:640",
                "s_mov_b64 exec, -1"]

    a.label("k2_slow")
    for b in range(2):
        a(f"v_mov_b32 v{Q[b]+6}, 0")
        a(f"v_mov_b32 v{v_m[b]}, 0xff800000")
    rewind()
    a.label("k2_slow1")
    for l in gkread(KF[0]):
        a(l)
    a("s_waitcnt vmcnt(0)")
    for b in range(2):
        a(qk(b, 0, 0, KF[0]))
        a(qk(b, 0, 1, KF[0]))
    a("s_nop 7")
    a("s_nop 7")
    for b in range(2):
        for i in range(0, 16, 2):
            a(f"v_max3_f32 v{v_m[b]}, v{Sb[b][0]+i}, v{Sb[b][0]+i+1}, v{v_m[b]}")
    advance("k2_slow1")
    a(f"v_cmp_eq_u32 vcc, 0, v{v_h}")
    for b in range(2):
        xlane_add(a, v_m[b], v_lane, t[0], t[1], (32,), op="v_max_f32")
        a(f"v_cvt_pk_bf16_f32 v{t[2]}, -v{v_m[b]}, 0")
        a(f"v_cndmask_b32 v{Q[b]+6}, 0, v{t[2]}, vcc")
        for i in range(16):
            a(f"v_mov_b32 v{O[b]+i}, 0")
    rewind()
    a.label("k2_slow2")
    for l in gkread(KF[0]) + gvread(VF[0]):
        a(l)
    a("s_waitcnt vmcnt(0)")
    for b in range(2):
        a(qk(b, 0, 0, KF[0]))
        a(qk(b, 0, 1, KF[0]))
    a("s_nop 7")
    a("s_nop 7")
    for b in range(2):
        for i0 in range(0, 16, 4):
            for l in exps(b, 0, i0):
                a(l)
        a("s_nop 0")
        for i0 in range(0, 16, 4):
            for l in cvts(b, 0, i0):
                a(l)
    a("s_nop 1")
    for b in range(2):
        a(pv(b, 0, VF[0]))
        a(pv(b, 1, VF[0]))
    a("s_nop 7")
    a("s_nop 7")
    advance("k2_slow2")
    a("s_branch k2_epi")

    a.label("k2_helper")
    hva = VAlloc(v_h + 1)
    lt = t
    v_l = v_lane
    S_U, S_SRC, S_DST, S_RW = S_T0, S_T1, S_KW, S_ROT
    S_G = S_IMG
    cnt = [0]

    def dma(n, srd, first=False):
        if first:
            cnt[0] = 0
            a(f"s_mov_b32 s{S_KX}, s{S_WOFF}")
            a(f"s_and_b32 s{S_G}, s{S_J}, {KVROT}")
            a(f"s_mul_i32 s{S_G}, s{S_G}, 20480")
            a(f"s_add_u32 s{S_G}, s{S_G}, s{S_WOFF}")
        for i in range(n):
            a(f"s_mov_b32 m0, s{S_KX}")
            a(f"s_add_u32 s{S_KX}, s{S_KX}, 4096")
            a(f"buffer_load_dwordx4 v{v_l16}, {sr(srd,4)}, s{S_G} offen lds")
            a(f"s_add_u32 s{S_G}, s{S_G}, 4096")
            cnt[0] += 1
            if cnt[0] % 5 == 0:
                a(f"s_cmp_ge_u32 s{S_G}, {KV_SZ}")
                a(f"s_cselect_b32 s{S_T2}, {KV_SZ}, 0")
                a(f"s_sub_u32 s{S_G}, s{S_G}, s{S_T2}")
    pva = VAlloc(132)
    sel = pva(4, 4)
    pa = [pva() for _ in range(5)]
    pb = [pva() for _ in range(3)]
    v_rb, v_kf, v_km, v_ca, v_co = [pva() for _ in range(5)]

    def gather(regs, cprw, magic, stride):
        for i, r in enumerate(regs):
            a(f"v_add_u32 v{lt[0]}, {i*64}, v{v_l}")
            a(f"v_mul_u32_u24 v{lt[1]}, {magic}, v{lt[0]}")
            a(f"v_lshrrev_b32 v{lt[1]}, 19, v{lt[1]}")
            a(f"v_mul_u32_u24 v{lt[2]}, {cprw}, v{lt[1]}")
            a(f"v_sub_u32 v{lt[2]}, v{lt[0]}, v{lt[2]}")
            a(f"v_and_b32 v{lt[3]}, 0xfffffff3, v{lt[1]}")
            a(f"v_bfe_u32 v{lt[4]}, v{lt[1]}, 2, 1")
            if cprw == 12:
                a(f"v_lshlrev_b32 v{lt[5]}, 1, v{lt[4]}")
                a(f"v_xor_b32 v{lt[2]}, v{lt[2]}, v{lt[5]}")
            a(f"v_lshl_or_b32 v{lt[3]}, v{lt[4]}, 3, v{lt[3]}")
            a(f"v_bfe_u32 v{lt[4]}, v{lt[1]}, 3, 1")
            a(f"v_lshl_or_b32 v{lt[3]}, v{lt[4]}, 2, v{lt[3]}")
            a(f"v_mul_u32_u24 v{lt[3]}, {stride}, v{lt[3]}")
            a(f"v_lshl_add_u32 v{r}, v{lt[2]}, 4, v{lt[3]}")

    def early():
        gather(pb, 12, 43691, F * 2)
        gather(pa, 10, 52429, D * 2)
        a(f"v_lshlrev_b32 v{v_rb}, 7, v{v_l}")
        a(f"s_lshl_b32 s{S_T2}, s{S_WAVE}, 2")
        a(f"v_mov_b32 v{v_kf}, s{S_T2}")
        a(f"v_mov_b32 v{v_km}, -1")
        a(f"v_lshrrev_b32 v{lt[0]}, 3, v{v_l}")
        a(f"v_mul_u32_u24 v{lt[0]}, {F*2}, v{lt[0]}")
        a(f"v_and_b32 v{lt[1]}, 7, v{v_l}")
        a(f"v_lshl_add_u32 v{v_ca}, v{lt[1]}, 4, v{lt[0]}")
        a(f"v_and_b32 v{lt[0]}, 16, v{v_l}")
        a(f"v_lshl_add_u32 v{v_co}, v{lt[1]}, 5, v{lt[0]}")
        a(f"v_and_b32 v{lt[0]}, 1, v{v_l}")
        a(f"v_lshlrev_b32 v{lt[0]}, 4, v{lt[0]}")
        a(f"v_mov_b32 v{lt[1]}, 0x3f80")
        a(f"v_lshlrev_b32 v{lt[0]}, v{lt[0]}, v{lt[1]}")
        a(f"v_bfe_u32 v{lt[1]}, v{v_l}, 1, 3")
        for i in range(4):
            a(f"v_cmp_eq_u32 vcc, {i}, v{lt[1]}")
            a(f"v_cndmask_b32 v{sel+i}, 0, v{lt[0]}, vcc")
    p1_loader(a, gq, v_l, dma, early)
    a(f"s_and_b32 s{S_WOFF}, s{S_WAVE}, 3")
    a(f"s_lshl_b32 s{S_RW}, s2, 2")
    a(f"s_add_u32 s{S_RW}, s{S_RW}, s{S_WOFF}")
    a(f"s_lshl_b32 s{S_T2}, s{S_J}, 2")
    a(f"s_add_u32 s{S_J}, s{S_T2}, s{S_WOFF}")
    make_srd(a, SRD3, P_WS, WS_IMG, IMG_SZ)
    a("s_waitcnt vmcnt(10) lgkmcnt(0)")
    a("s_barrier")
    a("s_waitcnt vmcnt(0)")
    a("s_barrier")
    gq.lstamp(14)
    dma(27, SRD2)
    gq.lstamp(15)
    lab = a.newlabel("fc")
    a(f"s_cmp_lg_u32 s{S_RW}, 0")
    a(f"s_cbranch_scc1 {lab}")
    make_srd(a, SRD5, P_DBG, 0, 256)
    a("s_mov_b64 exec, 1")
    a(f"v_mov_b32 v{lt[0]}, 0")
    a(f"buffer_store_dword v{lt[0]}, v{lt[0]}, {sr(SRD5,4)}, 0 offen offset:{FLAG} sc1")
    a("s_mov_b64 exec, -1")
    a.label(lab)
    lab = a.newlabel("zw")
    a(f"s_cmp_lg_u32 s{S_WAVE}, 4")
    a(f"s_cbranch_scc1 {lab}")
    a(f"v_mov_b32 v{lt[0]}, 0")
    a(f"ds_write2_b32 v{lt[0]}, v{lt[0]}, v{lt[0]} offset0:0 offset1:1")
    a.label(lab)

    def kvdone(n):
        a(f"s_waitcnt vmcnt({n})")
        a(f"ds_write_b32 v{v_kf}, v{v_km}")
        gq.lstamp(16)
        if INSTR:
            a("s_waitcnt vmcnt(0)")
            gq.lstamp(17)
    dummy = hva()

    def touch():
        for c in range(3):
            if c == 0:
                a(f"s_mul_i32 s{S_T1}, s{S_J}, {50*128}")
            else:
                a(f"s_mul_i32 s{S_T1}, s{S_J}, {120*128}")
                a(f"s_and_b32 s{S_T0}, s{S_XB}, 1")
                a(f"s_mul_i32 s{S_T0}, s{S_T0}, {1966080}")
                a(f"s_add_u32 s{S_T1}, s{S_T1}, s{S_T0}")
                a(f"s_add_u32 s{S_T1}, s{S_T1}, {IMG_GU + (c-1)*56*128}")
            a(f"buffer_load_dword v{dummy}, v{v_rb}, {sr(SRD3,4)}, s{S_T1} offen")
            if c < 2:
                a(f"s_sleep {TSLEEP2}")

    bufB = [hva(12, 4) for _ in range(2)]
    bufA = hva(20, 4)

    def loadsB(buf):
        a(f"s_mul_i32 s{S_SRC}, s{S_U}, 52429")
        a(f"s_lshr_b32 s{S_SRC}, s{S_SRC}, 22")
        a(f"s_mul_i32 s{S_DST}, s{S_SRC}, 80")
        a(f"s_sub_u32 s{S_T2}, s{S_U}, s{S_DST}")
        a(f"s_mul_i32 s{S_SRC}, s{S_SRC}, 192")
        a(f"s_lshr_b32 s{S_DST}, s{S_T2}, 3")
        a(f"s_lshl_b32 s{S_DST}, s{S_DST}, 2")
        a(f"s_and_b32 s{S_KX}, s{S_T2}, 3")
        a(f"s_add_u32 s{S_DST}, s{S_DST}, s{S_KX}")
        a(f"s_mul_i32 s{S_DST}, s{S_DST}, {16*F*2}")
        a(f"s_add_u32 s{S_SRC}, s{S_SRC}, s{S_DST}")
        a(f"s_bitcmp1_b32 s{S_T2}, 2")
        a(f"s_cselect_b32 s{SRD0}, s{P_WU}, s{P_WG}")
        a(f"s_cselect_b32 s{SRD0+1}, s{P_WU+1}, s{P_WG+1}")
        a(f"s_mov_b32 s{SRD0+2}, {F*D*2}")
        for i in range(3):
            a(f"buffer_load_dwordx4 {vr(buf+4*i,4)}, v{pb[i]}, {sr(SRD0,4)}, s{S_SRC} offen")

    def storesB(buf):
        a(f"s_mul_i32 s{S_DST}, s{S_U}, 3072")
        a(f"s_add_u32 s{S_DST}, s{S_DST}, {IMG_GU}")
        for i in range(3):
            a(f"buffer_store_dwordx4 {vr(buf+4*i,4)}, v{v_l16}, {sr(SRD3,4)}, s{S_DST} offen offset:{i*1024} {IMGPOL}")

    a(f"s_mov_b32 s{S_U}, s{S_RW}")
    loadsB(bufB[0])
    a(f"s_cmp_lt_u32 s{S_RW}, 544")
    a("s_cbranch_scc1 k2_rpa")
    a(f"s_add_u32 s{S_U}, s{S_RW}, {1024 - 544}")
    a(f"s_cmp_ge_u32 s{S_U}, 1280")
    a("s_cbranch_scc1 k2_rpe")
    loadsB(bufB[1])
    kvdone(6)
    a("s_waitcnt vmcnt(0)")
    storesB(bufB[1])
    a("s_branch k2_rpf")
    a.label("k2_rpa")
    l1, l2 = a.newlabel("ra"), a.newlabel("ra")
    a(f"s_cmp_ge_u32 s{S_RW}, 160")
    a(f"s_cbranch_scc1 {l1}")
    a(f"s_mul_i32 s{S_SRC}, s{S_RW}, 3277")
    a(f"s_lshr_b32 s{S_SRC}, s{S_SRC}, 16")
    a(f"s_mul_i32 s{S_DST}, s{S_SRC}, 20")
    a(f"s_sub_u32 s{S_DST}, s{S_RW}, s{S_DST}")
    a(f"s_mov_b32 s{SRD0}, s{P_WO}")
    a(f"s_mov_b32 s{SRD0+1}, s{P_WO+1}")
    a(f"s_mov_b32 s{SRD0+2}, {D*D*2}")
    a(f"s_branch {l2}")
    a.label(l1)
    a(f"s_sub_u32 s{S_U}, s{S_RW}, 160")
    a(f"s_mul_i32 s{S_SRC}, s{S_U}, 1366")
    a(f"s_lshr_b32 s{S_SRC}, s{S_SRC}, 16")
    a(f"s_mul_i32 s{S_DST}, s{S_SRC}, 48")
    a(f"s_sub_u32 s{S_DST}, s{S_U}, s{S_DST}")
    a(f"s_mov_b32 s{SRD0}, s{P_WD}")
    a(f"s_mov_b32 s{SRD0+1}, s{P_WD+1}")
    a(f"s_mov_b32 s{SRD0+2}, {F*D*2}")
    a.label(l2)
    a(f"s_mul_i32 s{S_SRC}, s{S_SRC}, 160")
    a(f"s_mul_i32 s{S_DST}, s{S_DST}, {32*D*2}")
    a(f"s_add_u32 s{S_SRC}, s{S_SRC}, s{S_DST}")
    for i in range(5):
        a(f"buffer_load_dwordx4 {vr(bufA+4*i,4)}, v{pa[i]}, {sr(SRD0,4)}, s{S_SRC} offen")
    a(f"s_mul_i32 s{S_DST}, s{S_RW}, 5120")
    kvdone(8)
    a("s_waitcnt vmcnt(0)")
    for i in range(5):
        if i == 4:
            a(f"s_add_u32 s{S_DST}, s{S_DST}, 4096")
        a(f"buffer_store_dwordx4 {vr(bufA+4*i,4)}, v{v_l16}, {sr(SRD3,4)}, s{S_DST} offen offset:{(i%4)*1024} {IMGPOL}")
    a("s_branch k2_rpf")
    a.label("k2_rpe")
    kvdone(3)
    a("s_waitcnt vmcnt(0)")
    a.label("k2_rpf")
    a(f"s_mov_b32 s{S_U}, s{S_RW}")
    storesB(bufB[0])
    if INSTR:
        a("s_waitcnt vmcnt(0)")
        a("s_memrealtime s[100:101]")
        a("s_waitcnt lgkmcnt(0)")
        lab = a.newlabel("hw")
        a(f"s_cmp_lg_u32 s{S_WAVE}, 4")
        a(f"s_cbranch_scc1 {lab}")
        make_srd(a, 40, P_WS, WS_TL + 4096 + 2048, 2048)
        a("v_mov_b32 v2, s82")
        a("v_mov_b32 v3, s100")
        a("s_lshl_b32 s98, s2, 3")
        a("v_mov_b32 v1, s98")
        a("buffer_store_dwordx2 v[2:3], v1, s[40:43], 0 offen")
        a.label(lab)
    def arrive2(s_sh, n, root, out):
        a(f"v_mov_b32 v{lt[2]}, 1")
        a("s_waitcnt vmcnt(0)")
        a(f"buffer_atomic_add v{lt[2]}, v{lt[0]}, {sr(SRDC,4)}, s{s_sh} offen sc0 sc1")
        a("s_waitcnt vmcnt(0)")
        a(f"v_readfirstlane_b32 s{S_T2}, v{lt[2]}")
        a(f"v_mov_b32 v{lt[2]}, 1")
        a(f"s_mov_b32 s{s_sh}, {root}")
        a("s_nop 2")
        a(f"s_cmp_lg_u32 s{S_T2}, {n-1}")
        a(f"s_cbranch_scc1 {out}")
        a(f"buffer_atomic_add v{lt[2]}, v{lt[0]}, {sr(SRDC,4)}, s{s_sh} offen sc0 sc1")
        a("s_waitcnt vmcnt(0)")
        a(f"v_readfirstlane_b32 s{S_T2}, v{lt[2]}")
        a("s_nop 3")
        a(f"s_cmp_lg_u32 s{S_T2}, 15")
        a(f"s_cbranch_scc1 {out}")
        a("s_mov_b64 exec, 0xff")
        a(f"v_lshlrev_b32 v{lt[3]}, 8, v{v_l}")
        a(f"v_mov_b32 v{lt[2]}, 1")
        a(f"buffer_store_dword v{lt[2]}, v{lt[3]}, {sr(SRDC,4)}, s{s_sh} offen offset:2048 sc1")

    def gpoll(off, add):
        l0, l1, l2 = [a.newlabel("gp") for _ in range(3)]
        a("s_mov_b64 exec, 1")
        a(f"v_mov_b32 v{lt[0]}, 0")
        a(f"s_cmp_lg_u32 s{S_HOOK}, 3")
        a(f"s_cbranch_scc1 {l2}")
        a(f"s_lshl_b32 s{S_T0}, s{S_XB}, 8")
        a(f"s_add_u32 s{S_T0}, s{S_T0}, {off}")
        a(f"s_mov_b32 s{S_KX}, 0x8000")
        a.label(l0)
        a(f"buffer_load_dword v{lt[2]}, v{lt[0]}, {sr(SRDC,4)}, s{S_T0} offen sc1")
        a(f"s_sub_u32 s{S_KX}, s{S_KX}, 1")
        a("s_waitcnt vmcnt(0)")
        a(f"v_readfirstlane_b32 s{S_T2}, v{lt[2]}")
        a(f"s_cmp_eq_u32 s{S_KX}, 0")
        a(f"s_cbranch_scc1 {l1}")
        a("s_nop 1")
        a(f"s_cmp_lg_u32 s{S_T2}, 0")
        a(f"s_cbranch_scc1 {l1}")
        a(f"s_sleep {TSLEEP[0]}")
        a(f"s_branch {l0}")
        a.label(l1)
        a(f"v_mov_b32 v{lt[1]}, {add}")
        a(f"ds_add_u32 v{lt[0]}, v{lt[1]}")
        a.label(l2)

    kq = hva(4, 4)
    a("s_mov_b64 exec, 1")
    a(f"v_mov_b32 v{lt[0]}, 0")
    a(f"v_mov_b32 v{lt[1]}, 1")
    a(f"s_and_b32 s{S_T1}, s2, 15")
    a(f"s_lshl_b32 s{S_T1}, s{S_T1}, 8")
    a(f"s_add_u32 s{S_T1}, s{S_T1}, {112*256}")
    gq.lstamp(18)
    kv_wait(a, lt[0], kq, 1)
    a("s_waitcnt vmcnt(0)")
    gq.lstamp(19)
    a(f"ds_add_rtn_u32 v{lt[2]}, v{lt[0]}, v{lt[1]} offset:4")
    a("s_waitcnt lgkmcnt(0)")
    a(f"v_readfirstlane_b32 s{S_HOOK}, v{lt[2]}")
    a("s_nop 3")
    a(f"s_cmp_lg_u32 s{S_HOOK}, 3")
    a("s_cbranch_scc1 k2_lw")
    arrive2(S_T1, 16, CNT_IMG*256, "k2_lw")
    a.label("k2_lw")
    a("s_mov_b64 exec, -1")
    csb = hva(40, 4)
    cacc = hva(4, 4)
    assert hva.n <= 132
    a(f"s_cmp_lt_u32 s{S_RW}, {1024 - 48*NCS}")
    a("s_cbranch_scc1 k2_ncs")
    a(f"s_sub_u32 s{S_T2}, s{S_RW}, {1024 - 48*NCS}")
    a(f"s_mul_i32 s{S_U}, s{S_T2}, 1366")
    a(f"s_lshr_b32 s{S_U}, s{S_U}, 16")
    a(f"s_mul_i32 s{S_SRC}, s{S_U}, 48")
    a(f"s_sub_u32 s{S_SRC}, s{S_T2}, s{S_SRC}")
    a(f"s_cmp_lt_u32 s{S_SRC}, 24")
    a(f"s_cselect_b32 s{SRD0}, s{P_WG}, s{P_WU}")
    a(f"s_cselect_b32 s{SRD0+1}, s{P_WG+1}, s{P_WU+1}")
    a(f"s_mov_b32 s{SRD0+2}, {F*D*2}")
    a(f"s_cselect_b32 s{S_DST}, 0, 24")
    a(f"s_sub_u32 s{S_SRC}, s{S_SRC}, s{S_DST}")
    a(f"s_lshl_b32 s{S_SRC}, s{S_SRC}, 7")
    a(f"s_mul_i32 s{S_U}, s{S_U}, {80*F*2}")
    a(f"s_add_u32 s{S_SRC}, s{S_SRC}, s{S_U}")
    for i in range(10):
        a(f"buffer_load_dwordx4 {vr(csb+4*i,4)}, v{v_ca}, {sr(SRD0,4)}, s{S_SRC} offen")
        a(f"s_add_u32 s{S_SRC}, s{S_SRC}, {8*F*2}")
    make_srd(a, SRD4, P_WS, WS_CS, NCS * 3072 * 4)
    a(f"s_lshl_b32 s{S_T2}, s{S_T2}, 8")
    for i in range(10):
        a(f"s_waitcnt vmcnt({9-i})")
        a(f"v_mfma_f32_16x16x32_bf16 {vr(cacc,4)}, {vr(sel,4)}, {vr(csb+4*i,4)}, " + ("0" if i == 0 else vr(cacc, 4)))
    a("s_nop 7")
    a("s_nop 7")
    for j in range(4):
        a(f"v_add_f32_dpp v{cacc+j}, v{cacc+j}, v{cacc+j} row_ror:8 row_mask:0xf bank_mask:0xf")
    a(f"s_mov_b64 exec, 0x00ff00ff")
    a(f"buffer_store_dwordx4 {vr(cacc,4)}, v{v_co}, {sr(SRD4,4)}, s{S_T2} offen sc1")
    a("s_mov_b64 exec, 1")
    a(f"v_mov_b32 v{lt[0]}, 0")
    a(f"s_and_b32 s{S_T1}, s{S_RW}, 15")
    a(f"s_lshl_b32 s{S_T1}, s{S_T1}, 8")
    a(f"s_add_u32 s{S_T1}, s{S_T1}, {96*256 + 4}")
    arrive2(S_T1, 3*NCS, CNT_KV*256 + 4, "k2_ncs")
    a.label("k2_ncs")
    gpoll((CNT_IMG+8)*256, 1)
    lds_wait(a, lt, 8, "s_bitcmp0_b32 s{}, 0")
    a("s_mov_b64 exec, -1")
    gq.lstamp(20)
    touch()
    gq.lstamp(21)
    if CPF > 1:
        code_touch(a, lt[0], dummy, 0)
    gpoll((CNT_KV+8)*256 + 4, 2)
    a("s_mov_b64 exec, -1")
    ffn.gq = gq
    ffn_loader(a, ffn)

    a.label("k2_code_end")
    kernel_end(a, name, max(va.n, hva.n, ffn.maxv, gq.maxv, V_RAD + 1))
    print('vgprs', va.n, hva.n, ffn.maxv, gq.maxv)
    return (name, 256, 512, KV_SZ)

TSLEEP = [int(x) for x in os.environ.get("TSLEEP", "16").split(",") if x]
TSLEEP2 = int(os.environ.get("TSLEEP2", "16"))
TEARLY = bool(os.environ.get("TEARLY"))


SRDC = 8
TDUM = 243
RES3, V_RAD = 244, 254
XCH = 0
TAB = 156 * 1024
HPOL = os.environ.get("HPOL", "sc1")


def map_proj(a, which):
    a(f"s_and_b32 s{S_T1}, s2, 7")
    a(f"s_lshr_b32 s{S_T0}, s2, 3")
    a(f"s_mov_b32 s{S_J}, s{S_T0}")
    a(f"s_mov_b32 s{S_XB}, s{S_T1}")
    if which == 3:
        a(f"s_mul_i32 s{S_ROT}, s{S_T0}, 52")
        a(f"s_lshr_b32 s{S_ROT}, s{S_ROT}, 8")
        a(f"s_mul_i32 s{S_ROT}, s{S_ROT}, 5")
        a(f"s_sub_u32 s{S_ROT}, s{S_T0}, s{S_ROT}")
        a(f"s_lshr_b32 s{S_T2}, s{S_T0}, 3")
        a(f"s_lshl_b32 s{S_T1}, s{S_T1}, 2")
        a(f"s_add_u32 s{S_T1}, s{S_T1}, s{S_T2}")
        a(f"s_lshl_b32 s{S_TOK0}, s{S_T1}, 6")
        a(f"s_and_b32 s{S_T0}, s{S_T0}, 7")
    else:
        a(f"s_and_b32 s{S_ROT}, s{S_T1}, 1")
        a(f"s_mul_i32 s{S_ROT}, s{S_ROT}, 6")
        a(f"s_and_b32 s{S_T2}, s{S_T0}, 1")
        a(f"s_add_u32 s{S_ROT}, s{S_ROT}, s{S_T2}")
        a(f"s_lshr_b32 s{S_T2}, s{S_T1}, 1")
        a(f"s_lshl_b32 s{S_T2}, s{S_T2}, 3")
        a(f"s_and_b32 s{S_TOK0}, s{S_T0}, 7")
        a(f"s_add_u32 s{S_TOK0}, s{S_TOK0}, s{S_T2}")
        a(f"s_lshl_b32 s{S_TOK0}, s{S_TOK0}, 6")
        a(f"s_and_b32 s{S_T1}, s{S_T1}, 1")
        a(f"s_lshl_b32 s{S_T1}, s{S_T1}, 2")
        a(f"s_lshr_b32 s{S_T0}, s{S_T0}, 3")
        a(f"s_add_u32 s{S_T0}, s{S_T0}, s{S_T1}")
    a(f"s_mul_i32 s{S_COL}, s{S_T0}, 160")


def srd_proj(a, which):
    if which == 3:
        make_srd(a, SRD0, P_WS, WS_O, S * D * 2)
        make_srd(a, SRD1, P_WS, WS_IMG, IMG_SZ)
        a(f"s_mul_i32 s{S_IMG}, s{S_T0}, {5*20480}")
        make_srd(a, SRD2, P_WS, WS_H, S * D * 2)
        make_srd(a, SRD3, P_X, 0, S * D * 2)
        make_srd(a, SRD4, P_WS, WS_ST, S * 64)
    else:
        make_srd(a, SRD0, P_WS, WS_ACT, S * F * 2)
        make_srd(a, SRD1, P_WS, WS_IMG, IMG_SZ)
        a(f"s_mul_i32 s{S_IMG}, s{S_T0}, {12*20480}")
        make_srd(a, SRD2, P_OUT, 0, S * D * 2)
        make_srd(a, SRD3, P_WS, WS_H, S * D * 2)


def map_k4(a):
    a(f"s_and_b32 s{S_XB}, s2, 7")
    a(f"s_lshr_b32 s{S_J}, s2, 3")
    a(f"s_mul_i32 s{S_ROT}, s{S_J}, 26")
    a(f"s_lshr_b32 s{S_ROT}, s{S_ROT}, 8")
    a(f"s_mul_i32 s{S_ROT}, s{S_ROT}, 10")
    a(f"s_sub_u32 s{S_ROT}, s{S_J}, s{S_ROT}")
    a(f"s_lshr_b32 s{S_T2}, s{S_XB}, 1")
    a(f"s_lshl_b32 s{S_T2}, s{S_T2}, 2")
    a(f"s_and_b32 s{S_TOK0}, s{S_J}, 3")
    a(f"s_add_u32 s{S_TOK0}, s{S_TOK0}, s{S_T2}")
    a(f"s_lshl_b32 s{S_TOK0}, s{S_TOK0}, 7")
    a(f"s_lshr_b32 s{S_T2}, s{S_J}, 2")
    a(f"s_and_b32 s{S_T1}, s{S_XB}, 1")
    a(f"s_lshl_b32 s{S_T1}, s{S_T1}, 3")
    a(f"s_add_u32 s{S_T0}, s{S_T2}, s{S_T1}")
    a(f"s_mul_i32 s{S_COL}, s{S_T0}, 192")
    a(f"s_mul_i32 s{S_IMG}, s{S_T0}, {10*24576}")
    make_srd(a, SRD0, P_WS, WS_H, S * D * 2)
    make_srd(a, SRD1, P_WS, WS_IMG, IMG_SZ)
    make_srd(a, SRD3, P_WS, WS_ACT, S * F * 2)


CNT = {0: (0, 7, 16), 1: (16, 7, 16), 2: (32, 6, 8)}
CNT_IMG = 64


def kv_wait(a, v_zero, q, nap):
    lab = a.newlabel("kw")
    a.label(lab)
    if nap:
        a(f"s_sleep {nap}")
    a(f"ds_read_b128 {vr(q,4)}, v{v_zero} offset:16")
    a("s_waitcnt lgkmcnt(0)")
    a(f"v_and_b32 v{q}, v{q}, v{q+1}")
    a(f"v_and_b32 v{q+2}, v{q+2}, v{q+3}")
    a(f"v_and_b32 v{q}, v{q}, v{q+2}")
    a("s_nop 0")
    a(f"v_readfirstlane_b32 s{S_T2}, v{q}")
    a("s_nop 3")
    a(f"s_cmp_lg_u32 s{S_T2}, -1")
    a(f"s_cbranch_scc1 {lab}")


def lds_wait(a, t, nap, cond):
    lab = a.newlabel("lw")
    a.label(lab)
    a(f"s_sleep {nap}")
    a(f"ds_read_b32 v{t[2]}, v{t[0]}")
    a("s_waitcnt lgkmcnt(0)")
    a(f"v_readfirstlane_b32 s{S_T2}, v{t[2]}")
    a("s_nop 3")
    a(cond.format(S_T2))
    a(f"s_cbranch_scc1 {lab}")


PT = os.environ.get("PT", "9").split(",")


def publish(a, t, ph, touch=None):
    lab = a.newlabel("pub")
    a("s_mov_b64 exec, 1")
    a(f"v_mov_b32 v{t[0]}, {TAB + 3072 + 4*ph}")
    a(f"v_mov_b32 v{t[1]}, 1")
    a(f"s_lshr_b32 s{S_T1}, s{S_TOK0}, {CNT[ph][1]}")
    a(f"s_lshl_b32 s{S_T1}, s{S_T1}, 8")
    a(f"s_add_u32 s{S_T1}, s{S_T1}, {CNT[ph][0]*256}")
    a("s_waitcnt vmcnt(0)")
    rstamp(a, {2: 1, 0: 4, 1: 7}[ph])
    a(f"ds_add_rtn_u32 v{t[2]}, v{t[0]}, v{t[1]}")
    a(f"v_mov_b32 v{t[0]}, 0")
    a("s_waitcnt lgkmcnt(0)")
    a(f"v_readfirstlane_b32 s{S_T2}, v{t[2]}")
    a("s_nop 3")
    a(f"s_cmp_lg_u32 s{S_T2}, 3")
    a(f"s_cbranch_scc1 {lab}")
    if LOC:
        a(f"buffer_atomic_add v{t[1]}, v{t[0]}, {sr(SRDC,4)}, s{S_T1} offen offset:128")
    a(f"buffer_atomic_add v{t[1]}, v{t[0]}, {sr(SRDC,4)}, s{S_T1} offen sc1")
    a.label(lab)
    a("s_mov_b64 exec, -1")
    if touch and str(ph) in PT:
        touch()
        a("s_mov_b64 exec, -1")


def await_block(a, t, ph):
    l0, l1 = a.newlabel("aw"), a.newlabel("aw")
    a(f"s_cmp_lg_u32 s{S_WAVE}, 0")
    a(f"s_cbranch_scc1 {l1}")
    a("s_mov_b64 exec, 1")
    a(f"v_mov_b32 v{t[0]}, 0")
    a(f"s_lshr_b32 s{S_T1}, s{S_TOK0}, {CNT[ph][1]}")
    a(f"s_lshl_b32 s{S_T1}, s{S_T1}, 8")
    a(f"s_add_u32 s{S_T1}, s{S_T1}, {CNT[ph][0]*256}")
    a(f"s_mov_b32 s{S_KX}, 0x20000")
    a.label(l0)
    if LOC:
        lb, lw = a.newlabel("aw"), a.newlabel("aw")
        a(f"s_and_b32 s{S_T2}, s{S_KX}, {LOC}")
        a(f"s_cmp_eq_u32 s{S_T2}, 1")
        a(f"s_cbranch_scc1 {lb}")
        a(f"v_mov_b32 v{t[1]}, 0")
        a(f"buffer_atomic_add v{t[1]}, v{t[0]}, {sr(SRDC,4)}, s{S_T1} offen offset:128 sc0")
        a(f"s_branch {lw}")
        a.label(lb)
    a(f"buffer_load_dword v{t[1]}, v{t[0]}, {sr(SRDC,4)}, s{S_T1} offen sc1")
    if LOC:
        a.label(lw)
    a(f"s_sub_u32 s{S_KX}, s{S_KX}, 1")
    a("s_waitcnt vmcnt(0)")
    a(f"v_readfirstlane_b32 s{S_T2}, v{t[1]}")
    a(f"s_cmp_eq_u32 s{S_KX}, 0")
    a(f"s_cselect_b32 s{S_KW}, {CNT[ph][2]}, 0")
    a(f"s_max_u32 s{S_T2}, s{S_T2}, s{S_KW}")
    a(f"s_cmp_lt_u32 s{S_T2}, {CNT[ph][2]}")
    a(f"s_cbranch_scc1 {l0}")
    a("s_mov_b64 exec, -1")
    a.label(l1)
    a("s_barrier")
    rstamp(a, {2: 2, 0: 5, 1: 8}[ph])


def proj_gemm(a, va, which):
    seg = Seg(SRD1, D * 2, 80, 'p160', S_COL, img=(S_IMG, 20480, IMG_WO if which == 3 else IMG_WD))
    K = D if which == 3 else F
    return Gemm(a, va, 64, 2, 2, 1, [seg], 128, 4, K, SRD0, K * 2, S_TOK0, sregs=GS, tag=f"k{which}", xcm=True,
                lds_base=0 if which == 3 else 8192)


def proj_compute(a, va, g, which, sb):
    g.setup()
    t = g.tmp
    v_ad, v_tok, v_a4, v_c8, v_c4 = va(), va(), va(), va(), va()
    res = va(10, 2)
    a(f"v_lshl_add_u32 v{v_tok}, v{g.v_wt}, 1, v{g.v_wo}")
    a(f"v_lshl_add_u32 v{v_tok}, v{v_tok}, 4, v{g.v_i16}")
    a(f"v_add_u32 v{v_tok}, s{S_TOK0}, v{v_tok}")
    a(f"v_mul_u32_u24 v{t[0]}, {D*2}, v{v_tok}")
    a(f"v_add_u32 v{t[0]}, s{S_COL}, v{t[0]}")
    a(f"v_lshl_add_u32 v{v_ad}, v{g.v_g}, 3, v{t[0]}")
    a(f"v_and_b32 v{t[1]}, 1, v{g.v_g}")
    a(f"v_lshl_add_u32 v{v_a4}, v{t[1]}, 5, v{t[0]}")
    a(f"v_lshrrev_b32 v{t[1]}, 1, v{g.v_g}")
    a(f"v_lshl_add_u32 v{v_a4}, v{t[1]}, 4, v{v_a4}")
    a(f"v_and_b32 v{t[0]}, 0xfff0, v{v_tok}")
    a(f"v_mul_u32_u24 v{t[0]}, {D*2}, v{t[0]}")
    a(f"v_lshl_add_u32 v{t[0]}, v{g.v_i16}, 4, v{t[0]}")
    a(f"s_lshl_b32 s{S_T1}, s{S_COL}, 4")
    a(f"v_add_u32 v{t[0]}, s{S_T1}, v{t[0]}")
    a(f"v_lshl_add_u32 v{t[0]}, v{t[1]}, 8, v{t[0]}")
    a(f"v_and_b32 v{t[1]}, 1, v{g.v_g}")
    a(f"v_lshl_add_u32 v{v_c8}, v{t[1]}, 3, v{t[0]}")
    a(f"v_lshl_add_u32 v{v_c4}, v{t[1]}, 9, v{t[0]}")
    if which == 3:
        res = RES3
    await_block(a, t, 1 if which == 5 else 2)
    for fb in range(5):
        if which == 5:
            a(f"buffer_load_dwordx2 {vr(res+2*fb,2)}, v{v_c8}, {sr(SRD3,4)}, 0 offen offset:{fb*512} {HPOL}")
    stamp(a, sb)
    g.mainloop()
    stamp(a, sb + 1)
    rstamp(a, 3 if which == 3 else 9)
    a("s_nop 7")
    a(f"v_mul_u32_u24 v{t[0]}, 5120, v{g.v_wave}")
    a(f"v_lshl_add_u32 v{t[0]}, v{g.v_lane}, 4, v{t[0]}")
    a(f"v_add_u32 v{t[0]}, {XCH}, v{t[0]}")
    a(f"v_xor_b32 v{t[1]}, 2, v{g.v_wave}")
    a(f"v_mul_u32_u24 v{t[1]}, 5120, v{t[1]}")
    a(f"v_lshl_add_u32 v{t[1]}, v{g.v_lane}, 4, v{t[1]}")
    a(f"v_add_u32 v{t[1]}, {XCH}, v{t[1]}")
    for fb in range(5):
        a(f"ds_write_b128 v{t[0]}, {vr(g.acc[1][fb],4)} offset:{fb*1024}")
    a("s_waitcnt lgkmcnt(0)")
    a("s_barrier")
    for fb in range(5):
        a(f"ds_read_b128 {vr(g.acc[1][fb],4)}, v{t[1]} offset:{fb*1024}")
    v_s = va(2, 2)
    v_q = v_s + 1
    v_s2, v_q2 = va(2, 2), va(2, 2)
    assert t[1] % 2 == 0
    if which == 3:
        for r in (v_s2, v_s2 + 1, v_q2, v_q2 + 1):
            a(f"v_mov_b32 v{r}, 0")
    pol = HPOL if which == 3 else ""
    for fb in range(5):
        a(f"s_waitcnt lgkmcnt({4-fb})")
        c, o = g.acc[0][fb], g.acc[1][fb]
        dst = o if fb % 2 == 0 else g.acc[1][fb - 1] + 2
        for p in range(2):
            u = t[1] + 2 * p
            a(f"v_lshlrev_b32 v{u}, 16, v{res+2*fb+p}")
            a(f"v_and_b32 v{u+1}, 0xffff0000, v{res+2*fb+p}")
            a(f"v_pk_add_f32 {vr(c+2*p,2)}, {vr(c+2*p,2)}, {vr(o+2*p,2)}")
            a(f"v_cvt_pk_bf16_f32 v{c+2*p+1}, v{c+2*p}, v{c+2*p+1}")
            a(f"v_lshlrev_b32 v{c+2*p}, 16, v{c+2*p+1}")
            a(f"v_and_b32 v{c+2*p+1}, 0xffff0000, v{c+2*p+1}")
            a(f"v_pk_add_f32 {vr(u,2)}, {vr(u,2)}, {vr(c+2*p,2)}")
            a(f"v_cvt_pk_bf16_f32 v{dst+p}, v{u}, v{u+1}")
            if which == 3:
                a(f"v_lshlrev_b32 v{u}, 16, v{dst+p}")
                a(f"v_and_b32 v{u+1}, 0xffff0000, v{dst+p}")
                a(f"v_pk_add_f32 {vr(v_s2,2)}, {vr(v_s2,2)}, {vr(u,2)}")
                a(f"v_pk_fma_f32 {vr(v_q2,2)}, {vr(u,2)}, {vr(u,2)}, {vr(v_q2,2)}")
        if fb % 2 == 1:
            q = g.acc[1][fb - 1]
            a("s_nop 1")
            a(f"v_permlane16_swap_b32 v{q}, v{q+2}")
            a(f"v_permlane16_swap_b32 v{q+1}, v{q+3}")
            if which == 3:
                a(f"buffer_store_dwordx4 {vr(q,4)}, v{v_c4}, {sr(SRD2,4)}, 0 offen offset:{(fb-1)*512} {pol}")
            else:
                a(f"buffer_store_dwordx4 {vr(q,4)}, v{v_a4}, {sr(SRD2,4)}, 0 offen offset:{(fb-1)*32}")
        elif fb == 4:
            if which == 3:
                a(f"buffer_store_dwordx2 {vr(o,2)}, v{v_c8}, {sr(SRD2,4)}, 0 offen offset:{fb*512} {pol}")
            else:
                a(f"buffer_store_dwordx2 {vr(o,2)}, v{v_ad}, {sr(SRD2,4)}, 0 offen offset:{fb*32}")
    if which == 3:
        a(f"v_add_f32 v{v_s}, v{v_s2}, v{v_s2+1}")
        a(f"v_add_f32 v{v_q}, v{v_q2}, v{v_q2+1}")
        for w in (32, 16):
            a(f"v_mov_b32 v{t[0]}, v{v_s}")
            a(f"v_mov_b32 v{t[1]}, v{v_q}")
            a("s_nop 1")
            a(f"v_permlane{w}_swap_b32 v{v_s}, v{t[0]}")
            a(f"v_permlane{w}_swap_b32 v{v_q}, v{t[1]}")
            a("s_nop 1")
            a(f"v_add_f32 v{v_s}, v{v_s}, v{t[0]}")
            a(f"v_add_f32 v{v_q}, v{v_q}, v{t[1]}")
        a(f"v_lshlrev_b32 v{t[0]}, 3, v{v_tok}")
        a(f"s_lshl_b32 s{S_T0}, s{S_T0}, 14")
        a("s_mov_b64 exec, 0xffff")
        a(f"buffer_store_dwordx2 {vr(v_s,2)}, v{t[0]}, {sr(SRD4,4)}, s{S_T0} offen {pol}")
        stamp(a, sb + 2)
        publish(a, t, 0)


def k4_gemm(a, va):
    sg = Seg(SRD1, F * 2, 96, 'p192', S_COL, img=(S_IMG, 24576, IMG_GU))
    su = Seg(SRD1, F * 2, 96, 'p192', S_COL, img=(S_IMG, 24576, IMG_GU + 12288))
    return Gemm(a, va, 128, 2, 1, 2, [sg, su], 64, K4_NS, D, SRD0, D * 2, S_TOK0, sregs=GS, tag="k4", xcm=True, lds_base=20480)


def k4_compute(a, va, g, sb):
    g.setup()
    t = g.tmp
    v_tok, v_a4, v_b4, v_ta, v_tc = va(), va(), va(), va(), va()
    a(f"v_lshl_add_u32 v{v_tok}, v{g.v_wt}, 6, v{g.v_i16}")
    a(f"v_lshlrev_b32 v{v_ta}, 4, v{v_tok}")
    a(f"v_add_u32 v{v_ta}, {TAB}, v{v_ta}")
    a(f"v_add_u32 v{v_tok}, s{S_TOK0}, v{v_tok}")
    a(f"v_mul_u32_u24 v{t[1]}, 48, v{g.v_wo}")
    a(f"v_lshl_add_u32 v{t[2]}, v{g.v_g}, 2, v{t[1]}")
    a(f"v_lshlrev_b32 v{v_tc}, 2, v{t[2]}")
    a(f"v_add_u32 v{v_tc}, {TAB + 2048}, v{v_tc}")
    a(f"v_and_b32 v{t[0]}, 0xfff0, v{v_tok}")
    a(f"v_mul_u32_u24 v{t[0]}, {F*2}, v{t[0]}")
    a(f"v_lshl_add_u32 v{t[0]}, v{g.v_i16}, 4, v{t[0]}")
    a(f"v_lshl_add_u32 v{t[0]}, v{t[1]}, 5, v{t[0]}")
    a(f"s_lshl_b32 s{S_T1}, s{S_COL}, 4")
    a(f"v_add_u32 v{t[0]}, s{S_T1}, v{t[0]}")
    a(f"v_lshrrev_b32 v{t[1]}, 1, v{g.v_g}")
    a(f"v_lshl_add_u32 v{t[0]}, v{t[1]}, 8, v{t[0]}")
    a(f"v_and_b32 v{t[1]}, 1, v{g.v_g}")
    a(f"v_lshl_add_u32 v{v_a4}, v{t[1]}, 9, v{t[0]}")
    a(f"v_mul_u32_u24 v{t[1]}, {16*F*2}, v{t[1]}")
    a(f"v_add_u32 v{v_b4}, v{t[1]}, v{t[0]}")
    await_block(a, t, 0)
    stamp(a, sb)
    g.mainloop()
    stamp(a, sb + 1)
    rstamp(a, 6)
    st = g.fa[0]
    cs = g.fa[1]
    tmp = g.fb[0]
    for tb in range(4):
        a(f"ds_read_b128 {vr(st+4*tb,4)}, v{v_ta} offset:{tb*256}")
    for sgi in range(2):
        for fb in range(3):
            a(f"ds_read_b128 {vr(cs+12*sgi+4*fb,4)}, v{v_tc} offset:{sgi*384 + fb*64}")
    a("s_waitcnt lgkmcnt(0)")
    for tb in range(4):
        vm, vA, vB, vC = [st + 4 * tb + i for i in range(4)]
        pm, pB = vr(vm, 2), vr(vB, 2)
        for fb in range(3):
            cg, cu = g.acc[tb][fb], g.acc[tb][3 + fb]
            z = tmp + 8 * (fb & 1)
            for h in (0, 2):
                a(f"v_pk_fma_f32 {vr(cg+h,2)}, {pm}, {vr(cs+4*fb+h,2)}, {vr(cg+h,2)} op_sel_hi:[0,1,1]")
                a(f"v_pk_fma_f32 {vr(cu+h,2)}, {pm}, {vr(cs+12+4*fb+h,2)}, {vr(cu+h,2)} op_sel_hi:[0,1,1]")
            for h in (0, 2):
                a(f"v_pk_mul_f32 {vr(z+h,2)}, {vr(cg+h,2)}, {vr(cg+h,2)}")
                a(f"v_pk_mul_f32 {vr(cu+h,2)}, {vr(cu+h,2)}, {vr(cg+h,2)}")
            for h in (0, 2):
                a(f"v_pk_fma_f32 {vr(z+h,2)}, {vr(z+h,2)}, {pB}, {pm} op_sel:[0,0,1] op_sel_hi:[1,0,1]")
            for h in (0, 2):
                a(f"v_pk_mul_f32 {vr(z+h,2)}, {vr(z+h,2)}, {vr(cg+h,2)}")
            for r in range(4):
                a(f"v_exp_f32 v{z+r}, v{z+r}")
            for h in (0, 2):
                a(f"v_pk_fma_f32 {vr(z+h,2)}, {vr(z+h,2)}, {pB}, {pB} op_sel:[0,1,1] op_sel_hi:[1,1,1]")
            for r in range(4):
                a(f"v_rcp_f32 v{z+r}, v{z+r}")
            a("s_nop 0")
            for h in (0, 2):
                a(f"v_pk_mul_f32 {vr(cu+h,2)}, {vr(cu+h,2)}, {vr(z+h,2)}")
            if fb == 1:
                q, dst = g.acc[tb][3], g.acc[tb][3] + 2
            elif fb == 2 and tb % 2 == 1:
                q, dst = g.acc[tb - 1][5], g.acc[tb - 1][5] + 2
            else:
                q, dst = None, cu
            a(f"v_cvt_pk_bf16_f32 v{dst}, v{cu}, v{cu+1}")
            a(f"v_cvt_pk_bf16_f32 v{dst+1}, v{cu+2}, v{cu+3}")
            if q is not None:
                a(f"s_mov_b32 s{S_KW}, {(tb if fb == 1 else tb - 1)*16*F*2}")
                a("s_nop 0")
                a(f"v_permlane16_swap_b32 v{q}, v{q+2}")
                a(f"v_permlane16_swap_b32 v{q+1}, v{q+3}")
                if fb == 1:
                    a(f"buffer_store_dwordx4 {vr(q,4)}, v{v_a4}, {sr(SRD3,4)}, s{S_KW} offen {HPOL}")
                else:
                    a(f"buffer_store_dwordx4 {vr(q,4)}, v{v_b4}, {sr(SRD3,4)}, s{S_KW} offen offset:1024 {HPOL}")
    stamp(a, sb + 2)
    publish(a, t, 1)


class Ffn:
    pass


def ffn_compute(a):
    f = Ffn()
    maxv = 0
    va = VAlloc(1)
    g3 = proj_gemm(a, va, 3)
    g3.tmp = [va() for _ in range(6)]
    map_proj(a, 3)
    srd_proj(a, 3)
    proj_compute(a, va, g3, 3, 4)
    maxv = max(maxv, va.n)
    va = VAlloc(1)
    g4 = k4_gemm(a, va)
    g4.tmp = [va() for _ in range(6)]
    map_k4(a)
    k4_compute(a, va, g4, 7)
    maxv = max(maxv, va.n)
    va = VAlloc(1)
    g5 = proj_gemm(a, va, 5)
    g5.tmp = [va() for _ in range(6)]
    map_proj(a, 5)
    srd_proj(a, 5)
    proj_compute(a, va, g5, 5, 10)
    maxv = max(maxv, va.n)
    stamp_end(a, 12)
    assert g4.lds_bytes + g4.lds_base <= TAB and g5.lds_bytes + g5.lds_base <= TAB
    f.g3, f.g4, f.g5, f.maxv = g3, g4, g5, maxv
    return f


def ffn_loader(a, f):
    g3, g4, g5, maxv = f.g3, f.g4, f.g5, f.maxv
    GC = -2.0 * 0.7978845608028654 * 1.4426950408889634
    pre = {}

    def early4(lva, lt):
        make_srd(a, SRD4, P_WS, WS_ST, S * 64)
        buf = lva(16, 4)
        pre['buf'] = buf
        a(f"v_and_b32 v{lt[0]}, 127, v0")
        a(f"v_add_u32 v{lt[0]}, s{S_TOK0}, v{lt[0]}")
        a(f"v_lshlrev_b32 v{lt[0]}, 3, v{lt[0]}")
        for i in range(8):
            a(f"s_mov_b32 s{S_T1}, {i*16384}")
            a(f"buffer_load_dwordx2 {vr(buf+2*i,2)}, v{lt[0]}, {sr(SRD4,4)}, s{S_T1} offen {HPOL}")

    CSR = 104

    def cs4(lt):
        buf = CSR
        l3 = a.newlabel("k4e")
        a(f"s_cmp_lt_u32 s{S_WAVE}, 6")
        a(f"s_cbranch_scc1 {l3}")
        make_srd(a, SRD5, P_WS, WS_CS, NCS * 3072 * 4)
        a(f"s_lshr_b32 s{S_T2}, s{S_J}, 2")
        a(f"s_and_b32 s{S_T1}, s{S_XB}, 1")
        a(f"s_lshl_b32 s{S_T1}, s{S_T1}, 3")
        a(f"s_add_u32 s{S_T2}, s{S_T2}, s{S_T1}")
        a(f"s_mul_i32 s{S_T2}, s{S_T2}, 384")
        a(f"v_and_b32 v{lt[0]}, 63, v0")
        a(f"v_min_u32 v{lt[0]}, 23, v{lt[0]}")
        a(f"v_lshlrev_b32 v{lt[0]}, 4, v{lt[0]}")
        a(f"s_sub_u32 s{S_T1}, s{S_WAVE}, 6")
        a(f"s_mul_i32 s{S_T1}, s{S_T1}, {1536*4}")
        a(f"s_add_u32 s{S_T1}, s{S_T1}, s{S_T2}")
        for i in range(NCS):
            a(f"buffer_load_dwordx4 {vr(buf+4*i,4)}, v{lt[0]}, {sr(SRD5,4)}, s{S_T1} offen")
            a(f"s_add_u32 s{S_T1}, s{S_T1}, {3072*4}")
        a("s_waitcnt vmcnt(0)")
        a.label(l3)

    def table4(lva, lt):
        buf = pre['buf']
        l2, l3 = a.newlabel("k4e"), a.newlabel("k4e")
        a(f"s_cmp_ge_u32 s{S_WAVE}, 6")
        a(f"s_cbranch_scc1 {l2}")
        for i in range(1, 8):
            a(f"v_add_f32 v{buf}, v{buf}, v{buf+2*i}")
            a(f"v_add_f32 v{buf+1}, v{buf+1}, v{buf+2*i+1}")
        ln_stats(a, buf, buf + 1, buf + 4, buf + 8, lt)
        a(f"v_sub_f32 v{buf+4}, 0, v{buf+4}")
        a(f"v_mul_f32 v{buf+5}, {f32(GC)}, v{buf+8}")
        a(f"v_mul_f32 v{buf+9}, v{buf+8}, v{buf+8}")
        a(f"v_mul_f32 v{buf+6}, v{buf+9}, v{buf+8}")
        a(f"v_mul_f32 v{buf+6}, {f32(GC*0.044715)}, v{buf+6}")
        a(f"v_rcp_f32 v{buf+7}, v{buf+9}")
        a(f"v_lshlrev_b32 v{lt[0]}, 4, v0")
        a(f"v_add_u32 v{lt[0]}, {TAB}, v{lt[0]}")
        a(f"ds_write_b128 v{lt[0]}, {vr(buf+4,4)}")
        a(f"s_branch {l3}")
        a.label(l2)
        buf = CSR
        for k in range(1, NCS):
            for i in (0, 2):
                a(f"v_pk_add_f32 {vr(buf+i,2)}, {vr(buf+i,2)}, {vr(buf+4*k+i,2)}")
        a(f"v_and_b32 v{lt[0]}, 63, v0")
        a(f"v_min_u32 v{lt[0]}, 23, v{lt[0]}")
        a(f"v_lshlrev_b32 v{lt[0]}, 4, v{lt[0]}")
        a(f"s_sub_u32 s{S_T1}, s{S_WAVE}, 6")
        a(f"s_mul_i32 s{S_T1}, s{S_T1}, 384")
        a(f"s_add_u32 s{S_T1}, s{S_T1}, {TAB + 2048}")
        a(f"v_add_u32 v{lt[0]}, s{S_T1}, v{lt[0]}")
        a(f"ds_write_b128 v{lt[0]}, {vr(buf,4)}")
        a.label(l3)
        a("s_waitcnt lgkmcnt(0)")

    def touch_wd(lt):
        a(f"s_and_b32 s{S_T1}, s{S_XB}, 1")
        a(f"s_mul_i32 s{S_T1}, s{S_T1}, 983040")
        a(f"s_mul_i32 s{S_T2}, s{S_J}, {240*128}")
        a(f"s_add_u32 s{S_T1}, s{S_T1}, s{S_T2}")
        a(f"s_add_u32 s{S_T1}, s{S_T1}, {IMG_WD}")
        a(f"v_min_u32 v{lt[0]}, 239, v0")
        a(f"v_lshlrev_b32 v{lt[0]}, 7, v{lt[0]}")
        a(f"buffer_load_dword v{DUMMY}, v{lt[0]}, {sr(SRD1,4)}, s{S_T1} offen")
        ops.append(("t", 0))

    DUMMY = 100
    ops = []
    a("v_and_b32 v0, 255, v0")
    map_proj(a, 3)
    srd_proj(a, 3)
    g3.ld_prepare(S_ROT, head=False, xpol=HPOL, ops=ops)
    a(f"v_mov_b32 v{g3.lt[0]}, 0")
    lds_wait(a, g3.lt, 6, "s_cmp_lt_u32 s{}, 0xfe03")
    g3.lstamp(0)
    for st in range(3):
        g3.ld_issue(st, x=False)
    cs4(g3.lt)
    a("s_barrier")
    a("s_barrier")
    g3.ld_issue(3, x=False)
    a("s_barrier")

    def tail3(st):
        if st == 2:
            map_k4(a)
            g4.ld_prepare(S_ROT, head=False, xpol=HPOL, ops=ops)
            g4.lstamp(0)
        if st <= 4:
            g4.ld_issue(st - 2, x=False)
    g3.ld_run(wdone=True, tail=tail3)
    a("s_barrier")
    a("s_barrier")

    def tail4(st):
        if st == 8:
            a("s_setprio 2")
            table4(g4.lva, g4.lt)
            a("s_setprio 0")
        elif st == 9:
            map_proj(a, 5)
            srd_proj(a, 5)
            g5.ld_prepare(S_ROT, head=False, xpol=HPOL, ops=ops)
            g5.lstamp(0)
            g5.ld_issue(1, x=False)
        elif st == 10:
            g5.ld_issue(0, x=False)
            g5.ld_issue(2, x=False)
            g5.ld_issue(3, x=False)

    def mid4(st):
        if st == 3:
            early4(g4.lva, g4.lt)
            ops.extend([("e", 0)] * 8)
        if st == TWD:
            touch_wd(g4.lt)
    g4.ld_run(wdone=True, tail=tail4, mid=mid4)
    a("s_barrier")
    g5.ld_run(wdone=True)
    for g in (f.gq, g3, g4, g5):
        g.ld_dump()
    a("s_endpgm")
    assert max(g3.lva.n, g4.lva.n, g5.lva.n) < 89 and DUMMY < maxv

K4_NS = 3
TWD = int(os.environ.get('TWD', '9'))


def main():
    a = Asm()
    a.raw('.amdgcn_target "amdgcn-amd-amdhsa--gfx950"')
    a.raw(".text")
    launches = [gen_k2(a)]
    head = open("cdna_kernels/" + NAME + ".s.ref").read().split("\n")
    hdr = [l for l in head if l.startswith(";") and "@launch" not in l and "Override launch" not in l and "grid=ceil" not in l]
    out = "\n".join(hdr) + "\n"
    for n, gx, bx, lds in launches:
        out += f"; @launch kernel={n} grid=({gx},1,1) block=({bx},1,1) lds={lds}\n"
    out += a.text()
    out += '.section .rodata,"a"\n' + "".join(KDS)
    path = sys.argv[1] if len(sys.argv) > 1 else "cdna_kernels/" + NAME + ".s"
    open(path, "w").write(out)
    print("wrote", path, len(out), "bytes;", launches)

if __name__ == "__main__":
    main()
```

```python
import sys

NAME = "sequential_preLN__grouped_kv_mqa__geglu_ffn__prompt"

S, D, H, DH, F = 2048, 640, 32, 20, 1536

WS_Q   = 0
FUSED1 = True
WS_KF  = 0x280000
WS_KV  = WS_KF
KV_SZ  = 163840
NCS    = 8
WS_VF  = WS_KF + 0x20000
WS_KN  = WS_VF + 0x20000
WS_CS  = WS_KN + 0x1000
WS_O   = WS_CS + 0x20000
WS_H   = WS_O + 0x280000
WS_ST  = WS_H + 0x280000
WS_ACT = WS_ST + 0x20000
WS_S1  = WS_ACT + 0x600000
WS_CNT = WS_S1
WS_IMG = WS_S1 + 0x8000
WS_TL = 0x3000000
IMG_WO, IMG_WD, IMG_GU, IMG_SZ = 0, 819200, 819200 + 1966080, 6717440

KA_X, KA_WQ, KA_WK, KA_WV, KA_WO, KA_BX, KA_WG, KA_WU, KA_WD, KA_OUT, KA_DBG, KA_WS = [8 * i for i in range(12)]

import struct, os
INSTR = bool(os.environ.get("INSTR"))
HACK_LIN = bool(os.environ.get("HACK_LIN"))
NOCOMP = os.environ.get("NOCOMP", "").split(",")
NOX = os.environ.get("NOX", "").split(",")
NOW = os.environ.get("NOW", "").split(",")
PF = bool(os.environ.get("PF"))
IMGPOL = os.environ.get("IMGPOL", "sc1")
for _k in ("NORB2", "NORB3", "NORB4"):
    os.environ[_k] = "1"
NOLOAD = os.environ.get("NOLOAD", "").split(",")
def f32(x):
    return "0x%08x" % struct.unpack("<I", struct.pack("<f", x))[0]


class Asm:
    skip_dma = False
    def __init__(self):
        self.lines = []
        self.nlabel = 0

    def __call__(self, s):
        for l in s.split("\n"):
            l = l.strip()
            if self.skip_dma and l.startswith("buffer_load") and l.endswith("lds"):
                continue
            if l:
                self.lines.append("    " + l)

    def label(self, l):
        self.lines.append(l + ":")

    def newlabel(self, p="L"):
        self.nlabel += 1
        return f"{p}_{self.nlabel}"

    def raw(self, s):
        self.lines.append(s)

    def text(self):
        return "\n".join(self.lines) + "\n"


class VAlloc:
    def __init__(self, start=1):
        self.n = start

    def __call__(self, cnt=1, align=1):
        self.n = (self.n + align - 1) // align * align
        r = self.n
        self.n += cnt
        return r


def vr(b, n):
    return f"v[{b}:{b+n-1}]"


def sr(b, n):
    return f"s[{b}:{b+n-1}]"


KIDX = [-1]
LIDX = [0]
def kernel_begin(a, name):
    KIDX[0] += 1
    a.raw(f".globl {name}")
    a.raw(".p2align 8")
    a.raw(f".type {name},@function")
    a.label(name)


KDS = []
def kernel_end(a, name, nvgpr, nsgpr=102):
    nv = (nvgpr + 7) // 8 * 8
    KDS.append(f""".p2align 6
.amdhsa_kernel {name}
  .amdhsa_next_free_vgpr {nv}
  .amdhsa_next_free_sgpr {nsgpr}
  .amdhsa_accum_offset {(nv + 3) // 4 * 4}
  .amdhsa_group_segment_fixed_size 0
  .amdhsa_kernarg_size 96
  .amdhsa_user_sgpr_count 2
  .amdhsa_user_sgpr_kernarg_segment_ptr 1
  .amdhsa_system_sgpr_workgroup_id_x 1
.end_amdhsa_kernel
""")


def make_srd(a, dst, base_s, off, nbytes):
    if off:
        a(f"s_add_u32 s{dst}, s{base_s}, {off}")
        a(f"s_addc_u32 s{dst+1}, s{base_s+1}, 0")
    else:
        a(f"s_mov_b32 s{dst}, s{base_s}")
        a(f"s_mov_b32 s{dst+1}, s{base_s+1}")
    a(f"s_mov_b32 s{dst+2}, {nbytes}")
    a(f"s_mov_b32 s{dst+3}, 0x00020000")


def interleave(mfmas, fillers, nreads=None):
    out = []
    nm, nf = len(mfmas), len(fillers)
    per = 1 if (nreads or nf) * 3 <= nm * 2 + 2 and nf <= nm else 2
    if os.environ.get("OLDIL"):
        per = 0
    fi = 0
    for i, m in enumerate(mfmas):
        out.append(m)
        tgt = (i + 1) * per if per else ((i + 1) * nf + nm - 1) // nm
        while fi < min(tgt, nf):
            out.extend(fillers[fi])
            fi += 1
    while fi < nf:
        out.extend(fillers[fi])
        fi += 1
    return out


class Seg:
    def __init__(self, srd, gstride, nf, kind, colreg=None, img=None):
        self.img = img
        self.srd = srd
        self.gstride = gstride
        self.nf = nf
        self.kind = kind
        self.colreg = colreg


class Gemm:
    def __init__(self, a, va, TT, WT, WK, WF, segs, BK, NS, K, xsrd, xstride, s_tok0,
                 stats=False, colsum=False, sregs=None, tag="g", lds_base=0, xcm=False, slot0=0):
        self.a, self.va = a, va
        self.slot0 = slot0
        self.xcm = xcm
        self.lds_base = lds_base
        self.TT, self.WT, self.WK, self.WF = TT, WT, WK, WF
        assert WT * WK * WF == 4
        self.segs, self.BK, self.NS, self.K = segs, BK, NS, K
        self.xsrd, self.xstride, self.s_tok0 = xsrd, xstride, s_tok0
        self.stats, self.colsum = stats, colsum
        self.tag = tag
        self.TW = TT // WT
        self.TB = self.TW // 16
        self.RB = BK * 2
        self.CPR = self.RB // 16
        self.nst = K // BK
        self.SPS = BK // 32
        self.SPW = self.SPS // WK
        assert self.SPW % 2 == 0
        self.xbytes = TT * self.RB
        off = self.xbytes
        for s in segs:
            s.lstride = 40 if s.kind == 'lin40' else s.nf * 2
            nb = BK * s.lstride
            s.ninstr = (nb + 4095) // 4096 * 4
            s.lbase = off
            off += s.ninstr * 1024
            s.FBW = (s.nf // WF) // 16
        self.stage_bytes = off
        self.nx = self.xbytes // 1024
        assert self.nx % 4 == 0
        self.ndma = self.nx // 4 + sum(s.ninstr // 4 for s in segs)
        self.lds_bytes = self.stage_bytes * NS
        (self.s_woff, self.s_kx, self.s_kw, self.s_wave, self.s_cnt, self.s_slot, self.s_kidx, self.s_dl) = sregs

    def split(self):
        a, va = self.a, self.va
        self.tmp = [va() for _ in range(6)]
        t = self.tmp
        a(f"v_lshrrev_b32 v{t[0]}, 6, v0")
        a("s_nop 0")
        a(f"v_readfirstlane_b32 s{self.s_wave}, v{t[0]}")
        a("s_nop 3")
        a(f"s_cmp_ge_u32 s{self.s_wave}, 4")
        a(f"s_cbranch_scc1 {self.tag}_loader")

    def ld_prepare(self, s_rot=None, head=True, xpol="", ops=None, v0=1):
        a = self.a
        va = self.lva = VAlloc(v0)
        t = self.lt = [va() for _ in range(6)]
        self.s_rot, self.xpol = s_rot, xpol
        self.ops = [] if ops is None else ops
        if head:
            a.label(f"{self.tag}_loader")
            a(f"v_and_b32 v0, 255, v0")
        a(f"s_and_b32 s{self.s_woff}, s{self.s_wave}, 3")
        a(f"s_lshl_b32 s{self.s_woff}, s{self.s_woff}, 10")
        lg = {8: 3, 16: 4}[self.CPR]
        v_dx = self.v_dx = va()
        if self.xcm:
            a(f"v_lshrrev_b32 v{t[1]}, {lg+4}, v0")
            a(f"v_and_b32 v{t[2]}, {self.CPR*16-1}, v0")
            a(f"v_lshlrev_b32 v{t[1]}, 4, v{t[1]}")
            a(f"v_add_u32 v{t[1]}, s{self.s_tok0}, v{t[1]}")
            a(f"v_mul_u32_u24 v{t[1]}, {self.xstride}, v{t[1]}")
            a(f"v_lshl_add_u32 v{v_dx}, v{t[2]}, 4, v{t[1]}")
        else:
            a(f"v_lshrrev_b32 v{t[1]}, {lg}, v0")
            a(f"v_and_b32 v{t[2]}, {self.CPR-1}, v0")
            if self.CPR == 8:
                a(f"v_bfe_u32 v{t[3]}, v{t[1]}, 1, 3")
            else:
                a(f"v_and_b32 v{t[3]}, 15, v{t[1]}")
            a(f"v_xor_b32 v{t[2]}, v{t[2]}, v{t[3]}")
            a(f"v_add_u32 v{t[1]}, s{self.s_tok0}, v{t[1]}")
            a(f"v_mul_u32_u24 v{t[1]}, {self.xstride}, v{t[1]}")
            a(f"v_lshl_add_u32 v{v_dx}, v{t[2]}, 4, v{t[1]}")
        done = {}
        for s in self.segs:
            key = (s.kind, s.nf)
            if key in done:
                s.v_d = done[key]
                continue
            s.v_d = []
            cprw = s.lstride // 16 if s.kind != 'lin40' else None
            for j in range(s.ninstr // 4):
                if s.kind == 'lin40' or s.img:
                    if j == 0:
                        r = va()
                        a(f"v_lshlrev_b32 v{r}, 4, v0")
                    s.v_d.append(r)
                    continue
                r = va()
                s.v_d.append(r)
                a(f"v_add_u32 v{t[0]}, {j*256}, v0")
                magic = {10: 52429, 12: 43691}[cprw]
                a(f"v_mul_u32_u24 v{t[1]}, {magic}, v{t[0]}")
                a(f"v_lshrrev_b32 v{t[1]}, 19, v{t[1]}")
                a(f"v_mul_u32_u24 v{t[2]}, {cprw}, v{t[1]}")
                a(f"v_sub_u32 v{t[2]}, v{t[0]}, v{t[2]}")
                a(f"v_and_b32 v{t[3]}, 0xfffffff3, v{t[1]}")
                a(f"v_bfe_u32 v{t[4]}, v{t[1]}, 2, 1")
                if s.kind == 'p192':
                    a(f"v_lshlrev_b32 v{t[5]}, 1, v{t[4]}")
                    a(f"v_xor_b32 v{t[2]}, v{t[2]}, v{t[5]}")
                a(f"v_lshl_or_b32 v{t[3]}, v{t[4]}, 3, v{t[3]}")
                a(f"v_bfe_u32 v{t[4]}, v{t[1]}, 3, 1")
                a(f"v_lshl_or_b32 v{t[3]}, v{t[4]}, 2, v{t[3]}")
                a(f"v_mul_u32_u24 v{t[3]}, {s.gstride}, v{t[3]}")
                a(f"v_lshl_add_u32 v{r}, v{t[2]}, 4, v{t[3]}")
                if s.colreg is not None:
                    a(f"v_add_u32 v{r}, s{s.colreg}, v{r}")
            done[key] = s.v_d
        self.lidx = LIDX[0]
        LIDX[0] += 1
        self.v_st = 196 + self.lidx

    def ld_kset(self, st):
        a = self.a
        if self.s_rot is None:
            a(f"s_mov_b32 s{self.s_kidx}, {st}")
        elif st == 0:
            a(f"s_mov_b32 s{self.s_kidx}, s{self.s_rot}")
        else:
            a(f"s_add_u32 s{self.s_kidx}, s{self.s_rot}, {st}")
            a(f"s_sub_u32 s{self.s_dl}, s{self.s_kidx}, {self.nst}")
            a(f"s_cmp_ge_u32 s{self.s_kidx}, {self.nst}")
            a(f"s_cselect_b32 s{self.s_kidx}, s{self.s_dl}, s{self.s_kidx}")

    def ld_issue(self, st, x=True, w=True):
        a = self.a
        gs = self.segs[0].gstride
        xrows = 256 // self.CPR
        slot = self.lds_base + ((st + self.slot0) % self.NS) * self.stage_bytes
        a.skip_dma = self.tag in NOLOAD
        self.ld_kset(st)
        if x:
            a(f"s_mul_i32 s{self.s_kx}, s{self.s_kidx}, {self.CPR*256 if self.xcm else self.BK*2}")
            for j in range(self.nx // 4):
                a(f"s_add_u32 m0, s{self.s_woff}, {slot + j*4096}")
                if j:
                    a(f"s_add_u32 s{self.s_kx}, s{self.s_kx}, {xrows*self.xstride}")
                else:
                    a("s_nop 0")
                a(f"buffer_load_dwordx4 v{self.v_dx}, {sr(self.xsrd,4)}, s{self.s_kx} offen {self.xpol} lds")
                self.ops.append((self.tag, st))
        if w:
            if self.segs[0].img:
                a(f"s_mul_i32 s{self.s_kw}, s{self.s_kidx}, {self.segs[0].img[1]}")
                a(f"s_add_u32 s{self.s_kw}, s{self.s_kw}, s{self.segs[0].img[0]}")
            else:
                a(f"s_mul_i32 s{self.s_kw}, s{self.s_kidx}, {self.BK*gs}")
            for s in self.segs:
                if s.gstride != gs:
                    a(f"s_mul_i32 s{self.s_kw}, s{self.s_kidx}, {self.BK*s.gstride}")
                for j, r in enumerate(s.v_d):
                    a(f"s_add_u32 m0, s{self.s_woff}, {slot + s.lbase + j*4096}")
                    if s.kind == 'lin40' or s.img:
                        a(f"s_add_u32 s{self.s_dl}, s{self.s_kw}, {j*4096 + (s.img[2] if s.img else 0)}")
                        a(f"buffer_load_dwordx4 v{r}, {sr(s.srd,4)}, s{self.s_dl} offen lds")
                    else:
                        a("s_nop 0")
                        a(f"buffer_load_dwordx4 v{r}, {sr(s.srd,4)}, s{self.s_kw} offen lds")
                    self.ops.append((self.tag, st))

    def lstamp(self, idx):
        a = self.a
        a.skip_dma = False
        if INSTR:
            a("s_memtime s[98:99]")
            a("s_waitcnt lgkmcnt(0)")
            a("s_sub_u32 s98, s98, s80")
            a(f"v_writelane_b32 v{self.v_st}, s98, {idx}")

    def ld_run(self, wdone=False, tail=None, mid=None):
        a = self.a
        ops = self.ops

        def ready(st):
            last = max(i for i, o in enumerate(ops) if o == (self.tag, st))
            n = len(ops) - 1 - last
            assert n < 64
            a(f"s_waitcnt vmcnt({n})")
            self.lstamp(st + 2)
            a("s_barrier")

        NS, nst = self.NS, self.nst
        self.lstamp(1)
        wf = not wdone
        self.ld_issue(0, w=wf)
        self.ld_issue(1, w=wf)
        ready(0)
        for st in range(2, NS):
            self.ld_issue(st, w=wf)
        for st in range(NS, nst):
            ready(st - NS + 1)
            self.ld_issue(st)
            if mid:
                mid(st)
        for st in range(nst - NS + 1, nst):
            ready(st)
            if tail:
                tail(st)
        a("s_barrier")
        if tail:
            tail(nst)

    def ld_dump(self):
        a = self.a
        if INSTR:
            lab = a.newlabel("ls")
            a(f"s_cmp_lg_u32 s2, {INSTR_WG}")
            a(f"s_cbranch_scc1 {lab}")
            a(f"s_cmp_lg_u32 s{self.s_wave}, 4")
            a(f"s_cbranch_scc1 {lab}")
            make_srd(a, 92, P_WS, WS_TL + 0x10000 + self.lidx * 256, 128)
            a(f"v_lshlrev_b32 v89, 2, v0")
            a(f"buffer_store_dword v{self.v_st}, v89, s[92:95], 0 offen")
            a("s_waitcnt vmcnt(0)")
            a.label(lab)

    def loader(self, s_rot=None, cont=None):
        a = self.a
        self.ld_prepare(s_rot)
        self.lstamp(0)
        self.ld_run()
        self.ld_dump()
        if cont is None:
            a("s_endpgm")
        else:
            cont(self.lva, self.lt)

    def setup(self):
        a, va = self.a, self.va
        t = self.tmp
        lane, i16, g, wv = va(), va(), va(), va()
        self.v_lane, self.v_i16, self.v_g, self.v_wave = lane, i16, g, wv
        a(f"v_and_b32 v{lane}, 63, v0")
        a(f"v_lshrrev_b32 v{wv}, 6, v0")
        a(f"v_and_b32 v{i16}, 15, v0")
        a(f"v_bfe_u32 v{g}, v0, 4, 2")
        wt, wo = va(), va()
        self.v_wt, self.v_wo = wt, wo
        a(f"v_and_b32 v{wt}, {self.WT-1}, v{wv}")
        sh = {1: 0, 2: 1, 4: 2}[self.WT]
        a(f"v_lshrrev_b32 v{wo}, {sh}, v{wv}")
        self.addr_regs = []
        done = {}
        for s in self.segs:
            key = (s.kind, s.nf)
            if key in done:
                s.v_a = done[key]
                continue
            if s.kind == 'lin40':
                a(f"v_lshlrev_b32 v{t[0]}, 3, v{g}")
            else:
                a(f"v_lshrrev_b32 v{t[0]}, 1, v{g}")
                a(f"v_lshlrev_b32 v{t[0]}, 4, v{t[0]}")
                a(f"v_and_b32 v{t[1]}, 1, v{g}")
                a(f"v_lshl_add_u32 v{t[0]}, v{t[1]}, 2, v{t[0]}")
            a(f"v_lshrrev_b32 v{t[1]}, 2, v{i16}")
            a(f"v_add_u32 v{t[0]}, v{t[0]}, v{t[1]}")
            if self.WK > 1:
                a(f"v_mov_b32 v{t[1]}, {self.SPW*32}")
                a(f"v_mad_u32_u24 v{t[0]}, v{wo}, v{t[1]}, v{t[0]}")
            a(f"v_mul_u32_u24 v{t[0]}, {s.lstride}, v{t[0]}")
            a(f"v_and_b32 v{t[1]}, 3, v{i16}")
            a(f"v_lshl_add_u32 v{t[0]}, v{t[1]}, 3, v{t[0]}")
            if s.kind == 'p192':
                regs = []
                for b in range(s.FBW):
                    r = va()
                    regs.append(r)
                    if self.WF > 1:
                        a(f"v_mul_u32_u24 v{t[1]}, {s.FBW}, v{wo}")
                        a(f"v_add_u32 v{t[1]}, {b}, v{t[1]}")
                    else:
                        a(f"v_mov_b32 v{t[1]}, {b}")
                    a(f"v_and_b32 v{t[2]}, 1, v{g}")
                    a(f"v_xor_b32 v{t[1]}, v{t[1]}, v{t[2]}")
                    a(f"v_lshl_add_u32 v{r}, v{t[1]}, 5, v{t[0]}")
                s.v_a = regs
                self.addr_regs += regs
            else:
                r = va()
                if self.WF > 1:
                    a(f"v_mul_u32_u24 v{t[1]}, {s.FBW*32}, v{wo}")
                    a(f"v_add_u32 v{r}, v{t[0]}, v{t[1]}")
                else:
                    a(f"v_mov_b32 v{r}, v{t[0]}")
                s.v_a = [r]
                self.addr_regs.append(r)
            done[key] = s.v_a
        self.v_b = []
        if self.xcm:
            r = va()
            self.v_b = [r] * self.SPW
            self.addr_regs.append(r)
            a(f"v_mul_u32_u24 v{t[0]}, {self.TW*self.RB}, v{wt}")
            a(f"v_lshl_add_u32 v{t[0]}, v{lane}, 4, v{t[0]}")
            if self.WK > 1:
                a(f"v_mul_u32_u24 v{t[2]}, {1024*self.SPW}, v{wo}")
                a(f"v_add_u32 v{r}, v{t[0]}, v{t[2]}")
            else:
                a(f"v_mov_b32 v{r}, v{t[0]}")
        self.swapb = self.WK == 2
        a(f"v_mul_u32_u24 v{t[0]}, {self.TW}, v{wt}")
        a(f"v_add_u32 v{t[0]}, v{t[0]}, v{i16}")
        if self.CPR == 8:
            a(f"v_bfe_u32 v{t[1]}, v{t[0]}, 1, 3")
        else:
            a(f"v_and_b32 v{t[1]}, 15, v{t[0]}")
        a(f"v_mul_u32_u24 v{t[0]}, {self.RB}, v{t[0]}")
        for ls in range(self.SPW if not self.xcm else 0):
            r = va()
            self.v_b.append(r)
            self.addr_regs.append(r)
            if self.WK > 1:
                a(f"v_mul_u32_u24 v{t[2]}, {4*self.SPW}, v{wo}")
                a(f"v_add3_u32 v{t[2]}, v{t[2]}, v{g}, {4*ls}")
            else:
                a(f"v_add_u32 v{t[2]}, {4*ls}, v{g}")
            a(f"v_xor_b32 v{t[2]}, v{t[2]}, v{t[1]}")
            a(f"v_lshl_add_u32 v{r}, v{t[2]}, 4, v{t[0]}")
        if self.swapb:
            assert self.TB == 2
            m = {}
            a(f"v_mul_u32_u24 v{t[2]}, {16*self.RB}, v{wo}")
            a(f"v_sub_u32 v{t[3]}, {16*self.RB}, v{t[2]}")
            for r in self.v_b:
                if r not in m:
                    m[r] = va()
                    self.addr_regs.append(m[r])
                    a(f"v_add_u32 v{m[r]}, v{t[3]}, v{r}")
                    a(f"v_add_u32 v{r}, v{t[2]}, v{r}")
            self.v_b2 = [m[r] for r in self.v_b]
        if self.lds_base:
            for r in self.addr_regs:
                a(f"v_add_u32 v{r}, {self.lds_base + self.slot0*self.stage_bytes}, v{r}")
        self.nA = sum(s.FBW for s in self.segs)
        self.fa = [va(4 * self.nA, 4) for _ in range(2)]
        self.fb = [va(4 * self.TB, 4) for _ in range(2)]
        self.acc = [[va(4, 4) for _ in range(self.nA)] for _ in range(self.TB)]
        accs = [r for row in self.acc for r in row]
        if self.stats or self.colsum:
            self.v_ones = va(4, 4)
            for i in range(4):
                a(f"v_mov_b32 v{self.v_ones+i}, 0x3f803f80")
        if self.stats:
            self.acc_sum = [va(4, 4) for _ in range(self.TB)]
            self.acc_sq = [va(4, 4) for _ in range(self.TB)]
            accs += self.acc_sum + self.acc_sq
        if self.colsum:
            self.acc_cs = [va(4, 4) for _ in range(self.nA)]
            accs += self.acc_cs
        for r in accs:
            for i in range(4):
                a(f"v_mov_b32 v{r+i}, 0")

    def read_units(self, ls, buf):
        units = []
        fi = 0
        for s in self.segs:
            for b in range(s.FBW):
                for e in range(2):
                    if s.kind == 'lin40':
                        off = s.lbase + (ls * 32 + 4 * e) * 40 + b * 32
                        ar = s.v_a[0]
                    elif s.kind == 'p192':
                        off = s.lbase + (ls * 32 + 8 * e) * s.lstride
                        ar = s.v_a[b]
                    else:
                        off = s.lbase + (ls * 32 + 8 * e) * s.lstride + b * 32
                        ar = s.v_a[0]
                    assert off < 65536
                    d = self.fa[buf] + 4 * fi + 2 * e
                    units.append([f"ds_read_b64_tr_b16 {vr(d,2)}, v{ar} offset:{off}"])
                fi += 1
        for tb in range(self.TB):
            off = tb * 16 * self.RB + (ls * 1024 if self.xcm else 0)
            d = self.fb[buf] + 4 * tb
            ar = self.v_b[ls]
            if self.swapb and tb:
                off -= 16 * self.RB
                ar = self.v_b2[ls]
            units.append([f"ds_read_b128 {vr(d,4)}, v{ar} offset:{off}"])
        return units[-self.TB:] + units[:-self.TB]

    def mfmas(self, buf):
        out = []
        for fi in range(self.nA):
            A = vr(self.fa[buf] + 4 * fi, 4)
            for tb in range(self.TB):
                B = vr(self.fb[buf] + 4 * tb, 4)
                c = vr(self.acc[tb][fi], 4)
                out.append(f"v_mfma_f32_16x16x32_bf16 {c}, {A}, {B}, {c}")
            if self.colsum:
                c = vr(self.acc_cs[fi], 4)
                out.append(f"v_mfma_f32_16x16x32_bf16 {c}, {A}, {vr(self.v_ones,4)}, {c}")
        if self.stats:
            for tb in range(self.TB):
                B = vr(self.fb[buf] + 4 * tb, 4)
                c = vr(self.acc_sum[tb], 4)
                out.append(f"v_mfma_f32_16x16x32_bf16 {c}, {vr(self.v_ones,4)}, {B}, {c}")
                c = vr(self.acc_sq[tb], 4)
                out.append(f"v_mfma_f32_16x16x32_bf16 {c}, {B}, {B}, {c}")
        return out

    def ld_ready(self, st):
        ops = self.ops
        last = max(i for i, o in enumerate(ops) if o == (self.tag, st))
        n = len(ops) - 1 - last
        assert n < 64
        self.a(f"s_waitcnt vmcnt({n})")
        self.lstamp(st + 2)
        self.a("s_barrier")

    def mainloop(self, post_first=None, pre_bar=None):
        a = self.a
        a(f"s_mov_b32 s{self.s_cnt}, {self.nst}")
        a(f"s_mov_b32 s{self.s_slot}, {self.slot0*self.stage_bytes}")
        a("s_barrier")
        if post_first:
            post_first()
        for u in self.read_units(0, 0):
            for l in u:
                a(l)
        lp = f"{self.tag}_loop"
        a.label(lp)
        for ls in range(self.SPW):
            buf = ls & 1
            a("s_waitcnt lgkmcnt(0)")
            mf = self.mfmas(buf)
            if ls == self.SPW - 1:
                a(mf[0])
                mf = mf[1:]
                if pre_bar:
                    pre_bar()
                a("s_barrier")
                fill = self.read_units(0, buf ^ 1)
                fill.append([f"s_sub_u32 s{self.s_cnt}, s{self.s_cnt}, 1", f"s_cmp_lg_u32 s{self.s_cnt}, 0"])
            else:
                fill = self.read_units(ls + 1, buf ^ 1)
                if ls == self.SPW - 2:
                    fill.append([f"s_mov_b32 s{self.s_dl}, s{self.s_slot}",
                                 f"s_add_u32 s{self.s_slot}, s{self.s_slot}, {self.stage_bytes}"])
                    fill.append([f"s_cmp_ge_u32 s{self.s_slot}, {self.lds_bytes}",
                                 f"s_cselect_b32 s{self.s_slot}, 0, s{self.s_slot}",
                                 f"s_sub_u32 s{self.s_dl}, s{self.s_slot}, s{self.s_dl}"])
                    for r in self.addr_regs:
                        fill.append([f"v_add_u32 v{r}, s{self.s_dl}, v{r}"])
            for l in interleave(mf, fill, len(self.read_units(0, 0))):
                a(l)
        a(f"s_cbranch_scc1 {lp}")
        a("s_waitcnt vmcnt(0) lgkmcnt(0)")


P_X, P_WQ, P_WK, P_WV, P_WO, P_BX, P_WG, P_WU, P_WD, P_OUT, P_DBG, P_WS = [16 + 2 * i for i in range(12)]
SRD0, SRD1, SRD2, SRD3, SRD4, SRD5 = 40, 44, 48, 52, 56, 60
S_WOFF, S_KX, S_KW, S_WAVE = 64, 65, 66, 67
S_TOK0, S_COL, S_T0, S_T1, S_T2 = 68, 69, 70, 71, 72
S_CNT_, S_SLOT_, S_KIDX, S_DL, S_ROT = 76, 77, 78, 79, 73
GS = (S_WOFF, S_KX, S_KW, S_WAVE, S_CNT_, S_SLOT_, S_KIDX, S_DL)


def load_kernargs(a):
    if INSTR:
        for i in range(84, 98):
            a(f"s_mov_b32 s{i}, 0")
        a("s_memtime s[80:81]")
        a("s_memrealtime s[82:83]")
    a("s_load_dwordx16 s[16:31], s[0:1], 0")
    a("s_load_dwordx8 s[32:39], s[0:1], 64")


RT = [int(x) for x in os.environ.get("RT", "0,1,2").split(",")]
def rstamp(a, idx):
    if INSTR and idx in RT:
        a("s_memrealtime s[98:99]")
        a("s_waitcnt lgkmcnt(0)")
        a(f"s_mov_b32 s{(3, 7, 15)[RT.index(idx)]}, s98")


P1ST = bool(os.environ.get("P1ST"))
def stamp(a, idx, p1=False):
    if INSTR and (p1 == P1ST or idx < 4):
        a("s_memtime s[98:99]")
        a("s_waitcnt lgkmcnt(0)")
        a(f"s_sub_u32 s{84+idx}, s98, s80")


def stamp_end(a, n, wg=None):
    if INSTR:
        lab = a.newlabel("se")
        a("s_mov_b64 exec, -1")
        a("s_waitcnt vmcnt(0)")
        a("s_memtime s[98:99]")
        a("s_memrealtime s[100:101]")
        a("s_waitcnt lgkmcnt(0)")
        a(f"s_sub_u32 s{84+n}, s98, s80")
        a(f"s_sub_u32 s{85+n}, s100, s82")
        lab2 = a.newlabel("se")
        a(f"s_cmp_lg_u32 s{S_WAVE}, 0")
        a(f"s_cbranch_scc1 {lab2}")
        make_srd(a, 40, P_WS, WS_TL + KIDX[0] * 4096, 4096)
        a("s_getreg_b32 s98, hwreg(HW_REG_XCC_ID)")
        a("s_and_b32 s98, s98, 7")
        a("s_andn2_b32 s100, s100, 7")
        a("s_or_b32 s100, s100, s98")
        a("v_mov_b32 v2, s82")
        a("v_mov_b32 v3, s100")
        a("s_lshl_b32 s98, s2, 3")
        a("v_mov_b32 v1, s98")
        a("buffer_store_dwordx2 v[2:3], v1, s[40:43], 0 offen")
        make_srd(a, 40, P_WS, WS_TL + 2 * 4096, 4096)
        a("v_mov_b32 v3, s3")
        a("v_mov_b32 v4, s7")
        a("v_mov_b32 v5, s15")
        a("v_lshlrev_b32 v1, 1, v1")
        a("buffer_store_dwordx4 v[2:5], v1, s[40:43], 0 offen")
        a.label(lab2)
        a(f"s_cmp_lg_u32 s2, {INSTR_WG if wg is None else wg}")
        a(f"s_cbranch_scc1 {lab}")
        a(f"s_cmp_lg_u32 s{S_WAVE}, 0")
        a(f"s_cbranch_scc1 {lab}")
        make_srd(a, 40, P_DBG, 0, 256)
        a("v_mov_b32 v1, 0")
        for i in range(14):
            a(f"v_mov_b32 v2, s{84+i}")
            a(f"buffer_store_dword v2, v1, s[40:43], 0 offen offset:{4*i}")
        a.label(lab)
INSTR_WG = int(os.environ.get("INSTR_WG", "100"))


def round_bf16(a, dst, src):
    a(f"v_cvt_pk_bf16_f32 v{dst}, v{src}, v{src}")
    a(f"v_lshlrev_b32 v{dst}, 16, v{dst}")


def ln_stats(a, v_sum, v_sq, v_mean, v_rstd, t):
    a(f"v_mul_f32 v{v_mean}, {f32(1.0/D)}, v{v_sum}")
    a(f"v_mul_f32 v{t[0]}, {f32(1.0/D)}, v{v_sq}")
    a(f"v_fma_f32 v{t[0]}, -v{v_mean}, v{v_mean}, v{t[0]}")
    a(f"v_max_f32 v{t[0]}, 0, v{t[0]}")
    round_bf16(a, v_mean, v_mean)
    round_bf16(a, t[0], t[0])
    a(f"v_add_f32 v{t[0]}, {f32(1e-5)}, v{t[0]}")
    round_bf16(a, t[0], t[0])
    a(f"v_sqrt_f32 v{t[0]}, v{t[0]}")
    a("s_nop 0")
    round_bf16(a, t[0], t[0])
    a(f"v_rcp_f32 v{v_rstd}, v{t[0]}")
    a("s_nop 0")


def gram_diag(a, g, acc_sq, dst):
    t = g.tmp
    a(f"v_and_b32 v{t[0]}, 3, v{g.v_i16}")
    a(f"v_mov_b32 v{t[1]}, v{acc_sq}")
    for r in range(1, 4):
        a(f"v_cmp_eq_u32 vcc, {r}, v{t[0]}")
        a("s_nop 1")
        a(f"v_cndmask_b32 v{t[1]}, v{t[1]}, v{acc_sq+r}, vcc")
    a(f"v_lshrrev_b32 v{t[0]}, 2, v{g.v_i16}")
    a(f"v_lshl_add_u32 v{t[0]}, v{t[0]}, 4, v{g.v_i16}")
    a(f"v_lshlrev_b32 v{t[0]}, 2, v{t[0]}")
    a(f"ds_bpermute_b32 v{dst}, v{t[0]}, v{t[1]}")
    a("s_waitcnt lgkmcnt(0)")


def xlane_add(a, v, v_lane, t0, t1, masks, op="v_add_f32"):
    for m in masks:
        a(f"v_xor_b32 v{t0}, {m}, v{v_lane}")
        a(f"v_lshlrev_b32 v{t0}, 2, v{t0}")
        a(f"ds_bpermute_b32 v{t1}, v{t0}, v{v}")
        a("s_waitcnt lgkmcnt(0)")
        a(f"{op} v{v}, v{v}, v{t1}")


QSCALE = (DH ** -0.5) * 1.4426950408889634


def prefetch_lin(a, v_tid, v_t, v_dummy, srd, s_base, s_j, nlines, s_tmp, nthreads=256):
    a(f"s_mul_i32 s{s_tmp}, s{s_j}, {nlines*128}")
    if s_base is not None:
        a(f"s_add_u32 s{s_tmp}, s{s_tmp}, s{s_base}")
    a(f"v_lshlrev_b32 v{v_t}, 7, v{v_tid}")
    n = (nlines + nthreads - 1) // nthreads
    for i in range(n):
        if i:
            a(f"s_add_u32 s{s_tmp}, s{s_tmp}, {nthreads*128}")
        a(f"buffer_load_dword v{v_dummy}, v{v_t}, {sr(srd,4)}, s{s_tmp} offen")

S_J, S_XB, S_IMG = 12, 13, 14

def dpp_rowmax(a, v):
    for n in (1, 2, 4, 8):
        a("s_nop 1")
        a(f"v_max_f32_dpp v{v}, v{v}, v{v} row_shr:{n} row_mask:0xf bank_mask:0xf bound_ctrl:0")


def swap_add(a, v, t, which):
    a(f"v_mov_b32 v{t}, v{v}")
    a("s_nop 1")
    a(f"v_permlane{which}_swap_b32 v{v}, v{t}")
    a("s_nop 1")
    a(f"v_add_f32 v{v}, v{v}, v{t}")


def gen_k1(a):
    name = "k1_qkv_kernel"
    kernel_begin(a, name)
    a("s_cmp_ge_u32 s2, 256")
    a("s_cbranch_scc1 k1_end")
    load_kernargs(a)
    a(f"s_and_b32 s{S_T1}, s2, 7")
    a(f"s_lshr_b32 s{S_T0}, s2, 3")
    a(f"s_mul_i32 s{S_ROT}, s{S_T0}, 52")
    a(f"s_lshr_b32 s{S_ROT}, s{S_ROT}, 8")
    a(f"s_mul_i32 s{S_ROT}, s{S_ROT}, 5")
    a(f"s_sub_u32 s{S_ROT}, s{S_T0}, s{S_ROT}")
    if os.environ.get("K0ROT", "0") == "0":
        a(f"s_mov_b32 s{S_ROT}, 0")
    a(f"s_lshr_b32 s{S_T2}, s{S_T0}, 3")
    a(f"s_lshl_b32 s{S_T1}, s{S_T1}, 2")
    a(f"s_add_u32 s{S_XB}, s{S_T1}, s{S_T2}")
    a(f"s_lshl_b32 s{S_TOK0}, s{S_XB}, 6")
    a(f"s_and_b32 s{S_J}, s{S_T0}, 7")
    a(f"s_mul_i32 s{S_COL}, s{S_J}, 160")
    a("s_waitcnt lgkmcnt(0)")
    make_srd(a, SRD0, P_X, 0, S * D * 2)
    make_srd(a, SRD1, P_WQ, 0, D * D * 2)
    make_srd(a, SRD2, P_WS, WS_Q, S * D * 2)
    a(f"s_cmp_lt_u32 s{S_J}, 2")
    a("s_cbranch_scc1 k1_b")
    maxv = 8
    lds = 0

    def q_epilogue(g, va):
        t = g.tmp
        v_mean, v_rstd, v_sq, v_ad, v_rq, v_tok = va(), va(), va(), va(), va(), va()
        nA = g.nA
        nx = 2 * nA + 2
        a(f"v_mul_u32_u24 v{t[0]}, {nx*1024}, v{g.v_wave}")
        a(f"v_lshl_add_u32 v{t[0]}, v{g.v_lane}, 4, v{t[0]}")
        a(f"v_xor_b32 v{t[1]}, 2, v{g.v_wave}")
        a(f"v_mul_u32_u24 v{t[1]}, {nx*1024}, v{t[1]}")
        a(f"v_lshl_add_u32 v{t[1]}, v{g.v_lane}, 4, v{t[1]}")
        a(f"v_lshl_add_u32 v{v_tok}, v{g.v_wt}, 1, v{g.v_wo}")
        a(f"v_lshl_add_u32 v{v_tok}, v{v_tok}, 4, v{g.v_i16}")
        a(f"v_add_u32 v{v_tok}, s{S_TOK0}, v{v_tok}")
        a("s_nop 3")
        keep = g.acc[0] + [g.acc_sum[0], g.acc_sq[0]]
        send = g.acc[1] + [g.acc_sum[1], g.acc_sq[1]]
        skip = a.newlabel("xs")
        a(f"s_cmp_lt_u32 s{S_WAVE}, 2")
        a(f"s_cbranch_scc1 {skip}")
        for k_, s_ in zip(keep, send):
            for r in range(4):
                a(f"v_swap_b32 v{k_+r}, v{s_+r}")
        a.label(skip)
        for i, r in enumerate(send + g.acc_cs):
            a(f"ds_write_b128 v{t[0]}, {vr(r,4)} offset:{i*1024}")
        a("s_waitcnt lgkmcnt(0)")
        a("s_barrier")
        csx = [g.fa[0] + 4 * i for i in range(nA)]
        order = [nA, nA + 1] + list(range(nA))
        for i in order:
            a(f"ds_read_b128 {vr(send[i],4)}, v{t[1]} offset:{i*1024}")
            if i < nA:
                a(f"ds_read_b128 {vr(csx[i],4)}, v{t[1]} offset:{(nA+2+i)*1024}")
        a(f"v_mul_u32_u24 v{t[2]}, {D*2}, v{v_tok}")
        a(f"v_lshl_add_u32 v{v_ad}, v{g.v_g}, 3, v{t[2]}")
        a(f"v_add_u32 v{v_ad}, s{S_COL}, v{v_ad}")
        a(f"s_waitcnt lgkmcnt({2*nA})")
        a(f"v_add_f32 v{keep[nA]}, v{keep[nA]}, v{send[nA]}")
        for r in range(4):
            a(f"v_add_f32 v{keep[nA+1]+r}, v{keep[nA+1]+r}, v{send[nA+1]+r}")
        gram_diag(a, g, g.acc_sq[0], v_sq)
        ln_stats(a, g.acc_sum[0], v_sq, v_mean, v_rstd, g.tmp)
        a(f"v_mul_f32 v{v_rq}, {f32(QSCALE)}, v{v_rstd}")
        for fb in range(nA):
            c, cs = g.acc[0][fb], g.acc_cs[fb]
            for r in range(4):
                a(f"v_add_f32 v{c+r}, v{c+r}, v{send[fb]+r}")
                a(f"v_add_f32 v{cs+r}, v{cs+r}, v{csx[fb]+r}")
                a(f"v_fma_f32 v{c+r}, -v{v_mean}, v{cs+r}, v{c+r}")
                a(f"v_mul_f32 v{c+r}, v{c+r}, v{v_rq if fb < 5 else v_rstd}")
            a(f"v_cvt_pk_bf16_f32 v{c}, v{c}, v{c+1}")
            a(f"v_cvt_pk_bf16_f32 v{c+1}, v{c+2}, v{c+3}")
            if fb < 5:
                a(f"buffer_store_dwordx2 {vr(c,2)}, v{v_ad}, {sr(SRD2,4)}, 0 offen offset:{fb*32}")
        return v_tok

    def colsum(lva, lt):
        a.label("k1_cs")
        cva = VAlloc(8)
        lt = [cva() for _ in range(4)]
        csb = cva(40, 4)
        cacc = cva(8, 4)
        v_ca, v_l = cva(), cva()
        S_U, S_SRC, S_DST = S_T0, S_T1, S_KW
        a(f"s_sub_u32 s{S_U}, s{S_WAVE}, 4")
        a(f"s_lshl_b32 s{S_U}, s{S_U}, 8")
        a(f"s_add_u32 s{S_T2}, s{S_U}, s2")
        a(f"s_cmp_eq_u32 s{S_T2}, 768")
        a("s_cbranch_scc1 k1_zero")
        a(f"s_cmp_ge_u32 s{S_T2}, {48*NCS}")
        a("s_cbranch_scc1 k1_end")
        a(f"s_mul_i32 s{S_U}, s{S_T2}, 1366")
        a(f"s_lshr_b32 s{S_U}, s{S_U}, 16")
        a(f"s_mul_i32 s{S_SRC}, s{S_U}, 48")
        a(f"s_sub_u32 s{S_SRC}, s{S_T2}, s{S_SRC}")
        a(f"s_cmp_lt_u32 s{S_SRC}, 24")
        a(f"s_cselect_b32 s{SRD0}, s{P_WG}, s{P_WU}")
        a(f"s_cselect_b32 s{SRD0+1}, s{P_WG+1}, s{P_WU+1}")
        a(f"s_mov_b32 s{SRD0+2}, {F*D*2}")
        a(f"s_cselect_b32 s{S_DST}, 0, 24")
        a(f"s_sub_u32 s{S_SRC}, s{S_SRC}, s{S_DST}")
        a(f"s_lshl_b32 s{S_SRC}, s{S_SRC}, 7")
        a(f"s_mul_i32 s{S_U}, s{S_U}, {80*F*2}")
        a(f"s_add_u32 s{S_SRC}, s{S_SRC}, s{S_U}")
        a(f"v_and_b32 v{v_l}, 63, v0")
        a(f"v_lshrrev_b32 v{lt[0]}, 3, v{v_l}")
        a(f"v_mul_u32_u24 v{lt[0]}, {F*2}, v{lt[0]}")
        a(f"v_and_b32 v{lt[1]}, 7, v{v_l}")
        a(f"v_lshl_add_u32 v{v_ca}, v{lt[1]}, 4, v{lt[0]}")
        for i in range(10):
            a(f"buffer_load_dwordx4 {vr(csb+4*i,4)}, v{v_ca}, {sr(SRD0,4)}, s{S_SRC} offen")
            a(f"s_add_u32 s{S_SRC}, s{S_SRC}, {8*F*2}")
        a(f"v_lshrrev_b32 v{lt[0]}, 4, v{v_l}")
        a(f"v_lshlrev_b32 v{lt[0]}, 3, v{lt[0]}")
        a(f"v_lshl_add_u32 v{v_ca}, v{lt[1]}, 5, v{lt[0]}")
        make_srd(a, SRD3, P_WS, WS_CS, NCS * 3072 * 4)
        a(f"s_lshl_b32 s{S_T2}, s{S_T2}, 8")
        a("s_barrier")
        for i in range(10):
            a(f"s_waitcnt vmcnt({9-i})")
            for j in range(4):
                if i == 0:
                    a(f"v_lshlrev_b32 v{cacc+2*j}, 16, v{csb+j}")
                    a(f"v_and_b32 v{cacc+2*j+1}, 0xffff0000, v{csb+j}")
                else:
                    a(f"v_lshlrev_b32 v{lt[0]}, 16, v{csb+4*i+j}")
                    a(f"v_and_b32 v{lt[1]}, 0xffff0000, v{csb+4*i+j}")
                    a(f"v_add_f32 v{cacc+2*j}, v{cacc+2*j}, v{lt[0]}")
                    a(f"v_add_f32 v{cacc+2*j+1}, v{cacc+2*j+1}, v{lt[1]}")
        a("s_nop 1")
        for j in range(4):
            a(f"v_permlane32_swap_b32 v{cacc+j}, v{cacc+4+j}")
        a("s_nop 1")
        for j in range(4):
            a(f"v_add_f32 v{cacc+j}, v{cacc+j}, v{cacc+4+j}")
        a("s_nop 1")
        for j in range(2):
            a(f"v_permlane16_swap_b32 v{cacc+j}, v{cacc+2+j}")
        a("s_nop 1")
        for j in range(2):
            a(f"v_add_f32 v{cacc+j}, v{cacc+j}, v{cacc+2+j}")
        a("s_nop 1")
        for j in range(2):
            a(f"v_add_f32_dpp v{cacc+j}, v{cacc+j}, v{cacc+j} row_ror:8 row_mask:0xf bank_mask:0xf")
        a(f"buffer_store_dwordx2 {vr(cacc,2)}, v{v_ca}, {sr(SRD3,4)}, s{S_T2} offen")
        a.label("k1_end")
        a("s_endpgm")
        a.label("k1_zero")
        make_srd(a, SRD3, P_WS, WS_CNT, 32768)
        a(f"v_and_b32 v{v_l}, 63, v0")
        a(f"v_lshlrev_b32 v{v_l}, 8, v{v_l}")
        a(f"v_mov_b32 v{lt[0]}, 0")
        a(f"buffer_store_dword v{lt[0]}, v{v_l}, {sr(SRD3,4)}, 0 offen")
        a(f"s_mov_b32 s{S_T2}, 16384")
        a(f"buffer_store_dword v{lt[0]}, v{v_l}, {sr(SRD3,4)}, s{S_T2} offen")
        a("s_endpgm")
        pre['n'] = cva.n
    pre = {}

    va = VAlloc(1)
    seg = Seg(SRD1, D * 2, 80, 'p160', S_COL)
    g = Gemm(a, va, 64, 2, 2, 1, [seg], 128, 4, D, SRD0, D * 2, S_TOK0, stats=True, colsum=True, sregs=GS, tag="k1q")
    g.split()
    g.setup()
    stamp(a, 0)
    g.mainloop()
    stamp(a, 1)
    lds = max(lds, g.lds_bytes)
    q_epilogue(g, va)
    stamp_end(a, 2)
    a("s_endpgm")
    maxv = max(maxv, va.n)
    g.loader(S_ROT, cont=colsum)
    maxv = max(maxv, pre['n'])

    a.label("k1_b")
    va = VAlloc(1)
    a(f"s_cmp_eq_u32 s{S_J}, 0")
    a(f"s_cselect_b32 s{SRD3}, s{P_WK}, s{P_WV}")
    a(f"s_cselect_b32 s{SRD3+1}, s{P_WK+1}, s{P_WV+1}")
    a(f"s_mov_b32 s{SRD3+2}, {D*DH*2}")
    a(f"s_mov_b32 s{SRD3+3}, 0x00020000")
    make_srd(a, SRD4, P_WS, WS_KV, KV_SZ)
    make_srd(a, SRD5, P_WS, WS_KN, 512)
    seg = Seg(SRD1, D * 2, 80, 'p160', S_COL)
    sk = Seg(SRD3, 40, 32, 'lin40')
    g = Gemm(a, va, 64, 2, 2, 1, [seg, sk], 128, 3, D, SRD0, D * 2, S_TOK0, stats=True, colsum=True, sregs=GS, tag="k1kv")
    g.split()
    g.setup()
    stamp(a, 0)
    g.mainloop()
    stamp(a, 1)
    lds = max(lds, g.lds_bytes)
    v_key = q_epilogue(g, va)
    v_ak, v_n = va(), va()
    t = g.tmp
    k0, k1 = g.acc[0][5], g.acc[0][6]
    a(f"v_cmp_eq_u32 vcc, 0, v{g.v_g}")
    a(f"v_lshrrev_b32 v{t[0]}, 5, v{v_key}")
    a(f"v_mul_u32_u24 v{t[0]}, 2560, v{t[0]}")
    a(f"v_and_b32 v{t[1]}, 31, v{v_key}")
    a(f"s_cmp_lg_u32 s{S_J}, 0")
    a("s_cbranch_scc1 k1_v")
    a(f"v_lshl_add_u32 v{v_ak}, v{t[1]}, 4, v{t[0]}")
    a(f"v_lshrrev_b32 v{t[2]}, 1, v{g.v_g}")
    a(f"v_lshl_add_u32 v{v_ak}, v{t[2]}, 9, v{v_ak}")
    a(f"v_and_b32 v{t[2]}, 1, v{g.v_g}")
    a(f"v_lshl_add_u32 v{v_ak}, v{t[2]}, 3, v{v_ak}")
    a(f"buffer_store_dwordx2 {vr(k0,2)}, v{v_ak}, {sr(SRD4,4)}, 0 offen")
    a(f"v_lshl_add_u32 v{v_key}, v{t[1]}, 3, v{t[0]}")
    a(f"v_cndmask_b32 v{k1}, 0, v{k1}, vcc")
    a(f"v_cndmask_b32 v{k1+1}, 0, v{k1+1}, vcc")
    a("s_and_saveexec_b64 s[74:75], vcc")
    a(f"buffer_store_dwordx2 {vr(k1,2)}, v{v_key}, {sr(SRD4,4)}, 0 offen offset:1024")
    a("s_mov_b64 exec, -1")
    a(f"v_mov_b32 v{v_n}, 0")
    for c in (k0, k0 + 1, k1, k1 + 1):
        a(f"v_lshlrev_b32 v{t[0]}, 16, v{c}")
        a(f"v_and_b32 v{t[1]}, 0xffff0000, v{c}")
        a(f"v_fma_f32 v{v_n}, v{t[0]}, v{t[0]}, v{v_n}")
        a(f"v_fma_f32 v{v_n}, v{t[1]}, v{t[1]}, v{v_n}")
    swap_add(a, v_n, t[0], 32)
    swap_add(a, v_n, t[0], 16)
    dpp_rowmax(a, v_n)
    a(f"s_lshl_b32 s{S_T0}, s{S_XB}, 2")
    a(f"s_add_u32 s{S_T0}, s{S_T0}, s{S_WAVE}")
    a(f"s_lshl_b32 s{S_T0}, s{S_T0}, 2")
    a(f"v_mov_b32 v{t[0]}, 0")
    a("s_mov_b64 exec, 0x8000")
    a(f"buffer_store_dword v{v_n}, v{t[0]}, {sr(SRD5,4)}, s{S_T0} offen")
    stamp_end(a, 2)
    a("s_endpgm")
    a.label("k1_v")
    a(f"v_bfe_u32 v{t[2]}, v{t[1]}, 4, 1")
    a(f"v_mad_u32_u24 v{v_ak}, v{t[2]}, 640, v{t[0]}" if False else f"v_mul_u32_u24 v{t[2]}, 640, v{t[2]}")
    a(f"v_add_u32 v{v_ak}, v{t[2]}, v{t[0]}")
    a(f"v_bfe_u32 v{t[2]}, v{t[1]}, 2, 1")
    a(f"v_mul_u32_u24 v{t[2]}, 320, v{t[2]}")
    a(f"v_add_u32 v{v_ak}, v{t[2]}, v{v_ak}")
    a(f"v_bfe_u32 v{t[2]}, v{t[1]}, 3, 1")
    a(f"v_lshl_add_u32 v{v_ak}, v{t[2]}, 3, v{v_ak}")
    a(f"v_and_b32 v{t[2]}, 3, v{t[1]}")
    a(f"v_lshl_add_u32 v{v_ak}, v{t[2]}, 1, v{v_ak}")
    a(f"v_lshl_add_u32 v{v_ak}, v{g.v_g}, 6, v{v_ak}")
    for fb, c in enumerate((k0, k1)):
        if fb:
            a("s_and_saveexec_b64 s[74:75], vcc")
        for p in range(2):
            o = 1280 + fb * 256 + p * 32
            a(f"buffer_store_short v{c+p}, v{v_ak}, {sr(SRD4,4)}, 0 offen offset:{o}")
            a(f"buffer_store_short_d16_hi v{c+p}, v{v_ak}, {sr(SRD4,4)}, 0 offen offset:{o+16}")
    stamp_end(a, 2)
    a("s_endpgm")
    maxv = max(maxv, va.n)
    g.loader(S_ROT, cont=lambda lva, lt: a("s_branch k1_cs"))

    kernel_end(a, name, maxv)
    return (name, 256, 512, lds)


QB = 53248
MX, MW, MS = 0, 20480, 49152
QST, KMX = 102400, 112640
S_HOOK, S_KVC = 15, 7
CNT_KV = 80
LOC = int(os.environ.get("LOC", "7"))
FLAG = 128


def p1_compute(a, tmp, v_first, v_alias, init):
    va = VAlloc(v_first)
    seg = Seg(SRD1, D * 2, 80, 'p160', S_COL)
    g = Gemm(a, va, 64, 2, 2, 1, [seg], 128, 4, D, SRD0, D * 2, S_TOK0, stats=True, colsum=True, sregs=GS, tag="k1q",
             lds_base=QB - 36864, slot0=1)
    assert g.lds_base + g.lds_bytes <= KV_SZ and g.stage_bytes == 36864
    g.tmp = tmp
    t = g.tmp
    make_srd(a, SRD5, P_DBG, 0, 256)
    make_srd(a, SRD3, P_WS, WS_KN, 512)
    fr = v_alias
    mac = [v_alias + 16 + 4 * i for i in range(6)]
    v_mx, v_mw, v_mp, v_fl, v_z, v_one, v_fa, v_ad = [v_alias + 40 + i for i in range(8)]
    v_mean = va(2, 2)
    v_rstd = v_mean + 1
    v_sq, v_xw, v_xr, v_xc, v_qw = [va() for _ in range(5)]
    a(f"v_mov_b32 v{v_z}, 0")
    a(f"v_mov_b32 v{v_one}, 1")
    lab = a.newlabel("bz")
    a(f"s_lshl_b32 s{S_T1}, s2, 2")
    a(f"s_add_u32 s{S_T1}, s{S_T1}, s{S_WAVE}")
    a(f"s_cmp_lg_u32 s{S_T1}, 3")
    a(f"s_cbranch_scc1 {lab}")
    a(f"v_and_b32 v{t[0]}, 63, v0")
    a(f"v_lshlrev_b32 v{t[0]}, 8, v{t[0]}")
    for i in range(4):
        a(f"v_mov_b32 v{fr+i}, 0")
    a(f"s_mov_b32 s{S_T2}, 16384")
    a(f"buffer_store_dwordx4 {vr(fr,4)}, v{t[0]}, {sr(SRDC,4)}, 0 offen sc1")
    if LOC:
        a(f"buffer_store_dwordx4 {vr(fr,4)}, v{t[0]}, {sr(SRDC,4)}, 0 offen offset:128 sc1")
    a(f"buffer_store_dwordx4 {vr(fr,4)}, v{t[0]}, {sr(SRDC,4)}, s{S_T2} offen sc1")
    a("s_mov_b64 exec, 1")
    a("s_waitcnt vmcnt(0)")
    a(f"buffer_store_dword v{v_one}, v{v_z}, {sr(SRD5,4)}, 0 offen offset:{FLAG} sc1")
    a("s_mov_b64 exec, -1")
    a.label(lab)
    g.setup()
    assert g.fb[1] + 8 == g.fa[0] + 56
    fq = [fr + 4 * i for i in range(4)] + [g.fa[0] + 4 * i for i in range(14)]
    a(f"s_cmp_eq_u32 s{S_WAVE}, 0")
    a(f"s_cselect_b32 s{S_HOOK}, 2, 0")
    a(f"s_and_b32 s{S_KVC}, s2, 15")
    a(f"s_lshl_b32 s{S_KVC}, s{S_KVC}, 8")
    a(f"s_add_u32 s{S_KVC}, s{S_KVC}, {96*256}")
    a(f"v_lshlrev_b32 v{v_fa}, 8, v{g.v_lane}")
    a(f"v_mul_u32_u24 v{t[0]}, 5120, v{g.v_wave}")
    a(f"v_lshl_add_u32 v{v_mx}, v{g.v_lane}, 4, v{t[0]}")
    a(f"v_mul_u32_u24 v{t[0]}, 6400, v{g.v_wave}")
    a(f"v_add_u32 v{t[0]}, {MW}, v{t[0]}")
    a(f"v_lshl_add_u32 v{v_mp}, v{g.v_lane}, 4, v{t[0]}")
    a(f"v_lshrrev_b32 v{t[1]}, 2, v{g.v_i16}")
    a(f"v_lshl_add_u32 v{t[1]}, v{g.v_g}, 3, v{t[1]}")
    a(f"v_mad_u32_u24 v{t[0]}, v{t[1]}, 40, v{t[0]}")
    a(f"v_and_b32 v{t[1]}, 3, v{g.v_i16}")
    a(f"v_lshl_add_u32 v{v_mw}, v{t[1]}, 3, v{t[0]}")
    XW = 8 * 1024
    assert QB + 4 * XW <= QST
    a(f"v_mul_u32_u24 v{t[0]}, {XW}, v{g.v_wave}")
    a(f"v_lshl_add_u32 v{t[0]}, v{g.v_lane}, 4, v{t[0]}")
    a(f"v_add_u32 v{v_xw}, {QB}, v{t[0]}")
    a(f"v_xor_b32 v{v_xr}, {2*XW}, v{t[0]}")
    a(f"v_add_u32 v{v_xr}, {QB}, v{v_xr}")
    a(f"v_lshlrev_b32 v{t[0]}, 4, v{g.v_i16}")
    a(f"v_sub_u32 v{v_xc}, v{v_xr}, v{t[0]}")
    a(f"v_lshl_add_u32 v{t[1]}, v{g.v_wt}, 1, v{g.v_wo}")
    a(f"v_lshl_add_u32 v{t[1]}, v{t[1]}, 4, v{g.v_i16}")
    a(f"v_mul_u32_u24 v{t[2]}, 160, v{t[1]}")
    a(f"v_lshl_add_u32 v{t[2]}, v{g.v_g}, 3, v{t[2]}")
    a(f"v_add_u32 v{v_qw}, {QST}, v{t[2]}")
    a(f"v_add_u32 v{t[2]}, s{S_TOK0}, v{t[1]}")
    a(f"v_mul_u32_u24 v{t[2]}, {D*2}, v{t[2]}")
    a(f"v_lshl_add_u32 v{t[2]}, v{g.v_g}, 3, v{t[2]}")
    a(f"v_add_u32 v{V_RAD}, s{S_COL}, v{t[2]}")
    a(f"ds_write_b32 v{v_z}, v{v_z} offset:{MS+1024}")
    a("s_waitcnt lgkmcnt(0)")
    a("s_barrier")
    stamp(a, 0)
    a(f"buffer_load_dword v{v_fl}, v{v_z}, {sr(SRD5,4)}, 0 offen offset:{FLAG} sc1")
    for s_ in range(5):
        a(f"ds_read_b128 {vr(fq[3*s_],4)}, v{v_mx} offset:{MX + s_*1024}")
        for b in range(2):
            for e in range(2):
                a(f"ds_read_b64_tr_b16 {vr(fq[3*s_+1+b]+2*e,2)}, v{v_mw} offset:{(s_*32+4*e)*40 + b*32}")
    ones = vr(g.v_ones, 4)
    for s_ in range(5):
        a(f"s_waitcnt lgkmcnt({min(15, 5*(4-s_))})")
        B, A0, A1 = [vr(fq[3*s_+i], 4) for i in range(3)]
        for i, (x, y) in enumerate([(A0, B), (A1, B), (A0, ones), (A1, ones), (ones, B), (B, B)]):
            a(f"v_mfma_f32_16x16x32_bf16 {vr(mac[i],4)}, {x}, {y}, " + ("0" if s_ == 0 else vr(mac[i], 4)))
    a("s_nop 7")
    a("s_nop 7")
    lab = a.newlabel("pw")
    a(f"s_cmp_eq_u32 s{S_WAVE}, 0")
    a(f"s_cbranch_scc1 {lab}")
    for i in range(6):
        a(f"ds_write_b128 v{v_mp}, {vr(mac[i],4)} offset:{i*1024}")
    a("s_mov_b64 exec, 1")
    a(f"ds_add_u32 v{v_z}, v{v_one} offset:{MS+1024}")
    a("s_mov_b64 exec, -1")
    a.label(lab)

    def finalize():
        skip, lv, lj, lp, lq = [a.newlabel("fz") for _ in range(5)]
        a(f"s_cmp_lg_u32 s{S_WAVE}, 0")
        a(f"s_cbranch_scc1 {skip}")
        a.label(lp)
        a(f"ds_read_b32 v{t[0]}, v{v_z} offset:{MS+1024}")
        a("s_waitcnt lgkmcnt(0)")
        a(f"v_readfirstlane_b32 s{S_T2}, v{t[0]}")
        a("s_nop 3")
        a(f"s_cmp_lt_u32 s{S_T2}, 3")
        a(f"s_cbranch_scc1 {lp}")
        order = [4, 5, 0, 2, 1, 3]
        for i in order:
            for w in range(1, 4):
                a(f"ds_read_b128 {vr(fq[6*(w-1)+i],4)}, v{v_mp} offset:{w*6400 + i*1024}")
        a(f"s_and_b32 s{S_T1}, s{S_J}, 3")
        a(f"s_lshl_b32 s{S_T1}, s{S_T1}, 4")
        a(f"s_add_u32 s{S_T1}, s{S_T1}, s{S_TOK0}")
        a(f"s_lshr_b32 s{S_KX}, s{S_T1}, 2")
        a(f"s_lshr_b32 s{S_T1}, s{S_T1}, 5")
        a(f"s_mul_i32 s{S_KW}, s{S_T1}, 2560")
        a(f"s_and_b32 s{S_T0}, s{S_J}, 1")
        for n, i in enumerate(order):
            a(f"s_waitcnt lgkmcnt({min(15, 3*(5-n))})")
            for w in range(3):
                for r in ((0,) if i == 4 else (0, 2)):
                    a(f"v_pk_add_f32 {vr(mac[i]+r,2)}, {vr(mac[i]+r,2)}, {vr(fq[6*w+i]+r,2)}")
        gram_diag(a, g, mac[5], v_sq)
        ln_stats(a, mac[4], v_sq, v_mean, v_rstd, t)
        for b in range(2):
            c, cs = mac[b], mac[2 + b]
            for r in range(4):
                a(f"v_fma_f32 v{c+r}, -v{v_mean}, v{cs+r}, v{c+r}")
                a(f"v_mul_f32 v{c+r}, v{c+r}, v{v_rstd}")
            a(f"v_cvt_pk_bf16_f32 v{c}, v{c}, v{c+1}")
            a(f"v_cvt_pk_bf16_f32 v{c+1}, v{c+2}, v{c+3}")
        k0, k1 = mac[0], mac[1]
        v_n = v_sq
        a(f"v_mov_b32 v{v_n}, 0")
        a(f"s_bitcmp1_b32 s{S_J}, 2")
        a(f"s_cbranch_scc1 {lv}")
        a(f"v_lshrrev_b32 v{t[0]}, 1, v{g.v_g}")
        a(f"v_lshlrev_b32 v{t[0]}, 8, v{t[0]}")
        a(f"v_lshl_add_u32 v{t[0]}, v{g.v_i16}, 4, v{t[0]}")
        a(f"v_and_b32 v{t[1]}, 1, v{g.v_g}")
        a(f"v_lshl_add_u32 v{t[0]}, v{t[1]}, 3, v{t[0]}")
        a(f"ds_write_b64 v{t[0]}, {vr(k0,2)} offset:{MS}")
        a(f"v_lshlrev_b32 v{t[1]}, 3, v{g.v_i16}")
        a("s_mov_b64 exec, 0xffff")
        a(f"ds_write_b64 v{t[1]}, {vr(k1,2)} offset:{MS+512}")
        for c in (k1, k1 + 1, k0, k0 + 1):
            if c == k0:
                a("s_mov_b64 exec, -1")
            a(f"v_lshlrev_b32 v{t[0]}, 16, v{c}")
            a(f"v_and_b32 v{t[1]}, 0xffff0000, v{c}")
            a(f"v_fma_f32 v{v_n}, v{t[0]}, v{t[0]}, v{v_n}")
            a(f"v_fma_f32 v{v_n}, v{t[1]}, v{t[1]}, v{v_n}")
        swap_add(a, v_n, t[0], 32)
        swap_add(a, v_n, t[0], 16)
        dpp_rowmax(a, v_n)
        a("s_mov_b64 exec, 0x8000")
        a(f"buffer_store_dword v{v_n}, v{v_z}, {sr(SRD3,4)}, s{S_KX} offen sc1")
        a("s_mov_b64 exec, -1")
        a(f"v_lshlrev_b32 v{t[0]}, 9, v{g.v_g}")
        a(f"v_lshl_add_u32 v{v_ad}, v{g.v_i16}, 4, v{t[0]}")
        a(f"s_lshl_b32 s{S_T0}, s{S_T0}, 7")
        a(f"v_cmp_gt_u32 vcc, 2, v{g.v_g}")
        a(f"v_mov_b32 v{t[0]}, s{S_T0}")
        a(f"v_cndmask_b32 v{t[1]}, 0, v{t[0]}, vcc")
        a(f"v_add3_u32 v{v_ad}, v{v_ad}, v{t[0]}, v{t[1]}")
        a(f"s_branch {lj}")
        a.label(lv)
        a(f"v_bfe_u32 v{t[0]}, v{g.v_i16}, 2, 1")
        a(f"v_mul_u32_u24 v{t[0]}, 320, v{t[0]}")
        a(f"v_bfe_u32 v{t[1]}, v{g.v_i16}, 3, 1")
        a(f"v_lshl_add_u32 v{t[0]}, v{t[1]}, 3, v{t[0]}")
        a(f"v_and_b32 v{t[1]}, 3, v{g.v_i16}")
        a(f"v_lshl_add_u32 v{t[0]}, v{t[1]}, 1, v{t[0]}")
        a(f"v_lshl_add_u32 v{t[0]}, v{g.v_g}, 6, v{t[0]}")
        for b, c in enumerate((k0, k1)):
            if b:
                a("s_mov_b64 exec, 0xffff")
            for p in range(2):
                o = MS + b * 256 + p * 32
                a(f"ds_write_b16 v{t[0]}, v{c+p} offset:{o}")
                a(f"ds_write_b16_d16_hi v{t[0]}, v{c+p} offset:{o+16}")
        a("s_mov_b64 exec, -1")
        a(f"s_mul_i32 s{S_T0}, s{S_T0}, 640")
        a(f"s_add_u32 s{S_T0}, s{S_T0}, 1280")
        a(f"v_lshl_add_u32 v{v_ad}, v{g.v_lane}, 4, s{S_T0}")
        a.label(lj)
        a(f"v_lshlrev_b32 v{t[0]}, 4, v{g.v_lane}")
        a(f"ds_read_b128 {vr(mac[2],4)}, v{t[0]} offset:{MS}")
        a("s_mov_b32 exec_hi, 0xff")
        a("s_waitcnt lgkmcnt(0)")
        a(f"buffer_store_dwordx4 {vr(mac[2],4)}, v{v_ad}, {sr(SRD1,4)}, s{S_KW} offen sc1")
        a("s_mov_b64 exec, -1")
        a.label(skip)

    def hook():
        skip, sec, done, lp, lq = [a.newlabel("hk") for _ in range(5)]
        a(f"s_cmp_eq_u32 s{S_HOOK}, 0")
        a(f"s_cbranch_scc1 {skip}")
        a(f"s_sub_u32 s{S_HOOK}, s{S_HOOK}, 1")
        a("s_mov_b64 exec, 1")
        a(f"s_cmp_eq_u32 s{S_HOOK}, 0")
        a(f"s_cbranch_scc1 {sec}")
        a(f"s_mov_b32 s{S_T1}, 0x20000")
        a.label(lp)
        a("s_waitcnt vmcnt(0)")
        a(f"v_readfirstlane_b32 s{S_T2}, v{v_fl}")
        a(f"s_sub_u32 s{S_T1}, s{S_T1}, 1")
        a(f"s_cmp_eq_u32 s{S_T1}, 0")
        a(f"s_cbranch_scc1 {lq}")
        a(f"s_cmp_lg_u32 s{S_T2}, 0")
        a(f"s_cbranch_scc1 {lq}")
        a(f"buffer_load_dword v{v_fl}, v{v_z}, {sr(SRD5,4)}, 0 offen offset:{FLAG} sc1")
        a(f"s_branch {lp}")
        a.label(lq)
        a(f"v_mov_b32 v{v_fl}, 1")
        a(f"buffer_atomic_add v{v_fl}, v{v_z}, {sr(SRDC,4)}, s{S_KVC} offen sc0 sc1")
        a(f"s_branch {done}")
        a.label(sec)
        a("s_waitcnt vmcnt(0)")
        a(f"v_readfirstlane_b32 s{S_T2}, v{v_fl}")
        a(f"v_mov_b32 v{v_fl}, 1")
        a(f"s_mov_b32 s{S_KVC}, {CNT_KV*256}")
        a("s_nop 2")
        a(f"s_cmp_lg_u32 s{S_T2}, 15")
        a(f"s_cbranch_scc1 {done}")
        a(f"buffer_atomic_add v{v_fl}, v{v_z}, {sr(SRDC,4)}, s{S_KVC} offen sc0 sc1")
        a("s_waitcnt vmcnt(0)")
        a(f"v_readfirstlane_b32 s{S_T2}, v{v_fl}")
        a("s_nop 3")
        a(f"s_cmp_lg_u32 s{S_T2}, 15")
        a(f"s_cbranch_scc1 {done}")
        a("s_mov_b64 exec, 0xff")
        a(f"buffer_store_dword v{v_one}, v{v_fa}, {sr(SRDC,4)}, s{S_KVC} offen offset:2048 sc1")
        a.label(done)
        a("s_mov_b64 exec, -1")
        a.label(skip)
        a(f"s_cmp_lg_u32 s{g.s_cnt}, 2")
        a(f"s_cbranch_scc1 {lq}x")
        init()
        a.label(f"{lq}x")

    finalize()
    g.mainloop(pre_bar=hook)
    stamp(a, 1)
    nA = g.nA
    keep = g.acc[0] + [g.acc_sq[0]]
    send = g.acc[1] + [g.acc_sq[1]]
    a("s_nop 3")
    a(f"ds_write_b128 v{v_xw}, {vr(send[nA],4)} offset:{nA*1024}")
    a(f"ds_write_b32 v{v_xw}, v{g.acc_sum[1]} offset:{(nA+1)*1024}")
    for i in range(nA):
        a(f"ds_write_b128 v{v_xw}, {vr(send[i],4)} offset:{i*1024}")
    a("s_mov_b32 exec_lo, 0x00010001")
    a("s_mov_b32 exec_hi, 0x00010001")
    for i in range(nA):
        a(f"ds_write_b128 v{v_xw}, {vr(g.acc_cs[i],4)} offset:{(nA+2)*1024 + 16*i}")
    a("s_mov_b64 exec, -1")
    a("s_waitcnt lgkmcnt(0)")
    stamp(a, 4, True)
    a("s_barrier")
    stamp(a, 5, True)
    csx = [g.fa[0] + 4 * i for i in range(nA)]
    a(f"ds_read_b128 {vr(send[nA],4)}, v{v_xr} offset:{nA*1024}")
    a(f"ds_read_b32 v{g.acc_sum[1]}, v{v_xr} offset:{(nA+1)*1024}")
    for i in range(nA):
        a(f"ds_read_b128 {vr(send[i],4)}, v{v_xr} offset:{i*1024}")
        a(f"ds_read_b128 {vr(csx[i],4)}, v{v_xc} offset:{(nA+2)*1024 + 16*i}")
    a(f"s_waitcnt lgkmcnt({2*nA})")
    a(f"v_add_f32 v{g.acc_sum[0]}, v{g.acc_sum[0]}, v{g.acc_sum[1]}")
    for r in (0, 2):
        a(f"v_pk_add_f32 {vr(keep[nA]+r,2)}, {vr(keep[nA]+r,2)}, {vr(send[nA]+r,2)}")
    gram_diag(a, g, g.acc_sq[0], v_sq)
    for fb in range(nA):
        c, cs = g.acc[0][fb], g.acc_cs[fb]
        for r in (0, 2):
            a(f"v_pk_add_f32 {vr(c+r,2)}, {vr(c+r,2)}, {vr(send[fb]+r,2)}")
            a(f"v_pk_add_f32 {vr(cs+r,2)}, {vr(cs+r,2)}, {vr(csx[fb]+r,2)}")
    ln_stats(a, g.acc_sum[0], v_sq, v_mean, v_rstd, g.tmp)
    a(f"v_mul_f32 v{v_rstd}, {f32(QSCALE)}, v{v_rstd}")
    a(f"v_sub_f32 v{v_mean}, 0, v{v_mean}")
    stamp(a, 6, True)
    pm = vr(v_mean, 2)
    for fb in range(nA):
        c, cs = g.acc[0][fb], g.acc_cs[fb]
        for r in (0, 2):
            a(f"v_pk_fma_f32 {vr(c+r,2)}, {pm}, {vr(cs+r,2)}, {vr(c+r,2)} op_sel_hi:[0,1,1]")
        for r in (0, 2):
            a(f"v_pk_mul_f32 {vr(c+r,2)}, {vr(c+r,2)}, {pm} op_sel:[0,1] op_sel_hi:[1,1]")
        a(f"v_cvt_pk_bf16_f32 v{c}, v{c}, v{c+1}")
        a(f"v_cvt_pk_bf16_f32 v{c+1}, v{c+2}, v{c+3}")
        a(f"ds_write_b64 v{v_qw}, {vr(c,2)} offset:{fb*32}")
    stamp(a, 7, True)
    g.maxv = va.n
    return g


KVROT = int(os.environ.get("KVROT", "7"))
LATE1 = int(os.environ.get("LATE1", "1"))
CPF = int(os.environ.get("CPF", "0"))


def code_touch(a, v_t, v_d, first):
    lab = a.newlabel("pc")
    a("s_getpc_b64 s[74:75]")
    a.label(lab)
    a(f"s_sub_u32 s74, s74, {lab}-k2_attn_kernel")
    a("s_subb_u32 s75, s75, 0")
    for i in range(first, 2):
        a(f"v_lshlrev_b32 v{v_t}, 7, v0")
        if i:
            a(f"v_add_u32 v{v_t}, {i*32768}, v{v_t}")
        a(f"v_min_u32 v{v_t}, k2_code_end-k2_attn_kernel-4, v{v_t}")
        a(f"global_load_dword v{v_d}, v{v_t}, s[74:75]")


def p1_mini(a):
    t = [30, 31]
    a("v_and_b32 v0, 255, v0")
    make_srd(a, SRD0, P_X, 0, S * D * 2)
    a(f"s_bitcmp0_b32 s{S_J}, 2")
    a(f"s_cselect_b32 s{SRD3}, s{P_WK}, s{P_WV}")
    a(f"s_cselect_b32 s{SRD3+1}, s{P_WK+1}, s{P_WV+1}")
    a(f"s_mov_b32 s{SRD3+2}, {D*DH*2}")
    a(f"s_mov_b32 s{SRD3+3}, 0x00020000")
    a(f"s_and_b32 s{S_T1}, s{S_J}, 3")
    a(f"s_lshl_b32 s{S_T1}, s{S_T1}, 4")
    a(f"s_add_u32 s{S_T1}, s{S_T1}, s{S_TOK0}")
    a(f"v_and_b32 v{t[0]}, 15, v0")
    a(f"v_add_u32 v{t[0]}, s{S_T1}, v{t[0]}")
    a(f"v_mul_u32_u24 v{t[0]}, {D*2}, v{t[0]}")
    a(f"v_and_b32 v{t[1]}, 0xf0, v0")
    a(f"v_add_u32 v{t[0]}, v{t[0]}, v{t[1]}")
    a(f"v_lshlrev_b32 v{t[1]}, 4, v0")
    a(f"s_and_b32 s{S_WOFF}, s{S_WAVE}, 3")
    a(f"s_lshl_b32 s{S_WOFF}, s{S_WOFF}, 10")
    for j in range(7):
        if j < 5:
            a(f"s_add_u32 m0, s{S_WOFF}, {MX + j*4096}")
            a(f"s_mov_b32 s{S_T1}, {j*256}")
            a(f"buffer_load_dwordx4 v{t[0]}, {sr(SRD0,4)}, s{S_T1} offen lds")
        a(f"s_add_u32 m0, s{S_WOFF}, {MW + j*4096}")
        a(f"s_mov_b32 s{S_T1}, {j*4096}")
        a(f"buffer_load_dwordx4 v{t[1]}, {sr(SRD3,4)}, s{S_T1} offen lds")


def p1_loader(a, g, v_l, dma, early):
    lva = VAlloc(30)
    t = [lva() for _ in range(2)]
    v_p = lva(2, 2)
    v_pa = lva()
    make_srd(a, SRD1, P_WQ, 0, D * D * 2)
    make_srd(a, SRD2, P_WS, WS_KV, KV_SZ)
    g.ld_prepare(None, head=False, v0=40)
    g.lstamp(0)
    if LATE1 < 2:
        g.ld_issue(0)
    if LATE1 < 1:
        g.ld_issue(1)
    a(f"s_lshl_b32 s{S_KVC}, s{S_XB}, 8")
    a(f"s_add_u32 s{S_KVC}, s{S_KVC}, {(CNT_KV+8)*256}")
    a(f"v_lshlrev_b32 v{v_pa}, 3, v{v_l}")
    make_srd(a, SRD4, P_WS, WS_KN, 512)
    early()
    a(f"s_waitcnt vmcnt({len(g.ops)})")
    g.lstamp(1)
    a("s_barrier")
    if LATE1 >= 2:
        g.ld_issue(0)
    if LATE1 >= 1:
        g.ld_issue(1)
    g.ld_issue(2)
    g.ld_ready(0)
    g.ld_issue(3)
    g.ld_ready(1)
    g.ld_issue(4)
    g.ld_ready(2)
    g.ld_ready(3)

    def poll():
        a("s_mov_b64 exec, 1")
        a(f"buffer_load_dword v{t[0]}, v{v_pa}, {sr(SRDC,4)}, s{S_KVC} offen sc1")
        a("s_mov_b64 exec, -1")
        g.ops.append(("p", 0))

    def check(lab):
        last = max(i for i, o in enumerate(g.ops) if o == ("p", 0))
        a(f"s_waitcnt vmcnt({len(g.ops) - 1 - last})")
        a(f"v_readfirstlane_b32 s{S_T2}, v{t[0]}")
        a("s_nop 3")
        a(f"s_cmp_eq_u32 s{S_T2}, 0")
        a(f"s_cbranch_scc1 {lab}")

    def kv():
        a(f"buffer_load_dwordx2 {vr(v_p,2)}, v{v_pa}, {sr(SRD4,4)}, 0 offen")
        dma(13, SRD2, True)
        g.ops.extend([("d", 0)] * 14)

    lb, lb2, lb3, lj, lsp, lsd, lsc = [a.newlabel("p1") for _ in range(7)]
    poll()
    g.ld_ready(4)
    check(lb3)
    kv()
    a("s_barrier")
    a(f"s_branch {lj}")
    a.label(lb3)
    poll()
    a("s_barrier")
    a(f"s_mov_b32 s{S_T1}, 0x20000")
    a(f"s_branch {lsc}")
    a.label(lsp)
    a(f"s_sub_u32 s{S_T1}, s{S_T1}, 1")
    a(f"s_cmp_eq_u32 s{S_T1}, 0")
    a(f"s_cbranch_scc1 {lsd}")
    poll()
    a.label(lsc)
    check(lsp)
    a.label(lsd)
    kv()
    a.label(lj)
    g.lstamp(13)
    a("s_barrier")
    a("s_waitcnt vmcnt(13)")
    a(f"v_max_f32 v{v_p}, v{v_p}, v{v_p+1}")
    dpp_rowmax(a, v_p)
    a("s_nop 1")
    a(f"v_max_f32_dpp v{v_p}, v{v_p}, v{v_p} row_bcast:15 row_mask:0xa bank_mask:0xf")
    a("s_nop 1")
    a(f"v_max_f32_dpp v{v_p}, v{v_p}, v{v_p} row_bcast:31 row_mask:0xc bank_mask:0xf")
    a(f"v_mov_b32 v{t[0]}, {KMX}")
    a("s_mov_b32 exec_lo, 0")
    a("s_brev_b32 exec_hi, 1")
    a(f"ds_write_b32 v{t[0]}, v{v_p}")
    a("s_mov_b64 exec, -1")


def gen_k2(a):
    name = "k2_attn_kernel"
    kernel_begin(a, name)
    a("s_cmp_ge_u32 s2, 256")
    a("s_cbranch_scc1 k2_end")
    load_kernargs(a)
    a(f"s_and_b32 s{S_XB}, s2, 7")
    a(f"s_lshr_b32 s{S_J}, s2, 3")
    a(f"s_lshr_b32 s{S_T2}, s{S_J}, 3")
    a(f"s_lshl_b32 s{S_T1}, s{S_XB}, 2")
    a(f"s_add_u32 s{S_T1}, s{S_T1}, s{S_T2}")
    a(f"s_lshl_b32 s{S_TOK0}, s{S_T1}, 6")
    a(f"s_and_b32 s{S_T0}, s{S_J}, 7")
    a(f"s_mul_i32 s{S_COL}, s{S_T0}, 160")
    va = VAlloc(1)
    t = [va() for _ in range(6)]
    v_kn = va(2, 2)
    v_l16, v_lane, v_n, v_h, v_qa, v_oa = [va() for _ in range(6)]
    v_cur = [va() for _ in range(3)]
    v_nxt = [va() for _ in range(3)]
    v_m = [va(), va()]
    v_ob = va()
    v_cst = va()
    O = [va(16, 4) for _ in range(2)]
    VF = [va(8, 4) for _ in range(2)]
    v_late = va.n
    Q = [va(8, 4) for _ in range(2)]
    Sb = [[va(16, 4) for _ in range(2)] for _ in range(2)]
    P = [va(8, 4) for _ in range(2)]
    KF = [va(8, 4) for _ in range(2)]
    S_STEP, S_CNT, S_GOFF, S_HEAD = 76, 77, 78, 79
    S_VM, S_KM = 4, 6
    TB = 2560

    def kread(dst, regs, tile):
        return [f"ds_read_b128 {vr(dst,4)}, v{regs[0]} offset:{tile*TB}",
                f"ds_read_b64 {vr(dst+4,2)}, v{regs[1]} offset:{tile*TB}"]

    def vread(dst, regs, tile):
        return [f"s_mov_b64 exec, {sr(S_VM,2)}",
                f"ds_read_b128 {vr(dst,4)}, v{regs[2]} offset:{tile*TB}",
                f"ds_read_b128 {vr(dst+4,4)}, v{regs[2]} offset:{tile*TB+640}",
                "s_mov_b64 exec, -1"]

    a(f"v_lshrrev_b32 v{t[0]}, 6, v0")
    a(f"v_and_b32 v{v_lane}, 63, v0")
    a(f"v_readfirstlane_b32 s{S_WAVE}, v{t[0]}")
    a(f"v_lshlrev_b32 v{v_l16}, 4, v{v_lane}")
    a(f"v_and_b32 v{v_n}, 31, v0")
    a(f"v_bfe_u32 v{v_h}, v0, 5, 1")
    a("s_waitcnt lgkmcnt(0)")
    a(f"s_cmp_lt_u32 s{S_WAVE}, 4")
    a("s_cbranch_scc1 k2_comp")
    p1_mini(a)
    make_srd(a, SRDC, P_WS, WS_CNT, 32768)
    a("s_branch k2_helper")
    a.label("k2_comp")
    if CPF:
        code_touch(a, t[0], TDUM, 0)
    make_srd(a, SRDC, P_WS, WS_CNT, 32768)
    make_srd(a, SRD1, P_WS, WS_KV, KV_SZ)
    def init():
        a(f"s_mul_i32 s{S_T1}, s{S_WAVE}, 40")
        a(f"s_add_u32 s{S_T2}, s{S_T1}, {QST}")
        a(f"v_mul_u32_u24 v{t[1]}, 160, v{v_n}")
        a(f"v_add_u32 v{v_ob}, s{S_T2}, v{t[1]}")
        a(f"v_lshl_add_u32 v{v_qa}, v{v_h}, 4, v{v_ob}")
        a(f"v_lshl_add_u32 v{t[2]}, v{v_h}, 3, s{S_T1}")
        a(f"v_lshrrev_b32 v{t[3]}, 4, v{t[2]}")
        a(f"v_and_b32 v{t[2]}, 8, v{t[2]}")
        a(f"v_lshl_add_u32 v{t[2]}, v{t[3]}, 8, v{t[2]}")
        a(f"v_and_b32 v{t[3]}, 15, v{v_n}")
        a(f"v_lshl_add_u32 v{t[2]}, v{t[3]}, 4, v{t[2]}")
        a(f"v_lshrrev_b32 v{t[3]}, 4, v{v_n}")
        a(f"v_mul_u32_u24 v{t[3]}, 2560, v{t[3]}")
        a(f"v_add_u32 v{v_oa}, v{t[2]}, v{t[3]}")
        for b in range(2):
            for i in range(16):
                a(f"v_mov_b32 v{O[b]+i}, 0")
            for i in range(8):
                a(f"v_mov_b32 v{VF[b]+i}, 0x3f803f80")
        a(f"s_mov_b32 s{S_VM}, 0x000fffff")
        a(f"s_mov_b32 s{S_VM+1}, 0x000fffff")
        a(f"v_mov_b32 v{v_cur[0]}, v{v_l16}")
        a(f"v_lshlrev_b32 v{v_cur[1]}, 3, v{v_n}")
        a(f"v_add_u32 v{v_cur[1]}, 1024, v{v_cur[1]}")
        a(f"v_mul_u32_u24 v{t[0]}, 320, v{v_h}")
        a(f"v_lshl_add_u32 v{v_cur[2]}, v{v_n}, 4, v{t[0]}")
        a(f"v_add_u32 v{v_cur[2]}, 1280, v{v_cur[2]}")
        for i in range(3):
            a(f"v_add_u32 v{v_nxt[i]}, {8*TB}, v{v_cur[i]}")
    assert VF[1] + 8 - O[0] == 48
    make_srd(a, SRD4, P_WS, WS_O, S * D * 2)
    make_srd(a, SRD2, P_X, 0, S * D * 2)
    for r in v_nxt + v_cur:
        a(f"v_mov_b32 v{r}, 0")
    gq = p1_compute(a, t, v_late, O[0], init)
    for b in range(2):
        a(f"v_mov_b32 v{KF[b]+6}, 0x3f80")
        a(f"v_mov_b32 v{KF[b]+7}, 0")
        a(f"v_mov_b32 v{Q[b]+7}, 0")
    for i in range(8):
        a(f"v_mov_b32 v{P[1]+i}, 0")
    for i in range(12, 16):
        a(f"v_mov_b32 v{Sb[1][1]+i}, 0")
    a(f"v_cmp_eq_u32 vcc, 0, v{v_h}")
    a(f"v_mov_b32 v{t[0]}, {KMX}")
    a("s_waitcnt lgkmcnt(0)")
    stamp(a, 8, True)
    a("s_barrier")
    stamp(a, 9, True)
    a(f"ds_read_b32 v{v_kn}, v{t[0]}")
    for b in range(2):
        a(f"ds_read_b64 {vr(Q[b],2)}, v{v_qa} offset:{b*5120}")
        a(f"ds_read_b64 {vr(Q[b]+2,2)}, v{v_qa} offset:{b*5120+8}")
        a(f"ds_read_b64 {vr(Q[b]+4,2)}, v{v_ob} offset:{b*5120+32}")
    for l in kread(KF[0], v_cur, 0) + kread(KF[1], v_cur, 1) + vread(VF[0], v_cur, 0):
        a(l)
    a("s_waitcnt lgkmcnt(6)")
    a(f"v_readfirstlane_b32 s{S_KM}, v{v_kn}")
    for b in range(2):
        a(f"v_cndmask_b32 v{Q[b]+4}, 0, v{Q[b]+4}, vcc")
        a(f"v_cndmask_b32 v{Q[b]+5}, 0, v{Q[b]+5}, vcc")
    for i in range(6):
        for b in range(2):
            a(f"v_dot2_f32_bf16 v{t[2+b]}, v{Q[b]+i}, v{Q[b]+i}, " + ("0" if i == 0 else f"v{t[2+b]}"))
    a("s_nop 2")
    for b in range(2):
        a(f"v_mov_b32 v{t[b]}, v{t[2+b]}")
    a("s_nop 1")
    for b in range(2):
        a(f"v_permlane32_swap_b32 v{t[b]}, v{t[2+b]}")
    a("s_nop 1")
    for b in range(2):
        a(f"v_add_f32 v{t[b]}, v{t[b]}, v{t[2+b]}")
    for b in range(2):
        a(f"v_mul_f32 v{t[b]}, s{S_KM}, v{t[b]}")
    for b in range(2):
        a(f"v_sqrt_f32 v{t[b]}, v{t[b]}")
    a("s_nop 0")
    for b in range(2):
        a(f"v_cvt_pk_bf16_f32 v{t[b]}, -v{t[b]}, 0")
    for b in range(2):
        a(f"v_cndmask_b32 v{Q[b]+6}, 0, v{t[b]}, vcc")
    a("s_waitcnt lgkmcnt(0)")

    def qk(b, par, s, kf):
        d = vr(Sb[b][par], 16)
        c = "0" if s == 0 else d
        return f"v_mfma_f32_32x32x16_bf16 {d}, {vr(kf+4*s,4)}, {vr(Q[b]+4*s,4)}, {c}"

    def pv(b, s, vf):
        d = vr(O[b], 16)
        return f"v_mfma_f32_32x32x16_bf16 {d}, {vr(vf+4*s,4)}, {vr(P[b]+4*s,4)}, {d}"

    for b in range(2):
        a(qk(b, 0, 0, KF[0]))
        a(qk(b, 0, 1, KF[0]))
    a("s_nop 7")
    a("s_nop 7")
    a(f"s_mov_b32 s{S_CNT}, 8")
    stamp(a, 2)
    rstamp(a, 10)
    a.label("k2_loop")

    def exps(b, par, i0):
        return [f"v_exp_f32 v{Sb[b][par]+i}, v{Sb[b][par]+i}" for i in range(i0, i0 + 4)]

    def cvts(b, par, i0):
        return [f"v_cvt_pk_bf16_f32 v{P[b]+(i0+i)//2}, v{Sb[b][par]+i0+i}, v{Sb[b][par]+i0+i+1}" for i in (0, 2)]

    for ph in range(8):
        p = ph & 1
        q = p ^ 1
        kt, vt = ph + 2, ph + 1
        kr = kread(KF[p], v_cur if kt < 8 else v_nxt, kt % 8)
        vrd = vread(VF[q], v_cur if vt < 8 else v_nxt, vt % 8)
        M = [qk(0, q, 0, KF[q]), pv(1, 1, VF[q]), qk(0, q, 1, KF[q]), pv(0, 0, VF[p]),
             qk(1, q, 0, KF[q]), pv(0, 1, VF[p]), qk(1, q, 1, KF[q]), pv(1, 0, VF[p])]
        V = [cvts(1, q, 12) + exps(0, p, 0),
             exps(0, p, 4),
             cvts(0, p, 0) + cvts(0, p, 4) + exps(0, p, 8),
             cvts(0, p, 8) + exps(0, p, 12),
             cvts(0, p, 12) + exps(1, p, 0),
             exps(1, p, 4),
             cvts(1, p, 0) + cvts(1, p, 4) + exps(1, p, 8),
             cvts(1, p, 8) + exps(1, p, 12)]
        extra = [[] for _ in range(8)]
        if ph == 2:
            a(f"s_bitcmp1_b32 0x140, s{S_CNT}")
            a("s_cbranch_scc1 k2_sy")
            a.label("k2_nb1")
        a("s_waitcnt lgkmcnt(0)")
        extra[0] += kr
        extra[2] += vrd
        for i in range(8):
            a(M[i])
            for l in extra[i]:
                a(l)
            for l in V[i]:
                a(l)
    if INSTR:
        a("s_memtime s[98:99]")
        a("s_waitcnt lgkmcnt(0)")
        a("s_sub_u32 s98, s98, s80")
        a(f"s_mov_b32 m0, s{S_CNT}")
        a("s_nop 0")
        a(f"v_writelane_b32 v{v_cst}, s98, m0")
    a(f"s_cmp_eq_u32 s{S_CNT}, 2")
    a(f"s_cselect_b32 s{S_STEP}, 0, {8*TB}")
    for i in range(3):
        a(f"v_mov_b32 v{v_cur[i]}, v{v_nxt[i]}")
        a(f"v_add_u32 v{v_nxt[i]}, s{S_STEP}, v{v_nxt[i]}")
    a("s_cbranch_scc0 k2_nb")
    a("s_mov_b64 exec, 1")
    a(f"ds_add_u32 v{v_l16}, v{KF[0]+6}")
    a("s_mov_b64 exec, -1")
    a.label("k2_nb")
    a(f"s_sub_u32 s{S_CNT}, s{S_CNT}, 1")
    a(f"s_cmp_lg_u32 s{S_CNT}, 0")
    a("s_cbranch_scc1 k2_loop")
    for l in cvts(1, 1, 12):
        a(l)
    a("s_nop 1")
    a(pv(1, 1, VF[1]))
    a("s_waitcnt vmcnt(0) lgkmcnt(0)")
    a("s_nop 7")
    a("s_nop 7")
    stamp(a, 3)
    rstamp(a, 0)
    a(f"v_mov_b32 v{t[0]}, {f32(2.0**-40)}")
    a(f"v_cmp_nge_f32 s[74:75], v{O[0]+12}, v{t[0]}")
    a(f"v_cmp_nge_f32 vcc, v{O[1]+12}, v{t[0]}")
    a("s_nop 3")
    a("s_or_b64 vcc, vcc, s[74:75]")
    a("s_cbranch_vccnz k2_slow")
    a.label("k2_epi")
    for b in range(2):
        a(f"v_rcp_f32 v{t[0]}, v{O[b]+12}")
        a("s_nop 0")
        for i in range(12):
            a(f"v_mul_f32 v{O[b]+i}, v{O[b]+i}, v{t[0]}")
        for i in range(6):
            a(f"v_cvt_pk_bf16_f32 v{O[b]+i}, v{O[b]+2*i}, v{O[b]+2*i+1}")
    a(f"v_mov_b32 v{t[0]}, {TAB + 3072}")
    for i in range(4):
        a(f"v_mov_b32 v{P[0]+i}, 0")
    a(f"s_mul_i32 s{S_T1}, s{S_WAVE}, 2560")
    a(f"v_add_u32 v{t[1]}, s{S_T1}, v{v_l16}")
    a(f"s_lshr_b32 s{S_KW}, s{S_TOK0}, 4")
    a(f"s_add_u32 s{S_KW}, s{S_KW}, s{S_WAVE}")
    a(f"s_mul_i32 s{S_KW}, s{S_KW}, {16*D*2}")
    a(f"s_lshl_b32 s{S_T1}, s{S_COL}, 4")
    a(f"s_add_u32 s{S_KW}, s{S_KW}, s{S_T1}")
    a("s_barrier")
    a(f"ds_write_b128 v{t[0]}, {vr(P[0],4)}")
    for b in range(2):
        a(f"ds_write_b64 v{v_oa}, {vr(O[b],2)} offset:{b*5120}")
        a(f"ds_write_b64 v{v_oa}, {vr(O[b]+2,2)} offset:{b*5120+256}")
    a("s_mov_b64 exec, 0xffffffff")
    for b in range(2):
        a(f"ds_write_b64 v{v_oa}, {vr(O[b]+4,2)} offset:{b*5120+512}")
    a("s_mov_b64 exec, -1")
    a("s_waitcnt lgkmcnt(0)")
    a("s_barrier")
    for i in range(3):
        a(f"ds_read_b128 {vr(O[0]+4*i,4)}, v{t[1]} offset:{i*1024}")
    for i in range(3):
        a(f"s_waitcnt lgkmcnt({2-i})")
        if i == 2:
            a("s_mov_b64 exec, 0xffffffff")
        a(f"buffer_store_dwordx4 {vr(O[0]+4*i,4)}, v{v_l16}, {sr(SRD4,4)}, s{S_KW} offen offset:{i*1024} {HPOL}")
    def otouch():
        a(f"v_lshlrev_b32 v{t[3]}, 3, v{v_l16}")
        a("s_mov_b64 exec, 0xfffff")
        a(f"buffer_load_dword v{TDUM}, v{t[3]}, {sr(SRD4,4)}, s{S_KW} offen")
    publish(a, t, 2, otouch)
    if INSTR and not P1ST:
        lab = a.newlabel("hs")
        a(f"s_cmp_lg_u32 s2, {INSTR_WG}")
        a(f"s_cbranch_scc1 {lab}")
        a(f"s_cmp_lg_u32 s{S_WAVE}, 0")
        a(f"s_cbranch_scc1 {lab}")
        make_srd(a, 92, P_DBG, 0, 256)
        a(f"v_lshlrev_b32 v{t[0]}, 2, v{v_lane}")
        a(f"buffer_store_dword v{v_cst}, v{t[0]}, s[92:95], 0 offen offset:192")
        a.label(lab)
    ffn = ffn_compute(a)
    a.label("k2_end")
    a("s_endpgm")

    a.label("k2_sy")
    a(f"s_cmp_eq_u32 s{S_CNT}, 6")
    a("s_cbranch_scc1 k2_sy2")
    a("s_barrier")
    a("s_branch k2_nb1")
    a.label("k2_sy2")
    assert t[1] % 2 == 0
    kv_wait(a, v_l16, t[1], 0)
    for fb in range(5):
        a(f"buffer_load_dwordx2 {vr(RES3+2*fb,2)}, v{V_RAD}, {sr(SRD2,4)}, 0 offen offset:{fb*32}")
    a("s_branch k2_nb1")

    def rewind():
        for i in range(3):
            a(f"v_subrev_u32 v{v_nxt[i]}, {56*TB}, v{v_cur[i]}")
        a(f"s_mov_b32 s{S_GOFF}, 0")

    def advance(lab):
        a(f"s_add_u32 s{S_GOFF}, s{S_GOFF}, {TB}")
        a(f"s_cmp_lt_u32 s{S_GOFF}, {64*TB}")
        a(f"s_cbranch_scc1 {lab}")

    def gkread(dst):
        return [f"buffer_load_dwordx4 {vr(dst,4)}, v{v_nxt[0]}, {sr(SRD1,4)}, s{S_GOFF} offen",
                f"buffer_load_dwordx2 {vr(dst+4,2)}, v{v_nxt[1]}, {sr(SRD1,4)}, s{S_GOFF} offen"]

    def gvread(dst):
        return [f"s_mov_b64 exec, {sr(S_VM,2)}",
                f"buffer_load_dwordx4 {vr(dst,4)}, v{v_nxt[2]}, {sr(SRD1,4)}, s{S_GOFF} offen",
                f"buffer_load_dwordx4 {vr(dst+4,4)}, v{v_nxt[2]}, {sr(SRD1,4)}, s{S_GOFF} offen offset:640",
                "s_mov_b64 exec, -1"]

    a.label("k2_slow")
    for b in range(2):
        a(f"v_mov_b32 v{Q[b]+6}, 0")
        a(f"v_mov_b32 v{v_m[b]}, 0xff800000")
    rewind()
    a.label("k2_slow1")
    for l in gkread(KF[0]):
        a(l)
    a("s_waitcnt vmcnt(0)")
    for b in range(2):
        a(qk(b, 0, 0, KF[0]))
        a(qk(b, 0, 1, KF[0]))
    a("s_nop 7")
    a("s_nop 7")
    for b in range(2):
        for i in range(0, 16, 2):
            a(f"v_max3_f32 v{v_m[b]}, v{Sb[b][0]+i}, v{Sb[b][0]+i+1}, v{v_m[b]}")
    advance("k2_slow1")
    a(f"v_cmp_eq_u32 vcc, 0, v{v_h}")
    for b in range(2):
        xlane_add(a, v_m[b], v_lane, t[0], t[1], (32,), op="v_max_f32")
        a(f"v_cvt_pk_bf16_f32 v{t[2]}, -v{v_m[b]}, 0")
        a(f"v_cndmask_b32 v{Q[b]+6}, 0, v{t[2]}, vcc")
        for i in range(16):
            a(f"v_mov_b32 v{O[b]+i}, 0")
    rewind()
    a.label("k2_slow2")
    for l in gkread(KF[0]) + gvread(VF[0]):
        a(l)
    a("s_waitcnt vmcnt(0)")
    for b in range(2):
        a(qk(b, 0, 0, KF[0]))
        a(qk(b, 0, 1, KF[0]))
    a("s_nop 7")
    a("s_nop 7")
    for b in range(2):
        for i0 in range(0, 16, 4):
            for l in exps(b, 0, i0):
                a(l)
        a("s_nop 0")
        for i0 in range(0, 16, 4):
            for l in cvts(b, 0, i0):
                a(l)
    a("s_nop 1")
    for b in range(2):
        a(pv(b, 0, VF[0]))
        a(pv(b, 1, VF[0]))
    a("s_nop 7")
    a("s_nop 7")
    advance("k2_slow2")
    a("s_branch k2_epi")

    a.label("k2_helper")
    hva = VAlloc(v_h + 1)
    lt = t
    v_l = v_lane
    S_U, S_SRC, S_DST, S_RW = S_T0, S_T1, S_KW, S_ROT
    S_G = S_IMG
    cnt = [0]

    def dma(n, srd, first=False):
        if first:
            cnt[0] = 0
            a(f"s_mov_b32 s{S_KX}, s{S_WOFF}")
            a(f"s_and_b32 s{S_G}, s{S_J}, {KVROT}")
            a(f"s_mul_i32 s{S_G}, s{S_G}, 20480")
            a(f"s_add_u32 s{S_G}, s{S_G}, s{S_WOFF}")
        for i in range(n):
            a(f"s_mov_b32 m0, s{S_KX}")
            a(f"s_add_u32 s{S_KX}, s{S_KX}, 4096")
            a(f"buffer_load_dwordx4 v{v_l16}, {sr(srd,4)}, s{S_G} offen lds")
            a(f"s_add_u32 s{S_G}, s{S_G}, 4096")
            cnt[0] += 1
            if cnt[0] % 5 == 0:
                a(f"s_cmp_ge_u32 s{S_G}, {KV_SZ}")
                a(f"s_cselect_b32 s{S_T2}, {KV_SZ}, 0")
                a(f"s_sub_u32 s{S_G}, s{S_G}, s{S_T2}")
    pva = VAlloc(132)
    sel = pva(4, 4)
    pa = [pva() for _ in range(5)]
    pb = [pva() for _ in range(3)]
    v_rb, v_kf, v_km, v_ca, v_co = [pva() for _ in range(5)]

    def gather(regs, cprw, magic, stride):
        for i, r in enumerate(regs):
            a(f"v_add_u32 v{lt[0]}, {i*64}, v{v_l}")
            a(f"v_mul_u32_u24 v{lt[1]}, {magic}, v{lt[0]}")
            a(f"v_lshrrev_b32 v{lt[1]}, 19, v{lt[1]}")
            a(f"v_mul_u32_u24 v{lt[2]}, {cprw}, v{lt[1]}")
            a(f"v_sub_u32 v{lt[2]}, v{lt[0]}, v{lt[2]}")
            a(f"v_and_b32 v{lt[3]}, 0xfffffff3, v{lt[1]}")
            a(f"v_bfe_u32 v{lt[4]}, v{lt[1]}, 2, 1")
            if cprw == 12:
                a(f"v_lshlrev_b32 v{lt[5]}, 1, v{lt[4]}")
                a(f"v_xor_b32 v{lt[2]}, v{lt[2]}, v{lt[5]}")
            a(f"v_lshl_or_b32 v{lt[3]}, v{lt[4]}, 3, v{lt[3]}")
            a(f"v_bfe_u32 v{lt[4]}, v{lt[1]}, 3, 1")
            a(f"v_lshl_or_b32 v{lt[3]}, v{lt[4]}, 2, v{lt[3]}")
            a(f"v_mul_u32_u24 v{lt[3]}, {stride}, v{lt[3]}")
            a(f"v_lshl_add_u32 v{r}, v{lt[2]}, 4, v{lt[3]}")

    def early():
        gather(pb, 12, 43691, F * 2)
        gather(pa, 10, 52429, D * 2)
        a(f"v_lshlrev_b32 v{v_rb}, 7, v{v_l}")
        a(f"s_lshl_b32 s{S_T2}, s{S_WAVE}, 2")
        a(f"v_mov_b32 v{v_kf}, s{S_T2}")
        a(f"v_mov_b32 v{v_km}, -1")
        a(f"v_lshrrev_b32 v{lt[0]}, 3, v{v_l}")
        a(f"v_mul_u32_u24 v{lt[0]}, {F*2}, v{lt[0]}")
        a(f"v_and_b32 v{lt[1]}, 7, v{v_l}")
        a(f"v_lshl_add_u32 v{v_ca}, v{lt[1]}, 4, v{lt[0]}")
        a(f"v_and_b32 v{lt[0]}, 16, v{v_l}")
        a(f"v_lshl_add_u32 v{v_co}, v{lt[1]}, 5, v{lt[0]}")
        a(f"v_and_b32 v{lt[0]}, 1, v{v_l}")
        a(f"v_lshlrev_b32 v{lt[0]}, 4, v{lt[0]}")
        a(f"v_mov_b32 v{lt[1]}, 0x3f80")
        a(f"v_lshlrev_b32 v{lt[0]}, v{lt[0]}, v{lt[1]}")
        a(f"v_bfe_u32 v{lt[1]}, v{v_l}, 1, 3")
        for i in range(4):
            a(f"v_cmp_eq_u32 vcc, {i}, v{lt[1]}")
            a(f"v_cndmask_b32 v{sel+i}, 0, v{lt[0]}, vcc")
    p1_loader(a, gq, v_l, dma, early)
    a(f"s_and_b32 s{S_WOFF}, s{S_WAVE}, 3")
    a(f"s_lshl_b32 s{S_RW}, s2, 2")
    a(f"s_add_u32 s{S_RW}, s{S_RW}, s{S_WOFF}")
    a(f"s_lshl_b32 s{S_T2}, s{S_J}, 2")
    a(f"s_add_u32 s{S_J}, s{S_T2}, s{S_WOFF}")
    make_srd(a, SRD3, P_WS, WS_IMG, IMG_SZ)
    a("s_waitcnt vmcnt(10) lgkmcnt(0)")
    a("s_barrier")
    a("s_waitcnt vmcnt(0)")
    a("s_barrier")
    gq.lstamp(14)
    dma(27, SRD2)
    gq.lstamp(15)
    lab = a.newlabel("fc")
    a(f"s_cmp_lg_u32 s{S_RW}, 0")
    a(f"s_cbranch_scc1 {lab}")
    make_srd(a, SRD5, P_DBG, 0, 256)
    a("s_mov_b64 exec, 1")
    a(f"v_mov_b32 v{lt[0]}, 0")
    a(f"buffer_store_dword v{lt[0]}, v{lt[0]}, {sr(SRD5,4)}, 0 offen offset:{FLAG} sc1")
    a("s_mov_b64 exec, -1")
    a.label(lab)
    lab = a.newlabel("zw")
    a(f"s_cmp_lg_u32 s{S_WAVE}, 4")
    a(f"s_cbranch_scc1 {lab}")
    a(f"v_mov_b32 v{lt[0]}, 0")
    a(f"ds_write2_b32 v{lt[0]}, v{lt[0]}, v{lt[0]} offset0:0 offset1:1")
    a.label(lab)

    def kvdone(n):
        a(f"s_waitcnt vmcnt({n})")
        a(f"ds_write_b32 v{v_kf}, v{v_km}")
        gq.lstamp(16)
        if INSTR:
            a("s_waitcnt vmcnt(0)")
            gq.lstamp(17)
    dummy = hva()

    def touch():
        for c in range(3):
            if c == 0:
                a(f"s_mul_i32 s{S_T1}, s{S_J}, {50*128}")
            else:
                a(f"s_mul_i32 s{S_T1}, s{S_J}, {120*128}")
                a(f"s_and_b32 s{S_T0}, s{S_XB}, 1")
                a(f"s_mul_i32 s{S_T0}, s{S_T0}, {1966080}")
                a(f"s_add_u32 s{S_T1}, s{S_T1}, s{S_T0}")
                a(f"s_add_u32 s{S_T1}, s{S_T1}, {IMG_GU + (c-1)*56*128}")
            a(f"buffer_load_dword v{dummy}, v{v_rb}, {sr(SRD3,4)}, s{S_T1} offen")
            if c < 2:
                a(f"s_sleep {TSLEEP2}")

    bufB = [hva(12, 4) for _ in range(2)]
    bufA = hva(20, 4)

    def loadsB(buf):
        a(f"s_mul_i32 s{S_SRC}, s{S_U}, 52429")
        a(f"s_lshr_b32 s{S_SRC}, s{S_SRC}, 22")
        a(f"s_mul_i32 s{S_DST}, s{S_SRC}, 80")
        a(f"s_sub_u32 s{S_T2}, s{S_U}, s{S_DST}")
        a(f"s_mul_i32 s{S_SRC}, s{S_SRC}, 192")
        a(f"s_lshr_b32 s{S_DST}, s{S_T2}, 3")
        a(f"s_lshl_b32 s{S_DST}, s{S_DST}, 2")
        a(f"s_and_b32 s{S_KX}, s{S_T2}, 3")
        a(f"s_add_u32 s{S_DST}, s{S_DST}, s{S_KX}")
        a(f"s_mul_i32 s{S_DST}, s{S_DST}, {16*F*2}")
        a(f"s_add_u32 s{S_SRC}, s{S_SRC}, s{S_DST}")
        a(f"s_bitcmp1_b32 s{S_T2}, 2")
        a(f"s_cselect_b32 s{SRD0}, s{P_WU}, s{P_WG}")
        a(f"s_cselect_b32 s{SRD0+1}, s{P_WU+1}, s{P_WG+1}")
        a(f"s_mov_b32 s{SRD0+2}, {F*D*2}")
        for i in range(3):
            a(f"buffer_load_dwordx4 {vr(buf+4*i,4)}, v{pb[i]}, {sr(SRD0,4)}, s{S_SRC} offen")

    def storesB(buf):
        a(f"s_mul_i32 s{S_DST}, s{S_U}, 3072")
        a(f"s_add_u32 s{S_DST}, s{S_DST}, {IMG_GU}")
        for i in range(3):
            a(f"buffer_store_dwordx4 {vr(buf+4*i,4)}, v{v_l16}, {sr(SRD3,4)}, s{S_DST} offen offset:{i*1024} {IMGPOL}")

    a(f"s_mov_b32 s{S_U}, s{S_RW}")
    loadsB(bufB[0])
    a(f"s_cmp_lt_u32 s{S_RW}, 544")
    a("s_cbranch_scc1 k2_rpa")
    a(f"s_add_u32 s{S_U}, s{S_RW}, {1024 - 544}")
    a(f"s_cmp_ge_u32 s{S_U}, 1280")
    a("s_cbranch_scc1 k2_rpe")
    loadsB(bufB[1])
    kvdone(6)
    a("s_waitcnt vmcnt(0)")
    storesB(bufB[1])
    a("s_branch k2_rpf")
    a.label("k2_rpa")
    l1, l2 = a.newlabel("ra"), a.newlabel("ra")
    a(f"s_cmp_ge_u32 s{S_RW}, 160")
    a(f"s_cbranch_scc1 {l1}")
    a(f"s_mul_i32 s{S_SRC}, s{S_RW}, 3277")
    a(f"s_lshr_b32 s{S_SRC}, s{S_SRC}, 16")
    a(f"s_mul_i32 s{S_DST}, s{S_SRC}, 20")
    a(f"s_sub_u32 s{S_DST}, s{S_RW}, s{S_DST}")
    a(f"s_mov_b32 s{SRD0}, s{P_WO}")
    a(f"s_mov_b32 s{SRD0+1}, s{P_WO+1}")
    a(f"s_mov_b32 s{SRD0+2}, {D*D*2}")
    a(f"s_branch {l2}")
    a.label(l1)
    a(f"s_sub_u32 s{S_U}, s{S_RW}, 160")
    a(f"s_mul_i32 s{S_SRC}, s{S_U}, 1366")
    a(f"s_lshr_b32 s{S_SRC}, s{S_SRC}, 16")
    a(f"s_mul_i32 s{S_DST}, s{S_SRC}, 48")
    a(f"s_sub_u32 s{S_DST}, s{S_U}, s{S_DST}")
    a(f"s_mov_b32 s{SRD0}, s{P_WD}")
    a(f"s_mov_b32 s{SRD0+1}, s{P_WD+1}")
    a(f"s_mov_b32 s{SRD0+2}, {F*D*2}")
    a.label(l2)
    a(f"s_mul_i32 s{S_SRC}, s{S_SRC}, 160")
    a(f"s_mul_i32 s{S_DST}, s{S_DST}, {32*D*2}")
    a(f"s_add_u32 s{S_SRC}, s{S_SRC}, s{S_DST}")
    for i in range(5):
        a(f"buffer_load_dwordx4 {vr(bufA+4*i,4)}, v{pa[i]}, {sr(SRD0,4)}, s{S_SRC} offen")
    a(f"s_mul_i32 s{S_DST}, s{S_RW}, 5120")
    kvdone(8)
    a("s_waitcnt vmcnt(0)")
    for i in range(5):
        if i == 4:
            a(f"s_add_u32 s{S_DST}, s{S_DST}, 4096")
        a(f"buffer_store_dwordx4 {vr(bufA+4*i,4)}, v{v_l16}, {sr(SRD3,4)}, s{S_DST} offen offset:{(i%4)*1024} {IMGPOL}")
    a("s_branch k2_rpf")
    a.label("k2_rpe")
    kvdone(3)
    a("s_waitcnt vmcnt(0)")
    a.label("k2_rpf")
    a(f"s_mov_b32 s{S_U}, s{S_RW}")
    storesB(bufB[0])
    if INSTR:
        a("s_waitcnt vmcnt(0)")
        a("s_memrealtime s[100:101]")
        a("s_waitcnt lgkmcnt(0)")
        lab = a.newlabel("hw")
        a(f"s_cmp_lg_u32 s{S_WAVE}, 4")
        a(f"s_cbranch_scc1 {lab}")
        make_srd(a, 40, P_WS, WS_TL + 4096 + 2048, 2048)
        a("v_mov_b32 v2, s82")
        a("v_mov_b32 v3, s100")
        a("s_lshl_b32 s98, s2, 3")
        a("v_mov_b32 v1, s98")
        a("buffer_store_dwordx2 v[2:3], v1, s[40:43], 0 offen")
        a.label(lab)
    def arrive2(s_sh, n, root, out):
        a(f"v_mov_b32 v{lt[2]}, 1")
        a("s_waitcnt vmcnt(0)")
        a(f"buffer_atomic_add v{lt[2]}, v{lt[0]}, {sr(SRDC,4)}, s{s_sh} offen sc0 sc1")
        a("s_waitcnt vmcnt(0)")
        a(f"v_readfirstlane_b32 s{S_T2}, v{lt[2]}")
        a(f"v_mov_b32 v{lt[2]}, 1")
        a(f"s_mov_b32 s{s_sh}, {root}")
        a("s_nop 2")
        a(f"s_cmp_lg_u32 s{S_T2}, {n-1}")
        a(f"s_cbranch_scc1 {out}")
        a(f"buffer_atomic_add v{lt[2]}, v{lt[0]}, {sr(SRDC,4)}, s{s_sh} offen sc0 sc1")
        a("s_waitcnt vmcnt(0)")
        a(f"v_readfirstlane_b32 s{S_T2}, v{lt[2]}")
        a("s_nop 3")
        a(f"s_cmp_lg_u32 s{S_T2}, 15")
        a(f"s_cbranch_scc1 {out}")
        a("s_mov_b64 exec, 0xff")
        a(f"v_lshlrev_b32 v{lt[3]}, 8, v{v_l}")
        a(f"v_mov_b32 v{lt[2]}, 1")
        a(f"buffer_store_dword v{lt[2]}, v{lt[3]}, {sr(SRDC,4)}, s{s_sh} offen offset:2048 sc1")

    def gpoll(off, add):
        l0, l1, l2 = [a.newlabel("gp") for _ in range(3)]
        a("s_mov_b64 exec, 1")
        a(f"v_mov_b32 v{lt[0]}, 0")
        a(f"s_cmp_lg_u32 s{S_HOOK}, 3")
        a(f"s_cbranch_scc1 {l2}")
        a(f"s_lshl_b32 s{S_T0}, s{S_XB}, 8")
        a(f"s_add_u32 s{S_T0}, s{S_T0}, {off}")
        a(f"s_mov_b32 s{S_KX}, 0x8000")
        a.label(l0)
        a(f"buffer_load_dword v{lt[2]}, v{lt[0]}, {sr(SRDC,4)}, s{S_T0} offen sc1")
        a(f"s_sub_u32 s{S_KX}, s{S_KX}, 1")
        a("s_waitcnt vmcnt(0)")
        a(f"v_readfirstlane_b32 s{S_T2}, v{lt[2]}")
        a(f"s_cmp_eq_u32 s{S_KX}, 0")
        a(f"s_cbranch_scc1 {l1}")
        a("s_nop 1")
        a(f"s_cmp_lg_u32 s{S_T2}, 0")
        a(f"s_cbranch_scc1 {l1}")
        a(f"s_sleep {TSLEEP[0]}")
        a(f"s_branch {l0}")
        a.label(l1)
        a(f"v_mov_b32 v{lt[1]}, {add}")
        a(f"ds_add_u32 v{lt[0]}, v{lt[1]}")
        a.label(l2)

    kq = hva(4, 4)
    a("s_mov_b64 exec, 1")
    a(f"v_mov_b32 v{lt[0]}, 0")
    a(f"v_mov_b32 v{lt[1]}, 1")
    a(f"s_and_b32 s{S_T1}, s2, 15")
    a(f"s_lshl_b32 s{S_T1}, s{S_T1}, 8")
    a(f"s_add_u32 s{S_T1}, s{S_T1}, {112*256}")
    gq.lstamp(18)
    kv_wait(a, lt[0], kq, 1)
    a("s_waitcnt vmcnt(0)")
    gq.lstamp(19)
    a(f"ds_add_rtn_u32 v{lt[2]}, v{lt[0]}, v{lt[1]} offset:4")
    a("s_waitcnt lgkmcnt(0)")
    a(f"v_readfirstlane_b32 s{S_HOOK}, v{lt[2]}")
    a("s_nop 3")
    a(f"s_cmp_lg_u32 s{S_HOOK}, 3")
    a("s_cbranch_scc1 k2_lw")
    arrive2(S_T1, 16, CNT_IMG*256, "k2_lw")
    a.label("k2_lw")
    a("s_mov_b64 exec, -1")
    csb = hva(40, 4)
    cacc = hva(4, 4)
    assert hva.n <= 132
    a(f"s_cmp_lt_u32 s{S_RW}, {1024 - 48*NCS}")
    a("s_cbranch_scc1 k2_ncs")
    a(f"s_sub_u32 s{S_T2}, s{S_RW}, {1024 - 48*NCS}")
    a(f"s_mul_i32 s{S_U}, s{S_T2}, 1366")
    a(f"s_lshr_b32 s{S_U}, s{S_U}, 16")
    a(f"s_mul_i32 s{S_SRC}, s{S_U}, 48")
    a(f"s_sub_u32 s{S_SRC}, s{S_T2}, s{S_SRC}")
    a(f"s_cmp_lt_u32 s{S_SRC}, 24")
    a(f"s_cselect_b32 s{SRD0}, s{P_WG}, s{P_WU}")
    a(f"s_cselect_b32 s{SRD0+1}, s{P_WG+1}, s{P_WU+1}")
    a(f"s_mov_b32 s{SRD0+2}, {F*D*2}")
    a(f"s_cselect_b32 s{S_DST}, 0, 24")
    a(f"s_sub_u32 s{S_SRC}, s{S_SRC}, s{S_DST}")
    a(f"s_lshl_b32 s{S_SRC}, s{S_SRC}, 7")
    a(f"s_mul_i32 s{S_U}, s{S_U}, {80*F*2}")
    a(f"s_add_u32 s{S_SRC}, s{S_SRC}, s{S_U}")
    for i in range(10):
        a(f"buffer_load_dwordx4 {vr(csb+4*i,4)}, v{v_ca}, {sr(SRD0,4)}, s{S_SRC} offen")
        a(f"s_add_u32 s{S_SRC}, s{S_SRC}, {8*F*2}")
    make_srd(a, SRD4, P_WS, WS_CS, NCS * 3072 * 4)
    a(f"s_lshl_b32 s{S_T2}, s{S_T2}, 8")
    for i in range(10):
        a(f"s_waitcnt vmcnt({9-i})")
        a(f"v_mfma_f32_16x16x32_bf16 {vr(cacc,4)}, {vr(sel,4)}, {vr(csb+4*i,4)}, " + ("0" if i == 0 else vr(cacc, 4)))
    a("s_nop 7")
    a("s_nop 7")
    for j in range(4):
        a(f"v_add_f32_dpp v{cacc+j}, v{cacc+j}, v{cacc+j} row_ror:8 row_mask:0xf bank_mask:0xf")
    a(f"s_mov_b64 exec, 0x00ff00ff")
    a(f"buffer_store_dwordx4 {vr(cacc,4)}, v{v_co}, {sr(SRD4,4)}, s{S_T2} offen sc1")
    a("s_mov_b64 exec, 1")
    a(f"v_mov_b32 v{lt[0]}, 0")
    a(f"s_and_b32 s{S_T1}, s{S_RW}, 15")
    a(f"s_lshl_b32 s{S_T1}, s{S_T1}, 8")
    a(f"s_add_u32 s{S_T1}, s{S_T1}, {96*256 + 4}")
    arrive2(S_T1, 3*NCS, CNT_KV*256 + 4, "k2_ncs")
    a.label("k2_ncs")
    gpoll((CNT_IMG+8)*256, 1)
    lds_wait(a, lt, 8, "s_bitcmp0_b32 s{}, 0")
    a("s_mov_b64 exec, -1")
    gq.lstamp(20)
    touch()
    gq.lstamp(21)
    if CPF > 1:
        code_touch(a, lt[0], dummy, 0)
    gpoll((CNT_KV+8)*256 + 4, 2)
    a("s_mov_b64 exec, -1")
    ffn.gq = gq
    ffn_loader(a, ffn)

    a.label("k2_code_end")
    kernel_end(a, name, max(va.n, hva.n, ffn.maxv, gq.maxv, V_RAD + 1))
    print('vgprs', va.n, hva.n, ffn.maxv, gq.maxv)
    return (name, 256, 512, KV_SZ)

TSLEEP = [int(x) for x in os.environ.get("TSLEEP", "16").split(",") if x]
TSLEEP2 = int(os.environ.get("TSLEEP2", "16"))
TEARLY = bool(os.environ.get("TEARLY"))


SRDC = 8
TDUM = 243
RES3, V_RAD = 244, 254
XCH = 0
TAB = 156 * 1024
HPOL = os.environ.get("HPOL", "sc1")
XPOL = os.environ.get("XPOL", "sc1")


def map_proj(a, which):
    a(f"s_and_b32 s{S_T1}, s2, 7")
    a(f"s_lshr_b32 s{S_T0}, s2, 3")
    a(f"s_mov_b32 s{S_J}, s{S_T0}")
    a(f"s_mov_b32 s{S_XB}, s{S_T1}")
    if which == 3:
        a(f"s_mul_i32 s{S_ROT}, s{S_T0}, 52")
        a(f"s_lshr_b32 s{S_ROT}, s{S_ROT}, 8")
        a(f"s_mul_i32 s{S_ROT}, s{S_ROT}, 5")
        a(f"s_sub_u32 s{S_ROT}, s{S_T0}, s{S_ROT}")
        a(f"s_lshr_b32 s{S_T2}, s{S_T0}, 3")
        a(f"s_lshl_b32 s{S_T1}, s{S_T1}, 2")
        a(f"s_add_u32 s{S_T1}, s{S_T1}, s{S_T2}")
        a(f"s_lshl_b32 s{S_TOK0}, s{S_T1}, 6")
        a(f"s_and_b32 s{S_T0}, s{S_T0}, 7")
    else:
        a(f"s_and_b32 s{S_ROT}, s{S_T1}, 1")
        a(f"s_mul_i32 s{S_ROT}, s{S_ROT}, 6")
        a(f"s_and_b32 s{S_T2}, s{S_T0}, 1")
        a(f"s_add_u32 s{S_ROT}, s{S_ROT}, s{S_T2}")
        a(f"s_lshr_b32 s{S_T2}, s{S_T1}, 1")
        a(f"s_lshl_b32 s{S_T2}, s{S_T2}, 3")
        a(f"s_and_b32 s{S_TOK0}, s{S_T0}, 7")
        a(f"s_add_u32 s{S_TOK0}, s{S_TOK0}, s{S_T2}")
        a(f"s_lshl_b32 s{S_TOK0}, s{S_TOK0}, 6")
        a(f"s_and_b32 s{S_T1}, s{S_T1}, 1")
        a(f"s_lshl_b32 s{S_T1}, s{S_T1}, 2")
        a(f"s_lshr_b32 s{S_T0}, s{S_T0}, 3")
        a(f"s_add_u32 s{S_T0}, s{S_T0}, s{S_T1}")
    a(f"s_mul_i32 s{S_COL}, s{S_T0}, 160")


def srd_proj(a, which):
    if which == 3:
        make_srd(a, SRD0, P_WS, WS_O, S * D * 2)
        make_srd(a, SRD1, P_WS, WS_IMG, IMG_SZ)
        a(f"s_mul_i32 s{S_IMG}, s{S_T0}, {5*20480}")
        make_srd(a, SRD2, P_WS, WS_H, S * D * 2)
        make_srd(a, SRD3, P_X, 0, S * D * 2)
        make_srd(a, SRD4, P_WS, WS_ST, S * 64)
    else:
        make_srd(a, SRD0, P_WS, WS_ACT, S * F * 2)
        make_srd(a, SRD1, P_WS, WS_IMG, IMG_SZ)
        a(f"s_mul_i32 s{S_IMG}, s{S_T0}, {12*20480}")
        make_srd(a, SRD2, P_OUT, 0, S * D * 2)
        make_srd(a, SRD3, P_WS, WS_H, S * D * 2)


def map_k4(a):
    a(f"s_and_b32 s{S_XB}, s2, 7")
    a(f"s_lshr_b32 s{S_J}, s2, 3")
    a(f"s_mul_i32 s{S_ROT}, s{S_J}, 26")
    a(f"s_lshr_b32 s{S_ROT}, s{S_ROT}, 8")
    a(f"s_mul_i32 s{S_ROT}, s{S_ROT}, 10")
    a(f"s_sub_u32 s{S_ROT}, s{S_J}, s{S_ROT}")
    a(f"s_lshr_b32 s{S_T2}, s{S_XB}, 1")
    a(f"s_lshl_b32 s{S_T2}, s{S_T2}, 2")
    a(f"s_and_b32 s{S_TOK0}, s{S_J}, 3")
    a(f"s_add_u32 s{S_TOK0}, s{S_TOK0}, s{S_T2}")
    a(f"s_lshl_b32 s{S_TOK0}, s{S_TOK0}, 7")
    a(f"s_lshr_b32 s{S_T2}, s{S_J}, 2")
    a(f"s_and_b32 s{S_T1}, s{S_XB}, 1")
    a(f"s_lshl_b32 s{S_T1}, s{S_T1}, 3")
    a(f"s_add_u32 s{S_T0}, s{S_T2}, s{S_T1}")
    a(f"s_mul_i32 s{S_COL}, s{S_T0}, 192")
    a(f"s_mul_i32 s{S_IMG}, s{S_T0}, {10*24576}")
    make_srd(a, SRD0, P_WS, WS_H, S * D * 2)
    make_srd(a, SRD1, P_WS, WS_IMG, IMG_SZ)
    make_srd(a, SRD3, P_WS, WS_ACT, S * F * 2)


CNT = {0: (0, 7, 16), 1: (16, 7, 16), 2: (32, 6, 8)}
CNT_IMG = 64


def kv_wait(a, v_zero, q, nap):
    lab = a.newlabel("kw")
    a.label(lab)
    if nap:
        a(f"s_sleep {nap}")
    a(f"ds_read_b128 {vr(q,4)}, v{v_zero} offset:16")
    a("s_waitcnt lgkmcnt(0)")
    a(f"v_and_b32 v{q}, v{q}, v{q+1}")
    a(f"v_and_b32 v{q+2}, v{q+2}, v{q+3}")
    a(f"v_and_b32 v{q}, v{q}, v{q+2}")
    a("s_nop 0")
    a(f"v_readfirstlane_b32 s{S_T2}, v{q}")
    a("s_nop 3")
    a(f"s_cmp_lg_u32 s{S_T2}, -1")
    a(f"s_cbranch_scc1 {lab}")


def lds_wait(a, t, nap, cond):
    lab = a.newlabel("lw")
    a.label(lab)
    a(f"s_sleep {nap}")
    a(f"ds_read_b32 v{t[2]}, v{t[0]}")
    a("s_waitcnt lgkmcnt(0)")
    a(f"v_readfirstlane_b32 s{S_T2}, v{t[2]}")
    a("s_nop 3")
    a(cond.format(S_T2))
    a(f"s_cbranch_scc1 {lab}")


PT = os.environ.get("PT", "9").split(",")


def publish(a, t, ph, touch=None):
    lab = a.newlabel("pub")
    a("s_mov_b64 exec, 1")
    a(f"v_mov_b32 v{t[0]}, {TAB + 3072 + 4*ph}")
    a(f"v_mov_b32 v{t[1]}, 1")
    a(f"s_lshr_b32 s{S_T1}, s{S_TOK0}, {CNT[ph][1]}")
    a(f"s_lshl_b32 s{S_T1}, s{S_T1}, 8")
    a(f"s_add_u32 s{S_T1}, s{S_T1}, {CNT[ph][0]*256}")
    a("s_waitcnt vmcnt(0)")
    rstamp(a, {2: 1, 0: 4, 1: 7}[ph])
    a(f"ds_add_rtn_u32 v{t[2]}, v{t[0]}, v{t[1]}")
    a(f"v_mov_b32 v{t[0]}, 0")
    a("s_waitcnt lgkmcnt(0)")
    a(f"v_readfirstlane_b32 s{S_T2}, v{t[2]}")
    a("s_nop 3")
    a(f"s_cmp_lg_u32 s{S_T2}, 3")
    a(f"s_cbranch_scc1 {lab}")
    if LOC:
        a(f"buffer_atomic_add v{t[1]}, v{t[0]}, {sr(SRDC,4)}, s{S_T1} offen offset:128")
    a(f"buffer_atomic_add v{t[1]}, v{t[0]}, {sr(SRDC,4)}, s{S_T1} offen sc1")
    a.label(lab)
    a("s_mov_b64 exec, -1")
    if touch and str(ph) in PT:
        touch()
        a("s_mov_b64 exec, -1")


def await_block(a, t, ph):
    l0, l1 = a.newlabel("aw"), a.newlabel("aw")
    a(f"s_cmp_lg_u32 s{S_WAVE}, 0")
    a(f"s_cbranch_scc1 {l1}")
    a("s_mov_b64 exec, 1")
    a(f"v_mov_b32 v{t[0]}, 0")
    a(f"s_lshr_b32 s{S_T1}, s{S_TOK0}, {CNT[ph][1]}")
    a(f"s_lshl_b32 s{S_T1}, s{S_T1}, 8")
    a(f"s_add_u32 s{S_T1}, s{S_T1}, {CNT[ph][0]*256}")
    a(f"s_mov_b32 s{S_KX}, 0x20000")
    a.label(l0)
    if LOC:
        lb, lw = a.newlabel("aw"), a.newlabel("aw")
        a(f"s_and_b32 s{S_T2}, s{S_KX}, {LOC}")
        a(f"s_cmp_eq_u32 s{S_T2}, 1")
        a(f"s_cbranch_scc1 {lb}")
        a(f"v_mov_b32 v{t[1]}, 0")
        a(f"buffer_atomic_add v{t[1]}, v{t[0]}, {sr(SRDC,4)}, s{S_T1} offen offset:128 sc0")
        a(f"s_branch {lw}")
        a.label(lb)
    a(f"buffer_load_dword v{t[1]}, v{t[0]}, {sr(SRDC,4)}, s{S_T1} offen sc1")
    if LOC:
        a.label(lw)
    a(f"s_sub_u32 s{S_KX}, s{S_KX}, 1")
    a("s_waitcnt vmcnt(0)")
    a(f"v_readfirstlane_b32 s{S_T2}, v{t[1]}")
    a(f"s_cmp_eq_u32 s{S_KX}, 0")
    a(f"s_cselect_b32 s{S_KW}, {CNT[ph][2]}, 0")
    a(f"s_max_u32 s{S_T2}, s{S_T2}, s{S_KW}")
    a(f"s_cmp_lt_u32 s{S_T2}, {CNT[ph][2]}")
    a(f"s_cbranch_scc1 {l0}")
    a("s_mov_b64 exec, -1")
    a.label(l1)
    a("s_barrier")
    rstamp(a, {2: 2, 0: 5, 1: 8}[ph])


def proj_gemm(a, va, which):
    seg = Seg(SRD1, D * 2, 80, 'p160', S_COL, img=(S_IMG, 20480, IMG_WO if which == 3 else IMG_WD))
    K = D if which == 3 else F
    return Gemm(a, va, 64, 2, 2, 1, [seg], 128, 4, K, SRD0, K * 2, S_TOK0, sregs=GS, tag=f"k{which}", xcm=True,
                lds_base=0 if which == 3 else 8192)


def proj_compute(a, va, g, which, sb):
    g.setup()
    t = g.tmp
    v_ad, v_tok, v_a4, v_c8, v_c4 = va(), va(), va(), va(), va()
    res = va(10, 2)
    a(f"v_lshl_add_u32 v{v_tok}, v{g.v_wt}, 1, v{g.v_wo}")
    a(f"v_lshl_add_u32 v{v_tok}, v{v_tok}, 4, v{g.v_i16}")
    a(f"v_add_u32 v{v_tok}, s{S_TOK0}, v{v_tok}")
    a(f"v_mul_u32_u24 v{t[0]}, {D*2}, v{v_tok}")
    a(f"v_add_u32 v{t[0]}, s{S_COL}, v{t[0]}")
    a(f"v_lshl_add_u32 v{v_ad}, v{g.v_g}, 3, v{t[0]}")
    a(f"v_and_b32 v{t[1]}, 1, v{g.v_g}")
    a(f"v_lshl_add_u32 v{v_a4}, v{t[1]}, 5, v{t[0]}")
    a(f"v_lshrrev_b32 v{t[1]}, 1, v{g.v_g}")
    a(f"v_lshl_add_u32 v{v_a4}, v{t[1]}, 4, v{v_a4}")
    a(f"v_and_b32 v{t[0]}, 0xfff0, v{v_tok}")
    a(f"v_mul_u32_u24 v{t[0]}, {D*2}, v{t[0]}")
    a(f"v_lshl_add_u32 v{t[0]}, v{g.v_i16}, 4, v{t[0]}")
    a(f"s_lshl_b32 s{S_T1}, s{S_COL}, 4")
    a(f"v_add_u32 v{t[0]}, s{S_T1}, v{t[0]}")
    a(f"v_lshl_add_u32 v{t[0]}, v{t[1]}, 8, v{t[0]}")
    a(f"v_and_b32 v{t[1]}, 1, v{g.v_g}")
    a(f"v_lshl_add_u32 v{v_c8}, v{t[1]}, 3, v{t[0]}")
    a(f"v_lshl_add_u32 v{v_c4}, v{t[1]}, 9, v{t[0]}")
    if which == 3:
        res = RES3
    await_block(a, t, 1 if which == 5 else 2)
    for fb in range(5):
        if which == 5:
            a(f"buffer_load_dwordx2 {vr(res+2*fb,2)}, v{v_c8}, {sr(SRD3,4)}, 0 offen offset:{fb*512} {HPOL}")
    stamp(a, sb)
    g.mainloop()
    stamp(a, sb + 1)
    rstamp(a, 3 if which == 3 else 9)
    a("s_nop 7")
    a(f"v_mul_u32_u24 v{t[0]}, 5120, v{g.v_wave}")
    a(f"v_lshl_add_u32 v{t[0]}, v{g.v_lane}, 4, v{t[0]}")
    a(f"v_add_u32 v{t[0]}, {XCH}, v{t[0]}")
    a(f"v_xor_b32 v{t[1]}, 2, v{g.v_wave}")
    a(f"v_mul_u32_u24 v{t[1]}, 5120, v{t[1]}")
    a(f"v_lshl_add_u32 v{t[1]}, v{g.v_lane}, 4, v{t[1]}")
    a(f"v_add_u32 v{t[1]}, {XCH}, v{t[1]}")
    for fb in range(5):
        a(f"ds_write_b128 v{t[0]}, {vr(g.acc[1][fb],4)} offset:{fb*1024}")
    a("s_waitcnt lgkmcnt(0)")
    a("s_barrier")
    for fb in range(5):
        a(f"ds_read_b128 {vr(g.acc[1][fb],4)}, v{t[1]} offset:{fb*1024}")
    v_s = va(2, 2)
    v_q = v_s + 1
    v_s2, v_q2 = va(2, 2), va(2, 2)
    assert t[1] % 2 == 0
    if which == 3:
        for r in (v_s2, v_s2 + 1, v_q2, v_q2 + 1):
            a(f"v_mov_b32 v{r}, 0")
    pol = HPOL if which == 3 else ""
    for fb in range(5):
        a(f"s_waitcnt lgkmcnt({4-fb})")
        c, o = g.acc[0][fb], g.acc[1][fb]
        dst = o if fb % 2 == 0 else g.acc[1][fb - 1] + 2
        for p in range(2):
            u = t[1] + 2 * p
            a(f"v_lshlrev_b32 v{u}, 16, v{res+2*fb+p}")
            a(f"v_and_b32 v{u+1}, 0xffff0000, v{res+2*fb+p}")
            a(f"v_pk_add_f32 {vr(c+2*p,2)}, {vr(c+2*p,2)}, {vr(o+2*p,2)}")
            a(f"v_cvt_pk_bf16_f32 v{c+2*p+1}, v{c+2*p}, v{c+2*p+1}")
            a(f"v_lshlrev_b32 v{c+2*p}, 16, v{c+2*p+1}")
            a(f"v_and_b32 v{c+2*p+1}, 0xffff0000, v{c+2*p+1}")
            a(f"v_pk_add_f32 {vr(u,2)}, {vr(u,2)}, {vr(c+2*p,2)}")
            a(f"v_cvt_pk_bf16_f32 v{dst+p}, v{u}, v{u+1}")
            if which == 3:
                a(f"v_lshlrev_b32 v{u}, 16, v{dst+p}")
                a(f"v_and_b32 v{u+1}, 0xffff0000, v{dst+p}")
                a(f"v_pk_add_f32 {vr(v_s2,2)}, {vr(v_s2,2)}, {vr(u,2)}")
                a(f"v_pk_fma_f32 {vr(v_q2,2)}, {vr(u,2)}, {vr(u,2)}, {vr(v_q2,2)}")
        if fb % 2 == 1:
            q = g.acc[1][fb - 1]
            a("s_nop 1")
            a(f"v_permlane16_swap_b32 v{q}, v{q+2}")
            a(f"v_permlane16_swap_b32 v{q+1}, v{q+3}")
            if which == 3:
                a(f"buffer_store_dwordx4 {vr(q,4)}, v{v_c4}, {sr(SRD2,4)}, 0 offen offset:{(fb-1)*512} {pol}")
            else:
                a(f"buffer_store_dwordx4 {vr(q,4)}, v{v_a4}, {sr(SRD2,4)}, 0 offen offset:{(fb-1)*32}")
        elif fb == 4:
            if which == 3:
                a(f"buffer_store_dwordx2 {vr(o,2)}, v{v_c8}, {sr(SRD2,4)}, 0 offen offset:{fb*512} {pol}")
            else:
                a(f"buffer_store_dwordx2 {vr(o,2)}, v{v_ad}, {sr(SRD2,4)}, 0 offen offset:{fb*32}")
    if which == 3:
        a(f"v_add_f32 v{v_s}, v{v_s2}, v{v_s2+1}")
        a(f"v_add_f32 v{v_q}, v{v_q2}, v{v_q2+1}")
        for w in (32, 16):
            a(f"v_mov_b32 v{t[0]}, v{v_s}")
            a(f"v_mov_b32 v{t[1]}, v{v_q}")
            a("s_nop 1")
            a(f"v_permlane{w}_swap_b32 v{v_s}, v{t[0]}")
            a(f"v_permlane{w}_swap_b32 v{v_q}, v{t[1]}")
            a("s_nop 1")
            a(f"v_add_f32 v{v_s}, v{v_s}, v{t[0]}")
            a(f"v_add_f32 v{v_q}, v{v_q}, v{t[1]}")
        a(f"v_lshlrev_b32 v{t[0]}, 3, v{v_tok}")
        a(f"s_lshl_b32 s{S_T0}, s{S_T0}, 14")
        a("s_mov_b64 exec, 0xffff")
        a(f"buffer_store_dwordx2 {vr(v_s,2)}, v{t[0]}, {sr(SRD4,4)}, s{S_T0} offen {pol}")
        stamp(a, sb + 2)
        publish(a, t, 0)


def k4_gemm(a, va):
    sg = Seg(SRD1, F * 2, 96, 'p192', S_COL, img=(S_IMG, 24576, IMG_GU))
    su = Seg(SRD1, F * 2, 96, 'p192', S_COL, img=(S_IMG, 24576, IMG_GU + 12288))
    return Gemm(a, va, 128, 2, 1, 2, [sg, su], 64, K4_NS, D, SRD0, D * 2, S_TOK0, sregs=GS, tag="k4", xcm=True, lds_base=20480)


def k4_compute(a, va, g, sb):
    g.setup()
    t = g.tmp
    v_tok, v_a4, v_b4, v_ta, v_tc = va(), va(), va(), va(), va()
    a(f"v_lshl_add_u32 v{v_tok}, v{g.v_wt}, 6, v{g.v_i16}")
    a(f"v_lshlrev_b32 v{v_ta}, 4, v{v_tok}")
    a(f"v_add_u32 v{v_ta}, {TAB}, v{v_ta}")
    a(f"v_add_u32 v{v_tok}, s{S_TOK0}, v{v_tok}")
    a(f"v_mul_u32_u24 v{t[1]}, 48, v{g.v_wo}")
    a(f"v_lshl_add_u32 v{t[2]}, v{g.v_g}, 2, v{t[1]}")
    a(f"v_lshlrev_b32 v{v_tc}, 2, v{t[2]}")
    a(f"v_add_u32 v{v_tc}, {TAB + 2048}, v{v_tc}")
    a(f"v_and_b32 v{t[0]}, 0xfff0, v{v_tok}")
    a(f"v_mul_u32_u24 v{t[0]}, {F*2}, v{t[0]}")
    a(f"v_lshl_add_u32 v{t[0]}, v{g.v_i16}, 4, v{t[0]}")
    a(f"v_lshl_add_u32 v{t[0]}, v{t[1]}, 5, v{t[0]}")
    a(f"s_lshl_b32 s{S_T1}, s{S_COL}, 4")
    a(f"v_add_u32 v{t[0]}, s{S_T1}, v{t[0]}")
    a(f"v_lshrrev_b32 v{t[1]}, 1, v{g.v_g}")
    a(f"v_lshl_add_u32 v{t[0]}, v{t[1]}, 8, v{t[0]}")
    a(f"v_and_b32 v{t[1]}, 1, v{g.v_g}")
    a(f"v_lshl_add_u32 v{v_a4}, v{t[1]}, 9, v{t[0]}")
    a(f"v_mul_u32_u24 v{t[1]}, {16*F*2}, v{t[1]}")
    a(f"v_add_u32 v{v_b4}, v{t[1]}, v{t[0]}")
    await_block(a, t, 0)
    stamp(a, sb)
    g.mainloop()
    stamp(a, sb + 1)
    rstamp(a, 6)
    st = g.fa[0]
    cs = g.fa[1]
    tmp = g.fb[0]
    for tb in range(4):
        a(f"ds_read_b128 {vr(st+4*tb,4)}, v{v_ta} offset:{tb*256}")
    for sgi in range(2):
        for fb in range(3):
            a(f"ds_read_b128 {vr(cs+12*sgi+4*fb,4)}, v{v_tc} offset:{sgi*384 + fb*64}")
    a("s_waitcnt lgkmcnt(0)")
    for tb in range(4):
        vm, vA, vB, vC = [st + 4 * tb + i for i in range(4)]
        pm, pB = vr(vm, 2), vr(vB, 2)
        for fb in range(3):
            cg, cu = g.acc[tb][fb], g.acc[tb][3 + fb]
            z = tmp + 8 * (fb & 1)
            for h in (0, 2):
                a(f"v_pk_fma_f32 {vr(cg+h,2)}, {pm}, {vr(cs+4*fb+h,2)}, {vr(cg+h,2)} op_sel_hi:[0,1,1]")
                a(f"v_pk_fma_f32 {vr(cu+h,2)}, {pm}, {vr(cs+12+4*fb+h,2)}, {vr(cu+h,2)} op_sel_hi:[0,1,1]")
            for h in (0, 2):
                a(f"v_pk_mul_f32 {vr(z+h,2)}, {vr(cg+h,2)}, {vr(cg+h,2)}")
                a(f"v_pk_mul_f32 {vr(cu+h,2)}, {vr(cu+h,2)}, {vr(cg+h,2)}")
            for h in (0, 2):
                a(f"v_pk_fma_f32 {vr(z+h,2)}, {vr(z+h,2)}, {pB}, {pm} op_sel:[0,0,1] op_sel_hi:[1,0,1]")
            for h in (0, 2):
                a(f"v_pk_mul_f32 {vr(z+h,2)}, {vr(z+h,2)}, {vr(cg+h,2)}")
            for r in range(4):
                a(f"v_exp_f32 v{z+r}, v{z+r}")
            for h in (0, 2):
                a(f"v_pk_fma_f32 {vr(z+h,2)}, {vr(z+h,2)}, {pB}, {pB} op_sel:[0,1,1] op_sel_hi:[1,1,1]")
            for r in range(4):
                a(f"v_rcp_f32 v{z+r}, v{z+r}")
            a("s_nop 0")
            for h in (0, 2):
                a(f"v_pk_mul_f32 {vr(cu+h,2)}, {vr(cu+h,2)}, {vr(z+h,2)}")
            if fb == 1:
                q, dst = g.acc[tb][3], g.acc[tb][3] + 2
            elif fb == 2 and tb % 2 == 1:
                q, dst = g.acc[tb - 1][5], g.acc[tb - 1][5] + 2
            else:
                q, dst = None, cu
            a(f"v_cvt_pk_bf16_f32 v{dst}, v{cu}, v{cu+1}")
            a(f"v_cvt_pk_bf16_f32 v{dst+1}, v{cu+2}, v{cu+3}")
            if q is not None:
                a(f"s_mov_b32 s{S_KW}, {(tb if fb == 1 else tb - 1)*16*F*2}")
                a("s_nop 0")
                a(f"v_permlane16_swap_b32 v{q}, v{q+2}")
                a(f"v_permlane16_swap_b32 v{q+1}, v{q+3}")
                if fb == 1:
                    a(f"buffer_store_dwordx4 {vr(q,4)}, v{v_a4}, {sr(SRD3,4)}, s{S_KW} offen {HPOL}")
                else:
                    a(f"buffer_store_dwordx4 {vr(q,4)}, v{v_b4}, {sr(SRD3,4)}, s{S_KW} offen offset:1024 {HPOL}")
    stamp(a, sb + 2)
    publish(a, t, 1)


class Ffn:
    pass


def ffn_compute(a):
    f = Ffn()
    maxv = 0
    va = VAlloc(1)
    g3 = proj_gemm(a, va, 3)
    g3.tmp = [va() for _ in range(6)]
    map_proj(a, 3)
    srd_proj(a, 3)
    proj_compute(a, va, g3, 3, 4)
    maxv = max(maxv, va.n)
    va = VAlloc(1)
    g4 = k4_gemm(a, va)
    g4.tmp = [va() for _ in range(6)]
    map_k4(a)
    k4_compute(a, va, g4, 7)
    maxv = max(maxv, va.n)
    va = VAlloc(1)
    g5 = proj_gemm(a, va, 5)
    g5.tmp = [va() for _ in range(6)]
    map_proj(a, 5)
    srd_proj(a, 5)
    proj_compute(a, va, g5, 5, 10)
    maxv = max(maxv, va.n)
    stamp_end(a, 12)
    assert g4.lds_bytes + g4.lds_base <= TAB and g5.lds_bytes + g5.lds_base <= TAB
    f.g3, f.g4, f.g5, f.maxv = g3, g4, g5, maxv
    return f


def ffn_loader(a, f):
    g3, g4, g5, maxv = f.g3, f.g4, f.g5, f.maxv
    GC = -2.0 * 0.7978845608028654 * 1.4426950408889634
    pre = {}

    def early4(lva, lt):
        make_srd(a, SRD4, P_WS, WS_ST, S * 64)
        buf = lva(16, 4)
        pre['buf'] = buf
        a(f"v_and_b32 v{lt[0]}, 127, v0")
        a(f"v_add_u32 v{lt[0]}, s{S_TOK0}, v{lt[0]}")
        a(f"v_lshlrev_b32 v{lt[0]}, 3, v{lt[0]}")
        for i in range(8):
            a(f"s_mov_b32 s{S_T1}, {i*16384}")
            a(f"buffer_load_dwordx2 {vr(buf+2*i,2)}, v{lt[0]}, {sr(SRD4,4)}, s{S_T1} offen {HPOL}")

    CSR = 104

    def cs4(lt):
        buf = CSR
        l3 = a.newlabel("k4e")
        a(f"s_cmp_lt_u32 s{S_WAVE}, 6")
        a(f"s_cbranch_scc1 {l3}")
        make_srd(a, SRD5, P_WS, WS_CS, NCS * 3072 * 4)
        a(f"s_lshr_b32 s{S_T2}, s{S_J}, 2")
        a(f"s_and_b32 s{S_T1}, s{S_XB}, 1")
        a(f"s_lshl_b32 s{S_T1}, s{S_T1}, 3")
        a(f"s_add_u32 s{S_T2}, s{S_T2}, s{S_T1}")
        a(f"s_mul_i32 s{S_T2}, s{S_T2}, 384")
        a(f"v_and_b32 v{lt[0]}, 63, v0")
        a(f"v_min_u32 v{lt[0]}, 23, v{lt[0]}")
        a(f"v_lshlrev_b32 v{lt[0]}, 4, v{lt[0]}")
        a(f"s_sub_u32 s{S_T1}, s{S_WAVE}, 6")
        a(f"s_mul_i32 s{S_T1}, s{S_T1}, {1536*4}")
        a(f"s_add_u32 s{S_T1}, s{S_T1}, s{S_T2}")
        for i in range(NCS):
            a(f"buffer_load_dwordx4 {vr(buf+4*i,4)}, v{lt[0]}, {sr(SRD5,4)}, s{S_T1} offen")
            a(f"s_add_u32 s{S_T1}, s{S_T1}, {3072*4}")
        a("s_waitcnt vmcnt(0)")
        a.label(l3)

    def table4(lva, lt):
        buf = pre['buf']
        l2, l3 = a.newlabel("k4e"), a.newlabel("k4e")
        a(f"s_cmp_ge_u32 s{S_WAVE}, 6")
        a(f"s_cbranch_scc1 {l2}")
        for i in range(1, 8):
            a(f"v_add_f32 v{buf}, v{buf}, v{buf+2*i}")
            a(f"v_add_f32 v{buf+1}, v{buf+1}, v{buf+2*i+1}")
        ln_stats(a, buf, buf + 1, buf + 4, buf + 8, lt)
        a(f"v_sub_f32 v{buf+4}, 0, v{buf+4}")
        a(f"v_mul_f32 v{buf+5}, {f32(GC)}, v{buf+8}")
        a(f"v_mul_f32 v{buf+9}, v{buf+8}, v{buf+8}")
        a(f"v_mul_f32 v{buf+6}, v{buf+9}, v{buf+8}")
        a(f"v_mul_f32 v{buf+6}, {f32(GC*0.044715)}, v{buf+6}")
        a(f"v_rcp_f32 v{buf+7}, v{buf+9}")
        a(f"v_lshlrev_b32 v{lt[0]}, 4, v0")
        a(f"v_add_u32 v{lt[0]}, {TAB}, v{lt[0]}")
        a(f"ds_write_b128 v{lt[0]}, {vr(buf+4,4)}")
        a(f"s_branch {l3}")
        a.label(l2)
        buf = CSR
        for k in range(1, NCS):
            for i in (0, 2):
                a(f"v_pk_add_f32 {vr(buf+i,2)}, {vr(buf+i,2)}, {vr(buf+4*k+i,2)}")
        a(f"v_and_b32 v{lt[0]}, 63, v0")
        a(f"v_min_u32 v{lt[0]}, 23, v{lt[0]}")
        a(f"v_lshlrev_b32 v{lt[0]}, 4, v{lt[0]}")
        a(f"s_sub_u32 s{S_T1}, s{S_WAVE}, 6")
        a(f"s_mul_i32 s{S_T1}, s{S_T1}, 384")
        a(f"s_add_u32 s{S_T1}, s{S_T1}, {TAB + 2048}")
        a(f"v_add_u32 v{lt[0]}, s{S_T1}, v{lt[0]}")
        a(f"ds_write_b128 v{lt[0]}, {vr(buf,4)}")
        a.label(l3)
        a("s_waitcnt lgkmcnt(0)")

    def touch_wd(lt):
        a(f"s_and_b32 s{S_T1}, s{S_XB}, 1")
        a(f"s_mul_i32 s{S_T1}, s{S_T1}, 983040")
        a(f"s_mul_i32 s{S_T2}, s{S_J}, {240*128}")
        a(f"s_add_u32 s{S_T1}, s{S_T1}, s{S_T2}")
        a(f"s_add_u32 s{S_T1}, s{S_T1}, {IMG_WD}")
        a(f"v_min_u32 v{lt[0]}, 239, v0")
        a(f"v_lshlrev_b32 v{lt[0]}, 7, v{lt[0]}")
        a(f"buffer_load_dword v{DUMMY}, v{lt[0]}, {sr(SRD1,4)}, s{S_T1} offen")
        ops.append(("t", 0))

    DUMMY = 100
    ops = []
    a("v_and_b32 v0, 255, v0")
    map_proj(a, 3)
    srd_proj(a, 3)
    g3.ld_prepare(S_ROT, head=False, xpol=XPOL, ops=ops)
    a(f"v_mov_b32 v{g3.lt[0]}, 0")
    lds_wait(a, g3.lt, 6, "s_cmp_lt_u32 s{}, 0xfe03")
    g3.lstamp(0)
    for st in range(3):
        g3.ld_issue(st, x=False)
    cs4(g3.lt)
    a("s_barrier")
    a("s_barrier")
    g3.ld_issue(3, x=False)
    a("s_barrier")

    def tail3(st):
        if st == 2:
            map_k4(a)
            g4.ld_prepare(S_ROT, head=False, xpol=XPOL, ops=ops)
            g4.lstamp(0)
        if st <= 4:
            g4.ld_issue(st - 2, x=False)
    g3.ld_run(wdone=True, tail=tail3)
    a("s_barrier")
    a("s_barrier")

    def tail4(st):
        if st == 8:
            a("s_setprio 2")
            table4(g4.lva, g4.lt)
            a("s_setprio 0")
        elif st == 9:
            map_proj(a, 5)
            srd_proj(a, 5)
            g5.ld_prepare(S_ROT, head=False, xpol=XPOL, ops=ops)
            g5.lstamp(0)
            g5.ld_issue(1, x=False)
        elif st == 10:
            g5.ld_issue(0, x=False)
            g5.ld_issue(2, x=False)
            g5.ld_issue(3, x=False)

    def mid4(st):
        if st == 3:
            early4(g4.lva, g4.lt)
            ops.extend([("e", 0)] * 8)
        if st == TWD:
            touch_wd(g4.lt)
    g4.ld_run(wdone=True, tail=tail4, mid=mid4)
    a("s_barrier")
    g5.ld_run(wdone=True)
    for g in (f.gq, g3, g4, g5):
        g.ld_dump()
    a("s_endpgm")
    assert max(g3.lva.n, g4.lva.n, g5.lva.n) < 89 and DUMMY < maxv

K4_NS = 3
TWD = int(os.environ.get('TWD', '9'))


def main():
    a = Asm()
    a.raw('.amdgcn_target "amdgcn-amd-amdhsa--gfx950"')
    a.raw(".text")
    launches = [gen_k2(a)]
    head = open("cdna_kernels/" + NAME + ".s.ref").read().split("\n")
    hdr = [l for l in head if l.startswith(";") and "@launch" not in l and "Override launch" not in l and "grid=ceil" not in l]
    out = "\n".join(hdr) + "\n"
    for n, gx, bx, lds in launches:
        out += f"; @launch kernel={n} grid=({gx},1,1) block=({bx},1,1) lds={lds}\n"
    out += a.text()
    out += '.section .rodata,"a"\n' + "".join(KDS)
    path = sys.argv[1] if len(sys.argv) > 1 else "cdna_kernels/" + NAME + ".s"
    open(path, "w").write(out)
    print("wrote", path, len(out), "bytes;", launches)

if __name__ == "__main__":
    main()
```

```python
import sys

NAME = "sequential_preLN__grouped_kv_mqa__geglu_ffn__prompt"

S, D, H, DH, F = 2048, 640, 32, 20, 1536

WS_Q   = 0
FUSED1 = True
WS_KF  = 0x280000
WS_KV  = WS_KF
KV_SZ  = 163840
NCS    = 8
WS_VF  = WS_KF + 0x20000
WS_KN  = WS_VF + 0x20000
WS_CS  = WS_KN + 0x1000
WS_O   = WS_CS + 0x20000
WS_H   = WS_O + 0x280000
WS_ST  = WS_H + 0x280000
WS_ACT = WS_ST + 0x20000
WS_S1  = WS_ACT + 0x600000
WS_CNT = WS_S1
WS_IMG = WS_S1 + 0x8000
WS_TL = 0x3000000
IMG_WO, IMG_WD, IMG_GU, IMG_SZ = 0, 819200, 819200 + 1966080, 6717440

KA_X, KA_WQ, KA_WK, KA_WV, KA_WO, KA_BX, KA_WG, KA_WU, KA_WD, KA_OUT, KA_DBG, KA_WS = [8 * i for i in range(12)]

import struct, os
INSTR = bool(os.environ.get("INSTR"))
HACK_LIN = bool(os.environ.get("HACK_LIN"))
NOCOMP = os.environ.get("NOCOMP", "").split(",")
NOX = os.environ.get("NOX", "").split(",")
NOW = os.environ.get("NOW", "").split(",")
PF = bool(os.environ.get("PF"))
IMGPOL = os.environ.get("IMGPOL", "sc1")
for _k in ("NORB2", "NORB3", "NORB4"):
    os.environ[_k] = "1"
NOLOAD = os.environ.get("NOLOAD", "").split(",")
def f32(x):
    return "0x%08x" % struct.unpack("<I", struct.pack("<f", x))[0]


class Asm:
    skip_dma = False
    def __init__(self):
        self.lines = []
        self.nlabel = 0

    def __call__(self, s):
        for l in s.split("\n"):
            l = l.strip()
            if self.skip_dma and l.startswith("buffer_load") and l.endswith("lds"):
                continue
            if l:
                self.lines.append("    " + l)

    def label(self, l):
        self.lines.append(l + ":")

    def newlabel(self, p="L"):
        self.nlabel += 1
        return f"{p}_{self.nlabel}"

    def raw(self, s):
        self.lines.append(s)

    def text(self):
        return "\n".join(self.lines) + "\n"


class VAlloc:
    def __init__(self, start=1):
        self.n = start

    def __call__(self, cnt=1, align=1):
        self.n = (self.n + align - 1) // align * align
        r = self.n
        self.n += cnt
        return r


def vr(b, n):
    return f"v[{b}:{b+n-1}]"


def sr(b, n):
    return f"s[{b}:{b+n-1}]"


KIDX = [-1]
LIDX = [0]
def kernel_begin(a, name):
    KIDX[0] += 1
    a.raw(f".globl {name}")
    a.raw(".p2align 8")
    a.raw(f".type {name},@function")
    a.label(name)


KDS = []
def kernel_end(a, name, nvgpr, nsgpr=102):
    nv = (nvgpr + 7) // 8 * 8
    KDS.append(f""".p2align 6
.amdhsa_kernel {name}
  .amdhsa_next_free_vgpr {nv}
  .amdhsa_next_free_sgpr {nsgpr}
  .amdhsa_accum_offset {(nv + 3) // 4 * 4}
  .amdhsa_group_segment_fixed_size 0
  .amdhsa_kernarg_size 96
  .amdhsa_user_sgpr_count 2
  .amdhsa_user_sgpr_kernarg_segment_ptr 1
  .amdhsa_system_sgpr_workgroup_id_x 1
.end_amdhsa_kernel
""")


def make_srd(a, dst, base_s, off, nbytes):
    if off:
        a(f"s_add_u32 s{dst}, s{base_s}, {off}")
        a(f"s_addc_u32 s{dst+1}, s{base_s+1}, 0")
    else:
        a(f"s_mov_b32 s{dst}, s{base_s}")
        a(f"s_mov_b32 s{dst+1}, s{base_s+1}")
    a(f"s_mov_b32 s{dst+2}, {nbytes}")
    a(f"s_mov_b32 s{dst+3}, 0x00020000")


def interleave(mfmas, fillers, nreads=None):
    out = []
    nm, nf = len(mfmas), len(fillers)
    per = 1 if (nreads or nf) * 3 <= nm * 2 + 2 and nf <= nm else 2
    if os.environ.get("OLDIL"):
        per = 0
    fi = 0
    for i, m in enumerate(mfmas):
        out.append(m)
        tgt = (i + 1) * per if per else ((i + 1) * nf + nm - 1) // nm
        while fi < min(tgt, nf):
            out.extend(fillers[fi])
            fi += 1
    while fi < nf:
        out.extend(fillers[fi])
        fi += 1
    return out


class Seg:
    def __init__(self, srd, gstride, nf, kind, colreg=None, img=None):
        self.img = img
        self.srd = srd
        self.gstride = gstride
        self.nf = nf
        self.kind = kind
        self.colreg = colreg


class Gemm:
    def __init__(self, a, va, TT, WT, WK, WF, segs, BK, NS, K, xsrd, xstride, s_tok0,
                 stats=False, colsum=False, sregs=None, tag="g", lds_base=0, xcm=False, slot0=0):
        self.a, self.va = a, va
        self.slot0 = slot0
        self.xcm = xcm
        self.lds_base = lds_base
        self.TT, self.WT, self.WK, self.WF = TT, WT, WK, WF
        assert WT * WK * WF == 4
        self.segs, self.BK, self.NS, self.K = segs, BK, NS, K
        self.xsrd, self.xstride, self.s_tok0 = xsrd, xstride, s_tok0
        self.stats, self.colsum = stats, colsum
        self.tag = tag
        self.TW = TT // WT
        self.TB = self.TW // 16
        self.RB = BK * 2
        self.CPR = self.RB // 16
        self.nst = K // BK
        self.SPS = BK // 32
        self.SPW = self.SPS // WK
        assert self.SPW % 2 == 0
        self.xbytes = TT * self.RB
        off = self.xbytes
        for s in segs:
            s.lstride = 40 if s.kind == 'lin40' else s.nf * 2
            nb = BK * s.lstride
            s.ninstr = (nb + 4095) // 4096 * 4
            s.lbase = off
            off += s.ninstr * 1024
            s.FBW = (s.nf // WF) // 16
        self.stage_bytes = off
        self.nx = self.xbytes // 1024
        assert self.nx % 4 == 0
        self.ndma = self.nx // 4 + sum(s.ninstr // 4 for s in segs)
        self.lds_bytes = self.stage_bytes * NS
        (self.s_woff, self.s_kx, self.s_kw, self.s_wave, self.s_cnt, self.s_slot, self.s_kidx, self.s_dl) = sregs

    def split(self):
        a, va = self.a, self.va
        self.tmp = [va() for _ in range(6)]
        t = self.tmp
        a(f"v_lshrrev_b32 v{t[0]}, 6, v0")
        a("s_nop 0")
        a(f"v_readfirstlane_b32 s{self.s_wave}, v{t[0]}")
        a("s_nop 3")
        a(f"s_cmp_ge_u32 s{self.s_wave}, 4")
        a(f"s_cbranch_scc1 {self.tag}_loader")

    def ld_prepare(self, s_rot=None, head=True, xpol="", ops=None, v0=1):
        a = self.a
        va = self.lva = VAlloc(v0)
        t = self.lt = [va() for _ in range(6)]
        self.s_rot, self.xpol = s_rot, xpol
        self.ops = [] if ops is None else ops
        if head:
            a.label(f"{self.tag}_loader")
            a(f"v_and_b32 v0, 255, v0")
        a(f"s_and_b32 s{self.s_woff}, s{self.s_wave}, 3")
        a(f"s_lshl_b32 s{self.s_woff}, s{self.s_woff}, 10")
        lg = {8: 3, 16: 4}[self.CPR]
        v_dx = self.v_dx = va()
        if self.xcm:
            a(f"v_lshrrev_b32 v{t[1]}, {lg+4}, v0")
            a(f"v_and_b32 v{t[2]}, {self.CPR*16-1}, v0")
            a(f"v_lshlrev_b32 v{t[1]}, 4, v{t[1]}")
            a(f"v_add_u32 v{t[1]}, s{self.s_tok0}, v{t[1]}")
            a(f"v_mul_u32_u24 v{t[1]}, {self.xstride}, v{t[1]}")
            a(f"v_lshl_add_u32 v{v_dx}, v{t[2]}, 4, v{t[1]}")
        else:
            a(f"v_lshrrev_b32 v{t[1]}, {lg}, v0")
            a(f"v_and_b32 v{t[2]}, {self.CPR-1}, v0")
            if self.CPR == 8:
                a(f"v_bfe_u32 v{t[3]}, v{t[1]}, 1, 3")
            else:
                a(f"v_and_b32 v{t[3]}, 15, v{t[1]}")
            a(f"v_xor_b32 v{t[2]}, v{t[2]}, v{t[3]}")
            a(f"v_add_u32 v{t[1]}, s{self.s_tok0}, v{t[1]}")
            a(f"v_mul_u32_u24 v{t[1]}, {self.xstride}, v{t[1]}")
            a(f"v_lshl_add_u32 v{v_dx}, v{t[2]}, 4, v{t[1]}")
        done = {}
        for s in self.segs:
            key = (s.kind, s.nf)
            if key in done:
                s.v_d = done[key]
                continue
            s.v_d = []
            cprw = s.lstride // 16 if s.kind != 'lin40' else None
            for j in range(s.ninstr // 4):
                if s.kind == 'lin40' or s.img:
                    if j == 0:
                        r = va()
                        a(f"v_lshlrev_b32 v{r}, 4, v0")
                    s.v_d.append(r)
                    continue
                r = va()
                s.v_d.append(r)
                a(f"v_add_u32 v{t[0]}, {j*256}, v0")
                magic = {10: 52429, 12: 43691}[cprw]
                a(f"v_mul_u32_u24 v{t[1]}, {magic}, v{t[0]}")
                a(f"v_lshrrev_b32 v{t[1]}, 19, v{t[1]}")
                a(f"v_mul_u32_u24 v{t[2]}, {cprw}, v{t[1]}")
                a(f"v_sub_u32 v{t[2]}, v{t[0]}, v{t[2]}")
                a(f"v_and_b32 v{t[3]}, 0xfffffff3, v{t[1]}")
                a(f"v_bfe_u32 v{t[4]}, v{t[1]}, 2, 1")
                if s.kind == 'p192':
                    a(f"v_lshlrev_b32 v{t[5]}, 1, v{t[4]}")
                    a(f"v_xor_b32 v{t[2]}, v{t[2]}, v{t[5]}")
                a(f"v_lshl_or_b32 v{t[3]}, v{t[4]}, 3, v{t[3]}")
                a(f"v_bfe_u32 v{t[4]}, v{t[1]}, 3, 1")
                a(f"v_lshl_or_b32 v{t[3]}, v{t[4]}, 2, v{t[3]}")
                a(f"v_mul_u32_u24 v{t[3]}, {s.gstride}, v{t[3]}")
                a(f"v_lshl_add_u32 v{r}, v{t[2]}, 4, v{t[3]}")
                if s.colreg is not None:
                    a(f"v_add_u32 v{r}, s{s.colreg}, v{r}")
            done[key] = s.v_d
        self.lidx = LIDX[0]
        LIDX[0] += 1
        self.v_st = 196 + self.lidx

    def ld_kset(self, st):
        a = self.a
        if self.s_rot is None:
            a(f"s_mov_b32 s{self.s_kidx}, {st}")
        elif st == 0:
            a(f"s_mov_b32 s{self.s_kidx}, s{self.s_rot}")
        else:
            a(f"s_add_u32 s{self.s_kidx}, s{self.s_rot}, {st}")
            a(f"s_sub_u32 s{self.s_dl}, s{self.s_kidx}, {self.nst}")
            a(f"s_cmp_ge_u32 s{self.s_kidx}, {self.nst}")
            a(f"s_cselect_b32 s{self.s_kidx}, s{self.s_dl}, s{self.s_kidx}")

    def ld_issue(self, st, x=True, w=True):
        a = self.a
        gs = self.segs[0].gstride
        xrows = 256 // self.CPR
        slot = self.lds_base + ((st + self.slot0) % self.NS) * self.stage_bytes
        a.skip_dma = self.tag in NOLOAD
        self.ld_kset(st)
        if x:
            a(f"s_mul_i32 s{self.s_kx}, s{self.s_kidx}, {self.CPR*256 if self.xcm else self.BK*2}")
            for j in range(self.nx // 4):
                a(f"s_add_u32 m0, s{self.s_woff}, {slot + j*4096}")
                if j:
                    a(f"s_add_u32 s{self.s_kx}, s{self.s_kx}, {xrows*self.xstride}")
                else:
                    a("s_nop 0")
                a(f"buffer_load_dwordx4 v{self.v_dx}, {sr(self.xsrd,4)}, s{self.s_kx} offen {self.xpol} lds")
                self.ops.append((self.tag, st))
        if w:
            if self.segs[0].img:
                a(f"s_mul_i32 s{self.s_kw}, s{self.s_kidx}, {self.segs[0].img[1]}")
                a(f"s_add_u32 s{self.s_kw}, s{self.s_kw}, s{self.segs[0].img[0]}")
            else:
                a(f"s_mul_i32 s{self.s_kw}, s{self.s_kidx}, {self.BK*gs}")
            for s in self.segs:
                if s.gstride != gs:
                    a(f"s_mul_i32 s{self.s_kw}, s{self.s_kidx}, {self.BK*s.gstride}")
                for j, r in enumerate(s.v_d):
                    a(f"s_add_u32 m0, s{self.s_woff}, {slot + s.lbase + j*4096}")
                    if s.kind == 'lin40' or s.img:
                        a(f"s_add_u32 s{self.s_dl}, s{self.s_kw}, {j*4096 + (s.img[2] if s.img else 0)}")
                        a(f"buffer_load_dwordx4 v{r}, {sr(s.srd,4)}, s{self.s_dl} offen lds")
                    else:
                        a("s_nop 0")
                        a(f"buffer_load_dwordx4 v{r}, {sr(s.srd,4)}, s{self.s_kw} offen lds")
                    self.ops.append((self.tag, st))

    def lstamp(self, idx):
        a = self.a
        a.skip_dma = False
        if INSTR:
            a("s_memtime s[98:99]")
            a("s_waitcnt lgkmcnt(0)")
            a("s_sub_u32 s98, s98, s80")
            a(f"v_writelane_b32 v{self.v_st}, s98, {idx}")

    def ld_run(self, wdone=False, tail=None, mid=None):
        a = self.a
        ops = self.ops

        def ready(st):
            last = max(i for i, o in enumerate(ops) if o == (self.tag, st))
            n = len(ops) - 1 - last
            assert n < 64
            a(f"s_waitcnt vmcnt({n})")
            self.lstamp(st + 2)
            a("s_barrier")

        NS, nst = self.NS, self.nst
        self.lstamp(1)
        wf = not wdone
        self.ld_issue(0, w=wf)
        self.ld_issue(1, w=wf)
        ready(0)
        for st in range(2, NS):
            self.ld_issue(st, w=wf)
        for st in range(NS, nst):
            ready(st - NS + 1)
            self.ld_issue(st)
            if mid:
                mid(st)
        for st in range(nst - NS + 1, nst):
            ready(st)
            if tail:
                tail(st)
        a("s_barrier")
        if tail:
            tail(nst)

    def ld_dump(self):
        a = self.a
        if INSTR:
            lab = a.newlabel("ls")
            a(f"s_cmp_lg_u32 s2, {INSTR_WG}")
            a(f"s_cbranch_scc1 {lab}")
            a(f"s_cmp_lg_u32 s{self.s_wave}, 4")
            a(f"s_cbranch_scc1 {lab}")
            make_srd(a, 92, P_WS, WS_TL + 0x10000 + self.lidx * 256, 128)
            a(f"v_lshlrev_b32 v89, 2, v0")
            a(f"buffer_store_dword v{self.v_st}, v89, s[92:95], 0 offen")
            a("s_waitcnt vmcnt(0)")
            a.label(lab)

    def loader(self, s_rot=None, cont=None):
        a = self.a
        self.ld_prepare(s_rot)
        self.lstamp(0)
        self.ld_run()
        self.ld_dump()
        if cont is None:
            a("s_endpgm")
        else:
            cont(self.lva, self.lt)

    def setup(self):
        a, va = self.a, self.va
        t = self.tmp
        lane, i16, g, wv = va(), va(), va(), va()
        self.v_lane, self.v_i16, self.v_g, self.v_wave = lane, i16, g, wv
        a(f"v_and_b32 v{lane}, 63, v0")
        a(f"v_lshrrev_b32 v{wv}, 6, v0")
        a(f"v_and_b32 v{i16}, 15, v0")
        a(f"v_bfe_u32 v{g}, v0, 4, 2")
        wt, wo = va(), va()
        self.v_wt, self.v_wo = wt, wo
        a(f"v_and_b32 v{wt}, {self.WT-1}, v{wv}")
        sh = {1: 0, 2: 1, 4: 2}[self.WT]
        a(f"v_lshrrev_b32 v{wo}, {sh}, v{wv}")
        self.addr_regs = []
        done = {}
        for s in self.segs:
            key = (s.kind, s.nf)
            if key in done:
                s.v_a = done[key]
                continue
            if s.kind == 'lin40':
                a(f"v_lshlrev_b32 v{t[0]}, 3, v{g}")
            else:
                a(f"v_lshrrev_b32 v{t[0]}, 1, v{g}")
                a(f"v_lshlrev_b32 v{t[0]}, 4, v{t[0]}")
                a(f"v_and_b32 v{t[1]}, 1, v{g}")
                a(f"v_lshl_add_u32 v{t[0]}, v{t[1]}, 2, v{t[0]}")
            a(f"v_lshrrev_b32 v{t[1]}, 2, v{i16}")
            a(f"v_add_u32 v{t[0]}, v{t[0]}, v{t[1]}")
            if self.WK > 1:
                a(f"v_mov_b32 v{t[1]}, {self.SPW*32}")
                a(f"v_mad_u32_u24 v{t[0]}, v{wo}, v{t[1]}, v{t[0]}")
            a(f"v_mul_u32_u24 v{t[0]}, {s.lstride}, v{t[0]}")
            a(f"v_and_b32 v{t[1]}, 3, v{i16}")
            a(f"v_lshl_add_u32 v{t[0]}, v{t[1]}, 3, v{t[0]}")
            if s.kind == 'p192':
                regs = []
                for b in range(s.FBW):
                    r = va()
                    regs.append(r)
                    if self.WF > 1:
                        a(f"v_mul_u32_u24 v{t[1]}, {s.FBW}, v{wo}")
                        a(f"v_add_u32 v{t[1]}, {b}, v{t[1]}")
                    else:
                        a(f"v_mov_b32 v{t[1]}, {b}")
                    a(f"v_and_b32 v{t[2]}, 1, v{g}")
                    a(f"v_xor_b32 v{t[1]}, v{t[1]}, v{t[2]}")
                    a(f"v_lshl_add_u32 v{r}, v{t[1]}, 5, v{t[0]}")
                s.v_a = regs
                self.addr_regs += regs
            else:
                r = va()
                if self.WF > 1:
                    a(f"v_mul_u32_u24 v{t[1]}, {s.FBW*32}, v{wo}")
                    a(f"v_add_u32 v{r}, v{t[0]}, v{t[1]}")
                else:
                    a(f"v_mov_b32 v{r}, v{t[0]}")
                s.v_a = [r]
                self.addr_regs.append(r)
            done[key] = s.v_a
        self.v_b = []
        if self.xcm:
            r = va()
            self.v_b = [r] * self.SPW
            self.addr_regs.append(r)
            a(f"v_mul_u32_u24 v{t[0]}, {self.TW*self.RB}, v{wt}")
            a(f"v_lshl_add_u32 v{t[0]}, v{lane}, 4, v{t[0]}")
            if self.WK > 1:
                a(f"v_mul_u32_u24 v{t[2]}, {1024*self.SPW}, v{wo}")
                a(f"v_add_u32 v{r}, v{t[0]}, v{t[2]}")
            else:
                a(f"v_mov_b32 v{r}, v{t[0]}")
        self.swapb = self.WK == 2
        a(f"v_mul_u32_u24 v{t[0]}, {self.TW}, v{wt}")
        a(f"v_add_u32 v{t[0]}, v{t[0]}, v{i16}")
        if self.CPR == 8:
            a(f"v_bfe_u32 v{t[1]}, v{t[0]}, 1, 3")
        else:
            a(f"v_and_b32 v{t[1]}, 15, v{t[0]}")
        a(f"v_mul_u32_u24 v{t[0]}, {self.RB}, v{t[0]}")
        for ls in range(self.SPW if not self.xcm else 0):
            r = va()
            self.v_b.append(r)
            self.addr_regs.append(r)
            if self.WK > 1:
                a(f"v_mul_u32_u24 v{t[2]}, {4*self.SPW}, v{wo}")
                a(f"v_add3_u32 v{t[2]}, v{t[2]}, v{g}, {4*ls}")
            else:
                a(f"v_add_u32 v{t[2]}, {4*ls}, v{g}")
            a(f"v_xor_b32 v{t[2]}, v{t[2]}, v{t[1]}")
            a(f"v_lshl_add_u32 v{r}, v{t[2]}, 4, v{t[0]}")
        if self.swapb:
            assert self.TB == 2
            m = {}
            a(f"v_mul_u32_u24 v{t[2]}, {16*self.RB}, v{wo}")
            a(f"v_sub_u32 v{t[3]}, {16*self.RB}, v{t[2]}")
            for r in self.v_b:
                if r not in m:
                    m[r] = va()
                    self.addr_regs.append(m[r])
                    a(f"v_add_u32 v{m[r]}, v{t[3]}, v{r}")
                    a(f"v_add_u32 v{r}, v{t[2]}, v{r}")
            self.v_b2 = [m[r] for r in self.v_b]
        if self.lds_base:
            for r in self.addr_regs:
                a(f"v_add_u32 v{r}, {self.lds_base + self.slot0*self.stage_bytes}, v{r}")
        self.nA = sum(s.FBW for s in self.segs)
        self.fa = [va(4 * self.nA, 4) for _ in range(2)]
        self.fb = [va(4 * self.TB, 4) for _ in range(2)]
        self.acc = [[va(4, 4) for _ in range(self.nA)] for _ in range(self.TB)]
        accs = [r for row in self.acc for r in row]
        if self.stats or self.colsum:
            self.v_ones = va(4, 4)
            for i in range(4):
                a(f"v_mov_b32 v{self.v_ones+i}, 0x3f803f80")
        if self.stats:
            self.acc_sum = [va(4, 4) for _ in range(self.TB)]
            self.acc_sq = [va(4, 4) for _ in range(self.TB)]
            accs += self.acc_sum + self.acc_sq
        if self.colsum:
            self.acc_cs = [va(4, 4) for _ in range(self.nA)]
            accs += self.acc_cs
        for r in accs:
            for i in range(4):
                a(f"v_mov_b32 v{r+i}, 0")

    def read_units(self, ls, buf):
        units = []
        fi = 0
        for s in self.segs:
            for b in range(s.FBW):
                for e in range(2):
                    if s.kind == 'lin40':
                        off = s.lbase + (ls * 32 + 4 * e) * 40 + b * 32
                        ar = s.v_a[0]
                    elif s.kind == 'p192':
                        off = s.lbase + (ls * 32 + 8 * e) * s.lstride
                        ar = s.v_a[b]
                    else:
                        off = s.lbase + (ls * 32 + 8 * e) * s.lstride + b * 32
                        ar = s.v_a[0]
                    assert off < 65536
                    d = self.fa[buf] + 4 * fi + 2 * e
                    units.append([f"ds_read_b64_tr_b16 {vr(d,2)}, v{ar} offset:{off}"])
                fi += 1
        for tb in range(self.TB):
            off = tb * 16 * self.RB + (ls * 1024 if self.xcm else 0)
            d = self.fb[buf] + 4 * tb
            ar = self.v_b[ls]
            if self.swapb and tb:
                off -= 16 * self.RB
                ar = self.v_b2[ls]
            units.append([f"ds_read_b128 {vr(d,4)}, v{ar} offset:{off}"])
        return units[-self.TB:] + units[:-self.TB]

    def mfmas(self, buf):
        out = []
        for fi in range(self.nA):
            A = vr(self.fa[buf] + 4 * fi, 4)
            for tb in range(self.TB):
                B = vr(self.fb[buf] + 4 * tb, 4)
                c = vr(self.acc[tb][fi], 4)
                out.append(f"v_mfma_f32_16x16x32_bf16 {c}, {A}, {B}, {c}")
            if self.colsum:
                c = vr(self.acc_cs[fi], 4)
                out.append(f"v_mfma_f32_16x16x32_bf16 {c}, {A}, {vr(self.v_ones,4)}, {c}")
        if self.stats:
            for tb in range(self.TB):
                B = vr(self.fb[buf] + 4 * tb, 4)
                c = vr(self.acc_sum[tb], 4)
                out.append(f"v_mfma_f32_16x16x32_bf16 {c}, {vr(self.v_ones,4)}, {B}, {c}")
                c = vr(self.acc_sq[tb], 4)
                out.append(f"v_mfma_f32_16x16x32_bf16 {c}, {B}, {B}, {c}")
        return out

    def ld_ready(self, st):
        ops = self.ops
        last = max(i for i, o in enumerate(ops) if o == (self.tag, st))
        n = len(ops) - 1 - last
        assert n < 64
        self.a(f"s_waitcnt vmcnt({n})")
        self.lstamp(st + 2)
        self.a("s_barrier")

    def mainloop(self, post_first=None, pre_bar=None):
        a = self.a
        a(f"s_mov_b32 s{self.s_cnt}, {self.nst}")
        a(f"s_mov_b32 s{self.s_slot}, {self.slot0*self.stage_bytes}")
        a("s_barrier")
        if post_first:
            post_first()
        for u in self.read_units(0, 0):
            for l in u:
                a(l)
        lp = f"{self.tag}_loop"
        a.label(lp)
        for ls in range(self.SPW):
            buf = ls & 1
            a("s_waitcnt lgkmcnt(0)")
            mf = self.mfmas(buf)
            if ls == self.SPW - 1:
                a(mf[0])
                mf = mf[1:]
                if pre_bar:
                    pre_bar()
                a("s_barrier")
                fill = self.read_units(0, buf ^ 1)
                fill.append([f"s_sub_u32 s{self.s_cnt}, s{self.s_cnt}, 1", f"s_cmp_lg_u32 s{self.s_cnt}, 0"])
            else:
                fill = self.read_units(ls + 1, buf ^ 1)
                if ls == self.SPW - 2:
                    fill.append([f"s_mov_b32 s{self.s_dl}, s{self.s_slot}",
                                 f"s_add_u32 s{self.s_slot}, s{self.s_slot}, {self.stage_bytes}"])
                    fill.append([f"s_cmp_ge_u32 s{self.s_slot}, {self.lds_bytes}",
                                 f"s_cselect_b32 s{self.s_slot}, 0, s{self.s_slot}",
                                 f"s_sub_u32 s{self.s_dl}, s{self.s_slot}, s{self.s_dl}"])
                    for r in self.addr_regs:
                        fill.append([f"v_add_u32 v{r}, s{self.s_dl}, v{r}"])
            for l in interleave(mf, fill, len(self.read_units(0, 0))):
                a(l)
        a(f"s_cbranch_scc1 {lp}")
        a("s_waitcnt vmcnt(0) lgkmcnt(0)")


P_X, P_WQ, P_WK, P_WV, P_WO, P_BX, P_WG, P_WU, P_WD, P_OUT, P_DBG, P_WS = [16 + 2 * i for i in range(12)]
SRD0, SRD1, SRD2, SRD3, SRD4, SRD5 = 40, 44, 48, 52, 56, 60
S_WOFF, S_KX, S_KW, S_WAVE = 64, 65, 66, 67
S_TOK0, S_COL, S_T0, S_T1, S_T2 = 68, 69, 70, 71, 72
S_CNT_, S_SLOT_, S_KIDX, S_DL, S_ROT = 76, 77, 78, 79, 73
GS = (S_WOFF, S_KX, S_KW, S_WAVE, S_CNT_, S_SLOT_, S_KIDX, S_DL)


def load_kernargs(a):
    if INSTR:
        for i in range(84, 98):
            a(f"s_mov_b32 s{i}, 0")
        a("s_memtime s[80:81]")
        a("s_memrealtime s[82:83]")
    a("s_load_dwordx16 s[16:31], s[0:1], 0")
    a("s_load_dwordx8 s[32:39], s[0:1], 64")


RT = [int(x) for x in os.environ.get("RT", "0,1,2").split(",")]
def rstamp(a, idx):
    if INSTR and idx in RT:
        a("s_memrealtime s[98:99]")
        a("s_waitcnt lgkmcnt(0)")
        a(f"s_mov_b32 s{(3, 7, 15)[RT.index(idx)]}, s98")


P1ST = bool(os.environ.get("P1ST"))
def stamp(a, idx, p1=False):
    if INSTR and (p1 == P1ST or idx < 4):
        a("s_memtime s[98:99]")
        a("s_waitcnt lgkmcnt(0)")
        a(f"s_sub_u32 s{84+idx}, s98, s80")


def stamp_end(a, n, wg=None):
    if INSTR:
        lab = a.newlabel("se")
        a("s_mov_b64 exec, -1")
        a("s_waitcnt vmcnt(0)")
        a("s_memtime s[98:99]")
        a("s_memrealtime s[100:101]")
        a("s_waitcnt lgkmcnt(0)")
        a(f"s_sub_u32 s{84+n}, s98, s80")
        a(f"s_sub_u32 s{85+n}, s100, s82")
        lab2 = a.newlabel("se")
        a(f"s_cmp_lg_u32 s{S_WAVE}, 0")
        a(f"s_cbranch_scc1 {lab2}")
        make_srd(a, 40, P_WS, WS_TL + KIDX[0] * 4096, 4096)
        a("s_getreg_b32 s98, hwreg(HW_REG_XCC_ID)")
        a("s_and_b32 s98, s98, 7")
        a("s_andn2_b32 s100, s100, 7")
        a("s_or_b32 s100, s100, s98")
        a("v_mov_b32 v2, s82")
        a("v_mov_b32 v3, s100")
        a("s_lshl_b32 s98, s2, 3")
        a("v_mov_b32 v1, s98")
        a("buffer_store_dwordx2 v[2:3], v1, s[40:43], 0 offen")
        make_srd(a, 40, P_WS, WS_TL + 2 * 4096, 4096)
        a("v_mov_b32 v3, s3")
        a("v_mov_b32 v4, s7")
        a("v_mov_b32 v5, s15")
        a("v_lshlrev_b32 v1, 1, v1")
        a("buffer_store_dwordx4 v[2:5], v1, s[40:43], 0 offen")
        a.label(lab2)
        a(f"s_cmp_lg_u32 s2, {INSTR_WG if wg is None else wg}")
        a(f"s_cbranch_scc1 {lab}")
        a(f"s_cmp_lg_u32 s{S_WAVE}, 0")
        a(f"s_cbranch_scc1 {lab}")
        make_srd(a, 40, P_DBG, 0, 256)
        a("v_mov_b32 v1, 0")
        for i in range(14):
            a(f"v_mov_b32 v2, s{84+i}")
            a(f"buffer_store_dword v2, v1, s[40:43], 0 offen offset:{4*i}")
        a.label(lab)
INSTR_WG = int(os.environ.get("INSTR_WG", "100"))


def round_bf16(a, dst, src):
    a(f"v_cvt_pk_bf16_f32 v{dst}, v{src}, v{src}")
    a(f"v_lshlrev_b32 v{dst}, 16, v{dst}")


def ln_stats(a, v_sum, v_sq, v_mean, v_rstd, t):
    a(f"v_mul_f32 v{v_mean}, {f32(1.0/D)}, v{v_sum}")
    a(f"v_mul_f32 v{t[0]}, {f32(1.0/D)}, v{v_sq}")
    a(f"v_fma_f32 v{t[0]}, -v{v_mean}, v{v_mean}, v{t[0]}")
    a(f"v_max_f32 v{t[0]}, 0, v{t[0]}")
    round_bf16(a, v_mean, v_mean)
    round_bf16(a, t[0], t[0])
    a(f"v_add_f32 v{t[0]}, {f32(1e-5)}, v{t[0]}")
    round_bf16(a, t[0], t[0])
    a(f"v_sqrt_f32 v{t[0]}, v{t[0]}")
    a("s_nop 0")
    round_bf16(a, t[0], t[0])
    a(f"v_rcp_f32 v{v_rstd}, v{t[0]}")
    a("s_nop 0")


def gram_diag(a, g, acc_sq, dst):
    t = g.tmp
    a(f"v_and_b32 v{t[0]}, 3, v{g.v_i16}")
    a(f"v_mov_b32 v{t[1]}, v{acc_sq}")
    for r in range(1, 4):
        a(f"v_cmp_eq_u32 vcc, {r}, v{t[0]}")
        a("s_nop 1")
        a(f"v_cndmask_b32 v{t[1]}, v{t[1]}, v{acc_sq+r}, vcc")
    a(f"v_lshrrev_b32 v{t[0]}, 2, v{g.v_i16}")
    a(f"v_lshl_add_u32 v{t[0]}, v{t[0]}, 4, v{g.v_i16}")
    a(f"v_lshlrev_b32 v{t[0]}, 2, v{t[0]}")
    a(f"ds_bpermute_b32 v{dst}, v{t[0]}, v{t[1]}")
    a("s_waitcnt lgkmcnt(0)")


def xlane_add(a, v, v_lane, t0, t1, masks, op="v_add_f32"):
    for m in masks:
        a(f"v_xor_b32 v{t0}, {m}, v{v_lane}")
        a(f"v_lshlrev_b32 v{t0}, 2, v{t0}")
        a(f"ds_bpermute_b32 v{t1}, v{t0}, v{v}")
        a("s_waitcnt lgkmcnt(0)")
        a(f"{op} v{v}, v{v}, v{t1}")


QSCALE = (DH ** -0.5) * 1.4426950408889634


def prefetch_lin(a, v_tid, v_t, v_dummy, srd, s_base, s_j, nlines, s_tmp, nthreads=256):
    a(f"s_mul_i32 s{s_tmp}, s{s_j}, {nlines*128}")
    if s_base is not None:
        a(f"s_add_u32 s{s_tmp}, s{s_tmp}, s{s_base}")
    a(f"v_lshlrev_b32 v{v_t}, 7, v{v_tid}")
    n = (nlines + nthreads - 1) // nthreads
    for i in range(n):
        if i:
            a(f"s_add_u32 s{s_tmp}, s{s_tmp}, {nthreads*128}")
        a(f"buffer_load_dword v{v_dummy}, v{v_t}, {sr(srd,4)}, s{s_tmp} offen")

S_J, S_XB, S_IMG = 12, 13, 14

def dpp_rowmax(a, v):
    for n in (1, 2, 4, 8):
        a("s_nop 1")
        a(f"v_max_f32_dpp v{v}, v{v}, v{v} row_shr:{n} row_mask:0xf bank_mask:0xf bound_ctrl:0")


def swap_add(a, v, t, which):
    a(f"v_mov_b32 v{t}, v{v}")
    a("s_nop 1")
    a(f"v_permlane{which}_swap_b32 v{v}, v{t}")
    a("s_nop 1")
    a(f"v_add_f32 v{v}, v{v}, v{t}")


def gen_k1(a):
    name = "k1_qkv_kernel"
    kernel_begin(a, name)
    a("s_cmp_ge_u32 s2, 256")
    a("s_cbranch_scc1 k1_end")
    load_kernargs(a)
    a(f"s_and_b32 s{S_T1}, s2, 7")
    a(f"s_lshr_b32 s{S_T0}, s2, 3")
    a(f"s_mul_i32 s{S_ROT}, s{S_T0}, 52")
    a(f"s_lshr_b32 s{S_ROT}, s{S_ROT}, 8")
    a(f"s_mul_i32 s{S_ROT}, s{S_ROT}, 5")
    a(f"s_sub_u32 s{S_ROT}, s{S_T0}, s{S_ROT}")
    if os.environ.get("K0ROT", "0") == "0":
        a(f"s_mov_b32 s{S_ROT}, 0")
    a(f"s_lshr_b32 s{S_T2}, s{S_T0}, 3")
    a(f"s_lshl_b32 s{S_T1}, s{S_T1}, 2")
    a(f"s_add_u32 s{S_XB}, s{S_T1}, s{S_T2}")
    a(f"s_lshl_b32 s{S_TOK0}, s{S_XB}, 6")
    a(f"s_and_b32 s{S_J}, s{S_T0}, 7")
    a(f"s_mul_i32 s{S_COL}, s{S_J}, 160")
    a("s_waitcnt lgkmcnt(0)")
    make_srd(a, SRD0, P_X, 0, S * D * 2)
    make_srd(a, SRD1, P_WQ, 0, D * D * 2)
    make_srd(a, SRD2, P_WS, WS_Q, S * D * 2)
    a(f"s_cmp_lt_u32 s{S_J}, 2")
    a("s_cbranch_scc1 k1_b")
    maxv = 8
    lds = 0

    def q_epilogue(g, va):
        t = g.tmp
        v_mean, v_rstd, v_sq, v_ad, v_rq, v_tok = va(), va(), va(), va(), va(), va()
        nA = g.nA
        nx = 2 * nA + 2
        a(f"v_mul_u32_u24 v{t[0]}, {nx*1024}, v{g.v_wave}")
        a(f"v_lshl_add_u32 v{t[0]}, v{g.v_lane}, 4, v{t[0]}")
        a(f"v_xor_b32 v{t[1]}, 2, v{g.v_wave}")
        a(f"v_mul_u32_u24 v{t[1]}, {nx*1024}, v{t[1]}")
        a(f"v_lshl_add_u32 v{t[1]}, v{g.v_lane}, 4, v{t[1]}")
        a(f"v_lshl_add_u32 v{v_tok}, v{g.v_wt}, 1, v{g.v_wo}")
        a(f"v_lshl_add_u32 v{v_tok}, v{v_tok}, 4, v{g.v_i16}")
        a(f"v_add_u32 v{v_tok}, s{S_TOK0}, v{v_tok}")
        a("s_nop 3")
        keep = g.acc[0] + [g.acc_sum[0], g.acc_sq[0]]
        send = g.acc[1] + [g.acc_sum[1], g.acc_sq[1]]
        skip = a.newlabel("xs")
        a(f"s_cmp_lt_u32 s{S_WAVE}, 2")
        a(f"s_cbranch_scc1 {skip}")
        for k_, s_ in zip(keep, send):
            for r in range(4):
                a(f"v_swap_b32 v{k_+r}, v{s_+r}")
        a.label(skip)
        for i, r in enumerate(send + g.acc_cs):
            a(f"ds_write_b128 v{t[0]}, {vr(r,4)} offset:{i*1024}")
        a("s_waitcnt lgkmcnt(0)")
        a("s_barrier")
        csx = [g.fa[0] + 4 * i for i in range(nA)]
        order = [nA, nA + 1] + list(range(nA))
        for i in order:
            a(f"ds_read_b128 {vr(send[i],4)}, v{t[1]} offset:{i*1024}")
            if i < nA:
                a(f"ds_read_b128 {vr(csx[i],4)}, v{t[1]} offset:{(nA+2+i)*1024}")
        a(f"v_mul_u32_u24 v{t[2]}, {D*2}, v{v_tok}")
        a(f"v_lshl_add_u32 v{v_ad}, v{g.v_g}, 3, v{t[2]}")
        a(f"v_add_u32 v{v_ad}, s{S_COL}, v{v_ad}")
        a(f"s_waitcnt lgkmcnt({2*nA})")
        a(f"v_add_f32 v{keep[nA]}, v{keep[nA]}, v{send[nA]}")
        for r in range(4):
            a(f"v_add_f32 v{keep[nA+1]+r}, v{keep[nA+1]+r}, v{send[nA+1]+r}")
        gram_diag(a, g, g.acc_sq[0], v_sq)
        ln_stats(a, g.acc_sum[0], v_sq, v_mean, v_rstd, g.tmp)
        a(f"v_mul_f32 v{v_rq}, {f32(QSCALE)}, v{v_rstd}")
        for fb in range(nA):
            c, cs = g.acc[0][fb], g.acc_cs[fb]
            for r in range(4):
                a(f"v_add_f32 v{c+r}, v{c+r}, v{send[fb]+r}")
                a(f"v_add_f32 v{cs+r}, v{cs+r}, v{csx[fb]+r}")
                a(f"v_fma_f32 v{c+r}, -v{v_mean}, v{cs+r}, v{c+r}")
                a(f"v_mul_f32 v{c+r}, v{c+r}, v{v_rq if fb < 5 else v_rstd}")
            a(f"v_cvt_pk_bf16_f32 v{c}, v{c}, v{c+1}")
            a(f"v_cvt_pk_bf16_f32 v{c+1}, v{c+2}, v{c+3}")
            if fb < 5:
                a(f"buffer_store_dwordx2 {vr(c,2)}, v{v_ad}, {sr(SRD2,4)}, 0 offen offset:{fb*32}")
        return v_tok

    def colsum(lva, lt):
        a.label("k1_cs")
        cva = VAlloc(8)
        lt = [cva() for _ in range(4)]
        csb = cva(40, 4)
        cacc = cva(8, 4)
        v_ca, v_l = cva(), cva()
        S_U, S_SRC, S_DST = S_T0, S_T1, S_KW
        a(f"s_sub_u32 s{S_U}, s{S_WAVE}, 4")
        a(f"s_lshl_b32 s{S_U}, s{S_U}, 8")
        a(f"s_add_u32 s{S_T2}, s{S_U}, s2")
        a(f"s_cmp_eq_u32 s{S_T2}, 768")
        a("s_cbranch_scc1 k1_zero")
        a(f"s_cmp_ge_u32 s{S_T2}, {48*NCS}")
        a("s_cbranch_scc1 k1_end")
        a(f"s_mul_i32 s{S_U}, s{S_T2}, 1366")
        a(f"s_lshr_b32 s{S_U}, s{S_U}, 16")
        a(f"s_mul_i32 s{S_SRC}, s{S_U}, 48")
        a(f"s_sub_u32 s{S_SRC}, s{S_T2}, s{S_SRC}")
        a(f"s_cmp_lt_u32 s{S_SRC}, 24")
        a(f"s_cselect_b32 s{SRD0}, s{P_WG}, s{P_WU}")
        a(f"s_cselect_b32 s{SRD0+1}, s{P_WG+1}, s{P_WU+1}")
        a(f"s_mov_b32 s{SRD0+2}, {F*D*2}")
        a(f"s_cselect_b32 s{S_DST}, 0, 24")
        a(f"s_sub_u32 s{S_SRC}, s{S_SRC}, s{S_DST}")
        a(f"s_lshl_b32 s{S_SRC}, s{S_SRC}, 7")
        a(f"s_mul_i32 s{S_U}, s{S_U}, {80*F*2}")
        a(f"s_add_u32 s{S_SRC}, s{S_SRC}, s{S_U}")
        a(f"v_and_b32 v{v_l}, 63, v0")
        a(f"v_lshrrev_b32 v{lt[0]}, 3, v{v_l}")
        a(f"v_mul_u32_u24 v{lt[0]}, {F*2}, v{lt[0]}")
        a(f"v_and_b32 v{lt[1]}, 7, v{v_l}")
        a(f"v_lshl_add_u32 v{v_ca}, v{lt[1]}, 4, v{lt[0]}")
        for i in range(10):
            a(f"buffer_load_dwordx4 {vr(csb+4*i,4)}, v{v_ca}, {sr(SRD0,4)}, s{S_SRC} offen")
            a(f"s_add_u32 s{S_SRC}, s{S_SRC}, {8*F*2}")
        a(f"v_lshrrev_b32 v{lt[0]}, 4, v{v_l}")
        a(f"v_lshlrev_b32 v{lt[0]}, 3, v{lt[0]}")
        a(f"v_lshl_add_u32 v{v_ca}, v{lt[1]}, 5, v{lt[0]}")
        make_srd(a, SRD3, P_WS, WS_CS, NCS * 3072 * 4)
        a(f"s_lshl_b32 s{S_T2}, s{S_T2}, 8")
        a("s_barrier")
        for i in range(10):
            a(f"s_waitcnt vmcnt({9-i})")
            for j in range(4):
                if i == 0:
                    a(f"v_lshlrev_b32 v{cacc+2*j}, 16, v{csb+j}")
                    a(f"v_and_b32 v{cacc+2*j+1}, 0xffff0000, v{csb+j}")
                else:
                    a(f"v_lshlrev_b32 v{lt[0]}, 16, v{csb+4*i+j}")
                    a(f"v_and_b32 v{lt[1]}, 0xffff0000, v{csb+4*i+j}")
                    a(f"v_add_f32 v{cacc+2*j}, v{cacc+2*j}, v{lt[0]}")
                    a(f"v_add_f32 v{cacc+2*j+1}, v{cacc+2*j+1}, v{lt[1]}")
        a("s_nop 1")
        for j in range(4):
            a(f"v_permlane32_swap_b32 v{cacc+j}, v{cacc+4+j}")
        a("s_nop 1")
        for j in range(4):
            a(f"v_add_f32 v{cacc+j}, v{cacc+j}, v{cacc+4+j}")
        a("s_nop 1")
        for j in range(2):
            a(f"v_permlane16_swap_b32 v{cacc+j}, v{cacc+2+j}")
        a("s_nop 1")
        for j in range(2):
            a(f"v_add_f32 v{cacc+j}, v{cacc+j}, v{cacc+2+j}")
        a("s_nop 1")
        for j in range(2):
            a(f"v_add_f32_dpp v{cacc+j}, v{cacc+j}, v{cacc+j} row_ror:8 row_mask:0xf bank_mask:0xf")
        a(f"buffer_store_dwordx2 {vr(cacc,2)}, v{v_ca}, {sr(SRD3,4)}, s{S_T2} offen")
        a.label("k1_end")
        a("s_endpgm")
        a.label("k1_zero")
        make_srd(a, SRD3, P_WS, WS_CNT, 32768)
        a(f"v_and_b32 v{v_l}, 63, v0")
        a(f"v_lshlrev_b32 v{v_l}, 8, v{v_l}")
        a(f"v_mov_b32 v{lt[0]}, 0")
        a(f"buffer_store_dword v{lt[0]}, v{v_l}, {sr(SRD3,4)}, 0 offen")
        a(f"s_mov_b32 s{S_T2}, 16384")
        a(f"buffer_store_dword v{lt[0]}, v{v_l}, {sr(SRD3,4)}, s{S_T2} offen")
        a("s_endpgm")
        pre['n'] = cva.n
    pre = {}

    va = VAlloc(1)
    seg = Seg(SRD1, D * 2, 80, 'p160', S_COL)
    g = Gemm(a, va, 64, 2, 2, 1, [seg], 128, 4, D, SRD0, D * 2, S_TOK0, stats=True, colsum=True, sregs=GS, tag="k1q")
    g.split()
    g.setup()
    stamp(a, 0)
    g.mainloop()
    stamp(a, 1)
    lds = max(lds, g.lds_bytes)
    q_epilogue(g, va)
    stamp_end(a, 2)
    a("s_endpgm")
    maxv = max(maxv, va.n)
    g.loader(S_ROT, cont=colsum)
    maxv = max(maxv, pre['n'])

    a.label("k1_b")
    va = VAlloc(1)
    a(f"s_cmp_eq_u32 s{S_J}, 0")
    a(f"s_cselect_b32 s{SRD3}, s{P_WK}, s{P_WV}")
    a(f"s_cselect_b32 s{SRD3+1}, s{P_WK+1}, s{P_WV+1}")
    a(f"s_mov_b32 s{SRD3+2}, {D*DH*2}")
    a(f"s_mov_b32 s{SRD3+3}, 0x00020000")
    make_srd(a, SRD4, P_WS, WS_KV, KV_SZ)
    make_srd(a, SRD5, P_WS, WS_KN, 512)
    seg = Seg(SRD1, D * 2, 80, 'p160', S_COL)
    sk = Seg(SRD3, 40, 32, 'lin40')
    g = Gemm(a, va, 64, 2, 2, 1, [seg, sk], 128, 3, D, SRD0, D * 2, S_TOK0, stats=True, colsum=True, sregs=GS, tag="k1kv")
    g.split()
    g.setup()
    stamp(a, 0)
    g.mainloop()
    stamp(a, 1)
    lds = max(lds, g.lds_bytes)
    v_key = q_epilogue(g, va)
    v_ak, v_n = va(), va()
    t = g.tmp
    k0, k1 = g.acc[0][5], g.acc[0][6]
    a(f"v_cmp_eq_u32 vcc, 0, v{g.v_g}")
    a(f"v_lshrrev_b32 v{t[0]}, 5, v{v_key}")
    a(f"v_mul_u32_u24 v{t[0]}, 2560, v{t[0]}")
    a(f"v_and_b32 v{t[1]}, 31, v{v_key}")
    a(f"s_cmp_lg_u32 s{S_J}, 0")
    a("s_cbranch_scc1 k1_v")
    a(f"v_lshl_add_u32 v{v_ak}, v{t[1]}, 4, v{t[0]}")
    a(f"v_lshrrev_b32 v{t[2]}, 1, v{g.v_g}")
    a(f"v_lshl_add_u32 v{v_ak}, v{t[2]}, 9, v{v_ak}")
    a(f"v_and_b32 v{t[2]}, 1, v{g.v_g}")
    a(f"v_lshl_add_u32 v{v_ak}, v{t[2]}, 3, v{v_ak}")
    a(f"buffer_store_dwordx2 {vr(k0,2)}, v{v_ak}, {sr(SRD4,4)}, 0 offen")
    a(f"v_lshl_add_u32 v{v_key}, v{t[1]}, 3, v{t[0]}")
    a(f"v_cndmask_b32 v{k1}, 0, v{k1}, vcc")
    a(f"v_cndmask_b32 v{k1+1}, 0, v{k1+1}, vcc")
    a("s_and_saveexec_b64 s[74:75], vcc")
    a(f"buffer_store_dwordx2 {vr(k1,2)}, v{v_key}, {sr(SRD4,4)}, 0 offen offset:1024")
    a("s_mov_b64 exec, -1")
    a(f"v_mov_b32 v{v_n}, 0")
    for c in (k0, k0 + 1, k1, k1 + 1):
        a(f"v_lshlrev_b32 v{t[0]}, 16, v{c}")
        a(f"v_and_b32 v{t[1]}, 0xffff0000, v{c}")
        a(f"v_fma_f32 v{v_n}, v{t[0]}, v{t[0]}, v{v_n}")
        a(f"v_fma_f32 v{v_n}, v{t[1]}, v{t[1]}, v{v_n}")
    swap_add(a, v_n, t[0], 32)
    swap_add(a, v_n, t[0], 16)
    dpp_rowmax(a, v_n)
    a(f"s_lshl_b32 s{S_T0}, s{S_XB}, 2")
    a(f"s_add_u32 s{S_T0}, s{S_T0}, s{S_WAVE}")
    a(f"s_lshl_b32 s{S_T0}, s{S_T0}, 2")
    a(f"v_mov_b32 v{t[0]}, 0")
    a("s_mov_b64 exec, 0x8000")
    a(f"buffer_store_dword v{v_n}, v{t[0]}, {sr(SRD5,4)}, s{S_T0} offen")
    stamp_end(a, 2)
    a("s_endpgm")
    a.label("k1_v")
    a(f"v_bfe_u32 v{t[2]}, v{t[1]}, 4, 1")
    a(f"v_mad_u32_u24 v{v_ak}, v{t[2]}, 640, v{t[0]}" if False else f"v_mul_u32_u24 v{t[2]}, 640, v{t[2]}")
    a(f"v_add_u32 v{v_ak}, v{t[2]}, v{t[0]}")
    a(f"v_bfe_u32 v{t[2]}, v{t[1]}, 2, 1")
    a(f"v_mul_u32_u24 v{t[2]}, 320, v{t[2]}")
    a(f"v_add_u32 v{v_ak}, v{t[2]}, v{v_ak}")
    a(f"v_bfe_u32 v{t[2]}, v{t[1]}, 3, 1")
    a(f"v_lshl_add_u32 v{v_ak}, v{t[2]}, 3, v{v_ak}")
    a(f"v_and_b32 v{t[2]}, 3, v{t[1]}")
    a(f"v_lshl_add_u32 v{v_ak}, v{t[2]}, 1, v{v_ak}")
    a(f"v_lshl_add_u32 v{v_ak}, v{g.v_g}, 6, v{v_ak}")
    for fb, c in enumerate((k0, k1)):
        if fb:
            a("s_and_saveexec_b64 s[74:75], vcc")
        for p in range(2):
            o = 1280 + fb * 256 + p * 32
            a(f"buffer_store_short v{c+p}, v{v_ak}, {sr(SRD4,4)}, 0 offen offset:{o}")
            a(f"buffer_store_short_d16_hi v{c+p}, v{v_ak}, {sr(SRD4,4)}, 0 offen offset:{o+16}")
    stamp_end(a, 2)
    a("s_endpgm")
    maxv = max(maxv, va.n)
    g.loader(S_ROT, cont=lambda lva, lt: a("s_branch k1_cs"))

    kernel_end(a, name, maxv)
    return (name, 256, 512, lds)


QB = 53248
MX, MW, MS = 0, 20480, 49152
QST, KMX = 102400, 112640
S_HOOK, S_KVC = 15, 7
CNT_KV = 80
LOC = int(os.environ.get("LOC", "7"))
PRET = int(os.environ.get("PRET", "3"))
KVL = int(os.environ.get("KVL", "0"))
FLAG = 128


def p1_compute(a, tmp, v_first, v_alias, init):
    va = VAlloc(v_first)
    seg = Seg(SRD1, D * 2, 80, 'p160', S_COL)
    g = Gemm(a, va, 64, 2, 2, 1, [seg], 128, 4, D, SRD0, D * 2, S_TOK0, stats=True, colsum=True, sregs=GS, tag="k1q",
             lds_base=QB - 36864, slot0=1)
    assert g.lds_base + g.lds_bytes <= KV_SZ and g.stage_bytes == 36864
    g.tmp = tmp
    t = g.tmp
    make_srd(a, SRD5, P_DBG, 0, 256)
    make_srd(a, SRD3, P_WS, WS_KN, 512)
    fr = v_alias
    mac = [v_alias + 16 + 4 * i for i in range(6)]
    v_mx, v_mw, v_mp, v_fl, v_z, v_one, v_fa, v_ad = [v_alias + 40 + i for i in range(8)]
    v_mean = va(2, 2)
    v_rstd = v_mean + 1
    v_sq, v_xw, v_xr, v_xc, v_qw = [va() for _ in range(5)]
    a(f"v_mov_b32 v{v_z}, 0")
    a(f"v_mov_b32 v{v_one}, 1")
    lab = a.newlabel("bz")
    a(f"s_lshl_b32 s{S_T1}, s2, 2")
    a(f"s_add_u32 s{S_T1}, s{S_T1}, s{S_WAVE}")
    a(f"s_cmp_lg_u32 s{S_T1}, 3")
    a(f"s_cbranch_scc1 {lab}")
    a(f"v_and_b32 v{t[0]}, 63, v0")
    a(f"v_lshlrev_b32 v{t[0]}, 8, v{t[0]}")
    for i in range(4):
        a(f"v_mov_b32 v{fr+i}, 0")
    a(f"s_mov_b32 s{S_T2}, 16384")
    a(f"buffer_store_dwordx4 {vr(fr,4)}, v{t[0]}, {sr(SRDC,4)}, 0 offen sc1")
    if LOC:
        a(f"buffer_store_dwordx4 {vr(fr,4)}, v{t[0]}, {sr(SRDC,4)}, 0 offen offset:128 sc1")
    a(f"buffer_store_dwordx4 {vr(fr,4)}, v{t[0]}, {sr(SRDC,4)}, s{S_T2} offen sc1")
    if KVL:
        a(f"buffer_store_dwordx4 {vr(fr,4)}, v{t[0]}, {sr(SRDC,4)}, s{S_T2} offen offset:128 sc1")
    a("s_mov_b64 exec, 1")
    a("s_waitcnt vmcnt(0)")
    a(f"buffer_store_dword v{v_one}, v{v_z}, {sr(SRD5,4)}, 0 offen offset:{FLAG} sc1")
    a("s_mov_b64 exec, -1")
    a.label(lab)
    g.setup()
    assert g.fb[1] + 8 == g.fa[0] + 56
    fq = [fr + 4 * i for i in range(4)] + [g.fa[0] + 4 * i for i in range(14)]
    a(f"s_cmp_eq_u32 s{S_WAVE}, 0")
    a(f"s_cselect_b32 s{S_HOOK}, 2, 0")
    a(f"s_and_b32 s{S_KVC}, s2, 15")
    a(f"s_lshl_b32 s{S_KVC}, s{S_KVC}, 8")
    a(f"s_add_u32 s{S_KVC}, s{S_KVC}, {96*256}")
    a(f"v_lshlrev_b32 v{v_fa}, 8, v{g.v_lane}")
    a(f"v_mul_u32_u24 v{t[0]}, 5120, v{g.v_wave}")
    a(f"v_lshl_add_u32 v{v_mx}, v{g.v_lane}, 4, v{t[0]}")
    a(f"v_mul_u32_u24 v{t[0]}, 6400, v{g.v_wave}")
    a(f"v_add_u32 v{t[0]}, {MW}, v{t[0]}")
    a(f"v_lshl_add_u32 v{v_mp}, v{g.v_lane}, 4, v{t[0]}")
    a(f"v_lshrrev_b32 v{t[1]}, 2, v{g.v_i16}")
    a(f"v_lshl_add_u32 v{t[1]}, v{g.v_g}, 3, v{t[1]}")
    a(f"v_mad_u32_u24 v{t[0]}, v{t[1]}, 40, v{t[0]}")
    a(f"v_and_b32 v{t[1]}, 3, v{g.v_i16}")
    a(f"v_lshl_add_u32 v{v_mw}, v{t[1]}, 3, v{t[0]}")
    XW = 8 * 1024
    assert QB + 4 * XW <= QST
    a(f"v_mul_u32_u24 v{t[0]}, {XW}, v{g.v_wave}")
    a(f"v_lshl_add_u32 v{t[0]}, v{g.v_lane}, 4, v{t[0]}")
    a(f"v_add_u32 v{v_xw}, {QB}, v{t[0]}")
    a(f"v_xor_b32 v{v_xr}, {2*XW}, v{t[0]}")
    a(f"v_add_u32 v{v_xr}, {QB}, v{v_xr}")
    a(f"v_lshlrev_b32 v{t[0]}, 4, v{g.v_i16}")
    a(f"v_sub_u32 v{v_xc}, v{v_xr}, v{t[0]}")
    a(f"v_lshl_add_u32 v{t[1]}, v{g.v_wt}, 1, v{g.v_wo}")
    a(f"v_lshl_add_u32 v{t[1]}, v{t[1]}, 4, v{g.v_i16}")
    a(f"v_mul_u32_u24 v{t[2]}, 160, v{t[1]}")
    a(f"v_lshl_add_u32 v{t[2]}, v{g.v_g}, 3, v{t[2]}")
    a(f"v_add_u32 v{v_qw}, {QST}, v{t[2]}")
    a(f"v_add_u32 v{t[2]}, s{S_TOK0}, v{t[1]}")
    a(f"v_mul_u32_u24 v{t[2]}, {D*2}, v{t[2]}")
    a(f"v_lshl_add_u32 v{t[2]}, v{g.v_g}, 3, v{t[2]}")
    a(f"v_add_u32 v{V_RAD}, s{S_COL}, v{t[2]}")
    a(f"ds_write_b32 v{v_z}, v{v_z} offset:{MS+1024}")
    a("s_waitcnt lgkmcnt(0)")
    a("s_barrier")
    stamp(a, 0)
    a(f"buffer_load_dword v{v_fl}, v{v_z}, {sr(SRD5,4)}, 0 offen offset:{FLAG} sc1")
    for s_ in range(5):
        a(f"ds_read_b128 {vr(fq[3*s_],4)}, v{v_mx} offset:{MX + s_*1024}")
        for b in range(2):
            for e in range(2):
                a(f"ds_read_b64_tr_b16 {vr(fq[3*s_+1+b]+2*e,2)}, v{v_mw} offset:{(s_*32+4*e)*40 + b*32}")
    ones = vr(g.v_ones, 4)
    for s_ in range(5):
        a(f"s_waitcnt lgkmcnt({min(15, 5*(4-s_))})")
        B, A0, A1 = [vr(fq[3*s_+i], 4) for i in range(3)]
        for i, (x, y) in enumerate([(A0, B), (A1, B), (A0, ones), (A1, ones), (ones, B), (B, B)]):
            a(f"v_mfma_f32_16x16x32_bf16 {vr(mac[i],4)}, {x}, {y}, " + ("0" if s_ == 0 else vr(mac[i], 4)))
    a("s_nop 7")
    a("s_nop 7")
    lab = a.newlabel("pw")
    a(f"s_cmp_eq_u32 s{S_WAVE}, 0")
    a(f"s_cbranch_scc1 {lab}")
    for i in range(6):
        a(f"ds_write_b128 v{v_mp}, {vr(mac[i],4)} offset:{i*1024}")
    a("s_mov_b64 exec, 1")
    a(f"ds_add_u32 v{v_z}, v{v_one} offset:{MS+1024}")
    a("s_mov_b64 exec, -1")
    a.label(lab)

    def finalize():
        skip, lv, lj, lp, lq = [a.newlabel("fz") for _ in range(5)]
        a(f"s_cmp_lg_u32 s{S_WAVE}, 0")
        a(f"s_cbranch_scc1 {skip}")
        a.label(lp)
        a(f"ds_read_b32 v{t[0]}, v{v_z} offset:{MS+1024}")
        a("s_waitcnt lgkmcnt(0)")
        a(f"v_readfirstlane_b32 s{S_T2}, v{t[0]}")
        a("s_nop 3")
        a(f"s_cmp_lt_u32 s{S_T2}, 3")
        a(f"s_cbranch_scc1 {lp}")
        order = [4, 5, 0, 2, 1, 3]
        for i in order:
            for w in range(1, 4):
                a(f"ds_read_b128 {vr(fq[6*(w-1)+i],4)}, v{v_mp} offset:{w*6400 + i*1024}")
        a(f"s_and_b32 s{S_T1}, s{S_J}, 3")
        a(f"s_lshl_b32 s{S_T1}, s{S_T1}, 4")
        a(f"s_add_u32 s{S_T1}, s{S_T1}, s{S_TOK0}")
        a(f"s_lshr_b32 s{S_KX}, s{S_T1}, 2")
        a(f"s_lshr_b32 s{S_T1}, s{S_T1}, 5")
        a(f"s_mul_i32 s{S_KW}, s{S_T1}, 2560")
        a(f"s_and_b32 s{S_T0}, s{S_J}, 1")
        for n, i in enumerate(order):
            a(f"s_waitcnt lgkmcnt({min(15, 3*(5-n))})")
            for w in range(3):
                for r in ((0,) if i == 4 else (0, 2)):
                    a(f"v_pk_add_f32 {vr(mac[i]+r,2)}, {vr(mac[i]+r,2)}, {vr(fq[6*w+i]+r,2)}")
        gram_diag(a, g, mac[5], v_sq)
        ln_stats(a, mac[4], v_sq, v_mean, v_rstd, t)
        for b in range(2):
            c, cs = mac[b], mac[2 + b]
            for r in range(4):
                a(f"v_fma_f32 v{c+r}, -v{v_mean}, v{cs+r}, v{c+r}")
                a(f"v_mul_f32 v{c+r}, v{c+r}, v{v_rstd}")
            a(f"v_cvt_pk_bf16_f32 v{c}, v{c}, v{c+1}")
            a(f"v_cvt_pk_bf16_f32 v{c+1}, v{c+2}, v{c+3}")
        k0, k1 = mac[0], mac[1]
        v_n = v_sq
        a(f"v_mov_b32 v{v_n}, 0")
        a(f"s_bitcmp1_b32 s{S_J}, 2")
        a(f"s_cbranch_scc1 {lv}")
        a(f"v_lshrrev_b32 v{t[0]}, 1, v{g.v_g}")
        a(f"v_lshlrev_b32 v{t[0]}, 8, v{t[0]}")
        a(f"v_lshl_add_u32 v{t[0]}, v{g.v_i16}, 4, v{t[0]}")
        a(f"v_and_b32 v{t[1]}, 1, v{g.v_g}")
        a(f"v_lshl_add_u32 v{t[0]}, v{t[1]}, 3, v{t[0]}")
        a(f"ds_write_b64 v{t[0]}, {vr(k0,2)} offset:{MS}")
        a(f"v_lshlrev_b32 v{t[1]}, 3, v{g.v_i16}")
        a("s_mov_b64 exec, 0xffff")
        a(f"ds_write_b64 v{t[1]}, {vr(k1,2)} offset:{MS+512}")
        for c in (k1, k1 + 1, k0, k0 + 1):
            if c == k0:
                a("s_mov_b64 exec, -1")
            a(f"v_lshlrev_b32 v{t[0]}, 16, v{c}")
            a(f"v_and_b32 v{t[1]}, 0xffff0000, v{c}")
            a(f"v_fma_f32 v{v_n}, v{t[0]}, v{t[0]}, v{v_n}")
            a(f"v_fma_f32 v{v_n}, v{t[1]}, v{t[1]}, v{v_n}")
        swap_add(a, v_n, t[0], 32)
        swap_add(a, v_n, t[0], 16)
        dpp_rowmax(a, v_n)
        a("s_mov_b64 exec, 0x8000")
        a(f"buffer_store_dword v{v_n}, v{v_z}, {sr(SRD3,4)}, s{S_KX} offen sc1")
        a("s_mov_b64 exec, -1")
        a(f"v_lshlrev_b32 v{t[0]}, 9, v{g.v_g}")
        a(f"v_lshl_add_u32 v{v_ad}, v{g.v_i16}, 4, v{t[0]}")
        a(f"s_lshl_b32 s{S_T0}, s{S_T0}, 7")
        a(f"v_cmp_gt_u32 vcc, 2, v{g.v_g}")
        a(f"v_mov_b32 v{t[0]}, s{S_T0}")
        a(f"v_cndmask_b32 v{t[1]}, 0, v{t[0]}, vcc")
        a(f"v_add3_u32 v{v_ad}, v{v_ad}, v{t[0]}, v{t[1]}")
        a(f"s_branch {lj}")
        a.label(lv)
        a(f"v_bfe_u32 v{t[0]}, v{g.v_i16}, 2, 1")
        a(f"v_mul_u32_u24 v{t[0]}, 320, v{t[0]}")
        a(f"v_bfe_u32 v{t[1]}, v{g.v_i16}, 3, 1")
        a(f"v_lshl_add_u32 v{t[0]}, v{t[1]}, 3, v{t[0]}")
        a(f"v_and_b32 v{t[1]}, 3, v{g.v_i16}")
        a(f"v_lshl_add_u32 v{t[0]}, v{t[1]}, 1, v{t[0]}")
        a(f"v_lshl_add_u32 v{t[0]}, v{g.v_g}, 6, v{t[0]}")
        for b, c in enumerate((k0, k1)):
            if b:
                a("s_mov_b64 exec, 0xffff")
            for p in range(2):
                o = MS + b * 256 + p * 32
                a(f"ds_write_b16 v{t[0]}, v{c+p} offset:{o}")
                a(f"ds_write_b16_d16_hi v{t[0]}, v{c+p} offset:{o+16}")
        a("s_mov_b64 exec, -1")
        a(f"s_mul_i32 s{S_T0}, s{S_T0}, 640")
        a(f"s_add_u32 s{S_T0}, s{S_T0}, 1280")
        a(f"v_lshl_add_u32 v{v_ad}, v{g.v_lane}, 4, s{S_T0}")
        a.label(lj)
        a(f"v_lshlrev_b32 v{t[0]}, 4, v{g.v_lane}")
        a(f"ds_read_b128 {vr(mac[2],4)}, v{t[0]} offset:{MS}")
        a("s_mov_b32 exec_hi, 0xff")
        a("s_waitcnt lgkmcnt(0)")
        a(f"buffer_store_dwordx4 {vr(mac[2],4)}, v{v_ad}, {sr(SRD1,4)}, s{S_KW} offen sc1")
        a("s_mov_b64 exec, -1")
        a.label(skip)

    def hook():
        skip, sec, done, lp, lq = [a.newlabel("hk") for _ in range(5)]
        a(f"s_cmp_eq_u32 s{S_HOOK}, 0")
        a(f"s_cbranch_scc1 {skip}")
        a(f"s_sub_u32 s{S_HOOK}, s{S_HOOK}, 1")
        a("s_mov_b64 exec, 1")
        a(f"s_cmp_eq_u32 s{S_HOOK}, 0")
        a(f"s_cbranch_scc1 {sec}")
        a(f"s_mov_b32 s{S_T1}, 0x20000")
        a.label(lp)
        a("s_waitcnt vmcnt(0)")
        a(f"v_readfirstlane_b32 s{S_T2}, v{v_fl}")
        a(f"s_sub_u32 s{S_T1}, s{S_T1}, 1")
        a(f"s_cmp_eq_u32 s{S_T1}, 0")
        a(f"s_cbranch_scc1 {lq}")
        a(f"s_cmp_lg_u32 s{S_T2}, 0")
        a(f"s_cbranch_scc1 {lq}")
        a(f"buffer_load_dword v{v_fl}, v{v_z}, {sr(SRD5,4)}, 0 offen offset:{FLAG} sc1")
        a(f"s_branch {lp}")
        a.label(lq)
        a(f"v_mov_b32 v{v_fl}, 1")
        if KVL:
            a(f"v_mov_b32 v{v_ad}, 1")
            a(f"s_lshl_b32 s{S_T1}, s{S_XB}, 8")
            a(f"s_add_u32 s{S_T1}, s{S_T1}, {112*256}")
            a(f"buffer_atomic_add v{v_ad}, v{v_z}, {sr(SRDC,4)}, s{S_T1} offen offset:128 sc0")
        a(f"buffer_atomic_add v{v_fl}, v{v_z}, {sr(SRDC,4)}, s{S_KVC} offen sc0 sc1")
        if KVL:
            a("s_waitcnt vmcnt(1)")
            a(f"v_readfirstlane_b32 s{S_T2}, v{v_ad}")
            a(f"v_mov_b32 v{v_ad}, 1")
            a(f"s_mov_b32 s{S_T1}, {120*256}")
            a("s_nop 2")
            a(f"s_cmp_lg_u32 s{S_T2}, 31")
            a(f"s_cbranch_scc1 {done}")
            a(f"buffer_atomic_add v{v_ad}, v{v_z}, {sr(SRDC,4)}, s{S_T1} offen offset:128 sc0 sc1")
            a("s_waitcnt vmcnt(0)")
            a(f"v_readfirstlane_b32 s{S_T2}, v{v_ad}")
            a(f"s_mov_b32 s{S_T1}, {CNT_KV*256}")
            a("s_nop 3")
            a(f"s_cmp_lg_u32 s{S_T2}, 7")
            a(f"s_cbranch_scc1 {done}")
            a("s_mov_b64 exec, 0xff")
            a(f"buffer_store_dword v{v_one}, v{v_fa}, {sr(SRDC,4)}, s{S_T1} offen offset:2048 sc1")
        a(f"s_branch {done}")
        a.label(sec)
        a("s_waitcnt vmcnt(0)")
        a(f"v_readfirstlane_b32 s{S_T2}, v{v_fl}")
        a(f"v_mov_b32 v{v_fl}, 1")
        a(f"s_mov_b32 s{S_KVC}, {CNT_KV*256}")
        a("s_nop 2")
        a(f"s_cmp_lg_u32 s{S_T2}, 15")
        a(f"s_cbranch_scc1 {done}")
        a(f"buffer_atomic_add v{v_fl}, v{v_z}, {sr(SRDC,4)}, s{S_KVC} offen sc0 sc1")
        a("s_waitcnt vmcnt(0)")
        a(f"v_readfirstlane_b32 s{S_T2}, v{v_fl}")
        a("s_nop 3")
        a(f"s_cmp_lg_u32 s{S_T2}, 15")
        a(f"s_cbranch_scc1 {done}")
        a("s_mov_b64 exec, 0xff")
        a(f"buffer_store_dword v{v_one}, v{v_fa}, {sr(SRDC,4)}, s{S_KVC} offen offset:2048 sc1")
        a.label(done)
        a("s_mov_b64 exec, -1")
        a.label(skip)
        a(f"s_cmp_lg_u32 s{g.s_cnt}, 2")
        a(f"s_cbranch_scc1 {lq}x")
        init()
        a.label(f"{lq}x")

    finalize()
    g.mainloop(pre_bar=hook)
    stamp(a, 1)
    nA = g.nA
    keep = g.acc[0] + [g.acc_sq[0]]
    send = g.acc[1] + [g.acc_sq[1]]
    a("s_nop 3")
    a(f"ds_write_b128 v{v_xw}, {vr(send[nA],4)} offset:{nA*1024}")
    a(f"ds_write_b32 v{v_xw}, v{g.acc_sum[1]} offset:{(nA+1)*1024}")
    for i in range(nA):
        a(f"ds_write_b128 v{v_xw}, {vr(send[i],4)} offset:{i*1024}")
    a("s_mov_b32 exec_lo, 0x00010001")
    a("s_mov_b32 exec_hi, 0x00010001")
    for i in range(nA):
        a(f"ds_write_b128 v{v_xw}, {vr(g.acc_cs[i],4)} offset:{(nA+2)*1024 + 16*i}")
    a("s_mov_b64 exec, -1")
    a("s_waitcnt lgkmcnt(0)")
    stamp(a, 4, True)
    a("s_barrier")
    stamp(a, 5, True)
    csx = [g.fa[0] + 4 * i for i in range(nA)]
    a(f"ds_read_b128 {vr(send[nA],4)}, v{v_xr} offset:{nA*1024}")
    a(f"ds_read_b32 v{g.acc_sum[1]}, v{v_xr} offset:{(nA+1)*1024}")
    for i in range(nA):
        a(f"ds_read_b128 {vr(send[i],4)}, v{v_xr} offset:{i*1024}")
        a(f"ds_read_b128 {vr(csx[i],4)}, v{v_xc} offset:{(nA+2)*1024 + 16*i}")
    a(f"s_waitcnt lgkmcnt({2*nA})")
    a(f"v_add_f32 v{g.acc_sum[0]}, v{g.acc_sum[0]}, v{g.acc_sum[1]}")
    for r in (0, 2):
        a(f"v_pk_add_f32 {vr(keep[nA]+r,2)}, {vr(keep[nA]+r,2)}, {vr(send[nA]+r,2)}")
    gram_diag(a, g, g.acc_sq[0], v_sq)
    for fb in range(nA):
        c, cs = g.acc[0][fb], g.acc_cs[fb]
        for r in (0, 2):
            a(f"v_pk_add_f32 {vr(c+r,2)}, {vr(c+r,2)}, {vr(send[fb]+r,2)}")
            a(f"v_pk_add_f32 {vr(cs+r,2)}, {vr(cs+r,2)}, {vr(csx[fb]+r,2)}")
    ln_stats(a, g.acc_sum[0], v_sq, v_mean, v_rstd, g.tmp)
    a(f"v_mul_f32 v{v_rstd}, {f32(QSCALE)}, v{v_rstd}")
    a(f"v_sub_f32 v{v_mean}, 0, v{v_mean}")
    stamp(a, 6, True)
    pm = vr(v_mean, 2)
    for fb in range(nA):
        c, cs = g.acc[0][fb], g.acc_cs[fb]
        for r in (0, 2):
            a(f"v_pk_fma_f32 {vr(c+r,2)}, {pm}, {vr(cs+r,2)}, {vr(c+r,2)} op_sel_hi:[0,1,1]")
        for r in (0, 2):
            a(f"v_pk_mul_f32 {vr(c+r,2)}, {vr(c+r,2)}, {pm} op_sel:[0,1] op_sel_hi:[1,1]")
        a(f"v_cvt_pk_bf16_f32 v{c}, v{c}, v{c+1}")
        a(f"v_cvt_pk_bf16_f32 v{c+1}, v{c+2}, v{c+3}")
        a(f"ds_write_b64 v{v_qw}, {vr(c,2)} offset:{fb*32}")
    stamp(a, 7, True)
    g.maxv = va.n
    return g


KVROT = int(os.environ.get("KVROT", "7"))
LATE1 = int(os.environ.get("LATE1", "1"))
CPF = int(os.environ.get("CPF", "0"))


def code_touch(a, v_t, v_d, first):
    lab = a.newlabel("pc")
    a("s_getpc_b64 s[74:75]")
    a.label(lab)
    a(f"s_sub_u32 s74, s74, {lab}-k2_attn_kernel")
    a("s_subb_u32 s75, s75, 0")
    for i in range(first, 2):
        a(f"v_lshlrev_b32 v{v_t}, 7, v0")
        if i:
            a(f"v_add_u32 v{v_t}, {i*32768}, v{v_t}")
        a(f"v_min_u32 v{v_t}, k2_code_end-k2_attn_kernel-4, v{v_t}")
        a(f"global_load_dword v{v_d}, v{v_t}, s[74:75]")


def p1_mini(a):
    t = [30, 31]
    a("v_and_b32 v0, 255, v0")
    make_srd(a, SRD0, P_X, 0, S * D * 2)
    a(f"s_bitcmp0_b32 s{S_J}, 2")
    a(f"s_cselect_b32 s{SRD3}, s{P_WK}, s{P_WV}")
    a(f"s_cselect_b32 s{SRD3+1}, s{P_WK+1}, s{P_WV+1}")
    a(f"s_mov_b32 s{SRD3+2}, {D*DH*2}")
    a(f"s_mov_b32 s{SRD3+3}, 0x00020000")
    a(f"s_and_b32 s{S_T1}, s{S_J}, 3")
    a(f"s_lshl_b32 s{S_T1}, s{S_T1}, 4")
    a(f"s_add_u32 s{S_T1}, s{S_T1}, s{S_TOK0}")
    a(f"v_and_b32 v{t[0]}, 15, v0")
    a(f"v_add_u32 v{t[0]}, s{S_T1}, v{t[0]}")
    a(f"v_mul_u32_u24 v{t[0]}, {D*2}, v{t[0]}")
    a(f"v_and_b32 v{t[1]}, 0xf0, v0")
    a(f"v_add_u32 v{t[0]}, v{t[0]}, v{t[1]}")
    a(f"v_lshlrev_b32 v{t[1]}, 4, v0")
    a(f"s_and_b32 s{S_WOFF}, s{S_WAVE}, 3")
    a(f"s_lshl_b32 s{S_WOFF}, s{S_WOFF}, 10")
    for j in range(7):
        if j < 5:
            a(f"s_add_u32 m0, s{S_WOFF}, {MX + j*4096}")
            a(f"s_mov_b32 s{S_T1}, {j*256}")
            a(f"buffer_load_dwordx4 v{t[0]}, {sr(SRD0,4)}, s{S_T1} offen lds")
        a(f"s_add_u32 m0, s{S_WOFF}, {MW + j*4096}")
        a(f"s_mov_b32 s{S_T1}, {j*4096}")
        a(f"buffer_load_dwordx4 v{t[1]}, {sr(SRD3,4)}, s{S_T1} offen lds")


def p1_loader(a, g, v_l, dma, early):
    lva = VAlloc(30)
    t = [lva() for _ in range(2)]
    v_p = lva(2, 2)
    v_pa = lva()
    make_srd(a, SRD1, P_WQ, 0, D * D * 2)
    make_srd(a, SRD2, P_WS, WS_KV, KV_SZ)
    g.ld_prepare(None, head=False, v0=40)
    g.lstamp(0)
    if LATE1 < 2:
        g.ld_issue(0)
    if LATE1 < 1:
        g.ld_issue(1)
    a(f"s_lshl_b32 s{S_KVC}, s{S_XB}, 8")
    a(f"s_add_u32 s{S_KVC}, s{S_KVC}, {(CNT_KV+8)*256}")
    a(f"v_lshlrev_b32 v{v_pa}, 3, v{v_l}")
    make_srd(a, SRD4, P_WS, WS_KN, 512)
    early()
    a(f"s_waitcnt vmcnt({len(g.ops)})")
    g.lstamp(1)
    a("s_barrier")
    if LATE1 >= 2:
        g.ld_issue(0)
    if LATE1 >= 1:
        g.ld_issue(1)
    g.ld_issue(2)
    g.ld_ready(0)
    g.ld_issue(3)
    g.ld_ready(1)
    g.ld_issue(4)
    g.ld_ready(2)
    g.ld_ready(3)

    def poll():
        a("s_mov_b64 exec, 1")
        a(f"buffer_load_dword v{t[0]}, v{v_pa}, {sr(SRDC,4)}, s{S_KVC} offen sc1")
        a("s_mov_b64 exec, -1")
        g.ops.append(("p", 0))

    def check(lab):
        last = max(i for i, o in enumerate(g.ops) if o == ("p", 0))
        a(f"s_waitcnt vmcnt({len(g.ops) - 1 - last})")
        a(f"v_readfirstlane_b32 s{S_T2}, v{t[0]}")
        a("s_nop 3")
        a(f"s_cmp_eq_u32 s{S_T2}, 0")
        a(f"s_cbranch_scc1 {lab}")

    def kv():
        a(f"buffer_load_dwordx2 {vr(v_p,2)}, v{v_pa}, {sr(SRD4,4)}, 0 offen")
        dma(13, SRD2, True)
        g.ops.extend([("d", 0)] * 14)

    lb, lb2, lb3, lj, lsp, lsd, lsc = [a.newlabel("p1") for _ in range(7)]
    poll()
    g.ld_ready(4)
    check(lb3)
    kv()
    a("s_barrier")
    a(f"s_branch {lj}")
    a.label(lb3)
    poll()
    a("s_barrier")
    a(f"s_mov_b32 s{S_T1}, 0x20000")
    a(f"s_branch {lsc}")
    a.label(lsp)
    a(f"s_sub_u32 s{S_T1}, s{S_T1}, 1")
    a(f"s_cmp_eq_u32 s{S_T1}, 0")
    a(f"s_cbranch_scc1 {lsd}")
    poll()
    a.label(lsc)
    check(lsp)
    a.label(lsd)
    kv()
    a.label(lj)
    g.lstamp(13)
    a("s_barrier")
    a("s_waitcnt vmcnt(13)")
    a(f"v_max_f32 v{v_p}, v{v_p}, v{v_p+1}")
    dpp_rowmax(a, v_p)
    a("s_nop 1")
    a(f"v_max_f32_dpp v{v_p}, v{v_p}, v{v_p} row_bcast:15 row_mask:0xa bank_mask:0xf")
    a("s_nop 1")
    a(f"v_max_f32_dpp v{v_p}, v{v_p}, v{v_p} row_bcast:31 row_mask:0xc bank_mask:0xf")
    a(f"v_mov_b32 v{t[0]}, {KMX}")
    a("s_mov_b32 exec_lo, 0")
    a("s_brev_b32 exec_hi, 1")
    a(f"ds_write_b32 v{t[0]}, v{v_p}")
    a("s_mov_b64 exec, -1")


def gen_k2(a):
    name = "k2_attn_kernel"
    kernel_begin(a, name)
    a("s_cmp_ge_u32 s2, 256")
    a("s_cbranch_scc1 k2_end")
    load_kernargs(a)
    a(f"s_and_b32 s{S_XB}, s2, 7")
    a(f"s_lshr_b32 s{S_J}, s2, 3")
    a(f"s_lshr_b32 s{S_T2}, s{S_J}, 3")
    a(f"s_lshl_b32 s{S_T1}, s{S_XB}, 2")
    a(f"s_add_u32 s{S_T1}, s{S_T1}, s{S_T2}")
    a(f"s_lshl_b32 s{S_TOK0}, s{S_T1}, 6")
    a(f"s_and_b32 s{S_T0}, s{S_J}, 7")
    a(f"s_mul_i32 s{S_COL}, s{S_T0}, 160")
    va = VAlloc(1)
    t = [va() for _ in range(6)]
    v_kn = va(2, 2)
    v_l16, v_lane, v_n, v_h, v_qa, v_oa = [va() for _ in range(6)]
    v_cur = [va() for _ in range(3)]
    v_nxt = [va() for _ in range(3)]
    v_m = [va(), va()]
    v_ob = va()
    v_cst = va()
    O = [va(16, 4) for _ in range(2)]
    VF = [va(8, 4) for _ in range(2)]
    v_late = va.n
    Q = [va(8, 4) for _ in range(2)]
    Sb = [[va(16, 4) for _ in range(2)] for _ in range(2)]
    P = [va(8, 4) for _ in range(2)]
    KF = [va(8, 4) for _ in range(2)]
    S_STEP, S_CNT, S_GOFF, S_HEAD = 76, 77, 78, 79
    S_VM, S_KM = 4, 6
    TB = 2560

    def kread(dst, regs, tile):
        return [f"ds_read_b128 {vr(dst,4)}, v{regs[0]} offset:{tile*TB}",
                f"ds_read_b64 {vr(dst+4,2)}, v{regs[1]} offset:{tile*TB}"]

    def vread(dst, regs, tile):
        return [f"s_mov_b64 exec, {sr(S_VM,2)}",
                f"ds_read_b128 {vr(dst,4)}, v{regs[2]} offset:{tile*TB}",
                f"ds_read_b128 {vr(dst+4,4)}, v{regs[2]} offset:{tile*TB+640}",
                "s_mov_b64 exec, -1"]

    a(f"v_lshrrev_b32 v{t[0]}, 6, v0")
    a(f"v_and_b32 v{v_lane}, 63, v0")
    a(f"v_readfirstlane_b32 s{S_WAVE}, v{t[0]}")
    a(f"v_lshlrev_b32 v{v_l16}, 4, v{v_lane}")
    a(f"v_and_b32 v{v_n}, 31, v0")
    a(f"v_bfe_u32 v{v_h}, v0, 5, 1")
    a("s_waitcnt lgkmcnt(0)")
    a(f"s_cmp_lt_u32 s{S_WAVE}, 4")
    a("s_cbranch_scc1 k2_comp")
    p1_mini(a)
    make_srd(a, SRDC, P_WS, WS_CNT, 32768)
    a("s_branch k2_helper")
    a.label("k2_comp")
    if CPF:
        code_touch(a, t[0], TDUM, 0)
    make_srd(a, SRDC, P_WS, WS_CNT, 32768)
    make_srd(a, SRD1, P_WS, WS_KV, KV_SZ)
    def init():
        a(f"s_mul_i32 s{S_T1}, s{S_WAVE}, 40")
        a(f"s_add_u32 s{S_T2}, s{S_T1}, {QST}")
        a(f"v_mul_u32_u24 v{t[1]}, 160, v{v_n}")
        a(f"v_add_u32 v{v_ob}, s{S_T2}, v{t[1]}")
        a(f"v_lshl_add_u32 v{v_qa}, v{v_h}, 4, v{v_ob}")
        a(f"v_lshl_add_u32 v{t[2]}, v{v_h}, 3, s{S_T1}")
        a(f"v_lshrrev_b32 v{t[3]}, 4, v{t[2]}")
        a(f"v_and_b32 v{t[2]}, 8, v{t[2]}")
        a(f"v_lshl_add_u32 v{t[2]}, v{t[3]}, 8, v{t[2]}")
        a(f"v_and_b32 v{t[3]}, 15, v{v_n}")
        a(f"v_lshl_add_u32 v{t[2]}, v{t[3]}, 4, v{t[2]}")
        a(f"v_lshrrev_b32 v{t[3]}, 4, v{v_n}")
        a(f"v_mul_u32_u24 v{t[3]}, 2560, v{t[3]}")
        a(f"v_add_u32 v{v_oa}, v{t[2]}, v{t[3]}")
        for b in range(2):
            for i in range(16):
                a(f"v_mov_b32 v{O[b]+i}, 0")
            for i in range(8):
                a(f"v_mov_b32 v{VF[b]+i}, 0x3f803f80")
        a(f"s_mov_b32 s{S_VM}, 0x000fffff")
        a(f"s_mov_b32 s{S_VM+1}, 0x000fffff")
        a(f"v_mov_b32 v{v_cur[0]}, v{v_l16}")
        a(f"v_lshlrev_b32 v{v_cur[1]}, 3, v{v_n}")
        a(f"v_add_u32 v{v_cur[1]}, 1024, v{v_cur[1]}")
        a(f"v_mul_u32_u24 v{t[0]}, 320, v{v_h}")
        a(f"v_lshl_add_u32 v{v_cur[2]}, v{v_n}, 4, v{t[0]}")
        a(f"v_add_u32 v{v_cur[2]}, 1280, v{v_cur[2]}")
        for i in range(3):
            a(f"v_add_u32 v{v_nxt[i]}, {8*TB}, v{v_cur[i]}")
    assert VF[1] + 8 - O[0] == 48
    make_srd(a, SRD4, P_WS, WS_O, S * D * 2)
    make_srd(a, SRD2, P_X, 0, S * D * 2)
    for r in v_nxt + v_cur:
        a(f"v_mov_b32 v{r}, 0")
    gq = p1_compute(a, t, v_late, O[0], init)
    for b in range(2):
        a(f"v_mov_b32 v{KF[b]+6}, 0x3f80")
        a(f"v_mov_b32 v{KF[b]+7}, 0")
        a(f"v_mov_b32 v{Q[b]+7}, 0")
    for i in range(8):
        a(f"v_mov_b32 v{P[1]+i}, 0")
    for i in range(12, 16):
        a(f"v_mov_b32 v{Sb[1][1]+i}, 0")
    a(f"v_cmp_eq_u32 vcc, 0, v{v_h}")
    a(f"v_mov_b32 v{t[0]}, {KMX}")
    a("s_waitcnt lgkmcnt(0)")
    stamp(a, 8, True)
    a("s_barrier")
    stamp(a, 9, True)
    a(f"ds_read_b32 v{v_kn}, v{t[0]}")
    for b in range(2):
        a(f"ds_read_b64 {vr(Q[b],2)}, v{v_qa} offset:{b*5120}")
        a(f"ds_read_b64 {vr(Q[b]+2,2)}, v{v_qa} offset:{b*5120+8}")
        a(f"ds_read_b64 {vr(Q[b]+4,2)}, v{v_ob} offset:{b*5120+32}")
    for l in kread(KF[0], v_cur, 0) + kread(KF[1], v_cur, 1) + vread(VF[0], v_cur, 0):
        a(l)
    a("s_waitcnt lgkmcnt(6)")
    a(f"v_readfirstlane_b32 s{S_KM}, v{v_kn}")
    for b in range(2):
        a(f"v_cndmask_b32 v{Q[b]+4}, 0, v{Q[b]+4}, vcc")
        a(f"v_cndmask_b32 v{Q[b]+5}, 0, v{Q[b]+5}, vcc")
    for i in range(6):
        for b in range(2):
            a(f"v_dot2_f32_bf16 v{t[2+b]}, v{Q[b]+i}, v{Q[b]+i}, " + ("0" if i == 0 else f"v{t[2+b]}"))
    a("s_nop 2")
    for b in range(2):
        a(f"v_mov_b32 v{t[b]}, v{t[2+b]}")
    a("s_nop 1")
    for b in range(2):
        a(f"v_permlane32_swap_b32 v{t[b]}, v{t[2+b]}")
    a("s_nop 1")
    for b in range(2):
        a(f"v_add_f32 v{t[b]}, v{t[b]}, v{t[2+b]}")
    for b in range(2):
        a(f"v_mul_f32 v{t[b]}, s{S_KM}, v{t[b]}")
    for b in range(2):
        a(f"v_sqrt_f32 v{t[b]}, v{t[b]}")
    a("s_nop 0")
    for b in range(2):
        a(f"v_cvt_pk_bf16_f32 v{t[b]}, -v{t[b]}, 0")
    for b in range(2):
        a(f"v_cndmask_b32 v{Q[b]+6}, 0, v{t[b]}, vcc")
    a("s_waitcnt lgkmcnt(0)")

    def qk(b, par, s, kf):
        d = vr(Sb[b][par], 16)
        c = "0" if s == 0 else d
        return f"v_mfma_f32_32x32x16_bf16 {d}, {vr(kf+4*s,4)}, {vr(Q[b]+4*s,4)}, {c}"

    def pv(b, s, vf):
        d = vr(O[b], 16)
        return f"v_mfma_f32_32x32x16_bf16 {d}, {vr(vf+4*s,4)}, {vr(P[b]+4*s,4)}, {d}"

    for b in range(2):
        a(qk(b, 0, 0, KF[0]))
        a(qk(b, 0, 1, KF[0]))
    a("s_nop 7")
    a("s_nop 7")
    a(f"s_mov_b32 s{S_CNT}, 8")
    stamp(a, 2)
    rstamp(a, 10)
    a.label("k2_loop")

    def exps(b, par, i0):
        return [f"v_exp_f32 v{Sb[b][par]+i}, v{Sb[b][par]+i}" for i in range(i0, i0 + 4)]

    def cvts(b, par, i0):
        return [f"v_cvt_pk_bf16_f32 v{P[b]+(i0+i)//2}, v{Sb[b][par]+i0+i}, v{Sb[b][par]+i0+i+1}" for i in (0, 2)]

    for ph in range(8):
        p = ph & 1
        q = p ^ 1
        kt, vt = ph + 2, ph + 1
        kr = kread(KF[p], v_cur if kt < 8 else v_nxt, kt % 8)
        vrd = vread(VF[q], v_cur if vt < 8 else v_nxt, vt % 8)
        M = [qk(0, q, 0, KF[q]), pv(1, 1, VF[q]), qk(0, q, 1, KF[q]), pv(0, 0, VF[p]),
             qk(1, q, 0, KF[q]), pv(0, 1, VF[p]), qk(1, q, 1, KF[q]), pv(1, 0, VF[p])]
        V = [cvts(1, q, 12) + exps(0, p, 0),
             exps(0, p, 4),
             cvts(0, p, 0) + cvts(0, p, 4) + exps(0, p, 8),
             cvts(0, p, 8) + exps(0, p, 12),
             cvts(0, p, 12) + exps(1, p, 0),
             exps(1, p, 4),
             cvts(1, p, 0) + cvts(1, p, 4) + exps(1, p, 8),
             cvts(1, p, 8) + exps(1, p, 12)]
        extra = [[] for _ in range(8)]
        if ph == 2:
            a(f"s_bitcmp1_b32 0x140, s{S_CNT}")
            a("s_cbranch_scc1 k2_sy")
            a.label("k2_nb1")
        a("s_waitcnt lgkmcnt(0)")
        extra[0] += kr
        extra[2] += vrd
        for i in range(8):
            a(M[i])
            for l in extra[i]:
                a(l)
            for l in V[i]:
                a(l)
    if INSTR:
        a("s_memtime s[98:99]")
        a("s_waitcnt lgkmcnt(0)")
        a("s_sub_u32 s98, s98, s80")
        a(f"s_mov_b32 m0, s{S_CNT}")
        a("s_nop 0")
        a(f"v_writelane_b32 v{v_cst}, s98, m0")
    a(f"s_cmp_eq_u32 s{S_CNT}, 2")
    a(f"s_cselect_b32 s{S_STEP}, 0, {8*TB}")
    for i in range(3):
        a(f"v_mov_b32 v{v_cur[i]}, v{v_nxt[i]}")
        a(f"v_add_u32 v{v_nxt[i]}, s{S_STEP}, v{v_nxt[i]}")
    a("s_cbranch_scc0 k2_nb")
    a("s_mov_b64 exec, 1")
    a(f"ds_add_u32 v{v_l16}, v{KF[0]+6}")
    a("s_mov_b64 exec, -1")
    a.label("k2_nb")
    a(f"s_sub_u32 s{S_CNT}, s{S_CNT}, 1")
    a(f"s_cmp_lg_u32 s{S_CNT}, 0")
    a("s_cbranch_scc1 k2_loop")
    for l in cvts(1, 1, 12):
        a(l)
    a("s_nop 1")
    a(pv(1, 1, VF[1]))
    a("s_waitcnt vmcnt(0) lgkmcnt(0)")
    a("s_nop 7")
    a("s_nop 7")
    stamp(a, 3)
    rstamp(a, 0)
    a(f"v_mov_b32 v{t[0]}, {f32(2.0**-40)}")
    a(f"v_cmp_nge_f32 s[74:75], v{O[0]+12}, v{t[0]}")
    a(f"v_cmp_nge_f32 vcc, v{O[1]+12}, v{t[0]}")
    a("s_nop 3")
    a("s_or_b64 vcc, vcc, s[74:75]")
    a("s_cbranch_vccnz k2_slow")
    a.label("k2_epi")
    for b in range(2):
        a(f"v_rcp_f32 v{t[0]}, v{O[b]+12}")
        a("s_nop 0")
        for i in range(12):
            a(f"v_mul_f32 v{O[b]+i}, v{O[b]+i}, v{t[0]}")
        for i in range(6):
            a(f"v_cvt_pk_bf16_f32 v{O[b]+i}, v{O[b]+2*i}, v{O[b]+2*i+1}")
    a(f"v_mov_b32 v{t[0]}, {TAB + 3072}")
    for i in range(4):
        a(f"v_mov_b32 v{P[0]+i}, 0")
    a(f"s_mul_i32 s{S_T1}, s{S_WAVE}, 2560")
    a(f"v_add_u32 v{t[1]}, s{S_T1}, v{v_l16}")
    a(f"s_lshr_b32 s{S_KW}, s{S_TOK0}, 4")
    a(f"s_add_u32 s{S_KW}, s{S_KW}, s{S_WAVE}")
    a(f"s_mul_i32 s{S_KW}, s{S_KW}, {16*D*2}")
    a(f"s_lshl_b32 s{S_T1}, s{S_COL}, 4")
    a(f"s_add_u32 s{S_KW}, s{S_KW}, s{S_T1}")
    a("s_barrier")
    a(f"ds_write_b128 v{t[0]}, {vr(P[0],4)}")
    for b in range(2):
        a(f"ds_write_b64 v{v_oa}, {vr(O[b],2)} offset:{b*5120}")
        a(f"ds_write_b64 v{v_oa}, {vr(O[b]+2,2)} offset:{b*5120+256}")
    a("s_mov_b64 exec, 0xffffffff")
    for b in range(2):
        a(f"ds_write_b64 v{v_oa}, {vr(O[b]+4,2)} offset:{b*5120+512}")
    a("s_mov_b64 exec, -1")
    a("s_waitcnt lgkmcnt(0)")
    a("s_barrier")
    for i in range(3):
        a(f"ds_read_b128 {vr(O[0]+4*i,4)}, v{t[1]} offset:{i*1024}")
    for i in range(3):
        a(f"s_waitcnt lgkmcnt({2-i})")
        if i == 2:
            a("s_mov_b64 exec, 0xffffffff")
        a(f"buffer_store_dwordx4 {vr(O[0]+4*i,4)}, v{v_l16}, {sr(SRD4,4)}, s{S_KW} offen offset:{i*1024} {HPOL}")
    def otouch():
        a(f"v_lshlrev_b32 v{t[3]}, 3, v{v_l16}")
        a("s_mov_b64 exec, 0xfffff")
        a(f"buffer_load_dword v{TDUM}, v{t[3]}, {sr(SRD4,4)}, s{S_KW} offen")
    publish(a, t, 2, otouch)
    if INSTR and not P1ST:
        lab = a.newlabel("hs")
        a(f"s_cmp_lg_u32 s2, {INSTR_WG}")
        a(f"s_cbranch_scc1 {lab}")
        a(f"s_cmp_lg_u32 s{S_WAVE}, 0")
        a(f"s_cbranch_scc1 {lab}")
        make_srd(a, 92, P_DBG, 0, 256)
        a(f"v_lshlrev_b32 v{t[0]}, 2, v{v_lane}")
        a(f"buffer_store_dword v{v_cst}, v{t[0]}, s[92:95], 0 offen offset:192")
        a.label(lab)
    ffn = ffn_compute(a)
    a.label("k2_end")
    a("s_endpgm")

    a.label("k2_sy")
    a(f"s_cmp_eq_u32 s{S_CNT}, 6")
    a("s_cbranch_scc1 k2_sy2")
    a("s_barrier")
    a("s_branch k2_nb1")
    a.label("k2_sy2")
    assert t[1] % 2 == 0
    kv_wait(a, v_l16, t[1], 0)
    for fb in range(5):
        a(f"buffer_load_dwordx2 {vr(RES3+2*fb,2)}, v{V_RAD}, {sr(SRD2,4)}, 0 offen offset:{fb*32}")
    a("s_branch k2_nb1")

    def rewind():
        for i in range(3):
            a(f"v_subrev_u32 v{v_nxt[i]}, {56*TB}, v{v_cur[i]}")
        a(f"s_mov_b32 s{S_GOFF}, 0")

    def advance(lab):
        a(f"s_add_u32 s{S_GOFF}, s{S_GOFF}, {TB}")
        a(f"s_cmp_lt_u32 s{S_GOFF}, {64*TB}")
        a(f"s_cbranch_scc1 {lab}")

    def gkread(dst):
        return [f"buffer_load_dwordx4 {vr(dst,4)}, v{v_nxt[0]}, {sr(SRD1,4)}, s{S_GOFF} offen",
                f"buffer_load_dwordx2 {vr(dst+4,2)}, v{v_nxt[1]}, {sr(SRD1,4)}, s{S_GOFF} offen"]

    def gvread(dst):
        return [f"s_mov_b64 exec, {sr(S_VM,2)}",
                f"buffer_load_dwordx4 {vr(dst,4)}, v{v_nxt[2]}, {sr(SRD1,4)}, s{S_GOFF} offen",
                f"buffer_load_dwordx4 {vr(dst+4,4)}, v{v_nxt[2]}, {sr(SRD1,4)}, s{S_GOFF} offen offset:640",
                "s_mov_b64 exec, -1"]

    a.label("k2_slow")
    for b in range(2):
        a(f"v_mov_b32 v{Q[b]+6}, 0")
        a(f"v_mov_b32 v{v_m[b]}, 0xff800000")
    rewind()
    a.label("k2_slow1")
    for l in gkread(KF[0]):
        a(l)
    a("s_waitcnt vmcnt(0)")
    for b in range(2):
        a(qk(b, 0, 0, KF[0]))
        a(qk(b, 0, 1, KF[0]))
    a("s_nop 7")
    a("s_nop 7")
    for b in range(2):
        for i in range(0, 16, 2):
            a(f"v_max3_f32 v{v_m[b]}, v{Sb[b][0]+i}, v{Sb[b][0]+i+1}, v{v_m[b]}")
    advance("k2_slow1")
    a(f"v_cmp_eq_u32 vcc, 0, v{v_h}")
    for b in range(2):
        xlane_add(a, v_m[b], v_lane, t[0], t[1], (32,), op="v_max_f32")
        a(f"v_cvt_pk_bf16_f32 v{t[2]}, -v{v_m[b]}, 0")
        a(f"v_cndmask_b32 v{Q[b]+6}, 0, v{t[2]}, vcc")
        for i in range(16):
            a(f"v_mov_b32 v{O[b]+i}, 0")
    rewind()
    a.label("k2_slow2")
    for l in gkread(KF[0]) + gvread(VF[0]):
        a(l)
    a("s_waitcnt vmcnt(0)")
    for b in range(2):
        a(qk(b, 0, 0, KF[0]))
        a(qk(b, 0, 1, KF[0]))
    a("s_nop 7")
    a("s_nop 7")
    for b in range(2):
        for i0 in range(0, 16, 4):
            for l in exps(b, 0, i0):
                a(l)
        a("s_nop 0")
        for i0 in range(0, 16, 4):
            for l in cvts(b, 0, i0):
                a(l)
    a("s_nop 1")
    for b in range(2):
        a(pv(b, 0, VF[0]))
        a(pv(b, 1, VF[0]))
    a("s_nop 7")
    a("s_nop 7")
    advance("k2_slow2")
    a("s_branch k2_epi")

    a.label("k2_helper")
    hva = VAlloc(v_h + 1)
    lt = t
    v_l = v_lane
    S_U, S_SRC, S_DST, S_RW = S_T0, S_T1, S_KW, S_ROT
    S_G = S_IMG
    cnt = [0]

    def dma(n, srd, first=False):
        if first:
            cnt[0] = 0
            a(f"s_mov_b32 s{S_KX}, s{S_WOFF}")
            a(f"s_and_b32 s{S_G}, s{S_J}, {KVROT}")
            a(f"s_mul_i32 s{S_G}, s{S_G}, 20480")
            a(f"s_add_u32 s{S_G}, s{S_G}, s{S_WOFF}")
        for i in range(n):
            a(f"s_mov_b32 m0, s{S_KX}")
            a(f"s_add_u32 s{S_KX}, s{S_KX}, 4096")
            a(f"buffer_load_dwordx4 v{v_l16}, {sr(srd,4)}, s{S_G} offen lds")
            a(f"s_add_u32 s{S_G}, s{S_G}, 4096")
            cnt[0] += 1
            if cnt[0] % 5 == 0:
                a(f"s_cmp_ge_u32 s{S_G}, {KV_SZ}")
                a(f"s_cselect_b32 s{S_T2}, {KV_SZ}, 0")
                a(f"s_sub_u32 s{S_G}, s{S_G}, s{S_T2}")
    pva = VAlloc(132)
    sel = pva(4, 4)
    pa = [pva() for _ in range(5)]
    pb = [pva() for _ in range(3)]
    v_rb, v_kf, v_km, v_ca, v_co = [pva() for _ in range(5)]

    def gather(regs, cprw, magic, stride):
        for i, r in enumerate(regs):
            a(f"v_add_u32 v{lt[0]}, {i*64}, v{v_l}")
            a(f"v_mul_u32_u24 v{lt[1]}, {magic}, v{lt[0]}")
            a(f"v_lshrrev_b32 v{lt[1]}, 19, v{lt[1]}")
            a(f"v_mul_u32_u24 v{lt[2]}, {cprw}, v{lt[1]}")
            a(f"v_sub_u32 v{lt[2]}, v{lt[0]}, v{lt[2]}")
            a(f"v_and_b32 v{lt[3]}, 0xfffffff3, v{lt[1]}")
            a(f"v_bfe_u32 v{lt[4]}, v{lt[1]}, 2, 1")
            if cprw == 12:
                a(f"v_lshlrev_b32 v{lt[5]}, 1, v{lt[4]}")
                a(f"v_xor_b32 v{lt[2]}, v{lt[2]}, v{lt[5]}")
            a(f"v_lshl_or_b32 v{lt[3]}, v{lt[4]}, 3, v{lt[3]}")
            a(f"v_bfe_u32 v{lt[4]}, v{lt[1]}, 3, 1")
            a(f"v_lshl_or_b32 v{lt[3]}, v{lt[4]}, 2, v{lt[3]}")
            a(f"v_mul_u32_u24 v{lt[3]}, {stride}, v{lt[3]}")
            a(f"v_lshl_add_u32 v{r}, v{lt[2]}, 4, v{lt[3]}")

    def early():
        gather(pb, 12, 43691, F * 2)
        gather(pa, 10, 52429, D * 2)
        a(f"v_lshlrev_b32 v{v_rb}, 7, v{v_l}")
        a(f"s_lshl_b32 s{S_T2}, s{S_WAVE}, 2")
        a(f"v_mov_b32 v{v_kf}, s{S_T2}")
        a(f"v_mov_b32 v{v_km}, -1")
        a(f"v_lshrrev_b32 v{lt[0]}, 3, v{v_l}")
        a(f"v_mul_u32_u24 v{lt[0]}, {F*2}, v{lt[0]}")
        a(f"v_and_b32 v{lt[1]}, 7, v{v_l}")
        a(f"v_lshl_add_u32 v{v_ca}, v{lt[1]}, 4, v{lt[0]}")
        a(f"v_and_b32 v{lt[0]}, 16, v{v_l}")
        a(f"v_lshl_add_u32 v{v_co}, v{lt[1]}, 5, v{lt[0]}")
        a(f"v_and_b32 v{lt[0]}, 1, v{v_l}")
        a(f"v_lshlrev_b32 v{lt[0]}, 4, v{lt[0]}")
        a(f"v_mov_b32 v{lt[1]}, 0x3f80")
        a(f"v_lshlrev_b32 v{lt[0]}, v{lt[0]}, v{lt[1]}")
        a(f"v_bfe_u32 v{lt[1]}, v{v_l}, 1, 3")
        for i in range(4):
            a(f"v_cmp_eq_u32 vcc, {i}, v{lt[1]}")
            a(f"v_cndmask_b32 v{sel+i}, 0, v{lt[0]}, vcc")
    p1_loader(a, gq, v_l, dma, early)
    a(f"s_and_b32 s{S_WOFF}, s{S_WAVE}, 3")
    a(f"s_lshl_b32 s{S_RW}, s2, 2")
    a(f"s_add_u32 s{S_RW}, s{S_RW}, s{S_WOFF}")
    a(f"s_lshl_b32 s{S_T2}, s{S_J}, 2")
    a(f"s_add_u32 s{S_J}, s{S_T2}, s{S_WOFF}")
    make_srd(a, SRD3, P_WS, WS_IMG, IMG_SZ)
    a("s_waitcnt vmcnt(10) lgkmcnt(0)")
    a("s_barrier")
    a("s_waitcnt vmcnt(0)")
    a("s_barrier")
    gq.lstamp(14)
    if PRET & 1:
        lab = a.newlabel("pt")
        a(f"s_cmp_lg_u32 s{S_WOFF}, 0")
        a(f"s_cbranch_scc1 {lab}")
        cnt_touch(a)
        a.label(lab)
    dma(27, SRD2)
    gq.lstamp(15)
    lab = a.newlabel("fc")
    a(f"s_cmp_lg_u32 s{S_RW}, 0")
    a(f"s_cbranch_scc1 {lab}")
    make_srd(a, SRD5, P_DBG, 0, 256)
    a("s_mov_b64 exec, 1")
    a(f"v_mov_b32 v{lt[0]}, 0")
    a(f"buffer_store_dword v{lt[0]}, v{lt[0]}, {sr(SRD5,4)}, 0 offen offset:{FLAG} sc1")
    a("s_mov_b64 exec, -1")
    a.label(lab)
    lab = a.newlabel("zw")
    a(f"s_cmp_lg_u32 s{S_WAVE}, 4")
    a(f"s_cbranch_scc1 {lab}")
    a(f"v_mov_b32 v{lt[0]}, 0")
    a(f"ds_write2_b32 v{lt[0]}, v{lt[0]}, v{lt[0]} offset0:0 offset1:1")
    a.label(lab)

    def kvdone(n):
        a(f"s_waitcnt vmcnt({n})")
        a(f"ds_write_b32 v{v_kf}, v{v_km}")
        gq.lstamp(16)
        if INSTR:
            a("s_waitcnt vmcnt(0)")
            gq.lstamp(17)
    dummy = hva()

    def touch():
        for c in range(3):
            if c == 0:
                a(f"s_mul_i32 s{S_T1}, s{S_J}, {50*128}")
            else:
                a(f"s_mul_i32 s{S_T1}, s{S_J}, {120*128}")
                a(f"s_and_b32 s{S_T0}, s{S_XB}, 1")
                a(f"s_mul_i32 s{S_T0}, s{S_T0}, {1966080}")
                a(f"s_add_u32 s{S_T1}, s{S_T1}, s{S_T0}")
                a(f"s_add_u32 s{S_T1}, s{S_T1}, {IMG_GU + (c-1)*56*128}")
            a(f"buffer_load_dword v{dummy}, v{v_rb}, {sr(SRD3,4)}, s{S_T1} offen")
            if c < 2:
                a(f"s_sleep {TSLEEP2}")

    bufB = [hva(12, 4) for _ in range(2)]
    bufA = hva(20, 4)

    def loadsB(buf):
        a(f"s_mul_i32 s{S_SRC}, s{S_U}, 52429")
        a(f"s_lshr_b32 s{S_SRC}, s{S_SRC}, 22")
        a(f"s_mul_i32 s{S_DST}, s{S_SRC}, 80")
        a(f"s_sub_u32 s{S_T2}, s{S_U}, s{S_DST}")
        a(f"s_mul_i32 s{S_SRC}, s{S_SRC}, 192")
        a(f"s_lshr_b32 s{S_DST}, s{S_T2}, 3")
        a(f"s_lshl_b32 s{S_DST}, s{S_DST}, 2")
        a(f"s_and_b32 s{S_KX}, s{S_T2}, 3")
        a(f"s_add_u32 s{S_DST}, s{S_DST}, s{S_KX}")
        a(f"s_mul_i32 s{S_DST}, s{S_DST}, {16*F*2}")
        a(f"s_add_u32 s{S_SRC}, s{S_SRC}, s{S_DST}")
        a(f"s_bitcmp1_b32 s{S_T2}, 2")
        a(f"s_cselect_b32 s{SRD0}, s{P_WU}, s{P_WG}")
        a(f"s_cselect_b32 s{SRD0+1}, s{P_WU+1}, s{P_WG+1}")
        a(f"s_mov_b32 s{SRD0+2}, {F*D*2}")
        for i in range(3):
            a(f"buffer_load_dwordx4 {vr(buf+4*i,4)}, v{pb[i]}, {sr(SRD0,4)}, s{S_SRC} offen")

    def storesB(buf):
        a(f"s_mul_i32 s{S_DST}, s{S_U}, 3072")
        a(f"s_add_u32 s{S_DST}, s{S_DST}, {IMG_GU}")
        for i in range(3):
            a(f"buffer_store_dwordx4 {vr(buf+4*i,4)}, v{v_l16}, {sr(SRD3,4)}, s{S_DST} offen offset:{i*1024} {IMGPOL}")

    a(f"s_mov_b32 s{S_U}, s{S_RW}")
    loadsB(bufB[0])
    a(f"s_cmp_lt_u32 s{S_RW}, 544")
    a("s_cbranch_scc1 k2_rpa")
    a(f"s_add_u32 s{S_U}, s{S_RW}, {1024 - 544}")
    a(f"s_cmp_ge_u32 s{S_U}, 1280")
    a("s_cbranch_scc1 k2_rpe")
    loadsB(bufB[1])
    kvdone(6)
    a("s_waitcnt vmcnt(0)")
    storesB(bufB[1])
    a("s_branch k2_rpf")
    a.label("k2_rpa")
    l1, l2 = a.newlabel("ra"), a.newlabel("ra")
    a(f"s_cmp_ge_u32 s{S_RW}, 160")
    a(f"s_cbranch_scc1 {l1}")
    a(f"s_mul_i32 s{S_SRC}, s{S_RW}, 3277")
    a(f"s_lshr_b32 s{S_SRC}, s{S_SRC}, 16")
    a(f"s_mul_i32 s{S_DST}, s{S_SRC}, 20")
    a(f"s_sub_u32 s{S_DST}, s{S_RW}, s{S_DST}")
    a(f"s_mov_b32 s{SRD0}, s{P_WO}")
    a(f"s_mov_b32 s{SRD0+1}, s{P_WO+1}")
    a(f"s_mov_b32 s{SRD0+2}, {D*D*2}")
    a(f"s_branch {l2}")
    a.label(l1)
    a(f"s_sub_u32 s{S_U}, s{S_RW}, 160")
    a(f"s_mul_i32 s{S_SRC}, s{S_U}, 1366")
    a(f"s_lshr_b32 s{S_SRC}, s{S_SRC}, 16")
    a(f"s_mul_i32 s{S_DST}, s{S_SRC}, 48")
    a(f"s_sub_u32 s{S_DST}, s{S_U}, s{S_DST}")
    a(f"s_mov_b32 s{SRD0}, s{P_WD}")
    a(f"s_mov_b32 s{SRD0+1}, s{P_WD+1}")
    a(f"s_mov_b32 s{SRD0+2}, {F*D*2}")
    a.label(l2)
    a(f"s_mul_i32 s{S_SRC}, s{S_SRC}, 160")
    a(f"s_mul_i32 s{S_DST}, s{S_DST}, {32*D*2}")
    a(f"s_add_u32 s{S_SRC}, s{S_SRC}, s{S_DST}")
    for i in range(5):
        a(f"buffer_load_dwordx4 {vr(bufA+4*i,4)}, v{pa[i]}, {sr(SRD0,4)}, s{S_SRC} offen")
    a(f"s_mul_i32 s{S_DST}, s{S_RW}, 5120")
    kvdone(8)
    a("s_waitcnt vmcnt(0)")
    for i in range(5):
        if i == 4:
            a(f"s_add_u32 s{S_DST}, s{S_DST}, 4096")
        a(f"buffer_store_dwordx4 {vr(bufA+4*i,4)}, v{v_l16}, {sr(SRD3,4)}, s{S_DST} offen offset:{(i%4)*1024} {IMGPOL}")
    a("s_branch k2_rpf")
    a.label("k2_rpe")
    kvdone(3)
    a("s_waitcnt vmcnt(0)")
    a.label("k2_rpf")
    a(f"s_mov_b32 s{S_U}, s{S_RW}")
    storesB(bufB[0])
    if INSTR:
        a("s_waitcnt vmcnt(0)")
        a("s_memrealtime s[100:101]")
        a("s_waitcnt lgkmcnt(0)")
        lab = a.newlabel("hw")
        a(f"s_cmp_lg_u32 s{S_WAVE}, 4")
        a(f"s_cbranch_scc1 {lab}")
        make_srd(a, 40, P_WS, WS_TL + 4096 + 2048, 2048)
        a("v_mov_b32 v2, s82")
        a("v_mov_b32 v3, s100")
        a("s_lshl_b32 s98, s2, 3")
        a("v_mov_b32 v1, s98")
        a("buffer_store_dwordx2 v[2:3], v1, s[40:43], 0 offen")
        a.label(lab)
    def arrive2(s_sh, n, root, out):
        a(f"v_mov_b32 v{lt[2]}, 1")
        a("s_waitcnt vmcnt(0)")
        a(f"buffer_atomic_add v{lt[2]}, v{lt[0]}, {sr(SRDC,4)}, s{s_sh} offen sc0 sc1")
        a("s_waitcnt vmcnt(0)")
        a(f"v_readfirstlane_b32 s{S_T2}, v{lt[2]}")
        a(f"v_mov_b32 v{lt[2]}, 1")
        a(f"s_mov_b32 s{s_sh}, {root}")
        a("s_nop 2")
        a(f"s_cmp_lg_u32 s{S_T2}, {n-1}")
        a(f"s_cbranch_scc1 {out}")
        a(f"buffer_atomic_add v{lt[2]}, v{lt[0]}, {sr(SRDC,4)}, s{s_sh} offen sc0 sc1")
        a("s_waitcnt vmcnt(0)")
        a(f"v_readfirstlane_b32 s{S_T2}, v{lt[2]}")
        a("s_nop 3")
        a(f"s_cmp_lg_u32 s{S_T2}, 15")
        a(f"s_cbranch_scc1 {out}")
        a("s_mov_b64 exec, 0xff")
        a(f"v_lshlrev_b32 v{lt[3]}, 8, v{v_l}")
        a(f"v_mov_b32 v{lt[2]}, 1")
        a(f"buffer_store_dword v{lt[2]}, v{lt[3]}, {sr(SRDC,4)}, s{s_sh} offen offset:2048 sc1")

    def gpoll(off, add):
        l0, l1, l2 = [a.newlabel("gp") for _ in range(3)]
        a("s_mov_b64 exec, 1")
        a(f"v_mov_b32 v{lt[0]}, 0")
        a(f"s_cmp_lg_u32 s{S_HOOK}, 3")
        a(f"s_cbranch_scc1 {l2}")
        a(f"s_lshl_b32 s{S_T0}, s{S_XB}, 8")
        a(f"s_add_u32 s{S_T0}, s{S_T0}, {off}")
        a(f"s_mov_b32 s{S_KX}, 0x8000")
        a.label(l0)
        a(f"buffer_load_dword v{lt[2]}, v{lt[0]}, {sr(SRDC,4)}, s{S_T0} offen sc1")
        a(f"s_sub_u32 s{S_KX}, s{S_KX}, 1")
        a("s_waitcnt vmcnt(0)")
        a(f"v_readfirstlane_b32 s{S_T2}, v{lt[2]}")
        a(f"s_cmp_eq_u32 s{S_KX}, 0")
        a(f"s_cbranch_scc1 {l1}")
        a("s_nop 1")
        a(f"s_cmp_lg_u32 s{S_T2}, 0")
        a(f"s_cbranch_scc1 {l1}")
        a(f"s_sleep {TSLEEP[0]}")
        a(f"s_branch {l0}")
        a.label(l1)
        a(f"v_mov_b32 v{lt[1]}, {add}")
        a(f"ds_add_u32 v{lt[0]}, v{lt[1]}")
        a.label(l2)

    kq = hva(4, 4)
    a("s_mov_b64 exec, 1")
    a(f"v_mov_b32 v{lt[0]}, 0")
    a(f"v_mov_b32 v{lt[1]}, 1")
    a(f"s_and_b32 s{S_T1}, s2, 15")
    a(f"s_lshl_b32 s{S_T1}, s{S_T1}, 8")
    a(f"s_add_u32 s{S_T1}, s{S_T1}, {112*256}")
    gq.lstamp(18)
    kv_wait(a, lt[0], kq, 1)
    a("s_waitcnt vmcnt(0)")
    gq.lstamp(19)
    a(f"ds_add_rtn_u32 v{lt[2]}, v{lt[0]}, v{lt[1]} offset:4")
    a("s_waitcnt lgkmcnt(0)")
    a(f"v_readfirstlane_b32 s{S_HOOK}, v{lt[2]}")
    a("s_nop 3")
    a(f"s_cmp_lg_u32 s{S_HOOK}, 3")
    a("s_cbranch_scc1 k2_lw")
    arrive2(S_T1, 16, CNT_IMG*256, "k2_lw")
    a.label("k2_lw")
    a("s_mov_b64 exec, -1")
    csb = hva(40, 4)
    cacc = hva(4, 4)
    assert hva.n <= 132
    a(f"s_cmp_lt_u32 s{S_RW}, {1024 - 48*NCS}")
    a("s_cbranch_scc1 k2_ncs")
    a(f"s_sub_u32 s{S_T2}, s{S_RW}, {1024 - 48*NCS}")
    a(f"s_mul_i32 s{S_U}, s{S_T2}, 1366")
    a(f"s_lshr_b32 s{S_U}, s{S_U}, 16")
    a(f"s_mul_i32 s{S_SRC}, s{S_U}, 48")
    a(f"s_sub_u32 s{S_SRC}, s{S_T2}, s{S_SRC}")
    a(f"s_cmp_lt_u32 s{S_SRC}, 24")
    a(f"s_cselect_b32 s{SRD0}, s{P_WG}, s{P_WU}")
    a(f"s_cselect_b32 s{SRD0+1}, s{P_WG+1}, s{P_WU+1}")
    a(f"s_mov_b32 s{SRD0+2}, {F*D*2}")
    a(f"s_cselect_b32 s{S_DST}, 0, 24")
    a(f"s_sub_u32 s{S_SRC}, s{S_SRC}, s{S_DST}")
    a(f"s_lshl_b32 s{S_SRC}, s{S_SRC}, 7")
    a(f"s_mul_i32 s{S_U}, s{S_U}, {80*F*2}")
    a(f"s_add_u32 s{S_SRC}, s{S_SRC}, s{S_U}")
    for i in range(10):
        a(f"buffer_load_dwordx4 {vr(csb+4*i,4)}, v{v_ca}, {sr(SRD0,4)}, s{S_SRC} offen")
        a(f"s_add_u32 s{S_SRC}, s{S_SRC}, {8*F*2}")
    make_srd(a, SRD4, P_WS, WS_CS, NCS * 3072 * 4)
    a(f"s_lshl_b32 s{S_T2}, s{S_T2}, 8")
    for i in range(10):
        a(f"s_waitcnt vmcnt({9-i})")
        a(f"v_mfma_f32_16x16x32_bf16 {vr(cacc,4)}, {vr(sel,4)}, {vr(csb+4*i,4)}, " + ("0" if i == 0 else vr(cacc, 4)))
    a("s_nop 7")
    a("s_nop 7")
    for j in range(4):
        a(f"v_add_f32_dpp v{cacc+j}, v{cacc+j}, v{cacc+j} row_ror:8 row_mask:0xf bank_mask:0xf")
    a(f"s_mov_b64 exec, 0x00ff00ff")
    a(f"buffer_store_dwordx4 {vr(cacc,4)}, v{v_co}, {sr(SRD4,4)}, s{S_T2} offen sc1")
    a("s_mov_b64 exec, 1")
    a(f"v_mov_b32 v{lt[0]}, 0")
    a(f"s_and_b32 s{S_T1}, s{S_RW}, 15")
    a(f"s_lshl_b32 s{S_T1}, s{S_T1}, 8")
    a(f"s_add_u32 s{S_T1}, s{S_T1}, {96*256 + 4}")
    arrive2(S_T1, 3*NCS, CNT_KV*256 + 4, "k2_ncs")
    a.label("k2_ncs")
    gpoll((CNT_IMG+8)*256, 1)
    lds_wait(a, lt, 8, "s_bitcmp0_b32 s{}, 0")
    a("s_mov_b64 exec, -1")
    gq.lstamp(20)
    touch()
    gq.lstamp(21)
    if CPF > 1:
        code_touch(a, lt[0], dummy, 0)
    gpoll((CNT_KV+8)*256 + 4, 2)
    a("s_mov_b64 exec, -1")
    ffn.gq = gq
    ffn_loader(a, ffn)

    a.label("k2_code_end")
    kernel_end(a, name, max(va.n, hva.n, ffn.maxv, gq.maxv, V_RAD + 1))
    print('vgprs', va.n, hva.n, ffn.maxv, gq.maxv)
    return (name, 256, 512, KV_SZ)

TSLEEP = [int(x) for x in os.environ.get("TSLEEP", "16").split(",") if x]
TSLEEP2 = int(os.environ.get("TSLEEP2", "16"))
TEARLY = bool(os.environ.get("TEARLY"))


SRDC = 8
TDUM = 243
RES3, V_RAD = 244, 254
XCH = 0
TAB = 156 * 1024
HPOL = os.environ.get("HPOL", "sc1")
XPOL = os.environ.get("XPOL", "sc1")


def map_proj(a, which):
    a(f"s_and_b32 s{S_T1}, s2, 7")
    a(f"s_lshr_b32 s{S_T0}, s2, 3")
    a(f"s_mov_b32 s{S_J}, s{S_T0}")
    a(f"s_mov_b32 s{S_XB}, s{S_T1}")
    if which == 3:
        a(f"s_mul_i32 s{S_ROT}, s{S_T0}, 52")
        a(f"s_lshr_b32 s{S_ROT}, s{S_ROT}, 8")
        a(f"s_mul_i32 s{S_ROT}, s{S_ROT}, 5")
        a(f"s_sub_u32 s{S_ROT}, s{S_T0}, s{S_ROT}")
        a(f"s_lshr_b32 s{S_T2}, s{S_T0}, 3")
        a(f"s_lshl_b32 s{S_T1}, s{S_T1}, 2")
        a(f"s_add_u32 s{S_T1}, s{S_T1}, s{S_T2}")
        a(f"s_lshl_b32 s{S_TOK0}, s{S_T1}, 6")
        a(f"s_and_b32 s{S_T0}, s{S_T0}, 7")
    else:
        a(f"s_and_b32 s{S_ROT}, s{S_T1}, 1")
        a(f"s_mul_i32 s{S_ROT}, s{S_ROT}, 6")
        a(f"s_and_b32 s{S_T2}, s{S_T0}, 1")
        a(f"s_add_u32 s{S_ROT}, s{S_ROT}, s{S_T2}")
        a(f"s_lshr_b32 s{S_T2}, s{S_T1}, 1")
        a(f"s_lshl_b32 s{S_T2}, s{S_T2}, 3")
        a(f"s_and_b32 s{S_TOK0}, s{S_T0}, 7")
        a(f"s_add_u32 s{S_TOK0}, s{S_TOK0}, s{S_T2}")
        a(f"s_lshl_b32 s{S_TOK0}, s{S_TOK0}, 6")
        a(f"s_and_b32 s{S_T1}, s{S_T1}, 1")
        a(f"s_lshl_b32 s{S_T1}, s{S_T1}, 2")
        a(f"s_lshr_b32 s{S_T0}, s{S_T0}, 3")
        a(f"s_add_u32 s{S_T0}, s{S_T0}, s{S_T1}")
    a(f"s_mul_i32 s{S_COL}, s{S_T0}, 160")


def srd_proj(a, which):
    if which == 3:
        make_srd(a, SRD0, P_WS, WS_O, S * D * 2)
        make_srd(a, SRD1, P_WS, WS_IMG, IMG_SZ)
        a(f"s_mul_i32 s{S_IMG}, s{S_T0}, {5*20480}")
        make_srd(a, SRD2, P_WS, WS_H, S * D * 2)
        make_srd(a, SRD3, P_X, 0, S * D * 2)
        make_srd(a, SRD4, P_WS, WS_ST, S * 64)
    else:
        make_srd(a, SRD0, P_WS, WS_ACT, S * F * 2)
        make_srd(a, SRD1, P_WS, WS_IMG, IMG_SZ)
        a(f"s_mul_i32 s{S_IMG}, s{S_T0}, {12*20480}")
        make_srd(a, SRD2, P_OUT, 0, S * D * 2)
        make_srd(a, SRD3, P_WS, WS_H, S * D * 2)


def map_k4(a):
    a(f"s_and_b32 s{S_XB}, s2, 7")
    a(f"s_lshr_b32 s{S_J}, s2, 3")
    a(f"s_mul_i32 s{S_ROT}, s{S_J}, 26")
    a(f"s_lshr_b32 s{S_ROT}, s{S_ROT}, 8")
    a(f"s_mul_i32 s{S_ROT}, s{S_ROT}, 10")
    a(f"s_sub_u32 s{S_ROT}, s{S_J}, s{S_ROT}")
    a(f"s_lshr_b32 s{S_T2}, s{S_XB}, 1")
    a(f"s_lshl_b32 s{S_T2}, s{S_T2}, 2")
    a(f"s_and_b32 s{S_TOK0}, s{S_J}, 3")
    a(f"s_add_u32 s{S_TOK0}, s{S_TOK0}, s{S_T2}")
    a(f"s_lshl_b32 s{S_TOK0}, s{S_TOK0}, 7")
    a(f"s_lshr_b32 s{S_T2}, s{S_J}, 2")
    a(f"s_and_b32 s{S_T1}, s{S_XB}, 1")
    a(f"s_lshl_b32 s{S_T1}, s{S_T1}, 3")
    a(f"s_add_u32 s{S_T0}, s{S_T2}, s{S_T1}")
    a(f"s_mul_i32 s{S_COL}, s{S_T0}, 192")
    a(f"s_mul_i32 s{S_IMG}, s{S_T0}, {10*24576}")
    make_srd(a, SRD0, P_WS, WS_H, S * D * 2)
    make_srd(a, SRD1, P_WS, WS_IMG, IMG_SZ)
    make_srd(a, SRD3, P_WS, WS_ACT, S * F * 2)


CNT = {0: (0, 7, 16), 1: (16, 7, 16), 2: (32, 6, 8)}
CNT_IMG = 64


def kv_wait(a, v_zero, q, nap):
    lab = a.newlabel("kw")
    a.label(lab)
    if nap:
        a(f"s_sleep {nap}")
    a(f"ds_read_b128 {vr(q,4)}, v{v_zero} offset:16")
    a("s_waitcnt lgkmcnt(0)")
    a(f"v_and_b32 v{q}, v{q}, v{q+1}")
    a(f"v_and_b32 v{q+2}, v{q+2}, v{q+3}")
    a(f"v_and_b32 v{q}, v{q}, v{q+2}")
    a("s_nop 0")
    a(f"v_readfirstlane_b32 s{S_T2}, v{q}")
    a("s_nop 3")
    a(f"s_cmp_lg_u32 s{S_T2}, -1")
    a(f"s_cbranch_scc1 {lab}")


def lds_wait(a, t, nap, cond):
    lab = a.newlabel("lw")
    a.label(lab)
    a(f"s_sleep {nap}")
    a(f"ds_read_b32 v{t[2]}, v{t[0]}")
    a("s_waitcnt lgkmcnt(0)")
    a(f"v_readfirstlane_b32 s{S_T2}, v{t[2]}")
    a("s_nop 3")
    a(cond.format(S_T2))
    a(f"s_cbranch_scc1 {lab}")


PT = os.environ.get("PT", "9").split(",")


def cnt_touch(a):
    a(f"v_mbcnt_lo_u32_b32 v{TDUM-1}, -1, 0")
    a(f"v_mbcnt_hi_u32_b32 v{TDUM-1}, -1, v{TDUM-1}")
    a(f"v_lshlrev_b32 v{TDUM-1}, 8, v{TDUM-1}")
    a(f"buffer_load_dword v{TDUM}, v{TDUM-1}, {sr(SRDC,4)}, 0 offen offset:128")


def publish(a, t, ph, touch=None):
    lab = a.newlabel("pub")
    a("s_mov_b64 exec, 1")
    a(f"v_mov_b32 v{t[0]}, {TAB + 3072 + 4*ph}")
    a(f"v_mov_b32 v{t[1]}, 1")
    a(f"s_lshr_b32 s{S_T1}, s{S_TOK0}, {CNT[ph][1]}")
    a(f"s_lshl_b32 s{S_T1}, s{S_T1}, 8")
    a(f"s_add_u32 s{S_T1}, s{S_T1}, {CNT[ph][0]*256}")
    a("s_waitcnt vmcnt(0)")
    rstamp(a, {2: 1, 0: 4, 1: 7}[ph])
    a(f"ds_add_rtn_u32 v{t[2]}, v{t[0]}, v{t[1]}")
    a(f"v_mov_b32 v{t[0]}, 0")
    a("s_waitcnt lgkmcnt(0)")
    a(f"v_readfirstlane_b32 s{S_T2}, v{t[2]}")
    a("s_nop 3")
    a(f"s_cmp_lg_u32 s{S_T2}, 3")
    a(f"s_cbranch_scc1 {lab}")
    if LOC:
        a(f"buffer_atomic_add v{t[1]}, v{t[0]}, {sr(SRDC,4)}, s{S_T1} offen offset:128")
    a(f"buffer_atomic_add v{t[1]}, v{t[0]}, {sr(SRDC,4)}, s{S_T1} offen sc1")
    a.label(lab)
    a("s_mov_b64 exec, -1")
    if touch and str(ph) in PT:
        touch()
        a("s_mov_b64 exec, -1")


def await_block(a, t, ph):
    l0, l1 = a.newlabel("aw"), a.newlabel("aw")
    a(f"s_cmp_lg_u32 s{S_WAVE}, 0")
    a(f"s_cbranch_scc1 {l1}")
    a("s_mov_b64 exec, 1")
    a(f"v_mov_b32 v{t[0]}, 0")
    a(f"s_lshr_b32 s{S_T1}, s{S_TOK0}, {CNT[ph][1]}")
    a(f"s_lshl_b32 s{S_T1}, s{S_T1}, 8")
    a(f"s_add_u32 s{S_T1}, s{S_T1}, {CNT[ph][0]*256}")
    a(f"s_mov_b32 s{S_KX}, 0x20000")
    a.label(l0)
    if LOC:
        lb, lw = a.newlabel("aw"), a.newlabel("aw")
        a(f"s_and_b32 s{S_T2}, s{S_KX}, {LOC}")
        a(f"s_cmp_eq_u32 s{S_T2}, 1")
        a(f"s_cbranch_scc1 {lb}")
        a(f"v_mov_b32 v{t[1]}, 0")
        a(f"buffer_atomic_add v{t[1]}, v{t[0]}, {sr(SRDC,4)}, s{S_T1} offen offset:128 sc0")
        a(f"s_branch {lw}")
        a.label(lb)
    a(f"buffer_load_dword v{t[1]}, v{t[0]}, {sr(SRDC,4)}, s{S_T1} offen sc1")
    if LOC:
        a.label(lw)
    a(f"s_sub_u32 s{S_KX}, s{S_KX}, 1")
    a("s_waitcnt vmcnt(0)")
    a(f"v_readfirstlane_b32 s{S_T2}, v{t[1]}")
    a(f"s_cmp_eq_u32 s{S_KX}, 0")
    a(f"s_cselect_b32 s{S_KW}, {CNT[ph][2]}, 0")
    a(f"s_max_u32 s{S_T2}, s{S_T2}, s{S_KW}")
    a(f"s_cmp_lt_u32 s{S_T2}, {CNT[ph][2]}")
    a(f"s_cbranch_scc1 {l0}")
    a("s_mov_b64 exec, -1")
    if PRET & 2 and ph != 1:
        cnt_touch(a)
    a.label(l1)
    a("s_barrier")
    rstamp(a, {2: 2, 0: 5, 1: 8}[ph])


def proj_gemm(a, va, which):
    seg = Seg(SRD1, D * 2, 80, 'p160', S_COL, img=(S_IMG, 20480, IMG_WO if which == 3 else IMG_WD))
    K = D if which == 3 else F
    return Gemm(a, va, 64, 2, 2, 1, [seg], 128, 4, K, SRD0, K * 2, S_TOK0, sregs=GS, tag=f"k{which}", xcm=True,
                lds_base=0 if which == 3 else 8192)


def proj_compute(a, va, g, which, sb):
    g.setup()
    t = g.tmp
    v_ad, v_tok, v_a4, v_c8, v_c4 = va(), va(), va(), va(), va()
    res = va(10, 2)
    a(f"v_lshl_add_u32 v{v_tok}, v{g.v_wt}, 1, v{g.v_wo}")
    a(f"v_lshl_add_u32 v{v_tok}, v{v_tok}, 4, v{g.v_i16}")
    a(f"v_add_u32 v{v_tok}, s{S_TOK0}, v{v_tok}")
    a(f"v_mul_u32_u24 v{t[0]}, {D*2}, v{v_tok}")
    a(f"v_add_u32 v{t[0]}, s{S_COL}, v{t[0]}")
    a(f"v_lshl_add_u32 v{v_ad}, v{g.v_g}, 3, v{t[0]}")
    a(f"v_and_b32 v{t[1]}, 1, v{g.v_g}")
    a(f"v_lshl_add_u32 v{v_a4}, v{t[1]}, 5, v{t[0]}")
    a(f"v_lshrrev_b32 v{t[1]}, 1, v{g.v_g}")
    a(f"v_lshl_add_u32 v{v_a4}, v{t[1]}, 4, v{v_a4}")
    a(f"v_and_b32 v{t[0]}, 0xfff0, v{v_tok}")
    a(f"v_mul_u32_u24 v{t[0]}, {D*2}, v{t[0]}")
    a(f"v_lshl_add_u32 v{t[0]}, v{g.v_i16}, 4, v{t[0]}")
    a(f"s_lshl_b32 s{S_T1}, s{S_COL}, 4")
    a(f"v_add_u32 v{t[0]}, s{S_T1}, v{t[0]}")
    a(f"v_lshl_add_u32 v{t[0]}, v{t[1]}, 8, v{t[0]}")
    a(f"v_and_b32 v{t[1]}, 1, v{g.v_g}")
    a(f"v_lshl_add_u32 v{v_c8}, v{t[1]}, 3, v{t[0]}")
    a(f"v_lshl_add_u32 v{v_c4}, v{t[1]}, 9, v{t[0]}")
    if which == 3:
        res = RES3
    await_block(a, t, 1 if which == 5 else 2)
    for fb in range(5):
        if which == 5:
            a(f"buffer_load_dwordx2 {vr(res+2*fb,2)}, v{v_c8}, {sr(SRD3,4)}, 0 offen offset:{fb*512} {HPOL}")
    stamp(a, sb)
    g.mainloop()
    stamp(a, sb + 1)
    rstamp(a, 3 if which == 3 else 9)
    a("s_nop 7")
    a(f"v_mul_u32_u24 v{t[0]}, 5120, v{g.v_wave}")
    a(f"v_lshl_add_u32 v{t[0]}, v{g.v_lane}, 4, v{t[0]}")
    a(f"v_add_u32 v{t[0]}, {XCH}, v{t[0]}")
    a(f"v_xor_b32 v{t[1]}, 2, v{g.v_wave}")
    a(f"v_mul_u32_u24 v{t[1]}, 5120, v{t[1]}")
    a(f"v_lshl_add_u32 v{t[1]}, v{g.v_lane}, 4, v{t[1]}")
    a(f"v_add_u32 v{t[1]}, {XCH}, v{t[1]}")
    for fb in range(5):
        a(f"ds_write_b128 v{t[0]}, {vr(g.acc[1][fb],4)} offset:{fb*1024}")
    a("s_waitcnt lgkmcnt(0)")
    a("s_barrier")
    for fb in range(5):
        a(f"ds_read_b128 {vr(g.acc[1][fb],4)}, v{t[1]} offset:{fb*1024}")
    v_s = va(2, 2)
    v_q = v_s + 1
    v_s2, v_q2 = va(2, 2), va(2, 2)
    assert t[1] % 2 == 0
    if which == 3:
        for r in (v_s2, v_s2 + 1, v_q2, v_q2 + 1):
            a(f"v_mov_b32 v{r}, 0")
    pol = HPOL if which == 3 else ""
    for fb in range(5):
        a(f"s_waitcnt lgkmcnt({4-fb})")
        c, o = g.acc[0][fb], g.acc[1][fb]
        dst = o if fb % 2 == 0 else g.acc[1][fb - 1] + 2
        for p in range(2):
            u = t[1] + 2 * p
            a(f"v_lshlrev_b32 v{u}, 16, v{res+2*fb+p}")
            a(f"v_and_b32 v{u+1}, 0xffff0000, v{res+2*fb+p}")
            a(f"v_pk_add_f32 {vr(c+2*p,2)}, {vr(c+2*p,2)}, {vr(o+2*p,2)}")
            a(f"v_cvt_pk_bf16_f32 v{c+2*p+1}, v{c+2*p}, v{c+2*p+1}")
            a(f"v_lshlrev_b32 v{c+2*p}, 16, v{c+2*p+1}")
            a(f"v_and_b32 v{c+2*p+1}, 0xffff0000, v{c+2*p+1}")
            a(f"v_pk_add_f32 {vr(u,2)}, {vr(u,2)}, {vr(c+2*p,2)}")
            a(f"v_cvt_pk_bf16_f32 v{dst+p}, v{u}, v{u+1}")
            if which == 3:
                a(f"v_lshlrev_b32 v{u}, 16, v{dst+p}")
                a(f"v_and_b32 v{u+1}, 0xffff0000, v{dst+p}")
                a(f"v_pk_add_f32 {vr(v_s2,2)}, {vr(v_s2,2)}, {vr(u,2)}")
                a(f"v_pk_fma_f32 {vr(v_q2,2)}, {vr(u,2)}, {vr(u,2)}, {vr(v_q2,2)}")
        if fb % 2 == 1:
            q = g.acc[1][fb - 1]
            a("s_nop 1")
            a(f"v_permlane16_swap_b32 v{q}, v{q+2}")
            a(f"v_permlane16_swap_b32 v{q+1}, v{q+3}")
            if which == 3:
                a(f"buffer_store_dwordx4 {vr(q,4)}, v{v_c4}, {sr(SRD2,4)}, 0 offen offset:{(fb-1)*512} {pol}")
            else:
                a(f"buffer_store_dwordx4 {vr(q,4)}, v{v_a4}, {sr(SRD2,4)}, 0 offen offset:{(fb-1)*32}")
        elif fb == 4:
            if which == 3:
                a(f"buffer_store_dwordx2 {vr(o,2)}, v{v_c8}, {sr(SRD2,4)}, 0 offen offset:{fb*512} {pol}")
            else:
                a(f"buffer_store_dwordx2 {vr(o,2)}, v{v_ad}, {sr(SRD2,4)}, 0 offen offset:{fb*32}")
    if which == 3:
        a(f"v_add_f32 v{v_s}, v{v_s2}, v{v_s2+1}")
        a(f"v_add_f32 v{v_q}, v{v_q2}, v{v_q2+1}")
        for w in (32, 16):
            a(f"v_mov_b32 v{t[0]}, v{v_s}")
            a(f"v_mov_b32 v{t[1]}, v{v_q}")
            a("s_nop 1")
            a(f"v_permlane{w}_swap_b32 v{v_s}, v{t[0]}")
            a(f"v_permlane{w}_swap_b32 v{v_q}, v{t[1]}")
            a("s_nop 1")
            a(f"v_add_f32 v{v_s}, v{v_s}, v{t[0]}")
            a(f"v_add_f32 v{v_q}, v{v_q}, v{t[1]}")
        a(f"v_lshlrev_b32 v{t[0]}, 3, v{v_tok}")
        a(f"s_lshl_b32 s{S_T0}, s{S_T0}, 14")
        a("s_mov_b64 exec, 0xffff")
        a(f"buffer_store_dwordx2 {vr(v_s,2)}, v{t[0]}, {sr(SRD4,4)}, s{S_T0} offen {pol}")
        stamp(a, sb + 2)
        publish(a, t, 0)


def k4_gemm(a, va):
    sg = Seg(SRD1, F * 2, 96, 'p192', S_COL, img=(S_IMG, 24576, IMG_GU))
    su = Seg(SRD1, F * 2, 96, 'p192', S_COL, img=(S_IMG, 24576, IMG_GU + 12288))
    return Gemm(a, va, 128, 2, 1, 2, [sg, su], 64, K4_NS, D, SRD0, D * 2, S_TOK0, sregs=GS, tag="k4", xcm=True, lds_base=20480)


def k4_compute(a, va, g, sb):
    g.setup()
    t = g.tmp
    v_tok, v_a4, v_b4, v_ta, v_tc = va(), va(), va(), va(), va()
    a(f"v_lshl_add_u32 v{v_tok}, v{g.v_wt}, 6, v{g.v_i16}")
    a(f"v_lshlrev_b32 v{v_ta}, 4, v{v_tok}")
    a(f"v_add_u32 v{v_ta}, {TAB}, v{v_ta}")
    a(f"v_add_u32 v{v_tok}, s{S_TOK0}, v{v_tok}")
    a(f"v_mul_u32_u24 v{t[1]}, 48, v{g.v_wo}")
    a(f"v_lshl_add_u32 v{t[2]}, v{g.v_g}, 2, v{t[1]}")
    a(f"v_lshlrev_b32 v{v_tc}, 2, v{t[2]}")
    a(f"v_add_u32 v{v_tc}, {TAB + 2048}, v{v_tc}")
    a(f"v_and_b32 v{t[0]}, 0xfff0, v{v_tok}")
    a(f"v_mul_u32_u24 v{t[0]}, {F*2}, v{t[0]}")
    a(f"v_lshl_add_u32 v{t[0]}, v{g.v_i16}, 4, v{t[0]}")
    a(f"v_lshl_add_u32 v{t[0]}, v{t[1]}, 5, v{t[0]}")
    a(f"s_lshl_b32 s{S_T1}, s{S_COL}, 4")
    a(f"v_add_u32 v{t[0]}, s{S_T1}, v{t[0]}")
    a(f"v_lshrrev_b32 v{t[1]}, 1, v{g.v_g}")
    a(f"v_lshl_add_u32 v{t[0]}, v{t[1]}, 8, v{t[0]}")
    a(f"v_and_b32 v{t[1]}, 1, v{g.v_g}")
    a(f"v_lshl_add_u32 v{v_a4}, v{t[1]}, 9, v{t[0]}")
    a(f"v_mul_u32_u24 v{t[1]}, {16*F*2}, v{t[1]}")
    a(f"v_add_u32 v{v_b4}, v{t[1]}, v{t[0]}")
    await_block(a, t, 0)
    stamp(a, sb)
    g.mainloop()
    stamp(a, sb + 1)
    rstamp(a, 6)
    st = g.fa[0]
    cs = g.fa[1]
    tmp = g.fb[0]
    for tb in range(4):
        a(f"ds_read_b128 {vr(st+4*tb,4)}, v{v_ta} offset:{tb*256}")
    for sgi in range(2):
        for fb in range(3):
            a(f"ds_read_b128 {vr(cs+12*sgi+4*fb,4)}, v{v_tc} offset:{sgi*384 + fb*64}")
    a("s_waitcnt lgkmcnt(0)")
    for tb in range(4):
        vm, vA, vB, vC = [st + 4 * tb + i for i in range(4)]
        pm, pB = vr(vm, 2), vr(vB, 2)
        for fb in range(3):
            cg, cu = g.acc[tb][fb], g.acc[tb][3 + fb]
            z = tmp + 8 * (fb & 1)
            for h in (0, 2):
                a(f"v_pk_fma_f32 {vr(cg+h,2)}, {pm}, {vr(cs+4*fb+h,2)}, {vr(cg+h,2)} op_sel_hi:[0,1,1]")
                a(f"v_pk_fma_f32 {vr(cu+h,2)}, {pm}, {vr(cs+12+4*fb+h,2)}, {vr(cu+h,2)} op_sel_hi:[0,1,1]")
            for h in (0, 2):
                a(f"v_pk_mul_f32 {vr(z+h,2)}, {vr(cg+h,2)}, {vr(cg+h,2)}")
                a(f"v_pk_mul_f32 {vr(cu+h,2)}, {vr(cu+h,2)}, {vr(cg+h,2)}")
            for h in (0, 2):
                a(f"v_pk_fma_f32 {vr(z+h,2)}, {vr(z+h,2)}, {pB}, {pm} op_sel:[0,0,1] op_sel_hi:[1,0,1]")
            for h in (0, 2):
                a(f"v_pk_mul_f32 {vr(z+h,2)}, {vr(z+h,2)}, {vr(cg+h,2)}")
            for r in range(4):
                a(f"v_exp_f32 v{z+r}, v{z+r}")
            for h in (0, 2):
                a(f"v_pk_fma_f32 {vr(z+h,2)}, {vr(z+h,2)}, {pB}, {pB} op_sel:[0,1,1] op_sel_hi:[1,1,1]")
            for r in range(4):
                a(f"v_rcp_f32 v{z+r}, v{z+r}")
            a("s_nop 0")
            for h in (0, 2):
                a(f"v_pk_mul_f32 {vr(cu+h,2)}, {vr(cu+h,2)}, {vr(z+h,2)}")
            if fb == 1:
                q, dst = g.acc[tb][3], g.acc[tb][3] + 2
            elif fb == 2 and tb % 2 == 1:
                q, dst = g.acc[tb - 1][5], g.acc[tb - 1][5] + 2
            else:
                q, dst = None, cu
            a(f"v_cvt_pk_bf16_f32 v{dst}, v{cu}, v{cu+1}")
            a(f"v_cvt_pk_bf16_f32 v{dst+1}, v{cu+2}, v{cu+3}")
            if q is not None:
                a(f"s_mov_b32 s{S_KW}, {(tb if fb == 1 else tb - 1)*16*F*2}")
                a("s_nop 0")
                a(f"v_permlane16_swap_b32 v{q}, v{q+2}")
                a(f"v_permlane16_swap_b32 v{q+1}, v{q+3}")
                if fb == 1:
                    a(f"buffer_store_dwordx4 {vr(q,4)}, v{v_a4}, {sr(SRD3,4)}, s{S_KW} offen {HPOL}")
                else:
                    a(f"buffer_store_dwordx4 {vr(q,4)}, v{v_b4}, {sr(SRD3,4)}, s{S_KW} offen offset:1024 {HPOL}")
    stamp(a, sb + 2)
    publish(a, t, 1)


class Ffn:
    pass


def ffn_compute(a):
    f = Ffn()
    maxv = 0
    va = VAlloc(1)
    g3 = proj_gemm(a, va, 3)
    g3.tmp = [va() for _ in range(6)]
    map_proj(a, 3)
    srd_proj(a, 3)
    proj_compute(a, va, g3, 3, 4)
    maxv = max(maxv, va.n)
    va = VAlloc(1)
    g4 = k4_gemm(a, va)
    g4.tmp = [va() for _ in range(6)]
    map_k4(a)
    k4_compute(a, va, g4, 7)
    maxv = max(maxv, va.n)
    va = VAlloc(1)
    g5 = proj_gemm(a, va, 5)
    g5.tmp = [va() for _ in range(6)]
    map_proj(a, 5)
    srd_proj(a, 5)
    proj_compute(a, va, g5, 5, 10)
    maxv = max(maxv, va.n)
    stamp_end(a, 12)
    assert g4.lds_bytes + g4.lds_base <= TAB and g5.lds_bytes + g5.lds_base <= TAB
    f.g3, f.g4, f.g5, f.maxv = g3, g4, g5, maxv
    return f


def ffn_loader(a, f):
    g3, g4, g5, maxv = f.g3, f.g4, f.g5, f.maxv
    GC = -2.0 * 0.7978845608028654 * 1.4426950408889634
    pre = {}

    def early4(lva, lt):
        make_srd(a, SRD4, P_WS, WS_ST, S * 64)
        buf = lva(16, 4)
        pre['buf'] = buf
        a(f"v_and_b32 v{lt[0]}, 127, v0")
        a(f"v_add_u32 v{lt[0]}, s{S_TOK0}, v{lt[0]}")
        a(f"v_lshlrev_b32 v{lt[0]}, 3, v{lt[0]}")
        for i in range(8):
            a(f"s_mov_b32 s{S_T1}, {i*16384}")
            a(f"buffer_load_dwordx2 {vr(buf+2*i,2)}, v{lt[0]}, {sr(SRD4,4)}, s{S_T1} offen {HPOL}")

    CSR = 104

    def cs4(lt):
        buf = CSR
        l3 = a.newlabel("k4e")
        a(f"s_cmp_lt_u32 s{S_WAVE}, 6")
        a(f"s_cbranch_scc1 {l3}")
        make_srd(a, SRD5, P_WS, WS_CS, NCS * 3072 * 4)
        a(f"s_lshr_b32 s{S_T2}, s{S_J}, 2")
        a(f"s_and_b32 s{S_T1}, s{S_XB}, 1")
        a(f"s_lshl_b32 s{S_T1}, s{S_T1}, 3")
        a(f"s_add_u32 s{S_T2}, s{S_T2}, s{S_T1}")
        a(f"s_mul_i32 s{S_T2}, s{S_T2}, 384")
        a(f"v_and_b32 v{lt[0]}, 63, v0")
        a(f"v_min_u32 v{lt[0]}, 23, v{lt[0]}")
        a(f"v_lshlrev_b32 v{lt[0]}, 4, v{lt[0]}")
        a(f"s_sub_u32 s{S_T1}, s{S_WAVE}, 6")
        a(f"s_mul_i32 s{S_T1}, s{S_T1}, {1536*4}")
        a(f"s_add_u32 s{S_T1}, s{S_T1}, s{S_T2}")
        for i in range(NCS):
            a(f"buffer_load_dwordx4 {vr(buf+4*i,4)}, v{lt[0]}, {sr(SRD5,4)}, s{S_T1} offen")
            a(f"s_add_u32 s{S_T1}, s{S_T1}, {3072*4}")
        a("s_waitcnt vmcnt(0)")
        a.label(l3)

    def table4(lva, lt):
        buf = pre['buf']
        l2, l3 = a.newlabel("k4e"), a.newlabel("k4e")
        a(f"s_cmp_ge_u32 s{S_WAVE}, 6")
        a(f"s_cbranch_scc1 {l2}")
        for i in range(1, 8):
            a(f"v_add_f32 v{buf}, v{buf}, v{buf+2*i}")
            a(f"v_add_f32 v{buf+1}, v{buf+1}, v{buf+2*i+1}")
        ln_stats(a, buf, buf + 1, buf + 4, buf + 8, lt)
        a(f"v_sub_f32 v{buf+4}, 0, v{buf+4}")
        a(f"v_mul_f32 v{buf+5}, {f32(GC)}, v{buf+8}")
        a(f"v_mul_f32 v{buf+9}, v{buf+8}, v{buf+8}")
        a(f"v_mul_f32 v{buf+6}, v{buf+9}, v{buf+8}")
        a(f"v_mul_f32 v{buf+6}, {f32(GC*0.044715)}, v{buf+6}")
        a(f"v_rcp_f32 v{buf+7}, v{buf+9}")
        a(f"v_lshlrev_b32 v{lt[0]}, 4, v0")
        a(f"v_add_u32 v{lt[0]}, {TAB}, v{lt[0]}")
        a(f"ds_write_b128 v{lt[0]}, {vr(buf+4,4)}")
        a(f"s_branch {l3}")
        a.label(l2)
        buf = CSR
        for k in range(1, NCS):
            for i in (0, 2):
                a(f"v_pk_add_f32 {vr(buf+i,2)}, {vr(buf+i,2)}, {vr(buf+4*k+i,2)}")
        a(f"v_and_b32 v{lt[0]}, 63, v0")
        a(f"v_min_u32 v{lt[0]}, 23, v{lt[0]}")
        a(f"v_lshlrev_b32 v{lt[0]}, 4, v{lt[0]}")
        a(f"s_sub_u32 s{S_T1}, s{S_WAVE}, 6")
        a(f"s_mul_i32 s{S_T1}, s{S_T1}, 384")
        a(f"s_add_u32 s{S_T1}, s{S_T1}, {TAB + 2048}")
        a(f"v_add_u32 v{lt[0]}, s{S_T1}, v{lt[0]}")
        a(f"ds_write_b128 v{lt[0]}, {vr(buf,4)}")
        a.label(l3)
        a("s_waitcnt lgkmcnt(0)")

    def touch_wd(lt):
        a(f"s_and_b32 s{S_T1}, s{S_XB}, 1")
        a(f"s_mul_i32 s{S_T1}, s{S_T1}, 983040")
        a(f"s_mul_i32 s{S_T2}, s{S_J}, {240*128}")
        a(f"s_add_u32 s{S_T1}, s{S_T1}, s{S_T2}")
        a(f"s_add_u32 s{S_T1}, s{S_T1}, {IMG_WD}")
        a(f"v_min_u32 v{lt[0]}, 239, v0")
        a(f"v_lshlrev_b32 v{lt[0]}, 7, v{lt[0]}")
        a(f"buffer_load_dword v{DUMMY}, v{lt[0]}, {sr(SRD1,4)}, s{S_T1} offen")
        ops.append(("t", 0))

    DUMMY = 100
    ops = []
    a("v_and_b32 v0, 255, v0")
    map_proj(a, 3)
    srd_proj(a, 3)
    g3.ld_prepare(S_ROT, head=False, xpol=XPOL, ops=ops)
    a(f"v_mov_b32 v{g3.lt[0]}, 0")
    lds_wait(a, g3.lt, 6, "s_cmp_lt_u32 s{}, 0xfe03")
    g3.lstamp(0)
    for st in range(3):
        g3.ld_issue(st, x=False)
    cs4(g3.lt)
    a("s_barrier")
    a("s_barrier")
    g3.ld_issue(3, x=False)
    a("s_barrier")

    def tail3(st):
        if st == 2:
            map_k4(a)
            g4.ld_prepare(S_ROT, head=False, xpol=XPOL, ops=ops)
            g4.lstamp(0)
        if st <= 4:
            g4.ld_issue(st - 2, x=False)
    g3.ld_run(wdone=True, tail=tail3)
    a("s_barrier")
    a("s_barrier")

    def tail4(st):
        if st == 8:
            a("s_setprio 2")
            table4(g4.lva, g4.lt)
            a("s_setprio 0")
        elif st == 9:
            map_proj(a, 5)
            srd_proj(a, 5)
            g5.ld_prepare(S_ROT, head=False, xpol=XPOL, ops=ops)
            g5.lstamp(0)
            g5.ld_issue(1, x=False)
        elif st == 10:
            g5.ld_issue(0, x=False)
            g5.ld_issue(2, x=False)
            g5.ld_issue(3, x=False)

    def mid4(st):
        if st == 3:
            early4(g4.lva, g4.lt)
            ops.extend([("e", 0)] * 8)
        if st == TWD:
            touch_wd(g4.lt)
    g4.ld_run(wdone=True, tail=tail4, mid=mid4)
    a("s_barrier")
    g5.ld_run(wdone=True)
    for g in (f.gq, g3, g4, g5):
        g.ld_dump()
    a("s_endpgm")
    assert max(g3.lva.n, g4.lva.n, g5.lva.n) < 89 and DUMMY < maxv

K4_NS = 3
TWD = int(os.environ.get('TWD', '9'))


def main():
    a = Asm()
    a.raw('.amdgcn_target "amdgcn-amd-amdhsa--gfx950"')
    a.raw(".text")
    launches = [gen_k2(a)]
    head = open("cdna_kernels/" + NAME + ".s.ref").read().split("\n")
    hdr = [l for l in head if l.startswith(";") and "@launch" not in l and "Override launch" not in l and "grid=ceil" not in l]
    out = "\n".join(hdr) + "\n"
    for n, gx, bx, lds in launches:
        out += f"; @launch kernel={n} grid=({gx},1,1) block=({bx},1,1) lds={lds}\n"
    out += a.text()
    out += '.section .rodata,"a"\n' + "".join(KDS)
    path = sys.argv[1] if len(sys.argv) > 1 else "cdna_kernels/" + NAME + ".s"
    open(path, "w").write(out)
    print("wrote", path, len(out), "bytes;", launches)

if __name__ == "__main__":
    main()
```

```python
import sys

NAME = "sequential_preLN__grouped_kv_mqa__geglu_ffn__prompt"

S, D, H, DH, F = 2048, 640, 32, 20, 1536

WS_Q   = 0
FUSED1 = True
WS_KF  = 0x280000
WS_KV  = WS_KF
KV_SZ  = 163840
NCS    = 8
WS_VF  = WS_KF + 0x20000
WS_KN  = WS_VF + 0x20000
WS_CS  = WS_KN + 0x1000
WS_O   = WS_CS + 0x20000
WS_H   = WS_O + 0x280000
WS_ST  = WS_H + 0x280000
WS_ACT = WS_ST + 0x20000
WS_S1  = WS_ACT + 0x600000
WS_CNT = WS_S1
WS_IMG = WS_S1 + 0x8000
WS_TL = 0x3000000
IMG_WO, IMG_WD, IMG_GU, IMG_SZ = 0, 819200, 819200 + 1966080, 6717440

KA_X, KA_WQ, KA_WK, KA_WV, KA_WO, KA_BX, KA_WG, KA_WU, KA_WD, KA_OUT, KA_DBG, KA_WS = [8 * i for i in range(12)]

import struct, os
INSTR = bool(os.environ.get("INSTR"))
HACK_LIN = bool(os.environ.get("HACK_LIN"))
NOCOMP = os.environ.get("NOCOMP", "").split(",")
NOX = os.environ.get("NOX", "").split(",")
NOW = os.environ.get("NOW", "").split(",")
PF = bool(os.environ.get("PF"))
IMGPOL = os.environ.get("IMGPOL", "sc1")
for _k in ("NORB2", "NORB3", "NORB4"):
    os.environ[_k] = "1"
NOLOAD = os.environ.get("NOLOAD", "").split(",")
def f32(x):
    return "0x%08x" % struct.unpack("<I", struct.pack("<f", x))[0]


class Asm:
    skip_dma = False
    def __init__(self):
        self.lines = []
        self.nlabel = 0

    def __call__(self, s):
        for l in s.split("\n"):
            l = l.strip()
            if self.skip_dma and l.startswith("buffer_load") and l.endswith("lds"):
                continue
            if l:
                self.lines.append("    " + l)

    def label(self, l):
        self.lines.append(l + ":")

    def newlabel(self, p="L"):
        self.nlabel += 1
        return f"{p}_{self.nlabel}"

    def raw(self, s):
        self.lines.append(s)

    def text(self):
        return "\n".join(self.lines) + "\n"


class VAlloc:
    def __init__(self, start=1):
        self.n = start

    def __call__(self, cnt=1, align=1):
        self.n = (self.n + align - 1) // align * align
        r = self.n
        self.n += cnt
        return r


def vr(b, n):
    return f"v[{b}:{b+n-1}]"


def sr(b, n):
    return f"s[{b}:{b+n-1}]"


KIDX = [-1]
LIDX = [0]
def kernel_begin(a, name):
    KIDX[0] += 1
    a.raw(f".globl {name}")
    a.raw(".p2align 8")
    a.raw(f".type {name},@function")
    a.label(name)


KDS = []
def kernel_end(a, name, nvgpr, nsgpr=102):
    nv = (nvgpr + 7) // 8 * 8
    KDS.append(f""".p2align 6
.amdhsa_kernel {name}
  .amdhsa_next_free_vgpr {nv}
  .amdhsa_next_free_sgpr {nsgpr}
  .amdhsa_accum_offset {(nv + 3) // 4 * 4}
  .amdhsa_group_segment_fixed_size 0
  .amdhsa_kernarg_size 96
  .amdhsa_user_sgpr_count 2
  .amdhsa_user_sgpr_kernarg_segment_ptr 1
  .amdhsa_system_sgpr_workgroup_id_x 1
.end_amdhsa_kernel
""")


def make_srd(a, dst, base_s, off, nbytes):
    if off:
        a(f"s_add_u32 s{dst}, s{base_s}, {off}")
        a(f"s_addc_u32 s{dst+1}, s{base_s+1}, 0")
    else:
        a(f"s_mov_b32 s{dst}, s{base_s}")
        a(f"s_mov_b32 s{dst+1}, s{base_s+1}")
    a(f"s_mov_b32 s{dst+2}, {nbytes}")
    a(f"s_mov_b32 s{dst+3}, 0x00020000")


def interleave(mfmas, fillers, nreads=None):
    out = []
    nm, nf = len(mfmas), len(fillers)
    per = 1 if (nreads or nf) * 3 <= nm * 2 + 2 and nf <= nm else 2
    if os.environ.get("OLDIL"):
        per = 0
    fi = 0
    for i, m in enumerate(mfmas):
        out.append(m)
        tgt = (i + 1) * per if per else ((i + 1) * nf + nm - 1) // nm
        while fi < min(tgt, nf):
            out.extend(fillers[fi])
            fi += 1
    while fi < nf:
        out.extend(fillers[fi])
        fi += 1
    return out


class Seg:
    def __init__(self, srd, gstride, nf, kind, colreg=None, img=None):
        self.img = img
        self.srd = srd
        self.gstride = gstride
        self.nf = nf
        self.kind = kind
        self.colreg = colreg


class Gemm:
    def __init__(self, a, va, TT, WT, WK, WF, segs, BK, NS, K, xsrd, xstride, s_tok0,
                 stats=False, colsum=False, sregs=None, tag="g", lds_base=0, xcm=False, slot0=0):
        self.a, self.va = a, va
        self.slot0 = slot0
        self.xcm = xcm
        self.lds_base = lds_base
        self.TT, self.WT, self.WK, self.WF = TT, WT, WK, WF
        assert WT * WK * WF == 4
        self.segs, self.BK, self.NS, self.K = segs, BK, NS, K
        self.xsrd, self.xstride, self.s_tok0 = xsrd, xstride, s_tok0
        self.stats, self.colsum = stats, colsum
        self.tag = tag
        self.TW = TT // WT
        self.TB = self.TW // 16
        self.RB = BK * 2
        self.CPR = self.RB // 16
        self.nst = K // BK
        self.SPS = BK // 32
        self.SPW = self.SPS // WK
        assert self.SPW % 2 == 0
        self.xbytes = TT * self.RB
        off = self.xbytes
        for s in segs:
            s.lstride = 40 if s.kind == 'lin40' else s.nf * 2
            nb = BK * s.lstride
            s.ninstr = (nb + 4095) // 4096 * 4
            s.lbase = off
            off += s.ninstr * 1024
            s.FBW = (s.nf // WF) // 16
        self.stage_bytes = off
        self.nx = self.xbytes // 1024
        assert self.nx % 4 == 0
        self.ndma = self.nx // 4 + sum(s.ninstr // 4 for s in segs)
        self.lds_bytes = self.stage_bytes * NS
        (self.s_woff, self.s_kx, self.s_kw, self.s_wave, self.s_cnt, self.s_slot, self.s_kidx, self.s_dl) = sregs

    def split(self):
        a, va = self.a, self.va
        self.tmp = [va() for _ in range(6)]
        t = self.tmp
        a(f"v_lshrrev_b32 v{t[0]}, 6, v0")
        a("s_nop 0")
        a(f"v_readfirstlane_b32 s{self.s_wave}, v{t[0]}")
        a("s_nop 3")
        a(f"s_cmp_ge_u32 s{self.s_wave}, 4")
        a(f"s_cbranch_scc1 {self.tag}_loader")

    def ld_prepare(self, s_rot=None, head=True, xpol="", ops=None, v0=1):
        a = self.a
        va = self.lva = VAlloc(v0)
        t = self.lt = [va() for _ in range(6)]
        self.s_rot, self.xpol = s_rot, xpol
        self.ops = [] if ops is None else ops
        if head:
            a.label(f"{self.tag}_loader")
            a(f"v_and_b32 v0, 255, v0")
        a(f"s_and_b32 s{self.s_woff}, s{self.s_wave}, 3")
        a(f"s_lshl_b32 s{self.s_woff}, s{self.s_woff}, 10")
        lg = {8: 3, 16: 4}[self.CPR]
        v_dx = self.v_dx = va()
        if self.xcm:
            a(f"v_lshrrev_b32 v{t[1]}, {lg+4}, v0")
            a(f"v_and_b32 v{t[2]}, {self.CPR*16-1}, v0")
            a(f"v_lshlrev_b32 v{t[1]}, 4, v{t[1]}")
            a(f"v_add_u32 v{t[1]}, s{self.s_tok0}, v{t[1]}")
            a(f"v_mul_u32_u24 v{t[1]}, {self.xstride}, v{t[1]}")
            a(f"v_lshl_add_u32 v{v_dx}, v{t[2]}, 4, v{t[1]}")
        else:
            a(f"v_lshrrev_b32 v{t[1]}, {lg}, v0")
            a(f"v_and_b32 v{t[2]}, {self.CPR-1}, v0")
            if self.CPR == 8:
                a(f"v_bfe_u32 v{t[3]}, v{t[1]}, 1, 3")
            else:
                a(f"v_and_b32 v{t[3]}, 15, v{t[1]}")
            a(f"v_xor_b32 v{t[2]}, v{t[2]}, v{t[3]}")
            a(f"v_add_u32 v{t[1]}, s{self.s_tok0}, v{t[1]}")
            a(f"v_mul_u32_u24 v{t[1]}, {self.xstride}, v{t[1]}")
            a(f"v_lshl_add_u32 v{v_dx}, v{t[2]}, 4, v{t[1]}")
        done = {}
        for s in self.segs:
            key = (s.kind, s.nf)
            if key in done:
                s.v_d = done[key]
                continue
            s.v_d = []
            cprw = s.lstride // 16 if s.kind != 'lin40' else None
            for j in range(s.ninstr // 4):
                if s.kind == 'lin40' or s.img:
                    if j == 0:
                        r = va()
                        a(f"v_lshlrev_b32 v{r}, 4, v0")
                    s.v_d.append(r)
                    continue
                r = va()
                s.v_d.append(r)
                a(f"v_add_u32 v{t[0]}, {j*256}, v0")
                magic = {10: 52429, 12: 43691}[cprw]
                a(f"v_mul_u32_u24 v{t[1]}, {magic}, v{t[0]}")
                a(f"v_lshrrev_b32 v{t[1]}, 19, v{t[1]}")
                a(f"v_mul_u32_u24 v{t[2]}, {cprw}, v{t[1]}")
                a(f"v_sub_u32 v{t[2]}, v{t[0]}, v{t[2]}")
                a(f"v_and_b32 v{t[3]}, 0xfffffff3, v{t[1]}")
                a(f"v_bfe_u32 v{t[4]}, v{t[1]}, 2, 1")
                if s.kind == 'p192':
                    a(f"v_lshlrev_b32 v{t[5]}, 1, v{t[4]}")
                    a(f"v_xor_b32 v{t[2]}, v{t[2]}, v{t[5]}")
                a(f"v_lshl_or_b32 v{t[3]}, v{t[4]}, 3, v{t[3]}")
                a(f"v_bfe_u32 v{t[4]}, v{t[1]}, 3, 1")
                a(f"v_lshl_or_b32 v{t[3]}, v{t[4]}, 2, v{t[3]}")
                a(f"v_mul_u32_u24 v{t[3]}, {s.gstride}, v{t[3]}")
                a(f"v_lshl_add_u32 v{r}, v{t[2]}, 4, v{t[3]}")
                if s.colreg is not None:
                    a(f"v_add_u32 v{r}, s{s.colreg}, v{r}")
            done[key] = s.v_d
        self.lidx = LIDX[0]
        LIDX[0] += 1
        self.v_st = 196 + self.lidx

    def ld_kset(self, st):
        a = self.a
        if self.s_rot is None:
            a(f"s_mov_b32 s{self.s_kidx}, {st}")
        elif st == 0:
            a(f"s_mov_b32 s{self.s_kidx}, s{self.s_rot}")
        else:
            a(f"s_add_u32 s{self.s_kidx}, s{self.s_rot}, {st}")
            a(f"s_sub_u32 s{self.s_dl}, s{self.s_kidx}, {self.nst}")
            a(f"s_cmp_ge_u32 s{self.s_kidx}, {self.nst}")
            a(f"s_cselect_b32 s{self.s_kidx}, s{self.s_dl}, s{self.s_kidx}")

    def ld_issue(self, st, x=True, w=True):
        a = self.a
        gs = self.segs[0].gstride
        xrows = 256 // self.CPR
        slot = self.lds_base + ((st + self.slot0) % self.NS) * self.stage_bytes
        a.skip_dma = self.tag in NOLOAD
        self.ld_kset(st)
        if x:
            a(f"s_mul_i32 s{self.s_kx}, s{self.s_kidx}, {self.CPR*256 if self.xcm else self.BK*2}")
            for j in range(self.nx // 4):
                a(f"s_add_u32 m0, s{self.s_woff}, {slot + j*4096}")
                if j:
                    a(f"s_add_u32 s{self.s_kx}, s{self.s_kx}, {xrows*self.xstride}")
                else:
                    a("s_nop 0")
                a(f"buffer_load_dwordx4 v{self.v_dx}, {sr(self.xsrd,4)}, s{self.s_kx} offen {self.xpol} lds")
                self.ops.append((self.tag, st))
        if w:
            if self.segs[0].img:
                a(f"s_mul_i32 s{self.s_kw}, s{self.s_kidx}, {self.segs[0].img[1]}")
                a(f"s_add_u32 s{self.s_kw}, s{self.s_kw}, s{self.segs[0].img[0]}")
            else:
                a(f"s_mul_i32 s{self.s_kw}, s{self.s_kidx}, {self.BK*gs}")
            for s in self.segs:
                if s.gstride != gs:
                    a(f"s_mul_i32 s{self.s_kw}, s{self.s_kidx}, {self.BK*s.gstride}")
                for j, r in enumerate(s.v_d):
                    a(f"s_add_u32 m0, s{self.s_woff}, {slot + s.lbase + j*4096}")
                    if s.kind == 'lin40' or s.img:
                        a(f"s_add_u32 s{self.s_dl}, s{self.s_kw}, {j*4096 + (s.img[2] if s.img else 0)}")
                        a(f"buffer_load_dwordx4 v{r}, {sr(s.srd,4)}, s{self.s_dl} offen lds")
                    else:
                        a("s_nop 0")
                        a(f"buffer_load_dwordx4 v{r}, {sr(s.srd,4)}, s{self.s_kw} offen lds")
                    self.ops.append((self.tag, st))

    def lstamp(self, idx):
        a = self.a
        a.skip_dma = False
        if INSTR:
            a("s_memtime s[98:99]")
            a("s_waitcnt lgkmcnt(0)")
            a("s_sub_u32 s98, s98, s80")
            a(f"v_writelane_b32 v{self.v_st}, s98, {idx}")

    def ld_run(self, wdone=False, tail=None, mid=None):
        a = self.a
        ops = self.ops

        def ready(st):
            last = max(i for i, o in enumerate(ops) if o == (self.tag, st))
            n = len(ops) - 1 - last
            assert n < 64
            a(f"s_waitcnt vmcnt({n})")
            self.lstamp(st + 2)
            a("s_barrier")

        NS, nst = self.NS, self.nst
        self.lstamp(1)
        wf = not wdone
        self.ld_issue(0, w=wf)
        self.ld_issue(1, w=wf)
        ready(0)
        for st in range(2, NS):
            self.ld_issue(st, w=wf)
        for st in range(NS, nst):
            ready(st - NS + 1)
            self.ld_issue(st)
            if mid:
                mid(st)
        for st in range(nst - NS + 1, nst):
            ready(st)
            if tail:
                tail(st)
        a("s_barrier")
        if tail:
            tail(nst)

    def ld_dump(self):
        a = self.a
        if INSTR:
            lab = a.newlabel("ls")
            a(f"s_cmp_lg_u32 s2, {INSTR_WG}")
            a(f"s_cbranch_scc1 {lab}")
            a(f"s_cmp_lg_u32 s{self.s_wave}, 4")
            a(f"s_cbranch_scc1 {lab}")
            make_srd(a, 92, P_WS, WS_TL + 0x10000 + self.lidx * 256, 128)
            a(f"v_lshlrev_b32 v89, 2, v0")
            a(f"buffer_store_dword v{self.v_st}, v89, s[92:95], 0 offen")
            a("s_waitcnt vmcnt(0)")
            a.label(lab)

    def loader(self, s_rot=None, cont=None):
        a = self.a
        self.ld_prepare(s_rot)
        self.lstamp(0)
        self.ld_run()
        self.ld_dump()
        if cont is None:
            a("s_endpgm")
        else:
            cont(self.lva, self.lt)

    def setup(self):
        a, va = self.a, self.va
        t = self.tmp
        lane, i16, g, wv = va(), va(), va(), va()
        self.v_lane, self.v_i16, self.v_g, self.v_wave = lane, i16, g, wv
        a(f"v_and_b32 v{lane}, 63, v0")
        a(f"v_lshrrev_b32 v{wv}, 6, v0")
        a(f"v_and_b32 v{i16}, 15, v0")
        a(f"v_bfe_u32 v{g}, v0, 4, 2")
        wt, wo = va(), va()
        self.v_wt, self.v_wo = wt, wo
        a(f"v_and_b32 v{wt}, {self.WT-1}, v{wv}")
        sh = {1: 0, 2: 1, 4: 2}[self.WT]
        a(f"v_lshrrev_b32 v{wo}, {sh}, v{wv}")
        self.addr_regs = []
        done = {}
        for s in self.segs:
            key = (s.kind, s.nf)
            if key in done:
                s.v_a = done[key]
                continue
            if s.kind == 'lin40':
                a(f"v_lshlrev_b32 v{t[0]}, 3, v{g}")
            else:
                a(f"v_lshrrev_b32 v{t[0]}, 1, v{g}")
                a(f"v_lshlrev_b32 v{t[0]}, 4, v{t[0]}")
                a(f"v_and_b32 v{t[1]}, 1, v{g}")
                a(f"v_lshl_add_u32 v{t[0]}, v{t[1]}, 2, v{t[0]}")
            a(f"v_lshrrev_b32 v{t[1]}, 2, v{i16}")
            a(f"v_add_u32 v{t[0]}, v{t[0]}, v{t[1]}")
            if self.WK > 1:
                a(f"v_mov_b32 v{t[1]}, {self.SPW*32}")
                a(f"v_mad_u32_u24 v{t[0]}, v{wo}, v{t[1]}, v{t[0]}")
            a(f"v_mul_u32_u24 v{t[0]}, {s.lstride}, v{t[0]}")
            a(f"v_and_b32 v{t[1]}, 3, v{i16}")
            a(f"v_lshl_add_u32 v{t[0]}, v{t[1]}, 3, v{t[0]}")
            if s.kind == 'p192':
                regs = []
                for b in range(s.FBW):
                    r = va()
                    regs.append(r)
                    if self.WF > 1:
                        a(f"v_mul_u32_u24 v{t[1]}, {s.FBW}, v{wo}")
                        a(f"v_add_u32 v{t[1]}, {b}, v{t[1]}")
                    else:
                        a(f"v_mov_b32 v{t[1]}, {b}")
                    a(f"v_and_b32 v{t[2]}, 1, v{g}")
                    a(f"v_xor_b32 v{t[1]}, v{t[1]}, v{t[2]}")
                    a(f"v_lshl_add_u32 v{r}, v{t[1]}, 5, v{t[0]}")
                s.v_a = regs
                self.addr_regs += regs
            else:
                r = va()
                if self.WF > 1:
                    a(f"v_mul_u32_u24 v{t[1]}, {s.FBW*32}, v{wo}")
                    a(f"v_add_u32 v{r}, v{t[0]}, v{t[1]}")
                else:
                    a(f"v_mov_b32 v{r}, v{t[0]}")
                s.v_a = [r]
                self.addr_regs.append(r)
            done[key] = s.v_a
        self.v_b = []
        if self.xcm:
            r = va()
            self.v_b = [r] * self.SPW
            self.addr_regs.append(r)
            a(f"v_mul_u32_u24 v{t[0]}, {self.TW*self.RB}, v{wt}")
            a(f"v_lshl_add_u32 v{t[0]}, v{lane}, 4, v{t[0]}")
            if self.WK > 1:
                a(f"v_mul_u32_u24 v{t[2]}, {1024*self.SPW}, v{wo}")
                a(f"v_add_u32 v{r}, v{t[0]}, v{t[2]}")
            else:
                a(f"v_mov_b32 v{r}, v{t[0]}")
        self.swapb = self.WK == 2
        a(f"v_mul_u32_u24 v{t[0]}, {self.TW}, v{wt}")
        a(f"v_add_u32 v{t[0]}, v{t[0]}, v{i16}")
        if self.CPR == 8:
            a(f"v_bfe_u32 v{t[1]}, v{t[0]}, 1, 3")
        else:
            a(f"v_and_b32 v{t[1]}, 15, v{t[0]}")
        a(f"v_mul_u32_u24 v{t[0]}, {self.RB}, v{t[0]}")
        for ls in range(self.SPW if not self.xcm else 0):
            r = va()
            self.v_b.append(r)
            self.addr_regs.append(r)
            if self.WK > 1:
                a(f"v_mul_u32_u24 v{t[2]}, {4*self.SPW}, v{wo}")
                a(f"v_add3_u32 v{t[2]}, v{t[2]}, v{g}, {4*ls}")
            else:
                a(f"v_add_u32 v{t[2]}, {4*ls}, v{g}")
            a(f"v_xor_b32 v{t[2]}, v{t[2]}, v{t[1]}")
            a(f"v_lshl_add_u32 v{r}, v{t[2]}, 4, v{t[0]}")
        if self.swapb:
            assert self.TB == 2
            m = {}
            a(f"v_mul_u32_u24 v{t[2]}, {16*self.RB}, v{wo}")
            a(f"v_sub_u32 v{t[3]}, {16*self.RB}, v{t[2]}")
            for r in self.v_b:
                if r not in m:
                    m[r] = va()
                    self.addr_regs.append(m[r])
                    a(f"v_add_u32 v{m[r]}, v{t[3]}, v{r}")
                    a(f"v_add_u32 v{r}, v{t[2]}, v{r}")
            self.v_b2 = [m[r] for r in self.v_b]
        if self.lds_base:
            for r in self.addr_regs:
                a(f"v_add_u32 v{r}, {self.lds_base + self.slot0*self.stage_bytes}, v{r}")
        self.nA = sum(s.FBW for s in self.segs)
        self.fa = [va(4 * self.nA, 4) for _ in range(2)]
        self.fb = [va(4 * self.TB, 4) for _ in range(2)]
        self.acc = [[va(4, 4) for _ in range(self.nA)] for _ in range(self.TB)]
        accs = [r for row in self.acc for r in row]
        if self.stats or self.colsum:
            self.v_ones = va(4, 4)
            for i in range(4):
                a(f"v_mov_b32 v{self.v_ones+i}, 0x3f803f80")
        if self.stats:
            self.acc_sum = [va(4, 4) for _ in range(self.TB)]
            self.acc_sq = [va(4, 4) for _ in range(self.TB)]
            accs += self.acc_sum + self.acc_sq
        if self.colsum:
            self.acc_cs = [va(4, 4) for _ in range(self.nA)]
            accs += self.acc_cs
        for r in accs:
            for i in range(4):
                a(f"v_mov_b32 v{r+i}, 0")

    def read_units(self, ls, buf):
        units = []
        fi = 0
        for s in self.segs:
            for b in range(s.FBW):
                for e in range(2):
                    if s.kind == 'lin40':
                        off = s.lbase + (ls * 32 + 4 * e) * 40 + b * 32
                        ar = s.v_a[0]
                    elif s.kind == 'p192':
                        off = s.lbase + (ls * 32 + 8 * e) * s.lstride
                        ar = s.v_a[b]
                    else:
                        off = s.lbase + (ls * 32 + 8 * e) * s.lstride + b * 32
                        ar = s.v_a[0]
                    assert off < 65536
                    d = self.fa[buf] + 4 * fi + 2 * e
                    units.append([f"ds_read_b64_tr_b16 {vr(d,2)}, v{ar} offset:{off}"])
                fi += 1
        for tb in range(self.TB):
            off = tb * 16 * self.RB + (ls * 1024 if self.xcm else 0)
            d = self.fb[buf] + 4 * tb
            ar = self.v_b[ls]
            if self.swapb and tb:
                off -= 16 * self.RB
                ar = self.v_b2[ls]
            units.append([f"ds_read_b128 {vr(d,4)}, v{ar} offset:{off}"])
        return units[-self.TB:] + units[:-self.TB]

    def mfmas(self, buf):
        out = []
        for fi in range(self.nA):
            A = vr(self.fa[buf] + 4 * fi, 4)
            for tb in range(self.TB):
                B = vr(self.fb[buf] + 4 * tb, 4)
                c = vr(self.acc[tb][fi], 4)
                out.append(f"v_mfma_f32_16x16x32_bf16 {c}, {A}, {B}, {c}")
            if self.colsum:
                c = vr(self.acc_cs[fi], 4)
                out.append(f"v_mfma_f32_16x16x32_bf16 {c}, {A}, {vr(self.v_ones,4)}, {c}")
        if self.stats:
            for tb in range(self.TB):
                B = vr(self.fb[buf] + 4 * tb, 4)
                c = vr(self.acc_sum[tb], 4)
                out.append(f"v_mfma_f32_16x16x32_bf16 {c}, {vr(self.v_ones,4)}, {B}, {c}")
                c = vr(self.acc_sq[tb], 4)
                out.append(f"v_mfma_f32_16x16x32_bf16 {c}, {B}, {B}, {c}")
        return out

    def ld_ready(self, st):
        ops = self.ops
        last = max(i for i, o in enumerate(ops) if o == (self.tag, st))
        n = len(ops) - 1 - last
        assert n < 64
        self.a(f"s_waitcnt vmcnt({n})")
        self.lstamp(st + 2)
        self.a("s_barrier")

    def mainloop(self, post_first=None, pre_bar=None):
        a = self.a
        a(f"s_mov_b32 s{self.s_cnt}, {self.nst}")
        a(f"s_mov_b32 s{self.s_slot}, {self.slot0*self.stage_bytes}")
        a("s_barrier")
        if post_first:
            post_first()
        for u in self.read_units(0, 0):
            for l in u:
                a(l)
        lp = f"{self.tag}_loop"
        a.label(lp)
        for ls in range(self.SPW):
            buf = ls & 1
            a("s_waitcnt lgkmcnt(0)")
            mf = self.mfmas(buf)
            if ls == self.SPW - 1:
                a(mf[0])
                mf = mf[1:]
                if pre_bar:
                    pre_bar()
                a("s_barrier")
                fill = self.read_units(0, buf ^ 1)
                fill.append([f"s_sub_u32 s{self.s_cnt}, s{self.s_cnt}, 1", f"s_cmp_lg_u32 s{self.s_cnt}, 0"])
            else:
                fill = self.read_units(ls + 1, buf ^ 1)
                if ls == self.SPW - 2:
                    fill.append([f"s_mov_b32 s{self.s_dl}, s{self.s_slot}",
                                 f"s_add_u32 s{self.s_slot}, s{self.s_slot}, {self.stage_bytes}"])
                    fill.append([f"s_cmp_ge_u32 s{self.s_slot}, {self.lds_bytes}",
                                 f"s_cselect_b32 s{self.s_slot}, 0, s{self.s_slot}",
                                 f"s_sub_u32 s{self.s_dl}, s{self.s_slot}, s{self.s_dl}"])
                    for r in self.addr_regs:
                        fill.append([f"v_add_u32 v{r}, s{self.s_dl}, v{r}"])
            for l in interleave(mf, fill, len(self.read_units(0, 0))):
                a(l)
        a(f"s_cbranch_scc1 {lp}")
        a("s_waitcnt vmcnt(0) lgkmcnt(0)")


P_X, P_WQ, P_WK, P_WV, P_WO, P_BX, P_WG, P_WU, P_WD, P_OUT, P_DBG, P_WS = [16 + 2 * i for i in range(12)]
SRD0, SRD1, SRD2, SRD3, SRD4, SRD5 = 40, 44, 48, 52, 56, 60
S_WOFF, S_KX, S_KW, S_WAVE = 64, 65, 66, 67
S_TOK0, S_COL, S_T0, S_T1, S_T2 = 68, 69, 70, 71, 72
S_CNT_, S_SLOT_, S_KIDX, S_DL, S_ROT = 76, 77, 78, 79, 73
GS = (S_WOFF, S_KX, S_KW, S_WAVE, S_CNT_, S_SLOT_, S_KIDX, S_DL)


def load_kernargs(a):
    if INSTR:
        for i in range(84, 98):
            a(f"s_mov_b32 s{i}, 0")
        a("s_memtime s[80:81]")
        a("s_memrealtime s[82:83]")
    a("s_load_dwordx16 s[16:31], s[0:1], 0")
    a("s_load_dwordx8 s[32:39], s[0:1], 64")


RT = [int(x) for x in os.environ.get("RT", "0,1,2").split(",")]
def rstamp(a, idx):
    if INSTR and idx in RT:
        a("s_memrealtime s[98:99]")
        a("s_waitcnt lgkmcnt(0)")
        a(f"s_mov_b32 s{(3, 7, 15)[RT.index(idx)]}, s98")


P1ST = bool(os.environ.get("P1ST"))
def stamp(a, idx, p1=False):
    if INSTR and (p1 == P1ST or idx < 4):
        a("s_memtime s[98:99]")
        a("s_waitcnt lgkmcnt(0)")
        a(f"s_sub_u32 s{84+idx}, s98, s80")


def stamp_end(a, n, wg=None):
    if INSTR:
        lab = a.newlabel("se")
        a("s_mov_b64 exec, -1")
        a("s_waitcnt vmcnt(0)")
        a("s_memtime s[98:99]")
        a("s_memrealtime s[100:101]")
        a("s_waitcnt lgkmcnt(0)")
        a(f"s_sub_u32 s{84+n}, s98, s80")
        a(f"s_sub_u32 s{85+n}, s100, s82")
        lab2 = a.newlabel("se")
        a(f"s_cmp_lg_u32 s{S_WAVE}, 0")
        a(f"s_cbranch_scc1 {lab2}")
        make_srd(a, 40, P_WS, WS_TL + KIDX[0] * 4096, 4096)
        a("s_getreg_b32 s98, hwreg(HW_REG_XCC_ID)")
        a("s_and_b32 s98, s98, 7")
        a("s_andn2_b32 s100, s100, 7")
        a("s_or_b32 s100, s100, s98")
        a("v_mov_b32 v2, s82")
        a("v_mov_b32 v3, s100")
        a("s_lshl_b32 s98, s2, 3")
        a("v_mov_b32 v1, s98")
        a("buffer_store_dwordx2 v[2:3], v1, s[40:43], 0 offen")
        make_srd(a, 40, P_WS, WS_TL + 2 * 4096, 4096)
        a("v_mov_b32 v3, s3")
        a("v_mov_b32 v4, s7")
        a("v_mov_b32 v5, s15")
        a("v_lshlrev_b32 v1, 1, v1")
        a("buffer_store_dwordx4 v[2:5], v1, s[40:43], 0 offen")
        a.label(lab2)
        a(f"s_cmp_lg_u32 s2, {INSTR_WG if wg is None else wg}")
        a(f"s_cbranch_scc1 {lab}")
        a(f"s_cmp_lg_u32 s{S_WAVE}, 0")
        a(f"s_cbranch_scc1 {lab}")
        make_srd(a, 40, P_DBG, 0, 256)
        a("v_mov_b32 v1, 0")
        for i in range(14):
            a(f"v_mov_b32 v2, s{84+i}")
            a(f"buffer_store_dword v2, v1, s[40:43], 0 offen offset:{4*i}")
        a.label(lab)
INSTR_WG = int(os.environ.get("INSTR_WG", "100"))


def round_bf16(a, dst, src):
    a(f"v_cvt_pk_bf16_f32 v{dst}, v{src}, v{src}")
    a(f"v_lshlrev_b32 v{dst}, 16, v{dst}")


def ln_stats(a, v_sum, v_sq, v_mean, v_rstd, t):
    a(f"v_mul_f32 v{v_mean}, {f32(1.0/D)}, v{v_sum}")
    a(f"v_mul_f32 v{t[0]}, {f32(1.0/D)}, v{v_sq}")
    a(f"v_fma_f32 v{t[0]}, -v{v_mean}, v{v_mean}, v{t[0]}")
    a(f"v_max_f32 v{t[0]}, 0, v{t[0]}")
    round_bf16(a, v_mean, v_mean)
    round_bf16(a, t[0], t[0])
    a(f"v_add_f32 v{t[0]}, {f32(1e-5)}, v{t[0]}")
    round_bf16(a, t[0], t[0])
    a(f"v_sqrt_f32 v{t[0]}, v{t[0]}")
    a("s_nop 0")
    round_bf16(a, t[0], t[0])
    a(f"v_rcp_f32 v{v_rstd}, v{t[0]}")
    a("s_nop 0")


def gram_diag(a, g, acc_sq, dst):
    t = g.tmp
    a(f"v_and_b32 v{t[0]}, 3, v{g.v_i16}")
    a(f"v_mov_b32 v{t[1]}, v{acc_sq}")
    for r in range(1, 4):
        a(f"v_cmp_eq_u32 vcc, {r}, v{t[0]}")
        a("s_nop 1")
        a(f"v_cndmask_b32 v{t[1]}, v{t[1]}, v{acc_sq+r}, vcc")
    a(f"v_lshrrev_b32 v{t[0]}, 2, v{g.v_i16}")
    a(f"v_lshl_add_u32 v{t[0]}, v{t[0]}, 4, v{g.v_i16}")
    a(f"v_lshlrev_b32 v{t[0]}, 2, v{t[0]}")
    a(f"ds_bpermute_b32 v{dst}, v{t[0]}, v{t[1]}")
    a("s_waitcnt lgkmcnt(0)")


def xlane_add(a, v, v_lane, t0, t1, masks, op="v_add_f32"):
    for m in masks:
        a(f"v_xor_b32 v{t0}, {m}, v{v_lane}")
        a(f"v_lshlrev_b32 v{t0}, 2, v{t0}")
        a(f"ds_bpermute_b32 v{t1}, v{t0}, v{v}")
        a("s_waitcnt lgkmcnt(0)")
        a(f"{op} v{v}, v{v}, v{t1}")


QSCALE = (DH ** -0.5) * 1.4426950408889634


def prefetch_lin(a, v_tid, v_t, v_dummy, srd, s_base, s_j, nlines, s_tmp, nthreads=256):
    a(f"s_mul_i32 s{s_tmp}, s{s_j}, {nlines*128}")
    if s_base is not None:
        a(f"s_add_u32 s{s_tmp}, s{s_tmp}, s{s_base}")
    a(f"v_lshlrev_b32 v{v_t}, 7, v{v_tid}")
    n = (nlines + nthreads - 1) // nthreads
    for i in range(n):
        if i:
            a(f"s_add_u32 s{s_tmp}, s{s_tmp}, {nthreads*128}")
        a(f"buffer_load_dword v{v_dummy}, v{v_t}, {sr(srd,4)}, s{s_tmp} offen")

S_J, S_XB, S_IMG = 12, 13, 14

def dpp_rowmax(a, v):
    for n in (1, 2, 4, 8):
        a("s_nop 1")
        a(f"v_max_f32_dpp v{v}, v{v}, v{v} row_shr:{n} row_mask:0xf bank_mask:0xf bound_ctrl:0")


def swap_add(a, v, t, which):
    a(f"v_mov_b32 v{t}, v{v}")
    a("s_nop 1")
    a(f"v_permlane{which}_swap_b32 v{v}, v{t}")
    a("s_nop 1")
    a(f"v_add_f32 v{v}, v{v}, v{t}")


def gen_k1(a):
    name = "k1_qkv_kernel"
    kernel_begin(a, name)
    a("s_cmp_ge_u32 s2, 256")
    a("s_cbranch_scc1 k1_end")
    load_kernargs(a)
    a(f"s_and_b32 s{S_T1}, s2, 7")
    a(f"s_lshr_b32 s{S_T0}, s2, 3")
    a(f"s_mul_i32 s{S_ROT}, s{S_T0}, 52")
    a(f"s_lshr_b32 s{S_ROT}, s{S_ROT}, 8")
    a(f"s_mul_i32 s{S_ROT}, s{S_ROT}, 5")
    a(f"s_sub_u32 s{S_ROT}, s{S_T0}, s{S_ROT}")
    if os.environ.get("K0ROT", "0") == "0":
        a(f"s_mov_b32 s{S_ROT}, 0")
    a(f"s_lshr_b32 s{S_T2}, s{S_T0}, 3")
    a(f"s_lshl_b32 s{S_T1}, s{S_T1}, 2")
    a(f"s_add_u32 s{S_XB}, s{S_T1}, s{S_T2}")
    a(f"s_lshl_b32 s{S_TOK0}, s{S_XB}, 6")
    a(f"s_and_b32 s{S_J}, s{S_T0}, 7")
    a(f"s_mul_i32 s{S_COL}, s{S_J}, 160")
    a("s_waitcnt lgkmcnt(0)")
    make_srd(a, SRD0, P_X, 0, S * D * 2)
    make_srd(a, SRD1, P_WQ, 0, D * D * 2)
    make_srd(a, SRD2, P_WS, WS_Q, S * D * 2)
    a(f"s_cmp_lt_u32 s{S_J}, 2")
    a("s_cbranch_scc1 k1_b")
    maxv = 8
    lds = 0

    def q_epilogue(g, va):
        t = g.tmp
        v_mean, v_rstd, v_sq, v_ad, v_rq, v_tok = va(), va(), va(), va(), va(), va()
        nA = g.nA
        nx = 2 * nA + 2
        a(f"v_mul_u32_u24 v{t[0]}, {nx*1024}, v{g.v_wave}")
        a(f"v_lshl_add_u32 v{t[0]}, v{g.v_lane}, 4, v{t[0]}")
        a(f"v_xor_b32 v{t[1]}, 2, v{g.v_wave}")
        a(f"v_mul_u32_u24 v{t[1]}, {nx*1024}, v{t[1]}")
        a(f"v_lshl_add_u32 v{t[1]}, v{g.v_lane}, 4, v{t[1]}")
        a(f"v_lshl_add_u32 v{v_tok}, v{g.v_wt}, 1, v{g.v_wo}")
        a(f"v_lshl_add_u32 v{v_tok}, v{v_tok}, 4, v{g.v_i16}")
        a(f"v_add_u32 v{v_tok}, s{S_TOK0}, v{v_tok}")
        a("s_nop 3")
        keep = g.acc[0] + [g.acc_sum[0], g.acc_sq[0]]
        send = g.acc[1] + [g.acc_sum[1], g.acc_sq[1]]
        skip = a.newlabel("xs")
        a(f"s_cmp_lt_u32 s{S_WAVE}, 2")
        a(f"s_cbranch_scc1 {skip}")
        for k_, s_ in zip(keep, send):
            for r in range(4):
                a(f"v_swap_b32 v{k_+r}, v{s_+r}")
        a.label(skip)
        for i, r in enumerate(send + g.acc_cs):
            a(f"ds_write_b128 v{t[0]}, {vr(r,4)} offset:{i*1024}")
        a("s_waitcnt lgkmcnt(0)")
        a("s_barrier")
        csx = [g.fa[0] + 4 * i for i in range(nA)]
        order = [nA, nA + 1] + list(range(nA))
        for i in order:
            a(f"ds_read_b128 {vr(send[i],4)}, v{t[1]} offset:{i*1024}")
            if i < nA:
                a(f"ds_read_b128 {vr(csx[i],4)}, v{t[1]} offset:{(nA+2+i)*1024}")
        a(f"v_mul_u32_u24 v{t[2]}, {D*2}, v{v_tok}")
        a(f"v_lshl_add_u32 v{v_ad}, v{g.v_g}, 3, v{t[2]}")
        a(f"v_add_u32 v{v_ad}, s{S_COL}, v{v_ad}")
        a(f"s_waitcnt lgkmcnt({2*nA})")
        a(f"v_add_f32 v{keep[nA]}, v{keep[nA]}, v{send[nA]}")
        for r in range(4):
            a(f"v_add_f32 v{keep[nA+1]+r}, v{keep[nA+1]+r}, v{send[nA+1]+r}")
        gram_diag(a, g, g.acc_sq[0], v_sq)
        ln_stats(a, g.acc_sum[0], v_sq, v_mean, v_rstd, g.tmp)
        a(f"v_mul_f32 v{v_rq}, {f32(QSCALE)}, v{v_rstd}")
        for fb in range(nA):
            c, cs = g.acc[0][fb], g.acc_cs[fb]
            for r in range(4):
                a(f"v_add_f32 v{c+r}, v{c+r}, v{send[fb]+r}")
                a(f"v_add_f32 v{cs+r}, v{cs+r}, v{csx[fb]+r}")
                a(f"v_fma_f32 v{c+r}, -v{v_mean}, v{cs+r}, v{c+r}")
                a(f"v_mul_f32 v{c+r}, v{c+r}, v{v_rq if fb < 5 else v_rstd}")
            a(f"v_cvt_pk_bf16_f32 v{c}, v{c}, v{c+1}")
            a(f"v_cvt_pk_bf16_f32 v{c+1}, v{c+2}, v{c+3}")
            if fb < 5:
                a(f"buffer_store_dwordx2 {vr(c,2)}, v{v_ad}, {sr(SRD2,4)}, 0 offen offset:{fb*32}")
        return v_tok

    def colsum(lva, lt):
        a.label("k1_cs")
        cva = VAlloc(8)
        lt = [cva() for _ in range(4)]
        csb = cva(40, 4)
        cacc = cva(8, 4)
        v_ca, v_l = cva(), cva()
        S_U, S_SRC, S_DST = S_T0, S_T1, S_KW
        a(f"s_sub_u32 s{S_U}, s{S_WAVE}, 4")
        a(f"s_lshl_b32 s{S_U}, s{S_U}, 8")
        a(f"s_add_u32 s{S_T2}, s{S_U}, s2")
        a(f"s_cmp_eq_u32 s{S_T2}, 768")
        a("s_cbranch_scc1 k1_zero")
        a(f"s_cmp_ge_u32 s{S_T2}, {48*NCS}")
        a("s_cbranch_scc1 k1_end")
        a(f"s_mul_i32 s{S_U}, s{S_T2}, 1366")
        a(f"s_lshr_b32 s{S_U}, s{S_U}, 16")
        a(f"s_mul_i32 s{S_SRC}, s{S_U}, 48")
        a(f"s_sub_u32 s{S_SRC}, s{S_T2}, s{S_SRC}")
        a(f"s_cmp_lt_u32 s{S_SRC}, 24")
        a(f"s_cselect_b32 s{SRD0}, s{P_WG}, s{P_WU}")
        a(f"s_cselect_b32 s{SRD0+1}, s{P_WG+1}, s{P_WU+1}")
        a(f"s_mov_b32 s{SRD0+2}, {F*D*2}")
        a(f"s_cselect_b32 s{S_DST}, 0, 24")
        a(f"s_sub_u32 s{S_SRC}, s{S_SRC}, s{S_DST}")
        a(f"s_lshl_b32 s{S_SRC}, s{S_SRC}, 7")
        a(f"s_mul_i32 s{S_U}, s{S_U}, {80*F*2}")
        a(f"s_add_u32 s{S_SRC}, s{S_SRC}, s{S_U}")
        a(f"v_and_b32 v{v_l}, 63, v0")
        a(f"v_lshrrev_b32 v{lt[0]}, 3, v{v_l}")
        a(f"v_mul_u32_u24 v{lt[0]}, {F*2}, v{lt[0]}")
        a(f"v_and_b32 v{lt[1]}, 7, v{v_l}")
        a(f"v_lshl_add_u32 v{v_ca}, v{lt[1]}, 4, v{lt[0]}")
        for i in range(10):
            a(f"buffer_load_dwordx4 {vr(csb+4*i,4)}, v{v_ca}, {sr(SRD0,4)}, s{S_SRC} offen")
            a(f"s_add_u32 s{S_SRC}, s{S_SRC}, {8*F*2}")
        a(f"v_lshrrev_b32 v{lt[0]}, 4, v{v_l}")
        a(f"v_lshlrev_b32 v{lt[0]}, 3, v{lt[0]}")
        a(f"v_lshl_add_u32 v{v_ca}, v{lt[1]}, 5, v{lt[0]}")
        make_srd(a, SRD3, P_WS, WS_CS, NCS * 3072 * 4)
        a(f"s_lshl_b32 s{S_T2}, s{S_T2}, 8")
        a("s_barrier")
        for i in range(10):
            a(f"s_waitcnt vmcnt({9-i})")
            for j in range(4):
                if i == 0:
                    a(f"v_lshlrev_b32 v{cacc+2*j}, 16, v{csb+j}")
                    a(f"v_and_b32 v{cacc+2*j+1}, 0xffff0000, v{csb+j}")
                else:
                    a(f"v_lshlrev_b32 v{lt[0]}, 16, v{csb+4*i+j}")
                    a(f"v_and_b32 v{lt[1]}, 0xffff0000, v{csb+4*i+j}")
                    a(f"v_add_f32 v{cacc+2*j}, v{cacc+2*j}, v{lt[0]}")
                    a(f"v_add_f32 v{cacc+2*j+1}, v{cacc+2*j+1}, v{lt[1]}")
        a("s_nop 1")
        for j in range(4):
            a(f"v_permlane32_swap_b32 v{cacc+j}, v{cacc+4+j}")
        a("s_nop 1")
        for j in range(4):
            a(f"v_add_f32 v{cacc+j}, v{cacc+j}, v{cacc+4+j}")
        a("s_nop 1")
        for j in range(2):
            a(f"v_permlane16_swap_b32 v{cacc+j}, v{cacc+2+j}")
        a("s_nop 1")
        for j in range(2):
            a(f"v_add_f32 v{cacc+j}, v{cacc+j}, v{cacc+2+j}")
        a("s_nop 1")
        for j in range(2):
            a(f"v_add_f32_dpp v{cacc+j}, v{cacc+j}, v{cacc+j} row_ror:8 row_mask:0xf bank_mask:0xf")
        a(f"buffer_store_dwordx2 {vr(cacc,2)}, v{v_ca}, {sr(SRD3,4)}, s{S_T2} offen")
        a.label("k1_end")
        a("s_endpgm")
        a.label("k1_zero")
        make_srd(a, SRD3, P_WS, WS_CNT, 32768)
        a(f"v_and_b32 v{v_l}, 63, v0")
        a(f"v_lshlrev_b32 v{v_l}, 8, v{v_l}")
        a(f"v_mov_b32 v{lt[0]}, 0")
        a(f"buffer_store_dword v{lt[0]}, v{v_l}, {sr(SRD3,4)}, 0 offen")
        a(f"s_mov_b32 s{S_T2}, 16384")
        a(f"buffer_store_dword v{lt[0]}, v{v_l}, {sr(SRD3,4)}, s{S_T2} offen")
        a("s_endpgm")
        pre['n'] = cva.n
    pre = {}

    va = VAlloc(1)
    seg = Seg(SRD1, D * 2, 80, 'p160', S_COL)
    g = Gemm(a, va, 64, 2, 2, 1, [seg], 128, 4, D, SRD0, D * 2, S_TOK0, stats=True, colsum=True, sregs=GS, tag="k1q")
    g.split()
    g.setup()
    stamp(a, 0)
    g.mainloop()
    stamp(a, 1)
    lds = max(lds, g.lds_bytes)
    q_epilogue(g, va)
    stamp_end(a, 2)
    a("s_endpgm")
    maxv = max(maxv, va.n)
    g.loader(S_ROT, cont=colsum)
    maxv = max(maxv, pre['n'])

    a.label("k1_b")
    va = VAlloc(1)
    a(f"s_cmp_eq_u32 s{S_J}, 0")
    a(f"s_cselect_b32 s{SRD3}, s{P_WK}, s{P_WV}")
    a(f"s_cselect_b32 s{SRD3+1}, s{P_WK+1}, s{P_WV+1}")
    a(f"s_mov_b32 s{SRD3+2}, {D*DH*2}")
    a(f"s_mov_b32 s{SRD3+3}, 0x00020000")
    make_srd(a, SRD4, P_WS, WS_KV, KV_SZ)
    make_srd(a, SRD5, P_WS, WS_KN, 512)
    seg = Seg(SRD1, D * 2, 80, 'p160', S_COL)
    sk = Seg(SRD3, 40, 32, 'lin40')
    g = Gemm(a, va, 64, 2, 2, 1, [seg, sk], 128, 3, D, SRD0, D * 2, S_TOK0, stats=True, colsum=True, sregs=GS, tag="k1kv")
    g.split()
    g.setup()
    stamp(a, 0)
    g.mainloop()
    stamp(a, 1)
    lds = max(lds, g.lds_bytes)
    v_key = q_epilogue(g, va)
    v_ak, v_n = va(), va()
    t = g.tmp
    k0, k1 = g.acc[0][5], g.acc[0][6]
    a(f"v_cmp_eq_u32 vcc, 0, v{g.v_g}")
    a(f"v_lshrrev_b32 v{t[0]}, 5, v{v_key}")
    a(f"v_mul_u32_u24 v{t[0]}, 2560, v{t[0]}")
    a(f"v_and_b32 v{t[1]}, 31, v{v_key}")
    a(f"s_cmp_lg_u32 s{S_J}, 0")
    a("s_cbranch_scc1 k1_v")
    a(f"v_lshl_add_u32 v{v_ak}, v{t[1]}, 4, v{t[0]}")
    a(f"v_lshrrev_b32 v{t[2]}, 1, v{g.v_g}")
    a(f"v_lshl_add_u32 v{v_ak}, v{t[2]}, 9, v{v_ak}")
    a(f"v_and_b32 v{t[2]}, 1, v{g.v_g}")
    a(f"v_lshl_add_u32 v{v_ak}, v{t[2]}, 3, v{v_ak}")
    a(f"buffer_store_dwordx2 {vr(k0,2)}, v{v_ak}, {sr(SRD4,4)}, 0 offen")
    a(f"v_lshl_add_u32 v{v_key}, v{t[1]}, 3, v{t[0]}")
    a(f"v_cndmask_b32 v{k1}, 0, v{k1}, vcc")
    a(f"v_cndmask_b32 v{k1+1}, 0, v{k1+1}, vcc")
    a("s_and_saveexec_b64 s[74:75], vcc")
    a(f"buffer_store_dwordx2 {vr(k1,2)}, v{v_key}, {sr(SRD4,4)}, 0 offen offset:1024")
    a("s_mov_b64 exec, -1")
    a(f"v_mov_b32 v{v_n}, 0")
    for c in (k0, k0 + 1, k1, k1 + 1):
        a(f"v_lshlrev_b32 v{t[0]}, 16, v{c}")
        a(f"v_and_b32 v{t[1]}, 0xffff0000, v{c}")
        a(f"v_fma_f32 v{v_n}, v{t[0]}, v{t[0]}, v{v_n}")
        a(f"v_fma_f32 v{v_n}, v{t[1]}, v{t[1]}, v{v_n}")
    swap_add(a, v_n, t[0], 32)
    swap_add(a, v_n, t[0], 16)
    dpp_rowmax(a, v_n)
    a(f"s_lshl_b32 s{S_T0}, s{S_XB}, 2")
    a(f"s_add_u32 s{S_T0}, s{S_T0}, s{S_WAVE}")
    a(f"s_lshl_b32 s{S_T0}, s{S_T0}, 2")
    a(f"v_mov_b32 v{t[0]}, 0")
    a("s_mov_b64 exec, 0x8000")
    a(f"buffer_store_dword v{v_n}, v{t[0]}, {sr(SRD5,4)}, s{S_T0} offen")
    stamp_end(a, 2)
    a("s_endpgm")
    a.label("k1_v")
    a(f"v_bfe_u32 v{t[2]}, v{t[1]}, 4, 1")
    a(f"v_mad_u32_u24 v{v_ak}, v{t[2]}, 640, v{t[0]}" if False else f"v_mul_u32_u24 v{t[2]}, 640, v{t[2]}")
    a(f"v_add_u32 v{v_ak}, v{t[2]}, v{t[0]}")
    a(f"v_bfe_u32 v{t[2]}, v{t[1]}, 2, 1")
    a(f"v_mul_u32_u24 v{t[2]}, 320, v{t[2]}")
    a(f"v_add_u32 v{v_ak}, v{t[2]}, v{v_ak}")
    a(f"v_bfe_u32 v{t[2]}, v{t[1]}, 3, 1")
    a(f"v_lshl_add_u32 v{v_ak}, v{t[2]}, 3, v{v_ak}")
    a(f"v_and_b32 v{t[2]}, 3, v{t[1]}")
    a(f"v_lshl_add_u32 v{v_ak}, v{t[2]}, 1, v{v_ak}")
    a(f"v_lshl_add_u32 v{v_ak}, v{g.v_g}, 6, v{v_ak}")
    for fb, c in enumerate((k0, k1)):
        if fb:
            a("s_and_saveexec_b64 s[74:75], vcc")
        for p in range(2):
            o = 1280 + fb * 256 + p * 32
            a(f"buffer_store_short v{c+p}, v{v_ak}, {sr(SRD4,4)}, 0 offen offset:{o}")
            a(f"buffer_store_short_d16_hi v{c+p}, v{v_ak}, {sr(SRD4,4)}, 0 offen offset:{o+16}")
    stamp_end(a, 2)
    a("s_endpgm")
    maxv = max(maxv, va.n)
    g.loader(S_ROT, cont=lambda lva, lt: a("s_branch k1_cs"))

    kernel_end(a, name, maxv)
    return (name, 256, 512, lds)


QB = 53248
MX, MW, MS = 0, 20480, 49152
QST, KMX = 102400, 112640
S_HOOK, S_KVC = 15, 7
CNT_KV = 80
LOC = int(os.environ.get("LOC", "7"))
PRET = int(os.environ.get("PRET", "5"))
KVL = int(os.environ.get("KVL", "0"))
FLAG = 128


def p1_compute(a, tmp, v_first, v_alias, init):
    va = VAlloc(v_first)
    seg = Seg(SRD1, D * 2, 80, 'p160', S_COL)
    g = Gemm(a, va, 64, 2, 2, 1, [seg], 128, 4, D, SRD0, D * 2, S_TOK0, stats=True, colsum=True, sregs=GS, tag="k1q",
             lds_base=QB - 36864, slot0=1)
    assert g.lds_base + g.lds_bytes <= KV_SZ and g.stage_bytes == 36864
    g.tmp = tmp
    t = g.tmp
    make_srd(a, SRD5, P_DBG, 0, 256)
    make_srd(a, SRD3, P_WS, WS_KN, 512)
    fr = v_alias
    mac = [v_alias + 16 + 4 * i for i in range(6)]
    v_mx, v_mw, v_mp, v_fl, v_z, v_one, v_fa, v_ad = [v_alias + 40 + i for i in range(8)]
    v_mean = va(2, 2)
    v_rstd = v_mean + 1
    v_sq, v_xw, v_xr, v_xc, v_qw = [va() for _ in range(5)]
    a(f"v_mov_b32 v{v_z}, 0")
    a(f"v_mov_b32 v{v_one}, 1")
    lab = a.newlabel("bz")
    a(f"s_lshl_b32 s{S_T1}, s2, 2")
    a(f"s_add_u32 s{S_T1}, s{S_T1}, s{S_WAVE}")
    a(f"s_cmp_lg_u32 s{S_T1}, 3")
    a(f"s_cbranch_scc1 {lab}")
    a(f"v_and_b32 v{t[0]}, 63, v0")
    a(f"v_lshlrev_b32 v{t[0]}, 8, v{t[0]}")
    for i in range(4):
        a(f"v_mov_b32 v{fr+i}, 0")
    a(f"s_mov_b32 s{S_T2}, 16384")
    a(f"buffer_store_dwordx4 {vr(fr,4)}, v{t[0]}, {sr(SRDC,4)}, 0 offen sc1")
    if LOC:
        a(f"buffer_store_dwordx4 {vr(fr,4)}, v{t[0]}, {sr(SRDC,4)}, 0 offen offset:128 sc1")
    a(f"buffer_store_dwordx4 {vr(fr,4)}, v{t[0]}, {sr(SRDC,4)}, s{S_T2} offen sc1")
    if KVL:
        a(f"buffer_store_dwordx4 {vr(fr,4)}, v{t[0]}, {sr(SRDC,4)}, s{S_T2} offen offset:128 sc1")
    a("s_mov_b64 exec, 1")
    a("s_waitcnt vmcnt(0)")
    a(f"buffer_store_dword v{v_one}, v{v_z}, {sr(SRD5,4)}, 0 offen offset:{FLAG} sc1")
    a("s_mov_b64 exec, -1")
    a.label(lab)
    g.setup()
    assert g.fb[1] + 8 == g.fa[0] + 56
    fq = [fr + 4 * i for i in range(4)] + [g.fa[0] + 4 * i for i in range(14)]
    a(f"s_cmp_eq_u32 s{S_WAVE}, 0")
    a(f"s_cselect_b32 s{S_HOOK}, 2, 0")
    a(f"s_and_b32 s{S_KVC}, s2, 15")
    a(f"s_lshl_b32 s{S_KVC}, s{S_KVC}, 8")
    a(f"s_add_u32 s{S_KVC}, s{S_KVC}, {96*256}")
    a(f"v_lshlrev_b32 v{v_fa}, 8, v{g.v_lane}")
    a(f"v_mul_u32_u24 v{t[0]}, 5120, v{g.v_wave}")
    a(f"v_lshl_add_u32 v{v_mx}, v{g.v_lane}, 4, v{t[0]}")
    a(f"v_mul_u32_u24 v{t[0]}, 6400, v{g.v_wave}")
    a(f"v_add_u32 v{t[0]}, {MW}, v{t[0]}")
    a(f"v_lshl_add_u32 v{v_mp}, v{g.v_lane}, 4, v{t[0]}")
    a(f"v_lshrrev_b32 v{t[1]}, 2, v{g.v_i16}")
    a(f"v_lshl_add_u32 v{t[1]}, v{g.v_g}, 3, v{t[1]}")
    a(f"v_mad_u32_u24 v{t[0]}, v{t[1]}, 40, v{t[0]}")
    a(f"v_and_b32 v{t[1]}, 3, v{g.v_i16}")
    a(f"v_lshl_add_u32 v{v_mw}, v{t[1]}, 3, v{t[0]}")
    XW = 8 * 1024
    assert QB + 4 * XW <= QST
    a(f"v_mul_u32_u24 v{t[0]}, {XW}, v{g.v_wave}")
    a(f"v_lshl_add_u32 v{t[0]}, v{g.v_lane}, 4, v{t[0]}")
    a(f"v_add_u32 v{v_xw}, {QB}, v{t[0]}")
    a(f"v_xor_b32 v{v_xr}, {2*XW}, v{t[0]}")
    a(f"v_add_u32 v{v_xr}, {QB}, v{v_xr}")
    a(f"v_lshlrev_b32 v{t[0]}, 4, v{g.v_i16}")
    a(f"v_sub_u32 v{v_xc}, v{v_xr}, v{t[0]}")
    a(f"v_lshl_add_u32 v{t[1]}, v{g.v_wt}, 1, v{g.v_wo}")
    a(f"v_lshl_add_u32 v{t[1]}, v{t[1]}, 4, v{g.v_i16}")
    a(f"v_mul_u32_u24 v{t[2]}, 160, v{t[1]}")
    a(f"v_lshl_add_u32 v{t[2]}, v{g.v_g}, 3, v{t[2]}")
    a(f"v_add_u32 v{v_qw}, {QST}, v{t[2]}")
    a(f"v_add_u32 v{t[2]}, s{S_TOK0}, v{t[1]}")
    a(f"v_mul_u32_u24 v{t[2]}, {D*2}, v{t[2]}")
    a(f"v_lshl_add_u32 v{t[2]}, v{g.v_g}, 3, v{t[2]}")
    a(f"v_add_u32 v{V_RAD}, s{S_COL}, v{t[2]}")
    a(f"ds_write_b32 v{v_z}, v{v_z} offset:{MS+1024}")
    a("s_waitcnt lgkmcnt(0)")
    a("s_barrier")
    stamp(a, 0)
    a(f"buffer_load_dword v{v_fl}, v{v_z}, {sr(SRD5,4)}, 0 offen offset:{FLAG} sc1")
    for s_ in range(5):
        a(f"ds_read_b128 {vr(fq[3*s_],4)}, v{v_mx} offset:{MX + s_*1024}")
        for b in range(2):
            for e in range(2):
                a(f"ds_read_b64_tr_b16 {vr(fq[3*s_+1+b]+2*e,2)}, v{v_mw} offset:{(s_*32+4*e)*40 + b*32}")
    ones = vr(g.v_ones, 4)
    for s_ in range(5):
        a(f"s_waitcnt lgkmcnt({min(15, 5*(4-s_))})")
        B, A0, A1 = [vr(fq[3*s_+i], 4) for i in range(3)]
        for i, (x, y) in enumerate([(A0, B), (A1, B), (A0, ones), (A1, ones), (ones, B), (B, B)]):
            a(f"v_mfma_f32_16x16x32_bf16 {vr(mac[i],4)}, {x}, {y}, " + ("0" if s_ == 0 else vr(mac[i], 4)))
    a("s_nop 7")
    a("s_nop 7")
    lab = a.newlabel("pw")
    a(f"s_cmp_eq_u32 s{S_WAVE}, 0")
    a(f"s_cbranch_scc1 {lab}")
    for i in range(6):
        a(f"ds_write_b128 v{v_mp}, {vr(mac[i],4)} offset:{i*1024}")
    a("s_mov_b64 exec, 1")
    a(f"ds_add_u32 v{v_z}, v{v_one} offset:{MS+1024}")
    a("s_mov_b64 exec, -1")
    a.label(lab)

    def finalize():
        skip, lv, lj, lp, lq = [a.newlabel("fz") for _ in range(5)]
        a(f"s_cmp_lg_u32 s{S_WAVE}, 0")
        a(f"s_cbranch_scc1 {skip}")
        a.label(lp)
        a(f"ds_read_b32 v{t[0]}, v{v_z} offset:{MS+1024}")
        a("s_waitcnt lgkmcnt(0)")
        a(f"v_readfirstlane_b32 s{S_T2}, v{t[0]}")
        a("s_nop 3")
        a(f"s_cmp_lt_u32 s{S_T2}, 3")
        a(f"s_cbranch_scc1 {lp}")
        order = [4, 5, 0, 2, 1, 3]
        for i in order:
            for w in range(1, 4):
                a(f"ds_read_b128 {vr(fq[6*(w-1)+i],4)}, v{v_mp} offset:{w*6400 + i*1024}")
        a(f"s_and_b32 s{S_T1}, s{S_J}, 3")
        a(f"s_lshl_b32 s{S_T1}, s{S_T1}, 4")
        a(f"s_add_u32 s{S_T1}, s{S_T1}, s{S_TOK0}")
        a(f"s_lshr_b32 s{S_KX}, s{S_T1}, 2")
        a(f"s_lshr_b32 s{S_T1}, s{S_T1}, 5")
        a(f"s_mul_i32 s{S_KW}, s{S_T1}, 2560")
        a(f"s_and_b32 s{S_T0}, s{S_J}, 1")
        for n, i in enumerate(order):
            a(f"s_waitcnt lgkmcnt({min(15, 3*(5-n))})")
            for w in range(3):
                for r in ((0,) if i == 4 else (0, 2)):
                    a(f"v_pk_add_f32 {vr(mac[i]+r,2)}, {vr(mac[i]+r,2)}, {vr(fq[6*w+i]+r,2)}")
        gram_diag(a, g, mac[5], v_sq)
        ln_stats(a, mac[4], v_sq, v_mean, v_rstd, t)
        for b in range(2):
            c, cs = mac[b], mac[2 + b]
            for r in range(4):
                a(f"v_fma_f32 v{c+r}, -v{v_mean}, v{cs+r}, v{c+r}")
                a(f"v_mul_f32 v{c+r}, v{c+r}, v{v_rstd}")
            a(f"v_cvt_pk_bf16_f32 v{c}, v{c}, v{c+1}")
            a(f"v_cvt_pk_bf16_f32 v{c+1}, v{c+2}, v{c+3}")
        k0, k1 = mac[0], mac[1]
        v_n = v_sq
        a(f"v_mov_b32 v{v_n}, 0")
        a(f"s_bitcmp1_b32 s{S_J}, 2")
        a(f"s_cbranch_scc1 {lv}")
        a(f"v_lshrrev_b32 v{t[0]}, 1, v{g.v_g}")
        a(f"v_lshlrev_b32 v{t[0]}, 8, v{t[0]}")
        a(f"v_lshl_add_u32 v{t[0]}, v{g.v_i16}, 4, v{t[0]}")
        a(f"v_and_b32 v{t[1]}, 1, v{g.v_g}")
        a(f"v_lshl_add_u32 v{t[0]}, v{t[1]}, 3, v{t[0]}")
        a(f"ds_write_b64 v{t[0]}, {vr(k0,2)} offset:{MS}")
        a(f"v_lshlrev_b32 v{t[1]}, 3, v{g.v_i16}")
        a("s_mov_b64 exec, 0xffff")
        a(f"ds_write_b64 v{t[1]}, {vr(k1,2)} offset:{MS+512}")
        for c in (k1, k1 + 1, k0, k0 + 1):
            if c == k0:
                a("s_mov_b64 exec, -1")
            a(f"v_lshlrev_b32 v{t[0]}, 16, v{c}")
            a(f"v_and_b32 v{t[1]}, 0xffff0000, v{c}")
            a(f"v_fma_f32 v{v_n}, v{t[0]}, v{t[0]}, v{v_n}")
            a(f"v_fma_f32 v{v_n}, v{t[1]}, v{t[1]}, v{v_n}")
        swap_add(a, v_n, t[0], 32)
        swap_add(a, v_n, t[0], 16)
        dpp_rowmax(a, v_n)
        a("s_mov_b64 exec, 0x8000")
        a(f"buffer_store_dword v{v_n}, v{v_z}, {sr(SRD3,4)}, s{S_KX} offen sc1")
        a("s_mov_b64 exec, -1")
        a(f"v_lshlrev_b32 v{t[0]}, 9, v{g.v_g}")
        a(f"v_lshl_add_u32 v{v_ad}, v{g.v_i16}, 4, v{t[0]}")
        a(f"s_lshl_b32 s{S_T0}, s{S_T0}, 7")
        a(f"v_cmp_gt_u32 vcc, 2, v{g.v_g}")
        a(f"v_mov_b32 v{t[0]}, s{S_T0}")
        a(f"v_cndmask_b32 v{t[1]}, 0, v{t[0]}, vcc")
        a(f"v_add3_u32 v{v_ad}, v{v_ad}, v{t[0]}, v{t[1]}")
        a(f"s_branch {lj}")
        a.label(lv)
        a(f"v_bfe_u32 v{t[0]}, v{g.v_i16}, 2, 1")
        a(f"v_mul_u32_u24 v{t[0]}, 320, v{t[0]}")
        a(f"v_bfe_u32 v{t[1]}, v{g.v_i16}, 3, 1")
        a(f"v_lshl_add_u32 v{t[0]}, v{t[1]}, 3, v{t[0]}")
        a(f"v_and_b32 v{t[1]}, 3, v{g.v_i16}")
        a(f"v_lshl_add_u32 v{t[0]}, v{t[1]}, 1, v{t[0]}")
        a(f"v_lshl_add_u32 v{t[0]}, v{g.v_g}, 6, v{t[0]}")
        for b, c in enumerate((k0, k1)):
            if b:
                a("s_mov_b64 exec, 0xffff")
            for p in range(2):
                o = MS + b * 256 + p * 32
                a(f"ds_write_b16 v{t[0]}, v{c+p} offset:{o}")
                a(f"ds_write_b16_d16_hi v{t[0]}, v{c+p} offset:{o+16}")
        a("s_mov_b64 exec, -1")
        a(f"s_mul_i32 s{S_T0}, s{S_T0}, 640")
        a(f"s_add_u32 s{S_T0}, s{S_T0}, 1280")
        a(f"v_lshl_add_u32 v{v_ad}, v{g.v_lane}, 4, s{S_T0}")
        a.label(lj)
        a(f"v_lshlrev_b32 v{t[0]}, 4, v{g.v_lane}")
        a(f"ds_read_b128 {vr(mac[2],4)}, v{t[0]} offset:{MS}")
        a("s_mov_b32 exec_hi, 0xff")
        a("s_waitcnt lgkmcnt(0)")
        a(f"buffer_store_dwordx4 {vr(mac[2],4)}, v{v_ad}, {sr(SRD1,4)}, s{S_KW} offen sc1")
        a("s_mov_b64 exec, -1")
        a.label(skip)

    def hook():
        skip, sec, done, lp, lq = [a.newlabel("hk") for _ in range(5)]
        a(f"s_cmp_eq_u32 s{S_HOOK}, 0")
        a(f"s_cbranch_scc1 {skip}")
        a(f"s_sub_u32 s{S_HOOK}, s{S_HOOK}, 1")
        a("s_mov_b64 exec, 1")
        a(f"s_cmp_eq_u32 s{S_HOOK}, 0")
        a(f"s_cbranch_scc1 {sec}")
        a(f"s_mov_b32 s{S_T1}, 0x20000")
        a.label(lp)
        a("s_waitcnt vmcnt(0)")
        a(f"v_readfirstlane_b32 s{S_T2}, v{v_fl}")
        a(f"s_sub_u32 s{S_T1}, s{S_T1}, 1")
        a(f"s_cmp_eq_u32 s{S_T1}, 0")
        a(f"s_cbranch_scc1 {lq}")
        a(f"s_cmp_lg_u32 s{S_T2}, 0")
        a(f"s_cbranch_scc1 {lq}")
        a(f"buffer_load_dword v{v_fl}, v{v_z}, {sr(SRD5,4)}, 0 offen offset:{FLAG} sc1")
        a(f"s_branch {lp}")
        a.label(lq)
        a(f"v_mov_b32 v{v_fl}, 1")
        if KVL:
            a(f"v_mov_b32 v{v_ad}, 1")
            a(f"s_lshl_b32 s{S_T1}, s{S_XB}, 8")
            a(f"s_add_u32 s{S_T1}, s{S_T1}, {112*256}")
            a(f"buffer_atomic_add v{v_ad}, v{v_z}, {sr(SRDC,4)}, s{S_T1} offen offset:128 sc0")
        a(f"buffer_atomic_add v{v_fl}, v{v_z}, {sr(SRDC,4)}, s{S_KVC} offen sc0 sc1")
        if KVL:
            a("s_waitcnt vmcnt(1)")
            a(f"v_readfirstlane_b32 s{S_T2}, v{v_ad}")
            a(f"v_mov_b32 v{v_ad}, 1")
            a(f"s_mov_b32 s{S_T1}, {120*256}")
            a("s_nop 2")
            a(f"s_cmp_lg_u32 s{S_T2}, 31")
            a(f"s_cbranch_scc1 {done}")
            a(f"buffer_atomic_add v{v_ad}, v{v_z}, {sr(SRDC,4)}, s{S_T1} offen offset:128 sc0 sc1")
            a("s_waitcnt vmcnt(0)")
            a(f"v_readfirstlane_b32 s{S_T2}, v{v_ad}")
            a(f"s_mov_b32 s{S_T1}, {CNT_KV*256}")
            a("s_nop 3")
            a(f"s_cmp_lg_u32 s{S_T2}, 7")
            a(f"s_cbranch_scc1 {done}")
            a("s_mov_b64 exec, 0xff")
            a(f"buffer_store_dword v{v_one}, v{v_fa}, {sr(SRDC,4)}, s{S_T1} offen offset:2048 sc1")
        a(f"s_branch {done}")
        a.label(sec)
        a("s_waitcnt vmcnt(0)")
        a(f"v_readfirstlane_b32 s{S_T2}, v{v_fl}")
        a(f"v_mov_b32 v{v_fl}, 1")
        a(f"s_mov_b32 s{S_KVC}, {CNT_KV*256}")
        a("s_nop 2")
        a(f"s_cmp_lg_u32 s{S_T2}, 15")
        a(f"s_cbranch_scc1 {done}")
        a(f"buffer_atomic_add v{v_fl}, v{v_z}, {sr(SRDC,4)}, s{S_KVC} offen sc0 sc1")
        a("s_waitcnt vmcnt(0)")
        a(f"v_readfirstlane_b32 s{S_T2}, v{v_fl}")
        a("s_nop 3")
        a(f"s_cmp_lg_u32 s{S_T2}, 15")
        a(f"s_cbranch_scc1 {done}")
        a("s_mov_b64 exec, 0xff")
        a(f"buffer_store_dword v{v_one}, v{v_fa}, {sr(SRDC,4)}, s{S_KVC} offen offset:2048 sc1")
        a.label(done)
        a("s_mov_b64 exec, -1")
        a.label(skip)
        a(f"s_cmp_lg_u32 s{g.s_cnt}, 2")
        a(f"s_cbranch_scc1 {lq}x")
        init()
        a.label(f"{lq}x")

    finalize()
    g.mainloop(pre_bar=hook)
    stamp(a, 1)
    nA = g.nA
    keep = g.acc[0] + [g.acc_sq[0]]
    send = g.acc[1] + [g.acc_sq[1]]
    a("s_nop 3")
    a(f"ds_write_b128 v{v_xw}, {vr(send[nA],4)} offset:{nA*1024}")
    a(f"ds_write_b32 v{v_xw}, v{g.acc_sum[1]} offset:{(nA+1)*1024}")
    for i in range(nA):
        a(f"ds_write_b128 v{v_xw}, {vr(send[i],4)} offset:{i*1024}")
    a("s_mov_b32 exec_lo, 0x00010001")
    a("s_mov_b32 exec_hi, 0x00010001")
    for i in range(nA):
        a(f"ds_write_b128 v{v_xw}, {vr(g.acc_cs[i],4)} offset:{(nA+2)*1024 + 16*i}")
    a("s_mov_b64 exec, -1")
    a("s_waitcnt lgkmcnt(0)")
    stamp(a, 4, True)
    a("s_barrier")
    stamp(a, 5, True)
    csx = [g.fa[0] + 4 * i for i in range(nA)]
    a(f"ds_read_b128 {vr(send[nA],4)}, v{v_xr} offset:{nA*1024}")
    a(f"ds_read_b32 v{g.acc_sum[1]}, v{v_xr} offset:{(nA+1)*1024}")
    for i in range(nA):
        a(f"ds_read_b128 {vr(send[i],4)}, v{v_xr} offset:{i*1024}")
        a(f"ds_read_b128 {vr(csx[i],4)}, v{v_xc} offset:{(nA+2)*1024 + 16*i}")
    a(f"s_waitcnt lgkmcnt({2*nA})")
    a(f"v_add_f32 v{g.acc_sum[0]}, v{g.acc_sum[0]}, v{g.acc_sum[1]}")
    for r in (0, 2):
        a(f"v_pk_add_f32 {vr(keep[nA]+r,2)}, {vr(keep[nA]+r,2)}, {vr(send[nA]+r,2)}")
    gram_diag(a, g, g.acc_sq[0], v_sq)
    for fb in range(nA):
        c, cs = g.acc[0][fb], g.acc_cs[fb]
        for r in (0, 2):
            a(f"v_pk_add_f32 {vr(c+r,2)}, {vr(c+r,2)}, {vr(send[fb]+r,2)}")
            a(f"v_pk_add_f32 {vr(cs+r,2)}, {vr(cs+r,2)}, {vr(csx[fb]+r,2)}")
    ln_stats(a, g.acc_sum[0], v_sq, v_mean, v_rstd, g.tmp)
    a(f"v_mul_f32 v{v_rstd}, {f32(QSCALE)}, v{v_rstd}")
    a(f"v_sub_f32 v{v_mean}, 0, v{v_mean}")
    stamp(a, 6, True)
    pm = vr(v_mean, 2)
    for fb in range(nA):
        c, cs = g.acc[0][fb], g.acc_cs[fb]
        for r in (0, 2):
            a(f"v_pk_fma_f32 {vr(c+r,2)}, {pm}, {vr(cs+r,2)}, {vr(c+r,2)} op_sel_hi:[0,1,1]")
        for r in (0, 2):
            a(f"v_pk_mul_f32 {vr(c+r,2)}, {vr(c+r,2)}, {pm} op_sel:[0,1] op_sel_hi:[1,1]")
        a(f"v_cvt_pk_bf16_f32 v{c}, v{c}, v{c+1}")
        a(f"v_cvt_pk_bf16_f32 v{c+1}, v{c+2}, v{c+3}")
        a(f"ds_write_b64 v{v_qw}, {vr(c,2)} offset:{fb*32}")
    stamp(a, 7, True)
    g.maxv = va.n
    return g


KVROT = int(os.environ.get("KVROT", "7"))
LATE1 = int(os.environ.get("LATE1", "1"))
CPF = int(os.environ.get("CPF", "0"))


def code_touch(a, v_t, v_d, first):
    lab = a.newlabel("pc")
    a("s_getpc_b64 s[74:75]")
    a.label(lab)
    a(f"s_sub_u32 s74, s74, {lab}-k2_attn_kernel")
    a("s_subb_u32 s75, s75, 0")
    for i in range(first, 2):
        a(f"v_lshlrev_b32 v{v_t}, 7, v0")
        if i:
            a(f"v_add_u32 v{v_t}, {i*32768}, v{v_t}")
        a(f"v_min_u32 v{v_t}, k2_code_end-k2_attn_kernel-4, v{v_t}")
        a(f"global_load_dword v{v_d}, v{v_t}, s[74:75]")


def p1_mini(a):
    t = [30, 31]
    a("v_and_b32 v0, 255, v0")
    make_srd(a, SRD0, P_X, 0, S * D * 2)
    a(f"s_bitcmp0_b32 s{S_J}, 2")
    a(f"s_cselect_b32 s{SRD3}, s{P_WK}, s{P_WV}")
    a(f"s_cselect_b32 s{SRD3+1}, s{P_WK+1}, s{P_WV+1}")
    a(f"s_mov_b32 s{SRD3+2}, {D*DH*2}")
    a(f"s_mov_b32 s{SRD3+3}, 0x00020000")
    a(f"s_and_b32 s{S_T1}, s{S_J}, 3")
    a(f"s_lshl_b32 s{S_T1}, s{S_T1}, 4")
    a(f"s_add_u32 s{S_T1}, s{S_T1}, s{S_TOK0}")
    a(f"v_and_b32 v{t[0]}, 15, v0")
    a(f"v_add_u32 v{t[0]}, s{S_T1}, v{t[0]}")
    a(f"v_mul_u32_u24 v{t[0]}, {D*2}, v{t[0]}")
    a(f"v_and_b32 v{t[1]}, 0xf0, v0")
    a(f"v_add_u32 v{t[0]}, v{t[0]}, v{t[1]}")
    a(f"v_lshlrev_b32 v{t[1]}, 4, v0")
    a(f"s_and_b32 s{S_WOFF}, s{S_WAVE}, 3")
    a(f"s_lshl_b32 s{S_WOFF}, s{S_WOFF}, 10")
    for j in range(7):
        if j < 5:
            a(f"s_add_u32 m0, s{S_WOFF}, {MX + j*4096}")
            a(f"s_mov_b32 s{S_T1}, {j*256}")
            a(f"buffer_load_dwordx4 v{t[0]}, {sr(SRD0,4)}, s{S_T1} offen lds")
        a(f"s_add_u32 m0, s{S_WOFF}, {MW + j*4096}")
        a(f"s_mov_b32 s{S_T1}, {j*4096}")
        a(f"buffer_load_dwordx4 v{t[1]}, {sr(SRD3,4)}, s{S_T1} offen lds")


def p1_loader(a, g, v_l, dma, early):
    lva = VAlloc(30)
    t = [lva() for _ in range(2)]
    v_p = lva(2, 2)
    v_pa = lva()
    make_srd(a, SRD1, P_WQ, 0, D * D * 2)
    make_srd(a, SRD2, P_WS, WS_KV, KV_SZ)
    g.ld_prepare(None, head=False, v0=40)
    g.lstamp(0)
    if LATE1 < 2:
        g.ld_issue(0)
    if LATE1 < 1:
        g.ld_issue(1)
    a(f"s_lshl_b32 s{S_KVC}, s{S_XB}, 8")
    a(f"s_add_u32 s{S_KVC}, s{S_KVC}, {(CNT_KV+8)*256}")
    a(f"v_lshlrev_b32 v{v_pa}, 3, v{v_l}")
    make_srd(a, SRD4, P_WS, WS_KN, 512)
    early()
    a(f"s_waitcnt vmcnt({len(g.ops)})")
    g.lstamp(1)
    a("s_barrier")
    if LATE1 >= 2:
        g.ld_issue(0)
    if LATE1 >= 1:
        g.ld_issue(1)
    g.ld_issue(2)
    g.ld_ready(0)
    g.ld_issue(3)
    g.ld_ready(1)
    g.ld_issue(4)
    g.ld_ready(2)
    g.ld_ready(3)

    def poll():
        a("s_mov_b64 exec, 1")
        a(f"buffer_load_dword v{t[0]}, v{v_pa}, {sr(SRDC,4)}, s{S_KVC} offen sc1")
        a("s_mov_b64 exec, -1")
        g.ops.append(("p", 0))

    def check(lab):
        last = max(i for i, o in enumerate(g.ops) if o == ("p", 0))
        a(f"s_waitcnt vmcnt({len(g.ops) - 1 - last})")
        a(f"v_readfirstlane_b32 s{S_T2}, v{t[0]}")
        a("s_nop 3")
        a(f"s_cmp_eq_u32 s{S_T2}, 0")
        a(f"s_cbranch_scc1 {lab}")

    def kv():
        a(f"buffer_load_dwordx2 {vr(v_p,2)}, v{v_pa}, {sr(SRD4,4)}, 0 offen")
        dma(13, SRD2, True)
        g.ops.extend([("d", 0)] * 14)

    lb, lb2, lb3, lj, lsp, lsd, lsc = [a.newlabel("p1") for _ in range(7)]
    poll()
    g.ld_ready(4)
    check(lb3)
    kv()
    a("s_barrier")
    a(f"s_branch {lj}")
    a.label(lb3)
    poll()
    a("s_barrier")
    a(f"s_mov_b32 s{S_T1}, 0x20000")
    a(f"s_branch {lsc}")
    a.label(lsp)
    a(f"s_sub_u32 s{S_T1}, s{S_T1}, 1")
    a(f"s_cmp_eq_u32 s{S_T1}, 0")
    a(f"s_cbranch_scc1 {lsd}")
    poll()
    a.label(lsc)
    check(lsp)
    a.label(lsd)
    kv()
    a.label(lj)
    g.lstamp(13)
    a("s_barrier")
    a("s_waitcnt vmcnt(13)")
    a(f"v_max_f32 v{v_p}, v{v_p}, v{v_p+1}")
    dpp_rowmax(a, v_p)
    a("s_nop 1")
    a(f"v_max_f32_dpp v{v_p}, v{v_p}, v{v_p} row_bcast:15 row_mask:0xa bank_mask:0xf")
    a("s_nop 1")
    a(f"v_max_f32_dpp v{v_p}, v{v_p}, v{v_p} row_bcast:31 row_mask:0xc bank_mask:0xf")
    a(f"v_mov_b32 v{t[0]}, {KMX}")
    a("s_mov_b32 exec_lo, 0")
    a("s_brev_b32 exec_hi, 1")
    a(f"ds_write_b32 v{t[0]}, v{v_p}")
    a("s_mov_b64 exec, -1")


def gen_k2(a):
    name = "k2_attn_kernel"
    kernel_begin(a, name)
    a("s_cmp_ge_u32 s2, 256")
    a("s_cbranch_scc1 k2_end")
    load_kernargs(a)
    a(f"s_and_b32 s{S_XB}, s2, 7")
    a(f"s_lshr_b32 s{S_J}, s2, 3")
    a(f"s_lshr_b32 s{S_T2}, s{S_J}, 3")
    a(f"s_lshl_b32 s{S_T1}, s{S_XB}, 2")
    a(f"s_add_u32 s{S_T1}, s{S_T1}, s{S_T2}")
    a(f"s_lshl_b32 s{S_TOK0}, s{S_T1}, 6")
    a(f"s_and_b32 s{S_T0}, s{S_J}, 7")
    a(f"s_mul_i32 s{S_COL}, s{S_T0}, 160")
    va = VAlloc(1)
    t = [va() for _ in range(6)]
    v_kn = va(2, 2)
    v_l16, v_lane, v_n, v_h, v_qa, v_oa = [va() for _ in range(6)]
    v_cur = [va() for _ in range(3)]
    v_nxt = [va() for _ in range(3)]
    v_m = [va(), va()]
    v_ob = va()
    v_cst = va()
    O = [va(16, 4) for _ in range(2)]
    VF = [va(8, 4) for _ in range(2)]
    v_late = va.n
    Q = [va(8, 4) for _ in range(2)]
    Sb = [[va(16, 4) for _ in range(2)] for _ in range(2)]
    P = [va(8, 4) for _ in range(2)]
    KF = [va(8, 4) for _ in range(2)]
    S_STEP, S_CNT, S_GOFF, S_HEAD = 76, 77, 78, 79
    S_VM, S_KM = 4, 6
    TB = 2560

    def kread(dst, regs, tile):
        return [f"ds_read_b128 {vr(dst,4)}, v{regs[0]} offset:{tile*TB}",
                f"ds_read_b64 {vr(dst+4,2)}, v{regs[1]} offset:{tile*TB}"]

    def vread(dst, regs, tile):
        return [f"s_mov_b64 exec, {sr(S_VM,2)}",
                f"ds_read_b128 {vr(dst,4)}, v{regs[2]} offset:{tile*TB}",
                f"ds_read_b128 {vr(dst+4,4)}, v{regs[2]} offset:{tile*TB+640}",
                "s_mov_b64 exec, -1"]

    a(f"v_lshrrev_b32 v{t[0]}, 6, v0")
    a(f"v_and_b32 v{v_lane}, 63, v0")
    a(f"v_readfirstlane_b32 s{S_WAVE}, v{t[0]}")
    a(f"v_lshlrev_b32 v{v_l16}, 4, v{v_lane}")
    a(f"v_and_b32 v{v_n}, 31, v0")
    a(f"v_bfe_u32 v{v_h}, v0, 5, 1")
    a("s_waitcnt lgkmcnt(0)")
    a(f"s_cmp_lt_u32 s{S_WAVE}, 4")
    a("s_cbranch_scc1 k2_comp")
    p1_mini(a)
    make_srd(a, SRDC, P_WS, WS_CNT, 32768)
    a("s_branch k2_helper")
    a.label("k2_comp")
    if CPF:
        code_touch(a, t[0], TDUM, 0)
    make_srd(a, SRDC, P_WS, WS_CNT, 32768)
    make_srd(a, SRD1, P_WS, WS_KV, KV_SZ)
    def init():
        a(f"s_mul_i32 s{S_T1}, s{S_WAVE}, 40")
        a(f"s_add_u32 s{S_T2}, s{S_T1}, {QST}")
        a(f"v_mul_u32_u24 v{t[1]}, 160, v{v_n}")
        a(f"v_add_u32 v{v_ob}, s{S_T2}, v{t[1]}")
        a(f"v_lshl_add_u32 v{v_qa}, v{v_h}, 4, v{v_ob}")
        a(f"v_lshl_add_u32 v{t[2]}, v{v_h}, 3, s{S_T1}")
        a(f"v_lshrrev_b32 v{t[3]}, 4, v{t[2]}")
        a(f"v_and_b32 v{t[2]}, 8, v{t[2]}")
        a(f"v_lshl_add_u32 v{t[2]}, v{t[3]}, 8, v{t[2]}")
        a(f"v_and_b32 v{t[3]}, 15, v{v_n}")
        a(f"v_lshl_add_u32 v{t[2]}, v{t[3]}, 4, v{t[2]}")
        a(f"v_lshrrev_b32 v{t[3]}, 4, v{v_n}")
        a(f"v_mul_u32_u24 v{t[3]}, 2560, v{t[3]}")
        a(f"v_add_u32 v{v_oa}, v{t[2]}, v{t[3]}")
        for b in range(2):
            for i in range(16):
                a(f"v_mov_b32 v{O[b]+i}, 0")
            for i in range(8):
                a(f"v_mov_b32 v{VF[b]+i}, 0x3f803f80")
        a(f"s_mov_b32 s{S_VM}, 0x000fffff")
        a(f"s_mov_b32 s{S_VM+1}, 0x000fffff")
        a(f"v_mov_b32 v{v_cur[0]}, v{v_l16}")
        a(f"v_lshlrev_b32 v{v_cur[1]}, 3, v{v_n}")
        a(f"v_add_u32 v{v_cur[1]}, 1024, v{v_cur[1]}")
        a(f"v_mul_u32_u24 v{t[0]}, 320, v{v_h}")
        a(f"v_lshl_add_u32 v{v_cur[2]}, v{v_n}, 4, v{t[0]}")
        a(f"v_add_u32 v{v_cur[2]}, 1280, v{v_cur[2]}")
        for i in range(3):
            a(f"v_add_u32 v{v_nxt[i]}, {8*TB}, v{v_cur[i]}")
    assert VF[1] + 8 - O[0] == 48
    make_srd(a, SRD4, P_WS, WS_O, S * D * 2)
    make_srd(a, SRD2, P_X, 0, S * D * 2)
    for r in v_nxt + v_cur:
        a(f"v_mov_b32 v{r}, 0")
    gq = p1_compute(a, t, v_late, O[0], init)
    for b in range(2):
        a(f"v_mov_b32 v{KF[b]+6}, 0x3f80")
        a(f"v_mov_b32 v{KF[b]+7}, 0")
        a(f"v_mov_b32 v{Q[b]+7}, 0")
    for i in range(8):
        a(f"v_mov_b32 v{P[1]+i}, 0")
    for i in range(12, 16):
        a(f"v_mov_b32 v{Sb[1][1]+i}, 0")
    a(f"v_cmp_eq_u32 vcc, 0, v{v_h}")
    a(f"v_mov_b32 v{t[0]}, {KMX}")
    a("s_waitcnt lgkmcnt(0)")
    stamp(a, 8, True)
    a("s_barrier")
    stamp(a, 9, True)
    a(f"ds_read_b32 v{v_kn}, v{t[0]}")
    for b in range(2):
        a(f"ds_read_b64 {vr(Q[b],2)}, v{v_qa} offset:{b*5120}")
        a(f"ds_read_b64 {vr(Q[b]+2,2)}, v{v_qa} offset:{b*5120+8}")
        a(f"ds_read_b64 {vr(Q[b]+4,2)}, v{v_ob} offset:{b*5120+32}")
    for l in kread(KF[0], v_cur, 0) + kread(KF[1], v_cur, 1) + vread(VF[0], v_cur, 0):
        a(l)
    a("s_waitcnt lgkmcnt(6)")
    a(f"v_readfirstlane_b32 s{S_KM}, v{v_kn}")
    for b in range(2):
        a(f"v_cndmask_b32 v{Q[b]+4}, 0, v{Q[b]+4}, vcc")
        a(f"v_cndmask_b32 v{Q[b]+5}, 0, v{Q[b]+5}, vcc")
    for i in range(6):
        for b in range(2):
            a(f"v_dot2_f32_bf16 v{t[2+b]}, v{Q[b]+i}, v{Q[b]+i}, " + ("0" if i == 0 else f"v{t[2+b]}"))
    a("s_nop 2")
    for b in range(2):
        a(f"v_mov_b32 v{t[b]}, v{t[2+b]}")
    a("s_nop 1")
    for b in range(2):
        a(f"v_permlane32_swap_b32 v{t[b]}, v{t[2+b]}")
    a("s_nop 1")
    for b in range(2):
        a(f"v_add_f32 v{t[b]}, v{t[b]}, v{t[2+b]}")
    for b in range(2):
        a(f"v_mul_f32 v{t[b]}, s{S_KM}, v{t[b]}")
    for b in range(2):
        a(f"v_sqrt_f32 v{t[b]}, v{t[b]}")
    a("s_nop 0")
    for b in range(2):
        a(f"v_cvt_pk_bf16_f32 v{t[b]}, -v{t[b]}, 0")
    for b in range(2):
        a(f"v_cndmask_b32 v{Q[b]+6}, 0, v{t[b]}, vcc")
    a("s_waitcnt lgkmcnt(0)")

    def qk(b, par, s, kf):
        d = vr(Sb[b][par], 16)
        c = "0" if s == 0 else d
        return f"v_mfma_f32_32x32x16_bf16 {d}, {vr(kf+4*s,4)}, {vr(Q[b]+4*s,4)}, {c}"

    def pv(b, s, vf):
        d = vr(O[b], 16)
        return f"v_mfma_f32_32x32x16_bf16 {d}, {vr(vf+4*s,4)}, {vr(P[b]+4*s,4)}, {d}"

    for b in range(2):
        a(qk(b, 0, 0, KF[0]))
        a(qk(b, 0, 1, KF[0]))
    a("s_nop 7")
    a("s_nop 7")
    a(f"s_mov_b32 s{S_CNT}, 8")
    stamp(a, 2)
    rstamp(a, 10)
    a.label("k2_loop")

    def exps(b, par, i0):
        return [f"v_exp_f32 v{Sb[b][par]+i}, v{Sb[b][par]+i}" for i in range(i0, i0 + 4)]

    def cvts(b, par, i0):
        return [f"v_cvt_pk_bf16_f32 v{P[b]+(i0+i)//2}, v{Sb[b][par]+i0+i}, v{Sb[b][par]+i0+i+1}" for i in (0, 2)]

    for ph in range(8):
        p = ph & 1
        q = p ^ 1
        kt, vt = ph + 2, ph + 1
        kr = kread(KF[p], v_cur if kt < 8 else v_nxt, kt % 8)
        vrd = vread(VF[q], v_cur if vt < 8 else v_nxt, vt % 8)
        M = [qk(0, q, 0, KF[q]), pv(1, 1, VF[q]), qk(0, q, 1, KF[q]), pv(0, 0, VF[p]),
             qk(1, q, 0, KF[q]), pv(0, 1, VF[p]), qk(1, q, 1, KF[q]), pv(1, 0, VF[p])]
        V = [cvts(1, q, 12) + exps(0, p, 0),
             exps(0, p, 4),
             cvts(0, p, 0) + cvts(0, p, 4) + exps(0, p, 8),
             cvts(0, p, 8) + exps(0, p, 12),
             cvts(0, p, 12) + exps(1, p, 0),
             exps(1, p, 4),
             cvts(1, p, 0) + cvts(1, p, 4) + exps(1, p, 8),
             cvts(1, p, 8) + exps(1, p, 12)]
        extra = [[] for _ in range(8)]
        if ph == 2:
            a(f"s_bitcmp1_b32 0x140, s{S_CNT}")
            a("s_cbranch_scc1 k2_sy")
            a.label("k2_nb1")
        a("s_waitcnt lgkmcnt(0)")
        extra[0] += kr
        extra[2] += vrd
        for i in range(8):
            a(M[i])
            for l in extra[i]:
                a(l)
            for l in V[i]:
                a(l)
    if INSTR:
        a("s_memtime s[98:99]")
        a("s_waitcnt lgkmcnt(0)")
        a("s_sub_u32 s98, s98, s80")
        a(f"s_mov_b32 m0, s{S_CNT}")
        a("s_nop 0")
        a(f"v_writelane_b32 v{v_cst}, s98, m0")
    a(f"s_cmp_eq_u32 s{S_CNT}, 2")
    a(f"s_cselect_b32 s{S_STEP}, 0, {8*TB}")
    for i in range(3):
        a(f"v_mov_b32 v{v_cur[i]}, v{v_nxt[i]}")
        a(f"v_add_u32 v{v_nxt[i]}, s{S_STEP}, v{v_nxt[i]}")
    a("s_cbranch_scc0 k2_nb")
    a("s_mov_b64 exec, 1")
    a(f"ds_add_u32 v{v_l16}, v{KF[0]+6}")
    a("s_mov_b64 exec, -1")
    a.label("k2_nb")
    a(f"s_sub_u32 s{S_CNT}, s{S_CNT}, 1")
    a(f"s_cmp_lg_u32 s{S_CNT}, 0")
    a("s_cbranch_scc1 k2_loop")
    for l in cvts(1, 1, 12):
        a(l)
    a("s_nop 1")
    a(pv(1, 1, VF[1]))
    a("s_waitcnt vmcnt(0) lgkmcnt(0)")
    a("s_nop 7")
    a("s_nop 7")
    stamp(a, 3)
    rstamp(a, 0)
    a(f"v_mov_b32 v{t[0]}, {f32(2.0**-40)}")
    a(f"v_cmp_nge_f32 s[74:75], v{O[0]+12}, v{t[0]}")
    a(f"v_cmp_nge_f32 vcc, v{O[1]+12}, v{t[0]}")
    a("s_nop 3")
    a("s_or_b64 vcc, vcc, s[74:75]")
    a("s_cbranch_vccnz k2_slow")
    a.label("k2_epi")
    for b in range(2):
        a(f"v_rcp_f32 v{t[0]}, v{O[b]+12}")
        a("s_nop 0")
        for i in range(12):
            a(f"v_mul_f32 v{O[b]+i}, v{O[b]+i}, v{t[0]}")
        for i in range(6):
            a(f"v_cvt_pk_bf16_f32 v{O[b]+i}, v{O[b]+2*i}, v{O[b]+2*i+1}")
    a(f"v_mov_b32 v{t[0]}, {TAB + 3072}")
    for i in range(4):
        a(f"v_mov_b32 v{P[0]+i}, 0")
    a(f"s_mul_i32 s{S_T1}, s{S_WAVE}, 2560")
    a(f"v_add_u32 v{t[1]}, s{S_T1}, v{v_l16}")
    a(f"s_lshr_b32 s{S_KW}, s{S_TOK0}, 4")
    a(f"s_add_u32 s{S_KW}, s{S_KW}, s{S_WAVE}")
    a(f"s_mul_i32 s{S_KW}, s{S_KW}, {16*D*2}")
    a(f"s_lshl_b32 s{S_T1}, s{S_COL}, 4")
    a(f"s_add_u32 s{S_KW}, s{S_KW}, s{S_T1}")
    a("s_barrier")
    a(f"ds_write_b128 v{t[0]}, {vr(P[0],4)}")
    for b in range(2):
        a(f"ds_write_b64 v{v_oa}, {vr(O[b],2)} offset:{b*5120}")
        a(f"ds_write_b64 v{v_oa}, {vr(O[b]+2,2)} offset:{b*5120+256}")
    a("s_mov_b64 exec, 0xffffffff")
    for b in range(2):
        a(f"ds_write_b64 v{v_oa}, {vr(O[b]+4,2)} offset:{b*5120+512}")
    a("s_mov_b64 exec, -1")
    a("s_waitcnt lgkmcnt(0)")
    a("s_barrier")
    for i in range(3):
        a(f"ds_read_b128 {vr(O[0]+4*i,4)}, v{t[1]} offset:{i*1024}")
    for i in range(3):
        a(f"s_waitcnt lgkmcnt({2-i})")
        if i == 2:
            a("s_mov_b64 exec, 0xffffffff")
        a(f"buffer_store_dwordx4 {vr(O[0]+4*i,4)}, v{v_l16}, {sr(SRD4,4)}, s{S_KW} offen offset:{i*1024} {HPOL}")
    def otouch():
        a(f"v_lshlrev_b32 v{t[3]}, 3, v{v_l16}")
        a("s_mov_b64 exec, 0xfffff")
        a(f"buffer_load_dword v{TDUM}, v{t[3]}, {sr(SRD4,4)}, s{S_KW} offen")
    publish(a, t, 2, otouch)
    if INSTR and not P1ST:
        lab = a.newlabel("hs")
        a(f"s_cmp_lg_u32 s2, {INSTR_WG}")
        a(f"s_cbranch_scc1 {lab}")
        a(f"s_cmp_lg_u32 s{S_WAVE}, 0")
        a(f"s_cbranch_scc1 {lab}")
        make_srd(a, 92, P_DBG, 0, 256)
        a(f"v_lshlrev_b32 v{t[0]}, 2, v{v_lane}")
        a(f"buffer_store_dword v{v_cst}, v{t[0]}, s[92:95], 0 offen offset:192")
        a.label(lab)
    ffn = ffn_compute(a)
    a.label("k2_end")
    a("s_endpgm")

    a.label("k2_sy")
    a(f"s_cmp_eq_u32 s{S_CNT}, 6")
    a("s_cbranch_scc1 k2_sy2")
    a("s_barrier")
    a("s_branch k2_nb1")
    a.label("k2_sy2")
    assert t[1] % 2 == 0
    kv_wait(a, v_l16, t[1], 0)
    for fb in range(5):
        a(f"buffer_load_dwordx2 {vr(RES3+2*fb,2)}, v{V_RAD}, {sr(SRD2,4)}, 0 offen offset:{fb*32}")
    a("s_branch k2_nb1")

    def rewind():
        for i in range(3):
            a(f"v_subrev_u32 v{v_nxt[i]}, {56*TB}, v{v_cur[i]}")
        a(f"s_mov_b32 s{S_GOFF}, 0")

    def advance(lab):
        a(f"s_add_u32 s{S_GOFF}, s{S_GOFF}, {TB}")
        a(f"s_cmp_lt_u32 s{S_GOFF}, {64*TB}")
        a(f"s_cbranch_scc1 {lab}")

    def gkread(dst):
        return [f"buffer_load_dwordx4 {vr(dst,4)}, v{v_nxt[0]}, {sr(SRD1,4)}, s{S_GOFF} offen",
                f"buffer_load_dwordx2 {vr(dst+4,2)}, v{v_nxt[1]}, {sr(SRD1,4)}, s{S_GOFF} offen"]

    def gvread(dst):
        return [f"s_mov_b64 exec, {sr(S_VM,2)}",
                f"buffer_load_dwordx4 {vr(dst,4)}, v{v_nxt[2]}, {sr(SRD1,4)}, s{S_GOFF} offen",
                f"buffer_load_dwordx4 {vr(dst+4,4)}, v{v_nxt[2]}, {sr(SRD1,4)}, s{S_GOFF} offen offset:640",
                "s_mov_b64 exec, -1"]

    a.label("k2_slow")
    for b in range(2):
        a(f"v_mov_b32 v{Q[b]+6}, 0")
        a(f"v_mov_b32 v{v_m[b]}, 0xff800000")
    rewind()
    a.label("k2_slow1")
    for l in gkread(KF[0]):
        a(l)
    a("s_waitcnt vmcnt(0)")
    for b in range(2):
        a(qk(b, 0, 0, KF[0]))
        a(qk(b, 0, 1, KF[0]))
    a("s_nop 7")
    a("s_nop 7")
    for b in range(2):
        for i in range(0, 16, 2):
            a(f"v_max3_f32 v{v_m[b]}, v{Sb[b][0]+i}, v{Sb[b][0]+i+1}, v{v_m[b]}")
    advance("k2_slow1")
    a(f"v_cmp_eq_u32 vcc, 0, v{v_h}")
    for b in range(2):
        xlane_add(a, v_m[b], v_lane, t[0], t[1], (32,), op="v_max_f32")
        a(f"v_cvt_pk_bf16_f32 v{t[2]}, -v{v_m[b]}, 0")
        a(f"v_cndmask_b32 v{Q[b]+6}, 0, v{t[2]}, vcc")
        for i in range(16):
            a(f"v_mov_b32 v{O[b]+i}, 0")
    rewind()
    a.label("k2_slow2")
    for l in gkread(KF[0]) + gvread(VF[0]):
        a(l)
    a("s_waitcnt vmcnt(0)")
    for b in range(2):
        a(qk(b, 0, 0, KF[0]))
        a(qk(b, 0, 1, KF[0]))
    a("s_nop 7")
    a("s_nop 7")
    for b in range(2):
        for i0 in range(0, 16, 4):
            for l in exps(b, 0, i0):
                a(l)
        a("s_nop 0")
        for i0 in range(0, 16, 4):
            for l in cvts(b, 0, i0):
                a(l)
    a("s_nop 1")
    for b in range(2):
        a(pv(b, 0, VF[0]))
        a(pv(b, 1, VF[0]))
    a("s_nop 7")
    a("s_nop 7")
    advance("k2_slow2")
    a("s_branch k2_epi")

    a.label("k2_helper")
    hva = VAlloc(v_h + 1)
    lt = t
    v_l = v_lane
    S_U, S_SRC, S_DST, S_RW = S_T0, S_T1, S_KW, S_ROT
    S_G = S_IMG
    cnt = [0]

    def dma(n, srd, first=False):
        if first:
            cnt[0] = 0
            a(f"s_mov_b32 s{S_KX}, s{S_WOFF}")
            a(f"s_and_b32 s{S_G}, s{S_J}, {KVROT}")
            a(f"s_mul_i32 s{S_G}, s{S_G}, 20480")
            a(f"s_add_u32 s{S_G}, s{S_G}, s{S_WOFF}")
        for i in range(n):
            a(f"s_mov_b32 m0, s{S_KX}")
            a(f"s_add_u32 s{S_KX}, s{S_KX}, 4096")
            a(f"buffer_load_dwordx4 v{v_l16}, {sr(srd,4)}, s{S_G} offen lds")
            a(f"s_add_u32 s{S_G}, s{S_G}, 4096")
            cnt[0] += 1
            if cnt[0] % 5 == 0:
                a(f"s_cmp_ge_u32 s{S_G}, {KV_SZ}")
                a(f"s_cselect_b32 s{S_T2}, {KV_SZ}, 0")
                a(f"s_sub_u32 s{S_G}, s{S_G}, s{S_T2}")
    pva = VAlloc(132)
    sel = pva(4, 4)
    pa = [pva() for _ in range(5)]
    pb = [pva() for _ in range(3)]
    v_rb, v_kf, v_km, v_ca, v_co = [pva() for _ in range(5)]

    def gather(regs, cprw, magic, stride):
        for i, r in enumerate(regs):
            a(f"v_add_u32 v{lt[0]}, {i*64}, v{v_l}")
            a(f"v_mul_u32_u24 v{lt[1]}, {magic}, v{lt[0]}")
            a(f"v_lshrrev_b32 v{lt[1]}, 19, v{lt[1]}")
            a(f"v_mul_u32_u24 v{lt[2]}, {cprw}, v{lt[1]}")
            a(f"v_sub_u32 v{lt[2]}, v{lt[0]}, v{lt[2]}")
            a(f"v_and_b32 v{lt[3]}, 0xfffffff3, v{lt[1]}")
            a(f"v_bfe_u32 v{lt[4]}, v{lt[1]}, 2, 1")
            if cprw == 12:
                a(f"v_lshlrev_b32 v{lt[5]}, 1, v{lt[4]}")
                a(f"v_xor_b32 v{lt[2]}, v{lt[2]}, v{lt[5]}")
            a(f"v_lshl_or_b32 v{lt[3]}, v{lt[4]}, 3, v{lt[3]}")
            a(f"v_bfe_u32 v{lt[4]}, v{lt[1]}, 3, 1")
            a(f"v_lshl_or_b32 v{lt[3]}, v{lt[4]}, 2, v{lt[3]}")
            a(f"v_mul_u32_u24 v{lt[3]}, {stride}, v{lt[3]}")
            a(f"v_lshl_add_u32 v{r}, v{lt[2]}, 4, v{lt[3]}")

    def early():
        gather(pb, 12, 43691, F * 2)
        gather(pa, 10, 52429, D * 2)
        a(f"v_lshlrev_b32 v{v_rb}, 7, v{v_l}")
        a(f"s_lshl_b32 s{S_T2}, s{S_WAVE}, 2")
        a(f"v_mov_b32 v{v_kf}, s{S_T2}")
        a(f"v_mov_b32 v{v_km}, -1")
        a(f"v_lshrrev_b32 v{lt[0]}, 3, v{v_l}")
        a(f"v_mul_u32_u24 v{lt[0]}, {F*2}, v{lt[0]}")
        a(f"v_and_b32 v{lt[1]}, 7, v{v_l}")
        a(f"v_lshl_add_u32 v{v_ca}, v{lt[1]}, 4, v{lt[0]}")
        a(f"v_and_b32 v{lt[0]}, 16, v{v_l}")
        a(f"v_lshl_add_u32 v{v_co}, v{lt[1]}, 5, v{lt[0]}")
        a(f"v_and_b32 v{lt[0]}, 1, v{v_l}")
        a(f"v_lshlrev_b32 v{lt[0]}, 4, v{lt[0]}")
        a(f"v_mov_b32 v{lt[1]}, 0x3f80")
        a(f"v_lshlrev_b32 v{lt[0]}, v{lt[0]}, v{lt[1]}")
        a(f"v_bfe_u32 v{lt[1]}, v{v_l}, 1, 3")
        for i in range(4):
            a(f"v_cmp_eq_u32 vcc, {i}, v{lt[1]}")
            a(f"v_cndmask_b32 v{sel+i}, 0, v{lt[0]}, vcc")
    p1_loader(a, gq, v_l, dma, early)
    a(f"s_and_b32 s{S_WOFF}, s{S_WAVE}, 3")
    a(f"s_lshl_b32 s{S_RW}, s2, 2")
    a(f"s_add_u32 s{S_RW}, s{S_RW}, s{S_WOFF}")
    a(f"s_lshl_b32 s{S_T2}, s{S_J}, 2")
    a(f"s_add_u32 s{S_J}, s{S_T2}, s{S_WOFF}")
    make_srd(a, SRD3, P_WS, WS_IMG, IMG_SZ)
    a("s_waitcnt vmcnt(10) lgkmcnt(0)")
    a("s_barrier")
    a("s_waitcnt vmcnt(0)")
    a("s_barrier")
    gq.lstamp(14)
    if PRET & 1:
        lab = a.newlabel("pt")
        a(f"s_cmp_lg_u32 s{S_WOFF}, 0")
        a(f"s_cbranch_scc1 {lab}")
        if PRET & 4:
            a("s_cmp_ge_u32 s2, 24")
            a(f"s_cbranch_scc1 {lab}")
        cnt_touch(a)
        a.label(lab)
    dma(27, SRD2)
    gq.lstamp(15)
    lab = a.newlabel("fc")
    a(f"s_cmp_lg_u32 s{S_RW}, 0")
    a(f"s_cbranch_scc1 {lab}")
    make_srd(a, SRD5, P_DBG, 0, 256)
    a("s_mov_b64 exec, 1")
    a(f"v_mov_b32 v{lt[0]}, 0")
    a(f"buffer_store_dword v{lt[0]}, v{lt[0]}, {sr(SRD5,4)}, 0 offen offset:{FLAG} sc1")
    a("s_mov_b64 exec, -1")
    a.label(lab)
    lab = a.newlabel("zw")
    a(f"s_cmp_lg_u32 s{S_WAVE}, 4")
    a(f"s_cbranch_scc1 {lab}")
    a(f"v_mov_b32 v{lt[0]}, 0")
    a(f"ds_write2_b32 v{lt[0]}, v{lt[0]}, v{lt[0]} offset0:0 offset1:1")
    a.label(lab)

    def kvdone(n):
        a(f"s_waitcnt vmcnt({n})")
        a(f"ds_write_b32 v{v_kf}, v{v_km}")
        gq.lstamp(16)
        if INSTR:
            a("s_waitcnt vmcnt(0)")
            gq.lstamp(17)
    dummy = hva()

    def touch():
        for c in range(3):
            if c == 0:
                a(f"s_mul_i32 s{S_T1}, s{S_J}, {50*128}")
            else:
                a(f"s_mul_i32 s{S_T1}, s{S_J}, {120*128}")
                a(f"s_and_b32 s{S_T0}, s{S_XB}, 1")
                a(f"s_mul_i32 s{S_T0}, s{S_T0}, {1966080}")
                a(f"s_add_u32 s{S_T1}, s{S_T1}, s{S_T0}")
                a(f"s_add_u32 s{S_T1}, s{S_T1}, {IMG_GU + (c-1)*56*128}")
            a(f"buffer_load_dword v{dummy}, v{v_rb}, {sr(SRD3,4)}, s{S_T1} offen")
            if c < 2:
                a(f"s_sleep {TSLEEP2}")

    bufB = [hva(12, 4) for _ in range(2)]
    bufA = hva(20, 4)

    def loadsB(buf):
        a(f"s_mul_i32 s{S_SRC}, s{S_U}, 52429")
        a(f"s_lshr_b32 s{S_SRC}, s{S_SRC}, 22")
        a(f"s_mul_i32 s{S_DST}, s{S_SRC}, 80")
        a(f"s_sub_u32 s{S_T2}, s{S_U}, s{S_DST}")
        a(f"s_mul_i32 s{S_SRC}, s{S_SRC}, 192")
        a(f"s_lshr_b32 s{S_DST}, s{S_T2}, 3")
        a(f"s_lshl_b32 s{S_DST}, s{S_DST}, 2")
        a(f"s_and_b32 s{S_KX}, s{S_T2}, 3")
        a(f"s_add_u32 s{S_DST}, s{S_DST}, s{S_KX}")
        a(f"s_mul_i32 s{S_DST}, s{S_DST}, {16*F*2}")
        a(f"s_add_u32 s{S_SRC}, s{S_SRC}, s{S_DST}")
        a(f"s_bitcmp1_b32 s{S_T2}, 2")
        a(f"s_cselect_b32 s{SRD0}, s{P_WU}, s{P_WG}")
        a(f"s_cselect_b32 s{SRD0+1}, s{P_WU+1}, s{P_WG+1}")
        a(f"s_mov_b32 s{SRD0+2}, {F*D*2}")
        for i in range(3):
            a(f"buffer_load_dwordx4 {vr(buf+4*i,4)}, v{pb[i]}, {sr(SRD0,4)}, s{S_SRC} offen")

    def storesB(buf):
        a(f"s_mul_i32 s{S_DST}, s{S_U}, 3072")
        a(f"s_add_u32 s{S_DST}, s{S_DST}, {IMG_GU}")
        for i in range(3):
            a(f"buffer_store_dwordx4 {vr(buf+4*i,4)}, v{v_l16}, {sr(SRD3,4)}, s{S_DST} offen offset:{i*1024} {IMGPOL}")

    a(f"s_mov_b32 s{S_U}, s{S_RW}")
    loadsB(bufB[0])
    a(f"s_cmp_lt_u32 s{S_RW}, 544")
    a("s_cbranch_scc1 k2_rpa")
    a(f"s_add_u32 s{S_U}, s{S_RW}, {1024 - 544}")
    a(f"s_cmp_ge_u32 s{S_U}, 1280")
    a("s_cbranch_scc1 k2_rpe")
    loadsB(bufB[1])
    kvdone(6)
    a("s_waitcnt vmcnt(0)")
    storesB(bufB[1])
    a("s_branch k2_rpf")
    a.label("k2_rpa")
    l1, l2 = a.newlabel("ra"), a.newlabel("ra")
    a(f"s_cmp_ge_u32 s{S_RW}, 160")
    a(f"s_cbranch_scc1 {l1}")
    a(f"s_mul_i32 s{S_SRC}, s{S_RW}, 3277")
    a(f"s_lshr_b32 s{S_SRC}, s{S_SRC}, 16")
    a(f"s_mul_i32 s{S_DST}, s{S_SRC}, 20")
    a(f"s_sub_u32 s{S_DST}, s{S_RW}, s{S_DST}")
    a(f"s_mov_b32 s{SRD0}, s{P_WO}")
    a(f"s_mov_b32 s{SRD0+1}, s{P_WO+1}")
    a(f"s_mov_b32 s{SRD0+2}, {D*D*2}")
    a(f"s_branch {l2}")
    a.label(l1)
    a(f"s_sub_u32 s{S_U}, s{S_RW}, 160")
    a(f"s_mul_i32 s{S_SRC}, s{S_U}, 1366")
    a(f"s_lshr_b32 s{S_SRC}, s{S_SRC}, 16")
    a(f"s_mul_i32 s{S_DST}, s{S_SRC}, 48")
    a(f"s_sub_u32 s{S_DST}, s{S_U}, s{S_DST}")
    a(f"s_mov_b32 s{SRD0}, s{P_WD}")
    a(f"s_mov_b32 s{SRD0+1}, s{P_WD+1}")
    a(f"s_mov_b32 s{SRD0+2}, {F*D*2}")
    a.label(l2)
    a(f"s_mul_i32 s{S_SRC}, s{S_SRC}, 160")
    a(f"s_mul_i32 s{S_DST}, s{S_DST}, {32*D*2}")
    a(f"s_add_u32 s{S_SRC}, s{S_SRC}, s{S_DST}")
    for i in range(5):
        a(f"buffer_load_dwordx4 {vr(bufA+4*i,4)}, v{pa[i]}, {sr(SRD0,4)}, s{S_SRC} offen")
    a(f"s_mul_i32 s{S_DST}, s{S_RW}, 5120")
    kvdone(8)
    a("s_waitcnt vmcnt(0)")
    for i in range(5):
        if i == 4:
            a(f"s_add_u32 s{S_DST}, s{S_DST}, 4096")
        a(f"buffer_store_dwordx4 {vr(bufA+4*i,4)}, v{v_l16}, {sr(SRD3,4)}, s{S_DST} offen offset:{(i%4)*1024} {IMGPOL}")
    a("s_branch k2_rpf")
    a.label("k2_rpe")
    kvdone(3)
    a("s_waitcnt vmcnt(0)")
    a.label("k2_rpf")
    a(f"s_mov_b32 s{S_U}, s{S_RW}")
    storesB(bufB[0])
    if INSTR:
        a("s_waitcnt vmcnt(0)")
        a("s_memrealtime s[100:101]")
        a("s_waitcnt lgkmcnt(0)")
        lab = a.newlabel("hw")
        a(f"s_cmp_lg_u32 s{S_WAVE}, 4")
        a(f"s_cbranch_scc1 {lab}")
        make_srd(a, 40, P_WS, WS_TL + 4096 + 2048, 2048)
        a("v_mov_b32 v2, s82")
        a("v_mov_b32 v3, s100")
        a("s_lshl_b32 s98, s2, 3")
        a("v_mov_b32 v1, s98")
        a("buffer_store_dwordx2 v[2:3], v1, s[40:43], 0 offen")
        a.label(lab)
    def arrive2(s_sh, n, root, out):
        a(f"v_mov_b32 v{lt[2]}, 1")
        a("s_waitcnt vmcnt(0)")
        a(f"buffer_atomic_add v{lt[2]}, v{lt[0]}, {sr(SRDC,4)}, s{s_sh} offen sc0 sc1")
        a("s_waitcnt vmcnt(0)")
        a(f"v_readfirstlane_b32 s{S_T2}, v{lt[2]}")
        a(f"v_mov_b32 v{lt[2]}, 1")
        a(f"s_mov_b32 s{s_sh}, {root}")
        a("s_nop 2")
        a(f"s_cmp_lg_u32 s{S_T2}, {n-1}")
        a(f"s_cbranch_scc1 {out}")
        a(f"buffer_atomic_add v{lt[2]}, v{lt[0]}, {sr(SRDC,4)}, s{s_sh} offen sc0 sc1")
        a("s_waitcnt vmcnt(0)")
        a(f"v_readfirstlane_b32 s{S_T2}, v{lt[2]}")
        a("s_nop 3")
        a(f"s_cmp_lg_u32 s{S_T2}, 15")
        a(f"s_cbranch_scc1 {out}")
        a("s_mov_b64 exec, 0xff")
        a(f"v_lshlrev_b32 v{lt[3]}, 8, v{v_l}")
        a(f"v_mov_b32 v{lt[2]}, 1")
        a(f"buffer_store_dword v{lt[2]}, v{lt[3]}, {sr(SRDC,4)}, s{s_sh} offen offset:2048 sc1")

    def gpoll(off, add):
        l0, l1, l2 = [a.newlabel("gp") for _ in range(3)]
        a("s_mov_b64 exec, 1")
        a(f"v_mov_b32 v{lt[0]}, 0")
        a(f"s_cmp_lg_u32 s{S_HOOK}, 3")
        a(f"s_cbranch_scc1 {l2}")
        a(f"s_lshl_b32 s{S_T0}, s{S_XB}, 8")
        a(f"s_add_u32 s{S_T0}, s{S_T0}, {off}")
        a(f"s_mov_b32 s{S_KX}, 0x8000")
        a.label(l0)
        a(f"buffer_load_dword v{lt[2]}, v{lt[0]}, {sr(SRDC,4)}, s{S_T0} offen sc1")
        a(f"s_sub_u32 s{S_KX}, s{S_KX}, 1")
        a("s_waitcnt vmcnt(0)")
        a(f"v_readfirstlane_b32 s{S_T2}, v{lt[2]}")
        a(f"s_cmp_eq_u32 s{S_KX}, 0")
        a(f"s_cbranch_scc1 {l1}")
        a("s_nop 1")
        a(f"s_cmp_lg_u32 s{S_T2}, 0")
        a(f"s_cbranch_scc1 {l1}")
        a(f"s_sleep {TSLEEP[0]}")
        a(f"s_branch {l0}")
        a.label(l1)
        a(f"v_mov_b32 v{lt[1]}, {add}")
        a(f"ds_add_u32 v{lt[0]}, v{lt[1]}")
        a.label(l2)

    kq = hva(4, 4)
    a("s_mov_b64 exec, 1")
    a(f"v_mov_b32 v{lt[0]}, 0")
    a(f"v_mov_b32 v{lt[1]}, 1")
    a(f"s_and_b32 s{S_T1}, s2, 15")
    a(f"s_lshl_b32 s{S_T1}, s{S_T1}, 8")
    a(f"s_add_u32 s{S_T1}, s{S_T1}, {112*256}")
    gq.lstamp(18)
    kv_wait(a, lt[0], kq, 1)
    a("s_waitcnt vmcnt(0)")
    gq.lstamp(19)
    a(f"ds_add_rtn_u32 v{lt[2]}, v{lt[0]}, v{lt[1]} offset:4")
    a("s_waitcnt lgkmcnt(0)")
    a(f"v_readfirstlane_b32 s{S_HOOK}, v{lt[2]}")
    a("s_nop 3")
    a(f"s_cmp_lg_u32 s{S_HOOK}, 3")
    a("s_cbranch_scc1 k2_lw")
    arrive2(S_T1, 16, CNT_IMG*256, "k2_lw")
    a.label("k2_lw")
    a("s_mov_b64 exec, -1")
    csb = hva(40, 4)
    cacc = hva(4, 4)
    assert hva.n <= 132
    a(f"s_cmp_lt_u32 s{S_RW}, {1024 - 48*NCS}")
    a("s_cbranch_scc1 k2_ncs")
    a(f"s_sub_u32 s{S_T2}, s{S_RW}, {1024 - 48*NCS}")
    a(f"s_mul_i32 s{S_U}, s{S_T2}, 1366")
    a(f"s_lshr_b32 s{S_U}, s{S_U}, 16")
    a(f"s_mul_i32 s{S_SRC}, s{S_U}, 48")
    a(f"s_sub_u32 s{S_SRC}, s{S_T2}, s{S_SRC}")
    a(f"s_cmp_lt_u32 s{S_SRC}, 24")
    a(f"s_cselect_b32 s{SRD0}, s{P_WG}, s{P_WU}")
    a(f"s_cselect_b32 s{SRD0+1}, s{P_WG+1}, s{P_WU+1}")
    a(f"s_mov_b32 s{SRD0+2}, {F*D*2}")
    a(f"s_cselect_b32 s{S_DST}, 0, 24")
    a(f"s_sub_u32 s{S_SRC}, s{S_SRC}, s{S_DST}")
    a(f"s_lshl_b32 s{S_SRC}, s{S_SRC}, 7")
    a(f"s_mul_i32 s{S_U}, s{S_U}, {80*F*2}")
    a(f"s_add_u32 s{S_SRC}, s{S_SRC}, s{S_U}")
    for i in range(10):
        a(f"buffer_load_dwordx4 {vr(csb+4*i,4)}, v{v_ca}, {sr(SRD0,4)}, s{S_SRC} offen")
        a(f"s_add_u32 s{S_SRC}, s{S_SRC}, {8*F*2}")
    make_srd(a, SRD4, P_WS, WS_CS, NCS * 3072 * 4)
    a(f"s_lshl_b32 s{S_T2}, s{S_T2}, 8")
    for i in range(10):
        a(f"s_waitcnt vmcnt({9-i})")
        a(f"v_mfma_f32_16x16x32_bf16 {vr(cacc,4)}, {vr(sel,4)}, {vr(csb+4*i,4)}, " + ("0" if i == 0 else vr(cacc, 4)))
    a("s_nop 7")
    a("s_nop 7")
    for j in range(4):
        a(f"v_add_f32_dpp v{cacc+j}, v{cacc+j}, v{cacc+j} row_ror:8 row_mask:0xf bank_mask:0xf")
    a(f"s_mov_b64 exec, 0x00ff00ff")
    a(f"buffer_store_dwordx4 {vr(cacc,4)}, v{v_co}, {sr(SRD4,4)}, s{S_T2} offen sc1")
    a("s_mov_b64 exec, 1")
    a(f"v_mov_b32 v{lt[0]}, 0")
    a(f"s_and_b32 s{S_T1}, s{S_RW}, 15")
    a(f"s_lshl_b32 s{S_T1}, s{S_T1}, 8")
    a(f"s_add_u32 s{S_T1}, s{S_T1}, {96*256 + 4}")
    arrive2(S_T1, 3*NCS, CNT_KV*256 + 4, "k2_ncs")
    a.label("k2_ncs")
    gpoll((CNT_IMG+8)*256, 1)
    lds_wait(a, lt, 8, "s_bitcmp0_b32 s{}, 0")
    a("s_mov_b64 exec, -1")
    gq.lstamp(20)
    touch()
    gq.lstamp(21)
    if CPF > 1:
        code_touch(a, lt[0], dummy, 0)
    gpoll((CNT_KV+8)*256 + 4, 2)
    a("s_mov_b64 exec, -1")
    ffn.gq = gq
    ffn_loader(a, ffn)

    a.label("k2_code_end")
    kernel_end(a, name, max(va.n, hva.n, ffn.maxv, gq.maxv, V_RAD + 1))
    print('vgprs', va.n, hva.n, ffn.maxv, gq.maxv)
    return (name, 256, 512, KV_SZ)

TSLEEP = [int(x) for x in os.environ.get("TSLEEP", "16").split(",") if x]
TSLEEP2 = int(os.environ.get("TSLEEP2", "16"))
TEARLY = bool(os.environ.get("TEARLY"))


SRDC = 8
TDUM = 243
RES3, V_RAD = 244, 254
XCH = 0
TAB = 156 * 1024
HPOL = os.environ.get("HPOL", "sc1")
XPOL = os.environ.get("XPOL", "sc1")


def map_proj(a, which):
    a(f"s_and_b32 s{S_T1}, s2, 7")
    a(f"s_lshr_b32 s{S_T0}, s2, 3")
    a(f"s_mov_b32 s{S_J}, s{S_T0}")
    a(f"s_mov_b32 s{S_XB}, s{S_T1}")
    if which == 3:
        a(f"s_mul_i32 s{S_ROT}, s{S_T0}, 52")
        a(f"s_lshr_b32 s{S_ROT}, s{S_ROT}, 8")
        a(f"s_mul_i32 s{S_ROT}, s{S_ROT}, 5")
        a(f"s_sub_u32 s{S_ROT}, s{S_T0}, s{S_ROT}")
        a(f"s_lshr_b32 s{S_T2}, s{S_T0}, 3")
        a(f"s_lshl_b32 s{S_T1}, s{S_T1}, 2")
        a(f"s_add_u32 s{S_T1}, s{S_T1}, s{S_T2}")
        a(f"s_lshl_b32 s{S_TOK0}, s{S_T1}, 6")
        a(f"s_and_b32 s{S_T0}, s{S_T0}, 7")
    else:
        a(f"s_and_b32 s{S_ROT}, s{S_T1}, 1")
        a(f"s_mul_i32 s{S_ROT}, s{S_ROT}, 6")
        a(f"s_and_b32 s{S_T2}, s{S_T0}, 1")
        a(f"s_add_u32 s{S_ROT}, s{S_ROT}, s{S_T2}")
        a(f"s_lshr_b32 s{S_T2}, s{S_T1}, 1")
        a(f"s_lshl_b32 s{S_T2}, s{S_T2}, 3")
        a(f"s_and_b32 s{S_TOK0}, s{S_T0}, 7")
        a(f"s_add_u32 s{S_TOK0}, s{S_TOK0}, s{S_T2}")
        a(f"s_lshl_b32 s{S_TOK0}, s{S_TOK0}, 6")
        a(f"s_and_b32 s{S_T1}, s{S_T1}, 1")
        a(f"s_lshl_b32 s{S_T1}, s{S_T1}, 2")
        a(f"s_lshr_b32 s{S_T0}, s{S_T0}, 3")
        a(f"s_add_u32 s{S_T0}, s{S_T0}, s{S_T1}")
    a(f"s_mul_i32 s{S_COL}, s{S_T0}, 160")


def srd_proj(a, which):
    if which == 3:
        make_srd(a, SRD0, P_WS, WS_O, S * D * 2)
        make_srd(a, SRD1, P_WS, WS_IMG, IMG_SZ)
        a(f"s_mul_i32 s{S_IMG}, s{S_T0}, {5*20480}")
        make_srd(a, SRD2, P_WS, WS_H, S * D * 2)
        make_srd(a, SRD3, P_X, 0, S * D * 2)
        make_srd(a, SRD4, P_WS, WS_ST, S * 64)
    else:
        make_srd(a, SRD0, P_WS, WS_ACT, S * F * 2)
        make_srd(a, SRD1, P_WS, WS_IMG, IMG_SZ)
        a(f"s_mul_i32 s{S_IMG}, s{S_T0}, {12*20480}")
        make_srd(a, SRD2, P_OUT, 0, S * D * 2)
        make_srd(a, SRD3, P_WS, WS_H, S * D * 2)


def map_k4(a):
    a(f"s_and_b32 s{S_XB}, s2, 7")
    a(f"s_lshr_b32 s{S_J}, s2, 3")
    a(f"s_mul_i32 s{S_ROT}, s{S_J}, 26")
    a(f"s_lshr_b32 s{S_ROT}, s{S_ROT}, 8")
    a(f"s_mul_i32 s{S_ROT}, s{S_ROT}, 10")
    a(f"s_sub_u32 s{S_ROT}, s{S_J}, s{S_ROT}")
    a(f"s_lshr_b32 s{S_T2}, s{S_XB}, 1")
    a(f"s_lshl_b32 s{S_T2}, s{S_T2}, 2")
    a(f"s_and_b32 s{S_TOK0}, s{S_J}, 3")
    a(f"s_add_u32 s{S_TOK0}, s{S_TOK0}, s{S_T2}")
    a(f"s_lshl_b32 s{S_TOK0}, s{S_TOK0}, 7")
    a(f"s_lshr_b32 s{S_T2}, s{S_J}, 2")
    a(f"s_and_b32 s{S_T1}, s{S_XB}, 1")
    a(f"s_lshl_b32 s{S_T1}, s{S_T1}, 3")
    a(f"s_add_u32 s{S_T0}, s{S_T2}, s{S_T1}")
    a(f"s_mul_i32 s{S_COL}, s{S_T0}, 192")
    a(f"s_mul_i32 s{S_IMG}, s{S_T0}, {10*24576}")
    make_srd(a, SRD0, P_WS, WS_H, S * D * 2)
    make_srd(a, SRD1, P_WS, WS_IMG, IMG_SZ)
    make_srd(a, SRD3, P_WS, WS_ACT, S * F * 2)


CNT = {0: (0, 7, 16), 1: (16, 7, 16), 2: (32, 6, 8)}
CNT_IMG = 64


def kv_wait(a, v_zero, q, nap):
    lab = a.newlabel("kw")
    a.label(lab)
    if nap:
        a(f"s_sleep {nap}")
    a(f"ds_read_b128 {vr(q,4)}, v{v_zero} offset:16")
    a("s_waitcnt lgkmcnt(0)")
    a(f"v_and_b32 v{q}, v{q}, v{q+1}")
    a(f"v_and_b32 v{q+2}, v{q+2}, v{q+3}")
    a(f"v_and_b32 v{q}, v{q}, v{q+2}")
    a("s_nop 0")
    a(f"v_readfirstlane_b32 s{S_T2}, v{q}")
    a("s_nop 3")
    a(f"s_cmp_lg_u32 s{S_T2}, -1")
    a(f"s_cbranch_scc1 {lab}")


def lds_wait(a, t, nap, cond):
    lab = a.newlabel("lw")
    a.label(lab)
    a(f"s_sleep {nap}")
    a(f"ds_read_b32 v{t[2]}, v{t[0]}")
    a("s_waitcnt lgkmcnt(0)")
    a(f"v_readfirstlane_b32 s{S_T2}, v{t[2]}")
    a("s_nop 3")
    a(cond.format(S_T2))
    a(f"s_cbranch_scc1 {lab}")


PT = os.environ.get("PT", "9").split(",")


def cnt_touch(a):
    a(f"v_mbcnt_lo_u32_b32 v{TDUM-1}, -1, 0")
    a(f"v_mbcnt_hi_u32_b32 v{TDUM-1}, -1, v{TDUM-1}")
    a(f"v_lshlrev_b32 v{TDUM-1}, 8, v{TDUM-1}")
    a(f"buffer_load_dword v{TDUM}, v{TDUM-1}, {sr(SRDC,4)}, 0 offen offset:128")


def publish(a, t, ph, touch=None):
    lab = a.newlabel("pub")
    a("s_mov_b64 exec, 1")
    a(f"v_mov_b32 v{t[0]}, {TAB + 3072 + 4*ph}")
    a(f"v_mov_b32 v{t[1]}, 1")
    a(f"s_lshr_b32 s{S_T1}, s{S_TOK0}, {CNT[ph][1]}")
    a(f"s_lshl_b32 s{S_T1}, s{S_T1}, 8")
    a(f"s_add_u32 s{S_T1}, s{S_T1}, {CNT[ph][0]*256}")
    a("s_waitcnt vmcnt(0)")
    rstamp(a, {2: 1, 0: 4, 1: 7}[ph])
    a(f"ds_add_rtn_u32 v{t[2]}, v{t[0]}, v{t[1]}")
    a(f"v_mov_b32 v{t[0]}, 0")
    a("s_waitcnt lgkmcnt(0)")
    a(f"v_readfirstlane_b32 s{S_T2}, v{t[2]}")
    a("s_nop 3")
    a(f"s_cmp_lg_u32 s{S_T2}, 3")
    a(f"s_cbranch_scc1 {lab}")
    if LOC:
        a(f"buffer_atomic_add v{t[1]}, v{t[0]}, {sr(SRDC,4)}, s{S_T1} offen offset:128")
    a(f"buffer_atomic_add v{t[1]}, v{t[0]}, {sr(SRDC,4)}, s{S_T1} offen sc1")
    a.label(lab)
    a("s_mov_b64 exec, -1")
    if touch and str(ph) in PT:
        touch()
        a("s_mov_b64 exec, -1")


def await_block(a, t, ph):
    l0, l1 = a.newlabel("aw"), a.newlabel("aw")
    a(f"s_cmp_lg_u32 s{S_WAVE}, 0")
    a(f"s_cbranch_scc1 {l1}")
    a("s_mov_b64 exec, 1")
    a(f"v_mov_b32 v{t[0]}, 0")
    a(f"s_lshr_b32 s{S_T1}, s{S_TOK0}, {CNT[ph][1]}")
    a(f"s_lshl_b32 s{S_T1}, s{S_T1}, 8")
    a(f"s_add_u32 s{S_T1}, s{S_T1}, {CNT[ph][0]*256}")
    a(f"s_mov_b32 s{S_KX}, 0x20000")
    a.label(l0)
    if LOC:
        lb, lw = a.newlabel("aw"), a.newlabel("aw")
        a(f"s_and_b32 s{S_T2}, s{S_KX}, {LOC}")
        a(f"s_cmp_eq_u32 s{S_T2}, 1")
        a(f"s_cbranch_scc1 {lb}")
        a(f"v_mov_b32 v{t[1]}, 0")
        a(f"buffer_atomic_add v{t[1]}, v{t[0]}, {sr(SRDC,4)}, s{S_T1} offen offset:128 sc0")
        a(f"s_branch {lw}")
        a.label(lb)
    a(f"buffer_load_dword v{t[1]}, v{t[0]}, {sr(SRDC,4)}, s{S_T1} offen sc1")
    if LOC:
        a.label(lw)
    a(f"s_sub_u32 s{S_KX}, s{S_KX}, 1")
    a("s_waitcnt vmcnt(0)")
    a(f"v_readfirstlane_b32 s{S_T2}, v{t[1]}")
    a(f"s_cmp_eq_u32 s{S_KX}, 0")
    a(f"s_cselect_b32 s{S_KW}, {CNT[ph][2]}, 0")
    a(f"s_max_u32 s{S_T2}, s{S_T2}, s{S_KW}")
    a(f"s_cmp_lt_u32 s{S_T2}, {CNT[ph][2]}")
    a(f"s_cbranch_scc1 {l0}")
    a("s_mov_b64 exec, -1")
    if PRET & 2 and ph != 1:
        cnt_touch(a)
    a.label(l1)
    a("s_barrier")
    rstamp(a, {2: 2, 0: 5, 1: 8}[ph])


def proj_gemm(a, va, which):
    seg = Seg(SRD1, D * 2, 80, 'p160', S_COL, img=(S_IMG, 20480, IMG_WO if which == 3 else IMG_WD))
    K = D if which == 3 else F
    return Gemm(a, va, 64, 2, 2, 1, [seg], 128, 4, K, SRD0, K * 2, S_TOK0, sregs=GS, tag=f"k{which}", xcm=True,
                lds_base=0 if which == 3 else 8192)


def proj_compute(a, va, g, which, sb):
    g.setup()
    t = g.tmp
    v_ad, v_tok, v_a4, v_c8, v_c4 = va(), va(), va(), va(), va()
    res = va(10, 2)
    a(f"v_lshl_add_u32 v{v_tok}, v{g.v_wt}, 1, v{g.v_wo}")
    a(f"v_lshl_add_u32 v{v_tok}, v{v_tok}, 4, v{g.v_i16}")
    a(f"v_add_u32 v{v_tok}, s{S_TOK0}, v{v_tok}")
    a(f"v_mul_u32_u24 v{t[0]}, {D*2}, v{v_tok}")
    a(f"v_add_u32 v{t[0]}, s{S_COL}, v{t[0]}")
    a(f"v_lshl_add_u32 v{v_ad}, v{g.v_g}, 3, v{t[0]}")
    a(f"v_and_b32 v{t[1]}, 1, v{g.v_g}")
    a(f"v_lshl_add_u32 v{v_a4}, v{t[1]}, 5, v{t[0]}")
    a(f"v_lshrrev_b32 v{t[1]}, 1, v{g.v_g}")
    a(f"v_lshl_add_u32 v{v_a4}, v{t[1]}, 4, v{v_a4}")
    a(f"v_and_b32 v{t[0]}, 0xfff0, v{v_tok}")
    a(f"v_mul_u32_u24 v{t[0]}, {D*2}, v{t[0]}")
    a(f"v_lshl_add_u32 v{t[0]}, v{g.v_i16}, 4, v{t[0]}")
    a(f"s_lshl_b32 s{S_T1}, s{S_COL}, 4")
    a(f"v_add_u32 v{t[0]}, s{S_T1}, v{t[0]}")
    a(f"v_lshl_add_u32 v{t[0]}, v{t[1]}, 8, v{t[0]}")
    a(f"v_and_b32 v{t[1]}, 1, v{g.v_g}")
    a(f"v_lshl_add_u32 v{v_c8}, v{t[1]}, 3, v{t[0]}")
    a(f"v_lshl_add_u32 v{v_c4}, v{t[1]}, 9, v{t[0]}")
    if which == 3:
        res = RES3
    await_block(a, t, 1 if which == 5 else 2)
    for fb in range(5):
        if which == 5:
            a(f"buffer_load_dwordx2 {vr(res+2*fb,2)}, v{v_c8}, {sr(SRD3,4)}, 0 offen offset:{fb*512} {HPOL}")
    stamp(a, sb)
    g.mainloop()
    stamp(a, sb + 1)
    rstamp(a, 3 if which == 3 else 9)
    a("s_nop 7")
    a(f"v_mul_u32_u24 v{t[0]}, 5120, v{g.v_wave}")
    a(f"v_lshl_add_u32 v{t[0]}, v{g.v_lane}, 4, v{t[0]}")
    a(f"v_add_u32 v{t[0]}, {XCH}, v{t[0]}")
    a(f"v_xor_b32 v{t[1]}, 2, v{g.v_wave}")
    a(f"v_mul_u32_u24 v{t[1]}, 5120, v{t[1]}")
    a(f"v_lshl_add_u32 v{t[1]}, v{g.v_lane}, 4, v{t[1]}")
    a(f"v_add_u32 v{t[1]}, {XCH}, v{t[1]}")
    for fb in range(5):
        a(f"ds_write_b128 v{t[0]}, {vr(g.acc[1][fb],4)} offset:{fb*1024}")
    a("s_waitcnt lgkmcnt(0)")
    a("s_barrier")
    for fb in range(5):
        a(f"ds_read_b128 {vr(g.acc[1][fb],4)}, v{t[1]} offset:{fb*1024}")
    v_s = va(2, 2)
    v_q = v_s + 1
    v_s2, v_q2 = va(2, 2), va(2, 2)
    assert t[1] % 2 == 0
    if which == 3:
        for r in (v_s2, v_s2 + 1, v_q2, v_q2 + 1):
            a(f"v_mov_b32 v{r}, 0")
    pol = HPOL if which == 3 else ""
    for fb in range(5):
        a(f"s_waitcnt lgkmcnt({4-fb})")
        c, o = g.acc[0][fb], g.acc[1][fb]
        dst = o if fb % 2 == 0 else g.acc[1][fb - 1] + 2
        for p in range(2):
            u = t[1] + 2 * p
            a(f"v_lshlrev_b32 v{u}, 16, v{res+2*fb+p}")
            a(f"v_and_b32 v{u+1}, 0xffff0000, v{res+2*fb+p}")
            a(f"v_pk_add_f32 {vr(c+2*p,2)}, {vr(c+2*p,2)}, {vr(o+2*p,2)}")
            a(f"v_cvt_pk_bf16_f32 v{c+2*p+1}, v{c+2*p}, v{c+2*p+1}")
            a(f"v_lshlrev_b32 v{c+2*p}, 16, v{c+2*p+1}")
            a(f"v_and_b32 v{c+2*p+1}, 0xffff0000, v{c+2*p+1}")
            a(f"v_pk_add_f32 {vr(u,2)}, {vr(u,2)}, {vr(c+2*p,2)}")
            a(f"v_cvt_pk_bf16_f32 v{dst+p}, v{u}, v{u+1}")
            if which == 3:
                a(f"v_lshlrev_b32 v{u}, 16, v{dst+p}")
                a(f"v_and_b32 v{u+1}, 0xffff0000, v{dst+p}")
                a(f"v_pk_add_f32 {vr(v_s2,2)}, {vr(v_s2,2)}, {vr(u,2)}")
                a(f"v_pk_fma_f32 {vr(v_q2,2)}, {vr(u,2)}, {vr(u,2)}, {vr(v_q2,2)}")
        if fb % 2 == 1:
            q = g.acc[1][fb - 1]
            a("s_nop 1")
            a(f"v_permlane16_swap_b32 v{q}, v{q+2}")
            a(f"v_permlane16_swap_b32 v{q+1}, v{q+3}")
            if which == 3:
                a(f"buffer_store_dwordx4 {vr(q,4)}, v{v_c4}, {sr(SRD2,4)}, 0 offen offset:{(fb-1)*512} {pol}")
            else:
                a(f"buffer_store_dwordx4 {vr(q,4)}, v{v_a4}, {sr(SRD2,4)}, 0 offen offset:{(fb-1)*32}")
        elif fb == 4:
            if which == 3:
                a(f"buffer_store_dwordx2 {vr(o,2)}, v{v_c8}, {sr(SRD2,4)}, 0 offen offset:{fb*512} {pol}")
            else:
                a(f"buffer_store_dwordx2 {vr(o,2)}, v{v_ad}, {sr(SRD2,4)}, 0 offen offset:{fb*32}")
    if which == 3:
        a(f"v_add_f32 v{v_s}, v{v_s2}, v{v_s2+1}")
        a(f"v_add_f32 v{v_q}, v{v_q2}, v{v_q2+1}")
        for w in (32, 16):
            a(f"v_mov_b32 v{t[0]}, v{v_s}")
            a(f"v_mov_b32 v{t[1]}, v{v_q}")
            a("s_nop 1")
            a(f"v_permlane{w}_swap_b32 v{v_s}, v{t[0]}")
            a(f"v_permlane{w}_swap_b32 v{v_q}, v{t[1]}")
            a("s_nop 1")
            a(f"v_add_f32 v{v_s}, v{v_s}, v{t[0]}")
            a(f"v_add_f32 v{v_q}, v{v_q}, v{t[1]}")
        a(f"v_lshlrev_b32 v{t[0]}, 3, v{v_tok}")
        a(f"s_lshl_b32 s{S_T0}, s{S_T0}, 14")
        a("s_mov_b64 exec, 0xffff")
        a(f"buffer_store_dwordx2 {vr(v_s,2)}, v{t[0]}, {sr(SRD4,4)}, s{S_T0} offen {pol}")
        stamp(a, sb + 2)
        publish(a, t, 0)


def k4_gemm(a, va):
    sg = Seg(SRD1, F * 2, 96, 'p192', S_COL, img=(S_IMG, 24576, IMG_GU))
    su = Seg(SRD1, F * 2, 96, 'p192', S_COL, img=(S_IMG, 24576, IMG_GU + 12288))
    return Gemm(a, va, 128, 2, 1, 2, [sg, su], 64, K4_NS, D, SRD0, D * 2, S_TOK0, sregs=GS, tag="k4", xcm=True, lds_base=20480)


def k4_compute(a, va, g, sb):
    g.setup()
    t = g.tmp
    v_tok, v_a4, v_b4, v_ta, v_tc = va(), va(), va(), va(), va()
    a(f"v_lshl_add_u32 v{v_tok}, v{g.v_wt}, 6, v{g.v_i16}")
    a(f"v_lshlrev_b32 v{v_ta}, 4, v{v_tok}")
    a(f"v_add_u32 v{v_ta}, {TAB}, v{v_ta}")
    a(f"v_add_u32 v{v_tok}, s{S_TOK0}, v{v_tok}")
    a(f"v_mul_u32_u24 v{t[1]}, 48, v{g.v_wo}")
    a(f"v_lshl_add_u32 v{t[2]}, v{g.v_g}, 2, v{t[1]}")
    a(f"v_lshlrev_b32 v{v_tc}, 2, v{t[2]}")
    a(f"v_add_u32 v{v_tc}, {TAB + 2048}, v{v_tc}")
    a(f"v_and_b32 v{t[0]}, 0xfff0, v{v_tok}")
    a(f"v_mul_u32_u24 v{t[0]}, {F*2}, v{t[0]}")
    a(f"v_lshl_add_u32 v{t[0]}, v{g.v_i16}, 4, v{t[0]}")
    a(f"v_lshl_add_u32 v{t[0]}, v{t[1]}, 5, v{t[0]}")
    a(f"s_lshl_b32 s{S_T1}, s{S_COL}, 4")
    a(f"v_add_u32 v{t[0]}, s{S_T1}, v{t[0]}")
    a(f"v_lshrrev_b32 v{t[1]}, 1, v{g.v_g}")
    a(f"v_lshl_add_u32 v{t[0]}, v{t[1]}, 8, v{t[0]}")
    a(f"v_and_b32 v{t[1]}, 1, v{g.v_g}")
    a(f"v_lshl_add_u32 v{v_a4}, v{t[1]}, 9, v{t[0]}")
    a(f"v_mul_u32_u24 v{t[1]}, {16*F*2}, v{t[1]}")
    a(f"v_add_u32 v{v_b4}, v{t[1]}, v{t[0]}")
    await_block(a, t, 0)
    stamp(a, sb)
    g.mainloop()
    stamp(a, sb + 1)
    rstamp(a, 6)
    st = g.fa[0]
    cs = g.fa[1]
    tmp = g.fb[0]
    for tb in range(4):
        a(f"ds_read_b128 {vr(st+4*tb,4)}, v{v_ta} offset:{tb*256}")
    for sgi in range(2):
        for fb in range(3):
            a(f"ds_read_b128 {vr(cs+12*sgi+4*fb,4)}, v{v_tc} offset:{sgi*384 + fb*64}")
    a("s_waitcnt lgkmcnt(0)")
    for tb in range(4):
        vm, vA, vB, vC = [st + 4 * tb + i for i in range(4)]
        pm, pB = vr(vm, 2), vr(vB, 2)
        for fb in range(3):
            cg, cu = g.acc[tb][fb], g.acc[tb][3 + fb]
            z = tmp + 8 * (fb & 1)
            for h in (0, 2):
                a(f"v_pk_fma_f32 {vr(cg+h,2)}, {pm}, {vr(cs+4*fb+h,2)}, {vr(cg+h,2)} op_sel_hi:[0,1,1]")
                a(f"v_pk_fma_f32 {vr(cu+h,2)}, {pm}, {vr(cs+12+4*fb+h,2)}, {vr(cu+h,2)} op_sel_hi:[0,1,1]")
            for h in (0, 2):
                a(f"v_pk_mul_f32 {vr(z+h,2)}, {vr(cg+h,2)}, {vr(cg+h,2)}")
                a(f"v_pk_mul_f32 {vr(cu+h,2)}, {vr(cu+h,2)}, {vr(cg+h,2)}")
            for h in (0, 2):
                a(f"v_pk_fma_f32 {vr(z+h,2)}, {vr(z+h,2)}, {pB}, {pm} op_sel:[0,0,1] op_sel_hi:[1,0,1]")
            for h in (0, 2):
                a(f"v_pk_mul_f32 {vr(z+h,2)}, {vr(z+h,2)}, {vr(cg+h,2)}")
            for r in range(4):
                a(f"v_exp_f32 v{z+r}, v{z+r}")
            for h in (0, 2):
                a(f"v_pk_fma_f32 {vr(z+h,2)}, {vr(z+h,2)}, {pB}, {pB} op_sel:[0,1,1] op_sel_hi:[1,1,1]")
            for r in range(4):
                a(f"v_rcp_f32 v{z+r}, v{z+r}")
            a("s_nop 0")
            for h in (0, 2):
                a(f"v_pk_mul_f32 {vr(cu+h,2)}, {vr(cu+h,2)}, {vr(z+h,2)}")
            if fb == 1:
                q, dst = g.acc[tb][3], g.acc[tb][3] + 2
            elif fb == 2 and tb % 2 == 1:
                q, dst = g.acc[tb - 1][5], g.acc[tb - 1][5] + 2
            else:
                q, dst = None, cu
            a(f"v_cvt_pk_bf16_f32 v{dst}, v{cu}, v{cu+1}")
            a(f"v_cvt_pk_bf16_f32 v{dst+1}, v{cu+2}, v{cu+3}")
            if q is not None:
                a(f"s_mov_b32 s{S_KW}, {(tb if fb == 1 else tb - 1)*16*F*2}")
                a("s_nop 0")
                a(f"v_permlane16_swap_b32 v{q}, v{q+2}")
                a(f"v_permlane16_swap_b32 v{q+1}, v{q+3}")
                if fb == 1:
                    a(f"buffer_store_dwordx4 {vr(q,4)}, v{v_a4}, {sr(SRD3,4)}, s{S_KW} offen {HPOL}")
                else:
                    a(f"buffer_store_dwordx4 {vr(q,4)}, v{v_b4}, {sr(SRD3,4)}, s{S_KW} offen offset:1024 {HPOL}")
    stamp(a, sb + 2)
    publish(a, t, 1)


class Ffn:
    pass


def ffn_compute(a):
    f = Ffn()
    maxv = 0
    va = VAlloc(1)
    g3 = proj_gemm(a, va, 3)
    g3.tmp = [va() for _ in range(6)]
    map_proj(a, 3)
    srd_proj(a, 3)
    proj_compute(a, va, g3, 3, 4)
    maxv = max(maxv, va.n)
    va = VAlloc(1)
    g4 = k4_gemm(a, va)
    g4.tmp = [va() for _ in range(6)]
    map_k4(a)
    k4_compute(a, va, g4, 7)
    maxv = max(maxv, va.n)
    va = VAlloc(1)
    g5 = proj_gemm(a, va, 5)
    g5.tmp = [va() for _ in range(6)]
    map_proj(a, 5)
    srd_proj(a, 5)
    proj_compute(a, va, g5, 5, 10)
    maxv = max(maxv, va.n)
    stamp_end(a, 12)
    assert g4.lds_bytes + g4.lds_base <= TAB and g5.lds_bytes + g5.lds_base <= TAB
    f.g3, f.g4, f.g5, f.maxv = g3, g4, g5, maxv
    return f


def ffn_loader(a, f):
    g3, g4, g5, maxv = f.g3, f.g4, f.g5, f.maxv
    GC = -2.0 * 0.7978845608028654 * 1.4426950408889634
    pre = {}

    def early4(lva, lt):
        make_srd(a, SRD4, P_WS, WS_ST, S * 64)
        buf = lva(16, 4)
        pre['buf'] = buf
        a(f"v_and_b32 v{lt[0]}, 127, v0")
        a(f"v_add_u32 v{lt[0]}, s{S_TOK0}, v{lt[0]}")
        a(f"v_lshlrev_b32 v{lt[0]}, 3, v{lt[0]}")
        for i in range(8):
            a(f"s_mov_b32 s{S_T1}, {i*16384}")
            a(f"buffer_load_dwordx2 {vr(buf+2*i,2)}, v{lt[0]}, {sr(SRD4,4)}, s{S_T1} offen {HPOL}")

    CSR = 104

    def cs4(lt):
        buf = CSR
        l3 = a.newlabel("k4e")
        a(f"s_cmp_lt_u32 s{S_WAVE}, 6")
        a(f"s_cbranch_scc1 {l3}")
        make_srd(a, SRD5, P_WS, WS_CS, NCS * 3072 * 4)
        a(f"s_lshr_b32 s{S_T2}, s{S_J}, 2")
        a(f"s_and_b32 s{S_T1}, s{S_XB}, 1")
        a(f"s_lshl_b32 s{S_T1}, s{S_T1}, 3")
        a(f"s_add_u32 s{S_T2}, s{S_T2}, s{S_T1}")
        a(f"s_mul_i32 s{S_T2}, s{S_T2}, 384")
        a(f"v_and_b32 v{lt[0]}, 63, v0")
        a(f"v_min_u32 v{lt[0]}, 23, v{lt[0]}")
        a(f"v_lshlrev_b32 v{lt[0]}, 4, v{lt[0]}")
        a(f"s_sub_u32 s{S_T1}, s{S_WAVE}, 6")
        a(f"s_mul_i32 s{S_T1}, s{S_T1}, {1536*4}")
        a(f"s_add_u32 s{S_T1}, s{S_T1}, s{S_T2}")
        for i in range(NCS):
            a(f"buffer_load_dwordx4 {vr(buf+4*i,4)}, v{lt[0]}, {sr(SRD5,4)}, s{S_T1} offen")
            a(f"s_add_u32 s{S_T1}, s{S_T1}, {3072*4}")
        a("s_waitcnt vmcnt(0)")
        a.label(l3)

    def table4(lva, lt):
        buf = pre['buf']
        l2, l3 = a.newlabel("k4e"), a.newlabel("k4e")
        a(f"s_cmp_ge_u32 s{S_WAVE}, 6")
        a(f"s_cbranch_scc1 {l2}")
        for i in range(1, 8):
            a(f"v_add_f32 v{buf}, v{buf}, v{buf+2*i}")
            a(f"v_add_f32 v{buf+1}, v{buf+1}, v{buf+2*i+1}")
        ln_stats(a, buf, buf + 1, buf + 4, buf + 8, lt)
        a(f"v_sub_f32 v{buf+4}, 0, v{buf+4}")
        a(f"v_mul_f32 v{buf+5}, {f32(GC)}, v{buf+8}")
        a(f"v_mul_f32 v{buf+9}, v{buf+8}, v{buf+8}")
        a(f"v_mul_f32 v{buf+6}, v{buf+9}, v{buf+8}")
        a(f"v_mul_f32 v{buf+6}, {f32(GC*0.044715)}, v{buf+6}")
        a(f"v_rcp_f32 v{buf+7}, v{buf+9}")
        a(f"v_lshlrev_b32 v{lt[0]}, 4, v0")
        a(f"v_add_u32 v{lt[0]}, {TAB}, v{lt[0]}")
        a(f"ds_write_b128 v{lt[0]}, {vr(buf+4,4)}")
        a(f"s_branch {l3}")
        a.label(l2)
        buf = CSR
        for k in range(1, NCS):
            for i in (0, 2):
                a(f"v_pk_add_f32 {vr(buf+i,2)}, {vr(buf+i,2)}, {vr(buf+4*k+i,2)}")
        a(f"v_and_b32 v{lt[0]}, 63, v0")
        a(f"v_min_u32 v{lt[0]}, 23, v{lt[0]}")
        a(f"v_lshlrev_b32 v{lt[0]}, 4, v{lt[0]}")
        a(f"s_sub_u32 s{S_T1}, s{S_WAVE}, 6")
        a(f"s_mul_i32 s{S_T1}, s{S_T1}, 384")
        a(f"s_add_u32 s{S_T1}, s{S_T1}, {TAB + 2048}")
        a(f"v_add_u32 v{lt[0]}, s{S_T1}, v{lt[0]}")
        a(f"ds_write_b128 v{lt[0]}, {vr(buf,4)}")
        a.label(l3)
        a("s_waitcnt lgkmcnt(0)")

    def touch_wd(lt):
        a(f"s_and_b32 s{S_T1}, s{S_XB}, 1")
        a(f"s_mul_i32 s{S_T1}, s{S_T1}, 983040")
        a(f"s_mul_i32 s{S_T2}, s{S_J}, {240*128}")
        a(f"s_add_u32 s{S_T1}, s{S_T1}, s{S_T2}")
        a(f"s_add_u32 s{S_T1}, s{S_T1}, {IMG_WD}")
        a(f"v_min_u32 v{lt[0]}, 239, v0")
        a(f"v_lshlrev_b32 v{lt[0]}, 7, v{lt[0]}")
        a(f"buffer_load_dword v{DUMMY}, v{lt[0]}, {sr(SRD1,4)}, s{S_T1} offen")
        ops.append(("t", 0))

    DUMMY = 100
    ops = []
    a("v_and_b32 v0, 255, v0")
    map_proj(a, 3)
    srd_proj(a, 3)
    g3.ld_prepare(S_ROT, head=False, xpol=XPOL, ops=ops)
    a(f"v_mov_b32 v{g3.lt[0]}, 0")
    lds_wait(a, g3.lt, 6, "s_cmp_lt_u32 s{}, 0xfe03")
    g3.lstamp(0)
    for st in range(3):
        g3.ld_issue(st, x=False)
    cs4(g3.lt)
    a("s_barrier")
    a("s_barrier")
    g3.ld_issue(3, x=False)
    a("s_barrier")

    def tail3(st):
        if st == 2:
            map_k4(a)
            g4.ld_prepare(S_ROT, head=False, xpol=XPOL, ops=ops)
            g4.lstamp(0)
        if st <= 4:
            g4.ld_issue(st - 2, x=False)
    g3.ld_run(wdone=True, tail=tail3)
    a("s_barrier")
    a("s_barrier")

    def tail4(st):
        if st == 8:
            a("s_setprio 2")
            table4(g4.lva, g4.lt)
            a("s_setprio 0")
        elif st == 9:
            map_proj(a, 5)
            srd_proj(a, 5)
            g5.ld_prepare(S_ROT, head=False, xpol=XPOL, ops=ops)
            g5.lstamp(0)
            g5.ld_issue(1, x=False)
        elif st == 10:
            g5.ld_issue(0, x=False)
            g5.ld_issue(2, x=False)
            g5.ld_issue(3, x=False)

    def mid4(st):
        if st == 3:
            early4(g4.lva, g4.lt)
            ops.extend([("e", 0)] * 8)
        if st == TWD:
            touch_wd(g4.lt)
    g4.ld_run(wdone=True, tail=tail4, mid=mid4)
    a("s_barrier")
    g5.ld_run(wdone=True)
    for g in (f.gq, g3, g4, g5):
        g.ld_dump()
    a("s_endpgm")
    assert max(g3.lva.n, g4.lva.n, g5.lva.n) < 89 and DUMMY < maxv

K4_NS = 3
TWD = int(os.environ.get('TWD', '9'))


def main():
    a = Asm()
    a.raw('.amdgcn_target "amdgcn-amd-amdhsa--gfx950"')
    a.raw(".text")
    launches = [gen_k2(a)]
    head = open("cdna_kernels/" + NAME + ".s.ref").read().split("\n")
    hdr = [l for l in head if l.startswith(";") and "@launch" not in l and "Override launch" not in l and "grid=ceil" not in l]
    out = "\n".join(hdr) + "\n"
    for n, gx, bx, lds in launches:
        out += f"; @launch kernel={n} grid=({gx},1,1) block=({bx},1,1) lds={lds}\n"
    out += a.text()
    out += '.section .rodata,"a"\n' + "".join(KDS)
    path = sys.argv[1] if len(sys.argv) > 1 else "cdna_kernels/" + NAME + ".s"
    open(path, "w").write(out)
    print("wrote", path, len(out), "bytes;", launches)

if __name__ == "__main__":
    main()
```

```python
import sys

NAME = "sequential_preLN__grouped_kv_mqa__geglu_ffn__prompt"

S, D, H, DH, F = 2048, 640, 32, 20, 1536

WS_Q   = 0
FUSED1 = True
WS_KF  = 0x280000
WS_KV  = WS_KF
KV_SZ  = 163840
NCS    = 8
WS_VF  = WS_KF + 0x20000
WS_KN  = WS_VF + 0x20000
WS_CS  = WS_KN + 0x1000
WS_O   = WS_CS + 0x20000
WS_H   = WS_O + 0x280000
WS_ST  = WS_H + 0x280000
WS_ACT = WS_ST + 0x20000
WS_S1  = WS_ACT + 0x600000
WS_CNT = WS_S1
WS_IMG = WS_S1 + 0x8000
WS_TL = 0x3000000
IMG_WO, IMG_WD, IMG_GU, IMG_SZ = 0, 819200, 819200 + 1966080, 6717440

KA_X, KA_WQ, KA_WK, KA_WV, KA_WO, KA_BX, KA_WG, KA_WU, KA_WD, KA_OUT, KA_DBG, KA_WS = [8 * i for i in range(12)]

import struct, os
INSTR = bool(os.environ.get("INSTR"))
HACK_LIN = bool(os.environ.get("HACK_LIN"))
NOCOMP = os.environ.get("NOCOMP", "").split(",")
NOX = os.environ.get("NOX", "").split(",")
NOW = os.environ.get("NOW", "").split(",")
PF = bool(os.environ.get("PF"))
IMGPOL = os.environ.get("IMGPOL", "sc1")
for _k in ("NORB2", "NORB3", "NORB4"):
    os.environ[_k] = "1"
NOLOAD = os.environ.get("NOLOAD", "").split(",")
def f32(x):
    return "0x%08x" % struct.unpack("<I", struct.pack("<f", x))[0]


class Asm:
    skip_dma = False
    def __init__(self):
        self.lines = []
        self.nlabel = 0

    def __call__(self, s):
        for l in s.split("\n"):
            l = l.strip()
            if self.skip_dma and l.startswith("buffer_load") and l.endswith("lds"):
                continue
            if l:
                self.lines.append("    " + l)

    def label(self, l):
        self.lines.append(l + ":")

    def newlabel(self, p="L"):
        self.nlabel += 1
        return f"{p}_{self.nlabel}"

    def raw(self, s):
        self.lines.append(s)

    def text(self):
        return "\n".join(self.lines) + "\n"


class VAlloc:
    def __init__(self, start=1):
        self.n = start

    def __call__(self, cnt=1, align=1):
        self.n = (self.n + align - 1) // align * align
        r = self.n
        self.n += cnt
        return r


def vr(b, n):
    return f"v[{b}:{b+n-1}]"


def sr(b, n):
    return f"s[{b}:{b+n-1}]"


KIDX = [-1]
LIDX = [0]
def kernel_begin(a, name):
    KIDX[0] += 1
    a.raw(f".globl {name}")
    a.raw(".p2align 8")
    a.raw(f".type {name},@function")
    a.label(name)


KDS = []
def kernel_end(a, name, nvgpr, nsgpr=102):
    nv = (nvgpr + 7) // 8 * 8
    KDS.append(f""".p2align 6
.amdhsa_kernel {name}
  .amdhsa_next_free_vgpr {nv}
  .amdhsa_next_free_sgpr {nsgpr}
  .amdhsa_accum_offset {(nv + 3) // 4 * 4}
  .amdhsa_group_segment_fixed_size 0
  .amdhsa_kernarg_size 96
  .amdhsa_user_sgpr_count 2
  .amdhsa_user_sgpr_kernarg_segment_ptr 1
  .amdhsa_system_sgpr_workgroup_id_x 1
.end_amdhsa_kernel
""")


def make_srd(a, dst, base_s, off, nbytes):
    if off:
        a(f"s_add_u32 s{dst}, s{base_s}, {off}")
        a(f"s_addc_u32 s{dst+1}, s{base_s+1}, 0")
    else:
        a(f"s_mov_b32 s{dst}, s{base_s}")
        a(f"s_mov_b32 s{dst+1}, s{base_s+1}")
    a(f"s_mov_b32 s{dst+2}, {nbytes}")
    a(f"s_mov_b32 s{dst+3}, 0x00020000")


def interleave(mfmas, fillers, nreads=None):
    out = []
    nm, nf = len(mfmas), len(fillers)
    per = 1 if (nreads or nf) * 3 <= nm * 2 + 2 and nf <= nm else 2
    if os.environ.get("OLDIL"):
        per = 0
    fi = 0
    for i, m in enumerate(mfmas):
        out.append(m)
        tgt = (i + 1) * per if per else ((i + 1) * nf + nm - 1) // nm
        while fi < min(tgt, nf):
            out.extend(fillers[fi])
            fi += 1
    while fi < nf:
        out.extend(fillers[fi])
        fi += 1
    return out


class Seg:
    def __init__(self, srd, gstride, nf, kind, colreg=None, img=None):
        self.img = img
        self.srd = srd
        self.gstride = gstride
        self.nf = nf
        self.kind = kind
        self.colreg = colreg


class Gemm:
    def __init__(self, a, va, TT, WT, WK, WF, segs, BK, NS, K, xsrd, xstride, s_tok0,
                 stats=False, colsum=False, sregs=None, tag="g", lds_base=0, xcm=False, slot0=0):
        self.a, self.va = a, va
        self.slot0 = slot0
        self.xcm = xcm
        self.lds_base = lds_base
        self.TT, self.WT, self.WK, self.WF = TT, WT, WK, WF
        assert WT * WK * WF == 4
        self.segs, self.BK, self.NS, self.K = segs, BK, NS, K
        self.xsrd, self.xstride, self.s_tok0 = xsrd, xstride, s_tok0
        self.stats, self.colsum = stats, colsum
        self.tag = tag
        self.TW = TT // WT
        self.TB = self.TW // 16
        self.RB = BK * 2
        self.CPR = self.RB // 16
        self.nst = K // BK
        self.SPS = BK // 32
        self.SPW = self.SPS // WK
        assert self.SPW % 2 == 0
        self.xbytes = TT * self.RB
        off = self.xbytes
        for s in segs:
            s.lstride = 40 if s.kind == 'lin40' else s.nf * 2
            nb = BK * s.lstride
            s.ninstr = (nb + 4095) // 4096 * 4
            s.lbase = off
            off += s.ninstr * 1024
            s.FBW = (s.nf // WF) // 16
        self.stage_bytes = off
        self.nx = self.xbytes // 1024
        assert self.nx % 4 == 0
        self.ndma = self.nx // 4 + sum(s.ninstr // 4 for s in segs)
        self.lds_bytes = self.stage_bytes * NS
        (self.s_woff, self.s_kx, self.s_kw, self.s_wave, self.s_cnt, self.s_slot, self.s_kidx, self.s_dl) = sregs

    def split(self):
        a, va = self.a, self.va
        self.tmp = [va() for _ in range(6)]
        t = self.tmp
        a(f"v_lshrrev_b32 v{t[0]}, 6, v0")
        a("s_nop 0")
        a(f"v_readfirstlane_b32 s{self.s_wave}, v{t[0]}")
        a("s_nop 3")
        a(f"s_cmp_ge_u32 s{self.s_wave}, 4")
        a(f"s_cbranch_scc1 {self.tag}_loader")

    def ld_prepare(self, s_rot=None, head=True, xpol="", ops=None, v0=1):
        a = self.a
        va = self.lva = VAlloc(v0)
        t = self.lt = [va() for _ in range(6)]
        self.s_rot, self.xpol = s_rot, xpol
        self.ops = [] if ops is None else ops
        if head:
            a.label(f"{self.tag}_loader")
            a(f"v_and_b32 v0, 255, v0")
        a(f"s_and_b32 s{self.s_woff}, s{self.s_wave}, 3")
        a(f"s_lshl_b32 s{self.s_woff}, s{self.s_woff}, 10")
        lg = {8: 3, 16: 4}[self.CPR]
        v_dx = self.v_dx = va()
        if self.xcm:
            a(f"v_lshrrev_b32 v{t[1]}, {lg+4}, v0")
            a(f"v_and_b32 v{t[2]}, {self.CPR*16-1}, v0")
            a(f"v_lshlrev_b32 v{t[1]}, 4, v{t[1]}")
            a(f"v_add_u32 v{t[1]}, s{self.s_tok0}, v{t[1]}")
            a(f"v_mul_u32_u24 v{t[1]}, {self.xstride}, v{t[1]}")
            a(f"v_lshl_add_u32 v{v_dx}, v{t[2]}, 4, v{t[1]}")
        else:
            a(f"v_lshrrev_b32 v{t[1]}, {lg}, v0")
            a(f"v_and_b32 v{t[2]}, {self.CPR-1}, v0")
            if self.CPR == 8:
                a(f"v_bfe_u32 v{t[3]}, v{t[1]}, 1, 3")
            else:
                a(f"v_and_b32 v{t[3]}, 15, v{t[1]}")
            a(f"v_xor_b32 v{t[2]}, v{t[2]}, v{t[3]}")
            a(f"v_add_u32 v{t[1]}, s{self.s_tok0}, v{t[1]}")
            a(f"v_mul_u32_u24 v{t[1]}, {self.xstride}, v{t[1]}")
            a(f"v_lshl_add_u32 v{v_dx}, v{t[2]}, 4, v{t[1]}")
        done = {}
        for s in self.segs:
            key = (s.kind, s.nf)
            if key in done:
                s.v_d = done[key]
                continue
            s.v_d = []
            cprw = s.lstride // 16 if s.kind != 'lin40' else None
            for j in range(s.ninstr // 4):
                if s.kind == 'lin40' or s.img:
                    if j == 0:
                        r = va()
                        a(f"v_lshlrev_b32 v{r}, 4, v0")
                    s.v_d.append(r)
                    continue
                r = va()
                s.v_d.append(r)
                a(f"v_add_u32 v{t[0]}, {j*256}, v0")
                magic = {10: 52429, 12: 43691}[cprw]
                a(f"v_mul_u32_u24 v{t[1]}, {magic}, v{t[0]}")
                a(f"v_lshrrev_b32 v{t[1]}, 19, v{t[1]}")
                a(f"v_mul_u32_u24 v{t[2]}, {cprw}, v{t[1]}")
                a(f"v_sub_u32 v{t[2]}, v{t[0]}, v{t[2]}")
                a(f"v_and_b32 v{t[3]}, 0xfffffff3, v{t[1]}")
                a(f"v_bfe_u32 v{t[4]}, v{t[1]}, 2, 1")
                if s.kind == 'p192':
                    a(f"v_lshlrev_b32 v{t[5]}, 1, v{t[4]}")
                    a(f"v_xor_b32 v{t[2]}, v{t[2]}, v{t[5]}")
                a(f"v_lshl_or_b32 v{t[3]}, v{t[4]}, 3, v{t[3]}")
                a(f"v_bfe_u32 v{t[4]}, v{t[1]}, 3, 1")
                a(f"v_lshl_or_b32 v{t[3]}, v{t[4]}, 2, v{t[3]}")
                a(f"v_mul_u32_u24 v{t[3]}, {s.gstride}, v{t[3]}")
                a(f"v_lshl_add_u32 v{r}, v{t[2]}, 4, v{t[3]}")
                if s.colreg is not None:
                    a(f"v_add_u32 v{r}, s{s.colreg}, v{r}")
            done[key] = s.v_d
        self.lidx = LIDX[0]
        LIDX[0] += 1
        self.v_st = 196 + self.lidx

    def ld_kset(self, st):
        a = self.a
        if self.s_rot is None:
            a(f"s_mov_b32 s{self.s_kidx}, {st}")
        elif st == 0:
            a(f"s_mov_b32 s{self.s_kidx}, s{self.s_rot}")
        else:
            a(f"s_add_u32 s{self.s_kidx}, s{self.s_rot}, {st}")
            a(f"s_sub_u32 s{self.s_dl}, s{self.s_kidx}, {self.nst}")
            a(f"s_cmp_ge_u32 s{self.s_kidx}, {self.nst}")
            a(f"s_cselect_b32 s{self.s_kidx}, s{self.s_dl}, s{self.s_kidx}")

    def ld_issue(self, st, x=True, w=True):
        a = self.a
        gs = self.segs[0].gstride
        xrows = 256 // self.CPR
        slot = self.lds_base + ((st + self.slot0) % self.NS) * self.stage_bytes
        a.skip_dma = self.tag in NOLOAD
        self.ld_kset(st)
        if x:
            a(f"s_mul_i32 s{self.s_kx}, s{self.s_kidx}, {self.CPR*256 if self.xcm else self.BK*2}")
            for j in range(self.nx // 4):
                a(f"s_add_u32 m0, s{self.s_woff}, {slot + j*4096}")
                if j:
                    a(f"s_add_u32 s{self.s_kx}, s{self.s_kx}, {xrows*self.xstride}")
                else:
                    a("s_nop 0")
                a(f"buffer_load_dwordx4 v{self.v_dx}, {sr(self.xsrd,4)}, s{self.s_kx} offen {self.xpol} lds")
                self.ops.append((self.tag, st))
        if w:
            if self.segs[0].img:
                a(f"s_mul_i32 s{self.s_kw}, s{self.s_kidx}, {self.segs[0].img[1]}")
                a(f"s_add_u32 s{self.s_kw}, s{self.s_kw}, s{self.segs[0].img[0]}")
            else:
                a(f"s_mul_i32 s{self.s_kw}, s{self.s_kidx}, {self.BK*gs}")
            for s in self.segs:
                if s.gstride != gs:
                    a(f"s_mul_i32 s{self.s_kw}, s{self.s_kidx}, {self.BK*s.gstride}")
                for j, r in enumerate(s.v_d):
                    a(f"s_add_u32 m0, s{self.s_woff}, {slot + s.lbase + j*4096}")
                    if s.kind == 'lin40' or s.img:
                        a(f"s_add_u32 s{self.s_dl}, s{self.s_kw}, {j*4096 + (s.img[2] if s.img else 0)}")
                        a(f"buffer_load_dwordx4 v{r}, {sr(s.srd,4)}, s{self.s_dl} offen lds")
                    else:
                        a("s_nop 0")
                        a(f"buffer_load_dwordx4 v{r}, {sr(s.srd,4)}, s{self.s_kw} offen lds")
                    self.ops.append((self.tag, st))

    def lstamp(self, idx):
        a = self.a
        a.skip_dma = False
        if INSTR:
            a("s_memtime s[98:99]")
            a("s_waitcnt lgkmcnt(0)")
            a("s_sub_u32 s98, s98, s80")
            a(f"v_writelane_b32 v{self.v_st}, s98, {idx}")

    def ld_run(self, wdone=False, tail=None, mid=None):
        a = self.a
        ops = self.ops

        def ready(st):
            last = max(i for i, o in enumerate(ops) if o == (self.tag, st))
            n = len(ops) - 1 - last
            assert n < 64
            a(f"s_waitcnt vmcnt({n})")
            self.lstamp(st + 2)
            a("s_barrier")

        NS, nst = self.NS, self.nst
        self.lstamp(1)
        wf = not wdone
        self.ld_issue(0, w=wf)
        self.ld_issue(1, w=wf)
        ready(0)
        for st in range(2, NS):
            self.ld_issue(st, w=wf)
        for st in range(NS, nst):
            ready(st - NS + 1)
            self.ld_issue(st)
            if mid:
                mid(st)
        for st in range(nst - NS + 1, nst):
            ready(st)
            if tail:
                tail(st)
        a("s_barrier")
        if tail:
            tail(nst)

    def ld_dump(self):
        a = self.a
        if INSTR:
            lab = a.newlabel("ls")
            a(f"s_cmp_lg_u32 s2, {INSTR_WG}")
            a(f"s_cbranch_scc1 {lab}")
            a(f"s_cmp_lg_u32 s{self.s_wave}, 4")
            a(f"s_cbranch_scc1 {lab}")
            make_srd(a, 92, P_WS, WS_TL + 0x10000 + self.lidx * 256, 128)
            a(f"v_lshlrev_b32 v89, 2, v0")
            a(f"buffer_store_dword v{self.v_st}, v89, s[92:95], 0 offen")
            a("s_waitcnt vmcnt(0)")
            a.label(lab)

    def loader(self, s_rot=None, cont=None):
        a = self.a
        self.ld_prepare(s_rot)
        self.lstamp(0)
        self.ld_run()
        self.ld_dump()
        if cont is None:
            a("s_endpgm")
        else:
            cont(self.lva, self.lt)

    def setup(self):
        a, va = self.a, self.va
        t = self.tmp
        lane, i16, g, wv = va(), va(), va(), va()
        self.v_lane, self.v_i16, self.v_g, self.v_wave = lane, i16, g, wv
        a(f"v_and_b32 v{lane}, 63, v0")
        a(f"v_lshrrev_b32 v{wv}, 6, v0")
        a(f"v_and_b32 v{i16}, 15, v0")
        a(f"v_bfe_u32 v{g}, v0, 4, 2")
        wt, wo = va(), va()
        self.v_wt, self.v_wo = wt, wo
        a(f"v_and_b32 v{wt}, {self.WT-1}, v{wv}")
        sh = {1: 0, 2: 1, 4: 2}[self.WT]
        a(f"v_lshrrev_b32 v{wo}, {sh}, v{wv}")
        self.addr_regs = []
        done = {}
        for s in self.segs:
            key = (s.kind, s.nf)
            if key in done:
                s.v_a = done[key]
                continue
            if s.kind == 'lin40':
                a(f"v_lshlrev_b32 v{t[0]}, 3, v{g}")
            else:
                a(f"v_lshrrev_b32 v{t[0]}, 1, v{g}")
                a(f"v_lshlrev_b32 v{t[0]}, 4, v{t[0]}")
                a(f"v_and_b32 v{t[1]}, 1, v{g}")
                a(f"v_lshl_add_u32 v{t[0]}, v{t[1]}, 2, v{t[0]}")
            a(f"v_lshrrev_b32 v{t[1]}, 2, v{i16}")
            a(f"v_add_u32 v{t[0]}, v{t[0]}, v{t[1]}")
            if self.WK > 1:
                a(f"v_mov_b32 v{t[1]}, {self.SPW*32}")
                a(f"v_mad_u32_u24 v{t[0]}, v{wo}, v{t[1]}, v{t[0]}")
            a(f"v_mul_u32_u24 v{t[0]}, {s.lstride}, v{t[0]}")
            a(f"v_and_b32 v{t[1]}, 3, v{i16}")
            a(f"v_lshl_add_u32 v{t[0]}, v{t[1]}, 3, v{t[0]}")
            if s.kind == 'p192':
                regs = []
                for b in range(s.FBW):
                    r = va()
                    regs.append(r)
                    if self.WF > 1:
                        a(f"v_mul_u32_u24 v{t[1]}, {s.FBW}, v{wo}")
                        a(f"v_add_u32 v{t[1]}, {b}, v{t[1]}")
                    else:
                        a(f"v_mov_b32 v{t[1]}, {b}")
                    a(f"v_and_b32 v{t[2]}, 1, v{g}")
                    a(f"v_xor_b32 v{t[1]}, v{t[1]}, v{t[2]}")
                    a(f"v_lshl_add_u32 v{r}, v{t[1]}, 5, v{t[0]}")
                s.v_a = regs
                self.addr_regs += regs
            else:
                r = va()
                if self.WF > 1:
                    a(f"v_mul_u32_u24 v{t[1]}, {s.FBW*32}, v{wo}")
                    a(f"v_add_u32 v{r}, v{t[0]}, v{t[1]}")
                else:
                    a(f"v_mov_b32 v{r}, v{t[0]}")
                s.v_a = [r]
                self.addr_regs.append(r)
            done[key] = s.v_a
        self.v_b = []
        if self.xcm:
            r = va()
            self.v_b = [r] * self.SPW
            self.addr_regs.append(r)
            a(f"v_mul_u32_u24 v{t[0]}, {self.TW*self.RB}, v{wt}")
            a(f"v_lshl_add_u32 v{t[0]}, v{lane}, 4, v{t[0]}")
            if self.WK > 1:
                a(f"v_mul_u32_u24 v{t[2]}, {1024*self.SPW}, v{wo}")
                a(f"v_add_u32 v{r}, v{t[0]}, v{t[2]}")
            else:
                a(f"v_mov_b32 v{r}, v{t[0]}")
        self.swapb = self.WK == 2
        a(f"v_mul_u32_u24 v{t[0]}, {self.TW}, v{wt}")
        a(f"v_add_u32 v{t[0]}, v{t[0]}, v{i16}")
        if self.CPR == 8:
            a(f"v_bfe_u32 v{t[1]}, v{t[0]}, 1, 3")
        else:
            a(f"v_and_b32 v{t[1]}, 15, v{t[0]}")
        a(f"v_mul_u32_u24 v{t[0]}, {self.RB}, v{t[0]}")
        for ls in range(self.SPW if not self.xcm else 0):
            r = va()
            self.v_b.append(r)
            self.addr_regs.append(r)
            if self.WK > 1:
                a(f"v_mul_u32_u24 v{t[2]}, {4*self.SPW}, v{wo}")
                a(f"v_add3_u32 v{t[2]}, v{t[2]}, v{g}, {4*ls}")
            else:
                a(f"v_add_u32 v{t[2]}, {4*ls}, v{g}")
            a(f"v_xor_b32 v{t[2]}, v{t[2]}, v{t[1]}")
            a(f"v_lshl_add_u32 v{r}, v{t[2]}, 4, v{t[0]}")
        if self.swapb:
            assert self.TB == 2
            m = {}
            a(f"v_mul_u32_u24 v{t[2]}, {16*self.RB}, v{wo}")
            a(f"v_sub_u32 v{t[3]}, {16*self.RB}, v{t[2]}")
            for r in self.v_b:
                if r not in m:
                    m[r] = va()
                    self.addr_regs.append(m[r])
                    a(f"v_add_u32 v{m[r]}, v{t[3]}, v{r}")
                    a(f"v_add_u32 v{r}, v{t[2]}, v{r}")
            self.v_b2 = [m[r] for r in self.v_b]
        if self.lds_base:
            for r in self.addr_regs:
                a(f"v_add_u32 v{r}, {self.lds_base + self.slot0*self.stage_bytes}, v{r}")
        self.nA = sum(s.FBW for s in self.segs)
        self.fa = [va(4 * self.nA, 4) for _ in range(2)]
        self.fb = [va(4 * self.TB, 4) for _ in range(2)]
        self.acc = [[va(4, 4) for _ in range(self.nA)] for _ in range(self.TB)]
        accs = [r for row in self.acc for r in row]
        if self.stats or self.colsum:
            self.v_ones = va(4, 4)
            for i in range(4):
                a(f"v_mov_b32 v{self.v_ones+i}, 0x3f803f80")
        if self.stats:
            self.acc_sum = [va(4, 4) for _ in range(self.TB)]
            self.acc_sq = [va(4, 4) for _ in range(self.TB)]
            accs += self.acc_sum + self.acc_sq
        if self.colsum:
            self.acc_cs = [va(4, 4) for _ in range(self.nA)]
            accs += self.acc_cs
        for r in accs:
            for i in range(4):
                a(f"v_mov_b32 v{r+i}, 0")

    def read_units(self, ls, buf):
        units = []
        fi = 0
        for s in self.segs:
            for b in range(s.FBW):
                for e in range(2):
                    if s.kind == 'lin40':
                        off = s.lbase + (ls * 32 + 4 * e) * 40 + b * 32
                        ar = s.v_a[0]
                    elif s.kind == 'p192':
                        off = s.lbase + (ls * 32 + 8 * e) * s.lstride
                        ar = s.v_a[b]
                    else:
                        off = s.lbase + (ls * 32 + 8 * e) * s.lstride + b * 32
                        ar = s.v_a[0]
                    assert off < 65536
                    d = self.fa[buf] + 4 * fi + 2 * e
                    units.append([f"ds_read_b64_tr_b16 {vr(d,2)}, v{ar} offset:{off}"])
                fi += 1
        for tb in range(self.TB):
            off = tb * 16 * self.RB + (ls * 1024 if self.xcm else 0)
            d = self.fb[buf] + 4 * tb
            ar = self.v_b[ls]
            if self.swapb and tb:
                off -= 16 * self.RB
                ar = self.v_b2[ls]
            units.append([f"ds_read_b128 {vr(d,4)}, v{ar} offset:{off}"])
        return units[-self.TB:] + units[:-self.TB]

    def mfmas(self, buf):
        out = []
        for fi in range(self.nA):
            A = vr(self.fa[buf] + 4 * fi, 4)
            for tb in range(self.TB):
                B = vr(self.fb[buf] + 4 * tb, 4)
                c = vr(self.acc[tb][fi], 4)
                out.append(f"v_mfma_f32_16x16x32_bf16 {c}, {A}, {B}, {c}")
            if self.colsum:
                c = vr(self.acc_cs[fi], 4)
                out.append(f"v_mfma_f32_16x16x32_bf16 {c}, {A}, {vr(self.v_ones,4)}, {c}")
        if self.stats:
            for tb in range(self.TB):
                B = vr(self.fb[buf] + 4 * tb, 4)
                c = vr(self.acc_sum[tb], 4)
                out.append(f"v_mfma_f32_16x16x32_bf16 {c}, {vr(self.v_ones,4)}, {B}, {c}")
                c = vr(self.acc_sq[tb], 4)
                out.append(f"v_mfma_f32_16x16x32_bf16 {c}, {B}, {B}, {c}")
        return out

    def ld_ready(self, st):
        ops = self.ops
        last = max(i for i, o in enumerate(ops) if o == (self.tag, st))
        n = len(ops) - 1 - last
        assert n < 64
        self.a(f"s_waitcnt vmcnt({n})")
        self.lstamp(st + 2)
        self.a("s_barrier")

    def mainloop(self, post_first=None, pre_bar=None):
        a = self.a
        a(f"s_mov_b32 s{self.s_cnt}, {self.nst}")
        a(f"s_mov_b32 s{self.s_slot}, {self.slot0*self.stage_bytes}")
        a("s_barrier")
        if post_first:
            post_first()
        for u in self.read_units(0, 0):
            for l in u:
                a(l)
        lp = f"{self.tag}_loop"
        a.label(lp)
        for ls in range(self.SPW):
            buf = ls & 1
            a("s_waitcnt lgkmcnt(0)")
            mf = self.mfmas(buf)
            if ls == self.SPW - 1:
                a(mf[0])
                mf = mf[1:]
                if pre_bar:
                    pre_bar()
                a("s_barrier")
                fill = self.read_units(0, buf ^ 1)
                fill.append([f"s_sub_u32 s{self.s_cnt}, s{self.s_cnt}, 1", f"s_cmp_lg_u32 s{self.s_cnt}, 0"])
            else:
                fill = self.read_units(ls + 1, buf ^ 1)
                if ls == self.SPW - 2:
                    fill.append([f"s_mov_b32 s{self.s_dl}, s{self.s_slot}",
                                 f"s_add_u32 s{self.s_slot}, s{self.s_slot}, {self.stage_bytes}"])
                    fill.append([f"s_cmp_ge_u32 s{self.s_slot}, {self.lds_bytes}",
                                 f"s_cselect_b32 s{self.s_slot}, 0, s{self.s_slot}",
                                 f"s_sub_u32 s{self.s_dl}, s{self.s_slot}, s{self.s_dl}"])
                    for r in self.addr_regs:
                        fill.append([f"v_add_u32 v{r}, s{self.s_dl}, v{r}"])
            for l in interleave(mf, fill, len(self.read_units(0, 0))):
                a(l)
        a(f"s_cbranch_scc1 {lp}")
        a("s_waitcnt vmcnt(0) lgkmcnt(0)")


P_X, P_WQ, P_WK, P_WV, P_WO, P_BX, P_WG, P_WU, P_WD, P_OUT, P_DBG, P_WS = [16 + 2 * i for i in range(12)]
SRD0, SRD1, SRD2, SRD3, SRD4, SRD5 = 40, 44, 48, 52, 56, 60
S_WOFF, S_KX, S_KW, S_WAVE = 64, 65, 66, 67
S_TOK0, S_COL, S_T0, S_T1, S_T2 = 68, 69, 70, 71, 72
S_CNT_, S_SLOT_, S_KIDX, S_DL, S_ROT = 76, 77, 78, 79, 73
GS = (S_WOFF, S_KX, S_KW, S_WAVE, S_CNT_, S_SLOT_, S_KIDX, S_DL)


def load_kernargs(a):
    if INSTR:
        for i in range(84, 98):
            a(f"s_mov_b32 s{i}, 0")
        a("s_memtime s[80:81]")
        a("s_memrealtime s[82:83]")
    a("s_load_dwordx16 s[16:31], s[0:1], 0")
    a("s_load_dwordx8 s[32:39], s[0:1], 64")


RT = [int(x) for x in os.environ.get("RT", "0,1,2").split(",")]
def rstamp(a, idx):
    if INSTR and idx in RT:
        a("s_memrealtime s[98:99]")
        a("s_waitcnt lgkmcnt(0)")
        a(f"s_mov_b32 s{(3, 7, 15)[RT.index(idx)]}, s98")


P1ST = bool(os.environ.get("P1ST"))
def stamp(a, idx, p1=False):
    if INSTR and (p1 == P1ST or idx < 4):
        a("s_memtime s[98:99]")
        a("s_waitcnt lgkmcnt(0)")
        a(f"s_sub_u32 s{84+idx}, s98, s80")


def stamp_end(a, n, wg=None):
    if INSTR:
        lab = a.newlabel("se")
        a("s_mov_b64 exec, -1")
        a("s_waitcnt vmcnt(0)")
        a("s_memtime s[98:99]")
        a("s_memrealtime s[100:101]")
        a("s_waitcnt lgkmcnt(0)")
        a(f"s_sub_u32 s{84+n}, s98, s80")
        a(f"s_sub_u32 s{85+n}, s100, s82")
        lab2 = a.newlabel("se")
        a(f"s_cmp_lg_u32 s{S_WAVE}, 0")
        a(f"s_cbranch_scc1 {lab2}")
        make_srd(a, 40, P_WS, WS_TL + KIDX[0] * 4096, 4096)
        a("s_getreg_b32 s98, hwreg(HW_REG_XCC_ID)")
        a("s_and_b32 s98, s98, 7")
        a("s_andn2_b32 s100, s100, 7")
        a("s_or_b32 s100, s100, s98")
        a("v_mov_b32 v2, s82")
        a("v_mov_b32 v3, s100")
        a("s_lshl_b32 s98, s2, 3")
        a("v_mov_b32 v1, s98")
        a("buffer_store_dwordx2 v[2:3], v1, s[40:43], 0 offen")
        make_srd(a, 40, P_WS, WS_TL + 2 * 4096, 4096)
        a("v_mov_b32 v3, s3")
        a("v_mov_b32 v4, s7")
        a("v_mov_b32 v5, s15")
        a("v_lshlrev_b32 v1, 1, v1")
        a("buffer_store_dwordx4 v[2:5], v1, s[40:43], 0 offen")
        a.label(lab2)
        a(f"s_cmp_lg_u32 s2, {INSTR_WG if wg is None else wg}")
        a(f"s_cbranch_scc1 {lab}")
        a(f"s_cmp_lg_u32 s{S_WAVE}, 0")
        a(f"s_cbranch_scc1 {lab}")
        make_srd(a, 40, P_DBG, 0, 256)
        a("v_mov_b32 v1, 0")
        for i in range(14):
            a(f"v_mov_b32 v2, s{84+i}")
            a(f"buffer_store_dword v2, v1, s[40:43], 0 offen offset:{4*i}")
        a.label(lab)
INSTR_WG = int(os.environ.get("INSTR_WG", "100"))


def round_bf16(a, dst, src):
    a(f"v_cvt_pk_bf16_f32 v{dst}, v{src}, v{src}")
    a(f"v_lshlrev_b32 v{dst}, 16, v{dst}")


def ln_stats(a, v_sum, v_sq, v_mean, v_rstd, t):
    a(f"v_mul_f32 v{v_mean}, {f32(1.0/D)}, v{v_sum}")
    a(f"v_mul_f32 v{t[0]}, {f32(1.0/D)}, v{v_sq}")
    a(f"v_fma_f32 v{t[0]}, -v{v_mean}, v{v_mean}, v{t[0]}")
    a(f"v_max_f32 v{t[0]}, 0, v{t[0]}")
    round_bf16(a, v_mean, v_mean)
    round_bf16(a, t[0], t[0])
    a(f"v_add_f32 v{t[0]}, {f32(1e-5)}, v{t[0]}")
    round_bf16(a, t[0], t[0])
    a(f"v_sqrt_f32 v{t[0]}, v{t[0]}")
    a("s_nop 0")
    round_bf16(a, t[0], t[0])
    a(f"v_rcp_f32 v{v_rstd}, v{t[0]}")
    a("s_nop 0")


def gram_diag(a, g, acc_sq, dst):
    t = g.tmp
    a(f"v_and_b32 v{t[0]}, 3, v{g.v_i16}")
    a(f"v_mov_b32 v{t[1]}, v{acc_sq}")
    for r in range(1, 4):
        a(f"v_cmp_eq_u32 vcc, {r}, v{t[0]}")
        a("s_nop 1")
        a(f"v_cndmask_b32 v{t[1]}, v{t[1]}, v{acc_sq+r}, vcc")
    a(f"v_lshrrev_b32 v{t[0]}, 2, v{g.v_i16}")
    a(f"v_lshl_add_u32 v{t[0]}, v{t[0]}, 4, v{g.v_i16}")
    a(f"v_lshlrev_b32 v{t[0]}, 2, v{t[0]}")
    a(f"ds_bpermute_b32 v{dst}, v{t[0]}, v{t[1]}")
    a("s_waitcnt lgkmcnt(0)")


def xlane_add(a, v, v_lane, t0, t1, masks, op="v_add_f32"):
    for m in masks:
        a(f"v_xor_b32 v{t0}, {m}, v{v_lane}")
        a(f"v_lshlrev_b32 v{t0}, 2, v{t0}")
        a(f"ds_bpermute_b32 v{t1}, v{t0}, v{v}")
        a("s_waitcnt lgkmcnt(0)")
        a(f"{op} v{v}, v{v}, v{t1}")


QSCALE = (DH ** -0.5) * 1.4426950408889634


def prefetch_lin(a, v_tid, v_t, v_dummy, srd, s_base, s_j, nlines, s_tmp, nthreads=256):
    a(f"s_mul_i32 s{s_tmp}, s{s_j}, {nlines*128}")
    if s_base is not None:
        a(f"s_add_u32 s{s_tmp}, s{s_tmp}, s{s_base}")
    a(f"v_lshlrev_b32 v{v_t}, 7, v{v_tid}")
    n = (nlines + nthreads - 1) // nthreads
    for i in range(n):
        if i:
            a(f"s_add_u32 s{s_tmp}, s{s_tmp}, {nthreads*128}")
        a(f"buffer_load_dword v{v_dummy}, v{v_t}, {sr(srd,4)}, s{s_tmp} offen")

S_J, S_XB, S_IMG = 12, 13, 14

def dpp_rowmax(a, v):
    for n in (1, 2, 4, 8):
        a("s_nop 1")
        a(f"v_max_f32_dpp v{v}, v{v}, v{v} row_shr:{n} row_mask:0xf bank_mask:0xf bound_ctrl:0")


def swap_add(a, v, t, which):
    a(f"v_mov_b32 v{t}, v{v}")
    a("s_nop 1")
    a(f"v_permlane{which}_swap_b32 v{v}, v{t}")
    a("s_nop 1")
    a(f"v_add_f32 v{v}, v{v}, v{t}")


def gen_k1(a):
    name = "k1_qkv_kernel"
    kernel_begin(a, name)
    a("s_cmp_ge_u32 s2, 256")
    a("s_cbranch_scc1 k1_end")
    load_kernargs(a)
    a(f"s_and_b32 s{S_T1}, s2, 7")
    a(f"s_lshr_b32 s{S_T0}, s2, 3")
    a(f"s_mul_i32 s{S_ROT}, s{S_T0}, 52")
    a(f"s_lshr_b32 s{S_ROT}, s{S_ROT}, 8")
    a(f"s_mul_i32 s{S_ROT}, s{S_ROT}, 5")
    a(f"s_sub_u32 s{S_ROT}, s{S_T0}, s{S_ROT}")
    if os.environ.get("K0ROT", "0") == "0":
        a(f"s_mov_b32 s{S_ROT}, 0")
    a(f"s_lshr_b32 s{S_T2}, s{S_T0}, 3")
    a(f"s_lshl_b32 s{S_T1}, s{S_T1}, 2")
    a(f"s_add_u32 s{S_XB}, s{S_T1}, s{S_T2}")
    a(f"s_lshl_b32 s{S_TOK0}, s{S_XB}, 6")
    a(f"s_and_b32 s{S_J}, s{S_T0}, 7")
    a(f"s_mul_i32 s{S_COL}, s{S_J}, 160")
    a("s_waitcnt lgkmcnt(0)")
    make_srd(a, SRD0, P_X, 0, S * D * 2)
    make_srd(a, SRD1, P_WQ, 0, D * D * 2)
    make_srd(a, SRD2, P_WS, WS_Q, S * D * 2)
    a(f"s_cmp_lt_u32 s{S_J}, 2")
    a("s_cbranch_scc1 k1_b")
    maxv = 8
    lds = 0

    def q_epilogue(g, va):
        t = g.tmp
        v_mean, v_rstd, v_sq, v_ad, v_rq, v_tok = va(), va(), va(), va(), va(), va()
        nA = g.nA
        nx = 2 * nA + 2
        a(f"v_mul_u32_u24 v{t[0]}, {nx*1024}, v{g.v_wave}")
        a(f"v_lshl_add_u32 v{t[0]}, v{g.v_lane}, 4, v{t[0]}")
        a(f"v_xor_b32 v{t[1]}, 2, v{g.v_wave}")
        a(f"v_mul_u32_u24 v{t[1]}, {nx*1024}, v{t[1]}")
        a(f"v_lshl_add_u32 v{t[1]}, v{g.v_lane}, 4, v{t[1]}")
        a(f"v_lshl_add_u32 v{v_tok}, v{g.v_wt}, 1, v{g.v_wo}")
        a(f"v_lshl_add_u32 v{v_tok}, v{v_tok}, 4, v{g.v_i16}")
        a(f"v_add_u32 v{v_tok}, s{S_TOK0}, v{v_tok}")
        a("s_nop 3")
        keep = g.acc[0] + [g.acc_sum[0], g.acc_sq[0]]
        send = g.acc[1] + [g.acc_sum[1], g.acc_sq[1]]
        skip = a.newlabel("xs")
        a(f"s_cmp_lt_u32 s{S_WAVE}, 2")
        a(f"s_cbranch_scc1 {skip}")
        for k_, s_ in zip(keep, send):
            for r in range(4):
                a(f"v_swap_b32 v{k_+r}, v{s_+r}")
        a.label(skip)
        for i, r in enumerate(send + g.acc_cs):
            a(f"ds_write_b128 v{t[0]}, {vr(r,4)} offset:{i*1024}")
        a("s_waitcnt lgkmcnt(0)")
        a("s_barrier")
        csx = [g.fa[0] + 4 * i for i in range(nA)]
        order = [nA, nA + 1] + list(range(nA))
        for i in order:
            a(f"ds_read_b128 {vr(send[i],4)}, v{t[1]} offset:{i*1024}")
            if i < nA:
                a(f"ds_read_b128 {vr(csx[i],4)}, v{t[1]} offset:{(nA+2+i)*1024}")
        a(f"v_mul_u32_u24 v{t[2]}, {D*2}, v{v_tok}")
        a(f"v_lshl_add_u32 v{v_ad}, v{g.v_g}, 3, v{t[2]}")
        a(f"v_add_u32 v{v_ad}, s{S_COL}, v{v_ad}")
        a(f"s_waitcnt lgkmcnt({2*nA})")
        a(f"v_add_f32 v{keep[nA]}, v{keep[nA]}, v{send[nA]}")
        for r in range(4):
            a(f"v_add_f32 v{keep[nA+1]+r}, v{keep[nA+1]+r}, v{send[nA+1]+r}")
        gram_diag(a, g, g.acc_sq[0], v_sq)
        ln_stats(a, g.acc_sum[0], v_sq, v_mean, v_rstd, g.tmp)
        a(f"v_mul_f32 v{v_rq}, {f32(QSCALE)}, v{v_rstd}")
        for fb in range(nA):
            c, cs = g.acc[0][fb], g.acc_cs[fb]
            for r in range(4):
                a(f"v_add_f32 v{c+r}, v{c+r}, v{send[fb]+r}")
                a(f"v_add_f32 v{cs+r}, v{cs+r}, v{csx[fb]+r}")
                a(f"v_fma_f32 v{c+r}, -v{v_mean}, v{cs+r}, v{c+r}")
                a(f"v_mul_f32 v{c+r}, v{c+r}, v{v_rq if fb < 5 else v_rstd}")
            a(f"v_cvt_pk_bf16_f32 v{c}, v{c}, v{c+1}")
            a(f"v_cvt_pk_bf16_f32 v{c+1}, v{c+2}, v{c+3}")
            if fb < 5:
                a(f"buffer_store_dwordx2 {vr(c,2)}, v{v_ad}, {sr(SRD2,4)}, 0 offen offset:{fb*32}")
        return v_tok

    def colsum(lva, lt):
        a.label("k1_cs")
        cva = VAlloc(8)
        lt = [cva() for _ in range(4)]
        csb = cva(40, 4)
        cacc = cva(8, 4)
        v_ca, v_l = cva(), cva()
        S_U, S_SRC, S_DST = S_T0, S_T1, S_KW
        a(f"s_sub_u32 s{S_U}, s{S_WAVE}, 4")
        a(f"s_lshl_b32 s{S_U}, s{S_U}, 8")
        a(f"s_add_u32 s{S_T2}, s{S_U}, s2")
        a(f"s_cmp_eq_u32 s{S_T2}, 768")
        a("s_cbranch_scc1 k1_zero")
        a(f"s_cmp_ge_u32 s{S_T2}, {48*NCS}")
        a("s_cbranch_scc1 k1_end")
        a(f"s_mul_i32 s{S_U}, s{S_T2}, 1366")
        a(f"s_lshr_b32 s{S_U}, s{S_U}, 16")
        a(f"s_mul_i32 s{S_SRC}, s{S_U}, 48")
        a(f"s_sub_u32 s{S_SRC}, s{S_T2}, s{S_SRC}")
        a(f"s_cmp_lt_u32 s{S_SRC}, 24")
        a(f"s_cselect_b32 s{SRD0}, s{P_WG}, s{P_WU}")
        a(f"s_cselect_b32 s{SRD0+1}, s{P_WG+1}, s{P_WU+1}")
        a(f"s_mov_b32 s{SRD0+2}, {F*D*2}")
        a(f"s_cselect_b32 s{S_DST}, 0, 24")
        a(f"s_sub_u32 s{S_SRC}, s{S_SRC}, s{S_DST}")
        a(f"s_lshl_b32 s{S_SRC}, s{S_SRC}, 7")
        a(f"s_mul_i32 s{S_U}, s{S_U}, {80*F*2}")
        a(f"s_add_u32 s{S_SRC}, s{S_SRC}, s{S_U}")
        a(f"v_and_b32 v{v_l}, 63, v0")
        a(f"v_lshrrev_b32 v{lt[0]}, 3, v{v_l}")
        a(f"v_mul_u32_u24 v{lt[0]}, {F*2}, v{lt[0]}")
        a(f"v_and_b32 v{lt[1]}, 7, v{v_l}")
        a(f"v_lshl_add_u32 v{v_ca}, v{lt[1]}, 4, v{lt[0]}")
        for i in range(10):
            a(f"buffer_load_dwordx4 {vr(csb+4*i,4)}, v{v_ca}, {sr(SRD0,4)}, s{S_SRC} offen")
            a(f"s_add_u32 s{S_SRC}, s{S_SRC}, {8*F*2}")
        a(f"v_lshrrev_b32 v{lt[0]}, 4, v{v_l}")
        a(f"v_lshlrev_b32 v{lt[0]}, 3, v{lt[0]}")
        a(f"v_lshl_add_u32 v{v_ca}, v{lt[1]}, 5, v{lt[0]}")
        make_srd(a, SRD3, P_WS, WS_CS, NCS * 3072 * 4)
        a(f"s_lshl_b32 s{S_T2}, s{S_T2}, 8")
        a("s_barrier")
        for i in range(10):
            a(f"s_waitcnt vmcnt({9-i})")
            for j in range(4):
                if i == 0:
                    a(f"v_lshlrev_b32 v{cacc+2*j}, 16, v{csb+j}")
                    a(f"v_and_b32 v{cacc+2*j+1}, 0xffff0000, v{csb+j}")
                else:
                    a(f"v_lshlrev_b32 v{lt[0]}, 16, v{csb+4*i+j}")
                    a(f"v_and_b32 v{lt[1]}, 0xffff0000, v{csb+4*i+j}")
                    a(f"v_add_f32 v{cacc+2*j}, v{cacc+2*j}, v{lt[0]}")
                    a(f"v_add_f32 v{cacc+2*j+1}, v{cacc+2*j+1}, v{lt[1]}")
        a("s_nop 1")
        for j in range(4):
            a(f"v_permlane32_swap_b32 v{cacc+j}, v{cacc+4+j}")
        a("s_nop 1")
        for j in range(4):
            a(f"v_add_f32 v{cacc+j}, v{cacc+j}, v{cacc+4+j}")
        a("s_nop 1")
        for j in range(2):
            a(f"v_permlane16_swap_b32 v{cacc+j}, v{cacc+2+j}")
        a("s_nop 1")
        for j in range(2):
            a(f"v_add_f32 v{cacc+j}, v{cacc+j}, v{cacc+2+j}")
        a("s_nop 1")
        for j in range(2):
            a(f"v_add_f32_dpp v{cacc+j}, v{cacc+j}, v{cacc+j} row_ror:8 row_mask:0xf bank_mask:0xf")
        a(f"buffer_store_dwordx2 {vr(cacc,2)}, v{v_ca}, {sr(SRD3,4)}, s{S_T2} offen")
        a.label("k1_end")
        a("s_endpgm")
        a.label("k1_zero")
        make_srd(a, SRD3, P_WS, WS_CNT, 32768)
        a(f"v_and_b32 v{v_l}, 63, v0")
        a(f"v_lshlrev_b32 v{v_l}, 8, v{v_l}")
        a(f"v_mov_b32 v{lt[0]}, 0")
        a(f"buffer_store_dword v{lt[0]}, v{v_l}, {sr(SRD3,4)}, 0 offen")
        a(f"s_mov_b32 s{S_T2}, 16384")
        a(f"buffer_store_dword v{lt[0]}, v{v_l}, {sr(SRD3,4)}, s{S_T2} offen")
        a("s_endpgm")
        pre['n'] = cva.n
    pre = {}

    va = VAlloc(1)
    seg = Seg(SRD1, D * 2, 80, 'p160', S_COL)
    g = Gemm(a, va, 64, 2, 2, 1, [seg], 128, 4, D, SRD0, D * 2, S_TOK0, stats=True, colsum=True, sregs=GS, tag="k1q")
    g.split()
    g.setup()
    stamp(a, 0)
    g.mainloop()
    stamp(a, 1)
    lds = max(lds, g.lds_bytes)
    q_epilogue(g, va)
    stamp_end(a, 2)
    a("s_endpgm")
    maxv = max(maxv, va.n)
    g.loader(S_ROT, cont=colsum)
    maxv = max(maxv, pre['n'])

    a.label("k1_b")
    va = VAlloc(1)
    a(f"s_cmp_eq_u32 s{S_J}, 0")
    a(f"s_cselect_b32 s{SRD3}, s{P_WK}, s{P_WV}")
    a(f"s_cselect_b32 s{SRD3+1}, s{P_WK+1}, s{P_WV+1}")
    a(f"s_mov_b32 s{SRD3+2}, {D*DH*2}")
    a(f"s_mov_b32 s{SRD3+3}, 0x00020000")
    make_srd(a, SRD4, P_WS, WS_KV, KV_SZ)
    make_srd(a, SRD5, P_WS, WS_KN, 512)
    seg = Seg(SRD1, D * 2, 80, 'p160', S_COL)
    sk = Seg(SRD3, 40, 32, 'lin40')
    g = Gemm(a, va, 64, 2, 2, 1, [seg, sk], 128, 3, D, SRD0, D * 2, S_TOK0, stats=True, colsum=True, sregs=GS, tag="k1kv")
    g.split()
    g.setup()
    stamp(a, 0)
    g.mainloop()
    stamp(a, 1)
    lds = max(lds, g.lds_bytes)
    v_key = q_epilogue(g, va)
    v_ak, v_n = va(), va()
    t = g.tmp
    k0, k1 = g.acc[0][5], g.acc[0][6]
    a(f"v_cmp_eq_u32 vcc, 0, v{g.v_g}")
    a(f"v_lshrrev_b32 v{t[0]}, 5, v{v_key}")
    a(f"v_mul_u32_u24 v{t[0]}, 2560, v{t[0]}")
    a(f"v_and_b32 v{t[1]}, 31, v{v_key}")
    a(f"s_cmp_lg_u32 s{S_J}, 0")
    a("s_cbranch_scc1 k1_v")
    a(f"v_lshl_add_u32 v{v_ak}, v{t[1]}, 4, v{t[0]}")
    a(f"v_lshrrev_b32 v{t[2]}, 1, v{g.v_g}")
    a(f"v_lshl_add_u32 v{v_ak}, v{t[2]}, 9, v{v_ak}")
    a(f"v_and_b32 v{t[2]}, 1, v{g.v_g}")
    a(f"v_lshl_add_u32 v{v_ak}, v{t[2]}, 3, v{v_ak}")
    a(f"buffer_store_dwordx2 {vr(k0,2)}, v{v_ak}, {sr(SRD4,4)}, 0 offen")
    a(f"v_lshl_add_u32 v{v_key}, v{t[1]}, 3, v{t[0]}")
    a(f"v_cndmask_b32 v{k1}, 0, v{k1}, vcc")
    a(f"v_cndmask_b32 v{k1+1}, 0, v{k1+1}, vcc")
    a("s_and_saveexec_b64 s[74:75], vcc")
    a(f"buffer_store_dwordx2 {vr(k1,2)}, v{v_key}, {sr(SRD4,4)}, 0 offen offset:1024")
    a("s_mov_b64 exec, -1")
    a(f"v_mov_b32 v{v_n}, 0")
    for c in (k0, k0 + 1, k1, k1 + 1):
        a(f"v_lshlrev_b32 v{t[0]}, 16, v{c}")
        a(f"v_and_b32 v{t[1]}, 0xffff0000, v{c}")
        a(f"v_fma_f32 v{v_n}, v{t[0]}, v{t[0]}, v{v_n}")
        a(f"v_fma_f32 v{v_n}, v{t[1]}, v{t[1]}, v{v_n}")
    swap_add(a, v_n, t[0], 32)
    swap_add(a, v_n, t[0], 16)
    dpp_rowmax(a, v_n)
    a(f"s_lshl_b32 s{S_T0}, s{S_XB}, 2")
    a(f"s_add_u32 s{S_T0}, s{S_T0}, s{S_WAVE}")
    a(f"s_lshl_b32 s{S_T0}, s{S_T0}, 2")
    a(f"v_mov_b32 v{t[0]}, 0")
    a("s_mov_b64 exec, 0x8000")
    a(f"buffer_store_dword v{v_n}, v{t[0]}, {sr(SRD5,4)}, s{S_T0} offen")
    stamp_end(a, 2)
    a("s_endpgm")
    a.label("k1_v")
    a(f"v_bfe_u32 v{t[2]}, v{t[1]}, 4, 1")
    a(f"v_mad_u32_u24 v{v_ak}, v{t[2]}, 640, v{t[0]}" if False else f"v_mul_u32_u24 v{t[2]}, 640, v{t[2]}")
    a(f"v_add_u32 v{v_ak}, v{t[2]}, v{t[0]}")
    a(f"v_bfe_u32 v{t[2]}, v{t[1]}, 2, 1")
    a(f"v_mul_u32_u24 v{t[2]}, 320, v{t[2]}")
    a(f"v_add_u32 v{v_ak}, v{t[2]}, v{v_ak}")
    a(f"v_bfe_u32 v{t[2]}, v{t[1]}, 3, 1")
    a(f"v_lshl_add_u32 v{v_ak}, v{t[2]}, 3, v{v_ak}")
    a(f"v_and_b32 v{t[2]}, 3, v{t[1]}")
    a(f"v_lshl_add_u32 v{v_ak}, v{t[2]}, 1, v{v_ak}")
    a(f"v_lshl_add_u32 v{v_ak}, v{g.v_g}, 6, v{v_ak}")
    for fb, c in enumerate((k0, k1)):
        if fb:
            a("s_and_saveexec_b64 s[74:75], vcc")
        for p in range(2):
            o = 1280 + fb * 256 + p * 32
            a(f"buffer_store_short v{c+p}, v{v_ak}, {sr(SRD4,4)}, 0 offen offset:{o}")
            a(f"buffer_store_short_d16_hi v{c+p}, v{v_ak}, {sr(SRD4,4)}, 0 offen offset:{o+16}")
    stamp_end(a, 2)
    a("s_endpgm")
    maxv = max(maxv, va.n)
    g.loader(S_ROT, cont=lambda lva, lt: a("s_branch k1_cs"))

    kernel_end(a, name, maxv)
    return (name, 256, 512, lds)


QB = 53248
MX, MW, MS = 0, 20480, 49152
QST, KMX = 102400, 112640
S_HOOK, S_KVC = 15, 7
CNT_KV = 80
LOC = int(os.environ.get("LOC", "7"))
DEFER = int(os.environ.get("DEFER", "1")) and LOC and not INSTR
S_DEF = 15
PRET = int(os.environ.get("PRET", "0"))
KVL = int(os.environ.get("KVL", "0"))
FLAG = 128


def p1_compute(a, tmp, v_first, v_alias, init):
    va = VAlloc(v_first)
    seg = Seg(SRD1, D * 2, 80, 'p160', S_COL)
    g = Gemm(a, va, 64, 2, 2, 1, [seg], 128, 4, D, SRD0, D * 2, S_TOK0, stats=True, colsum=True, sregs=GS, tag="k1q",
             lds_base=QB - 36864, slot0=1)
    assert g.lds_base + g.lds_bytes <= KV_SZ and g.stage_bytes == 36864
    g.tmp = tmp
    t = g.tmp
    make_srd(a, SRD5, P_DBG, 0, 256)
    make_srd(a, SRD3, P_WS, WS_KN, 512)
    fr = v_alias
    mac = [v_alias + 16 + 4 * i for i in range(6)]
    v_mx, v_mw, v_mp, v_fl, v_z, v_one, v_fa, v_ad = [v_alias + 40 + i for i in range(8)]
    v_mean = va(2, 2)
    v_rstd = v_mean + 1
    v_sq, v_xw, v_xr, v_xc, v_qw = [va() for _ in range(5)]
    a(f"v_mov_b32 v{v_z}, 0")
    a(f"v_mov_b32 v{v_one}, 1")
    lab = a.newlabel("bz")
    a(f"s_lshl_b32 s{S_T1}, s2, 2")
    a(f"s_add_u32 s{S_T1}, s{S_T1}, s{S_WAVE}")
    a(f"s_cmp_lg_u32 s{S_T1}, 3")
    a(f"s_cbranch_scc1 {lab}")
    a(f"v_and_b32 v{t[0]}, 63, v0")
    a(f"v_lshlrev_b32 v{t[0]}, 8, v{t[0]}")
    for i in range(4):
        a(f"v_mov_b32 v{fr+i}, 0")
    a(f"s_mov_b32 s{S_T2}, 16384")
    a(f"buffer_store_dwordx4 {vr(fr,4)}, v{t[0]}, {sr(SRDC,4)}, 0 offen sc1")
    if LOC:
        a(f"buffer_store_dwordx4 {vr(fr,4)}, v{t[0]}, {sr(SRDC,4)}, 0 offen offset:128 sc1")
    a(f"buffer_store_dwordx4 {vr(fr,4)}, v{t[0]}, {sr(SRDC,4)}, s{S_T2} offen sc1")
    if KVL:
        a(f"buffer_store_dwordx4 {vr(fr,4)}, v{t[0]}, {sr(SRDC,4)}, s{S_T2} offen offset:128 sc1")
    a("s_mov_b64 exec, 1")
    a("s_waitcnt vmcnt(0)")
    a(f"buffer_store_dword v{v_one}, v{v_z}, {sr(SRD5,4)}, 0 offen offset:{FLAG} sc1")
    a("s_mov_b64 exec, -1")
    a.label(lab)
    g.setup()
    assert g.fb[1] + 8 == g.fa[0] + 56
    fq = [fr + 4 * i for i in range(4)] + [g.fa[0] + 4 * i for i in range(14)]
    a(f"s_cmp_eq_u32 s{S_WAVE}, 0")
    a(f"s_cselect_b32 s{S_HOOK}, 2, 0")
    a(f"s_and_b32 s{S_KVC}, s2, 15")
    a(f"s_lshl_b32 s{S_KVC}, s{S_KVC}, 8")
    a(f"s_add_u32 s{S_KVC}, s{S_KVC}, {96*256}")
    a(f"v_lshlrev_b32 v{v_fa}, 8, v{g.v_lane}")
    a(f"v_mul_u32_u24 v{t[0]}, 5120, v{g.v_wave}")
    a(f"v_lshl_add_u32 v{v_mx}, v{g.v_lane}, 4, v{t[0]}")
    a(f"v_mul_u32_u24 v{t[0]}, 6400, v{g.v_wave}")
    a(f"v_add_u32 v{t[0]}, {MW}, v{t[0]}")
    a(f"v_lshl_add_u32 v{v_mp}, v{g.v_lane}, 4, v{t[0]}")
    a(f"v_lshrrev_b32 v{t[1]}, 2, v{g.v_i16}")
    a(f"v_lshl_add_u32 v{t[1]}, v{g.v_g}, 3, v{t[1]}")
    a(f"v_mad_u32_u24 v{t[0]}, v{t[1]}, 40, v{t[0]}")
    a(f"v_and_b32 v{t[1]}, 3, v{g.v_i16}")
    a(f"v_lshl_add_u32 v{v_mw}, v{t[1]}, 3, v{t[0]}")
    XW = 8 * 1024
    assert QB + 4 * XW <= QST
    a(f"v_mul_u32_u24 v{t[0]}, {XW}, v{g.v_wave}")
    a(f"v_lshl_add_u32 v{t[0]}, v{g.v_lane}, 4, v{t[0]}")
    a(f"v_add_u32 v{v_xw}, {QB}, v{t[0]}")
    a(f"v_xor_b32 v{v_xr}, {2*XW}, v{t[0]}")
    a(f"v_add_u32 v{v_xr}, {QB}, v{v_xr}")
    a(f"v_lshlrev_b32 v{t[0]}, 4, v{g.v_i16}")
    a(f"v_sub_u32 v{v_xc}, v{v_xr}, v{t[0]}")
    a(f"v_lshl_add_u32 v{t[1]}, v{g.v_wt}, 1, v{g.v_wo}")
    a(f"v_lshl_add_u32 v{t[1]}, v{t[1]}, 4, v{g.v_i16}")
    a(f"v_mul_u32_u24 v{t[2]}, 160, v{t[1]}")
    a(f"v_lshl_add_u32 v{t[2]}, v{g.v_g}, 3, v{t[2]}")
    a(f"v_add_u32 v{v_qw}, {QST}, v{t[2]}")
    a(f"v_add_u32 v{t[2]}, s{S_TOK0}, v{t[1]}")
    a(f"v_mul_u32_u24 v{t[2]}, {D*2}, v{t[2]}")
    a(f"v_lshl_add_u32 v{t[2]}, v{g.v_g}, 3, v{t[2]}")
    a(f"v_add_u32 v{V_RAD}, s{S_COL}, v{t[2]}")
    a(f"ds_write_b32 v{v_z}, v{v_z} offset:{MS+1024}")
    a("s_waitcnt lgkmcnt(0)")
    a("s_barrier")
    stamp(a, 0)
    a(f"buffer_load_dword v{v_fl}, v{v_z}, {sr(SRD5,4)}, 0 offen offset:{FLAG} sc1")
    for s_ in range(5):
        a(f"ds_read_b128 {vr(fq[3*s_],4)}, v{v_mx} offset:{MX + s_*1024}")
        for b in range(2):
            for e in range(2):
                a(f"ds_read_b64_tr_b16 {vr(fq[3*s_+1+b]+2*e,2)}, v{v_mw} offset:{(s_*32+4*e)*40 + b*32}")
    ones = vr(g.v_ones, 4)
    for s_ in range(5):
        a(f"s_waitcnt lgkmcnt({min(15, 5*(4-s_))})")
        B, A0, A1 = [vr(fq[3*s_+i], 4) for i in range(3)]
        for i, (x, y) in enumerate([(A0, B), (A1, B), (A0, ones), (A1, ones), (ones, B), (B, B)]):
            a(f"v_mfma_f32_16x16x32_bf16 {vr(mac[i],4)}, {x}, {y}, " + ("0" if s_ == 0 else vr(mac[i], 4)))
    a("s_nop 7")
    a("s_nop 7")
    lab = a.newlabel("pw")
    a(f"s_cmp_eq_u32 s{S_WAVE}, 0")
    a(f"s_cbranch_scc1 {lab}")
    for i in range(6):
        a(f"ds_write_b128 v{v_mp}, {vr(mac[i],4)} offset:{i*1024}")
    a("s_mov_b64 exec, 1")
    a(f"ds_add_u32 v{v_z}, v{v_one} offset:{MS+1024}")
    a("s_mov_b64 exec, -1")
    a.label(lab)

    def finalize():
        skip, lv, lj, lp, lq = [a.newlabel("fz") for _ in range(5)]
        a(f"s_cmp_lg_u32 s{S_WAVE}, 0")
        a(f"s_cbranch_scc1 {skip}")
        a.label(lp)
        a(f"ds_read_b32 v{t[0]}, v{v_z} offset:{MS+1024}")
        a("s_waitcnt lgkmcnt(0)")
        a(f"v_readfirstlane_b32 s{S_T2}, v{t[0]}")
        a("s_nop 3")
        a(f"s_cmp_lt_u32 s{S_T2}, 3")
        a(f"s_cbranch_scc1 {lp}")
        order = [4, 5, 0, 2, 1, 3]
        for i in order:
            for w in range(1, 4):
                a(f"ds_read_b128 {vr(fq[6*(w-1)+i],4)}, v{v_mp} offset:{w*6400 + i*1024}")
        a(f"s_and_b32 s{S_T1}, s{S_J}, 3")
        a(f"s_lshl_b32 s{S_T1}, s{S_T1}, 4")
        a(f"s_add_u32 s{S_T1}, s{S_T1}, s{S_TOK0}")
        a(f"s_lshr_b32 s{S_KX}, s{S_T1}, 2")
        a(f"s_lshr_b32 s{S_T1}, s{S_T1}, 5")
        a(f"s_mul_i32 s{S_KW}, s{S_T1}, 2560")
        a(f"s_and_b32 s{S_T0}, s{S_J}, 1")
        for n, i in enumerate(order):
            a(f"s_waitcnt lgkmcnt({min(15, 3*(5-n))})")
            for w in range(3):
                for r in ((0,) if i == 4 else (0, 2)):
                    a(f"v_pk_add_f32 {vr(mac[i]+r,2)}, {vr(mac[i]+r,2)}, {vr(fq[6*w+i]+r,2)}")
        gram_diag(a, g, mac[5], v_sq)
        ln_stats(a, mac[4], v_sq, v_mean, v_rstd, t)
        for b in range(2):
            c, cs = mac[b], mac[2 + b]
            for r in range(4):
                a(f"v_fma_f32 v{c+r}, -v{v_mean}, v{cs+r}, v{c+r}")
                a(f"v_mul_f32 v{c+r}, v{c+r}, v{v_rstd}")
            a(f"v_cvt_pk_bf16_f32 v{c}, v{c}, v{c+1}")
            a(f"v_cvt_pk_bf16_f32 v{c+1}, v{c+2}, v{c+3}")
        k0, k1 = mac[0], mac[1]
        v_n = v_sq
        a(f"v_mov_b32 v{v_n}, 0")
        a(f"s_bitcmp1_b32 s{S_J}, 2")
        a(f"s_cbranch_scc1 {lv}")
        a(f"v_lshrrev_b32 v{t[0]}, 1, v{g.v_g}")
        a(f"v_lshlrev_b32 v{t[0]}, 8, v{t[0]}")
        a(f"v_lshl_add_u32 v{t[0]}, v{g.v_i16}, 4, v{t[0]}")
        a(f"v_and_b32 v{t[1]}, 1, v{g.v_g}")
        a(f"v_lshl_add_u32 v{t[0]}, v{t[1]}, 3, v{t[0]}")
        a(f"ds_write_b64 v{t[0]}, {vr(k0,2)} offset:{MS}")
        a(f"v_lshlrev_b32 v{t[1]}, 3, v{g.v_i16}")
        a("s_mov_b64 exec, 0xffff")
        a(f"ds_write_b64 v{t[1]}, {vr(k1,2)} offset:{MS+512}")
        for c in (k1, k1 + 1, k0, k0 + 1):
            if c == k0:
                a("s_mov_b64 exec, -1")
            a(f"v_lshlrev_b32 v{t[0]}, 16, v{c}")
            a(f"v_and_b32 v{t[1]}, 0xffff0000, v{c}")
            a(f"v_fma_f32 v{v_n}, v{t[0]}, v{t[0]}, v{v_n}")
            a(f"v_fma_f32 v{v_n}, v{t[1]}, v{t[1]}, v{v_n}")
        swap_add(a, v_n, t[0], 32)
        swap_add(a, v_n, t[0], 16)
        dpp_rowmax(a, v_n)
        a("s_mov_b64 exec, 0x8000")
        a(f"buffer_store_dword v{v_n}, v{v_z}, {sr(SRD3,4)}, s{S_KX} offen sc1")
        a("s_mov_b64 exec, -1")
        a(f"v_lshlrev_b32 v{t[0]}, 9, v{g.v_g}")
        a(f"v_lshl_add_u32 v{v_ad}, v{g.v_i16}, 4, v{t[0]}")
        a(f"s_lshl_b32 s{S_T0}, s{S_T0}, 7")
        a(f"v_cmp_gt_u32 vcc, 2, v{g.v_g}")
        a(f"v_mov_b32 v{t[0]}, s{S_T0}")
        a(f"v_cndmask_b32 v{t[1]}, 0, v{t[0]}, vcc")
        a(f"v_add3_u32 v{v_ad}, v{v_ad}, v{t[0]}, v{t[1]}")
        a(f"s_branch {lj}")
        a.label(lv)
        a(f"v_bfe_u32 v{t[0]}, v{g.v_i16}, 2, 1")
        a(f"v_mul_u32_u24 v{t[0]}, 320, v{t[0]}")
        a(f"v_bfe_u32 v{t[1]}, v{g.v_i16}, 3, 1")
        a(f"v_lshl_add_u32 v{t[0]}, v{t[1]}, 3, v{t[0]}")
        a(f"v_and_b32 v{t[1]}, 3, v{g.v_i16}")
        a(f"v_lshl_add_u32 v{t[0]}, v{t[1]}, 1, v{t[0]}")
        a(f"v_lshl_add_u32 v{t[0]}, v{g.v_g}, 6, v{t[0]}")
        for b, c in enumerate((k0, k1)):
            if b:
                a("s_mov_b64 exec, 0xffff")
            for p in range(2):
                o = MS + b * 256 + p * 32
                a(f"ds_write_b16 v{t[0]}, v{c+p} offset:{o}")
                a(f"ds_write_b16_d16_hi v{t[0]}, v{c+p} offset:{o+16}")
        a("s_mov_b64 exec, -1")
        a(f"s_mul_i32 s{S_T0}, s{S_T0}, 640")
        a(f"s_add_u32 s{S_T0}, s{S_T0}, 1280")
        a(f"v_lshl_add_u32 v{v_ad}, v{g.v_lane}, 4, s{S_T0}")
        a.label(lj)
        a(f"v_lshlrev_b32 v{t[0]}, 4, v{g.v_lane}")
        a(f"ds_read_b128 {vr(mac[2],4)}, v{t[0]} offset:{MS}")
        a("s_mov_b32 exec_hi, 0xff")
        a("s_waitcnt lgkmcnt(0)")
        a(f"buffer_store_dwordx4 {vr(mac[2],4)}, v{v_ad}, {sr(SRD1,4)}, s{S_KW} offen sc1")
        a("s_mov_b64 exec, -1")
        a.label(skip)

    def hook():
        skip, sec, done, lp, lq = [a.newlabel("hk") for _ in range(5)]
        a(f"s_cmp_eq_u32 s{S_HOOK}, 0")
        a(f"s_cbranch_scc1 {skip}")
        a(f"s_sub_u32 s{S_HOOK}, s{S_HOOK}, 1")
        a("s_mov_b64 exec, 1")
        a(f"s_cmp_eq_u32 s{S_HOOK}, 0")
        a(f"s_cbranch_scc1 {sec}")
        a(f"s_mov_b32 s{S_T1}, 0x20000")
        a.label(lp)
        a("s_waitcnt vmcnt(0)")
        a(f"v_readfirstlane_b32 s{S_T2}, v{v_fl}")
        a(f"s_sub_u32 s{S_T1}, s{S_T1}, 1")
        a(f"s_cmp_eq_u32 s{S_T1}, 0")
        a(f"s_cbranch_scc1 {lq}")
        a(f"s_cmp_lg_u32 s{S_T2}, 0")
        a(f"s_cbranch_scc1 {lq}")
        a(f"buffer_load_dword v{v_fl}, v{v_z}, {sr(SRD5,4)}, 0 offen offset:{FLAG} sc1")
        a(f"s_branch {lp}")
        a.label(lq)
        a(f"v_mov_b32 v{v_fl}, 1")
        if KVL:
            a(f"v_mov_b32 v{v_ad}, 1")
            a(f"s_lshl_b32 s{S_T1}, s{S_XB}, 8")
            a(f"s_add_u32 s{S_T1}, s{S_T1}, {112*256}")
            a(f"buffer_atomic_add v{v_ad}, v{v_z}, {sr(SRDC,4)}, s{S_T1} offen offset:128 sc0")
        a(f"buffer_atomic_add v{v_fl}, v{v_z}, {sr(SRDC,4)}, s{S_KVC} offen sc0 sc1")
        if KVL:
            a("s_waitcnt vmcnt(1)")
            a(f"v_readfirstlane_b32 s{S_T2}, v{v_ad}")
            a(f"v_mov_b32 v{v_ad}, 1")
            a(f"s_mov_b32 s{S_T1}, {120*256}")
            a("s_nop 2")
            a(f"s_cmp_lg_u32 s{S_T2}, 31")
            a(f"s_cbranch_scc1 {done}")
            a(f"buffer_atomic_add v{v_ad}, v{v_z}, {sr(SRDC,4)}, s{S_T1} offen offset:128 sc0 sc1")
            a("s_waitcnt vmcnt(0)")
            a(f"v_readfirstlane_b32 s{S_T2}, v{v_ad}")
            a(f"s_mov_b32 s{S_T1}, {CNT_KV*256}")
            a("s_nop 3")
            a(f"s_cmp_lg_u32 s{S_T2}, 7")
            a(f"s_cbranch_scc1 {done}")
            a("s_mov_b64 exec, 0xff")
            a(f"buffer_store_dword v{v_one}, v{v_fa}, {sr(SRDC,4)}, s{S_T1} offen offset:2048 sc1")
        a(f"s_branch {done}")
        a.label(sec)
        a("s_waitcnt vmcnt(0)")
        a(f"v_readfirstlane_b32 s{S_T2}, v{v_fl}")
        a(f"v_mov_b32 v{v_fl}, 1")
        a(f"s_mov_b32 s{S_KVC}, {CNT_KV*256}")
        a("s_nop 2")
        a(f"s_cmp_lg_u32 s{S_T2}, 15")
        a(f"s_cbranch_scc1 {done}")
        a(f"buffer_atomic_add v{v_fl}, v{v_z}, {sr(SRDC,4)}, s{S_KVC} offen sc0 sc1")
        a("s_waitcnt vmcnt(0)")
        a(f"v_readfirstlane_b32 s{S_T2}, v{v_fl}")
        a("s_nop 3")
        a(f"s_cmp_lg_u32 s{S_T2}, 15")
        a(f"s_cbranch_scc1 {done}")
        a("s_mov_b64 exec, 0xff")
        a(f"buffer_store_dword v{v_one}, v{v_fa}, {sr(SRDC,4)}, s{S_KVC} offen offset:2048 sc1")
        a.label(done)
        a("s_mov_b64 exec, -1")
        a.label(skip)
        a(f"s_cmp_lg_u32 s{g.s_cnt}, 2")
        a(f"s_cbranch_scc1 {lq}x")
        init()
        a.label(f"{lq}x")

    finalize()
    g.mainloop(pre_bar=hook)
    stamp(a, 1)
    nA = g.nA
    keep = g.acc[0] + [g.acc_sq[0]]
    send = g.acc[1] + [g.acc_sq[1]]
    a("s_nop 3")
    a(f"ds_write_b128 v{v_xw}, {vr(send[nA],4)} offset:{nA*1024}")
    a(f"ds_write_b32 v{v_xw}, v{g.acc_sum[1]} offset:{(nA+1)*1024}")
    for i in range(nA):
        a(f"ds_write_b128 v{v_xw}, {vr(send[i],4)} offset:{i*1024}")
    a("s_mov_b32 exec_lo, 0x00010001")
    a("s_mov_b32 exec_hi, 0x00010001")
    for i in range(nA):
        a(f"ds_write_b128 v{v_xw}, {vr(g.acc_cs[i],4)} offset:{(nA+2)*1024 + 16*i}")
    a("s_mov_b64 exec, -1")
    a("s_waitcnt lgkmcnt(0)")
    stamp(a, 4, True)
    a("s_barrier")
    stamp(a, 5, True)
    csx = [g.fa[0] + 4 * i for i in range(nA)]
    a(f"ds_read_b128 {vr(send[nA],4)}, v{v_xr} offset:{nA*1024}")
    a(f"ds_read_b32 v{g.acc_sum[1]}, v{v_xr} offset:{(nA+1)*1024}")
    for i in range(nA):
        a(f"ds_read_b128 {vr(send[i],4)}, v{v_xr} offset:{i*1024}")
        a(f"ds_read_b128 {vr(csx[i],4)}, v{v_xc} offset:{(nA+2)*1024 + 16*i}")
    a(f"s_waitcnt lgkmcnt({2*nA})")
    a(f"v_add_f32 v{g.acc_sum[0]}, v{g.acc_sum[0]}, v{g.acc_sum[1]}")
    for r in (0, 2):
        a(f"v_pk_add_f32 {vr(keep[nA]+r,2)}, {vr(keep[nA]+r,2)}, {vr(send[nA]+r,2)}")
    gram_diag(a, g, g.acc_sq[0], v_sq)
    for fb in range(nA):
        c, cs = g.acc[0][fb], g.acc_cs[fb]
        for r in (0, 2):
            a(f"v_pk_add_f32 {vr(c+r,2)}, {vr(c+r,2)}, {vr(send[fb]+r,2)}")
            a(f"v_pk_add_f32 {vr(cs+r,2)}, {vr(cs+r,2)}, {vr(csx[fb]+r,2)}")
    ln_stats(a, g.acc_sum[0], v_sq, v_mean, v_rstd, g.tmp)
    a(f"v_mul_f32 v{v_rstd}, {f32(QSCALE)}, v{v_rstd}")
    a(f"v_sub_f32 v{v_mean}, 0, v{v_mean}")
    stamp(a, 6, True)
    pm = vr(v_mean, 2)
    for fb in range(nA):
        c, cs = g.acc[0][fb], g.acc_cs[fb]
        for r in (0, 2):
            a(f"v_pk_fma_f32 {vr(c+r,2)}, {pm}, {vr(cs+r,2)}, {vr(c+r,2)} op_sel_hi:[0,1,1]")
        for r in (0, 2):
            a(f"v_pk_mul_f32 {vr(c+r,2)}, {vr(c+r,2)}, {pm} op_sel:[0,1] op_sel_hi:[1,1]")
        a(f"v_cvt_pk_bf16_f32 v{c}, v{c}, v{c+1}")
        a(f"v_cvt_pk_bf16_f32 v{c+1}, v{c+2}, v{c+3}")
        a(f"ds_write_b64 v{v_qw}, {vr(c,2)} offset:{fb*32}")
    stamp(a, 7, True)
    g.maxv = va.n
    return g


KVROT = int(os.environ.get("KVROT", "7"))
LATE1 = int(os.environ.get("LATE1", "1"))
CPF = int(os.environ.get("CPF", "0"))


def code_touch(a, v_t, v_d, first):
    lab = a.newlabel("pc")
    a("s_getpc_b64 s[74:75]")
    a.label(lab)
    a(f"s_sub_u32 s74, s74, {lab}-k2_attn_kernel")
    a("s_subb_u32 s75, s75, 0")
    for i in range(first, 2):
        a(f"v_lshlrev_b32 v{v_t}, 7, v0")
        if i:
            a(f"v_add_u32 v{v_t}, {i*32768}, v{v_t}")
        a(f"v_min_u32 v{v_t}, k2_code_end-k2_attn_kernel-4, v{v_t}")
        a(f"global_load_dword v{v_d}, v{v_t}, s[74:75]")


def p1_mini(a):
    t = [30, 31]
    a("v_and_b32 v0, 255, v0")
    make_srd(a, SRD0, P_X, 0, S * D * 2)
    a(f"s_bitcmp0_b32 s{S_J}, 2")
    a(f"s_cselect_b32 s{SRD3}, s{P_WK}, s{P_WV}")
    a(f"s_cselect_b32 s{SRD3+1}, s{P_WK+1}, s{P_WV+1}")
    a(f"s_mov_b32 s{SRD3+2}, {D*DH*2}")
    a(f"s_mov_b32 s{SRD3+3}, 0x00020000")
    a(f"s_and_b32 s{S_T1}, s{S_J}, 3")
    a(f"s_lshl_b32 s{S_T1}, s{S_T1}, 4")
    a(f"s_add_u32 s{S_T1}, s{S_T1}, s{S_TOK0}")
    a(f"v_and_b32 v{t[0]}, 15, v0")
    a(f"v_add_u32 v{t[0]}, s{S_T1}, v{t[0]}")
    a(f"v_mul_u32_u24 v{t[0]}, {D*2}, v{t[0]}")
    a(f"v_and_b32 v{t[1]}, 0xf0, v0")
    a(f"v_add_u32 v{t[0]}, v{t[0]}, v{t[1]}")
    a(f"v_lshlrev_b32 v{t[1]}, 4, v0")
    a(f"s_and_b32 s{S_WOFF}, s{S_WAVE}, 3")
    a(f"s_lshl_b32 s{S_WOFF}, s{S_WOFF}, 10")
    for j in range(7):
        if j < 5:
            a(f"s_add_u32 m0, s{S_WOFF}, {MX + j*4096}")
            a(f"s_mov_b32 s{S_T1}, {j*256}")
            a(f"buffer_load_dwordx4 v{t[0]}, {sr(SRD0,4)}, s{S_T1} offen lds")
        a(f"s_add_u32 m0, s{S_WOFF}, {MW + j*4096}")
        a(f"s_mov_b32 s{S_T1}, {j*4096}")
        a(f"buffer_load_dwordx4 v{t[1]}, {sr(SRD3,4)}, s{S_T1} offen lds")


def p1_loader(a, g, v_l, dma, early):
    lva = VAlloc(30)
    t = [lva() for _ in range(2)]
    v_p = lva(2, 2)
    v_pa = lva()
    make_srd(a, SRD1, P_WQ, 0, D * D * 2)
    make_srd(a, SRD2, P_WS, WS_KV, KV_SZ)
    g.ld_prepare(None, head=False, v0=40)
    g.lstamp(0)
    if LATE1 < 2:
        g.ld_issue(0)
    if LATE1 < 1:
        g.ld_issue(1)
    a(f"s_lshl_b32 s{S_KVC}, s{S_XB}, 8")
    a(f"s_add_u32 s{S_KVC}, s{S_KVC}, {(CNT_KV+8)*256}")
    a(f"v_lshlrev_b32 v{v_pa}, 3, v{v_l}")
    make_srd(a, SRD4, P_WS, WS_KN, 512)
    early()
    a(f"s_waitcnt vmcnt({len(g.ops)})")
    g.lstamp(1)
    a("s_barrier")
    if LATE1 >= 2:
        g.ld_issue(0)
    if LATE1 >= 1:
        g.ld_issue(1)
    g.ld_issue(2)
    g.ld_ready(0)
    g.ld_issue(3)
    g.ld_ready(1)
    g.ld_issue(4)
    g.ld_ready(2)
    g.ld_ready(3)

    def poll():
        a("s_mov_b64 exec, 1")
        a(f"buffer_load_dword v{t[0]}, v{v_pa}, {sr(SRDC,4)}, s{S_KVC} offen sc1")
        a("s_mov_b64 exec, -1")
        g.ops.append(("p", 0))

    def check(lab):
        last = max(i for i, o in enumerate(g.ops) if o == ("p", 0))
        a(f"s_waitcnt vmcnt({len(g.ops) - 1 - last})")
        a(f"v_readfirstlane_b32 s{S_T2}, v{t[0]}")
        a("s_nop 3")
        a(f"s_cmp_eq_u32 s{S_T2}, 0")
        a(f"s_cbranch_scc1 {lab}")

    def kv():
        a(f"buffer_load_dwordx2 {vr(v_p,2)}, v{v_pa}, {sr(SRD4,4)}, 0 offen")
        dma(13, SRD2, True)
        g.ops.extend([("d", 0)] * 14)

    lb, lb2, lb3, lj, lsp, lsd, lsc = [a.newlabel("p1") for _ in range(7)]
    poll()
    g.ld_ready(4)
    check(lb3)
    kv()
    a("s_barrier")
    a(f"s_branch {lj}")
    a.label(lb3)
    poll()
    a("s_barrier")
    a(f"s_mov_b32 s{S_T1}, 0x20000")
    a(f"s_branch {lsc}")
    a.label(lsp)
    a(f"s_sub_u32 s{S_T1}, s{S_T1}, 1")
    a(f"s_cmp_eq_u32 s{S_T1}, 0")
    a(f"s_cbranch_scc1 {lsd}")
    poll()
    a.label(lsc)
    check(lsp)
    a.label(lsd)
    kv()
    a.label(lj)
    g.lstamp(13)
    a("s_barrier")
    a("s_waitcnt vmcnt(13)")
    a(f"v_max_f32 v{v_p}, v{v_p}, v{v_p+1}")
    dpp_rowmax(a, v_p)
    a("s_nop 1")
    a(f"v_max_f32_dpp v{v_p}, v{v_p}, v{v_p} row_bcast:15 row_mask:0xa bank_mask:0xf")
    a("s_nop 1")
    a(f"v_max_f32_dpp v{v_p}, v{v_p}, v{v_p} row_bcast:31 row_mask:0xc bank_mask:0xf")
    a(f"v_mov_b32 v{t[0]}, {KMX}")
    a("s_mov_b32 exec_lo, 0")
    a("s_brev_b32 exec_hi, 1")
    a(f"ds_write_b32 v{t[0]}, v{v_p}")
    a("s_mov_b64 exec, -1")


def gen_k2(a):
    name = "k2_attn_kernel"
    kernel_begin(a, name)
    a("s_cmp_ge_u32 s2, 256")
    a("s_cbranch_scc1 k2_end")
    load_kernargs(a)
    a(f"s_and_b32 s{S_XB}, s2, 7")
    a(f"s_lshr_b32 s{S_J}, s2, 3")
    a(f"s_lshr_b32 s{S_T2}, s{S_J}, 3")
    a(f"s_lshl_b32 s{S_T1}, s{S_XB}, 2")
    a(f"s_add_u32 s{S_T1}, s{S_T1}, s{S_T2}")
    a(f"s_lshl_b32 s{S_TOK0}, s{S_T1}, 6")
    a(f"s_and_b32 s{S_T0}, s{S_J}, 7")
    a(f"s_mul_i32 s{S_COL}, s{S_T0}, 160")
    va = VAlloc(1)
    t = [va() for _ in range(6)]
    v_kn = va(2, 2)
    v_l16, v_lane, v_n, v_h, v_qa, v_oa = [va() for _ in range(6)]
    v_cur = [va() for _ in range(3)]
    v_nxt = [va() for _ in range(3)]
    v_m = [va(), va()]
    v_ob = va()
    v_cst = va()
    O = [va(16, 4) for _ in range(2)]
    VF = [va(8, 4) for _ in range(2)]
    v_late = va.n
    Q = [va(8, 4) for _ in range(2)]
    Sb = [[va(16, 4) for _ in range(2)] for _ in range(2)]
    P = [va(8, 4) for _ in range(2)]
    KF = [va(8, 4) for _ in range(2)]
    S_STEP, S_CNT, S_GOFF, S_HEAD = 76, 77, 78, 79
    S_VM, S_KM = 4, 6
    TB = 2560

    def kread(dst, regs, tile):
        return [f"ds_read_b128 {vr(dst,4)}, v{regs[0]} offset:{tile*TB}",
                f"ds_read_b64 {vr(dst+4,2)}, v{regs[1]} offset:{tile*TB}"]

    def vread(dst, regs, tile):
        return [f"s_mov_b64 exec, {sr(S_VM,2)}",
                f"ds_read_b128 {vr(dst,4)}, v{regs[2]} offset:{tile*TB}",
                f"ds_read_b128 {vr(dst+4,4)}, v{regs[2]} offset:{tile*TB+640}",
                "s_mov_b64 exec, -1"]

    a(f"v_lshrrev_b32 v{t[0]}, 6, v0")
    a(f"v_and_b32 v{v_lane}, 63, v0")
    a(f"v_readfirstlane_b32 s{S_WAVE}, v{t[0]}")
    a(f"v_lshlrev_b32 v{v_l16}, 4, v{v_lane}")
    a(f"v_and_b32 v{v_n}, 31, v0")
    a(f"v_bfe_u32 v{v_h}, v0, 5, 1")
    a("s_waitcnt lgkmcnt(0)")
    a(f"s_cmp_lt_u32 s{S_WAVE}, 4")
    a("s_cbranch_scc1 k2_comp")
    p1_mini(a)
    make_srd(a, SRDC, P_WS, WS_CNT, 32768)
    a("s_branch k2_helper")
    a.label("k2_comp")
    if CPF:
        code_touch(a, t[0], TDUM, 0)
    make_srd(a, SRDC, P_WS, WS_CNT, 32768)
    make_srd(a, SRD1, P_WS, WS_KV, KV_SZ)
    def init():
        a(f"s_mul_i32 s{S_T1}, s{S_WAVE}, 40")
        a(f"s_add_u32 s{S_T2}, s{S_T1}, {QST}")
        a(f"v_mul_u32_u24 v{t[1]}, 160, v{v_n}")
        a(f"v_add_u32 v{v_ob}, s{S_T2}, v{t[1]}")
        a(f"v_lshl_add_u32 v{v_qa}, v{v_h}, 4, v{v_ob}")
        a(f"v_lshl_add_u32 v{t[2]}, v{v_h}, 3, s{S_T1}")
        a(f"v_lshrrev_b32 v{t[3]}, 4, v{t[2]}")
        a(f"v_and_b32 v{t[2]}, 8, v{t[2]}")
        a(f"v_lshl_add_u32 v{t[2]}, v{t[3]}, 8, v{t[2]}")
        a(f"v_and_b32 v{t[3]}, 15, v{v_n}")
        a(f"v_lshl_add_u32 v{t[2]}, v{t[3]}, 4, v{t[2]}")
        a(f"v_lshrrev_b32 v{t[3]}, 4, v{v_n}")
        a(f"v_mul_u32_u24 v{t[3]}, 2560, v{t[3]}")
        a(f"v_add_u32 v{v_oa}, v{t[2]}, v{t[3]}")
        for b in range(2):
            for i in range(16):
                a(f"v_mov_b32 v{O[b]+i}, 0")
            for i in range(8):
                a(f"v_mov_b32 v{VF[b]+i}, 0x3f803f80")
        a(f"s_mov_b32 s{S_VM}, 0x000fffff")
        a(f"s_mov_b32 s{S_VM+1}, 0x000fffff")
        a(f"v_mov_b32 v{v_cur[0]}, v{v_l16}")
        a(f"v_lshlrev_b32 v{v_cur[1]}, 3, v{v_n}")
        a(f"v_add_u32 v{v_cur[1]}, 1024, v{v_cur[1]}")
        a(f"v_mul_u32_u24 v{t[0]}, 320, v{v_h}")
        a(f"v_lshl_add_u32 v{v_cur[2]}, v{v_n}, 4, v{t[0]}")
        a(f"v_add_u32 v{v_cur[2]}, 1280, v{v_cur[2]}")
        for i in range(3):
            a(f"v_add_u32 v{v_nxt[i]}, {8*TB}, v{v_cur[i]}")
    assert VF[1] + 8 - O[0] == 48
    make_srd(a, SRD4, P_WS, WS_O, S * D * 2)
    make_srd(a, SRD2, P_X, 0, S * D * 2)
    for r in v_nxt + v_cur:
        a(f"v_mov_b32 v{r}, 0")
    gq = p1_compute(a, t, v_late, O[0], init)
    for b in range(2):
        a(f"v_mov_b32 v{KF[b]+6}, 0x3f80")
        a(f"v_mov_b32 v{KF[b]+7}, 0")
        a(f"v_mov_b32 v{Q[b]+7}, 0")
    for i in range(8):
        a(f"v_mov_b32 v{P[1]+i}, 0")
    for i in range(12, 16):
        a(f"v_mov_b32 v{Sb[1][1]+i}, 0")
    a(f"v_cmp_eq_u32 vcc, 0, v{v_h}")
    a(f"v_mov_b32 v{t[0]}, {KMX}")
    a("s_waitcnt lgkmcnt(0)")
    stamp(a, 8, True)
    a("s_barrier")
    stamp(a, 9, True)
    a(f"ds_read_b32 v{v_kn}, v{t[0]}")
    for b in range(2):
        a(f"ds_read_b64 {vr(Q[b],2)}, v{v_qa} offset:{b*5120}")
        a(f"ds_read_b64 {vr(Q[b]+2,2)}, v{v_qa} offset:{b*5120+8}")
        a(f"ds_read_b64 {vr(Q[b]+4,2)}, v{v_ob} offset:{b*5120+32}")
    for l in kread(KF[0], v_cur, 0) + kread(KF[1], v_cur, 1) + vread(VF[0], v_cur, 0):
        a(l)
    a("s_waitcnt lgkmcnt(6)")
    a(f"v_readfirstlane_b32 s{S_KM}, v{v_kn}")
    for b in range(2):
        a(f"v_cndmask_b32 v{Q[b]+4}, 0, v{Q[b]+4}, vcc")
        a(f"v_cndmask_b32 v{Q[b]+5}, 0, v{Q[b]+5}, vcc")
    for i in range(6):
        for b in range(2):
            a(f"v_dot2_f32_bf16 v{t[2+b]}, v{Q[b]+i}, v{Q[b]+i}, " + ("0" if i == 0 else f"v{t[2+b]}"))
    a("s_nop 2")
    for b in range(2):
        a(f"v_mov_b32 v{t[b]}, v{t[2+b]}")
    a("s_nop 1")
    for b in range(2):
        a(f"v_permlane32_swap_b32 v{t[b]}, v{t[2+b]}")
    a("s_nop 1")
    for b in range(2):
        a(f"v_add_f32 v{t[b]}, v{t[b]}, v{t[2+b]}")
    for b in range(2):
        a(f"v_mul_f32 v{t[b]}, s{S_KM}, v{t[b]}")
    for b in range(2):
        a(f"v_sqrt_f32 v{t[b]}, v{t[b]}")
    a("s_nop 0")
    for b in range(2):
        a(f"v_cvt_pk_bf16_f32 v{t[b]}, -v{t[b]}, 0")
    for b in range(2):
        a(f"v_cndmask_b32 v{Q[b]+6}, 0, v{t[b]}, vcc")
    a("s_waitcnt lgkmcnt(0)")

    def qk(b, par, s, kf):
        d = vr(Sb[b][par], 16)
        c = "0" if s == 0 else d
        return f"v_mfma_f32_32x32x16_bf16 {d}, {vr(kf+4*s,4)}, {vr(Q[b]+4*s,4)}, {c}"

    def pv(b, s, vf):
        d = vr(O[b], 16)
        return f"v_mfma_f32_32x32x16_bf16 {d}, {vr(vf+4*s,4)}, {vr(P[b]+4*s,4)}, {d}"

    for b in range(2):
        a(qk(b, 0, 0, KF[0]))
        a(qk(b, 0, 1, KF[0]))
    a("s_nop 7")
    a("s_nop 7")
    a(f"s_mov_b32 s{S_CNT}, 8")
    stamp(a, 2)
    rstamp(a, 10)
    a.label("k2_loop")

    def exps(b, par, i0):
        return [f"v_exp_f32 v{Sb[b][par]+i}, v{Sb[b][par]+i}" for i in range(i0, i0 + 4)]

    def cvts(b, par, i0):
        return [f"v_cvt_pk_bf16_f32 v{P[b]+(i0+i)//2}, v{Sb[b][par]+i0+i}, v{Sb[b][par]+i0+i+1}" for i in (0, 2)]

    for ph in range(8):
        p = ph & 1
        q = p ^ 1
        kt, vt = ph + 2, ph + 1
        kr = kread(KF[p], v_cur if kt < 8 else v_nxt, kt % 8)
        vrd = vread(VF[q], v_cur if vt < 8 else v_nxt, vt % 8)
        M = [qk(0, q, 0, KF[q]), pv(1, 1, VF[q]), qk(0, q, 1, KF[q]), pv(0, 0, VF[p]),
             qk(1, q, 0, KF[q]), pv(0, 1, VF[p]), qk(1, q, 1, KF[q]), pv(1, 0, VF[p])]
        V = [cvts(1, q, 12) + exps(0, p, 0),
             exps(0, p, 4),
             cvts(0, p, 0) + cvts(0, p, 4) + exps(0, p, 8),
             cvts(0, p, 8) + exps(0, p, 12),
             cvts(0, p, 12) + exps(1, p, 0),
             exps(1, p, 4),
             cvts(1, p, 0) + cvts(1, p, 4) + exps(1, p, 8),
             cvts(1, p, 8) + exps(1, p, 12)]
        extra = [[] for _ in range(8)]
        if ph == 2:
            a(f"s_bitcmp1_b32 0x140, s{S_CNT}")
            a("s_cbranch_scc1 k2_sy")
            a.label("k2_nb1")
        a("s_waitcnt lgkmcnt(0)")
        extra[0] += kr
        extra[2] += vrd
        for i in range(8):
            a(M[i])
            for l in extra[i]:
                a(l)
            for l in V[i]:
                a(l)
    if INSTR:
        a("s_memtime s[98:99]")
        a("s_waitcnt lgkmcnt(0)")
        a("s_sub_u32 s98, s98, s80")
        a(f"s_mov_b32 m0, s{S_CNT}")
        a("s_nop 0")
        a(f"v_writelane_b32 v{v_cst}, s98, m0")
    a(f"s_cmp_eq_u32 s{S_CNT}, 2")
    a(f"s_cselect_b32 s{S_STEP}, 0, {8*TB}")
    for i in range(3):
        a(f"v_mov_b32 v{v_cur[i]}, v{v_nxt[i]}")
        a(f"v_add_u32 v{v_nxt[i]}, s{S_STEP}, v{v_nxt[i]}")
    a("s_cbranch_scc0 k2_nb")
    a("s_mov_b64 exec, 1")
    a(f"ds_add_u32 v{v_l16}, v{KF[0]+6}")
    a("s_mov_b64 exec, -1")
    a.label("k2_nb")
    a(f"s_sub_u32 s{S_CNT}, s{S_CNT}, 1")
    a(f"s_cmp_lg_u32 s{S_CNT}, 0")
    a("s_cbranch_scc1 k2_loop")
    for l in cvts(1, 1, 12):
        a(l)
    a("s_nop 1")
    a(pv(1, 1, VF[1]))
    a("s_waitcnt vmcnt(0) lgkmcnt(0)")
    a("s_nop 7")
    a("s_nop 7")
    stamp(a, 3)
    rstamp(a, 0)
    a(f"v_mov_b32 v{t[0]}, {f32(2.0**-40)}")
    a(f"v_cmp_nge_f32 s[74:75], v{O[0]+12}, v{t[0]}")
    a(f"v_cmp_nge_f32 vcc, v{O[1]+12}, v{t[0]}")
    a("s_nop 3")
    a("s_or_b64 vcc, vcc, s[74:75]")
    a("s_cbranch_vccnz k2_slow")
    a.label("k2_epi")
    for b in range(2):
        a(f"v_rcp_f32 v{t[0]}, v{O[b]+12}")
        a("s_nop 0")
        for i in range(12):
            a(f"v_mul_f32 v{O[b]+i}, v{O[b]+i}, v{t[0]}")
        for i in range(6):
            a(f"v_cvt_pk_bf16_f32 v{O[b]+i}, v{O[b]+2*i}, v{O[b]+2*i+1}")
    a(f"v_mov_b32 v{t[0]}, {TAB + 3072}")
    for i in range(4):
        a(f"v_mov_b32 v{P[0]+i}, 0")
    a(f"s_mul_i32 s{S_T1}, s{S_WAVE}, 2560")
    a(f"v_add_u32 v{t[1]}, s{S_T1}, v{v_l16}")
    a(f"s_lshr_b32 s{S_KW}, s{S_TOK0}, 4")
    a(f"s_add_u32 s{S_KW}, s{S_KW}, s{S_WAVE}")
    a(f"s_mul_i32 s{S_KW}, s{S_KW}, {16*D*2}")
    a(f"s_lshl_b32 s{S_T1}, s{S_COL}, 4")
    a(f"s_add_u32 s{S_KW}, s{S_KW}, s{S_T1}")
    a("s_barrier")
    a(f"ds_write_b128 v{t[0]}, {vr(P[0],4)}")
    for b in range(2):
        a(f"ds_write_b64 v{v_oa}, {vr(O[b],2)} offset:{b*5120}")
        a(f"ds_write_b64 v{v_oa}, {vr(O[b]+2,2)} offset:{b*5120+256}")
    a("s_mov_b64 exec, 0xffffffff")
    for b in range(2):
        a(f"ds_write_b64 v{v_oa}, {vr(O[b]+4,2)} offset:{b*5120+512}")
    a("s_mov_b64 exec, -1")
    a("s_waitcnt lgkmcnt(0)")
    a("s_barrier")
    for i in range(3):
        a(f"ds_read_b128 {vr(O[0]+4*i,4)}, v{t[1]} offset:{i*1024}")
    for i in range(3):
        a(f"s_waitcnt lgkmcnt({2-i})")
        if i == 2:
            a("s_mov_b64 exec, 0xffffffff")
        a(f"buffer_store_dwordx4 {vr(O[0]+4*i,4)}, v{v_l16}, {sr(SRD4,4)}, s{S_KW} offen offset:{i*1024} {HPOL}")
    def otouch():
        a(f"v_lshlrev_b32 v{t[3]}, 3, v{v_l16}")
        a("s_mov_b64 exec, 0xfffff")
        a(f"buffer_load_dword v{TDUM}, v{t[3]}, {sr(SRD4,4)}, s{S_KW} offen")
    publish(a, t, 2, otouch)
    if INSTR and not P1ST:
        lab = a.newlabel("hs")
        a(f"s_cmp_lg_u32 s2, {INSTR_WG}")
        a(f"s_cbranch_scc1 {lab}")
        a(f"s_cmp_lg_u32 s{S_WAVE}, 0")
        a(f"s_cbranch_scc1 {lab}")
        make_srd(a, 92, P_DBG, 0, 256)
        a(f"v_lshlrev_b32 v{t[0]}, 2, v{v_lane}")
        a(f"buffer_store_dword v{v_cst}, v{t[0]}, s[92:95], 0 offen offset:192")
        a.label(lab)
    ffn = ffn_compute(a)
    a.label("k2_end")
    a("s_endpgm")

    a.label("k2_sy")
    a(f"s_cmp_eq_u32 s{S_CNT}, 6")
    a("s_cbranch_scc1 k2_sy2")
    a("s_barrier")
    a("s_branch k2_nb1")
    a.label("k2_sy2")
    assert t[1] % 2 == 0
    kv_wait(a, v_l16, t[1], 0)
    for fb in range(5):
        a(f"buffer_load_dwordx2 {vr(RES3+2*fb,2)}, v{V_RAD}, {sr(SRD2,4)}, 0 offen offset:{fb*32}")
    a("s_branch k2_nb1")

    def rewind():
        for i in range(3):
            a(f"v_subrev_u32 v{v_nxt[i]}, {56*TB}, v{v_cur[i]}")
        a(f"s_mov_b32 s{S_GOFF}, 0")

    def advance(lab):
        a(f"s_add_u32 s{S_GOFF}, s{S_GOFF}, {TB}")
        a(f"s_cmp_lt_u32 s{S_GOFF}, {64*TB}")
        a(f"s_cbranch_scc1 {lab}")

    def gkread(dst):
        return [f"buffer_load_dwordx4 {vr(dst,4)}, v{v_nxt[0]}, {sr(SRD1,4)}, s{S_GOFF} offen",
                f"buffer_load_dwordx2 {vr(dst+4,2)}, v{v_nxt[1]}, {sr(SRD1,4)}, s{S_GOFF} offen"]

    def gvread(dst):
        return [f"s_mov_b64 exec, {sr(S_VM,2)}",
                f"buffer_load_dwordx4 {vr(dst,4)}, v{v_nxt[2]}, {sr(SRD1,4)}, s{S_GOFF} offen",
                f"buffer_load_dwordx4 {vr(dst+4,4)}, v{v_nxt[2]}, {sr(SRD1,4)}, s{S_GOFF} offen offset:640",
                "s_mov_b64 exec, -1"]

    a.label("k2_slow")
    for b in range(2):
        a(f"v_mov_b32 v{Q[b]+6}, 0")
        a(f"v_mov_b32 v{v_m[b]}, 0xff800000")
    rewind()
    a.label("k2_slow1")
    for l in gkread(KF[0]):
        a(l)
    a("s_waitcnt vmcnt(0)")
    for b in range(2):
        a(qk(b, 0, 0, KF[0]))
        a(qk(b, 0, 1, KF[0]))
    a("s_nop 7")
    a("s_nop 7")
    for b in range(2):
        for i in range(0, 16, 2):
            a(f"v_max3_f32 v{v_m[b]}, v{Sb[b][0]+i}, v{Sb[b][0]+i+1}, v{v_m[b]}")
    advance("k2_slow1")
    a(f"v_cmp_eq_u32 vcc, 0, v{v_h}")
    for b in range(2):
        xlane_add(a, v_m[b], v_lane, t[0], t[1], (32,), op="v_max_f32")
        a(f"v_cvt_pk_bf16_f32 v{t[2]}, -v{v_m[b]}, 0")
        a(f"v_cndmask_b32 v{Q[b]+6}, 0, v{t[2]}, vcc")
        for i in range(16):
            a(f"v_mov_b32 v{O[b]+i}, 0")
    rewind()
    a.label("k2_slow2")
    for l in gkread(KF[0]) + gvread(VF[0]):
        a(l)
    a("s_waitcnt vmcnt(0)")
    for b in range(2):
        a(qk(b, 0, 0, KF[0]))
        a(qk(b, 0, 1, KF[0]))
    a("s_nop 7")
    a("s_nop 7")
    for b in range(2):
        for i0 in range(0, 16, 4):
            for l in exps(b, 0, i0):
                a(l)
        a("s_nop 0")
        for i0 in range(0, 16, 4):
            for l in cvts(b, 0, i0):
                a(l)
    a("s_nop 1")
    for b in range(2):
        a(pv(b, 0, VF[0]))
        a(pv(b, 1, VF[0]))
    a("s_nop 7")
    a("s_nop 7")
    advance("k2_slow2")
    a("s_branch k2_epi")

    a.label("k2_helper")
    hva = VAlloc(v_h + 1)
    lt = t
    v_l = v_lane
    S_U, S_SRC, S_DST, S_RW = S_T0, S_T1, S_KW, S_ROT
    S_G = S_IMG
    cnt = [0]

    def dma(n, srd, first=False):
        if first:
            cnt[0] = 0
            a(f"s_mov_b32 s{S_KX}, s{S_WOFF}")
            a(f"s_and_b32 s{S_G}, s{S_J}, {KVROT}")
            a(f"s_mul_i32 s{S_G}, s{S_G}, 20480")
            a(f"s_add_u32 s{S_G}, s{S_G}, s{S_WOFF}")
        for i in range(n):
            a(f"s_mov_b32 m0, s{S_KX}")
            a(f"s_add_u32 s{S_KX}, s{S_KX}, 4096")
            a(f"buffer_load_dwordx4 v{v_l16}, {sr(srd,4)}, s{S_G} offen lds")
            a(f"s_add_u32 s{S_G}, s{S_G}, 4096")
            cnt[0] += 1
            if cnt[0] % 5 == 0:
                a(f"s_cmp_ge_u32 s{S_G}, {KV_SZ}")
                a(f"s_cselect_b32 s{S_T2}, {KV_SZ}, 0")
                a(f"s_sub_u32 s{S_G}, s{S_G}, s{S_T2}")
    pva = VAlloc(132)
    sel = pva(4, 4)
    pa = [pva() for _ in range(5)]
    pb = [pva() for _ in range(3)]
    v_rb, v_kf, v_km, v_ca, v_co = [pva() for _ in range(5)]

    def gather(regs, cprw, magic, stride):
        for i, r in enumerate(regs):
            a(f"v_add_u32 v{lt[0]}, {i*64}, v{v_l}")
            a(f"v_mul_u32_u24 v{lt[1]}, {magic}, v{lt[0]}")
            a(f"v_lshrrev_b32 v{lt[1]}, 19, v{lt[1]}")
            a(f"v_mul_u32_u24 v{lt[2]}, {cprw}, v{lt[1]}")
            a(f"v_sub_u32 v{lt[2]}, v{lt[0]}, v{lt[2]}")
            a(f"v_and_b32 v{lt[3]}, 0xfffffff3, v{lt[1]}")
            a(f"v_bfe_u32 v{lt[4]}, v{lt[1]}, 2, 1")
            if cprw == 12:
                a(f"v_lshlrev_b32 v{lt[5]}, 1, v{lt[4]}")
                a(f"v_xor_b32 v{lt[2]}, v{lt[2]}, v{lt[5]}")
            a(f"v_lshl_or_b32 v{lt[3]}, v{lt[4]}, 3, v{lt[3]}")
            a(f"v_bfe_u32 v{lt[4]}, v{lt[1]}, 3, 1")
            a(f"v_lshl_or_b32 v{lt[3]}, v{lt[4]}, 2, v{lt[3]}")
            a(f"v_mul_u32_u24 v{lt[3]}, {stride}, v{lt[3]}")
            a(f"v_lshl_add_u32 v{r}, v{lt[2]}, 4, v{lt[3]}")

    def early():
        gather(pb, 12, 43691, F * 2)
        gather(pa, 10, 52429, D * 2)
        a(f"v_lshlrev_b32 v{v_rb}, 7, v{v_l}")
        a(f"s_lshl_b32 s{S_T2}, s{S_WAVE}, 2")
        a(f"v_mov_b32 v{v_kf}, s{S_T2}")
        a(f"v_mov_b32 v{v_km}, -1")
        a(f"v_lshrrev_b32 v{lt[0]}, 3, v{v_l}")
        a(f"v_mul_u32_u24 v{lt[0]}, {F*2}, v{lt[0]}")
        a(f"v_and_b32 v{lt[1]}, 7, v{v_l}")
        a(f"v_lshl_add_u32 v{v_ca}, v{lt[1]}, 4, v{lt[0]}")
        a(f"v_and_b32 v{lt[0]}, 16, v{v_l}")
        a(f"v_lshl_add_u32 v{v_co}, v{lt[1]}, 5, v{lt[0]}")
        a(f"v_and_b32 v{lt[0]}, 1, v{v_l}")
        a(f"v_lshlrev_b32 v{lt[0]}, 4, v{lt[0]}")
        a(f"v_mov_b32 v{lt[1]}, 0x3f80")
        a(f"v_lshlrev_b32 v{lt[0]}, v{lt[0]}, v{lt[1]}")
        a(f"v_bfe_u32 v{lt[1]}, v{v_l}, 1, 3")
        for i in range(4):
            a(f"v_cmp_eq_u32 vcc, {i}, v{lt[1]}")
            a(f"v_cndmask_b32 v{sel+i}, 0, v{lt[0]}, vcc")
    p1_loader(a, gq, v_l, dma, early)
    a(f"s_and_b32 s{S_WOFF}, s{S_WAVE}, 3")
    a(f"s_lshl_b32 s{S_RW}, s2, 2")
    a(f"s_add_u32 s{S_RW}, s{S_RW}, s{S_WOFF}")
    a(f"s_lshl_b32 s{S_T2}, s{S_J}, 2")
    a(f"s_add_u32 s{S_J}, s{S_T2}, s{S_WOFF}")
    make_srd(a, SRD3, P_WS, WS_IMG, IMG_SZ)
    a("s_waitcnt vmcnt(10) lgkmcnt(0)")
    a("s_barrier")
    a("s_waitcnt vmcnt(0)")
    a("s_barrier")
    gq.lstamp(14)
    if PRET & 1:
        lab = a.newlabel("pt")
        a(f"s_cmp_lg_u32 s{S_WOFF}, 0")
        a(f"s_cbranch_scc1 {lab}")
        if PRET & 4:
            a("s_cmp_ge_u32 s2, 24")
            a(f"s_cbranch_scc1 {lab}")
        cnt_touch(a)
        a.label(lab)
    dma(27, SRD2)
    gq.lstamp(15)
    lab = a.newlabel("fc")
    a(f"s_cmp_lg_u32 s{S_RW}, 0")
    a(f"s_cbranch_scc1 {lab}")
    make_srd(a, SRD5, P_DBG, 0, 256)
    a("s_mov_b64 exec, 1")
    a(f"v_mov_b32 v{lt[0]}, 0")
    a(f"buffer_store_dword v{lt[0]}, v{lt[0]}, {sr(SRD5,4)}, 0 offen offset:{FLAG} sc1")
    a("s_mov_b64 exec, -1")
    a.label(lab)
    lab = a.newlabel("zw")
    a(f"s_cmp_lg_u32 s{S_WAVE}, 4")
    a(f"s_cbranch_scc1 {lab}")
    a(f"v_mov_b32 v{lt[0]}, 0")
    a(f"ds_write2_b32 v{lt[0]}, v{lt[0]}, v{lt[0]} offset0:0 offset1:1")
    a.label(lab)

    def kvdone(n):
        a(f"s_waitcnt vmcnt({n})")
        a(f"ds_write_b32 v{v_kf}, v{v_km}")
        gq.lstamp(16)
        if INSTR:
            a("s_waitcnt vmcnt(0)")
            gq.lstamp(17)
    dummy = hva()

    def touch():
        for c in range(3):
            if c == 0:
                a(f"s_mul_i32 s{S_T1}, s{S_J}, {50*128}")
            else:
                a(f"s_mul_i32 s{S_T1}, s{S_J}, {120*128}")
                a(f"s_and_b32 s{S_T0}, s{S_XB}, 1")
                a(f"s_mul_i32 s{S_T0}, s{S_T0}, {1966080}")
                a(f"s_add_u32 s{S_T1}, s{S_T1}, s{S_T0}")
                a(f"s_add_u32 s{S_T1}, s{S_T1}, {IMG_GU + (c-1)*56*128}")
            a(f"buffer_load_dword v{dummy}, v{v_rb}, {sr(SRD3,4)}, s{S_T1} offen")
            if c < 2:
                a(f"s_sleep {TSLEEP2}")

    bufB = [hva(12, 4) for _ in range(2)]
    bufA = hva(20, 4)

    def loadsB(buf):
        a(f"s_mul_i32 s{S_SRC}, s{S_U}, 52429")
        a(f"s_lshr_b32 s{S_SRC}, s{S_SRC}, 22")
        a(f"s_mul_i32 s{S_DST}, s{S_SRC}, 80")
        a(f"s_sub_u32 s{S_T2}, s{S_U}, s{S_DST}")
        a(f"s_mul_i32 s{S_SRC}, s{S_SRC}, 192")
        a(f"s_lshr_b32 s{S_DST}, s{S_T2}, 3")
        a(f"s_lshl_b32 s{S_DST}, s{S_DST}, 2")
        a(f"s_and_b32 s{S_KX}, s{S_T2}, 3")
        a(f"s_add_u32 s{S_DST}, s{S_DST}, s{S_KX}")
        a(f"s_mul_i32 s{S_DST}, s{S_DST}, {16*F*2}")
        a(f"s_add_u32 s{S_SRC}, s{S_SRC}, s{S_DST}")
        a(f"s_bitcmp1_b32 s{S_T2}, 2")
        a(f"s_cselect_b32 s{SRD0}, s{P_WU}, s{P_WG}")
        a(f"s_cselect_b32 s{SRD0+1}, s{P_WU+1}, s{P_WG+1}")
        a(f"s_mov_b32 s{SRD0+2}, {F*D*2}")
        for i in range(3):
            a(f"buffer_load_dwordx4 {vr(buf+4*i,4)}, v{pb[i]}, {sr(SRD0,4)}, s{S_SRC} offen")

    def storesB(buf):
        a(f"s_mul_i32 s{S_DST}, s{S_U}, 3072")
        a(f"s_add_u32 s{S_DST}, s{S_DST}, {IMG_GU}")
        for i in range(3):
            a(f"buffer_store_dwordx4 {vr(buf+4*i,4)}, v{v_l16}, {sr(SRD3,4)}, s{S_DST} offen offset:{i*1024} {IMGPOL}")

    a(f"s_mov_b32 s{S_U}, s{S_RW}")
    loadsB(bufB[0])
    a(f"s_cmp_lt_u32 s{S_RW}, 544")
    a("s_cbranch_scc1 k2_rpa")
    a(f"s_add_u32 s{S_U}, s{S_RW}, {1024 - 544}")
    a(f"s_cmp_ge_u32 s{S_U}, 1280")
    a("s_cbranch_scc1 k2_rpe")
    loadsB(bufB[1])
    kvdone(6)
    a("s_waitcnt vmcnt(0)")
    storesB(bufB[1])
    a("s_branch k2_rpf")
    a.label("k2_rpa")
    l1, l2 = a.newlabel("ra"), a.newlabel("ra")
    a(f"s_cmp_ge_u32 s{S_RW}, 160")
    a(f"s_cbranch_scc1 {l1}")
    a(f"s_mul_i32 s{S_SRC}, s{S_RW}, 3277")
    a(f"s_lshr_b32 s{S_SRC}, s{S_SRC}, 16")
    a(f"s_mul_i32 s{S_DST}, s{S_SRC}, 20")
    a(f"s_sub_u32 s{S_DST}, s{S_RW}, s{S_DST}")
    a(f"s_mov_b32 s{SRD0}, s{P_WO}")
    a(f"s_mov_b32 s{SRD0+1}, s{P_WO+1}")
    a(f"s_mov_b32 s{SRD0+2}, {D*D*2}")
    a(f"s_branch {l2}")
    a.label(l1)
    a(f"s_sub_u32 s{S_U}, s{S_RW}, 160")
    a(f"s_mul_i32 s{S_SRC}, s{S_U}, 1366")
    a(f"s_lshr_b32 s{S_SRC}, s{S_SRC}, 16")
    a(f"s_mul_i32 s{S_DST}, s{S_SRC}, 48")
    a(f"s_sub_u32 s{S_DST}, s{S_U}, s{S_DST}")
    a(f"s_mov_b32 s{SRD0}, s{P_WD}")
    a(f"s_mov_b32 s{SRD0+1}, s{P_WD+1}")
    a(f"s_mov_b32 s{SRD0+2}, {F*D*2}")
    a.label(l2)
    a(f"s_mul_i32 s{S_SRC}, s{S_SRC}, 160")
    a(f"s_mul_i32 s{S_DST}, s{S_DST}, {32*D*2}")
    a(f"s_add_u32 s{S_SRC}, s{S_SRC}, s{S_DST}")
    for i in range(5):
        a(f"buffer_load_dwordx4 {vr(bufA+4*i,4)}, v{pa[i]}, {sr(SRD0,4)}, s{S_SRC} offen")
    a(f"s_mul_i32 s{S_DST}, s{S_RW}, 5120")
    kvdone(8)
    a("s_waitcnt vmcnt(0)")
    for i in range(5):
        if i == 4:
            a(f"s_add_u32 s{S_DST}, s{S_DST}, 4096")
        a(f"buffer_store_dwordx4 {vr(bufA+4*i,4)}, v{v_l16}, {sr(SRD3,4)}, s{S_DST} offen offset:{(i%4)*1024} {IMGPOL}")
    a("s_branch k2_rpf")
    a.label("k2_rpe")
    kvdone(3)
    a("s_waitcnt vmcnt(0)")
    a.label("k2_rpf")
    a(f"s_mov_b32 s{S_U}, s{S_RW}")
    storesB(bufB[0])
    if INSTR:
        a("s_waitcnt vmcnt(0)")
        a("s_memrealtime s[100:101]")
        a("s_waitcnt lgkmcnt(0)")
        lab = a.newlabel("hw")
        a(f"s_cmp_lg_u32 s{S_WAVE}, 4")
        a(f"s_cbranch_scc1 {lab}")
        make_srd(a, 40, P_WS, WS_TL + 4096 + 2048, 2048)
        a("v_mov_b32 v2, s82")
        a("v_mov_b32 v3, s100")
        a("s_lshl_b32 s98, s2, 3")
        a("v_mov_b32 v1, s98")
        a("buffer_store_dwordx2 v[2:3], v1, s[40:43], 0 offen")
        a.label(lab)
    def arrive2(s_sh, n, root, out):
        a(f"v_mov_b32 v{lt[2]}, 1")
        a("s_waitcnt vmcnt(0)")
        a(f"buffer_atomic_add v{lt[2]}, v{lt[0]}, {sr(SRDC,4)}, s{s_sh} offen sc0 sc1")
        a("s_waitcnt vmcnt(0)")
        a(f"v_readfirstlane_b32 s{S_T2}, v{lt[2]}")
        a(f"v_mov_b32 v{lt[2]}, 1")
        a(f"s_mov_b32 s{s_sh}, {root}")
        a("s_nop 2")
        a(f"s_cmp_lg_u32 s{S_T2}, {n-1}")
        a(f"s_cbranch_scc1 {out}")
        a(f"buffer_atomic_add v{lt[2]}, v{lt[0]}, {sr(SRDC,4)}, s{s_sh} offen sc0 sc1")
        a("s_waitcnt vmcnt(0)")
        a(f"v_readfirstlane_b32 s{S_T2}, v{lt[2]}")
        a("s_nop 3")
        a(f"s_cmp_lg_u32 s{S_T2}, 15")
        a(f"s_cbranch_scc1 {out}")
        a("s_mov_b64 exec, 0xff")
        a(f"v_lshlrev_b32 v{lt[3]}, 8, v{v_l}")
        a(f"v_mov_b32 v{lt[2]}, 1")
        a(f"buffer_store_dword v{lt[2]}, v{lt[3]}, {sr(SRDC,4)}, s{s_sh} offen offset:2048 sc1")

    def gpoll(off, add):
        l0, l1, l2 = [a.newlabel("gp") for _ in range(3)]
        a("s_mov_b64 exec, 1")
        a(f"v_mov_b32 v{lt[0]}, 0")
        a(f"s_cmp_lg_u32 s{S_HOOK}, 3")
        a(f"s_cbranch_scc1 {l2}")
        a(f"s_lshl_b32 s{S_T0}, s{S_XB}, 8")
        a(f"s_add_u32 s{S_T0}, s{S_T0}, {off}")
        a(f"s_mov_b32 s{S_KX}, 0x8000")
        a.label(l0)
        a(f"buffer_load_dword v{lt[2]}, v{lt[0]}, {sr(SRDC,4)}, s{S_T0} offen sc1")
        a(f"s_sub_u32 s{S_KX}, s{S_KX}, 1")
        a("s_waitcnt vmcnt(0)")
        a(f"v_readfirstlane_b32 s{S_T2}, v{lt[2]}")
        a(f"s_cmp_eq_u32 s{S_KX}, 0")
        a(f"s_cbranch_scc1 {l1}")
        a("s_nop 1")
        a(f"s_cmp_lg_u32 s{S_T2}, 0")
        a(f"s_cbranch_scc1 {l1}")
        a(f"s_sleep {TSLEEP[0]}")
        a(f"s_branch {l0}")
        a.label(l1)
        a(f"v_mov_b32 v{lt[1]}, {add}")
        a(f"ds_add_u32 v{lt[0]}, v{lt[1]}")
        a.label(l2)

    kq = hva(4, 4)
    a("s_mov_b64 exec, 1")
    a(f"v_mov_b32 v{lt[0]}, 0")
    a(f"v_mov_b32 v{lt[1]}, 1")
    a(f"s_and_b32 s{S_T1}, s2, 15")
    a(f"s_lshl_b32 s{S_T1}, s{S_T1}, 8")
    a(f"s_add_u32 s{S_T1}, s{S_T1}, {112*256}")
    gq.lstamp(18)
    kv_wait(a, lt[0], kq, 1)
    a("s_waitcnt vmcnt(0)")
    gq.lstamp(19)
    a(f"ds_add_rtn_u32 v{lt[2]}, v{lt[0]}, v{lt[1]} offset:4")
    a("s_waitcnt lgkmcnt(0)")
    a(f"v_readfirstlane_b32 s{S_HOOK}, v{lt[2]}")
    a("s_nop 3")
    a(f"s_cmp_lg_u32 s{S_HOOK}, 3")
    a("s_cbranch_scc1 k2_lw")
    arrive2(S_T1, 16, CNT_IMG*256, "k2_lw")
    a.label("k2_lw")
    a("s_mov_b64 exec, -1")
    csb = hva(40, 4)
    cacc = hva(4, 4)
    assert hva.n <= 132
    a(f"s_cmp_lt_u32 s{S_RW}, {1024 - 48*NCS}")
    a("s_cbranch_scc1 k2_ncs")
    a(f"s_sub_u32 s{S_T2}, s{S_RW}, {1024 - 48*NCS}")
    a(f"s_mul_i32 s{S_U}, s{S_T2}, 1366")
    a(f"s_lshr_b32 s{S_U}, s{S_U}, 16")
    a(f"s_mul_i32 s{S_SRC}, s{S_U}, 48")
    a(f"s_sub_u32 s{S_SRC}, s{S_T2}, s{S_SRC}")
    a(f"s_cmp_lt_u32 s{S_SRC}, 24")
    a(f"s_cselect_b32 s{SRD0}, s{P_WG}, s{P_WU}")
    a(f"s_cselect_b32 s{SRD0+1}, s{P_WG+1}, s{P_WU+1}")
    a(f"s_mov_b32 s{SRD0+2}, {F*D*2}")
    a(f"s_cselect_b32 s{S_DST}, 0, 24")
    a(f"s_sub_u32 s{S_SRC}, s{S_SRC}, s{S_DST}")
    a(f"s_lshl_b32 s{S_SRC}, s{S_SRC}, 7")
    a(f"s_mul_i32 s{S_U}, s{S_U}, {80*F*2}")
    a(f"s_add_u32 s{S_SRC}, s{S_SRC}, s{S_U}")
    for i in range(10):
        a(f"buffer_load_dwordx4 {vr(csb+4*i,4)}, v{v_ca}, {sr(SRD0,4)}, s{S_SRC} offen")
        a(f"s_add_u32 s{S_SRC}, s{S_SRC}, {8*F*2}")
    make_srd(a, SRD4, P_WS, WS_CS, NCS * 3072 * 4)
    a(f"s_lshl_b32 s{S_T2}, s{S_T2}, 8")
    for i in range(10):
        a(f"s_waitcnt vmcnt({9-i})")
        a(f"v_mfma_f32_16x16x32_bf16 {vr(cacc,4)}, {vr(sel,4)}, {vr(csb+4*i,4)}, " + ("0" if i == 0 else vr(cacc, 4)))
    a("s_nop 7")
    a("s_nop 7")
    for j in range(4):
        a(f"v_add_f32_dpp v{cacc+j}, v{cacc+j}, v{cacc+j} row_ror:8 row_mask:0xf bank_mask:0xf")
    a(f"s_mov_b64 exec, 0x00ff00ff")
    a(f"buffer_store_dwordx4 {vr(cacc,4)}, v{v_co}, {sr(SRD4,4)}, s{S_T2} offen sc1")
    a("s_mov_b64 exec, 1")
    a(f"v_mov_b32 v{lt[0]}, 0")
    a(f"s_and_b32 s{S_T1}, s{S_RW}, 15")
    a(f"s_lshl_b32 s{S_T1}, s{S_T1}, 8")
    a(f"s_add_u32 s{S_T1}, s{S_T1}, {96*256 + 4}")
    arrive2(S_T1, 3*NCS, CNT_KV*256 + 4, "k2_ncs")
    a.label("k2_ncs")
    gpoll((CNT_IMG+8)*256, 1)
    lds_wait(a, lt, 8, "s_bitcmp0_b32 s{}, 0")
    a("s_mov_b64 exec, -1")
    gq.lstamp(20)
    touch()
    gq.lstamp(21)
    if CPF > 1:
        code_touch(a, lt[0], dummy, 0)
    gpoll((CNT_KV+8)*256 + 4, 2)
    a("s_mov_b64 exec, -1")
    ffn.gq = gq
    ffn_loader(a, ffn)

    a.label("k2_code_end")
    kernel_end(a, name, max(va.n, hva.n, ffn.maxv, gq.maxv, V_RAD + 1))
    print('vgprs', va.n, hva.n, ffn.maxv, gq.maxv)
    return (name, 256, 512, KV_SZ)

TSLEEP = [int(x) for x in os.environ.get("TSLEEP", "16").split(",") if x]
TSLEEP2 = int(os.environ.get("TSLEEP2", "16"))
TEARLY = bool(os.environ.get("TEARLY"))


SRDC = 8
TDUM = 243
RES3, V_RAD = 244, 254
XCH = 0
TAB = 156 * 1024
HPOL = os.environ.get("HPOL", "sc1")
XPOL = os.environ.get("XPOL", "sc1")


def map_proj(a, which):
    a(f"s_and_b32 s{S_T1}, s2, 7")
    a(f"s_lshr_b32 s{S_T0}, s2, 3")
    a(f"s_mov_b32 s{S_J}, s{S_T0}")
    a(f"s_mov_b32 s{S_XB}, s{S_T1}")
    if which == 3:
        a(f"s_mul_i32 s{S_ROT}, s{S_T0}, 52")
        a(f"s_lshr_b32 s{S_ROT}, s{S_ROT}, 8")
        a(f"s_mul_i32 s{S_ROT}, s{S_ROT}, 5")
        a(f"s_sub_u32 s{S_ROT}, s{S_T0}, s{S_ROT}")
        a(f"s_lshr_b32 s{S_T2}, s{S_T0}, 3")
        a(f"s_lshl_b32 s{S_T1}, s{S_T1}, 2")
        a(f"s_add_u32 s{S_T1}, s{S_T1}, s{S_T2}")
        a(f"s_lshl_b32 s{S_TOK0}, s{S_T1}, 6")
        a(f"s_and_b32 s{S_T0}, s{S_T0}, 7")
    else:
        a(f"s_and_b32 s{S_ROT}, s{S_T1}, 1")
        a(f"s_mul_i32 s{S_ROT}, s{S_ROT}, 6")
        a(f"s_and_b32 s{S_T2}, s{S_T0}, 1")
        a(f"s_add_u32 s{S_ROT}, s{S_ROT}, s{S_T2}")
        a(f"s_lshr_b32 s{S_T2}, s{S_T1}, 1")
        a(f"s_lshl_b32 s{S_T2}, s{S_T2}, 3")
        a(f"s_and_b32 s{S_TOK0}, s{S_T0}, 7")
        a(f"s_add_u32 s{S_TOK0}, s{S_TOK0}, s{S_T2}")
        a(f"s_lshl_b32 s{S_TOK0}, s{S_TOK0}, 6")
        a(f"s_and_b32 s{S_T1}, s{S_T1}, 1")
        a(f"s_lshl_b32 s{S_T1}, s{S_T1}, 2")
        a(f"s_lshr_b32 s{S_T0}, s{S_T0}, 3")
        a(f"s_add_u32 s{S_T0}, s{S_T0}, s{S_T1}")
    a(f"s_mul_i32 s{S_COL}, s{S_T0}, 160")


def srd_proj(a, which):
    if which == 3:
        make_srd(a, SRD0, P_WS, WS_O, S * D * 2)
        make_srd(a, SRD1, P_WS, WS_IMG, IMG_SZ)
        a(f"s_mul_i32 s{S_IMG}, s{S_T0}, {5*20480}")
        make_srd(a, SRD2, P_WS, WS_H, S * D * 2)
        make_srd(a, SRD3, P_X, 0, S * D * 2)
        make_srd(a, SRD4, P_WS, WS_ST, S * 64)
    else:
        make_srd(a, SRD0, P_WS, WS_ACT, S * F * 2)
        make_srd(a, SRD1, P_WS, WS_IMG, IMG_SZ)
        a(f"s_mul_i32 s{S_IMG}, s{S_T0}, {12*20480}")
        make_srd(a, SRD2, P_OUT, 0, S * D * 2)
        make_srd(a, SRD3, P_WS, WS_H, S * D * 2)


def map_k4(a):
    a(f"s_and_b32 s{S_XB}, s2, 7")
    a(f"s_lshr_b32 s{S_J}, s2, 3")
    a(f"s_mul_i32 s{S_ROT}, s{S_J}, 26")
    a(f"s_lshr_b32 s{S_ROT}, s{S_ROT}, 8")
    a(f"s_mul_i32 s{S_ROT}, s{S_ROT}, 10")
    a(f"s_sub_u32 s{S_ROT}, s{S_J}, s{S_ROT}")
    a(f"s_lshr_b32 s{S_T2}, s{S_XB}, 1")
    a(f"s_lshl_b32 s{S_T2}, s{S_T2}, 2")
    a(f"s_and_b32 s{S_TOK0}, s{S_J}, 3")
    a(f"s_add_u32 s{S_TOK0}, s{S_TOK0}, s{S_T2}")
    a(f"s_lshl_b32 s{S_TOK0}, s{S_TOK0}, 7")
    a(f"s_lshr_b32 s{S_T2}, s{S_J}, 2")
    a(f"s_and_b32 s{S_T1}, s{S_XB}, 1")
    a(f"s_lshl_b32 s{S_T1}, s{S_T1}, 3")
    a(f"s_add_u32 s{S_T0}, s{S_T2}, s{S_T1}")
    a(f"s_mul_i32 s{S_COL}, s{S_T0}, 192")
    a(f"s_mul_i32 s{S_IMG}, s{S_T0}, {10*24576}")
    make_srd(a, SRD0, P_WS, WS_H, S * D * 2)
    make_srd(a, SRD1, P_WS, WS_IMG, IMG_SZ)
    make_srd(a, SRD3, P_WS, WS_ACT, S * F * 2)


CNT = {0: (0, 7, 16), 1: (16, 7, 16), 2: (32, 6, 8)}
CNT_IMG = 64


def kv_wait(a, v_zero, q, nap):
    lab = a.newlabel("kw")
    a.label(lab)
    if nap:
        a(f"s_sleep {nap}")
    a(f"ds_read_b128 {vr(q,4)}, v{v_zero} offset:16")
    a("s_waitcnt lgkmcnt(0)")
    a(f"v_and_b32 v{q}, v{q}, v{q+1}")
    a(f"v_and_b32 v{q+2}, v{q+2}, v{q+3}")
    a(f"v_and_b32 v{q}, v{q}, v{q+2}")
    a("s_nop 0")
    a(f"v_readfirstlane_b32 s{S_T2}, v{q}")
    a("s_nop 3")
    a(f"s_cmp_lg_u32 s{S_T2}, -1")
    a(f"s_cbranch_scc1 {lab}")


def lds_wait(a, t, nap, cond):
    lab = a.newlabel("lw")
    a.label(lab)
    a(f"s_sleep {nap}")
    a(f"ds_read_b32 v{t[2]}, v{t[0]}")
    a("s_waitcnt lgkmcnt(0)")
    a(f"v_readfirstlane_b32 s{S_T2}, v{t[2]}")
    a("s_nop 3")
    a(cond.format(S_T2))
    a(f"s_cbranch_scc1 {lab}")


PT = os.environ.get("PT", "9").split(",")


def cnt_touch(a):
    a(f"v_mbcnt_lo_u32_b32 v{TDUM-1}, -1, 0")
    a(f"v_mbcnt_hi_u32_b32 v{TDUM-1}, -1, v{TDUM-1}")
    a(f"v_lshlrev_b32 v{TDUM-1}, 8, v{TDUM-1}")
    a(f"buffer_load_dword v{TDUM}, v{TDUM-1}, {sr(SRDC,4)}, 0 offen offset:128")


def publish(a, t, ph, touch=None):
    lab = a.newlabel("pub")
    if DEFER:
        a(f"s_mov_b32 s{S_DEF}, 0")
    a("s_mov_b64 exec, 1")
    a(f"v_mov_b32 v{t[0]}, {TAB + 3072 + 4*ph}")
    a(f"v_mov_b32 v{t[1]}, 1")
    a(f"s_lshr_b32 s{S_T1}, s{S_TOK0}, {CNT[ph][1]}")
    a(f"s_lshl_b32 s{S_T1}, s{S_T1}, 8")
    a(f"s_add_u32 s{S_T1}, s{S_T1}, {CNT[ph][0]*256}")
    a("s_waitcnt vmcnt(0)")
    rstamp(a, {2: 1, 0: 4, 1: 7}[ph])
    a(f"ds_add_rtn_u32 v{t[2]}, v{t[0]}, v{t[1]}")
    a(f"v_mov_b32 v{t[0]}, 0")
    a("s_waitcnt lgkmcnt(0)")
    a(f"v_readfirstlane_b32 s{S_T2}, v{t[2]}")
    a("s_nop 3")
    a(f"s_cmp_lg_u32 s{S_T2}, 3")
    a(f"s_cbranch_scc1 {lab}")
    if LOC:
        a(f"buffer_atomic_add v{t[1]}, v{t[0]}, {sr(SRDC,4)}, s{S_T1} offen offset:128")
        if DEFER:
            a(f"s_add_u32 s{S_T2}, s{S_T1}, 1")
            a(f"s_cmp_eq_u32 s{S_WAVE}, 0")
            a(f"s_cselect_b32 s{S_DEF}, s{S_T2}, 0")
            a(f"s_cbranch_scc1 {lab}")
    a(f"buffer_atomic_add v{t[1]}, v{t[0]}, {sr(SRDC,4)}, s{S_T1} offen sc1")
    a.label(lab)
    a("s_mov_b64 exec, -1")
    if touch and str(ph) in PT:
        touch()
        a("s_mov_b64 exec, -1")


def await_block(a, t, ph):
    l0, l1 = a.newlabel("aw"), a.newlabel("aw")

    def deferred():
        if not DEFER:
            return
        ld = a.newlabel("df")
        a(f"s_cmp_eq_u32 s{S_DEF}, 0")
        a(f"s_cbranch_scc1 {ld}")
        a(f"s_sub_u32 s{S_DEF}, s{S_DEF}, 1")
        a(f"v_mov_b32 v{TDUM}, 1")
        a(f"buffer_atomic_add v{TDUM}, v{t[0]}, {sr(SRDC,4)}, s{S_DEF} offen sc1")
        a(f"s_mov_b32 s{S_DEF}, 0")
        a.label(ld)
    a(f"s_cmp_lg_u32 s{S_WAVE}, 0")
    a(f"s_cbranch_scc1 {l1}")
    a("s_mov_b64 exec, 1")
    a(f"v_mov_b32 v{t[0]}, 0")
    a(f"s_lshr_b32 s{S_T1}, s{S_TOK0}, {CNT[ph][1]}")
    a(f"s_lshl_b32 s{S_T1}, s{S_T1}, 8")
    a(f"s_add_u32 s{S_T1}, s{S_T1}, {CNT[ph][0]*256}")
    a(f"s_mov_b32 s{S_KX}, 0x20000")
    a.label(l0)
    if LOC:
        lb, lw = a.newlabel("aw"), a.newlabel("aw")
        a(f"s_and_b32 s{S_T2}, s{S_KX}, {LOC}")
        a(f"s_cmp_eq_u32 s{S_T2}, 1")
        a(f"s_cbranch_scc1 {lb}")
        a(f"v_mov_b32 v{t[1]}, 0")
        a(f"buffer_atomic_add v{t[1]}, v{t[0]}, {sr(SRDC,4)}, s{S_T1} offen offset:128 sc0")
        a(f"s_branch {lw}")
        a.label(lb)
        deferred()
    a(f"buffer_load_dword v{t[1]}, v{t[0]}, {sr(SRDC,4)}, s{S_T1} offen sc1")
    if LOC:
        a.label(lw)
    a(f"s_sub_u32 s{S_KX}, s{S_KX}, 1")
    a("s_waitcnt vmcnt(0)")
    a(f"v_readfirstlane_b32 s{S_T2}, v{t[1]}")
    a(f"s_cmp_eq_u32 s{S_KX}, 0")
    a(f"s_cselect_b32 s{S_KW}, {CNT[ph][2]}, 0")
    a(f"s_max_u32 s{S_T2}, s{S_T2}, s{S_KW}")
    a(f"s_cmp_lt_u32 s{S_T2}, {CNT[ph][2]}")
    a(f"s_cbranch_scc1 {l0}")
    deferred()
    a("s_mov_b64 exec, -1")
    if PRET & 2 and ph != 1:
        cnt_touch(a)
    a.label(l1)
    a("s_barrier")
    rstamp(a, {2: 2, 0: 5, 1: 8}[ph])


def proj_gemm(a, va, which):
    seg = Seg(SRD1, D * 2, 80, 'p160', S_COL, img=(S_IMG, 20480, IMG_WO if which == 3 else IMG_WD))
    K = D if which == 3 else F
    return Gemm(a, va, 64, 2, 2, 1, [seg], 128, 4, K, SRD0, K * 2, S_TOK0, sregs=GS, tag=f"k{which}", xcm=True,
                lds_base=0 if which == 3 else 8192)


def proj_compute(a, va, g, which, sb):
    g.setup()
    t = g.tmp
    v_ad, v_tok, v_a4, v_c8, v_c4 = va(), va(), va(), va(), va()
    res = va(10, 2)
    a(f"v_lshl_add_u32 v{v_tok}, v{g.v_wt}, 1, v{g.v_wo}")
    a(f"v_lshl_add_u32 v{v_tok}, v{v_tok}, 4, v{g.v_i16}")
    a(f"v_add_u32 v{v_tok}, s{S_TOK0}, v{v_tok}")
    a(f"v_mul_u32_u24 v{t[0]}, {D*2}, v{v_tok}")
    a(f"v_add_u32 v{t[0]}, s{S_COL}, v{t[0]}")
    a(f"v_lshl_add_u32 v{v_ad}, v{g.v_g}, 3, v{t[0]}")
    a(f"v_and_b32 v{t[1]}, 1, v{g.v_g}")
    a(f"v_lshl_add_u32 v{v_a4}, v{t[1]}, 5, v{t[0]}")
    a(f"v_lshrrev_b32 v{t[1]}, 1, v{g.v_g}")
    a(f"v_lshl_add_u32 v{v_a4}, v{t[1]}, 4, v{v_a4}")
    a(f"v_and_b32 v{t[0]}, 0xfff0, v{v_tok}")
    a(f"v_mul_u32_u24 v{t[0]}, {D*2}, v{t[0]}")
    a(f"v_lshl_add_u32 v{t[0]}, v{g.v_i16}, 4, v{t[0]}")
    a(f"s_lshl_b32 s{S_T1}, s{S_COL}, 4")
    a(f"v_add_u32 v{t[0]}, s{S_T1}, v{t[0]}")
    a(f"v_lshl_add_u32 v{t[0]}, v{t[1]}, 8, v{t[0]}")
    a(f"v_and_b32 v{t[1]}, 1, v{g.v_g}")
    a(f"v_lshl_add_u32 v{v_c8}, v{t[1]}, 3, v{t[0]}")
    a(f"v_lshl_add_u32 v{v_c4}, v{t[1]}, 9, v{t[0]}")
    if which == 3:
        res = RES3
    await_block(a, t, 1 if which == 5 else 2)
    for fb in range(5):
        if which == 5:
            a(f"buffer_load_dwordx2 {vr(res+2*fb,2)}, v{v_c8}, {sr(SRD3,4)}, 0 offen offset:{fb*512} {HPOL}")
    stamp(a, sb)
    g.mainloop()
    stamp(a, sb + 1)
    rstamp(a, 3 if which == 3 else 9)
    a("s_nop 7")
    a(f"v_mul_u32_u24 v{t[0]}, 5120, v{g.v_wave}")
    a(f"v_lshl_add_u32 v{t[0]}, v{g.v_lane}, 4, v{t[0]}")
    a(f"v_add_u32 v{t[0]}, {XCH}, v{t[0]}")
    a(f"v_xor_b32 v{t[1]}, 2, v{g.v_wave}")
    a(f"v_mul_u32_u24 v{t[1]}, 5120, v{t[1]}")
    a(f"v_lshl_add_u32 v{t[1]}, v{g.v_lane}, 4, v{t[1]}")
    a(f"v_add_u32 v{t[1]}, {XCH}, v{t[1]}")
    for fb in range(5):
        a(f"ds_write_b128 v{t[0]}, {vr(g.acc[1][fb],4)} offset:{fb*1024}")
    a("s_waitcnt lgkmcnt(0)")
    a("s_barrier")
    for fb in range(5):
        a(f"ds_read_b128 {vr(g.acc[1][fb],4)}, v{t[1]} offset:{fb*1024}")
    v_s = va(2, 2)
    v_q = v_s + 1
    v_s2, v_q2 = va(2, 2), va(2, 2)
    assert t[1] % 2 == 0
    if which == 3:
        for r in (v_s2, v_s2 + 1, v_q2, v_q2 + 1):
            a(f"v_mov_b32 v{r}, 0")
    pol = HPOL if which == 3 else ""
    for fb in range(5):
        a(f"s_waitcnt lgkmcnt({4-fb})")
        c, o = g.acc[0][fb], g.acc[1][fb]
        dst = o if fb % 2 == 0 else g.acc[1][fb - 1] + 2
        for p in range(2):
            u = t[1] + 2 * p
            a(f"v_lshlrev_b32 v{u}, 16, v{res+2*fb+p}")
            a(f"v_and_b32 v{u+1}, 0xffff0000, v{res+2*fb+p}")
            a(f"v_pk_add_f32 {vr(c+2*p,2)}, {vr(c+2*p,2)}, {vr(o+2*p,2)}")
            a(f"v_cvt_pk_bf16_f32 v{c+2*p+1}, v{c+2*p}, v{c+2*p+1}")
            a(f"v_lshlrev_b32 v{c+2*p}, 16, v{c+2*p+1}")
            a(f"v_and_b32 v{c+2*p+1}, 0xffff0000, v{c+2*p+1}")
            a(f"v_pk_add_f32 {vr(u,2)}, {vr(u,2)}, {vr(c+2*p,2)}")
            a(f"v_cvt_pk_bf16_f32 v{dst+p}, v{u}, v{u+1}")
            if which == 3:
                a(f"v_lshlrev_b32 v{u}, 16, v{dst+p}")
                a(f"v_and_b32 v{u+1}, 0xffff0000, v{dst+p}")
                a(f"v_pk_add_f32 {vr(v_s2,2)}, {vr(v_s2,2)}, {vr(u,2)}")
                a(f"v_pk_fma_f32 {vr(v_q2,2)}, {vr(u,2)}, {vr(u,2)}, {vr(v_q2,2)}")
        if fb % 2 == 1:
            q = g.acc[1][fb - 1]
            a("s_nop 1")
            a(f"v_permlane16_swap_b32 v{q}, v{q+2}")
            a(f"v_permlane16_swap_b32 v{q+1}, v{q+3}")
            if which == 3:
                a(f"buffer_store_dwordx4 {vr(q,4)}, v{v_c4}, {sr(SRD2,4)}, 0 offen offset:{(fb-1)*512} {pol}")
            else:
                a(f"buffer_store_dwordx4 {vr(q,4)}, v{v_a4}, {sr(SRD2,4)}, 0 offen offset:{(fb-1)*32}")
        elif fb == 4:
            if which == 3:
                a(f"buffer_store_dwordx2 {vr(o,2)}, v{v_c8}, {sr(SRD2,4)}, 0 offen offset:{fb*512} {pol}")
            else:
                a(f"buffer_store_dwordx2 {vr(o,2)}, v{v_ad}, {sr(SRD2,4)}, 0 offen offset:{fb*32}")
    if which == 3:
        a(f"v_add_f32 v{v_s}, v{v_s2}, v{v_s2+1}")
        a(f"v_add_f32 v{v_q}, v{v_q2}, v{v_q2+1}")
        for w in (32, 16):
            a(f"v_mov_b32 v{t[0]}, v{v_s}")
            a(f"v_mov_b32 v{t[1]}, v{v_q}")
            a("s_nop 1")
            a(f"v_permlane{w}_swap_b32 v{v_s}, v{t[0]}")
            a(f"v_permlane{w}_swap_b32 v{v_q}, v{t[1]}")
            a("s_nop 1")
            a(f"v_add_f32 v{v_s}, v{v_s}, v{t[0]}")
            a(f"v_add_f32 v{v_q}, v{v_q}, v{t[1]}")
        a(f"v_lshlrev_b32 v{t[0]}, 3, v{v_tok}")
        a(f"s_lshl_b32 s{S_T0}, s{S_T0}, 14")
        a("s_mov_b64 exec, 0xffff")
        a(f"buffer_store_dwordx2 {vr(v_s,2)}, v{t[0]}, {sr(SRD4,4)}, s{S_T0} offen {pol}")
        stamp(a, sb + 2)
        publish(a, t, 0)


def k4_gemm(a, va):
    sg = Seg(SRD1, F * 2, 96, 'p192', S_COL, img=(S_IMG, 24576, IMG_GU))
    su = Seg(SRD1, F * 2, 96, 'p192', S_COL, img=(S_IMG, 24576, IMG_GU + 12288))
    return Gemm(a, va, 128, 2, 1, 2, [sg, su], 64, K4_NS, D, SRD0, D * 2, S_TOK0, sregs=GS, tag="k4", xcm=True, lds_base=20480)


def k4_compute(a, va, g, sb):
    g.setup()
    t = g.tmp
    v_tok, v_a4, v_b4, v_ta, v_tc = va(), va(), va(), va(), va()
    a(f"v_lshl_add_u32 v{v_tok}, v{g.v_wt}, 6, v{g.v_i16}")
    a(f"v_lshlrev_b32 v{v_ta}, 4, v{v_tok}")
    a(f"v_add_u32 v{v_ta}, {TAB}, v{v_ta}")
    a(f"v_add_u32 v{v_tok}, s{S_TOK0}, v{v_tok}")
    a(f"v_mul_u32_u24 v{t[1]}, 48, v{g.v_wo}")
    a(f"v_lshl_add_u32 v{t[2]}, v{g.v_g}, 2, v{t[1]}")
    a(f"v_lshlrev_b32 v{v_tc}, 2, v{t[2]}")
    a(f"v_add_u32 v{v_tc}, {TAB + 2048}, v{v_tc}")
    a(f"v_and_b32 v{t[0]}, 0xfff0, v{v_tok}")
    a(f"v_mul_u32_u24 v{t[0]}, {F*2}, v{t[0]}")
    a(f"v_lshl_add_u32 v{t[0]}, v{g.v_i16}, 4, v{t[0]}")
    a(f"v_lshl_add_u32 v{t[0]}, v{t[1]}, 5, v{t[0]}")
    a(f"s_lshl_b32 s{S_T1}, s{S_COL}, 4")
    a(f"v_add_u32 v{t[0]}, s{S_T1}, v{t[0]}")
    a(f"v_lshrrev_b32 v{t[1]}, 1, v{g.v_g}")
    a(f"v_lshl_add_u32 v{t[0]}, v{t[1]}, 8, v{t[0]}")
    a(f"v_and_b32 v{t[1]}, 1, v{g.v_g}")
    a(f"v_lshl_add_u32 v{v_a4}, v{t[1]}, 9, v{t[0]}")
    a(f"v_mul_u32_u24 v{t[1]}, {16*F*2}, v{t[1]}")
    a(f"v_add_u32 v{v_b4}, v{t[1]}, v{t[0]}")
    await_block(a, t, 0)
    stamp(a, sb)
    g.mainloop()
    stamp(a, sb + 1)
    rstamp(a, 6)
    st = g.fa[0]
    cs = g.fa[1]
    tmp = g.fb[0]
    for tb in range(4):
        a(f"ds_read_b128 {vr(st+4*tb,4)}, v{v_ta} offset:{tb*256}")
    for sgi in range(2):
        for fb in range(3):
            a(f"ds_read_b128 {vr(cs+12*sgi+4*fb,4)}, v{v_tc} offset:{sgi*384 + fb*64}")
    a("s_waitcnt lgkmcnt(0)")
    for tb in range(4):
        vm, vA, vB, vC = [st + 4 * tb + i for i in range(4)]
        pm, pB = vr(vm, 2), vr(vB, 2)
        for fb in range(3):
            cg, cu = g.acc[tb][fb], g.acc[tb][3 + fb]
            z = tmp + 8 * (fb & 1)
            for h in (0, 2):
                a(f"v_pk_fma_f32 {vr(cg+h,2)}, {pm}, {vr(cs+4*fb+h,2)}, {vr(cg+h,2)} op_sel_hi:[0,1,1]")
                a(f"v_pk_fma_f32 {vr(cu+h,2)}, {pm}, {vr(cs+12+4*fb+h,2)}, {vr(cu+h,2)} op_sel_hi:[0,1,1]")
            for h in (0, 2):
                a(f"v_pk_mul_f32 {vr(z+h,2)}, {vr(cg+h,2)}, {vr(cg+h,2)}")
                a(f"v_pk_mul_f32 {vr(cu+h,2)}, {vr(cu+h,2)}, {vr(cg+h,2)}")
            for h in (0, 2):
                a(f"v_pk_fma_f32 {vr(z+h,2)}, {vr(z+h,2)}, {pB}, {pm} op_sel:[0,0,1] op_sel_hi:[1,0,1]")
            for h in (0, 2):
                a(f"v_pk_mul_f32 {vr(z+h,2)}, {vr(z+h,2)}, {vr(cg+h,2)}")
            for r in range(4):
                a(f"v_exp_f32 v{z+r}, v{z+r}")
            for h in (0, 2):
                a(f"v_pk_fma_f32 {vr(z+h,2)}, {vr(z+h,2)}, {pB}, {pB} op_sel:[0,1,1] op_sel_hi:[1,1,1]")
            for r in range(4):
                a(f"v_rcp_f32 v{z+r}, v{z+r}")
            a("s_nop 0")
            for h in (0, 2):
                a(f"v_pk_mul_f32 {vr(cu+h,2)}, {vr(cu+h,2)}, {vr(z+h,2)}")
            if fb == 1:
                q, dst = g.acc[tb][3], g.acc[tb][3] + 2
            elif fb == 2 and tb % 2 == 1:
                q, dst = g.acc[tb - 1][5], g.acc[tb - 1][5] + 2
            else:
                q, dst = None, cu
            a(f"v_cvt_pk_bf16_f32 v{dst}, v{cu}, v{cu+1}")
            a(f"v_cvt_pk_bf16_f32 v{dst+1}, v{cu+2}, v{cu+3}")
            if q is not None:
                a(f"s_mov_b32 s{S_KW}, {(tb if fb == 1 else tb - 1)*16*F*2}")
                a("s_nop 0")
                a(f"v_permlane16_swap_b32 v{q}, v{q+2}")
                a(f"v_permlane16_swap_b32 v{q+1}, v{q+3}")
                if fb == 1:
                    a(f"buffer_store_dwordx4 {vr(q,4)}, v{v_a4}, {sr(SRD3,4)}, s{S_KW} offen {HPOL}")
                else:
                    a(f"buffer_store_dwordx4 {vr(q,4)}, v{v_b4}, {sr(SRD3,4)}, s{S_KW} offen offset:1024 {HPOL}")
    stamp(a, sb + 2)
    publish(a, t, 1)


class Ffn:
    pass


def ffn_compute(a):
    f = Ffn()
    maxv = 0
    va = VAlloc(1)
    g3 = proj_gemm(a, va, 3)
    g3.tmp = [va() for _ in range(6)]
    map_proj(a, 3)
    srd_proj(a, 3)
    proj_compute(a, va, g3, 3, 4)
    maxv = max(maxv, va.n)
    va = VAlloc(1)
    g4 = k4_gemm(a, va)
    g4.tmp = [va() for _ in range(6)]
    map_k4(a)
    k4_compute(a, va, g4, 7)
    maxv = max(maxv, va.n)
    va = VAlloc(1)
    g5 = proj_gemm(a, va, 5)
    g5.tmp = [va() for _ in range(6)]
    map_proj(a, 5)
    srd_proj(a, 5)
    proj_compute(a, va, g5, 5, 10)
    maxv = max(maxv, va.n)
    stamp_end(a, 12)
    assert g4.lds_bytes + g4.lds_base <= TAB and g5.lds_bytes + g5.lds_base <= TAB
    f.g3, f.g4, f.g5, f.maxv = g3, g4, g5, maxv
    return f


def ffn_loader(a, f):
    g3, g4, g5, maxv = f.g3, f.g4, f.g5, f.maxv
    GC = -2.0 * 0.7978845608028654 * 1.4426950408889634
    pre = {}

    def early4(lva, lt):
        make_srd(a, SRD4, P_WS, WS_ST, S * 64)
        buf = lva(16, 4)
        pre['buf'] = buf
        a(f"v_and_b32 v{lt[0]}, 127, v0")
        a(f"v_add_u32 v{lt[0]}, s{S_TOK0}, v{lt[0]}")
        a(f"v_lshlrev_b32 v{lt[0]}, 3, v{lt[0]}")
        for i in range(8):
            a(f"s_mov_b32 s{S_T1}, {i*16384}")
            a(f"buffer_load_dwordx2 {vr(buf+2*i,2)}, v{lt[0]}, {sr(SRD4,4)}, s{S_T1} offen {HPOL}")

    CSR = 104

    def cs4(lt):
        buf = CSR
        l3 = a.newlabel("k4e")
        a(f"s_cmp_lt_u32 s{S_WAVE}, 6")
        a(f"s_cbranch_scc1 {l3}")
        make_srd(a, SRD5, P_WS, WS_CS, NCS * 3072 * 4)
        a(f"s_lshr_b32 s{S_T2}, s{S_J}, 2")
        a(f"s_and_b32 s{S_T1}, s{S_XB}, 1")
        a(f"s_lshl_b32 s{S_T1}, s{S_T1}, 3")
        a(f"s_add_u32 s{S_T2}, s{S_T2}, s{S_T1}")
        a(f"s_mul_i32 s{S_T2}, s{S_T2}, 384")
        a(f"v_and_b32 v{lt[0]}, 63, v0")
        a(f"v_min_u32 v{lt[0]}, 23, v{lt[0]}")
        a(f"v_lshlrev_b32 v{lt[0]}, 4, v{lt[0]}")
        a(f"s_sub_u32 s{S_T1}, s{S_WAVE}, 6")
        a(f"s_mul_i32 s{S_T1}, s{S_T1}, {1536*4}")
        a(f"s_add_u32 s{S_T1}, s{S_T1}, s{S_T2}")
        for i in range(NCS):
            a(f"buffer_load_dwordx4 {vr(buf+4*i,4)}, v{lt[0]}, {sr(SRD5,4)}, s{S_T1} offen")
            a(f"s_add_u32 s{S_T1}, s{S_T1}, {3072*4}")
        a("s_waitcnt vmcnt(0)")
        a.label(l3)

    def table4(lva, lt):
        buf = pre['buf']
        l2, l3 = a.newlabel("k4e"), a.newlabel("k4e")
        a(f"s_cmp_ge_u32 s{S_WAVE}, 6")
        a(f"s_cbranch_scc1 {l2}")
        for i in range(1, 8):
            a(f"v_add_f32 v{buf}, v{buf}, v{buf+2*i}")
            a(f"v_add_f32 v{buf+1}, v{buf+1}, v{buf+2*i+1}")
        ln_stats(a, buf, buf + 1, buf + 4, buf + 8, lt)
        a(f"v_sub_f32 v{buf+4}, 0, v{buf+4}")
        a(f"v_mul_f32 v{buf+5}, {f32(GC)}, v{buf+8}")
        a(f"v_mul_f32 v{buf+9}, v{buf+8}, v{buf+8}")
        a(f"v_mul_f32 v{buf+6}, v{buf+9}, v{buf+8}")
        a(f"v_mul_f32 v{buf+6}, {f32(GC*0.044715)}, v{buf+6}")
        a(f"v_rcp_f32 v{buf+7}, v{buf+9}")
        a(f"v_lshlrev_b32 v{lt[0]}, 4, v0")
        a(f"v_add_u32 v{lt[0]}, {TAB}, v{lt[0]}")
        a(f"ds_write_b128 v{lt[0]}, {vr(buf+4,4)}")
        a(f"s_branch {l3}")
        a.label(l2)
        buf = CSR
        for k in range(1, NCS):
            for i in (0, 2):
                a(f"v_pk_add_f32 {vr(buf+i,2)}, {vr(buf+i,2)}, {vr(buf+4*k+i,2)}")
        a(f"v_and_b32 v{lt[0]}, 63, v0")
        a(f"v_min_u32 v{lt[0]}, 23, v{lt[0]}")
        a(f"v_lshlrev_b32 v{lt[0]}, 4, v{lt[0]}")
        a(f"s_sub_u32 s{S_T1}, s{S_WAVE}, 6")
        a(f"s_mul_i32 s{S_T1}, s{S_T1}, 384")
        a(f"s_add_u32 s{S_T1}, s{S_T1}, {TAB + 2048}")
        a(f"v_add_u32 v{lt[0]}, s{S_T1}, v{lt[0]}")
        a(f"ds_write_b128 v{lt[0]}, {vr(buf,4)}")
        a.label(l3)
        a("s_waitcnt lgkmcnt(0)")

    def touch_wd(lt):
        a(f"s_and_b32 s{S_T1}, s{S_XB}, 1")
        a(f"s_mul_i32 s{S_T1}, s{S_T1}, 983040")
        a(f"s_mul_i32 s{S_T2}, s{S_J}, {240*128}")
        a(f"s_add_u32 s{S_T1}, s{S_T1}, s{S_T2}")
        a(f"s_add_u32 s{S_T1}, s{S_T1}, {IMG_WD}")
        a(f"v_min_u32 v{lt[0]}, 239, v0")
        a(f"v_lshlrev_b32 v{lt[0]}, 7, v{lt[0]}")
        a(f"buffer_load_dword v{DUMMY}, v{lt[0]}, {sr(SRD1,4)}, s{S_T1} offen")
        ops.append(("t", 0))

    DUMMY = 100
    ops = []
    a("v_and_b32 v0, 255, v0")
    map_proj(a, 3)
    srd_proj(a, 3)
    g3.ld_prepare(S_ROT, head=False, xpol=XPOL, ops=ops)
    a(f"v_mov_b32 v{g3.lt[0]}, 0")
    lds_wait(a, g3.lt, 6, "s_cmp_lt_u32 s{}, 0xfe03")
    g3.lstamp(0)
    for st in range(3):
        g3.ld_issue(st, x=False)
    cs4(g3.lt)
    a("s_barrier")
    a("s_barrier")
    g3.ld_issue(3, x=False)
    a("s_barrier")

    def tail3(st):
        if st == 2:
            map_k4(a)
            g4.ld_prepare(S_ROT, head=False, xpol=XPOL, ops=ops)
            g4.lstamp(0)
        if st <= 4:
            g4.ld_issue(st - 2, x=False)
    g3.ld_run(wdone=True, tail=tail3)
    a("s_barrier")
    a("s_barrier")

    def tail4(st):
        if st == 8:
            a("s_setprio 2")
            table4(g4.lva, g4.lt)
            a("s_setprio 0")
        elif st == 9:
            map_proj(a, 5)
            srd_proj(a, 5)
            g5.ld_prepare(S_ROT, head=False, xpol=XPOL, ops=ops)
            g5.lstamp(0)
            g5.ld_issue(1, x=False)
        elif st == 10:
            g5.ld_issue(0, x=False)
            g5.ld_issue(2, x=False)
            g5.ld_issue(3, x=False)

    def mid4(st):
        if st == 3:
            early4(g4.lva, g4.lt)
            ops.extend([("e", 0)] * 8)
        if st == TWD:
            touch_wd(g4.lt)
    g4.ld_run(wdone=True, tail=tail4, mid=mid4)
    a("s_barrier")
    g5.ld_run(wdone=True)
    for g in (f.gq, g3, g4, g5):
        g.ld_dump()
    a("s_endpgm")
    assert max(g3.lva.n, g4.lva.n, g5.lva.n) < 89 and DUMMY < maxv

K4_NS = 3
TWD = int(os.environ.get('TWD', '9'))


def main():
    a = Asm()
    a.raw('.amdgcn_target "amdgcn-amd-amdhsa--gfx950"')
    a.raw(".text")
    launches = [gen_k2(a)]
    head = open("cdna_kernels/" + NAME + ".s.ref").read().split("\n")
    hdr = [l for l in head if l.startswith(";") and "@launch" not in l and "Override launch" not in l and "grid=ceil" not in l]
    out = "\n".join(hdr) + "\n"
    for n, gx, bx, lds in launches:
        out += f"; @launch kernel={n} grid=({gx},1,1) block=({bx},1,1) lds={lds}\n"
    out += a.text()
    out += '.section .rodata,"a"\n' + "".join(KDS)
    path = sys.argv[1] if len(sys.argv) > 1 else "cdna_kernels/" + NAME + ".s"
    open(path, "w").write(out)
    print("wrote", path, len(out), "bytes;", launches)

if __name__ == "__main__":
    main()
```
